```python
import torch

def _softmax(x, axis=-1):
    return torch.softmax(x, dim=axis)
def _gelu(x):
    return torch.nn.functional.gelu(x, approximate="tanh")
def _silu(x):
    return torch.nn.functional.silu(x)
def _sigmoid(x):
    return torch.sigmoid(x)
def _layernorm(x, axis=-1, eps=1e-5):
    m = x.mean(dim=axis, keepdim=True)
    v = x.var(dim=axis, keepdim=True, unbiased=False)
    return (x - m) / torch.sqrt(v + eps)
def _scatter_add(tgt, idx, src, axis=0):
    return tgt.clone().index_add_(axis, idx, src)
def _segment_sum(src, seg, n):
    out = torch.zeros((n,) + src.shape[1:], dtype=src.dtype)
    return out.index_add_(0, seg, src)
def _pad(x, pw):
    flat = tuple(v for pair in reversed(pw) for v in pair)
    return torch.nn.functional.pad(x, flat)

kernel_name = 'standalone__edge_featured_mpnn_gatedgcn__graph'

def setup_inputs():

    _w = (lambda a: (lambda t: t.to(torch.bfloat16) if t.is_floating_point() else t)(torch.as_tensor(a)))
    N, deg, D, De = 25000, 16, 128, max(16, 1)
    E = N * deg
    return {
        "x": _w((lambda *s: torch.randn(*s, dtype=torch.bfloat16) * 0.4)(N, D)),
        "e_attr": _w((lambda *s: torch.randn(*s, dtype=torch.bfloat16) * 0.4)(E, De)),
        "src": _w((lambda lo, hi, *s: torch.randint(lo, hi, s))(0, N, E).to(torch.int64)),
        "dst": _w((lambda lo, hi, *s: torch.randint(lo, hi, s))(0, N, E).to(torch.int64)),
        "w_a": _w((lambda *s: torch.randn(*s, dtype=torch.bfloat16) * 0.4)(D, D)),
        "w_b": _w((lambda *s: torch.randn(*s, dtype=torch.bfloat16) * 0.4)(D, D)),
        "w_c": _w((lambda *s: torch.randn(*s, dtype=torch.bfloat16) * 0.4)(De, D)),
        "w_u": _w((lambda *s: torch.randn(*s, dtype=torch.bfloat16) * 0.05)(D, D)),
        "w_v": _w((lambda *s: torch.randn(*s, dtype=torch.bfloat16) * 0.05)(D, D)),
    }

def reference(x, e_attr, src, dst, w_a, w_b, w_c, w_u, w_v):
    N, D = x.shape
    hv = x @ w_v
    g = x[dst] @ w_a + x[src] @ w_b + e_attr @ w_c
    eta = _sigmoid(g)
    denom = _segment_sum(eta, dst, N) + 1e-6
    eta_n = eta / denom[dst]
    agg = _segment_sum(eta_n * hv[src], dst, N)
    z = x @ w_u + agg
    relu_z = torch.where(z > 0, z, 0 * z)
    return x + relu_z
```

```python
import sys, struct

N = 25000; E = 400000; RN = 49; NR = 511; CH = 1600; NCH = 250
WS_REC = 0; WS_OFF = 0x200000; WS_WF = 0x300000; WS_SCR = 0x1000000; WS_SIZE = 0x4000000
WF_B = 0; WF_V = 0x8000; WF_A = 0x10000; WF_U = 0x18000; WF_C = 0x20000
NLOG2E = struct.unpack('<I', struct.pack('<f', -1.4426950408889634))[0]
EPS = struct.unpack('<I', struct.pack('<f', 1e-6))[0]
NAME = "standalone__edge_featured_mpnn_gatedgcn__graph"

OPT = dict(a.split('=') for a in sys.argv[2:]) if len(sys.argv) > 2 else {}

L = []
def o(s): L.append("    " + s)
def lab(s): L.append(s + ":")
def vr(b, n): return f"v[{b}:{b+n-1}]"
def srd(d, lo, size):
    o(f"s_mov_b32 s{d}, s{lo}"); o(f"s_and_b32 s{d+1}, s{lo+1}, 0xffff")
    o(f"s_mov_b32 s{d+2}, {size:#x}"); o(f"s_mov_b32 s{d+3}, 0x20000")
def scan64(v):
    for d in ("row_shr:1", "row_shr:2", "row_shr:4", "row_shr:8"):
        o("s_nop 1"); o(f"v_add_u32_dpp v{v}, v{v}, v{v} {d} row_mask:0xf bank_mask:0xf bound_ctrl:0")
    o("s_nop 1"); o(f"v_add_u32_dpp v{v}, v{v}, v{v} row_bcast:15 row_mask:0xa bank_mask:0xf")
    o("s_nop 1"); o(f"v_add_u32_dpp v{v}, v{v}, v{v} row_bcast:31 row_mask:0xc bank_mask:0xf")

K1_GRID = NCH + 17
K1_LDS = 4096 + CH * 4
def gen_k1():
    L.append(".globl gsort_kernel"); L.append(".p2align 8"); L.append(".type gsort_kernel,@function")
    lab("gsort_kernel")
    o(f"s_cmp_ge_u32 s2, {K1_GRID}"); o("s_cbranch_scc1 K1_END")
    o("s_load_dwordx2 s[12:13], s[0:1], 88")
    o(f"s_cmp_ge_u32 s2, {NCH}"); o("s_cbranch_scc1 K1_PREP")
    o("s_load_dwordx4 s[4:7], s[0:1], 16")
    o("v_lshlrev_b32 v1, 2, v0"); o("v_mov_b32 v2, 0")
    o("ds_write_b32 v1, v2")
    o(f"s_mul_i32 s3, s2, {CH*4}"); o("s_add_u32 s14, s3, 4096")
    o("v_cmp_gt_u32 vcc, 64, v0")
    o("s_waitcnt lgkmcnt(0)")
    srd(20, 6, E*4); srd(16, 4, E*4); srd(24, 12, WS_SIZE)
    o("s_mov_b64 s[28:29], vcc")
    for i in range(3):
        o(f"buffer_load_dword v{4+i}, v1, s[20:23], s{3 if i<2 else 14} offen offset:{(i&1)*2048}")
    for i in range(3):
        o(f"buffer_load_dword v{8+i}, v1, s[16:19], s{3 if i<2 else 14} offen offset:{(i&1)*2048}")
    o("s_mov_b64 exec, s[28:29]"); o("s_cbranch_execz K1_NO4A")
    o("buffer_load_dword v7, v1, s[20:23], s14 offen offset:2048")
    o("buffer_load_dword v11, v1, s[16:19], s14 offen offset:2048")
    lab("K1_NO4A")
    o("s_mov_b64 exec, -1")
    o("v_lshlrev_b32 v3, 23, v0"); o("v_mov_b32 v2, 1"); o(f"s_mov_b32 s15, {-RN}")
    o("s_barrier")
    o("s_waitcnt vmcnt(0)")
    def rank(i):
        o(f"v_mul_u32_u24 v{12+i}, 21400, v{4+i}")
        o(f"v_lshrrev_b32 v{12+i}, 20, v{12+i}")
        o(f"v_mad_i32_i24 v{4+i}, v{12+i}, s15, v{4+i}")
        o(f"v_lshlrev_b32 v{12+i}, 2, v{12+i}")
        o(f"ds_add_rtn_u32 v{16+i}, v{12+i}, v2")
        o(f"v_lshl_or_b32 v{8+i}, v{8+i}, 8, v3")
        o(f"v_lshl_or_b32 v{8+i}, v{4+i}, 2, v{8+i}")
        if i: o(f"v_or_b32 v{8+i}, {i}, v{8+i}")
    for i in range(3): rank(i)
    o("s_mov_b64 exec, s[28:29]"); o("s_cbranch_execz K1_NO4B")
    rank(3)
    lab("K1_NO4B")
    o("s_mov_b64 exec, -1")
    o("v_and_b32 v20, 63, v0"); o("v_lshlrev_b32 v20, 5, v20")
    o("s_waitcnt lgkmcnt(0)"); o("s_barrier")
    o("ds_read_b128 v[24:27], v20"); o("ds_read_b128 v[28:31], v20 offset:16")
    o("s_waitcnt lgkmcnt(0)")
    o("v_mov_b32 v33, v24")
    for j in range(2, 8): o(f"v_add_u32 v{32+j}, v{31+j}, v{23+j}")
    o("v_add_u32 v21, v39, v31"); o("v_mov_b32 v22, v21")
    scan64(21)
    o("v_sub_u32 v32, v21, v22")
    for j in range(1, 8): o(f"v_add_u32 v{32+j}, v32, v{32+j}")
    o("ds_write_b128 v20, v[32:35] offset:2048"); o("ds_write_b128 v20, v[36:39] offset:2064")
    for i in range(3): o(f"ds_read_b32 v{4+i}, v{12+i} offset:2048")
    o("s_mov_b64 exec, s[28:29]"); o("s_cbranch_execz K1_NO4C")
    o("ds_read_b32 v7, v15 offset:2048")
    for j in range(8): o(f"v_lshl_or_b32 v{24+j}, v{24+j}, 16, v{32+j}")
    o("s_lshl_b32 s30, s2, 11"); o(f"s_add_u32 s30, s30, {WS_OFF:#x}")
    o("buffer_store_dwordx4 v[24:27], v20, s[24:27], s30 offen")
    o("buffer_store_dwordx4 v[28:31], v20, s[24:27], s30 offen offset:16")
    o("s_waitcnt lgkmcnt(0)")
    o("v_add_lshl_u32 v7, v7, v19, 2"); o("ds_write_b32 v7, v11 offset:4096")
    lab("K1_NO4C")
    o("s_mov_b64 exec, -1")
    o("s_waitcnt lgkmcnt(0)")
    for i in range(3):
        o(f"v_add_lshl_u32 v{4+i}, v{4+i}, v{16+i}, 2"); o(f"ds_write_b32 v{4+i}, v{8+i} offset:4096")
    o("v_lshlrev_b32 v1, 4, v0")
    o(f"v_cmp_gt_u32 vcc, {CH//4}, v0")
    o("s_waitcnt lgkmcnt(0)"); o("s_barrier")
    o("s_and_saveexec_b64 s[28:29], vcc"); o("s_cbranch_execz K1_END")
    o("ds_read_b128 v[4:7], v1 offset:4096")
    o("s_waitcnt lgkmcnt(0)")
    o("buffer_store_dwordx4 v[4:7], v1, s[24:27], s3 offen")
    o("s_endpgm")
    lab("K1_PREP")
    o(f"s_sub_u32 s3, s2, {NCH}"); o("s_lshr_b32 s14, s3, 2")
    o("s_load_dwordx4 s[16:19], s[0:1], 32")
    o("s_load_dwordx4 s[20:23], s[0:1], 48")
    o("s_load_dwordx2 s[4:5], s[0:1], 64")
    o("v_and_b32 v1, 31, v0"); o("v_bfe_u32 v2, v0, 5, 1"); o("v_lshrrev_b32 v3, 6, v0")
    o("s_waitcnt lgkmcnt(0)")
    o("s_mov_b32 s15, 1.0")
    o("s_cmp_eq_u32 s14, 0"); o("s_cselect_b32 s4, s18, s4"); o("s_cselect_b32 s5, s19, s5"); o(f"s_cselect_b32 s15, {NLOG2E:#x}, s15")
    o("s_cmp_eq_u32 s14, 2"); o("s_cselect_b32 s4, s16, s4"); o("s_cselect_b32 s5, s17, s5")
    o("s_cmp_eq_u32 s14, 3"); o("s_cselect_b32 s4, s22, s4"); o("s_cselect_b32 s5, s23, s5")
    o("s_cbranch_scc0 K1_NOPERM")
    o("v_and_b32 v4, 3, v1"); o("v_lshrrev_b32 v5, 3, v1"); o("v_lshl_or_b32 v4, v5, 2, v4")
    o("v_bfe_u32 v5, v1, 2, 1"); o("v_lshl_or_b32 v1, v5, 4, v4")
    lab("K1_NOPERM")
    o("s_mov_b32 s10, 32768")
    o("s_cmp_eq_u32 s14, 4"); o("s_cselect_b32 s4, s20, s4"); o("s_cselect_b32 s5, s21, s5"); o(f"s_cselect_b32 s15, {NLOG2E:#x}, s15")
    o("s_cselect_b32 s10, 4096, s10")
    o("s_mov_b32 s8, s4"); o("s_and_b32 s9, s5, 0xffff"); o("s_mov_b32 s11, 0x20000")
    srd(24, 12, WS_SIZE)
    o("s_cmp_eq_u32 s14, 4"); o("s_cbranch_scc1 K1_PC")
    o("s_and_b32 s30, s3, 3"); o("s_lshl_b32 s30, s30, 6")
    o("v_lshlrev_b32 v4, 14, v2"); o("v_lshl_add_u32 v4, v3, 11, v4"); o("v_lshl_add_u32 v4, v1, 1, v4")
    o("v_add_u32 v4, s30, v4")
    o("s_branch K1_PL")
    lab("K1_PC")
    o("v_cmp_gt_u32 vcc, 256, v0")
    o("v_lshlrev_b32 v4, 11, v2"); o("v_lshl_add_u32 v4, v3, 6, v4"); o("v_lshl_add_u32 v4, v1, 1, v4")
    o("s_and_saveexec_b64 s[28:29], vcc"); o("s_cbranch_execz K1_END")
    lab("K1_PL")
    for j in range(8): o(f"buffer_load_ushort v{8+j}, v4, s[8:11], 0 offen offset:{j*256}")
    o("s_lshl_b32 s30, s3, 13"); o(f"s_add_u32 s30, s30, {WS_WF:#x}")
    o("v_lshlrev_b32 v5, 4, v0")
    o("s_waitcnt vmcnt(0)")
    for j in range(8):
        o(f"v_lshlrev_b32 v{8+j}, 16, v{8+j}"); o(f"v_mul_f32 v{8+j}, s15, v{8+j}")
    for j in range(4): o(f"v_cvt_pk_bf16_f32 v{16+j}, v{8+2*j}, v{9+2*j}")
    o("buffer_store_dwordx4 v[16:19], v5, s[24:27], s30 offen")
    lab("K1_END")
    o("s_endpgm")

CAPT = 30
LUT = 0; MLUT = 4096; NB = 4352; LIST = 4608; LIST_SZ = (CAPT + 5) * 256
MB = LIST + LIST_SZ; CNT = MB + (CAPT + 1) * 256; AT = CNT + 256
RING = AT + 16384; SLOT = 9344; K2_LDS = RING + 4 * SLOT
assert CNT + 256 - MB == 8192

class RA:
    def __init__(s): s.n = 1
    def get(s, k=1, al=1):
        s.n = (s.n + al - 1) // al * al
        b = s.n; s.n += k; return b
R = RA()
(vXA, vEA, vATA, vATB, vSA, vMA, vL1, vL2, vLC, vEL, vAGG, vSV, vREM, vCUR, vTAKE, vEB, vLE) = [R.get() for _ in range(17)]
vLX = R.get(2, 2)
vVO = R.get(3)
WB = R.get(32, 4); WV = R.get(32, 4); WC = R.get(4, 4)
GV = R.get(64, 4)
XF = R.get(16, 4)
EF = R.get(4, 4); SF = R.get(4, 4); AF = R.get(4, 4); MQ = R.get(4, 4)
T0 = R.get(8, 4); T1 = R.get(8, 4)
ACC = R.get(8, 4); TMP = R.get(8, 4)
UU = R.get(16, 4); XR = R.get(16, 4)
NVGPR = R.n
assert NVGPR <= 256, NVGPR
REC = EF; RANK = T0
sX, sE, sW, sO = 8, 12, 16, 20
sWAVE, sBASE, sMX, sME, sU, sNT1, sWOFF, sLIM, sFIRST, sMORE, sMASKX, sT0, sT1, sEPS, sSCR = range(24, 39)
sCM, sCM2, sMM, sSV = 40, 42, 44, 46

def m32(d, a, b, c): return f"v_mfma_f32_32x32x16_bf16 {vr(d,16)}, {vr(a,4)}, {vr(b,4)}, " + ("0" if c is None else vr(c,16))
def m16(d, a, b, c): return f"v_mfma_f32_16x16x32_bf16 {vr(d,4)}, {vr(a,4)}, {vr(b,4)}, " + ("0" if c is None else vr(c,4))

def dma_x(slot, a): return [f"s_add_u32 m0, s{sMX}, {slot*SLOT + a*1040}", "s_nop 0", f"buffer_load_dwordx4 v{vVO+a}, s[{sX}:{sX+3}], 0 offen lds"]
def dma_e(slot): return [f"s_add_u32 m0, s{sME}, {slot*SLOT}", "s_nop 0", f"buffer_load_dword v{vVO+2}, s[{sE}:{sE+3}], 0 offen lds"]
def voffs():
    return [f"v_and_or_b32 v{vVO}, v{vLX}, s{sMASKX}, v{vLC}", f"v_and_or_b32 v{vVO+1}, v{vLX+1}, s{sMASKX}, v{vLC}",
            f"v_add_u32 v{vVO+2}, v{vLE}, v{vEL}"]

def finalize(tag, back):
    o(f"s_cmp_eq_u32 s{sFIRST}, 1"); o(f"s_cbranch_scc1 {tag}_A")
    o(f"v_and_b32 v{TMP}, 63, v0"); o(f"v_lshlrev_b32 v{TMP}, 5, v{TMP}")
    o(f"buffer_load_dwordx4 {vr(TMP+4,4)}, v{TMP}, s[{sW}:{sW+3}], s{sSCR} offen offset:16")
    o(f"buffer_load_dwordx4 {vr(TMP,4)}, v{TMP}, s[{sW}:{sW+3}], s{sSCR} offen")
    o("s_waitcnt vmcnt(0)")
    for r in range(8): o(f"v_add_f32 v{ACC+r}, v{ACC+r}, v{TMP+r}")
    lab(f"{tag}_A")
    o(f"s_cmp_eq_u32 s{sMORE}, 0"); o(f"s_cbranch_scc1 {tag}_B")
    o(f"v_and_b32 v{TMP}, 63, v0"); o(f"v_lshlrev_b32 v{TMP}, 5, v{TMP}")
    o(f"buffer_store_dwordx4 {vr(ACC,4)}, v{TMP}, s[{sW}:{sW+3}], s{sSCR} offen")
    o(f"buffer_store_dwordx4 {vr(ACC+4,4)}, v{TMP}, s[{sW}:{sW+3}], s{sSCR} offen offset:16")
    o("s_waitcnt vmcnt(0)")
    o(f"s_branch {tag}_C")
    lab(f"{tag}_B")
    for r in range(4): o(f"v_add_f32 v{TMP+r}, s{sEPS}, v{ACC+r}")
    for r in range(4): o(f"v_rcp_f32 v{TMP+r}, v{TMP+r}")
    o("s_nop 0")
    for r in range(4): o(f"v_mul_f32 v{TMP+r}, v{TMP+r}, v{ACC+4+r}")
    o(f"v_cvt_pk_bf16_f32 v{TMP}, v{TMP}, v{TMP+1}"); o(f"v_cvt_pk_bf16_f32 v{TMP+1}, v{TMP+2}, v{TMP+3}")
    o(f"ds_write_b64 v{vAGG}, {vr(TMP,2)}")
    lab(f"{tag}_C")
    o(f"v_add_u32 v{vAGG}, 512, v{vAGG}"); o(f"s_add_u32 s{sSCR}, s{sSCR}, 2048")

def body(b):
    Gn = GV + 32 * (b % 2); Vn = Gn + 16
    Gc = GV + 32 * ((b + 1) % 2); Vc = Gc + 16
    so = b * SLOT
    pre = ["s_waitcnt vmcnt(6)", "s_barrier",
           ('ds', 'e', f"ds_read_b128 {vr(EF,4)}, v{vEA} offset:{so}")]
    for s in range(4): pre.append(('ds', f'x{s}', f"ds_read_b128 {vr(XF+4*s,4)}, v{vXA} offset:{so+16*s}"))
    ds_ = (b + 3) % 4
    seq = []
    seq.append((['t0a', 't0b'], m16(ACC, Gn, T0, ACC), 16, dma_x(ds_, 0)))
    seq.append(([], m16(ACC+4, Vn, T0, ACC+4), 16, dma_x(ds_, 1)))
    seq.append(([], m16(ACC, Gn+4, T0+4, ACC), 16, dma_e(ds_)))
    seq.append(([], m16(ACC+4, Vn+4, T0+4, ACC+4), 16,
                [f"s_bitcmp1_b64 s[{sCM2}:{sCM2+1}], s{sU}", f"s_cbranch_scc1 FL{b}", f"FLR{b}:",
                 f"s_cmp_eq_u32 s{sU}, s{sNT1}", "s_cbranch_scc1 LOOP_EXIT"]))
    seq.append((['s', 'at'], m32(Gn, SF, AF, None), 32,
                [f"s_bitcmp1_b64 s[{sCM}:{sCM+1}], s{sU}", f"s_cselect_b32 s{sT0}, 512, 0", f"s_add_u32 s{sWOFF}, s{sWOFF}, s{sT0}",
                 ('ds', 'sa', f"ds_read_u8 v{vSV}, v{vSA} offset:{(b+1)*256}"),
                 ('v', f"v_add_u32 v{vATA}, s{sWOFF}, v{vATB}")]))
    seq.append((['e'], m32(Gn, EF, WC, Gn), 32, [('ds', 'at', f"ds_read_b128 {vr(AF,4)}, v{vATA}")]))
    for s in range(8):
        f = XF + 4 * (s % 4)
        ex1 = []; ex2 = []
        if s < 4: ex2.append(('ds', f'x{s+4}', f"ds_read_b128 {vr(f,4)}, v{vXA} offset:{so+16*(s+4)}"))
        if s == 1: ex1.append(('ds', 'mb', f"ds_read_b128 {vr(MQ,4)}, v{vMA} offset:{b*256}"))
        if s == 2: ex1 += [('need', 'sa'), ('ds', 's', f"ds_read_b128 {vr(SF,4)}, v{vSV} offset:{MLUT}")]
        if s == 4: ex1 += [('ds', 'l1', f"ds_read2_b32 {vr(vLX,2)}, v{vL1} offset0:{b*64} offset1:{b*64+4}"),
                           ('ds', 'l2', f"ds_read_b32 v{vLE}, v{vL2} offset:{b*256}")]
        if s == 4: ex2 += [('need', 'mb'), f"s_mov_b64 exec, s[{sMM}:{sMM+1}]",
                           ('ds', 't0a', f"ds_read_b128 {vr(T0,4)}, v{MQ}"), ('ds', 't0b', f"ds_read_b128 {vr(T0+4,4)}, v{MQ+1}"),
                           "s_mov_b64 exec, -1"]
        if s == 6: ex2 += [('need', 'l1'), ('need', 'l2')] + [('v', x) for x in voffs()]
        if s == 7:
            ex1.append(f"s_add_u32 s{sU}, s{sU}, 1")
            if b == 3: ex1 += [('v', f"v_add_u32 v{r}, 0x400, v{r}") for r in (vSA, vMA, vL1, vL2)]
        seq.append(([f'x{s}'], m32(Gn, f, WB+4*s, Gn), 32, ex1))
        seq.append(([], m32(Vn, f, WV+4*s, None if s == 0 else Vn), 32, ex2))
    A = []
    for p in range(0, 22, 2):
        if p < 16: A += [(f"v_exp_f32 v{Gc+p}, v{Gc+p}", 8), (f"v_exp_f32 v{Gc+p+1}, v{Gc+p+1}", 8)]
        q = p - 2
        if 0 <= q < 16:
            A += [(f"v_add_f32 v{Gc+q}, 1.0, v{Gc+q}", 4), (f"v_add_f32 v{Gc+q+1}, 1.0, v{Gc+q+1}", 4),
                  (f"v_rcp_f32 v{Gc+q}, v{Gc+q}", 8), (f"v_rcp_f32 v{Gc+q+1}, v{Gc+q+1}", 8)]
        q = p - 4
        if 0 <= q < 16: A += [(f"v_mul_f32 v{Vc+q}, v{Gc+q}, v{Vc+q}", 4), (f"v_mul_f32 v{Vc+q+1}, v{Gc+q+1}, v{Vc+q+1}", 4)]
        q = p - 6
        if 0 <= q < 16: A += [(f"v_cvt_pk_bf16_f32 v{Gc+q//2}, v{Gc+q}, v{Gc+q+1}", 4), (f"v_cvt_pk_bf16_f32 v{Vc+q//2}, v{Vc+q}, v{Vc+q+1}", 4)]
    room = [cyc - 8 - 4 * sum(1 for x in ex if isinstance(x, tuple) and x[0] == 'v') for (_, _, cyc, ex) in seq]
    room[0] = 0
    tot = sum(c for _, c in A); scale = tot / sum(max(r, 0) for r in room)
    out = list(pre); ai = 0; acc = 0; budget = 0
    for (needs, m, cyc, ex), rm in zip(seq, room):
        for n in needs: out.append(('need', n))
        out.append(m)
        budget += max(rm, 0) * scale
        branchy = any(isinstance(x, str) and 'cbranch' in x for x in ex)
        if not branchy: out += [x[1] if (isinstance(x, tuple) and x[0] == 'v') else x for x in ex]
        while ai < len(A) and acc + A[ai][1] / 2 <= budget:
            out.append(A[ai][0]); acc += A[ai][1]; ai += 1
        if branchy: out += ex
    while ai < len(A): out.append(A[ai][0]); ai += 1
    return out

def emit_loop():
    bodies = [body(b) for b in range(4)]
    issued = 0; done = 0; last = {}
    for rnd in range(2):
        for b in range(4):
            if rnd == 1:
                if b == 0: lab("LOOP")
            for it in bodies[b]:
                if isinstance(it, tuple) and it[0] == 'ds':
                    issued += 1; last[it[1]] = issued
                    if rnd == 1: o(it[2])
                elif isinstance(it, tuple) and it[0] == 'need':
                    idx = last.get(it[1], 0)
                    if idx > done:
                        n = issued - idx
                        assert n <= 15
                        done = idx
                        if rnd == 1: o(f"s_waitcnt lgkmcnt({n})")
                elif rnd == 1:
                    if it.endswith(':'): lab(it[:-1])
                    else: o(it)
    o("s_branch LOOP")
    for b in range(4):
        Gn = GV + 32 * (b % 2); Vn = Gn + 16
        lab(f"FL{b}")
        o(f"s_mov_b64 exec, s[{sMM}:{sMM+1}]")
        o(f"ds_read_b128 {vr(T1,4)}, v{MQ+2}"); o(f"ds_read_b128 {vr(T1+4,4)}, v{MQ+3}")
        o("s_mov_b64 exec, -1")
        o("s_nop 3")
        finalize(f"FL{b}", None)
        o("s_waitcnt lgkmcnt(0)")
        o(m16(ACC, Gn, T1, None)); o(m16(ACC+4, Vn, T1, None))
        o(m16(ACC, Gn+4, T1+4, ACC)); o(m16(ACC+4, Vn+4, T1+4, ACC+4))
        o(f"s_branch FLR{b}")

def gen_k2():
    L.append(".globl gmain_kernel"); L.append(".p2align 8"); L.append(".type gmain_kernel,@function")
    lab("gmain_kernel")
    t = [XF + i for i in range(16)]
    o("s_load_dwordx4 s[4:7], s[0:1], 0")
    o("s_load_dwordx2 s[48:49], s[0:1], 72"); o("s_load_dwordx2 s[50:51], s[0:1], 88")
    o("s_and_b32 s3, s2, 7"); o("s_lshl_b32 s3, s3, 6"); o(f"s_lshr_b32 s{sT0}, s2, 3"); o(f"s_add_u32 s3, s3, s{sT0}")
    o("s_cmp_ge_u32 s2, 512"); o("s_cbranch_scc1 K2_END")
    o(f"s_cmp_ge_u32 s3, {NR}"); o("s_cbranch_scc1 K2_END")
    o(f"v_lshrrev_b32 v{t[0]}, 6, v0")
    o(f"v_lshlrev_b32 v{vCUR}, 11, v0")
    o(f"v_readfirstlane_b32 s{sWAVE}, v{t[0]}")
    o(f"s_lshl_b32 s{sT0}, s3, 2"); o(f"s_add_u32 s{sT0}, s{sT0}, {WS_OFF:#x}")
    o(f"v_add_u32 v{vCUR}, s{sT0}, v{vCUR}")
    o(f"v_cmp_gt_u32 vcc, {NCH}, v0")
    o(f"s_mul_i32 s{sBASE}, s3, {RN}")
    o(f"v_mov_b32 v{t[1]}, 0x7ffffff0")
    o(f"v_cndmask_b32 v{vCUR}, v{t[1]}, v{vCUR}, vcc")
    vl = t[2]; ve = t[3]; vh = t[4]; vq = t[5]
    o(f"v_and_b32 v{vl}, 63, v0"); o(f"v_lshrrev_b32 v{vq}, 4, v{vl}")
    o(f"v_and_b32 v{t[6]}, 15, v0"); o(f"v_bfe_u32 v{t[7]}, v0, 4, 1"); o(f"v_lshlrev_b32 v{t[8]}, 3, v{t[7]}")
    o(f"v_xor_b32 v{vLC}, v{t[6]}, v{t[8]}"); o(f"v_lshlrev_b32 v{vLC}, 4, v{vLC}")
    o(f"v_lshrrev_b32 v{vh}, 5, v{vl}")
    o("s_waitcnt lgkmcnt(0)")
    srd(sW, 50, WS_SIZE)
    o(f"buffer_load_dword v{vREM}, v{vCUR}, s[{sW}:{sW+3}], 0 offen")
    srd(sX, 4, N*256)
    o(f"s_lshr_b32 s{sT0}, s{sWAVE}, 1"); o(f"s_lshl_b32 s{sT0}, s{sT0}, 4"); o(f"s_and_b32 s{sT1}, s{sWAVE}, 1"); o(f"s_lshl_b32 s{sT1}, s{sT1}, 2")
    o(f"s_add_u32 s{sT0}, s{sT0}, s{sT1}"); o(f"s_add_u32 s{sT0}, s{sT0}, s{sBASE}"); o(f"s_lshl_b32 s{sT0}, s{sT0}, 8")
    o(f"s_mul_i32 s{sMX}, s{sWAVE}, 2080"); o(f"s_add_u32 s{sMX}, s{sMX}, {RING}")
    o(f"v_lshl_add_u32 v{t[8]}, v{vh}, 3, v{t[7]}"); o(f"v_lshl_add_u32 v{t[8]}, v{t[8]}, 8, v{vLC}")
    o(f"v_add_u32 v{vVO}, s{sT0}, v{t[8]}"); o(f"v_add_u32 v{vVO+1}, 512, v{vVO}")
    for x in dma_x(0, 0) + dma_x(0, 1): o(x)
    o(f"v_add_u32 v{vVO}, 0x2000, v{vVO}"); o(f"v_add_u32 v{vVO+1}, 0x2000, v{vVO+1}")
    for x in dma_x(1, 0) + dma_x(1, 1): o(x)
    vwf = t[9]
    o(f"v_lshlrev_b32 v{vwf}, 4, v{vl}")
    o(f"s_lshl_b32 s52, s{sWAVE}, 13"); o(f"s_add_u32 s52, s52, {WS_WF:#x}")
    def wload(dst, off, n):
        for s in range(n):
            if s % 4 == 0: o(f"s_add_u32 s{sT0}, s52, {off + s*1024:#x}")
            o(f"buffer_load_dwordx4 {vr(dst+4*s,4)}, v{vwf}, s[{sW}:{sW+3}], s{sT0} offen offset:{(s%4)*1024}")
    wload(GV, WF_A, 8); wload(GV+32, WF_U, 8)
    srd(sE, 6, E*32); srd(sO, 48, N*256)
    o(f"v_and_b32 v{ve}, 31, v0")
    o(f"v_lshrrev_b32 v{t[6]}, 4, v{ve}"); o(f"v_bfe_u32 v{t[8]}, v{ve}, 1, 2"); o(f"v_lshl_or_b32 v{t[6]}, v{t[6]}, 2, v{t[8]}")
    o(f"v_mul_u32_u24 v{t[6]}, 1040, v{t[6]}")
    o(f"v_and_b32 v{t[8]}, 1, v{ve}"); o(f"v_bfe_u32 v{t[10]}, v{ve}, 3, 1"); o(f"v_lshl_or_b32 v{t[10]}, v{t[10]}, 1, v{t[8]}")
    o(f"v_lshl_add_u32 v{t[6]}, v{t[10]}, 8, v{t[6]}"); o(f"v_add_u32 v{t[6]}, {RING}, v{t[6]}")
    o(f"v_xor_b32 v{t[10]}, v{vh}, v{t[8]}"); o(f"v_lshl_add_u32 v{vXA}, v{t[10]}, 7, v{t[6]}")
    o(f"s_lshr_b32 s{sT0}, s{sWAVE}, 1"); o(f"v_xor_b32 v{t[10]}, s{sT0}, v{t[8]}"); o(f"v_lshl_add_u32 v{vSV}, v{t[10]}, 7, v{t[6]}")
    o(f"s_and_b32 s{sT1}, s{sWAVE}, 1"); o(f"s_lshl_b32 s{sT1}, s{sT1}, 6")
    o(f"v_lshl_add_u32 v{vSV}, v{vh}, 5, v{vSV}"); o(f"v_add_u32 v{vSV}, s{sT1}, v{vSV}")
    vp = t[11]
    o(f"v_and_b32 v{vp}, 0x13, v{ve}"); o(f"v_bfe_u32 v{t[8]}, v{ve}, 2, 1"); o(f"v_lshl_or_b32 v{vp}, v{t[8]}, 3, v{vp}")
    o(f"v_bfe_u32 v{t[8]}, v{ve}, 3, 1"); o(f"v_lshl_or_b32 v{vp}, v{t[8]}, 2, v{vp}")
    o(f"v_lshrrev_b32 v{t[8]}, 4, v{vp}"); o(f"v_xor_b32 v{t[8]}, v{t[8]}, v{vh}"); o(f"v_lshlrev_b32 v{t[8]}, 4, v{t[8]}")
    o(f"v_lshl_add_u32 v{vEA}, v{vp}, 5, v{t[8]}"); o(f"v_add_u32 v{vEA}, {RING+8320}, v{vEA}")
    o(f"s_lshl_b32 s{sT0}, s{sT0}, 2"); o(f"v_and_b32 v{t[8]}, 7, v0"); o(f"v_xor_b32 v{t[8]}, s{sT0}, v{t[8]}"); o(f"v_lshlrev_b32 v{vEL}, 2, v{t[8]}")
    o(f"s_lshl_b32 s{sME}, s{sWAVE}, 8"); o(f"s_add_u32 s{sME}, s{sME}, {RING+8320}")
    o(f"s_lshl_b32 s53, s{sWAVE}, 12"); o(f"s_add_u32 s53, s53, {AT}")
    o(f"v_add_u32 v{vATB}, s53, v{vwf}")
    o(f"v_mul_u32_u24 v{vEB}, {CH*32}, v0")
    o(f"s_mov_b32 s{sMASKX}, 0xffff00"); o(f"s_mov_b32 s{sEPS}, {EPS:#x}")
    o(f"s_mov_b32 s{sMM}, 0xff0000ff"); o(f"s_mov_b32 s{sMM+1}, 0xff0000ff")
    o(f"s_mov_b32 s{sFIRST}, 1"); o(f"s_mov_b32 s{sLIM}, 16")
    for d in range(4):
        o(f"v_bfe_u32 v{TMP+d}, v0, {2*d}, 2"); o(f"v_mul_u32_u24 v{TMP+d}, 0x8001, v{TMP+d}")
        o(f"v_and_b32 v{TMP+d}, 0x10001, v{TMP+d}"); o(f"v_mul_u32_u24 v{TMP+d}, 0x3f80, v{TMP+d}")
    o(f"v_lshlrev_b32 v{t[8]}, 4, v0"); o(f"ds_write_b128 v{t[8]}, {vr(TMP,4)} offset:{LUT}")
    o(f"v_add_u32 v{t[10]}, -1, v0"); o(f"v_and_b32 v{t[10]}, v{t[10]}, v0"); o(f"v_cmp_eq_u32 vcc, 0, v{t[10]}")
    o(f"v_ffbl_b32 v{t[10]}, v0"); o(f"v_lshlrev_b32 v{t[10]}, 4, v{t[10]}"); o(f"v_add_u32 v{t[10]}, 16, v{t[10]}")
    o(f"s_and_saveexec_b64 s[{sSV}:{sSV+1}], vcc")
    o(f"ds_write_b128 v{t[10]}, {vr(TMP,4)} offset:{MLUT}")
    o("s_mov_b64 exec, -1")
    o("s_waitcnt vmcnt(20)")
    o(f"v_and_b32 v{vCUR}, 0xffff, v{vREM}"); o(f"v_lshrrev_b32 v{vREM}, 16, v{vREM}")
    o(f"v_mul_u32_u24 v{t[10]}, {CH}, v0"); o(f"v_add_lshl_u32 v{vCUR}, v{vCUR}, v{t[10]}, 2")
    lab("ROUND")
    for k in range(4): o(f"buffer_load_dwordx4 {vr(REC+4*k,4)}, v{vCUR}, s[{sW}:{sW+3}], 0 offen offset:{16*k}")
    o(f"v_lshlrev_b32 v{t[8]}, 4, v0")
    for d in range(4): o(f"v_mov_b32 v{TMP+d}, 0")
    o(f"ds_write_b128 v{t[8]}, {vr(TMP,4)} offset:{MB}"); o(f"ds_write_b128 v{t[8]}, {vr(TMP,4)} offset:{MB+4096}")
    o(f"v_mov_b32 v{TMP+4}, 0xffff00"); o(f"v_mov_b32 v{TMP+5}, 0x7fffffc0"); o(f"v_mov_b32 v{TMP+6}, 0xffff00"); o(f"v_mov_b32 v{TMP+7}, 0x7fffffc0")
    o(f"ds_write_b128 v{t[8]}, {vr(TMP+4,4)} offset:{LIST}"); o(f"ds_write_b128 v{t[8]}, {vr(TMP+4,4)} offset:{LIST+4096}")
    o(f"ds_write_b128 v{t[8]}, {vr(TMP+4,4)} offset:{LIST+LIST_SZ-4096}")
    o(f"s_cmp_eq_u32 s{sFIRST}, 0"); o("s_cbranch_scc1 NOGEMM")
    wload(WB, WF_B, 8); wload(WV, WF_V, 8)
    o(f"s_lshl_b32 s{sT0}, s{sWAVE}, 10"); o(f"s_add_u32 s{sT0}, s{sT0}, {WS_WF+WF_C:#x}")
    o(f"buffer_load_dwordx4 {vr(WC,4)}, v{vwf}, s[{sW}:{sW+3}], s{sT0} offen")
    o(f"v_lshlrev_b32 v{vATA}, 4, v{ve}"); o(f"v_lshl_add_u32 v{vATA}, v{vh}, 3, v{vATA}"); o(f"v_add_u32 v{vATA}, s53, v{vATA}")
    o(f"s_mov_b32 s{sT1}, {NLOG2E:#x}")
    o("s_waitcnt vmcnt(21) lgkmcnt(0)"); o("s_barrier")
    for mt in range(2):
        for s in range(4): o(f"ds_read_b128 {vr(XF+4*s,4)}, v{vXA} offset:{mt*SLOT+16*s}")
        for s in range(8):
            f = XF + 4 * (s % 4)
            o(f"s_waitcnt lgkmcnt({3 if s < 5 else 7 - s})")
            o(m32(ACC, f, GV+4*s, None if s == 0 else ACC))
            o(m32(XR, GV+32+4*s, f, None if s == 0 else XR))
            if s < 4: o(f"ds_read_b128 {vr(f,4)}, v{vXA} offset:{mt*SLOT+16*(s+4)}")
        o("s_nop 10")
        for r in range(16): o(f"v_mul_f32 v{ACC+r}, s{sT1}, v{ACC+r}")
        for r in range(0, 16, 2): o(f"v_cvt_pk_bf16_f32 v{ACC+r//2}, v{ACC+r}, v{ACC+r+1}")
        for g in range(4): o(f"ds_write_b64 v{vATA}, {vr(ACC+2*g,2)} offset:{(4*mt+g)*512}")
        for r in range(0, 16, 2): o(f"v_cvt_pk_bf16_f32 v{UU+8*mt+r//2}, v{XR+r}, v{XR+r+1}")
        o("s_waitcnt lgkmcnt(0)")
    for mt in range(2):
        for k in range(2): o(f"ds_read_b128 {vr(XR+8*mt+4*k,4)}, v{vSV} offset:{mt*SLOT+16*k}")
    o("s_waitcnt vmcnt(17)")
    o("s_branch RANK")
    lab("NOGEMM")
    o("s_waitcnt vmcnt(0) lgkmcnt(0)"); o("s_barrier")
    lab("RANK")
    o(f"v_min_u32 v{vTAKE}, s{sLIM}, v{vREM}")
    o(f"v_mov_b32 v{t[0]}, 1"); o(f"v_mov_b32 v{t[1]}, {CNT+252}")
    o(f"v_cmp_gt_u32 vcc, v{vREM}, v{vTAKE}")
    o(f"s_and_saveexec_b64 s[{sSV}:{sSV+1}], vcc")
    o(f"ds_write_b32 v{t[1]}, v{t[0]}")
    o("s_mov_b64 exec, -1")
    for k in range(16):
        o(f"v_cmpx_lt_u32 vcc, {k}, v{vTAKE}"); o("s_cbranch_execz P1_DONE")
        o(f"v_and_b32 v{t[1]}, 0xfc, v{REC+k}")
        o(f"ds_add_rtn_u32 v{RANK+k}, v{t[1]}, v{t[0]} offset:{CNT}")
    lab("P1_DONE")
    o("s_mov_b64 exec, -1")
    o(f"v_and_b32 v{t[2]}, 63, v0"); o(f"v_lshlrev_b32 v{t[1]}, 2, v{t[2]}")
    o("s_waitcnt lgkmcnt(0)"); o("s_barrier")
    o(f"ds_read_b32 v{t[3]}, v{t[1]} offset:{CNT}")
    o(f"v_and_b32 v{t[5]}, 7, v0"); o(f"v_cmp_eq_u32 vcc, 7, v{t[5]}"); o(f"v_cmp_gt_u32 s[{sSV}:{sSV+1}], 48, v{t[2]}")
    o(f"s_and_b64 vcc, vcc, s[{sSV}:{sSV+1}]")
    o("s_waitcnt lgkmcnt(0)")
    o(f"v_readlane_b32 s{sMORE}, v{t[3]}, 63")
    o(f"v_add_u32_dpp v{t[4]}, v{t[3]}, v{t[3]} quad_perm:[1,0,3,2] row_mask:0xf bank_mask:0xf"); o("s_nop 1")
    o(f"v_add_u32_dpp v{t[4]}, v{t[4]}, v{t[4]} quad_perm:[2,3,0,1] row_mask:0xf bank_mask:0xf"); o("s_nop 1")
    o(f"v_add_u32_dpp v{t[4]}, v{t[4]}, v{t[4]} row_half_mirror row_mask:0xf bank_mask:0xf")
    o(f"v_sub_u32 v{t[4]}, 32, v{t[4]}"); o(f"v_max_i32 v{t[4]}, 0, v{t[4]}"); o(f"v_cndmask_b32 v{t[4]}, 0, v{t[4]}, vcc")
    o(f"v_add_u32 v{t[3]}, v{t[3]}, v{t[4]}"); o(f"v_mov_b32 v{t[4]}, v{t[3]}")
    scan64(t[3])
    o(f"v_sub_u32 v{t[4]}, v{t[3]}, v{t[4]}")
    o(f"ds_swizzle_b32 v{t[5]}, v{t[4]} offset:0x0018")
    o(f"v_readlane_b32 s{sNT1}, v{t[3]}, 48")
    o(f"s_mov_b64 s[{sCM}:{sCM+1}], 0")
    for w in range(6):
        o(f"v_readlane_b32 s{sT0}, v{t[3]}, {8*w+7}"); o(f"s_sub_u32 s{sT0}, s{sT0}, 1"); o(f"s_lshr_b32 s{sT0}, s{sT0}, 5")
        o(f"s_bitset1_b64 s[{sCM}:{sCM+1}], s{sT0}")
    o(f"s_cmp_le_u32 s{sNT1}, {CAPT*32}"); o("s_cbranch_scc1 FITS")
    o(f"s_mov_b32 s{sLIM}, 3"); o(f"v_mov_b32 v{t[0]}, 0")
    o("s_waitcnt lgkmcnt(0)"); o("s_barrier")
    o(f"ds_write_b32 v{t[1]}, v{t[0]} offset:{CNT}")
    o("s_waitcnt lgkmcnt(0)"); o("s_barrier")
    o("s_branch RANK")
    lab("FITS")
    o(f"s_add_u32 s{sNT1}, s{sNT1}, 63"); o(f"s_lshr_b32 s{sNT1}, s{sNT1}, 5")
    o(f"s_lshl_b64 s[{sCM2}:{sCM2+1}], s[{sCM}:{sCM+1}], 2")
    o("s_waitcnt lgkmcnt(0)")
    o(f"v_lshl_or_b32 v{t[4]}, v{t[5]}, 16, v{t[4]}")
    o(f"ds_write_b32 v{t[1]}, v{t[4]} offset:{NB}")
    o(f"s_mov_b32 s{sT0}, 0x7fff00"); o(f"s_movk_i32 s{sT1}, 0x7fe0")
    for k in range(16):
        o(f"v_cmpx_lt_u32 vcc, {k}, v{vTAKE}"); o("s_cbranch_execz P2A_DONE")
        o(f"v_and_b32 v{t[1]}, 0xfc, v{REC+k}")
        o(f"ds_read_b32 v{GV+k}, v{t[1]} offset:{NB}")
    lab("P2A_DONE")
    o("s_mov_b64 exec, -1")
    o("s_waitcnt lgkmcnt(0)")
    for k in range(16):
        rec = REC + k; nb = GV + k; pos = RANK + k
        o(f"v_cmpx_lt_u32 vcc, {k}, v{vTAKE}"); o("s_cbranch_execz P2_DONE")
        o(f"v_add_u32 v{pos}, v{pos}, v{nb}")
        o(f"v_lshrrev_b32 v{nb}, 16, v{nb}")
        o(f"v_and_b32 v{t[0]}, s{sT1}, v{pos}")
        o(f"v_cmp_lt_u32 vcc, v{t[0]}, v{nb}")
        o(f"v_and_b32 v{t[1]}, 0x1c, v{rec}")
        o(f"v_lshl_add_u32 v{t[2]}, v{t[1]}, 2, 16")
        o(f"v_cndmask_b32 v{t[3]}, 0, 8, vcc")
        o(f"v_mul_u32_u24 v{t[4]}, 3, v{t[3]}")
        o(f"v_lshlrev_b32 v{t[2]}, v{t[4]}, v{t[2]}")
        o(f"v_and_or_b32 v{t[6]}, v{rec}, s{sT0}, v{t[2]}")
        o(f"v_alignbit_b32 v{t[7]}, v{rec}, v{rec}, 18"); o(f"v_and_b32 v{t[7]}, 0xffe0, v{t[7]}"); o(f"v_add_u32 v{t[7]}, v{t[7]}, v{vEB}")
        o(f"v_and_b32 v{pos}, 0xffff, v{pos}")
        o(f"v_lshlrev_b32 v{t[5]}, 3, v{pos}")
        o(f"ds_write_b64 v{t[5]}, {vr(t[6],2)} offset:{LIST}")
        o(f"v_add_lshl_u32 v{t[0]}, v{t[0]}, v{t[1]}, 3")
        o(f"v_and_b32 v{t[1]}, 8, v{pos}"); o(f"v_lshl_add_u32 v{t[0]}, v{t[1]}, 1, v{t[0]}")
        o(f"v_bfe_u32 v{t[1]}, v{pos}, 4, 1"); o(f"v_lshl_or_b32 v{t[1]}, v{t[1]}, 2, v{t[3]}")
        o(f"v_and_b32 v{t[2]}, 7, v{pos}"); o(f"v_lshlrev_b32 v{t[2]}, v{t[2]}, 16")
        o(f"v_add_u32 v{t[0]}, v{t[0]}, v{t[1]}")
        o(f"ds_or_b32 v{t[0]}, v{t[2]} offset:{MB+256}")
    lab("P2_DONE")
    o("s_mov_b64 exec, -1")
    o(f"v_and_b32 v{t[0]}, 0x13, v0"); o(f"v_bfe_u32 v{t[1]}, v0, 2, 1"); o(f"v_lshl_or_b32 v{t[0]}, v{t[1]}, 3, v{t[0]}")
    o(f"v_bfe_u32 v{t[1]}, v0, 3, 1"); o(f"v_lshl_or_b32 v{t[0]}, v{t[1]}, 2, v{t[0]}")
    o(f"v_bfe_u32 v{t[2]}, v0, 5, 1"); o(f"v_mul_u32_u24 v{t[3]}, 3, v{t[2]}")
    o(f"v_lshl_add_u32 v{vSA}, v{t[0]}, 3, v{t[3]}"); o(f"v_add_u32 v{vSA}, {LIST}, v{vSA}")
    o(f"v_and_b32 v{t[0]}, 7, v0"); o(f"v_lshlrev_b32 v{vMA}, 5, v{t[0]}"); o(f"v_lshl_add_u32 v{vMA}, v{t[2]}, 4, v{vMA}"); o(f"v_add_u32 v{vMA}, {MB}, v{vMA}")
    o(f"v_lshlrev_b32 v{vAGG}, 6, v{t[0]}"); o(f"v_lshl_add_u32 v{vAGG}, v{t[1]}, 5, v{vAGG}")
    o(f"v_bfe_u32 v{t[3]}, v0, 4, 2"); o(f"v_lshl_add_u32 v{vAGG}, v{t[3]}, 3, v{vAGG}"); o(f"v_add_u32 v{vAGG}, s53, v{vAGG}")
    o(f"s_lshl_b32 s{sT0}, s{sWAVE}, 6"); o(f"s_add_u32 s{sT0}, s{sT0}, {LIST}")
    o(f"v_bfe_u32 v{t[0]}, v0, 4, 1"); o(f"v_lshl_add_u32 v{t[0]}, v{t[2]}, 2, v{t[0]}"); o(f"v_lshl_add_u32 v{vL1}, v{t[0]}, 3, s{sT0}")
    o(f"v_and_b32 v{t[0]}, 0x38, v0"); o(f"v_add3_u32 v{vL2}, v{t[0]}, s{sT0}, 4")
    o("s_waitcnt lgkmcnt(0)"); o("s_barrier")
    for k in range(4):
        o(f"ds_read2_b32 {vr(t[0]+4*k,2)}, v{vL1} offset0:{k*64} offset1:{k*64+4}")
        o(f"ds_read_b32 v{t[2]+4*k}, v{vL2} offset:{k*256}")
    o(f"ds_read_u8 v{vSV}, v{vSA}")
    o(f"ds_read_b128 {vr(AF,4)}, v{vATB}")
    for k in range(4):
        o(f"s_waitcnt lgkmcnt({8-2*k})")
        o(f"v_and_or_b32 v{vVO}, v{t[0]+4*k}, s{sMASKX}, v{vLC}"); o(f"v_and_or_b32 v{vVO+1}, v{t[1]+4*k}, s{sMASKX}, v{vLC}")
        o(f"v_add_u32 v{vVO+2}, v{t[2]+4*k}, v{vEL}")
        if k < 3:
            for x in dma_x(k, 0) + dma_x(k, 1) + dma_e(k): o(x)
    o("s_waitcnt lgkmcnt(1)")
    o(f"ds_read_b128 {vr(SF,4)}, v{vSV} offset:{MLUT}")
    o(f"v_add_u32 v{vL1}, 0x400, v{vL1}"); o(f"v_add_u32 v{vL2}, 0x400, v{vL2}")
    for r in list(range(GV, GV+8)) + list(range(GV+16, GV+24)) + list(range(GV+32, GV+64)) + list(range(T0, T0+16)) + list(range(ACC, ACC+8)):
        o(f"v_mov_b32 v{r}, 0")
    o(f"s_mov_b32 s{sU}, 0"); o(f"s_mov_b32 s{sWOFF}, 0")
    o(f"s_lshl_b32 s{sSCR}, s2, 2"); o(f"s_add_u32 s{sSCR}, s{sSCR}, s{sWAVE}"); o(f"s_lshl_b32 s{sSCR}, s{sSCR}, 14"); o(f"s_add_u32 s{sSCR}, s{sSCR}, {WS_SCR:#x}")
    o("s_waitcnt lgkmcnt(0)")
    emit_loop()
    lab("LOOP_EXIT")
    o("s_nop 7")
    finalize("FIN", None)
    o(f"s_cmp_eq_u32 s{sMORE}, 0"); o("s_cbranch_scc1 EPI")
    o(f"v_sub_u32 v{vREM}, v{vREM}, v{vTAKE}"); o(f"v_lshl_add_u32 v{vCUR}, v{vTAKE}, 2, v{vCUR}")
    o(f"s_mov_b32 s{sFIRST}, 0"); o(f"s_mov_b32 s{sLIM}, 16")
    o("s_waitcnt vmcnt(0) lgkmcnt(0)"); o("s_barrier")
    o("s_branch ROUND")
    lab("EPI")
    g = GV
    o("s_waitcnt lgkmcnt(0)")
    o(f"v_and_b32 v{t[0]}, 31, v0"); o(f"v_bfe_u32 v{t[1]}, v0, 5, 1")
    o(f"v_lshlrev_b32 v{t[2]}, 6, v{t[0]}"); o(f"v_lshl_add_u32 v{t[2]}, v{t[1]}, 5, v{t[2]}"); o(f"v_add_u32 v{t[2]}, s53, v{t[2]}")
    for mt in range(2):
        for k in range(2): o(f"ds_read_b128 {vr(g+8*mt+4*k,4)}, v{t[2]} offset:{mt*2048+16*k}")
    o(f"s_lshl_b32 s{sT0}, s{sBASE}, 8"); o(f"s_lshl_b32 s{sT1}, s{sWAVE}, 6"); o(f"s_add_u32 s{sT0}, s{sT0}, s{sT1}")
    o(f"v_lshlrev_b32 v{t[3]}, 8, v{t[0]}"); o(f"v_lshl_add_u32 v{t[3]}, v{t[1]}, 5, v{t[3]}"); o(f"v_add_u32 v{t[3]}, s{sT0}, v{t[3]}")
    o(f"s_mov_b32 s{sT1}, 0xffff0000")
    for mt in range(2):
        o(f"s_waitcnt lgkmcnt({2-2*mt})")
        if mt == 1:
            o(f"v_cmpx_gt_u32 vcc, {RN-32}, v{t[0]}"); o(f"v_add_u32 v{t[3]}, 0x2000, v{t[3]}")
        for k in range(8):
            a = g + 8*mt + k; u = UU + 8*mt + k; x = XR + 8*mt + k; q = g + 16
            o(f"v_lshlrev_b32 v{q}, 16, v{a}"); o(f"v_and_b32 v{q+1}, s{sT1}, v{a}")
            o(f"v_lshlrev_b32 v{q+2}, 16, v{u}"); o(f"v_and_b32 v{q+3}, s{sT1}, v{u}")
            o(f"v_add_f32 v{q}, v{q}, v{q+2}"); o(f"v_add_f32 v{q+1}, v{q+1}, v{q+3}")
            o(f"v_lshlrev_b32 v{q+2}, 16, v{x}"); o(f"v_and_b32 v{q+3}, s{sT1}, v{x}")
            o(f"v_max_f32 v{q}, 0, v{q}"); o(f"v_max_f32 v{q+1}, 0, v{q+1}")
            o(f"v_add_f32 v{q}, v{q}, v{q+2}"); o(f"v_add_f32 v{q+1}, v{q+1}, v{q+3}")
            o(f"v_cvt_pk_bf16_f32 v{a}, v{q}, v{q+1}")
        for k in range(2): o(f"buffer_store_dwordx4 {vr(g+8*mt+4*k,4)}, v{t[3]}, s[{sO}:{sO+3}], 0 offen offset:{16*k}")
    lab("K2_END")
    o("s_endpgm")

def kd(name, nv, ns):
    L.append(".p2align 6")
    L.append(f".amdhsa_kernel {name}")
    for k, v in (("next_free_vgpr", nv), ("next_free_sgpr", ns), ("accum_offset", (nv + 3) // 4 * 4), ("group_segment_fixed_size", 0),
                 ("kernarg_size", 96), ("user_sgpr_count", 2), ("user_sgpr_kernarg_segment_ptr", 1), ("system_sgpr_workgroup_id_x", 1),
                 ("float_denorm_mode_32", 3)):
        L.append(f"  .amdhsa_{k} {v}")
    L.append(".end_amdhsa_kernel")

hdr = [l for l in open(f"cdna_kernels/{NAME}.s.ref").read().splitlines() if l.startswith(";") and "@launch" not in l
       and "Override launch" not in l and "grid=ceil" not in l]
L += hdr
L.append(f"; @launch kernel=gsort_kernel grid=({K1_GRID},1,1) block=(512,1,1) lds={K1_LDS}")
L.append(f"; @launch kernel=gmain_kernel grid=(512,1,1) block=(256,1,1) lds={K2_LDS}")
L.append('.amdgcn_target "amdgcn-amd-amdhsa--gfx950"'); L.append(".text")
gen_k1(); gen_k2()
L.append('.section .rodata,"a"')
kd("gsort_kernel", 40, 40); kd("gmain_kernel", NVGPR, 60)
open(sys.argv[1], "w").write("\n".join(L) + "\n")
print("vgprs", NVGPR, "lds", K2_LDS, "lines", len(L), file=sys.stderr)
```

```python
import sys, struct

N = 25000; E = 400000; RN = 49; NR = 511; CH = 1600; NCH = 250
WS_REC = 0; WS_OFF = 0x200000; WS_WF = 0x300000; WS_SCR = 0x1000000; WS_SIZE = 0x4000000
WF_B = 0; WF_V = 0x8000; WF_A = 0x10000; WF_U = 0x18000; WF_C = 0x20000
NLOG2E = struct.unpack('<I', struct.pack('<f', -1.4426950408889634))[0]
EPS = struct.unpack('<I', struct.pack('<f', 1e-6))[0]
NAME = "standalone__edge_featured_mpnn_gatedgcn__graph"

OPT = dict(a.split('=') for a in sys.argv[2:]) if len(sys.argv) > 2 else {}

STAMP = int(OPT.get('stamp', 0))
WS_STAMP = 0x3800000
L = []
def stamp(i):
    if STAMP: o(f"s_memrealtime s[{64+2*i}:{65+2*i}]")
def stamp_out(n, reg, srdn, kern):
    if not STAMP: return
    o("s_mov_b64 exec, -1")
    o(f"s_memrealtime s[{64+2*n}:{65+2*n}]"); o(f"s_memtime s[{66+2*n}:{67+2*n}]"); o("s_waitcnt lgkmcnt(0)")
    o(f"v_lshrrev_b32 v{reg}, 6, v0"); o(f"v_lshlrev_b32 v{reg}, 6, v{reg}")
    o(f"s_lshl_b32 s63, s2, 9"); o(f"s_add_u32 s63, s63, {WS_STAMP + kern*0x100000:#x}")
    for i in range(n+2):
        o(f"v_mov_b32 v{reg+1}, s{64+2*i}")
        o(f"buffer_store_dword v{reg+1}, v{reg}, s[{srdn}:{srdn+3}], s63 offen offset:{4*i}")
def o(s): L.append("    " + s)
def lab(s): L.append(s + ":")
def vr(b, n): return f"v[{b}:{b+n-1}]"
def srd(d, lo, size):
    o(f"s_mov_b32 s{d}, s{lo}"); o(f"s_and_b32 s{d+1}, s{lo+1}, 0xffff")
    o(f"s_mov_b32 s{d+2}, {size:#x}"); o(f"s_mov_b32 s{d+3}, 0x20000")
def scan64(v):
    for d in ("row_shr:1", "row_shr:2", "row_shr:4", "row_shr:8"):
        o("s_nop 1"); o(f"v_add_u32_dpp v{v}, v{v}, v{v} {d} row_mask:0xf bank_mask:0xf bound_ctrl:0")
    o("s_nop 1"); o(f"v_add_u32_dpp v{v}, v{v}, v{v} row_bcast:15 row_mask:0xa bank_mask:0xf")
    o("s_nop 1"); o(f"v_add_u32_dpp v{v}, v{v}, v{v} row_bcast:31 row_mask:0xc bank_mask:0xf")

K1_GRID = NCH + 17
K1_LDS = 4096 + CH * 4
def gen_k1():
    L.append(".globl gsort_kernel"); L.append(".p2align 8"); L.append(".type gsort_kernel,@function")
    lab("gsort_kernel")
    o(f"s_cmp_ge_u32 s2, {K1_GRID}"); o("s_cbranch_scc1 K1_END")
    o("s_load_dwordx2 s[12:13], s[0:1], 88")
    o(f"s_cmp_ge_u32 s2, {NCH}"); o("s_cbranch_scc1 K1_PREP")
    o("s_load_dwordx4 s[4:7], s[0:1], 16"); stamp(0)
    o("v_lshlrev_b32 v1, 2, v0"); o("v_mov_b32 v2, 0")
    o("ds_write_b32 v1, v2")
    o(f"s_mul_i32 s3, s2, {CH*4}"); o("s_add_u32 s14, s3, 4096")
    o("v_cmp_gt_u32 vcc, 64, v0")
    o("s_waitcnt lgkmcnt(0)")
    srd(20, 6, E*4); srd(16, 4, E*4); srd(24, 12, WS_SIZE)
    o("s_mov_b64 s[28:29], vcc")
    for i in range(3):
        o(f"buffer_load_dword v{4+i}, v1, s[20:23], s{3 if i<2 else 14} offen offset:{(i&1)*2048}")
    for i in range(3):
        o(f"buffer_load_dword v{8+i}, v1, s[16:19], s{3 if i<2 else 14} offen offset:{(i&1)*2048}")
    o("s_mov_b64 exec, s[28:29]"); o("s_cbranch_execz K1_NO4A")
    o("buffer_load_dword v7, v1, s[20:23], s14 offen offset:2048")
    o("buffer_load_dword v11, v1, s[16:19], s14 offen offset:2048")
    lab("K1_NO4A")
    o("s_mov_b64 exec, -1")
    o("v_lshlrev_b32 v3, 23, v0"); o("v_mov_b32 v2, 1"); o(f"s_mov_b32 s15, {-RN}")
    o("s_barrier")
    o("s_waitcnt vmcnt(0)"); stamp(1)
    def rank(i):
        o(f"v_mul_u32_u24 v{12+i}, 21400, v{4+i}")
        o(f"v_lshrrev_b32 v{12+i}, 20, v{12+i}")
        o(f"v_mad_i32_i24 v{4+i}, v{12+i}, s15, v{4+i}")
        o(f"v_lshlrev_b32 v{12+i}, 2, v{12+i}")
        o(f"ds_add_rtn_u32 v{16+i}, v{12+i}, v2")
        o(f"v_lshl_or_b32 v{8+i}, v{8+i}, 8, v3")
        o(f"v_lshl_or_b32 v{8+i}, v{4+i}, 2, v{8+i}")
        if i: o(f"v_or_b32 v{8+i}, {i}, v{8+i}")
    for i in range(3): rank(i)
    o("s_mov_b64 exec, s[28:29]"); o("s_cbranch_execz K1_NO4B")
    rank(3)
    lab("K1_NO4B")
    o("s_mov_b64 exec, -1")
    o("v_and_b32 v20, 63, v0"); o("v_lshlrev_b32 v20, 5, v20")
    o("s_waitcnt lgkmcnt(0)"); o("s_barrier")
    o("ds_read_b128 v[24:27], v20"); o("ds_read_b128 v[28:31], v20 offset:16")
    o("s_waitcnt lgkmcnt(0)")
    o("v_mov_b32 v33, v24")
    for j in range(2, 8): o(f"v_add_u32 v{32+j}, v{31+j}, v{23+j}")
    o("v_add_u32 v21, v39, v31"); o("v_mov_b32 v22, v21")
    scan64(21)
    o("v_sub_u32 v32, v21, v22")
    for j in range(1, 8): o(f"v_add_u32 v{32+j}, v32, v{32+j}")
    o("ds_write_b128 v20, v[32:35] offset:2048"); o("ds_write_b128 v20, v[36:39] offset:2064")
    for i in range(3): o(f"ds_read_b32 v{4+i}, v{12+i} offset:2048")
    o("s_mov_b64 exec, s[28:29]"); o("s_cbranch_execz K1_NO4C")
    o("ds_read_b32 v7, v15 offset:2048")
    for j in range(8): o(f"v_lshl_or_b32 v{24+j}, v{24+j}, 16, v{32+j}")
    o("s_lshl_b32 s30, s2, 11"); o(f"s_add_u32 s30, s30, {WS_OFF:#x}")
    o("buffer_store_dwordx4 v[24:27], v20, s[24:27], s30 offen")
    o("buffer_store_dwordx4 v[28:31], v20, s[24:27], s30 offen offset:16")
    o("s_waitcnt lgkmcnt(0)")
    o("v_add_lshl_u32 v7, v7, v19, 2"); o("ds_write_b32 v7, v11 offset:4096")
    lab("K1_NO4C")
    o("s_mov_b64 exec, -1")
    o("s_waitcnt lgkmcnt(0)")
    for i in range(3):
        o(f"v_add_lshl_u32 v{4+i}, v{4+i}, v{16+i}, 2"); o(f"ds_write_b32 v{4+i}, v{8+i} offset:4096")
    o("v_lshlrev_b32 v1, 4, v0")
    o(f"v_cmp_gt_u32 vcc, {CH//4}, v0")
    o("s_waitcnt lgkmcnt(0)"); o("s_barrier")
    o("s_and_saveexec_b64 s[28:29], vcc"); o("s_cbranch_execz K1_END")
    o("ds_read_b128 v[4:7], v1 offset:4096")
    o("s_waitcnt lgkmcnt(0)")
    o("buffer_store_dwordx4 v[4:7], v1, s[24:27], s3 offen")
    stamp_out(2, 10, 24, 0)
    o("s_endpgm")
    lab("K1_PREP")
    o(f"s_sub_u32 s3, s2, {NCH}"); o("s_lshr_b32 s14, s3, 2")
    o("s_load_dwordx4 s[16:19], s[0:1], 32")
    o("s_load_dwordx4 s[20:23], s[0:1], 48")
    o("s_load_dwordx2 s[4:5], s[0:1], 64")
    o("v_and_b32 v1, 31, v0"); o("v_bfe_u32 v2, v0, 5, 1"); o("v_lshrrev_b32 v3, 6, v0")
    o("s_waitcnt lgkmcnt(0)")
    o("s_mov_b32 s15, 1.0")
    o("s_cmp_eq_u32 s14, 0"); o("s_cselect_b32 s4, s18, s4"); o("s_cselect_b32 s5, s19, s5"); o(f"s_cselect_b32 s15, {NLOG2E:#x}, s15")
    o("s_cmp_eq_u32 s14, 2"); o("s_cselect_b32 s4, s16, s4"); o("s_cselect_b32 s5, s17, s5")
    o("s_cmp_eq_u32 s14, 3"); o("s_cselect_b32 s4, s22, s4"); o("s_cselect_b32 s5, s23, s5")
    o("s_cbranch_scc0 K1_NOPERM")
    o("v_and_b32 v4, 3, v1"); o("v_lshrrev_b32 v5, 3, v1"); o("v_lshl_or_b32 v4, v5, 2, v4")
    o("v_bfe_u32 v5, v1, 2, 1"); o("v_lshl_or_b32 v1, v5, 4, v4")
    lab("K1_NOPERM")
    o("s_mov_b32 s10, 32768")
    o("s_cmp_eq_u32 s14, 4"); o("s_cselect_b32 s4, s20, s4"); o("s_cselect_b32 s5, s21, s5"); o(f"s_cselect_b32 s15, {NLOG2E:#x}, s15")
    o("s_cselect_b32 s10, 4096, s10")
    o("s_mov_b32 s8, s4"); o("s_and_b32 s9, s5, 0xffff"); o("s_mov_b32 s11, 0x20000")
    srd(24, 12, WS_SIZE)
    o("s_cmp_eq_u32 s14, 4"); o("s_cbranch_scc1 K1_PC")
    o("s_and_b32 s30, s3, 3"); o("s_lshl_b32 s30, s30, 6")
    o("v_lshlrev_b32 v4, 14, v2"); o("v_lshl_add_u32 v4, v3, 11, v4"); o("v_lshl_add_u32 v4, v1, 1, v4")
    o("v_add_u32 v4, s30, v4")
    o("s_branch K1_PL")
    lab("K1_PC")
    o("v_cmp_gt_u32 vcc, 256, v0")
    o("v_lshlrev_b32 v4, 11, v2"); o("v_lshl_add_u32 v4, v3, 6, v4"); o("v_lshl_add_u32 v4, v1, 1, v4")
    o("s_and_saveexec_b64 s[28:29], vcc"); o("s_cbranch_execz K1_END")
    lab("K1_PL")
    for j in range(8): o(f"buffer_load_ushort v{8+j}, v4, s[8:11], 0 offen offset:{j*256}")
    o("s_lshl_b32 s30, s3, 13"); o(f"s_add_u32 s30, s30, {WS_WF:#x}")
    o("v_lshlrev_b32 v5, 4, v0")
    o("s_waitcnt vmcnt(0)")
    for j in range(8):
        o(f"v_lshlrev_b32 v{8+j}, 16, v{8+j}"); o(f"v_mul_f32 v{8+j}, s15, v{8+j}")
    for j in range(4): o(f"v_cvt_pk_bf16_f32 v{16+j}, v{8+2*j}, v{9+2*j}")
    o("buffer_store_dwordx4 v[16:19], v5, s[24:27], s30 offen")
    lab("K1_END")
    o("s_endpgm")

CAPT = 30
LUT = 0; MLUT = 4096; NB = 4352; LIST = 4608; LIST_SZ = (CAPT + 5) * 256
MB = LIST + LIST_SZ; CNT = MB + (CAPT + 1) * 256; AT = CNT + 256
RING = AT + 16384; SLOT = 9344; K2_LDS = RING + 4 * SLOT
assert CNT + 256 - MB == 8192

class RA:
    def __init__(s): s.n = 1
    def get(s, k=1, al=1):
        s.n = (s.n + al - 1) // al * al
        b = s.n; s.n += k; return b
R = RA()
(vXA, vEA, vATA, vATB, vSA, vMA, vL1, vL2, vLC, vEL, vAGG, vSV, vREM, vCUR, vTAKE, vEB, vLE) = [R.get() for _ in range(17)]
vLX = R.get(2, 2)
vVO = R.get(3)
WB = R.get(32, 4); WV = R.get(32, 4); WC = R.get(4, 4)
GV = R.get(64, 4)
XF = R.get(16, 4)
EF = R.get(4, 4); SF = R.get(4, 4); AF = R.get(4, 4); MQ = R.get(4, 4)
T0 = R.get(8, 4); T1 = R.get(8, 4)
ACC = R.get(8, 4); TMP = R.get(8, 4)
UU = R.get(16, 4); XR = R.get(16, 4)
NVGPR = R.n
assert NVGPR <= 256, NVGPR
REC = EF; RANK = T0
sX, sE, sW, sO = 8, 12, 16, 20
sWAVE, sBASE, sMX, sME, sU, sNT1, sWOFF, sLIM, sFIRST, sMORE, sMASKX, sT0, sT1, sEPS, sSCR = range(24, 39)
sCM, sCM2, sMM, sSV = 40, 42, 44, 46

def m32(d, a, b, c): return f"v_mfma_f32_32x32x16_bf16 {vr(d,16)}, {vr(a,4)}, {vr(b,4)}, " + ("0" if c is None else vr(c,16))
def m16(d, a, b, c): return f"v_mfma_f32_16x16x32_bf16 {vr(d,4)}, {vr(a,4)}, {vr(b,4)}, " + ("0" if c is None else vr(c,4))

def dma_x(slot, a): return [f"s_add_u32 m0, s{sMX}, {slot*SLOT + a*1040}", "s_nop 0", f"buffer_load_dwordx4 v{vVO+a}, s[{sX}:{sX+3}], 0 offen lds"]
def dma_e(slot): return [f"s_add_u32 m0, s{sME}, {slot*SLOT}", "s_nop 0", f"buffer_load_dword v{vVO+2}, s[{sE}:{sE+3}], 0 offen lds"]
def voffs():
    return [f"v_and_or_b32 v{vVO}, v{vLX}, s{sMASKX}, v{vLC}", f"v_and_or_b32 v{vVO+1}, v{vLX+1}, s{sMASKX}, v{vLC}",
            f"v_add_u32 v{vVO+2}, v{vLE}, v{vEL}"]

def finalize(tag, back):
    o(f"s_cmp_eq_u32 s{sFIRST}, 1"); o(f"s_cbranch_scc1 {tag}_A")
    o(f"v_and_b32 v{TMP}, 63, v0"); o(f"v_lshlrev_b32 v{TMP}, 5, v{TMP}")
    o(f"buffer_load_dwordx4 {vr(TMP+4,4)}, v{TMP}, s[{sW}:{sW+3}], s{sSCR} offen offset:16")
    o(f"buffer_load_dwordx4 {vr(TMP,4)}, v{TMP}, s[{sW}:{sW+3}], s{sSCR} offen")
    o("s_waitcnt vmcnt(0)")
    for r in range(8): o(f"v_add_f32 v{ACC+r}, v{ACC+r}, v{TMP+r}")
    lab(f"{tag}_A")
    o(f"s_cmp_eq_u32 s{sMORE}, 0"); o(f"s_cbranch_scc1 {tag}_B")
    o(f"v_and_b32 v{TMP}, 63, v0"); o(f"v_lshlrev_b32 v{TMP}, 5, v{TMP}")
    o(f"buffer_store_dwordx4 {vr(ACC,4)}, v{TMP}, s[{sW}:{sW+3}], s{sSCR} offen")
    o(f"buffer_store_dwordx4 {vr(ACC+4,4)}, v{TMP}, s[{sW}:{sW+3}], s{sSCR} offen offset:16")
    o("s_waitcnt vmcnt(0)")
    o(f"s_branch {tag}_C")
    lab(f"{tag}_B")
    for r in range(4): o(f"v_add_f32 v{TMP+r}, s{sEPS}, v{ACC+r}")
    for r in range(4): o(f"v_rcp_f32 v{TMP+r}, v{TMP+r}")
    o("s_nop 0")
    for r in range(4): o(f"v_mul_f32 v{TMP+r}, v{TMP+r}, v{ACC+4+r}")
    o(f"v_cvt_pk_bf16_f32 v{TMP}, v{TMP}, v{TMP+1}"); o(f"v_cvt_pk_bf16_f32 v{TMP+1}, v{TMP+2}, v{TMP+3}")
    o(f"ds_write_b64 v{vAGG}, {vr(TMP,2)}")
    lab(f"{tag}_C")
    o(f"v_add_u32 v{vAGG}, 512, v{vAGG}"); o(f"s_add_u32 s{sSCR}, s{sSCR}, 2048")

def body(b):
    Gn = GV + 32 * (b % 2); Vn = Gn + 16
    Gc = GV + 32 * ((b + 1) % 2); Vc = Gc + 16
    so = b * SLOT
    pre = ["s_waitcnt vmcnt(6)", "s_barrier",
           ('ds', 'e', f"ds_read_b128 {vr(EF,4)}, v{vEA} offset:{so}")]
    for s in range(4): pre.append(('ds', f'x{s}', f"ds_read_b128 {vr(XF+4*s,4)}, v{vXA} offset:{so+16*s}"))
    ds_ = (b + 3) % 4
    seq = []
    seq.append((['t0a', 't0b'], m16(ACC, Gn, T0, ACC), 16, dma_x(ds_, 0)))
    seq.append(([], m16(ACC+4, Vn, T0, ACC+4), 16, dma_x(ds_, 1)))
    seq.append(([], m16(ACC, Gn+4, T0+4, ACC), 16, dma_e(ds_)))
    seq.append(([], m16(ACC+4, Vn+4, T0+4, ACC+4), 16,
                [f"s_bitcmp1_b64 s[{sCM2}:{sCM2+1}], s{sU}", f"s_cbranch_scc1 FL{b}", f"FLR{b}:",
                 f"s_cmp_eq_u32 s{sU}, s{sNT1}", "s_cbranch_scc1 LOOP_EXIT"]))
    seq.append((['s', 'at'], m32(Gn, SF, AF, None), 32,
                [f"s_bitcmp1_b64 s[{sCM}:{sCM+1}], s{sU}", f"s_cselect_b32 s{sT0}, 512, 0", f"s_add_u32 s{sWOFF}, s{sWOFF}, s{sT0}",
                 ('ds', 'sa', f"ds_read_u8 v{vSV}, v{vSA} offset:{(b+1)*256}"),
                 ('v', f"v_add_u32 v{vATA}, s{sWOFF}, v{vATB}")]))
    seq.append((['e'], m32(Gn, EF, WC, Gn), 32, [('ds', 'at', f"ds_read_b128 {vr(AF,4)}, v{vATA}")]))
    for s in range(8):
        f = XF + 4 * (s % 4)
        ex1 = []; ex2 = []
        if s < 4: ex2.append(('ds', f'x{s+4}', f"ds_read_b128 {vr(f,4)}, v{vXA} offset:{so+16*(s+4)}"))
        if s == 1: ex1.append(('ds', 'mb', f"ds_read_b128 {vr(MQ,4)}, v{vMA} offset:{b*256}"))
        if s == 2: ex1 += [('need', 'sa'), ('ds', 's', f"ds_read_b128 {vr(SF,4)}, v{vSV} offset:{MLUT}")]
        if s == 4: ex1 += [('ds', 'l1', f"ds_read2_b32 {vr(vLX,2)}, v{vL1} offset0:{b*64} offset1:{b*64+4}"),
                           ('ds', 'l2', f"ds_read_b32 v{vLE}, v{vL2} offset:{b*256}")]
        if s == 4: ex2 += [('need', 'mb'), f"s_mov_b64 exec, s[{sMM}:{sMM+1}]",
                           ('ds', 't0a', f"ds_read_b128 {vr(T0,4)}, v{MQ}"), ('ds', 't0b', f"ds_read_b128 {vr(T0+4,4)}, v{MQ+1}"),
                           "s_mov_b64 exec, -1"]
        if s == 6: ex2 += [('need', 'l1'), ('need', 'l2')] + [('v', x) for x in voffs()]
        if s == 7:
            ex1.append(f"s_add_u32 s{sU}, s{sU}, 1")
            if b == 3: ex1 += [('v', f"v_add_u32 v{r}, 0x400, v{r}") for r in (vSA, vMA, vL1, vL2)]
        seq.append(([f'x{s}'], m32(Gn, f, WB+4*s, Gn), 32, ex1))
        seq.append(([], m32(Vn, f, WV+4*s, None if s == 0 else Vn), 32, ex2))
    A = []
    for p in range(0, 22, 2):
        if p < 16: A += [(f"v_exp_f32 v{Gc+p}, v{Gc+p}", 8), (f"v_exp_f32 v{Gc+p+1}, v{Gc+p+1}", 8)]
        q = p - 2
        if 0 <= q < 16:
            A += [(f"v_add_f32 v{Gc+q}, 1.0, v{Gc+q}", 4), (f"v_add_f32 v{Gc+q+1}, 1.0, v{Gc+q+1}", 4),
                  (f"v_rcp_f32 v{Gc+q}, v{Gc+q}", 8), (f"v_rcp_f32 v{Gc+q+1}, v{Gc+q+1}", 8)]
        q = p - 4
        if 0 <= q < 16: A += [(f"v_mul_f32 v{Vc+q}, v{Gc+q}, v{Vc+q}", 4), (f"v_mul_f32 v{Vc+q+1}, v{Gc+q+1}, v{Vc+q+1}", 4)]
        q = p - 6
        if 0 <= q < 16: A += [(f"v_cvt_pk_bf16_f32 v{Gc+q//2}, v{Gc+q}, v{Gc+q+1}", 4), (f"v_cvt_pk_bf16_f32 v{Vc+q//2}, v{Vc+q}, v{Vc+q+1}", 4)]
    room = [cyc - 8 - 4 * sum(1 for x in ex if isinstance(x, tuple) and x[0] == 'v') for (_, _, cyc, ex) in seq]
    room[0] = 0
    tot = sum(c for _, c in A); scale = tot / sum(max(r, 0) for r in room)
    out = list(pre); ai = 0; acc = 0; budget = 0
    for (needs, m, cyc, ex), rm in zip(seq, room):
        for n in needs: out.append(('need', n))
        out.append(m)
        budget += max(rm, 0) * scale
        branchy = any(isinstance(x, str) and 'cbranch' in x for x in ex)
        if not branchy: out += [x[1] if (isinstance(x, tuple) and x[0] == 'v') else x for x in ex]
        while ai < len(A) and acc + A[ai][1] / 2 <= budget:
            out.append(A[ai][0]); acc += A[ai][1]; ai += 1
        if branchy: out += ex
    while ai < len(A): out.append(A[ai][0]); ai += 1
    return out

def emit_loop():
    bodies = [body(b) for b in range(4)]
    issued = 0; done = 0; last = {}
    for rnd in range(2):
        for b in range(4):
            if rnd == 1:
                if b == 0: lab("LOOP")
            for it in bodies[b]:
                if isinstance(it, tuple) and it[0] == 'ds':
                    issued += 1; last[it[1]] = issued
                    if rnd == 1: o(it[2])
                elif isinstance(it, tuple) and it[0] == 'need':
                    idx = last.get(it[1], 0)
                    if idx > done:
                        n = issued - idx
                        assert n <= 15
                        done = idx
                        if rnd == 1: o(f"s_waitcnt lgkmcnt({n})")
                elif rnd == 1:
                    if it.endswith(':'): lab(it[:-1])
                    else: o(it)
    o("s_branch LOOP")
    for b in range(4):
        Gn = GV + 32 * (b % 2); Vn = Gn + 16
        lab(f"FL{b}")
        o(f"s_mov_b64 exec, s[{sMM}:{sMM+1}]")
        o(f"ds_read_b128 {vr(T1,4)}, v{MQ+2}"); o(f"ds_read_b128 {vr(T1+4,4)}, v{MQ+3}")
        o("s_mov_b64 exec, -1")
        o("s_nop 3")
        finalize(f"FL{b}", None)
        o("s_waitcnt lgkmcnt(0)")
        o(m16(ACC, Gn, T1, None)); o(m16(ACC+4, Vn, T1, None))
        o(m16(ACC, Gn+4, T1+4, ACC)); o(m16(ACC+4, Vn+4, T1+4, ACC+4))
        o(f"s_branch FLR{b}")

def gen_k2():
    L.append(".globl gmain_kernel"); L.append(".p2align 8"); L.append(".type gmain_kernel,@function")
    lab("gmain_kernel")
    t = [XF + i for i in range(16)]
    o("s_load_dwordx4 s[4:7], s[0:1], 0"); stamp(0)
    if STAMP: o("s_memtime s[80:81]")
    o("s_load_dwordx2 s[48:49], s[0:1], 72"); o("s_load_dwordx2 s[50:51], s[0:1], 88")
    o("s_and_b32 s3, s2, 7"); o("s_lshl_b32 s3, s3, 6"); o(f"s_lshr_b32 s{sT0}, s2, 3"); o(f"s_add_u32 s3, s3, s{sT0}")
    o("s_cmp_ge_u32 s2, 512"); o("s_cbranch_scc1 K2_END")
    o(f"s_cmp_ge_u32 s3, {NR}"); o("s_cbranch_scc1 K2_END")
    o(f"v_lshrrev_b32 v{t[0]}, 6, v0")
    o(f"v_lshlrev_b32 v{vCUR}, 11, v0")
    o(f"v_readfirstlane_b32 s{sWAVE}, v{t[0]}")
    o(f"s_lshl_b32 s{sT0}, s3, 2"); o(f"s_add_u32 s{sT0}, s{sT0}, {WS_OFF:#x}")
    o(f"v_add_u32 v{vCUR}, s{sT0}, v{vCUR}")
    o(f"v_cmp_gt_u32 vcc, {NCH}, v0")
    o(f"s_mul_i32 s{sBASE}, s3, {RN}")
    o(f"v_mov_b32 v{t[1]}, 0x7ffffff0")
    o(f"v_cndmask_b32 v{vCUR}, v{t[1]}, v{vCUR}, vcc")
    vl = t[2]; ve = t[3]; vh = t[4]; vq = t[5]
    o(f"v_and_b32 v{vl}, 63, v0"); o(f"v_lshrrev_b32 v{vq}, 4, v{vl}")
    o(f"v_and_b32 v{t[6]}, 15, v0"); o(f"v_bfe_u32 v{t[7]}, v0, 4, 1"); o(f"v_lshlrev_b32 v{t[8]}, 3, v{t[7]}")
    o(f"v_xor_b32 v{vLC}, v{t[6]}, v{t[8]}"); o(f"v_lshlrev_b32 v{vLC}, 4, v{vLC}")
    o(f"v_lshrrev_b32 v{vh}, 5, v{vl}")
    o("s_waitcnt lgkmcnt(0)")
    srd(sW, 50, WS_SIZE)
    o(f"buffer_load_dword v{vREM}, v{vCUR}, s[{sW}:{sW+3}], 0 offen")
    srd(sX, 4, N*256)
    o(f"s_lshr_b32 s{sT0}, s{sWAVE}, 1"); o(f"s_lshl_b32 s{sT0}, s{sT0}, 4"); o(f"s_and_b32 s{sT1}, s{sWAVE}, 1"); o(f"s_lshl_b32 s{sT1}, s{sT1}, 2")
    o(f"s_add_u32 s{sT0}, s{sT0}, s{sT1}"); o(f"s_add_u32 s{sT0}, s{sT0}, s{sBASE}"); o(f"s_lshl_b32 s{sT0}, s{sT0}, 8")
    o(f"s_mul_i32 s{sMX}, s{sWAVE}, 2080"); o(f"s_add_u32 s{sMX}, s{sMX}, {RING}")
    o(f"v_lshl_add_u32 v{t[8]}, v{vh}, 3, v{t[7]}"); o(f"v_lshl_add_u32 v{t[8]}, v{t[8]}, 8, v{vLC}")
    o(f"v_add_u32 v{vVO}, s{sT0}, v{t[8]}"); o(f"v_add_u32 v{vVO+1}, 512, v{vVO}")
    for x in dma_x(0, 0) + dma_x(0, 1): o(x)
    o(f"v_add_u32 v{vVO}, 0x2000, v{vVO}"); o(f"v_add_u32 v{vVO+1}, 0x2000, v{vVO+1}")
    for x in dma_x(1, 0) + dma_x(1, 1): o(x)
    vwf = t[9]
    o(f"v_lshlrev_b32 v{vwf}, 4, v{vl}")
    o(f"s_lshl_b32 s52, s{sWAVE}, 13"); o(f"s_add_u32 s52, s52, {WS_WF:#x}")
    def wload(dst, off, n):
        for s in range(n):
            if s % 4 == 0: o(f"s_add_u32 s{sT0}, s52, {off + s*1024:#x}")
            o(f"buffer_load_dwordx4 {vr(dst+4*s,4)}, v{vwf}, s[{sW}:{sW+3}], s{sT0} offen offset:{(s%4)*1024}")
    wload(GV, WF_A, 8); wload(GV+32, WF_U, 8)
    srd(sE, 6, E*32); srd(sO, 48, N*256)
    o(f"v_and_b32 v{ve}, 31, v0")
    o(f"v_lshrrev_b32 v{t[6]}, 4, v{ve}"); o(f"v_bfe_u32 v{t[8]}, v{ve}, 1, 2"); o(f"v_lshl_or_b32 v{t[6]}, v{t[6]}, 2, v{t[8]}")
    o(f"v_mul_u32_u24 v{t[6]}, 1040, v{t[6]}")
    o(f"v_and_b32 v{t[8]}, 1, v{ve}"); o(f"v_bfe_u32 v{t[10]}, v{ve}, 3, 1"); o(f"v_lshl_or_b32 v{t[10]}, v{t[10]}, 1, v{t[8]}")
    o(f"v_lshl_add_u32 v{t[6]}, v{t[10]}, 8, v{t[6]}"); o(f"v_add_u32 v{t[6]}, {RING}, v{t[6]}")
    o(f"v_xor_b32 v{t[10]}, v{vh}, v{t[8]}"); o(f"v_lshl_add_u32 v{vXA}, v{t[10]}, 7, v{t[6]}")
    o(f"s_lshr_b32 s{sT0}, s{sWAVE}, 1"); o(f"v_xor_b32 v{t[10]}, s{sT0}, v{t[8]}"); o(f"v_lshl_add_u32 v{vSV}, v{t[10]}, 7, v{t[6]}")
    o(f"s_and_b32 s{sT1}, s{sWAVE}, 1"); o(f"s_lshl_b32 s{sT1}, s{sT1}, 6")
    o(f"v_lshl_add_u32 v{vSV}, v{vh}, 5, v{vSV}"); o(f"v_add_u32 v{vSV}, s{sT1}, v{vSV}")
    vp = t[11]
    o(f"v_and_b32 v{vp}, 0x13, v{ve}"); o(f"v_bfe_u32 v{t[8]}, v{ve}, 2, 1"); o(f"v_lshl_or_b32 v{vp}, v{t[8]}, 3, v{vp}")
    o(f"v_bfe_u32 v{t[8]}, v{ve}, 3, 1"); o(f"v_lshl_or_b32 v{vp}, v{t[8]}, 2, v{vp}")
    o(f"v_lshrrev_b32 v{t[8]}, 4, v{vp}"); o(f"v_xor_b32 v{t[8]}, v{t[8]}, v{vh}"); o(f"v_lshlrev_b32 v{t[8]}, 4, v{t[8]}")
    o(f"v_lshl_add_u32 v{vEA}, v{vp}, 5, v{t[8]}"); o(f"v_add_u32 v{vEA}, {RING+8320}, v{vEA}")
    o(f"s_lshl_b32 s{sT0}, s{sT0}, 2"); o(f"v_and_b32 v{t[8]}, 7, v0"); o(f"v_xor_b32 v{t[8]}, s{sT0}, v{t[8]}"); o(f"v_lshlrev_b32 v{vEL}, 2, v{t[8]}")
    o(f"s_lshl_b32 s{sME}, s{sWAVE}, 8"); o(f"s_add_u32 s{sME}, s{sME}, {RING+8320}")
    o(f"s_lshl_b32 s53, s{sWAVE}, 12"); o(f"s_add_u32 s53, s53, {AT}")
    o(f"v_add_u32 v{vATB}, s53, v{vwf}")
    o(f"v_mul_u32_u24 v{vEB}, {CH*32}, v0")
    o(f"s_mov_b32 s{sMASKX}, 0xffff00"); o(f"s_mov_b32 s{sEPS}, {EPS:#x}")
    o(f"s_mov_b32 s{sMM}, 0xff0000ff"); o(f"s_mov_b32 s{sMM+1}, 0xff0000ff")
    o(f"s_mov_b32 s{sFIRST}, 1"); o(f"s_mov_b32 s{sLIM}, 16")
    for d in range(4):
        o(f"v_bfe_u32 v{TMP+d}, v0, {2*d}, 2"); o(f"v_mul_u32_u24 v{TMP+d}, 0x8001, v{TMP+d}")
        o(f"v_and_b32 v{TMP+d}, 0x10001, v{TMP+d}"); o(f"v_mul_u32_u24 v{TMP+d}, 0x3f80, v{TMP+d}")
    o(f"v_lshlrev_b32 v{t[8]}, 4, v0"); o(f"ds_write_b128 v{t[8]}, {vr(TMP,4)} offset:{LUT}")
    o(f"v_add_u32 v{t[10]}, -1, v0"); o(f"v_and_b32 v{t[10]}, v{t[10]}, v0"); o(f"v_cmp_eq_u32 vcc, 0, v{t[10]}")
    o(f"v_ffbl_b32 v{t[10]}, v0"); o(f"v_lshlrev_b32 v{t[10]}, 4, v{t[10]}"); o(f"v_add_u32 v{t[10]}, 16, v{t[10]}")
    o(f"s_and_saveexec_b64 s[{sSV}:{sSV+1}], vcc")
    o(f"ds_write_b128 v{t[10]}, {vr(TMP,4)} offset:{MLUT}")
    o("s_mov_b64 exec, -1")
    o("s_waitcnt vmcnt(20)"); stamp(1)
    o(f"v_and_b32 v{vCUR}, 0xffff, v{vREM}"); o(f"v_lshrrev_b32 v{vREM}, 16, v{vREM}")
    o(f"v_mul_u32_u24 v{t[10]}, {CH}, v0"); o(f"v_add_lshl_u32 v{vCUR}, v{vCUR}, v{t[10]}, 2")
    lab("ROUND")
    for k in range(4): o(f"buffer_load_dwordx4 {vr(REC+4*k,4)}, v{vCUR}, s[{sW}:{sW+3}], 0 offen offset:{16*k}")
    o(f"v_lshlrev_b32 v{t[8]}, 4, v0")
    for d in range(4): o(f"v_mov_b32 v{TMP+d}, 0")
    o(f"ds_write_b128 v{t[8]}, {vr(TMP,4)} offset:{MB}"); o(f"ds_write_b128 v{t[8]}, {vr(TMP,4)} offset:{MB+4096}")
    o(f"v_mov_b32 v{TMP+4}, 0xffff00"); o(f"v_mov_b32 v{TMP+5}, 0x7fffffc0"); o(f"v_mov_b32 v{TMP+6}, 0xffff00"); o(f"v_mov_b32 v{TMP+7}, 0x7fffffc0")
    o(f"ds_write_b128 v{t[8]}, {vr(TMP+4,4)} offset:{LIST}"); o(f"ds_write_b128 v{t[8]}, {vr(TMP+4,4)} offset:{LIST+4096}")
    o(f"ds_write_b128 v{t[8]}, {vr(TMP+4,4)} offset:{LIST+LIST_SZ-4096}")
    o(f"s_cmp_eq_u32 s{sFIRST}, 0"); o("s_cbranch_scc1 NOGEMM")
    wload(WB, WF_B, 8); wload(WV, WF_V, 8)
    o(f"s_lshl_b32 s{sT0}, s{sWAVE}, 10"); o(f"s_add_u32 s{sT0}, s{sT0}, {WS_WF+WF_C:#x}")
    o(f"buffer_load_dwordx4 {vr(WC,4)}, v{vwf}, s[{sW}:{sW+3}], s{sT0} offen")
    o(f"v_lshlrev_b32 v{vATA}, 4, v{ve}"); o(f"v_lshl_add_u32 v{vATA}, v{vh}, 3, v{vATA}"); o(f"v_add_u32 v{vATA}, s53, v{vATA}")
    o(f"s_mov_b32 s{sT1}, {NLOG2E:#x}")
    o("s_waitcnt vmcnt(21) lgkmcnt(0)"); o("s_barrier"); stamp(2)
    if STAMP: o("s_waitcnt lgkmcnt(0)")
    for mt in range(2):
        for s in range(4): o(f"ds_read_b128 {vr(XF+4*s,4)}, v{vXA} offset:{mt*SLOT+16*s}")
        for s in range(8):
            f = XF + 4 * (s % 4)
            o(f"s_waitcnt lgkmcnt({3 if s < 5 else 7 - s})")
            o(m32(ACC, f, GV+4*s, None if s == 0 else ACC))
            o(m32(XR, GV+32+4*s, f, None if s == 0 else XR))
            if s < 4: o(f"ds_read_b128 {vr(f,4)}, v{vXA} offset:{mt*SLOT+16*(s+4)}")
        o("s_nop 10")
        for r in range(16): o(f"v_mul_f32 v{ACC+r}, s{sT1}, v{ACC+r}")
        for r in range(0, 16, 2): o(f"v_cvt_pk_bf16_f32 v{ACC+r//2}, v{ACC+r}, v{ACC+r+1}")
        for g in range(4): o(f"ds_write_b64 v{vATA}, {vr(ACC+2*g,2)} offset:{(4*mt+g)*512}")
        for r in range(0, 16, 2): o(f"v_cvt_pk_bf16_f32 v{UU+8*mt+r//2}, v{XR+r}, v{XR+r+1}")
        o("s_waitcnt lgkmcnt(0)")
    for mt in range(2):
        for k in range(2): o(f"ds_read_b128 {vr(XR+8*mt+4*k,4)}, v{vSV} offset:{mt*SLOT+16*k}")
    stamp(3)
    o("s_waitcnt vmcnt(17)"); stamp(4)
    o("s_branch RANK")
    lab("NOGEMM")
    o("s_waitcnt vmcnt(0) lgkmcnt(0)"); o("s_barrier")
    lab("RANK")
    o(f"v_min_u32 v{vTAKE}, s{sLIM}, v{vREM}")
    o(f"v_mov_b32 v{t[0]}, 1"); o(f"v_mov_b32 v{t[1]}, {CNT+252}")
    o(f"v_cmp_gt_u32 vcc, v{vREM}, v{vTAKE}")
    o(f"s_and_saveexec_b64 s[{sSV}:{sSV+1}], vcc")
    o(f"ds_write_b32 v{t[1]}, v{t[0]}")
    o("s_mov_b64 exec, -1")
    for k in range(16):
        o(f"v_cmpx_lt_u32 vcc, {k}, v{vTAKE}"); o("s_cbranch_execz P1_DONE")
        o(f"v_and_b32 v{t[1]}, 0xfc, v{REC+k}")
        o(f"ds_add_rtn_u32 v{RANK+k}, v{t[1]}, v{t[0]} offset:{CNT}")
    lab("P1_DONE")
    o("s_mov_b64 exec, -1")
    o(f"v_and_b32 v{t[2]}, 63, v0"); o(f"v_lshlrev_b32 v{t[1]}, 2, v{t[2]}")
    o("s_waitcnt lgkmcnt(0)"); o("s_barrier")
    o(f"ds_read_b32 v{t[3]}, v{t[1]} offset:{CNT}")
    o(f"v_and_b32 v{t[5]}, 7, v0"); o(f"v_cmp_eq_u32 vcc, 7, v{t[5]}"); o(f"v_cmp_gt_u32 s[{sSV}:{sSV+1}], 48, v{t[2]}")
    o(f"s_and_b64 vcc, vcc, s[{sSV}:{sSV+1}]")
    o("s_waitcnt lgkmcnt(0)")
    o(f"v_readlane_b32 s{sMORE}, v{t[3]}, 63")
    o(f"v_add_u32_dpp v{t[4]}, v{t[3]}, v{t[3]} quad_perm:[1,0,3,2] row_mask:0xf bank_mask:0xf"); o("s_nop 1")
    o(f"v_add_u32_dpp v{t[4]}, v{t[4]}, v{t[4]} quad_perm:[2,3,0,1] row_mask:0xf bank_mask:0xf"); o("s_nop 1")
    o(f"v_add_u32_dpp v{t[4]}, v{t[4]}, v{t[4]} row_half_mirror row_mask:0xf bank_mask:0xf")
    o(f"v_sub_u32 v{t[4]}, 32, v{t[4]}"); o(f"v_max_i32 v{t[4]}, 0, v{t[4]}"); o(f"v_cndmask_b32 v{t[4]}, 0, v{t[4]}, vcc")
    o(f"v_add_u32 v{t[3]}, v{t[3]}, v{t[4]}"); o(f"v_mov_b32 v{t[4]}, v{t[3]}")
    scan64(t[3])
    o(f"v_sub_u32 v{t[4]}, v{t[3]}, v{t[4]}")
    o(f"ds_swizzle_b32 v{t[5]}, v{t[4]} offset:0x0018")
    o(f"v_readlane_b32 s{sNT1}, v{t[3]}, 48")
    o(f"s_mov_b64 s[{sCM}:{sCM+1}], 0")
    for w in range(6):
        o(f"v_readlane_b32 s{sT0}, v{t[3]}, {8*w+7}"); o(f"s_sub_u32 s{sT0}, s{sT0}, 1"); o(f"s_lshr_b32 s{sT0}, s{sT0}, 5")
        o(f"s_bitset1_b64 s[{sCM}:{sCM+1}], s{sT0}")
    o(f"s_cmp_le_u32 s{sNT1}, {CAPT*32}"); o("s_cbranch_scc1 FITS")
    o(f"s_mov_b32 s{sLIM}, 3"); o(f"v_mov_b32 v{t[0]}, 0")
    o("s_waitcnt lgkmcnt(0)"); o("s_barrier")
    o(f"ds_write_b32 v{t[1]}, v{t[0]} offset:{CNT}")
    o("s_waitcnt lgkmcnt(0)"); o("s_barrier")
    o("s_branch RANK")
    lab("FITS")
    o(f"s_add_u32 s{sNT1}, s{sNT1}, 63"); o(f"s_lshr_b32 s{sNT1}, s{sNT1}, 5")
    o(f"s_lshl_b64 s[{sCM2}:{sCM2+1}], s[{sCM}:{sCM+1}], 2")
    o("s_waitcnt lgkmcnt(0)")
    o(f"v_lshl_or_b32 v{t[4]}, v{t[5]}, 16, v{t[4]}")
    o(f"ds_write_b32 v{t[1]}, v{t[4]} offset:{NB}")
    o(f"s_mov_b32 s{sT0}, 0x7fff00"); o(f"s_movk_i32 s{sT1}, 0x7fe0")
    for k in range(16):
        o(f"v_cmpx_lt_u32 vcc, {k}, v{vTAKE}"); o("s_cbranch_execz P2A_DONE")
        o(f"v_and_b32 v{t[1]}, 0xfc, v{REC+k}")
        o(f"ds_read_b32 v{GV+k}, v{t[1]} offset:{NB}")
    lab("P2A_DONE")
    o("s_mov_b64 exec, -1")
    o("s_waitcnt lgkmcnt(0)")
    for k in range(16):
        rec = REC + k; nb = GV + k; pos = RANK + k
        o(f"v_cmpx_lt_u32 vcc, {k}, v{vTAKE}"); o("s_cbranch_execz P2_DONE")
        o(f"v_add_u32 v{pos}, v{pos}, v{nb}")
        o(f"v_lshrrev_b32 v{nb}, 16, v{nb}")
        o(f"v_and_b32 v{t[0]}, s{sT1}, v{pos}")
        o(f"v_cmp_lt_u32 vcc, v{t[0]}, v{nb}")
        o(f"v_and_b32 v{t[1]}, 0x1c, v{rec}")
        o(f"v_lshl_add_u32 v{t[2]}, v{t[1]}, 2, 16")
        o(f"v_cndmask_b32 v{t[3]}, 0, 8, vcc")
        o(f"v_mul_u32_u24 v{t[4]}, 3, v{t[3]}")
        o(f"v_lshlrev_b32 v{t[2]}, v{t[4]}, v{t[2]}")
        o(f"v_and_or_b32 v{t[6]}, v{rec}, s{sT0}, v{t[2]}")
        o(f"v_alignbit_b32 v{t[7]}, v{rec}, v{rec}, 18"); o(f"v_and_b32 v{t[7]}, 0xffe0, v{t[7]}"); o(f"v_add_u32 v{t[7]}, v{t[7]}, v{vEB}")
        o(f"v_and_b32 v{pos}, 0xffff, v{pos}")
        o(f"v_lshlrev_b32 v{t[5]}, 3, v{pos}")
        o(f"ds_write_b64 v{t[5]}, {vr(t[6],2)} offset:{LIST}")
        o(f"v_add_lshl_u32 v{t[0]}, v{t[0]}, v{t[1]}, 3")
        o(f"v_and_b32 v{t[1]}, 8, v{pos}"); o(f"v_lshl_add_u32 v{t[0]}, v{t[1]}, 1, v{t[0]}")
        o(f"v_bfe_u32 v{t[1]}, v{pos}, 4, 1"); o(f"v_lshl_or_b32 v{t[1]}, v{t[1]}, 2, v{t[3]}")
        o(f"v_and_b32 v{t[2]}, 7, v{pos}"); o(f"v_lshlrev_b32 v{t[2]}, v{t[2]}, 16")
        o(f"v_add_u32 v{t[0]}, v{t[0]}, v{t[1]}")
        o(f"ds_or_b32 v{t[0]}, v{t[2]} offset:{MB+256}")
    lab("P2_DONE")
    o("s_mov_b64 exec, -1")
    o(f"v_and_b32 v{t[0]}, 0x13, v0"); o(f"v_bfe_u32 v{t[1]}, v0, 2, 1"); o(f"v_lshl_or_b32 v{t[0]}, v{t[1]}, 3, v{t[0]}")
    o(f"v_bfe_u32 v{t[1]}, v0, 3, 1"); o(f"v_lshl_or_b32 v{t[0]}, v{t[1]}, 2, v{t[0]}")
    o(f"v_bfe_u32 v{t[2]}, v0, 5, 1"); o(f"v_mul_u32_u24 v{t[3]}, 3, v{t[2]}")
    o(f"v_lshl_add_u32 v{vSA}, v{t[0]}, 3, v{t[3]}"); o(f"v_add_u32 v{vSA}, {LIST}, v{vSA}")
    o(f"v_and_b32 v{t[0]}, 7, v0"); o(f"v_lshlrev_b32 v{vMA}, 5, v{t[0]}"); o(f"v_lshl_add_u32 v{vMA}, v{t[2]}, 4, v{vMA}"); o(f"v_add_u32 v{vMA}, {MB}, v{vMA}")
    o(f"v_lshlrev_b32 v{vAGG}, 6, v{t[0]}"); o(f"v_lshl_add_u32 v{vAGG}, v{t[1]}, 5, v{vAGG}")
    o(f"v_bfe_u32 v{t[3]}, v0, 4, 2"); o(f"v_lshl_add_u32 v{vAGG}, v{t[3]}, 3, v{vAGG}"); o(f"v_add_u32 v{vAGG}, s53, v{vAGG}")
    o(f"s_lshl_b32 s{sT0}, s{sWAVE}, 6"); o(f"s_add_u32 s{sT0}, s{sT0}, {LIST}")
    o(f"v_bfe_u32 v{t[0]}, v0, 4, 1"); o(f"v_lshl_add_u32 v{t[0]}, v{t[2]}, 2, v{t[0]}"); o(f"v_lshl_add_u32 v{vL1}, v{t[0]}, 3, s{sT0}")
    o(f"v_and_b32 v{t[0]}, 0x38, v0"); o(f"v_add3_u32 v{vL2}, v{t[0]}, s{sT0}, 4")
    o("s_waitcnt lgkmcnt(0)"); o("s_barrier")
    stamp(5)
    if STAMP: o("s_waitcnt lgkmcnt(0)")
    for k in range(4):
        o(f"ds_read2_b32 {vr(t[0]+4*k,2)}, v{vL1} offset0:{k*64} offset1:{k*64+4}")
        o(f"ds_read_b32 v{t[2]+4*k}, v{vL2} offset:{k*256}")
    o(f"ds_read_u8 v{vSV}, v{vSA}")
    o(f"ds_read_b128 {vr(AF,4)}, v{vATB}")
    for k in range(4):
        o(f"s_waitcnt lgkmcnt({8-2*k})")
        o(f"v_and_or_b32 v{vVO}, v{t[0]+4*k}, s{sMASKX}, v{vLC}"); o(f"v_and_or_b32 v{vVO+1}, v{t[1]+4*k}, s{sMASKX}, v{vLC}")
        o(f"v_add_u32 v{vVO+2}, v{t[2]+4*k}, v{vEL}")
        if k < 3:
            for x in dma_x(k, 0) + dma_x(k, 1) + dma_e(k): o(x)
    o("s_waitcnt lgkmcnt(1)")
    o(f"ds_read_b128 {vr(SF,4)}, v{vSV} offset:{MLUT}")
    o(f"v_add_u32 v{vL1}, 0x400, v{vL1}"); o(f"v_add_u32 v{vL2}, 0x400, v{vL2}")
    for r in list(range(GV, GV+8)) + list(range(GV+16, GV+24)) + list(range(GV+32, GV+64)) + list(range(T0, T0+16)) + list(range(ACC, ACC+8)):
        o(f"v_mov_b32 v{r}, 0")
    o(f"s_mov_b32 s{sU}, 0"); o(f"s_mov_b32 s{sWOFF}, 0")
    o(f"s_lshl_b32 s{sSCR}, s2, 2"); o(f"s_add_u32 s{sSCR}, s{sSCR}, s{sWAVE}"); o(f"s_lshl_b32 s{sSCR}, s{sSCR}, 14"); o(f"s_add_u32 s{sSCR}, s{sSCR}, {WS_SCR:#x}")
    if STAMP: o("s_waitcnt vmcnt(6)")
    stamp(6)
    o("s_waitcnt lgkmcnt(0)")
    emit_loop()
    lab("LOOP_EXIT"); stamp(7)
    o("s_nop 7")
    finalize("FIN", None)
    o(f"s_cmp_eq_u32 s{sMORE}, 0"); o("s_cbranch_scc1 EPI")
    o(f"v_sub_u32 v{vREM}, v{vREM}, v{vTAKE}"); o(f"v_lshl_add_u32 v{vCUR}, v{vTAKE}, 2, v{vCUR}")
    o(f"s_mov_b32 s{sFIRST}, 0"); o(f"s_mov_b32 s{sLIM}, 16")
    o("s_waitcnt vmcnt(0) lgkmcnt(0)"); o("s_barrier")
    o("s_branch ROUND")
    lab("EPI")
    g = GV
    o("s_waitcnt lgkmcnt(0)")
    o(f"v_and_b32 v{t[0]}, 31, v0"); o(f"v_bfe_u32 v{t[1]}, v0, 5, 1")
    o(f"v_lshlrev_b32 v{t[2]}, 6, v{t[0]}"); o(f"v_lshl_add_u32 v{t[2]}, v{t[1]}, 5, v{t[2]}"); o(f"v_add_u32 v{t[2]}, s53, v{t[2]}")
    for mt in range(2):
        for k in range(2): o(f"ds_read_b128 {vr(g+8*mt+4*k,4)}, v{t[2]} offset:{mt*2048+16*k}")
    o(f"s_lshl_b32 s{sT0}, s{sBASE}, 8"); o(f"s_lshl_b32 s{sT1}, s{sWAVE}, 6"); o(f"s_add_u32 s{sT0}, s{sT0}, s{sT1}")
    o(f"v_lshlrev_b32 v{t[3]}, 8, v{t[0]}"); o(f"v_lshl_add_u32 v{t[3]}, v{t[1]}, 5, v{t[3]}"); o(f"v_add_u32 v{t[3]}, s{sT0}, v{t[3]}")
    o(f"s_mov_b32 s{sT1}, 0xffff0000")
    for mt in range(2):
        o(f"s_waitcnt lgkmcnt({2-2*mt})")
        if mt == 1:
            o(f"v_cmpx_gt_u32 vcc, {RN-32}, v{t[0]}"); o(f"v_add_u32 v{t[3]}, 0x2000, v{t[3]}")
        for k in range(8):
            a = g + 8*mt + k; u = UU + 8*mt + k; x = XR + 8*mt + k; q = g + 16
            o(f"v_lshlrev_b32 v{q}, 16, v{a}"); o(f"v_and_b32 v{q+1}, s{sT1}, v{a}")
            o(f"v_lshlrev_b32 v{q+2}, 16, v{u}"); o(f"v_and_b32 v{q+3}, s{sT1}, v{u}")
            o(f"v_add_f32 v{q}, v{q}, v{q+2}"); o(f"v_add_f32 v{q+1}, v{q+1}, v{q+3}")
            o(f"v_lshlrev_b32 v{q+2}, 16, v{x}"); o(f"v_and_b32 v{q+3}, s{sT1}, v{x}")
            o(f"v_max_f32 v{q}, 0, v{q}"); o(f"v_max_f32 v{q+1}, 0, v{q+1}")
            o(f"v_add_f32 v{q}, v{q}, v{q+2}"); o(f"v_add_f32 v{q+1}, v{q+1}, v{q+3}")
            o(f"v_cvt_pk_bf16_f32 v{a}, v{q}, v{q+1}")
        for k in range(2): o(f"buffer_store_dwordx4 {vr(g+8*mt+4*k,4)}, v{t[3]}, s[{sO}:{sO+3}], 0 offen offset:{16*k}")
    stamp_out(9, t[8], sW, 1)
    lab("K2_END")
    o("s_endpgm")

def kd(name, nv, ns):
    L.append(".p2align 6")
    L.append(f".amdhsa_kernel {name}")
    for k, v in (("next_free_vgpr", nv), ("next_free_sgpr", ns), ("accum_offset", (nv + 3) // 4 * 4), ("group_segment_fixed_size", 0),
                 ("kernarg_size", 96), ("user_sgpr_count", 2), ("user_sgpr_kernarg_segment_ptr", 1), ("system_sgpr_workgroup_id_x", 1),
                 ("float_denorm_mode_32", 3)):
        L.append(f"  .amdhsa_{k} {v}")
    L.append(".end_amdhsa_kernel")

hdr = [l for l in open(f"cdna_kernels/{NAME}.s.ref").read().splitlines() if l.startswith(";") and "@launch" not in l
       and "Override launch" not in l and "grid=ceil" not in l]
L += hdr
L.append(f"; @launch kernel=gsort_kernel grid=({K1_GRID},1,1) block=(512,1,1) lds={K1_LDS}")
L.append(f"; @launch kernel=gmain_kernel grid=(512,1,1) block=(256,1,1) lds={K2_LDS}")
L.append('.amdgcn_target "amdgcn-amd-amdhsa--gfx950"'); L.append(".text")
gen_k1(); gen_k2()
L.append('.section .rodata,"a"')
kd("gsort_kernel", 40, 90 if STAMP else 40); kd("gmain_kernel", NVGPR, 90 if STAMP else 60)
open(sys.argv[1], "w").write("\n".join(L) + "\n")
print("vgprs", NVGPR, "lds", K2_LDS, "lines", len(L), file=sys.stderr)
```

```python
import sys, struct

N = 25000; E = 400000; RN = 49; NR = 511; CH = 1600; NCH = 250
WS_REC = 0; WS_OFF = 0x200000; WS_WF = 0x300000; WS_SCR = 0x1000000; WS_SIZE = 0x4000000
WF_B = 0; WF_V = 0x8000; WF_A = 0x10000; WF_U = 0x18000; WF_C = 0x20000
NLOG2E = struct.unpack('<I', struct.pack('<f', -1.4426950408889634))[0]
EPS = struct.unpack('<I', struct.pack('<f', 1e-6))[0]
NAME = "standalone__edge_featured_mpnn_gatedgcn__graph"

OPT = dict(a.split('=') for a in sys.argv[2:]) if len(sys.argv) > 2 else {}

STAMP = int(OPT.get('stamp', 0))
WS_STAMP = 0x3800000
L = []
def stamp(i):
    if STAMP: o(f"s_memrealtime s[{64+2*i}:{65+2*i}]")
def stamp_out(n, reg, srdn, kern):
    if not STAMP: return
    o("s_mov_b64 exec, -1")
    o(f"s_memrealtime s[{64+2*n}:{65+2*n}]"); o(f"s_memtime s[{66+2*n}:{67+2*n}]"); o("s_waitcnt lgkmcnt(0)")
    o(f"v_lshrrev_b32 v{reg}, 6, v0"); o(f"v_lshlrev_b32 v{reg}, 6, v{reg}")
    o(f"s_lshl_b32 s63, s2, 9"); o(f"s_add_u32 s63, s63, {WS_STAMP + kern*0x100000:#x}")
    for i in range(n+4):
        o(f"v_mov_b32 v{reg+1}, s{64+2*i}")
        o(f"buffer_store_dword v{reg+1}, v{reg}, s[{srdn}:{srdn+3}], s63 offen offset:{4*i}")
def o(s): L.append("    " + s)
def lab(s): L.append(s + ":")
def vr(b, n): return f"v[{b}:{b+n-1}]"
def srd(d, lo, size):
    o(f"s_mov_b32 s{d}, s{lo}"); o(f"s_and_b32 s{d+1}, s{lo+1}, 0xffff")
    o(f"s_mov_b32 s{d+2}, {size:#x}"); o(f"s_mov_b32 s{d+3}, 0x20000")
def scan64(v):
    for d in ("row_shr:1", "row_shr:2", "row_shr:4", "row_shr:8"):
        o("s_nop 1"); o(f"v_add_u32_dpp v{v}, v{v}, v{v} {d} row_mask:0xf bank_mask:0xf bound_ctrl:0")
    o("s_nop 1"); o(f"v_add_u32_dpp v{v}, v{v}, v{v} row_bcast:15 row_mask:0xa bank_mask:0xf")
    o("s_nop 1"); o(f"v_add_u32_dpp v{v}, v{v}, v{v} row_bcast:31 row_mask:0xc bank_mask:0xf")

K1_GRID = NCH + 17
K1_LDS = 4096 + CH * 4
def gen_k1():
    L.append(".globl gsort_kernel"); L.append(".p2align 8"); L.append(".type gsort_kernel,@function")
    lab("gsort_kernel")
    o(f"s_cmp_ge_u32 s2, {K1_GRID}"); o("s_cbranch_scc1 K1_END")
    o("s_load_dwordx2 s[12:13], s[0:1], 88")
    o(f"s_cmp_ge_u32 s2, {NCH}"); o("s_cbranch_scc1 K1_PREP")
    o("s_load_dwordx4 s[4:7], s[0:1], 16"); stamp(0)
    o("v_lshlrev_b32 v1, 2, v0"); o("v_mov_b32 v2, 0")
    o("ds_write_b32 v1, v2")
    o(f"s_mul_i32 s3, s2, {CH*4}"); o("s_add_u32 s14, s3, 4096")
    o("v_cmp_gt_u32 vcc, 64, v0")
    o("s_waitcnt lgkmcnt(0)")
    srd(20, 6, E*4); srd(16, 4, E*4); srd(24, 12, WS_SIZE)
    o("s_mov_b64 s[28:29], vcc")
    for i in range(3):
        o(f"buffer_load_dword v{4+i}, v1, s[20:23], s{3 if i<2 else 14} offen offset:{(i&1)*2048}")
    for i in range(3):
        o(f"buffer_load_dword v{8+i}, v1, s[16:19], s{3 if i<2 else 14} offen offset:{(i&1)*2048}")
    o("s_mov_b64 exec, s[28:29]"); o("s_cbranch_execz K1_NO4A")
    o("buffer_load_dword v7, v1, s[20:23], s14 offen offset:2048")
    o("buffer_load_dword v11, v1, s[16:19], s14 offen offset:2048")
    lab("K1_NO4A")
    o("s_mov_b64 exec, -1")
    o("v_lshlrev_b32 v3, 23, v0"); o("v_mov_b32 v2, 1"); o(f"s_mov_b32 s15, {-RN}")
    o("s_barrier")
    o("s_waitcnt vmcnt(0)"); stamp(1)
    def rank(i):
        o(f"v_mul_u32_u24 v{12+i}, 21400, v{4+i}")
        o(f"v_lshrrev_b32 v{12+i}, 20, v{12+i}")
        o(f"v_mad_i32_i24 v{4+i}, v{12+i}, s15, v{4+i}")
        o(f"v_lshlrev_b32 v{12+i}, 2, v{12+i}")
        o(f"ds_add_rtn_u32 v{16+i}, v{12+i}, v2")
        o(f"v_lshl_or_b32 v{8+i}, v{8+i}, 8, v3")
        o(f"v_lshl_or_b32 v{8+i}, v{4+i}, 2, v{8+i}")
        if i: o(f"v_or_b32 v{8+i}, {i}, v{8+i}")
    for i in range(3): rank(i)
    o("s_mov_b64 exec, s[28:29]"); o("s_cbranch_execz K1_NO4B")
    rank(3)
    lab("K1_NO4B")
    o("s_mov_b64 exec, -1")
    o("v_and_b32 v20, 63, v0"); o("v_lshlrev_b32 v20, 5, v20")
    o("s_waitcnt lgkmcnt(0)"); o("s_barrier")
    o("ds_read_b128 v[24:27], v20"); o("ds_read_b128 v[28:31], v20 offset:16")
    o("s_waitcnt lgkmcnt(0)")
    o("v_mov_b32 v33, v24")
    for j in range(2, 8): o(f"v_add_u32 v{32+j}, v{31+j}, v{23+j}")
    o("v_add_u32 v21, v39, v31"); o("v_mov_b32 v22, v21")
    scan64(21)
    o("v_sub_u32 v32, v21, v22")
    for j in range(1, 8): o(f"v_add_u32 v{32+j}, v32, v{32+j}")
    o("ds_write_b128 v20, v[32:35] offset:2048"); o("ds_write_b128 v20, v[36:39] offset:2064")
    for i in range(3): o(f"ds_read_b32 v{4+i}, v{12+i} offset:2048")
    o("s_mov_b64 exec, s[28:29]"); o("s_cbranch_execz K1_NO4C")
    o("ds_read_b32 v7, v15 offset:2048")
    for j in range(8): o(f"v_lshl_or_b32 v{24+j}, v{24+j}, 16, v{32+j}")
    o("s_lshl_b32 s30, s2, 11"); o(f"s_add_u32 s30, s30, {WS_OFF:#x}")
    o("buffer_store_dwordx4 v[24:27], v20, s[24:27], s30 offen")
    o("buffer_store_dwordx4 v[28:31], v20, s[24:27], s30 offen offset:16")
    o("s_waitcnt lgkmcnt(0)")
    o("v_add_lshl_u32 v7, v7, v19, 2"); o("ds_write_b32 v7, v11 offset:4096")
    lab("K1_NO4C")
    o("s_mov_b64 exec, -1")
    o("s_waitcnt lgkmcnt(0)")
    for i in range(3):
        o(f"v_add_lshl_u32 v{4+i}, v{4+i}, v{16+i}, 2"); o(f"ds_write_b32 v{4+i}, v{8+i} offset:4096")
    o("v_lshlrev_b32 v1, 4, v0")
    o(f"v_cmp_gt_u32 vcc, {CH//4}, v0")
    o("s_waitcnt lgkmcnt(0)"); o("s_barrier")
    o("s_and_saveexec_b64 s[28:29], vcc"); o("s_cbranch_execz K1_END")
    o("ds_read_b128 v[4:7], v1 offset:4096")
    o("s_waitcnt lgkmcnt(0)")
    o("buffer_store_dwordx4 v[4:7], v1, s[24:27], s3 offen")
    stamp_out(2, 10, 24, 0)
    o("s_endpgm")
    lab("K1_PREP")
    o(f"s_sub_u32 s3, s2, {NCH}"); o("s_lshr_b32 s14, s3, 2")
    o("s_load_dwordx4 s[16:19], s[0:1], 32")
    o("s_load_dwordx4 s[20:23], s[0:1], 48")
    o("s_load_dwordx2 s[4:5], s[0:1], 64")
    o("v_and_b32 v1, 31, v0"); o("v_bfe_u32 v2, v0, 5, 1"); o("v_lshrrev_b32 v3, 6, v0")
    o("s_waitcnt lgkmcnt(0)")
    o("s_mov_b32 s15, 1.0")
    o("s_cmp_eq_u32 s14, 0"); o("s_cselect_b32 s4, s18, s4"); o("s_cselect_b32 s5, s19, s5"); o(f"s_cselect_b32 s15, {NLOG2E:#x}, s15")
    o("s_cmp_eq_u32 s14, 2"); o("s_cselect_b32 s4, s16, s4"); o("s_cselect_b32 s5, s17, s5")
    o("s_cmp_eq_u32 s14, 3"); o("s_cselect_b32 s4, s22, s4"); o("s_cselect_b32 s5, s23, s5")
    o("s_cbranch_scc0 K1_NOPERM")
    o("v_and_b32 v4, 3, v1"); o("v_lshrrev_b32 v5, 3, v1"); o("v_lshl_or_b32 v4, v5, 2, v4")
    o("v_bfe_u32 v5, v1, 2, 1"); o("v_lshl_or_b32 v1, v5, 4, v4")
    lab("K1_NOPERM")
    o("s_mov_b32 s10, 32768")
    o("s_cmp_eq_u32 s14, 4"); o("s_cselect_b32 s4, s20, s4"); o("s_cselect_b32 s5, s21, s5"); o(f"s_cselect_b32 s15, {NLOG2E:#x}, s15")
    o("s_cselect_b32 s10, 4096, s10")
    o("s_mov_b32 s8, s4"); o("s_and_b32 s9, s5, 0xffff"); o("s_mov_b32 s11, 0x20000")
    srd(24, 12, WS_SIZE)
    o("s_cmp_eq_u32 s14, 4"); o("s_cbranch_scc1 K1_PC")
    o("s_and_b32 s30, s3, 3"); o("s_lshl_b32 s30, s30, 6")
    o("v_lshlrev_b32 v4, 14, v2"); o("v_lshl_add_u32 v4, v3, 11, v4"); o("v_lshl_add_u32 v4, v1, 1, v4")
    o("v_add_u32 v4, s30, v4")
    o("s_branch K1_PL")
    lab("K1_PC")
    o("v_cmp_gt_u32 vcc, 256, v0")
    o("v_lshlrev_b32 v4, 11, v2"); o("v_lshl_add_u32 v4, v3, 6, v4"); o("v_lshl_add_u32 v4, v1, 1, v4")
    o("s_and_saveexec_b64 s[28:29], vcc"); o("s_cbranch_execz K1_END")
    lab("K1_PL")
    for j in range(8): o(f"buffer_load_ushort v{8+j}, v4, s[8:11], 0 offen offset:{j*256}")
    o("s_lshl_b32 s30, s3, 13"); o(f"s_add_u32 s30, s30, {WS_WF:#x}")
    o("v_lshlrev_b32 v5, 4, v0")
    o("s_waitcnt vmcnt(0)")
    for j in range(8):
        o(f"v_lshlrev_b32 v{8+j}, 16, v{8+j}"); o(f"v_mul_f32 v{8+j}, s15, v{8+j}")
    for j in range(4): o(f"v_cvt_pk_bf16_f32 v{16+j}, v{8+2*j}, v{9+2*j}")
    o("buffer_store_dwordx4 v[16:19], v5, s[24:27], s30 offen")
    lab("K1_END")
    o("s_endpgm")

CAPT = 30
LUT = 0; MLUT = 4096; NB = 4352; LIST = 4608; LIST_SZ = (CAPT + 5) * 256
MB = LIST + LIST_SZ; CNT = MB + (CAPT + 1) * 256; AT = CNT + 256
RING = AT + 16384; SLOT = 9344; K2_LDS = RING + 4 * SLOT
assert CNT + 256 - MB == 8192

class RA:
    def __init__(s): s.n = 1
    def get(s, k=1, al=1):
        s.n = (s.n + al - 1) // al * al
        b = s.n; s.n += k; return b
R = RA()
(vXA, vEA, vATA, vATB, vSA, vMA, vL1, vL2, vLC, vEL, vAGG, vSV, vREM, vCUR, vTAKE, vEB, vLE) = [R.get() for _ in range(17)]
vLX = R.get(2, 2)
vVO = R.get(3)
WB = R.get(32, 4); WV = R.get(32, 4); WC = R.get(4, 4)
GV = R.get(64, 4)
XF = R.get(16, 4)
EF = R.get(4, 4); SF = R.get(4, 4); AF = R.get(4, 4); MQ = R.get(4, 4)
T0 = R.get(8, 4); T1 = R.get(8, 4)
ACC = R.get(8, 4); TMP = R.get(8, 4)
UU = R.get(16, 4); XR = R.get(16, 4)
NVGPR = R.n
assert NVGPR <= 256, NVGPR
REC = EF; RANK = T0
sX, sE, sW, sO = 8, 12, 16, 20
sWAVE, sBASE, sMX, sME, sU, sNT1, sWOFF, sLIM, sFIRST, sMORE, sMASKX, sT0, sT1, sEPS, sSCR = range(24, 39)
sCM, sCM2, sMM, sSV = 40, 42, 44, 46

def m32(d, a, b, c): return f"v_mfma_f32_32x32x16_bf16 {vr(d,16)}, {vr(a,4)}, {vr(b,4)}, " + ("0" if c is None else vr(c,16))
def m16(d, a, b, c): return f"v_mfma_f32_16x16x32_bf16 {vr(d,4)}, {vr(a,4)}, {vr(b,4)}, " + ("0" if c is None else vr(c,4))

def dma_x(slot, a): return [f"s_add_u32 m0, s{sMX}, {slot*SLOT + a*1040}", "s_nop 0", f"buffer_load_dwordx4 v{vVO+a}, s[{sX}:{sX+3}], 0 offen lds"]
def dma_e(slot): return [f"s_add_u32 m0, s{sME}, {slot*SLOT}", "s_nop 0", f"buffer_load_dword v{vVO+2}, s[{sE}:{sE+3}], 0 offen lds"]
def voffs():
    if OPT.get('oob'):
        return [f"v_mov_b32 v{vVO+i}, 0x7fff0000" for i in range(3)]
    return [f"v_and_or_b32 v{vVO}, v{vLX}, s{sMASKX}, v{vLC}", f"v_and_or_b32 v{vVO+1}, v{vLX+1}, s{sMASKX}, v{vLC}",
            f"v_add_u32 v{vVO+2}, v{vLE}, v{vEL}"]

def finalize(tag, back):
    o(f"s_cmp_eq_u32 s{sFIRST}, 1"); o(f"s_cbranch_scc1 {tag}_A")
    o(f"v_and_b32 v{TMP}, 63, v0"); o(f"v_lshlrev_b32 v{TMP}, 5, v{TMP}")
    o(f"buffer_load_dwordx4 {vr(TMP+4,4)}, v{TMP}, s[{sW}:{sW+3}], s{sSCR} offen offset:16")
    o(f"buffer_load_dwordx4 {vr(TMP,4)}, v{TMP}, s[{sW}:{sW+3}], s{sSCR} offen")
    o("s_waitcnt vmcnt(0)")
    for r in range(8): o(f"v_add_f32 v{ACC+r}, v{ACC+r}, v{TMP+r}")
    lab(f"{tag}_A")
    o(f"s_cmp_eq_u32 s{sMORE}, 0"); o(f"s_cbranch_scc1 {tag}_B")
    o(f"v_and_b32 v{TMP}, 63, v0"); o(f"v_lshlrev_b32 v{TMP}, 5, v{TMP}")
    o(f"buffer_store_dwordx4 {vr(ACC,4)}, v{TMP}, s[{sW}:{sW+3}], s{sSCR} offen")
    o(f"buffer_store_dwordx4 {vr(ACC+4,4)}, v{TMP}, s[{sW}:{sW+3}], s{sSCR} offen offset:16")
    o("s_waitcnt vmcnt(0)")
    o(f"s_branch {tag}_C")
    lab(f"{tag}_B")
    for r in range(4): o(f"v_add_f32 v{TMP+r}, s{sEPS}, v{ACC+r}")
    for r in range(4): o(f"v_rcp_f32 v{TMP+r}, v{TMP+r}")
    o("s_nop 0")
    for r in range(4): o(f"v_mul_f32 v{TMP+r}, v{TMP+r}, v{ACC+4+r}")
    o(f"v_cvt_pk_bf16_f32 v{TMP}, v{TMP}, v{TMP+1}"); o(f"v_cvt_pk_bf16_f32 v{TMP+1}, v{TMP+2}, v{TMP+3}")
    o(f"ds_write_b64 v{vAGG}, {vr(TMP,2)}")
    lab(f"{tag}_C")
    o(f"v_add_u32 v{vAGG}, 512, v{vAGG}"); o(f"s_add_u32 s{sSCR}, s{sSCR}, 2048")

def body(b):
    Gn = GV + 32 * (b % 2); Vn = Gn + 16
    Gc = GV + 32 * ((b + 1) % 2); Vc = Gc + 16
    so = b * SLOT
    pre = ["s_waitcnt vmcnt(6)"] + ([] if OPT.get('nobar') else ["s_barrier"]) + [
           ('ds', 'e', f"ds_read_b128 {vr(EF,4)}, v{vEA} offset:{so}")]
    for s in range(4): pre.append(('ds', f'x{s}', f"ds_read_b128 {vr(XF+4*s,4)}, v{vXA} offset:{so+16*s}"))
    ds_ = (b + 3) % 4
    dma_x, dma_e = globals()['dma_x'], globals()['dma_e']
    if OPT.get('nodma'):
        dma_x = lambda s, a: []
        dma_e = lambda s: []
    if OPT.get('noe'):
        dma_e = lambda s: globals()['dma_x'](s, 1)
    seq = []
    seq.append((['t0a', 't0b'], m16(ACC, Gn, T0, ACC), 16, dma_x(ds_, 0)))
    seq.append(([], m16(ACC+4, Vn, T0, ACC+4), 16, dma_x(ds_, 1)))
    seq.append(([], m16(ACC, Gn+4, T0+4, ACC), 16, dma_e(ds_)))
    seq.append(([], m16(ACC+4, Vn+4, T0+4, ACC+4), 16,
                [f"s_bitcmp1_b64 s[{sCM2}:{sCM2+1}], s{sU}", f"s_cbranch_scc1 FL{b}", f"FLR{b}:",
                 f"s_cmp_eq_u32 s{sU}, s{sNT1}", "s_cbranch_scc1 LOOP_EXIT"]))
    seq.append((['s', 'at'], m32(Gn, SF, AF, None), 32,
                [f"s_bitcmp1_b64 s[{sCM}:{sCM+1}], s{sU}", f"s_cselect_b32 s{sT0}, 512, 0", f"s_add_u32 s{sWOFF}, s{sWOFF}, s{sT0}",
                 ('ds', 'sa', f"ds_read_u8 v{vSV}, v{vSA} offset:{(b+1)*256}"),
                 ('v', f"v_add_u32 v{vATA}, s{sWOFF}, v{vATB}")]))
    seq.append((['e'], m32(Gn, EF, WC, Gn), 32, [('ds', 'at', f"ds_read_b128 {vr(AF,4)}, v{vATA}")]))
    for s in range(8):
        f = XF + 4 * (s % 4)
        ex1 = []; ex2 = []
        if s < 4: ex2.append(('ds', f'x{s+4}', f"ds_read_b128 {vr(f,4)}, v{vXA} offset:{so+16*(s+4)}"))
        if s == 1: ex1.append(('ds', 'mb', f"ds_read_b128 {vr(MQ,4)}, v{vMA} offset:{b*256}"))
        if s == 2: ex1 += [('need', 'sa'), ('ds', 's', f"ds_read_b128 {vr(SF,4)}, v{vSV} offset:{MLUT}")]
        if s == 4: ex1 += [('ds', 'l1', f"ds_read2_b32 {vr(vLX,2)}, v{vL1} offset0:{b*64} offset1:{b*64+4}"),
                           ('ds', 'l2', f"ds_read_b32 v{vLE}, v{vL2} offset:{b*256}")]
        if s == 4: ex2 += [('need', 'mb'), f"s_mov_b64 exec, s[{sMM}:{sMM+1}]",
                           ('ds', 't0a', f"ds_read_b128 {vr(T0,4)}, v{MQ}"), ('ds', 't0b', f"ds_read_b128 {vr(T0+4,4)}, v{MQ+1}"),
                           "s_mov_b64 exec, -1"]
        if s == 6: ex2 += [('need', 'l1'), ('need', 'l2')] + [('v', x) for x in voffs()]
        if s == 7:
            ex1.append(f"s_add_u32 s{sU}, s{sU}, 1")
            if b == 3: ex1 += [('v', f"v_add_u32 v{r}, 0x400, v{r}") for r in (vSA, vMA, vL1, vL2)]
        seq.append(([f'x{s}'], m32(Gn, f, WB+4*s, Gn), 32, ex1))
        seq.append(([], m32(Vn, f, WV+4*s, None if s == 0 else Vn), 32, ex2))
    A = []
    for p in range(0, 22, 2):
        if p < 16: A += [(f"v_exp_f32 v{Gc+p}, v{Gc+p}", 8), (f"v_exp_f32 v{Gc+p+1}, v{Gc+p+1}", 8)]
        q = p - 2
        if 0 <= q < 16:
            A += [(f"v_add_f32 v{Gc+q}, 1.0, v{Gc+q}", 4), (f"v_add_f32 v{Gc+q+1}, 1.0, v{Gc+q+1}", 4),
                  (f"v_rcp_f32 v{Gc+q}, v{Gc+q}", 8), (f"v_rcp_f32 v{Gc+q+1}, v{Gc+q+1}", 8)]
        q = p - 4
        if 0 <= q < 16: A += [(f"v_mul_f32 v{Vc+q}, v{Gc+q}, v{Vc+q}", 4), (f"v_mul_f32 v{Vc+q+1}, v{Gc+q+1}, v{Vc+q+1}", 4)]
        q = p - 6
        if 0 <= q < 16: A += [(f"v_cvt_pk_bf16_f32 v{Gc+q//2}, v{Gc+q}, v{Gc+q+1}", 4), (f"v_cvt_pk_bf16_f32 v{Vc+q//2}, v{Vc+q}, v{Vc+q+1}", 4)]
    room = [cyc - 8 - 4 * sum(1 for x in ex if isinstance(x, tuple) and x[0] == 'v') for (_, _, cyc, ex) in seq]
    room[0] = 0
    tot = sum(c for _, c in A); scale = tot / sum(max(r, 0) for r in room)
    out = list(pre); ai = 0; acc = 0; budget = 0
    for (needs, m, cyc, ex), rm in zip(seq, room):
        for n in needs: out.append(('need', n))
        out.append(m)
        budget += max(rm, 0) * scale
        branchy = any(isinstance(x, str) and 'cbranch' in x for x in ex)
        if not branchy: out += [x[1] if (isinstance(x, tuple) and x[0] == 'v') else x for x in ex]
        while ai < len(A) and acc + A[ai][1] / 2 <= budget:
            out.append(A[ai][0]); acc += A[ai][1]; ai += 1
        if branchy: out += ex
    while ai < len(A): out.append(A[ai][0]); ai += 1
    return out

def emit_loop():
    bodies = [body(b) for b in range(4)]
    issued = 0; done = 0; last = {}
    for rnd in range(2):
        for b in range(4):
            if rnd == 1:
                if b == 0: lab("LOOP")
            for it in bodies[b]:
                if isinstance(it, tuple) and it[0] == 'ds':
                    issued += 1; last[it[1]] = issued
                    if rnd == 1: o(it[2])
                elif isinstance(it, tuple) and it[0] == 'need':
                    idx = last.get(it[1], 0)
                    if idx > done:
                        n = issued - idx
                        assert n <= 15
                        done = idx
                        if rnd == 1: o(f"s_waitcnt lgkmcnt({n})")
                elif rnd == 1:
                    if it.endswith(':'): lab(it[:-1])
                    else: o(it)
    o("s_branch LOOP")
    for b in range(4):
        Gn = GV + 32 * (b % 2); Vn = Gn + 16
        lab(f"FL{b}")
        o(f"s_mov_b64 exec, s[{sMM}:{sMM+1}]")
        o(f"ds_read_b128 {vr(T1,4)}, v{MQ+2}"); o(f"ds_read_b128 {vr(T1+4,4)}, v{MQ+3}")
        o("s_mov_b64 exec, -1")
        o("s_nop 3")
        finalize(f"FL{b}", None)
        o("s_waitcnt lgkmcnt(0)")
        o(m16(ACC, Gn, T1, None)); o(m16(ACC+4, Vn, T1, None))
        o(m16(ACC, Gn+4, T1+4, ACC)); o(m16(ACC+4, Vn+4, T1+4, ACC+4))
        o(f"s_branch FLR{b}")

def gen_k2():
    L.append(".globl gmain_kernel"); L.append(".p2align 8"); L.append(".type gmain_kernel,@function")
    lab("gmain_kernel")
    t = [XF + i for i in range(16)]
    o("s_load_dwordx4 s[4:7], s[0:1], 0"); stamp(0)
    o("s_load_dwordx2 s[48:49], s[0:1], 72"); o("s_load_dwordx2 s[50:51], s[0:1], 88")
    o("s_and_b32 s3, s2, 7"); o("s_lshl_b32 s3, s3, 6"); o(f"s_lshr_b32 s{sT0}, s2, 3"); o(f"s_add_u32 s3, s3, s{sT0}")
    o("s_cmp_ge_u32 s2, 512"); o("s_cbranch_scc1 K2_END")
    o(f"s_cmp_ge_u32 s3, {NR}"); o("s_cbranch_scc1 K2_END")
    o(f"v_lshrrev_b32 v{t[0]}, 6, v0")
    o(f"v_lshlrev_b32 v{vCUR}, 11, v0")
    o(f"v_readfirstlane_b32 s{sWAVE}, v{t[0]}")
    o(f"s_lshl_b32 s{sT0}, s3, 2"); o(f"s_add_u32 s{sT0}, s{sT0}, {WS_OFF:#x}")
    o(f"v_add_u32 v{vCUR}, s{sT0}, v{vCUR}")
    o(f"v_cmp_gt_u32 vcc, {NCH}, v0")
    o(f"s_mul_i32 s{sBASE}, s3, {RN}")
    o(f"v_mov_b32 v{t[1]}, 0x7ffffff0")
    o(f"v_cndmask_b32 v{vCUR}, v{t[1]}, v{vCUR}, vcc")
    vl = t[2]; ve = t[3]; vh = t[4]; vq = t[5]
    o(f"v_and_b32 v{vl}, 63, v0"); o(f"v_lshrrev_b32 v{vq}, 4, v{vl}")
    o(f"v_and_b32 v{t[6]}, 15, v0"); o(f"v_bfe_u32 v{t[7]}, v0, 4, 1"); o(f"v_lshlrev_b32 v{t[8]}, 3, v{t[7]}")
    o(f"v_xor_b32 v{vLC}, v{t[6]}, v{t[8]}"); o(f"v_lshlrev_b32 v{vLC}, 4, v{vLC}")
    o(f"v_lshrrev_b32 v{vh}, 5, v{vl}")
    o("s_waitcnt lgkmcnt(0)")
    srd(sW, 50, WS_SIZE)
    o(f"buffer_load_dword v{vREM}, v{vCUR}, s[{sW}:{sW+3}], 0 offen")
    srd(sX, 4, N*256)
    o(f"s_lshr_b32 s{sT0}, s{sWAVE}, 1"); o(f"s_lshl_b32 s{sT0}, s{sT0}, 4"); o(f"s_and_b32 s{sT1}, s{sWAVE}, 1"); o(f"s_lshl_b32 s{sT1}, s{sT1}, 2")
    o(f"s_add_u32 s{sT0}, s{sT0}, s{sT1}"); o(f"s_add_u32 s{sT0}, s{sT0}, s{sBASE}"); o(f"s_lshl_b32 s{sT0}, s{sT0}, 8")
    o(f"s_mul_i32 s{sMX}, s{sWAVE}, 2080"); o(f"s_add_u32 s{sMX}, s{sMX}, {RING}")
    o(f"v_lshl_add_u32 v{t[8]}, v{vh}, 3, v{t[7]}"); o(f"v_lshl_add_u32 v{t[8]}, v{t[8]}, 8, v{vLC}")
    o(f"v_add_u32 v{vVO}, s{sT0}, v{t[8]}"); o(f"v_add_u32 v{vVO+1}, 512, v{vVO}")
    for x in dma_x(0, 0) + dma_x(0, 1): o(x)
    o(f"v_add_u32 v{vVO}, 0x2000, v{vVO}"); o(f"v_add_u32 v{vVO+1}, 0x2000, v{vVO+1}")
    for x in dma_x(1, 0) + dma_x(1, 1): o(x)
    vwf = t[9]
    o(f"v_lshlrev_b32 v{vwf}, 4, v{vl}")
    o(f"s_lshl_b32 s52, s{sWAVE}, 13"); o(f"s_add_u32 s52, s52, {WS_WF:#x}")
    def wload(dst, off, n):
        for s in range(n):
            if s % 4 == 0: o(f"s_add_u32 s{sT0}, s52, {off + s*1024:#x}")
            o(f"buffer_load_dwordx4 {vr(dst+4*s,4)}, v{vwf}, s[{sW}:{sW+3}], s{sT0} offen offset:{(s%4)*1024}")
    wload(GV, WF_A, 8); wload(GV+32, WF_U, 8)
    srd(sE, 6, E*32); srd(sO, 48, N*256)
    o(f"v_and_b32 v{ve}, 31, v0")
    o(f"v_lshrrev_b32 v{t[6]}, 4, v{ve}"); o(f"v_bfe_u32 v{t[8]}, v{ve}, 1, 2"); o(f"v_lshl_or_b32 v{t[6]}, v{t[6]}, 2, v{t[8]}")
    o(f"v_mul_u32_u24 v{t[6]}, 1040, v{t[6]}")
    o(f"v_and_b32 v{t[8]}, 1, v{ve}"); o(f"v_bfe_u32 v{t[10]}, v{ve}, 3, 1"); o(f"v_lshl_or_b32 v{t[10]}, v{t[10]}, 1, v{t[8]}")
    o(f"v_lshl_add_u32 v{t[6]}, v{t[10]}, 8, v{t[6]}"); o(f"v_add_u32 v{t[6]}, {RING}, v{t[6]}")
    o(f"v_xor_b32 v{t[10]}, v{vh}, v{t[8]}"); o(f"v_lshl_add_u32 v{vXA}, v{t[10]}, 7, v{t[6]}")
    o(f"s_lshr_b32 s{sT0}, s{sWAVE}, 1"); o(f"v_xor_b32 v{t[10]}, s{sT0}, v{t[8]}"); o(f"v_lshl_add_u32 v{vSV}, v{t[10]}, 7, v{t[6]}")
    o(f"s_and_b32 s{sT1}, s{sWAVE}, 1"); o(f"s_lshl_b32 s{sT1}, s{sT1}, 6")
    o(f"v_lshl_add_u32 v{vSV}, v{vh}, 5, v{vSV}"); o(f"v_add_u32 v{vSV}, s{sT1}, v{vSV}")
    vp = t[11]
    o(f"v_and_b32 v{vp}, 0x13, v{ve}"); o(f"v_bfe_u32 v{t[8]}, v{ve}, 2, 1"); o(f"v_lshl_or_b32 v{vp}, v{t[8]}, 3, v{vp}")
    o(f"v_bfe_u32 v{t[8]}, v{ve}, 3, 1"); o(f"v_lshl_or_b32 v{vp}, v{t[8]}, 2, v{vp}")
    o(f"v_lshrrev_b32 v{t[8]}, 4, v{vp}"); o(f"v_xor_b32 v{t[8]}, v{t[8]}, v{vh}"); o(f"v_lshlrev_b32 v{t[8]}, 4, v{t[8]}")
    o(f"v_lshl_add_u32 v{vEA}, v{vp}, 5, v{t[8]}"); o(f"v_add_u32 v{vEA}, {RING+8320}, v{vEA}")
    o(f"s_lshl_b32 s{sT0}, s{sT0}, 2"); o(f"v_and_b32 v{t[8]}, 7, v0"); o(f"v_xor_b32 v{t[8]}, s{sT0}, v{t[8]}"); o(f"v_lshlrev_b32 v{vEL}, 2, v{t[8]}")
    o(f"s_lshl_b32 s{sME}, s{sWAVE}, 8"); o(f"s_add_u32 s{sME}, s{sME}, {RING+8320}")
    o(f"s_lshl_b32 s53, s{sWAVE}, 12"); o(f"s_add_u32 s53, s53, {AT}")
    o(f"v_add_u32 v{vATB}, s53, v{vwf}")
    o(f"v_mul_u32_u24 v{vEB}, {CH*32}, v0")
    o(f"s_mov_b32 s{sMASKX}, 0xffff00"); o(f"s_mov_b32 s{sEPS}, {EPS:#x}")
    o(f"s_mov_b32 s{sMM}, 0xff0000ff"); o(f"s_mov_b32 s{sMM+1}, 0xff0000ff")
    o(f"s_mov_b32 s{sFIRST}, 1"); o(f"s_mov_b32 s{sLIM}, 16")
    for d in range(4):
        o(f"v_bfe_u32 v{TMP+d}, v0, {2*d}, 2"); o(f"v_mul_u32_u24 v{TMP+d}, 0x8001, v{TMP+d}")
        o(f"v_and_b32 v{TMP+d}, 0x10001, v{TMP+d}"); o(f"v_mul_u32_u24 v{TMP+d}, 0x3f80, v{TMP+d}")
    o(f"v_lshlrev_b32 v{t[8]}, 4, v0"); o(f"ds_write_b128 v{t[8]}, {vr(TMP,4)} offset:{LUT}")
    o(f"v_add_u32 v{t[10]}, -1, v0"); o(f"v_and_b32 v{t[10]}, v{t[10]}, v0"); o(f"v_cmp_eq_u32 vcc, 0, v{t[10]}")
    o(f"v_ffbl_b32 v{t[10]}, v0"); o(f"v_lshlrev_b32 v{t[10]}, 4, v{t[10]}"); o(f"v_add_u32 v{t[10]}, 16, v{t[10]}")
    o(f"s_and_saveexec_b64 s[{sSV}:{sSV+1}], vcc")
    o(f"ds_write_b128 v{t[10]}, {vr(TMP,4)} offset:{MLUT}")
    o("s_mov_b64 exec, -1")
    o("s_waitcnt vmcnt(20)"); stamp(1)
    o(f"v_and_b32 v{vCUR}, 0xffff, v{vREM}"); o(f"v_lshrrev_b32 v{vREM}, 16, v{vREM}")
    o(f"v_mul_u32_u24 v{t[10]}, {CH}, v0"); o(f"v_add_lshl_u32 v{vCUR}, v{vCUR}, v{t[10]}, 2")
    lab("ROUND")
    for k in range(4): o(f"buffer_load_dwordx4 {vr(REC+4*k,4)}, v{vCUR}, s[{sW}:{sW+3}], 0 offen offset:{16*k}")
    o(f"v_lshlrev_b32 v{t[8]}, 4, v0")
    for d in range(4): o(f"v_mov_b32 v{TMP+d}, 0")
    o(f"ds_write_b128 v{t[8]}, {vr(TMP,4)} offset:{MB}"); o(f"ds_write_b128 v{t[8]}, {vr(TMP,4)} offset:{MB+4096}")
    o(f"v_mov_b32 v{TMP+4}, 0xffff00"); o(f"v_mov_b32 v{TMP+5}, 0x7fffffc0"); o(f"v_mov_b32 v{TMP+6}, 0xffff00"); o(f"v_mov_b32 v{TMP+7}, 0x7fffffc0")
    o(f"ds_write_b128 v{t[8]}, {vr(TMP+4,4)} offset:{LIST}"); o(f"ds_write_b128 v{t[8]}, {vr(TMP+4,4)} offset:{LIST+4096}")
    o(f"ds_write_b128 v{t[8]}, {vr(TMP+4,4)} offset:{LIST+LIST_SZ-4096}")
    o(f"s_cmp_eq_u32 s{sFIRST}, 0"); o("s_cbranch_scc1 NOGEMM")
    wload(WB, WF_B, 8); wload(WV, WF_V, 8)
    o(f"s_lshl_b32 s{sT0}, s{sWAVE}, 10"); o(f"s_add_u32 s{sT0}, s{sT0}, {WS_WF+WF_C:#x}")
    o(f"buffer_load_dwordx4 {vr(WC,4)}, v{vwf}, s[{sW}:{sW+3}], s{sT0} offen")
    o(f"v_lshlrev_b32 v{vATA}, 4, v{ve}"); o(f"v_lshl_add_u32 v{vATA}, v{vh}, 3, v{vATA}"); o(f"v_add_u32 v{vATA}, s53, v{vATA}")
    o(f"s_mov_b32 s{sT1}, {NLOG2E:#x}")
    o("s_waitcnt vmcnt(21) lgkmcnt(0)"); o("s_barrier"); stamp(2)
    if STAMP: o("s_waitcnt lgkmcnt(0)")
    for mt in range(2):
        for s in range(4): o(f"ds_read_b128 {vr(XF+4*s,4)}, v{vXA} offset:{mt*SLOT+16*s}")
        for s in range(8):
            f = XF + 4 * (s % 4)
            o(f"s_waitcnt lgkmcnt({3 if s < 5 else 7 - s})")
            o(m32(ACC, f, GV+4*s, None if s == 0 else ACC))
            o(m32(XR, GV+32+4*s, f, None if s == 0 else XR))
            if s < 4: o(f"ds_read_b128 {vr(f,4)}, v{vXA} offset:{mt*SLOT+16*(s+4)}")
        o("s_nop 10")
        for r in range(16): o(f"v_mul_f32 v{ACC+r}, s{sT1}, v{ACC+r}")
        for r in range(0, 16, 2): o(f"v_cvt_pk_bf16_f32 v{ACC+r//2}, v{ACC+r}, v{ACC+r+1}")
        for g in range(4): o(f"ds_write_b64 v{vATA}, {vr(ACC+2*g,2)} offset:{(4*mt+g)*512}")
        for r in range(0, 16, 2): o(f"v_cvt_pk_bf16_f32 v{UU+8*mt+r//2}, v{XR+r}, v{XR+r+1}")
        o("s_waitcnt lgkmcnt(0)")
    for mt in range(2):
        for k in range(2): o(f"ds_read_b128 {vr(XR+8*mt+4*k,4)}, v{vSV} offset:{mt*SLOT+16*k}")
    if STAMP:
        o("s_getreg_b32 s70, hwreg(HW_REG_HW_ID)"); o("s_getreg_b32 s71, hwreg(HW_REG_XCC_ID)"); o("s_and_b32 s70, s70, 0xffff"); o("s_lshl_b32 s71, s71, 16"); o("s_or_b32 s70, s70, s71")
    o("s_waitcnt vmcnt(17)"); stamp(4)
    o("s_branch RANK")
    lab("NOGEMM")
    o("s_waitcnt vmcnt(0) lgkmcnt(0)"); o("s_barrier")
    lab("RANK")
    o(f"v_min_u32 v{vTAKE}, s{sLIM}, v{vREM}")
    o(f"v_mov_b32 v{t[0]}, 1"); o(f"v_mov_b32 v{t[1]}, {CNT+252}")
    o(f"v_cmp_gt_u32 vcc, v{vREM}, v{vTAKE}")
    o(f"s_and_saveexec_b64 s[{sSV}:{sSV+1}], vcc")
    o(f"ds_write_b32 v{t[1]}, v{t[0]}")
    o("s_mov_b64 exec, -1")
    for k in range(16):
        o(f"v_cmpx_lt_u32 vcc, {k}, v{vTAKE}"); o("s_cbranch_execz P1_DONE")
        o(f"v_and_b32 v{t[1]}, 0xfc, v{REC+k}")
        o(f"ds_add_rtn_u32 v{RANK+k}, v{t[1]}, v{t[0]} offset:{CNT}")
    lab("P1_DONE")
    o("s_mov_b64 exec, -1")
    o(f"v_and_b32 v{t[2]}, 63, v0"); o(f"v_lshlrev_b32 v{t[1]}, 2, v{t[2]}")
    o("s_waitcnt lgkmcnt(0)"); o("s_barrier")
    o(f"ds_read_b32 v{t[3]}, v{t[1]} offset:{CNT}")
    o(f"v_and_b32 v{t[5]}, 7, v0"); o(f"v_cmp_eq_u32 vcc, 7, v{t[5]}"); o(f"v_cmp_gt_u32 s[{sSV}:{sSV+1}], 48, v{t[2]}")
    o(f"s_and_b64 vcc, vcc, s[{sSV}:{sSV+1}]")
    o("s_waitcnt lgkmcnt(0)")
    o(f"v_readlane_b32 s{sMORE}, v{t[3]}, 63")
    o(f"v_add_u32_dpp v{t[4]}, v{t[3]}, v{t[3]} quad_perm:[1,0,3,2] row_mask:0xf bank_mask:0xf"); o("s_nop 1")
    o(f"v_add_u32_dpp v{t[4]}, v{t[4]}, v{t[4]} quad_perm:[2,3,0,1] row_mask:0xf bank_mask:0xf"); o("s_nop 1")
    o(f"v_add_u32_dpp v{t[4]}, v{t[4]}, v{t[4]} row_half_mirror row_mask:0xf bank_mask:0xf")
    o(f"v_sub_u32 v{t[4]}, 32, v{t[4]}"); o(f"v_max_i32 v{t[4]}, 0, v{t[4]}"); o(f"v_cndmask_b32 v{t[4]}, 0, v{t[4]}, vcc")
    o(f"v_add_u32 v{t[3]}, v{t[3]}, v{t[4]}"); o(f"v_mov_b32 v{t[4]}, v{t[3]}")
    scan64(t[3])
    o(f"v_sub_u32 v{t[4]}, v{t[3]}, v{t[4]}")
    o(f"ds_swizzle_b32 v{t[5]}, v{t[4]} offset:0x0018")
    o(f"v_readlane_b32 s{sNT1}, v{t[3]}, 48")
    o(f"s_mov_b64 s[{sCM}:{sCM+1}], 0")
    for w in range(6):
        o(f"v_readlane_b32 s{sT0}, v{t[3]}, {8*w+7}"); o(f"s_sub_u32 s{sT0}, s{sT0}, 1"); o(f"s_lshr_b32 s{sT0}, s{sT0}, 5")
        o(f"s_bitset1_b64 s[{sCM}:{sCM+1}], s{sT0}")
    o(f"s_cmp_le_u32 s{sNT1}, {CAPT*32}"); o("s_cbranch_scc1 FITS")
    o(f"s_mov_b32 s{sLIM}, 3"); o(f"v_mov_b32 v{t[0]}, 0")
    o("s_waitcnt lgkmcnt(0)"); o("s_barrier")
    o(f"ds_write_b32 v{t[1]}, v{t[0]} offset:{CNT}")
    o("s_waitcnt lgkmcnt(0)"); o("s_barrier")
    o("s_branch RANK")
    lab("FITS")
    o(f"s_add_u32 s{sNT1}, s{sNT1}, 63"); o(f"s_lshr_b32 s{sNT1}, s{sNT1}, 5")
    o(f"s_lshl_b64 s[{sCM2}:{sCM2+1}], s[{sCM}:{sCM+1}], 2")
    o("s_waitcnt lgkmcnt(0)")
    o(f"v_lshl_or_b32 v{t[4]}, v{t[5]}, 16, v{t[4]}")
    o(f"ds_write_b32 v{t[1]}, v{t[4]} offset:{NB}")
    o(f"s_mov_b32 s{sT0}, 0x7fff00"); o(f"s_movk_i32 s{sT1}, 0x7fe0")
    for k in range(16):
        o(f"v_cmpx_lt_u32 vcc, {k}, v{vTAKE}"); o("s_cbranch_execz P2A_DONE")
        o(f"v_and_b32 v{t[1]}, 0xfc, v{REC+k}")
        o(f"ds_read_b32 v{GV+k}, v{t[1]} offset:{NB}")
    lab("P2A_DONE")
    o("s_mov_b64 exec, -1")
    o("s_waitcnt lgkmcnt(0)")
    for k in range(16):
        rec = REC + k; nb = GV + k; pos = RANK + k
        o(f"v_cmpx_lt_u32 vcc, {k}, v{vTAKE}"); o("s_cbranch_execz P2_DONE")
        o(f"v_add_u32 v{pos}, v{pos}, v{nb}")
        o(f"v_lshrrev_b32 v{nb}, 16, v{nb}")
        o(f"v_and_b32 v{t[0]}, s{sT1}, v{pos}")
        o(f"v_cmp_lt_u32 vcc, v{t[0]}, v{nb}")
        o(f"v_and_b32 v{t[1]}, 0x1c, v{rec}")
        o(f"v_lshl_add_u32 v{t[2]}, v{t[1]}, 2, 16")
        o(f"v_cndmask_b32 v{t[3]}, 0, 8, vcc")
        o(f"v_mul_u32_u24 v{t[4]}, 3, v{t[3]}")
        o(f"v_lshlrev_b32 v{t[2]}, v{t[4]}, v{t[2]}")
        o(f"v_and_or_b32 v{t[6]}, v{rec}, s{sT0}, v{t[2]}")
        o(f"v_alignbit_b32 v{t[7]}, v{rec}, v{rec}, 18"); o(f"v_and_b32 v{t[7]}, 0xffe0, v{t[7]}"); o(f"v_add_u32 v{t[7]}, v{t[7]}, v{vEB}")
        o(f"v_and_b32 v{pos}, 0xffff, v{pos}")
        o(f"v_lshlrev_b32 v{t[5]}, 3, v{pos}")
        o(f"ds_write_b64 v{t[5]}, {vr(t[6],2)} offset:{LIST}")
        o(f"v_add_lshl_u32 v{t[0]}, v{t[0]}, v{t[1]}, 3")
        o(f"v_and_b32 v{t[1]}, 8, v{pos}"); o(f"v_lshl_add_u32 v{t[0]}, v{t[1]}, 1, v{t[0]}")
        o(f"v_bfe_u32 v{t[1]}, v{pos}, 4, 1"); o(f"v_lshl_or_b32 v{t[1]}, v{t[1]}, 2, v{t[3]}")
        o(f"v_and_b32 v{t[2]}, 7, v{pos}"); o(f"v_lshlrev_b32 v{t[2]}, v{t[2]}, 16")
        o(f"v_add_u32 v{t[0]}, v{t[0]}, v{t[1]}")
        o(f"ds_or_b32 v{t[0]}, v{t[2]} offset:{MB+256}")
    lab("P2_DONE")
    o("s_mov_b64 exec, -1")
    o(f"v_and_b32 v{t[0]}, 0x13, v0"); o(f"v_bfe_u32 v{t[1]}, v0, 2, 1"); o(f"v_lshl_or_b32 v{t[0]}, v{t[1]}, 3, v{t[0]}")
    o(f"v_bfe_u32 v{t[1]}, v0, 3, 1"); o(f"v_lshl_or_b32 v{t[0]}, v{t[1]}, 2, v{t[0]}")
    o(f"v_bfe_u32 v{t[2]}, v0, 5, 1"); o(f"v_mul_u32_u24 v{t[3]}, 3, v{t[2]}")
    o(f"v_lshl_add_u32 v{vSA}, v{t[0]}, 3, v{t[3]}"); o(f"v_add_u32 v{vSA}, {LIST}, v{vSA}")
    o(f"v_and_b32 v{t[0]}, 7, v0"); o(f"v_lshlrev_b32 v{vMA}, 5, v{t[0]}"); o(f"v_lshl_add_u32 v{vMA}, v{t[2]}, 4, v{vMA}"); o(f"v_add_u32 v{vMA}, {MB}, v{vMA}")
    o(f"v_lshlrev_b32 v{vAGG}, 6, v{t[0]}"); o(f"v_lshl_add_u32 v{vAGG}, v{t[1]}, 5, v{vAGG}")
    o(f"v_bfe_u32 v{t[3]}, v0, 4, 2"); o(f"v_lshl_add_u32 v{vAGG}, v{t[3]}, 3, v{vAGG}"); o(f"v_add_u32 v{vAGG}, s53, v{vAGG}")
    o(f"s_lshl_b32 s{sT0}, s{sWAVE}, 6"); o(f"s_add_u32 s{sT0}, s{sT0}, {LIST}")
    o(f"v_bfe_u32 v{t[0]}, v0, 4, 1"); o(f"v_lshl_add_u32 v{t[0]}, v{t[2]}, 2, v{t[0]}"); o(f"v_lshl_add_u32 v{vL1}, v{t[0]}, 3, s{sT0}")
    o(f"v_and_b32 v{t[0]}, 0x38, v0"); o(f"v_add3_u32 v{vL2}, v{t[0]}, s{sT0}, 4")
    o("s_waitcnt lgkmcnt(0)"); o("s_barrier")
    stamp(5)
    if STAMP: o("s_waitcnt lgkmcnt(0)")
    for k in range(4):
        o(f"ds_read2_b32 {vr(t[0]+4*k,2)}, v{vL1} offset0:{k*64} offset1:{k*64+4}")
        o(f"ds_read_b32 v{t[2]+4*k}, v{vL2} offset:{k*256}")
    o(f"ds_read_u8 v{vSV}, v{vSA}")
    o(f"ds_read_b128 {vr(AF,4)}, v{vATB}")
    for k in range(4):
        o(f"s_waitcnt lgkmcnt({8-2*k})")
        o(f"v_and_or_b32 v{vVO}, v{t[0]+4*k}, s{sMASKX}, v{vLC}"); o(f"v_and_or_b32 v{vVO+1}, v{t[1]+4*k}, s{sMASKX}, v{vLC}")
        o(f"v_add_u32 v{vVO+2}, v{t[2]+4*k}, v{vEL}")
        if k < 3:
            for x in dma_x(k, 0) + dma_x(k, 1) + dma_e(k): o(x)
    o("s_waitcnt lgkmcnt(1)")
    o(f"ds_read_b128 {vr(SF,4)}, v{vSV} offset:{MLUT}")
    o(f"v_add_u32 v{vL1}, 0x400, v{vL1}"); o(f"v_add_u32 v{vL2}, 0x400, v{vL2}")
    for r in list(range(GV, GV+8)) + list(range(GV+16, GV+24)) + list(range(GV+32, GV+64)) + list(range(T0, T0+16)) + list(range(ACC, ACC+8)):
        o(f"v_mov_b32 v{r}, 0")
    o(f"s_mov_b32 s{sU}, 0"); o(f"s_mov_b32 s{sWOFF}, 0")
    o(f"s_lshl_b32 s{sSCR}, s2, 2"); o(f"s_add_u32 s{sSCR}, s{sSCR}, s{sWAVE}"); o(f"s_lshl_b32 s{sSCR}, s{sSCR}, 14"); o(f"s_add_u32 s{sSCR}, s{sSCR}, {WS_SCR:#x}")
    if STAMP: o("s_waitcnt vmcnt(6)")
    stamp(6)
    if STAMP: o("s_memtime s[80:81]")
    o("s_waitcnt lgkmcnt(0)")
    emit_loop()
    lab("LOOP_EXIT"); stamp(7)
    if STAMP: o("s_memtime s[86:87]"); o(f"s_mov_b32 s88, s{sNT1}")
    o("s_nop 7")
    finalize("FIN", None)
    o(f"s_cmp_eq_u32 s{sMORE}, 0"); o("s_cbranch_scc1 EPI")
    o(f"v_sub_u32 v{vREM}, v{vREM}, v{vTAKE}"); o(f"v_lshl_add_u32 v{vCUR}, v{vTAKE}, 2, v{vCUR}")
    o(f"s_mov_b32 s{sFIRST}, 0"); o(f"s_mov_b32 s{sLIM}, 16")
    o("s_waitcnt vmcnt(0) lgkmcnt(0)"); o("s_barrier")
    o("s_branch ROUND")
    lab("EPI")
    g = GV
    o("s_waitcnt lgkmcnt(0)")
    o(f"v_and_b32 v{t[0]}, 31, v0"); o(f"v_bfe_u32 v{t[1]}, v0, 5, 1")
    o(f"v_lshlrev_b32 v{t[2]}, 6, v{t[0]}"); o(f"v_lshl_add_u32 v{t[2]}, v{t[1]}, 5, v{t[2]}"); o(f"v_add_u32 v{t[2]}, s53, v{t[2]}")
    for mt in range(2):
        for k in range(2): o(f"ds_read_b128 {vr(g+8*mt+4*k,4)}, v{t[2]} offset:{mt*2048+16*k}")
    o(f"s_lshl_b32 s{sT0}, s{sBASE}, 8"); o(f"s_lshl_b32 s{sT1}, s{sWAVE}, 6"); o(f"s_add_u32 s{sT0}, s{sT0}, s{sT1}")
    o(f"v_lshlrev_b32 v{t[3]}, 8, v{t[0]}"); o(f"v_lshl_add_u32 v{t[3]}, v{t[1]}, 5, v{t[3]}"); o(f"v_add_u32 v{t[3]}, s{sT0}, v{t[3]}")
    o(f"s_mov_b32 s{sT1}, 0xffff0000")
    for mt in range(2):
        o(f"s_waitcnt lgkmcnt({2-2*mt})")
        if mt == 1:
            o(f"v_cmpx_gt_u32 vcc, {RN-32}, v{t[0]}"); o(f"v_add_u32 v{t[3]}, 0x2000, v{t[3]}")
        for k in range(8):
            a = g + 8*mt + k; u = UU + 8*mt + k; x = XR + 8*mt + k; q = g + 16
            o(f"v_lshlrev_b32 v{q}, 16, v{a}"); o(f"v_and_b32 v{q+1}, s{sT1}, v{a}")
            o(f"v_lshlrev_b32 v{q+2}, 16, v{u}"); o(f"v_and_b32 v{q+3}, s{sT1}, v{u}")
            o(f"v_add_f32 v{q}, v{q}, v{q+2}"); o(f"v_add_f32 v{q+1}, v{q+1}, v{q+3}")
            o(f"v_lshlrev_b32 v{q+2}, 16, v{x}"); o(f"v_and_b32 v{q+3}, s{sT1}, v{x}")
            o(f"v_max_f32 v{q}, 0, v{q}"); o(f"v_max_f32 v{q+1}, 0, v{q+1}")
            o(f"v_add_f32 v{q}, v{q}, v{q+2}"); o(f"v_add_f32 v{q+1}, v{q+1}, v{q+3}")
            o(f"v_cvt_pk_bf16_f32 v{a}, v{q}, v{q+1}")
        for k in range(2): o(f"buffer_store_dwordx4 {vr(g+8*mt+4*k,4)}, v{t[3]}, s[{sO}:{sO+3}], 0 offen offset:{16*k}")
    stamp_out(9, t[8], sW, 1)
    lab("K2_END")
    o("s_endpgm")

def kd(name, nv, ns):
    L.append(".p2align 6")
    L.append(f".amdhsa_kernel {name}")
    for k, v in (("next_free_vgpr", nv), ("next_free_sgpr", ns), ("accum_offset", (nv + 3) // 4 * 4), ("group_segment_fixed_size", 0),
                 ("kernarg_size", 96), ("user_sgpr_count", 2), ("user_sgpr_kernarg_segment_ptr", 1), ("system_sgpr_workgroup_id_x", 1),
                 ("float_denorm_mode_32", 3)):
        L.append(f"  .amdhsa_{k} {v}")
    L.append(".end_amdhsa_kernel")

hdr = [l for l in open(f"cdna_kernels/{NAME}.s.ref").read().splitlines() if l.startswith(";") and "@launch" not in l
       and "Override launch" not in l and "grid=ceil" not in l]
L += hdr
L.append(f"; @launch kernel=gsort_kernel grid=({K1_GRID},1,1) block=(512,1,1) lds={K1_LDS}")
L.append(f"; @launch kernel=gmain_kernel grid=(512,1,1) block=(256,1,1) lds={OPT.get('lds', K2_LDS)}")
L.append('.amdgcn_target "amdgcn-amd-amdhsa--gfx950"'); L.append(".text")
gen_k1(); gen_k2()
L.append('.section .rodata,"a"')
kd("gsort_kernel", 40, 96 if STAMP else 40); kd("gmain_kernel", NVGPR, 96 if STAMP else 60)
open(sys.argv[1], "w").write("\n".join(L) + "\n")
print("vgprs", NVGPR, "lds", K2_LDS, "lines", len(L), file=sys.stderr)
```

```python
import sys, struct

N = 25000; E = 400000; RN = 49; NR = 511; CH = 1600; NCH = 250
WS_REC = 0; WS_OFF = 0x200000; WS_WF = 0x300000; WS_SCR = 0x1000000; WS_SIZE = 0x4000000
WF_B = 0; WF_V = 0x8000; WF_A = 0x10000; WF_U = 0x18000; WF_C = 0x20000
NLOG2E = struct.unpack('<I', struct.pack('<f', -1.4426950408889634))[0]
EPS = struct.unpack('<I', struct.pack('<f', 1e-6))[0]
NAME = "standalone__edge_featured_mpnn_gatedgcn__graph"

OPT = dict(a.split('=') for a in sys.argv[2:]) if len(sys.argv) > 2 else {}

STAMP = int(OPT.get('stamp', 0))
WS_STAMP = 0x3800000
L = []
def stamp(i):
    if STAMP: o(f"s_memrealtime s[{64+2*i}:{65+2*i}]")
def stamp_out(n, reg, srdn, kern):
    if not STAMP: return
    o("s_mov_b64 exec, -1")
    o(f"s_memrealtime s[{64+2*n}:{65+2*n}]"); o(f"s_memtime s[{66+2*n}:{67+2*n}]"); o("s_waitcnt lgkmcnt(0)")
    o(f"v_lshrrev_b32 v{reg}, 6, v0"); o(f"v_lshlrev_b32 v{reg}, 6, v{reg}")
    o(f"s_lshl_b32 s63, s2, 9"); o(f"s_add_u32 s63, s63, {WS_STAMP + kern*0x100000:#x}")
    for i in range(n+4):
        o(f"v_mov_b32 v{reg+1}, s{64+2*i}")
        o(f"buffer_store_dword v{reg+1}, v{reg}, s[{srdn}:{srdn+3}], s63 offen offset:{4*i}")
def o(s): L.append("    " + s)
def lab(s): L.append(s + ":")
def vr(b, n): return f"v[{b}:{b+n-1}]"
def srd(d, lo, size):
    o(f"s_mov_b32 s{d}, s{lo}"); o(f"s_and_b32 s{d+1}, s{lo+1}, 0xffff")
    o(f"s_mov_b32 s{d+2}, {size:#x}"); o(f"s_mov_b32 s{d+3}, 0x20000")
def scan64(v):
    for d in ("row_shr:1", "row_shr:2", "row_shr:4", "row_shr:8"):
        o("s_nop 1"); o(f"v_add_u32_dpp v{v}, v{v}, v{v} {d} row_mask:0xf bank_mask:0xf bound_ctrl:0")
    o("s_nop 1"); o(f"v_add_u32_dpp v{v}, v{v}, v{v} row_bcast:15 row_mask:0xa bank_mask:0xf")
    o("s_nop 1"); o(f"v_add_u32_dpp v{v}, v{v}, v{v} row_bcast:31 row_mask:0xc bank_mask:0xf")

def code_prefetch(vt, start, end, sp=60):
    o(f"s_getpc_b64 s[{sp}:{sp+1}]")
    lab(f"PF_{start}_{len(L)}")
    here = L[-1][:-1]
    o(f"s_add_u32 s{sp}, s{sp}, {start}-{here}"); o(f"s_addc_u32 s{sp+1}, s{sp+1}, {'-1' if start in DEFINED else '0'}")
    o(f"v_lshlrev_b32 v{vt}, 7, v0"); o(f"v_min_u32 v{vt}, {end}-{start}-4, v{vt}")
    o(f"v_mov_b32 v{vt+1}, s{sp+1}"); o(f"v_add_co_u32 v{vt}, vcc, s{sp}, v{vt}"); o("s_nop 1"); o(f"v_addc_co_u32 v{vt+1}, vcc, 0, v{vt+1}, vcc")
    o(f"global_load_dword v{vt}, v[{vt}:{vt+1}], off")
DEFINED = set()
K1_GRID = NCH + 17
K1_LDS = 4096 + CH * 4
def gen_k1():
    L.append(".globl gsort_kernel"); L.append(".p2align 8"); L.append(".type gsort_kernel,@function")
    lab("gsort_kernel"); DEFINED.add("gsort_kernel")
    if OPT.get('pf1'): code_prefetch(38, "gsort_kernel", "CODE_END", 32)
    o(f"s_cmp_ge_u32 s2, {K1_GRID}"); o("s_cbranch_scc1 K1_END")
    o("s_load_dwordx2 s[12:13], s[0:1], 88")
    o(f"s_cmp_ge_u32 s2, {NCH}"); o("s_cbranch_scc1 K1_PREP")
    o("s_load_dwordx4 s[4:7], s[0:1], 16"); stamp(0)
    o("v_lshlrev_b32 v1, 2, v0"); o("v_mov_b32 v2, 0")
    o("ds_write_b32 v1, v2")
    o(f"s_mul_i32 s3, s2, {CH*4}"); o("s_add_u32 s14, s3, 4096")
    o("v_cmp_gt_u32 vcc, 64, v0")
    o("s_waitcnt lgkmcnt(0)")
    srd(20, 6, E*4); srd(16, 4, E*4); srd(24, 12, WS_SIZE)
    o("s_mov_b64 s[28:29], vcc")
    for i in range(3):
        o(f"buffer_load_dword v{4+i}, v1, s[20:23], s{3 if i<2 else 14} offen offset:{(i&1)*2048}")
    for i in range(3):
        o(f"buffer_load_dword v{8+i}, v1, s[16:19], s{3 if i<2 else 14} offen offset:{(i&1)*2048}")
    o("s_mov_b64 exec, s[28:29]"); o("s_cbranch_execz K1_NO4A")
    o("buffer_load_dword v7, v1, s[20:23], s14 offen offset:2048")
    o("buffer_load_dword v11, v1, s[16:19], s14 offen offset:2048")
    lab("K1_NO4A")
    o("s_mov_b64 exec, -1")
    o("v_lshlrev_b32 v3, 23, v0"); o("v_mov_b32 v2, 1"); o(f"s_mov_b32 s15, {-RN}")
    o("s_barrier")
    o("s_waitcnt vmcnt(0)"); stamp(1)
    def rank(i):
        o(f"v_mul_u32_u24 v{12+i}, 21400, v{4+i}")
        o(f"v_lshrrev_b32 v{12+i}, 20, v{12+i}")
        o(f"v_mad_i32_i24 v{4+i}, v{12+i}, s15, v{4+i}")
        o(f"v_lshlrev_b32 v{12+i}, 2, v{12+i}")
        o(f"ds_add_rtn_u32 v{16+i}, v{12+i}, v2")
        o(f"v_lshl_or_b32 v{8+i}, v{8+i}, 8, v3")
        o(f"v_lshl_or_b32 v{8+i}, v{4+i}, 2, v{8+i}")
        if i: o(f"v_or_b32 v{8+i}, {i}, v{8+i}")
    for i in range(3): rank(i)
    o("s_mov_b64 exec, s[28:29]"); o("s_cbranch_execz K1_NO4B")
    rank(3)
    lab("K1_NO4B")
    o("s_mov_b64 exec, -1")
    o("v_and_b32 v20, 63, v0"); o("v_lshlrev_b32 v20, 5, v20")
    o("s_waitcnt lgkmcnt(0)"); o("s_barrier")
    o("ds_read_b128 v[24:27], v20"); o("ds_read_b128 v[28:31], v20 offset:16")
    o("s_waitcnt lgkmcnt(0)")
    o("v_mov_b32 v33, v24")
    for j in range(2, 8): o(f"v_add_u32 v{32+j}, v{31+j}, v{23+j}")
    o("v_add_u32 v21, v39, v31"); o("v_mov_b32 v22, v21")
    scan64(21)
    o("v_sub_u32 v32, v21, v22")
    for j in range(1, 8): o(f"v_add_u32 v{32+j}, v32, v{32+j}")
    o("ds_write_b128 v20, v[32:35] offset:2048"); o("ds_write_b128 v20, v[36:39] offset:2064")
    for i in range(3): o(f"ds_read_b32 v{4+i}, v{12+i} offset:2048")
    o("s_mov_b64 exec, s[28:29]"); o("s_cbranch_execz K1_NO4C")
    o("ds_read_b32 v7, v15 offset:2048")
    for j in range(8): o(f"v_lshl_or_b32 v{24+j}, v{24+j}, 16, v{32+j}")
    o("s_lshl_b32 s30, s2, 11"); o(f"s_add_u32 s30, s30, {WS_OFF:#x}")
    o("buffer_store_dwordx4 v[24:27], v20, s[24:27], s30 offen")
    o("buffer_store_dwordx4 v[28:31], v20, s[24:27], s30 offen offset:16")
    o("s_waitcnt lgkmcnt(0)")
    o("v_add_lshl_u32 v7, v7, v19, 2"); o("ds_write_b32 v7, v11 offset:4096")
    lab("K1_NO4C")
    o("s_mov_b64 exec, -1")
    o("s_waitcnt lgkmcnt(0)")
    for i in range(3):
        o(f"v_add_lshl_u32 v{4+i}, v{4+i}, v{16+i}, 2"); o(f"ds_write_b32 v{4+i}, v{8+i} offset:4096")
    o("v_lshlrev_b32 v1, 4, v0")
    o(f"v_cmp_gt_u32 vcc, {CH//4}, v0")
    o("s_waitcnt lgkmcnt(0)"); o("s_barrier")
    o("s_and_saveexec_b64 s[28:29], vcc"); o("s_cbranch_execz K1_END")
    o("ds_read_b128 v[4:7], v1 offset:4096")
    o("s_waitcnt lgkmcnt(0)")
    o("buffer_store_dwordx4 v[4:7], v1, s[24:27], s3 offen")
    stamp_out(2, 10, 24, 0)
    o("s_endpgm")
    lab("K1_PREP")
    o(f"s_sub_u32 s3, s2, {NCH}"); o("s_lshr_b32 s14, s3, 2")
    o("s_load_dwordx4 s[16:19], s[0:1], 32")
    o("s_load_dwordx4 s[20:23], s[0:1], 48")
    o("s_load_dwordx2 s[4:5], s[0:1], 64")
    o("v_and_b32 v1, 31, v0"); o("v_bfe_u32 v2, v0, 5, 1"); o("v_lshrrev_b32 v3, 6, v0")
    o("s_waitcnt lgkmcnt(0)")
    o("s_mov_b32 s15, 1.0")
    o("s_cmp_eq_u32 s14, 0"); o("s_cselect_b32 s4, s18, s4"); o("s_cselect_b32 s5, s19, s5"); o(f"s_cselect_b32 s15, {NLOG2E:#x}, s15")
    o("s_cmp_eq_u32 s14, 2"); o("s_cselect_b32 s4, s16, s4"); o("s_cselect_b32 s5, s17, s5")
    o("s_cmp_eq_u32 s14, 3"); o("s_cselect_b32 s4, s22, s4"); o("s_cselect_b32 s5, s23, s5")
    o("s_cbranch_scc0 K1_NOPERM")
    o("v_and_b32 v4, 3, v1"); o("v_lshrrev_b32 v5, 3, v1"); o("v_lshl_or_b32 v4, v5, 2, v4")
    o("v_bfe_u32 v5, v1, 2, 1"); o("v_lshl_or_b32 v1, v5, 4, v4")
    lab("K1_NOPERM")
    o("s_mov_b32 s10, 32768")
    o("s_cmp_eq_u32 s14, 4"); o("s_cselect_b32 s4, s20, s4"); o("s_cselect_b32 s5, s21, s5"); o(f"s_cselect_b32 s15, {NLOG2E:#x}, s15")
    o("s_cselect_b32 s10, 4096, s10")
    o("s_mov_b32 s8, s4"); o("s_and_b32 s9, s5, 0xffff"); o("s_mov_b32 s11, 0x20000")
    srd(24, 12, WS_SIZE)
    o("s_cmp_eq_u32 s14, 4"); o("s_cbranch_scc1 K1_PC")
    o("s_and_b32 s30, s3, 3"); o("s_lshl_b32 s30, s30, 6")
    o("v_lshlrev_b32 v4, 14, v2"); o("v_lshl_add_u32 v4, v3, 11, v4"); o("v_lshl_add_u32 v4, v1, 1, v4")
    o("v_add_u32 v4, s30, v4")
    o("s_branch K1_PL")
    lab("K1_PC")
    o("v_cmp_gt_u32 vcc, 256, v0")
    o("v_lshlrev_b32 v4, 11, v2"); o("v_lshl_add_u32 v4, v3, 6, v4"); o("v_lshl_add_u32 v4, v1, 1, v4")
    o("s_and_saveexec_b64 s[28:29], vcc"); o("s_cbranch_execz K1_END")
    lab("K1_PL")
    for j in range(8): o(f"buffer_load_ushort v{8+j}, v4, s[8:11], 0 offen offset:{j*256}")
    o("s_lshl_b32 s30, s3, 13"); o(f"s_add_u32 s30, s30, {WS_WF:#x}")
    o("v_lshlrev_b32 v5, 4, v0")
    o("s_waitcnt vmcnt(0)")
    for j in range(8):
        o(f"v_lshlrev_b32 v{8+j}, 16, v{8+j}"); o(f"v_mul_f32 v{8+j}, s15, v{8+j}")
    for j in range(4): o(f"v_cvt_pk_bf16_f32 v{16+j}, v{8+2*j}, v{9+2*j}")
    o("buffer_store_dwordx4 v[16:19], v5, s[24:27], s30 offen")
    lab("K1_END")
    o("s_endpgm")

CAPT = 30
LUT = 0; MLUT = 4096; NB = 4352; LIST = 4608; LIST_SZ = (CAPT + 5) * 256
MB = LIST + LIST_SZ; CNT = MB + (CAPT + 1) * 256; AT = CNT + 256
RING = AT + 16384; SLOT = 9344; K2_LDS = RING + 4 * SLOT
assert CNT + 256 - MB == 8192

class RA:
    def __init__(s): s.n = 1
    def get(s, k=1, al=1):
        s.n = (s.n + al - 1) // al * al
        b = s.n; s.n += k; return b
R = RA()
(vXA, vEA, vATA, vATB, vSA, vMA, vL1, vL2, vLC, vEL, vAGG, vSV, vREM, vCUR, vTAKE, vEB, vLE) = [R.get() for _ in range(17)]
vLX = R.get(2, 2)
vVO = R.get(3)
WB = R.get(32, 4); WV = R.get(32, 4); WC = R.get(4, 4)
GV = R.get(64, 4)
XF = R.get(16, 4)
EF = R.get(4, 4); SF = R.get(4, 4); AF = R.get(4, 4); MQ = R.get(4, 4)
T0 = R.get(8, 4); T1 = R.get(8, 4)
ACC = R.get(8, 4); TMP = R.get(8, 4)
UU = R.get(16, 4); XR = R.get(16, 4)
NVGPR = R.n
assert NVGPR <= 256, NVGPR
REC = EF; RANK = T0
sX, sE, sW, sO = 8, 12, 16, 20
sWAVE, sBASE, sMX, sME, sU, sNT1, sWOFF, sLIM, sFIRST, sMORE, sMASKX, sT0, sT1, sEPS, sSCR = range(24, 39)
sCM, sCM2, sMM, sSV = 40, 42, 44, 46

def m32(d, a, b, c): return f"v_mfma_f32_32x32x16_bf16 {vr(d,16)}, {vr(a,4)}, {vr(b,4)}, " + ("0" if c is None else vr(c,16))
def m16(d, a, b, c): return f"v_mfma_f32_16x16x32_bf16 {vr(d,4)}, {vr(a,4)}, {vr(b,4)}, " + ("0" if c is None else vr(c,4))

def dma_x(slot, a): return [f"s_add_u32 m0, s{sMX}, {slot*SLOT + a*1040}", "s_nop 0", f"buffer_load_dwordx4 v{vVO+a}, s[{sX}:{sX+3}], 0 offen lds"]
def dma_e(slot): return [f"s_add_u32 m0, s{sME}, {slot*SLOT}", "s_nop 0", f"buffer_load_dword v{vVO+2}, s[{sE}:{sE+3}], 0 offen lds"]
def voffs():
    if OPT.get('oob'):
        return [f"v_mov_b32 v{vVO+i}, 0x7fff0000" for i in range(3)]
    return [f"v_and_or_b32 v{vVO}, v{vLX}, s{sMASKX}, v{vLC}", f"v_and_or_b32 v{vVO+1}, v{vLX+1}, s{sMASKX}, v{vLC}",
            f"v_add_u32 v{vVO+2}, v{vLE}, v{vEL}"]

def finalize(tag, back):
    o(f"s_cmp_eq_u32 s{sFIRST}, 1"); o(f"s_cbranch_scc1 {tag}_A")
    o(f"v_and_b32 v{TMP}, 63, v0"); o(f"v_lshlrev_b32 v{TMP}, 5, v{TMP}")
    o(f"buffer_load_dwordx4 {vr(TMP+4,4)}, v{TMP}, s[{sW}:{sW+3}], s{sSCR} offen offset:16")
    o(f"buffer_load_dwordx4 {vr(TMP,4)}, v{TMP}, s[{sW}:{sW+3}], s{sSCR} offen")
    o("s_waitcnt vmcnt(0)")
    for r in range(8): o(f"v_add_f32 v{ACC+r}, v{ACC+r}, v{TMP+r}")
    lab(f"{tag}_A")
    o(f"s_cmp_eq_u32 s{sMORE}, 0"); o(f"s_cbranch_scc1 {tag}_B")
    o(f"v_and_b32 v{TMP}, 63, v0"); o(f"v_lshlrev_b32 v{TMP}, 5, v{TMP}")
    o(f"buffer_store_dwordx4 {vr(ACC,4)}, v{TMP}, s[{sW}:{sW+3}], s{sSCR} offen")
    o(f"buffer_store_dwordx4 {vr(ACC+4,4)}, v{TMP}, s[{sW}:{sW+3}], s{sSCR} offen offset:16")
    o("s_waitcnt vmcnt(0)")
    o(f"s_branch {tag}_C")
    lab(f"{tag}_B")
    for r in range(4): o(f"v_add_f32 v{TMP+r}, s{sEPS}, v{ACC+r}")
    for r in range(4): o(f"v_rcp_f32 v{TMP+r}, v{TMP+r}")
    o("s_nop 0")
    for r in range(4): o(f"v_mul_f32 v{TMP+r}, v{TMP+r}, v{ACC+4+r}")
    o(f"v_cvt_pk_bf16_f32 v{TMP}, v{TMP}, v{TMP+1}"); o(f"v_cvt_pk_bf16_f32 v{TMP+1}, v{TMP+2}, v{TMP+3}")
    o(f"ds_write_b64 v{vAGG}, {vr(TMP,2)}")
    lab(f"{tag}_C")
    o(f"v_add_u32 v{vAGG}, 512, v{vAGG}"); o(f"s_add_u32 s{sSCR}, s{sSCR}, 2048")

def body(b):
    Gn = GV + 32 * (b % 2); Vn = Gn + 16
    Gc = GV + 32 * ((b + 1) % 2); Vc = Gc + 16
    so = b * SLOT
    pre = ["s_waitcnt vmcnt(6)"] + ([] if OPT.get('nobar') else ["s_barrier"]) + [
           ('ds', 'e', f"ds_read_b128 {vr(EF,4)}, v{vEA} offset:{so}")]
    for s in range(4): pre.append(('ds', f'x{s}', f"ds_read_b128 {vr(XF+4*s,4)}, v{vXA} offset:{so+16*s}"))
    ds_ = (b + 3) % 4
    dma_x, dma_e = globals()['dma_x'], globals()['dma_e']
    if OPT.get('nodma'):
        dma_x = lambda s, a: []
        dma_e = lambda s: []
    if OPT.get('noe'):
        dma_e = lambda s: globals()['dma_x'](s, 1)
    seq = []
    seq.append((['t0a', 't0b'], m16(ACC, Gn, T0, ACC), 16, dma_x(ds_, 0)))
    seq.append(([], m16(ACC+4, Vn, T0, ACC+4), 16, dma_x(ds_, 1)))
    seq.append(([], m16(ACC, Gn+4, T0+4, ACC), 16, dma_e(ds_)))
    seq.append(([], m16(ACC+4, Vn+4, T0+4, ACC+4), 16,
                [f"s_bitcmp1_b64 s[{sCM2}:{sCM2+1}], s{sU}", f"s_cbranch_scc1 FL{b}", f"FLR{b}:",
                 f"s_cmp_eq_u32 s{sU}, s{sNT1}", "s_cbranch_scc1 LOOP_EXIT"]))
    seq.append((['s', 'at'], m32(Gn, SF, AF, None), 32,
                [f"s_bitcmp1_b64 s[{sCM}:{sCM+1}], s{sU}", f"s_cselect_b32 s{sT0}, 512, 0", f"s_add_u32 s{sWOFF}, s{sWOFF}, s{sT0}",
                 ('ds', 'sa', f"ds_read_u8 v{vSV}, v{vSA} offset:{(b+1)*256}"),
                 ('v', f"v_add_u32 v{vATA}, s{sWOFF}, v{vATB}")]))
    seq.append((['e'], m32(Gn, EF, WC, Gn), 32, [('ds', 'at', f"ds_read_b128 {vr(AF,4)}, v{vATA}")]))
    for s in range(8):
        f = XF + 4 * (s % 4)
        ex1 = []; ex2 = []
        if s < 4: ex2.append(('ds', f'x{s+4}', f"ds_read_b128 {vr(f,4)}, v{vXA} offset:{so+16*(s+4)}"))
        if s == 1: ex1.append(('ds', 'mb', f"ds_read_b128 {vr(MQ,4)}, v{vMA} offset:{b*256}"))
        if s == 2: ex1 += [('need', 'sa'), ('ds', 's', f"ds_read_b128 {vr(SF,4)}, v{vSV} offset:{MLUT}")]
        if s == 4: ex1 += [('ds', 'l1', f"ds_read2_b32 {vr(vLX,2)}, v{vL1} offset0:{b*64} offset1:{b*64+4}"),
                           ('ds', 'l2', f"ds_read_b32 v{vLE}, v{vL2} offset:{b*256}")]
        if s == 4: ex2 += [('need', 'mb'), f"s_mov_b64 exec, s[{sMM}:{sMM+1}]",
                           ('ds', 't0a', f"ds_read_b128 {vr(T0,4)}, v{MQ}"), ('ds', 't0b', f"ds_read_b128 {vr(T0+4,4)}, v{MQ+1}"),
                           "s_mov_b64 exec, -1"]
        if s == 6: ex2 += [('need', 'l1'), ('need', 'l2')] + [('v', x) for x in voffs()]
        if s == 7:
            ex1.append(f"s_add_u32 s{sU}, s{sU}, 1")
            if b == 3: ex1 += [('v', f"v_add_u32 v{r}, 0x400, v{r}") for r in (vSA, vMA, vL1, vL2)]
        seq.append(([f'x{s}'], m32(Gn, f, WB+4*s, Gn), 32, ex1))
        seq.append(([], m32(Vn, f, WV+4*s, None if s == 0 else Vn), 32, ex2))
    A = []
    for p in range(0, 22, 2):
        if p < 16: A += [(f"v_exp_f32 v{Gc+p}, v{Gc+p}", 8), (f"v_exp_f32 v{Gc+p+1}, v{Gc+p+1}", 8)]
        q = p - 2
        if 0 <= q < 16:
            A += [(f"v_add_f32 v{Gc+q}, 1.0, v{Gc+q}", 4), (f"v_add_f32 v{Gc+q+1}, 1.0, v{Gc+q+1}", 4),
                  (f"v_rcp_f32 v{Gc+q}, v{Gc+q}", 8), (f"v_rcp_f32 v{Gc+q+1}, v{Gc+q+1}", 8)]
        q = p - 4
        if 0 <= q < 16: A += [(f"v_mul_f32 v{Vc+q}, v{Gc+q}, v{Vc+q}", 4), (f"v_mul_f32 v{Vc+q+1}, v{Gc+q+1}, v{Vc+q+1}", 4)]
        q = p - 6
        if 0 <= q < 16: A += [(f"v_cvt_pk_bf16_f32 v{Gc+q//2}, v{Gc+q}, v{Gc+q+1}", 4), (f"v_cvt_pk_bf16_f32 v{Vc+q//2}, v{Vc+q}, v{Vc+q+1}", 4)]
    room = [cyc - 8 - 4 * sum(1 for x in ex if isinstance(x, tuple) and x[0] == 'v') for (_, _, cyc, ex) in seq]
    room[0] = 0
    tot = sum(c for _, c in A); scale = tot / sum(max(r, 0) for r in room)
    out = list(pre); ai = 0; acc = 0; budget = 0
    for (needs, m, cyc, ex), rm in zip(seq, room):
        for n in needs: out.append(('need', n))
        out.append(m)
        budget += max(rm, 0) * scale
        branchy = any(isinstance(x, str) and 'cbranch' in x for x in ex)
        if not branchy: out += [x[1] if (isinstance(x, tuple) and x[0] == 'v') else x for x in ex]
        while ai < len(A) and acc + A[ai][1] / 2 <= budget:
            out.append(A[ai][0]); acc += A[ai][1]; ai += 1
        if branchy: out += ex
    while ai < len(A): out.append(A[ai][0]); ai += 1
    return out

def emit_loop():
    bodies = [body(b) for b in range(4)]
    issued = 0; done = 0; last = {}
    for rnd in range(2):
        for b in range(4):
            if rnd == 1:
                if b == 0: lab("LOOP")
            for it in bodies[b]:
                if isinstance(it, tuple) and it[0] == 'ds':
                    issued += 1; last[it[1]] = issued
                    if rnd == 1: o(it[2])
                elif isinstance(it, tuple) and it[0] == 'need':
                    idx = last.get(it[1], 0)
                    if idx > done:
                        n = issued - idx
                        assert n <= 15
                        done = idx
                        if rnd == 1: o(f"s_waitcnt lgkmcnt({n})")
                elif rnd == 1:
                    if it.endswith(':'): lab(it[:-1])
                    else: o(it)
    o("s_branch LOOP")
    for b in range(4):
        Gn = GV + 32 * (b % 2); Vn = Gn + 16
        lab(f"FL{b}")
        o(f"s_mov_b64 exec, s[{sMM}:{sMM+1}]")
        o(f"ds_read_b128 {vr(T1,4)}, v{MQ+2}"); o(f"ds_read_b128 {vr(T1+4,4)}, v{MQ+3}")
        o("s_mov_b64 exec, -1")
        o("s_nop 3")
        finalize(f"FL{b}", None)
        o("s_waitcnt lgkmcnt(0)")
        o(m16(ACC, Gn, T1, None)); o(m16(ACC+4, Vn, T1, None))
        o(m16(ACC, Gn+4, T1+4, ACC)); o(m16(ACC+4, Vn+4, T1+4, ACC+4))
        o(f"s_branch FLR{b}")

def gen_k2():
    L.append(".globl gmain_kernel"); L.append(".p2align 8"); L.append(".type gmain_kernel,@function")
    lab("gmain_kernel"); DEFINED.add("gmain_kernel")
    if OPT.get('pf2'): code_prefetch(UU, "gmain_kernel", "CODE_END", 56)
    t = [XF + i for i in range(16)]
    o("s_load_dwordx4 s[4:7], s[0:1], 0"); stamp(0)
    o("s_load_dwordx2 s[48:49], s[0:1], 72"); o("s_load_dwordx2 s[50:51], s[0:1], 88")
    o("s_and_b32 s3, s2, 7"); o("s_lshl_b32 s3, s3, 6"); o(f"s_lshr_b32 s{sT0}, s2, 3"); o(f"s_add_u32 s3, s3, s{sT0}")
    o("s_cmp_ge_u32 s2, 512"); o("s_cbranch_scc1 K2_END")
    o(f"s_cmp_ge_u32 s3, {NR}"); o("s_cbranch_scc1 K2_END")
    o(f"v_lshrrev_b32 v{t[0]}, 6, v0")
    o(f"v_lshlrev_b32 v{vCUR}, 11, v0")
    o(f"v_readfirstlane_b32 s{sWAVE}, v{t[0]}")
    o(f"s_lshl_b32 s{sT0}, s3, 2"); o(f"s_add_u32 s{sT0}, s{sT0}, {WS_OFF:#x}")
    o(f"v_add_u32 v{vCUR}, s{sT0}, v{vCUR}")
    o(f"v_cmp_gt_u32 vcc, {NCH}, v0")
    o(f"s_mul_i32 s{sBASE}, s3, {RN}")
    o(f"v_mov_b32 v{t[1]}, 0x7ffffff0")
    o(f"v_cndmask_b32 v{vCUR}, v{t[1]}, v{vCUR}, vcc")
    vl = t[2]; ve = t[3]; vh = t[4]; vq = t[5]
    o(f"v_and_b32 v{vl}, 63, v0"); o(f"v_lshrrev_b32 v{vq}, 4, v{vl}")
    o(f"v_and_b32 v{t[6]}, 15, v0"); o(f"v_bfe_u32 v{t[7]}, v0, 4, 1"); o(f"v_lshlrev_b32 v{t[8]}, 3, v{t[7]}")
    o(f"v_xor_b32 v{vLC}, v{t[6]}, v{t[8]}"); o(f"v_lshlrev_b32 v{vLC}, 4, v{vLC}")
    o(f"v_lshrrev_b32 v{vh}, 5, v{vl}")
    o("s_waitcnt lgkmcnt(0)")
    srd(sW, 50, WS_SIZE)
    o(f"buffer_load_dword v{vREM}, v{vCUR}, s[{sW}:{sW+3}], 0 offen")
    srd(sX, 4, N*256)
    o(f"s_lshr_b32 s{sT0}, s{sWAVE}, 1"); o(f"s_lshl_b32 s{sT0}, s{sT0}, 4"); o(f"s_and_b32 s{sT1}, s{sWAVE}, 1"); o(f"s_lshl_b32 s{sT1}, s{sT1}, 2")
    o(f"s_add_u32 s{sT0}, s{sT0}, s{sT1}"); o(f"s_add_u32 s{sT0}, s{sT0}, s{sBASE}"); o(f"s_lshl_b32 s{sT0}, s{sT0}, 8")
    o(f"s_mul_i32 s{sMX}, s{sWAVE}, 2080"); o(f"s_add_u32 s{sMX}, s{sMX}, {RING}")
    o(f"v_lshl_add_u32 v{t[8]}, v{vh}, 3, v{t[7]}"); o(f"v_lshl_add_u32 v{t[8]}, v{t[8]}, 8, v{vLC}")
    o(f"v_add_u32 v{vVO}, s{sT0}, v{t[8]}"); o(f"v_add_u32 v{vVO+1}, 512, v{vVO}")
    for x in dma_x(0, 0) + dma_x(0, 1): o(x)
    o(f"v_add_u32 v{vVO}, 0x2000, v{vVO}"); o(f"v_add_u32 v{vVO+1}, 0x2000, v{vVO+1}")
    for x in dma_x(1, 0) + dma_x(1, 1): o(x)
    vwf = t[9]
    o(f"v_lshlrev_b32 v{vwf}, 4, v{vl}")
    o(f"s_lshl_b32 s52, s{sWAVE}, 13"); o(f"s_add_u32 s52, s52, {WS_WF:#x}")
    def wload(dst, off, n):
        for s in range(n):
            if s % 4 == 0: o(f"s_add_u32 s{sT0}, s52, {off + s*1024:#x}")
            o(f"buffer_load_dwordx4 {vr(dst+4*s,4)}, v{vwf}, s[{sW}:{sW+3}], s{sT0} offen offset:{(s%4)*1024}")
    wload(GV, WF_A, 8); wload(GV+32, WF_U, 8)
    srd(sE, 6, E*32); srd(sO, 48, N*256)
    o(f"v_and_b32 v{ve}, 31, v0")
    o(f"v_lshrrev_b32 v{t[6]}, 4, v{ve}"); o(f"v_bfe_u32 v{t[8]}, v{ve}, 1, 2"); o(f"v_lshl_or_b32 v{t[6]}, v{t[6]}, 2, v{t[8]}")
    o(f"v_mul_u32_u24 v{t[6]}, 1040, v{t[6]}")
    o(f"v_and_b32 v{t[8]}, 1, v{ve}"); o(f"v_bfe_u32 v{t[10]}, v{ve}, 3, 1"); o(f"v_lshl_or_b32 v{t[10]}, v{t[10]}, 1, v{t[8]}")
    o(f"v_lshl_add_u32 v{t[6]}, v{t[10]}, 8, v{t[6]}"); o(f"v_add_u32 v{t[6]}, {RING}, v{t[6]}")
    o(f"v_xor_b32 v{t[10]}, v{vh}, v{t[8]}"); o(f"v_lshl_add_u32 v{vXA}, v{t[10]}, 7, v{t[6]}")
    o(f"s_lshr_b32 s{sT0}, s{sWAVE}, 1"); o(f"v_xor_b32 v{t[10]}, s{sT0}, v{t[8]}"); o(f"v_lshl_add_u32 v{vSV}, v{t[10]}, 7, v{t[6]}")
    o(f"s_and_b32 s{sT1}, s{sWAVE}, 1"); o(f"s_lshl_b32 s{sT1}, s{sT1}, 6")
    o(f"v_lshl_add_u32 v{vSV}, v{vh}, 5, v{vSV}"); o(f"v_add_u32 v{vSV}, s{sT1}, v{vSV}")
    vp = t[11]
    o(f"v_and_b32 v{vp}, 0x13, v{ve}"); o(f"v_bfe_u32 v{t[8]}, v{ve}, 2, 1"); o(f"v_lshl_or_b32 v{vp}, v{t[8]}, 3, v{vp}")
    o(f"v_bfe_u32 v{t[8]}, v{ve}, 3, 1"); o(f"v_lshl_or_b32 v{vp}, v{t[8]}, 2, v{vp}")
    o(f"v_lshrrev_b32 v{t[8]}, 4, v{vp}"); o(f"v_xor_b32 v{t[8]}, v{t[8]}, v{vh}"); o(f"v_lshlrev_b32 v{t[8]}, 4, v{t[8]}")
    o(f"v_lshl_add_u32 v{vEA}, v{vp}, 5, v{t[8]}"); o(f"v_add_u32 v{vEA}, {RING+8320}, v{vEA}")
    o(f"s_lshl_b32 s{sT0}, s{sT0}, 2"); o(f"v_and_b32 v{t[8]}, 7, v0"); o(f"v_xor_b32 v{t[8]}, s{sT0}, v{t[8]}"); o(f"v_lshlrev_b32 v{vEL}, 2, v{t[8]}")
    o(f"s_lshl_b32 s{sME}, s{sWAVE}, 8"); o(f"s_add_u32 s{sME}, s{sME}, {RING+8320}")
    o(f"s_lshl_b32 s53, s{sWAVE}, 12"); o(f"s_add_u32 s53, s53, {AT}")
    o(f"v_add_u32 v{vATB}, s53, v{vwf}")
    o(f"v_mul_u32_u24 v{vEB}, {CH*32}, v0")
    o(f"s_mov_b32 s{sMASKX}, 0xffff00"); o(f"s_mov_b32 s{sEPS}, {EPS:#x}")
    o(f"s_mov_b32 s{sMM}, 0xff0000ff"); o(f"s_mov_b32 s{sMM+1}, 0xff0000ff")
    o(f"s_mov_b32 s{sFIRST}, 1"); o(f"s_mov_b32 s{sLIM}, 16")
    for d in range(4):
        o(f"v_bfe_u32 v{TMP+d}, v0, {2*d}, 2"); o(f"v_mul_u32_u24 v{TMP+d}, 0x8001, v{TMP+d}")
        o(f"v_and_b32 v{TMP+d}, 0x10001, v{TMP+d}"); o(f"v_mul_u32_u24 v{TMP+d}, 0x3f80, v{TMP+d}")
    o(f"v_lshlrev_b32 v{t[8]}, 4, v0"); o(f"ds_write_b128 v{t[8]}, {vr(TMP,4)} offset:{LUT}")
    o(f"v_add_u32 v{t[10]}, -1, v0"); o(f"v_and_b32 v{t[10]}, v{t[10]}, v0"); o(f"v_cmp_eq_u32 vcc, 0, v{t[10]}")
    o(f"v_ffbl_b32 v{t[10]}, v0"); o(f"v_lshlrev_b32 v{t[10]}, 4, v{t[10]}"); o(f"v_add_u32 v{t[10]}, 16, v{t[10]}")
    o(f"s_and_saveexec_b64 s[{sSV}:{sSV+1}], vcc")
    o(f"ds_write_b128 v{t[10]}, {vr(TMP,4)} offset:{MLUT}")
    o("s_mov_b64 exec, -1")
    o("s_waitcnt vmcnt(20)"); stamp(1)
    o(f"v_and_b32 v{vCUR}, 0xffff, v{vREM}"); o(f"v_lshrrev_b32 v{vREM}, 16, v{vREM}")
    o(f"v_mul_u32_u24 v{t[10]}, {CH}, v0"); o(f"v_add_lshl_u32 v{vCUR}, v{vCUR}, v{t[10]}, 2")
    lab("ROUND")
    for k in range(4): o(f"buffer_load_dwordx4 {vr(REC+4*k,4)}, v{vCUR}, s[{sW}:{sW+3}], 0 offen offset:{16*k}")
    o(f"v_lshlrev_b32 v{t[8]}, 4, v0")
    for d in range(4): o(f"v_mov_b32 v{TMP+d}, 0")
    o(f"ds_write_b128 v{t[8]}, {vr(TMP,4)} offset:{MB}"); o(f"ds_write_b128 v{t[8]}, {vr(TMP,4)} offset:{MB+4096}")
    o(f"v_mov_b32 v{TMP+4}, 0xffff00"); o(f"v_mov_b32 v{TMP+5}, 0x7fffffc0"); o(f"v_mov_b32 v{TMP+6}, 0xffff00"); o(f"v_mov_b32 v{TMP+7}, 0x7fffffc0")
    o(f"ds_write_b128 v{t[8]}, {vr(TMP+4,4)} offset:{LIST}"); o(f"ds_write_b128 v{t[8]}, {vr(TMP+4,4)} offset:{LIST+4096}")
    o(f"ds_write_b128 v{t[8]}, {vr(TMP+4,4)} offset:{LIST+LIST_SZ-4096}")
    o(f"s_cmp_eq_u32 s{sFIRST}, 0"); o("s_cbranch_scc1 NOGEMM")
    wload(WB, WF_B, 8); wload(WV, WF_V, 8)
    o(f"s_lshl_b32 s{sT0}, s{sWAVE}, 10"); o(f"s_add_u32 s{sT0}, s{sT0}, {WS_WF+WF_C:#x}")
    o(f"buffer_load_dwordx4 {vr(WC,4)}, v{vwf}, s[{sW}:{sW+3}], s{sT0} offen")
    o(f"v_lshlrev_b32 v{vATA}, 4, v{ve}"); o(f"v_lshl_add_u32 v{vATA}, v{vh}, 3, v{vATA}"); o(f"v_add_u32 v{vATA}, s53, v{vATA}")
    o(f"s_mov_b32 s{sT1}, {NLOG2E:#x}")
    o("s_waitcnt vmcnt(21) lgkmcnt(0)"); o("s_barrier"); stamp(2)
    if STAMP: o("s_waitcnt lgkmcnt(0)")
    for mt in range(2):
        for s in range(4): o(f"ds_read_b128 {vr(XF+4*s,4)}, v{vXA} offset:{mt*SLOT+16*s}")
        for s in range(8):
            f = XF + 4 * (s % 4)
            o(f"s_waitcnt lgkmcnt({3 if s < 5 else 7 - s})")
            o(m32(ACC, f, GV+4*s, None if s == 0 else ACC))
            o(m32(XR, GV+32+4*s, f, None if s == 0 else XR))
            if s < 4: o(f"ds_read_b128 {vr(f,4)}, v{vXA} offset:{mt*SLOT+16*(s+4)}")
        o("s_nop 10")
        for r in range(16): o(f"v_mul_f32 v{ACC+r}, s{sT1}, v{ACC+r}")
        for r in range(0, 16, 2): o(f"v_cvt_pk_bf16_f32 v{ACC+r//2}, v{ACC+r}, v{ACC+r+1}")
        for g in range(4): o(f"ds_write_b64 v{vATA}, {vr(ACC+2*g,2)} offset:{(4*mt+g)*512}")
        for r in range(0, 16, 2): o(f"v_cvt_pk_bf16_f32 v{UU+8*mt+r//2}, v{XR+r}, v{XR+r+1}")
        o("s_waitcnt lgkmcnt(0)")
    for mt in range(2):
        for k in range(2): o(f"ds_read_b128 {vr(XR+8*mt+4*k,4)}, v{vSV} offset:{mt*SLOT+16*k}")
    if STAMP:
        o("s_getreg_b32 s70, hwreg(HW_REG_HW_ID)"); o("s_getreg_b32 s71, hwreg(HW_REG_XCC_ID)"); o("s_and_b32 s70, s70, 0xffff"); o("s_lshl_b32 s71, s71, 16"); o("s_or_b32 s70, s70, s71")
    o("s_waitcnt vmcnt(17)"); stamp(4)
    o("s_branch RANK")
    lab("NOGEMM")
    o("s_waitcnt vmcnt(0) lgkmcnt(0)"); o("s_barrier")
    lab("RANK")
    o(f"v_min_u32 v{vTAKE}, s{sLIM}, v{vREM}")
    o(f"v_mov_b32 v{t[0]}, 1"); o(f"v_mov_b32 v{t[1]}, {CNT+252}")
    o(f"v_cmp_gt_u32 vcc, v{vREM}, v{vTAKE}")
    o(f"s_and_saveexec_b64 s[{sSV}:{sSV+1}], vcc")
    o(f"ds_write_b32 v{t[1]}, v{t[0]}")
    o("s_mov_b64 exec, -1")
    for k in range(16):
        o(f"v_cmpx_lt_u32 vcc, {k}, v{vTAKE}"); o("s_cbranch_execz P1_DONE")
        o(f"v_and_b32 v{t[1]}, 0xfc, v{REC+k}")
        o(f"ds_add_rtn_u32 v{RANK+k}, v{t[1]}, v{t[0]} offset:{CNT}")
    lab("P1_DONE")
    o("s_mov_b64 exec, -1")
    o(f"v_and_b32 v{t[2]}, 63, v0"); o(f"v_lshlrev_b32 v{t[1]}, 2, v{t[2]}")
    o("s_waitcnt lgkmcnt(0)"); o("s_barrier")
    o(f"ds_read_b32 v{t[3]}, v{t[1]} offset:{CNT}")
    o(f"v_and_b32 v{t[5]}, 7, v0"); o(f"v_cmp_eq_u32 vcc, 7, v{t[5]}"); o(f"v_cmp_gt_u32 s[{sSV}:{sSV+1}], 48, v{t[2]}")
    o(f"s_and_b64 vcc, vcc, s[{sSV}:{sSV+1}]")
    o("s_waitcnt lgkmcnt(0)")
    o(f"v_readlane_b32 s{sMORE}, v{t[3]}, 63")
    o(f"v_add_u32_dpp v{t[4]}, v{t[3]}, v{t[3]} quad_perm:[1,0,3,2] row_mask:0xf bank_mask:0xf"); o("s_nop 1")
    o(f"v_add_u32_dpp v{t[4]}, v{t[4]}, v{t[4]} quad_perm:[2,3,0,1] row_mask:0xf bank_mask:0xf"); o("s_nop 1")
    o(f"v_add_u32_dpp v{t[4]}, v{t[4]}, v{t[4]} row_half_mirror row_mask:0xf bank_mask:0xf")
    o(f"v_sub_u32 v{t[4]}, 32, v{t[4]}"); o(f"v_max_i32 v{t[4]}, 0, v{t[4]}"); o(f"v_cndmask_b32 v{t[4]}, 0, v{t[4]}, vcc")
    o(f"v_add_u32 v{t[3]}, v{t[3]}, v{t[4]}"); o(f"v_mov_b32 v{t[4]}, v{t[3]}")
    scan64(t[3])
    o(f"v_sub_u32 v{t[4]}, v{t[3]}, v{t[4]}")
    o(f"ds_swizzle_b32 v{t[5]}, v{t[4]} offset:0x0018")
    o(f"v_readlane_b32 s{sNT1}, v{t[3]}, 48")
    o(f"s_mov_b64 s[{sCM}:{sCM+1}], 0")
    for w in range(6):
        o(f"v_readlane_b32 s{sT0}, v{t[3]}, {8*w+7}"); o(f"s_sub_u32 s{sT0}, s{sT0}, 1"); o(f"s_lshr_b32 s{sT0}, s{sT0}, 5")
        o(f"s_bitset1_b64 s[{sCM}:{sCM+1}], s{sT0}")
    o(f"s_cmp_le_u32 s{sNT1}, {CAPT*32}"); o("s_cbranch_scc1 FITS")
    o(f"s_mov_b32 s{sLIM}, 3"); o(f"v_mov_b32 v{t[0]}, 0")
    o("s_waitcnt lgkmcnt(0)"); o("s_barrier")
    o(f"ds_write_b32 v{t[1]}, v{t[0]} offset:{CNT}")
    o("s_waitcnt lgkmcnt(0)"); o("s_barrier")
    o("s_branch RANK")
    lab("FITS")
    o(f"s_add_u32 s{sNT1}, s{sNT1}, 63"); o(f"s_lshr_b32 s{sNT1}, s{sNT1}, 5")
    o(f"s_lshl_b64 s[{sCM2}:{sCM2+1}], s[{sCM}:{sCM+1}], 2")
    o("s_waitcnt lgkmcnt(0)")
    o(f"v_lshl_or_b32 v{t[4]}, v{t[5]}, 16, v{t[4]}")
    o(f"ds_write_b32 v{t[1]}, v{t[4]} offset:{NB}")
    o(f"s_mov_b32 s{sT0}, 0x7fff00"); o(f"s_movk_i32 s{sT1}, 0x7fe0")
    for k in range(16):
        o(f"v_cmpx_lt_u32 vcc, {k}, v{vTAKE}"); o("s_cbranch_execz P2A_DONE")
        o(f"v_and_b32 v{t[1]}, 0xfc, v{REC+k}")
        o(f"ds_read_b32 v{GV+k}, v{t[1]} offset:{NB}")
    lab("P2A_DONE")
    o("s_mov_b64 exec, -1")
    o("s_waitcnt lgkmcnt(0)")
    for k in range(16):
        rec = REC + k; nb = GV + k; pos = RANK + k
        o(f"v_cmpx_lt_u32 vcc, {k}, v{vTAKE}"); o("s_cbranch_execz P2_DONE")
        o(f"v_add_u32 v{pos}, v{pos}, v{nb}")
        o(f"v_lshrrev_b32 v{nb}, 16, v{nb}")
        o(f"v_and_b32 v{t[0]}, s{sT1}, v{pos}")
        o(f"v_cmp_lt_u32 vcc, v{t[0]}, v{nb}")
        o(f"v_and_b32 v{t[1]}, 0x1c, v{rec}")
        o(f"v_lshl_add_u32 v{t[2]}, v{t[1]}, 2, 16")
        o(f"v_cndmask_b32 v{t[3]}, 0, 8, vcc")
        o(f"v_mul_u32_u24 v{t[4]}, 3, v{t[3]}")
        o(f"v_lshlrev_b32 v{t[2]}, v{t[4]}, v{t[2]}")
        o(f"v_and_or_b32 v{t[6]}, v{rec}, s{sT0}, v{t[2]}")
        o(f"v_alignbit_b32 v{t[7]}, v{rec}, v{rec}, 18"); o(f"v_and_b32 v{t[7]}, 0xffe0, v{t[7]}"); o(f"v_add_u32 v{t[7]}, v{t[7]}, v{vEB}")
        o(f"v_and_b32 v{pos}, 0xffff, v{pos}")
        o(f"v_lshlrev_b32 v{t[5]}, 3, v{pos}")
        o(f"ds_write_b64 v{t[5]}, {vr(t[6],2)} offset:{LIST}")
        o(f"v_add_lshl_u32 v{t[0]}, v{t[0]}, v{t[1]}, 3")
        o(f"v_and_b32 v{t[1]}, 8, v{pos}"); o(f"v_lshl_add_u32 v{t[0]}, v{t[1]}, 1, v{t[0]}")
        o(f"v_bfe_u32 v{t[1]}, v{pos}, 4, 1"); o(f"v_lshl_or_b32 v{t[1]}, v{t[1]}, 2, v{t[3]}")
        o(f"v_and_b32 v{t[2]}, 7, v{pos}"); o(f"v_lshlrev_b32 v{t[2]}, v{t[2]}, 16")
        o(f"v_add_u32 v{t[0]}, v{t[0]}, v{t[1]}")
        o(f"ds_or_b32 v{t[0]}, v{t[2]} offset:{MB+256}")
    lab("P2_DONE")
    o("s_mov_b64 exec, -1")
    o(f"v_and_b32 v{t[0]}, 0x13, v0"); o(f"v_bfe_u32 v{t[1]}, v0, 2, 1"); o(f"v_lshl_or_b32 v{t[0]}, v{t[1]}, 3, v{t[0]}")
    o(f"v_bfe_u32 v{t[1]}, v0, 3, 1"); o(f"v_lshl_or_b32 v{t[0]}, v{t[1]}, 2, v{t[0]}")
    o(f"v_bfe_u32 v{t[2]}, v0, 5, 1"); o(f"v_mul_u32_u24 v{t[3]}, 3, v{t[2]}")
    o(f"v_lshl_add_u32 v{vSA}, v{t[0]}, 3, v{t[3]}"); o(f"v_add_u32 v{vSA}, {LIST}, v{vSA}")
    o(f"v_and_b32 v{t[0]}, 7, v0"); o(f"v_lshlrev_b32 v{vMA}, 5, v{t[0]}"); o(f"v_lshl_add_u32 v{vMA}, v{t[2]}, 4, v{vMA}"); o(f"v_add_u32 v{vMA}, {MB}, v{vMA}")
    o(f"v_lshlrev_b32 v{vAGG}, 6, v{t[0]}"); o(f"v_lshl_add_u32 v{vAGG}, v{t[1]}, 5, v{vAGG}")
    o(f"v_bfe_u32 v{t[3]}, v0, 4, 2"); o(f"v_lshl_add_u32 v{vAGG}, v{t[3]}, 3, v{vAGG}"); o(f"v_add_u32 v{vAGG}, s53, v{vAGG}")
    o(f"s_lshl_b32 s{sT0}, s{sWAVE}, 6"); o(f"s_add_u32 s{sT0}, s{sT0}, {LIST}")
    o(f"v_bfe_u32 v{t[0]}, v0, 4, 1"); o(f"v_lshl_add_u32 v{t[0]}, v{t[2]}, 2, v{t[0]}"); o(f"v_lshl_add_u32 v{vL1}, v{t[0]}, 3, s{sT0}")
    o(f"v_and_b32 v{t[0]}, 0x38, v0"); o(f"v_add3_u32 v{vL2}, v{t[0]}, s{sT0}, 4")
    o("s_waitcnt lgkmcnt(0)"); o("s_barrier")
    stamp(5)
    if STAMP: o("s_waitcnt lgkmcnt(0)")
    for k in range(4):
        o(f"ds_read2_b32 {vr(t[0]+4*k,2)}, v{vL1} offset0:{k*64} offset1:{k*64+4}")
        o(f"ds_read_b32 v{t[2]+4*k}, v{vL2} offset:{k*256}")
    o(f"ds_read_u8 v{vSV}, v{vSA}")
    o(f"ds_read_b128 {vr(AF,4)}, v{vATB}")
    for k in range(4):
        o(f"s_waitcnt lgkmcnt({8-2*k})")
        o(f"v_and_or_b32 v{vVO}, v{t[0]+4*k}, s{sMASKX}, v{vLC}"); o(f"v_and_or_b32 v{vVO+1}, v{t[1]+4*k}, s{sMASKX}, v{vLC}")
        o(f"v_add_u32 v{vVO+2}, v{t[2]+4*k}, v{vEL}")
        if k < 3:
            for x in dma_x(k, 0) + dma_x(k, 1) + dma_e(k): o(x)
    o("s_waitcnt lgkmcnt(1)")
    o(f"ds_read_b128 {vr(SF,4)}, v{vSV} offset:{MLUT}")
    o(f"v_add_u32 v{vL1}, 0x400, v{vL1}"); o(f"v_add_u32 v{vL2}, 0x400, v{vL2}")
    for r in list(range(GV, GV+8)) + list(range(GV+16, GV+24)) + list(range(GV+32, GV+64)) + list(range(T0, T0+16)) + list(range(ACC, ACC+8)):
        o(f"v_mov_b32 v{r}, 0")
    o(f"s_mov_b32 s{sU}, 0"); o(f"s_mov_b32 s{sWOFF}, 0")
    o(f"s_lshl_b32 s{sSCR}, s2, 2"); o(f"s_add_u32 s{sSCR}, s{sSCR}, s{sWAVE}"); o(f"s_lshl_b32 s{sSCR}, s{sSCR}, 14"); o(f"s_add_u32 s{sSCR}, s{sSCR}, {WS_SCR:#x}")
    if STAMP: o("s_waitcnt vmcnt(6)")
    stamp(6)
    if STAMP: o("s_memtime s[80:81]")
    o("s_waitcnt lgkmcnt(0)")
    emit_loop()
    lab("LOOP_EXIT"); stamp(7)
    if STAMP: o("s_memtime s[86:87]"); o(f"s_mov_b32 s88, s{sNT1}")
    o("s_nop 7")
    finalize("FIN", None)
    o(f"s_cmp_eq_u32 s{sMORE}, 0"); o("s_cbranch_scc1 EPI")
    o(f"v_sub_u32 v{vREM}, v{vREM}, v{vTAKE}"); o(f"v_lshl_add_u32 v{vCUR}, v{vTAKE}, 2, v{vCUR}")
    o(f"s_mov_b32 s{sFIRST}, 0"); o(f"s_mov_b32 s{sLIM}, 16")
    o("s_waitcnt vmcnt(0) lgkmcnt(0)"); o("s_barrier")
    o("s_branch ROUND")
    lab("EPI")
    g = GV
    o("s_waitcnt lgkmcnt(0)")
    o(f"v_and_b32 v{t[0]}, 31, v0"); o(f"v_bfe_u32 v{t[1]}, v0, 5, 1")
    o(f"v_lshlrev_b32 v{t[2]}, 6, v{t[0]}"); o(f"v_lshl_add_u32 v{t[2]}, v{t[1]}, 5, v{t[2]}"); o(f"v_add_u32 v{t[2]}, s53, v{t[2]}")
    for mt in range(2):
        for k in range(2): o(f"ds_read_b128 {vr(g+8*mt+4*k,4)}, v{t[2]} offset:{mt*2048+16*k}")
    o(f"s_lshl_b32 s{sT0}, s{sBASE}, 8"); o(f"s_lshl_b32 s{sT1}, s{sWAVE}, 6"); o(f"s_add_u32 s{sT0}, s{sT0}, s{sT1}")
    o(f"v_lshlrev_b32 v{t[3]}, 8, v{t[0]}"); o(f"v_lshl_add_u32 v{t[3]}, v{t[1]}, 5, v{t[3]}"); o(f"v_add_u32 v{t[3]}, s{sT0}, v{t[3]}")
    o(f"s_mov_b32 s{sT1}, 0xffff0000")
    for mt in range(2):
        o(f"s_waitcnt lgkmcnt({2-2*mt})")
        if mt == 1:
            o(f"v_cmpx_gt_u32 vcc, {RN-32}, v{t[0]}"); o(f"v_add_u32 v{t[3]}, 0x2000, v{t[3]}")
        for k in range(8):
            a = g + 8*mt + k; u = UU + 8*mt + k; x = XR + 8*mt + k; q = g + 16
            o(f"v_lshlrev_b32 v{q}, 16, v{a}"); o(f"v_and_b32 v{q+1}, s{sT1}, v{a}")
            o(f"v_lshlrev_b32 v{q+2}, 16, v{u}"); o(f"v_and_b32 v{q+3}, s{sT1}, v{u}")
            o(f"v_add_f32 v{q}, v{q}, v{q+2}"); o(f"v_add_f32 v{q+1}, v{q+1}, v{q+3}")
            o(f"v_lshlrev_b32 v{q+2}, 16, v{x}"); o(f"v_and_b32 v{q+3}, s{sT1}, v{x}")
            o(f"v_max_f32 v{q}, 0, v{q}"); o(f"v_max_f32 v{q+1}, 0, v{q+1}")
            o(f"v_add_f32 v{q}, v{q}, v{q+2}"); o(f"v_add_f32 v{q+1}, v{q+1}, v{q+3}")
            o(f"v_cvt_pk_bf16_f32 v{a}, v{q}, v{q+1}")
        for k in range(2): o(f"buffer_store_dwordx4 {vr(g+8*mt+4*k,4)}, v{t[3]}, s[{sO}:{sO+3}], 0 offen offset:{16*k}")
    stamp_out(9, t[8], sW, 1)
    lab("K2_END")
    o("s_endpgm")

def kd(name, nv, ns):
    L.append(".p2align 6")
    L.append(f".amdhsa_kernel {name}")
    for k, v in (("next_free_vgpr", nv), ("next_free_sgpr", ns), ("accum_offset", (nv + 3) // 4 * 4), ("group_segment_fixed_size", 0),
                 ("kernarg_size", 96), ("user_sgpr_count", 2), ("user_sgpr_kernarg_segment_ptr", 1), ("system_sgpr_workgroup_id_x", 1),
                 ("float_denorm_mode_32", 3)):
        L.append(f"  .amdhsa_{k} {v}")
    L.append(".end_amdhsa_kernel")

hdr = [l for l in open(f"cdna_kernels/{NAME}.s.ref").read().splitlines() if l.startswith(";") and "@launch" not in l
       and "Override launch" not in l and "grid=ceil" not in l]
L += hdr
L.append(f"; @launch kernel=gsort_kernel grid=({K1_GRID},1,1) block=(512,1,1) lds={K1_LDS}")
L.append(f"; @launch kernel=gmain_kernel grid=(512,1,1) block=(256,1,1) lds={OPT.get('lds', K2_LDS)}")
L.append('.amdgcn_target "amdgcn-amd-amdhsa--gfx950"'); L.append(".text")
gen_k1(); gen_k2()
lab("CODE_END")
L.append('.section .rodata,"a"')
kd("gsort_kernel", 40, 96 if STAMP else 40); kd("gmain_kernel", NVGPR, 96 if STAMP else 60)
open(sys.argv[1], "w").write("\n".join(L) + "\n")
print("vgprs", NVGPR, "lds", K2_LDS, "lines", len(L), file=sys.stderr)
```

```python
import sys, struct, re

N = 25000; E = 400000; RN = 49; NR = 511; CH = 1600; NCH = 250
WS_REC = 0; WS_OFF = 0x310000; OROW = 1152; WS_WF = 0x3c0000; WS_SCR = 0x1000000; WS_SIZE = 0x4000000
WF_B = 0; WF_V = 0x8000; WF_A = 0x10000; WF_U = 0x18000; WF_C = 0x20000
NLOG2E = struct.unpack('<I', struct.pack('<f', -1.4426950408889634))[0]
EPS = struct.unpack('<I', struct.pack('<f', 1e-6))[0]
NAME = "standalone__edge_featured_mpnn_gatedgcn__graph"
OPT = dict(a.split('=') for a in sys.argv[2:]) if len(sys.argv) > 2 else {}
STAMP = int(OPT.get('stamp', 0))
WS_STAMP = 0x3800000
L = []
def o(s): L.append("    " + s)
def lab(s): L.append(s + ":")
def vr(b, n): return f"v[{b}:{b+n-1}]"
VST = [60]
NAMES = {}
def stamp(i, ins="s_memrealtime", name=None):
    if STAMP:
        o(f"{ins} s[100:101]"); o("s_waitcnt lgkmcnt(0)"); o(f"v_writelane_b32 v{VST[0]}, s100, {i}")
def xstamp(name):
    if STAMP:
        NAMES[name] = 16 + len(NAMES); stamp(NAMES[name])
def stamp_out(n, reg, srdn, kern):
    if not STAMP: return
    o("s_mov_b64 exec, -1")
    stamp(n)
    o(f"v_lshlrev_b32 v{reg}, 2, v0")
    o(f"s_lshl_b32 s63, s2, 11"); o(f"s_add_u32 s63, s63, {WS_STAMP + kern*0x100000:#x}")
    o(f"buffer_store_dword v{VST[0]}, v{reg}, s[{srdn}:{srdn+3}], s63 offen")
def srd(d, lo, size, stride=0):
    o(f"s_mov_b32 s{d}, s{lo}"); o(f"s_and_b32 s{d+1}, s{lo+1}, 0xffff")
    if stride: o(f"s_or_b32 s{d+1}, s{d+1}, {stride << 16:#x}")
    o(f"s_mov_b32 s{d+2}, {size:#x}"); o(f"s_mov_b32 s{d+3}, 0x20000")
def scan64(v):
    for d in ("row_shr:1", "row_shr:2", "row_shr:4", "row_shr:8"):
        o("s_nop 1"); o(f"v_add_u32_dpp v{v}, v{v}, v{v} {d} row_mask:0xf bank_mask:0xf bound_ctrl:0")
    o("s_nop 1"); o(f"v_add_u32_dpp v{v}, v{v}, v{v} row_bcast:15 row_mask:0xa bank_mask:0xf")
    o("s_nop 1"); o(f"v_add_u32_dpp v{v}, v{v}, v{v} row_bcast:31 row_mask:0xc bank_mask:0xf")

K1_GRID = NCH + 17
K1_LDS = 4096 + CH * 8
def gen_k1():
    L.append(".globl gsort_kernel"); L.append(".p2align 8"); L.append(".type gsort_kernel,@function")
    lab("gsort_kernel")
    stamp(0)
    o("s_load_dwordx2 s[12:13], s[0:1], 88")
    o("s_load_dwordx4 s[4:7], s[0:1], 16")
    o(f"s_cmp_ge_u32 s2, {K1_GRID}"); o("s_cbranch_scc1 K1_END")
    o("s_and_b32 s35, s2, 7"); o("s_lshl_b32 s35, s35, 5"); o("s_lshr_b32 s36, s2, 3"); o("s_add_u32 s35, s35, s36")
    o("s_lshl_b32 s35, s35, 2"); o(f"s_add_u32 s35, s35, {WS_OFF:#x}"); o(f"v_mul_u32_u24 v41, {OROW}, v0")
    o(f"s_cmp_ge_u32 s2, {NCH}"); o("s_cbranch_scc1 K1_PREP")
    o("v_lshlrev_b32 v1, 2, v0"); o("v_mov_b32 v2, 0")
    o("ds_write_b32 v1, v2")
    o(f"s_mul_i32 s3, s2, {CH*4}")
    o(f"v_cmp_gt_u32 vcc, {CH//4}, v0")
    o("v_lshlrev_b32 v40, 4, v0")
    o("s_waitcnt lgkmcnt(0)")
    srd(20, 6, E*4); srd(16, 4, E*4)
    o("s_and_saveexec_b64 s[28:29], vcc"); o("s_mov_b64 s[28:29], exec"); o("s_cbranch_execz K1_A")
    o("buffer_load_dwordx4 v[4:7], v40, s[20:23], s3 offen")
    o("buffer_load_dwordx4 v[8:11], v40, s[16:19], s3 offen")
    lab("K1_A")
    o("s_mov_b64 exec, -1")
    srd(24, 12, WS_SIZE)
    o(f"s_mul_i32 s14, s2, {CH}"); o("s_or_b32 s14, s14, 0x100000")
    o("v_add_u32 v3, s14, v1"); o("v_mov_b32 v2, 1"); o(f"s_mov_b32 s15, {-RN}")
    o("v_and_b32 v20, 63, v0"); o("v_lshlrev_b32 v20, 5, v20")
    o("s_lshl_b32 s31, s3, 1"); o("s_lshr_b32 s34, s3, 2")
    o("s_barrier")
    o("s_mov_b64 exec, s[28:29]"); o("s_cbranch_execz K1_B")
    o("s_waitcnt vmcnt(1)"); stamp(1)
    for i in range(4):
        o(f"v_mul_u32_u24 v{12+i}, 21400, v{4+i}")
        o(f"v_lshrrev_b32 v{12+i}, 20, v{12+i}")
        o(f"v_mad_i32_i24 v{4+i}, v{12+i}, s15, v{4+i}")
        o(f"v_lshlrev_b32 v{12+i}, 2, v{12+i}")
        o(f"ds_add_rtn_u32 v{16+i}, v{12+i}, v2")
    o("s_waitcnt vmcnt(0)")
    for i in range(4):
        o(f"v_and_or_b32 v22, v{4+i}, 8, 20"); o(f"v_and_b32 v23, 7, v{4+i}"); o("v_add_u32 v23, 1, v23")
        o(f"v_lshl_or_b32 v{44+2*i}, v23, v22, v{8+i}")
        o(f"v_lshl_add_u32 v{45+2*i}, v{4+i}, 26, v3")
        if i < 3: o("v_add_u32 v3, 1, v3")
    lab("K1_B")
    o("s_mov_b64 exec, -1")
    o("s_waitcnt lgkmcnt(0)"); o("s_barrier")
    o("ds_read_b128 v[24:27], v20"); o("ds_read_b128 v[28:31], v20 offset:16")
    o("s_waitcnt lgkmcnt(0)")
    o("v_mov_b32 v33, v24")
    for j in range(2, 8): o(f"v_add_u32 v{32+j}, v{31+j}, v{23+j}")
    o("v_add_u32 v21, v39, v31"); o("v_mov_b32 v22, v21")
    scan64(21)
    o("v_sub_u32 v32, v21, v22")
    for j in range(1, 8): o(f"v_add_u32 v{32+j}, v32, v{32+j}")
    o("ds_write_b128 v20, v[32:35] offset:2048"); o("ds_write_b128 v20, v[36:39] offset:2064")
    o("ds_read2st64_b32 v[24:25], v1 offset0:0 offset1:8")
    o("s_mov_b64 exec, s[28:29]")
    for i in range(4): o(f"ds_read_b32 v{4+i}, v{12+i} offset:2048")
    for i in range(4):
        o(f"s_waitcnt lgkmcnt(3)")
        o(f"v_add_lshl_u32 v{4+i}, v{4+i}, v{16+i}, 3"); o(f"ds_write_b64 v{4+i}, v[{44+2*i}:{45+2*i}] offset:4096")
    o("s_mov_b64 exec, -1")
    lab("K1_D")
    o(f"v_cmp_gt_u32 vcc, {CH//2-512}, v0")
    o("s_waitcnt lgkmcnt(0)"); o("s_barrier")
    o("ds_read_b128 v[4:7], v40 offset:4096"); o("ds_read_b128 v[8:11], v40 offset:12288")
    o("v_lshl_add_u32 v24, v24, 19, v25"); o("v_add_u32 v24, s34, v24")
    o("buffer_store_dword v24, v41, s[24:27], s35 offen")
    o("s_add_u32 s30, s31, 8192")
    o("s_waitcnt lgkmcnt(1)")
    o("buffer_store_dwordx4 v[4:7], v40, s[24:27], s31 offen " + OPT.get('recpol', '').replace('+', ' '))
    o("s_and_saveexec_b64 s[28:29], vcc"); o("s_cbranch_execz K1_E")
    o("s_waitcnt lgkmcnt(0)")
    o("buffer_store_dwordx4 v[8:11], v40, s[24:27], s30 offen " + OPT.get('recpol', '').replace('+', ' '))
    lab("K1_E")
    stamp_out(2, 12, 24, 0)
    o("s_endpgm")
    lab("K1_PREP")
    o(f"s_sub_u32 s3, s2, {NCH}"); o("s_lshr_b32 s14, s3, 2")
    o("s_load_dwordx4 s[16:19], s[0:1], 32")
    o("s_load_dwordx4 s[20:23], s[0:1], 48")
    o("s_load_dwordx2 s[32:33], s[0:1], 64")
    o("v_and_b32 v1, 31, v0"); o("v_bfe_u32 v2, v0, 5, 1"); o("v_lshrrev_b32 v3, 6, v0")
    o("s_waitcnt lgkmcnt(0)")
    o("s_bitcmp1_b32 s14, 0"); o(f"s_cselect_b32 s15, 1.0, {NLOG2E:#x}")
    o("s_cmp_eq_u32 s14, 0"); o("s_cselect_b32 s32, s18, s32"); o("s_cselect_b32 s33, s19, s33")
    o("s_cmp_eq_u32 s14, 2"); o("s_cselect_b32 s32, s16, s32"); o("s_cselect_b32 s33, s17, s33")
    o("s_cmp_eq_u32 s14, 3"); o("s_cselect_b32 s32, s22, s32"); o("s_cselect_b32 s33, s23, s33")
    o("s_cbranch_scc0 K1_NOPERM")
    o("v_and_b32 v4, 3, v1"); o("v_lshrrev_b32 v5, 3, v1"); o("v_lshl_or_b32 v4, v5, 2, v4")
    o("v_bfe_u32 v5, v1, 2, 1"); o("v_lshl_or_b32 v1, v5, 4, v4")
    lab("K1_NOPERM")
    o("s_mov_b32 s10, 32768")
    o("s_cmp_eq_u32 s14, 4"); o("s_cselect_b32 s32, s20, s32"); o("s_cselect_b32 s33, s21, s33")
    o("s_cselect_b32 s10, 4096, s10")
    o("s_mov_b32 s8, s32"); o("s_and_b32 s9, s33, 0xffff"); o("s_mov_b32 s11, 0x20000")
    srd(24, 12, WS_SIZE)
    o("s_cmp_ge_u32 s2, 256"); o("s_cbranch_scc1 K1_NOZ")
    o("v_mov_b32 v6, 0"); o("buffer_store_dword v6, v41, s[24:27], s35 offen")
    lab("K1_NOZ")
    o("s_cmp_eq_u32 s14, 4"); o("s_cbranch_scc1 K1_PC")
    o("s_and_b32 s30, s3, 3"); o("s_lshl_b32 s30, s30, 6")
    o("v_lshlrev_b32 v4, 14, v2"); o("v_lshl_add_u32 v4, v3, 11, v4"); o("v_lshl_add_u32 v4, v1, 1, v4")
    o("v_add_u32 v4, s30, v4")
    o("s_branch K1_PL")
    lab("K1_PC")
    o("v_cmp_gt_u32 vcc, 256, v0")
    o("v_lshlrev_b32 v4, 11, v2"); o("v_lshl_add_u32 v4, v3, 6, v4"); o("v_lshl_add_u32 v4, v1, 1, v4")
    o("s_and_saveexec_b64 s[28:29], vcc"); o("s_cbranch_execz K1_END")
    lab("K1_PL")
    for j in range(8): o(f"buffer_load_ushort v{8+j}, v4, s[8:11], 0 offen offset:{j*256}")
    o("s_lshl_b32 s30, s3, 13"); o(f"s_add_u32 s30, s30, {WS_WF:#x}")
    o("v_lshlrev_b32 v5, 4, v0")
    o("s_waitcnt vmcnt(0)")
    for j in range(8):
        o(f"v_lshlrev_b32 v{8+j}, 16, v{8+j}"); o(f"v_mul_f32 v{8+j}, s15, v{8+j}")
    for j in range(4): o(f"v_cvt_pk_bf16_f32 v{16+j}, v{8+2*j}, v{9+2*j}")
    o("buffer_store_dwordx4 v[16:19], v5, s[24:27], s30 offen")
    lab("K1_END")
    o("s_endpgm")

CAPT = 30; MINW = 64; LOWLIM = 2
LEAD = int(OPT.get('lead', 2))
LUT = 0; MLUT = 4096; NB = 4352; LIST = 4608; LIST_SZ = 8192
MB = LIST + LIST_SZ; ROW = 1040; CNT = MB + 9 * ROW; ZSZ = 9 * ROW + 256
AT = CNT + 256; ER = AT + 16384; RING = ER + 8192; SLOT = 8320; K2_LDS = RING + 4 * SLOT
assert K2_LDS <= 81920 and ER % 16 == 0 and CNT % 16 == 0 and NCH * LOWLIM + 6 * MINW <= CAPT * 32

class RA:
    def __init__(s): s.n = 1
    def get(s, k=1, al=1):
        s.n = (s.n + al - 1) // al * al
        b = s.n; s.n += k; return b
R = RA()
vXA = R.get()
IX0 = R.get(2, 2); IX1 = R.get(2, 2); IXE = R.get(2, 2)
(vEA, vATA, vSA, vMA, vL1, vL2, vAGG, vSV, vMT, vWF, vXR) = [R.get() for _ in range(11)]
SEG = R.get(4, 4)
WB = R.get(32, 4); WV = R.get(32, 4); WC = R.get(4, 4)
GV = R.get(64, 4)
XF = R.get(32, 4)
EF = R.get(4, 4); SF = R.get(4, 4); AF = R.get(4, 4); MQ = R.get(8, 4); T0 = R.get(8, 4); ACC = R.get(8, 4)
T1 = R.get(8, 4); TMP = R.get(8, 4)
NVGPR = R.n
assert NVGPR <= 255, NVGPR
REC = EF; RANK = T1
sX, sE, sW, sO = 8, 12, 16, 20
sWAVE, sBASE, sMX, sME, sWIN, sNT, sINIT, sLIM, sFIRST, sMORE, sMULTI, sT0, sT1, sEPS, sSCR, sMET = range(24, 40)
sC, sEV, sHM, sSV, sRET, sWF, sATW, sS0, sS1 = 40, 41, 42, 44, 46, 52, 53, 54, 55
sK = 56
EB = 3 if LEAD == 3 else 1

def m32(d, a, b, c): return f"v_mfma_f32_32x32x16_bf16 {vr(d,16)}, {vr(a,4)}, {vr(b,4)}, " + ("0" if c is None else vr(c,16))
def m16(d, a, b, c): return f"v_mfma_f32_16x16x32_bf16 {vr(d,4)}, {vr(a,4)}, {vr(b,4)}, " + ("0" if c is None else vr(c,4))
def m0x(slot, a): return f"s_add_u32 m0, s{sMX}, {slot*SLOT + a*1040}"
def ldx(pair): return f"buffer_load_dwordx4 {vr(pair,2)}, s[{sX}:{sX+3}], 0 idxen offen lds"
def lde(pair): return f"buffer_load_dwordx4 {vr(pair,2)}, s[{sE}:{sE+3}], 0 idxen offen lds"
def wload(dst, off, n):
    for s in range(n):
        if s % 4 == 0: o(f"s_add_u32 s{sT0}, s{sWF}, {off + s*1024:#x}")
        o(f"buffer_load_dwordx4 {vr(dst+4*s,4)}, v{vWF}, s[{sW}:{sW+3}], s{sT0} offen offset:{(s%4)*1024}")

def wlist():
    r = []
    for dst, off in ((XF, WF_A), (WB, WF_B), (WV, WF_V)):
        for s in range(8):
            r.append(f"buffer_load_dwordx4 {vr(dst+4*s,4)}, v{vWF}, s[{sW}:{sW+3}], s{88 + (off >> 14) + s // 4} offen offset:{(s%4)*1024}")
    r.append(f"buffer_load_dwordx4 {vr(WC,4)}, v{vWF}, s[{sW}:{sW+3}], s94 offen")
    return r
def sprinkle(start, loads, every):
    body = L[start:]; del L[start:]
    full = True; skip = False; n = 0
    for ln in body:
        L.append(ln)
        t = ln.strip()
        if t.startswith("s_mov_b64 exec"): full = t.endswith("-1")
        if t.startswith("s_cbranch_scc1 P1_DONE") or t.startswith("s_cbranch_scc1 P2_DONE") or t.startswith("s_cbranch_scc1 NOXF"): skip = True
        if t in ("P1_DONE:", "P2_DONE:"): skip = False; full = False
        if t == "XFD:": skip = False
        n += 1
        if loads and full and not skip and n >= every and not t.endswith(':') and not t.startswith("s_cmp") :
            o(loads.pop(0)); n = 0
    for x in loads: o(x)
FINS = []
def finalize(tag):
    T = TMP
    o(f"s_cbranch_scc1 {tag}_M"); FINS.append(tag)
    lab(f"{tag}_B")
    for r in range(4): o(f"v_add_f32 v{T+r}, s{sEPS}, v{ACC+r}")
    for r in range(4): o(f"v_rcp_f32 v{T+r}, v{T+r}")
    o("s_nop 0")
    for r in range(4): o(f"v_mul_f32 v{T+r}, v{T+r}, v{ACC+4+r}")
    o(f"v_cvt_pk_bf16_f32 v{T}, v{T}, v{T+1}"); o(f"v_cvt_pk_bf16_f32 v{T+1}, v{T+2}, v{T+3}")
    o("s_waitcnt lgkmcnt(0)")
    o(f"ds_write_b64 v{vAGG}, {vr(T,2)}")
    o(f"v_add_u32 v{vAGG}, 512, v{vAGG}")
    lab(f"{tag}_C")
def multi_code():
    T = TMP
    for tag in FINS:
        lab(f"{tag}_M")
        o(f"s_getpc_b64 s[{sRET}:{sRET+1}]"); o("s_branch MULTI")
        o(f"s_cbranch_scc1 {tag}_B"); o(f"s_branch {tag}_C")
    lab("MULTI")
    o(f"s_add_u32 s{sRET}, s{sRET}, 4"); o(f"s_addc_u32 s{sRET+1}, s{sRET+1}, 0")
    o("s_nop 7")
    o(f"s_cmp_eq_u32 s{sFIRST}, 1"); o(f"s_cbranch_scc1 MULTI_A")
    o(f"v_lshlrev_b32 v{T}, 1, v{vWF}")
    o(f"buffer_load_dwordx4 {vr(T+4,4)}, v{T}, s[{sW}:{sW+3}], s{sSCR} offen offset:16")
    o(f"buffer_load_dwordx4 {vr(T,4)}, v{T}, s[{sW}:{sW+3}], s{sSCR} offen")
    o("s_waitcnt vmcnt(0)")
    for r in range(8): o(f"v_add_f32 v{ACC+r}, v{ACC+r}, v{T+r}")
    lab("MULTI_A")
    o(f"s_cmp_eq_u32 s{sMORE}, 0"); o(f"s_cbranch_scc1 MULTI_R")
    o(f"v_lshlrev_b32 v{T}, 1, v{vWF}")
    o(f"buffer_store_dwordx4 {vr(ACC,4)}, v{T}, s[{sW}:{sW+3}], s{sSCR} offen")
    o(f"buffer_store_dwordx4 {vr(ACC+4,4)}, v{T}, s[{sW}:{sW+3}], s{sSCR} offen offset:16")
    o("s_waitcnt vmcnt(0) lgkmcnt(0)")
    lab("MULTI_R")
    o(f"s_add_u32 s{sSCR}, s{sSCR}, 2048")
    o(f"s_cmp_eq_u32 s{sMORE}, 0")
    o(f"s_setpc_b64 s[{sRET}:{sRET+1}]")

def close_window(tag, P, mq):
    o(f"ds_read_b128 {vr(T1,4)}, v{mq+2}"); o(f"ds_read_b128 {vr(T1+4,4)}, v{mq+3}")
    o(f"s_mov_b64 exec, s[{sHM}:{sHM+1}]")
    o(f"v_add_u32 v{vATA}, 0x400, v{vATA}")
    o("s_mov_b64 exec, -1")
    o(f"s_not_b64 s[{sHM}:{sHM+1}], s[{sHM}:{sHM+1}]")
    o(f"s_cmp_lg_u32 s{sMULTI}, 0")
    finalize(tag)
    o(m16(ACC, P, T1, None)); o(f"ds_read_b128 {vr(AF,4)}, v{vATA}")
    o(m16(ACC+4, P+16, T1, None)); o(f"s_add_u32 s{sWIN}, s{sWIN}, 1")
    o(m16(ACC, P+4, T1+4, ACC)); o(f"s_cmp_ge_u32 s{sWIN}, {PRIO[0]}")
    o(m16(ACC+4, P+20, T1+4, ACC+4))

def vstream(Gc, Vc):
    A = []
    for p in range(0, 22, 2):
        if p < 16: A += [(f"v_exp_f32 v{Gc+p}, v{Gc+p}", 8), (f"v_exp_f32 v{Gc+p+1}, v{Gc+p+1}", 8)]
        q = p - 2
        if 0 <= q < 16:
            A += [(f"v_add_f32 v{Gc+q}, 1.0, v{Gc+q}", 4), (f"v_add_f32 v{Gc+q+1}, 1.0, v{Gc+q+1}", 4),
                  (f"v_rcp_f32 v{Gc+q}, v{Gc+q}", 8), (f"v_rcp_f32 v{Gc+q+1}, v{Gc+q+1}", 8)]
        q = p - 4
        if 0 <= q < 16: A += [(f"v_mul_f32 v{Vc+q}, v{Gc+q}, v{Vc+q}", 4), (f"v_mul_f32 v{Vc+q+1}, v{Gc+q+1}, v{Vc+q+1}", 4)]
        q = p - 6
        if 0 <= q < 16: A += [(f"v_cvt_pk_bf16_f32 v{Gc+q//2}, v{Gc+q}, v{Gc+q+1}", 4), (f"v_cvt_pk_bf16_f32 v{Vc+q//2}, v{Vc+q}, v{Vc+q+1}", 4)]
    return A

def vm_wait(b):
    n = 2 * (LEAD - 1) + sum(1 for k in range(1, LEAD + 1) if (b - k) % 4 == EB)
    if b == 3 and LEAD == 2: n = 2
    return n
NHEAD = 4

def body(b):
    Gn = GV + 32 * (b % 2); Vn = Gn + 16
    Gc = GV + 32 * ((b + 1) % 2); Vc = Gc + 16
    mqn = MQ + 4 * (b % 2); mqc = MQ + 4 * ((b + 1) % 2)
    so = ((b + 1) % 4) * SLOT
    ds = (b + LEAD + 1) % 4
    def xr(s): return f"ds_read_b128 {vr(XF+4*s,4)}, v{vXA} offset:{so+16*s}"
    def G(s): return m32(Gn, XF+4*s, WB+4*s, Gn)
    def V(s): return m32(Vn, XF+4*s, WV+4*s, None if s == 0 else Vn)
    e = b == EB; pe = b == (EB - 1) % 4
    seq = []
    seq.append([m16(ACC, Gn, T0, ACC), 16, [m0x(ds, 0)], [], []])
    seq.append([m16(ACC+4, Vn, T0, ACC+4), 16, [], [], []])
    seq.append([m16(ACC, Gn+4, T0+4, ACC), 16, [f"s_bitcmp1_b32 s{sEV}, {b}"], [], []])
    seq.append([m16(ACC+4, Vn+4, T0+4, ACC+4), 16, [],
                [f"s_cbranch_scc1 EV{b}", f"EVR{b}:", f"s_waitcnt vmcnt({vm_wait(b)}) lgkmcnt(0)"] + ([] if OPT.get('nobar') else ["s_barrier"]), []])
    seq.append([m32(Gn, EF, WC, None), 32, [ldx(IX0)], [], [f"v_xor_b32 v{vEA}, v{vEA}, v{vMT}"] if b == 3 else []])
    seq.append([G(0), 32, [f"ds_read_b128 {vr(EF,4)}, v{vEA} offset:{((b+1)%4)*1024}"], [m0x(ds, 1)], []])
    seq.append([V(0), 32, [xr(0)], [], []])
    seq.append([G(1), 32, [ldx(IX1)], [], [f"v_and_b32 v{IXE}, 0x7ffff, v{IXE}"] if e else []])
    seq.append([V(1), 32, [xr(1)], [f"s_mov_b32 m0, s{sME}"] if e else [], []])
    seq.append([G(2), 32, [f"ds_read_b128 {vr(T0,4)}, v{mqc}"], [lde(IXE)] if e else [], []])
    seq.append([V(2), 32, [xr(2)], [f"s_xor_b32 s{sME}, s{sME}, s{sMET}"] if e else [], []])
    seq.append([G(3), 32, [f"ds_read_b128 {vr(T0+4,4)}, v{mqc+1}"], [], []])
    seq.append([V(3), 32, [xr(3)], [], []])
    seq.append([G(4), 32, [f"ds_read_b128 {vr(SF,4)}, v{vSV} offset:{MLUT}"], [], []])
    seq.append([V(4), 32, [xr(4)], [], []])
    seq.append([G(5), 32, [f"ds_read_b128 {vr(mqn,4)}, v{vMA} offset:{b*32}"], [], []])
    seq.append([V(5), 32, [xr(5)], [], []])
    seq.append([G(6), 32, [f"ds_read_u8 v{vSV}, v{vSA} offset:{(b+1)*256}"], [f"ds_read_b32 v{IXE}, v{vL2}"] if pe else [], []])
    seq.append([G(7), 32, [f"ds_read_u16 v{IX0}, v{vL1} offset:{b*256}"], [f"s_waitcnt lgkmcnt({6 if pe else 5})"], []])
    seq.append([m32(Gn, SF, AF, Gn), 32, [f"ds_read_u16 v{IX1}, v{vL1} offset:{b*256+16}"], [], []])
    seq.append([V(6), 32, [xr(6)], [f"s_lshr_b64 s[{sC}:{sC+1}], s[{sC}:{sC+1}], 4"] if b == 3 else [],
                ([f"v_add_u32 v{r}, 0x400, v{r}" for r in (vSA, vL1, vL2)] + [f"v_add_u32 v{vMA}, 128, v{vMA}"]) if b == 3 else []])
    seq.append([V(7), 32, [xr(7)], [], []])
    A = vstream(Gc, Vc)
    room = [cyc - 8 - 4 * len(xv) for (_, cyc, _, _, xv) in seq]
    tot = sum(c for _, c in A); scale = tot / sum(room)
    out = []; ai = 0; acc = 0; budget = 0
    for i, ((m, cyc, ex, tr, xv), rm) in enumerate(zip(seq, room)):
        out.append(m); out += ex; out += xv
        budget += rm * scale
        while ai < len(A) and acc + A[ai][1] / 2 <= budget + 0.01:
            out.append(A[ai][0]); acc += A[ai][1]; ai += 1
        if i == 3: assert ai == NHEAD
        out += tr
    assert ai == len(A)
    if OPT.get('nodma'): out = [x for x in out if 'buffer_load' not in x]
    return out

def regs_of(tok):
    m = re.fullmatch(r"v\[(\d+):(\d+)\]", tok)
    if m: return set(range(int(m.group(1)), int(m.group(2)) + 1))
    m = re.fullmatch(r"v(\d+)", tok)
    return {int(m.group(1))} if m else set()
def check_hazards(ins):
    P = []
    for s in ins:
        if s.endswith(':'): continue
        op, _, rest = s.partition(' ')
        t = [x.strip() for x in rest.split(',')]
        t = [x.split(' ')[0] for x in t]
        if op.startswith('v_mfma'):
            P.append(('m', 12 if '32x32' in op else 8, regs_of(t[0]), regs_of(t[1]) | regs_of(t[2]), regs_of(t[3]), s))
        elif op.startswith('v_'):
            P.append(('t' if op in ('v_exp_f32', 'v_rcp_f32') else 'v', 0, regs_of(t[0]), set().union(*map(regs_of, t[1:])), set(), s))
        elif op.startswith('ds_read'):
            P.append(('d', 0, regs_of(t[0]), regs_of(t[1]), set(), s))
        elif op.startswith('buffer'):
            P.append(('d', 0, set(), regs_of(t[0]), set(), s))
        else: P.append(('s', 0, set(), set(), set(), s))
    n = len(P)
    for i, (k, w, d, ab, c, s) in enumerate(P):
        for j in range(1, 13):
            k2, w2, d2, ab2, c2, s2 = P[(i + j) % n]
            gap = j - 1
            if k == 'm':
                if k2 == 'm':
                    assert not (gap < w and d & ab2), (s, s2)
                    if d & c2 and d != c2: assert gap >= w - 2, (s, s2)
                else: assert not (gap < w and d & (d2 | ab2)), (s, s2, gap)
                if k2 in 'vt': assert not (gap < (7 if w == 12 else 3) and c & d2), (s, s2)
            if k in 'vt' and k2 == 'm': assert not (gap < 2 and d & (ab2 | c2)), (s, s2)
            if k == 't' and k2 == 'v': assert not (gap < 1 and d & ab2), (s, s2)

def emit_loop():
    allb = sum((body(b) for b in range(4)), [])
    check_hazards(allb + ["s_branch LOOP"])
    lab("LOOP")
    for it in allb:
        if it.endswith(':'): lab(it[:-1])
        else: o(it)
    o("s_branch LOOP")
    for b in range(4):
        lab(f"EV{b}")
        o(f"s_bitcmp1_b32 s{sC}, {b}"); o(f"s_cbranch_scc0 EV{b}_X")
        close_window(f"EV{b}", GV + 32 * (b % 2), MQ + 4 * (b % 2))
        o(f"s_cbranch_scc1 EV{b}_P")
        lab(f"EV{b}_2")
        o(f"s_lshr_b32 s{sT0}, s{sEV}, {b+1}"); o(f"s_cbranch_scc1 EVR{b}")
        o(f"s_movk_i32 s{sS0}, {b*SLOT}"); o(f"s_movk_i32 s{sS1}, {(b+1)%4*SLOT}"); o(f"s_lshr_b32 s{sC}, s{sC}, {b+1}")
        o(f"s_branch TAIL{b%2}")
        lab(f"EV{b}_P")
        o("s_setprio 1"); o(f"s_cmp_lt_u32 s{sWIN}, {PRIO[1]}"); o(f"s_cbranch_scc1 EV{b}_2")
        o("s_setprio 0"); o(f"s_branch EV{b}_2")
        lab(f"EV{b}_X")
        if b == 1:
            o(f"s_cmp_eq_u32 s{sINIT}, 0"); o(f"s_cbranch_scc1 EV1_2")
            o(f"s_mov_b32 s{sINIT}, 0"); o("s_nop 2")
            for r in range(8): o(f"v_mov_b32 v{ACC+r}, 0")
        o(f"s_branch EV{b}_2")
    for p in range(2):
        Gc = GV + 32 * (1 - p); mqc = MQ + 4 * (1 - p)
        lab(f"TAIL{p}")
        stamp(7); stamp(11, "s_memtime")
        if STAMP: o(f"v_writelane_b32 v{VST[0]}, s{sNT}, 12")
        o("s_waitcnt vmcnt(0) lgkmcnt(0)"); o("s_barrier")
        wload(WB, WF_U, 8)
        o(f"ds_read_b128 {vr(T0,4)}, v{mqc}"); o(f"ds_read_b128 {vr(T0+4,4)}, v{mqc+1}")
        o(f"v_add_u32 v{vSV}, s{sS1}, v{vXA}")
        for s in range(8): o(f"ds_read_b128 {vr(WV+4*s,4)}, v{vSV} offset:{16*s}")
        for ins, _ in vstream(Gc, Gc + 16)[NHEAD:]: o(ins)
        o("s_waitcnt lgkmcnt(8)")
        o(m16(ACC, Gc, T0, ACC)); o(m16(ACC+4, Gc+16, T0, ACC+4)); o(m16(ACC, Gc+4, T0+4, ACC)); o(m16(ACC+4, Gc+20, T0+4, ACC+4))
        o(f"s_bitcmp1_b32 s{sC}, 0"); o("s_cbranch_scc0 LOOP_EXIT")
        close_window(f"TL{p}", Gc, mqc)
        if p == 0: o("s_branch LOOP_EXIT")

PRIO = [int(x) for x in OPT.get('prio', '3,5').split(',')]

def masks(tmp):
    a, b_, c = tmp
    o(f"v_and_b32 v{a}, 3, v0"); o(f"v_lshlrev_b32 v{a}, 1, v{a}"); o(f"v_mov_b32 v{c}, 0")
    for i in range(4):
        o(f"v_lshrrev_b32 v{b_}, 19, v{SEG+i}"); o(f"v_max_u32 v{c}, v{c}, v{b_}")
        o(f"v_min_u32 v{b_}, s{sLIM}, v{b_}"); o(f"v_sub_u32 v{b_}, v{b_}, v{a}")
        for j, k in ((0, 2*i), (1, 2*i+1), (8, 8+2*i), (9, 9+2*i)): o(f"v_cmp_lt_i32 s[{sK+2*k}:{sK+2*k+1}], {j}, v{b_}")
    o(f"v_cmp_lt_u32 vcc, s{sLIM}, v{c}")
    o(f"s_or_b64 s[{sSV}:{sSV+1}], s[{sK+16}:{sK+17}], s[{sK+20}:{sK+21}]"); o(f"s_or_b64 s[{sHM}:{sHM+1}], s[{sK+24}:{sK+25}], s[{sK+28}:{sK+29}]")
    o(f"s_or_b64 s[{sSV}:{sSV+1}], s[{sSV}:{sSV+1}], s[{sHM}:{sHM+1}]")
    o(f"v_mov_b32 v{b_}, {CNT+252}")
    o("s_mov_b64 exec, vcc"); o(f"ds_write_b32 v{b_}, v{b_}"); o("s_mov_b64 exec, -1")

def gen_k2():
    L.append(".globl gmain_kernel"); L.append(".p2align 8"); L.append(".type gmain_kernel,@function")
    lab("gmain_kernel"); VST[0] = 255
    t = [T1 + i for i in range(16)]
    stamp(0)
    o("s_load_dwordx2 s[50:51], s[0:1], 88")
    o("s_load_dwordx4 s[4:7], s[0:1], 0")
    o("s_load_dwordx2 s[48:49], s[0:1], 72")
    o("s_setprio 3")
    o("s_and_b32 s3, s2, 7"); o("s_lshl_b32 s3, s3, 6"); o(f"s_lshr_b32 s{sT0}, s2, 3"); o(f"s_add_u32 s3, s3, s{sT0}")
    o("s_cmp_ge_u32 s2, 512"); o("s_cbranch_scc1 K2_END")
    o(f"s_cmp_ge_u32 s3, {NR}"); o("s_cbranch_scc1 K2_END")
    o(f"v_lshrrev_b32 v{t[0]}, 6, v0")
    o(f"v_lshrrev_b32 v{t[1]}, 2, v0")
    o(f"v_readfirstlane_b32 s{sWAVE}, v{t[0]}")
    o(f"s_mul_i32 s{sS0}, s3, {OROW}"); o(f"s_add_u32 s{sS0}, s{sS0}, {WS_OFF:#x}")
    o(f"v_lshlrev_b32 v{t[1]}, 4, v{t[1]}")
    o(f"s_mul_i32 s{sBASE}, s3, {RN}")
    vl = t[2]; ve = t[3]; vh = t[4]
    o(f"v_and_b32 v{vl}, 63, v0"); o(f"v_bfe_u32 v{vh}, v0, 5, 1")
    o(f"v_and_b32 v{t[6]}, 15, v0"); o(f"v_bfe_u32 v{t[7]}, v0, 4, 1"); o(f"v_lshlrev_b32 v{t[8]}, 3, v{t[7]}")
    o(f"v_xor_b32 v{IX0+1}, v{t[6]}, v{t[8]}"); o(f"v_lshlrev_b32 v{IX0+1}, 4, v{IX0+1}"); o(f"v_mov_b32 v{IX1+1}, v{IX0+1}")
    o(f"s_lshr_b32 s{sT0}, s{sWAVE}, 1"); o(f"s_lshl_b32 s{sT0}, s{sT0}, 4"); o(f"s_and_b32 s{sT1}, s{sWAVE}, 1"); o(f"s_lshl_b32 s{sT1}, s{sT1}, 2")
    o(f"s_add_u32 s{sT0}, s{sT0}, s{sT1}"); o(f"s_add_u32 s{sT0}, s{sT0}, s{sBASE}")
    o(f"s_mul_i32 s{sMX}, s{sWAVE}, 2080"); o(f"s_add_u32 s{sMX}, s{sMX}, {RING}")
    o(f"v_lshl_add_u32 v{t[8]}, v{vh}, 3, v{t[7]}")
    o(m0x(0, 0))
    o(f"v_add_u32 v{IX0}, s{sT0}, v{t[8]}"); o(f"v_add_u32 v{IX1}, 2, v{IX0}")
    o(f"v_lshlrev_b32 v{vWF}, 4, v{vl}")
    o(f"s_lshl_b32 s{sWF}, s{sWAVE}, 13"); o(f"s_add_u32 s{sWF}, s{sWF}, {WS_WF:#x}")
    o("s_waitcnt lgkmcnt(0)"); xstamp("karg")
    srd(sW, 50, WS_SIZE)
    o(f"buffer_load_dwordx4 {vr(SEG,4)}, v{t[1]}, s[{sW}:{sW+3}], s{sS0} offen")
    srd(sX, 4, N, 256)
    o(ldx(IX0)); o(m0x(0, 1)); o(f"v_add_u32 v{IX0}, 32, v{IX0}"); o(ldx(IX1))
    o(m0x(1, 0)); o(f"v_add_u32 v{IX1}, 32, v{IX1}"); o(ldx(IX0)); o(m0x(1, 1))
    o(f"v_and_b32 v{ve}, 31, v0"); o(ldx(IX1))
    xstamp("xblk_issued")
    srd(sE, 6, E, 32); srd(sO, 48, N, 256)
    o(f"v_lshrrev_b32 v{t[6]}, 4, v{ve}"); o(f"v_bfe_u32 v{t[8]}, v{ve}, 1, 2"); o(f"v_lshl_or_b32 v{t[6]}, v{t[6]}, 2, v{t[8]}")
    o(f"v_mul_u32_u24 v{t[6]}, 1040, v{t[6]}")
    o(f"v_and_b32 v{t[8]}, 1, v{ve}"); o(f"v_bfe_u32 v{t[10]}, v{ve}, 3, 1"); o(f"v_lshl_or_b32 v{t[10]}, v{t[10]}, 1, v{t[8]}")
    o(f"v_lshl_add_u32 v{t[6]}, v{t[10]}, 8, v{t[6]}"); o(f"v_add_u32 v{t[6]}, {RING}, v{t[6]}")
    o(f"v_xor_b32 v{t[10]}, v{vh}, v{t[8]}"); o(f"v_lshl_add_u32 v{vXA}, v{t[10]}, 7, v{t[6]}")
    o(f"v_lshlrev_b32 v{IXE+1}, 4, v{t[10]}")
    o(f"v_bfe_u32 v{t[10]}, v0, 7, 1"); o(f"v_xor_b32 v{t[10]}, v{t[10]}, v{t[8]}"); o(f"v_lshl_add_u32 v{vXR}, v{t[10]}, 7, v{t[6]}")
    o(f"v_and_b32 v{t[10]}, 0x60, v0"); o(f"v_add_u32 v{vXR}, v{vXR}, v{t[10]}")
    o(f"s_lshl_b32 s{sATW}, s{sWAVE}, 12"); o(f"s_add_u32 s{sATW}, s{sATW}, {AT}")
    o(f"s_mov_b32 s{sEPS}, {EPS:#x}")
    for off in (WF_B, WF_V, WF_A):
        for hh in range(2): o(f"s_add_u32 s{88 + (off >> 14) + hh}, s{sWF}, {off + hh*4096:#x}")
    o(f"s_lshl_b32 s94, s{sWAVE}, 10"); o(f"s_add_u32 s94, s94, {WS_WF+WF_C:#x}")
    o(f"s_mov_b32 s{sFIRST}, 1"); o(f"s_mov_b32 s{sLIM}, 16"); o(f"s_mov_b32 s{sMULTI}, 0")
    o(f"v_lshlrev_b32 v{vATA}, 4, v{ve}"); o(f"v_lshl_add_u32 v{vATA}, v{vh}, 3, v{vATA}"); o(f"v_add_u32 v{vATA}, s{sATW}, v{vATA}")
    lab("ROUND")
    o(f"v_and_b32 v{t[8]}, 3, v0"); o(f"v_lshlrev_b32 v{t[8]}, 1, v{t[8]}")
    o(f"v_mov_b32 v{t[9]}, 0x7ffffff0"); o(f"s_mov_b32 s{sT1}, 0x7ffff")
    xstamp("consts_done")
    o("s_waitcnt vmcnt(4)"); stamp(1)
    for i in range(4):
        o(f"v_lshrrev_b32 v{t[4+i]}, 19, v{SEG+i}"); o(f"v_cmp_lt_u32 vcc, v{t[8]}, v{t[4+i]}")
        o(f"v_and_b32 v{t[i]}, s{sT1}, v{SEG+i}"); o(f"v_add_lshl_u32 v{t[i]}, v{t[i]}, v{t[8]}, 3")
        o(f"v_cndmask_b32 v{t[10]}, v{t[9]}, v{t[i]}, vcc")
        o(f"buffer_load_dwordx4 {vr(REC+4*i,4)}, v{t[10]}, s[{sW}:{sW+3}], 0 offen")
    o(f"v_max3_u32 v{t[10]}, v{t[4]}, v{t[5]}, v{t[6]}"); o(f"v_max_u32 v{t[10]}, v{t[10]}, v{t[7]}")
    o(f"v_cmp_lt_u32 vcc, 8, v{t[10]}"); o("s_cbranch_vccz REC_DONE")
    for i in range(4): o(f"buffer_load_dwordx4 {vr(REC+16+4*i,4)}, v{t[i]}, s[{sW}:{sW+3}], 0 offen offset:64")
    lab("REC_DONE")
    xstamp("rec_issued")
    o(f"s_cmp_eq_u32 s{sFIRST}, 0"); o("s_cbranch_scc1 NOWA")
    q = t[12]
    for d in range(4):
        o(f"v_bfe_u32 v{q+d}, v0, {2*d}, 2"); o(f"v_mul_u32_u24 v{q+d}, 0x8001, v{q+d}")
        o(f"v_and_b32 v{q+d}, 0x10001, v{q+d}"); o(f"v_mul_u32_u24 v{q+d}, 0x3f80, v{q+d}")
    o(f"v_lshlrev_b32 v{t[8]}, 4, v0"); o(f"ds_write_b128 v{t[8]}, {vr(q,4)} offset:{LUT}")
    o(f"v_add_u32 v{t[10]}, -1, v0"); o(f"v_and_b32 v{t[10]}, v{t[10]}, v0"); o(f"v_cmp_eq_u32 vcc, 0, v{t[10]}")
    o(f"v_ffbl_b32 v{t[10]}, v0"); o(f"v_lshlrev_b32 v{t[10]}, 4, v{t[10]}"); o(f"v_add_u32 v{t[10]}, 16, v{t[10]}")
    o("s_mov_b64 exec, vcc")
    o(f"ds_write_b128 v{t[10]}, {vr(q,4)} offset:{MLUT}")
    o("s_mov_b64 exec, -1")
    lab("NOWA")
    o(f"v_lshlrev_b32 v{t[8]}, 4, v0")
    for d in range(4): o(f"v_mov_b32 v{t[0]+d}, 0")
    for off in (0, 4096, ZSZ - 4096): o(f"ds_write_b128 v{t[8]}, {vr(t[0],4)} offset:{MB+off}")
    o(f"v_mov_b32 v{t[4]}, 0xffff"); o(f"v_mov_b32 v{t[5]}, 0x7ffff"); o(f"v_mov_b32 v{t[6]}, 0xffff"); o(f"v_mov_b32 v{t[7]}, 0x7ffff")
    o(f"ds_write_b128 v{t[8]}, {vr(t[4],4)} offset:{LIST}"); o(f"ds_write_b128 v{t[8]}, {vr(t[4],4)} offset:{LIST+4096}")
    o("s_waitcnt lgkmcnt(0)"); o("s_barrier"); stamp(2)
    lab("REMASK")
    masks((vSV, IX0, IX1)); xstamp("masks_done")
    wl = wlist(); NPRE = int(OPT.get('npre', 0))
    for _ in range(NPRE): o(wl.pop(0))
    o(f"s_waitcnt vmcnt({NPRE})"); xstamp("rec_landed")
    for _ in range(int(OPT.get('npost', 4))): o(wl.pop(0))
    sp0 = len(L)
    a, b_, c, d_, e_ = vSV, IX0, IX1, IXE, vMA
    o(f"v_mov_b32 v{a}, 8")
    for half in range(2):
        if half: o(f"s_cmp_eq_u64 s[{sSV}:{sSV+1}], 0"); o("s_cbranch_scc1 P1_DONE")
        for k in range(8*half, 8*half+8):
            o(f"s_mov_b64 exec, s[{sK+2*k}:{sK+2*k+1}]")
            o(f"v_lshrrev_b32 v{b_}, 24, v{REC+2*k+1}")
            o(f"ds_add_rtn_u32 v{RANK+k}, v{b_}, v{a} offset:{CNT}")
    lab("P1_DONE")
    o("s_mov_b64 exec, -1")
    o(f"v_lshrrev_b32 v{b_}, 2, v{vWF}")
    o(f"s_mov_b32 vcc_lo, 0x80808080"); o("s_mov_b32 vcc_hi, 0x8080")
    o("s_waitcnt lgkmcnt(0)"); xstamp("p1_done"); o("s_barrier"); xstamp("b1")
    o(f"ds_read_b32 v{c}, v{b_} offset:{CNT}")
    o(f"s_cmp_eq_u32 s{sFIRST}, 0"); o("s_cbranch_scc1 NOXF")
    for mt in range(2):
        for s in range(8): o(f"ds_read_b128 {vr(GV+32*mt+4*s,4)}, v{vXA} offset:{mt*SLOT+16*s}")
        if mt == 0: o("s_waitcnt lgkmcnt(8)")
    o("s_branch XFD")
    lab("NOXF")
    o("s_waitcnt lgkmcnt(0)")
    lab("XFD")
    o(f"v_readlane_b32 s{sMORE}, v{c}, 63")
    o(f"v_add_u32_dpp v{d_}, v{c}, v{c} quad_perm:[1,0,3,2] row_mask:0xf bank_mask:0xf"); o("s_nop 1")
    o(f"v_add_u32_dpp v{d_}, v{d_}, v{d_} quad_perm:[2,3,0,1] row_mask:0xf bank_mask:0xf"); o("s_nop 1")
    o(f"v_add_u32_dpp v{d_}, v{d_}, v{d_} row_half_mirror row_mask:0xf bank_mask:0xf")
    o(f"v_sub_u32 v{d_}, {MINW*8}, v{d_}"); o(f"v_max_i32 v{d_}, 0, v{d_}"); o(f"v_cndmask_b32 v{d_}, 0, v{d_}, vcc")
    o(f"v_add_u32 v{c}, v{c}, v{d_}"); o(f"v_mov_b32 v{d_}, v{c}")
    scan64(c)
    o(f"v_sub_u32 v{d_}, v{c}, v{d_}")
    o(f"ds_write_b32 v{b_}, v{d_} offset:{NB}")
    o(f"v_readlane_b32 s{sNT}, v{c}, 48")
    o(f"s_cmp_le_u32 s{sNT}, {CAPT*256}"); o("s_cbranch_scc0 TOOBIG")
    xstamp("scan_done")
    tmp = [a, b_, d_, e_]
    for k0 in range(0, 16, 4):
        if k0 == 8: o(f"s_cmp_eq_u64 s[{sSV}:{sSV+1}], 0"); o("s_cbranch_scc1 P2_DONE")
        if k0: o("s_mov_b64 exec, -1")
        for k in range(k0, k0+4):
            o(f"v_lshrrev_b32 v{tmp[k-k0]}, 24, v{REC+2*k+1}"); o(f"ds_read_b32 v{tmp[k-k0]}, v{tmp[k-k0]} offset:{NB}")
        if k0 == 0:
            o(f"s_lshl_b32 s{sT0}, s{sWAVE}, 6"); o(f"s_add_u32 s{sT0}, s{sT0}, {LIST}")
            o(f"v_bfe_u32 v{vL1}, v0, 5, 1"); o(f"v_bfe_u32 v{vL2}, v0, 4, 1"); o(f"v_lshl_add_u32 v{vL1}, v{vL1}, 2, v{vL2}"); o(f"v_lshl_add_u32 v{vL1}, v{vL1}, 3, s{sT0}")
            o(f"v_lshrrev_b32 v{vL2}, 1, v0"); o(f"v_lshlrev_b32 v{vL2}, 3, v{vL2}"); o(f"v_add_u32 v{vL2}, {LIST+4}, v{vL2}")
            o(f"s_lshl_b32 s{sME}, s{sWAVE}, 10"); o(f"s_add_u32 s{sME}, s{sME}, {ER}")
            o(f"s_add_u32 s{sNT}, s{sNT}, 255"); o(f"s_lshr_b32 s{sNT}, s{sNT}, 8")
        if k0 == 4:
            o(f"s_mov_b32 s{sC}, 0")
            for w in range(6):
                o(f"v_readlane_b32 s{sT0}, v{c}, {8*w+7}"); o(f"s_add_u32 s{sT0}, s{sT0}, 511"); o(f"s_lshr_b32 s{sT0}, s{sT0}, 8")
                o(f"s_bitset1_b32 s{sC}, s{sT0}")
        for k in range(k0, k0+4):
            if k % 2 == 0: o(f"s_waitcnt lgkmcnt({2-(k-k0)})")
            o(f"v_add_u32 v{RANK+k}, v{RANK+k}, v{tmp[k-k0]}")
        for k in range(k0, k0+4):
            o(f"s_mov_b64 exec, s[{sK+2*k}:{sK+2*k+1}]")
            o(f"ds_write_b64 v{RANK+k}, {vr(REC+2*k,2)} offset:{LIST}")
    lab("P2_DONE")
    o("s_mov_b64 exec, -1")
    o(f"s_mov_b32 m0, s{sME}")
    sprinkle(sp0, wl, int(OPT.get('every', 5)))
    o("s_waitcnt lgkmcnt(0)"); xstamp("p2_done"); o("s_barrier"); stamp(5)
    f = REC; NF = LEAD + 1
    o(f"ds_read_b32 v{IXE}, v{vL2}")
    for k in range(NF):
        o(f"ds_read_u16 v{f+2*k}, v{vL1} offset:{k*256}"); o(f"ds_read_u16 v{f+2*k+1}, v{vL1} offset:{k*256+16}")
    o(f"ds_read_b32 v{f+8}, v{vL2} offset:1024")
    o(f"v_lshlrev_b32 v{f+9}, 3, v0")
    for k in range(4): o(f"ds_read_b32 v{f+12+k}, v{f+9} offset:{LIST+4+k*2048}")
    o(f"s_waitcnt lgkmcnt({2*NF+5})")
    o(f"v_and_b32 v{IXE}, 0x7ffff, v{IXE}"); o(lde(IXE))
    def fillx(k):
        o(m0x(k, 0)); o(f"s_waitcnt lgkmcnt({2*NF+3-2*k})")
        o(f"v_mov_b32 v{IX0}, v{f+2*k}"); o(f"v_mov_b32 v{IX1}, v{f+2*k+1}")
        o(ldx(IX0)); o(m0x(k, 1)); o("s_nop 0"); o(ldx(IX1))
    for k in range(NF): fillx(k)
    if LEAD == 3:
        o(f"s_add_u32 m0, s{sME}, 4096"); o("s_waitcnt lgkmcnt(4)")
        o(f"v_and_b32 v{IXE}, 0x7ffff, v{f+8}"); o(lde(IXE))
    xstamp("fill_issued")
    o(f"s_cmp_eq_u32 s{sFIRST}, 0"); o("s_cbranch_scc1 NOG1")
    o(f"s_waitcnt vmcnt({2*NF + 18 + (LEAD == 3)})")
    acc = [T1, GV]
    for mt in range(2):
        for s in range(8): o(m32(acc[mt], GV+32*mt+4*s, XF+4*s, None if s == 0 else acc[mt]))
    o("s_nop 3")
    for mt in range(2):
        for r in range(0, 16, 2): o(f"v_cvt_pk_bf16_f32 v{acc[mt]+r//2}, v{acc[mt]+r}, v{acc[mt]+r+1}")
        for g in range(4): o(f"ds_write_b64 v{vATA}, {vr(acc[mt]+2*g,2)} offset:{(4*mt+g)*512}")
    if STAMP:
        o("s_getreg_b32 s98, hwreg(HW_REG_HW_ID)"); o("s_getreg_b32 s100, hwreg(HW_REG_XCC_ID)"); o("s_and_b32 s98, s98, 0xffff"); o("s_lshl_b32 s100, s100, 16"); o("s_or_b32 s98, s98, s100"); o(f"v_writelane_b32 v{VST[0]}, s98, 3")
    lab("NOG1")
    xstamp("g1_done"); stamp(4)
    o(f"s_mov_b32 s{sEV}, s{sC}"); o(f"s_add_u32 s{sT0}, s{sNT}, 1"); o(f"s_bitset0_b32 s{sEV}, s{sT0}")
    o(f"s_or_b32 s{sEV}, s{sEV}, 2"); o(f"s_bitset1_b32 s{sEV}, s{sNT}")
    o(f"s_lshr_b32 s{sT1}, s{sC}, 1")
    for k in (1, 2, 4, 8, 16): o(f"s_lshl_b32 s{sT0}, s{sT1}, {k}"); o(f"s_xor_b32 s{sT1}, s{sT1}, s{sT0}")
    o(f"s_or_b32 s{sMULTI}, s{sMULTI}, s{sMORE}")
    o(f"s_mov_b32 s{sWIN}, 0"); o(f"s_mov_b32 s{sINIT}, 1")
    o(f"s_mov_b32 s{sHM}, -1"); o(f"s_mov_b32 s{sHM+1}, 0")
    o(f"s_add_u32 s{sMET}, s{sME}, 4096"); o(f"s_xor_b32 s{sMET}, s{sMET}, s{sME}")
    if LEAD == 2: o(f"s_add_u32 s{sME}, s{sME}, 4096")
    o(f"s_lshl_b32 s{sSCR}, s2, 2"); o(f"s_add_u32 s{sSCR}, s{sSCR}, s{sWAVE}"); o(f"s_lshl_b32 s{sSCR}, s{sSCR}, 14"); o(f"s_add_u32 s{sSCR}, s{sSCR}, {WS_SCR:#x}")
    u = [f, f+1, f+2, f+3]
    o(f"v_and_b32 v{u[0]}, 0x33, v0"); o(f"v_bfe_u32 v{u[1]}, v0, 2, 1"); o(f"v_lshl_or_b32 v{u[0]}, v{u[1]}, 3, v{u[0]}")
    o(f"v_bfe_u32 v{u[1]}, v0, 3, 1"); o(f"v_lshl_or_b32 v{u[0]}, v{u[1]}, 2, v{u[0]}")
    o(f"v_add_u32 v{u[2]}, s{sBASE}, v{u[0]}"); o(f"s_lshl_b32 s{sT0}, s{sNT}, 8")
    o(f"v_lshrrev_b32 v{u[3]}, 1, v{vWF}"); o(f"v_add_u32 v{u[3]}, s{sT0}, v{u[3]}")
    o(f"ds_write_b32 v{u[3]}, v{u[2]} offset:{LIST}")
    o(f"v_and_b32 v{u[0]}, 31, v{u[0]}")
    o(f"v_bfe_u32 v{u[2]}, v0, 5, 1")
    o(f"v_lshl_add_u32 v{vSA}, v{u[0]}, 3, v{u[2]}"); o(f"v_add_u32 v{vSA}, {LIST+2}, v{vSA}")
    o(f"ds_read_u16 v{IX0}, v{vL1} offset:{NF*256}"); o(f"ds_read_u16 v{IX1}, v{vL1} offset:{NF*256+16}")
    o(f"ds_read_u8 v{vSV}, v{vSA}")
    o(f"v_bfe_u32 v{u[3]}, v0, 4, 1"); o(f"v_xor_b32 v{vEA}, v{u[3]}, v{u[2]}"); o(f"v_lshlrev_b32 v{vEA}, 4, v{vEA}")
    o(f"v_lshl_add_u32 v{vEA}, v{u[0]}, 5, v{vEA}"); o(f"v_add_u32 v{vEA}, {ER}, v{vEA}")
    o(f"v_add_u32 v{vMT}, 4096, v{vEA}"); o(f"v_xor_b32 v{vMT}, v{vMT}, v{vEA}")
    o(f"v_cmp_eq_u32 vcc, v{u[3]}, v{u[1]}")
    o(f"v_and_b32 v{u[0]}, 7, v0")
    o(f"v_lshlrev_b32 v{vAGG}, 6, v{u[0]}"); o(f"v_add_u32 v{f+11}, 4, v{u[0]}")
    o(f"v_cndmask_b32 v{u[0]}, 8, v{u[0]}, vcc")
    o(f"v_mul_u32_u24 v{vMA}, {ROW}, v{u[0]}"); o(f"v_lshl_add_u32 v{vMA}, v{u[2]}, 4, v{vMA}"); o(f"v_add_u32 v{vMA}, {MB}, v{vMA}")
    o(f"v_lshl_add_u32 v{vAGG}, v{u[1]}, 5, v{vAGG}")
    o(f"v_bfe_u32 v{u[0]}, v0, 4, 2"); o(f"v_lshl_add_u32 v{vAGG}, v{u[0]}, 3, v{vAGG}"); o(f"v_add_u32 v{vAGG}, s{sATW}, v{vAGG}")
    o(f"v_and_b32 v{f+10}, 0xe0, v0"); o(f"v_lshl_or_b32 v{f+10}, v{u[1]}, 4, v{f+10}"); o(f"v_lshl_or_b32 v{f+10}, v{u[3]}, 2, v{f+10}")
    o(f"v_lshrrev_b32 v{f+9}, 5, v0"); o(f"v_lshrrev_b32 v{f+9}, v{f+9}, s{sT1}")
    o(f"s_movk_i32 s{sT0}, {ROW}")
    o("s_waitcnt lgkmcnt(4)")
    for k in range(4):
        o(f"v_lshlrev_b32 v{f+2}, {29-8*k}, v{f+9}"); o(f"v_xor_b32 v{f+2}, v{f+2}, v{f+12+k}"); o(f"v_bfe_u32 v{f+2}, v{f+2}, 29, 1")
        o(f"v_bfe_u32 v{f}, v{f+12+k}, 26, 3"); o(f"v_mad_u32_u24 v{f}, v{f}, s{sT0}, v{f+10}"); o(f"v_lshl_add_u32 v{f}, v{f+2}, 3, v{f}")
        o(f"v_bfe_u32 v{f+1}, v{f+12+k}, 20, 1"); o(f"v_lshlrev_b32 v{f+1}, v{f+11}, v{f+1}")
        o(f"ds_or_b32 v{f}, v{f+1} offset:{MB+k*256}")
    o(f"v_add_u32 v{vL1}, {(NF+1)*256}, v{vL1}"); o(f"v_add_u32 v{vL2}, {0x800 if LEAD == 3 else 0x400}, v{vL2}")
    o(f"v_add_u32 v{vATA}, s{sATW}, v{vWF}")
    o(f"v_mov_b32 v{MQ+4}, 0"); o(f"v_mov_b32 v{MQ+5}, 0")
    o(f"ds_read_b128 {vr(AF,4)}, v{vATA}")
    xstamp("dense_done")
    o(f"s_waitcnt vmcnt({2*LEAD + (LEAD == 3)})"); xstamp("t0_landed"); o("s_barrier")
    o(f"ds_read_b128 {vr(EF,4)}, v{vEA}")
    for s in range(8): o(f"ds_read_b128 {vr(XF+4*s,4)}, v{vXA} offset:{16*s}")
    o(m0x((LEAD + 1) % 4, 0))
    o("s_setprio 2")
    stamp(6); stamp(8, "s_memtime")
    o("s_branch EVR0")
    lab("TOOBIG")
    o(f"s_mov_b32 s{sLIM}, {LOWLIM}"); o(f"v_mov_b32 v{a}, 0")
    o("s_waitcnt lgkmcnt(0)"); o("s_barrier")
    o(f"ds_write_b32 v{b_}, v{a} offset:{CNT}")
    o("s_waitcnt lgkmcnt(0)"); o("s_barrier")
    o("s_branch REMASK")
    emit_loop()
    lab("LOOP_EXIT")
    x = EF
    o(f"v_add_u32 v{vSV}, s{sS0}, v{vXR}"); o(f"v_add_u32 v{vSA}, s{sS1}, v{vXR}")
    o(f"v_and_b32 v{IX0}, 31, v0"); o(f"v_and_b32 v{IX0+1}, 0xe0, v0")
    o(f"v_lshlrev_b32 v{vMA}, 6, v{IX0}"); o(f"v_and_b32 v{vL1}, 32, v0"); o(f"v_add3_u32 v{vMA}, v{vMA}, v{vL1}, s{sATW}")
    o(f"s_cmp_lg_u32 s{sMULTI}, 0"); o("s_nop 0")
    finalize("FIN")
    o(f"s_cmp_lg_u32 s{sMORE}, 0"); o("s_cbranch_scc1 NEXTROUND")
    g = T0
    for mt in range(2):
        for k in range(2): o(f"ds_read_b128 {vr(g+8*mt+4*k,4)}, v{vMA} offset:{mt*2048+16*k}")
    for mt in range(2):
        for k in range(2): o(f"ds_read_b128 {vr(x+8*mt+4*k,4)}, v{vSA if mt else vSV} offset:{16*k}")
    o(f"s_mov_b32 s{sT1}, 0xffff0000")
    o(f"v_cmp_gt_u32 vcc, {RN-32}, v{IX0}"); o(f"v_add_u32 v{IX0}, s{sBASE}, v{IX0}")
    for mt in range(2):
        o(f"s_waitcnt lgkmcnt({6-2*mt})")
        for k in range(8):
            o(f"v_lshlrev_b32 v{GV+16*mt+2*k}, 16, v{g+8*mt+k}"); o(f"v_and_b32 v{GV+16*mt+2*k+1}, s{sT1}, v{g+8*mt+k}")
    o("s_waitcnt vmcnt(0) lgkmcnt(0)")
    unp = []
    for mt in range(2):
        for k in range(8): unp += [f"v_lshlrev_b32 v{GV+32+16*mt+2*k}, 16, v{x+8*mt+k}", f"v_and_b32 v{GV+32+16*mt+2*k+1}, s{sT1}, v{x+8*mt+k}"]
    def post(mt):
        r = []
        for k in range(8):
            z = GV + 16*mt + 2*k
            r += [f"v_max_f32 v{z}, 0, v{z}", f"v_max_f32 v{z+1}, 0, v{z+1}", f"v_add_f32 v{z}, v{z}, v{z+32}", f"v_add_f32 v{z+1}, v{z+1}, v{z+33}",
                  f"v_cvt_pk_bf16_f32 v{g+8*mt+k}, v{z}, v{z+1}"]
        return r
    def st(mt): return [f"buffer_store_dwordx4 {vr(g+8*mt+4*k,4)}, {vr(IX0,2)}, s[{sO}:{sO+3}], 0 idxen offen offset:{16*k} {OPT.get('outpol', '').replace('+', ' ')}" for k in range(2)]
    fill = unp[:20];
    for s in range(8):
        o(m32(GV, WB+4*s, XF+4*s, GV))
        for _ in range(3):
            if fill: o(fill.pop(0))
    fill = unp[20:] + post(0)
    for s in range(8):
        o(m32(GV+16, WB+4*s, WV+4*s, GV+16))
        for _ in range(6 if s < 7 else 99):
            if fill: o(fill.pop(0))
    for x_ in st(0): o(x_)
    o("s_mov_b64 exec, vcc"); o(f"v_add_u32 v{IX0}, 32, v{IX0}")
    for x_ in post(1) + st(1): o(x_)
    stamp_out(9, GV, sW, 1)
    lab("K2_END")
    o("s_endpgm")
    lab("NEXTROUND")
    for i in range(4):
        o(f"v_lshrrev_b32 v{vSV}, 19, v{SEG+i}"); o(f"v_min_u32 v{vSV}, s{sLIM}, v{vSV}")
        o(f"v_add_u32 v{SEG+i}, v{SEG+i}, v{vSV}"); o(f"v_lshlrev_b32 v{vSV}, 19, v{vSV}"); o(f"v_sub_u32 v{SEG+i}, v{SEG+i}, v{vSV}")
    o(f"v_mov_b32 v{IX0+1}, v{IX1+1}")
    o(f"s_mov_b32 s{sFIRST}, 0"); o(f"s_mov_b32 s{sLIM}, 16")
    o("s_waitcnt vmcnt(0) lgkmcnt(0)")
    o("s_barrier")
    o("s_branch ROUND")
    multi_code()

def kd(name, nv, ns):
    L.append(".p2align 6")
    L.append(f".amdhsa_kernel {name}")
    for k, v in (("next_free_vgpr", nv), ("next_free_sgpr", ns), ("accum_offset", (nv + 3) // 4 * 4), ("group_segment_fixed_size", 0),
                 ("kernarg_size", 96), ("user_sgpr_count", 2), ("user_sgpr_kernarg_segment_ptr", 1), ("system_sgpr_workgroup_id_x", 1),
                 ("float_denorm_mode_32", 3)):
        L.append(f"  .amdhsa_{k} {v}")
    L.append(".end_amdhsa_kernel")

hdr = [l for l in open(f"cdna_kernels/{NAME}.s.ref").read().splitlines() if l.startswith(";") and "@launch" not in l
       and "Override launch" not in l and "grid=ceil" not in l]
L += hdr
L.append(f"; @launch kernel=gsort_kernel grid=({K1_GRID},1,1) block=(512,1,1) lds={K1_LDS}")
L.append(f"; @launch kernel=gmain_kernel grid=(512,1,1) block=(256,1,1) lds={OPT.get('lds', K2_LDS)}")
L.append('.amdgcn_target "amdgcn-amd-amdhsa--gfx950"'); L.append(".text")
gen_k1(); gen_k2()
L.append('.section .rodata,"a"')
kd("gsort_kernel", 64 if STAMP else 52, 102 if STAMP else 40); kd("gmain_kernel", 256 if STAMP else NVGPR, 102 if STAMP else 96)
if STAMP: L.append("; STAMPS " + repr(NAMES))
open(sys.argv[1], "w").write("\n".join(L) + "\n")
print("vgprs", NVGPR, "lds", K2_LDS, "lines", len(L), file=sys.stderr)
```

```python
import sys, struct, re

N = 25000; E = 400000; RN = 49; NR = 511; CH = 1600; NCH = 250
WS_REC = 0; WS_OFF = 0x310000; OROW = 1152; WS_WF = 0x3c0000; WS_SCR = 0x1000000; WS_SIZE = 0x4000000
WF_B = 0; WF_V = 0x8000; WF_A = 0x10000; WF_U = 0x18000; WF_C = 0x20000
NLOG2E = struct.unpack('<I', struct.pack('<f', -1.4426950408889634))[0]
EPS = struct.unpack('<I', struct.pack('<f', 1e-6))[0]
NAME = "standalone__edge_featured_mpnn_gatedgcn__graph"
OPT = dict(a.split('=') for a in sys.argv[2:]) if len(sys.argv) > 2 else {}
STAMP = int(OPT.get('stamp', 0))
WS_STAMP = 0x3800000
L = []
def o(s): L.append("    " + s)
def lab(s): L.append(s + ":")
def vr(b, n): return f"v[{b}:{b+n-1}]"
VST = [60]
NAMES = {}
def stamp(i, ins="s_memrealtime", name=None):
    if STAMP:
        o(f"{ins} s[100:101]"); o("s_waitcnt lgkmcnt(0)"); o(f"v_writelane_b32 v{VST[0]}, s100, {i}")
def xstamp(name):
    if STAMP:
        NAMES[name] = 16 + len(NAMES); stamp(NAMES[name])
def stamp_out(n, reg, srdn, kern):
    if not STAMP: return
    o("s_mov_b64 exec, -1")
    stamp(n)
    o(f"v_lshlrev_b32 v{reg}, 2, v0")
    o(f"s_lshl_b32 s63, s2, 11"); o(f"s_add_u32 s63, s63, {WS_STAMP + kern*0x100000:#x}")
    o(f"buffer_store_dword v{VST[0]}, v{reg}, s[{srdn}:{srdn+3}], s63 offen")
def srd(d, lo, size, stride=0):
    o(f"s_mov_b32 s{d}, s{lo}"); o(f"s_and_b32 s{d+1}, s{lo+1}, 0xffff")
    if stride: o(f"s_or_b32 s{d+1}, s{d+1}, {stride << 16:#x}")
    o(f"s_mov_b32 s{d+2}, {size:#x}"); o(f"s_mov_b32 s{d+3}, 0x20000")
def scan64(v):
    for d in ("row_shr:1", "row_shr:2", "row_shr:4", "row_shr:8"):
        o("s_nop 1"); o(f"v_add_u32_dpp v{v}, v{v}, v{v} {d} row_mask:0xf bank_mask:0xf bound_ctrl:0")
    o("s_nop 1"); o(f"v_add_u32_dpp v{v}, v{v}, v{v} row_bcast:15 row_mask:0xa bank_mask:0xf")
    o("s_nop 1"); o(f"v_add_u32_dpp v{v}, v{v}, v{v} row_bcast:31 row_mask:0xc bank_mask:0xf")

K1_GRID = NCH + 17
K1_LDS = 4096 + CH * 8
def gen_k1():
    L.append(".globl gsort_kernel"); L.append(".p2align 8"); L.append(".type gsort_kernel,@function")
    lab("gsort_kernel")
    stamp(0)
    o("s_load_dwordx2 s[12:13], s[0:1], 88")
    o("s_load_dwordx4 s[4:7], s[0:1], 16")
    PFX = int(OPT.get('pfx', 0)); PFE = int(OPT.get('pfe', 0))
    if PFX or PFE: o("s_load_dwordx4 s[40:43], s[0:1], 0")
    o(f"s_cmp_ge_u32 s2, {K1_GRID}"); o("s_cbranch_scc1 K1_END")
    o("s_and_b32 s35, s2, 7"); o("s_lshl_b32 s35, s35, 5"); o("s_lshr_b32 s36, s2, 3"); o("s_add_u32 s35, s35, s36")
    o("s_lshl_b32 s35, s35, 2"); o(f"s_add_u32 s35, s35, {WS_OFF:#x}"); o(f"v_mul_u32_u24 v41, {OROW}, v0")
    o(f"s_cmp_ge_u32 s2, {NCH}"); o("s_cbranch_scc1 K1_PREP")
    o("v_lshlrev_b32 v1, 2, v0"); o("v_mov_b32 v2, 0")
    o("ds_write_b32 v1, v2")
    o(f"s_mul_i32 s3, s2, {CH*4}")
    o(f"v_cmp_gt_u32 vcc, {CH//4}, v0")
    o("v_lshlrev_b32 v40, 4, v0")
    o("s_waitcnt lgkmcnt(0)")
    srd(20, 6, E*4); srd(16, 4, E*4)
    o("s_and_saveexec_b64 s[28:29], vcc"); o("s_mov_b64 s[28:29], exec"); o("s_cbranch_execz K1_A")
    o("buffer_load_dwordx4 v[4:7], v40, s[20:23], s3 offen")
    o("buffer_load_dwordx4 v[8:11], v40, s[16:19], s3 offen")
    lab("K1_A")
    o("s_mov_b64 exec, -1")
    if PFX:
        srd(44, 40, N*256); o("v_lshlrev_b32 v42, 7, v0"); o("s_mul_i32 s37, s2, 25600"); o("v_add_u32 v42, s37, v42")
        o("v_cmp_gt_u32 vcc, 200, v0"); o("v_mov_b32 v43, 0x7ffffff0"); o("s_nop 0"); o("v_cndmask_b32 v42, v43, v42, vcc")
        o("buffer_load_dword v43, v42, s[44:47], 0 offen")
    if PFE:
        srd(48, 42, E*32); o("v_lshlrev_b32 v52, 7, v0"); o("s_mul_i32 s37, s2, 51200"); o("v_add_u32 v52, s37, v52")
        o(f"v_cmp_gt_u32 vcc, {PFE}, v0"); o("v_mov_b32 v53, 0x7ffffff0"); o("s_nop 0"); o("v_cndmask_b32 v52, v53, v52, vcc")
        o("buffer_load_dword v53, v52, s[48:51], 0 offen")
    srd(24, 12, WS_SIZE)
    o(f"s_mul_i32 s14, s2, {CH}"); o("s_or_b32 s14, s14, 0x100000")
    o("v_add_u32 v3, s14, v1"); o("v_mov_b32 v2, 1"); o(f"s_mov_b32 s15, {-RN}")
    o("v_and_b32 v20, 63, v0"); o("v_lshlrev_b32 v20, 5, v20")
    o("s_lshl_b32 s31, s3, 1"); o("s_lshr_b32 s34, s3, 2")
    o("s_barrier")
    o("s_mov_b64 exec, s[28:29]"); o("s_cbranch_execz K1_B")
    NPF = (PFX > 0) + (PFE > 0)
    o(f"s_waitcnt vmcnt({1+NPF})"); stamp(1)
    for i in range(4):
        o(f"v_mul_u32_u24 v{12+i}, 21400, v{4+i}")
        o(f"v_lshrrev_b32 v{12+i}, 20, v{12+i}")
        o(f"v_mad_i32_i24 v{4+i}, v{12+i}, s15, v{4+i}")
        o(f"v_lshlrev_b32 v{12+i}, 2, v{12+i}")
        o(f"ds_add_rtn_u32 v{16+i}, v{12+i}, v2")
    o(f"s_waitcnt vmcnt({NPF})")
    for i in range(4):
        o(f"v_and_or_b32 v22, v{4+i}, 8, 20"); o(f"v_and_b32 v23, 7, v{4+i}"); o("v_add_u32 v23, 1, v23")
        o(f"v_lshl_or_b32 v{44+2*i}, v23, v22, v{8+i}")
        o(f"v_lshl_add_u32 v{45+2*i}, v{4+i}, 26, v3")
        if i < 3: o("v_add_u32 v3, 1, v3")
    lab("K1_B")
    o("s_mov_b64 exec, -1")
    o("s_waitcnt lgkmcnt(0)"); o("s_barrier")
    o("ds_read_b128 v[24:27], v20"); o("ds_read_b128 v[28:31], v20 offset:16")
    o("s_waitcnt lgkmcnt(0)")
    o("v_mov_b32 v33, v24")
    for j in range(2, 8): o(f"v_add_u32 v{32+j}, v{31+j}, v{23+j}")
    o("v_add_u32 v21, v39, v31"); o("v_mov_b32 v22, v21")
    scan64(21)
    o("v_sub_u32 v32, v21, v22")
    for j in range(1, 8): o(f"v_add_u32 v{32+j}, v32, v{32+j}")
    o("ds_write_b128 v20, v[32:35] offset:2048"); o("ds_write_b128 v20, v[36:39] offset:2064")
    o("ds_read2st64_b32 v[24:25], v1 offset0:0 offset1:8")
    o("s_mov_b64 exec, s[28:29]")
    for i in range(4): o(f"ds_read_b32 v{4+i}, v{12+i} offset:2048")
    for i in range(4):
        o(f"s_waitcnt lgkmcnt(3)")
        o(f"v_add_lshl_u32 v{4+i}, v{4+i}, v{16+i}, 3"); o(f"ds_write_b64 v{4+i}, v[{44+2*i}:{45+2*i}] offset:4096")
    o("s_mov_b64 exec, -1")
    lab("K1_D")
    o(f"v_cmp_gt_u32 vcc, {CH//2-512}, v0")
    o("s_waitcnt lgkmcnt(0)"); o("s_barrier")
    o("ds_read_b128 v[4:7], v40 offset:4096"); o("ds_read_b128 v[8:11], v40 offset:12288")
    o("v_lshl_add_u32 v24, v24, 19, v25"); o("v_add_u32 v24, s34, v24")
    o("buffer_store_dword v24, v41, s[24:27], s35 offen")
    o("s_add_u32 s30, s31, 8192")
    o("s_waitcnt lgkmcnt(1)")
    o("buffer_store_dwordx4 v[4:7], v40, s[24:27], s31 offen " + OPT.get('recpol', '').replace('+', ' '))
    o("s_and_saveexec_b64 s[28:29], vcc"); o("s_cbranch_execz K1_E")
    o("s_waitcnt lgkmcnt(0)")
    o("buffer_store_dwordx4 v[8:11], v40, s[24:27], s30 offen " + OPT.get('recpol', '').replace('+', ' '))
    lab("K1_E")
    stamp_out(2, 12, 24, 0)
    o("s_endpgm")
    lab("K1_PREP")
    o(f"s_sub_u32 s3, s2, {NCH}"); o("s_lshr_b32 s14, s3, 2")
    o("s_load_dwordx4 s[16:19], s[0:1], 32")
    o("s_load_dwordx4 s[20:23], s[0:1], 48")
    o("s_load_dwordx2 s[32:33], s[0:1], 64")
    o("v_and_b32 v1, 31, v0"); o("v_bfe_u32 v2, v0, 5, 1"); o("v_lshrrev_b32 v3, 6, v0")
    o("s_waitcnt lgkmcnt(0)")
    o("s_bitcmp1_b32 s14, 0"); o(f"s_cselect_b32 s15, 1.0, {NLOG2E:#x}")
    o("s_cmp_eq_u32 s14, 0"); o("s_cselect_b32 s32, s18, s32"); o("s_cselect_b32 s33, s19, s33")
    o("s_cmp_eq_u32 s14, 2"); o("s_cselect_b32 s32, s16, s32"); o("s_cselect_b32 s33, s17, s33")
    o("s_cmp_eq_u32 s14, 3"); o("s_cselect_b32 s32, s22, s32"); o("s_cselect_b32 s33, s23, s33")
    o("s_cbranch_scc0 K1_NOPERM")
    o("v_and_b32 v4, 3, v1"); o("v_lshrrev_b32 v5, 3, v1"); o("v_lshl_or_b32 v4, v5, 2, v4")
    o("v_bfe_u32 v5, v1, 2, 1"); o("v_lshl_or_b32 v1, v5, 4, v4")
    lab("K1_NOPERM")
    o("s_mov_b32 s10, 32768")
    o("s_cmp_eq_u32 s14, 4"); o("s_cselect_b32 s32, s20, s32"); o("s_cselect_b32 s33, s21, s33")
    o("s_cselect_b32 s10, 4096, s10")
    o("s_mov_b32 s8, s32"); o("s_and_b32 s9, s33, 0xffff"); o("s_mov_b32 s11, 0x20000")
    srd(24, 12, WS_SIZE)
    o("s_cmp_ge_u32 s2, 256"); o("s_cbranch_scc1 K1_NOZ")
    o("v_mov_b32 v6, 0"); o("buffer_store_dword v6, v41, s[24:27], s35 offen")
    lab("K1_NOZ")
    o("s_cmp_eq_u32 s14, 4"); o("s_cbranch_scc1 K1_PC")
    o("s_and_b32 s30, s3, 3"); o("s_lshl_b32 s30, s30, 6")
    o("v_lshlrev_b32 v4, 14, v2"); o("v_lshl_add_u32 v4, v3, 11, v4"); o("v_lshl_add_u32 v4, v1, 1, v4")
    o("v_add_u32 v4, s30, v4")
    o("s_branch K1_PL")
    lab("K1_PC")
    o("v_cmp_gt_u32 vcc, 256, v0")
    o("v_lshlrev_b32 v4, 11, v2"); o("v_lshl_add_u32 v4, v3, 6, v4"); o("v_lshl_add_u32 v4, v1, 1, v4")
    o("s_and_saveexec_b64 s[28:29], vcc"); o("s_cbranch_execz K1_END")
    lab("K1_PL")
    for j in range(8): o(f"buffer_load_ushort v{8+j}, v4, s[8:11], 0 offen offset:{j*256}")
    o("s_lshl_b32 s30, s3, 13"); o(f"s_add_u32 s30, s30, {WS_WF:#x}")
    o("v_lshlrev_b32 v5, 4, v0")
    o("s_waitcnt vmcnt(0)")
    for j in range(8):
        o(f"v_lshlrev_b32 v{8+j}, 16, v{8+j}"); o(f"v_mul_f32 v{8+j}, s15, v{8+j}")
    for j in range(4): o(f"v_cvt_pk_bf16_f32 v{16+j}, v{8+2*j}, v{9+2*j}")
    o("buffer_store_dwordx4 v[16:19], v5, s[24:27], s30 offen")
    lab("K1_END")
    o("s_endpgm")

CAPT = 30; MINW = 64; LOWLIM = 2
LEAD = int(OPT.get('lead', 2))
LUT = 0; MLUT = 4096; NB = 4352; LIST = 4608; LIST_SZ = 8192
MB = LIST + LIST_SZ; ROW = 1040; CNT = MB + 9 * ROW; ZSZ = 9 * ROW + 256
AT = CNT + 256; ER = AT + 16384; RING = ER + 8192; SLOT = 8320; K2_LDS = RING + 4 * SLOT
assert K2_LDS <= 81920 and ER % 16 == 0 and CNT % 16 == 0 and NCH * LOWLIM + 6 * MINW <= CAPT * 32

class RA:
    def __init__(s): s.n = 1
    def get(s, k=1, al=1):
        s.n = (s.n + al - 1) // al * al
        b = s.n; s.n += k; return b
R = RA()
vXA = R.get()
IX0 = R.get(2, 2); IX1 = R.get(2, 2); IXE = R.get(2, 2)
(vEA, vATA, vSA, vMA, vL1, vL2, vAGG, vSV, vMT, vWF, vXR) = [R.get() for _ in range(11)]
SEG = R.get(4, 4); PT = R.get(4, 4)
WB = R.get(32, 4); WV = R.get(32, 4); WC = R.get(4, 4)
GV = R.get(64, 4)
XF = R.get(32, 4)
EF = R.get(4, 4); SF = R.get(4, 4); AF = R.get(4, 4); MQ = R.get(8, 4); T0 = R.get(8, 4); ACC = R.get(8, 4)
T1 = R.get(8, 4); TMP = R.get(8, 4)
NVGPR = R.n
assert NVGPR <= 255, NVGPR
REC = EF; RANK = T1
sX, sE, sW, sO = 8, 12, 16, 20
sWAVE, sBASE, sMX, sME, sWIN, sNT, sINIT, sLIM, sFIRST, sMORE, sMULTI, sT0, sT1, sEPS, sSCR, sMET = range(24, 40)
sC, sEV, sHM, sSV, sRET, sWF, sATW, sS0, sS1 = 40, 41, 42, 44, 46, 52, 53, 54, 55
sK = 56
EB = 3 if LEAD == 3 else 1

def m32(d, a, b, c): return f"v_mfma_f32_32x32x16_bf16 {vr(d,16)}, {vr(a,4)}, {vr(b,4)}, " + ("0" if c is None else vr(c,16))
def m16(d, a, b, c): return f"v_mfma_f32_16x16x32_bf16 {vr(d,4)}, {vr(a,4)}, {vr(b,4)}, " + ("0" if c is None else vr(c,4))
def m0x(slot, a): return f"s_add_u32 m0, s{sMX}, {slot*SLOT + a*1040}"
def ldx(pair): return f"buffer_load_dwordx4 {vr(pair,2)}, s[{sX}:{sX+3}], 0 idxen offen lds"
def lde(pair): return f"buffer_load_dwordx4 {vr(pair,2)}, s[{sE}:{sE+3}], 0 idxen offen lds"
def wload(dst, off, n):
    for s in range(n):
        if s % 4 == 0: o(f"s_add_u32 s{sT0}, s{sWF}, {off + s*1024:#x}")
        o(f"buffer_load_dwordx4 {vr(dst+4*s,4)}, v{vWF}, s[{sW}:{sW+3}], s{sT0} offen offset:{(s%4)*1024}")

def wlist():
    r = []
    for dst, off in ((XF, WF_A), (WB, WF_B), (WV, WF_V)):
        for s in range(8):
            r.append(f"buffer_load_dwordx4 {vr(dst+4*s,4)}, v{vWF}, s[{sW}:{sW+3}], s{88 + (off >> 14) + s // 4} offen offset:{(s%4)*1024}")
    r.append(f"buffer_load_dwordx4 {vr(WC,4)}, v{vWF}, s[{sW}:{sW+3}], s94 offen")
    return r
def sprinkle(start, loads, every):
    body = L[start:]; del L[start:]
    full = True; skip = False; n = 0
    for ln in body:
        L.append(ln)
        t = ln.strip()
        if t.startswith("s_mov_b64 exec"): full = t.endswith("-1")
        if t.startswith("s_cbranch_scc1 P1_DONE") or t.startswith("s_cbranch_scc1 P2_DONE") or t.startswith("s_cbranch_scc1 NOXF"): skip = True
        if t in ("P1_DONE:", "P2_DONE:"): skip = False; full = False
        if t == "XFD:": skip = False
        n += 1
        if loads and full and not skip and n >= every and not t.endswith(':') and not t.startswith("s_cmp") :
            o(loads.pop(0)); n = 0
    for x in loads: o(x)
FINS = []
def finalize(tag):
    T = TMP
    o(f"s_cbranch_scc1 {tag}_M"); FINS.append(tag)
    lab(f"{tag}_B")
    for r in range(4): o(f"v_add_f32 v{T+r}, s{sEPS}, v{ACC+r}")
    for r in range(4): o(f"v_rcp_f32 v{T+r}, v{T+r}")
    o("s_nop 0")
    for r in range(4): o(f"v_mul_f32 v{T+r}, v{T+r}, v{ACC+4+r}")
    o(f"v_cvt_pk_bf16_f32 v{T}, v{T}, v{T+1}"); o(f"v_cvt_pk_bf16_f32 v{T+1}, v{T+2}, v{T+3}")
    o("s_waitcnt lgkmcnt(0)")
    o(f"ds_write_b64 v{vAGG}, {vr(T,2)}")
    o(f"v_add_u32 v{vAGG}, 512, v{vAGG}")
    lab(f"{tag}_C")
def multi_code():
    T = TMP
    for tag in FINS:
        lab(f"{tag}_M")
        o(f"s_getpc_b64 s[{sRET}:{sRET+1}]"); o("s_branch MULTI")
        o(f"s_cbranch_scc1 {tag}_B"); o(f"s_branch {tag}_C")
    lab("MULTI")
    o(f"s_add_u32 s{sRET}, s{sRET}, 4"); o(f"s_addc_u32 s{sRET+1}, s{sRET+1}, 0")
    o("s_nop 7")
    o(f"s_cmp_eq_u32 s{sFIRST}, 1"); o(f"s_cbranch_scc1 MULTI_A")
    o(f"v_lshlrev_b32 v{T}, 1, v{vWF}")
    o(f"buffer_load_dwordx4 {vr(T+4,4)}, v{T}, s[{sW}:{sW+3}], s{sSCR} offen offset:16")
    o(f"buffer_load_dwordx4 {vr(T,4)}, v{T}, s[{sW}:{sW+3}], s{sSCR} offen")
    o("s_waitcnt vmcnt(0)")
    for r in range(8): o(f"v_add_f32 v{ACC+r}, v{ACC+r}, v{T+r}")
    lab("MULTI_A")
    o(f"s_cmp_eq_u32 s{sMORE}, 0"); o(f"s_cbranch_scc1 MULTI_R")
    o(f"v_lshlrev_b32 v{T}, 1, v{vWF}")
    o(f"buffer_store_dwordx4 {vr(ACC,4)}, v{T}, s[{sW}:{sW+3}], s{sSCR} offen")
    o(f"buffer_store_dwordx4 {vr(ACC+4,4)}, v{T}, s[{sW}:{sW+3}], s{sSCR} offen offset:16")
    o("s_waitcnt vmcnt(0) lgkmcnt(0)")
    lab("MULTI_R")
    o(f"s_add_u32 s{sSCR}, s{sSCR}, 2048")
    o(f"s_cmp_eq_u32 s{sMORE}, 0")
    o(f"s_setpc_b64 s[{sRET}:{sRET+1}]")

def close_window(tag, P, mq):
    o(f"ds_read_b128 {vr(T1,4)}, v{mq+2}"); o(f"ds_read_b128 {vr(T1+4,4)}, v{mq+3}")
    o(f"s_mov_b64 exec, s[{sHM}:{sHM+1}]")
    o(f"v_add_u32 v{vATA}, 0x400, v{vATA}")
    o("s_mov_b64 exec, -1")
    o(f"s_not_b64 s[{sHM}:{sHM+1}], s[{sHM}:{sHM+1}]")
    o(f"s_cmp_lg_u32 s{sMULTI}, 0")
    finalize(tag)
    o(m16(ACC, P, T1, None)); o(f"ds_read_b128 {vr(AF,4)}, v{vATA}")
    o(m16(ACC+4, P+16, T1, None)); o(f"s_add_u32 s{sWIN}, s{sWIN}, 1")
    o(m16(ACC, P+4, T1+4, ACC)); o(f"s_cmp_ge_u32 s{sWIN}, {PRIO[0]}")
    o(m16(ACC+4, P+20, T1+4, ACC+4))

def vstream(Gc, Vc):
    A = []
    for p in range(0, 22, 2):
        if p < 16: A += [(f"v_exp_f32 v{Gc+p}, v{Gc+p}", 8), (f"v_exp_f32 v{Gc+p+1}, v{Gc+p+1}", 8)]
        q = p - 2
        if 0 <= q < 16:
            A += [(f"v_add_f32 v{Gc+q}, 1.0, v{Gc+q}", 4), (f"v_add_f32 v{Gc+q+1}, 1.0, v{Gc+q+1}", 4),
                  (f"v_rcp_f32 v{Gc+q}, v{Gc+q}", 8), (f"v_rcp_f32 v{Gc+q+1}, v{Gc+q+1}", 8)]
        q = p - 4
        if 0 <= q < 16: A += [(f"v_mul_f32 v{Vc+q}, v{Gc+q}, v{Vc+q}", 4), (f"v_mul_f32 v{Vc+q+1}, v{Gc+q+1}, v{Vc+q+1}", 4)]
        q = p - 6
        if 0 <= q < 16: A += [(f"v_cvt_pk_bf16_f32 v{Gc+q//2}, v{Gc+q}, v{Gc+q+1}", 4), (f"v_cvt_pk_bf16_f32 v{Vc+q//2}, v{Vc+q}, v{Vc+q+1}", 4)]
    return A

def vm_wait(b):
    n = 2 * (LEAD - 1) + sum(1 for k in range(1, LEAD + 1) if (b - k) % 4 == EB)
    if b == 3 and LEAD == 2: n = 2
    return n
NHEAD = 4

def body(b):
    Gn = GV + 32 * (b % 2); Vn = Gn + 16
    Gc = GV + 32 * ((b + 1) % 2); Vc = Gc + 16
    mqn = MQ + 4 * (b % 2); mqc = MQ + 4 * ((b + 1) % 2)
    so = ((b + 1) % 4) * SLOT
    ds = (b + LEAD + 1) % 4
    def xr(s): return f"ds_read_b128 {vr(XF+4*s,4)}, v{vXA} offset:{so+16*s}"
    def G(s): return m32(Gn, XF+4*s, WB+4*s, Gn)
    def V(s): return m32(Vn, XF+4*s, WV+4*s, None if s == 0 else Vn)
    e = b == EB; pe = b == (EB - 1) % 4
    seq = []
    seq.append([m16(ACC, Gn, T0, ACC), 16, [m0x(ds, 0)], [], []])
    seq.append([m16(ACC+4, Vn, T0, ACC+4), 16, [], [], []])
    seq.append([m16(ACC, Gn+4, T0+4, ACC), 16, [f"s_bitcmp1_b32 s{sEV}, {b}"], [], []])
    seq.append([m16(ACC+4, Vn+4, T0+4, ACC+4), 16, [],
                [f"s_cbranch_scc1 EV{b}", f"EVR{b}:", f"s_waitcnt vmcnt({vm_wait(b)}) lgkmcnt(0)"] + ([] if OPT.get('nobar') else ["s_barrier"]), []])
    seq.append([m32(Gn, EF, WC, None), 32, [ldx(IX0)], [], [f"v_xor_b32 v{vEA}, v{vEA}, v{vMT}"] if b == 3 else []])
    seq.append([G(0), 32, [f"ds_read_b128 {vr(EF,4)}, v{vEA} offset:{((b+1)%4)*1024}"], [m0x(ds, 1)], []])
    seq.append([V(0), 32, [xr(0)], [], []])
    seq.append([G(1), 32, [ldx(IX1)], [], [f"v_and_b32 v{IXE}, 0x7ffff, v{IXE}"] if e else []])
    seq.append([V(1), 32, [xr(1)], [f"s_mov_b32 m0, s{sME}"] if e else [], []])
    seq.append([G(2), 32, [f"ds_read_b128 {vr(T0,4)}, v{mqc}"], [lde(IXE)] if e else [], []])
    seq.append([V(2), 32, [xr(2)], [f"s_xor_b32 s{sME}, s{sME}, s{sMET}"] if e else [], []])
    seq.append([G(3), 32, [f"ds_read_b128 {vr(T0+4,4)}, v{mqc+1}"], [], []])
    seq.append([V(3), 32, [xr(3)], [], []])
    seq.append([G(4), 32, [f"ds_read_b128 {vr(SF,4)}, v{vSV} offset:{MLUT}"], [], []])
    seq.append([V(4), 32, [xr(4)], [], []])
    seq.append([G(5), 32, [f"ds_read_b128 {vr(mqn,4)}, v{vMA} offset:{b*32}"], [], []])
    seq.append([V(5), 32, [xr(5)], [], []])
    seq.append([G(6), 32, [f"ds_read_u8 v{vSV}, v{vSA} offset:{(b+1)*256}"], [f"ds_read_b32 v{IXE}, v{vL2}"] if pe else [], []])
    seq.append([G(7), 32, [f"ds_read_u16 v{IX0}, v{vL1} offset:{b*256}"], [f"s_waitcnt lgkmcnt({6 if pe else 5})"], []])
    seq.append([m32(Gn, SF, AF, Gn), 32, [f"ds_read_u16 v{IX1}, v{vL1} offset:{b*256+16}"], [], []])
    seq.append([V(6), 32, [xr(6)], [f"s_lshr_b64 s[{sC}:{sC+1}], s[{sC}:{sC+1}], 4"] if b == 3 else [],
                ([f"v_add_u32 v{r}, 0x400, v{r}" for r in (vSA, vL1, vL2)] + [f"v_add_u32 v{vMA}, 128, v{vMA}"]) if b == 3 else []])
    seq.append([V(7), 32, [xr(7)], [], []])
    A = vstream(Gc, Vc)
    room = [cyc - 8 - 4 * len(xv) for (_, cyc, _, _, xv) in seq]
    tot = sum(c for _, c in A); scale = tot / sum(room)
    out = []; ai = 0; acc = 0; budget = 0
    for i, ((m, cyc, ex, tr, xv), rm) in enumerate(zip(seq, room)):
        out.append(m); out += ex; out += xv
        budget += rm * scale
        while ai < len(A) and acc + A[ai][1] / 2 <= budget + 0.01:
            out.append(A[ai][0]); acc += A[ai][1]; ai += 1
        if i == 3: assert ai == NHEAD
        out += tr
    assert ai == len(A)
    if OPT.get('nodma'): out = [x for x in out if 'buffer_load' not in x]
    return out

def regs_of(tok):
    m = re.fullmatch(r"v\[(\d+):(\d+)\]", tok)
    if m: return set(range(int(m.group(1)), int(m.group(2)) + 1))
    m = re.fullmatch(r"v(\d+)", tok)
    return {int(m.group(1))} if m else set()
def check_hazards(ins):
    P = []
    for s in ins:
        if s.endswith(':'): continue
        op, _, rest = s.partition(' ')
        t = [x.strip() for x in rest.split(',')]
        t = [x.split(' ')[0] for x in t]
        if op.startswith('v_mfma'):
            P.append(('m', 12 if '32x32' in op else 8, regs_of(t[0]), regs_of(t[1]) | regs_of(t[2]), regs_of(t[3]), s))
        elif op.startswith('v_'):
            P.append(('t' if op in ('v_exp_f32', 'v_rcp_f32') else 'v', 0, regs_of(t[0]), set().union(*map(regs_of, t[1:])), set(), s))
        elif op.startswith('ds_read'):
            P.append(('d', 0, regs_of(t[0]), regs_of(t[1]), set(), s))
        elif op.startswith('buffer'):
            P.append(('d', 0, set(), regs_of(t[0]), set(), s))
        else: P.append(('s', 0, set(), set(), set(), s))
    n = len(P)
    for i, (k, w, d, ab, c, s) in enumerate(P):
        for j in range(1, 13):
            k2, w2, d2, ab2, c2, s2 = P[(i + j) % n]
            gap = j - 1
            if k == 'm':
                if k2 == 'm':
                    assert not (gap < w and d & ab2), (s, s2)
                    if d & c2 and d != c2: assert gap >= w - 2, (s, s2)
                else: assert not (gap < w and d & (d2 | ab2)), (s, s2, gap)
                if k2 in 'vt': assert not (gap < (7 if w == 12 else 3) and c & d2), (s, s2)
            if k in 'vt' and k2 == 'm': assert not (gap < 2 and d & (ab2 | c2)), (s, s2)
            if k == 't' and k2 == 'v': assert not (gap < 1 and d & ab2), (s, s2)

def emit_loop():
    allb = sum((body(b) for b in range(4)), [])
    check_hazards(allb + ["s_branch LOOP"])
    lab("LOOP")
    for it in allb:
        if it.endswith(':'): lab(it[:-1])
        else: o(it)
    o("s_branch LOOP")
    for b in range(4):
        lab(f"EV{b}")
        o(f"s_bitcmp1_b32 s{sC}, {b}"); o(f"s_cbranch_scc0 EV{b}_X")
        close_window(f"EV{b}", GV + 32 * (b % 2), MQ + 4 * (b % 2))
        o(f"s_cbranch_scc1 EV{b}_P")
        lab(f"EV{b}_2")
        o(f"s_lshr_b32 s{sT0}, s{sEV}, {b+1}"); o(f"s_cbranch_scc1 EVR{b}")
        o(f"s_movk_i32 s{sS0}, {b*SLOT}"); o(f"s_movk_i32 s{sS1}, {(b+1)%4*SLOT}"); o(f"s_lshr_b32 s{sC}, s{sC}, {b+1}")
        o(f"s_branch TAIL{b%2}")
        lab(f"EV{b}_P")
        o("s_setprio 1"); o(f"s_cmp_lt_u32 s{sWIN}, {PRIO[1]}"); o(f"s_cbranch_scc1 EV{b}_2")
        o("s_setprio 0"); o(f"s_branch EV{b}_2")
        lab(f"EV{b}_X")
        if b == 1:
            o(f"s_cmp_eq_u32 s{sINIT}, 0"); o(f"s_cbranch_scc1 EV1_2")
            o(f"s_mov_b32 s{sINIT}, 0"); o("s_nop 2")
            for r in range(8): o(f"v_mov_b32 v{ACC+r}, 0")
        o(f"s_branch EV{b}_2")
    for p in range(2):
        Gc = GV + 32 * (1 - p); mqc = MQ + 4 * (1 - p)
        lab(f"TAIL{p}")
        stamp(7); stamp(11, "s_memtime")
        if STAMP: o(f"v_writelane_b32 v{VST[0]}, s{sNT}, 12")
        o("s_waitcnt vmcnt(0) lgkmcnt(0)"); o("s_barrier")
        wload(WB, WF_U, 8)
        o(f"ds_read_b128 {vr(T0,4)}, v{mqc}"); o(f"ds_read_b128 {vr(T0+4,4)}, v{mqc+1}")
        o(f"v_add_u32 v{vSV}, s{sS1}, v{vXA}")
        for s in range(8): o(f"ds_read_b128 {vr(WV+4*s,4)}, v{vSV} offset:{16*s}")
        for ins, _ in vstream(Gc, Gc + 16)[NHEAD:]: o(ins)
        o("s_waitcnt lgkmcnt(8)")
        o(m16(ACC, Gc, T0, ACC)); o(m16(ACC+4, Gc+16, T0, ACC+4)); o(m16(ACC, Gc+4, T0+4, ACC)); o(m16(ACC+4, Gc+20, T0+4, ACC+4))
        o(f"s_bitcmp1_b32 s{sC}, 0"); o("s_cbranch_scc0 LOOP_EXIT")
        close_window(f"TL{p}", Gc, mqc)
        if p == 0: o("s_branch LOOP_EXIT")

PRIO = [int(x) for x in OPT.get('prio', '3,5').split(',')]

def masks(tmp):
    a, b_, c = tmp
    o(f"v_and_b32 v{a}, 3, v0"); o(f"v_lshlrev_b32 v{a}, 1, v{a}"); o(f"v_mov_b32 v{c}, 0")
    for i in range(4):
        o(f"v_lshrrev_b32 v{b_}, 19, v{SEG+i}"); o(f"v_max_u32 v{c}, v{c}, v{b_}")
        o(f"v_min_u32 v{b_}, s{sLIM}, v{b_}"); o(f"v_sub_u32 v{b_}, v{b_}, v{a}")
        for j, k in ((0, 2*i), (1, 2*i+1), (8, 8+2*i), (9, 9+2*i)): o(f"v_cmp_lt_i32 s[{sK+2*k}:{sK+2*k+1}], {j}, v{b_}")
    o(f"v_cmp_lt_u32 vcc, s{sLIM}, v{c}")
    o(f"s_or_b64 s[{sSV}:{sSV+1}], s[{sK+16}:{sK+17}], s[{sK+20}:{sK+21}]"); o(f"s_or_b64 s[{sHM}:{sHM+1}], s[{sK+24}:{sK+25}], s[{sK+28}:{sK+29}]")
    o(f"s_or_b64 s[{sSV}:{sSV+1}], s[{sSV}:{sSV+1}], s[{sHM}:{sHM+1}]")
    o(f"v_mov_b32 v{b_}, {CNT+252}")
    o("s_mov_b64 exec, vcc"); o(f"ds_write_b32 v{b_}, v{b_}"); o("s_mov_b64 exec, -1")

def interleave(mf, other, per):
    other = list(other)
    for m in mf:
        o(m)
        for _ in range(per):
            if other: o(other.pop(0))
    for x in other: o(x)
def capture(fn):
    n = len(L); fn(); r = [x.strip() for x in L[n:]]; del L[n:]; return r

def gen_k2():
    assert LEAD == 2
    L.append(".globl gmain_kernel"); L.append(".p2align 8"); L.append(".type gmain_kernel,@function")
    lab("gmain_kernel"); VST[0] = 255
    t = [GV + i for i in range(32)]
    stamp(0)
    o("s_load_dwordx2 s[50:51], s[0:1], 88")
    o("s_load_dwordx4 s[4:7], s[0:1], 0")
    o("s_load_dwordx2 s[48:49], s[0:1], 72")
    o("s_setprio 3")
    o("s_and_b32 s3, s2, 7"); o("s_lshl_b32 s3, s3, 6"); o(f"s_lshr_b32 s{sT0}, s2, 3"); o(f"s_add_u32 s3, s3, s{sT0}")
    o("s_cmp_ge_u32 s2, 512"); o("s_cbranch_scc1 K2_END")
    o(f"s_cmp_ge_u32 s3, {NR}"); o("s_cbranch_scc1 K2_END")
    o(f"v_lshrrev_b32 v{t[0]}, 6, v0")
    o(f"v_lshrrev_b32 v{t[1]}, 2, v0")
    o(f"v_readfirstlane_b32 s{sWAVE}, v{t[0]}")
    o(f"s_mul_i32 s{sS0}, s3, {OROW}"); o(f"s_add_u32 s{sS0}, s{sS0}, {WS_OFF:#x}")
    o(f"v_lshlrev_b32 v{t[1]}, 4, v{t[1]}")
    o(f"s_mul_i32 s{sBASE}, s3, {RN}")
    o(f"v_and_b32 v{vWF}, 63, v0"); o(f"v_lshlrev_b32 v{vWF}, 4, v{vWF}")
    o(f"s_mul_i32 s{sMX}, s{sWAVE}, 2080"); o(f"s_add_u32 s{sMX}, s{sMX}, {RING}")
    o(f"s_lshl_b32 s{sWF}, s{sWAVE}, 13"); o(f"s_add_u32 s{sWF}, s{sWF}, {WS_WF:#x}")
    o(f"s_lshl_b32 s{sATW}, s{sWAVE}, 12"); o(f"s_add_u32 s{sATW}, s{sATW}, {AT}")
    o(f"s_mov_b32 s{sEPS}, {EPS:#x}")
    for off in (WF_B, WF_V, WF_A):
        for hh in range(2): o(f"s_add_u32 s{88 + (off >> 14) + hh}, s{sWF}, {off + hh*4096:#x}")
    o(f"s_lshl_b32 s94, s{sWAVE}, 10"); o(f"s_add_u32 s94, s94, {WS_WF+WF_C:#x}")
    o(f"s_mov_b32 s{sFIRST}, 1"); o(f"s_mov_b32 s{sLIM}, 16"); o(f"s_mov_b32 s{sMULTI}, 0")
    o("s_waitcnt lgkmcnt(0)"); xstamp("karg")
    srd(sW, 50, WS_SIZE)
    o(f"buffer_load_dwordx4 {vr(SEG,4)}, v{t[1]}, s[{sW}:{sW+3}], s{sS0} offen")
    srd(sX, 4, N, 256); srd(sE, 6, E, 32); srd(sO, 48, N, 256)
    lab("ROUND")
    b0, b2, b3, b4, vh = t[16:21]
    o(f"v_lshlrev_b32 v{t[11]}, 4, v0")
    for d in range(4): o(f"v_mov_b32 v{t[0]+d}, 0")
    for off in (0, 4096, ZSZ - 4096): o(f"ds_write_b128 v{t[11]}, {vr(t[0],4)} offset:{MB+off}")
    o(f"v_mov_b32 v{t[4]}, 0xffff"); o(f"v_mov_b32 v{t[5]}, 0x7ffff"); o(f"v_mov_b32 v{t[6]}, 0xffff"); o(f"v_mov_b32 v{t[7]}, 0x7ffff")
    o(f"ds_write_b128 v{t[11]}, {vr(t[4],4)} offset:{LIST}"); o(f"ds_write_b128 v{t[11]}, {vr(t[4],4)} offset:{LIST+4096}")
    o(f"v_and_b32 v{b0}, 1, v0"); o(f"v_bfe_u32 v{b2}, v0, 2, 1"); o(f"v_bfe_u32 v{b3}, v0, 3, 1"); o(f"v_bfe_u32 v{b4}, v0, 4, 1"); o(f"v_bfe_u32 v{vh}, v0, 5, 1")
    o(f"v_and_b32 v{t[12]}, 15, v0"); o(f"v_lshlrev_b32 v{t[13]}, 3, v{b4}")
    o(f"v_xor_b32 v{IX0+1}, v{t[12]}, v{t[13]}"); o(f"v_lshlrev_b32 v{IX0+1}, 4, v{IX0+1}"); o(f"v_mov_b32 v{IX1+1}, v{IX0+1}")
    o(f"s_lshr_b32 s{sT0}, s{sWAVE}, 1"); o(f"s_lshl_b32 s{sT0}, s{sT0}, 4"); o(f"s_and_b32 s{sT1}, s{sWAVE}, 1"); o(f"s_lshl_b32 s{sT1}, s{sT1}, 2")
    o(f"s_add_u32 s{sT0}, s{sT0}, s{sT1}"); o(f"s_add_u32 s{sT0}, s{sT0}, s{sBASE}")
    o(f"v_lshl_add_u32 v{t[13]}, v{vh}, 3, v{b4}")
    o(m0x(2, 0))
    o(f"v_add_u32 v{IX0}, s{sT0}, v{t[13]}"); o(f"v_add_u32 v{IX1}, 2, v{IX0}")
    o(f"v_and_b32 v{t[8]}, 3, v0"); o(f"v_lshlrev_b32 v{t[8]}, 1, v{t[8]}")
    o(f"v_mov_b32 v{t[9]}, 0x7ffffff0"); o(f"s_mov_b32 s{sT1}, 0x7ffff")
    xstamp("consts_done")
    o("s_waitcnt vmcnt(0)"); stamp(1)
    for i in range(4):
        o(f"v_lshrrev_b32 v{t[4+i]}, 19, v{SEG+i}"); o(f"v_cmp_lt_u32 vcc, v{t[8]}, v{t[4+i]}")
        o(f"v_and_b32 v{t[i]}, s{sT1}, v{SEG+i}"); o(f"v_add_lshl_u32 v{t[i]}, v{t[i]}, v{t[8]}, 3")
        o(f"v_cndmask_b32 v{t[10]}, v{t[9]}, v{t[i]}, vcc")
        o(f"buffer_load_dwordx4 {vr(REC+4*i,4)}, v{t[10]}, s[{sW}:{sW+3}], 0 offen")
    o(f"v_max3_u32 v{t[10]}, v{t[4]}, v{t[5]}, v{t[6]}"); o(f"v_max_u32 v{t[10]}, v{t[10]}, v{t[7]}")
    o(f"v_cmp_lt_u32 vcc, 8, v{t[10]}"); o("s_cbranch_vccz REC_DONE")
    for i in range(4): o(f"buffer_load_dwordx4 {vr(REC+16+4*i,4)}, v{t[i]}, s[{sW}:{sW+3}], 0 offen offset:64")
    lab("REC_DONE")
    xstamp("rec_issued")
    o("s_waitcnt lgkmcnt(0)"); o("s_barrier"); stamp(2)
    o(f"v_bfe_u32 v{t[12]}, v0, 1, 2"); o(f"v_lshl_or_b32 v{t[12]}, v{b4}, 2, v{t[12]}"); o(f"v_mul_u32_u24 v{t[12]}, 1040, v{t[12]}")
    o(f"v_lshl_or_b32 v{t[13]}, v{b3}, 1, v{b0}")
    o(f"v_lshl_add_u32 v{t[12]}, v{t[13]}, 8, v{t[12]}"); o(f"v_add_u32 v{t[12]}, {RING}, v{t[12]}")
    o(f"v_xor_b32 v{t[13]}, v{vh}, v{b0}"); o(f"v_lshl_add_u32 v{vXA}, v{t[13]}, 7, v{t[12]}")
    o(f"v_lshlrev_b32 v{IXE+1}, 4, v{t[13]}")
    o(f"s_lshl_b32 s{sT0}, s{sWAVE}, 6"); o(f"s_add_u32 s{sT0}, s{sT0}, {LIST}")
    o(f"v_lshl_add_u32 v{vL1}, v{vh}, 2, v{b4}"); o(f"v_lshl_add_u32 v{vL1}, v{vL1}, 3, s{sT0}")
    o(f"v_lshrrev_b32 v{vL2}, 1, v0"); o(f"v_lshlrev_b32 v{vL2}, 3, v{vL2}"); o(f"v_add_u32 v{vL2}, {LIST+4}, v{vL2}")
    o(f"s_lshl_b32 s{sME}, s{sWAVE}, 10"); o(f"s_add_u32 s{sME}, s{sME}, {ER}")
    o(f"v_bfe_u32 v{t[13]}, v0, 7, 1"); o(f"v_xor_b32 v{t[13]}, v{t[13]}, v{b0}"); o(f"v_lshl_add_u32 v{vXR}, v{t[13]}, 7, v{t[12]}")
    o(f"v_and_b32 v{t[13]}, 0x60, v0"); o(f"v_add_u32 v{vXR}, v{vXR}, v{t[13]}")
    o(f"v_and_b32 v{vATA}, 0x1f0, v{vWF}"); o(f"v_lshl_add_u32 v{vATA}, v{vh}, 3, v{vATA}"); o(f"v_add_u32 v{vATA}, s{sATW}, v{vATA}")
    o(f"v_and_b32 v{PT}, 0x33, v0"); o(f"v_lshl_or_b32 v{PT}, v{b2}, 3, v{PT}"); o(f"v_lshl_or_b32 v{PT}, v{b3}, 2, v{PT}")
    o(f"v_and_b32 v{t[12]}, 31, v{PT}"); o(f"v_add_u32 v{PT}, s{sBASE}, v{PT}")
    o(f"v_lshl_add_u32 v{vSA}, v{t[12]}, 3, v{vh}"); o(f"v_add_u32 v{vSA}, {LIST+2}, v{vSA}")
    o(f"v_xor_b32 v{vEA}, v{b4}, v{vh}"); o(f"v_lshlrev_b32 v{vEA}, 4, v{vEA}")
    o(f"v_lshl_add_u32 v{vEA}, v{t[12]}, 5, v{vEA}"); o(f"v_add_u32 v{vEA}, {ER}, v{vEA}")
    o(f"v_add_u32 v{vMT}, 4096, v{vEA}"); o(f"v_xor_b32 v{vMT}, v{vMT}, v{vEA}")
    o(f"v_cmp_eq_u32 vcc, v{b4}, v{b3}")
    o(f"v_and_b32 v{t[12]}, 7, v0")
    o(f"v_lshlrev_b32 v{vAGG}, 6, v{t[12]}"); o(f"v_add_u32 v{PT+1}, 4, v{t[12]}")
    o(f"v_cndmask_b32 v{t[12]}, 8, v{t[12]}, vcc")
    o(f"v_mul_u32_u24 v{vMA}, {ROW}, v{t[12]}"); o(f"v_lshl_add_u32 v{vMA}, v{vh}, 4, v{vMA}"); o(f"v_add_u32 v{vMA}, {MB}, v{vMA}")
    o(f"v_lshl_add_u32 v{vAGG}, v{b3}, 5, v{vAGG}")
    o(f"v_bfe_u32 v{t[12]}, v0, 4, 2"); o(f"v_lshl_add_u32 v{vAGG}, v{t[12]}, 3, v{vAGG}"); o(f"v_add_u32 v{vAGG}, s{sATW}, v{vAGG}")
    o(f"v_and_b32 v{PT+2}, 0xe0, v0"); o(f"v_lshl_or_b32 v{PT+2}, v{b3}, 4, v{PT+2}"); o(f"v_lshl_or_b32 v{PT+2}, v{b4}, 2, v{PT+2}")
    o(ldx(IX0)); o(m0x(2, 1)); o(f"v_add_u32 v{IX0}, 32, v{IX0}"); o(ldx(IX1))
    o(m0x(3, 0)); o(f"v_add_u32 v{IX1}, 32, v{IX1}"); o(ldx(IX0)); o(m0x(3, 1))
    o("s_nop 0"); o(ldx(IX1))
    lab("REMASK")
    masks((t[0], t[1], t[2])); xstamp("masks_done")
    a, b_, c, d_ = t[0:4]; ad = t[16:32]
    o(f"v_mov_b32 v{a}, 8")
    o(f"v_lshrrev_b32 v{b_}, 2, v{vWF}")
    o(f"s_mov_b32 vcc_lo, 0x80808080"); o("s_mov_b32 vcc_hi, 0x8080")
    wl = wlist()
    o(f"s_waitcnt vmcnt(4)"); xstamp("rec_landed")
    sp0 = len(L)
    for half in range(2):
        if half: o(f"s_cmp_eq_u64 s[{sSV}:{sSV+1}], 0"); o("s_cbranch_scc1 P1_DONE"); o("s_mov_b64 exec, -1")
        for k in range(8*half, 8*half+8): o(f"v_lshrrev_b32 v{ad[k]}, 24, v{REC+2*k+1}")
        for k in range(8*half, 8*half+8):
            o(f"s_mov_b64 exec, s[{sK+2*k}:{sK+2*k+1}]")
            o(f"ds_add_rtn_u32 v{RANK+k}, v{ad[k]}, v{a} offset:{CNT}")
    lab("P1_DONE")
    o("s_mov_b64 exec, -1")
    for _ in range(int(OPT.get('npost', 4))): o(wl.pop(0))
    o("s_waitcnt lgkmcnt(0)"); xstamp("p1_done"); o("s_barrier"); xstamp("b1")
    o(f"ds_read_b32 v{c}, v{b_} offset:{CNT}")
    for _ in range(int(OPT.get('npost2', 3))): o(wl.pop(0))
    sp0 = len(L)
    o("s_waitcnt lgkmcnt(0)")
    o(f"v_readlane_b32 s{sMORE}, v{c}, 63")
    o(f"v_add_u32_dpp v{d_}, v{c}, v{c} quad_perm:[1,0,3,2] row_mask:0xf bank_mask:0xf"); o("s_nop 1")
    o(f"v_add_u32_dpp v{d_}, v{d_}, v{d_} quad_perm:[2,3,0,1] row_mask:0xf bank_mask:0xf"); o("s_nop 1")
    o(f"v_add_u32_dpp v{d_}, v{d_}, v{d_} row_half_mirror row_mask:0xf bank_mask:0xf")
    o(f"v_sub_u32 v{d_}, {MINW*8}, v{d_}"); o(f"v_max_i32 v{d_}, 0, v{d_}"); o(f"v_cndmask_b32 v{d_}, 0, v{d_}, vcc")
    o(f"v_add_u32 v{c}, v{c}, v{d_}"); o(f"v_mov_b32 v{d_}, v{c}")
    scan64(c)
    o(f"v_sub_u32 v{d_}, v{c}, v{d_}")
    o(f"ds_write_b32 v{b_}, v{d_} offset:{NB}")
    o(f"v_readlane_b32 s{sNT}, v{c}, 48")
    for k in range(8): o(f"ds_read_b32 v{ad[k]}, v{ad[k]} offset:{NB}")
    o(f"s_cmp_le_u32 s{sNT}, {CAPT*256}"); o("s_cbranch_scc0 TOOBIG")
    for w in range(6): o(f"v_readlane_b32 s{4+w if w < 4 else 44+w}, v{c}, {8*w+7}")
    for i in range(sp0, len(L)):
        if L[i].strip() == "s_nop 1" and wl and int(OPT.get('nopld', 1)): L[i] = "    s_nop 0\n    " + wl.pop(0)
    xstamp("scan_done")
    for half in range(2):
        if half:
            o(f"s_cmp_eq_u64 s[{sSV}:{sSV+1}], 0"); o("s_cbranch_scc1 P2_DONE"); o("s_mov_b64 exec, -1")
            for k in range(8, 16): o(f"ds_read_b32 v{ad[k]}, v{ad[k]} offset:{NB}")
        for k in range(8*half, 8*half+8):
            if k % 4 == 0: o(f"s_waitcnt lgkmcnt({4 - k % 8})")
            o(f"v_add_u32 v{RANK+k}, v{RANK+k}, v{ad[k]}")
        for k in range(8*half, 8*half+8):
            o(f"s_mov_b64 exec, s[{sK+2*k}:{sK+2*k+1}]")
            o(f"ds_write_b64 v{RANK+k}, {vr(REC+2*k,2)} offset:{LIST}")
    lab("P2_DONE")
    o("s_mov_b64 exec, -1")
    o(f"s_mov_b32 m0, s{sME}")
    nlate = int(OPT.get('nlate', 0))
    while len(wl) > nlate: o(wl.pop(0))
    o(f"s_waitcnt vmcnt({25 - nlate}) lgkmcnt(0)"); xstamp("p2_done"); o("s_barrier"); stamp(5)
    f = REC
    o(f"ds_read_b32 v{IXE}, v{vL2}")
    o(f"ds_read_u16 v{IX0}, v{vL1}"); o(f"ds_read_u16 v{IX1}, v{vL1} offset:16")
    for k in (1, 2, 3):
        o(f"ds_read_u16 v{f+2*k}, v{vL1} offset:{k*256}"); o(f"ds_read_u16 v{f+2*k+1}, v{vL1} offset:{k*256+16}")
    o(f"v_lshlrev_b32 v{f+9}, 3, v0")
    o(f"s_waitcnt lgkmcnt(8)")
    o(f"v_and_b32 v{IXE}, 0x7ffff, v{IXE}"); o(lde(IXE))
    o(m0x(0, 0)); o("s_waitcnt lgkmcnt(6)"); o(ldx(IX0)); o(m0x(0, 1))
    for k in range(4): o(f"ds_read_b32 v{f+12+k}, v{f+9} offset:{LIST+4+k*2048}")
    o(ldx(IX1))
    for s in range(8): o(f"ds_read_b128 {vr(GV+4*s,4)}, v{vXA} offset:{2*SLOT+16*s}")
    for x in wl: o(x)
    o(m0x(1, 0)); o("s_waitcnt lgkmcnt(12)")
    o(f"v_mov_b32 v{IX0}, v{f+2}"); o(f"v_mov_b32 v{IX1}, v{f+3}"); o(ldx(IX0)); o(m0x(1, 1))
    for s in range(8): o(f"ds_read_b128 {vr(GV+32+4*s,4)}, v{vXA} offset:{3*SLOT+16*s}")
    o(ldx(IX1))
    xstamp("fill_issued")
    def ctrl():
        o(f"s_add_u32 s{sNT}, s{sNT}, 255"); o(f"s_lshr_b32 s{sNT}, s{sNT}, 8")
        o(f"s_mov_b32 s{sC}, 0")
        for w in range(6):
            r = 4+w if w < 4 else 44+w
            o(f"s_add_u32 s{r}, s{r}, 511"); o(f"s_lshr_b32 s{r}, s{r}, 8"); o(f"s_bitset1_b32 s{sC}, s{r}")
        o(f"s_lshr_b32 s{sT1}, s{sC}, 1")
        for k in (1, 2, 4, 8, 16): o(f"s_lshl_b32 s{sT0}, s{sT1}, {k}"); o(f"s_xor_b32 s{sT1}, s{sT1}, s{sT0}")
        o(f"v_lshrrev_b32 v{f+9}, 5, v0"); o(f"v_lshrrev_b32 v{f+9}, v{f+9}, s{sT1}")
        o(f"s_movk_i32 s{sS0}, {ROW}")
        for k in range(4):
            o(f"v_lshlrev_b32 v{f+2}, {29-8*k}, v{f+9}"); o(f"v_xor_b32 v{f+2}, v{f+2}, v{f+12+k}"); o(f"v_bfe_u32 v{f+2}, v{f+2}, 29, 1")
            o(f"v_bfe_u32 v{f}, v{f+12+k}, 26, 3"); o(f"v_mad_u32_u24 v{f}, v{f}, s{sS0}, v{PT+2}"); o(f"v_lshl_add_u32 v{f}, v{f+2}, 3, v{f}")
            o(f"v_bfe_u32 v{f+1}, v{f+12+k}, 20, 1"); o(f"v_lshlrev_b32 v{f+1}, v{PT+1}, v{f+1}")
            o(f"ds_or_b32 v{f}, v{f+1} offset:{MB+k*256}")
        o(f"s_lshl_b32 s{sT0}, s{sNT}, 8")
        o(f"v_lshrrev_b32 v{f+3}, 1, v{vWF}"); o(f"v_add_u32 v{f+3}, s{sT0}, v{f+3}")
        o(f"ds_write_b32 v{f+3}, v{PT} offset:{LIST}")
        o(f"ds_read_u8 v{vSV}, v{vSA}")
        o(f"s_mov_b32 s{sEV}, s{sC}"); o(f"s_add_u32 s{sT0}, s{sNT}, 1"); o(f"s_bitset0_b32 s{sEV}, s{sT0}")
        o(f"s_or_b32 s{sEV}, s{sEV}, 2"); o(f"s_bitset1_b32 s{sEV}, s{sNT}")
        o(f"s_or_b32 s{sMULTI}, s{sMULTI}, s{sMORE}")
        o(f"s_mov_b32 s{sWIN}, 0"); o(f"s_mov_b32 s{sINIT}, 1")
        o(f"s_mov_b32 s{sHM}, -1"); o(f"s_mov_b32 s{sHM+1}, 0")
        o(f"s_add_u32 s{sMET}, s{sME}, 4096"); o(f"s_xor_b32 s{sMET}, s{sMET}, s{sME}")
        o(f"s_add_u32 s{sME}, s{sME}, 4096")
        o(f"s_lshl_b32 s{sSCR}, s2, 2"); o(f"s_add_u32 s{sSCR}, s{sSCR}, s{sWAVE}"); o(f"s_lshl_b32 s{sSCR}, s{sSCR}, 14"); o(f"s_add_u32 s{sSCR}, s{sSCR}, {WS_SCR:#x}")
        o(f"v_add_u32 v{vL1}, 0x400, v{vL1}"); o(f"v_add_u32 v{vL2}, 0x400, v{vL2}")
        o(f"v_mov_b32 v{IX0}, v{f+4}"); o(f"v_mov_b32 v{IX1}, v{f+5}")
        o(f"v_mov_b32 v{MQ+4}, 0"); o(f"v_mov_b32 v{MQ+5}, 0")
    def lut():
        q = T0
        for d in range(4):
            o(f"v_bfe_u32 v{q+d}, v0, {2*d}, 2"); o(f"v_mul_u32_u24 v{q+d}, 0x8001, v{q+d}")
            o(f"v_and_b32 v{q+d}, 0x10001, v{q+d}"); o(f"v_mul_u32_u24 v{q+d}, 0x3f80, v{q+d}")
        o(f"v_lshlrev_b32 v{q+4}, 4, v0"); o(f"ds_write_b128 v{q+4}, {vr(q,4)} offset:{LUT}")
        o(f"v_add_u32 v{q+5}, -1, v0"); o(f"v_and_b32 v{q+5}, v{q+5}, v0"); o(f"v_cmp_eq_u32 vcc, 0, v{q+5}")
        o(f"v_ffbl_b32 v{q+5}, v0"); o(f"v_lshl_add_u32 v{q+5}, v{q+5}, 4, 16"); o(f"v_mov_b32 v{q+6}, 160")
        o(f"v_cndmask_b32 v{q+5}, v{q+6}, v{q+5}, vcc")
        o(f"ds_write_b128 v{q+5}, {vr(q,4)} offset:{MLUT}")
    oth = capture(ctrl); sal = oth[:33]; oth = oth[33:]
    for x in sal: o(x)
    acc = [T1, GV]
    o(f"s_waitcnt vmcnt(22) lgkmcnt(8)")
    interleave([m32(acc[0], GV+4*s, XF+4*s, None if s == 0 else acc[0]) for s in range(8)], oth[:40], 5)
    o("s_waitcnt lgkmcnt(4)")
    def cv(mt):
        for r in range(0, 16, 2): o(f"v_cvt_pk_bf16_f32 v{acc[mt]+r//2}, v{acc[mt]+r}, v{acc[mt]+r+1}")
        for g in range(4): o(f"ds_write_b64 v{vATA}, {vr(acc[mt]+2*g,2)} offset:{(4*mt+g)*512}")
    rest = oth[40:] + capture(lambda: cv(0)) + capture(lut)
    interleave([m32(acc[1], GV+32+4*s, XF+4*s, None if s == 0 else acc[1]) for s in range(8)], rest[:-14], 6)
    for x in rest[-14:]: o(x)
    cv(1)
    if STAMP:
        o("s_getreg_b32 s98, hwreg(HW_REG_HW_ID)"); o("s_getreg_b32 s100, hwreg(HW_REG_XCC_ID)"); o("s_and_b32 s98, s98, 0xffff"); o("s_lshl_b32 s100, s100, 16"); o("s_or_b32 s98, s98, s100"); o(f"v_writelane_b32 v{VST[0]}, s98, 3")
    o(f"v_add_u32 v{vATA}, s{sATW}, v{vWF}")
    o(m0x(2, 0))
    o(f"v_mov_b32 v{PT+1}, v{f+6}"); o(f"v_mov_b32 v{PT+2}, v{f+7}")
    o(f"ds_read_b128 {vr(AF,4)}, v{vATA}")
    xstamp("g1_done"); stamp(4)
    o(f"s_waitcnt vmcnt(2)"); xstamp("t0_landed"); o("s_barrier")
    o(ldx(IX0)); o(m0x(2, 1))
    o(f"ds_read_b128 {vr(EF,4)}, v{vEA}")
    o(ldx(IX1))
    for s in range(8): o(f"ds_read_b128 {vr(XF+4*s,4)}, v{vXA} offset:{16*s}")
    o(f"v_mov_b32 v{IX0}, v{PT+1}"); o(f"v_mov_b32 v{IX1}, v{PT+2}")
    o(m0x(3, 0))
    o("s_setprio 2")
    stamp(6); stamp(8, "s_memtime")
    o("s_branch EVR0")
    lab("TOOBIG")
    o(f"s_mov_b32 s{sLIM}, {LOWLIM}"); o(f"v_mov_b32 v{a}, 0")
    o("s_waitcnt lgkmcnt(0)"); o("s_barrier")
    o(f"ds_write_b32 v{b_}, v{a} offset:{CNT}")
    o("s_waitcnt lgkmcnt(0)"); o("s_barrier")
    o("s_branch REMASK")
    emit_loop()
    lab("LOOP_EXIT")
    x = EF
    o(f"v_add_u32 v{vSV}, s{sS0}, v{vXR}"); o(f"v_add_u32 v{vSA}, s{sS1}, v{vXR}")
    o(f"v_and_b32 v{IX0}, 31, v0"); o(f"v_and_b32 v{IX0+1}, 0xe0, v0")
    o(f"v_lshlrev_b32 v{vMA}, 6, v{IX0}"); o(f"v_and_b32 v{vL1}, 32, v0"); o(f"v_add3_u32 v{vMA}, v{vMA}, v{vL1}, s{sATW}")
    o(f"s_cmp_lg_u32 s{sMULTI}, 0"); o("s_nop 0")
    finalize("FIN")
    o(f"s_cmp_lg_u32 s{sMORE}, 0"); o("s_cbranch_scc1 NEXTROUND")
    g = T0
    for mt in range(2):
        for k in range(2): o(f"ds_read_b128 {vr(g+8*mt+4*k,4)}, v{vMA} offset:{mt*2048+16*k}")
    for mt in range(2):
        for k in range(2): o(f"ds_read_b128 {vr(x+8*mt+4*k,4)}, v{vSA if mt else vSV} offset:{16*k}")
    o(f"s_mov_b32 s{sT1}, 0xffff0000")
    o(f"v_cmp_gt_u32 vcc, {RN-32}, v{IX0}"); o(f"v_add_u32 v{IX0}, s{sBASE}, v{IX0}")
    for mt in range(2):
        o(f"s_waitcnt lgkmcnt({6-2*mt})")
        for k in range(8):
            o(f"v_lshlrev_b32 v{GV+16*mt+2*k}, 16, v{g+8*mt+k}"); o(f"v_and_b32 v{GV+16*mt+2*k+1}, s{sT1}, v{g+8*mt+k}")
    o("s_waitcnt vmcnt(0) lgkmcnt(0)")
    unp = []
    for mt in range(2):
        for k in range(8): unp += [f"v_lshlrev_b32 v{GV+32+16*mt+2*k}, 16, v{x+8*mt+k}", f"v_and_b32 v{GV+32+16*mt+2*k+1}, s{sT1}, v{x+8*mt+k}"]
    def post(mt):
        r = []
        for k in range(8):
            z = GV + 16*mt + 2*k
            r += [f"v_max_f32 v{z}, 0, v{z}", f"v_max_f32 v{z+1}, 0, v{z+1}", f"v_add_f32 v{z}, v{z}, v{z+32}", f"v_add_f32 v{z+1}, v{z+1}, v{z+33}",
                  f"v_cvt_pk_bf16_f32 v{g+8*mt+k}, v{z}, v{z+1}"]
        return r
    def st(mt): return [f"buffer_store_dwordx4 {vr(g+8*mt+4*k,4)}, {vr(IX0,2)}, s[{sO}:{sO+3}], 0 idxen offen offset:{16*k} {OPT.get('outpol', '').replace('+', ' ')}" for k in range(2)]
    fill = unp[:20];
    for s in range(8):
        o(m32(GV, WB+4*s, XF+4*s, GV))
        for _ in range(3):
            if fill: o(fill.pop(0))
    fill = unp[20:] + post(0)
    for s in range(8):
        o(m32(GV+16, WB+4*s, WV+4*s, GV+16))
        for _ in range(6 if s < 7 else 99):
            if fill: o(fill.pop(0))
    for x_ in st(0): o(x_)
    o("s_mov_b64 exec, vcc"); o(f"v_add_u32 v{IX0}, 32, v{IX0}")
    for x_ in post(1) + st(1): o(x_)
    stamp_out(9, GV, sW, 1)
    lab("K2_END")
    o("s_endpgm")
    lab("NEXTROUND")
    for i in range(4):
        o(f"v_lshrrev_b32 v{vSV}, 19, v{SEG+i}"); o(f"v_min_u32 v{vSV}, s{sLIM}, v{vSV}")
        o(f"v_add_u32 v{SEG+i}, v{SEG+i}, v{vSV}"); o(f"v_lshlrev_b32 v{vSV}, 19, v{vSV}"); o(f"v_sub_u32 v{SEG+i}, v{SEG+i}, v{vSV}")
    o(f"s_mov_b32 s{sFIRST}, 0"); o(f"s_mov_b32 s{sLIM}, 16")
    o("s_waitcnt vmcnt(0) lgkmcnt(0)")
    o("s_barrier")
    o("s_branch ROUND")
    multi_code()

def kd(name, nv, ns):
    L.append(".p2align 6")
    L.append(f".amdhsa_kernel {name}")
    for k, v in (("next_free_vgpr", nv), ("next_free_sgpr", ns), ("accum_offset", (nv + 3) // 4 * 4), ("group_segment_fixed_size", 0),
                 ("kernarg_size", 96), ("user_sgpr_count", 2), ("user_sgpr_kernarg_segment_ptr", 1), ("system_sgpr_workgroup_id_x", 1),
                 ("float_denorm_mode_32", 3)):
        L.append(f"  .amdhsa_{k} {v}")
    L.append(".end_amdhsa_kernel")

hdr = [l for l in open(f"cdna_kernels/{NAME}.s.ref").read().splitlines() if l.startswith(";") and "@launch" not in l
       and "Override launch" not in l and "grid=ceil" not in l]
L += hdr
L.append(f"; @launch kernel=gsort_kernel grid=({K1_GRID},1,1) block=(512,1,1) lds={K1_LDS}")
L.append(f"; @launch kernel=gmain_kernel grid=(512,1,1) block=(256,1,1) lds={OPT.get('lds', K2_LDS)}")
L.append('.amdgcn_target "amdgcn-amd-amdhsa--gfx950"'); L.append(".text")
gen_k1(); gen_k2()
L.append('.section .rodata,"a"')
kd("gsort_kernel", 64 if STAMP else 56, 102 if STAMP else 56); kd("gmain_kernel", 256 if STAMP else NVGPR, 102 if STAMP else 96)
if STAMP: L.append("; STAMPS " + repr(NAMES))
open(sys.argv[1], "w").write("\n".join(L) + "\n")
print("vgprs", NVGPR, "lds", K2_LDS, "lines", len(L), file=sys.stderr)
```

```python
import sys, struct, re

N = 25000; E = 400000; RN = 49; NR = 511; CH = 1600; NCH = 250
WS_REC = 0; WS_OFF = 0x310000; OROW = 1152; WS_WF = 0x3c0000; WS_TAB = 0x400000; WS_SIZE = 0x4000000
WF_A = 0; WF_U = 0x8000; WF_C = 0x10000; NA = 25
NLOG2E = struct.unpack('<I', struct.pack('<f', -1.4426950408889634))[0]
EPS = struct.unpack('<I', struct.pack('<f', 1e-6))[0]
NAME = "standalone__edge_featured_mpnn_gatedgcn__graph"
OPT = dict(a.split('=') for a in sys.argv[2:]) if len(sys.argv) > 2 else {}
STAMP = int(OPT.get('stamp', 0))
WS_STAMP = 0x3800000
L = []
def o(s): L.append("    " + s)
def lab(s): L.append(s + ":")
def vr(b, n): return f"v[{b}:{b+n-1}]"
VST = [60]
NAMES = {}
def stamp(i, ins="s_memrealtime", name=None):
    if STAMP:
        o(f"{ins} s[100:101]"); o("s_waitcnt lgkmcnt(0)"); o(f"v_writelane_b32 v{VST[0]}, s100, {i}")
def xstamp(name):
    if STAMP:
        NAMES[name] = 16 + len(NAMES); stamp(NAMES[name])
def stamp_out(n, reg, srdn, kern):
    if not STAMP: return
    o("s_mov_b64 exec, -1")
    stamp(n)
    o(f"v_lshlrev_b32 v{reg}, 2, v0")
    if kern and int(OPT.get('g8', 0)): o("s_and_b32 s63, s3, 1"); o("s_lshl_b32 s63, s63, 8"); o("s_add_u32 s2, s2, s63")
    o(f"s_lshl_b32 s63, s2, 11"); o(f"s_add_u32 s63, s63, {WS_STAMP + kern*0x100000:#x}")
    o(f"buffer_store_dword v{VST[0]}, v{reg}, s[{srdn}:{srdn+3}], s63 offen")
def srd(d, lo, size, stride=0):
    o(f"s_mov_b32 s{d}, s{lo}"); o(f"s_and_b32 s{d+1}, s{lo+1}, 0xffff")
    if stride: o(f"s_or_b32 s{d+1}, s{d+1}, {stride << 16:#x}")
    o(f"s_mov_b32 s{d+2}, {size:#x}"); o(f"s_mov_b32 s{d+3}, 0x20000")
def scan64(v):
    for d in ("row_shr:1", "row_shr:2", "row_shr:4", "row_shr:8"):
        o("s_nop 1"); o(f"v_add_u32_dpp v{v}, v{v}, v{v} {d} row_mask:0xf bank_mask:0xf bound_ctrl:0")
    o("s_nop 1"); o(f"v_add_u32_dpp v{v}, v{v}, v{v} row_bcast:15 row_mask:0xa bank_mask:0xf")
    o("s_nop 1"); o(f"v_add_u32_dpp v{v}, v{v}, v{v} row_bcast:31 row_mask:0xc bank_mask:0xf")

def m32(d, a, b, c): return f"v_mfma_f32_32x32x16_bf16 {vr(d,16)}, {vr(a,4)}, {vr(b,4)}, " + ("0" if c is None else vr(c,16))
K1_GRID = 256
OG = 4224
K1_W = 16896; K1_X = K1_W + 65536; K1_S = K1_X + 4 * 8320; K1_LDS = K1_S + 8 * 4608
def gen_k1():
    L.append(".globl gsort_kernel"); L.append(".p2align 8"); L.append(".type gsort_kernel,@function")
    lab("gsort_kernel"); VST[0] = 255
    pol = OPT.get('tabpol', '').replace('+', ' '); rpol = OPT.get('recpol', '').replace('+', ' ')
    stamp(0)
    o("s_load_dwordx8 s[4:11], s[0:1], 0")
    o("s_load_dwordx8 s[40:47], s[0:1], 32")
    o("s_load_dwordx2 s[48:49], s[0:1], 64")
    o("s_load_dwordx2 s[12:13], s[0:1], 88")
    o(f"s_cmp_ge_u32 s2, {K1_GRID}"); o("s_cbranch_scc1 K1_END")
    o("v_lshrrev_b32 v2, 6, v0"); o("v_lshlrev_b32 v1, 2, v0")
    o("s_and_b32 s36, s2, 7"); o("s_lshl_b32 s36, s36, 5"); o("s_lshr_b32 s35, s2, 3"); o("s_add_u32 s36, s36, s35")
    o("v_readfirstlane_b32 s33, v2")
    o("v_mov_b32 v2, 0"); o("ds_write_b32 v1, v2")
    o(f"s_mul_i32 s3, s2, {CH*4}"); o("s_mul_i32 s37, s36, 98")
    o(f"s_cmp_lt_u32 s2, {NCH}"); o(f"s_cselect_b32 s14, {CH//5}, 0")
    o("v_cmp_gt_u32 vcc, s14, v0")
    o("v_lshlrev_b32 v40, 4, v0")
    o("v_bfe_u32 v56, v0, 4, 1"); o("v_bfe_u32 v57, v0, 5, 1"); o("v_and_b32 v20, 63, v0")
    o("s_mov_b32 s68, 0"); o("v_lshlrev_b32 v42, 4, v20")
    o("v_mul_u32_u24 v43, 20, v0")
    o("s_cmp_ge_u32 s33, 5")
    o("s_waitcnt lgkmcnt(0)")
    o("s_cbranch_scc1 K1_LOAD")
    srd(20, 10, E*4); srd(16, 8, E*4)
    o("s_and_saveexec_b64 s[28:29], vcc"); o("s_mov_b64 s[28:29], exec"); o("s_cbranch_execz K1_A")
    o("buffer_load_dwordx4 v[64:67], v43, s[20:23], s3 offen"); o("buffer_load_dword v68, v43, s[20:23], s3 offen offset:16")
    o("buffer_load_dwordx4 v[72:75], v43, s[16:19], s3 offen"); o("buffer_load_dword v76, v43, s[16:19], s3 offen offset:16")
    lab("K1_A")
    o("s_mov_b64 exec, -1")
    o("s_barrier")
    def addrs():
        srd(24, 12, WS_SIZE)
        o("v_bfe_u32 v60, v0, 2, 2"); o("v_lshl_add_u32 v60, v57, 6, v60"); o("v_lshlrev_b32 v60, 8, v60")
        o("v_and_b32 v61, 3, v0"); o("v_lshl_add_u32 v60, v61, 3, v60"); o("v_lshl_add_u32 v60, v56, 5, v60")
        o("s_and_b32 s30, s33, 3"); o("v_bfe_u32 v61, v0, 2, 2"); o("v_xor_b32 v61, s30, v61"); o("v_lshl_add_u32 v60, v61, 6, v60"); o(f"v_add_u32 v60, {K1_W}, v60")
        o("v_bfe_u32 v61, v0, 1, 2"); o("v_lshl_or_b32 v61, v56, 2, v61"); o("v_mul_u32_u24 v61, 1040, v61")
        o("v_and_b32 v62, 1, v0"); o("v_bfe_u32 v63, v0, 3, 1"); o("v_lshl_or_b32 v63, v63, 1, v62"); o("v_lshl_add_u32 v61, v63, 8, v61")
        o("s_lshr_b32 s32, s33, 2"); o("s_mul_i32 s14, s32, 8320"); o(f"s_add_u32 s14, s14, {K1_X}")
        o("v_xor_b32 v62, v62, v57"); o("v_lshl_add_u32 v61, v62, 7, v61"); o("v_add_u32 v61, s14, v61")
        o("s_mul_i32 s14, s33, 4608"); o(f"s_add_u32 s14, s14, {K1_S}")
        o("v_and_b32 v62, 31, v0"); o("v_mul_u32_u24 v62, 144, v62"); o("v_lshl_add_u32 v62, v57, 6, v62"); o("v_add_u32 v62, s14, v62")
        o("v_lshrrev_b32 v58, 3, v20"); o("v_and_b32 v59, 7, v0"); o("v_lshlrev_b32 v59, 4, v59")
        o("v_mul_u32_u24 v63, 144, v58"); o("v_add3_u32 v63, v63, v59, s14")
        o("s_lshl_b32 s14, s32, 5"); o("s_add_u32 s14, s14, s37"); o("s_lshl_b32 s14, s14, 9"); o("s_lshl_b32 s30, s30, 7"); o("s_add_u32 s14, s14, s30")
        o("v_lshl_add_u32 v59, v58, 9, v59"); o("v_add_u32 v59, s14, v59")
        o("s_lshl_b32 s31, s3, 1")
    addrs()
    o(f"s_mul_i32 s34, s2, {CH}")
    o("v_lshrrev_b32 v3, 2, v43"); o("v_add_u32 v3, s34, v3"); o("v_mov_b32 v2, 1"); o(f"s_mov_b32 s15, {-RN}"); o(f"s_movk_i32 s38, {-64*RN}")
    o("v_lshlrev_b32 v20, 5, v20")
    o("s_mov_b64 exec, s[28:29]"); o("s_cbranch_execz K1_B")
    o("s_waitcnt vmcnt(2)"); stamp(1)
    for i in range(5):
        o(f"v_mul_u32_u24 v{80+i}, 21400, v{64+i}")
        o(f"v_lshrrev_b32 v{80+i}, 20, v{80+i}")
        o(f"v_mad_i32_i24 v{64+i}, v{80+i}, s15, v{64+i}")
        o(f"v_lshlrev_b32 v{80+i}, 2, v{80+i}")
        o(f"ds_add_rtn_u32 v{88+i}, v{80+i}, v2")
    o("s_waitcnt vmcnt(0)")
    for i in range(5):
        o(f"v_cmp_lt_u32 vcc, {NA-1}, v{64+i}")
        if int(OPT.get('rot', 1)):
            o(f"v_lshrrev_b32 v22, 8, v{80+i}"); o(f"v_mad_i32_i24 v22, v22, s38, v{72+i}"); o(f"v_add_u32 v23, {512*RN}, v22"); o("v_min_u32 v22, v22, v23")
            o("v_mul_u32_u24 v22, 83, v22")
        else: o(f"v_mul_u32_u24 v22, 83, v{72+i}")
        o("v_lshrrev_b32 v22, 16, v22")
        o(f"v_cndmask_b32 v23, 0, {NA}, vcc"); o(f"v_sub_u32 v23, v{64+i}, v23")
        o(f"v_lshl_or_b32 v{96+2*i}, v23, 16, v{72+i}")
        o("v_cndmask_b32 v23, 0, 32, vcc"); o("v_or_b32 v22, v22, v23")
        o(f"v_lshl_add_u32 v{97+2*i}, v22, 26, v3")
        if i < 4: o("v_add_u32 v3, 1, v3")
    lab("K1_B")
    o("s_mov_b64 exec, -1")
    o("s_waitcnt lgkmcnt(0)"); o("s_barrier")
    o("ds_read_b128 v[24:27], v20"); o("ds_read_b128 v[28:31], v20 offset:16")
    o("s_waitcnt lgkmcnt(0)")
    o("v_mov_b32 v33, v24")
    for j in range(2, 8): o(f"v_add_u32 v{32+j}, v{31+j}, v{23+j}")
    o("v_add_u32 v21, v39, v31"); o("v_mov_b32 v22, v21")
    scan64(21)
    o("v_sub_u32 v32, v21, v22")
    for j in range(1, 8): o(f"v_add_u32 v{32+j}, v32, v{32+j}")
    o("ds_write_b128 v20, v[32:35] offset:2048"); o("ds_write_b128 v20, v[36:39] offset:2064")
    o("s_mov_b64 exec, s[28:29]")
    for i in range(5): o(f"ds_read_b32 v{64+i}, v{80+i} offset:2048")
    o("s_waitcnt lgkmcnt(0)")
    for i in range(5):
        o(f"v_add_lshl_u32 v{64+i}, v{64+i}, v{88+i}, 3"); o(f"ds_write_b64 v{64+i}, v[{96+2*i}:{97+2*i}] offset:4096")
    o("s_mov_b64 exec, -1")
    o("s_cmp_eq_u32 s33, 4"); o("s_cbranch_scc1 K1_OFF")
    lab("K1_O2")
    o("s_waitcnt lgkmcnt(0)"); o("s_barrier"); stamp(3)
    lab("K1_J")
    WF_ = 64; XF_ = 128; AC = [160, 192]
    o("ds_read_b128 v[44:47], v40 offset:4096"); o("ds_read_b128 v[48:51], v40 offset:12288")
    o(f"v_cmp_gt_u32 vcc, {CH//2-512}, v0")
    for m in range(2):
        for s in range(8):
            for jj in range(2): o(f"ds_read_b64_tr_b16 v[{WF_+32*m+4*s+2*jj}:{WF_+32*m+4*s+2*jj+1}], v60 offset:{m*32768+s*2048+jj*1024}")
        if m == 0:
            for s in range(8): o(f"ds_read_b128 {vr(XF_+4*s,4)}, v61 offset:{16*s}")
    o(f"s_add_u32 s12, s12, {WS_TAB:#x}"); o("s_addc_u32 s13, s13, 0"); srd(16, 12, N * 512)
    o(f"s_mov_b32 s15, {NLOG2E:#x}")
    def post(t):
        a = AC[t]; r = []
        for k in range(16): r.append(f"v_mul_f32 v{a+k}, s15, v{a+k}")
        for k in range(16): r.append(f"v_cvt_pk_bf16_f32 v{224+k}, v{a+2*k}, v{a+2*k+1}")
        r += [f"ds_write_b128 v62, {vr(224+4*c,4)} offset:{16*c}" for c in range(4)]
        r += [f"ds_read_b128 {vr(a+4*k,4)}, v63 offset:{k*8*144}" for k in range(4)]
        return r
    def stores(t):
        r = []
        for k in range(4):
            r += [f"s_waitcnt lgkmcnt({3-k})", f"buffer_store_dwordx4 {vr(AC[t]+4*k,4)}, v59, s[16:19], 0 offen {pol}", "v_add_u32 v59, 0x1000, v59"]
        return r
    o("s_waitcnt lgkmcnt(15)")
    o(f"s_cmp_lt_u32 s2, {NCH}"); o("s_cbranch_scc0 K1_E")
    o("s_add_u32 s30, s31, 8192")
    o(f"buffer_store_dwordx4 v[44:47], v40, s[24:27], s31 offen {rpol}")
    o("s_and_saveexec_b64 s[28:29], vcc"); o("s_cbranch_execz K1_E")
    o(f"buffer_store_dwordx4 v[48:51], v40, s[24:27], s30 offen {rpol}")
    lab("K1_E"); o("s_mov_b64 exec, -1")
    for s in range(8): o(m32(AC[0], WF_+4*s, XF_+4*s, None if s == 0 else AC[0]))
    o("s_waitcnt lgkmcnt(0)")
    for s in range(8):
        o(m32(AC[0]+16, WF_+32+4*s, XF_+4*s, None if s == 0 else AC[0]+16))
        o(f"ds_read_b128 {vr(XF_+4*s,4)}, v61 offset:{2*8320+16*s}")
    o("s_cmp_lg_u32 s68, 0"); o("s_cbranch_scc1 K1_PREP2")
    lab("K1_G")
    o("s_waitcnt lgkmcnt(0)")
    mf = [m32(AC[1], WF_+4*s, XF_+4*s, None if s == 0 else AC[1]) for s in range(8)] + [m32(AC[1]+16, WF_+32+4*s, XF_+4*s, None if s == 0 else AC[1]+16) for s in range(8)]
    q = post(0) + [None] * 6 + stores(0)
    for m in mf:
        o(m)
        for _ in range(5):
            if q:
                x = q.pop(0)
                if x: o(x)
    assert not q
    o("v_add_u32 v59, 0x4000, v59"); o("v_cmp_gt_u32 vcc, 2, v58")
    for x in post(1): o(x)
    stamp(4)
    o("s_cmp_lt_u32 s33, 4"); o("s_cbranch_scc1 K1_H")
    o("s_mov_b64 exec, vcc")
    for x in stores(1)[:2]: o(x)
    o("s_branch K1_F")
    lab("K1_H")
    for x in stores(1): o(x)
    lab("K1_F")
    stamp_out(2, 12, 24, 0)
    lab("K1_END")
    o("s_endpgm")
    lab("K1_OFF")
    for j in range(8): o(f"v_lshl_add_u32 v{24+j}, v{24+j}, 19, v{32+j}"); o(f"v_add_u32 v{24+j}, s34, v{24+j}")
    o(f"v_mul_u32_u24 v41, {OG//16}, v20"); o("s_lshl_b32 s35, s36, 4"); o(f"s_add_u32 s35, s35, {WS_OFF:#x}"); o(f"s_add_u32 s30, s35, {OG}")
    o("buffer_store_dwordx4 v[24:27], v41, s[24:27], s35 offen"); o("buffer_store_dwordx4 v[28:31], v41, s[24:27], s30 offen")
    o("s_branch K1_O2")
    lab("K1_LOAD")
    o("s_barrier")
    nb = int(OPT.get('k1b', 16))
    o("s_cmp_eq_u32 s33, 7"); o("s_cbranch_scc1 K1_LX")
    o("s_cmp_eq_u32 s33, 6"); o("s_cselect_b32 s42, s48, s42"); o("s_cselect_b32 s43, s49, s43"); o("s_cselect_b32 s39, 0x8000, 0"); o(f"s_add_u32 s39, s39, {K1_W}")
    srd(52, 42, 32768)
    o("v_lshrrev_b32 v44, 4, v20"); o("v_lshlrev_b32 v44, 6, v44"); o("v_xor_b32 v44, v44, v42")
    for k in range(32):
        if k == nb: o("s_barrier")
        if k % 4 == 0: o(f"s_add_u32 m0, s39, {k*1024}"); o(f"s_movk_i32 s14, {k*1024}")
        o(f"buffer_load_dwordx4 v44, s[52:55], s14 offen offset:{(k%4)*1024} lds")
    lab("K1_LD")
    addrs()
    o("s_waitcnt vmcnt(0)"); o("s_barrier")
    o("s_branch K1_J")
    lab("K1_LX")
    srd(60, 4, N, 256)
    o("v_lshl_add_u32 v58, v57, 3, v56"); o("v_add_u32 v53, s37, v58")
    o("v_and_b32 v55, 15, v0"); o("v_lshlrev_b32 v59, 3, v56"); o("v_xor_b32 v55, v55, v59"); o("v_lshlrev_b32 v55, 4, v55")
    o("v_cmp_gt_u32 vcc, 2, v58"); o("v_mov_b32 v59, 0xffff")
    for k in range(25):
        t, i = divmod(k, 8)
        if k == nb: o("s_barrier")
        o(f"s_mov_b32 m0, {K1_X + t*8320 + i*1040}"); o(f"v_add_u32 v54, {32*t + 16*(i >> 2) + 2*(i & 3)}, v53")
        if t == 3: o("v_cndmask_b32 v54, v59, v54, vcc")
        o("buffer_load_dwordx4 v[54:55], s[60:63], 0 idxen offen lds")
    o("s_cmp_ge_u32 s2, 68"); o("s_cbranch_scc1 K1_LD")
    o("s_lshr_b32 s14, s2, 5")
    o("s_cmp_eq_u32 s14, 1"); o("s_cselect_b32 s40, s46, s40"); o("s_cselect_b32 s41, s47, s41"); o(f"s_cselect_b32 s68, 1.0, {NLOG2E:#x}")
    o("s_mov_b32 s66, 32768"); o("s_bfe_u32 s50, s2, 0x20003"); o("s_and_b32 s51, s2, 7"); o("s_mov_b32 s32, 14")
    o("s_cmp_eq_u32 s14, 2"); o("s_cselect_b32 s40, s44, s40"); o("s_cselect_b32 s41, s45, s41"); o("s_cselect_b32 s66, 4096, s66")
    o("s_cselect_b32 s50, s51, s50"); o("s_cselect_b32 s51, 0, s51"); o("s_cselect_b32 s32, 11, s32")
    o("s_mov_b32 s64, s40"); o("s_and_b32 s65, s41, 0xffff"); o("s_mov_b32 s67, 0x20000")
    o("s_lshl_b32 s50, s50, 6"); o("s_lshl_b32 s51, s51, 11"); o("s_add_u32 s50, s50, s51")
    o("v_and_b32 v4, 3, v0"); o("v_bfe_u32 v5, v0, 3, 2"); o("v_lshl_or_b32 v4, v5, 2, v4")
    o("v_bfe_u32 v5, v0, 2, 1"); o("v_lshl_or_b32 v4, v5, 4, v4")
    o("v_lshlrev_b32 v5, s32, v57"); o("v_lshl_add_u32 v4, v4, 1, v5"); o("v_add_u32 v4, s50, v4")
    for j in range(8): o(f"buffer_load_ushort v{8+j}, v4, s[64:67], 0 offen offset:{j*256}")
    o("s_branch K1_LD")
    lab("K1_PREP2")
    o("s_lshl_b32 s14, s2, 10"); o(f"s_add_u32 s14, s14, {WS_WF:#x}")
    for j in range(8):
        o(f"v_lshlrev_b32 v{8+j}, 16, v{8+j}"); o(f"v_mul_f32 v{8+j}, s68, v{8+j}")
    for j in range(4): o(f"v_cvt_pk_bf16_f32 v{52+j}, v{8+2*j}, v{9+2*j}")
    o("buffer_store_dwordx4 v[52:55], v42, s[24:27], s14 offen")
    o("s_branch K1_G")

def regs_of(tok):
    m = re.fullmatch(r"v\[(\d+):(\d+)\]", tok)
    if m: return set(range(int(m.group(1)), int(m.group(2)) + 1))
    m = re.fullmatch(r"v(\d+)", tok)
    return {int(m.group(1))} if m else set()
def check_hazards(ins):
    P = []
    for s in ins:
        if s.endswith(':'): continue
        op, _, rest = s.partition(' ')
        t = [x.strip() for x in rest.split(',')]
        t = [x.split(' ')[0] for x in t]
        if op.startswith('v_mfma'):
            P.append(('m', 12 if '32x32' in op else 8, regs_of(t[0]), regs_of(t[1]) | regs_of(t[2]), regs_of(t[3]), s))
        elif op.startswith('v_'):
            P.append(('t' if op in ('v_exp_f32', 'v_rcp_f32') else 'v', 0, regs_of(t[0]), set().union(*map(regs_of, t[1:])), set(), s))
        elif op.startswith('ds_read'):
            P.append(('d', 0, regs_of(t[0]), regs_of(t[1]), set(), s))
        elif op.startswith('buffer'):
            P.append(('d', 0, set(), regs_of(t[0]), set(), s))
        else: P.append(('s', 0, set(), set(), set(), s))
    n = len(P)
    for i, (k, w, d, ab, c, s) in enumerate(P):
        for j in range(1, 13):
            k2, w2, d2, ab2, c2, s2 = P[(i + j) % n]
            gap = j - 1
            if k == 'm':
                if k2 == 'm':
                    assert not (gap < w and d & ab2), (s, s2)
                    if d & c2 and d != c2: assert gap >= w - 2, (s, s2)
                else: assert not (gap < w and d & (d2 | ab2)), (s, s2, gap)
                if k2 in 'vt': assert not (gap < (7 if w == 12 else 3) and c & d2), (s, s2)
            if k in 'vt' and k2 == 'm': assert not (gap < 2 and d & (ab2 | c2)), (s, s2)
            if k == 't' and k2 == 'v': assert not (gap < 1 and d & ab2), (s, s2)

LOWLIM = 2; NS = 2
LUT = 0; IDT = 4096; NB = IDT + 26 * 80; LIST = NB + 256; MB = LIST + 8192; ROW = 264; CNT = MB + 26 * ROW; ZSZ = 26 * ROW + 256
ER = CNT + 256; RING = ER + 8192; WS_ = 4160; SLOT = 4 * WS_; K2_LDS = RING + (NS + 1) * SLOT
assert K2_LDS <= 81920 and ER % 16 == 0 and LIST % 16 == 0 and MB % 16 == 0 and 4096 < ZSZ <= 8192 and ZSZ % 16 == 0

class RA:
    def __init__(s): s.n = 1
    def get(s, k=1, al=1):
        s.n = (s.n + al - 1) // al * al
        b = s.n; s.n += k; return b
R = RA()
vTA = R.get()
IX = [R.get(2, 2) for _ in range(4)]; IXE = R.get(2, 2); MQ = R.get(2, 2)
(vTC, vEA, vMT, vSA, vMA, vL1, vL2, vSV, vHC, vWF, vXA, vXR, vXI, vXO) = [R.get() for _ in range(14)]
SEG = R.get(4, 4); PT = R.get(4, 4)
GV = R.get(64, 4); ACC = R.get(64, 4)
TF = R.get(16, 4); EF = R.get(4, 4); SF = R.get(8, 4); WC = R.get(4, 4); T0 = R.get(8, 4); AF = R.get(16, 4); SEL = R.get(8, 4)
NVGPR = R.n
assert NVGPR <= 255, NVGPR
REC = GV; RANK = GV + 32; AD = GV + 48
sX, sE, sW, sO, sT = 8, 12, 16, 20, 96
sWAVE, sBASE, sMR, sME, sCNT, sNT, sRS, sLIM, sFIRST, sMORE, sDS, sT0, sT1, sEPS, s80, sMET = range(24, 40)
sHM, sSV, sWF, sS0 = 42, 44, 52, 54
sK = 56

def ldt(i): return f"buffer_load_dwordx4 {vr(IX[i],2)}, s[{sT}:{sT+3}], 0 idxen offen lds"
def lde(): return f"buffer_load_dwordx4 {vr(IXE,2)}, s[{sE}:{sE+3}], 0 idxen offen lds"
def loff(u): return (u & 1) * 4096 + (u >> 1) * 256
def nextslot(r): return [f"s_add_u32 s{r}, s{r}, {SLOT}", f"s_cmp_eq_u32 s{r}, {NS*SLOT}", f"s_cselect_b32 s{r}, 0, s{r}"]

def vstream(Gc, Vc):
    A = []
    for p in range(0, 22, 2):
        if p < 16: A += [(f"v_exp_f32 v{Gc+p}, v{Gc+p}", 8), (f"v_exp_f32 v{Gc+p+1}, v{Gc+p+1}", 8)]
        q = p - 2
        if 0 <= q < 16:
            A += [(f"v_add_f32 v{Gc+q}, 1.0, v{Gc+q}", 4), (f"v_add_f32 v{Gc+q+1}, 1.0, v{Gc+q+1}", 4),
                  (f"v_rcp_f32 v{Gc+q}, v{Gc+q}", 8), (f"v_rcp_f32 v{Gc+q+1}, v{Gc+q+1}", 8)]
        q = p - 4
        if 0 <= q < 16: A += [(f"v_mul_f32 v{Vc+q}, v{Gc+q}, v{Vc+q}", 4), (f"v_mul_f32 v{Vc+q+1}, v{Gc+q+1}, v{Vc+q+1}", 4)]
        q = p - 6
        if 0 <= q < 16: A += [(f"v_cvt_pk_bf16_f32 v{Gc+q//2}, v{Gc+q}, v{Gc+q+1}", 4), (f"v_cvt_pk_bf16_f32 v{Vc+q//2}, v{Vc+q}, v{Vc+q+1}", 4)]
    return A
def zphase(P, p):
    d = ACC + 32 * p
    return [m32(d, P, T0, d), m32(d+16, P+16, T0, d+16), m32(d, P+4, T0+4, d), m32(d+16, P+20, T0+4, d+16)]

HEAD = {}
def body(b, peel=False):
    p = b % 2
    Gn = GV + 32 * p; Vn = Gn + 16; Gc = GV + 32 * (1 - p); Vc = Gc + 16; af = AF + 8 * p
    ne = sum(1 for k in range(NS - 1) if (b - k) % 4 == 0) + (1 if (b - (NS - 1)) % 4 == 0 else 0)
    vmw = 4 * (NS - 1) + ne
    z = zphase(Gn, p)
    def dma(i): return [f"s_add_u32 m0, s{sDS}, {i*1040}", None, ldt(i), f"ds_read_u16 v{IX[i]}, v{vL1} offset:{loff(b+NS+1)+64*i}"]
    top = ["s_waitcnt vmcnt(8) lgkmcnt(0)", "s_barrier"] if b == 3 else ["s_waitcnt lgkmcnt(0)"]
    seq = []
    seq.append([z[0], [f"s_add_u32 s{sDS}, s{sMR}, s{sRS}"] + dma(0), [f"v_mad_u32_u24 v{vSV}, v{vSV}, s{s80}, v{vHC}"]])
    seq.append([z[1], [f"ds_read_b128 {vr(SF,4)}, v{vSV}", f"ds_read_b128 {vr(SF+4,4)}, v{vSV} offset:32"] + dma(1), []])
    seq.append([z[2], dma(2) + [f"ds_read_u8 v{vSV}, v{vSA} offset:{loff(b+1)}"], []])
    seq.append([z[3], dma(3) + ([f"s_sub_u32 s{sCNT}, s{sCNT}, 1", "s_cbranch_scc1 TAIL"] if p == 0 else []) + [f"ENT{b}:"], []])
    e1 = [f"s_mov_b32 m0, s{sME}", None, lde(), f"s_xor_b32 s{sME}, s{sME}, s{sMET}"] if b == 0 else []
    seq.append([m32(Gn, TF, SEL, None), [f"ds_read_b128 {vr(T0,4)}, v{MQ}"] + e1, [f"v_and_b32 v{IXE}, 0x7ffff, v{IXE}"] if b == 0 else []])
    seq.append([m32(Gn, TF+4, SEL+4, Gn), [f"ds_read_b128 {vr(T0+4,4)}, v{MQ+1}"] + nextslot(sRS), [f"v_xor_b32 v{vEA}, v{vEA}, v{vMT}"] if b == 3 else []])
    seq.append([m32(Gn, EF, WC, Gn), [f"ds_read_b128 {vr(EF,4)}, v{vEA} offset:{(b+1)%4*1024}", f"ds_read_u16 v{MQ}, v{vMA} offset:{b*8}",
                f"ds_read_u16 v{MQ+1}, v{vMA} offset:{b*8+2}"], [f"v_add_u32 v{vTC}, s{sRS}, v{vTA}"]])
    seq.append([m32(Vn, TF+8, SEL, None), [f"ds_read_b32 v{IXE}, v{vL2}"] if b == 3 else [], []])
    seq.append([m32(Vn, TF+12, SEL+4, Vn), [None, f"s_waitcnt lgkmcnt({10 if b == 3 else 9})"], []])
    seq.append([m32(Gn, SF, af, Gn), [None, f"s_waitcnt vmcnt({vmw})"],
                [f"v_add_u32 v{r}, 0x200, v{r}" for r in (vSA, vL1, vL2)] + [f"v_add_u32 v{vMA}, 32, v{vMA}"] if b == 3 else []])
    seq.append([m32(Gn, SF+4, af+4, Gn), [f"ds_read_b128 {vr(TF+4*j,4)}, v{vTC} offset:{16*j}" for j in range(4)], []])
    A = [] if peel else vstream(Gc, Vc)
    wt = [float(x) for x in OPT.get('wt', '1,1,1,1,1,1,1,1,1,1,1.6').split(',')]
    tot = sum(c for _, c in A); out = list(top); ai = 0; acc = 0; budget = 0
    for i, (m, ex, xv) in enumerate(seq):
        budget += tot * wt[i] / sum(wt)
        g = []
        while ai < len(A) and acc + A[ai][1] / 2 <= budget + 0.01:
            g.append(A[ai][0]); acc += A[ai][1]; ai += 1
        if i == 3 and not peel: HEAD[b] = ai
        if not (peel and i < 4): out.append(m)
        g = xv + g
        last = [x for x in ex if x and (x.startswith("s_waitcnt") or x.startswith("s_cbranch") or x.endswith(":") or x.startswith("s_sub"))]
        ex = [x for x in ex if x not in last]
        if peel: last = [x for x in last if x.startswith("s_waitcnt")]
        first = True
        for x in ex:
            if x is None:
                continue
            if not first and g: out.append(g.pop(0))
            elif not first and peel and x.startswith("buffer"): out.append("s_nop 0")
            out.append(x); first = False
        out += g + last
    assert ai == len(A)
    if OPT.get('nodma'): out = [x for x in out if 'buffer_load' not in x]
    if OPT.get('noe'): out = [x for x in out if f"s[{sE}:{sE+3}]" not in x]
    return out

def emit(lst):
    for it in lst:
        if it.endswith(':'): lab(it[:-1])
        else: o(it)

def masks(tmp):
    a, b_, c = tmp
    o(f"v_and_b32 v{a}, 3, v0"); o(f"v_lshlrev_b32 v{a}, 1, v{a}"); o(f"v_mov_b32 v{c}, 0")
    for i in range(4):
        o(f"v_lshrrev_b32 v{b_}, 19, v{SEG+i}"); o(f"v_max_u32 v{c}, v{c}, v{b_}")
        o(f"v_min_u32 v{b_}, s{sLIM}, v{b_}"); o(f"v_sub_u32 v{b_}, v{b_}, v{a}")
        for j, k in ((0, 2*i), (1, 2*i+1), (8, 8+2*i), (9, 9+2*i)): o(f"v_cmp_lt_i32 s[{sK+2*k}:{sK+2*k+1}], {j}, v{b_}")
    o(f"v_cmp_lt_u32 vcc, s{sLIM}, v{c}")
    o(f"s_or_b64 s[{sSV}:{sSV+1}], s[{sK+16}:{sK+17}], s[{sK+20}:{sK+21}]"); o(f"s_or_b64 s[{sHM}:{sHM+1}], s[{sK+24}:{sK+25}], s[{sK+28}:{sK+29}]")
    o(f"s_or_b64 s[{sSV}:{sSV+1}], s[{sSV}:{sSV+1}], s[{sHM}:{sHM+1}]")
    o(f"v_mov_b32 v{b_}, {CNT-4}")
    o("s_mov_b64 exec, vcc"); o(f"ds_write_b32 v{b_}, v{b_}"); o("s_mov_b64 exec, -1")

def interleave(mf, other, per):
    other = list(other)
    for m in mf:
        o(m)
        for _ in range(per):
            if other: o(other.pop(0))
    for x in other: o(x)
def capture(fn):
    n = len(L); fn(); r = [x.strip() for x in L[n:]]; del L[n:]; return r
def wload(dst, off):
    r = []
    for s in range(8):
        if s % 4 == 0: r.append(f"s_add_u32 s{sT0}, s{sWF}, {off + s*1024:#x}")
        r.append(f"buffer_load_dwordx4 {vr(dst+4*s,4)}, v{vWF}, s[{sW}:{sW+3}], s{sT0} offen offset:{(s%4)*1024}")
    return r
def xblk(base, pair):
    o(f"v_mov_b32 v{pair+1}, v{vXO}")
    for mt in range(2):
        for a in range(2):
            o(f"s_add_u32 m0, s{base}, {(2*mt+a)*1040}")
            o(f"v_cmp_gt_u32 vcc, {(NA if mt == 0 else RN-NA) - 2*a}, v{vXI}")
            o(f"s_add_u32 s{sT0}, s{sBASE}, {NA*mt + 2*a}"); o(f"v_add_u32 v{pair}, s{sT0}, v{vXI}")
            o(f"v_cndmask_b32 v{pair}, v{PT+3}, v{pair}, vcc")
            o(f"buffer_load_dwordx4 {vr(pair,2)}, s[{sX}:{sX+3}], 0 idxen offen lds")

def gen_k2():
    L.append(".globl gmain_kernel"); L.append(".p2align 8"); L.append(".type gmain_kernel,@function")
    lab("gmain_kernel"); VST[0] = 255
    t = [TF + i for i in range(28)]
    stamp(0)
    o("s_load_dwordx2 s[50:51], s[0:1], 88")
    o("s_load_dwordx4 s[4:7], s[0:1], 0")
    o("s_load_dwordx2 s[48:49], s[0:1], 72")
    o("s_setprio 3")
    o(f"v_lshrrev_b32 v{t[0]}, 6, v0")
    o("s_and_b32 s3, s2, 7"); o("s_lshl_b32 s3, s3, 6"); o(f"s_bfe_u32 s{sT0}, s2, 0x50003"); o(f"s_lshl1_add_u32 s3, s{sT0}, s3")
    o(f"v_readfirstlane_b32 s{sWAVE}, v{t[0]}")
    o(f"s_lshr_b32 s{sT0}, s2, 8"); o(f"s_add_u32 s3, s3, s{sT0}")
    o("s_cmp_ge_u32 s2, 512"); o("s_cbranch_scc1 K2_END")
    o(f"s_cmp_ge_u32 s3, {NR}"); o("s_cbranch_scc1 K2_END")
    o(f"v_lshrrev_b32 v{t[1]}, 2, v0")
    o(f"s_lshr_b32 s{sS0}, s3, 2"); o(f"s_mul_i32 s{sS0}, s{sS0}, {OG}"); o(f"s_and_b32 s{sT0}, s3, 3"); o(f"s_lshl2_add_u32 s{sS0}, s{sT0}, s{sS0}"); o(f"s_add_u32 s{sS0}, s{sS0}, {WS_OFF:#x}")
    o(f"v_lshlrev_b32 v{t[1]}, 6, v{t[1]}")
    o(f"s_mul_i32 s{sBASE}, s3, {RN}")
    o(f"v_and_b32 v{vWF}, 63, v0"); o(f"v_lshlrev_b32 v{vWF}, 4, v{vWF}")
    o(f"s_mul_i32 s{sMR}, s{sWAVE}, {WS_}"); o(f"s_add_u32 s{sMR}, s{sMR}, {RING}")
    o(f"s_lshl_b32 s{sWF}, s{sWAVE}, 13"); o(f"s_add_u32 s{sWF}, s{sWF}, {WS_WF:#x}")
    o(f"s_mov_b32 s{sEPS}, {EPS:#x}"); o(f"s_movk_i32 s{s80}, 80")
    o(f"s_mov_b32 s{sFIRST}, 1"); o(f"s_mov_b32 s{sLIM}, 16")
    o("s_waitcnt lgkmcnt(0)"); xstamp("karg")
    srd(sW, 50, WS_SIZE)
    for i in range(4): o(f"buffer_load_dword v{SEG+i}, v{t[1]}, s[{sW}:{sW+3}], s{sS0} offen offset:{16*i}")
    srd(sX, 4, N, 256); srd(sE, 6, E, 32); srd(sO, 48, N, 256)
    o(f"s_add_u32 s50, s50, {WS_TAB:#x}"); o("s_addc_u32 s51, s51, 0"); srd(sT, 50, N, 512)
    lab("ROUND")
    b0, b2, b3, b4, vh = t[16:21]
    o(f"v_lshlrev_b32 v{t[11]}, 4, v0")
    for d in range(4): o(f"v_mov_b32 v{t[0]+d}, 0")
    for off in (0, ZSZ - 4096): o(f"ds_write_b128 v{t[11]}, {vr(t[0],4)} offset:{MB+off}")
    pad0 = 0xffff | (NA << 16)
    o(f"v_mov_b32 v{t[4]}, {pad0:#x}"); o(f"v_mov_b32 v{t[5]}, 0x7ffff"); o(f"v_mov_b32 v{t[6]}, {pad0:#x}"); o(f"v_mov_b32 v{t[7]}, 0x7ffff")
    o(f"ds_write_b128 v{t[11]}, {vr(t[4],4)} offset:{LIST}"); o(f"ds_write_b128 v{t[11]}, {vr(t[4],4)} offset:{LIST+4096}")
    o(f"v_and_b32 v{b0}, 1, v0"); o(f"v_bfe_u32 v{b2}, v0, 2, 1"); o(f"v_bfe_u32 v{b3}, v0, 3, 1"); o(f"v_bfe_u32 v{b4}, v0, 4, 1"); o(f"v_bfe_u32 v{vh}, v0, 5, 1")
    o(f"v_and_b32 v{t[8]}, 3, v0"); o(f"v_lshlrev_b32 v{t[8]}, 1, v{t[8]}")
    o(f"v_mov_b32 v{t[9]}, 0x7ffffff0"); o(f"s_mov_b32 s{sT1}, 0x7ffff")
    o(f"v_and_b32 v{t[12]}, 15, v0"); o(f"v_lshlrev_b32 v{t[13]}, 3, v{b4}")
    o(f"v_xor_b32 v{vXO}, v{t[12]}, v{t[13]}"); o(f"v_lshlrev_b32 v{vXO}, 4, v{vXO}")
    o(f"s_lshr_b32 s{sT0}, s{sWAVE}, 1"); o(f"s_lshl_b32 s{sT0}, s{sT0}, 4"); o(f"s_and_b32 s{sS0}, s{sWAVE}, 1"); o(f"s_lshl2_add_u32 s{sT0}, s{sS0}, s{sT0}")
    o(f"v_lshl_add_u32 v{vXI}, v{vh}, 3, v{b4}"); o(f"v_add_u32 v{vXI}, s{sT0}, v{vXI}")
    o(f"v_mov_b32 v{PT+3}, 0xffff")
    xstamp("consts_done")
    o("s_waitcnt vmcnt(0)"); stamp(1)
    for i in range(4):
        o(f"v_lshrrev_b32 v{t[4+i]}, 19, v{SEG+i}"); o(f"v_cmp_lt_u32 vcc, v{t[8]}, v{t[4+i]}")
        o(f"v_and_b32 v{t[i]}, s{sT1}, v{SEG+i}"); o(f"v_add_lshl_u32 v{t[i]}, v{t[i]}, v{t[8]}, 3")
        o(f"v_cndmask_b32 v{t[10]}, v{t[9]}, v{t[i]}, vcc")
        o(f"buffer_load_dwordx4 {vr(REC+4*i,4)}, v{t[10]}, s[{sW}:{sW+3}], 0 offen")
    o(f"v_max3_u32 v{t[10]}, v{t[4]}, v{t[5]}, v{t[6]}"); o(f"v_max_u32 v{t[10]}, v{t[10]}, v{t[7]}")
    o(f"v_cmp_lt_u32 vcc, 8, v{t[10]}"); o("s_cbranch_vccz REC_DONE")
    for i in range(4): o(f"buffer_load_dwordx4 {vr(REC+16+4*i,4)}, v{t[i]}, s[{sW}:{sW+3}], 0 offen offset:64")
    lab("REC_DONE")
    xstamp("rec_issued")
    PF = int(OPT.get('pf', 0))
    def pref():
        o(f"s_lshr_b32 s{sT0}, s3, 6"); o(f"s_mul_i32 s{sT0}, s{sT0}, {64*RN}"); o(f"s_and_b32 s{sT1}, s3, 63"); o(f"s_lshl_b32 s{sT1}, s{sT1}, 6"); o(f"s_add_u32 s{sT0}, s{sT0}, s{sT1}")
        o(f"v_lshrrev_b32 v{T0+2}, 2, v0"); o(f"v_add_u32 v{T0+2}, s{sT0}, v{T0+2}"); o(f"v_and_b32 v{T0+1}, 3, v0"); o(f"v_lshlrev_b32 v{T0+1}, 7, v{T0+1}")
        for k in range(PF):
            o(f"v_add_u32 v{T0+3}, {-512*RN}, v{T0+2}"); o(f"v_min_u32 v{T0}, v{T0+2}, v{T0+3}")
            o(f"buffer_load_dword v{SEL}, {vr(T0,2)}, s[{sT}:{sT+3}], 0 idxen offen")
            if k + 1 < PF: o(f"v_add_u32 v{T0+2}, 4096, v{T0+2}")
    PFW = OPT.get('pfw', 'rec')
    if PF and PFW == 'rec': pref()
    o("s_waitcnt lgkmcnt(0)"); o("s_barrier"); stamp(2)
    pp = t[14]
    o(f"v_and_b32 v{pp}, 0x13, v0"); o(f"v_lshl_or_b32 v{pp}, v{b2}, 3, v{pp}"); o(f"v_lshl_or_b32 v{pp}, v{b3}, 2, v{pp}")
    o(f"v_lshrrev_b32 v{t[12]}, 3, v{pp}"); o(f"v_lshlrev_b32 v{vTA}, 7, v{pp}"); o(f"v_lshl_add_u32 v{vTA}, v{t[12]}, 4, v{vTA}")
    o(f"v_bfe_u32 v{t[13]}, v0, 1, 1"); o(f"v_xor_b32 v{t[12]}, v{t[13]}, v{vh}"); o(f"v_lshl_add_u32 v{vTA}, v{t[12]}, 6, v{vTA}"); o(f"v_add_u32 v{vTA}, s{sMR}, v{vTA}")
    o(f"v_and_b32 v{t[12]}, 7, v0"); o(f"v_lshlrev_b32 v{t[15]}, 2, v{b4}"); o(f"v_xor_b32 v{t[15]}, v{t[15]}, v{t[12]}")
    o(f"s_lshl_b32 s{sT0}, s{sWAVE}, 7"); o(f"v_lshl_add_u32 v{IX[0]+1}, v{t[15]}, 4, s{sT0}")
    for i in range(1, 4): o(f"v_mov_b32 v{IX[i]+1}, v{IX[0]+1}")
    o(f"v_and_b32 v{vL1}, 0x38, v0"); o(f"v_add_u32 v{vL1}, {LIST}, v{vL1}")
    o(f"v_lshl_or_b32 v{t[15]}, v{b4}, 1, v{b2}"); o(f"v_mul_u32_u24 v{t[15]}, {WS_}, v{t[15]}"); o(f"v_mul_u32_u24 v{t[13]}, 1040, v{t[13]}")
    o(f"v_lshl_or_b32 v{t[21]}, v{b3}, 1, v{b0}"); o(f"v_lshl_add_u32 v{t[15]}, v{t[21]}, 8, v{t[15]}"); o(f"v_add3_u32 v{t[15]}, v{t[15]}, v{t[13]}, 0")
    o(f"v_add_u32 v{t[15]}, {RING + NS*SLOT}, v{t[15]}")
    o(f"v_xor_b32 v{t[13]}, v{vh}, v{b0}"); o(f"v_lshl_add_u32 v{vXA}, v{t[13]}, 7, v{t[15]}")
    o(f"v_lshlrev_b32 v{IXE+1}, 4, v{t[13]}")
    o(f"v_bfe_u32 v{t[13]}, v0, 7, 1"); o(f"v_xor_b32 v{t[13]}, v{t[13]}, v{b0}"); o(f"v_lshl_add_u32 v{vXR}, v{t[13]}, 7, v{t[15]}")
    o(f"v_and_b32 v{t[13]}, 0x60, v0"); o(f"v_add_u32 v{vXR}, v{vXR}, v{t[13]}")
    o(f"s_lshl_b32 s{sT0}, s{sS0}, 12"); o(f"s_lshr_b32 s{sT1}, s{sWAVE}, 1"); o(f"s_lshl_b32 s{sT1}, s{sT1}, 8"); o(f"s_add_u32 s{sT0}, s{sT0}, s{sT1}"); o(f"s_add_u32 s{sT0}, s{sT0}, {LIST+4}")
    o(f"v_bfe_u32 v{vL2}, v0, 1, 5"); o(f"v_lshl_add_u32 v{vL2}, v{vL2}, 3, s{sT0}")
    o(f"s_lshl_b32 s{sME}, s{sWAVE}, 10"); o(f"s_add_u32 s{sME}, s{sME}, {ER}")
    o(f"v_lshlrev_b32 v{vSA}, 3, v{pp}"); o(f"v_add_u32 v{vSA}, {LIST+2}, v{vSA}")
    o(f"v_lshlrev_b32 v{vHC}, 4, v{vh}"); o(f"v_add_u32 v{vHC}, {IDT}, v{vHC}")
    o(f"v_xor_b32 v{vEA}, v{b4}, v{vh}"); o(f"v_lshlrev_b32 v{vEA}, 4, v{vEA}")
    o(f"v_lshl_add_u32 v{vEA}, v{pp}, 5, v{vEA}"); o(f"v_add_u32 v{vEA}, {ER}, v{vEA}")
    o(f"v_add_u32 v{vMT}, 4096, v{vEA}"); o(f"v_xor_b32 v{vMT}, v{vMT}, v{vEA}")
    o(f"v_and_b32 v{t[13]}, 31, v0"); o(f"v_min_u32 v{t[13]}, {NA}, v{t[13]}")
    o(f"v_mul_u32_u24 v{vMA}, {ROW}, v{t[13]}"); o(f"v_lshl_add_u32 v{vMA}, v{vh}, 2, v{vMA}"); o(f"v_add_u32 v{vMA}, {MB}, v{vMA}")
    o(f"v_lshrrev_b32 v{PT+2}, 5, v0"); o(f"v_lshlrev_b32 v{PT+2}, 4, v{PT+2}"); o(f"v_lshl_add_u32 v{PT+2}, v{b3}, 2, v{PT+2}")
    o(f"v_lshl_add_u32 v{t[12]}, v{b4}, 4, v{t[12]}"); o(f"v_lshlrev_b32 v{PT+1}, v{t[12]}, 16")
    o(f"v_and_b32 v{t[12]}, 3, v0"); o(f"v_lshl_add_u32 v{t[12]}, v{b4}, 2, v{t[12]}"); o(f"v_lshlrev_b32 v{t[12]}, v{t[12]}, 16")
    o(f"v_cmp_eq_u32 vcc, v{b3}, v{vh}"); o(f"v_lshlrev_b32 v{t[13]}, 4, v{b2}"); o("s_nop 0")
    o(f"v_cndmask_b32 v{t[12]}, 0, v{t[12]}, vcc"); o(f"v_lshlrev_b32 v{PT}, v{t[13]}, v{t[12]}")
    lab("REMASK")
    masks((t[0], t[1], t[2])); xstamp("masks_done")
    a, b_, c, d_ = t[0:4]; ad = [AD + k for k in range(16)]
    o(f"v_mov_b32 v{a}, 8")
    o(f"v_lshrrev_b32 v{b_}, 2, v{vWF}")
    if PF and PFW == 'mask': pref()
    o(f"s_waitcnt vmcnt({PF if PFW in ('rec', 'mask') else 0})"); xstamp("rec_landed")
    for half in range(2):
        if half: o(f"s_cmp_eq_u64 s[{sSV}:{sSV+1}], 0"); o("s_cbranch_scc1 P1_DONE"); o("s_mov_b64 exec, -1")
        for k in range(8*half, 8*half+8): o(f"v_lshrrev_b32 v{ad[k]}, 24, v{REC+2*k+1}")
        for k in range(8*half, 8*half+8):
            o(f"s_mov_b64 exec, s[{sK+2*k}:{sK+2*k+1}]")
            o(f"ds_add_rtn_u32 v{RANK+k}, v{ad[k]}, v{a} offset:{CNT}")
    lab("P1_DONE")
    o("s_mov_b64 exec, -1")
    o(f"s_cmp_eq_u32 s{sFIRST}, 0"); o("s_cbranch_scc1 NOW")
    o(f"s_add_u32 s{sDS}, s{sMR}, {NS*SLOT}")
    xblk(sDS, t[4])
    for x in wload(ACC, WF_A): o(x)
    o(f"s_lshl_b32 s{sT0}, s{sWAVE}, 10"); o(f"s_add_u32 s{sT0}, s{sT0}, {WS_WF+WF_C:#x}")
    o(f"buffer_load_dwordx4 {vr(WC,4)}, v{vWF}, s[{sW}:{sW+3}], s{sT0} offen")
    lab("NOW")
    if PF and PFW == 'p1': pref()
    o("s_waitcnt lgkmcnt(0)"); xstamp("p1_done"); o("s_barrier"); xstamp("b1")
    o(f"ds_read_b32 v{c}, v{b_} offset:{CNT}")
    o(f"ds_read_b32 v{t[4]}, v{b_} offset:{CNT-4}")
    o(f"v_lshlrev_b32 v{t[5]}, 12, v{vh}")
    o("s_waitcnt lgkmcnt(1)")
    o(f"v_sub_u32 v{d_}, v{t[5]}, v{c}")
    for dd in ("row_shr:1", "row_shr:2", "row_shr:4", "row_shr:8"):
        o(f"v_add_u32_dpp v{c}, v{c}, v{c} {dd} row_mask:0xf bank_mask:0xf bound_ctrl:0"); o("s_nop 1")
    o(f"v_add_u32_dpp v{c}, v{c}, v{c} row_bcast:15 row_mask:0xa bank_mask:0xf")
    o(f"v_add_u32 v{d_}, v{c}, v{d_}")
    o(f"ds_write_b32 v{b_}, v{d_} offset:{NB}")
    o(f"v_readlane_b32 s{sNT}, v{c}, 31"); o(f"v_readlane_b32 s{sT0}, v{c}, 63")
    for k in range(8): o(f"ds_read_b32 v{ad[k]}, v{ad[k]} offset:{NB}")
    o(f"s_max_u32 s{sNT}, s{sNT}, s{sT0}")
    o(f"s_cmp_le_u32 s{sNT}, 4096"); o("s_cbranch_scc0 TOOBIG")
    xstamp("scan_done")
    for half in range(2):
        if half:
            o(f"s_cmp_eq_u64 s[{sSV}:{sSV+1}], 0"); o("s_cbranch_scc1 P2_DONE"); o("s_mov_b64 exec, -1")
            for k in range(8, 16): o(f"ds_read_b32 v{ad[k]}, v{ad[k]} offset:{NB}")
        for k in range(8*half, 8*half+8):
            if k % 4 == 0: o(f"s_waitcnt lgkmcnt({4 - k % 8})")
            o(f"v_add_u32 v{RANK+k}, v{RANK+k}, v{ad[k]}")
        for k in range(8*half, 8*half+8):
            o(f"s_mov_b64 exec, s[{sK+2*k}:{sK+2*k+1}]")
            o(f"ds_write_b64 v{RANK+k}, {vr(REC+2*k,2)} offset:{LIST}")
    lab("P2_DONE")
    o("s_mov_b64 exec, -1")
    o(f"v_readlane_b32 s{sMORE}, v{t[4]}, 0")
    o(f"s_mov_b32 m0, s{sME}")
    o(f"s_waitcnt vmcnt({9 + (PF if PFW == 'p1' else 0)}) lgkmcnt(0)"); xstamp("p2_done"); o("s_barrier"); stamp(5)
    f = t
    def rdidx(u):
        for i in range(4): o(f"ds_read_u16 v{IX[i]}, v{vL1} offset:{loff(u)+64*i}")
    def fill(u, nxt):
        for i in range(4):
            o(f"s_add_u32 m0, s{sMR}, {u*SLOT + i*1040}"); o(f"s_waitcnt lgkmcnt(3)"); o(ldt(i))
            o(f"ds_read_u16 v{IX[i]}, v{vL1} offset:{loff(nxt)+64*i}")
    o(f"ds_read_b32 v{IXE}, v{vL2}"); rdidx(0)
    o(f"v_lshlrev_b32 v{f[9]}, 3, v0")
    o("s_waitcnt lgkmcnt(4)")
    o(f"v_and_b32 v{IXE}, 0x7ffff, v{IXE}"); o(lde())
    for u in range(NS): fill(u, u + 1)
    for k in range(4): o(f"ds_read_u8 v{f[12+k]}, v{f[9]} offset:{LIST+2+k*2048}")
    o(f"ds_read_b32 v{IXE}, v{vL2} offset:512"); o(f"ds_read_u8 v{vSV}, v{vSA}")
    xstamp("fill_issued")
    def ctrl():
        o(f"s_movk_i32 s{sS0}, {ROW}")
        for k in range(4):
            o(f"v_cmp_gt_u32 vcc, {NA}, v{f[12+k]}"); o(f"v_mad_u32_u24 v{f[0]}, v{f[12+k]}, s{sS0}, v{PT+2}"); o("s_nop 0")
            o(f"v_cndmask_b32 v{f[1]}, 0, v{PT+1}, vcc")
            o(f"ds_or_b32 v{f[0]}, v{f[1]} offset:{MB + (k&1)*128 + (k>>1)*8}")
        o(f"s_add_u32 s{sCNT}, s{sNT}, 255"); o(f"s_lshr_b32 s{sCNT}, s{sCNT}, 8"); o(f"s_max_u32 s{sCNT}, s{sCNT}, 1"); o(f"s_lshl_b32 s{sNT}, s{sCNT}, 1"); o(f"s_sub_u32 s{sCNT}, s{sCNT}, 1")
        o(f"s_add_u32 s{sMET}, s{sME}, 4096"); o(f"s_xor_b32 s{sMET}, s{sMET}, s{sME}"); o(f"s_add_u32 s{sME}, s{sME}, 4096")
        o(f"v_add_u32 v{vL2}, 0x400, v{vL2}")
        o(f"s_mov_b32 s{sRS}, 0")
    def lut():
        q = T0
        for d in range(4):
            o(f"v_bfe_u32 v{q+d}, v0, {2*d}, 2"); o(f"v_mul_u32_u24 v{q+d}, 0x8001, v{q+d}")
            o(f"v_and_b32 v{q+d}, 0x10001, v{q+d}"); o(f"v_mul_u32_u24 v{q+d}, 0x3f80, v{q+d}")
        o(f"v_lshlrev_b32 v{q+4}, 4, v0"); o(f"ds_write_b128 v{q+4}, {vr(q,4)} offset:{LUT}")
        o(f"v_lshrrev_b32 v{q}, 3, v0"); o(f"v_and_b32 v{q+1}, 7, v0")
        o(f"v_bfe_u32 v{q+2}, v0, 5, 1"); o(f"v_bfe_u32 v{q+3}, v0, 6, 1"); o(f"v_lshl_or_b32 v{q+2}, v{q+2}, 1, v{q+3}")
        o(f"v_lshrrev_b32 v{q+3}, 7, v0"); o(f"v_lshl_or_b32 v{q+2}, v{q+3}, 2, v{q+2}")
        o(f"v_cmp_eq_u32 vcc, v{q+2}, v{q+1}"); o(f"v_cmp_gt_u32 s[{sHM}:{sHM+1}], {NA}, v{q}"); o(f"v_mov_b32 v{q+6}, 0x3f80"); o(f"v_mov_b32 v{q+7}, 0")
        o(f"s_and_b64 vcc, vcc, s[{sHM}:{sHM+1}]")
        o(f"v_and_b32 v{q+2}, 3, v{q}"); o(f"v_lshlrev_b32 v{q+2}, 4, v{q+2}"); o(f"v_cndmask_b32 v{q+6}, 0, v{q+6}, vcc")
        o(f"v_lshlrev_b64 {vr(q+6,2)}, v{q+2}, {vr(q+6,2)}")
        o(f"v_min_u32 v{q}, {NA}, v{q}"); o(f"v_mul_u32_u24 v{q}, 80, v{q}"); o(f"v_lshl_add_u32 v{q}, v{q+1}, 3, v{q}")
        o(f"ds_write_b64 v{q}, {vr(q+6,2)} offset:{IDT}")
    o(f"s_cmp_eq_u32 s{sFIRST}, 1"); o("s_cbranch_scc1 G1")
    o("s_waitcnt lgkmcnt(0)")
    ctrl()
    o("s_branch G1D")
    lab("G1")
    for mt in range(2):
        for s in range(8): o(f"ds_read_b128 {vr(GV+32*mt+4*s,4)}, v{vXA} offset:{mt*2080 + 16*s}")
        if mt == 0: o("s_waitcnt lgkmcnt(8)")
    lt = capture(lut); ct = capture(ctrl)
    for x in lt[:18]: o(x)
    o(f"s_waitcnt vmcnt({4*NS+2}) lgkmcnt(9)")
    acc = [ACC + 32, ACC + 48]
    interleave([m32(acc[0], GV+4*s, ACC+4*s, None if s == 0 else acc[0]) for s in range(8)], lt[18:] + ct[:16], 5)
    o("s_waitcnt lgkmcnt(5)")
    def cv(mt): return [f"v_cvt_pk_bf16_f32 v{AF+8*mt+r//2}, v{acc[mt]+r}, v{acc[mt]+r+1}" for r in range(0, 16, 2)]
    interleave([m32(acc[1], GV+32+4*s, ACC+4*s, None if s == 0 else acc[1]) for s in range(8)],
               ct[16:] + cv(0) + [f"v_mov_b32 v{acc[0]+r}, 0" for r in range(16)], 5)
    for r in range(32): o(f"v_mov_b32 v{ACC+r}, 0")
    for x in cv(1): o(x)
    for r in range(16): o(f"v_mov_b32 v{acc[1]+r}, 0")
    if STAMP:
        o("s_getreg_b32 s94, hwreg(HW_REG_HW_ID)"); o("s_getreg_b32 s100, hwreg(HW_REG_XCC_ID)"); o("s_and_b32 s94, s94, 0xffff"); o("s_lshl_b32 s100, s100, 16"); o("s_or_b32 s94, s94, s100"); o(f"v_writelane_b32 v{VST[0]}, s94, 3")
    lab("G1D")
    o(f"v_and_b32 v{MQ}, 0xffff, v{PT}"); o(f"v_lshrrev_b32 v{MQ+1}, 16, v{PT}")
    xstamp("g1_done"); stamp(4)
    o(f"s_waitcnt vmcnt({4*(NS-1)}) lgkmcnt(0)"); xstamp("t0_landed"); o("s_barrier")
    o(f"ds_read_b128 {vr(SEL,4)}, v{MQ}"); o(f"ds_read_b128 {vr(SEL+4,4)}, v{MQ+1}")
    o(f"ds_read_b128 {vr(EF,4)}, v{vEA}")
    for j in range(4): o(f"ds_read_b128 {vr(TF+4*j,4)}, v{vTA} offset:{16*j}")
    o(f"s_setprio {OPT.get('lp', 3)}")
    if OPT.get('young'):
        o("s_cmp_lt_u32 s2, 256"); o("s_cbranch_scc1 OLD"); o(f"s_setprio {OPT['young']}"); lab("OLD")
    stamp(6); stamp(8, "s_memtime")
    bodies = [body(b) for b in range(4)]
    check_hazards(sum(bodies, []) + ["s_branch LOOP"])
    emit(body(0, peel=True))
    b1 = bodies[1][:bodies[1].index("ENT1:")]
    o("s_nop 7")
    emit([x for x in b1 if not x.startswith("v_mfma")])
    o("s_branch ENT1")
    lab("TOOBIG")
    o(f"s_mov_b32 s{sLIM}, {LOWLIM}"); o(f"v_mov_b32 v{a}, 0")
    o("s_waitcnt lgkmcnt(0)"); o("s_barrier")
    o(f"ds_write_b32 v{b_}, v{a} offset:{CNT}")
    o("s_waitcnt lgkmcnt(0)"); o("s_barrier")
    o("s_branch REMASK")
    lab("LOOP")
    emit(sum(bodies, []))
    if OPT.get('pp', '12,8,4') != '0':
        th = [int(x) for x in OPT.get('pp', '12,8,4').split(',')]
        for k, v in enumerate(th):
            o(f"s_cmp_lt_u32 s{sCNT}, {v}"); o("s_cbranch_scc0 LOOP"); o(f"s_setprio {2-k}")
    o("s_branch LOOP")
    assert HEAD[0] == HEAD[2]
    lab("TAIL")
    stamp(7); stamp(11, "s_memtime")
    if STAMP: o(f"v_writelane_b32 v{VST[0]}, s{sNT}, 12")
    Gc = GV + 32; WU = TF; x = AF
    o(f"ds_read_b128 {vr(T0,4)}, v{MQ}"); o(f"ds_read_b128 {vr(T0+4,4)}, v{MQ+1}")
    o(f"s_cmp_lg_u32 s{sMORE}, 0"); o("s_cbranch_scc1 TAILM")
    o("s_waitcnt lgkmcnt(0)")
    for ins in wload(WU, WF_U): o(ins)
    lab("TAILM")
    for ins, _ in vstream(Gc, Gc + 16)[HEAD[0]:]: o(ins)
    o("s_waitcnt lgkmcnt(0)")
    def fin(p):
        d = ACC + 32 * p; r = []
        for k in range(16): r.append(f"v_add_f32 v{d+k}, s{sEPS}, v{d+k}")
        for k in range(16): r.append(f"v_rcp_f32 v{d+k}, v{d+k}")
        for k in range(16): r.append(f"v_mul_f32 v{d+16+k}, v{d+k}, v{d+16+k}")
        return r
    for m in zphase(Gc, 1): o(m)
    o(f"s_cmp_lg_u32 s{sMORE}, 0"); o("s_cbranch_scc1 NEXTROUND")
    for s in range(8): o(f"ds_read_b128 {vr(GV+4*s,4)}, v{vXA} offset:{16*s}")
    for mt in range(2):
        for k in range(2): o(f"ds_read_b128 {vr(x+8*mt+4*k,4)}, v{vXR} offset:{mt*2080+16*k}")
    for ins in fin(0): o(ins)
    for s in range(8): o(f"ds_read_b128 {vr(GV+32+4*s,4)}, v{vXA} offset:{2080+16*s}")
    o(f"v_and_b32 v{IX[0]}, 31, v0"); o(f"v_and_b32 v{IX[0]+1}, 0xe0, v0")
    o(f"s_mov_b32 s{sT1}, 0xffff0000")
    o(f"v_cmp_gt_u32 vcc, {NA}, v{IX[0]}"); o(f"v_cmp_gt_u32 s[{sSV}:{sSV+1}], {RN-NA}, v{IX[0]}"); o(f"v_add_u32 v{IX[0]}, s{sBASE}, v{IX[0]}")
    o("s_waitcnt vmcnt(0) lgkmcnt(8)")
    def unp(p): return sum(([f"v_lshlrev_b32 v{ACC+32*p+2*k}, 16, v{x+8*p+k}", f"v_and_b32 v{ACC+32*p+2*k+1}, s{sT1}, v{x+8*p+k}"] for k in range(8)), [])
    def post(p):
        r = []
        for k in range(8):
            z = ACC + 32*p + 16 + 2*k
            r += [f"v_max_f32 v{z}, 0, v{z}", f"v_max_f32 v{z+1}, 0, v{z+1}", f"v_add_f32 v{z}, v{z}, v{z-16}", f"v_add_f32 v{z+1}, v{z+1}, v{z-15}",
                  f"v_cvt_pk_bf16_f32 v{x+8*p+k}, v{z}, v{z+1}"]
        return r
    def st(p): return [f"buffer_store_dwordx4 {vr(x+8*p+4*k,4)}, {vr(IX[0],2)}, s[{sO}:{sO+3}], 0 idxen offen offset:{16*k}" for k in range(2)]
    interleave([m32(ACC+16, WU+4*s, GV+4*s, ACC+16) for s in range(8)], fin(1), 6)
    o("s_waitcnt lgkmcnt(0)"); o("s_nop 0")
    interleave([m32(ACC+48, WU+4*s, GV+32+4*s, ACC+48) for s in range(8)], unp(0) + post(0) + unp(1), 7)
    o("s_mov_b64 exec, vcc")
    for ins in st(0): o(ins)
    o(f"s_mov_b64 exec, s[{sSV}:{sSV+1}]"); o(f"v_add_u32 v{IX[0]}, {NA}, v{IX[0]}")
    for ins in post(1) + st(1): o(ins)
    stamp_out(9, GV, sW, 1)
    lab("K2_END")
    o("s_endpgm")
    lab("NEXTROUND")
    for i in range(4):
        o(f"v_lshrrev_b32 v{vTC}, 19, v{SEG+i}"); o(f"v_min_u32 v{vTC}, s{sLIM}, v{vTC}")
        o(f"v_add_u32 v{SEG+i}, v{SEG+i}, v{vTC}"); o(f"v_lshlrev_b32 v{vTC}, 19, v{vTC}"); o(f"v_sub_u32 v{SEG+i}, v{SEG+i}, v{vTC}")
    o(f"s_mov_b32 s{sFIRST}, 0"); o(f"s_mov_b32 s{sLIM}, 16")
    o("s_waitcnt vmcnt(0) lgkmcnt(0)"); o("s_barrier")
    o("s_branch ROUND")

def kd(name, nv, ns):
    L.append(".p2align 6")
    L.append(f".amdhsa_kernel {name}")
    for k, v in (("next_free_vgpr", nv), ("next_free_sgpr", ns), ("accum_offset", (nv + 3) // 4 * 4), ("group_segment_fixed_size", 0),
                 ("kernarg_size", 96), ("user_sgpr_count", 2), ("user_sgpr_kernarg_segment_ptr", 1), ("system_sgpr_workgroup_id_x", 1),
                 ("float_denorm_mode_32", 3)):
        L.append(f"  .amdhsa_{k} {v}")
    L.append(".end_amdhsa_kernel")

hdr = [l for l in open(f"cdna_kernels/{NAME}.s.ref").read().splitlines() if l.startswith(";") and "@launch" not in l
       and "Override launch" not in l and "grid=ceil" not in l]
L += hdr
L.append(f"; @launch kernel=gsort_kernel grid=({K1_GRID},1,1) block=(512,1,1) lds={K1_LDS}")
L.append(f"; @launch kernel=gmain_kernel grid=(512,1,1) block=(256,1,1) lds={K2_LDS}")
L.append('.amdgcn_target "amdgcn-amd-amdhsa--gfx950"'); L.append(".text")
gen_k1(); gen_k2()
L.append('.section .rodata,"a"')
kd("gsort_kernel", 256 if STAMP else 240, 102 if STAMP else 72); kd("gmain_kernel", 256 if STAMP else NVGPR, 102)
if STAMP: L.append("; STAMPS " + repr(NAMES))
open(sys.argv[1], "w").write("\n".join(L) + "\n")
print("vgprs", NVGPR, "lds", K2_LDS, "lines", len(L), file=sys.stderr)
```

```python
import sys,re
src, mark, dur, out = sys.argv[1], sys.argv[2], int(sys.argv[3]), sys.argv[4]
s=open(src).read()
m=[l for l in s.splitlines() if '@launch kernel=gmain' in l][0]+"\n"
def wr(srd, v, wg): return (f"    s_cmp_lg_u32 s2, {wg}\n    s_cbranch_scc1 DG_SKIP\n    v_mov_b32 v{v}, s92\n    v_mov_b32 v{v+1}, 0x3800000\n"
   f"    buffer_store_dword v{v}, v{v+1}, s[{srd}:{srd+3}], 0 offen\nDG_SKIP:\n")
rt="    s_memrealtime s[92:93]\n    s_waitcnt lgkmcnt(0)\n"
if mark=='k1start':
    s=s.replace("gsort_kernel:\n","gsort_kernel:\n"+rt,1)
    e="K1_F:\n" if "K1_F:" in s else "K1_E:\n"
    s=s.replace(e,e+"    s_mov_b64 exec, -1\n"+wr(24,30,0),1)
elif mark=='k1end':
    e="K1_F:\n" if "K1_F:" in s else "K1_E:\n"
    s=s.replace(e,e+"    s_mov_b64 exec, -1\n"+rt+wr(24,30,0),1)
else:
    wg=0
    if ':' in mark: mark,wg=mark.split(':')
    if mark=='k2start': s=s.replace("gmain_kernel:\n","gmain_kernel:\n"+rt,1)
    if mark=='rec': s=s.replace("P1_DONE:\n","P1_DONE:\n"+rt,1)
    if mark=='loop': s=s.replace("    s_branch EVR0\n",rt+"    s_branch EVR0\n",1)
    if mark=='exit': s=s.replace("TAIL:\n","TAIL:\n"+rt,1)
    if mark=='ent': s=s.replace("    s_branch ENT1\n",rt+"    s_branch ENT1\n",1)
    s=s.replace("K2_END:\n","    s_mov_b64 exec, -1\n"+wr(16,100,wg)+"K2_END:\n",1)
s=re.sub(r"next_free_sgpr \d+","next_free_sgpr 102",s)
spin=f'''.globl gspin_kernel
.p2align 8
.type gspin_kernel,@function
gspin_kernel:
    s_load_dwordx2 s[4:5], s[0:1], 88
    s_waitcnt lgkmcnt(0)
    s_add_u32 s4, s4, 0x3800000
    s_addc_u32 s5, s5, 0
    s_load_dword s6, s[4:5], 0
    s_waitcnt lgkmcnt(0)
    s_mov_b32 s10, 0
SP_L:
    s_memrealtime s[8:9]
    s_waitcnt lgkmcnt(0)
    s_add_u32 s10, s10, 1
    s_cmp_gt_u32 s10, 100000
    s_cbranch_scc1 SP_E
    s_sub_u32 s8, s8, s6
    s_cmp_lt_u32 s8, {dur*100}
    s_cbranch_scc1 SP_L
SP_E:
    s_endpgm
'''
kd='''.p2align 6
.amdhsa_kernel gspin_kernel
  .amdhsa_next_free_vgpr 8
  .amdhsa_next_free_sgpr 16
  .amdhsa_accum_offset 8
  .amdhsa_group_segment_fixed_size 0
  .amdhsa_kernarg_size 96
  .amdhsa_user_sgpr_count 2
  .amdhsa_user_sgpr_kernarg_segment_ptr 1
  .amdhsa_system_sgpr_workgroup_id_x 1
.end_amdhsa_kernel
'''
ln="; @launch kernel=gspin_kernel grid=(1,1,1) block=(64,1,1) lds=0\n"
s=s.replace('.section .rodata,"a"\n', spin+'.section .rodata,"a"\n')+kd
open(out,'w').write(s.replace(m, m+ln))
```

```python
import sys,re
src, mark, dur, out = sys.argv[1], sys.argv[2], int(sys.argv[3]), sys.argv[4]
s=open(src).read()
m=[l for l in s.splitlines() if '@launch kernel=gmain' in l][0]+"\n"
rt="    s_memrealtime s[92:93]\n    s_waitcnt lgkmcnt(0)\n"
wr="    s_mov_b64 exec, -1\n    v_mov_b32 v30, s92\n    s_lshl_b32 s93, s2, 2\n    s_add_u32 s93, s93, 0x3800000\n    v_mov_b32 v31, s93\n    buffer_store_dword v30, v31, s[24:27], 0 offen\n"
pos={'start':"gsort_kernel:\n",'j':"K1_J:\n",'g':"K1_G:\n",'end':"K1_F:\n"}
if mark=='drain':
    s=s.replace("K1_F:\n","K1_F:\n    s_waitcnt vmcnt(0)\n"+rt+wr,1)
else:
    s=s.replace("K1_F:\n","K1_F:\n"+"@@"+wr,1)
    if mark=='end': s=s.replace("@@",rt)
    else: s=s.replace("@@","").replace(pos[mark],pos[mark]+rt,1)
s=re.sub(r"next_free_sgpr \d+","next_free_sgpr 102",s)
spin=f'''.globl gspin_kernel
.p2align 8
.type gspin_kernel,@function
gspin_kernel:
    s_load_dwordx2 s[4:5], s[0:1], 88
    s_waitcnt lgkmcnt(0)
    s_add_u32 s4, s4, 0x3800000
    s_addc_u32 s5, s5, 0
    s_load_dword s6, s[4:5], 0
    s_waitcnt lgkmcnt(0)
    s_mov_b32 s11, 0
    s_mov_b32 s12, 0
MX_L:
    s_load_dwordx16 s[16:31], s[4:5], s11
    s_waitcnt lgkmcnt(0)
''' + "".join(f"    s_sub_u32 s{k}, s{k}, s6\n    s_max_i32 s12, s12, s{k}\n" for k in range(16,32)) + f'''    s_add_u32 s11, s11, 64
    s_cmp_lt_u32 s11, 1024
    s_cbranch_scc1 MX_L
    s_min_i32 s12, s12, 5000
    s_add_u32 s6, s6, s12
    s_mov_b32 s10, 0
SP_L:
    s_memrealtime s[8:9]
    s_waitcnt lgkmcnt(0)
    s_add_u32 s10, s10, 1
    s_cmp_gt_u32 s10, 100000
    s_cbranch_scc1 SP_E
    s_sub_u32 s8, s8, s6
    s_cmp_lt_u32 s8, {dur*100}
    s_cbranch_scc1 SP_L
SP_E:
    s_endpgm
'''
kd='''.p2align 6
.amdhsa_kernel gspin_kernel
  .amdhsa_next_free_vgpr 8
  .amdhsa_next_free_sgpr 40
  .amdhsa_accum_offset 8
  .amdhsa_group_segment_fixed_size 0
  .amdhsa_kernarg_size 96
  .amdhsa_user_sgpr_count 2
  .amdhsa_user_sgpr_kernarg_segment_ptr 1
  .amdhsa_system_sgpr_workgroup_id_x 1
.end_amdhsa_kernel
'''
ln="; @launch kernel=gspin_kernel grid=(1,1,1) block=(64,1,1) lds=0\n"
s=s.replace('.section .rodata,"a"\n', spin+'.section .rodata,"a"\n')+kd
open(out,'w').write(s.replace(m, m+ln))
```

```python
import sys
s=open('v3c.s').read()
def kern(name, op, stride=0):
    body=""
    for k in range(6):
        if op=='w': body+=f"    buffer_store_dwordx4 v[4:7], v1, s[8:11], 0 offen\n    v_add_u32 v1, 0x2000, v1\n"
        elif op=='r': body+=f"    buffer_load_dwordx4 v[{8+4*k}:{11+4*k}], v1, s[8:11], 0 offen\n    v_add_u32 v1, 0x2000, v1\n"
    if op=='s':
        body="    v_and_b32 v2, 7, v0\n    v_lshlrev_b32 v2, 4, v2\n    v_bfe_u32 v3, v0, 3, 3\n    v_lshl_add_u32 v2, v3, 9, v2\n    v_bfe_u32 v3, v0, 6, 2\n    v_lshl_add_u32 v2, v3, 7, v2\n    v_lshrrev_b32 v3, 8, v0\n    v_mul_u32_u24 v3, 24576, v3\n    v_add3_u32 v1, v2, v3, s3\n"
        for k in range(6): body+="    buffer_store_dwordx4 v[4:7], v1, s[8:11], 0 offen sc1\n    v_add_u32 v1, 0x1000, v1\n"
    if op=='x':
        body="    s_lshr_b32 s3, s2, 3\n    s_mul_i32 s3, s3, 393216\n    v_lshlrev_b32 v1, 7, v0\n    v_add_u32 v1, s3, v1\n"
        for k in range(6): body+=f"    buffer_load_dword v{8+k}, v1, s[8:11], 0 offen\n    v_add_u32 v1, 0x10000, v1\n"
    if op=='t': body="    v_lshlrev_b32 v1, 15, v0\n    buffer_load_dword v8, v1, s[8:11], 0 offen\n"
    return f'''.globl {name}
.p2align 8
.type {name},@function
{name}:
    s_load_dwordx2 s[4:5], s[0:1], 88
    s_mul_i32 s3, s2, 49152
    v_lshlrev_b32 v1, 4, v0
    v_add_u32 v1, s3, v1
    v_mov_b32 v4, v0
    v_mul_u32_u24 v5, 0x9e3779, v1
    v_mul_u32_u24 v6, 0x85ebca, v5
    v_mul_u32_u24 v7, 0xc2b2ae, v6
    s_waitcnt lgkmcnt(0)
    s_add_u32 s4, s4, 0x5000000
    s_addc_u32 s5, s5, 0
    s_mov_b32 s8, s4
    s_and_b32 s9, s5, 0xffff
    s_mov_b32 s10, 12582912
    s_mov_b32 s11, 0x20000
{body}    s_endpgm
''', f'''.p2align 6
.amdhsa_kernel {name}
  .amdhsa_next_free_vgpr 32
  .amdhsa_next_free_sgpr 16
  .amdhsa_accum_offset 32
  .amdhsa_group_segment_fixed_size 0
  .amdhsa_kernarg_size 96
  .amdhsa_user_sgpr_count 2
  .amdhsa_user_sgpr_kernarg_segment_ptr 1
  .amdhsa_system_sgpr_workgroup_id_x 1
.end_amdhsa_kernel
'''
k1=[l for l in s.splitlines() if '@launch kernel=gsort' in l][0]+"\n"
k2=[l for l in s.splitlines() if '@launch kernel=gmain' in l][0]+"\n"
def build(pre, post, out):
    t=s; used=sorted(set(pre+post))
    for op in used:
        a,b=kern(f"g{op}_kernel",op)
        t=t.replace('.section .rodata,"a"\n', a+'.section .rodata,"a"\n')+b
    ln=lambda op: f"; @launch kernel=g{op}_kernel grid=(256,1,1) block=(512,1,1) lds=0\n"
    t=t.replace(k1,"".join(map(ln,pre))+k1).replace(k2,k2+"".join(map(ln,post)))
    open(out,'w').write(t)
build("w","r","w_G.s"); build("s","","w_H.s"); build("w","x","w_I.s"); build("","x","w_J.s"); build("rw","","w_C.s")
```

```python
import sys
s=open('v3c.s').read()
def kern(name, op, stride=0):
    body=""
    for k in range(6):
        if op=='w': body+=f"    buffer_store_dwordx4 v[4:7], v1, s[8:11], 0 offen\n    v_add_u32 v1, 0x2000, v1\n"
        elif op=='r': body+=f"    buffer_load_dwordx4 v[{8+4*k}:{11+4*k}], v1, s[8:11], 0 offen\n    v_add_u32 v1, 0x2000, v1\n"
    if op=='s':
        body="    v_and_b32 v2, 7, v0\n    v_lshlrev_b32 v2, 4, v2\n    v_bfe_u32 v3, v0, 3, 3\n    v_lshl_add_u32 v2, v3, 9, v2\n    v_bfe_u32 v3, v0, 6, 2\n    v_lshl_add_u32 v2, v3, 7, v2\n    v_lshrrev_b32 v3, 8, v0\n    v_mul_u32_u24 v3, 24576, v3\n    v_add3_u32 v1, v2, v3, s3\n"
        for k in range(6): body+="    buffer_store_dwordx4 v[4:7], v1, s[8:11], 0 offen sc1\n    v_add_u32 v1, 0x1000, v1\n"
    if op=='x':
        body="    s_lshr_b32 s3, s2, 3\n    s_mul_i32 s3, s3, 393216\n    v_lshlrev_b32 v1, 7, v0\n    v_add_u32 v1, s3, v1\n"
        for k in range(6): body+=f"    buffer_load_dword v{8+k}, v1, s[8:11], 0 offen\n    v_add_u32 v1, 0x10000, v1\n"
    if op in 'vc':
        body=""
        if op=='v': body+="    s_add_u32 s8, s8, 0x2000000\n    s_addc_u32 s9, s9, 0\n"
        if op=='c': body+="    s_and_b32 s3, s2, 7\n    s_lshl_b32 s3, s3, 5\n    s_lshr_b32 s12, s2, 3\n    s_add_u32 s3, s3, s12\n    s_mul_i32 s3, s3, 49152\n    v_lshlrev_b32 v1, 4, v0\n    v_add_u32 v1, s3, v1\n"
        for k in range(6):
            for r in range(4): body+=f"    v_mul_u32_u24 v{8+4*k+r}, {0x9e3779+k*4098+r*77778}, v{5+r%3}\n    v_xor_b32 v{8+4*k+r}, v{8+4*k+r}, v{5+(r+1)%3}\n"
            body+=f"    buffer_store_dwordx4 v[{8+4*k}:{11+4*k}], v1, s[8:11], 0 offen\n    v_add_u32 v1, 0x2000, v1\n"
    if op=='t': body="    v_lshlrev_b32 v1, 15, v0\n    buffer_load_dword v8, v1, s[8:11], 0 offen\n"
    return f'''.globl {name}
.p2align 8
.type {name},@function
{name}:
    s_load_dwordx2 s[4:5], s[0:1], 88
    s_mul_i32 s3, s2, 49152
    v_lshlrev_b32 v1, 4, v0
    v_add_u32 v1, s3, v1
    v_mov_b32 v4, v0
    v_mul_u32_u24 v5, 0x9e3779, v1
    v_mul_u32_u24 v6, 0x85ebca, v5
    v_mul_u32_u24 v7, 0xc2b2ae, v6
    s_waitcnt lgkmcnt(0)
    s_add_u32 s4, s4, 0x5000000
    s_addc_u32 s5, s5, 0
    s_mov_b32 s8, s4
    s_and_b32 s9, s5, 0xffff
    s_mov_b32 s10, 12582912
    s_mov_b32 s11, 0x20000
{body}    s_endpgm
''', f'''.p2align 6
.amdhsa_kernel {name}
  .amdhsa_next_free_vgpr 32
  .amdhsa_next_free_sgpr 16
  .amdhsa_accum_offset 32
  .amdhsa_group_segment_fixed_size 0
  .amdhsa_kernarg_size 96
  .amdhsa_user_sgpr_count 2
  .amdhsa_user_sgpr_kernarg_segment_ptr 1
  .amdhsa_system_sgpr_workgroup_id_x 1
.end_amdhsa_kernel
'''
k1=[l for l in s.splitlines() if '@launch kernel=gsort' in l][0]+"\n"
k2=[l for l in s.splitlines() if '@launch kernel=gmain' in l][0]+"\n"
def build(pre, post, out):
    t=s; used=sorted(set(pre+post))
    for op in used:
        a,b=kern(f"g{op}_kernel",op)
        t=t.replace('.section .rodata,"a"\n', a+'.section .rodata,"a"\n')+b
    ln=lambda op: f"; @launch kernel=g{op}_kernel grid=(256,1,1) block=(512,1,1) lds=0\n"
    t=t.replace(k1,"".join(map(ln,pre))+k1).replace(k2,k2+"".join(map(ln,post)))
    open(out,'w').write(t)
build("wv","","w_K.s"); build("c","","w_L.s"); build("","c","w_M.s"); build("rv","","w_N.s"); build("v","","w_O.s")
```

```python
import sys, struct, re

N = 25000; E = 400000; RN = 49; NR = 511; CH = 1600; NCH = 250
WS_REC = 0; WS_OFF = 0x310000; OROW = 1152; WS_WF = 0x3c0000; WS_TAB = 0x400000; WS_SIZE = 0x4000000
WF_A = 0; WF_U = 0x8000; WF_C = 0x10000; NA = 25
NLOG2E = struct.unpack('<I', struct.pack('<f', -1.4426950408889634))[0]
EPS = struct.unpack('<I', struct.pack('<f', 1e-6))[0]
NAME = "standalone__edge_featured_mpnn_gatedgcn__graph"
OPT = dict(a.split('=') for a in sys.argv[2:]) if len(sys.argv) > 2 else {}
STAMP = int(OPT.get('stamp', 0))
WS_TAB = int(OPT.get('tab', hex(WS_TAB)), 0)
WS_STAMP = 0x3800000
L = []
def o(s): L.append("    " + s)
def lab(s): L.append(s + ":")
def vr(b, n): return f"v[{b}:{b+n-1}]"
VST = [60]
NAMES = {}
def stamp(i, ins="s_memrealtime", name=None):
    if STAMP:
        o(f"{ins} s[100:101]"); o("s_waitcnt lgkmcnt(0)"); o(f"v_writelane_b32 v{VST[0]}, s100, {i}")
def xstamp(name):
    if STAMP:
        NAMES[name] = 16 + len(NAMES); stamp(NAMES[name])
def stamp_out(n, reg, srdn, kern):
    if not STAMP: return
    o("s_mov_b64 exec, -1")
    stamp(n)
    o(f"v_lshlrev_b32 v{reg}, 2, v0")
    if kern and int(OPT.get('g8', 0)): o("s_and_b32 s63, s3, 1"); o("s_lshl_b32 s63, s63, 8"); o("s_add_u32 s2, s2, s63")
    o(f"s_lshl_b32 s63, s2, 11"); o(f"s_add_u32 s63, s63, {WS_STAMP + kern*0x100000:#x}")
    o(f"buffer_store_dword v{VST[0]}, v{reg}, s[{srdn}:{srdn+3}], s63 offen")
def srd(d, lo, size, stride=0):
    o(f"s_mov_b32 s{d}, s{lo}"); o(f"s_and_b32 s{d+1}, s{lo+1}, 0xffff")
    if stride: o(f"s_or_b32 s{d+1}, s{d+1}, {stride << 16:#x}")
    o(f"s_mov_b32 s{d+2}, {size:#x}"); o(f"s_mov_b32 s{d+3}, 0x20000")
def scan64(v):
    for d in ("row_shr:1", "row_shr:2", "row_shr:4", "row_shr:8"):
        o("s_nop 1"); o(f"v_add_u32_dpp v{v}, v{v}, v{v} {d} row_mask:0xf bank_mask:0xf bound_ctrl:0")
    o("s_nop 1"); o(f"v_add_u32_dpp v{v}, v{v}, v{v} row_bcast:15 row_mask:0xa bank_mask:0xf")
    o("s_nop 1"); o(f"v_add_u32_dpp v{v}, v{v}, v{v} row_bcast:31 row_mask:0xc bank_mask:0xf")

def m32(d, a, b, c): return f"v_mfma_f32_32x32x16_bf16 {vr(d,16)}, {vr(a,4)}, {vr(b,4)}, " + ("0" if c is None else vr(c,16))
K1_GRID = 256
OG = 4224
K1_W = 16896; K1_X = K1_W + 65536; K1_S = K1_X + 4 * 8320; K1_LDS = K1_S + 8 * 4608
def gen_k1():
    L.append(".globl gsort_kernel"); L.append(".p2align 8"); L.append(".type gsort_kernel,@function")
    lab("gsort_kernel"); VST[0] = 255
    pol = OPT.get('tabpol', '').replace('+', ' '); rpol = OPT.get('recpol', '').replace('+', ' ')
    stamp(0)
    o("s_load_dwordx8 s[4:11], s[0:1], 0")
    o("s_load_dwordx8 s[40:47], s[0:1], 32")
    o("s_load_dwordx2 s[48:49], s[0:1], 64")
    o("s_load_dwordx2 s[12:13], s[0:1], 88")
    o(f"s_cmp_ge_u32 s2, {K1_GRID}"); o("s_cbranch_scc1 K1_END")
    o("v_lshrrev_b32 v2, 6, v0"); o("v_lshlrev_b32 v1, 2, v0")
    o("s_and_b32 s36, s2, 7"); o("s_lshl_b32 s36, s36, 5"); o("s_lshr_b32 s35, s2, 3"); o("s_add_u32 s36, s36, s35")
    o("v_readfirstlane_b32 s33, v2")
    o("v_mov_b32 v2, 0"); o("ds_write_b32 v1, v2")
    o(f"s_mul_i32 s3, s2, {CH*4}"); o("s_mul_i32 s37, s36, 98")
    o(f"s_cmp_lt_u32 s2, {NCH}"); o(f"s_cselect_b32 s14, {CH//4}, 0")
    o("v_cmp_gt_u32 vcc, s14, v0")
    o("v_lshlrev_b32 v40, 4, v0")
    o("v_bfe_u32 v56, v0, 4, 1"); o("v_bfe_u32 v57, v0, 5, 1"); o("v_and_b32 v20, 63, v0")
    o("s_mov_b32 s68, 0"); o("v_lshlrev_b32 v42, 4, v20")
    o("v_bfe_u32 v43, v0, 4, 2"); o("v_lshlrev_b32 v43, 6, v43"); o("v_xor_b32 v43, v43, v40")
    o("v_lshl_add_u32 v58, v57, 3, v56")
    o("s_lshr_b32 s14, s33, 2"); o("s_lshl_b32 s14, s14, 4"); o("s_and_b32 s15, s33, 3"); o("s_lshl1_add_u32 s14, s15, s14")
    o("v_add_u32 v58, s14, v58"); o("v_add_u32 v54, s37, v58")
    o("v_and_b32 v55, 15, v0"); o("v_lshlrev_b32 v59, 3, v56"); o("v_xor_b32 v55, v55, v59"); o("v_lshlrev_b32 v55, 4, v55")
    o("s_mul_i32 s38, s33, 1040"); o(f"s_add_u32 s38, s38, {K1_X}")
    o("s_lshl_b32 s39, s33, 10"); o(f"s_add_u32 s39, s39, {K1_W}")
    o("s_mov_b32 m0, s38")
    o("s_waitcnt lgkmcnt(0)")
    srd(60, 4, N, 256)
    def xd(t):
        if t: o(f"s_add_u32 m0, s38, {t*8320}"); o("v_add_u32 v54, 32, v54")
        if t == 3: o("v_cmp_gt_u32 vcc, 2, v58"); o("v_mov_b32 v59, 0xffff"); o("s_nop 0"); o("v_cndmask_b32 v54, v59, v54, vcc")
        o("buffer_load_dwordx4 v[54:55], s[60:63], 0 idxen offen lds")
    xd(0); xd(1)
    srd(20, 10, E*4); srd(16, 8, E*4)
    o("s_and_saveexec_b64 s[28:29], vcc"); o("s_mov_b64 s[28:29], exec"); o("s_cbranch_execz K1_PREP")
    o("buffer_load_dwordx4 v[4:7], v40, s[20:23], s3 offen")
    o("buffer_load_dwordx4 v[8:11], v40, s[16:19], s3 offen")
    lab("K1_A")
    o("s_mov_b64 exec, -1")
    o("s_barrier")
    srd(52, 42, 32768); srd(56, 48, 32768)
    for m in range(2):
        for i in range(4):
            o(f"s_add_u32 m0, s39, {m*32768+i*8192}"); o(f"s_movk_i32 s14, {i*8192}"); o(f"buffer_load_dwordx4 v43, s[{52+4*m}:{55+4*m}], s14 offen lds")
    xd(2); xd(3)
    def addrs():
        srd(24, 12, WS_SIZE)
        o("v_bfe_u32 v60, v0, 2, 2"); o("v_lshl_add_u32 v60, v57, 6, v60"); o("v_lshlrev_b32 v60, 8, v60")
        o("v_and_b32 v61, 3, v0"); o("v_lshl_add_u32 v60, v61, 3, v60"); o("v_lshl_add_u32 v60, v56, 5, v60")
        o("s_and_b32 s30, s33, 3"); o("v_bfe_u32 v61, v0, 2, 2"); o("v_xor_b32 v61, s30, v61"); o("v_lshl_add_u32 v60, v61, 6, v60"); o(f"v_add_u32 v60, {K1_W}, v60")
        o("v_bfe_u32 v61, v0, 1, 2"); o("v_lshl_or_b32 v61, v56, 2, v61"); o("v_mul_u32_u24 v61, 1040, v61")
        o("v_and_b32 v62, 1, v0"); o("v_bfe_u32 v63, v0, 3, 1"); o("v_lshl_or_b32 v63, v63, 1, v62"); o("v_lshl_add_u32 v61, v63, 8, v61")
        o("s_lshr_b32 s32, s33, 2"); o("s_mul_i32 s14, s32, 8320"); o(f"s_add_u32 s14, s14, {K1_X}")
        o("v_xor_b32 v62, v62, v57"); o("v_lshl_add_u32 v61, v62, 7, v61"); o("v_add_u32 v61, s14, v61")
        o("s_mul_i32 s14, s33, 4608"); o(f"s_add_u32 s14, s14, {K1_S}")
        o("v_and_b32 v62, 31, v0"); o("v_mul_u32_u24 v62, 144, v62"); o("v_lshl_add_u32 v62, v57, 6, v62"); o("v_add_u32 v62, s14, v62")
        o("v_lshrrev_b32 v58, 3, v20"); o("v_and_b32 v59, 7, v0"); o("v_lshlrev_b32 v59, 4, v59")
        o("v_mul_u32_u24 v63, 144, v58"); o("v_add3_u32 v63, v63, v59, s14")
        o("s_lshl_b32 s14, s32, 5"); o("s_add_u32 s14, s14, s37"); o("s_lshl_b32 s14, s14, 9"); o("s_lshl_b32 s30, s30, 7"); o("s_add_u32 s14, s14, s30")
        o("v_lshl_add_u32 v59, v58, 9, v59"); o("v_add_u32 v59, s14, v59")
        o("s_lshl_b32 s31, s3, 1")
    addrs()
    o(f"s_mul_i32 s34, s2, {CH}")
    o("v_add_u32 v3, s34, v1"); o("v_mov_b32 v2, 1"); o(f"s_mov_b32 s15, {-RN}")
    o("v_lshlrev_b32 v20, 5, v20")
    o("s_mov_b64 exec, s[28:29]"); o("s_cbranch_execz K1_B")
    o("s_waitcnt vmcnt(10)"); stamp(1)
    for i in range(4):
        o(f"v_mul_u32_u24 v{12+i}, 21400, v{4+i}")
        o(f"v_lshrrev_b32 v{12+i}, 20, v{12+i}")
        o(f"v_mad_i32_i24 v{4+i}, v{12+i}, s15, v{4+i}")
        o(f"v_lshlrev_b32 v{12+i}, 2, v{12+i}")
        o(f"ds_add_rtn_u32 v{16+i}, v{12+i}, v2")
    lab("K1_B")
    o("s_mov_b64 exec, -1")
    o(f"s_add_u32 s12, s12, {WS_TAB:#x}"); o("s_addc_u32 s13, s13, 0"); srd(16, 12, N * 512)
    o(f"s_mov_b32 s15, {NLOG2E:#x}")
    o("s_waitcnt vmcnt(0) lgkmcnt(0)"); o("s_barrier"); stamp(3)
    lab("K1_J")
    WF_ = 64; XF_ = 128; AC = [160, 192]
    for m in range(2):
        for s in range(8):
            for jj in range(2): o(f"ds_read_b64_tr_b16 v[{WF_+32*m+4*s+2*jj}:{WF_+32*m+4*s+2*jj+1}], v60 offset:{m*32768+s*2048+jj*1024}")
            if m == 0: o(f"ds_read_b128 {vr(XF_+4*s,4)}, v61 offset:{16*s}")
    o("ds_read_b128 v[24:27], v20"); o("ds_read_b128 v[28:31], v20 offset:16")
    def post(t):
        a = AC[t]; r = []
        for k in range(16): r.append(f"v_mul_f32 v{a+k}, s15, v{a+k}")
        for k in range(16): r.append(f"v_cvt_pk_bf16_f32 v{224+k}, v{a+2*k}, v{a+2*k+1}")
        r += [f"ds_write_b128 v62, {vr(224+4*c,4)} offset:{16*c}" for c in range(4)]
        r += [f"ds_read_b128 {vr(a+4*k,4)}, v63 offset:{k*8*144}" for k in range(4)]
        return r
    def stores(t):
        r = []
        for k in range(4):
            r += [f"s_waitcnt lgkmcnt({3-k})", f"buffer_store_dwordx4 {vr(AC[t]+4*k,4)}, v59, s[16:19], 0 offen {pol}", "v_add_u32 v59, 0x1000, v59"]
        return r
    def recs():
        for i in range(4):
            o(f"v_cmp_lt_u32 vcc, {NA-1}, v{4+i}"); o(f"v_mul_u32_u24 v22, 83, v{8+i}"); o("v_lshrrev_b32 v22, 16, v22")
            o(f"v_cndmask_b32 v23, 0, {NA}, vcc"); o(f"v_sub_u32 v23, v{4+i}, v23")
            o(f"v_lshl_or_b32 v{44+2*i}, v23, 16, v{8+i}")
            o("v_cndmask_b32 v23, 0, 32, vcc"); o("v_or_b32 v22, v22, v23")
            o(f"v_lshl_add_u32 v{45+2*i}, v22, 26, v3")
            if i < 3: o("v_add_u32 v3, 1, v3")
    def scan():
        o("v_mov_b32 v33, v24")
        for j in range(2, 8): o(f"v_add_u32 v{32+j}, v{31+j}, v{23+j}")
        o("v_add_u32 v21, v39, v31"); o("v_mov_b32 v22, v21")
        scan64(21)
        o("v_sub_u32 v32, v21, v22")
        for j in range(1, 8): o(f"v_add_u32 v{32+j}, v32, v{32+j}")
    o("s_waitcnt lgkmcnt(15)")
    interleave([m32(AC[0], WF_+4*s, XF_+4*s, None if s == 0 else AC[0]) for s in range(8)], capture(recs), 5)
    o("s_waitcnt lgkmcnt(0)")
    sc = capture(scan); p0 = post(0)
    q = sc + p0[:24]
    for s in range(8):
        o(m32(AC[0]+16, WF_+32+4*s, XF_+4*s, None if s == 0 else AC[0]+16))
        o(f"ds_read_b128 {vr(XF_+4*s,4)}, v61 offset:{2*8320+16*s}")
        for _ in range(5):
            if q: o(q.pop(0))
    lab("K1_G")
    o("s_waitcnt lgkmcnt(0)")
    mf = [m32(AC[1], WF_+4*s, XF_+4*s, None if s == 0 else AC[1]) for s in range(8)] + [m32(AC[1]+16, WF_+32+4*s, XF_+4*s, None if s == 0 else AC[1]+16) for s in range(8)]
    assert len(q) >= 8
    look = ["ds_write_b128 v20, v[32:35] offset:2048", "ds_write_b128 v20, v[36:39] offset:2064"] + [f"ds_read_b32 v{4+i}, v{12+i} offset:2048" for i in range(4)]
    q = q + p0[24:] + [None] * 5 + stores(0) + look
    for m in mf:
        o(m)
        for _ in range(5):
            if q:
                x = q.pop(0)
                if x: o(x)
    assert not q
    o("v_add_u32 v59, 0x4000, v59"); o("v_cmp_gt_u32 vcc, 2, v58")
    o("s_mov_b64 exec, s[28:29]")
    o("s_waitcnt lgkmcnt(0)")
    for i in range(4):
        o(f"v_add_lshl_u32 v{4+i}, v{4+i}, v{16+i}, 3"); o(f"ds_write_b64 v{4+i}, v[{44+2*i}:{45+2*i}] offset:4096")
    o("s_mov_b64 exec, -1")
    for x in post(1): o(x)
    stamp(4)
    o("s_cmp_lt_u32 s33, 4"); o("s_cbranch_scc1 K1_H")
    o("s_mov_b64 exec, vcc")
    for x in stores(1)[:2]: o(x)
    o("s_mov_b64 exec, -1")
    o("s_cmp_lg_u32 s68, 0"); o("s_cbranch_scc1 K1_PREP2")
    o("s_cmp_lg_u32 s33, 6"); o("s_cbranch_scc1 K1_I")
    for j in range(8): o(f"v_lshl_add_u32 v{24+j}, v{24+j}, 19, v{32+j}"); o(f"v_add_u32 v{24+j}, s34, v{24+j}")
    o(f"v_mul_u32_u24 v41, {OG//16}, v20"); o("s_lshl_b32 s35, s36, 4"); o(f"s_add_u32 s35, s35, {WS_OFF:#x}"); o(f"s_add_u32 s30, s35, {OG}")
    o("buffer_store_dwordx4 v[24:27], v41, s[24:27], s35 offen"); o("buffer_store_dwordx4 v[28:31], v41, s[24:27], s30 offen")
    o("s_branch K1_I")
    lab("K1_H")
    for x in stores(1): o(x)
    lab("K1_I")
    o(f"v_cmp_gt_u32 vcc, {CH//2-512}, v0")
    o("s_waitcnt lgkmcnt(0)"); o("s_barrier")
    o(f"s_cmp_lt_u32 s2, {NCH}"); o("s_cbranch_scc0 K1_F")
    o("ds_read_b128 v[44:47], v40 offset:4096"); o("ds_read_b128 v[48:51], v40 offset:12288")
    o("s_add_u32 s30, s31, 8192")
    o("s_waitcnt lgkmcnt(1)")
    o(f"buffer_store_dwordx4 v[44:47], v40, s[24:27], s31 offen {rpol}")
    o("s_and_saveexec_b64 s[28:29], vcc"); o("s_cbranch_execz K1_F")
    o("s_waitcnt lgkmcnt(0)")
    o(f"buffer_store_dwordx4 v[48:51], v40, s[24:27], s30 offen {rpol}")
    lab("K1_F")
    stamp_out(2, 12, 24, 0)
    lab("K1_END")
    o("s_endpgm")
    lab("K1_PREP")
    o("s_cmp_ge_u32 s2, 68"); o("s_cbranch_scc1 K1_A")
    o("s_mov_b64 exec, -1")
    o("s_lshr_b32 s14, s2, 5")
    o("s_cmp_eq_u32 s14, 1"); o("s_cselect_b32 s40, s46, s40"); o("s_cselect_b32 s41, s47, s41"); o(f"s_cselect_b32 s68, 1.0, {NLOG2E:#x}")
    o("s_mov_b32 s66, 32768"); o("s_bfe_u32 s50, s2, 0x20003"); o("s_and_b32 s51, s2, 7"); o("s_mov_b32 s32, 14")
    o("s_cmp_eq_u32 s14, 2"); o("s_cselect_b32 s40, s44, s40"); o("s_cselect_b32 s41, s45, s41"); o("s_cselect_b32 s66, 4096, s66")
    o("s_cselect_b32 s50, s51, s50"); o("s_cselect_b32 s51, 0, s51"); o("s_cselect_b32 s32, 11, s32")
    o("s_mov_b32 s64, s40"); o("s_and_b32 s65, s41, 0xffff"); o("s_mov_b32 s67, 0x20000")
    o("s_lshl_b32 s50, s50, 6"); o("s_lshl_b32 s51, s51, 11"); o("s_add_u32 s50, s50, s51")
    o("v_and_b32 v4, 3, v0"); o("v_bfe_u32 v5, v0, 3, 2"); o("v_lshl_or_b32 v4, v5, 2, v4")
    o("v_bfe_u32 v5, v0, 2, 1"); o("v_lshl_or_b32 v4, v5, 4, v4")
    o("v_lshlrev_b32 v5, s32, v57"); o("v_lshl_add_u32 v4, v4, 1, v5"); o("v_add_u32 v4, s50, v4")
    for j in range(8): o(f"buffer_load_ushort v{240+j}, v4, s[64:67], 0 offen offset:{j*256}")
    o("s_branch K1_A")
    lab("K1_PREP2")
    o("s_lshl_b32 s14, s2, 10"); o(f"s_add_u32 s14, s14, {WS_WF:#x}")
    for j in range(8):
        o(f"v_lshlrev_b32 v{240+j}, 16, v{240+j}"); o(f"v_mul_f32 v{240+j}, s68, v{240+j}")
    for j in range(4): o(f"v_cvt_pk_bf16_f32 v{52+j}, v{240+2*j}, v{241+2*j}")
    o("buffer_store_dwordx4 v[52:55], v42, s[24:27], s14 offen")
    o("s_branch K1_I")

def regs_of(tok):
    m = re.fullmatch(r"v\[(\d+):(\d+)\]", tok)
    if m: return set(range(int(m.group(1)), int(m.group(2)) + 1))
    m = re.fullmatch(r"v(\d+)", tok)
    return {int(m.group(1))} if m else set()
def check_hazards(ins):
    P = []
    for s in ins:
        if s.endswith(':'): continue
        op, _, rest = s.partition(' ')
        t = [x.strip() for x in rest.split(',')]
        t = [x.split(' ')[0] for x in t]
        if op.startswith('v_mfma'):
            P.append(('m', 12 if '32x32' in op else 8, regs_of(t[0]), regs_of(t[1]) | regs_of(t[2]), regs_of(t[3]), s))
        elif op.startswith('v_'):
            P.append(('t' if op in ('v_exp_f32', 'v_rcp_f32') else 'v', 0, regs_of(t[0]), set().union(*map(regs_of, t[1:])), set(), s))
        elif op.startswith('ds_read'):
            P.append(('d', 0, regs_of(t[0]), regs_of(t[1]), set(), s))
        elif op.startswith('buffer'):
            P.append(('d', 0, set(), regs_of(t[0]), set(), s))
        else: P.append(('s', 0, set(), set(), set(), s))
    n = len(P)
    for i, (k, w, d, ab, c, s) in enumerate(P):
        for j in range(1, 13):
            k2, w2, d2, ab2, c2, s2 = P[(i + j) % n]
            gap = j - 1
            if k == 'm':
                if k2 == 'm':
                    assert not (gap < w and d & ab2), (s, s2)
                    if d & c2 and d != c2: assert gap >= w - 2, (s, s2)
                else: assert not (gap < w and d & (d2 | ab2)), (s, s2, gap)
                if k2 in 'vt': assert not (gap < (7 if w == 12 else 3) and c & d2), (s, s2)
            if k in 'vt' and k2 == 'm': assert not (gap < 2 and d & (ab2 | c2)), (s, s2)
            if k == 't' and k2 == 'v': assert not (gap < 1 and d & ab2), (s, s2)

LOWLIM = 2; NS = 2
LUT = 0; IDT = 4096; NB = IDT + 26 * 80; LIST = NB + 256; MB = LIST + 8192; ROW = 264; CNT = MB + 26 * ROW; ZSZ = 26 * ROW + 256
ER = CNT + 256; RING = ER + 8192; WS_ = 4160; SLOT = 4 * WS_; K2_LDS = RING + (NS + 1) * SLOT
assert K2_LDS <= 81920 and ER % 16 == 0 and LIST % 16 == 0 and MB % 16 == 0 and 4096 < ZSZ <= 8192 and ZSZ % 16 == 0

class RA:
    def __init__(s): s.n = 1
    def get(s, k=1, al=1):
        s.n = (s.n + al - 1) // al * al
        b = s.n; s.n += k; return b
R = RA()
vTA = R.get()
IX = [R.get(2, 2) for _ in range(4)]; IXE = R.get(2, 2); MQ = R.get(2, 2)
(vTC, vEA, vMT, vSA, vMA, vL1, vL2, vSV, vHC, vWF, vXA, vXR, vXI, vXO) = [R.get() for _ in range(14)]
SEG = R.get(4, 4); PT = R.get(4, 4)
GV = R.get(64, 4); ACC = R.get(64, 4)
TF = R.get(16, 4); EF = R.get(4, 4); SF = R.get(8, 4); WC = R.get(4, 4); T0 = R.get(8, 4); AF = R.get(16, 4); SEL = R.get(8, 4)
NVGPR = R.n
assert NVGPR <= 255, NVGPR
REC = GV; RANK = GV + 32; AD = GV + 48
sX, sE, sW, sO, sT = 8, 12, 16, 20, 96
sWAVE, sBASE, sMR, sME, sCNT, sNT, sRS, sLIM, sFIRST, sMORE, sDS, sT0, sT1, sEPS, s80, sMET = range(24, 40)
sHM, sSV, sWF, sS0 = 42, 44, 52, 54
sK = 56

def ldt(i): return f"buffer_load_dwordx4 {vr(IX[i],2)}, s[{sT}:{sT+3}], 0 idxen offen lds"
def lde(): return f"buffer_load_dwordx4 {vr(IXE,2)}, s[{sE}:{sE+3}], 0 idxen offen lds"
def loff(u): return (u & 1) * 4096 + (u >> 1) * 256
def nextslot(r): return [f"s_add_u32 s{r}, s{r}, {SLOT}", f"s_cmp_eq_u32 s{r}, {NS*SLOT}", f"s_cselect_b32 s{r}, 0, s{r}"]

def vstream(Gc, Vc):
    A = []
    for p in range(0, 22, 2):
        if p < 16: A += [(f"v_exp_f32 v{Gc+p}, v{Gc+p}", 8), (f"v_exp_f32 v{Gc+p+1}, v{Gc+p+1}", 8)]
        q = p - 2
        if 0 <= q < 16:
            A += [(f"v_add_f32 v{Gc+q}, 1.0, v{Gc+q}", 4), (f"v_add_f32 v{Gc+q+1}, 1.0, v{Gc+q+1}", 4),
                  (f"v_rcp_f32 v{Gc+q}, v{Gc+q}", 8), (f"v_rcp_f32 v{Gc+q+1}, v{Gc+q+1}", 8)]
        q = p - 4
        if 0 <= q < 16: A += [(f"v_mul_f32 v{Vc+q}, v{Gc+q}, v{Vc+q}", 4), (f"v_mul_f32 v{Vc+q+1}, v{Gc+q+1}, v{Vc+q+1}", 4)]
        q = p - 6
        if 0 <= q < 16: A += [(f"v_cvt_pk_bf16_f32 v{Gc+q//2}, v{Gc+q}, v{Gc+q+1}", 4), (f"v_cvt_pk_bf16_f32 v{Vc+q//2}, v{Vc+q}, v{Vc+q+1}", 4)]
    return A
def zphase(P, p):
    d = ACC + 32 * p
    return [m32(d, P, T0, d), m32(d+16, P+16, T0, d+16), m32(d, P+4, T0+4, d), m32(d+16, P+20, T0+4, d+16)]

HEAD = {}
def body(b, peel=False):
    p = b % 2
    Gn = GV + 32 * p; Vn = Gn + 16; Gc = GV + 32 * (1 - p); Vc = Gc + 16; af = AF + 8 * p
    ne = sum(1 for k in range(NS - 1) if (b - k) % 4 == 0) + (1 if (b - (NS - 1)) % 4 == 0 else 0)
    vmw = 4 * (NS - 1) + ne
    z = zphase(Gn, p)
    def dma(i): return [f"s_add_u32 m0, s{sDS}, {i*1040}", None, ldt(i), f"ds_read_u16 v{IX[i]}, v{vL1} offset:{loff(b+NS+1)+64*i}"]
    top = ["s_waitcnt vmcnt(8) lgkmcnt(0)", "s_barrier"] if b == 3 else ["s_waitcnt lgkmcnt(0)"]
    seq = []
    seq.append([z[0], [f"s_add_u32 s{sDS}, s{sMR}, s{sRS}"] + dma(0), [f"v_mad_u32_u24 v{vSV}, v{vSV}, s{s80}, v{vHC}"]])
    seq.append([z[1], [f"ds_read_b128 {vr(SF,4)}, v{vSV}", f"ds_read_b128 {vr(SF+4,4)}, v{vSV} offset:32"] + dma(1), []])
    seq.append([z[2], dma(2) + [f"ds_read_u8 v{vSV}, v{vSA} offset:{loff(b+1)}"], []])
    seq.append([z[3], dma(3) + ([f"s_sub_u32 s{sCNT}, s{sCNT}, 1", "s_cbranch_scc1 TAIL"] if p == 0 else []) + [f"ENT{b}:"], []])
    e1 = [f"s_mov_b32 m0, s{sME}", None, lde(), f"s_xor_b32 s{sME}, s{sME}, s{sMET}"] if b == 0 else []
    seq.append([m32(Gn, TF, SEL, None), [f"ds_read_b128 {vr(T0,4)}, v{MQ}"] + e1, [f"v_and_b32 v{IXE}, 0x7ffff, v{IXE}"] if b == 0 else []])
    seq.append([m32(Gn, TF+4, SEL+4, Gn), [f"ds_read_b128 {vr(T0+4,4)}, v{MQ+1}"] + nextslot(sRS), [f"v_xor_b32 v{vEA}, v{vEA}, v{vMT}"] if b == 3 else []])
    seq.append([m32(Gn, EF, WC, Gn), [f"ds_read_b128 {vr(EF,4)}, v{vEA} offset:{(b+1)%4*1024}", f"ds_read_u16 v{MQ}, v{vMA} offset:{b*8}",
                f"ds_read_u16 v{MQ+1}, v{vMA} offset:{b*8+2}"], [f"v_add_u32 v{vTC}, s{sRS}, v{vTA}"]])
    seq.append([m32(Vn, TF+8, SEL, None), [f"ds_read_b32 v{IXE}, v{vL2}"] if b == 3 else [], []])
    seq.append([m32(Vn, TF+12, SEL+4, Vn), [None, f"s_waitcnt lgkmcnt({10 if b == 3 else 9})"], []])
    seq.append([m32(Gn, SF, af, Gn), [None, f"s_waitcnt vmcnt({vmw})"],
                [f"v_add_u32 v{r}, 0x200, v{r}" for r in (vSA, vL1, vL2)] + [f"v_add_u32 v{vMA}, 32, v{vMA}"] if b == 3 else []])
    seq.append([m32(Gn, SF+4, af+4, Gn), [f"ds_read_b128 {vr(TF+4*j,4)}, v{vTC} offset:{16*j}" for j in range(4)], []])
    A = [] if peel else vstream(Gc, Vc)
    wt = [float(x) for x in OPT.get('wt', '1,1,1,1,1,1,1,1,1,1,1.6').split(',')]
    tot = sum(c for _, c in A); out = list(top); ai = 0; acc = 0; budget = 0
    for i, (m, ex, xv) in enumerate(seq):
        budget += tot * wt[i] / sum(wt)
        g = []
        while ai < len(A) and acc + A[ai][1] / 2 <= budget + 0.01:
            g.append(A[ai][0]); acc += A[ai][1]; ai += 1
        if i == 3 and not peel: HEAD[b] = ai
        if not (peel and i < 4): out.append(m)
        g = xv + g
        last = [x for x in ex if x and (x.startswith("s_waitcnt") or x.startswith("s_cbranch") or x.endswith(":") or x.startswith("s_sub"))]
        ex = [x for x in ex if x not in last]
        if peel: last = [x for x in last if x.startswith("s_waitcnt")]
        first = True
        for x in ex:
            if x is None:
                continue
            if not first and g: out.append(g.pop(0))
            elif not first and peel and x.startswith("buffer"): out.append("s_nop 0")
            out.append(x); first = False
        out += g + last
    assert ai == len(A)
    if OPT.get('nodma'): out = [x for x in out if 'buffer_load' not in x]
    if OPT.get('noe'): out = [x for x in out if f"s[{sE}:{sE+3}]" not in x]
    return out

def emit(lst):
    for it in lst:
        if it.endswith(':'): lab(it[:-1])
        else: o(it)

def masks(tmp):
    a, b_, c = tmp
    o(f"v_and_b32 v{a}, 3, v0"); o(f"v_lshlrev_b32 v{a}, 1, v{a}"); o(f"v_mov_b32 v{c}, 0")
    for i in range(4):
        o(f"v_lshrrev_b32 v{b_}, 19, v{SEG+i}"); o(f"v_max_u32 v{c}, v{c}, v{b_}")
        o(f"v_min_u32 v{b_}, s{sLIM}, v{b_}"); o(f"v_sub_u32 v{b_}, v{b_}, v{a}")
        for j, k in ((0, 2*i), (1, 2*i+1), (8, 8+2*i), (9, 9+2*i)): o(f"v_cmp_lt_i32 s[{sK+2*k}:{sK+2*k+1}], {j}, v{b_}")
    o(f"v_cmp_lt_u32 vcc, s{sLIM}, v{c}")
    o(f"s_or_b64 s[{sSV}:{sSV+1}], s[{sK+16}:{sK+17}], s[{sK+20}:{sK+21}]"); o(f"s_or_b64 s[{sHM}:{sHM+1}], s[{sK+24}:{sK+25}], s[{sK+28}:{sK+29}]")
    o(f"s_or_b64 s[{sSV}:{sSV+1}], s[{sSV}:{sSV+1}], s[{sHM}:{sHM+1}]")
    o(f"v_mov_b32 v{b_}, {CNT-4}")
    o("s_mov_b64 exec, vcc"); o(f"ds_write_b32 v{b_}, v{b_}"); o("s_mov_b64 exec, -1")

def interleave(mf, other, per):
    other = list(other)
    for m in mf:
        o(m)
        for _ in range(per):
            if other: o(other.pop(0))
    for x in other: o(x)
def capture(fn):
    n = len(L); fn(); r = [x.strip() for x in L[n:]]; del L[n:]; return r
def wload(dst, off):
    r = []
    for s in range(8):
        if s % 4 == 0: r.append(f"s_add_u32 s{sT0}, s{sWF}, {off + s*1024:#x}")
        r.append(f"buffer_load_dwordx4 {vr(dst+4*s,4)}, v{vWF}, s[{sW}:{sW+3}], s{sT0} offen offset:{(s%4)*1024}")
    return r
def xblk(base, pair):
    o(f"v_mov_b32 v{pair+1}, v{vXO}")
    for mt in range(2):
        for a in range(2):
            o(f"s_add_u32 m0, s{base}, {(2*mt+a)*1040}")
            o(f"v_cmp_gt_u32 vcc, {(NA if mt == 0 else RN-NA) - 2*a}, v{vXI}")
            o(f"s_add_u32 s{sT0}, s{sBASE}, {NA*mt + 2*a}"); o(f"v_add_u32 v{pair}, s{sT0}, v{vXI}")
            o(f"v_cndmask_b32 v{pair}, v{PT+3}, v{pair}, vcc")
            o(f"buffer_load_dwordx4 {vr(pair,2)}, s[{sX}:{sX+3}], 0 idxen offen lds")

def gen_k2():
    L.append(".globl gmain_kernel"); L.append(".p2align 8"); L.append(".type gmain_kernel,@function")
    lab("gmain_kernel"); VST[0] = 255
    t = [TF + i for i in range(28)]
    stamp(0)
    o("s_load_dwordx2 s[50:51], s[0:1], 88")
    o("s_load_dwordx4 s[4:7], s[0:1], 0")
    o("s_load_dwordx2 s[48:49], s[0:1], 72")
    o("s_setprio 3")
    o(f"v_lshrrev_b32 v{t[0]}, 6, v0")
    o("s_and_b32 s3, s2, 7"); o("s_lshl_b32 s3, s3, 6"); o(f"s_bfe_u32 s{sT0}, s2, 0x50003"); o(f"s_lshl1_add_u32 s3, s{sT0}, s3")
    o(f"v_readfirstlane_b32 s{sWAVE}, v{t[0]}")
    o(f"s_lshr_b32 s{sT0}, s2, 8"); o(f"s_add_u32 s3, s3, s{sT0}")
    o("s_cmp_ge_u32 s2, 512"); o("s_cbranch_scc1 K2_END")
    o(f"s_cmp_ge_u32 s3, {NR}"); o("s_cbranch_scc1 K2_END")
    o(f"v_lshrrev_b32 v{t[1]}, 2, v0")
    o(f"s_lshr_b32 s{sS0}, s3, 2"); o(f"s_mul_i32 s{sS0}, s{sS0}, {OG}"); o(f"s_and_b32 s{sT0}, s3, 3"); o(f"s_lshl2_add_u32 s{sS0}, s{sT0}, s{sS0}"); o(f"s_add_u32 s{sS0}, s{sS0}, {WS_OFF:#x}")
    o(f"v_lshlrev_b32 v{t[1]}, 6, v{t[1]}")
    o(f"s_mul_i32 s{sBASE}, s3, {RN}")
    o(f"v_and_b32 v{vWF}, 63, v0"); o(f"v_lshlrev_b32 v{vWF}, 4, v{vWF}")
    o(f"s_mul_i32 s{sMR}, s{sWAVE}, {WS_}"); o(f"s_add_u32 s{sMR}, s{sMR}, {RING}")
    o(f"s_lshl_b32 s{sWF}, s{sWAVE}, 13"); o(f"s_add_u32 s{sWF}, s{sWF}, {WS_WF:#x}")
    o(f"s_mov_b32 s{sEPS}, {EPS:#x}"); o(f"s_movk_i32 s{s80}, 80")
    o(f"s_mov_b32 s{sFIRST}, 1"); o(f"s_mov_b32 s{sLIM}, 16")
    o("s_waitcnt lgkmcnt(0)"); xstamp("karg")
    srd(sW, 50, WS_SIZE)
    for i in range(4): o(f"buffer_load_dword v{SEG+i}, v{t[1]}, s[{sW}:{sW+3}], s{sS0} offen offset:{16*i}")
    srd(sX, 4, N, 256); srd(sE, 6, E, 32); srd(sO, 48, N, 256)
    o(f"s_add_u32 s50, s50, {WS_TAB:#x}"); o("s_addc_u32 s51, s51, 0"); srd(sT, 50, N, 512)
    lab("ROUND")
    b0, b2, b3, b4, vh = t[16:21]
    o(f"v_lshlrev_b32 v{t[11]}, 4, v0")
    for d in range(4): o(f"v_mov_b32 v{t[0]+d}, 0")
    for off in (0, ZSZ - 4096): o(f"ds_write_b128 v{t[11]}, {vr(t[0],4)} offset:{MB+off}")
    pad0 = 0xffff | (NA << 16)
    o(f"v_mov_b32 v{t[4]}, {pad0:#x}"); o(f"v_mov_b32 v{t[5]}, 0x7ffff"); o(f"v_mov_b32 v{t[6]}, {pad0:#x}"); o(f"v_mov_b32 v{t[7]}, 0x7ffff")
    o(f"ds_write_b128 v{t[11]}, {vr(t[4],4)} offset:{LIST}"); o(f"ds_write_b128 v{t[11]}, {vr(t[4],4)} offset:{LIST+4096}")
    o(f"v_and_b32 v{b0}, 1, v0"); o(f"v_bfe_u32 v{b2}, v0, 2, 1"); o(f"v_bfe_u32 v{b3}, v0, 3, 1"); o(f"v_bfe_u32 v{b4}, v0, 4, 1"); o(f"v_bfe_u32 v{vh}, v0, 5, 1")
    o(f"v_and_b32 v{t[8]}, 3, v0"); o(f"v_lshlrev_b32 v{t[8]}, 1, v{t[8]}")
    o(f"v_mov_b32 v{t[9]}, 0x7ffffff0"); o(f"s_mov_b32 s{sT1}, 0x7ffff")
    o(f"v_and_b32 v{t[12]}, 15, v0"); o(f"v_lshlrev_b32 v{t[13]}, 3, v{b4}")
    o(f"v_xor_b32 v{vXO}, v{t[12]}, v{t[13]}"); o(f"v_lshlrev_b32 v{vXO}, 4, v{vXO}")
    o(f"s_lshr_b32 s{sT0}, s{sWAVE}, 1"); o(f"s_lshl_b32 s{sT0}, s{sT0}, 4"); o(f"s_and_b32 s{sS0}, s{sWAVE}, 1"); o(f"s_lshl2_add_u32 s{sT0}, s{sS0}, s{sT0}")
    o(f"v_lshl_add_u32 v{vXI}, v{vh}, 3, v{b4}"); o(f"v_add_u32 v{vXI}, s{sT0}, v{vXI}")
    o(f"v_mov_b32 v{PT+3}, 0xffff")
    xstamp("consts_done")
    o("s_waitcnt vmcnt(0)"); stamp(1)
    for i in range(4):
        o(f"v_lshrrev_b32 v{t[4+i]}, 19, v{SEG+i}"); o(f"v_cmp_lt_u32 vcc, v{t[8]}, v{t[4+i]}")
        o(f"v_and_b32 v{t[i]}, s{sT1}, v{SEG+i}"); o(f"v_add_lshl_u32 v{t[i]}, v{t[i]}, v{t[8]}, 3")
        o(f"v_cndmask_b32 v{t[10]}, v{t[9]}, v{t[i]}, vcc")
        o(f"buffer_load_dwordx4 {vr(REC+4*i,4)}, v{t[10]}, s[{sW}:{sW+3}], 0 offen")
    o(f"v_max3_u32 v{t[10]}, v{t[4]}, v{t[5]}, v{t[6]}"); o(f"v_max_u32 v{t[10]}, v{t[10]}, v{t[7]}")
    o(f"v_cmp_lt_u32 vcc, 8, v{t[10]}"); o("s_cbranch_vccz REC_DONE")
    for i in range(4): o(f"buffer_load_dwordx4 {vr(REC+16+4*i,4)}, v{t[i]}, s[{sW}:{sW+3}], 0 offen offset:64")
    lab("REC_DONE")
    xstamp("rec_issued")
    PF = int(OPT.get('pf', 0))
    def pref():
        o(f"s_lshr_b32 s{sT0}, s3, 6"); o(f"s_mul_i32 s{sT0}, s{sT0}, {64*RN}"); o(f"s_and_b32 s{sT1}, s3, 63"); o(f"s_lshl_b32 s{sT1}, s{sT1}, 6"); o(f"s_add_u32 s{sT0}, s{sT0}, s{sT1}")
        o(f"v_lshrrev_b32 v{T0+2}, 2, v0"); o(f"v_add_u32 v{T0+2}, s{sT0}, v{T0+2}"); o(f"v_and_b32 v{T0+1}, 3, v0"); o(f"v_lshlrev_b32 v{T0+1}, 7, v{T0+1}")
        for k in range(PF):
            o(f"v_add_u32 v{T0+3}, {-512*RN}, v{T0+2}"); o(f"v_min_u32 v{T0}, v{T0+2}, v{T0+3}")
            o(f"buffer_load_dword v{SEL}, {vr(T0,2)}, s[{sT}:{sT+3}], 0 idxen offen")
            if k + 1 < PF: o(f"v_add_u32 v{T0+2}, 4096, v{T0+2}")
    PFW = OPT.get('pfw', 'rec')
    if PF and PFW == 'rec': pref()
    o("s_waitcnt lgkmcnt(0)"); o("s_barrier"); stamp(2)
    pp = t[14]
    o(f"v_and_b32 v{pp}, 0x13, v0"); o(f"v_lshl_or_b32 v{pp}, v{b2}, 3, v{pp}"); o(f"v_lshl_or_b32 v{pp}, v{b3}, 2, v{pp}")
    o(f"v_lshrrev_b32 v{t[12]}, 3, v{pp}"); o(f"v_lshlrev_b32 v{vTA}, 7, v{pp}"); o(f"v_lshl_add_u32 v{vTA}, v{t[12]}, 4, v{vTA}")
    o(f"v_bfe_u32 v{t[13]}, v0, 1, 1"); o(f"v_xor_b32 v{t[12]}, v{t[13]}, v{vh}"); o(f"v_lshl_add_u32 v{vTA}, v{t[12]}, 6, v{vTA}"); o(f"v_add_u32 v{vTA}, s{sMR}, v{vTA}")
    o(f"v_and_b32 v{t[12]}, 7, v0"); o(f"v_lshlrev_b32 v{t[15]}, 2, v{b4}"); o(f"v_xor_b32 v{t[15]}, v{t[15]}, v{t[12]}")
    o(f"s_lshl_b32 s{sT0}, s{sWAVE}, 7"); o(f"v_lshl_add_u32 v{IX[0]+1}, v{t[15]}, 4, s{sT0}")
    for i in range(1, 4): o(f"v_mov_b32 v{IX[i]+1}, v{IX[0]+1}")
    o(f"v_and_b32 v{vL1}, 0x38, v0"); o(f"v_add_u32 v{vL1}, {LIST}, v{vL1}")
    o(f"v_lshl_or_b32 v{t[15]}, v{b4}, 1, v{b2}"); o(f"v_mul_u32_u24 v{t[15]}, {WS_}, v{t[15]}"); o(f"v_mul_u32_u24 v{t[13]}, 1040, v{t[13]}")
    o(f"v_lshl_or_b32 v{t[21]}, v{b3}, 1, v{b0}"); o(f"v_lshl_add_u32 v{t[15]}, v{t[21]}, 8, v{t[15]}"); o(f"v_add3_u32 v{t[15]}, v{t[15]}, v{t[13]}, 0")
    o(f"v_add_u32 v{t[15]}, {RING + NS*SLOT}, v{t[15]}")
    o(f"v_xor_b32 v{t[13]}, v{vh}, v{b0}"); o(f"v_lshl_add_u32 v{vXA}, v{t[13]}, 7, v{t[15]}")
    o(f"v_lshlrev_b32 v{IXE+1}, 4, v{t[13]}")
    o(f"v_bfe_u32 v{t[13]}, v0, 7, 1"); o(f"v_xor_b32 v{t[13]}, v{t[13]}, v{b0}"); o(f"v_lshl_add_u32 v{vXR}, v{t[13]}, 7, v{t[15]}")
    o(f"v_and_b32 v{t[13]}, 0x60, v0"); o(f"v_add_u32 v{vXR}, v{vXR}, v{t[13]}")
    o(f"s_lshl_b32 s{sT0}, s{sS0}, 12"); o(f"s_lshr_b32 s{sT1}, s{sWAVE}, 1"); o(f"s_lshl_b32 s{sT1}, s{sT1}, 8"); o(f"s_add_u32 s{sT0}, s{sT0}, s{sT1}"); o(f"s_add_u32 s{sT0}, s{sT0}, {LIST+4}")
    o(f"v_bfe_u32 v{vL2}, v0, 1, 5"); o(f"v_lshl_add_u32 v{vL2}, v{vL2}, 3, s{sT0}")
    o(f"s_lshl_b32 s{sME}, s{sWAVE}, 10"); o(f"s_add_u32 s{sME}, s{sME}, {ER}")
    o(f"v_lshlrev_b32 v{vSA}, 3, v{pp}"); o(f"v_add_u32 v{vSA}, {LIST+2}, v{vSA}")
    o(f"v_lshlrev_b32 v{vHC}, 4, v{vh}"); o(f"v_add_u32 v{vHC}, {IDT}, v{vHC}")
    o(f"v_xor_b32 v{vEA}, v{b4}, v{vh}"); o(f"v_lshlrev_b32 v{vEA}, 4, v{vEA}")
    o(f"v_lshl_add_u32 v{vEA}, v{pp}, 5, v{vEA}"); o(f"v_add_u32 v{vEA}, {ER}, v{vEA}")
    o(f"v_add_u32 v{vMT}, 4096, v{vEA}"); o(f"v_xor_b32 v{vMT}, v{vMT}, v{vEA}")
    o(f"v_and_b32 v{t[13]}, 31, v0"); o(f"v_min_u32 v{t[13]}, {NA}, v{t[13]}")
    o(f"v_mul_u32_u24 v{vMA}, {ROW}, v{t[13]}"); o(f"v_lshl_add_u32 v{vMA}, v{vh}, 2, v{vMA}"); o(f"v_add_u32 v{vMA}, {MB}, v{vMA}")
    o(f"v_lshrrev_b32 v{PT+2}, 5, v0"); o(f"v_lshlrev_b32 v{PT+2}, 4, v{PT+2}"); o(f"v_lshl_add_u32 v{PT+2}, v{b3}, 2, v{PT+2}")
    o(f"v_lshl_add_u32 v{t[12]}, v{b4}, 4, v{t[12]}"); o(f"v_lshlrev_b32 v{PT+1}, v{t[12]}, 16")
    o(f"v_and_b32 v{t[12]}, 3, v0"); o(f"v_lshl_add_u32 v{t[12]}, v{b4}, 2, v{t[12]}"); o(f"v_lshlrev_b32 v{t[12]}, v{t[12]}, 16")
    o(f"v_cmp_eq_u32 vcc, v{b3}, v{vh}"); o(f"v_lshlrev_b32 v{t[13]}, 4, v{b2}"); o("s_nop 0")
    o(f"v_cndmask_b32 v{t[12]}, 0, v{t[12]}, vcc"); o(f"v_lshlrev_b32 v{PT}, v{t[13]}, v{t[12]}")
    lab("REMASK")
    masks((t[0], t[1], t[2])); xstamp("masks_done")
    a, b_, c, d_ = t[0:4]; ad = [AD + k for k in range(16)]
    o(f"v_mov_b32 v{a}, 8")
    o(f"v_lshrrev_b32 v{b_}, 2, v{vWF}")
    if PF and PFW == 'mask': pref()
    o(f"s_waitcnt vmcnt({PF if PFW in ('rec', 'mask') else 0})"); xstamp("rec_landed")
    for half in range(2):
        if half: o(f"s_cmp_eq_u64 s[{sSV}:{sSV+1}], 0"); o("s_cbranch_scc1 P1_DONE"); o("s_mov_b64 exec, -1")
        for k in range(8*half, 8*half+8): o(f"v_lshrrev_b32 v{ad[k]}, 24, v{REC+2*k+1}")
        for k in range(8*half, 8*half+8):
            o(f"s_mov_b64 exec, s[{sK+2*k}:{sK+2*k+1}]")
            o(f"ds_add_rtn_u32 v{RANK+k}, v{ad[k]}, v{a} offset:{CNT}")
    lab("P1_DONE")
    o("s_mov_b64 exec, -1")
    o(f"s_cmp_eq_u32 s{sFIRST}, 0"); o("s_cbranch_scc1 NOW")
    o(f"s_add_u32 s{sDS}, s{sMR}, {NS*SLOT}")
    xblk(sDS, t[4])
    for x in wload(ACC, WF_A): o(x)
    o(f"s_lshl_b32 s{sT0}, s{sWAVE}, 10"); o(f"s_add_u32 s{sT0}, s{sT0}, {WS_WF+WF_C:#x}")
    o(f"buffer_load_dwordx4 {vr(WC,4)}, v{vWF}, s[{sW}:{sW+3}], s{sT0} offen")
    lab("NOW")
    if PF and PFW == 'p1': pref()
    o("s_waitcnt lgkmcnt(0)"); xstamp("p1_done"); o("s_barrier"); xstamp("b1")
    o(f"ds_read_b32 v{c}, v{b_} offset:{CNT}")
    o(f"ds_read_b32 v{t[4]}, v{b_} offset:{CNT-4}")
    o(f"v_lshlrev_b32 v{t[5]}, 12, v{vh}")
    o("s_waitcnt lgkmcnt(1)")
    o(f"v_sub_u32 v{d_}, v{t[5]}, v{c}")
    for dd in ("row_shr:1", "row_shr:2", "row_shr:4", "row_shr:8"):
        o(f"v_add_u32_dpp v{c}, v{c}, v{c} {dd} row_mask:0xf bank_mask:0xf bound_ctrl:0"); o("s_nop 1")
    o(f"v_add_u32_dpp v{c}, v{c}, v{c} row_bcast:15 row_mask:0xa bank_mask:0xf")
    o(f"v_add_u32 v{d_}, v{c}, v{d_}")
    o(f"ds_write_b32 v{b_}, v{d_} offset:{NB}")
    o(f"v_readlane_b32 s{sNT}, v{c}, 31"); o(f"v_readlane_b32 s{sT0}, v{c}, 63")
    for k in range(8): o(f"ds_read_b32 v{ad[k]}, v{ad[k]} offset:{NB}")
    o(f"s_max_u32 s{sNT}, s{sNT}, s{sT0}")
    o(f"s_cmp_le_u32 s{sNT}, 4096"); o("s_cbranch_scc0 TOOBIG")
    xstamp("scan_done")
    for half in range(2):
        if half:
            o(f"s_cmp_eq_u64 s[{sSV}:{sSV+1}], 0"); o("s_cbranch_scc1 P2_DONE"); o("s_mov_b64 exec, -1")
            for k in range(8, 16): o(f"ds_read_b32 v{ad[k]}, v{ad[k]} offset:{NB}")
        for k in range(8*half, 8*half+8):
            if k % 4 == 0: o(f"s_waitcnt lgkmcnt({4 - k % 8})")
            o(f"v_add_u32 v{RANK+k}, v{RANK+k}, v{ad[k]}")
        for k in range(8*half, 8*half+8):
            o(f"s_mov_b64 exec, s[{sK+2*k}:{sK+2*k+1}]")
            o(f"ds_write_b64 v{RANK+k}, {vr(REC+2*k,2)} offset:{LIST}")
    lab("P2_DONE")
    o("s_mov_b64 exec, -1")
    o(f"v_readlane_b32 s{sMORE}, v{t[4]}, 0")
    o(f"s_mov_b32 m0, s{sME}")
    o(f"s_waitcnt vmcnt({9 + (PF if PFW == 'p1' else 0)}) lgkmcnt(0)"); xstamp("p2_done"); o("s_barrier"); stamp(5)
    f = t
    def rdidx(u):
        for i in range(4): o(f"ds_read_u16 v{IX[i]}, v{vL1} offset:{loff(u)+64*i}")
    def fill(u, nxt):
        for i in range(4):
            o(f"s_add_u32 m0, s{sMR}, {u*SLOT + i*1040}"); o(f"s_waitcnt lgkmcnt(3)"); o(ldt(i))
            o(f"ds_read_u16 v{IX[i]}, v{vL1} offset:{loff(nxt)+64*i}")
    o(f"ds_read_b32 v{IXE}, v{vL2}"); rdidx(0)
    o(f"v_lshlrev_b32 v{f[9]}, 3, v0")
    o("s_waitcnt lgkmcnt(4)")
    o(f"v_and_b32 v{IXE}, 0x7ffff, v{IXE}"); o(lde())
    for u in range(NS): fill(u, u + 1)
    for k in range(4): o(f"ds_read_u8 v{f[12+k]}, v{f[9]} offset:{LIST+2+k*2048}")
    o(f"ds_read_b32 v{IXE}, v{vL2} offset:512"); o(f"ds_read_u8 v{vSV}, v{vSA}")
    xstamp("fill_issued")
    def ctrl():
        o(f"s_movk_i32 s{sS0}, {ROW}")
        for k in range(4):
            o(f"v_cmp_gt_u32 vcc, {NA}, v{f[12+k]}"); o(f"v_mad_u32_u24 v{f[0]}, v{f[12+k]}, s{sS0}, v{PT+2}"); o("s_nop 0")
            o(f"v_cndmask_b32 v{f[1]}, 0, v{PT+1}, vcc")
            o(f"ds_or_b32 v{f[0]}, v{f[1]} offset:{MB + (k&1)*128 + (k>>1)*8}")
        o(f"s_add_u32 s{sCNT}, s{sNT}, 255"); o(f"s_lshr_b32 s{sCNT}, s{sCNT}, 8"); o(f"s_max_u32 s{sCNT}, s{sCNT}, 1"); o(f"s_lshl_b32 s{sNT}, s{sCNT}, 1"); o(f"s_sub_u32 s{sCNT}, s{sCNT}, 1")
        o(f"s_add_u32 s{sMET}, s{sME}, 4096"); o(f"s_xor_b32 s{sMET}, s{sMET}, s{sME}"); o(f"s_add_u32 s{sME}, s{sME}, 4096")
        o(f"v_add_u32 v{vL2}, 0x400, v{vL2}")
        o(f"s_mov_b32 s{sRS}, 0")
    def lut():
        q = T0
        for d in range(4):
            o(f"v_bfe_u32 v{q+d}, v0, {2*d}, 2"); o(f"v_mul_u32_u24 v{q+d}, 0x8001, v{q+d}")
            o(f"v_and_b32 v{q+d}, 0x10001, v{q+d}"); o(f"v_mul_u32_u24 v{q+d}, 0x3f80, v{q+d}")
        o(f"v_lshlrev_b32 v{q+4}, 4, v0"); o(f"ds_write_b128 v{q+4}, {vr(q,4)} offset:{LUT}")
        o(f"v_lshrrev_b32 v{q}, 3, v0"); o(f"v_and_b32 v{q+1}, 7, v0")
        o(f"v_bfe_u32 v{q+2}, v0, 5, 1"); o(f"v_bfe_u32 v{q+3}, v0, 6, 1"); o(f"v_lshl_or_b32 v{q+2}, v{q+2}, 1, v{q+3}")
        o(f"v_lshrrev_b32 v{q+3}, 7, v0"); o(f"v_lshl_or_b32 v{q+2}, v{q+3}, 2, v{q+2}")
        o(f"v_cmp_eq_u32 vcc, v{q+2}, v{q+1}"); o(f"v_cmp_gt_u32 s[{sHM}:{sHM+1}], {NA}, v{q}"); o(f"v_mov_b32 v{q+6}, 0x3f80"); o(f"v_mov_b32 v{q+7}, 0")
        o(f"s_and_b64 vcc, vcc, s[{sHM}:{sHM+1}]")
        o(f"v_and_b32 v{q+2}, 3, v{q}"); o(f"v_lshlrev_b32 v{q+2}, 4, v{q+2}"); o(f"v_cndmask_b32 v{q+6}, 0, v{q+6}, vcc")
        o(f"v_lshlrev_b64 {vr(q+6,2)}, v{q+2}, {vr(q+6,2)}")
        o(f"v_min_u32 v{q}, {NA}, v{q}"); o(f"v_mul_u32_u24 v{q}, 80, v{q}"); o(f"v_lshl_add_u32 v{q}, v{q+1}, 3, v{q}")
        o(f"ds_write_b64 v{q}, {vr(q+6,2)} offset:{IDT}")
    o(f"s_cmp_eq_u32 s{sFIRST}, 1"); o("s_cbranch_scc1 G1")
    o("s_waitcnt lgkmcnt(0)")
    ctrl()
    o("s_branch G1D")
    lab("G1")
    for mt in range(2):
        for s in range(8): o(f"ds_read_b128 {vr(GV+32*mt+4*s,4)}, v{vXA} offset:{mt*2080 + 16*s}")
        if mt == 0: o("s_waitcnt lgkmcnt(8)")
    lt = capture(lut); ct = capture(ctrl)
    for x in lt[:18]: o(x)
    o(f"s_waitcnt vmcnt({4*NS+2}) lgkmcnt(9)")
    acc = [ACC + 32, ACC + 48]
    interleave([m32(acc[0], GV+4*s, ACC+4*s, None if s == 0 else acc[0]) for s in range(8)], lt[18:] + ct[:16], 5)
    o("s_waitcnt lgkmcnt(5)")
    def cv(mt): return [f"v_cvt_pk_bf16_f32 v{AF+8*mt+r//2}, v{acc[mt]+r}, v{acc[mt]+r+1}" for r in range(0, 16, 2)]
    interleave([m32(acc[1], GV+32+4*s, ACC+4*s, None if s == 0 else acc[1]) for s in range(8)],
               ct[16:] + cv(0) + [f"v_mov_b32 v{acc[0]+r}, 0" for r in range(16)], 5)
    for r in range(32): o(f"v_mov_b32 v{ACC+r}, 0")
    for x in cv(1): o(x)
    for r in range(16): o(f"v_mov_b32 v{acc[1]+r}, 0")
    if STAMP:
        o("s_getreg_b32 s94, hwreg(HW_REG_HW_ID)"); o("s_getreg_b32 s100, hwreg(HW_REG_XCC_ID)"); o("s_and_b32 s94, s94, 0xffff"); o("s_lshl_b32 s100, s100, 16"); o("s_or_b32 s94, s94, s100"); o(f"v_writelane_b32 v{VST[0]}, s94, 3")
    lab("G1D")
    o(f"v_and_b32 v{MQ}, 0xffff, v{PT}"); o(f"v_lshrrev_b32 v{MQ+1}, 16, v{PT}")
    xstamp("g1_done"); stamp(4)
    o(f"s_waitcnt vmcnt({4*(NS-1)}) lgkmcnt(0)"); xstamp("t0_landed"); o("s_barrier")
    o(f"ds_read_b128 {vr(SEL,4)}, v{MQ}"); o(f"ds_read_b128 {vr(SEL+4,4)}, v{MQ+1}")
    o(f"ds_read_b128 {vr(EF,4)}, v{vEA}")
    for j in range(4): o(f"ds_read_b128 {vr(TF+4*j,4)}, v{vTA} offset:{16*j}")
    o(f"s_setprio {OPT.get('lp', 2)}")
    if OPT.get('young'):
        o("s_cmp_lt_u32 s2, 256"); o("s_cbranch_scc1 OLD"); o(f"s_setprio {OPT['young']}"); lab("OLD")
    stamp(6); stamp(8, "s_memtime")
    bodies = [body(b) for b in range(4)]
    check_hazards(sum(bodies, []) + ["s_branch LOOP"])
    emit(body(0, peel=True))
    b1 = bodies[1][:bodies[1].index("ENT1:")]
    o("s_nop 7")
    emit([x for x in b1 if not x.startswith("v_mfma")])
    o("s_branch ENT1")
    lab("TOOBIG")
    o(f"s_mov_b32 s{sLIM}, {LOWLIM}"); o(f"v_mov_b32 v{a}, 0")
    o("s_waitcnt lgkmcnt(0)"); o("s_barrier")
    o(f"ds_write_b32 v{b_}, v{a} offset:{CNT}")
    o("s_waitcnt lgkmcnt(0)"); o("s_barrier")
    o("s_branch REMASK")
    lab("LOOP")
    emit(sum(bodies, []))
    if OPT.get('pp', '99,8,4') != '0':
        th = [int(x) for x in OPT.get('pp', '99,8,4').split(',')]
        for k, v in enumerate(th):
            o(f"s_cmp_lt_u32 s{sCNT}, {v}"); o("s_cbranch_scc0 LOOP"); o(f"s_setprio {2-k}")
    o("s_branch LOOP")
    assert HEAD[0] == HEAD[2]
    lab("TAIL")
    stamp(7); stamp(11, "s_memtime")
    if STAMP: o(f"v_writelane_b32 v{VST[0]}, s{sNT}, 12")
    Gc = GV + 32; WU = TF; x = AF
    o(f"ds_read_b128 {vr(T0,4)}, v{MQ}"); o(f"ds_read_b128 {vr(T0+4,4)}, v{MQ+1}")
    o(f"s_cmp_lg_u32 s{sMORE}, 0"); o("s_cbranch_scc1 TAILM")
    o("s_waitcnt lgkmcnt(0)")
    for ins in wload(WU, WF_U): o(ins)
    lab("TAILM")
    for ins, _ in vstream(Gc, Gc + 16)[HEAD[0]:]: o(ins)
    o("s_waitcnt lgkmcnt(0)")
    def fin(p):
        d = ACC + 32 * p; r = []
        for k in range(16): r.append(f"v_add_f32 v{d+k}, s{sEPS}, v{d+k}")
        for k in range(16): r.append(f"v_rcp_f32 v{d+k}, v{d+k}")
        for k in range(16): r.append(f"v_mul_f32 v{d+16+k}, v{d+k}, v{d+16+k}")
        return r
    for m in zphase(Gc, 1): o(m)
    o(f"s_cmp_lg_u32 s{sMORE}, 0"); o("s_cbranch_scc1 NEXTROUND")
    for s in range(8): o(f"ds_read_b128 {vr(GV+4*s,4)}, v{vXA} offset:{16*s}")
    for mt in range(2):
        for k in range(2): o(f"ds_read_b128 {vr(x+8*mt+4*k,4)}, v{vXR} offset:{mt*2080+16*k}")
    for ins in fin(0): o(ins)
    for s in range(8): o(f"ds_read_b128 {vr(GV+32+4*s,4)}, v{vXA} offset:{2080+16*s}")
    o(f"v_and_b32 v{IX[0]}, 31, v0"); o(f"v_and_b32 v{IX[0]+1}, 0xe0, v0")
    o(f"s_mov_b32 s{sT1}, 0xffff0000")
    o(f"v_cmp_gt_u32 vcc, {NA}, v{IX[0]}"); o(f"v_cmp_gt_u32 s[{sSV}:{sSV+1}], {RN-NA}, v{IX[0]}"); o(f"v_add_u32 v{IX[0]}, s{sBASE}, v{IX[0]}")
    o("s_waitcnt vmcnt(0) lgkmcnt(8)")
    def unp(p): return sum(([f"v_lshlrev_b32 v{ACC+32*p+2*k}, 16, v{x+8*p+k}", f"v_and_b32 v{ACC+32*p+2*k+1}, s{sT1}, v{x+8*p+k}"] for k in range(8)), [])
    def post(p):
        r = []
        for k in range(8):
            z = ACC + 32*p + 16 + 2*k
            r += [f"v_max_f32 v{z}, 0, v{z}", f"v_max_f32 v{z+1}, 0, v{z+1}", f"v_add_f32 v{z}, v{z}, v{z-16}", f"v_add_f32 v{z+1}, v{z+1}, v{z-15}",
                  f"v_cvt_pk_bf16_f32 v{x+8*p+k}, v{z}, v{z+1}"]
        return r
    def st(p): return [f"buffer_store_dwordx4 {vr(x+8*p+4*k,4)}, {vr(IX[0],2)}, s[{sO}:{sO+3}], 0 idxen offen offset:{16*k}" for k in range(2)]
    interleave([m32(ACC+16, WU+4*s, GV+4*s, ACC+16) for s in range(8)], fin(1), 6)
    o("s_waitcnt lgkmcnt(0)"); o("s_nop 0")
    interleave([m32(ACC+48, WU+4*s, GV+32+4*s, ACC+48) for s in range(8)], unp(0) + post(0) + unp(1), 7)
    o("s_mov_b64 exec, vcc")
    for ins in st(0): o(ins)
    o(f"s_mov_b64 exec, s[{sSV}:{sSV+1}]"); o(f"v_add_u32 v{IX[0]}, {NA}, v{IX[0]}")
    for ins in post(1) + st(1): o(ins)
    stamp_out(9, GV, sW, 1)
    lab("K2_END")
    o("s_endpgm")
    lab("NEXTROUND")
    for i in range(4):
        o(f"v_lshrrev_b32 v{vTC}, 19, v{SEG+i}"); o(f"v_min_u32 v{vTC}, s{sLIM}, v{vTC}")
        o(f"v_add_u32 v{SEG+i}, v{SEG+i}, v{vTC}"); o(f"v_lshlrev_b32 v{vTC}, 19, v{vTC}"); o(f"v_sub_u32 v{SEG+i}, v{SEG+i}, v{vTC}")
    o(f"s_mov_b32 s{sFIRST}, 0"); o(f"s_mov_b32 s{sLIM}, 16")
    o("s_waitcnt vmcnt(0) lgkmcnt(0)"); o("s_barrier")
    o("s_branch ROUND")

def kd(name, nv, ns):
    L.append(".p2align 6")
    L.append(f".amdhsa_kernel {name}")
    for k, v in (("next_free_vgpr", nv), ("next_free_sgpr", ns), ("accum_offset", (nv + 3) // 4 * 4), ("group_segment_fixed_size", 0),
                 ("kernarg_size", 96), ("user_sgpr_count", 2), ("user_sgpr_kernarg_segment_ptr", 1), ("system_sgpr_workgroup_id_x", 1),
                 ("float_denorm_mode_32", 3)):
        L.append(f"  .amdhsa_{k} {v}")
    L.append(".end_amdhsa_kernel")

hdr = [l for l in open(f"cdna_kernels/{NAME}.s.ref").read().splitlines() if l.startswith(";") and "@launch" not in l
       and "Override launch" not in l and "grid=ceil" not in l]
L += hdr
L.append(f"; @launch kernel=gsort_kernel grid=({K1_GRID},1,1) block=(512,1,1) lds={K1_LDS}")
L.append(f"; @launch kernel=gmain_kernel grid=(512,1,1) block=(256,1,1) lds={K2_LDS}")
L.append('.amdgcn_target "amdgcn-amd-amdhsa--gfx950"'); L.append(".text")
gen_k1(); gen_k2()
lab("CODE_END")
L.append('.section .rodata,"a"')
kd("gsort_kernel", 256 if STAMP else 248, 102 if STAMP else 72); kd("gmain_kernel", 256 if STAMP else NVGPR, 102)
if STAMP: L.append("; STAMPS " + repr(NAMES))
open(sys.argv[1], "w").write("\n".join(L) + "\n")
print("vgprs", NVGPR, "lds", K2_LDS, "lines", len(L), file=sys.stderr)
```

```python
import sys, struct, re

N = 25000; E = 400000; RN = 49; NR = 511; CH = 1600; NCH = 250
WS_REC = 0; WS_OFF = 0x310000; OROW = 1152; WS_WF = 0x3c0000; WS_TAB = 0x400000; WS_SIZE = 0x4000000
WF_A = 0; WF_U = 0x8000; WF_C = 0x10000; NA = 25
NLOG2E = struct.unpack('<I', struct.pack('<f', -1.4426950408889634))[0]
EPS = struct.unpack('<I', struct.pack('<f', 1e-6))[0]
NAME = "standalone__edge_featured_mpnn_gatedgcn__graph"
OPT = dict(a.split('=') for a in sys.argv[2:]) if len(sys.argv) > 2 else {}
STAMP = int(OPT.get('stamp', 0))
WS_TAB = int(OPT.get('tab', hex(WS_TAB)), 0)
WS_STAMP = 0x3800000
L = []
def o(s): L.append("    " + s)
def lab(s): L.append(s + ":")
def vr(b, n): return f"v[{b}:{b+n-1}]"
VST = [60]
NAMES = {}
def stamp(i, ins="s_memrealtime", name=None):
    if STAMP:
        o(f"{ins} s[100:101]"); o("s_waitcnt lgkmcnt(0)"); o(f"v_writelane_b32 v{VST[0]}, s100, {i}")
def xstamp(name):
    if STAMP:
        NAMES[name] = 16 + len(NAMES); stamp(NAMES[name])
def stamp_out(n, reg, srdn, kern):
    if not STAMP: return
    o("s_mov_b64 exec, -1")
    stamp(n)
    o(f"v_lshlrev_b32 v{reg}, 2, v0")
    if kern and int(OPT.get('g8', 0)): o("s_and_b32 s63, s3, 1"); o("s_lshl_b32 s63, s63, 8"); o("s_add_u32 s2, s2, s63")
    o(f"s_lshl_b32 s63, s2, 11"); o(f"s_add_u32 s63, s63, {WS_STAMP + kern*0x100000:#x}")
    o(f"buffer_store_dword v{VST[0]}, v{reg}, s[{srdn}:{srdn+3}], s63 offen")
def srd(d, lo, size, stride=0):
    o(f"s_mov_b32 s{d}, s{lo}"); o(f"s_and_b32 s{d+1}, s{lo+1}, 0xffff")
    if stride: o(f"s_or_b32 s{d+1}, s{d+1}, {stride << 16:#x}")
    o(f"s_mov_b32 s{d+2}, {size:#x}"); o(f"s_mov_b32 s{d+3}, 0x20000")
def scan64(v):
    for d in ("row_shr:1", "row_shr:2", "row_shr:4", "row_shr:8"):
        o("s_nop 1"); o(f"v_add_u32_dpp v{v}, v{v}, v{v} {d} row_mask:0xf bank_mask:0xf bound_ctrl:0")
    o("s_nop 1"); o(f"v_add_u32_dpp v{v}, v{v}, v{v} row_bcast:15 row_mask:0xa bank_mask:0xf")
    o("s_nop 1"); o(f"v_add_u32_dpp v{v}, v{v}, v{v} row_bcast:31 row_mask:0xc bank_mask:0xf")

def m32(d, a, b, c): return f"v_mfma_f32_32x32x16_bf16 {vr(d,16)}, {vr(a,4)}, {vr(b,4)}, " + ("0" if c is None else vr(c,16))
K1_GRID = 256
OG = 4224
K1_W = 16896; K1_X = K1_W + 65536; K1_S = K1_X + 4 * 8320; K1_LDS = K1_S + 8 * 4608
def gen_k1():
    L.append(".globl gsort_kernel"); L.append(".p2align 8"); L.append(".type gsort_kernel,@function")
    lab("gsort_kernel"); VST[0] = 255
    pol = OPT.get('tabpol', '').replace('+', ' '); rpol = OPT.get('recpol', '').replace('+', ' ')
    stamp(0)
    o("s_load_dwordx8 s[4:11], s[0:1], 0")
    o("s_load_dwordx8 s[40:47], s[0:1], 32")
    o("s_load_dwordx2 s[48:49], s[0:1], 64")
    o("s_load_dwordx2 s[12:13], s[0:1], 88")
    o(f"s_cmp_ge_u32 s2, {K1_GRID}"); o("s_cbranch_scc1 K1_END")
    o("v_lshrrev_b32 v2, 6, v0"); o("v_lshlrev_b32 v1, 2, v0")
    o("s_and_b32 s36, s2, 7"); o("s_lshl_b32 s36, s36, 5"); o("s_lshr_b32 s35, s2, 3"); o("s_add_u32 s36, s36, s35")
    o("v_readfirstlane_b32 s33, v2")
    o("v_mov_b32 v2, 0"); o("ds_write_b32 v1, v2")
    o(f"s_mul_i32 s3, s2, {CH*4}"); o("s_mul_i32 s37, s36, 98")
    o(f"s_cmp_lt_u32 s2, {NCH}"); o(f"s_cselect_b32 s14, {CH//4}, 0")
    o("v_cmp_gt_u32 vcc, s14, v0")
    o("v_lshlrev_b32 v40, 4, v0")
    o("v_bfe_u32 v56, v0, 4, 1"); o("v_bfe_u32 v57, v0, 5, 1"); o("v_and_b32 v20, 63, v0")
    o("s_mov_b32 s68, 0"); o("v_lshlrev_b32 v42, 4, v20")
    o("v_bfe_u32 v43, v0, 4, 2"); o("v_lshlrev_b32 v43, 6, v43"); o("v_xor_b32 v43, v43, v40")
    o("v_lshl_add_u32 v58, v57, 3, v56")
    o("s_lshr_b32 s14, s33, 2"); o("s_lshl_b32 s14, s14, 4"); o("s_and_b32 s15, s33, 3"); o("s_lshl1_add_u32 s14, s15, s14")
    o("v_add_u32 v58, s14, v58"); o("v_add_u32 v54, s37, v58")
    o("v_and_b32 v55, 15, v0"); o("v_lshlrev_b32 v59, 3, v56"); o("v_xor_b32 v55, v55, v59"); o("v_lshlrev_b32 v55, 4, v55")
    o("s_mul_i32 s38, s33, 1040"); o(f"s_add_u32 s38, s38, {K1_X}")
    o("s_lshl_b32 s39, s33, 10"); o(f"s_add_u32 s39, s39, {K1_W}")
    o("s_mov_b32 m0, s38")
    o("s_waitcnt lgkmcnt(0)")
    srd(60, 4, N, 256)
    def xd(t):
        if t: o(f"s_add_u32 m0, s38, {t*8320}"); o("v_add_u32 v54, 32, v54")
        if t == 3: o("v_cmp_gt_u32 vcc, 2, v58"); o("v_mov_b32 v59, 0xffff"); o("s_nop 0"); o("v_cndmask_b32 v54, v59, v54, vcc")
        o("buffer_load_dwordx4 v[54:55], s[60:63], 0 idxen offen lds")
    xd(0); xd(1)
    srd(20, 10, E*4); srd(16, 8, E*4)
    o("s_and_saveexec_b64 s[28:29], vcc"); o("s_mov_b64 s[28:29], exec"); o("s_cbranch_execz K1_PREP")
    o("buffer_load_dwordx4 v[4:7], v40, s[20:23], s3 offen")
    o("buffer_load_dwordx4 v[8:11], v40, s[16:19], s3 offen")
    lab("K1_A")
    o("s_mov_b64 exec, -1")
    TCH = int(OPT.get('touch', 0)); SPL = int(OPT.get('split', 0))
    if TCH:
        srd(24, 12, WS_SIZE)
        o("s_lshl_b32 s14, s37, 9"); o(f"s_add_u32 s14, s14, {WS_TAB:#x}"); o("v_mov_b32 v248, s14"); o("s_lshl_b32 s14, s3, 1")
        o("v_writelane_b32 v248, s14, 1"); o(f"s_mov_b32 s14, {WS_OFF:#x}"); o("v_writelane_b32 v248, s14, 2")
        o("buffer_load_dword v249, v248, s[24:27], 0 offen")
    if not OPT.get('early'): o("s_barrier")
    srd(52, 42, 32768); srd(56, 48, 32768)
    for m in range(2):
        for i in range(4):
            o(f"s_add_u32 m0, s39, {m*32768+i*8192}"); o(f"s_movk_i32 s14, {i*8192}"); o(f"buffer_load_dwordx4 v43, s[{52+4*m}:{55+4*m}], s14 offen lds")
    xd(2); xd(3)
    if OPT.get('early'): o("s_barrier")
    def addrs():
        srd(24, 12, WS_SIZE)
        o("v_bfe_u32 v60, v0, 2, 2"); o("v_lshl_add_u32 v60, v57, 6, v60"); o("v_lshlrev_b32 v60, 8, v60")
        o("v_and_b32 v61, 3, v0"); o("v_lshl_add_u32 v60, v61, 3, v60"); o("v_lshl_add_u32 v60, v56, 5, v60")
        o("s_and_b32 s30, s33, 3"); o("v_bfe_u32 v61, v0, 2, 2"); o("v_xor_b32 v61, s30, v61"); o("v_lshl_add_u32 v60, v61, 6, v60"); o(f"v_add_u32 v60, {K1_W}, v60")
        o("v_bfe_u32 v61, v0, 1, 2"); o("v_lshl_or_b32 v61, v56, 2, v61"); o("v_mul_u32_u24 v61, 1040, v61")
        o("v_and_b32 v62, 1, v0"); o("v_bfe_u32 v63, v0, 3, 1"); o("v_lshl_or_b32 v63, v63, 1, v62"); o("v_lshl_add_u32 v61, v63, 8, v61")
        o("s_lshr_b32 s32, s33, 2"); o("s_mul_i32 s14, s32, 8320"); o(f"s_add_u32 s14, s14, {K1_X}")
        o("v_xor_b32 v62, v62, v57"); o("v_lshl_add_u32 v61, v62, 7, v61"); o("v_add_u32 v61, s14, v61")
        o("s_mul_i32 s14, s33, 4608"); o(f"s_add_u32 s14, s14, {K1_S}")
        o("v_and_b32 v62, 31, v0"); o("v_mul_u32_u24 v62, 144, v62"); o("v_lshl_add_u32 v62, v57, 6, v62"); o("v_add_u32 v62, s14, v62")
        o("v_lshrrev_b32 v58, 3, v20"); o("v_and_b32 v59, 7, v0"); o("v_lshlrev_b32 v59, 4, v59")
        o("v_mul_u32_u24 v63, 144, v58"); o("v_add3_u32 v63, v63, v59, s14")
        o("s_lshl_b32 s14, s32, 5"); o("s_add_u32 s14, s14, s37"); o("s_lshl_b32 s14, s14, 9"); o("s_lshl_b32 s30, s30, 7"); o("s_add_u32 s14, s14, s30")
        o("v_lshl_add_u32 v59, v58, 9, v59"); o("v_add_u32 v59, s14, v59")
        o("s_lshl_b32 s31, s3, 1")
    addrs()
    o(f"s_mul_i32 s34, s2, {CH}")
    o("v_add_u32 v3, s34, v1"); o("v_mov_b32 v2, 1"); o(f"s_mov_b32 s15, {-RN}")
    o("v_lshlrev_b32 v20, 5, v20")
    o("s_mov_b64 exec, s[28:29]"); o("s_cbranch_execz K1_B")
    o(f"s_waitcnt vmcnt({10+TCH})"); stamp(1)
    for i in range(4):
        o(f"v_mul_u32_u24 v{12+i}, 21400, v{4+i}")
        o(f"v_lshrrev_b32 v{12+i}, 20, v{12+i}")
        o(f"v_mad_i32_i24 v{4+i}, v{12+i}, s15, v{4+i}")
        o(f"v_lshlrev_b32 v{12+i}, 2, v{12+i}")
        o(f"ds_add_rtn_u32 v{16+i}, v{12+i}, v2")
    lab("K1_B")
    o("s_mov_b64 exec, -1")
    o(f"s_add_u32 s12, s12, {WS_TAB:#x}"); o("s_addc_u32 s13, s13, 0"); srd(16, 12, N * 512)
    o(f"s_mov_b32 s15, {NLOG2E:#x}")
    o(f"s_waitcnt vmcnt({2*SPL}) lgkmcnt(0)"); o("s_barrier"); stamp(3)
    lab("K1_J")
    WF_ = 64; XF_ = 128; AC = [160, 192]
    for m in range(2):
        for s in range(8):
            for jj in range(2): o(f"ds_read_b64_tr_b16 v[{WF_+32*m+4*s+2*jj}:{WF_+32*m+4*s+2*jj+1}], v60 offset:{m*32768+s*2048+jj*1024}")
            if m == 0: o(f"ds_read_b128 {vr(XF_+4*s,4)}, v61 offset:{16*s}")
    o("ds_read_b128 v[24:27], v20"); o("ds_read_b128 v[28:31], v20 offset:16")
    def post(t):
        a = AC[t]; r = []
        for k in range(16): r.append(f"v_mul_f32 v{a+k}, s15, v{a+k}")
        for k in range(16): r.append(f"v_cvt_pk_bf16_f32 v{224+k}, v{a+2*k}, v{a+2*k+1}")
        r += [f"ds_write_b128 v62, {vr(224+4*c,4)} offset:{16*c}" for c in range(4)]
        r += [f"ds_read_b128 {vr(a+4*k,4)}, v63 offset:{k*8*144}" for k in range(4)]
        return r
    def stores(t):
        r = []
        for k in range(4):
            r += [f"s_waitcnt lgkmcnt({3-k})", f"buffer_store_dwordx4 {vr(AC[t]+4*k,4)}, v59, s[16:19], 0 offen {pol}", "v_add_u32 v59, 0x1000, v59"]
        return r
    def recs():
        for i in range(4):
            o(f"v_cmp_lt_u32 vcc, {NA-1}, v{4+i}"); o(f"v_mul_u32_u24 v22, 83, v{8+i}"); o("v_lshrrev_b32 v22, 16, v22")
            o(f"v_cndmask_b32 v23, 0, {NA}, vcc"); o(f"v_sub_u32 v23, v{4+i}, v23")
            o(f"v_lshl_or_b32 v{44+2*i}, v23, 16, v{8+i}")
            o("v_cndmask_b32 v23, 0, 32, vcc"); o("v_or_b32 v22, v22, v23")
            o(f"v_lshl_add_u32 v{45+2*i}, v22, 26, v3")
            if i < 3: o("v_add_u32 v3, 1, v3")
    def scan():
        o("v_mov_b32 v33, v24")
        for j in range(2, 8): o(f"v_add_u32 v{32+j}, v{31+j}, v{23+j}")
        o("v_add_u32 v21, v39, v31"); o("v_mov_b32 v22, v21")
        scan64(21)
        o("v_sub_u32 v32, v21, v22")
        for j in range(1, 8): o(f"v_add_u32 v{32+j}, v32, v{32+j}")
    o("s_waitcnt lgkmcnt(15)")
    interleave([m32(AC[0], WF_+4*s, XF_+4*s, None if s == 0 else AC[0]) for s in range(8)], capture(recs), 5)
    o("s_waitcnt vmcnt(0) lgkmcnt(0)")
    if SPL: o("s_barrier")
    sc = capture(scan); p0 = post(0)
    q = sc + p0[:24]
    for s in range(8):
        o(m32(AC[0]+16, WF_+32+4*s, XF_+4*s, None if s == 0 else AC[0]+16))
        o(f"ds_read_b128 {vr(XF_+4*s,4)}, v61 offset:{2*8320+16*s}")
        for _ in range(5):
            if q: o(q.pop(0))
    lab("K1_G")
    o("s_waitcnt lgkmcnt(0)")
    mf = [m32(AC[1], WF_+4*s, XF_+4*s, None if s == 0 else AC[1]) for s in range(8)] + [m32(AC[1]+16, WF_+32+4*s, XF_+4*s, None if s == 0 else AC[1]+16) for s in range(8)]
    assert len(q) >= 8
    look = ["ds_write_b128 v20, v[32:35] offset:2048", "ds_write_b128 v20, v[36:39] offset:2064"] + [f"ds_read_b32 v{4+i}, v{12+i} offset:2048" for i in range(4)]
    q = q + p0[24:] + [None] * 5 + stores(0) + look
    for m in mf:
        o(m)
        for _ in range(5):
            if q:
                x = q.pop(0)
                if x: o(x)
    assert not q
    o("v_add_u32 v59, 0x4000, v59"); o("v_cmp_gt_u32 vcc, 2, v58")
    o("s_mov_b64 exec, s[28:29]")
    o("s_waitcnt lgkmcnt(0)")
    for i in range(4):
        o(f"v_add_lshl_u32 v{4+i}, v{4+i}, v{16+i}, 3"); o(f"ds_write_b64 v{4+i}, v[{44+2*i}:{45+2*i}] offset:4096")
    o("s_mov_b64 exec, -1")
    for x in post(1): o(x)
    stamp(4)
    o("s_cmp_lt_u32 s33, 4"); o("s_cbranch_scc1 K1_H")
    o("s_mov_b64 exec, vcc")
    for x in stores(1)[:2]: o(x)
    o("s_mov_b64 exec, -1")
    o("s_cmp_lg_u32 s68, 0"); o("s_cbranch_scc1 K1_PREP2")
    o("s_cmp_lg_u32 s33, 6"); o("s_cbranch_scc1 K1_I")
    for j in range(8): o(f"v_lshl_add_u32 v{24+j}, v{24+j}, 19, v{32+j}"); o(f"v_add_u32 v{24+j}, s34, v{24+j}")
    o(f"v_mul_u32_u24 v41, {OG//16}, v20"); o("s_lshl_b32 s35, s36, 4"); o(f"s_add_u32 s35, s35, {WS_OFF:#x}"); o(f"s_add_u32 s30, s35, {OG}")
    o("buffer_store_dwordx4 v[24:27], v41, s[24:27], s35 offen"); o("buffer_store_dwordx4 v[28:31], v41, s[24:27], s30 offen")
    o("s_branch K1_I")
    lab("K1_H")
    for x in stores(1): o(x)
    lab("K1_I")
    o(f"v_cmp_gt_u32 vcc, {CH//2-512}, v0")
    o("s_waitcnt lgkmcnt(0)"); o("s_barrier")
    o(f"s_cmp_lt_u32 s2, {NCH}"); o("s_cbranch_scc0 K1_F")
    o("ds_read_b128 v[44:47], v40 offset:4096"); o("ds_read_b128 v[48:51], v40 offset:12288")
    o("s_add_u32 s30, s31, 8192")
    o("s_waitcnt lgkmcnt(1)")
    o(f"buffer_store_dwordx4 v[44:47], v40, s[24:27], s31 offen {rpol}")
    o("s_and_saveexec_b64 s[28:29], vcc"); o("s_cbranch_execz K1_F")
    o("s_waitcnt lgkmcnt(0)")
    o(f"buffer_store_dwordx4 v[48:51], v40, s[24:27], s30 offen {rpol}")
    lab("K1_F")
    stamp_out(2, 12, 24, 0)
    lab("K1_END")
    o("s_endpgm")
    lab("K1_PREP")
    o("s_cmp_ge_u32 s2, 68"); o("s_cbranch_scc1 K1_A")
    o("s_mov_b64 exec, -1")
    o("s_lshr_b32 s14, s2, 5")
    o("s_cmp_eq_u32 s14, 1"); o("s_cselect_b32 s40, s46, s40"); o("s_cselect_b32 s41, s47, s41"); o(f"s_cselect_b32 s68, 1.0, {NLOG2E:#x}")
    o("s_mov_b32 s66, 32768"); o("s_bfe_u32 s50, s2, 0x20003"); o("s_and_b32 s51, s2, 7"); o("s_mov_b32 s32, 14")
    o("s_cmp_eq_u32 s14, 2"); o("s_cselect_b32 s40, s44, s40"); o("s_cselect_b32 s41, s45, s41"); o("s_cselect_b32 s66, 4096, s66")
    o("s_cselect_b32 s50, s51, s50"); o("s_cselect_b32 s51, 0, s51"); o("s_cselect_b32 s32, 11, s32")
    o("s_mov_b32 s64, s40"); o("s_and_b32 s65, s41, 0xffff"); o("s_mov_b32 s67, 0x20000")
    o("s_lshl_b32 s50, s50, 6"); o("s_lshl_b32 s51, s51, 11"); o("s_add_u32 s50, s50, s51")
    o("v_and_b32 v4, 3, v0"); o("v_bfe_u32 v5, v0, 3, 2"); o("v_lshl_or_b32 v4, v5, 2, v4")
    o("v_bfe_u32 v5, v0, 2, 1"); o("v_lshl_or_b32 v4, v5, 4, v4")
    o("v_lshlrev_b32 v5, s32, v57"); o("v_lshl_add_u32 v4, v4, 1, v5"); o("v_add_u32 v4, s50, v4")
    for j in range(8): o(f"buffer_load_ushort v{240+j}, v4, s[64:67], 0 offen offset:{j*256}")
    o("s_branch K1_A")
    lab("K1_PREP2")
    o("s_lshl_b32 s14, s2, 10"); o(f"s_add_u32 s14, s14, {WS_WF:#x}")
    for j in range(8):
        o(f"v_lshlrev_b32 v{240+j}, 16, v{240+j}"); o(f"v_mul_f32 v{240+j}, s68, v{240+j}")
    for j in range(4): o(f"v_cvt_pk_bf16_f32 v{52+j}, v{240+2*j}, v{241+2*j}")
    o("buffer_store_dwordx4 v[52:55], v42, s[24:27], s14 offen")
    o("s_branch K1_I")

def regs_of(tok):
    m = re.fullmatch(r"v\[(\d+):(\d+)\]", tok)
    if m: return set(range(int(m.group(1)), int(m.group(2)) + 1))
    m = re.fullmatch(r"v(\d+)", tok)
    return {int(m.group(1))} if m else set()
def check_hazards(ins):
    P = []
    for s in ins:
        if s.endswith(':'): continue
        op, _, rest = s.partition(' ')
        t = [x.strip() for x in rest.split(',')]
        t = [x.split(' ')[0] for x in t]
        if op.startswith('v_mfma'):
            P.append(('m', 12 if '32x32' in op else 8, regs_of(t[0]), regs_of(t[1]) | regs_of(t[2]), regs_of(t[3]), s))
        elif op.startswith('v_'):
            P.append(('t' if op in ('v_exp_f32', 'v_rcp_f32') else 'v', 0, regs_of(t[0]), set().union(*map(regs_of, t[1:])), set(), s))
        elif op.startswith('ds_read'):
            P.append(('d', 0, regs_of(t[0]), regs_of(t[1]), set(), s))
        elif op.startswith('buffer'):
            P.append(('d', 0, set(), regs_of(t[0]), set(), s))
        else: P.append(('s', 0, set(), set(), set(), s))
    n = len(P)
    for i, (k, w, d, ab, c, s) in enumerate(P):
        for j in range(1, 13):
            k2, w2, d2, ab2, c2, s2 = P[(i + j) % n]
            gap = j - 1
            if k == 'm':
                if k2 == 'm':
                    assert not (gap < w and d & ab2), (s, s2)
                    if d & c2 and d != c2: assert gap >= w - 2, (s, s2)
                else: assert not (gap < w and d & (d2 | ab2)), (s, s2, gap)
                if k2 in 'vt': assert not (gap < (7 if w == 12 else 3) and c & d2), (s, s2)
            if k in 'vt' and k2 == 'm': assert not (gap < 2 and d & (ab2 | c2)), (s, s2)
            if k == 't' and k2 == 'v': assert not (gap < 1 and d & ab2), (s, s2)

LOWLIM = 2; NS = 2
LUT = 0; IDT = 4096; NB = IDT + 26 * 80; LIST = NB + 256; MB = LIST + 8192; ROW = 264; CNT = MB + 26 * ROW; ZSZ = 26 * ROW + 256
ER = CNT + 256; RING = ER + 8192; WS_ = 4160; SLOT = 4 * WS_; K2_LDS = RING + (NS + 1) * SLOT
assert K2_LDS <= 81920 and ER % 16 == 0 and LIST % 16 == 0 and MB % 16 == 0 and 4096 < ZSZ <= 8192 and ZSZ % 16 == 0

class RA:
    def __init__(s): s.n = 1
    def get(s, k=1, al=1):
        s.n = (s.n + al - 1) // al * al
        b = s.n; s.n += k; return b
R = RA()
vTA = R.get()
IX = [R.get(2, 2) for _ in range(4)]; IXE = R.get(2, 2); MQ = R.get(2, 2)
(vTC, vEA, vMT, vSA, vMA, vL1, vL2, vSV, vHC, vWF, vXA, vXR, vXI, vXO) = [R.get() for _ in range(14)]
SEG = R.get(4, 4); PT = R.get(4, 4)
GV = R.get(64, 4); ACC = R.get(64, 4)
TF = R.get(16, 4); EF = R.get(4, 4); SF = R.get(8, 4); WC = R.get(4, 4); T0 = R.get(8, 4); AF = R.get(16, 4); SEL = R.get(8, 4)
NVGPR = R.n
assert NVGPR <= 255, NVGPR
REC = GV; RANK = GV + 32; AD = GV + 48
sX, sE, sW, sO, sT = 8, 12, 16, 20, 96
sWAVE, sBASE, sMR, sME, sCNT, sNT, sRS, sLIM, sFIRST, sMORE, sDS, sT0, sT1, sEPS, s80, sMET = range(24, 40)
sHM, sSV, sWF, sS0 = 42, 44, 52, 54
sK = 56

def ldt(i): return f"buffer_load_dwordx4 {vr(IX[i],2)}, s[{sT}:{sT+3}], 0 idxen offen lds"
def lde(): return f"buffer_load_dwordx4 {vr(IXE,2)}, s[{sE}:{sE+3}], 0 idxen offen lds"
def loff(u): return (u & 1) * 4096 + (u >> 1) * 256
def nextslot(r): return [f"s_add_u32 s{r}, s{r}, {SLOT}", f"s_cmp_eq_u32 s{r}, {NS*SLOT}", f"s_cselect_b32 s{r}, 0, s{r}"]

def vstream(Gc, Vc):
    A = []
    for p in range(0, 22, 2):
        if p < 16: A += [(f"v_exp_f32 v{Gc+p}, v{Gc+p}", 8), (f"v_exp_f32 v{Gc+p+1}, v{Gc+p+1}", 8)]
        q = p - 2
        if 0 <= q < 16:
            A += [(f"v_add_f32 v{Gc+q}, 1.0, v{Gc+q}", 4), (f"v_add_f32 v{Gc+q+1}, 1.0, v{Gc+q+1}", 4),
                  (f"v_rcp_f32 v{Gc+q}, v{Gc+q}", 8), (f"v_rcp_f32 v{Gc+q+1}, v{Gc+q+1}", 8)]
        q = p - 4
        if 0 <= q < 16: A += [(f"v_mul_f32 v{Vc+q}, v{Gc+q}, v{Vc+q}", 4), (f"v_mul_f32 v{Vc+q+1}, v{Gc+q+1}, v{Vc+q+1}", 4)]
        q = p - 6
        if 0 <= q < 16: A += [(f"v_cvt_pk_bf16_f32 v{Gc+q//2}, v{Gc+q}, v{Gc+q+1}", 4), (f"v_cvt_pk_bf16_f32 v{Vc+q//2}, v{Vc+q}, v{Vc+q+1}", 4)]
    return A
def zphase(P, p):
    d = ACC + 32 * p
    return [m32(d, P, T0, d), m32(d+16, P+16, T0, d+16), m32(d, P+4, T0+4, d), m32(d+16, P+20, T0+4, d+16)]

HEAD = {}
def body(b, peel=False):
    p = b % 2
    Gn = GV + 32 * p; Vn = Gn + 16; Gc = GV + 32 * (1 - p); Vc = Gc + 16; af = AF + 8 * p
    ne = sum(1 for k in range(NS - 1) if (b - k) % 4 == 0) + (1 if (b - (NS - 1)) % 4 == 0 else 0)
    vmw = 4 * (NS - 1) + ne
    z = zphase(Gn, p)
    def dma(i): return [f"s_add_u32 m0, s{sDS}, {i*1040}", None, ldt(i), f"ds_read_u16 v{IX[i]}, v{vL1} offset:{loff(b+NS+1)+64*i}"]
    top = ["s_waitcnt vmcnt(8) lgkmcnt(0)", "s_barrier"] if b == 3 else ["s_waitcnt lgkmcnt(0)"]
    seq = []
    seq.append([z[0], [f"s_add_u32 s{sDS}, s{sMR}, s{sRS}"] + dma(0), [f"v_mad_u32_u24 v{vSV}, v{vSV}, s{s80}, v{vHC}"]])
    seq.append([z[1], [f"ds_read_b128 {vr(SF,4)}, v{vSV}", f"ds_read_b128 {vr(SF+4,4)}, v{vSV} offset:32"] + dma(1), []])
    seq.append([z[2], dma(2) + [f"ds_read_u8 v{vSV}, v{vSA} offset:{loff(b+1)}"], []])
    seq.append([z[3], dma(3) + ([f"s_sub_u32 s{sCNT}, s{sCNT}, 1", "s_cbranch_scc1 TAIL"] if p == 0 else []) + [f"ENT{b}:"], []])
    e1 = [f"s_mov_b32 m0, s{sME}", None, lde(), f"s_xor_b32 s{sME}, s{sME}, s{sMET}"] if b == 0 else []
    seq.append([m32(Gn, TF, SEL, None), [f"ds_read_b128 {vr(T0,4)}, v{MQ}"] + e1, [f"v_and_b32 v{IXE}, 0x7ffff, v{IXE}"] if b == 0 else []])
    seq.append([m32(Gn, TF+4, SEL+4, Gn), [f"ds_read_b128 {vr(T0+4,4)}, v{MQ+1}"] + nextslot(sRS), [f"v_xor_b32 v{vEA}, v{vEA}, v{vMT}"] if b == 3 else []])
    seq.append([m32(Gn, EF, WC, Gn), [f"ds_read_b128 {vr(EF,4)}, v{vEA} offset:{(b+1)%4*1024}", f"ds_read_u16 v{MQ}, v{vMA} offset:{b*8}",
                f"ds_read_u16 v{MQ+1}, v{vMA} offset:{b*8+2}"], [f"v_add_u32 v{vTC}, s{sRS}, v{vTA}"]])
    seq.append([m32(Vn, TF+8, SEL, None), [f"ds_read_b32 v{IXE}, v{vL2}"] if b == 3 else [], []])
    seq.append([m32(Vn, TF+12, SEL+4, Vn), [None, f"s_waitcnt lgkmcnt({10 if b == 3 else 9})"], []])
    seq.append([m32(Gn, SF, af, Gn), [None, f"s_waitcnt vmcnt({vmw})"],
                [f"v_add_u32 v{r}, 0x200, v{r}" for r in (vSA, vL1, vL2)] + [f"v_add_u32 v{vMA}, 32, v{vMA}"] if b == 3 else []])
    seq.append([m32(Gn, SF+4, af+4, Gn), [f"ds_read_b128 {vr(TF+4*j,4)}, v{vTC} offset:{16*j}" for j in range(4)], []])
    A = [] if peel else vstream(Gc, Vc)
    wt = [float(x) for x in OPT.get('wt', '1,1,1,1,1,1,1,1,1,1,1.6').split(',')]
    tot = sum(c for _, c in A); out = list(top); ai = 0; acc = 0; budget = 0
    for i, (m, ex, xv) in enumerate(seq):
        budget += tot * wt[i] / sum(wt)
        g = []
        while ai < len(A) and acc + A[ai][1] / 2 <= budget + 0.01:
            g.append(A[ai][0]); acc += A[ai][1]; ai += 1
        if i == 3 and not peel: HEAD[b] = ai
        if not (peel and i < 4): out.append(m)
        g = xv + g
        last = [x for x in ex if x and (x.startswith("s_waitcnt") or x.startswith("s_cbranch") or x.endswith(":") or x.startswith("s_sub"))]
        ex = [x for x in ex if x not in last]
        if peel: last = [x for x in last if x.startswith("s_waitcnt")]
        first = True
        for x in ex:
            if x is None:
                continue
            if not first and g: out.append(g.pop(0))
            elif not first and peel and x.startswith("buffer"): out.append("s_nop 0")
            out.append(x); first = False
        out += g + last
    assert ai == len(A)
    if OPT.get('nodma'): out = [x for x in out if 'buffer_load' not in x]
    if OPT.get('noe'): out = [x for x in out if f"s[{sE}:{sE+3}]" not in x]
    return out

def emit(lst):
    for it in lst:
        if it.endswith(':'): lab(it[:-1])
        else: o(it)

def masks(tmp):
    a, b_, c = tmp
    o(f"v_and_b32 v{a}, 3, v0"); o(f"v_lshlrev_b32 v{a}, 1, v{a}"); o(f"v_mov_b32 v{c}, 0")
    for i in range(4):
        o(f"v_lshrrev_b32 v{b_}, 19, v{SEG+i}"); o(f"v_max_u32 v{c}, v{c}, v{b_}")
        o(f"v_min_u32 v{b_}, s{sLIM}, v{b_}"); o(f"v_sub_u32 v{b_}, v{b_}, v{a}")
        for j, k in ((0, 2*i), (1, 2*i+1), (8, 8+2*i), (9, 9+2*i)): o(f"v_cmp_lt_i32 s[{sK+2*k}:{sK+2*k+1}], {j}, v{b_}")
    o(f"v_cmp_lt_u32 vcc, s{sLIM}, v{c}")
    o(f"s_or_b64 s[{sSV}:{sSV+1}], s[{sK+16}:{sK+17}], s[{sK+20}:{sK+21}]"); o(f"s_or_b64 s[{sHM}:{sHM+1}], s[{sK+24}:{sK+25}], s[{sK+28}:{sK+29}]")
    o(f"s_or_b64 s[{sSV}:{sSV+1}], s[{sSV}:{sSV+1}], s[{sHM}:{sHM+1}]")
    o(f"v_mov_b32 v{b_}, {CNT-4}")
    o("s_mov_b64 exec, vcc"); o(f"ds_write_b32 v{b_}, v{b_}"); o("s_mov_b64 exec, -1")

def interleave(mf, other, per):
    other = list(other)
    for m in mf:
        o(m)
        for _ in range(per):
            if other: o(other.pop(0))
    for x in other: o(x)
def capture(fn):
    n = len(L); fn(); r = [x.strip() for x in L[n:]]; del L[n:]; return r
def wload(dst, off):
    r = []
    for s in range(8):
        if s % 4 == 0: r.append(f"s_add_u32 s{sT0}, s{sWF}, {off + s*1024:#x}")
        r.append(f"buffer_load_dwordx4 {vr(dst+4*s,4)}, v{vWF}, s[{sW}:{sW+3}], s{sT0} offen offset:{(s%4)*1024}")
    return r
def xblk(base, pair):
    o(f"v_mov_b32 v{pair+1}, v{vXO}")
    for mt in range(2):
        for a in range(2):
            o(f"s_add_u32 m0, s{base}, {(2*mt+a)*1040}")
            o(f"v_cmp_gt_u32 vcc, {(NA if mt == 0 else RN-NA) - 2*a}, v{vXI}")
            o(f"s_add_u32 s{sT0}, s{sBASE}, {NA*mt + 2*a}"); o(f"v_add_u32 v{pair}, s{sT0}, v{vXI}")
            o(f"v_cndmask_b32 v{pair}, v{PT+3}, v{pair}, vcc")
            o(f"buffer_load_dwordx4 {vr(pair,2)}, s[{sX}:{sX+3}], 0 idxen offen lds")

def gen_k2():
    L.append(".globl gmain_kernel"); L.append(".p2align 8"); L.append(".type gmain_kernel,@function")
    lab("gmain_kernel"); VST[0] = 255
    t = [TF + i for i in range(28)]
    stamp(0)
    o("s_load_dwordx2 s[50:51], s[0:1], 88")
    o("s_load_dwordx4 s[4:7], s[0:1], 0")
    o("s_load_dwordx2 s[48:49], s[0:1], 72")
    o("s_setprio 3")
    o(f"v_lshrrev_b32 v{t[0]}, 6, v0")
    o("s_and_b32 s3, s2, 7"); o("s_lshl_b32 s3, s3, 6"); o(f"s_bfe_u32 s{sT0}, s2, 0x50003"); o(f"s_lshl1_add_u32 s3, s{sT0}, s3")
    o(f"v_readfirstlane_b32 s{sWAVE}, v{t[0]}")
    o(f"s_lshr_b32 s{sT0}, s2, 8"); o(f"s_add_u32 s3, s3, s{sT0}")
    o("s_cmp_ge_u32 s2, 512"); o("s_cbranch_scc1 K2_END")
    o(f"s_cmp_ge_u32 s3, {NR}"); o("s_cbranch_scc1 K2_END")
    o(f"v_lshrrev_b32 v{t[1]}, 2, v0")
    o(f"s_lshr_b32 s{sS0}, s3, 2"); o(f"s_mul_i32 s{sS0}, s{sS0}, {OG}"); o(f"s_and_b32 s{sT0}, s3, 3"); o(f"s_lshl2_add_u32 s{sS0}, s{sT0}, s{sS0}"); o(f"s_add_u32 s{sS0}, s{sS0}, {WS_OFF:#x}")
    o(f"v_lshlrev_b32 v{t[1]}, 6, v{t[1]}")
    o(f"s_mul_i32 s{sBASE}, s3, {RN}")
    o(f"v_and_b32 v{vWF}, 63, v0"); o(f"v_lshlrev_b32 v{vWF}, 4, v{vWF}")
    o(f"s_mul_i32 s{sMR}, s{sWAVE}, {WS_}"); o(f"s_add_u32 s{sMR}, s{sMR}, {RING}")
    o(f"s_lshl_b32 s{sWF}, s{sWAVE}, 13"); o(f"s_add_u32 s{sWF}, s{sWF}, {WS_WF:#x}")
    o(f"s_mov_b32 s{sEPS}, {EPS:#x}"); o(f"s_movk_i32 s{s80}, 80")
    o(f"s_mov_b32 s{sFIRST}, 1"); o(f"s_mov_b32 s{sLIM}, 16")
    o("s_waitcnt lgkmcnt(0)"); xstamp("karg")
    srd(sW, 50, WS_SIZE)
    for i in range(4): o(f"buffer_load_dword v{SEG+i}, v{t[1]}, s[{sW}:{sW+3}], s{sS0} offen offset:{16*i}")
    srd(sX, 4, N, 256); srd(sE, 6, E, 32); srd(sO, 48, N, 256)
    o(f"s_add_u32 s50, s50, {WS_TAB:#x}"); o("s_addc_u32 s51, s51, 0"); srd(sT, 50, N, 512)
    lab("ROUND")
    b0, b2, b3, b4, vh = t[16:21]
    o(f"v_lshlrev_b32 v{t[11]}, 4, v0")
    for d in range(4): o(f"v_mov_b32 v{t[0]+d}, 0")
    for off in (0, ZSZ - 4096): o(f"ds_write_b128 v{t[11]}, {vr(t[0],4)} offset:{MB+off}")
    pad0 = 0xffff | (NA << 16)
    o(f"v_mov_b32 v{t[4]}, {pad0:#x}"); o(f"v_mov_b32 v{t[5]}, 0x7ffff"); o(f"v_mov_b32 v{t[6]}, {pad0:#x}"); o(f"v_mov_b32 v{t[7]}, 0x7ffff")
    o(f"ds_write_b128 v{t[11]}, {vr(t[4],4)} offset:{LIST}"); o(f"ds_write_b128 v{t[11]}, {vr(t[4],4)} offset:{LIST+4096}")
    o(f"v_and_b32 v{b0}, 1, v0"); o(f"v_bfe_u32 v{b2}, v0, 2, 1"); o(f"v_bfe_u32 v{b3}, v0, 3, 1"); o(f"v_bfe_u32 v{b4}, v0, 4, 1"); o(f"v_bfe_u32 v{vh}, v0, 5, 1")
    o(f"v_and_b32 v{t[8]}, 3, v0"); o(f"v_lshlrev_b32 v{t[8]}, 1, v{t[8]}")
    o(f"v_mov_b32 v{t[9]}, 0x7ffffff0"); o(f"s_mov_b32 s{sT1}, 0x7ffff")
    o(f"v_and_b32 v{t[12]}, 15, v0"); o(f"v_lshlrev_b32 v{t[13]}, 3, v{b4}")
    o(f"v_xor_b32 v{vXO}, v{t[12]}, v{t[13]}"); o(f"v_lshlrev_b32 v{vXO}, 4, v{vXO}")
    o(f"s_lshr_b32 s{sT0}, s{sWAVE}, 1"); o(f"s_lshl_b32 s{sT0}, s{sT0}, 4"); o(f"s_and_b32 s{sS0}, s{sWAVE}, 1"); o(f"s_lshl2_add_u32 s{sT0}, s{sS0}, s{sT0}")
    o(f"v_lshl_add_u32 v{vXI}, v{vh}, 3, v{b4}"); o(f"v_add_u32 v{vXI}, s{sT0}, v{vXI}")
    o(f"v_mov_b32 v{PT+3}, 0xffff")
    xstamp("consts_done")
    o("s_waitcnt vmcnt(0)"); stamp(1)
    for i in range(4):
        o(f"v_lshrrev_b32 v{t[4+i]}, 19, v{SEG+i}"); o(f"v_cmp_lt_u32 vcc, v{t[8]}, v{t[4+i]}")
        o(f"v_and_b32 v{t[i]}, s{sT1}, v{SEG+i}"); o(f"v_add_lshl_u32 v{t[i]}, v{t[i]}, v{t[8]}, 3")
        o(f"v_cndmask_b32 v{t[10]}, v{t[9]}, v{t[i]}, vcc")
        o(f"buffer_load_dwordx4 {vr(REC+4*i,4)}, v{t[10]}, s[{sW}:{sW+3}], 0 offen")
    o(f"v_max3_u32 v{t[10]}, v{t[4]}, v{t[5]}, v{t[6]}"); o(f"v_max_u32 v{t[10]}, v{t[10]}, v{t[7]}")
    o(f"v_cmp_lt_u32 vcc, 8, v{t[10]}"); o("s_cbranch_vccz REC_DONE")
    for i in range(4): o(f"buffer_load_dwordx4 {vr(REC+16+4*i,4)}, v{t[i]}, s[{sW}:{sW+3}], 0 offen offset:64")
    lab("REC_DONE")
    xstamp("rec_issued")
    PF = int(OPT.get('pf', 0))
    def pref():
        o(f"s_lshr_b32 s{sT0}, s3, 6"); o(f"s_mul_i32 s{sT0}, s{sT0}, {64*RN}"); o(f"s_and_b32 s{sT1}, s3, 63"); o(f"s_lshl_b32 s{sT1}, s{sT1}, 6"); o(f"s_add_u32 s{sT0}, s{sT0}, s{sT1}")
        o(f"v_lshrrev_b32 v{T0+2}, 2, v0"); o(f"v_add_u32 v{T0+2}, s{sT0}, v{T0+2}"); o(f"v_and_b32 v{T0+1}, 3, v0"); o(f"v_lshlrev_b32 v{T0+1}, 7, v{T0+1}")
        for k in range(PF):
            o(f"v_add_u32 v{T0+3}, {-512*RN}, v{T0+2}"); o(f"v_min_u32 v{T0}, v{T0+2}, v{T0+3}")
            o(f"buffer_load_dword v{SEL}, {vr(T0,2)}, s[{sT}:{sT+3}], 0 idxen offen")
            if k + 1 < PF: o(f"v_add_u32 v{T0+2}, 4096, v{T0+2}")
    PFW = OPT.get('pfw', 'rec')
    if PF and PFW == 'rec': pref()
    o("s_waitcnt lgkmcnt(0)"); o("s_barrier"); stamp(2)
    pp = t[14]
    o(f"v_and_b32 v{pp}, 0x13, v0"); o(f"v_lshl_or_b32 v{pp}, v{b2}, 3, v{pp}"); o(f"v_lshl_or_b32 v{pp}, v{b3}, 2, v{pp}")
    o(f"v_lshrrev_b32 v{t[12]}, 3, v{pp}"); o(f"v_lshlrev_b32 v{vTA}, 7, v{pp}"); o(f"v_lshl_add_u32 v{vTA}, v{t[12]}, 4, v{vTA}")
    o(f"v_bfe_u32 v{t[13]}, v0, 1, 1"); o(f"v_xor_b32 v{t[12]}, v{t[13]}, v{vh}"); o(f"v_lshl_add_u32 v{vTA}, v{t[12]}, 6, v{vTA}"); o(f"v_add_u32 v{vTA}, s{sMR}, v{vTA}")
    o(f"v_and_b32 v{t[12]}, 7, v0"); o(f"v_lshlrev_b32 v{t[15]}, 2, v{b4}"); o(f"v_xor_b32 v{t[15]}, v{t[15]}, v{t[12]}")
    o(f"s_lshl_b32 s{sT0}, s{sWAVE}, 7"); o(f"v_lshl_add_u32 v{IX[0]+1}, v{t[15]}, 4, s{sT0}")
    for i in range(1, 4): o(f"v_mov_b32 v{IX[i]+1}, v{IX[0]+1}")
    o(f"v_and_b32 v{vL1}, 0x38, v0"); o(f"v_add_u32 v{vL1}, {LIST}, v{vL1}")
    o(f"v_lshl_or_b32 v{t[15]}, v{b4}, 1, v{b2}"); o(f"v_mul_u32_u24 v{t[15]}, {WS_}, v{t[15]}"); o(f"v_mul_u32_u24 v{t[13]}, 1040, v{t[13]}")
    o(f"v_lshl_or_b32 v{t[21]}, v{b3}, 1, v{b0}"); o(f"v_lshl_add_u32 v{t[15]}, v{t[21]}, 8, v{t[15]}"); o(f"v_add3_u32 v{t[15]}, v{t[15]}, v{t[13]}, 0")
    o(f"v_add_u32 v{t[15]}, {RING + NS*SLOT}, v{t[15]}")
    o(f"v_xor_b32 v{t[13]}, v{vh}, v{b0}"); o(f"v_lshl_add_u32 v{vXA}, v{t[13]}, 7, v{t[15]}")
    o(f"v_lshlrev_b32 v{IXE+1}, 4, v{t[13]}")
    o(f"v_bfe_u32 v{t[13]}, v0, 7, 1"); o(f"v_xor_b32 v{t[13]}, v{t[13]}, v{b0}"); o(f"v_lshl_add_u32 v{vXR}, v{t[13]}, 7, v{t[15]}")
    o(f"v_and_b32 v{t[13]}, 0x60, v0"); o(f"v_add_u32 v{vXR}, v{vXR}, v{t[13]}")
    o(f"s_lshl_b32 s{sT0}, s{sS0}, 12"); o(f"s_lshr_b32 s{sT1}, s{sWAVE}, 1"); o(f"s_lshl_b32 s{sT1}, s{sT1}, 8"); o(f"s_add_u32 s{sT0}, s{sT0}, s{sT1}"); o(f"s_add_u32 s{sT0}, s{sT0}, {LIST+4}")
    o(f"v_bfe_u32 v{vL2}, v0, 1, 5"); o(f"v_lshl_add_u32 v{vL2}, v{vL2}, 3, s{sT0}")
    o(f"s_lshl_b32 s{sME}, s{sWAVE}, 10"); o(f"s_add_u32 s{sME}, s{sME}, {ER}")
    o(f"v_lshlrev_b32 v{vSA}, 3, v{pp}"); o(f"v_add_u32 v{vSA}, {LIST+2}, v{vSA}")
    o(f"v_lshlrev_b32 v{vHC}, 4, v{vh}"); o(f"v_add_u32 v{vHC}, {IDT}, v{vHC}")
    o(f"v_xor_b32 v{vEA}, v{b4}, v{vh}"); o(f"v_lshlrev_b32 v{vEA}, 4, v{vEA}")
    o(f"v_lshl_add_u32 v{vEA}, v{pp}, 5, v{vEA}"); o(f"v_add_u32 v{vEA}, {ER}, v{vEA}")
    o(f"v_add_u32 v{vMT}, 4096, v{vEA}"); o(f"v_xor_b32 v{vMT}, v{vMT}, v{vEA}")
    o(f"v_and_b32 v{t[13]}, 31, v0"); o(f"v_min_u32 v{t[13]}, {NA}, v{t[13]}")
    o(f"v_mul_u32_u24 v{vMA}, {ROW}, v{t[13]}"); o(f"v_lshl_add_u32 v{vMA}, v{vh}, 2, v{vMA}"); o(f"v_add_u32 v{vMA}, {MB}, v{vMA}")
    o(f"v_lshrrev_b32 v{PT+2}, 5, v0"); o(f"v_lshlrev_b32 v{PT+2}, 4, v{PT+2}"); o(f"v_lshl_add_u32 v{PT+2}, v{b3}, 2, v{PT+2}")
    o(f"v_lshl_add_u32 v{t[12]}, v{b4}, 4, v{t[12]}"); o(f"v_lshlrev_b32 v{PT+1}, v{t[12]}, 16")
    o(f"v_and_b32 v{t[12]}, 3, v0"); o(f"v_lshl_add_u32 v{t[12]}, v{b4}, 2, v{t[12]}"); o(f"v_lshlrev_b32 v{t[12]}, v{t[12]}, 16")
    o(f"v_cmp_eq_u32 vcc, v{b3}, v{vh}"); o(f"v_lshlrev_b32 v{t[13]}, 4, v{b2}"); o("s_nop 0")
    o(f"v_cndmask_b32 v{t[12]}, 0, v{t[12]}, vcc"); o(f"v_lshlrev_b32 v{PT}, v{t[13]}, v{t[12]}")
    lab("REMASK")
    masks((t[0], t[1], t[2])); xstamp("masks_done")
    a, b_, c, d_ = t[0:4]; ad = [AD + k for k in range(16)]
    o(f"v_mov_b32 v{a}, 8")
    o(f"v_lshrrev_b32 v{b_}, 2, v{vWF}")
    if PF and PFW == 'mask': pref()
    o(f"s_waitcnt vmcnt({PF if PFW in ('rec', 'mask') else 0})"); xstamp("rec_landed")
    for half in range(2):
        if half: o(f"s_cmp_eq_u64 s[{sSV}:{sSV+1}], 0"); o("s_cbranch_scc1 P1_DONE"); o("s_mov_b64 exec, -1")
        for k in range(8*half, 8*half+8): o(f"v_lshrrev_b32 v{ad[k]}, 24, v{REC+2*k+1}")
        for k in range(8*half, 8*half+8):
            o(f"s_mov_b64 exec, s[{sK+2*k}:{sK+2*k+1}]")
            o(f"ds_add_rtn_u32 v{RANK+k}, v{ad[k]}, v{a} offset:{CNT}")
    lab("P1_DONE")
    o("s_mov_b64 exec, -1")
    o(f"s_cmp_eq_u32 s{sFIRST}, 0"); o("s_cbranch_scc1 NOW")
    o(f"s_add_u32 s{sDS}, s{sMR}, {NS*SLOT}")
    xblk(sDS, t[4])
    for x in wload(ACC, WF_A): o(x)
    o(f"s_lshl_b32 s{sT0}, s{sWAVE}, 10"); o(f"s_add_u32 s{sT0}, s{sT0}, {WS_WF+WF_C:#x}")
    o(f"buffer_load_dwordx4 {vr(WC,4)}, v{vWF}, s[{sW}:{sW+3}], s{sT0} offen")
    lab("NOW")
    if PF and PFW == 'p1': pref()
    o("s_waitcnt lgkmcnt(0)"); xstamp("p1_done"); o("s_barrier"); xstamp("b1")
    o(f"ds_read_b32 v{c}, v{b_} offset:{CNT}")
    o(f"ds_read_b32 v{t[4]}, v{b_} offset:{CNT-4}")
    o(f"v_lshlrev_b32 v{t[5]}, 12, v{vh}")
    o("s_waitcnt lgkmcnt(1)")
    o(f"v_sub_u32 v{d_}, v{t[5]}, v{c}")
    for dd in ("row_shr:1", "row_shr:2", "row_shr:4", "row_shr:8"):
        o(f"v_add_u32_dpp v{c}, v{c}, v{c} {dd} row_mask:0xf bank_mask:0xf bound_ctrl:0"); o("s_nop 1")
    o(f"v_add_u32_dpp v{c}, v{c}, v{c} row_bcast:15 row_mask:0xa bank_mask:0xf")
    o(f"v_add_u32 v{d_}, v{c}, v{d_}")
    o(f"ds_write_b32 v{b_}, v{d_} offset:{NB}")
    o(f"v_readlane_b32 s{sNT}, v{c}, 31"); o(f"v_readlane_b32 s{sT0}, v{c}, 63")
    for k in range(8): o(f"ds_read_b32 v{ad[k]}, v{ad[k]} offset:{NB}")
    o(f"s_max_u32 s{sNT}, s{sNT}, s{sT0}")
    o(f"s_cmp_le_u32 s{sNT}, 4096"); o("s_cbranch_scc0 TOOBIG")
    xstamp("scan_done")
    for half in range(2):
        if half:
            o(f"s_cmp_eq_u64 s[{sSV}:{sSV+1}], 0"); o("s_cbranch_scc1 P2_DONE"); o("s_mov_b64 exec, -1")
            for k in range(8, 16): o(f"ds_read_b32 v{ad[k]}, v{ad[k]} offset:{NB}")
        for k in range(8*half, 8*half+8):
            if k % 4 == 0: o(f"s_waitcnt lgkmcnt({4 - k % 8})")
            o(f"v_add_u32 v{RANK+k}, v{RANK+k}, v{ad[k]}")
        for k in range(8*half, 8*half+8):
            o(f"s_mov_b64 exec, s[{sK+2*k}:{sK+2*k+1}]")
            o(f"ds_write_b64 v{RANK+k}, {vr(REC+2*k,2)} offset:{LIST}")
    lab("P2_DONE")
    o("s_mov_b64 exec, -1")
    o(f"v_readlane_b32 s{sMORE}, v{t[4]}, 0")
    o(f"s_mov_b32 m0, s{sME}")
    o(f"s_waitcnt vmcnt({9 + (PF if PFW == 'p1' else 0)}) lgkmcnt(0)"); xstamp("p2_done"); o("s_barrier"); stamp(5)
    f = t
    def rdidx(u):
        for i in range(4): o(f"ds_read_u16 v{IX[i]}, v{vL1} offset:{loff(u)+64*i}")
    def fill(u, nxt):
        for i in range(4):
            o(f"s_add_u32 m0, s{sMR}, {u*SLOT + i*1040}"); o(f"s_waitcnt lgkmcnt(3)"); o(ldt(i))
            o(f"ds_read_u16 v{IX[i]}, v{vL1} offset:{loff(nxt)+64*i}")
    o(f"ds_read_b32 v{IXE}, v{vL2}"); rdidx(0)
    o(f"v_lshlrev_b32 v{f[9]}, 3, v0")
    o("s_waitcnt lgkmcnt(4)")
    o(f"v_and_b32 v{IXE}, 0x7ffff, v{IXE}"); o(lde())
    for u in range(NS): fill(u, u + 1)
    for k in range(4): o(f"ds_read_u8 v{f[12+k]}, v{f[9]} offset:{LIST+2+k*2048}")
    o(f"ds_read_b32 v{IXE}, v{vL2} offset:512"); o(f"ds_read_u8 v{vSV}, v{vSA}")
    xstamp("fill_issued")
    def ctrl():
        o(f"s_movk_i32 s{sS0}, {ROW}")
        for k in range(4):
            o(f"v_cmp_gt_u32 vcc, {NA}, v{f[12+k]}"); o(f"v_mad_u32_u24 v{f[0]}, v{f[12+k]}, s{sS0}, v{PT+2}"); o("s_nop 0")
            o(f"v_cndmask_b32 v{f[1]}, 0, v{PT+1}, vcc")
            o(f"ds_or_b32 v{f[0]}, v{f[1]} offset:{MB + (k&1)*128 + (k>>1)*8}")
        o(f"s_add_u32 s{sCNT}, s{sNT}, 255"); o(f"s_lshr_b32 s{sCNT}, s{sCNT}, 8"); o(f"s_max_u32 s{sCNT}, s{sCNT}, 1"); o(f"s_lshl_b32 s{sNT}, s{sCNT}, 1"); o(f"s_sub_u32 s{sCNT}, s{sCNT}, 1")
        o(f"s_add_u32 s{sMET}, s{sME}, 4096"); o(f"s_xor_b32 s{sMET}, s{sMET}, s{sME}"); o(f"s_add_u32 s{sME}, s{sME}, 4096")
        o(f"v_add_u32 v{vL2}, 0x400, v{vL2}")
        o(f"s_mov_b32 s{sRS}, 0")
    def lut():
        q = T0
        for d in range(4):
            o(f"v_bfe_u32 v{q+d}, v0, {2*d}, 2"); o(f"v_mul_u32_u24 v{q+d}, 0x8001, v{q+d}")
            o(f"v_and_b32 v{q+d}, 0x10001, v{q+d}"); o(f"v_mul_u32_u24 v{q+d}, 0x3f80, v{q+d}")
        o(f"v_lshlrev_b32 v{q+4}, 4, v0"); o(f"ds_write_b128 v{q+4}, {vr(q,4)} offset:{LUT}")
        o(f"v_lshrrev_b32 v{q}, 3, v0"); o(f"v_and_b32 v{q+1}, 7, v0")
        o(f"v_bfe_u32 v{q+2}, v0, 5, 1"); o(f"v_bfe_u32 v{q+3}, v0, 6, 1"); o(f"v_lshl_or_b32 v{q+2}, v{q+2}, 1, v{q+3}")
        o(f"v_lshrrev_b32 v{q+3}, 7, v0"); o(f"v_lshl_or_b32 v{q+2}, v{q+3}, 2, v{q+2}")
        o(f"v_cmp_eq_u32 vcc, v{q+2}, v{q+1}"); o(f"v_cmp_gt_u32 s[{sHM}:{sHM+1}], {NA}, v{q}"); o(f"v_mov_b32 v{q+6}, 0x3f80"); o(f"v_mov_b32 v{q+7}, 0")
        o(f"s_and_b64 vcc, vcc, s[{sHM}:{sHM+1}]")
        o(f"v_and_b32 v{q+2}, 3, v{q}"); o(f"v_lshlrev_b32 v{q+2}, 4, v{q+2}"); o(f"v_cndmask_b32 v{q+6}, 0, v{q+6}, vcc")
        o(f"v_lshlrev_b64 {vr(q+6,2)}, v{q+2}, {vr(q+6,2)}")
        o(f"v_min_u32 v{q}, {NA}, v{q}"); o(f"v_mul_u32_u24 v{q}, 80, v{q}"); o(f"v_lshl_add_u32 v{q}, v{q+1}, 3, v{q}")
        o(f"ds_write_b64 v{q}, {vr(q+6,2)} offset:{IDT}")
    o(f"s_cmp_eq_u32 s{sFIRST}, 1"); o("s_cbranch_scc1 G1")
    o("s_waitcnt lgkmcnt(0)")
    ctrl()
    o("s_branch G1D")
    lab("G1")
    for mt in range(2):
        for s in range(8): o(f"ds_read_b128 {vr(GV+32*mt+4*s,4)}, v{vXA} offset:{mt*2080 + 16*s}")
        if mt == 0: o("s_waitcnt lgkmcnt(8)")
    lt = capture(lut); ct = capture(ctrl)
    for x in lt[:18]: o(x)
    o(f"s_waitcnt vmcnt({4*NS+2}) lgkmcnt(9)")
    acc = [ACC + 32, ACC + 48]
    interleave([m32(acc[0], GV+4*s, ACC+4*s, None if s == 0 else acc[0]) for s in range(8)], lt[18:] + ct[:16], 5)
    o("s_waitcnt lgkmcnt(5)")
    def cv(mt): return [f"v_cvt_pk_bf16_f32 v{AF+8*mt+r//2}, v{acc[mt]+r}, v{acc[mt]+r+1}" for r in range(0, 16, 2)]
    interleave([m32(acc[1], GV+32+4*s, ACC+4*s, None if s == 0 else acc[1]) for s in range(8)],
               ct[16:] + cv(0) + [f"v_mov_b32 v{acc[0]+r}, 0" for r in range(16)], 5)
    for r in range(32): o(f"v_mov_b32 v{ACC+r}, 0")
    for x in cv(1): o(x)
    for r in range(16): o(f"v_mov_b32 v{acc[1]+r}, 0")
    if STAMP:
        o("s_getreg_b32 s94, hwreg(HW_REG_HW_ID)"); o("s_getreg_b32 s100, hwreg(HW_REG_XCC_ID)"); o("s_and_b32 s94, s94, 0xffff"); o("s_lshl_b32 s100, s100, 16"); o("s_or_b32 s94, s94, s100"); o(f"v_writelane_b32 v{VST[0]}, s94, 3")
    lab("G1D")
    o(f"v_and_b32 v{MQ}, 0xffff, v{PT}"); o(f"v_lshrrev_b32 v{MQ+1}, 16, v{PT}")
    xstamp("g1_done"); stamp(4)
    o(f"s_waitcnt vmcnt({4*(NS-1)}) lgkmcnt(0)"); xstamp("t0_landed"); o("s_barrier")
    o(f"ds_read_b128 {vr(SEL,4)}, v{MQ}"); o(f"ds_read_b128 {vr(SEL+4,4)}, v{MQ+1}")
    o(f"ds_read_b128 {vr(EF,4)}, v{vEA}")
    for j in range(4): o(f"ds_read_b128 {vr(TF+4*j,4)}, v{vTA} offset:{16*j}")
    o(f"s_setprio {OPT.get('lp', 2)}")
    if OPT.get('young'):
        o("s_cmp_lt_u32 s2, 256"); o("s_cbranch_scc1 OLD"); o(f"s_setprio {OPT['young']}"); lab("OLD")
    stamp(6); stamp(8, "s_memtime")
    bodies = [body(b) for b in range(4)]
    check_hazards(sum(bodies, []) + ["s_branch LOOP"])
    emit(body(0, peel=True))
    b1 = bodies[1][:bodies[1].index("ENT1:")]
    o("s_nop 7")
    emit([x for x in b1 if not x.startswith("v_mfma")])
    o("s_branch ENT1")
    lab("TOOBIG")
    o(f"s_mov_b32 s{sLIM}, {LOWLIM}"); o(f"v_mov_b32 v{a}, 0")
    o("s_waitcnt lgkmcnt(0)"); o("s_barrier")
    o(f"ds_write_b32 v{b_}, v{a} offset:{CNT}")
    o("s_waitcnt lgkmcnt(0)"); o("s_barrier")
    o("s_branch REMASK")
    lab("LOOP")
    emit(sum(bodies, []))
    if OPT.get('pp', '99,8,4') != '0':
        th = [int(x) for x in OPT.get('pp', '99,8,4').split(',')]
        for k, v in enumerate(th):
            o(f"s_cmp_lt_u32 s{sCNT}, {v}"); o("s_cbranch_scc0 LOOP"); o(f"s_setprio {2-k}")
    o("s_branch LOOP")
    assert HEAD[0] == HEAD[2]
    lab("TAIL")
    stamp(7); stamp(11, "s_memtime")
    if STAMP: o(f"v_writelane_b32 v{VST[0]}, s{sNT}, 12")
    Gc = GV + 32; WU = TF; x = AF
    o(f"ds_read_b128 {vr(T0,4)}, v{MQ}"); o(f"ds_read_b128 {vr(T0+4,4)}, v{MQ+1}")
    o(f"s_cmp_lg_u32 s{sMORE}, 0"); o("s_cbranch_scc1 TAILM")
    o("s_waitcnt lgkmcnt(0)")
    for ins in wload(WU, WF_U): o(ins)
    lab("TAILM")
    for ins, _ in vstream(Gc, Gc + 16)[HEAD[0]:]: o(ins)
    o("s_waitcnt lgkmcnt(0)")
    def fin(p):
        d = ACC + 32 * p; r = []
        for k in range(16): r.append(f"v_add_f32 v{d+k}, s{sEPS}, v{d+k}")
        for k in range(16): r.append(f"v_rcp_f32 v{d+k}, v{d+k}")
        for k in range(16): r.append(f"v_mul_f32 v{d+16+k}, v{d+k}, v{d+16+k}")
        return r
    for m in zphase(Gc, 1): o(m)
    o(f"s_cmp_lg_u32 s{sMORE}, 0"); o("s_cbranch_scc1 NEXTROUND")
    for s in range(8): o(f"ds_read_b128 {vr(GV+4*s,4)}, v{vXA} offset:{16*s}")
    for mt in range(2):
        for k in range(2): o(f"ds_read_b128 {vr(x+8*mt+4*k,4)}, v{vXR} offset:{mt*2080+16*k}")
    for ins in fin(0): o(ins)
    for s in range(8): o(f"ds_read_b128 {vr(GV+32+4*s,4)}, v{vXA} offset:{2080+16*s}")
    o(f"v_and_b32 v{IX[0]}, 31, v0"); o(f"v_and_b32 v{IX[0]+1}, 0xe0, v0")
    o(f"s_mov_b32 s{sT1}, 0xffff0000")
    o(f"v_cmp_gt_u32 vcc, {NA}, v{IX[0]}"); o(f"v_cmp_gt_u32 s[{sSV}:{sSV+1}], {RN-NA}, v{IX[0]}"); o(f"v_add_u32 v{IX[0]}, s{sBASE}, v{IX[0]}")
    o("s_waitcnt vmcnt(0) lgkmcnt(8)")
    def unp(p): return sum(([f"v_lshlrev_b32 v{ACC+32*p+2*k}, 16, v{x+8*p+k}", f"v_and_b32 v{ACC+32*p+2*k+1}, s{sT1}, v{x+8*p+k}"] for k in range(8)), [])
    def post(p):
        r = []
        for k in range(8):
            z = ACC + 32*p + 16 + 2*k
            r += [f"v_max_f32 v{z}, 0, v{z}", f"v_max_f32 v{z+1}, 0, v{z+1}", f"v_add_f32 v{z}, v{z}, v{z-16}", f"v_add_f32 v{z+1}, v{z+1}, v{z-15}",
                  f"v_cvt_pk_bf16_f32 v{x+8*p+k}, v{z}, v{z+1}"]
        return r
    def st(p): return [f"buffer_store_dwordx4 {vr(x+8*p+4*k,4)}, {vr(IX[0],2)}, s[{sO}:{sO+3}], 0 idxen offen offset:{16*k}" for k in range(2)]
    interleave([m32(ACC+16, WU+4*s, GV+4*s, ACC+16) for s in range(8)], fin(1), 6)
    o("s_waitcnt lgkmcnt(0)"); o("s_nop 0")
    interleave([m32(ACC+48, WU+4*s, GV+32+4*s, ACC+48) for s in range(8)], unp(0) + post(0) + unp(1), 7)
    o("s_mov_b64 exec, vcc")
    for ins in st(0): o(ins)
    o(f"s_mov_b64 exec, s[{sSV}:{sSV+1}]"); o(f"v_add_u32 v{IX[0]}, {NA}, v{IX[0]}")
    for ins in post(1) + st(1): o(ins)
    stamp_out(9, GV, sW, 1)
    lab("K2_END")
    o("s_endpgm")
    lab("NEXTROUND")
    for i in range(4):
        o(f"v_lshrrev_b32 v{vTC}, 19, v{SEG+i}"); o(f"v_min_u32 v{vTC}, s{sLIM}, v{vTC}")
        o(f"v_add_u32 v{SEG+i}, v{SEG+i}, v{vTC}"); o(f"v_lshlrev_b32 v{vTC}, 19, v{vTC}"); o(f"v_sub_u32 v{SEG+i}, v{SEG+i}, v{vTC}")
    o(f"s_mov_b32 s{sFIRST}, 0"); o(f"s_mov_b32 s{sLIM}, 16")
    o("s_waitcnt vmcnt(0) lgkmcnt(0)"); o("s_barrier")
    o("s_branch ROUND")

def kd(name, nv, ns):
    L.append(".p2align 6")
    L.append(f".amdhsa_kernel {name}")
    for k, v in (("next_free_vgpr", nv), ("next_free_sgpr", ns), ("accum_offset", (nv + 3) // 4 * 4), ("group_segment_fixed_size", 0),
                 ("kernarg_size", 96), ("user_sgpr_count", 2), ("user_sgpr_kernarg_segment_ptr", 1), ("system_sgpr_workgroup_id_x", 1),
                 ("float_denorm_mode_32", 3)):
        L.append(f"  .amdhsa_{k} {v}")
    L.append(".end_amdhsa_kernel")

hdr = [l for l in open(f"cdna_kernels/{NAME}.s.ref").read().splitlines() if l.startswith(";") and "@launch" not in l
       and "Override launch" not in l and "grid=ceil" not in l]
L += hdr
L.append(f"; @launch kernel=gsort_kernel grid=({K1_GRID},1,1) block=(512,1,1) lds={K1_LDS}")
L.append(f"; @launch kernel=gmain_kernel grid=(512,1,1) block=(256,1,1) lds={K2_LDS}")
L.append('.amdgcn_target "amdgcn-amd-amdhsa--gfx950"'); L.append(".text")
gen_k1(); gen_k2()
lab("CODE_END")
L.append('.section .rodata,"a"')
kd("gsort_kernel", 256 if STAMP else 250, 102 if STAMP else 72); kd("gmain_kernel", 256 if STAMP else NVGPR, 102)
if STAMP: L.append("; STAMPS " + repr(NAMES))
open(sys.argv[1], "w").write("\n".join(L) + "\n")
print("vgprs", NVGPR, "lds", K2_LDS, "lines", len(L), file=sys.stderr)
```

```python
import sys, struct, re

N = 25000; E = 400000; RN = 49; NR = 511; CH = 1600; NCH = 250
WS_REC = 0; WS_OFF = 0x310000; OROW = 1152; WS_WF = 0x3c0000; WS_TAB = 0x400000; WS_SIZE = 0x4000000
WF_A = 0; WF_U = 0x8000; WF_C = 0x10000; NA = 25
NLOG2E = struct.unpack('<I', struct.pack('<f', -1.4426950408889634))[0]
EPS = struct.unpack('<I', struct.pack('<f', 1e-6))[0]
NAME = "standalone__edge_featured_mpnn_gatedgcn__graph"
OPT = dict(a.split('=') for a in sys.argv[2:]) if len(sys.argv) > 2 else {}
STAMP = int(OPT.get('stamp', 0))
WS_TAB = int(OPT.get('tab', hex(WS_TAB)), 0)
WS_STAMP = 0x3800000
L = []
def o(s): L.append("    " + s)
def lab(s): L.append(s + ":")
def vr(b, n): return f"v[{b}:{b+n-1}]"
VST = [60]
NAMES = {}
def stamp(i, ins="s_memrealtime", name=None):
    if STAMP:
        o(f"{ins} s[100:101]"); o("s_waitcnt lgkmcnt(0)"); o(f"v_writelane_b32 v{VST[0]}, s100, {i}")
def xstamp(name):
    if STAMP:
        NAMES[name] = 16 + len(NAMES); stamp(NAMES[name])
def stamp_out(n, reg, srdn, kern):
    if not STAMP: return
    o("s_mov_b64 exec, -1")
    stamp(n)
    o(f"v_lshlrev_b32 v{reg}, 2, v0")
    if kern and int(OPT.get('g8', 0)): o("s_and_b32 s63, s3, 1"); o("s_lshl_b32 s63, s63, 8"); o("s_add_u32 s2, s2, s63")
    o(f"s_lshl_b32 s63, s2, 11"); o(f"s_add_u32 s63, s63, {WS_STAMP + kern*0x100000:#x}")
    o(f"buffer_store_dword v{VST[0]}, v{reg}, s[{srdn}:{srdn+3}], s63 offen")
def srd(d, lo, size, stride=0):
    o(f"s_mov_b32 s{d}, s{lo}"); o(f"s_and_b32 s{d+1}, s{lo+1}, 0xffff")
    if stride: o(f"s_or_b32 s{d+1}, s{d+1}, {stride << 16:#x}")
    o(f"s_mov_b32 s{d+2}, {size:#x}"); o(f"s_mov_b32 s{d+3}, 0x20000")
def scan64(v):
    for d in ("row_shr:1", "row_shr:2", "row_shr:4", "row_shr:8"):
        o("s_nop 1"); o(f"v_add_u32_dpp v{v}, v{v}, v{v} {d} row_mask:0xf bank_mask:0xf bound_ctrl:0")
    o("s_nop 1"); o(f"v_add_u32_dpp v{v}, v{v}, v{v} row_bcast:15 row_mask:0xa bank_mask:0xf")
    o("s_nop 1"); o(f"v_add_u32_dpp v{v}, v{v}, v{v} row_bcast:31 row_mask:0xc bank_mask:0xf")

def m32(d, a, b, c): return f"v_mfma_f32_32x32x16_bf16 {vr(d,16)}, {vr(a,4)}, {vr(b,4)}, " + ("0" if c is None else vr(c,16))
K1_GRID = 256
OG = 4224
K1_W = 16896; K1_X = K1_W + 65536; K1_S = K1_X + 4 * 8320; K1_LDS = K1_S + 8 * 4608
def gen_k1():
    L.append(".globl gsort_kernel"); L.append(".p2align 8"); L.append(".type gsort_kernel,@function")
    lab("gsort_kernel"); VST[0] = 255
    pol = OPT.get('tabpol', '').replace('+', ' '); rpol = OPT.get('recpol', '').replace('+', ' ')
    stamp(0)
    o("s_load_dwordx8 s[4:11], s[0:1], 0")
    o("s_load_dwordx8 s[40:47], s[0:1], 32")
    o("s_load_dwordx2 s[48:49], s[0:1], 64")
    o("s_load_dwordx2 s[12:13], s[0:1], 88")
    o(f"s_cmp_ge_u32 s2, {K1_GRID}"); o("s_cbranch_scc1 K1_END")
    o("v_lshrrev_b32 v2, 6, v0"); o("v_lshlrev_b32 v1, 2, v0")
    o("s_and_b32 s36, s2, 7"); o("s_lshl_b32 s36, s36, 5"); o("s_lshr_b32 s35, s2, 3"); o("s_add_u32 s36, s36, s35")
    o("v_readfirstlane_b32 s33, v2")
    o("v_mov_b32 v2, 0"); o("ds_write_b32 v1, v2")
    o(f"s_mul_i32 s3, s2, {CH*4}"); o("s_mul_i32 s37, s36, 98")
    o(f"s_cmp_lt_u32 s2, {NCH}"); o(f"s_cselect_b32 s14, {CH//4}, 0")
    o("v_cmp_gt_u32 vcc, s14, v0")
    o("v_lshlrev_b32 v40, 4, v0")
    o("v_bfe_u32 v56, v0, 4, 1"); o("v_bfe_u32 v57, v0, 5, 1"); o("v_and_b32 v20, 63, v0")
    o("s_mov_b32 s68, 0"); o("v_lshlrev_b32 v42, 4, v20")
    o("v_bfe_u32 v43, v0, 4, 2"); o("v_lshlrev_b32 v43, 6, v43"); o("v_xor_b32 v43, v43, v40")
    o("v_lshl_add_u32 v58, v57, 3, v56")
    o("s_lshr_b32 s14, s33, 2"); o("s_lshl_b32 s14, s14, 4"); o("s_and_b32 s15, s33, 3"); o("s_lshl1_add_u32 s14, s15, s14")
    o("v_add_u32 v58, s14, v58"); o("v_add_u32 v54, s37, v58")
    o("v_and_b32 v55, 15, v0"); o("v_lshlrev_b32 v59, 3, v56"); o("v_xor_b32 v55, v55, v59"); o("v_lshlrev_b32 v55, 4, v55")
    o("s_mul_i32 s38, s33, 1040"); o(f"s_add_u32 s38, s38, {K1_X}")
    o("s_lshl_b32 s39, s33, 10"); o(f"s_add_u32 s39, s39, {K1_W}")
    o("s_mov_b32 m0, s38")
    o("s_waitcnt lgkmcnt(0)")
    srd(60, 4, N, 256)
    def xd(t):
        if t: o(f"s_add_u32 m0, s38, {t*8320}"); o("v_add_u32 v54, 32, v54")
        if t == 3: o("v_cmp_gt_u32 vcc, 2, v58"); o("v_mov_b32 v59, 0xffff"); o("s_nop 0"); o("v_cndmask_b32 v54, v59, v54, vcc")
        o("buffer_load_dwordx4 v[54:55], s[60:63], 0 idxen offen lds")
    xd(0); xd(1)
    srd(20, 10, E*4); srd(16, 8, E*4)
    o("s_and_saveexec_b64 s[28:29], vcc"); o("s_mov_b64 s[28:29], exec"); o("s_cbranch_execz K1_PREP")
    o("buffer_load_dwordx4 v[4:7], v40, s[20:23], s3 offen")
    o("buffer_load_dwordx4 v[8:11], v40, s[16:19], s3 offen")
    lab("K1_A")
    o("s_mov_b64 exec, -1")
    TCH = int(OPT.get('touch', 0)); SPL = int(OPT.get('split', 0))
    if TCH:
        srd(24, 12, WS_SIZE)
        o("s_lshl_b32 s14, s37, 9"); o(f"s_add_u32 s14, s14, {WS_TAB:#x}"); o("v_mov_b32 v248, s14"); o("s_lshl_b32 s14, s3, 1")
        o("v_writelane_b32 v248, s14, 1"); o(f"s_mov_b32 s14, {WS_OFF:#x}"); o("v_writelane_b32 v248, s14, 2")
        o("buffer_load_dword v249, v248, s[24:27], 0 offen")
    if not OPT.get('early'): o("s_barrier")
    srd(52, 42, 32768); srd(56, 48, 32768)
    for m in range(2):
        for i in range(4):
            o(f"s_add_u32 m0, s39, {m*32768+i*8192}"); o(f"s_movk_i32 s14, {i*8192}"); o(f"buffer_load_dwordx4 v43, s[{52+4*m}:{55+4*m}], s14 offen lds")
    xd(2); xd(3)
    if OPT.get('early'): o("s_barrier")
    def addrs():
        srd(24, 12, WS_SIZE)
        o("v_bfe_u32 v60, v0, 2, 2"); o("v_lshl_add_u32 v60, v57, 6, v60"); o("v_lshlrev_b32 v60, 8, v60")
        o("v_and_b32 v61, 3, v0"); o("v_lshl_add_u32 v60, v61, 3, v60"); o("v_lshl_add_u32 v60, v56, 5, v60")
        o("s_and_b32 s30, s33, 3"); o("v_bfe_u32 v61, v0, 2, 2"); o("v_xor_b32 v61, s30, v61"); o("v_lshl_add_u32 v60, v61, 6, v60"); o(f"v_add_u32 v60, {K1_W}, v60")
        o("v_bfe_u32 v61, v0, 1, 2"); o("v_lshl_or_b32 v61, v56, 2, v61"); o("v_mul_u32_u24 v61, 1040, v61")
        o("v_and_b32 v62, 1, v0"); o("v_bfe_u32 v63, v0, 3, 1"); o("v_lshl_or_b32 v63, v63, 1, v62"); o("v_lshl_add_u32 v61, v63, 8, v61")
        o("s_lshr_b32 s32, s33, 2"); o("s_mul_i32 s14, s32, 8320"); o(f"s_add_u32 s14, s14, {K1_X}")
        o("v_xor_b32 v62, v62, v57"); o("v_lshl_add_u32 v61, v62, 7, v61"); o("v_add_u32 v61, s14, v61")
        o("s_mul_i32 s14, s33, 4608"); o(f"s_add_u32 s14, s14, {K1_S}")
        o("v_and_b32 v62, 31, v0"); o("v_mul_u32_u24 v62, 144, v62"); o("v_lshl_add_u32 v62, v57, 6, v62"); o("v_add_u32 v62, s14, v62")
        o("v_lshrrev_b32 v58, 3, v20"); o("v_and_b32 v59, 7, v0"); o("v_lshlrev_b32 v59, 4, v59")
        o("v_mul_u32_u24 v63, 144, v58"); o("v_add3_u32 v63, v63, v59, s14")
        o("s_lshl_b32 s14, s32, 5"); o("s_add_u32 s14, s14, s37"); o("s_lshl_b32 s14, s14, 9"); o("s_lshl_b32 s30, s30, 7"); o("s_add_u32 s14, s14, s30")
        o("v_lshl_add_u32 v59, v58, 9, v59"); o("v_add_u32 v59, s14, v59")
        o("s_lshl_b32 s31, s3, 1")
    addrs()
    o(f"s_mul_i32 s34, s2, {CH}")
    o("v_add_u32 v3, s34, v1"); o("v_mov_b32 v2, 1"); o(f"s_mov_b32 s15, {-RN}")
    o("v_lshlrev_b32 v20, 5, v20")
    o("s_mov_b64 exec, s[28:29]"); o("s_cbranch_execz K1_B")
    o(f"s_waitcnt vmcnt({10+TCH})"); stamp(1)
    for i in range(4):
        o(f"v_mul_u32_u24 v{12+i}, 21400, v{4+i}")
        o(f"v_lshrrev_b32 v{12+i}, 20, v{12+i}")
        o(f"v_mad_i32_i24 v{4+i}, v{12+i}, s15, v{4+i}")
        o(f"v_lshlrev_b32 v{12+i}, 2, v{12+i}")
        o(f"ds_add_rtn_u32 v{16+i}, v{12+i}, v2")
    lab("K1_B")
    o("s_mov_b64 exec, -1")
    o(f"s_add_u32 s12, s12, {WS_TAB:#x}"); o("s_addc_u32 s13, s13, 0"); srd(16, 12, N * 512)
    o(f"s_mov_b32 s15, {NLOG2E:#x}")
    o(f"s_waitcnt vmcnt({2*SPL}) lgkmcnt(0)"); o("s_barrier"); stamp(3)
    lab("K1_J")
    WF_ = 64; XF_ = 128; AC = [160, 192]
    for m in range(2):
        for s in range(8):
            for jj in range(2): o(f"ds_read_b64_tr_b16 v[{WF_+32*m+4*s+2*jj}:{WF_+32*m+4*s+2*jj+1}], v60 offset:{m*32768+s*2048+jj*1024}")
            if m == 0: o(f"ds_read_b128 {vr(XF_+4*s,4)}, v61 offset:{16*s}")
    o("ds_read_b128 v[24:27], v20"); o("ds_read_b128 v[28:31], v20 offset:16")
    def post(t):
        a = AC[t]; r = []
        for k in range(16): r.append(f"v_mul_f32 v{a+k}, s15, v{a+k}")
        for k in range(16): r.append(f"v_cvt_pk_bf16_f32 v{224+k}, v{a+2*k}, v{a+2*k+1}")
        r += [f"ds_write_b128 v62, {vr(224+4*c,4)} offset:{16*c}" for c in range(4)]
        r += [f"ds_read_b128 {vr(a+4*k,4)}, v63 offset:{k*8*144}" for k in range(4)]
        return r
    def stores(t):
        r = []
        for k in range(4):
            r += [f"s_waitcnt lgkmcnt({3-k})", f"buffer_store_dwordx4 {vr(AC[t]+4*k,4)}, v59, s[16:19], 0 offen {pol}", "v_add_u32 v59, 0x1000, v59"]
        return r
    def recs():
        for i in range(4):
            o(f"v_cmp_lt_u32 vcc, {NA-1}, v{4+i}"); o(f"v_mul_u32_u24 v22, 83, v{8+i}"); o("v_lshrrev_b32 v22, 16, v22")
            o(f"v_cndmask_b32 v23, 0, {NA}, vcc"); o(f"v_sub_u32 v23, v{4+i}, v23")
            o(f"v_lshl_or_b32 v{44+2*i}, v23, 16, v{8+i}")
            o("v_cndmask_b32 v23, 0, 32, vcc"); o("v_or_b32 v22, v22, v23")
            o(f"v_lshl_add_u32 v{45+2*i}, v22, 26, v3")
            if i < 3: o("v_add_u32 v3, 1, v3")
    def scan():
        o("v_mov_b32 v33, v24")
        for j in range(2, 8): o(f"v_add_u32 v{32+j}, v{31+j}, v{23+j}")
        o("v_add_u32 v21, v39, v31"); o("v_mov_b32 v22, v21")
        scan64(21)
        o("v_sub_u32 v32, v21, v22")
        for j in range(1, 8): o(f"v_add_u32 v{32+j}, v32, v{32+j}")
    o("s_waitcnt lgkmcnt(15)")
    interleave([m32(AC[0], WF_+4*s, XF_+4*s, None if s == 0 else AC[0]) for s in range(8)], capture(recs), 5)
    o("s_waitcnt vmcnt(0) lgkmcnt(0)")
    if SPL: o("s_barrier")
    sc = capture(scan); p0 = post(0)
    q = sc + p0[:24]
    for s in range(8):
        o(m32(AC[0]+16, WF_+32+4*s, XF_+4*s, None if s == 0 else AC[0]+16))
        o(f"ds_read_b128 {vr(XF_+4*s,4)}, v61 offset:{2*8320+16*s}")
        for _ in range(5):
            if q: o(q.pop(0))
    lab("K1_G")
    o("s_waitcnt lgkmcnt(0)")
    mf = [m32(AC[1], WF_+4*s, XF_+4*s, None if s == 0 else AC[1]) for s in range(8)] + [m32(AC[1]+16, WF_+32+4*s, XF_+4*s, None if s == 0 else AC[1]+16) for s in range(8)]
    assert len(q) >= 8
    look = ["ds_write_b128 v20, v[32:35] offset:2048", "ds_write_b128 v20, v[36:39] offset:2064"] + [f"ds_read_b32 v{4+i}, v{12+i} offset:2048" for i in range(4)]
    q = q + p0[24:] + [None] * 5 + stores(0) + look
    for m in mf:
        o(m)
        for _ in range(5):
            if q:
                x = q.pop(0)
                if x: o(x)
    assert not q
    o("v_add_u32 v59, 0x4000, v59"); o("v_cmp_gt_u32 vcc, 2, v58")
    o("s_mov_b64 exec, s[28:29]")
    o("s_waitcnt lgkmcnt(0)")
    for i in range(4):
        o(f"v_add_lshl_u32 v{4+i}, v{4+i}, v{16+i}, 3"); o(f"ds_write_b64 v{4+i}, v[{44+2*i}:{45+2*i}] offset:4096")
    o("s_mov_b64 exec, -1")
    for x in post(1): o(x)
    stamp(4)
    o("s_cmp_lt_u32 s33, 4"); o("s_cbranch_scc1 K1_H")
    o("s_mov_b64 exec, vcc")
    for x in stores(1)[:2]: o(x)
    o("s_mov_b64 exec, -1")
    o("s_cmp_lg_u32 s68, 0"); o("s_cbranch_scc1 K1_PREP2")
    o("s_cmp_lg_u32 s33, 6"); o("s_cbranch_scc1 K1_I")
    for j in range(8): o(f"v_lshl_add_u32 v{24+j}, v{24+j}, 19, v{32+j}"); o(f"v_add_u32 v{24+j}, s34, v{24+j}")
    o(f"v_mul_u32_u24 v41, {OG//16}, v20"); o("s_lshl_b32 s35, s36, 4"); o(f"s_add_u32 s35, s35, {WS_OFF:#x}"); o(f"s_add_u32 s30, s35, {OG}")
    o("buffer_store_dwordx4 v[24:27], v41, s[24:27], s35 offen"); o("buffer_store_dwordx4 v[28:31], v41, s[24:27], s30 offen")
    o("s_branch K1_I")
    lab("K1_H")
    for x in stores(1): o(x)
    lab("K1_I")
    o(f"v_cmp_gt_u32 vcc, {CH//2-512}, v0")
    o("s_waitcnt lgkmcnt(0)"); o("s_barrier")
    o(f"s_cmp_lt_u32 s2, {NCH}"); o("s_cbranch_scc0 K1_F")
    o("ds_read_b128 v[44:47], v40 offset:4096"); o("ds_read_b128 v[48:51], v40 offset:12288")
    o("s_add_u32 s30, s31, 8192")
    o("s_waitcnt lgkmcnt(1)")
    o(f"buffer_store_dwordx4 v[44:47], v40, s[24:27], s31 offen {rpol}")
    o("s_and_saveexec_b64 s[28:29], vcc"); o("s_cbranch_execz K1_F")
    o("s_waitcnt lgkmcnt(0)")
    o(f"buffer_store_dwordx4 v[48:51], v40, s[24:27], s30 offen {rpol}")
    lab("K1_F")
    stamp_out(2, 12, 24, 0)
    lab("K1_END")
    o("s_endpgm")
    lab("K1_PREP")
    o("s_cmp_ge_u32 s2, 68"); o("s_cbranch_scc1 K1_A")
    o("s_mov_b64 exec, -1")
    o("s_lshr_b32 s14, s2, 5")
    o("s_cmp_eq_u32 s14, 1"); o("s_cselect_b32 s40, s46, s40"); o("s_cselect_b32 s41, s47, s41"); o(f"s_cselect_b32 s68, 1.0, {NLOG2E:#x}")
    o("s_mov_b32 s66, 32768"); o("s_bfe_u32 s50, s2, 0x20003"); o("s_and_b32 s51, s2, 7"); o("s_mov_b32 s32, 14")
    o("s_cmp_eq_u32 s14, 2"); o("s_cselect_b32 s40, s44, s40"); o("s_cselect_b32 s41, s45, s41"); o("s_cselect_b32 s66, 4096, s66")
    o("s_cselect_b32 s50, s51, s50"); o("s_cselect_b32 s51, 0, s51"); o("s_cselect_b32 s32, 11, s32")
    o("s_mov_b32 s64, s40"); o("s_and_b32 s65, s41, 0xffff"); o("s_mov_b32 s67, 0x20000")
    o("s_lshl_b32 s50, s50, 6"); o("s_lshl_b32 s51, s51, 11"); o("s_add_u32 s50, s50, s51")
    o("v_and_b32 v4, 3, v0"); o("v_bfe_u32 v5, v0, 3, 2"); o("v_lshl_or_b32 v4, v5, 2, v4")
    o("v_bfe_u32 v5, v0, 2, 1"); o("v_lshl_or_b32 v4, v5, 4, v4")
    o("v_lshlrev_b32 v5, s32, v57"); o("v_lshl_add_u32 v4, v4, 1, v5"); o("v_add_u32 v4, s50, v4")
    for j in range(8): o(f"buffer_load_ushort v{240+j}, v4, s[64:67], 0 offen offset:{j*256}")
    o("s_branch K1_A")
    lab("K1_PREP2")
    o("s_lshl_b32 s14, s2, 10"); o(f"s_add_u32 s14, s14, {WS_WF:#x}")
    for j in range(8):
        o(f"v_lshlrev_b32 v{240+j}, 16, v{240+j}"); o(f"v_mul_f32 v{240+j}, s68, v{240+j}")
    for j in range(4): o(f"v_cvt_pk_bf16_f32 v{52+j}, v{240+2*j}, v{241+2*j}")
    o("buffer_store_dwordx4 v[52:55], v42, s[24:27], s14 offen")
    o("s_branch K1_I")

def gen_k1a():
    L.append(".globl gsort_kernel"); L.append(".p2align 8"); L.append(".type gsort_kernel,@function")
    lab("gsort_kernel"); VST[0] = 255
    pol = OPT.get('tabpol', '').replace('+', ' '); rpol = OPT.get('recpol', '').replace('+', ' ')
    if OPT.get('cpf'):
        o("s_getpc_b64 s[70:71]")
        o("v_lshlrev_b32 v236, 7, v0"); o("v_min_u32 v236, CODE_END-gsort_kernel-8, v236")
        o("v_mov_b32 v237, s71"); o("v_add_co_u32 v236, vcc, s70, v236"); o("s_nop 1"); o("v_addc_co_u32 v237, vcc, 0, v237, vcc")
        o("global_load_dword v238, v[236:237], off")
    stamp(0)
    o("s_load_dwordx8 s[4:11], s[0:1], 0")
    o("s_load_dwordx8 s[40:47], s[0:1], 32")
    o("s_load_dwordx2 s[48:49], s[0:1], 64")
    o("s_load_dwordx2 s[12:13], s[0:1], 88")
    o(f"s_cmp_ge_u32 s2, {K1_GRID}"); o("s_cbranch_scc1 K1_END")
    o("v_lshrrev_b32 v2, 6, v0"); o("v_lshlrev_b32 v1, 2, v0")
    o("s_and_b32 s36, s2, 7"); o("s_lshl_b32 s36, s36, 5"); o("s_lshr_b32 s35, s2, 3"); o("s_add_u32 s36, s36, s35")
    o("v_readfirstlane_b32 s33, v2")
    o("v_mov_b32 v2, 0"); o("ds_write_b32 v1, v2")
    o(f"s_mul_i32 s3, s2, {CH*4}"); o("s_mul_i32 s37, s36, 98")
    o(f"s_cmp_lt_u32 s2, {NCH}"); o(f"s_cselect_b32 s14, {CH//5}, 0")
    o("v_cmp_gt_u32 vcc, s14, v0")
    o("v_lshlrev_b32 v40, 4, v0")
    o("v_bfe_u32 v56, v0, 4, 1"); o("v_bfe_u32 v57, v0, 5, 1"); o("v_and_b32 v20, 63, v0")
    o("s_mov_b32 s68, 0"); o("v_lshlrev_b32 v42, 4, v20")
    o("v_mul_u32_u24 v43, 20, v0")
    o("s_cmp_ge_u32 s33, 5")
    o("s_waitcnt lgkmcnt(0)")
    o("s_cbranch_scc1 K1_LOAD")
    srd(20, 10, E*4); srd(16, 8, E*4)
    o("s_and_saveexec_b64 s[28:29], vcc"); o("s_mov_b64 s[28:29], exec"); o("s_cbranch_execz K1_A")
    o("buffer_load_dwordx4 v[64:67], v43, s[20:23], s3 offen"); o("buffer_load_dword v68, v43, s[20:23], s3 offen offset:16")
    o("buffer_load_dwordx4 v[72:75], v43, s[16:19], s3 offen"); o("buffer_load_dword v76, v43, s[16:19], s3 offen offset:16")
    lab("K1_A")
    o("s_mov_b64 exec, -1")
    o("s_barrier")
    def addrs():
        srd(24, 12, WS_SIZE)
        o("v_bfe_u32 v60, v0, 2, 2"); o("v_lshl_add_u32 v60, v57, 6, v60"); o("v_lshlrev_b32 v60, 8, v60")
        o("v_and_b32 v61, 3, v0"); o("v_lshl_add_u32 v60, v61, 3, v60"); o("v_lshl_add_u32 v60, v56, 5, v60")
        o("s_and_b32 s30, s33, 3"); o("v_bfe_u32 v61, v0, 2, 2"); o("v_xor_b32 v61, s30, v61"); o("v_lshl_add_u32 v60, v61, 6, v60"); o(f"v_add_u32 v60, {K1_W}, v60")
        o("v_bfe_u32 v61, v0, 1, 2"); o("v_lshl_or_b32 v61, v56, 2, v61"); o("v_mul_u32_u24 v61, 1040, v61")
        o("v_and_b32 v62, 1, v0"); o("v_bfe_u32 v63, v0, 3, 1"); o("v_lshl_or_b32 v63, v63, 1, v62"); o("v_lshl_add_u32 v61, v63, 8, v61")
        o("s_lshr_b32 s32, s33, 2"); o("s_mul_i32 s14, s32, 8320"); o(f"s_add_u32 s14, s14, {K1_X}")
        o("v_xor_b32 v62, v62, v57"); o("v_lshl_add_u32 v61, v62, 7, v61"); o("v_add_u32 v61, s14, v61")
        o("s_mul_i32 s14, s33, 4608"); o(f"s_add_u32 s14, s14, {K1_S}")
        o("v_and_b32 v62, 31, v0"); o("v_mul_u32_u24 v62, 144, v62"); o("v_lshl_add_u32 v62, v57, 6, v62"); o("v_add_u32 v62, s14, v62")
        o("v_lshrrev_b32 v58, 3, v20"); o("v_and_b32 v59, 7, v0"); o("v_lshlrev_b32 v59, 4, v59")
        o("v_mul_u32_u24 v63, 144, v58"); o("v_add3_u32 v63, v63, v59, s14")
        o("s_lshl_b32 s14, s32, 5"); o("s_add_u32 s14, s14, s37"); o("s_lshl_b32 s14, s14, 9"); o("s_lshl_b32 s30, s30, 7"); o("s_add_u32 s14, s14, s30")
        o("v_lshl_add_u32 v59, v58, 9, v59"); o("v_add_u32 v59, s14, v59")
        o("s_lshl_b32 s31, s3, 1")
    addrs()
    o(f"s_mul_i32 s34, s2, {CH}")
    o("v_lshrrev_b32 v3, 2, v43"); o("v_add_u32 v3, s34, v3"); o("v_mov_b32 v2, 1"); o(f"s_mov_b32 s15, {-RN}"); o(f"s_movk_i32 s38, {-64*RN}")
    o("v_lshlrev_b32 v20, 5, v20")
    o("s_mov_b64 exec, s[28:29]"); o("s_cbranch_execz K1_B")
    o("s_waitcnt vmcnt(2)"); stamp(1)
    for i in range(5):
        o(f"v_mul_u32_u24 v{80+i}, 21400, v{64+i}")
        o(f"v_lshrrev_b32 v{80+i}, 20, v{80+i}")
        o(f"v_mad_i32_i24 v{64+i}, v{80+i}, s15, v{64+i}")
        o(f"v_lshlrev_b32 v{80+i}, 2, v{80+i}")
        o(f"ds_add_rtn_u32 v{88+i}, v{80+i}, v2")
    o("s_waitcnt vmcnt(0)")
    for i in range(5):
        o(f"v_cmp_lt_u32 vcc, {NA-1}, v{64+i}")
        if int(OPT.get('rot', 0)):
            o(f"v_lshrrev_b32 v22, 8, v{80+i}"); o(f"v_mad_i32_i24 v22, v22, s38, v{72+i}"); o(f"v_add_u32 v23, {512*RN}, v22"); o("v_min_u32 v22, v22, v23")
            o("v_mul_u32_u24 v22, 83, v22")
        else: o(f"v_mul_u32_u24 v22, 83, v{72+i}")
        o("v_lshrrev_b32 v22, 16, v22")
        o(f"v_cndmask_b32 v23, 0, {NA}, vcc"); o(f"v_sub_u32 v23, v{64+i}, v23")
        o(f"v_lshl_or_b32 v{96+2*i}, v23, 16, v{72+i}")
        o("v_cndmask_b32 v23, 0, 32, vcc"); o("v_or_b32 v22, v22, v23")
        o(f"v_lshl_add_u32 v{97+2*i}, v22, 26, v3")
        if i < 4: o("v_add_u32 v3, 1, v3")
    lab("K1_B")
    o("s_mov_b64 exec, -1")
    o("s_waitcnt lgkmcnt(0)"); o("s_barrier")
    o("ds_read_b128 v[24:27], v20"); o("ds_read_b128 v[28:31], v20 offset:16")
    o("s_waitcnt lgkmcnt(0)")
    o("v_mov_b32 v33, v24")
    for j in range(2, 8): o(f"v_add_u32 v{32+j}, v{31+j}, v{23+j}")
    o("v_add_u32 v21, v39, v31"); o("v_mov_b32 v22, v21")
    scan64(21)
    o("v_sub_u32 v32, v21, v22")
    for j in range(1, 8): o(f"v_add_u32 v{32+j}, v32, v{32+j}")
    o("ds_write_b128 v20, v[32:35] offset:2048"); o("ds_write_b128 v20, v[36:39] offset:2064")
    o("s_mov_b64 exec, s[28:29]")
    for i in range(5): o(f"ds_read_b32 v{64+i}, v{80+i} offset:2048")
    o("s_waitcnt lgkmcnt(0)")
    for i in range(5):
        o(f"v_add_lshl_u32 v{64+i}, v{64+i}, v{88+i}, 3"); o(f"ds_write_b64 v{64+i}, v[{96+2*i}:{97+2*i}] offset:4096")
    o("s_mov_b64 exec, -1")
    o("s_waitcnt lgkmcnt(0)"); o("s_barrier"); stamp(3)
    lab("K1_J")
    WF_ = 64; XF_ = 128; AC = [160, 192]
    o("ds_read_b128 v[44:47], v40 offset:4096"); o("ds_read_b128 v[48:51], v40 offset:12288")
    o(f"v_cmp_gt_u32 vcc, {CH//2-512}, v0")
    for m in range(2):
        for s in range(8):
            for jj in range(2): o(f"ds_read_b64_tr_b16 v[{WF_+32*m+4*s+2*jj}:{WF_+32*m+4*s+2*jj+1}], v60 offset:{m*32768+s*2048+jj*1024}")
        if m == 0:
            for s in range(8): o(f"ds_read_b128 {vr(XF_+4*s,4)}, v61 offset:{16*s}")
    o(f"s_add_u32 s12, s12, {WS_TAB:#x}"); o("s_addc_u32 s13, s13, 0"); srd(16, 12, N * 512)
    o(f"s_mov_b32 s15, {NLOG2E:#x}")
    def post(t):
        a = AC[t]; r = []
        for k in range(16): r.append(f"v_mul_f32 v{a+k}, s15, v{a+k}")
        for k in range(16): r.append(f"v_cvt_pk_bf16_f32 v{224+k}, v{a+2*k}, v{a+2*k+1}")
        r += [f"ds_write_b128 v62, {vr(224+4*c,4)} offset:{16*c}" for c in range(4)]
        r += [f"ds_read_b128 {vr(a+4*k,4)}, v63 offset:{k*8*144}" for k in range(4)]
        return r
    def stores(t):
        r = []
        for k in range(4):
            r += [f"s_waitcnt lgkmcnt({3-k})", f"buffer_store_dwordx4 {vr(AC[t]+4*k,4)}, v59, s[16:19], 0 offen {pol}", "v_add_u32 v59, 0x1000, v59"]
        return r
    o("s_waitcnt lgkmcnt(15)")
    o(f"s_cmp_lt_u32 s2, {NCH}"); o("s_cbranch_scc0 K1_E")
    o("s_add_u32 s30, s31, 8192")
    o(f"buffer_store_dwordx4 v[44:47], v40, s[24:27], s31 offen {rpol}")
    o("s_and_saveexec_b64 s[28:29], vcc"); o("s_cbranch_execz K1_E")
    o(f"buffer_store_dwordx4 v[48:51], v40, s[24:27], s30 offen {rpol}")
    lab("K1_E"); o("s_mov_b64 exec, -1")
    for s in range(8): o(m32(AC[0], WF_+4*s, XF_+4*s, None if s == 0 else AC[0]))
    o("s_waitcnt lgkmcnt(0)")
    for s in range(8):
        o(m32(AC[0]+16, WF_+32+4*s, XF_+4*s, None if s == 0 else AC[0]+16))
        o(f"ds_read_b128 {vr(XF_+4*s,4)}, v61 offset:{2*8320+16*s}")
    o("s_cmp_lg_u32 s68, 0"); o("s_cbranch_scc1 K1_PREP2")
    o("s_cmp_eq_u32 s33, 4"); o("s_cbranch_scc1 K1_OFF")
    lab("K1_G")
    o("s_waitcnt lgkmcnt(0)")
    mf = [m32(AC[1], WF_+4*s, XF_+4*s, None if s == 0 else AC[1]) for s in range(8)] + [m32(AC[1]+16, WF_+32+4*s, XF_+4*s, None if s == 0 else AC[1]+16) for s in range(8)]
    q = post(0) + [None] * 6 + stores(0)
    for m in mf:
        o(m)
        for _ in range(5):
            if q:
                x = q.pop(0)
                if x: o(x)
    assert not q
    o("v_add_u32 v59, 0x4000, v59"); o("v_cmp_gt_u32 vcc, 2, v58")
    for x in post(1): o(x)
    stamp(4)
    o("s_cmp_lt_u32 s33, 4"); o("s_cbranch_scc1 K1_H")
    o("s_mov_b64 exec, vcc")
    for x in stores(1)[:2]: o(x)
    o("s_branch K1_F")
    lab("K1_H")
    for x in stores(1): o(x)
    lab("K1_F")
    stamp_out(2, 12, 24, 0)
    lab("K1_END")
    o("s_endpgm")
    lab("K1_OFF")
    for j in range(8): o(f"v_lshl_add_u32 v{24+j}, v{24+j}, 19, v{32+j}"); o(f"v_add_u32 v{24+j}, s34, v{24+j}")
    o(f"v_mul_u32_u24 v41, {OG//16}, v20"); o("s_lshl_b32 s35, s36, 4"); o(f"s_add_u32 s35, s35, {WS_OFF:#x}"); o(f"s_add_u32 s30, s35, {OG}")
    o("buffer_store_dwordx4 v[24:27], v41, s[24:27], s35 offen"); o("buffer_store_dwordx4 v[28:31], v41, s[24:27], s30 offen")
    o("s_branch K1_G")
    lab("K1_LOAD")
    o("s_barrier")
    nb = int(OPT.get('k1b', 24))
    o("s_cmp_eq_u32 s33, 7"); o("s_cbranch_scc1 K1_LX")
    o("s_cmp_eq_u32 s33, 6"); o("s_cselect_b32 s42, s48, s42"); o("s_cselect_b32 s43, s49, s43"); o("s_cselect_b32 s39, 0x8000, 0"); o(f"s_add_u32 s39, s39, {K1_W}")
    srd(52, 42, 32768)
    o("v_lshrrev_b32 v44, 4, v20"); o("v_lshlrev_b32 v44, 6, v44"); o("v_xor_b32 v44, v44, v42")
    for k in range(32):
        if k == nb: o("s_barrier")
        if k % 4 == 0: o(f"s_add_u32 m0, s39, {k*1024}"); o(f"s_movk_i32 s14, {k*1024}")
        o(f"buffer_load_dwordx4 v44, s[52:55], s14 offen offset:{(k%4)*1024} lds")
    lab("K1_LD")
    addrs()
    o("s_waitcnt vmcnt(0)"); o("s_barrier")
    o("s_branch K1_J")
    lab("K1_LX")
    if int(OPT.get('touch', 0)):
        srd(24, 12, WS_SIZE)
        o("s_lshl_b32 s14, s37, 9"); o(f"s_add_u32 s14, s14, {WS_TAB:#x}"); o("v_mov_b32 v248, s14"); o("s_lshl_b32 s14, s3, 1")
        o("v_writelane_b32 v248, s14, 1"); o(f"s_mov_b32 s14, {WS_OFF:#x}"); o("v_writelane_b32 v248, s14, 2")
        o("buffer_load_dword v249, v248, s[24:27], 0 offen")
    srd(60, 4, N, 256)
    o("v_lshl_add_u32 v58, v57, 3, v56"); o("v_add_u32 v53, s37, v58")
    o("v_and_b32 v55, 15, v0"); o("v_lshlrev_b32 v59, 3, v56"); o("v_xor_b32 v55, v55, v59"); o("v_lshlrev_b32 v55, 4, v55")
    o("v_cmp_gt_u32 vcc, 2, v58"); o("v_mov_b32 v59, 0xffff")
    for k in range(25):
        t, i = divmod(k, 8)
        if k == nb: o("s_barrier")
        o(f"s_mov_b32 m0, {K1_X + t*8320 + i*1040}"); o(f"v_add_u32 v54, {32*t + 16*(i >> 2) + 2*(i & 3)}, v53")
        if t == 3: o("v_cndmask_b32 v54, v59, v54, vcc")
        o("buffer_load_dwordx4 v[54:55], s[60:63], 0 idxen offen lds")
    o("s_cmp_ge_u32 s2, 68"); o("s_cbranch_scc1 K1_LD")
    o("s_lshr_b32 s14, s2, 5")
    o("s_cmp_eq_u32 s14, 1"); o("s_cselect_b32 s40, s46, s40"); o("s_cselect_b32 s41, s47, s41"); o(f"s_cselect_b32 s68, 1.0, {NLOG2E:#x}")
    o("s_mov_b32 s66, 32768"); o("s_bfe_u32 s50, s2, 0x20003"); o("s_and_b32 s51, s2, 7"); o("s_mov_b32 s32, 14")
    o("s_cmp_eq_u32 s14, 2"); o("s_cselect_b32 s40, s44, s40"); o("s_cselect_b32 s41, s45, s41"); o("s_cselect_b32 s66, 4096, s66")
    o("s_cselect_b32 s50, s51, s50"); o("s_cselect_b32 s51, 0, s51"); o("s_cselect_b32 s32, 11, s32")
    o("s_mov_b32 s64, s40"); o("s_and_b32 s65, s41, 0xffff"); o("s_mov_b32 s67, 0x20000")
    o("s_lshl_b32 s50, s50, 6"); o("s_lshl_b32 s51, s51, 11"); o("s_add_u32 s50, s50, s51")
    o("v_and_b32 v4, 3, v0"); o("v_bfe_u32 v5, v0, 3, 2"); o("v_lshl_or_b32 v4, v5, 2, v4")
    o("v_bfe_u32 v5, v0, 2, 1"); o("v_lshl_or_b32 v4, v5, 4, v4")
    o("v_lshlrev_b32 v5, s32, v57"); o("v_lshl_add_u32 v4, v4, 1, v5"); o("v_add_u32 v4, s50, v4")
    for j in range(8): o(f"buffer_load_ushort v{8+j}, v4, s[64:67], 0 offen offset:{j*256}")
    o("s_branch K1_LD")
    lab("K1_PREP2")
    o("s_lshl_b32 s14, s2, 10"); o(f"s_add_u32 s14, s14, {WS_WF:#x}")
    for j in range(8):
        o(f"v_lshlrev_b32 v{8+j}, 16, v{8+j}"); o(f"v_mul_f32 v{8+j}, s68, v{8+j}")
    for j in range(4): o(f"v_cvt_pk_bf16_f32 v{52+j}, v{8+2*j}, v{9+2*j}")
    o("buffer_store_dwordx4 v[52:55], v42, s[24:27], s14 offen")
    o("s_branch K1_G")

def regs_of(tok):
    m = re.fullmatch(r"v\[(\d+):(\d+)\]", tok)
    if m: return set(range(int(m.group(1)), int(m.group(2)) + 1))
    m = re.fullmatch(r"v(\d+)", tok)
    return {int(m.group(1))} if m else set()
def check_hazards(ins):
    P = []
    for s in ins:
        if s.endswith(':'): continue
        op, _, rest = s.partition(' ')
        t = [x.strip() for x in rest.split(',')]
        t = [x.split(' ')[0] for x in t]
        if op.startswith('v_mfma'):
            P.append(('m', 12 if '32x32' in op else 8, regs_of(t[0]), regs_of(t[1]) | regs_of(t[2]), regs_of(t[3]), s))
        elif op.startswith('v_'):
            P.append(('t' if op in ('v_exp_f32', 'v_rcp_f32') else 'v', 0, regs_of(t[0]), set().union(*map(regs_of, t[1:])), set(), s))
        elif op.startswith('ds_read'):
            P.append(('d', 0, regs_of(t[0]), regs_of(t[1]), set(), s))
        elif op.startswith('buffer'):
            P.append(('d', 0, set(), regs_of(t[0]), set(), s))
        else: P.append(('s', 0, set(), set(), set(), s))
    n = len(P)
    for i, (k, w, d, ab, c, s) in enumerate(P):
        for j in range(1, 13):
            k2, w2, d2, ab2, c2, s2 = P[(i + j) % n]
            gap = j - 1
            if k == 'm':
                if k2 == 'm':
                    assert not (gap < w and d & ab2), (s, s2)
                    if d & c2 and d != c2: assert gap >= w - 2, (s, s2)
                else: assert not (gap < w and d & (d2 | ab2)), (s, s2, gap)
                if k2 in 'vt': assert not (gap < (7 if w == 12 else 3) and c & d2), (s, s2)
            if k in 'vt' and k2 == 'm': assert not (gap < 2 and d & (ab2 | c2)), (s, s2)
            if k == 't' and k2 == 'v': assert not (gap < 1 and d & ab2), (s, s2)

LOWLIM = 2; NS = 2
LUT = 0; IDT = 4096; NB = IDT + 26 * 80; LIST = NB + 256; MB = LIST + 8192; ROW = 264; CNT = MB + 26 * ROW; ZSZ = 26 * ROW + 256
ER = CNT + 256; RING = ER + 8192; WS_ = 4160; SLOT = 4 * WS_; K2_LDS = RING + (NS + 1) * SLOT
assert K2_LDS <= 81920 and ER % 16 == 0 and LIST % 16 == 0 and MB % 16 == 0 and 4096 < ZSZ <= 8192 and ZSZ % 16 == 0

class RA:
    def __init__(s): s.n = 1
    def get(s, k=1, al=1):
        s.n = (s.n + al - 1) // al * al
        b = s.n; s.n += k; return b
R = RA()
vTA = R.get()
IX = [R.get(2, 2) for _ in range(4)]; IXE = R.get(2, 2); MQ = R.get(2, 2)
(vTC, vEA, vMT, vSA, vMA, vL1, vL2, vSV, vHC, vWF, vXA, vXR, vXI, vXO) = [R.get() for _ in range(14)]
SEG = R.get(4, 4); PT = R.get(4, 4)
GV = R.get(64, 4); ACC = R.get(64, 4)
TF = R.get(16, 4); EF = R.get(4, 4); SF = R.get(8, 4); WC = R.get(4, 4); T0 = R.get(8, 4); AF = R.get(16, 4); SEL = R.get(8, 4)
NVGPR = R.n
assert NVGPR <= 255, NVGPR
REC = GV; RANK = GV + 32; AD = GV + 48
sX, sE, sW, sO, sT = 8, 12, 16, 20, 96
sWAVE, sBASE, sMR, sME, sCNT, sNT, sRS, sLIM, sFIRST, sMORE, sDS, sT0, sT1, sEPS, s80, sMET = range(24, 40)
sHM, sSV, sWF, sS0 = 42, 44, 52, 54
sK = 56

def ldt(i): return f"buffer_load_dwordx4 {vr(IX[i],2)}, s[{sT}:{sT+3}], 0 idxen offen lds"
def lde(): return f"buffer_load_dwordx4 {vr(IXE,2)}, s[{sE}:{sE+3}], 0 idxen offen lds"
def loff(u): return (u & 1) * 4096 + (u >> 1) * 256
def nextslot(r): return [f"s_add_u32 s{r}, s{r}, {SLOT}", f"s_cmp_eq_u32 s{r}, {NS*SLOT}", f"s_cselect_b32 s{r}, 0, s{r}"]

def vstream(Gc, Vc):
    A = []
    for p in range(0, 22, 2):
        if p < 16: A += [(f"v_exp_f32 v{Gc+p}, v{Gc+p}", 8), (f"v_exp_f32 v{Gc+p+1}, v{Gc+p+1}", 8)]
        q = p - 2
        if 0 <= q < 16:
            A += [(f"v_add_f32 v{Gc+q}, 1.0, v{Gc+q}", 4), (f"v_add_f32 v{Gc+q+1}, 1.0, v{Gc+q+1}", 4),
                  (f"v_rcp_f32 v{Gc+q}, v{Gc+q}", 8), (f"v_rcp_f32 v{Gc+q+1}, v{Gc+q+1}", 8)]
        q = p - 4
        if 0 <= q < 16: A += [(f"v_mul_f32 v{Vc+q}, v{Gc+q}, v{Vc+q}", 4), (f"v_mul_f32 v{Vc+q+1}, v{Gc+q+1}, v{Vc+q+1}", 4)]
        q = p - 6
        if 0 <= q < 16: A += [(f"v_cvt_pk_bf16_f32 v{Gc+q//2}, v{Gc+q}, v{Gc+q+1}", 4), (f"v_cvt_pk_bf16_f32 v{Vc+q//2}, v{Vc+q}, v{Vc+q+1}", 4)]
    return A
def zphase(P, p):
    d = ACC + 32 * p
    return [m32(d, P, T0, d), m32(d+16, P+16, T0, d+16), m32(d, P+4, T0+4, d), m32(d+16, P+20, T0+4, d+16)]

HEAD = {}
def body(b, peel=False):
    p = b % 2
    Gn = GV + 32 * p; Vn = Gn + 16; Gc = GV + 32 * (1 - p); Vc = Gc + 16; af = AF + 8 * p
    ne = sum(1 for k in range(NS - 1) if (b - k) % 4 == 0) + (1 if (b - (NS - 1)) % 4 == 0 else 0)
    vmw = 4 * (NS - 1) + ne
    z = zphase(Gn, p)
    def dma(i): return [f"s_add_u32 m0, s{sDS}, {i*1040}", None, ldt(i), f"ds_read_u16 v{IX[i]}, v{vL1} offset:{loff(b+NS+1)+64*i}"]
    top = ["s_waitcnt vmcnt(8) lgkmcnt(0)", "s_barrier"] if b == 3 else ["s_waitcnt lgkmcnt(0)"]
    seq = []
    seq.append([z[0], [f"s_add_u32 s{sDS}, s{sMR}, s{sRS}"] + dma(0), [f"v_mad_u32_u24 v{vSV}, v{vSV}, s{s80}, v{vHC}"]])
    seq.append([z[1], [f"ds_read_b128 {vr(SF,4)}, v{vSV}", f"ds_read_b128 {vr(SF+4,4)}, v{vSV} offset:32"] + dma(1), []])
    seq.append([z[2], dma(2) + [f"ds_read_u8 v{vSV}, v{vSA} offset:{loff(b+1)}"], []])
    seq.append([z[3], dma(3) + ([f"s_sub_u32 s{sCNT}, s{sCNT}, 1", "s_cbranch_scc1 TAIL"] if p == 0 else []) + [f"ENT{b}:"], []])
    e1 = [f"s_mov_b32 m0, s{sME}", None, lde(), f"s_xor_b32 s{sME}, s{sME}, s{sMET}"] if b == 0 else []
    seq.append([m32(Gn, TF, SEL, None), [f"ds_read_b128 {vr(T0,4)}, v{MQ}"] + e1, [f"v_and_b32 v{IXE}, 0x7ffff, v{IXE}"] if b == 0 else []])
    seq.append([m32(Gn, TF+4, SEL+4, Gn), [f"ds_read_b128 {vr(T0+4,4)}, v{MQ+1}"] + nextslot(sRS), [f"v_xor_b32 v{vEA}, v{vEA}, v{vMT}"] if b == 3 else []])
    seq.append([m32(Gn, EF, WC, Gn), [f"ds_read_b128 {vr(EF,4)}, v{vEA} offset:{(b+1)%4*1024}", f"ds_read_u16 v{MQ}, v{vMA} offset:{b*8}",
                f"ds_read_u16 v{MQ+1}, v{vMA} offset:{b*8+2}"], [f"v_add_u32 v{vTC}, s{sRS}, v{vTA}"]])
    seq.append([m32(Vn, TF+8, SEL, None), [f"ds_read_b32 v{IXE}, v{vL2}"] if b == 3 else [], []])
    seq.append([m32(Vn, TF+12, SEL+4, Vn), [None, f"s_waitcnt lgkmcnt({10 if b == 3 else 9})"], []])
    seq.append([m32(Gn, SF, af, Gn), [None, f"s_waitcnt vmcnt({vmw})"],
                [f"v_add_u32 v{r}, 0x200, v{r}" for r in (vSA, vL1, vL2)] + [f"v_add_u32 v{vMA}, 32, v{vMA}"] if b == 3 else []])
    seq.append([m32(Gn, SF+4, af+4, Gn), [f"ds_read_b128 {vr(TF+4*j,4)}, v{vTC} offset:{16*j}" for j in range(4)], []])
    A = [] if peel else vstream(Gc, Vc)
    wt = [float(x) for x in OPT.get('wt', '1,1,1,1,1,1,1,1,1,1,1.6').split(',')]
    tot = sum(c for _, c in A); out = list(top); ai = 0; acc = 0; budget = 0
    for i, (m, ex, xv) in enumerate(seq):
        budget += tot * wt[i] / sum(wt)
        g = []
        while ai < len(A) and acc + A[ai][1] / 2 <= budget + 0.01:
            g.append(A[ai][0]); acc += A[ai][1]; ai += 1
        if i == 3 and not peel: HEAD[b] = ai
        if not (peel and i < 4): out.append(m)
        g = xv + g
        last = [x for x in ex if x and (x.startswith("s_waitcnt") or x.startswith("s_cbranch") or x.endswith(":") or x.startswith("s_sub"))]
        ex = [x for x in ex if x not in last]
        if peel: last = [x for x in last if x.startswith("s_waitcnt")]
        first = True
        for x in ex:
            if x is None:
                continue
            if not first and g: out.append(g.pop(0))
            elif not first and peel and x.startswith("buffer"): out.append("s_nop 0")
            out.append(x); first = False
        out += g + last
    assert ai == len(A)
    if OPT.get('nodma'): out = [x for x in out if 'buffer_load' not in x]
    if OPT.get('noe'): out = [x for x in out if f"s[{sE}:{sE+3}]" not in x]
    return out

def emit(lst):
    for it in lst:
        if it.endswith(':'): lab(it[:-1])
        else: o(it)

def masks(tmp):
    a, b_, c = tmp
    o(f"v_and_b32 v{a}, 3, v0"); o(f"v_lshlrev_b32 v{a}, 1, v{a}"); o(f"v_mov_b32 v{c}, 0")
    for i in range(4):
        o(f"v_lshrrev_b32 v{b_}, 19, v{SEG+i}"); o(f"v_max_u32 v{c}, v{c}, v{b_}")
        o(f"v_min_u32 v{b_}, s{sLIM}, v{b_}"); o(f"v_sub_u32 v{b_}, v{b_}, v{a}")
        for j, k in ((0, 2*i), (1, 2*i+1), (8, 8+2*i), (9, 9+2*i)): o(f"v_cmp_lt_i32 s[{sK+2*k}:{sK+2*k+1}], {j}, v{b_}")
    o(f"v_cmp_lt_u32 vcc, s{sLIM}, v{c}")
    o(f"s_or_b64 s[{sSV}:{sSV+1}], s[{sK+16}:{sK+17}], s[{sK+20}:{sK+21}]"); o(f"s_or_b64 s[{sHM}:{sHM+1}], s[{sK+24}:{sK+25}], s[{sK+28}:{sK+29}]")
    o(f"s_or_b64 s[{sSV}:{sSV+1}], s[{sSV}:{sSV+1}], s[{sHM}:{sHM+1}]")
    o(f"v_mov_b32 v{b_}, {CNT-4}")
    o("s_mov_b64 exec, vcc"); o(f"ds_write_b32 v{b_}, v{b_}"); o("s_mov_b64 exec, -1")

def interleave(mf, other, per):
    other = list(other)
    for m in mf:
        o(m)
        for _ in range(per):
            if other: o(other.pop(0))
    for x in other: o(x)
def capture(fn):
    n = len(L); fn(); r = [x.strip() for x in L[n:]]; del L[n:]; return r
def wload(dst, off):
    r = []
    for s in range(8):
        if s % 4 == 0: r.append(f"s_add_u32 s{sT0}, s{sWF}, {off + s*1024:#x}")
        r.append(f"buffer_load_dwordx4 {vr(dst+4*s,4)}, v{vWF}, s[{sW}:{sW+3}], s{sT0} offen offset:{(s%4)*1024}")
    return r
def xblk(base, pair):
    o(f"v_mov_b32 v{pair+1}, v{vXO}")
    for mt in range(2):
        for a in range(2):
            o(f"s_add_u32 m0, s{base}, {(2*mt+a)*1040}")
            o(f"v_cmp_gt_u32 vcc, {(NA if mt == 0 else RN-NA) - 2*a}, v{vXI}")
            o(f"s_add_u32 s{sT0}, s{sBASE}, {NA*mt + 2*a}"); o(f"v_add_u32 v{pair}, s{sT0}, v{vXI}")
            o(f"v_cndmask_b32 v{pair}, v{PT+3}, v{pair}, vcc")
            o(f"buffer_load_dwordx4 {vr(pair,2)}, s[{sX}:{sX+3}], 0 idxen offen lds")

def gen_k2():
    L.append(".globl gmain_kernel"); L.append(".p2align 8"); L.append(".type gmain_kernel,@function")
    lab("gmain_kernel"); VST[0] = 255
    t = [TF + i for i in range(28)]
    stamp(0)
    o("s_load_dwordx2 s[50:51], s[0:1], 88")
    o("s_load_dwordx4 s[4:7], s[0:1], 0")
    o("s_load_dwordx2 s[48:49], s[0:1], 72")
    o("s_setprio 3")
    o(f"v_lshrrev_b32 v{t[0]}, 6, v0")
    o("s_and_b32 s3, s2, 7"); o("s_lshl_b32 s3, s3, 6"); o(f"s_bfe_u32 s{sT0}, s2, 0x50003"); o(f"s_lshl1_add_u32 s3, s{sT0}, s3")
    o(f"v_readfirstlane_b32 s{sWAVE}, v{t[0]}")
    o(f"s_lshr_b32 s{sT0}, s2, 8"); o(f"s_add_u32 s3, s3, s{sT0}")
    o("s_cmp_ge_u32 s2, 512"); o("s_cbranch_scc1 K2_END")
    o(f"s_cmp_ge_u32 s3, {NR}"); o("s_cbranch_scc1 K2_END")
    o(f"v_lshrrev_b32 v{t[1]}, 2, v0")
    o(f"s_lshr_b32 s{sS0}, s3, 2"); o(f"s_mul_i32 s{sS0}, s{sS0}, {OG}"); o(f"s_and_b32 s{sT0}, s3, 3"); o(f"s_lshl2_add_u32 s{sS0}, s{sT0}, s{sS0}"); o(f"s_add_u32 s{sS0}, s{sS0}, {WS_OFF:#x}")
    o(f"v_lshlrev_b32 v{t[1]}, 6, v{t[1]}")
    o(f"s_mul_i32 s{sBASE}, s3, {RN}")
    o(f"v_and_b32 v{vWF}, 63, v0"); o(f"v_lshlrev_b32 v{vWF}, 4, v{vWF}")
    o(f"s_mul_i32 s{sMR}, s{sWAVE}, {WS_}"); o(f"s_add_u32 s{sMR}, s{sMR}, {RING}")
    o(f"s_lshl_b32 s{sWF}, s{sWAVE}, 13"); o(f"s_add_u32 s{sWF}, s{sWF}, {WS_WF:#x}")
    o(f"s_mov_b32 s{sEPS}, {EPS:#x}"); o(f"s_movk_i32 s{s80}, 80")
    o(f"s_mov_b32 s{sFIRST}, 1"); o(f"s_mov_b32 s{sLIM}, 16")
    o("s_waitcnt lgkmcnt(0)"); xstamp("karg")
    srd(sW, 50, WS_SIZE)
    for i in range(4): o(f"buffer_load_dword v{SEG+i}, v{t[1]}, s[{sW}:{sW+3}], s{sS0} offen offset:{16*i}")
    srd(sX, 4, N, 256); srd(sE, 6, E, 32); srd(sO, 48, N, 256)
    o(f"s_add_u32 s50, s50, {WS_TAB:#x}"); o("s_addc_u32 s51, s51, 0"); srd(sT, 50, N, 512)
    lab("ROUND")
    b0, b2, b3, b4, vh = t[16:21]
    o(f"v_lshlrev_b32 v{t[11]}, 4, v0")
    for d in range(4): o(f"v_mov_b32 v{t[0]+d}, 0")
    for off in (0, ZSZ - 4096): o(f"ds_write_b128 v{t[11]}, {vr(t[0],4)} offset:{MB+off}")
    pad0 = 0xffff | (NA << 16)
    o(f"v_mov_b32 v{t[4]}, {pad0:#x}"); o(f"v_mov_b32 v{t[5]}, 0x7ffff"); o(f"v_mov_b32 v{t[6]}, {pad0:#x}"); o(f"v_mov_b32 v{t[7]}, 0x7ffff")
    o(f"ds_write_b128 v{t[11]}, {vr(t[4],4)} offset:{LIST}"); o(f"ds_write_b128 v{t[11]}, {vr(t[4],4)} offset:{LIST+4096}")
    o(f"v_and_b32 v{b0}, 1, v0"); o(f"v_bfe_u32 v{b2}, v0, 2, 1"); o(f"v_bfe_u32 v{b3}, v0, 3, 1"); o(f"v_bfe_u32 v{b4}, v0, 4, 1"); o(f"v_bfe_u32 v{vh}, v0, 5, 1")
    o(f"v_and_b32 v{t[8]}, 3, v0"); o(f"v_lshlrev_b32 v{t[8]}, 1, v{t[8]}")
    o(f"v_mov_b32 v{t[9]}, 0x7ffffff0"); o(f"s_mov_b32 s{sT1}, 0x7ffff")
    o(f"v_and_b32 v{t[12]}, 15, v0"); o(f"v_lshlrev_b32 v{t[13]}, 3, v{b4}")
    o(f"v_xor_b32 v{vXO}, v{t[12]}, v{t[13]}"); o(f"v_lshlrev_b32 v{vXO}, 4, v{vXO}")
    o(f"s_lshr_b32 s{sT0}, s{sWAVE}, 1"); o(f"s_lshl_b32 s{sT0}, s{sT0}, 4"); o(f"s_and_b32 s{sS0}, s{sWAVE}, 1"); o(f"s_lshl2_add_u32 s{sT0}, s{sS0}, s{sT0}")
    o(f"v_lshl_add_u32 v{vXI}, v{vh}, 3, v{b4}"); o(f"v_add_u32 v{vXI}, s{sT0}, v{vXI}")
    o(f"v_mov_b32 v{PT+3}, 0xffff")
    xstamp("consts_done")
    o("s_waitcnt vmcnt(0)"); stamp(1)
    for i in range(4):
        o(f"v_lshrrev_b32 v{t[4+i]}, 19, v{SEG+i}"); o(f"v_cmp_lt_u32 vcc, v{t[8]}, v{t[4+i]}")
        o(f"v_and_b32 v{t[i]}, s{sT1}, v{SEG+i}"); o(f"v_add_lshl_u32 v{t[i]}, v{t[i]}, v{t[8]}, 3")
        o(f"v_cndmask_b32 v{t[10]}, v{t[9]}, v{t[i]}, vcc")
        o(f"buffer_load_dwordx4 {vr(REC+4*i,4)}, v{t[10]}, s[{sW}:{sW+3}], 0 offen")
    o(f"v_max3_u32 v{t[10]}, v{t[4]}, v{t[5]}, v{t[6]}"); o(f"v_max_u32 v{t[10]}, v{t[10]}, v{t[7]}")
    o(f"v_cmp_lt_u32 vcc, 8, v{t[10]}"); o("s_cbranch_vccz REC_DONE")
    for i in range(4): o(f"buffer_load_dwordx4 {vr(REC+16+4*i,4)}, v{t[i]}, s[{sW}:{sW+3}], 0 offen offset:64")
    lab("REC_DONE")
    xstamp("rec_issued")
    PF = int(OPT.get('pf', 0))
    def pref():
        o(f"s_lshr_b32 s{sT0}, s3, 6"); o(f"s_mul_i32 s{sT0}, s{sT0}, {64*RN}"); o(f"s_and_b32 s{sT1}, s3, 63"); o(f"s_lshl_b32 s{sT1}, s{sT1}, 6"); o(f"s_add_u32 s{sT0}, s{sT0}, s{sT1}")
        o(f"v_lshrrev_b32 v{T0+2}, 2, v0"); o(f"v_add_u32 v{T0+2}, s{sT0}, v{T0+2}"); o(f"v_and_b32 v{T0+1}, 3, v0"); o(f"v_lshlrev_b32 v{T0+1}, 7, v{T0+1}")
        for k in range(PF):
            o(f"v_add_u32 v{T0+3}, {-512*RN}, v{T0+2}"); o(f"v_min_u32 v{T0}, v{T0+2}, v{T0+3}")
            o(f"buffer_load_dword v{SEL}, {vr(T0,2)}, s[{sT}:{sT+3}], 0 idxen offen")
            if k + 1 < PF: o(f"v_add_u32 v{T0+2}, 4096, v{T0+2}")
    PFW = OPT.get('pfw', 'rec')
    if PF and PFW == 'rec': pref()
    o("s_waitcnt lgkmcnt(0)"); o("s_barrier"); stamp(2)
    pp = t[14]
    o(f"v_and_b32 v{pp}, 0x13, v0"); o(f"v_lshl_or_b32 v{pp}, v{b2}, 3, v{pp}"); o(f"v_lshl_or_b32 v{pp}, v{b3}, 2, v{pp}")
    o(f"v_lshrrev_b32 v{t[12]}, 3, v{pp}"); o(f"v_lshlrev_b32 v{vTA}, 7, v{pp}"); o(f"v_lshl_add_u32 v{vTA}, v{t[12]}, 4, v{vTA}")
    o(f"v_bfe_u32 v{t[13]}, v0, 1, 1"); o(f"v_xor_b32 v{t[12]}, v{t[13]}, v{vh}"); o(f"v_lshl_add_u32 v{vTA}, v{t[12]}, 6, v{vTA}"); o(f"v_add_u32 v{vTA}, s{sMR}, v{vTA}")
    o(f"v_and_b32 v{t[12]}, 7, v0"); o(f"v_lshlrev_b32 v{t[15]}, 2, v{b4}"); o(f"v_xor_b32 v{t[15]}, v{t[15]}, v{t[12]}")
    o(f"s_lshl_b32 s{sT0}, s{sWAVE}, 7"); o(f"v_lshl_add_u32 v{IX[0]+1}, v{t[15]}, 4, s{sT0}")
    for i in range(1, 4): o(f"v_mov_b32 v{IX[i]+1}, v{IX[0]+1}")
    o(f"v_and_b32 v{vL1}, 0x38, v0"); o(f"v_add_u32 v{vL1}, {LIST}, v{vL1}")
    o(f"v_lshl_or_b32 v{t[15]}, v{b4}, 1, v{b2}"); o(f"v_mul_u32_u24 v{t[15]}, {WS_}, v{t[15]}"); o(f"v_mul_u32_u24 v{t[13]}, 1040, v{t[13]}")
    o(f"v_lshl_or_b32 v{t[21]}, v{b3}, 1, v{b0}"); o(f"v_lshl_add_u32 v{t[15]}, v{t[21]}, 8, v{t[15]}"); o(f"v_add3_u32 v{t[15]}, v{t[15]}, v{t[13]}, 0")
    o(f"v_add_u32 v{t[15]}, {RING + NS*SLOT}, v{t[15]}")
    o(f"v_xor_b32 v{t[13]}, v{vh}, v{b0}"); o(f"v_lshl_add_u32 v{vXA}, v{t[13]}, 7, v{t[15]}")
    o(f"v_lshlrev_b32 v{IXE+1}, 4, v{t[13]}")
    o(f"v_bfe_u32 v{t[13]}, v0, 7, 1"); o(f"v_xor_b32 v{t[13]}, v{t[13]}, v{b0}"); o(f"v_lshl_add_u32 v{vXR}, v{t[13]}, 7, v{t[15]}")
    o(f"v_and_b32 v{t[13]}, 0x60, v0"); o(f"v_add_u32 v{vXR}, v{vXR}, v{t[13]}")
    o(f"s_lshl_b32 s{sT0}, s{sS0}, 12"); o(f"s_lshr_b32 s{sT1}, s{sWAVE}, 1"); o(f"s_lshl_b32 s{sT1}, s{sT1}, 8"); o(f"s_add_u32 s{sT0}, s{sT0}, s{sT1}"); o(f"s_add_u32 s{sT0}, s{sT0}, {LIST+4}")
    o(f"v_bfe_u32 v{vL2}, v0, 1, 5"); o(f"v_lshl_add_u32 v{vL2}, v{vL2}, 3, s{sT0}")
    o(f"s_lshl_b32 s{sME}, s{sWAVE}, 10"); o(f"s_add_u32 s{sME}, s{sME}, {ER}")
    o(f"v_lshlrev_b32 v{vSA}, 3, v{pp}"); o(f"v_add_u32 v{vSA}, {LIST+2}, v{vSA}")
    o(f"v_lshlrev_b32 v{vHC}, 4, v{vh}"); o(f"v_add_u32 v{vHC}, {IDT}, v{vHC}")
    o(f"v_xor_b32 v{vEA}, v{b4}, v{vh}"); o(f"v_lshlrev_b32 v{vEA}, 4, v{vEA}")
    o(f"v_lshl_add_u32 v{vEA}, v{pp}, 5, v{vEA}"); o(f"v_add_u32 v{vEA}, {ER}, v{vEA}")
    o(f"v_add_u32 v{vMT}, 4096, v{vEA}"); o(f"v_xor_b32 v{vMT}, v{vMT}, v{vEA}")
    o(f"v_and_b32 v{t[13]}, 31, v0"); o(f"v_min_u32 v{t[13]}, {NA}, v{t[13]}")
    o(f"v_mul_u32_u24 v{vMA}, {ROW}, v{t[13]}"); o(f"v_lshl_add_u32 v{vMA}, v{vh}, 2, v{vMA}"); o(f"v_add_u32 v{vMA}, {MB}, v{vMA}")
    o(f"v_lshrrev_b32 v{PT+2}, 5, v0"); o(f"v_lshlrev_b32 v{PT+2}, 4, v{PT+2}"); o(f"v_lshl_add_u32 v{PT+2}, v{b3}, 2, v{PT+2}")
    o(f"v_lshl_add_u32 v{t[12]}, v{b4}, 4, v{t[12]}"); o(f"v_lshlrev_b32 v{PT+1}, v{t[12]}, 16")
    o(f"v_and_b32 v{t[12]}, 3, v0"); o(f"v_lshl_add_u32 v{t[12]}, v{b4}, 2, v{t[12]}"); o(f"v_lshlrev_b32 v{t[12]}, v{t[12]}, 16")
    o(f"v_cmp_eq_u32 vcc, v{b3}, v{vh}"); o(f"v_lshlrev_b32 v{t[13]}, 4, v{b2}"); o("s_nop 0")
    o(f"v_cndmask_b32 v{t[12]}, 0, v{t[12]}, vcc"); o(f"v_lshlrev_b32 v{PT}, v{t[13]}, v{t[12]}")
    lab("REMASK")
    masks((t[0], t[1], t[2])); xstamp("masks_done")
    a, b_, c, d_ = t[0:4]; ad = [AD + k for k in range(16)]
    o(f"v_mov_b32 v{a}, 8")
    o(f"v_lshrrev_b32 v{b_}, 2, v{vWF}")
    if PF and PFW == 'mask': pref()
    o(f"s_waitcnt vmcnt({PF if PFW in ('rec', 'mask') else 0})"); xstamp("rec_landed")
    for half in range(2):
        if half: o(f"s_cmp_eq_u64 s[{sSV}:{sSV+1}], 0"); o("s_cbranch_scc1 P1_DONE"); o("s_mov_b64 exec, -1")
        for k in range(8*half, 8*half+8): o(f"v_lshrrev_b32 v{ad[k]}, 24, v{REC+2*k+1}")
        for k in range(8*half, 8*half+8):
            o(f"s_mov_b64 exec, s[{sK+2*k}:{sK+2*k+1}]")
            o(f"ds_add_rtn_u32 v{RANK+k}, v{ad[k]}, v{a} offset:{CNT}")
    lab("P1_DONE")
    o("s_mov_b64 exec, -1")
    o(f"s_cmp_eq_u32 s{sFIRST}, 0"); o("s_cbranch_scc1 NOW")
    o(f"s_add_u32 s{sDS}, s{sMR}, {NS*SLOT}")
    xblk(sDS, t[4])
    for x in wload(ACC, WF_A): o(x)
    o(f"s_lshl_b32 s{sT0}, s{sWAVE}, 10"); o(f"s_add_u32 s{sT0}, s{sT0}, {WS_WF+WF_C:#x}")
    o(f"buffer_load_dwordx4 {vr(WC,4)}, v{vWF}, s[{sW}:{sW+3}], s{sT0} offen")
    lab("NOW")
    if PF and PFW == 'p1': pref()
    o("s_waitcnt lgkmcnt(0)"); xstamp("p1_done"); o("s_barrier"); xstamp("b1")
    o(f"ds_read_b32 v{c}, v{b_} offset:{CNT}")
    o(f"ds_read_b32 v{t[4]}, v{b_} offset:{CNT-4}")
    o(f"v_lshlrev_b32 v{t[5]}, 12, v{vh}")
    o("s_waitcnt lgkmcnt(1)")
    o(f"v_sub_u32 v{d_}, v{t[5]}, v{c}")
    for dd in ("row_shr:1", "row_shr:2", "row_shr:4", "row_shr:8"):
        o(f"v_add_u32_dpp v{c}, v{c}, v{c} {dd} row_mask:0xf bank_mask:0xf bound_ctrl:0"); o("s_nop 1")
    o(f"v_add_u32_dpp v{c}, v{c}, v{c} row_bcast:15 row_mask:0xa bank_mask:0xf")
    o(f"v_add_u32 v{d_}, v{c}, v{d_}")
    o(f"ds_write_b32 v{b_}, v{d_} offset:{NB}")
    o(f"v_readlane_b32 s{sNT}, v{c}, 31"); o(f"v_readlane_b32 s{sT0}, v{c}, 63")
    for k in range(8): o(f"ds_read_b32 v{ad[k]}, v{ad[k]} offset:{NB}")
    o(f"s_max_u32 s{sNT}, s{sNT}, s{sT0}")
    o(f"s_cmp_le_u32 s{sNT}, 4096"); o("s_cbranch_scc0 TOOBIG")
    xstamp("scan_done")
    for half in range(2):
        if half:
            o(f"s_cmp_eq_u64 s[{sSV}:{sSV+1}], 0"); o("s_cbranch_scc1 P2_DONE"); o("s_mov_b64 exec, -1")
            for k in range(8, 16): o(f"ds_read_b32 v{ad[k]}, v{ad[k]} offset:{NB}")
        for k in range(8*half, 8*half+8):
            if k % 4 == 0: o(f"s_waitcnt lgkmcnt({4 - k % 8})")
            o(f"v_add_u32 v{RANK+k}, v{RANK+k}, v{ad[k]}")
        for k in range(8*half, 8*half+8):
            o(f"s_mov_b64 exec, s[{sK+2*k}:{sK+2*k+1}]")
            o(f"ds_write_b64 v{RANK+k}, {vr(REC+2*k,2)} offset:{LIST}")
    lab("P2_DONE")
    o("s_mov_b64 exec, -1")
    o(f"v_readlane_b32 s{sMORE}, v{t[4]}, 0")
    o(f"s_mov_b32 m0, s{sME}")
    o(f"s_waitcnt vmcnt({9 + (PF if PFW == 'p1' else 0)}) lgkmcnt(0)"); xstamp("p2_done"); o("s_barrier"); stamp(5)
    f = t
    def rdidx(u):
        for i in range(4): o(f"ds_read_u16 v{IX[i]}, v{vL1} offset:{loff(u)+64*i}")
    def fill(u, nxt):
        for i in range(4):
            o(f"s_add_u32 m0, s{sMR}, {u*SLOT + i*1040}"); o(f"s_waitcnt lgkmcnt(3)"); o(ldt(i))
            o(f"ds_read_u16 v{IX[i]}, v{vL1} offset:{loff(nxt)+64*i}")
    o(f"ds_read_b32 v{IXE}, v{vL2}"); rdidx(0)
    o(f"v_lshlrev_b32 v{f[9]}, 3, v0")
    o("s_waitcnt lgkmcnt(4)")
    o(f"v_and_b32 v{IXE}, 0x7ffff, v{IXE}"); o(lde())
    for u in range(NS): fill(u, u + 1)
    for k in range(4): o(f"ds_read_u8 v{f[12+k]}, v{f[9]} offset:{LIST+2+k*2048}")
    o(f"ds_read_b32 v{IXE}, v{vL2} offset:512"); o(f"ds_read_u8 v{vSV}, v{vSA}")
    xstamp("fill_issued")
    def ctrl():
        o(f"s_movk_i32 s{sS0}, {ROW}")
        for k in range(4):
            o(f"v_cmp_gt_u32 vcc, {NA}, v{f[12+k]}"); o(f"v_mad_u32_u24 v{f[0]}, v{f[12+k]}, s{sS0}, v{PT+2}"); o("s_nop 0")
            o(f"v_cndmask_b32 v{f[1]}, 0, v{PT+1}, vcc")
            o(f"ds_or_b32 v{f[0]}, v{f[1]} offset:{MB + (k&1)*128 + (k>>1)*8}")
        o(f"s_add_u32 s{sCNT}, s{sNT}, 255"); o(f"s_lshr_b32 s{sCNT}, s{sCNT}, 8"); o(f"s_max_u32 s{sCNT}, s{sCNT}, 1"); o(f"s_lshl_b32 s{sNT}, s{sCNT}, 1"); o(f"s_sub_u32 s{sCNT}, s{sCNT}, 1")
        o(f"s_add_u32 s{sMET}, s{sME}, 4096"); o(f"s_xor_b32 s{sMET}, s{sMET}, s{sME}"); o(f"s_add_u32 s{sME}, s{sME}, 4096")
        o(f"v_add_u32 v{vL2}, 0x400, v{vL2}")
        o(f"s_mov_b32 s{sRS}, 0")
    def lut():
        q = T0
        for d in range(4):
            o(f"v_bfe_u32 v{q+d}, v0, {2*d}, 2"); o(f"v_mul_u32_u24 v{q+d}, 0x8001, v{q+d}")
            o(f"v_and_b32 v{q+d}, 0x10001, v{q+d}"); o(f"v_mul_u32_u24 v{q+d}, 0x3f80, v{q+d}")
        o(f"v_lshlrev_b32 v{q+4}, 4, v0"); o(f"ds_write_b128 v{q+4}, {vr(q,4)} offset:{LUT}")
        o(f"v_lshrrev_b32 v{q}, 3, v0"); o(f"v_and_b32 v{q+1}, 7, v0")
        o(f"v_bfe_u32 v{q+2}, v0, 5, 1"); o(f"v_bfe_u32 v{q+3}, v0, 6, 1"); o(f"v_lshl_or_b32 v{q+2}, v{q+2}, 1, v{q+3}")
        o(f"v_lshrrev_b32 v{q+3}, 7, v0"); o(f"v_lshl_or_b32 v{q+2}, v{q+3}, 2, v{q+2}")
        o(f"v_cmp_eq_u32 vcc, v{q+2}, v{q+1}"); o(f"v_cmp_gt_u32 s[{sHM}:{sHM+1}], {NA}, v{q}"); o(f"v_mov_b32 v{q+6}, 0x3f80"); o(f"v_mov_b32 v{q+7}, 0")
        o(f"s_and_b64 vcc, vcc, s[{sHM}:{sHM+1}]")
        o(f"v_and_b32 v{q+2}, 3, v{q}"); o(f"v_lshlrev_b32 v{q+2}, 4, v{q+2}"); o(f"v_cndmask_b32 v{q+6}, 0, v{q+6}, vcc")
        o(f"v_lshlrev_b64 {vr(q+6,2)}, v{q+2}, {vr(q+6,2)}")
        o(f"v_min_u32 v{q}, {NA}, v{q}"); o(f"v_mul_u32_u24 v{q}, 80, v{q}"); o(f"v_lshl_add_u32 v{q}, v{q+1}, 3, v{q}")
        o(f"ds_write_b64 v{q}, {vr(q+6,2)} offset:{IDT}")
    o(f"s_cmp_eq_u32 s{sFIRST}, 1"); o("s_cbranch_scc1 G1")
    o("s_waitcnt lgkmcnt(0)")
    ctrl()
    o("s_branch G1D")
    lab("G1")
    for mt in range(2):
        for s in range(8): o(f"ds_read_b128 {vr(GV+32*mt+4*s,4)}, v{vXA} offset:{mt*2080 + 16*s}")
        if mt == 0: o("s_waitcnt lgkmcnt(8)")
    lt = capture(lut); ct = capture(ctrl)
    for x in lt[:18]: o(x)
    o(f"s_waitcnt vmcnt({4*NS+2}) lgkmcnt(9)")
    acc = [ACC + 32, ACC + 48]
    interleave([m32(acc[0], GV+4*s, ACC+4*s, None if s == 0 else acc[0]) for s in range(8)], lt[18:] + ct[:16], 5)
    o("s_waitcnt lgkmcnt(5)")
    def cv(mt): return [f"v_cvt_pk_bf16_f32 v{AF+8*mt+r//2}, v{acc[mt]+r}, v{acc[mt]+r+1}" for r in range(0, 16, 2)]
    interleave([m32(acc[1], GV+32+4*s, ACC+4*s, None if s == 0 else acc[1]) for s in range(8)],
               ct[16:] + cv(0) + [f"v_mov_b32 v{acc[0]+r}, 0" for r in range(16)], 5)
    for r in range(32): o(f"v_mov_b32 v{ACC+r}, 0")
    for x in cv(1): o(x)
    for r in range(16): o(f"v_mov_b32 v{acc[1]+r}, 0")
    if STAMP:
        o("s_getreg_b32 s94, hwreg(HW_REG_HW_ID)"); o("s_getreg_b32 s100, hwreg(HW_REG_XCC_ID)"); o("s_and_b32 s94, s94, 0xffff"); o("s_lshl_b32 s100, s100, 16"); o("s_or_b32 s94, s94, s100"); o(f"v_writelane_b32 v{VST[0]}, s94, 3")
    lab("G1D")
    o(f"v_and_b32 v{MQ}, 0xffff, v{PT}"); o(f"v_lshrrev_b32 v{MQ+1}, 16, v{PT}")
    xstamp("g1_done"); stamp(4)
    o(f"s_waitcnt vmcnt({4*(NS-1)}) lgkmcnt(0)"); xstamp("t0_landed"); o("s_barrier")
    o(f"ds_read_b128 {vr(SEL,4)}, v{MQ}"); o(f"ds_read_b128 {vr(SEL+4,4)}, v{MQ+1}")
    o(f"ds_read_b128 {vr(EF,4)}, v{vEA}")
    for j in range(4): o(f"ds_read_b128 {vr(TF+4*j,4)}, v{vTA} offset:{16*j}")
    o(f"s_setprio {OPT.get('lp', 2)}")
    if OPT.get('young'):
        o("s_cmp_lt_u32 s2, 256"); o("s_cbranch_scc1 OLD"); o(f"s_setprio {OPT['young']}"); lab("OLD")
    stamp(6); stamp(8, "s_memtime")
    bodies = [body(b) for b in range(4)]
    check_hazards(sum(bodies, []) + ["s_branch LOOP"])
    emit(body(0, peel=True))
    b1 = bodies[1][:bodies[1].index("ENT1:")]
    o("s_nop 7")
    emit([x for x in b1 if not x.startswith("v_mfma")])
    o("s_branch ENT1")
    lab("TOOBIG")
    o(f"s_mov_b32 s{sLIM}, {LOWLIM}"); o(f"v_mov_b32 v{a}, 0")
    o("s_waitcnt lgkmcnt(0)"); o("s_barrier")
    o(f"ds_write_b32 v{b_}, v{a} offset:{CNT}")
    o("s_waitcnt lgkmcnt(0)"); o("s_barrier")
    o("s_branch REMASK")
    lab("LOOP")
    emit(sum(bodies, []))
    if OPT.get('pp', '99,8,4') != '0':
        th = [int(x) for x in OPT.get('pp', '99,8,4').split(',')]
        for k, v in enumerate(th):
            o(f"s_cmp_lt_u32 s{sCNT}, {v}"); o("s_cbranch_scc0 LOOP"); o(f"s_setprio {2-k}")
    o("s_branch LOOP")
    assert HEAD[0] == HEAD[2]
    lab("TAIL")
    stamp(7); stamp(11, "s_memtime")
    if STAMP: o(f"v_writelane_b32 v{VST[0]}, s{sNT}, 12")
    Gc = GV + 32; WU = TF; x = AF
    o(f"ds_read_b128 {vr(T0,4)}, v{MQ}"); o(f"ds_read_b128 {vr(T0+4,4)}, v{MQ+1}")
    o(f"s_cmp_lg_u32 s{sMORE}, 0"); o("s_cbranch_scc1 TAILM")
    o("s_waitcnt lgkmcnt(0)")
    for ins in wload(WU, WF_U): o(ins)
    lab("TAILM")
    for ins, _ in vstream(Gc, Gc + 16)[HEAD[0]:]: o(ins)
    o("s_waitcnt lgkmcnt(0)")
    def fin(p):
        d = ACC + 32 * p; r = []
        for k in range(16): r.append(f"v_add_f32 v{d+k}, s{sEPS}, v{d+k}")
        for k in range(16): r.append(f"v_rcp_f32 v{d+k}, v{d+k}")
        for k in range(16): r.append(f"v_mul_f32 v{d+16+k}, v{d+k}, v{d+16+k}")
        return r
    for m in zphase(Gc, 1): o(m)
    o(f"s_cmp_lg_u32 s{sMORE}, 0"); o("s_cbranch_scc1 NEXTROUND")
    for s in range(8): o(f"ds_read_b128 {vr(GV+4*s,4)}, v{vXA} offset:{16*s}")
    for mt in range(2):
        for k in range(2): o(f"ds_read_b128 {vr(x+8*mt+4*k,4)}, v{vXR} offset:{mt*2080+16*k}")
    for ins in fin(0): o(ins)
    for s in range(8): o(f"ds_read_b128 {vr(GV+32+4*s,4)}, v{vXA} offset:{2080+16*s}")
    o(f"v_and_b32 v{IX[0]}, 31, v0"); o(f"v_and_b32 v{IX[0]+1}, 0xe0, v0")
    o(f"s_mov_b32 s{sT1}, 0xffff0000")
    o(f"v_cmp_gt_u32 vcc, {NA}, v{IX[0]}"); o(f"v_cmp_gt_u32 s[{sSV}:{sSV+1}], {RN-NA}, v{IX[0]}"); o(f"v_add_u32 v{IX[0]}, s{sBASE}, v{IX[0]}")
    o("s_waitcnt vmcnt(0) lgkmcnt(8)")
    def unp(p): return sum(([f"v_lshlrev_b32 v{ACC+32*p+2*k}, 16, v{x+8*p+k}", f"v_and_b32 v{ACC+32*p+2*k+1}, s{sT1}, v{x+8*p+k}"] for k in range(8)), [])
    def post(p):
        r = []
        for k in range(8):
            z = ACC + 32*p + 16 + 2*k
            r += [f"v_max_f32 v{z}, 0, v{z}", f"v_max_f32 v{z+1}, 0, v{z+1}", f"v_add_f32 v{z}, v{z}, v{z-16}", f"v_add_f32 v{z+1}, v{z+1}, v{z-15}",
                  f"v_cvt_pk_bf16_f32 v{x+8*p+k}, v{z}, v{z+1}"]
        return r
    def st(p): return [f"buffer_store_dwordx4 {vr(x+8*p+4*k,4)}, {vr(IX[0],2)}, s[{sO}:{sO+3}], 0 idxen offen offset:{16*k}" for k in range(2)]
    interleave([m32(ACC+16, WU+4*s, GV+4*s, ACC+16) for s in range(8)], fin(1), 6)
    o("s_waitcnt lgkmcnt(0)"); o("s_nop 0")
    interleave([m32(ACC+48, WU+4*s, GV+32+4*s, ACC+48) for s in range(8)], unp(0) + post(0) + unp(1), 7)
    o("s_mov_b64 exec, vcc")
    for ins in st(0): o(ins)
    o(f"s_mov_b64 exec, s[{sSV}:{sSV+1}]"); o(f"v_add_u32 v{IX[0]}, {NA}, v{IX[0]}")
    for ins in post(1) + st(1): o(ins)
    stamp_out(9, GV, sW, 1)
    lab("K2_END")
    o("s_endpgm")
    lab("NEXTROUND")
    for i in range(4):
        o(f"v_lshrrev_b32 v{vTC}, 19, v{SEG+i}"); o(f"v_min_u32 v{vTC}, s{sLIM}, v{vTC}")
        o(f"v_add_u32 v{SEG+i}, v{SEG+i}, v{vTC}"); o(f"v_lshlrev_b32 v{vTC}, 19, v{vTC}"); o(f"v_sub_u32 v{SEG+i}, v{SEG+i}, v{vTC}")
    o(f"s_mov_b32 s{sFIRST}, 0"); o(f"s_mov_b32 s{sLIM}, 16")
    o("s_waitcnt vmcnt(0) lgkmcnt(0)"); o("s_barrier")
    o("s_branch ROUND")

def kd(name, nv, ns):
    L.append(".p2align 6")
    L.append(f".amdhsa_kernel {name}")
    for k, v in (("next_free_vgpr", nv), ("next_free_sgpr", ns), ("accum_offset", (nv + 3) // 4 * 4), ("group_segment_fixed_size", 0),
                 ("kernarg_size", 96), ("user_sgpr_count", 2), ("user_sgpr_kernarg_segment_ptr", 1), ("system_sgpr_workgroup_id_x", 1),
                 ("float_denorm_mode_32", 3)):
        L.append(f"  .amdhsa_{k} {v}")
    L.append(".end_amdhsa_kernel")

hdr = [l for l in open(f"cdna_kernels/{NAME}.s.ref").read().splitlines() if l.startswith(";") and "@launch" not in l
       and "Override launch" not in l and "grid=ceil" not in l]
L += hdr
L.append(f"; @launch kernel=gsort_kernel grid=({K1_GRID},1,1) block=(512,1,1) lds={K1_LDS}")
L.append(f"; @launch kernel=gmain_kernel grid=(512,1,1) block=(256,1,1) lds={K2_LDS}")
L.append('.amdgcn_target "amdgcn-amd-amdhsa--gfx950"'); L.append(".text")
(gen_k1a if OPT.get('k1') == 'a' else gen_k1)(); gen_k2()
lab("CODE_END")
L.append('.section .rodata,"a"')
kd("gsort_kernel", 256 if STAMP else 250, 102 if STAMP else 72); kd("gmain_kernel", 256 if STAMP else NVGPR, 102)
if STAMP: L.append("; STAMPS " + repr(NAMES))
open(sys.argv[1], "w").write("\n".join(L) + "\n")
print("vgprs", NVGPR, "lds", K2_LDS, "lines", len(L), file=sys.stderr)
```

```python
import sys, struct, re

N = 25000; E = 400000; RN = 49; NR = 511; CH = 1600; NCH = 250
WS_REC = 0; WS_OFF = 0x310000; OROW = 1152; WS_WF = 0x3c0000; WS_TAB = 0x400000; WS_SIZE = 0x4000000
WF_A = 0; WF_U = 0x8000; WF_C = 0x10000; NA = 25
NLOG2E = struct.unpack('<I', struct.pack('<f', -1.4426950408889634))[0]
EPS = struct.unpack('<I', struct.pack('<f', 1e-6))[0]
NAME = "standalone__edge_featured_mpnn_gatedgcn__graph"
OPT = dict(a.split('=') for a in sys.argv[2:]) if len(sys.argv) > 2 else {}
STAMP = int(OPT.get('stamp', 0))
WS_TAB = int(OPT.get('tab', hex(WS_TAB)), 0)
WS_STAMP = 0x3800000
L = []
def o(s): L.append("    " + s)
def lab(s): L.append(s + ":")
def vr(b, n): return f"v[{b}:{b+n-1}]"
VST = [60]
NAMES = {}
def stamp(i, ins="s_memrealtime", name=None):
    if STAMP:
        o(f"{ins} s[100:101]"); o("s_waitcnt lgkmcnt(0)"); o(f"v_writelane_b32 v{VST[0]}, s100, {i}")
def xstamp(name):
    if STAMP:
        NAMES[name] = 16 + len(NAMES); stamp(NAMES[name])
def stamp_out(n, reg, srdn, kern):
    if not STAMP: return
    o("s_mov_b64 exec, -1")
    stamp(n)
    o(f"v_lshlrev_b32 v{reg}, 2, v0")
    if kern and int(OPT.get('g8', 0)): o("s_and_b32 s63, s3, 1"); o("s_lshl_b32 s63, s63, 8"); o("s_add_u32 s2, s2, s63")
    o(f"s_lshl_b32 s63, s2, 11"); o(f"s_add_u32 s63, s63, {WS_STAMP + kern*0x100000:#x}")
    o(f"buffer_store_dword v{VST[0]}, v{reg}, s[{srdn}:{srdn+3}], s63 offen")
def srd(d, lo, size, stride=0):
    o(f"s_mov_b32 s{d}, s{lo}"); o(f"s_and_b32 s{d+1}, s{lo+1}, 0xffff")
    if stride: o(f"s_or_b32 s{d+1}, s{d+1}, {stride << 16:#x}")
    o(f"s_mov_b32 s{d+2}, {size:#x}"); o(f"s_mov_b32 s{d+3}, 0x20000")
def scan64(v):
    for d in ("row_shr:1", "row_shr:2", "row_shr:4", "row_shr:8"):
        o("s_nop 1"); o(f"v_add_u32_dpp v{v}, v{v}, v{v} {d} row_mask:0xf bank_mask:0xf bound_ctrl:0")
    o("s_nop 1"); o(f"v_add_u32_dpp v{v}, v{v}, v{v} row_bcast:15 row_mask:0xa bank_mask:0xf")
    o("s_nop 1"); o(f"v_add_u32_dpp v{v}, v{v}, v{v} row_bcast:31 row_mask:0xc bank_mask:0xf")

def m32(d, a, b, c): return f"v_mfma_f32_32x32x16_bf16 {vr(d,16)}, {vr(a,4)}, {vr(b,4)}, " + ("0" if c is None else vr(c,16))
K1_GRID = 256
OG = 4224
K1_W = 16896; K1_X = K1_W + 65536; K1_S = K1_X + 4 * 8320; K1_LDS = K1_S + 8 * 4608
def gen_k1():
    L.append(".globl gsort_kernel"); L.append(".p2align 8"); L.append(".type gsort_kernel,@function")
    lab("gsort_kernel"); VST[0] = 255
    pol = OPT.get('tabpol', '').replace('+', ' '); rpol = OPT.get('recpol', '').replace('+', ' ')
    stamp(0)
    o("s_load_dwordx8 s[4:11], s[0:1], 0")
    o("s_load_dwordx8 s[40:47], s[0:1], 32")
    o("s_load_dwordx2 s[48:49], s[0:1], 64")
    o("s_load_dwordx2 s[12:13], s[0:1], 88")
    o(f"s_cmp_ge_u32 s2, {K1_GRID}"); o("s_cbranch_scc1 K1_END")
    o("v_lshrrev_b32 v2, 6, v0"); o("v_lshlrev_b32 v1, 2, v0")
    o("s_and_b32 s36, s2, 7"); o("s_lshl_b32 s36, s36, 5"); o("s_lshr_b32 s35, s2, 3"); o("s_add_u32 s36, s36, s35")
    o("v_readfirstlane_b32 s33, v2")
    o("v_mov_b32 v2, 0"); o("ds_write_b32 v1, v2")
    o(f"s_mul_i32 s3, s2, {CH*4}"); o("s_mul_i32 s37, s36, 98")
    o(f"s_cmp_lt_u32 s2, {NCH}"); o(f"s_cselect_b32 s14, {CH//4}, 0")
    o("v_cmp_gt_u32 vcc, s14, v0")
    o("v_lshlrev_b32 v40, 4, v0")
    o("v_bfe_u32 v56, v0, 4, 1"); o("v_bfe_u32 v57, v0, 5, 1"); o("v_and_b32 v20, 63, v0")
    o("s_mov_b32 s68, 0"); o("v_lshlrev_b32 v42, 4, v20")
    o("v_bfe_u32 v43, v0, 4, 2"); o("v_lshlrev_b32 v43, 6, v43"); o("v_xor_b32 v43, v43, v40")
    o("v_lshl_add_u32 v58, v57, 3, v56")
    o("s_lshr_b32 s14, s33, 2"); o("s_lshl_b32 s14, s14, 4"); o("s_and_b32 s15, s33, 3"); o("s_lshl1_add_u32 s14, s15, s14")
    o("v_add_u32 v58, s14, v58"); o("v_add_u32 v54, s37, v58")
    o("v_and_b32 v55, 15, v0"); o("v_lshlrev_b32 v59, 3, v56"); o("v_xor_b32 v55, v55, v59"); o("v_lshlrev_b32 v55, 4, v55")
    o("s_mul_i32 s38, s33, 1040"); o(f"s_add_u32 s38, s38, {K1_X}")
    o("s_lshl_b32 s39, s33, 10"); o(f"s_add_u32 s39, s39, {K1_W}")
    o("s_mov_b32 m0, s38")
    o("s_waitcnt lgkmcnt(0)")
    srd(60, 4, N, 256)
    def xd(t):
        if t: o(f"s_add_u32 m0, s38, {t*8320}"); o("v_add_u32 v54, 32, v54")
        if t == 3: o("v_cmp_gt_u32 vcc, 2, v58"); o("v_mov_b32 v59, 0xffff"); o("s_nop 0"); o("v_cndmask_b32 v54, v59, v54, vcc")
        o("buffer_load_dwordx4 v[54:55], s[60:63], 0 idxen offen lds")
    xd(0); xd(1)
    srd(20, 10, E*4); srd(16, 8, E*4)
    o("s_and_saveexec_b64 s[28:29], vcc"); o("s_mov_b64 s[28:29], exec"); o("s_cbranch_execz K1_PREP")
    o("buffer_load_dwordx4 v[4:7], v40, s[20:23], s3 offen")
    o("buffer_load_dwordx4 v[8:11], v40, s[16:19], s3 offen")
    lab("K1_A")
    o("s_mov_b64 exec, -1")
    TCH = int(OPT.get('touch', 0)); SPL = int(OPT.get('split', 0))
    if TCH:
        srd(24, 12, WS_SIZE)
        o("s_lshl_b32 s14, s37, 9"); o(f"s_add_u32 s14, s14, {WS_TAB:#x}"); o("v_mov_b32 v248, s14"); o("s_lshl_b32 s14, s3, 1")
        o("v_writelane_b32 v248, s14, 1"); o(f"s_mov_b32 s14, {WS_OFF:#x}"); o("v_writelane_b32 v248, s14, 2")
        o("buffer_load_dword v249, v248, s[24:27], 0 offen")
    if not OPT.get('early'): o("s_barrier")
    srd(52, 42, 32768); srd(56, 48, 32768)
    for m in range(2):
        for i in range(4):
            o(f"s_add_u32 m0, s39, {m*32768+i*8192}"); o(f"s_movk_i32 s14, {i*8192}"); o(f"buffer_load_dwordx4 v43, s[{52+4*m}:{55+4*m}], s14 offen lds")
    xd(2); xd(3)
    if OPT.get('early'): o("s_barrier")
    def addrs():
        srd(24, 12, WS_SIZE)
        o("v_bfe_u32 v60, v0, 2, 2"); o("v_lshl_add_u32 v60, v57, 6, v60"); o("v_lshlrev_b32 v60, 8, v60")
        o("v_and_b32 v61, 3, v0"); o("v_lshl_add_u32 v60, v61, 3, v60"); o("v_lshl_add_u32 v60, v56, 5, v60")
        o("s_and_b32 s30, s33, 3"); o("v_bfe_u32 v61, v0, 2, 2"); o("v_xor_b32 v61, s30, v61"); o("v_lshl_add_u32 v60, v61, 6, v60"); o(f"v_add_u32 v60, {K1_W}, v60")
        o("v_bfe_u32 v61, v0, 1, 2"); o("v_lshl_or_b32 v61, v56, 2, v61"); o("v_mul_u32_u24 v61, 1040, v61")
        o("v_and_b32 v62, 1, v0"); o("v_bfe_u32 v63, v0, 3, 1"); o("v_lshl_or_b32 v63, v63, 1, v62"); o("v_lshl_add_u32 v61, v63, 8, v61")
        o("s_lshr_b32 s32, s33, 2"); o("s_mul_i32 s14, s32, 8320"); o(f"s_add_u32 s14, s14, {K1_X}")
        o("v_xor_b32 v62, v62, v57"); o("v_lshl_add_u32 v61, v62, 7, v61"); o("v_add_u32 v61, s14, v61")
        o("s_mul_i32 s14, s33, 4608"); o(f"s_add_u32 s14, s14, {K1_S}")
        o("v_and_b32 v62, 31, v0"); o("v_mul_u32_u24 v62, 144, v62"); o("v_lshl_add_u32 v62, v57, 6, v62"); o("v_add_u32 v62, s14, v62")
        o("v_lshrrev_b32 v58, 3, v20"); o("v_and_b32 v59, 7, v0"); o("v_lshlrev_b32 v59, 4, v59")
        o("v_mul_u32_u24 v63, 144, v58"); o("v_add3_u32 v63, v63, v59, s14")
        o("s_lshl_b32 s14, s32, 5"); o("s_add_u32 s14, s14, s37"); o("s_lshl_b32 s14, s14, 9"); o("s_lshl_b32 s30, s30, 7"); o("s_add_u32 s14, s14, s30")
        o("v_lshl_add_u32 v59, v58, 9, v59"); o("v_add_u32 v59, s14, v59")
        o("s_lshl_b32 s31, s3, 1")
    addrs()
    o(f"s_mul_i32 s34, s2, {CH}")
    o("v_add_u32 v3, s34, v1"); o("v_mov_b32 v2, 1"); o(f"s_mov_b32 s15, {-RN}")
    o("v_lshlrev_b32 v20, 5, v20")
    o("s_mov_b64 exec, s[28:29]"); o("s_cbranch_execz K1_B")
    o(f"s_waitcnt vmcnt({10+TCH})"); stamp(1)
    for i in range(4):
        o(f"v_mul_u32_u24 v{12+i}, 21400, v{4+i}")
        o(f"v_lshrrev_b32 v{12+i}, 20, v{12+i}")
        o(f"v_mad_i32_i24 v{4+i}, v{12+i}, s15, v{4+i}")
        o(f"v_lshlrev_b32 v{12+i}, 2, v{12+i}")
        o(f"ds_add_rtn_u32 v{16+i}, v{12+i}, v2")
    lab("K1_B")
    o("s_mov_b64 exec, -1")
    o(f"s_add_u32 s12, s12, {WS_TAB:#x}"); o("s_addc_u32 s13, s13, 0"); srd(16, 12, N * 512)
    o(f"s_mov_b32 s15, {NLOG2E:#x}")
    o(f"s_waitcnt vmcnt({2*SPL}) lgkmcnt(0)"); o("s_barrier"); stamp(3)
    lab("K1_J")
    WF_ = 64; XF_ = 128; AC = [160, 192]
    for m in range(2):
        for s in range(8):
            for jj in range(2): o(f"ds_read_b64_tr_b16 v[{WF_+32*m+4*s+2*jj}:{WF_+32*m+4*s+2*jj+1}], v60 offset:{m*32768+s*2048+jj*1024}")
            if m == 0: o(f"ds_read_b128 {vr(XF_+4*s,4)}, v61 offset:{16*s}")
    o("ds_read_b128 v[24:27], v20"); o("ds_read_b128 v[28:31], v20 offset:16")
    def post(t):
        a = AC[t]; r = []
        for k in range(16): r.append(f"v_mul_f32 v{a+k}, s15, v{a+k}")
        for k in range(16): r.append(f"v_cvt_pk_bf16_f32 v{224+k}, v{a+2*k}, v{a+2*k+1}")
        r += [f"ds_write_b128 v62, {vr(224+4*c,4)} offset:{16*c}" for c in range(4)]
        r += [f"ds_read_b128 {vr(a+4*k,4)}, v63 offset:{k*8*144}" for k in range(4)]
        return r
    def stores(t):
        r = []
        for k in range(4):
            r += [f"s_waitcnt lgkmcnt({3-k})", f"buffer_store_dwordx4 {vr(AC[t]+4*k,4)}, v59, s[16:19], 0 offen {pol}", "v_add_u32 v59, 0x1000, v59"]
        return r
    def recs():
        for i in range(4):
            o(f"v_cmp_lt_u32 vcc, {NA-1}, v{4+i}"); o(f"v_mul_u32_u24 v22, 83, v{8+i}"); o("v_lshrrev_b32 v22, 16, v22")
            o(f"v_cndmask_b32 v23, 0, {NA}, vcc"); o(f"v_sub_u32 v23, v{4+i}, v23")
            o(f"v_lshl_or_b32 v{44+2*i}, v23, 16, v{8+i}")
            o("v_cndmask_b32 v23, 0, 32, vcc"); o("v_or_b32 v22, v22, v23")
            o(f"v_lshl_add_u32 v{45+2*i}, v22, 26, v3")
            if i < 3: o("v_add_u32 v3, 1, v3")
    def scan():
        o("v_mov_b32 v33, v24")
        for j in range(2, 8): o(f"v_add_u32 v{32+j}, v{31+j}, v{23+j}")
        o("v_add_u32 v21, v39, v31"); o("v_mov_b32 v22, v21")
        scan64(21)
        o("v_sub_u32 v32, v21, v22")
        for j in range(1, 8): o(f"v_add_u32 v{32+j}, v32, v{32+j}")
    o("s_waitcnt lgkmcnt(15)")
    interleave([m32(AC[0], WF_+4*s, XF_+4*s, None if s == 0 else AC[0]) for s in range(8)], capture(recs), 5)
    o("s_waitcnt vmcnt(0) lgkmcnt(0)")
    if SPL: o("s_barrier")
    sc = capture(scan); p0 = post(0)
    q = sc + p0[:24]
    for s in range(8):
        o(m32(AC[0]+16, WF_+32+4*s, XF_+4*s, None if s == 0 else AC[0]+16))
        o(f"ds_read_b128 {vr(XF_+4*s,4)}, v61 offset:{2*8320+16*s}")
        for _ in range(5):
            if q: o(q.pop(0))
    lab("K1_G")
    o("s_waitcnt lgkmcnt(0)")
    mf = [m32(AC[1], WF_+4*s, XF_+4*s, None if s == 0 else AC[1]) for s in range(8)] + [m32(AC[1]+16, WF_+32+4*s, XF_+4*s, None if s == 0 else AC[1]+16) for s in range(8)]
    assert len(q) >= 8
    look = ["ds_write_b128 v20, v[32:35] offset:2048", "ds_write_b128 v20, v[36:39] offset:2064"] + [f"ds_read_b32 v{4+i}, v{12+i} offset:2048" for i in range(4)]
    q = q + p0[24:] + [None] * 5 + stores(0) + look
    for m in mf:
        o(m)
        for _ in range(5):
            if q:
                x = q.pop(0)
                if x: o(x)
    assert not q
    o("v_add_u32 v59, 0x4000, v59"); o("v_cmp_gt_u32 vcc, 2, v58")
    o("s_mov_b64 exec, s[28:29]")
    o("s_waitcnt lgkmcnt(0)")
    for i in range(4):
        o(f"v_add_lshl_u32 v{4+i}, v{4+i}, v{16+i}, 3"); o(f"ds_write_b64 v{4+i}, v[{44+2*i}:{45+2*i}] offset:4096")
    o("s_mov_b64 exec, -1")
    for x in post(1): o(x)
    stamp(4)
    o("s_cmp_lt_u32 s33, 4"); o("s_cbranch_scc1 K1_H")
    o("s_mov_b64 exec, vcc")
    for x in stores(1)[:2]: o(x)
    o("s_mov_b64 exec, -1")
    o("s_cmp_lg_u32 s68, 0"); o("s_cbranch_scc1 K1_PREP2")
    o("s_cmp_lg_u32 s33, 6"); o("s_cbranch_scc1 K1_I")
    for j in range(8): o(f"v_lshl_add_u32 v{24+j}, v{24+j}, 19, v{32+j}"); o(f"v_add_u32 v{24+j}, s34, v{24+j}")
    o(f"v_mul_u32_u24 v41, {OG//16}, v20"); o("s_lshl_b32 s35, s36, 4"); o(f"s_add_u32 s35, s35, {WS_OFF:#x}"); o(f"s_add_u32 s30, s35, {OG}")
    o("buffer_store_dwordx4 v[24:27], v41, s[24:27], s35 offen"); o("buffer_store_dwordx4 v[28:31], v41, s[24:27], s30 offen")
    o("s_branch K1_I")
    lab("K1_H")
    for x in stores(1): o(x)
    lab("K1_I")
    o(f"v_cmp_gt_u32 vcc, {CH//2-512}, v0")
    o("s_waitcnt lgkmcnt(0)"); o("s_barrier")
    o(f"s_cmp_lt_u32 s2, {NCH}"); o("s_cbranch_scc0 K1_F")
    o("ds_read_b128 v[44:47], v40 offset:4096"); o("ds_read_b128 v[48:51], v40 offset:12288")
    o("s_add_u32 s30, s31, 8192")
    o("s_waitcnt lgkmcnt(1)")
    o(f"buffer_store_dwordx4 v[44:47], v40, s[24:27], s31 offen {rpol}")
    o("s_and_saveexec_b64 s[28:29], vcc"); o("s_cbranch_execz K1_F")
    o("s_waitcnt lgkmcnt(0)")
    o(f"buffer_store_dwordx4 v[48:51], v40, s[24:27], s30 offen {rpol}")
    lab("K1_F")
    stamp_out(2, 12, 24, 0)
    lab("K1_END")
    o("s_endpgm")
    lab("K1_PREP")
    o("s_cmp_ge_u32 s2, 68"); o("s_cbranch_scc1 K1_A")
    o("s_mov_b64 exec, -1")
    o("s_lshr_b32 s14, s2, 5")
    o("s_cmp_eq_u32 s14, 1"); o("s_cselect_b32 s40, s46, s40"); o("s_cselect_b32 s41, s47, s41"); o(f"s_cselect_b32 s68, 1.0, {NLOG2E:#x}")
    o("s_mov_b32 s66, 32768"); o("s_bfe_u32 s50, s2, 0x20003"); o("s_and_b32 s51, s2, 7"); o("s_mov_b32 s32, 14")
    o("s_cmp_eq_u32 s14, 2"); o("s_cselect_b32 s40, s44, s40"); o("s_cselect_b32 s41, s45, s41"); o("s_cselect_b32 s66, 4096, s66")
    o("s_cselect_b32 s50, s51, s50"); o("s_cselect_b32 s51, 0, s51"); o("s_cselect_b32 s32, 11, s32")
    o("s_mov_b32 s64, s40"); o("s_and_b32 s65, s41, 0xffff"); o("s_mov_b32 s67, 0x20000")
    o("s_lshl_b32 s50, s50, 6"); o("s_lshl_b32 s51, s51, 11"); o("s_add_u32 s50, s50, s51")
    o("v_and_b32 v4, 3, v0"); o("v_bfe_u32 v5, v0, 3, 2"); o("v_lshl_or_b32 v4, v5, 2, v4")
    o("v_bfe_u32 v5, v0, 2, 1"); o("v_lshl_or_b32 v4, v5, 4, v4")
    o("v_lshlrev_b32 v5, s32, v57"); o("v_lshl_add_u32 v4, v4, 1, v5"); o("v_add_u32 v4, s50, v4")
    for j in range(8): o(f"buffer_load_ushort v{240+j}, v4, s[64:67], 0 offen offset:{j*256}")
    o("s_branch K1_A")
    lab("K1_PREP2")
    o("s_lshl_b32 s14, s2, 10"); o(f"s_add_u32 s14, s14, {WS_WF:#x}")
    for j in range(8):
        o(f"v_lshlrev_b32 v{240+j}, 16, v{240+j}"); o(f"v_mul_f32 v{240+j}, s68, v{240+j}")
    for j in range(4): o(f"v_cvt_pk_bf16_f32 v{52+j}, v{240+2*j}, v{241+2*j}")
    o("buffer_store_dwordx4 v[52:55], v42, s[24:27], s14 offen")
    o("s_branch K1_I")

def gen_k1a():
    L.append(".globl gsort_kernel"); L.append(".p2align 8"); L.append(".type gsort_kernel,@function")
    lab("gsort_kernel"); VST[0] = 255
    pol = OPT.get('tabpol', '').replace('+', ' '); rpol = OPT.get('recpol', '').replace('+', ' ')
    if OPT.get('cpf'):
        o("s_getpc_b64 s[70:71]")
        o("v_lshlrev_b32 v236, 7, v0"); o("v_min_u32 v236, CODE_END-gsort_kernel-8, v236")
        o("v_mov_b32 v237, s71"); o("v_add_co_u32 v236, vcc, s70, v236"); o("s_nop 1"); o("v_addc_co_u32 v237, vcc, 0, v237, vcc")
        o("global_load_dword v238, v[236:237], off")
    stamp(0)
    o("s_load_dwordx8 s[4:11], s[0:1], 0")
    o("s_load_dwordx8 s[40:47], s[0:1], 32")
    o("s_load_dwordx2 s[48:49], s[0:1], 64")
    o("s_load_dwordx2 s[12:13], s[0:1], 88")
    o("s_load_dwordx2 s[72:73], s[0:1], 72")
    o(f"s_cmp_ge_u32 s2, {K1_GRID}"); o("s_cbranch_scc1 K1_END")
    o("v_lshrrev_b32 v2, 6, v0"); o("v_lshlrev_b32 v1, 2, v0")
    o("s_and_b32 s36, s2, 7"); o("s_lshl_b32 s36, s36, 5"); o("s_lshr_b32 s35, s2, 3"); o("s_add_u32 s36, s36, s35")
    o("v_readfirstlane_b32 s33, v2")
    o("v_mov_b32 v2, 0"); o("ds_write_b32 v1, v2")
    o(f"s_mul_i32 s3, s2, {CH*4}"); o("s_mul_i32 s37, s36, 98")
    o(f"s_cmp_lt_u32 s2, {NCH}"); o(f"s_cselect_b32 s14, {CH//5}, 0")
    o("v_cmp_gt_u32 vcc, s14, v0")
    o("v_lshlrev_b32 v40, 4, v0")
    o("v_bfe_u32 v56, v0, 4, 1"); o("v_bfe_u32 v57, v0, 5, 1"); o("v_and_b32 v20, 63, v0")
    o("s_mov_b32 s68, 0"); o("v_lshlrev_b32 v42, 4, v20")
    o("v_mul_u32_u24 v43, 20, v0")
    o("s_cmp_ge_u32 s33, 5")
    o("s_waitcnt lgkmcnt(0)")
    o("s_cbranch_scc1 K1_LOAD")
    srd(20, 10, E*4); srd(16, 8, E*4)
    o("s_and_saveexec_b64 s[28:29], vcc"); o("s_mov_b64 s[28:29], exec"); o("s_cbranch_execz K1_A")
    o("buffer_load_dwordx4 v[64:67], v43, s[20:23], s3 offen"); o("buffer_load_dword v68, v43, s[20:23], s3 offen offset:16")
    o("buffer_load_dwordx4 v[72:75], v43, s[16:19], s3 offen"); o("buffer_load_dword v76, v43, s[16:19], s3 offen offset:16")
    lab("K1_A")
    o("s_mov_b64 exec, -1")
    o("s_barrier")
    def addrs():
        srd(24, 12, WS_SIZE)
        o("v_bfe_u32 v60, v0, 2, 2"); o("v_lshl_add_u32 v60, v57, 6, v60"); o("v_lshlrev_b32 v60, 8, v60")
        o("v_and_b32 v61, 3, v0"); o("v_lshl_add_u32 v60, v61, 3, v60"); o("v_lshl_add_u32 v60, v56, 5, v60")
        o("s_and_b32 s30, s33, 3"); o("v_bfe_u32 v61, v0, 2, 2"); o("v_xor_b32 v61, s30, v61"); o("v_lshl_add_u32 v60, v61, 6, v60"); o(f"v_add_u32 v60, {K1_W}, v60")
        o("v_bfe_u32 v61, v0, 1, 2"); o("v_lshl_or_b32 v61, v56, 2, v61"); o("v_mul_u32_u24 v61, 1040, v61")
        o("v_and_b32 v62, 1, v0"); o("v_bfe_u32 v63, v0, 3, 1"); o("v_lshl_or_b32 v63, v63, 1, v62"); o("v_lshl_add_u32 v61, v63, 8, v61")
        o("s_lshr_b32 s32, s33, 2"); o("s_mul_i32 s14, s32, 8320"); o(f"s_add_u32 s14, s14, {K1_X}")
        o("v_xor_b32 v62, v62, v57"); o("v_lshl_add_u32 v61, v62, 7, v61"); o("v_add_u32 v61, s14, v61")
        o("s_mul_i32 s14, s33, 4608"); o(f"s_add_u32 s14, s14, {K1_S}")
        o("v_and_b32 v62, 31, v0"); o("v_mul_u32_u24 v62, 144, v62"); o("v_lshl_add_u32 v62, v57, 6, v62"); o("v_add_u32 v62, s14, v62")
        o("v_lshrrev_b32 v58, 3, v20"); o("v_and_b32 v59, 7, v0"); o("v_lshlrev_b32 v59, 4, v59")
        o("v_mul_u32_u24 v63, 144, v58"); o("v_add3_u32 v63, v63, v59, s14")
        o("s_lshl_b32 s14, s32, 5"); o("s_add_u32 s14, s14, s37"); o("s_lshl_b32 s14, s14, 9"); o("s_lshl_b32 s30, s30, 7"); o("s_add_u32 s14, s14, s30")
        o("v_lshl_add_u32 v59, v58, 9, v59"); o("v_add_u32 v59, s14, v59")
        o("s_lshl_b32 s31, s3, 1")
    addrs()
    o(f"s_mul_i32 s34, s2, {CH}")
    o("v_lshrrev_b32 v3, 2, v43"); o("v_add_u32 v3, s34, v3"); o("v_mov_b32 v2, 1"); o(f"s_mov_b32 s15, {-RN}"); o(f"s_movk_i32 s38, {-64*RN}")
    o("v_lshlrev_b32 v20, 5, v20")
    o("s_mov_b64 exec, s[28:29]"); o("s_cbranch_execz K1_B")
    o("s_waitcnt vmcnt(2)"); stamp(1)
    for i in range(5):
        o(f"v_mul_u32_u24 v{80+i}, 21400, v{64+i}")
        o(f"v_lshrrev_b32 v{80+i}, 20, v{80+i}")
        o(f"v_mad_i32_i24 v{64+i}, v{80+i}, s15, v{64+i}")
        o(f"v_lshlrev_b32 v{80+i}, 2, v{80+i}")
        o(f"ds_add_rtn_u32 v{88+i}, v{80+i}, v2")
    o("s_waitcnt vmcnt(0)")
    for i in range(5):
        o(f"v_cmp_lt_u32 vcc, {NA-1}, v{64+i}")
        if int(OPT.get('rot', 0)):
            o(f"v_lshrrev_b32 v22, 8, v{80+i}"); o(f"v_mad_i32_i24 v22, v22, s38, v{72+i}"); o(f"v_add_u32 v23, {512*RN}, v22"); o("v_min_u32 v22, v22, v23")
            o("v_mul_u32_u24 v22, 83, v22")
        else: o(f"v_mul_u32_u24 v22, 83, v{72+i}")
        o("v_lshrrev_b32 v22, 16, v22")
        o(f"v_cndmask_b32 v23, 0, {NA}, vcc"); o(f"v_sub_u32 v23, v{64+i}, v23")
        o(f"v_lshl_or_b32 v{96+2*i}, v23, 16, v{72+i}")
        o("v_cndmask_b32 v23, 0, 32, vcc"); o("v_or_b32 v22, v22, v23")
        o(f"v_lshl_add_u32 v{97+2*i}, v22, 26, v3")
        if i < 4: o("v_add_u32 v3, 1, v3")
    lab("K1_B")
    o("s_mov_b64 exec, -1")
    o("s_waitcnt lgkmcnt(0)"); o("s_barrier")
    o("ds_read_b128 v[24:27], v20"); o("ds_read_b128 v[28:31], v20 offset:16")
    o("s_waitcnt lgkmcnt(0)")
    o("v_mov_b32 v33, v24")
    for j in range(2, 8): o(f"v_add_u32 v{32+j}, v{31+j}, v{23+j}")
    o("v_add_u32 v21, v39, v31"); o("v_mov_b32 v22, v21")
    scan64(21)
    o("v_sub_u32 v32, v21, v22")
    for j in range(1, 8): o(f"v_add_u32 v{32+j}, v32, v{32+j}")
    o("ds_write_b128 v20, v[32:35] offset:2048"); o("ds_write_b128 v20, v[36:39] offset:2064")
    o("s_mov_b64 exec, s[28:29]")
    for i in range(5): o(f"ds_read_b32 v{64+i}, v{80+i} offset:2048")
    o("s_waitcnt lgkmcnt(0)")
    for i in range(5):
        o(f"v_add_lshl_u32 v{64+i}, v{64+i}, v{88+i}, 3"); o(f"ds_write_b64 v{64+i}, v[{96+2*i}:{97+2*i}] offset:4096")
    o("s_mov_b64 exec, -1")
    o("s_waitcnt lgkmcnt(0)"); o("s_barrier"); stamp(3)
    lab("K1_J")
    if OPT.get('pfe'):
        srd(76, 6, E*32); o("v_lshlrev_b32 v250, 7, v0"); o("s_lshl_b32 s14, s2, 16"); o("v_add_u32 v250, s14, v250")
        o("buffer_load_dword v251, v250, s[76:79], 0 offen " + OPT['pfe'].replace('p', ''))
    WF_ = 64; XF_ = 128; AC = [160, 192]
    o("ds_read_b128 v[44:47], v40 offset:4096"); o("ds_read_b128 v[48:51], v40 offset:12288")
    o(f"v_cmp_gt_u32 vcc, {CH//2-512}, v0")
    for m in range(2):
        for s in range(8):
            for jj in range(2): o(f"ds_read_b64_tr_b16 v[{WF_+32*m+4*s+2*jj}:{WF_+32*m+4*s+2*jj+1}], v60 offset:{m*32768+s*2048+jj*1024}")
        if m == 0:
            for s in range(8): o(f"ds_read_b128 {vr(XF_+4*s,4)}, v61 offset:{16*s}")
    o(f"s_add_u32 s12, s12, {WS_TAB:#x}"); o("s_addc_u32 s13, s13, 0"); srd(16, 12, N * 512)
    o(f"s_mov_b32 s15, {NLOG2E:#x}")
    def post(t):
        a = AC[t]; r = []
        for k in range(16): r.append(f"v_mul_f32 v{a+k}, s15, v{a+k}")
        for k in range(16): r.append(f"v_cvt_pk_bf16_f32 v{224+k}, v{a+2*k}, v{a+2*k+1}")
        r += [f"ds_write_b128 v62, {vr(224+4*c,4)} offset:{16*c}" for c in range(4)]
        r += [f"ds_read_b128 {vr(a+4*k,4)}, v63 offset:{k*8*144}" for k in range(4)]
        return r
    def stores(t):
        r = []
        for k in range(4):
            r += [f"s_waitcnt lgkmcnt({3-k})", f"buffer_store_dwordx4 {vr(AC[t]+4*k,4)}, v59, s[16:19], 0 offen {pol}", "v_add_u32 v59, 0x1000, v59"]
        return r
    o("s_waitcnt lgkmcnt(15)")
    o(f"s_cmp_lt_u32 s2, {NCH}"); o("s_cbranch_scc0 K1_E")
    o("s_add_u32 s30, s31, 8192")
    o(f"buffer_store_dwordx4 v[44:47], v40, s[24:27], s31 offen {rpol}")
    o("s_and_saveexec_b64 s[28:29], vcc"); o("s_cbranch_execz K1_E")
    o(f"buffer_store_dwordx4 v[48:51], v40, s[24:27], s30 offen {rpol}")
    lab("K1_E"); o("s_mov_b64 exec, -1")
    for s in range(8): o(m32(AC[0], WF_+4*s, XF_+4*s, None if s == 0 else AC[0]))
    o("s_waitcnt lgkmcnt(0)")
    for s in range(8):
        o(m32(AC[0]+16, WF_+32+4*s, XF_+4*s, None if s == 0 else AC[0]+16))
        o(f"ds_read_b128 {vr(XF_+4*s,4)}, v61 offset:{2*8320+16*s}")
    o("s_cmp_lg_u32 s68, 0"); o("s_cbranch_scc1 K1_PREP2")
    o("s_cmp_eq_u32 s33, 4"); o("s_cbranch_scc1 K1_OFF")
    lab("K1_G")
    o("s_waitcnt lgkmcnt(0)")
    mf = [m32(AC[1], WF_+4*s, XF_+4*s, None if s == 0 else AC[1]) for s in range(8)] + [m32(AC[1]+16, WF_+32+4*s, XF_+4*s, None if s == 0 else AC[1]+16) for s in range(8)]
    q = post(0) + [None] * 6 + stores(0)
    for m in mf:
        o(m)
        for _ in range(5):
            if q:
                x = q.pop(0)
                if x: o(x)
    assert not q
    o("v_add_u32 v59, 0x4000, v59"); o("v_cmp_gt_u32 vcc, 2, v58")
    for x in post(1): o(x)
    stamp(4)
    o("s_cmp_lt_u32 s33, 4"); o("s_cbranch_scc1 K1_H")
    o("s_mov_b64 exec, vcc")
    for x in stores(1)[:2]: o(x)
    o("s_branch K1_F")
    lab("K1_H")
    for x in stores(1): o(x)
    lab("K1_F")
    stamp_out(2, 12, 24, 0)
    lab("K1_END")
    o("s_endpgm")
    lab("K1_OFF")
    for j in range(8): o(f"v_lshl_add_u32 v{24+j}, v{24+j}, 19, v{32+j}"); o(f"v_add_u32 v{24+j}, s34, v{24+j}")
    o(f"v_mul_u32_u24 v41, {OG//16}, v20"); o("s_lshl_b32 s35, s36, 4"); o(f"s_add_u32 s35, s35, {WS_OFF:#x}"); o(f"s_add_u32 s30, s35, {OG}")
    o("buffer_store_dwordx4 v[24:27], v41, s[24:27], s35 offen"); o("buffer_store_dwordx4 v[28:31], v41, s[24:27], s30 offen")
    o("s_branch K1_G")
    lab("K1_LOAD")
    o("s_barrier")
    nb = int(OPT.get('k1b', 24))
    o("s_cmp_eq_u32 s33, 7"); o("s_cbranch_scc1 K1_LX")
    o("s_cmp_eq_u32 s33, 6"); o("s_cselect_b32 s42, s48, s42"); o("s_cselect_b32 s43, s49, s43"); o("s_cselect_b32 s39, 0x8000, 0"); o(f"s_add_u32 s39, s39, {K1_W}")
    srd(52, 42, 32768)
    o("v_lshrrev_b32 v44, 4, v20"); o("v_lshlrev_b32 v44, 6, v44"); o("v_xor_b32 v44, v44, v42")
    for k in range(32):
        if k == nb: o("s_barrier")
        if k % 4 == 0: o(f"s_add_u32 m0, s39, {k*1024}"); o(f"s_movk_i32 s14, {k*1024}")
        o(f"buffer_load_dwordx4 v44, s[52:55], s14 offen offset:{(k%4)*1024} lds")
    lab("K1_LD")
    addrs()
    o("s_waitcnt vmcnt(0)"); o("s_barrier")
    o("s_branch K1_J")
    lab("K1_LX")
    if int(OPT.get('touch', 0)):
        srd(24, 12, WS_SIZE)
        o("s_lshl_b32 s14, s37, 9"); o(f"s_add_u32 s14, s14, {WS_TAB:#x}"); o("v_mov_b32 v248, s14"); o("s_lshl_b32 s14, s3, 1")
        o("v_writelane_b32 v248, s14, 1"); o(f"s_mov_b32 s14, {WS_OFF:#x}"); o("v_writelane_b32 v248, s14, 2")
        o("buffer_load_dword v249, v248, s[24:27], 0 offen")
    srd(60, 4, N, 256)
    o("v_lshl_add_u32 v58, v57, 3, v56"); o("v_add_u32 v53, s37, v58")
    o("v_and_b32 v55, 15, v0"); o("v_lshlrev_b32 v59, 3, v56"); o("v_xor_b32 v55, v55, v59"); o("v_lshlrev_b32 v55, 4, v55")
    o("v_cmp_gt_u32 vcc, 2, v58"); o("v_mov_b32 v59, 0xffff")
    for k in range(25):
        t, i = divmod(k, 8)
        if k == nb: o("s_barrier")
        o(f"s_mov_b32 m0, {K1_X + t*8320 + i*1040}"); o(f"v_add_u32 v54, {32*t + 16*(i >> 2) + 2*(i & 3)}, v53")
        if t == 3: o("v_cndmask_b32 v54, v59, v54, vcc")
        o("buffer_load_dwordx4 v[54:55], s[60:63], 0 idxen offen lds")
    if int(OPT.get('touch', 0)) >= 2:
        sh = int(OPT.get('tsh', 16))
        o("v_lshl_add_u32 v250, v20, 5, s35"); o(f"v_lshlrev_b32 v250, {sh}, v250")
        srd(76, 6, E*32); o("buffer_load_dword v249, v250, s[76:79], 0 offen")
        srd(76, 12, WS_TAB + N*512); o("buffer_load_dword v249, v250, s[76:79], 0 offen")
        srd(76, 72, N*256); o("buffer_load_dword v249, v250, s[76:79], 0 offen")
    o("s_cmp_ge_u32 s2, 68"); o("s_cbranch_scc1 K1_LD")
    o("s_lshr_b32 s14, s2, 5")
    o("s_cmp_eq_u32 s14, 1"); o("s_cselect_b32 s40, s46, s40"); o("s_cselect_b32 s41, s47, s41"); o(f"s_cselect_b32 s68, 1.0, {NLOG2E:#x}")
    o("s_mov_b32 s66, 32768"); o("s_bfe_u32 s50, s2, 0x20003"); o("s_and_b32 s51, s2, 7"); o("s_mov_b32 s32, 14")
    o("s_cmp_eq_u32 s14, 2"); o("s_cselect_b32 s40, s44, s40"); o("s_cselect_b32 s41, s45, s41"); o("s_cselect_b32 s66, 4096, s66")
    o("s_cselect_b32 s50, s51, s50"); o("s_cselect_b32 s51, 0, s51"); o("s_cselect_b32 s32, 11, s32")
    o("s_mov_b32 s64, s40"); o("s_and_b32 s65, s41, 0xffff"); o("s_mov_b32 s67, 0x20000")
    o("s_lshl_b32 s50, s50, 6"); o("s_lshl_b32 s51, s51, 11"); o("s_add_u32 s50, s50, s51")
    o("v_and_b32 v4, 3, v0"); o("v_bfe_u32 v5, v0, 3, 2"); o("v_lshl_or_b32 v4, v5, 2, v4")
    o("v_bfe_u32 v5, v0, 2, 1"); o("v_lshl_or_b32 v4, v5, 4, v4")
    o("v_lshlrev_b32 v5, s32, v57"); o("v_lshl_add_u32 v4, v4, 1, v5"); o("v_add_u32 v4, s50, v4")
    for j in range(8): o(f"buffer_load_ushort v{8+j}, v4, s[64:67], 0 offen offset:{j*256}")
    o("s_branch K1_LD")
    lab("K1_PREP2")
    o("s_lshl_b32 s14, s2, 10"); o(f"s_add_u32 s14, s14, {WS_WF:#x}")
    for j in range(8):
        o(f"v_lshlrev_b32 v{8+j}, 16, v{8+j}"); o(f"v_mul_f32 v{8+j}, s68, v{8+j}")
    for j in range(4): o(f"v_cvt_pk_bf16_f32 v{52+j}, v{8+2*j}, v{9+2*j}")
    o("buffer_store_dwordx4 v[52:55], v42, s[24:27], s14 offen")
    o("s_branch K1_G")

def regs_of(tok):
    m = re.fullmatch(r"v\[(\d+):(\d+)\]", tok)
    if m: return set(range(int(m.group(1)), int(m.group(2)) + 1))
    m = re.fullmatch(r"v(\d+)", tok)
    return {int(m.group(1))} if m else set()
def check_hazards(ins):
    P = []
    for s in ins:
        if s.endswith(':'): continue
        op, _, rest = s.partition(' ')
        t = [x.strip() for x in rest.split(',')]
        t = [x.split(' ')[0] for x in t]
        if op.startswith('v_mfma'):
            P.append(('m', 12 if '32x32' in op else 8, regs_of(t[0]), regs_of(t[1]) | regs_of(t[2]), regs_of(t[3]), s))
        elif op.startswith('v_'):
            P.append(('t' if op in ('v_exp_f32', 'v_rcp_f32') else 'v', 0, regs_of(t[0]), set().union(*map(regs_of, t[1:])), set(), s))
        elif op.startswith('ds_read'):
            P.append(('d', 0, regs_of(t[0]), regs_of(t[1]), set(), s))
        elif op.startswith('buffer'):
            P.append(('d', 0, set(), regs_of(t[0]), set(), s))
        else: P.append(('s', 0, set(), set(), set(), s))
    n = len(P)
    for i, (k, w, d, ab, c, s) in enumerate(P):
        for j in range(1, 13):
            k2, w2, d2, ab2, c2, s2 = P[(i + j) % n]
            gap = j - 1
            if k == 'm':
                if k2 == 'm':
                    assert not (gap < w and d & ab2), (s, s2)
                    if d & c2 and d != c2: assert gap >= w - 2, (s, s2)
                else: assert not (gap < w and d & (d2 | ab2)), (s, s2, gap)
                if k2 in 'vt': assert not (gap < (7 if w == 12 else 3) and c & d2), (s, s2)
            if k in 'vt' and k2 == 'm': assert not (gap < 2 and d & (ab2 | c2)), (s, s2)
            if k == 't' and k2 == 'v': assert not (gap < 1 and d & ab2), (s, s2)

LOWLIM = 2; NS = 2
LUT = 0; IDT = 4096; NB = IDT + 26 * 80; LIST = NB + 256; MB = LIST + 8192; ROW = 264; CNT = MB + 26 * ROW; ZSZ = 26 * ROW + 256
ER = CNT + 256; RING = ER + 8192; WS_ = 4160; SLOT = 4 * WS_; K2_LDS = RING + (NS + 1) * SLOT
assert K2_LDS <= 81920 and ER % 16 == 0 and LIST % 16 == 0 and MB % 16 == 0 and 4096 < ZSZ <= 8192 and ZSZ % 16 == 0

class RA:
    def __init__(s): s.n = 1
    def get(s, k=1, al=1):
        s.n = (s.n + al - 1) // al * al
        b = s.n; s.n += k; return b
R = RA()
vTA = R.get()
IX = [R.get(2, 2) for _ in range(4)]; IXE = R.get(2, 2); MQ = R.get(2, 2)
(vTC, vEA, vMT, vSA, vMA, vL1, vL2, vSV, vHC, vWF, vXA, vXR, vXI, vXO) = [R.get() for _ in range(14)]
SEG = R.get(4, 4); PT = R.get(4, 4)
GV = R.get(64, 4); ACC = R.get(64, 4)
TF = R.get(16, 4); EF = R.get(4, 4); SF = R.get(8, 4); WC = R.get(4, 4); T0 = R.get(8, 4); AF = R.get(16, 4); SEL = R.get(8, 4)
NVGPR = R.n
assert NVGPR <= 255, NVGPR
REC = GV; RANK = GV + 32; AD = GV + 48
sX, sE, sW, sO, sT = 8, 12, 16, 20, 96
sWAVE, sBASE, sMR, sME, sCNT, sNT, sRS, sLIM, sFIRST, sMORE, sDS, sT0, sT1, sEPS, s80, sMET = range(24, 40)
sHM, sSV, sWF, sS0 = 42, 44, 52, 54
sK = 56

def ldt(i): return f"buffer_load_dwordx4 {vr(IX[i],2)}, s[{sT}:{sT+3}], 0 idxen offen lds"
def lde(): return f"buffer_load_dwordx4 {vr(IXE,2)}, s[{sE}:{sE+3}], 0 idxen offen lds"
def loff(u): return (u & 1) * 4096 + (u >> 1) * 256
def nextslot(r): return [f"s_add_u32 s{r}, s{r}, {SLOT}", f"s_cmp_eq_u32 s{r}, {NS*SLOT}", f"s_cselect_b32 s{r}, 0, s{r}"]

def vstream(Gc, Vc):
    A = []
    for p in range(0, 22, 2):
        if p < 16: A += [(f"v_exp_f32 v{Gc+p}, v{Gc+p}", 8), (f"v_exp_f32 v{Gc+p+1}, v{Gc+p+1}", 8)]
        q = p - 2
        if 0 <= q < 16:
            A += [(f"v_add_f32 v{Gc+q}, 1.0, v{Gc+q}", 4), (f"v_add_f32 v{Gc+q+1}, 1.0, v{Gc+q+1}", 4),
                  (f"v_rcp_f32 v{Gc+q}, v{Gc+q}", 8), (f"v_rcp_f32 v{Gc+q+1}, v{Gc+q+1}", 8)]
        q = p - 4
        if 0 <= q < 16: A += [(f"v_mul_f32 v{Vc+q}, v{Gc+q}, v{Vc+q}", 4), (f"v_mul_f32 v{Vc+q+1}, v{Gc+q+1}, v{Vc+q+1}", 4)]
        q = p - 6
        if 0 <= q < 16: A += [(f"v_cvt_pk_bf16_f32 v{Gc+q//2}, v{Gc+q}, v{Gc+q+1}", 4), (f"v_cvt_pk_bf16_f32 v{Vc+q//2}, v{Vc+q}, v{Vc+q+1}", 4)]
    return A
def zphase(P, p):
    d = ACC + 32 * p
    return [m32(d, P, T0, d), m32(d+16, P+16, T0, d+16), m32(d, P+4, T0+4, d), m32(d+16, P+20, T0+4, d+16)]

HEAD = {}
def body(b, peel=False):
    p = b % 2
    Gn = GV + 32 * p; Vn = Gn + 16; Gc = GV + 32 * (1 - p); Vc = Gc + 16; af = AF + 8 * p
    ne = sum(1 for k in range(NS - 1) if (b - k) % 4 == 0) + (1 if (b - (NS - 1)) % 4 == 0 else 0)
    vmw = 4 * (NS - 1) + ne
    z = zphase(Gn, p)
    def dma(i): return [f"s_add_u32 m0, s{sDS}, {i*1040}", None, ldt(i), f"ds_read_u16 v{IX[i]}, v{vL1} offset:{loff(b+NS+1)+64*i}"]
    top = ["s_waitcnt vmcnt(8) lgkmcnt(0)", "s_barrier"] if b == 3 else ["s_waitcnt lgkmcnt(0)"]
    seq = []
    seq.append([z[0], [f"s_add_u32 s{sDS}, s{sMR}, s{sRS}"] + dma(0), [f"v_mad_u32_u24 v{vSV}, v{vSV}, s{s80}, v{vHC}"]])
    seq.append([z[1], [f"ds_read_b128 {vr(SF,4)}, v{vSV}", f"ds_read_b128 {vr(SF+4,4)}, v{vSV} offset:32"] + dma(1), []])
    seq.append([z[2], dma(2) + [f"ds_read_u8 v{vSV}, v{vSA} offset:{loff(b+1)}"], []])
    seq.append([z[3], dma(3) + ([f"s_sub_u32 s{sCNT}, s{sCNT}, 1", "s_cbranch_scc1 TAIL"] if p == 0 else []) + [f"ENT{b}:"], []])
    e1 = [f"s_mov_b32 m0, s{sME}", None, lde(), f"s_xor_b32 s{sME}, s{sME}, s{sMET}"] if b == 0 else []
    seq.append([m32(Gn, TF, SEL, None), [f"ds_read_b128 {vr(T0,4)}, v{MQ}"] + e1, [f"v_and_b32 v{IXE}, 0x7ffff, v{IXE}"] if b == 0 else []])
    seq.append([m32(Gn, TF+4, SEL+4, Gn), [f"ds_read_b128 {vr(T0+4,4)}, v{MQ+1}"] + nextslot(sRS), [f"v_xor_b32 v{vEA}, v{vEA}, v{vMT}"] if b == 3 else []])
    seq.append([m32(Gn, EF, WC, Gn), [f"ds_read_b128 {vr(EF,4)}, v{vEA} offset:{(b+1)%4*1024}", f"ds_read_u16 v{MQ}, v{vMA} offset:{b*8}",
                f"ds_read_u16 v{MQ+1}, v{vMA} offset:{b*8+2}"], [f"v_add_u32 v{vTC}, s{sRS}, v{vTA}"]])
    seq.append([m32(Vn, TF+8, SEL, None), [f"ds_read_b32 v{IXE}, v{vL2}"] if b == 3 else [], []])
    seq.append([m32(Vn, TF+12, SEL+4, Vn), [None, f"s_waitcnt lgkmcnt({10 if b == 3 else 9})"], []])
    seq.append([m32(Gn, SF, af, Gn), [None, f"s_waitcnt vmcnt({vmw})"],
                [f"v_add_u32 v{r}, 0x200, v{r}" for r in (vSA, vL1, vL2)] + [f"v_add_u32 v{vMA}, 32, v{vMA}"] if b == 3 else []])
    seq.append([m32(Gn, SF+4, af+4, Gn), [f"ds_read_b128 {vr(TF+4*j,4)}, v{vTC} offset:{16*j}" for j in range(4)], []])
    A = [] if peel else vstream(Gc, Vc)
    wt = [float(x) for x in OPT.get('wt', '1,1,1,1,1,1,1,1,1,1,1.6').split(',')]
    tot = sum(c for _, c in A); out = list(top); ai = 0; acc = 0; budget = 0
    for i, (m, ex, xv) in enumerate(seq):
        budget += tot * wt[i] / sum(wt)
        g = []
        while ai < len(A) and acc + A[ai][1] / 2 <= budget + 0.01:
            g.append(A[ai][0]); acc += A[ai][1]; ai += 1
        if i == 3 and not peel: HEAD[b] = ai
        if not (peel and i < 4): out.append(m)
        g = xv + g
        last = [x for x in ex if x and (x.startswith("s_waitcnt") or x.startswith("s_cbranch") or x.endswith(":") or x.startswith("s_sub"))]
        ex = [x for x in ex if x not in last]
        if peel: last = [x for x in last if x.startswith("s_waitcnt")]
        first = True
        for x in ex:
            if x is None:
                continue
            if not first and g: out.append(g.pop(0))
            elif not first and peel and x.startswith("buffer"): out.append("s_nop 0")
            out.append(x); first = False
        out += g + last
    assert ai == len(A)
    if OPT.get('nodma'): out = [x for x in out if 'buffer_load' not in x]
    if OPT.get('noe'): out = [x for x in out if f"s[{sE}:{sE+3}]" not in x]
    return out

def emit(lst):
    for it in lst:
        if it.endswith(':'): lab(it[:-1])
        else: o(it)

def masks(tmp):
    a, b_, c = tmp
    o(f"v_and_b32 v{a}, 3, v0"); o(f"v_lshlrev_b32 v{a}, 1, v{a}"); o(f"v_mov_b32 v{c}, 0")
    for i in range(4):
        o(f"v_lshrrev_b32 v{b_}, 19, v{SEG+i}"); o(f"v_max_u32 v{c}, v{c}, v{b_}")
        o(f"v_min_u32 v{b_}, s{sLIM}, v{b_}"); o(f"v_sub_u32 v{b_}, v{b_}, v{a}")
        for j, k in ((0, 2*i), (1, 2*i+1), (8, 8+2*i), (9, 9+2*i)): o(f"v_cmp_lt_i32 s[{sK+2*k}:{sK+2*k+1}], {j}, v{b_}")
    o(f"v_cmp_lt_u32 vcc, s{sLIM}, v{c}")
    o(f"s_or_b64 s[{sSV}:{sSV+1}], s[{sK+16}:{sK+17}], s[{sK+20}:{sK+21}]"); o(f"s_or_b64 s[{sHM}:{sHM+1}], s[{sK+24}:{sK+25}], s[{sK+28}:{sK+29}]")
    o(f"s_or_b64 s[{sSV}:{sSV+1}], s[{sSV}:{sSV+1}], s[{sHM}:{sHM+1}]")
    o(f"v_mov_b32 v{b_}, {CNT-4}")
    o("s_mov_b64 exec, vcc"); o(f"ds_write_b32 v{b_}, v{b_}"); o("s_mov_b64 exec, -1")

def interleave(mf, other, per):
    other = list(other)
    for m in mf:
        o(m)
        for _ in range(per):
            if other: o(other.pop(0))
    for x in other: o(x)
def capture(fn):
    n = len(L); fn(); r = [x.strip() for x in L[n:]]; del L[n:]; return r
def wload(dst, off):
    r = []
    for s in range(8):
        if s % 4 == 0: r.append(f"s_add_u32 s{sT0}, s{sWF}, {off + s*1024:#x}")
        r.append(f"buffer_load_dwordx4 {vr(dst+4*s,4)}, v{vWF}, s[{sW}:{sW+3}], s{sT0} offen offset:{(s%4)*1024}")
    return r
def xblk(base, pair):
    o(f"v_mov_b32 v{pair+1}, v{vXO}")
    for mt in range(2):
        for a in range(2):
            o(f"s_add_u32 m0, s{base}, {(2*mt+a)*1040}")
            o(f"v_cmp_gt_u32 vcc, {(NA if mt == 0 else RN-NA) - 2*a}, v{vXI}")
            o(f"s_add_u32 s{sT0}, s{sBASE}, {NA*mt + 2*a}"); o(f"v_add_u32 v{pair}, s{sT0}, v{vXI}")
            o(f"v_cndmask_b32 v{pair}, v{PT+3}, v{pair}, vcc")
            o(f"buffer_load_dwordx4 {vr(pair,2)}, s[{sX}:{sX+3}], 0 idxen offen lds")

def gen_k2():
    L.append(".globl gmain_kernel"); L.append(".p2align 8"); L.append(".type gmain_kernel,@function")
    lab("gmain_kernel"); VST[0] = 255
    t = [TF + i for i in range(28)]
    stamp(0)
    o("s_load_dwordx2 s[50:51], s[0:1], 88")
    o("s_load_dwordx4 s[4:7], s[0:1], 0")
    o("s_load_dwordx2 s[48:49], s[0:1], 72")
    o("s_setprio 3")
    o(f"v_lshrrev_b32 v{t[0]}, 6, v0")
    o("s_and_b32 s3, s2, 7"); o("s_lshl_b32 s3, s3, 6"); o(f"s_bfe_u32 s{sT0}, s2, 0x50003"); o(f"s_lshl1_add_u32 s3, s{sT0}, s3")
    o(f"v_readfirstlane_b32 s{sWAVE}, v{t[0]}")
    o(f"s_lshr_b32 s{sT0}, s2, 8"); o(f"s_add_u32 s3, s3, s{sT0}")
    o("s_cmp_ge_u32 s2, 512"); o("s_cbranch_scc1 K2_END")
    o(f"s_cmp_ge_u32 s3, {NR}"); o("s_cbranch_scc1 K2_END")
    o(f"v_lshrrev_b32 v{t[1]}, 2, v0")
    o(f"s_lshr_b32 s{sS0}, s3, 2"); o(f"s_mul_i32 s{sS0}, s{sS0}, {OG}"); o(f"s_and_b32 s{sT0}, s3, 3"); o(f"s_lshl2_add_u32 s{sS0}, s{sT0}, s{sS0}"); o(f"s_add_u32 s{sS0}, s{sS0}, {WS_OFF:#x}")
    o(f"v_lshlrev_b32 v{t[1]}, 6, v{t[1]}")
    o(f"s_mul_i32 s{sBASE}, s3, {RN}")
    o(f"v_and_b32 v{vWF}, 63, v0"); o(f"v_lshlrev_b32 v{vWF}, 4, v{vWF}")
    o(f"s_mul_i32 s{sMR}, s{sWAVE}, {WS_}"); o(f"s_add_u32 s{sMR}, s{sMR}, {RING}")
    o(f"s_lshl_b32 s{sWF}, s{sWAVE}, 13"); o(f"s_add_u32 s{sWF}, s{sWF}, {WS_WF:#x}")
    o(f"s_mov_b32 s{sEPS}, {EPS:#x}"); o(f"s_movk_i32 s{s80}, 80")
    o(f"s_mov_b32 s{sFIRST}, 1"); o(f"s_mov_b32 s{sLIM}, 16")
    o("s_waitcnt lgkmcnt(0)"); xstamp("karg")
    srd(sW, 50, WS_SIZE)
    for i in range(4): o(f"buffer_load_dword v{SEG+i}, v{t[1]}, s[{sW}:{sW+3}], s{sS0} offen offset:{16*i}")
    srd(sX, 4, N, 256); srd(sE, 6, E, 32); srd(sO, 48, N, 256)
    o(f"s_add_u32 s50, s50, {WS_TAB:#x}"); o("s_addc_u32 s51, s51, 0"); srd(sT, 50, N, 512)
    lab("ROUND")
    b0, b2, b3, b4, vh = t[16:21]
    o(f"v_lshlrev_b32 v{t[11]}, 4, v0")
    for d in range(4): o(f"v_mov_b32 v{t[0]+d}, 0")
    for off in (0, ZSZ - 4096): o(f"ds_write_b128 v{t[11]}, {vr(t[0],4)} offset:{MB+off}")
    pad0 = 0xffff | (NA << 16)
    o(f"v_mov_b32 v{t[4]}, {pad0:#x}"); o(f"v_mov_b32 v{t[5]}, 0x7ffff"); o(f"v_mov_b32 v{t[6]}, {pad0:#x}"); o(f"v_mov_b32 v{t[7]}, 0x7ffff")
    o(f"ds_write_b128 v{t[11]}, {vr(t[4],4)} offset:{LIST}"); o(f"ds_write_b128 v{t[11]}, {vr(t[4],4)} offset:{LIST+4096}")
    o(f"v_and_b32 v{b0}, 1, v0"); o(f"v_bfe_u32 v{b2}, v0, 2, 1"); o(f"v_bfe_u32 v{b3}, v0, 3, 1"); o(f"v_bfe_u32 v{b4}, v0, 4, 1"); o(f"v_bfe_u32 v{vh}, v0, 5, 1")
    o(f"v_and_b32 v{t[8]}, 3, v0"); o(f"v_lshlrev_b32 v{t[8]}, 1, v{t[8]}")
    o(f"v_mov_b32 v{t[9]}, 0x7ffffff0"); o(f"s_mov_b32 s{sT1}, 0x7ffff")
    o(f"v_and_b32 v{t[12]}, 15, v0"); o(f"v_lshlrev_b32 v{t[13]}, 3, v{b4}")
    o(f"v_xor_b32 v{vXO}, v{t[12]}, v{t[13]}"); o(f"v_lshlrev_b32 v{vXO}, 4, v{vXO}")
    o(f"s_lshr_b32 s{sT0}, s{sWAVE}, 1"); o(f"s_lshl_b32 s{sT0}, s{sT0}, 4"); o(f"s_and_b32 s{sS0}, s{sWAVE}, 1"); o(f"s_lshl2_add_u32 s{sT0}, s{sS0}, s{sT0}")
    o(f"v_lshl_add_u32 v{vXI}, v{vh}, 3, v{b4}"); o(f"v_add_u32 v{vXI}, s{sT0}, v{vXI}")
    o(f"v_mov_b32 v{PT+3}, 0xffff")
    xstamp("consts_done")
    o("s_waitcnt vmcnt(0)"); stamp(1)
    for i in range(4):
        o(f"v_lshrrev_b32 v{t[4+i]}, 19, v{SEG+i}"); o(f"v_cmp_lt_u32 vcc, v{t[8]}, v{t[4+i]}")
        o(f"v_and_b32 v{t[i]}, s{sT1}, v{SEG+i}"); o(f"v_add_lshl_u32 v{t[i]}, v{t[i]}, v{t[8]}, 3")
        o(f"v_cndmask_b32 v{t[10]}, v{t[9]}, v{t[i]}, vcc")
        o(f"buffer_load_dwordx4 {vr(REC+4*i,4)}, v{t[10]}, s[{sW}:{sW+3}], 0 offen")
    o(f"v_max3_u32 v{t[10]}, v{t[4]}, v{t[5]}, v{t[6]}"); o(f"v_max_u32 v{t[10]}, v{t[10]}, v{t[7]}")
    o(f"v_cmp_lt_u32 vcc, 8, v{t[10]}"); o("s_cbranch_vccz REC_DONE")
    for i in range(4): o(f"buffer_load_dwordx4 {vr(REC+16+4*i,4)}, v{t[i]}, s[{sW}:{sW+3}], 0 offen offset:64")
    lab("REC_DONE")
    xstamp("rec_issued")
    PF = int(OPT.get('pf', 0))
    def pref():
        o(f"s_lshr_b32 s{sT0}, s3, 6"); o(f"s_mul_i32 s{sT0}, s{sT0}, {64*RN}"); o(f"s_and_b32 s{sT1}, s3, 63"); o(f"s_lshl_b32 s{sT1}, s{sT1}, 6"); o(f"s_add_u32 s{sT0}, s{sT0}, s{sT1}")
        o(f"v_lshrrev_b32 v{T0+2}, 2, v0"); o(f"v_add_u32 v{T0+2}, s{sT0}, v{T0+2}"); o(f"v_and_b32 v{T0+1}, 3, v0"); o(f"v_lshlrev_b32 v{T0+1}, 7, v{T0+1}")
        for k in range(PF):
            o(f"v_add_u32 v{T0+3}, {-512*RN}, v{T0+2}"); o(f"v_min_u32 v{T0}, v{T0+2}, v{T0+3}")
            o(f"buffer_load_dword v{SEL}, {vr(T0,2)}, s[{sT}:{sT+3}], 0 idxen offen")
            if k + 1 < PF: o(f"v_add_u32 v{T0+2}, 4096, v{T0+2}")
    PFW = OPT.get('pfw', 'rec')
    if PF and PFW == 'rec': pref()
    o("s_waitcnt lgkmcnt(0)"); o("s_barrier"); stamp(2)
    pp = t[14]
    o(f"v_and_b32 v{pp}, 0x13, v0"); o(f"v_lshl_or_b32 v{pp}, v{b2}, 3, v{pp}"); o(f"v_lshl_or_b32 v{pp}, v{b3}, 2, v{pp}")
    o(f"v_lshrrev_b32 v{t[12]}, 3, v{pp}"); o(f"v_lshlrev_b32 v{vTA}, 7, v{pp}"); o(f"v_lshl_add_u32 v{vTA}, v{t[12]}, 4, v{vTA}")
    o(f"v_bfe_u32 v{t[13]}, v0, 1, 1"); o(f"v_xor_b32 v{t[12]}, v{t[13]}, v{vh}"); o(f"v_lshl_add_u32 v{vTA}, v{t[12]}, 6, v{vTA}"); o(f"v_add_u32 v{vTA}, s{sMR}, v{vTA}")
    o(f"v_and_b32 v{t[12]}, 7, v0"); o(f"v_lshlrev_b32 v{t[15]}, 2, v{b4}"); o(f"v_xor_b32 v{t[15]}, v{t[15]}, v{t[12]}")
    o(f"s_lshl_b32 s{sT0}, s{sWAVE}, 7"); o(f"v_lshl_add_u32 v{IX[0]+1}, v{t[15]}, 4, s{sT0}")
    for i in range(1, 4): o(f"v_mov_b32 v{IX[i]+1}, v{IX[0]+1}")
    o(f"v_and_b32 v{vL1}, 0x38, v0"); o(f"v_add_u32 v{vL1}, {LIST}, v{vL1}")
    o(f"v_lshl_or_b32 v{t[15]}, v{b4}, 1, v{b2}"); o(f"v_mul_u32_u24 v{t[15]}, {WS_}, v{t[15]}"); o(f"v_mul_u32_u24 v{t[13]}, 1040, v{t[13]}")
    o(f"v_lshl_or_b32 v{t[21]}, v{b3}, 1, v{b0}"); o(f"v_lshl_add_u32 v{t[15]}, v{t[21]}, 8, v{t[15]}"); o(f"v_add3_u32 v{t[15]}, v{t[15]}, v{t[13]}, 0")
    o(f"v_add_u32 v{t[15]}, {RING + NS*SLOT}, v{t[15]}")
    o(f"v_xor_b32 v{t[13]}, v{vh}, v{b0}"); o(f"v_lshl_add_u32 v{vXA}, v{t[13]}, 7, v{t[15]}")
    o(f"v_lshlrev_b32 v{IXE+1}, 4, v{t[13]}")
    o(f"v_bfe_u32 v{t[13]}, v0, 7, 1"); o(f"v_xor_b32 v{t[13]}, v{t[13]}, v{b0}"); o(f"v_lshl_add_u32 v{vXR}, v{t[13]}, 7, v{t[15]}")
    o(f"v_and_b32 v{t[13]}, 0x60, v0"); o(f"v_add_u32 v{vXR}, v{vXR}, v{t[13]}")
    o(f"s_lshl_b32 s{sT0}, s{sS0}, 12"); o(f"s_lshr_b32 s{sT1}, s{sWAVE}, 1"); o(f"s_lshl_b32 s{sT1}, s{sT1}, 8"); o(f"s_add_u32 s{sT0}, s{sT0}, s{sT1}"); o(f"s_add_u32 s{sT0}, s{sT0}, {LIST+4}")
    o(f"v_bfe_u32 v{vL2}, v0, 1, 5"); o(f"v_lshl_add_u32 v{vL2}, v{vL2}, 3, s{sT0}")
    o(f"s_lshl_b32 s{sME}, s{sWAVE}, 10"); o(f"s_add_u32 s{sME}, s{sME}, {ER}")
    o(f"v_lshlrev_b32 v{vSA}, 3, v{pp}"); o(f"v_add_u32 v{vSA}, {LIST+2}, v{vSA}")
    o(f"v_lshlrev_b32 v{vHC}, 4, v{vh}"); o(f"v_add_u32 v{vHC}, {IDT}, v{vHC}")
    o(f"v_xor_b32 v{vEA}, v{b4}, v{vh}"); o(f"v_lshlrev_b32 v{vEA}, 4, v{vEA}")
    o(f"v_lshl_add_u32 v{vEA}, v{pp}, 5, v{vEA}"); o(f"v_add_u32 v{vEA}, {ER}, v{vEA}")
    o(f"v_add_u32 v{vMT}, 4096, v{vEA}"); o(f"v_xor_b32 v{vMT}, v{vMT}, v{vEA}")
    o(f"v_and_b32 v{t[13]}, 31, v0"); o(f"v_min_u32 v{t[13]}, {NA}, v{t[13]}")
    o(f"v_mul_u32_u24 v{vMA}, {ROW}, v{t[13]}"); o(f"v_lshl_add_u32 v{vMA}, v{vh}, 2, v{vMA}"); o(f"v_add_u32 v{vMA}, {MB}, v{vMA}")
    o(f"v_lshrrev_b32 v{PT+2}, 5, v0"); o(f"v_lshlrev_b32 v{PT+2}, 4, v{PT+2}"); o(f"v_lshl_add_u32 v{PT+2}, v{b3}, 2, v{PT+2}")
    o(f"v_lshl_add_u32 v{t[12]}, v{b4}, 4, v{t[12]}"); o(f"v_lshlrev_b32 v{PT+1}, v{t[12]}, 16")
    o(f"v_and_b32 v{t[12]}, 3, v0"); o(f"v_lshl_add_u32 v{t[12]}, v{b4}, 2, v{t[12]}"); o(f"v_lshlrev_b32 v{t[12]}, v{t[12]}, 16")
    o(f"v_cmp_eq_u32 vcc, v{b3}, v{vh}"); o(f"v_lshlrev_b32 v{t[13]}, 4, v{b2}"); o("s_nop 0")
    o(f"v_cndmask_b32 v{t[12]}, 0, v{t[12]}, vcc"); o(f"v_lshlrev_b32 v{PT}, v{t[13]}, v{t[12]}")
    lab("REMASK")
    masks((t[0], t[1], t[2])); xstamp("masks_done")
    a, b_, c, d_ = t[0:4]; ad = [AD + k for k in range(16)]
    o(f"v_mov_b32 v{a}, 8")
    o(f"v_lshrrev_b32 v{b_}, 2, v{vWF}")
    if PF and PFW == 'mask': pref()
    o(f"s_waitcnt vmcnt({PF if PFW in ('rec', 'mask') else 0})"); xstamp("rec_landed")
    for half in range(2):
        if half: o(f"s_cmp_eq_u64 s[{sSV}:{sSV+1}], 0"); o("s_cbranch_scc1 P1_DONE"); o("s_mov_b64 exec, -1")
        for k in range(8*half, 8*half+8): o(f"v_lshrrev_b32 v{ad[k]}, 24, v{REC+2*k+1}")
        for k in range(8*half, 8*half+8):
            o(f"s_mov_b64 exec, s[{sK+2*k}:{sK+2*k+1}]")
            o(f"ds_add_rtn_u32 v{RANK+k}, v{ad[k]}, v{a} offset:{CNT}")
    lab("P1_DONE")
    o("s_mov_b64 exec, -1")
    o(f"s_cmp_eq_u32 s{sFIRST}, 0"); o("s_cbranch_scc1 NOW")
    o(f"s_add_u32 s{sDS}, s{sMR}, {NS*SLOT}")
    xblk(sDS, t[4])
    for x in wload(ACC, WF_A): o(x)
    o(f"s_lshl_b32 s{sT0}, s{sWAVE}, 10"); o(f"s_add_u32 s{sT0}, s{sT0}, {WS_WF+WF_C:#x}")
    o(f"buffer_load_dwordx4 {vr(WC,4)}, v{vWF}, s[{sW}:{sW+3}], s{sT0} offen")
    lab("NOW")
    if PF and PFW == 'p1': pref()
    o("s_waitcnt lgkmcnt(0)"); xstamp("p1_done"); o("s_barrier"); xstamp("b1")
    o(f"ds_read_b32 v{c}, v{b_} offset:{CNT}")
    o(f"ds_read_b32 v{t[4]}, v{b_} offset:{CNT-4}")
    o(f"v_lshlrev_b32 v{t[5]}, 12, v{vh}")
    o("s_waitcnt lgkmcnt(1)")
    o(f"v_sub_u32 v{d_}, v{t[5]}, v{c}")
    for dd in ("row_shr:1", "row_shr:2", "row_shr:4", "row_shr:8"):
        o(f"v_add_u32_dpp v{c}, v{c}, v{c} {dd} row_mask:0xf bank_mask:0xf bound_ctrl:0"); o("s_nop 1")
    o(f"v_add_u32_dpp v{c}, v{c}, v{c} row_bcast:15 row_mask:0xa bank_mask:0xf")
    o(f"v_add_u32 v{d_}, v{c}, v{d_}")
    o(f"ds_write_b32 v{b_}, v{d_} offset:{NB}")
    o(f"v_readlane_b32 s{sNT}, v{c}, 31"); o(f"v_readlane_b32 s{sT0}, v{c}, 63")
    for k in range(8): o(f"ds_read_b32 v{ad[k]}, v{ad[k]} offset:{NB}")
    o(f"s_max_u32 s{sNT}, s{sNT}, s{sT0}")
    o(f"s_cmp_le_u32 s{sNT}, 4096"); o("s_cbranch_scc0 TOOBIG")
    xstamp("scan_done")
    for half in range(2):
        if half:
            o(f"s_cmp_eq_u64 s[{sSV}:{sSV+1}], 0"); o("s_cbranch_scc1 P2_DONE"); o("s_mov_b64 exec, -1")
            for k in range(8, 16): o(f"ds_read_b32 v{ad[k]}, v{ad[k]} offset:{NB}")
        for k in range(8*half, 8*half+8):
            if k % 4 == 0: o(f"s_waitcnt lgkmcnt({4 - k % 8})")
            o(f"v_add_u32 v{RANK+k}, v{RANK+k}, v{ad[k]}")
        for k in range(8*half, 8*half+8):
            o(f"s_mov_b64 exec, s[{sK+2*k}:{sK+2*k+1}]")
            o(f"ds_write_b64 v{RANK+k}, {vr(REC+2*k,2)} offset:{LIST}")
    lab("P2_DONE")
    o("s_mov_b64 exec, -1")
    o(f"v_readlane_b32 s{sMORE}, v{t[4]}, 0")
    o(f"s_mov_b32 m0, s{sME}")
    o(f"s_waitcnt vmcnt({9 + (PF if PFW == 'p1' else 0)}) lgkmcnt(0)"); xstamp("p2_done"); o("s_barrier"); stamp(5)
    f = t
    def rdidx(u):
        for i in range(4): o(f"ds_read_u16 v{IX[i]}, v{vL1} offset:{loff(u)+64*i}")
    def fill(u, nxt):
        for i in range(4):
            o(f"s_add_u32 m0, s{sMR}, {u*SLOT + i*1040}"); o(f"s_waitcnt lgkmcnt(3)"); o(ldt(i))
            o(f"ds_read_u16 v{IX[i]}, v{vL1} offset:{loff(nxt)+64*i}")
    o(f"ds_read_b32 v{IXE}, v{vL2}"); rdidx(0)
    o(f"v_lshlrev_b32 v{f[9]}, 3, v0")
    o("s_waitcnt lgkmcnt(4)")
    o(f"v_and_b32 v{IXE}, 0x7ffff, v{IXE}"); o(lde())
    for u in range(NS): fill(u, u + 1)
    for k in range(4): o(f"ds_read_u8 v{f[12+k]}, v{f[9]} offset:{LIST+2+k*2048}")
    o(f"ds_read_b32 v{IXE}, v{vL2} offset:512"); o(f"ds_read_u8 v{vSV}, v{vSA}")
    xstamp("fill_issued")
    def ctrl():
        o(f"s_movk_i32 s{sS0}, {ROW}")
        for k in range(4):
            o(f"v_cmp_gt_u32 vcc, {NA}, v{f[12+k]}"); o(f"v_mad_u32_u24 v{f[0]}, v{f[12+k]}, s{sS0}, v{PT+2}"); o("s_nop 0")
            o(f"v_cndmask_b32 v{f[1]}, 0, v{PT+1}, vcc")
            o(f"ds_or_b32 v{f[0]}, v{f[1]} offset:{MB + (k&1)*128 + (k>>1)*8}")
        o(f"s_add_u32 s{sCNT}, s{sNT}, 255"); o(f"s_lshr_b32 s{sCNT}, s{sCNT}, 8"); o(f"s_max_u32 s{sCNT}, s{sCNT}, 1"); o(f"s_lshl_b32 s{sNT}, s{sCNT}, 1"); o(f"s_sub_u32 s{sCNT}, s{sCNT}, 1")
        o(f"s_add_u32 s{sMET}, s{sME}, 4096"); o(f"s_xor_b32 s{sMET}, s{sMET}, s{sME}"); o(f"s_add_u32 s{sME}, s{sME}, 4096")
        o(f"v_add_u32 v{vL2}, 0x400, v{vL2}")
        o(f"s_mov_b32 s{sRS}, 0")
    def lut():
        q = T0
        for d in range(4):
            o(f"v_bfe_u32 v{q+d}, v0, {2*d}, 2"); o(f"v_mul_u32_u24 v{q+d}, 0x8001, v{q+d}")
            o(f"v_and_b32 v{q+d}, 0x10001, v{q+d}"); o(f"v_mul_u32_u24 v{q+d}, 0x3f80, v{q+d}")
        o(f"v_lshlrev_b32 v{q+4}, 4, v0"); o(f"ds_write_b128 v{q+4}, {vr(q,4)} offset:{LUT}")
        o(f"v_lshrrev_b32 v{q}, 3, v0"); o(f"v_and_b32 v{q+1}, 7, v0")
        o(f"v_bfe_u32 v{q+2}, v0, 5, 1"); o(f"v_bfe_u32 v{q+3}, v0, 6, 1"); o(f"v_lshl_or_b32 v{q+2}, v{q+2}, 1, v{q+3}")
        o(f"v_lshrrev_b32 v{q+3}, 7, v0"); o(f"v_lshl_or_b32 v{q+2}, v{q+3}, 2, v{q+2}")
        o(f"v_cmp_eq_u32 vcc, v{q+2}, v{q+1}"); o(f"v_cmp_gt_u32 s[{sHM}:{sHM+1}], {NA}, v{q}"); o(f"v_mov_b32 v{q+6}, 0x3f80"); o(f"v_mov_b32 v{q+7}, 0")
        o(f"s_and_b64 vcc, vcc, s[{sHM}:{sHM+1}]")
        o(f"v_and_b32 v{q+2}, 3, v{q}"); o(f"v_lshlrev_b32 v{q+2}, 4, v{q+2}"); o(f"v_cndmask_b32 v{q+6}, 0, v{q+6}, vcc")
        o(f"v_lshlrev_b64 {vr(q+6,2)}, v{q+2}, {vr(q+6,2)}")
        o(f"v_min_u32 v{q}, {NA}, v{q}"); o(f"v_mul_u32_u24 v{q}, 80, v{q}"); o(f"v_lshl_add_u32 v{q}, v{q+1}, 3, v{q}")
        o(f"ds_write_b64 v{q}, {vr(q+6,2)} offset:{IDT}")
    o(f"s_cmp_eq_u32 s{sFIRST}, 1"); o("s_cbranch_scc1 G1")
    o("s_waitcnt lgkmcnt(0)")
    ctrl()
    o("s_branch G1D")
    lab("G1")
    for mt in range(2):
        for s in range(8): o(f"ds_read_b128 {vr(GV+32*mt+4*s,4)}, v{vXA} offset:{mt*2080 + 16*s}")
        if mt == 0: o("s_waitcnt lgkmcnt(8)")
    lt = capture(lut); ct = capture(ctrl)
    for x in lt[:18]: o(x)
    o(f"s_waitcnt vmcnt({4*NS+2}) lgkmcnt(9)")
    acc = [ACC + 32, ACC + 48]
    interleave([m32(acc[0], GV+4*s, ACC+4*s, None if s == 0 else acc[0]) for s in range(8)], lt[18:] + ct[:16], 5)
    o("s_waitcnt lgkmcnt(5)")
    def cv(mt): return [f"v_cvt_pk_bf16_f32 v{AF+8*mt+r//2}, v{acc[mt]+r}, v{acc[mt]+r+1}" for r in range(0, 16, 2)]
    interleave([m32(acc[1], GV+32+4*s, ACC+4*s, None if s == 0 else acc[1]) for s in range(8)],
               ct[16:] + cv(0) + [f"v_mov_b32 v{acc[0]+r}, 0" for r in range(16)], 5)
    for r in range(32): o(f"v_mov_b32 v{ACC+r}, 0")
    for x in cv(1): o(x)
    for r in range(16): o(f"v_mov_b32 v{acc[1]+r}, 0")
    if STAMP:
        o("s_getreg_b32 s94, hwreg(HW_REG_HW_ID)"); o("s_getreg_b32 s100, hwreg(HW_REG_XCC_ID)"); o("s_and_b32 s94, s94, 0xffff"); o("s_lshl_b32 s100, s100, 16"); o("s_or_b32 s94, s94, s100"); o(f"v_writelane_b32 v{VST[0]}, s94, 3")
    lab("G1D")
    o(f"v_and_b32 v{MQ}, 0xffff, v{PT}"); o(f"v_lshrrev_b32 v{MQ+1}, 16, v{PT}")
    xstamp("g1_done"); stamp(4)
    o(f"s_waitcnt vmcnt({4*(NS-1)}) lgkmcnt(0)"); xstamp("t0_landed"); o("s_barrier")
    o(f"ds_read_b128 {vr(SEL,4)}, v{MQ}"); o(f"ds_read_b128 {vr(SEL+4,4)}, v{MQ+1}")
    o(f"ds_read_b128 {vr(EF,4)}, v{vEA}")
    for j in range(4): o(f"ds_read_b128 {vr(TF+4*j,4)}, v{vTA} offset:{16*j}")
    o(f"s_setprio {OPT.get('lp', 2)}")
    if OPT.get('young'):
        o("s_cmp_lt_u32 s2, 256"); o("s_cbranch_scc1 OLD"); o(f"s_setprio {OPT['young']}"); lab("OLD")
    stamp(6); stamp(8, "s_memtime")
    bodies = [body(b) for b in range(4)]
    check_hazards(sum(bodies, []) + ["s_branch LOOP"])
    emit(body(0, peel=True))
    b1 = bodies[1][:bodies[1].index("ENT1:")]
    o("s_nop 7")
    emit([x for x in b1 if not x.startswith("v_mfma")])
    o("s_branch ENT1")
    lab("TOOBIG")
    o(f"s_mov_b32 s{sLIM}, {LOWLIM}"); o(f"v_mov_b32 v{a}, 0")
    o("s_waitcnt lgkmcnt(0)"); o("s_barrier")
    o(f"ds_write_b32 v{b_}, v{a} offset:{CNT}")
    o("s_waitcnt lgkmcnt(0)"); o("s_barrier")
    o("s_branch REMASK")
    lab("LOOP")
    emit(sum(bodies, []))
    if OPT.get('pp', '99,8,4') != '0':
        th = [int(x) for x in OPT.get('pp', '99,8,4').split(',')]
        for k, v in enumerate(th):
            o(f"s_cmp_lt_u32 s{sCNT}, {v}"); o("s_cbranch_scc0 LOOP"); o(f"s_setprio {2-k}")
    o("s_branch LOOP")
    assert HEAD[0] == HEAD[2]
    lab("TAIL")
    stamp(7); stamp(11, "s_memtime")
    if STAMP: o(f"v_writelane_b32 v{VST[0]}, s{sNT}, 12")
    Gc = GV + 32; WU = TF; x = AF
    o(f"ds_read_b128 {vr(T0,4)}, v{MQ}"); o(f"ds_read_b128 {vr(T0+4,4)}, v{MQ+1}")
    o(f"s_cmp_lg_u32 s{sMORE}, 0"); o("s_cbranch_scc1 TAILM")
    o("s_waitcnt lgkmcnt(0)")
    for ins in wload(WU, WF_U): o(ins)
    lab("TAILM")
    for ins, _ in vstream(Gc, Gc + 16)[HEAD[0]:]: o(ins)
    o("s_waitcnt lgkmcnt(0)")
    def fin(p):
        d = ACC + 32 * p; r = []
        for k in range(16): r.append(f"v_add_f32 v{d+k}, s{sEPS}, v{d+k}")
        for k in range(16): r.append(f"v_rcp_f32 v{d+k}, v{d+k}")
        for k in range(16): r.append(f"v_mul_f32 v{d+16+k}, v{d+k}, v{d+16+k}")
        return r
    for m in zphase(Gc, 1): o(m)
    o(f"s_cmp_lg_u32 s{sMORE}, 0"); o("s_cbranch_scc1 NEXTROUND")
    for s in range(8): o(f"ds_read_b128 {vr(GV+4*s,4)}, v{vXA} offset:{16*s}")
    for mt in range(2):
        for k in range(2): o(f"ds_read_b128 {vr(x+8*mt+4*k,4)}, v{vXR} offset:{mt*2080+16*k}")
    for ins in fin(0): o(ins)
    for s in range(8): o(f"ds_read_b128 {vr(GV+32+4*s,4)}, v{vXA} offset:{2080+16*s}")
    o(f"v_and_b32 v{IX[0]}, 31, v0"); o(f"v_and_b32 v{IX[0]+1}, 0xe0, v0")
    o(f"s_mov_b32 s{sT1}, 0xffff0000")
    o(f"v_cmp_gt_u32 vcc, {NA}, v{IX[0]}"); o(f"v_cmp_gt_u32 s[{sSV}:{sSV+1}], {RN-NA}, v{IX[0]}"); o(f"v_add_u32 v{IX[0]}, s{sBASE}, v{IX[0]}")
    o("s_waitcnt vmcnt(0) lgkmcnt(8)")
    def unp(p): return sum(([f"v_lshlrev_b32 v{ACC+32*p+2*k}, 16, v{x+8*p+k}", f"v_and_b32 v{ACC+32*p+2*k+1}, s{sT1}, v{x+8*p+k}"] for k in range(8)), [])
    def post(p):
        r = []
        for k in range(8):
            z = ACC + 32*p + 16 + 2*k
            r += [f"v_max_f32 v{z}, 0, v{z}", f"v_max_f32 v{z+1}, 0, v{z+1}", f"v_add_f32 v{z}, v{z}, v{z-16}", f"v_add_f32 v{z+1}, v{z+1}, v{z-15}",
                  f"v_cvt_pk_bf16_f32 v{x+8*p+k}, v{z}, v{z+1}"]
        return r
    def st(p): return [f"buffer_store_dwordx4 {vr(x+8*p+4*k,4)}, {vr(IX[0],2)}, s[{sO}:{sO+3}], 0 idxen offen offset:{16*k}" for k in range(2)]
    interleave([m32(ACC+16, WU+4*s, GV+4*s, ACC+16) for s in range(8)], fin(1), 6)
    o("s_waitcnt lgkmcnt(0)"); o("s_nop 0")
    interleave([m32(ACC+48, WU+4*s, GV+32+4*s, ACC+48) for s in range(8)], unp(0) + post(0) + unp(1), 7)
    o("s_mov_b64 exec, vcc")
    for ins in st(0): o(ins)
    o(f"s_mov_b64 exec, s[{sSV}:{sSV+1}]"); o(f"v_add_u32 v{IX[0]}, {NA}, v{IX[0]}")
    for ins in post(1) + st(1): o(ins)
    stamp_out(9, GV, sW, 1)
    lab("K2_END")
    o("s_endpgm")
    lab("NEXTROUND")
    for i in range(4):
        o(f"v_lshrrev_b32 v{vTC}, 19, v{SEG+i}"); o(f"v_min_u32 v{vTC}, s{sLIM}, v{vTC}")
        o(f"v_add_u32 v{SEG+i}, v{SEG+i}, v{vTC}"); o(f"v_lshlrev_b32 v{vTC}, 19, v{vTC}"); o(f"v_sub_u32 v{SEG+i}, v{SEG+i}, v{vTC}")
    o(f"s_mov_b32 s{sFIRST}, 0"); o(f"s_mov_b32 s{sLIM}, 16")
    o("s_waitcnt vmcnt(0) lgkmcnt(0)"); o("s_barrier")
    o("s_branch ROUND")

def kd(name, nv, ns):
    L.append(".p2align 6")
    L.append(f".amdhsa_kernel {name}")
    for k, v in (("next_free_vgpr", nv), ("next_free_sgpr", ns), ("accum_offset", (nv + 3) // 4 * 4), ("group_segment_fixed_size", 0),
                 ("kernarg_size", 96), ("user_sgpr_count", 2), ("user_sgpr_kernarg_segment_ptr", 1), ("system_sgpr_workgroup_id_x", 1),
                 ("float_denorm_mode_32", 3)):
        L.append(f"  .amdhsa_{k} {v}")
    L.append(".end_amdhsa_kernel")

hdr = [l for l in open(f"cdna_kernels/{NAME}.s.ref").read().splitlines() if l.startswith(";") and "@launch" not in l
       and "Override launch" not in l and "grid=ceil" not in l]
L += hdr
L.append(f"; @launch kernel=gsort_kernel grid=({K1_GRID},1,1) block=(512,1,1) lds={K1_LDS}")
L.append(f"; @launch kernel=gmain_kernel grid=(512,1,1) block=(256,1,1) lds={K2_LDS}")
L.append('.amdgcn_target "amdgcn-amd-amdhsa--gfx950"'); L.append(".text")
(gen_k1a if OPT.get('k1') == 'a' else gen_k1)(); gen_k2()
lab("CODE_END")
L.append('.section .rodata,"a"')
kd("gsort_kernel", 256 if STAMP else 252, 102 if STAMP else 80); kd("gmain_kernel", 256 if STAMP else NVGPR, 102)
if STAMP: L.append("; STAMPS " + repr(NAMES))
open(sys.argv[1], "w").write("\n".join(L) + "\n")
print("vgprs", NVGPR, "lds", K2_LDS, "lines", len(L), file=sys.stderr)
```

```python
import sys, struct, re

N = 25000; E = 400000; RN = 49; NR = 511; CH = 1600; NCH = 250
WS_REC = 0; WS_OFF = 0x310000; OROW = 1152; WS_WF = 0x3c0000; WS_TAB = 0x400000; WS_SIZE = 0x4000000
WF_A = 0; WF_U = 0x8000; WF_C = 0x10000; NA = 25
NLOG2E = struct.unpack('<I', struct.pack('<f', -1.4426950408889634))[0]
EPS = struct.unpack('<I', struct.pack('<f', 1e-6))[0]
NAME = "standalone__edge_featured_mpnn_gatedgcn__graph"
OPT = dict(k1='a', tabpol='sc1', recpol='sc1', touch='2', tsh='19', bon='2', lp='3', pp='12,8,4')
OPT.update(a.split('=') for a in sys.argv[2:])
STAMP = int(OPT.get('stamp', 0))
WS_TAB = int(OPT.get('tab', hex(WS_TAB)), 0)
WS_STAMP = 0x3800000
L = []
def o(s): L.append("    " + s)
def lab(s): L.append(s + ":")
def vr(b, n): return f"v[{b}:{b+n-1}]"
VST = [60]
NAMES = {}
def stamp(i, ins="s_memrealtime", name=None):
    if STAMP:
        o(f"{ins} s[100:101]"); o("s_waitcnt lgkmcnt(0)"); o(f"v_writelane_b32 v{VST[0]}, s100, {i}")
def xstamp(name):
    if STAMP:
        NAMES[name] = 16 + len(NAMES); stamp(NAMES[name])
def stamp_out(n, reg, srdn, kern):
    if not STAMP: return
    o("s_mov_b64 exec, -1")
    stamp(n)
    o(f"v_lshlrev_b32 v{reg}, 2, v0")
    if kern and int(OPT.get('g8', 0)): o("s_and_b32 s63, s3, 1"); o("s_lshl_b32 s63, s63, 8"); o("s_add_u32 s2, s2, s63")
    o(f"s_lshl_b32 s63, s2, 11"); o(f"s_add_u32 s63, s63, {WS_STAMP + kern*0x100000:#x}")
    o(f"buffer_store_dword v{VST[0]}, v{reg}, s[{srdn}:{srdn+3}], s63 offen")
def srd(d, lo, size, stride=0):
    o(f"s_mov_b32 s{d}, s{lo}"); o(f"s_and_b32 s{d+1}, s{lo+1}, 0xffff")
    if stride: o(f"s_or_b32 s{d+1}, s{d+1}, {stride << 16:#x}")
    o(f"s_mov_b32 s{d+2}, {size:#x}"); o(f"s_mov_b32 s{d+3}, 0x20000")
def scan64(v):
    for d in ("row_shr:1", "row_shr:2", "row_shr:4", "row_shr:8"):
        o("s_nop 1"); o(f"v_add_u32_dpp v{v}, v{v}, v{v} {d} row_mask:0xf bank_mask:0xf bound_ctrl:0")
    o("s_nop 1"); o(f"v_add_u32_dpp v{v}, v{v}, v{v} row_bcast:15 row_mask:0xa bank_mask:0xf")
    o("s_nop 1"); o(f"v_add_u32_dpp v{v}, v{v}, v{v} row_bcast:31 row_mask:0xc bank_mask:0xf")

def m32(d, a, b, c): return f"v_mfma_f32_32x32x16_bf16 {vr(d,16)}, {vr(a,4)}, {vr(b,4)}, " + ("0" if c is None else vr(c,16))
K1_GRID = 256
OG = 4224
K1_W = 16896; K1_X = K1_W + 65536; K1_S = K1_X + 4 * 8320; K1_LDS = K1_S + 8 * 4608
def gen_k1():
    L.append(".globl gsort_kernel"); L.append(".p2align 8"); L.append(".type gsort_kernel,@function")
    lab("gsort_kernel"); VST[0] = 255
    pol = OPT.get('tabpol', '').replace('+', ' '); rpol = OPT.get('recpol', '').replace('+', ' ')
    stamp(0)
    o("s_load_dwordx8 s[4:11], s[0:1], 0")
    o("s_load_dwordx8 s[40:47], s[0:1], 32")
    o("s_load_dwordx2 s[48:49], s[0:1], 64")
    o("s_load_dwordx2 s[12:13], s[0:1], 88")
    o(f"s_cmp_ge_u32 s2, {K1_GRID}"); o("s_cbranch_scc1 K1_END")
    o("v_lshrrev_b32 v2, 6, v0"); o("v_lshlrev_b32 v1, 2, v0")
    o("s_and_b32 s36, s2, 7"); o("s_lshl_b32 s36, s36, 5"); o("s_lshr_b32 s35, s2, 3"); o("s_add_u32 s36, s36, s35")
    o("v_readfirstlane_b32 s33, v2")
    o("v_mov_b32 v2, 0"); o("ds_write_b32 v1, v2")
    o(f"s_mul_i32 s3, s2, {CH*4}"); o("s_mul_i32 s37, s36, 98")
    o(f"s_cmp_lt_u32 s2, {NCH}"); o(f"s_cselect_b32 s14, {CH//4}, 0")
    o("v_cmp_gt_u32 vcc, s14, v0")
    o("v_lshlrev_b32 v40, 4, v0")
    o("v_bfe_u32 v56, v0, 4, 1"); o("v_bfe_u32 v57, v0, 5, 1"); o("v_and_b32 v20, 63, v0")
    o("s_mov_b32 s68, 0"); o("v_lshlrev_b32 v42, 4, v20")
    o("v_bfe_u32 v43, v0, 4, 2"); o("v_lshlrev_b32 v43, 6, v43"); o("v_xor_b32 v43, v43, v40")
    o("v_lshl_add_u32 v58, v57, 3, v56")
    o("s_lshr_b32 s14, s33, 2"); o("s_lshl_b32 s14, s14, 4"); o("s_and_b32 s15, s33, 3"); o("s_lshl1_add_u32 s14, s15, s14")
    o("v_add_u32 v58, s14, v58"); o("v_add_u32 v54, s37, v58")
    o("v_and_b32 v55, 15, v0"); o("v_lshlrev_b32 v59, 3, v56"); o("v_xor_b32 v55, v55, v59"); o("v_lshlrev_b32 v55, 4, v55")
    o("s_mul_i32 s38, s33, 1040"); o(f"s_add_u32 s38, s38, {K1_X}")
    o("s_lshl_b32 s39, s33, 10"); o(f"s_add_u32 s39, s39, {K1_W}")
    o("s_mov_b32 m0, s38")
    o("s_waitcnt lgkmcnt(0)")
    srd(60, 4, N, 256)
    def xd(t):
        if t: o(f"s_add_u32 m0, s38, {t*8320}"); o("v_add_u32 v54, 32, v54")
        if t == 3: o("v_cmp_gt_u32 vcc, 2, v58"); o("v_mov_b32 v59, 0xffff"); o("s_nop 0"); o("v_cndmask_b32 v54, v59, v54, vcc")
        o("buffer_load_dwordx4 v[54:55], s[60:63], 0 idxen offen lds")
    xd(0); xd(1)
    srd(20, 10, E*4); srd(16, 8, E*4)
    o("s_and_saveexec_b64 s[28:29], vcc"); o("s_mov_b64 s[28:29], exec"); o("s_cbranch_execz K1_PREP")
    o("buffer_load_dwordx4 v[4:7], v40, s[20:23], s3 offen")
    o("buffer_load_dwordx4 v[8:11], v40, s[16:19], s3 offen")
    lab("K1_A")
    o("s_mov_b64 exec, -1")
    TCH = int(OPT.get('touch', 0)); SPL = int(OPT.get('split', 0))
    if TCH:
        srd(24, 12, WS_SIZE)
        o("s_lshl_b32 s14, s37, 9"); o(f"s_add_u32 s14, s14, {WS_TAB:#x}"); o("v_mov_b32 v248, s14"); o("s_lshl_b32 s14, s3, 1")
        o("v_writelane_b32 v248, s14, 1"); o(f"s_mov_b32 s14, {WS_OFF:#x}"); o("v_writelane_b32 v248, s14, 2")
        o("buffer_load_dword v249, v248, s[24:27], 0 offen")
    if not OPT.get('early'): o("s_barrier")
    srd(52, 42, 32768); srd(56, 48, 32768)
    for m in range(2):
        for i in range(4):
            o(f"s_add_u32 m0, s39, {m*32768+i*8192}"); o(f"s_movk_i32 s14, {i*8192}"); o(f"buffer_load_dwordx4 v43, s[{52+4*m}:{55+4*m}], s14 offen lds")
    xd(2); xd(3)
    if OPT.get('early'): o("s_barrier")
    def addrs():
        srd(24, 12, WS_SIZE)
        o("v_bfe_u32 v60, v0, 2, 2"); o("v_lshl_add_u32 v60, v57, 6, v60"); o("v_lshlrev_b32 v60, 8, v60")
        o("v_and_b32 v61, 3, v0"); o("v_lshl_add_u32 v60, v61, 3, v60"); o("v_lshl_add_u32 v60, v56, 5, v60")
        o("s_and_b32 s30, s33, 3"); o("v_bfe_u32 v61, v0, 2, 2"); o("v_xor_b32 v61, s30, v61"); o("v_lshl_add_u32 v60, v61, 6, v60"); o(f"v_add_u32 v60, {K1_W}, v60")
        o("v_bfe_u32 v61, v0, 1, 2"); o("v_lshl_or_b32 v61, v56, 2, v61"); o("v_mul_u32_u24 v61, 1040, v61")
        o("v_and_b32 v62, 1, v0"); o("v_bfe_u32 v63, v0, 3, 1"); o("v_lshl_or_b32 v63, v63, 1, v62"); o("v_lshl_add_u32 v61, v63, 8, v61")
        o("s_lshr_b32 s32, s33, 2"); o("s_mul_i32 s14, s32, 8320"); o(f"s_add_u32 s14, s14, {K1_X}")
        o("v_xor_b32 v62, v62, v57"); o("v_lshl_add_u32 v61, v62, 7, v61"); o("v_add_u32 v61, s14, v61")
        o("s_mul_i32 s14, s33, 4608"); o(f"s_add_u32 s14, s14, {K1_S}")
        o("v_and_b32 v62, 31, v0"); o("v_mul_u32_u24 v62, 144, v62"); o("v_lshl_add_u32 v62, v57, 6, v62"); o("v_add_u32 v62, s14, v62")
        o("v_lshrrev_b32 v58, 3, v20"); o("v_and_b32 v59, 7, v0"); o("v_lshlrev_b32 v59, 4, v59")
        o("v_mul_u32_u24 v63, 144, v58"); o("v_add3_u32 v63, v63, v59, s14")
        o("s_lshl_b32 s14, s32, 5"); o("s_add_u32 s14, s14, s37"); o("s_lshl_b32 s14, s14, 9"); o("s_lshl_b32 s30, s30, 7"); o("s_add_u32 s14, s14, s30")
        o("v_lshl_add_u32 v59, v58, 9, v59"); o("v_add_u32 v59, s14, v59")
        o("s_lshl_b32 s31, s3, 1")
    addrs()
    o(f"s_mul_i32 s34, s2, {CH}")
    o("v_add_u32 v3, s34, v1"); o("v_mov_b32 v2, 1"); o(f"s_mov_b32 s15, {-RN}")
    o("v_lshlrev_b32 v20, 5, v20")
    o("s_mov_b64 exec, s[28:29]"); o("s_cbranch_execz K1_B")
    o(f"s_waitcnt vmcnt({10+TCH})"); stamp(1)
    for i in range(4):
        o(f"v_mul_u32_u24 v{12+i}, 21400, v{4+i}")
        o(f"v_lshrrev_b32 v{12+i}, 20, v{12+i}")
        o(f"v_mad_i32_i24 v{4+i}, v{12+i}, s15, v{4+i}")
        o(f"v_lshlrev_b32 v{12+i}, 2, v{12+i}")
        o(f"ds_add_rtn_u32 v{16+i}, v{12+i}, v2")
    lab("K1_B")
    o("s_mov_b64 exec, -1")
    o(f"s_add_u32 s12, s12, {WS_TAB:#x}"); o("s_addc_u32 s13, s13, 0"); srd(16, 12, N * 512)
    o(f"s_mov_b32 s15, {NLOG2E:#x}")
    o(f"s_waitcnt vmcnt({2*SPL}) lgkmcnt(0)"); o("s_barrier"); stamp(3)
    lab("K1_J")
    WF_ = 64; XF_ = 128; AC = [160, 192]
    for m in range(2):
        for s in range(8):
            for jj in range(2): o(f"ds_read_b64_tr_b16 v[{WF_+32*m+4*s+2*jj}:{WF_+32*m+4*s+2*jj+1}], v60 offset:{m*32768+s*2048+jj*1024}")
            if m == 0: o(f"ds_read_b128 {vr(XF_+4*s,4)}, v61 offset:{16*s}")
    o("ds_read_b128 v[24:27], v20"); o("ds_read_b128 v[28:31], v20 offset:16")
    def post(t):
        a = AC[t]; r = []
        for k in range(16): r.append(f"v_mul_f32 v{a+k}, s15, v{a+k}")
        for k in range(16): r.append(f"v_cvt_pk_bf16_f32 v{224+k}, v{a+2*k}, v{a+2*k+1}")
        r += [f"ds_write_b128 v62, {vr(224+4*c,4)} offset:{16*c}" for c in range(4)]
        r += [f"ds_read_b128 {vr(a+4*k,4)}, v63 offset:{k*8*144}" for k in range(4)]
        return r
    def stores(t):
        r = []
        for k in range(4):
            r += [f"s_waitcnt lgkmcnt({3-k})", f"buffer_store_dwordx4 {vr(AC[t]+4*k,4)}, v59, s[16:19], 0 offen {pol}", "v_add_u32 v59, 0x1000, v59"]
        return r
    def recs():
        for i in range(4):
            o(f"v_cmp_lt_u32 vcc, {NA-1}, v{4+i}"); o(f"v_mul_u32_u24 v22, 83, v{8+i}"); o("v_lshrrev_b32 v22, 16, v22")
            o(f"v_cndmask_b32 v23, 0, {NA}, vcc"); o(f"v_sub_u32 v23, v{4+i}, v23")
            o(f"v_lshl_or_b32 v{44+2*i}, v23, 16, v{8+i}")
            o("v_cndmask_b32 v23, 0, 32, vcc"); o("v_or_b32 v22, v22, v23")
            o(f"v_lshl_add_u32 v{45+2*i}, v22, 26, v3")
            if i < 3: o("v_add_u32 v3, 1, v3")
    def scan():
        o("v_mov_b32 v33, v24")
        for j in range(2, 8): o(f"v_add_u32 v{32+j}, v{31+j}, v{23+j}")
        o("v_add_u32 v21, v39, v31"); o("v_mov_b32 v22, v21")
        scan64(21)
        o("v_sub_u32 v32, v21, v22")
        for j in range(1, 8): o(f"v_add_u32 v{32+j}, v32, v{32+j}")
    o("s_waitcnt lgkmcnt(15)")
    interleave([m32(AC[0], WF_+4*s, XF_+4*s, None if s == 0 else AC[0]) for s in range(8)], capture(recs), 5)
    o("s_waitcnt vmcnt(0) lgkmcnt(0)")
    if SPL: o("s_barrier")
    sc = capture(scan); p0 = post(0)
    q = sc + p0[:24]
    for s in range(8):
        o(m32(AC[0]+16, WF_+32+4*s, XF_+4*s, None if s == 0 else AC[0]+16))
        o(f"ds_read_b128 {vr(XF_+4*s,4)}, v61 offset:{2*8320+16*s}")
        for _ in range(5):
            if q: o(q.pop(0))
    lab("K1_G")
    o("s_waitcnt lgkmcnt(0)")
    mf = [m32(AC[1], WF_+4*s, XF_+4*s, None if s == 0 else AC[1]) for s in range(8)] + [m32(AC[1]+16, WF_+32+4*s, XF_+4*s, None if s == 0 else AC[1]+16) for s in range(8)]
    assert len(q) >= 8
    look = ["ds_write_b128 v20, v[32:35] offset:2048", "ds_write_b128 v20, v[36:39] offset:2064"] + [f"ds_read_b32 v{4+i}, v{12+i} offset:2048" for i in range(4)]
    q = q + p0[24:] + [None] * 5 + stores(0) + look
    for m in mf:
        o(m)
        for _ in range(5):
            if q:
                x = q.pop(0)
                if x: o(x)
    assert not q
    o("v_add_u32 v59, 0x4000, v59"); o("v_cmp_gt_u32 vcc, 2, v58")
    o("s_mov_b64 exec, s[28:29]")
    o("s_waitcnt lgkmcnt(0)")
    for i in range(4):
        o(f"v_add_lshl_u32 v{4+i}, v{4+i}, v{16+i}, 3"); o(f"ds_write_b64 v{4+i}, v[{44+2*i}:{45+2*i}] offset:4096")
    o("s_mov_b64 exec, -1")
    for x in post(1): o(x)
    stamp(4)
    o("s_cmp_lt_u32 s33, 4"); o("s_cbranch_scc1 K1_H")
    o("s_mov_b64 exec, vcc")
    for x in stores(1)[:2]: o(x)
    o("s_mov_b64 exec, -1")
    o("s_cmp_lg_u32 s68, 0"); o("s_cbranch_scc1 K1_PREP2")
    o("s_cmp_lg_u32 s33, 6"); o("s_cbranch_scc1 K1_I")
    for j in range(8): o(f"v_lshl_add_u32 v{24+j}, v{24+j}, 19, v{32+j}"); o(f"v_add_u32 v{24+j}, s34, v{24+j}")
    o(f"v_mul_u32_u24 v41, {OG//16}, v20"); o("s_lshl_b32 s35, s36, 4"); o(f"s_add_u32 s35, s35, {WS_OFF:#x}"); o(f"s_add_u32 s30, s35, {OG}")
    o("buffer_store_dwordx4 v[24:27], v41, s[24:27], s35 offen"); o("buffer_store_dwordx4 v[28:31], v41, s[24:27], s30 offen")
    o("s_branch K1_I")
    lab("K1_H")
    for x in stores(1): o(x)
    lab("K1_I")
    o(f"v_cmp_gt_u32 vcc, {CH//2-512}, v0")
    o("s_waitcnt lgkmcnt(0)"); o("s_barrier")
    o(f"s_cmp_lt_u32 s2, {NCH}"); o("s_cbranch_scc0 K1_F")
    o("ds_read_b128 v[44:47], v40 offset:4096"); o("ds_read_b128 v[48:51], v40 offset:12288")
    o("s_add_u32 s30, s31, 8192")
    o("s_waitcnt lgkmcnt(1)")
    o(f"buffer_store_dwordx4 v[44:47], v40, s[24:27], s31 offen {rpol}")
    o("s_and_saveexec_b64 s[28:29], vcc"); o("s_cbranch_execz K1_F")
    o("s_waitcnt lgkmcnt(0)")
    o(f"buffer_store_dwordx4 v[48:51], v40, s[24:27], s30 offen {rpol}")
    lab("K1_F")
    stamp_out(2, 12, 24, 0)
    lab("K1_END")
    o("s_endpgm")
    lab("K1_PREP")
    o("s_cmp_ge_u32 s2, 68"); o("s_cbranch_scc1 K1_A")
    o("s_mov_b64 exec, -1")
    o("s_lshr_b32 s14, s2, 5")
    o("s_cmp_eq_u32 s14, 1"); o("s_cselect_b32 s40, s46, s40"); o("s_cselect_b32 s41, s47, s41"); o(f"s_cselect_b32 s68, 1.0, {NLOG2E:#x}")
    o("s_mov_b32 s66, 32768"); o("s_bfe_u32 s50, s2, 0x20003"); o("s_and_b32 s51, s2, 7"); o("s_mov_b32 s32, 14")
    o("s_cmp_eq_u32 s14, 2"); o("s_cselect_b32 s40, s44, s40"); o("s_cselect_b32 s41, s45, s41"); o("s_cselect_b32 s66, 4096, s66")
    o("s_cselect_b32 s50, s51, s50"); o("s_cselect_b32 s51, 0, s51"); o("s_cselect_b32 s32, 11, s32")
    o("s_mov_b32 s64, s40"); o("s_and_b32 s65, s41, 0xffff"); o("s_mov_b32 s67, 0x20000")
    o("s_lshl_b32 s50, s50, 6"); o("s_lshl_b32 s51, s51, 11"); o("s_add_u32 s50, s50, s51")
    o("v_and_b32 v4, 3, v0"); o("v_bfe_u32 v5, v0, 3, 2"); o("v_lshl_or_b32 v4, v5, 2, v4")
    o("v_bfe_u32 v5, v0, 2, 1"); o("v_lshl_or_b32 v4, v5, 4, v4")
    o("v_lshlrev_b32 v5, s32, v57"); o("v_lshl_add_u32 v4, v4, 1, v5"); o("v_add_u32 v4, s50, v4")
    for j in range(8): o(f"buffer_load_ushort v{240+j}, v4, s[64:67], 0 offen offset:{j*256}")
    o("s_branch K1_A")
    lab("K1_PREP2")
    o("s_lshl_b32 s14, s2, 10"); o(f"s_add_u32 s14, s14, {WS_WF:#x}")
    for j in range(8):
        o(f"v_lshlrev_b32 v{240+j}, 16, v{240+j}"); o(f"v_mul_f32 v{240+j}, s68, v{240+j}")
    for j in range(4): o(f"v_cvt_pk_bf16_f32 v{52+j}, v{240+2*j}, v{241+2*j}")
    o("buffer_store_dwordx4 v[52:55], v42, s[24:27], s14 offen")
    o("s_branch K1_I")

def gen_k1a():
    L.append(".globl gsort_kernel"); L.append(".p2align 8"); L.append(".type gsort_kernel,@function")
    lab("gsort_kernel"); VST[0] = 255
    pol = OPT.get('tabpol', '').replace('+', ' '); rpol = OPT.get('recpol', '').replace('+', ' ')
    if OPT.get('cpf'):
        o("s_getpc_b64 s[70:71]")
        o("v_lshlrev_b32 v236, 7, v0"); o("v_min_u32 v236, CODE_END-gsort_kernel-8, v236")
        o("v_mov_b32 v237, s71"); o("v_add_co_u32 v236, vcc, s70, v236"); o("s_nop 1"); o("v_addc_co_u32 v237, vcc, 0, v237, vcc")
        o("global_load_dword v238, v[236:237], off")
    stamp(0)
    o("s_load_dwordx8 s[4:11], s[0:1], 0")
    o("s_load_dwordx8 s[40:47], s[0:1], 32")
    o("s_load_dwordx2 s[48:49], s[0:1], 64")
    o("s_load_dwordx2 s[12:13], s[0:1], 88")
    o("s_load_dwordx2 s[72:73], s[0:1], 72")
    o(f"s_cmp_ge_u32 s2, {K1_GRID}"); o("s_cbranch_scc1 K1_END")
    o("v_lshrrev_b32 v2, 6, v0"); o("v_lshlrev_b32 v1, 2, v0")
    o("s_and_b32 s36, s2, 7"); o("s_lshl_b32 s36, s36, 5"); o("s_lshr_b32 s35, s2, 3"); o("s_add_u32 s36, s36, s35")
    o("v_readfirstlane_b32 s33, v2")
    o("v_mov_b32 v2, 0"); o("ds_write_b32 v1, v2")
    o(f"s_mul_i32 s3, s2, {CH*4}"); o("s_mul_i32 s37, s36, 98")
    o(f"s_cmp_lt_u32 s2, {NCH}"); o(f"s_cselect_b32 s14, {CH//5}, 0")
    o("v_cmp_gt_u32 vcc, s14, v0")
    o("v_lshlrev_b32 v40, 4, v0")
    o("v_bfe_u32 v56, v0, 4, 1"); o("v_bfe_u32 v57, v0, 5, 1"); o("v_and_b32 v20, 63, v0")
    o("s_mov_b32 s68, 0"); o("v_lshlrev_b32 v42, 4, v20")
    o("v_mul_u32_u24 v43, 20, v0")
    o("s_cmp_ge_u32 s33, 5")
    o("s_waitcnt lgkmcnt(0)")
    o("s_cbranch_scc1 K1_LOAD")
    srd(20, 10, E*4); srd(16, 8, E*4)
    o("s_and_saveexec_b64 s[28:29], vcc"); o("s_mov_b64 s[28:29], exec"); o("s_cbranch_execz K1_A")
    o("buffer_load_dwordx4 v[64:67], v43, s[20:23], s3 offen"); o("buffer_load_dword v68, v43, s[20:23], s3 offen offset:16")
    o("buffer_load_dwordx4 v[72:75], v43, s[16:19], s3 offen"); o("buffer_load_dword v76, v43, s[16:19], s3 offen offset:16")
    lab("K1_A")
    o("s_mov_b64 exec, -1")
    o("s_barrier")
    def addrs():
        srd(24, 12, WS_SIZE)
        o("v_bfe_u32 v60, v0, 2, 2"); o("v_lshl_add_u32 v60, v57, 6, v60"); o("v_lshlrev_b32 v60, 8, v60")
        o("v_and_b32 v61, 3, v0"); o("v_lshl_add_u32 v60, v61, 3, v60"); o("v_lshl_add_u32 v60, v56, 5, v60")
        o("s_and_b32 s30, s33, 3"); o("v_bfe_u32 v61, v0, 2, 2"); o("v_xor_b32 v61, s30, v61"); o("v_lshl_add_u32 v60, v61, 6, v60"); o(f"v_add_u32 v60, {K1_W}, v60")
        o("v_bfe_u32 v61, v0, 1, 2"); o("v_lshl_or_b32 v61, v56, 2, v61"); o("v_mul_u32_u24 v61, 1040, v61")
        o("v_and_b32 v62, 1, v0"); o("v_bfe_u32 v63, v0, 3, 1"); o("v_lshl_or_b32 v63, v63, 1, v62"); o("v_lshl_add_u32 v61, v63, 8, v61")
        o("s_lshr_b32 s32, s33, 2"); o("s_mul_i32 s14, s32, 8320"); o(f"s_add_u32 s14, s14, {K1_X}")
        o("v_xor_b32 v62, v62, v57"); o("v_lshl_add_u32 v61, v62, 7, v61"); o("v_add_u32 v61, s14, v61")
        o("s_mul_i32 s14, s33, 4608"); o(f"s_add_u32 s14, s14, {K1_S}")
        o("v_and_b32 v62, 31, v0"); o("v_mul_u32_u24 v62, 144, v62"); o("v_lshl_add_u32 v62, v57, 6, v62"); o("v_add_u32 v62, s14, v62")
        o("v_lshrrev_b32 v58, 3, v20"); o("v_and_b32 v59, 7, v0"); o("v_lshlrev_b32 v59, 4, v59")
        o("v_mul_u32_u24 v63, 144, v58"); o("v_add3_u32 v63, v63, v59, s14")
        o("s_lshl_b32 s14, s32, 5"); o("s_add_u32 s14, s14, s37"); o("s_lshl_b32 s14, s14, 9"); o("s_lshl_b32 s30, s30, 7"); o("s_add_u32 s14, s14, s30")
        o("v_lshl_add_u32 v59, v58, 9, v59"); o("v_add_u32 v59, s14, v59")
        o("s_lshl_b32 s31, s3, 1")
    addrs()
    o(f"s_mul_i32 s34, s2, {CH}")
    o("v_lshrrev_b32 v3, 2, v43"); o("v_add_u32 v3, s34, v3"); o("v_mov_b32 v2, 1"); o(f"s_mov_b32 s15, {-RN}"); o(f"s_movk_i32 s38, {-64*RN}")
    o("v_lshlrev_b32 v20, 5, v20")
    o("s_mov_b64 exec, s[28:29]"); o("s_cbranch_execz K1_B")
    o("s_waitcnt vmcnt(2)"); stamp(1)
    for i in range(5):
        o(f"v_mul_u32_u24 v{80+i}, 21400, v{64+i}")
        o(f"v_lshrrev_b32 v{80+i}, 20, v{80+i}")
        o(f"v_mad_i32_i24 v{64+i}, v{80+i}, s15, v{64+i}")
        o(f"v_lshlrev_b32 v{80+i}, 2, v{80+i}")
        o(f"ds_add_rtn_u32 v{88+i}, v{80+i}, v2")
    o("s_waitcnt vmcnt(0)")
    for i in range(5):
        o(f"v_cmp_lt_u32 vcc, {NA-1}, v{64+i}")
        if int(OPT.get('rot', 0)):
            o(f"v_lshrrev_b32 v22, 8, v{80+i}"); o(f"v_mad_i32_i24 v22, v22, s38, v{72+i}"); o(f"v_add_u32 v23, {512*RN}, v22"); o("v_min_u32 v22, v22, v23")
            o("v_mul_u32_u24 v22, 83, v22")
        else: o(f"v_mul_u32_u24 v22, 83, v{72+i}")
        o("v_lshrrev_b32 v22, 16, v22")
        o(f"v_cndmask_b32 v23, 0, {NA}, vcc"); o(f"v_sub_u32 v23, v{64+i}, v23")
        o(f"v_lshl_or_b32 v{96+2*i}, v23, 16, v{72+i}")
        o("v_cndmask_b32 v23, 0, 32, vcc"); o("v_or_b32 v22, v22, v23")
        o(f"v_lshl_add_u32 v{97+2*i}, v22, 26, v3")
        if i < 4: o("v_add_u32 v3, 1, v3")
    lab("K1_B")
    o("s_mov_b64 exec, -1")
    o("s_waitcnt lgkmcnt(0)"); o("s_barrier")
    o("ds_read_b128 v[24:27], v20"); o("ds_read_b128 v[28:31], v20 offset:16")
    o("s_waitcnt lgkmcnt(0)")
    o("v_mov_b32 v33, v24")
    for j in range(2, 8): o(f"v_add_u32 v{32+j}, v{31+j}, v{23+j}")
    o("v_add_u32 v21, v39, v31"); o("v_mov_b32 v22, v21")
    scan64(21)
    o("v_sub_u32 v32, v21, v22")
    for j in range(1, 8): o(f"v_add_u32 v{32+j}, v32, v{32+j}")
    o("ds_write_b128 v20, v[32:35] offset:2048"); o("ds_write_b128 v20, v[36:39] offset:2064")
    o("s_mov_b64 exec, s[28:29]")
    for i in range(5): o(f"ds_read_b32 v{64+i}, v{80+i} offset:2048")
    o("s_waitcnt lgkmcnt(0)")
    for i in range(5):
        o(f"v_add_lshl_u32 v{64+i}, v{64+i}, v{88+i}, 3"); o(f"ds_write_b64 v{64+i}, v[{96+2*i}:{97+2*i}] offset:4096")
    o("s_mov_b64 exec, -1")
    o("s_waitcnt lgkmcnt(0)"); o("s_barrier"); stamp(3)
    lab("K1_J")
    if OPT.get('pfe'):
        srd(76, 6, E*32); o("v_lshlrev_b32 v250, 7, v0"); o("s_lshl_b32 s14, s2, 16"); o("v_add_u32 v250, s14, v250")
        o("buffer_load_dword v251, v250, s[76:79], 0 offen " + OPT['pfe'].replace('p', ''))
    WF_ = 64; XF_ = 128; AC = [160, 192]
    o("ds_read_b128 v[44:47], v40 offset:4096"); o("ds_read_b128 v[48:51], v40 offset:12288")
    o(f"v_cmp_gt_u32 vcc, {CH//2-512}, v0")
    for m in range(2):
        for s in range(8):
            for jj in range(2): o(f"ds_read_b64_tr_b16 v[{WF_+32*m+4*s+2*jj}:{WF_+32*m+4*s+2*jj+1}], v60 offset:{m*32768+s*2048+jj*1024}")
        if m == 0:
            for s in range(8): o(f"ds_read_b128 {vr(XF_+4*s,4)}, v61 offset:{16*s}")
    o(f"s_add_u32 s12, s12, {WS_TAB:#x}"); o("s_addc_u32 s13, s13, 0"); srd(16, 12, N * 512)
    o(f"s_mov_b32 s15, {NLOG2E:#x}")
    def post(t):
        a = AC[t]; r = []
        for k in range(16): r.append(f"v_mul_f32 v{a+k}, s15, v{a+k}")
        for k in range(16): r.append(f"v_cvt_pk_bf16_f32 v{224+k}, v{a+2*k}, v{a+2*k+1}")
        r += [f"ds_write_b128 v62, {vr(224+4*c,4)} offset:{16*c}" for c in range(4)]
        r += [f"ds_read_b128 {vr(a+4*k,4)}, v63 offset:{k*8*144}" for k in range(4)]
        return r
    def stores(t):
        r = []
        for k in range(4):
            r += [f"s_waitcnt lgkmcnt({3-k})", f"buffer_store_dwordx4 {vr(AC[t]+4*k,4)}, v59, s[16:19], 0 offen {pol}", "v_add_u32 v59, 0x1000, v59"]
        return r
    o("s_waitcnt lgkmcnt(15)")
    o(f"s_cmp_lt_u32 s2, {NCH}"); o("s_cbranch_scc0 K1_E")
    o("s_add_u32 s30, s31, 8192")
    o(f"buffer_store_dwordx4 v[44:47], v40, s[24:27], s31 offen {rpol}")
    o("s_and_saveexec_b64 s[28:29], vcc"); o("s_cbranch_execz K1_E")
    o(f"buffer_store_dwordx4 v[48:51], v40, s[24:27], s30 offen {rpol}")
    lab("K1_E"); o("s_mov_b64 exec, -1")
    for s in range(8): o(m32(AC[0], WF_+4*s, XF_+4*s, None if s == 0 else AC[0]))
    o("s_waitcnt lgkmcnt(0)")
    for s in range(8):
        o(m32(AC[0]+16, WF_+32+4*s, XF_+4*s, None if s == 0 else AC[0]+16))
        o(f"ds_read_b128 {vr(XF_+4*s,4)}, v61 offset:{2*8320+16*s}")
    o("s_cmp_lg_u32 s68, 0"); o("s_cbranch_scc1 K1_PREP2")
    o("s_cmp_eq_u32 s33, 4"); o("s_cbranch_scc1 K1_OFF")
    lab("K1_G")
    o("s_waitcnt lgkmcnt(0)")
    mf = [m32(AC[1], WF_+4*s, XF_+4*s, None if s == 0 else AC[1]) for s in range(8)] + [m32(AC[1]+16, WF_+32+4*s, XF_+4*s, None if s == 0 else AC[1]+16) for s in range(8)]
    q = post(0) + [None] * 6 + stores(0)
    for m in mf:
        o(m)
        for _ in range(5):
            if q:
                x = q.pop(0)
                if x: o(x)
    assert not q
    o("v_add_u32 v59, 0x4000, v59"); o("v_cmp_gt_u32 vcc, 2, v58")
    for x in post(1): o(x)
    stamp(4)
    o("s_cmp_lt_u32 s33, 4"); o("s_cbranch_scc1 K1_H")
    o("s_mov_b64 exec, vcc")
    for x in stores(1)[:2]: o(x)
    o("s_branch K1_F")
    lab("K1_H")
    for x in stores(1): o(x)
    lab("K1_F")
    stamp_out(2, 12, 24, 0)
    lab("K1_END")
    o("s_endpgm")
    lab("K1_OFF")
    for j in range(8): o(f"v_lshl_add_u32 v{24+j}, v{24+j}, 19, v{32+j}"); o(f"v_add_u32 v{24+j}, s34, v{24+j}")
    o(f"v_mul_u32_u24 v41, {OG//16}, v20"); o("s_lshl_b32 s35, s36, 4"); o(f"s_add_u32 s35, s35, {WS_OFF:#x}"); o(f"s_add_u32 s30, s35, {OG}")
    o("buffer_store_dwordx4 v[24:27], v41, s[24:27], s35 offen"); o("buffer_store_dwordx4 v[28:31], v41, s[24:27], s30 offen")
    o("s_branch K1_G")
    lab("K1_LOAD")
    o("s_barrier")
    nb = int(OPT.get('k1b', 24))
    o("s_cmp_eq_u32 s33, 7"); o("s_cbranch_scc1 K1_LX")
    o("s_cmp_eq_u32 s33, 6"); o("s_cselect_b32 s42, s48, s42"); o("s_cselect_b32 s43, s49, s43"); o("s_cselect_b32 s39, 0x8000, 0"); o(f"s_add_u32 s39, s39, {K1_W}")
    srd(52, 42, 32768)
    o("v_lshrrev_b32 v44, 4, v20"); o("v_lshlrev_b32 v44, 6, v44"); o("v_xor_b32 v44, v44, v42")
    for k in range(32):
        if k == nb: o("s_barrier")
        if k % 4 == 0: o(f"s_add_u32 m0, s39, {k*1024}"); o(f"s_movk_i32 s14, {k*1024}")
        o(f"buffer_load_dwordx4 v44, s[52:55], s14 offen offset:{(k%4)*1024} lds")
    lab("K1_LD")
    addrs()
    o("s_waitcnt vmcnt(0)"); o("s_barrier")
    o("s_branch K1_J")
    lab("K1_LX")
    if int(OPT.get('touch', 0)):
        srd(24, 12, WS_SIZE)
        o("s_lshl_b32 s14, s37, 9"); o(f"s_add_u32 s14, s14, {WS_TAB:#x}"); o("v_mov_b32 v248, s14"); o("s_lshl_b32 s14, s3, 1")
        o("v_writelane_b32 v248, s14, 1"); o(f"s_mov_b32 s14, {WS_OFF:#x}"); o("v_writelane_b32 v248, s14, 2")
        o("buffer_load_dword v249, v248, s[24:27], 0 offen")
    srd(60, 4, N, 256)
    o("v_lshl_add_u32 v58, v57, 3, v56"); o("v_add_u32 v53, s37, v58")
    o("v_and_b32 v55, 15, v0"); o("v_lshlrev_b32 v59, 3, v56"); o("v_xor_b32 v55, v55, v59"); o("v_lshlrev_b32 v55, 4, v55")
    o("v_cmp_gt_u32 vcc, 2, v58"); o("v_mov_b32 v59, 0xffff")
    for k in range(25):
        t, i = divmod(k, 8)
        if k == nb: o("s_barrier")
        o(f"s_mov_b32 m0, {K1_X + t*8320 + i*1040}"); o(f"v_add_u32 v54, {32*t + 16*(i >> 2) + 2*(i & 3)}, v53")
        if t == 3: o("v_cndmask_b32 v54, v59, v54, vcc")
        o("buffer_load_dwordx4 v[54:55], s[60:63], 0 idxen offen lds")
    if int(OPT.get('touch', 0)) >= 2:
        sh = int(OPT.get('tsh', 16))
        o("v_lshl_add_u32 v250, v20, 5, s35"); o(f"v_lshlrev_b32 v250, {sh}, v250")
        srd(76, 6, E*32); o("buffer_load_dword v249, v250, s[76:79], 0 offen")
        srd(76, 12, WS_TAB + N*512); o("buffer_load_dword v249, v250, s[76:79], 0 offen")
        srd(76, 72, N*256); o("buffer_load_dword v249, v250, s[76:79], 0 offen")
    o("s_cmp_ge_u32 s2, 68"); o("s_cbranch_scc1 K1_LD")
    o("s_lshr_b32 s14, s2, 5")
    o("s_cmp_eq_u32 s14, 1"); o("s_cselect_b32 s40, s46, s40"); o("s_cselect_b32 s41, s47, s41"); o(f"s_cselect_b32 s68, 1.0, {NLOG2E:#x}")
    o("s_mov_b32 s66, 32768"); o("s_bfe_u32 s50, s2, 0x20003"); o("s_and_b32 s51, s2, 7"); o("s_mov_b32 s32, 14")
    o("s_cmp_eq_u32 s14, 2"); o("s_cselect_b32 s40, s44, s40"); o("s_cselect_b32 s41, s45, s41"); o("s_cselect_b32 s66, 4096, s66")
    o("s_cselect_b32 s50, s51, s50"); o("s_cselect_b32 s51, 0, s51"); o("s_cselect_b32 s32, 11, s32")
    o("s_mov_b32 s64, s40"); o("s_and_b32 s65, s41, 0xffff"); o("s_mov_b32 s67, 0x20000")
    o("s_lshl_b32 s50, s50, 6"); o("s_lshl_b32 s51, s51, 11"); o("s_add_u32 s50, s50, s51")
    o("v_and_b32 v4, 3, v0"); o("v_bfe_u32 v5, v0, 3, 2"); o("v_lshl_or_b32 v4, v5, 2, v4")
    o("v_bfe_u32 v5, v0, 2, 1"); o("v_lshl_or_b32 v4, v5, 4, v4")
    o("v_lshlrev_b32 v5, s32, v57"); o("v_lshl_add_u32 v4, v4, 1, v5"); o("v_add_u32 v4, s50, v4")
    for j in range(8): o(f"buffer_load_ushort v{8+j}, v4, s[64:67], 0 offen offset:{j*256}")
    o("s_branch K1_LD")
    lab("K1_PREP2")
    o("s_lshl_b32 s14, s2, 10"); o(f"s_add_u32 s14, s14, {WS_WF:#x}")
    for j in range(8):
        o(f"v_lshlrev_b32 v{8+j}, 16, v{8+j}"); o(f"v_mul_f32 v{8+j}, s68, v{8+j}")
    for j in range(4): o(f"v_cvt_pk_bf16_f32 v{52+j}, v{8+2*j}, v{9+2*j}")
    o("buffer_store_dwordx4 v[52:55], v42, s[24:27], s14 offen")
    o("s_branch K1_G")

def regs_of(tok):
    m = re.fullmatch(r"v\[(\d+):(\d+)\]", tok)
    if m: return set(range(int(m.group(1)), int(m.group(2)) + 1))
    m = re.fullmatch(r"v(\d+)", tok)
    return {int(m.group(1))} if m else set()
def check_hazards(ins):
    P = []
    for s in ins:
        if s.endswith(':'): continue
        op, _, rest = s.partition(' ')
        t = [x.strip() for x in rest.split(',')]
        t = [x.split(' ')[0] for x in t]
        if op.startswith('v_mfma'):
            P.append(('m', 12 if '32x32' in op else 8, regs_of(t[0]), regs_of(t[1]) | regs_of(t[2]), regs_of(t[3]), s))
        elif op.startswith('v_'):
            P.append(('t' if op in ('v_exp_f32', 'v_rcp_f32') else 'v', 0, regs_of(t[0]), set().union(*map(regs_of, t[1:])), set(), s))
        elif op.startswith('ds_read'):
            P.append(('d', 0, regs_of(t[0]), regs_of(t[1]), set(), s))
        elif op.startswith('buffer'):
            P.append(('d', 0, set(), regs_of(t[0]), set(), s))
        else: P.append(('s', 0, set(), set(), set(), s))
    n = len(P)
    for i, (k, w, d, ab, c, s) in enumerate(P):
        for j in range(1, 13):
            k2, w2, d2, ab2, c2, s2 = P[(i + j) % n]
            gap = j - 1
            if k == 'm':
                if k2 == 'm':
                    assert not (gap < w and d & ab2), (s, s2)
                    if d & c2 and d != c2: assert gap >= w - 2, (s, s2)
                else: assert not (gap < w and d & (d2 | ab2)), (s, s2, gap)
                if k2 in 'vt': assert not (gap < (7 if w == 12 else 3) and c & d2), (s, s2)
            if k in 'vt' and k2 == 'm': assert not (gap < 2 and d & (ab2 | c2)), (s, s2)
            if k == 't' and k2 == 'v': assert not (gap < 1 and d & ab2), (s, s2)

LOWLIM = 2; NS = 2
LUT = 0; IDT = 4096; NB = IDT + 26 * 80; LIST = NB + 256; MB = LIST + 8192; ROW = 264; CNT = MB + 26 * ROW; ZSZ = 26 * ROW + 256
ER = CNT + 256; RING = ER + 8192; WS_ = 4160; SLOT = 4 * WS_; K2_LDS = RING + (NS + 1) * SLOT
G8 = int(OPT.get('g8', 0)); GS = (K2_LDS - NB + 255) // 256 * 256
assert K2_LDS <= 81920 and ER % 16 == 0 and LIST % 16 == 0 and MB % 16 == 0 and 4096 < ZSZ <= 8192 and ZSZ % 16 == 0

class RA:
    def __init__(s): s.n = 1
    def get(s, k=1, al=1):
        s.n = (s.n + al - 1) // al * al
        b = s.n; s.n += k; return b
R = RA()
vTA = R.get()
IX = [R.get(2, 2) for _ in range(4)]; IXE = R.get(2, 2); MQ = R.get(2, 2)
(vTC, vEA, vMT, vSA, vMA, vL1, vL2, vSV, vHC, vWF, vXA, vXR, vXI, vXO) = [R.get() for _ in range(14)]
SEG = R.get(4, 4); PT = R.get(4, 4)
GV = R.get(64, 4); ACC = R.get(64, 4)
TF = R.get(16, 4); EF = R.get(4, 4); SF = R.get(8, 4); WC = R.get(4, 4); T0 = R.get(8, 4); AF = R.get(16, 4); SEL = R.get(8, 4)
NVGPR = R.n
assert NVGPR <= 255, NVGPR
REC = GV; RANK = GV + 32; AD = GV + 48
sX, sE, sW, sO, sT = 8, 12, 16, 20, 96
sWAVE, sBASE, sMR, sME, sCNT, sNT, sRS, sLIM, sFIRST, sMORE, sDS, sT0, sT1, sEPS, s80, sMET = range(24, 40)
sHM, sSV, sWF, sS0 = 42, 44, 52, 54
sK = 56
sG = 95
def addg(v):
    if G8: o(f"v_add_u32 v{v}, s{sG}, v{v}")
def saddg(r):
    if G8: o(f"s_add_u32 s{r}, s{r}, s{sG}")

def ldt(i): return f"buffer_load_dwordx4 {vr(IX[i],2)}, s[{sT}:{sT+3}], 0 idxen offen lds"
def lde(): return f"buffer_load_dwordx4 {vr(IXE,2)}, s[{sE}:{sE+3}], 0 idxen offen lds"
def loff(u): return (u & 1) * 4096 + (u >> 1) * 256
def nextslot(r): return [f"s_add_u32 s{r}, s{r}, {SLOT}", f"s_cmp_eq_u32 s{r}, {NS*SLOT}", f"s_cselect_b32 s{r}, 0, s{r}"]

def vstream(Gc, Vc):
    A = []
    for p in range(0, 22, 2):
        if p < 16: A += [(f"v_exp_f32 v{Gc+p}, v{Gc+p}", 8), (f"v_exp_f32 v{Gc+p+1}, v{Gc+p+1}", 8)]
        q = p - 2
        if 0 <= q < 16:
            if 'a' in OPT.get('pk', ''): A += [(f"v_pk_add_f32 {vr(Gc+q,2)}, {vr(Gc+q,2)}, 1.0 op_sel_hi:[1,0]", 4)]
            else: A += [(f"v_add_f32 v{Gc+q}, 1.0, v{Gc+q}", 4), (f"v_add_f32 v{Gc+q+1}, 1.0, v{Gc+q+1}", 4)]
            A += [(f"v_rcp_f32 v{Gc+q}, v{Gc+q}", 8), (f"v_rcp_f32 v{Gc+q+1}, v{Gc+q+1}", 8)]
        q = p - 4
        if 0 <= q < 16 and 'm' in OPT.get('pk', ''): A += [(f"v_pk_mul_f32 {vr(Vc+q,2)}, {vr(Gc+q,2)}, {vr(Vc+q,2)}", 4)]
        elif 0 <= q < 16: A += [(f"v_mul_f32 v{Vc+q}, v{Gc+q}, v{Vc+q}", 4), (f"v_mul_f32 v{Vc+q+1}, v{Gc+q+1}, v{Vc+q+1}", 4)]
        q = p - 6
        if 0 <= q < 16: A += [(f"v_cvt_pk_bf16_f32 v{Gc+q//2}, v{Gc+q}, v{Gc+q+1}", 4), (f"v_cvt_pk_bf16_f32 v{Vc+q//2}, v{Vc+q}, v{Vc+q+1}", 4)]
    return A
def zphase(P, p):
    d = ACC + 32 * p
    return [m32(d, P, T0, d), m32(d+16, P+16, T0, d+16), m32(d, P+4, T0+4, d), m32(d+16, P+20, T0+4, d+16)]

HEAD = {}
def body(b, peel=False):
    p = b % 2
    Gn = GV + 32 * p; Vn = Gn + 16; Gc = GV + 32 * (1 - p); Vc = Gc + 16; af = AF + 8 * p
    ne = sum(1 for k in range(NS - 1) if (b - k) % 4 == 0) + (1 if (b - (NS - 1)) % 4 == 0 else 0)
    vmw = 4 * (NS - 1) + ne
    z = zphase(Gn, p)
    def dma(i): return [f"s_add_u32 m0, s{sMR}, {p*SLOT + i*1040}", None, ldt(i), f"ds_read_u16 v{IX[i]}, v{vL1} offset:{loff(b+NS+1)+64*i}"]
    top = ["s_waitcnt vmcnt(8) lgkmcnt(0)", "s_barrier"] if b == 3 else ["s_waitcnt lgkmcnt(0)"]
    if G8 and OPT.get('sp', '2103') != '0': top.append(f"s_setprio {OPT.get('sp', '2103')[b]}")
    if G8 and OPT.get('bar2') and b == 1: top.insert(1, "s_barrier")
    seq = []
    seq.append([z[0], [], [f"v_mad_u32_u24 v{vSV}, v{vSV}, s{s80}, v{vHC}"]])
    seq.append([z[1], [f"ds_read_b128 {vr(SF,4)}, v{vSV}", f"ds_read_b128 {vr(SF+4,4)}, v{vSV} offset:32"], []])
    seq.append([z[2], [f"ds_read_u8 v{vSV}, v{vSA} offset:{loff(b+1)}"], []])
    seq.append([z[3], ([f"s_sub_u32 s{sCNT}, s{sCNT}, 1", "s_cbranch_scc1 TAIL"] if p == 0 else []) + [f"ENT{b}:"], []])
    seq.append([m32(Gn, TF, SEL, None), [f"ds_read_b128 {vr(T0,4)}, v{MQ}"], [f"v_and_b32 v{IXE}, 0x7ffff, v{IXE}"] if b == 0 else []])
    seq.append([m32(Gn, TF+4, SEL+4, Gn), [f"ds_read_b128 {vr(T0+4,4)}, v{MQ+1}"], [f"v_xor_b32 v{vEA}, v{vEA}, v{vMT}"] if b == 3 else []])
    seq.append([m32(Gn, EF, WC, Gn), [f"ds_read_b128 {vr(EF,4)}, v{vEA} offset:{(b+1)%4*1024}", f"ds_read_u16 v{MQ}, v{vMA} offset:{b*8}",
                f"ds_read_u16 v{MQ+1}, v{vMA} offset:{b*8+2}"], []])
    seq.append([m32(Vn, TF+8, SEL, None), [f"ds_read_b32 v{IXE}, v{vL2}"] if b == 3 else [], []])
    seq.append([m32(Vn, TF+12, SEL+4, Vn), ["s_waitcnt lgkmcnt(S)"], []])
    seq.append([m32(Gn, SF, af, Gn), [f"s_waitcnt vmcnt({vmw})"], []])
    seq.append([m32(Gn, SF+4, af+4, Gn), [f"ds_read_b128 {vr(TF+4*j,4)}, v{vTA} offset:{(1-p)*SLOT+16*j}" for j in range(4)],
                [f"v_add_u32 v{r}, 0x200, v{r}" for r in (vSA, vL1, vL2)] + [f"v_add_u32 v{vMA}, 32, v{vMA}"] if b == 3 else []])
    dp = [int(c) for c in OPT.get('dp', '03589')]
    for i in range(4): seq[dp[i]][1] = seq[dp[i]][1] + dma(i)
    if b == 0: seq[dp[4]][1] = seq[dp[4]][1] + [f"s_mov_b32 m0, s{sME}", None, lde(), f"s_xor_b32 s{sME}, s{sME}, s{sMET}"]
    A = [] if peel else vstream(Gc, Vc)
    wt = [float(x) for x in OPT.get('wt', '1,1,1,1,1,1,1,1,1,1,1.6').split(',')]
    tot = sum(c for _, c in A); out = list(top); ai = 0; acc = 0; budget = 0
    for i, (m, ex, xv) in enumerate(seq):
        budget += tot * wt[i] / sum(wt)
        g = []
        while ai < len(A) and acc + A[ai][1] / 2 <= budget + 0.01:
            g.append(A[ai][0]); acc += A[ai][1]; ai += 1
        if i == 3 and not peel: HEAD[b] = ai
        if not (peel and i < 4): out.append(m)
        g = xv + g
        last = [x for x in ex if x and (x.startswith("s_waitcnt") or x.startswith("s_cbranch") or x.endswith(":") or x.startswith("s_sub"))]
        ex = [x for x in ex if x not in last]
        if peel: last = [x for x in last if x.startswith("s_waitcnt")]
        first = True
        for x in ex:
            if x is None:
                continue
            if not first and g: out.append(g.pop(0))
            elif not first and peel and x.startswith("buffer"): out.append("s_nop 0")
            out.append(x); first = False
        out += g + last
    assert ai == len(A)
    i0 = max(i for i, x in enumerate(out) if x.startswith(f"ds_read_b128 {vr(SF+4,4)}")); i1 = out.index("s_waitcnt lgkmcnt(S)")
    out[i1] = f"s_waitcnt lgkmcnt({sum(1 for x in out[i0+1:i1] if x.startswith('ds_'))})"
    for i, x in enumerate(out):
        if x.startswith("buffer_load"): assert not out[i-1].split()[1].startswith("m0"), (out[i-1], x)
    if OPT.get('notrans'): out = [x.replace("v_exp_f32", "v_mov_b32").replace("v_rcp_f32", "v_mov_b32") for x in out]
    if OPT.get('noval'): out = ["s_nop 0" if (x.startswith("v_exp") or x.startswith("v_rcp")) else x for x in out if not (x.startswith("v_add_f32") or x.startswith("v_mul_f32") or x.startswith("v_cvt"))]
    if OPT.get('nodma'): out = [x for x in out if 'buffer_load' not in x]
    if OPT.get('noe'): out = [x for x in out if f"s[{sE}:{sE+3}]" not in x]
    return out

def emit(lst):
    for it in lst:
        if it.endswith(':'): lab(it[:-1])
        else: o(it)

def masks(tmp):
    a, b_, c = tmp
    o(f"v_and_b32 v{a}, 3, v0"); o(f"v_lshlrev_b32 v{a}, 1, v{a}"); o(f"v_mov_b32 v{c}, 0")
    for i in range(4):
        o(f"v_lshrrev_b32 v{b_}, 19, v{SEG+i}"); o(f"v_max_u32 v{c}, v{c}, v{b_}")
        o(f"v_min_u32 v{b_}, s{sLIM}, v{b_}"); o(f"v_sub_u32 v{b_}, v{b_}, v{a}")
        for j, k in ((0, 2*i), (1, 2*i+1), (8, 8+2*i), (9, 9+2*i)): o(f"v_cmp_lt_i32 s[{sK+2*k}:{sK+2*k+1}], {j}, v{b_}")
    o(f"v_cmp_lt_u32 vcc, s{sLIM}, v{c}")
    o(f"s_or_b64 s[{sSV}:{sSV+1}], s[{sK+16}:{sK+17}], s[{sK+20}:{sK+21}]"); o(f"s_or_b64 s[{sHM}:{sHM+1}], s[{sK+24}:{sK+25}], s[{sK+28}:{sK+29}]")
    o(f"s_or_b64 s[{sSV}:{sSV+1}], s[{sSV}:{sSV+1}], s[{sHM}:{sHM+1}]")
    o(f"v_mov_b32 v{b_}, {CNT-4}"); addg(b_)
    o("s_mov_b64 exec, vcc"); o(f"ds_write_b32 v{b_}, v{b_}"); o("s_mov_b64 exec, -1")

def interleave(mf, other, per):
    other = list(other)
    for m in mf:
        o(m)
        for _ in range(per):
            if other: o(other.pop(0))
    for x in other: o(x)
def capture(fn):
    n = len(L); fn(); r = [x.strip() for x in L[n:]]; del L[n:]; return r
def wload(dst, off):
    r = []
    for s in range(8):
        if s % 4 == 0: r.append(f"s_add_u32 s{sT0}, s{sWF}, {off + s*1024:#x}")
        r.append(f"buffer_load_dwordx4 {vr(dst+4*s,4)}, v{vWF}, s[{sW}:{sW+3}], s{sT0} offen offset:{(s%4)*1024}")
    return r
def xblk(base, pair):
    o(f"v_mov_b32 v{pair+1}, v{vXO}")
    for mt in range(2):
        for a in range(2):
            o(f"s_add_u32 m0, s{base}, {(2*mt+a)*1040}")
            o(f"v_cmp_gt_u32 vcc, {(NA if mt == 0 else RN-NA) - 2*a}, v{vXI}")
            o(f"s_add_u32 s{sT0}, s{sBASE}, {NA*mt + 2*a}"); o(f"v_add_u32 v{pair}, s{sT0}, v{vXI}")
            o(f"v_cndmask_b32 v{pair}, v{PT+3}, v{pair}, vcc")
            o(f"buffer_load_dwordx4 {vr(pair,2)}, s[{sX}:{sX+3}], 0 idxen offen lds")

def gen_k2():
    L.append(".globl gmain_kernel"); L.append(".p2align 8"); L.append(".type gmain_kernel,@function")
    lab("gmain_kernel"); VST[0] = 255
    t = [TF + i for i in range(28)]
    stamp(0)
    o("s_load_dwordx2 s[50:51], s[0:1], 88")
    o("s_load_dwordx4 s[4:7], s[0:1], 0")
    o("s_load_dwordx2 s[48:49], s[0:1], 72")
    o("s_setprio 3")
    o(f"v_lshrrev_b32 v{t[0]}, 6, v0")
    o("s_and_b32 s3, s2, 7"); o("s_lshl_b32 s3, s3, 6"); o(f"s_bfe_u32 s{sT0}, s2, 0x50003"); o(f"s_lshl1_add_u32 s3, s{sT0}, s3")
    o(f"v_readfirstlane_b32 s{sWAVE}, v{t[0]}")
    if G8:
        o("v_and_b32 v0, 0xff, v0"); o(f"s_lshr_b32 s{sT0}, s{sWAVE}, 2"); o(f"s_and_b32 s{sWAVE}, s{sWAVE}, 3"); o(f"s_mul_i32 s{sG}, s{sT0}, {GS}")
    else: o(f"s_lshr_b32 s{sT0}, s2, 8")
    o(f"s_add_u32 s3, s3, s{sT0}")
    o(f"s_cmp_ge_u32 s2, {256 if G8 else 512}"); o("s_cbranch_scc1 K2_END")
    o(f"s_cmp_ge_u32 s3, {NR}"); o("s_cbranch_scc1 K2_END")
    o(f"v_lshrrev_b32 v{t[1]}, 2, v0")
    o(f"s_lshr_b32 s{sS0}, s3, 2"); o(f"s_mul_i32 s{sS0}, s{sS0}, {OG}"); o(f"s_and_b32 s{sT0}, s3, 3"); o(f"s_lshl2_add_u32 s{sS0}, s{sT0}, s{sS0}"); o(f"s_add_u32 s{sS0}, s{sS0}, {WS_OFF:#x}")
    o(f"v_lshlrev_b32 v{t[1]}, 6, v{t[1]}")
    o(f"s_mul_i32 s{sBASE}, s3, {RN}")
    o(f"v_and_b32 v{vWF}, 63, v0"); o(f"v_lshlrev_b32 v{vWF}, 4, v{vWF}")
    o(f"s_mul_i32 s{sMR}, s{sWAVE}, {WS_}"); o(f"s_add_u32 s{sMR}, s{sMR}, {RING}"); saddg(sMR)
    o(f"s_lshl_b32 s{sWF}, s{sWAVE}, 13"); o(f"s_add_u32 s{sWF}, s{sWF}, {WS_WF:#x}")
    o(f"s_mov_b32 s{sEPS}, {EPS:#x}"); o(f"s_movk_i32 s{s80}, 80")
    o(f"s_mov_b32 s{sFIRST}, 1"); o(f"s_mov_b32 s{sLIM}, 16")
    o("s_cmp_ge_u32 s2, 256"); o(f"s_cselect_b32 s{sRS}, {OPT.get('bon', 0)}, 0")
    o("s_waitcnt lgkmcnt(0)"); xstamp("karg")
    srd(sW, 50, WS_SIZE)
    for i in range(4): o(f"buffer_load_dword v{SEG+i}, v{t[1]}, s[{sW}:{sW+3}], s{sS0} offen offset:{16*i}")
    srd(sX, 4, N, 256); srd(sE, 6, E, 32); srd(sO, 48, N, 256)
    o(f"s_add_u32 s50, s50, {WS_TAB:#x}"); o("s_addc_u32 s51, s51, 0"); srd(sT, 50, N, 512)
    lab("ROUND")
    b0, b2, b3, b4, vh = t[16:21]
    o(f"v_lshlrev_b32 v{t[11]}, 4, v0"); addg(t[11])
    for d in range(4): o(f"v_mov_b32 v{t[0]+d}, 0")
    for off in (0, ZSZ - 4096): o(f"ds_write_b128 v{t[11]}, {vr(t[0],4)} offset:{MB+off}")
    pad0 = 0xffff | (NA << 16)
    o(f"v_mov_b32 v{t[4]}, {pad0:#x}"); o(f"v_mov_b32 v{t[5]}, 0x7ffff"); o(f"v_mov_b32 v{t[6]}, {pad0:#x}"); o(f"v_mov_b32 v{t[7]}, 0x7ffff")
    o(f"ds_write_b128 v{t[11]}, {vr(t[4],4)} offset:{LIST}"); o(f"ds_write_b128 v{t[11]}, {vr(t[4],4)} offset:{LIST+4096}")
    o(f"v_and_b32 v{b0}, 1, v0"); o(f"v_bfe_u32 v{b2}, v0, 2, 1"); o(f"v_bfe_u32 v{b3}, v0, 3, 1"); o(f"v_bfe_u32 v{b4}, v0, 4, 1"); o(f"v_bfe_u32 v{vh}, v0, 5, 1")
    o(f"v_and_b32 v{t[8]}, 3, v0"); o(f"v_lshlrev_b32 v{t[8]}, 1, v{t[8]}")
    o(f"v_mov_b32 v{t[9]}, 0x7ffffff0"); o(f"s_mov_b32 s{sT1}, 0x7ffff")
    o(f"v_and_b32 v{t[12]}, 15, v0"); o(f"v_lshlrev_b32 v{t[13]}, 3, v{b4}")
    o(f"v_xor_b32 v{vXO}, v{t[12]}, v{t[13]}"); o(f"v_lshlrev_b32 v{vXO}, 4, v{vXO}")
    o(f"s_lshr_b32 s{sT0}, s{sWAVE}, 1"); o(f"s_lshl_b32 s{sT0}, s{sT0}, 4"); o(f"s_and_b32 s{sS0}, s{sWAVE}, 1"); o(f"s_lshl2_add_u32 s{sT0}, s{sS0}, s{sT0}")
    o(f"v_lshl_add_u32 v{vXI}, v{vh}, 3, v{b4}"); o(f"v_add_u32 v{vXI}, s{sT0}, v{vXI}")
    o(f"v_mov_b32 v{PT+3}, 0xffff")
    xstamp("consts_done")
    o("s_waitcnt vmcnt(0)"); stamp(1)
    for i in range(4):
        o(f"v_lshrrev_b32 v{t[4+i]}, 19, v{SEG+i}"); o(f"v_cmp_lt_u32 vcc, v{t[8]}, v{t[4+i]}")
        o(f"v_and_b32 v{t[i]}, s{sT1}, v{SEG+i}"); o(f"v_add_lshl_u32 v{t[i]}, v{t[i]}, v{t[8]}, 3")
        o(f"v_cndmask_b32 v{t[10]}, v{t[9]}, v{t[i]}, vcc")
        o(f"buffer_load_dwordx4 {vr(REC+4*i,4)}, v{t[10]}, s[{sW}:{sW+3}], 0 offen")
    o(f"v_max3_u32 v{t[10]}, v{t[4]}, v{t[5]}, v{t[6]}"); o(f"v_max_u32 v{t[10]}, v{t[10]}, v{t[7]}")
    o(f"v_cmp_lt_u32 vcc, 8, v{t[10]}"); o("s_cbranch_vccz REC_DONE")
    for i in range(4): o(f"buffer_load_dwordx4 {vr(REC+16+4*i,4)}, v{t[i]}, s[{sW}:{sW+3}], 0 offen offset:64")
    lab("REC_DONE")
    xstamp("rec_issued")
    PF = int(OPT.get('pf', 0))
    def pref():
        o(f"s_lshr_b32 s{sT0}, s3, 6"); o(f"s_mul_i32 s{sT0}, s{sT0}, {64*RN}"); o(f"s_and_b32 s{sT1}, s3, 63"); o(f"s_lshl_b32 s{sT1}, s{sT1}, 6"); o(f"s_add_u32 s{sT0}, s{sT0}, s{sT1}")
        o(f"v_lshrrev_b32 v{T0+2}, 2, v0"); o(f"v_add_u32 v{T0+2}, s{sT0}, v{T0+2}"); o(f"v_and_b32 v{T0+1}, 3, v0"); o(f"v_lshlrev_b32 v{T0+1}, 7, v{T0+1}")
        for k in range(PF):
            o(f"v_add_u32 v{T0+3}, {-512*RN}, v{T0+2}"); o(f"v_min_u32 v{T0}, v{T0+2}, v{T0+3}")
            o(f"buffer_load_dword v{SEL}, {vr(T0,2)}, s[{sT}:{sT+3}], 0 idxen offen")
            if k + 1 < PF: o(f"v_add_u32 v{T0+2}, 4096, v{T0+2}")
    PFW = OPT.get('pfw', 'rec')
    if PF and PFW == 'rec': pref()
    o("s_waitcnt lgkmcnt(0)"); o("s_barrier"); stamp(2)
    pp = t[14]
    o(f"v_and_b32 v{pp}, 0x13, v0"); o(f"v_lshl_or_b32 v{pp}, v{b2}, 3, v{pp}"); o(f"v_lshl_or_b32 v{pp}, v{b3}, 2, v{pp}")
    o(f"v_lshrrev_b32 v{t[12]}, 3, v{pp}"); o(f"v_lshlrev_b32 v{vTA}, 7, v{pp}"); o(f"v_lshl_add_u32 v{vTA}, v{t[12]}, 4, v{vTA}")
    o(f"v_bfe_u32 v{t[13]}, v0, 1, 1"); o(f"v_xor_b32 v{t[12]}, v{t[13]}, v{vh}"); o(f"v_lshl_add_u32 v{vTA}, v{t[12]}, 6, v{vTA}"); o(f"v_add_u32 v{vTA}, s{sMR}, v{vTA}")
    o(f"v_and_b32 v{t[12]}, 7, v0"); o(f"v_lshlrev_b32 v{t[15]}, 2, v{b4}"); o(f"v_xor_b32 v{t[15]}, v{t[15]}, v{t[12]}")
    o(f"s_lshl_b32 s{sT0}, s{sWAVE}, 7"); o(f"v_lshl_add_u32 v{IX[0]+1}, v{t[15]}, 4, s{sT0}")
    for i in range(1, 4): o(f"v_mov_b32 v{IX[i]+1}, v{IX[0]+1}")
    o(f"v_and_b32 v{vL1}, 0x38, v0"); o(f"v_add_u32 v{vL1}, {LIST}, v{vL1}"); addg(vL1)
    o(f"v_lshl_or_b32 v{t[15]}, v{b4}, 1, v{b2}"); o(f"v_mul_u32_u24 v{t[15]}, {WS_}, v{t[15]}"); o(f"v_mul_u32_u24 v{t[13]}, 1040, v{t[13]}")
    o(f"v_lshl_or_b32 v{t[21]}, v{b3}, 1, v{b0}"); o(f"v_lshl_add_u32 v{t[15]}, v{t[21]}, 8, v{t[15]}"); o(f"v_add3_u32 v{t[15]}, v{t[15]}, v{t[13]}, {'s%d' % sG if G8 else 0}")
    o(f"v_add_u32 v{t[15]}, {RING + NS*SLOT}, v{t[15]}")
    o(f"v_xor_b32 v{t[13]}, v{vh}, v{b0}"); o(f"v_lshl_add_u32 v{vXA}, v{t[13]}, 7, v{t[15]}")
    o(f"v_lshlrev_b32 v{IXE+1}, 4, v{t[13]}")
    o(f"v_bfe_u32 v{t[13]}, v0, 7, 1"); o(f"v_xor_b32 v{t[13]}, v{t[13]}, v{b0}"); o(f"v_lshl_add_u32 v{vXR}, v{t[13]}, 7, v{t[15]}")
    o(f"v_and_b32 v{t[13]}, 0x60, v0"); o(f"v_add_u32 v{vXR}, v{vXR}, v{t[13]}")
    o(f"s_lshl_b32 s{sT0}, s{sS0}, 12"); o(f"s_lshr_b32 s{sT1}, s{sWAVE}, 1"); o(f"s_lshl_b32 s{sT1}, s{sT1}, 8"); o(f"s_add_u32 s{sT0}, s{sT0}, s{sT1}"); o(f"s_add_u32 s{sT0}, s{sT0}, {LIST+4}"); saddg(sT0)
    o(f"v_bfe_u32 v{vL2}, v0, 1, 5"); o(f"v_lshl_add_u32 v{vL2}, v{vL2}, 3, s{sT0}")
    o(f"s_lshl_b32 s{sME}, s{sWAVE}, 10"); o(f"s_add_u32 s{sME}, s{sME}, {ER}"); saddg(sME)
    o(f"v_lshlrev_b32 v{vSA}, 3, v{pp}"); o(f"v_add_u32 v{vSA}, {LIST+2}, v{vSA}"); addg(vSA)
    o(f"v_lshlrev_b32 v{vHC}, 4, v{vh}"); o(f"v_add_u32 v{vHC}, {IDT}, v{vHC}")
    o(f"v_xor_b32 v{vEA}, v{b4}, v{vh}"); o(f"v_lshlrev_b32 v{vEA}, 4, v{vEA}")
    o(f"v_lshl_add_u32 v{vEA}, v{pp}, 5, v{vEA}"); o(f"v_add_u32 v{vEA}, {ER}, v{vEA}"); addg(vEA)
    o(f"v_add_u32 v{vMT}, 4096, v{vEA}"); o(f"v_xor_b32 v{vMT}, v{vMT}, v{vEA}")
    o(f"v_and_b32 v{t[13]}, 31, v0"); o(f"v_min_u32 v{t[13]}, {NA}, v{t[13]}")
    o(f"v_mul_u32_u24 v{vMA}, {ROW}, v{t[13]}"); o(f"v_lshl_add_u32 v{vMA}, v{vh}, 2, v{vMA}"); o(f"v_add_u32 v{vMA}, {MB}, v{vMA}"); addg(vMA)
    o(f"v_lshrrev_b32 v{PT+2}, 5, v0"); o(f"v_lshlrev_b32 v{PT+2}, 4, v{PT+2}"); o(f"v_lshl_add_u32 v{PT+2}, v{b3}, 2, v{PT+2}"); addg(PT+2)
    o(f"v_lshl_add_u32 v{t[12]}, v{b4}, 4, v{t[12]}"); o(f"v_lshlrev_b32 v{PT+1}, v{t[12]}, 16")
    o(f"v_and_b32 v{t[12]}, 3, v0"); o(f"v_lshl_add_u32 v{t[12]}, v{b4}, 2, v{t[12]}"); o(f"v_lshlrev_b32 v{t[12]}, v{t[12]}, 16")
    o(f"v_cmp_eq_u32 vcc, v{b3}, v{vh}"); o(f"v_lshlrev_b32 v{t[13]}, 4, v{b2}"); o("s_nop 0")
    o(f"v_cndmask_b32 v{t[12]}, 0, v{t[12]}, vcc"); o(f"v_lshlrev_b32 v{PT}, v{t[13]}, v{t[12]}")
    lab("REMASK")
    masks((t[0], t[1], t[2])); xstamp("masks_done")
    a, b_, c, d_ = t[0:4]; ad = [AD + k for k in range(16)]
    o(f"v_mov_b32 v{a}, 8")
    o(f"v_lshrrev_b32 v{b_}, 2, v{vWF}"); addg(b_)
    if G8: o(f"s_lshr_b32 s{sDS}, s{sG}, 8")
    if PF and PFW == 'mask': pref()
    o(f"s_waitcnt vmcnt({PF if PFW in ('rec', 'mask') else 0})"); xstamp("rec_landed")
    for half in range(2):
        if half: o(f"s_cmp_eq_u64 s[{sSV}:{sSV+1}], 0"); o("s_cbranch_scc1 P1_DONE"); o("s_mov_b64 exec, -1")
        for k in range(8*half, 8*half+8): o(f"v_alignbit_b32 v{ad[k]}, s{sDS}, v{REC+2*k+1}, 24" if G8 else f"v_lshrrev_b32 v{ad[k]}, 24, v{REC+2*k+1}")
        for k in range(8*half, 8*half+8):
            o(f"s_mov_b64 exec, s[{sK+2*k}:{sK+2*k+1}]")
            o(f"ds_add_rtn_u32 v{RANK+k}, v{ad[k]}, v{a} offset:{CNT}")
    lab("P1_DONE")
    o("s_mov_b64 exec, -1")
    o(f"s_cmp_eq_u32 s{sFIRST}, 0"); o("s_cbranch_scc1 NOW")
    o(f"s_add_u32 s{sDS}, s{sMR}, {NS*SLOT}")
    xblk(sDS, t[4])
    for x in wload(ACC, WF_A): o(x)
    o(f"s_lshl_b32 s{sT0}, s{sWAVE}, 10"); o(f"s_add_u32 s{sT0}, s{sT0}, {WS_WF+WF_C:#x}")
    o(f"buffer_load_dwordx4 {vr(WC,4)}, v{vWF}, s[{sW}:{sW+3}], s{sT0} offen")
    lab("NOW")
    if PF and PFW == 'p1': pref()
    o("s_waitcnt lgkmcnt(0)"); xstamp("p1_done"); o("s_barrier"); xstamp("b1")
    o(f"ds_read_b32 v{c}, v{b_} offset:{CNT}")
    o(f"ds_read_b32 v{t[4]}, v{b_} offset:{CNT-4}")
    o(f"v_lshlrev_b32 v{t[5]}, 12, v{vh}"); addg(t[5])
    o("s_waitcnt lgkmcnt(1)")
    o(f"v_sub_u32 v{d_}, v{t[5]}, v{c}")
    for dd in ("row_shr:1", "row_shr:2", "row_shr:4", "row_shr:8"):
        o(f"v_add_u32_dpp v{c}, v{c}, v{c} {dd} row_mask:0xf bank_mask:0xf bound_ctrl:0"); o("s_nop 1")
    o(f"v_add_u32_dpp v{c}, v{c}, v{c} row_bcast:15 row_mask:0xa bank_mask:0xf")
    o(f"v_add_u32 v{d_}, v{c}, v{d_}")
    o(f"ds_write_b32 v{b_}, v{d_} offset:{NB}")
    o(f"v_readlane_b32 s{sNT}, v{c}, 31"); o(f"v_readlane_b32 s{sT0}, v{c}, 63")
    for k in range(8): o(f"ds_read_b32 v{ad[k]}, v{ad[k]} offset:{NB}")
    o(f"s_max_u32 s{sNT}, s{sNT}, s{sT0}")
    o(f"s_cmp_le_u32 s{sNT}, 4096"); o("s_cbranch_scc0 TOOBIG")
    xstamp("scan_done")
    for half in range(2):
        if half:
            o(f"s_cmp_eq_u64 s[{sSV}:{sSV+1}], 0"); o("s_cbranch_scc1 P2_DONE"); o("s_mov_b64 exec, -1")
            for k in range(8, 16): o(f"ds_read_b32 v{ad[k]}, v{ad[k]} offset:{NB}")
        for k in range(8*half, 8*half+8):
            if k % 4 == 0: o(f"s_waitcnt lgkmcnt({4 - k % 8})")
            o(f"v_add_u32 v{RANK+k}, v{RANK+k}, v{ad[k]}")
        for k in range(8*half, 8*half+8):
            o(f"s_mov_b64 exec, s[{sK+2*k}:{sK+2*k+1}]")
            o(f"ds_write_b64 v{RANK+k}, {vr(REC+2*k,2)} offset:{LIST}")
    lab("P2_DONE")
    o("s_mov_b64 exec, -1")
    o(f"v_readlane_b32 s{sMORE}, v{t[4]}, 0")
    o(f"s_mov_b32 m0, s{sME}")
    o(f"s_waitcnt vmcnt({9 + (PF if PFW == 'p1' else 0)}) lgkmcnt(0)"); xstamp("p2_done"); o("s_barrier"); stamp(5)
    f = t
    def rdidx(u):
        for i in range(4): o(f"ds_read_u16 v{IX[i]}, v{vL1} offset:{loff(u)+64*i}")
    def fill(u, nxt):
        for i in range(4):
            o(f"s_add_u32 m0, s{sMR}, {u*SLOT + i*1040}"); o(f"s_waitcnt lgkmcnt(3)"); o(ldt(i))
            o(f"ds_read_u16 v{IX[i]}, v{vL1} offset:{loff(nxt)+64*i}")
    o(f"ds_read_b32 v{IXE}, v{vL2}"); rdidx(0)
    o(f"v_lshlrev_b32 v{f[9]}, 3, v0"); addg(f[9])
    o("s_waitcnt lgkmcnt(4)")
    o(f"v_and_b32 v{IXE}, 0x7ffff, v{IXE}"); o(lde())
    for u in range(NS): fill(u, u + 1)
    for k in range(4): o(f"ds_read_u8 v{f[12+k]}, v{f[9]} offset:{LIST+2+k*2048}")
    o(f"ds_read_b32 v{IXE}, v{vL2} offset:512"); o(f"ds_read_u8 v{vSV}, v{vSA}")
    xstamp("fill_issued")
    def ctrl():
        o(f"s_movk_i32 s{sS0}, {ROW}")
        for k in range(4):
            o(f"v_cmp_gt_u32 vcc, {NA}, v{f[12+k]}"); o(f"v_mad_u32_u24 v{f[0]}, v{f[12+k]}, s{sS0}, v{PT+2}"); o("s_nop 0")
            o(f"v_cndmask_b32 v{f[1]}, 0, v{PT+1}, vcc")
            o(f"ds_or_b32 v{f[0]}, v{f[1]} offset:{MB + (k&1)*128 + (k>>1)*8}")
        o(f"s_add_u32 s{sCNT}, s{sNT}, 255"); o(f"s_lshr_b32 s{sCNT}, s{sCNT}, 8"); o(f"s_max_u32 s{sCNT}, s{sCNT}, 1"); o(f"s_lshl_b32 s{sNT}, s{sCNT}, 1"); o(f"s_sub_u32 s{sCNT}, s{sCNT}, 1")
        o(f"s_add_u32 s{sMET}, s{sME}, 4096"); o(f"s_xor_b32 s{sMET}, s{sMET}, s{sME}"); o(f"s_add_u32 s{sME}, s{sME}, 4096")
        o(f"v_add_u32 v{vL2}, 0x400, v{vL2}")
    def lut():
        q = T0
        for d in range(4):
            o(f"v_bfe_u32 v{q+d}, v0, {2*d}, 2"); o(f"v_mul_u32_u24 v{q+d}, 0x8001, v{q+d}")
            o(f"v_and_b32 v{q+d}, 0x10001, v{q+d}"); o(f"v_mul_u32_u24 v{q+d}, 0x3f80, v{q+d}")
        o(f"v_lshlrev_b32 v{q+4}, 4, v0"); o(f"ds_write_b128 v{q+4}, {vr(q,4)} offset:{LUT}")
        o(f"v_lshrrev_b32 v{q}, 3, v0"); o(f"v_and_b32 v{q+1}, 7, v0")
        o(f"v_bfe_u32 v{q+2}, v0, 5, 1"); o(f"v_bfe_u32 v{q+3}, v0, 6, 1"); o(f"v_lshl_or_b32 v{q+2}, v{q+2}, 1, v{q+3}")
        o(f"v_lshrrev_b32 v{q+3}, 7, v0"); o(f"v_lshl_or_b32 v{q+2}, v{q+3}, 2, v{q+2}")
        o(f"v_cmp_eq_u32 vcc, v{q+2}, v{q+1}"); o(f"v_cmp_gt_u32 s[{sHM}:{sHM+1}], {NA}, v{q}"); o(f"v_mov_b32 v{q+6}, 0x3f80"); o(f"v_mov_b32 v{q+7}, 0")
        o(f"s_and_b64 vcc, vcc, s[{sHM}:{sHM+1}]")
        o(f"v_and_b32 v{q+2}, 3, v{q}"); o(f"v_lshlrev_b32 v{q+2}, 4, v{q+2}"); o(f"v_cndmask_b32 v{q+6}, 0, v{q+6}, vcc")
        o(f"v_lshlrev_b64 {vr(q+6,2)}, v{q+2}, {vr(q+6,2)}")
        o(f"v_min_u32 v{q}, {NA}, v{q}"); o(f"v_mul_u32_u24 v{q}, 80, v{q}"); o(f"v_lshl_add_u32 v{q}, v{q+1}, 3, v{q}")
        o(f"ds_write_b64 v{q}, {vr(q+6,2)} offset:{IDT}")
    o(f"s_cmp_eq_u32 s{sFIRST}, 1"); o("s_cbranch_scc1 G1")
    o("s_waitcnt lgkmcnt(0)")
    ctrl()
    o("s_branch G1D")
    lab("G1")
    for mt in range(2):
        for s in range(8): o(f"ds_read_b128 {vr(GV+32*mt+4*s,4)}, v{vXA} offset:{mt*2080 + 16*s}")
        if mt == 0: o("s_waitcnt lgkmcnt(8)")
    lt = capture(lut); ct = capture(ctrl)
    for x in lt[:18]: o(x)
    o(f"s_waitcnt vmcnt({4*NS+2}) lgkmcnt(9)")
    acc = [ACC + 32, ACC + 48]
    interleave([m32(acc[0], GV+4*s, ACC+4*s, None if s == 0 else acc[0]) for s in range(8)], lt[18:] + ct[:16], 5)
    o("s_waitcnt lgkmcnt(5)")
    def cv(mt): return [f"v_cvt_pk_bf16_f32 v{AF+8*mt+r//2}, v{acc[mt]+r}, v{acc[mt]+r+1}" for r in range(0, 16, 2)]
    interleave([m32(acc[1], GV+32+4*s, ACC+4*s, None if s == 0 else acc[1]) for s in range(8)],
               ct[16:] + cv(0) + [f"v_mov_b32 v{acc[0]+r}, 0" for r in range(16)], 5)
    for r in range(32): o(f"v_mov_b32 v{ACC+r}, 0")
    for x in cv(1): o(x)
    for r in range(16): o(f"v_mov_b32 v{acc[1]+r}, 0")
    if STAMP:
        o("s_getreg_b32 s94, hwreg(HW_REG_HW_ID)"); o("s_getreg_b32 s100, hwreg(HW_REG_XCC_ID)"); o("s_and_b32 s94, s94, 0xffff"); o("s_lshl_b32 s100, s100, 16"); o("s_or_b32 s94, s94, s100"); o(f"v_writelane_b32 v{VST[0]}, s94, 3")
    lab("G1D")
    o(f"v_and_b32 v{MQ}, 0xffff, v{PT}"); o(f"v_lshrrev_b32 v{MQ+1}, 16, v{PT}")
    xstamp("g1_done"); stamp(4)
    o(f"s_waitcnt vmcnt({4*(NS-1)}) lgkmcnt(0)"); xstamp("t0_landed"); o("s_barrier")
    o(f"ds_read_b128 {vr(SEL,4)}, v{MQ}"); o(f"ds_read_b128 {vr(SEL+4,4)}, v{MQ+1}")
    o(f"ds_read_b128 {vr(EF,4)}, v{vEA}")
    for j in range(4): o(f"ds_read_b128 {vr(TF+4*j,4)}, v{vTA} offset:{16*j}")
    o(f"s_setprio {OPT.get('lp', 2)}")
    if OPT.get('young'):
        o("s_cmp_lt_u32 s2, 256"); o("s_cbranch_scc1 OLD"); o(f"s_setprio {OPT['young']}"); lab("OLD")
    stamp(6); stamp(8, "s_memtime")
    bodies = [body(b) for b in range(4)]
    if not OPT.get('noval'): check_hazards(sum(bodies, []) + ["s_branch LOOP"])
    emit(body(0, peel=True))
    b1 = bodies[1][:bodies[1].index("ENT1:")]
    o("s_nop 7")
    emit([x for x in b1 if not x.startswith("v_mfma")])
    o("s_branch ENT1")
    lab("TOOBIG")
    o(f"s_mov_b32 s{sLIM}, {LOWLIM}"); o(f"v_mov_b32 v{a}, 0")
    o("s_waitcnt lgkmcnt(0)"); o("s_barrier")
    o(f"ds_write_b32 v{b_}, v{a} offset:{CNT}")
    o("s_waitcnt lgkmcnt(0)"); o("s_barrier")
    o("s_branch REMASK")
    lab("LOOP")
    emit(sum(bodies, []))
    if OPT.get('pp', '99,8,4') != '0' and not G8:
        th = [int(x) for x in OPT.get('pp', '99,8,4').split(',')]
        o(f"s_add_u32 s{sT0}, s{sCNT}, s{sRS}")
        for k, v in enumerate(th):
            if v < 99: o(f"s_cmp_lt_u32 s{sT0}, {v}"); o("s_cbranch_scc0 LOOP"); o(f"s_setprio {2-k}")
    o("s_branch LOOP")
    assert HEAD[0] == HEAD[2]
    lab("TAIL")
    stamp(7); stamp(11, "s_memtime")
    if STAMP: o(f"v_writelane_b32 v{VST[0]}, s{sNT}, 12")
    Gc = GV + 32; WU = TF; x = AF
    o(f"ds_read_b128 {vr(T0,4)}, v{MQ}"); o(f"ds_read_b128 {vr(T0+4,4)}, v{MQ+1}")
    o(f"s_cmp_lg_u32 s{sMORE}, 0"); o("s_cbranch_scc1 TAILM")
    o("s_waitcnt lgkmcnt(0)")
    for ins in wload(WU, WF_U): o(ins)
    lab("TAILM")
    for ins, _ in vstream(Gc, Gc + 16)[HEAD[0]:]: o(ins)
    o("s_waitcnt lgkmcnt(0)")
    def fin(p):
        d = ACC + 32 * p; r = []
        for k in range(16): r.append(f"v_add_f32 v{d+k}, s{sEPS}, v{d+k}")
        for k in range(16): r.append(f"v_rcp_f32 v{d+k}, v{d+k}")
        for k in range(16): r.append(f"v_mul_f32 v{d+16+k}, v{d+k}, v{d+16+k}")
        return r
    for m in zphase(Gc, 1): o(m)
    o(f"s_cmp_lg_u32 s{sMORE}, 0"); o("s_cbranch_scc1 NEXTROUND")
    for s in range(8): o(f"ds_read_b128 {vr(GV+4*s,4)}, v{vXA} offset:{16*s}")
    for mt in range(2):
        for k in range(2): o(f"ds_read_b128 {vr(x+8*mt+4*k,4)}, v{vXR} offset:{mt*2080+16*k}")
    for ins in fin(0): o(ins)
    for s in range(8): o(f"ds_read_b128 {vr(GV+32+4*s,4)}, v{vXA} offset:{2080+16*s}")
    o(f"v_and_b32 v{IX[0]}, 31, v0"); o(f"v_and_b32 v{IX[0]+1}, 0xe0, v0")
    o(f"s_mov_b32 s{sT1}, 0xffff0000")
    o(f"v_cmp_gt_u32 vcc, {NA}, v{IX[0]}"); o(f"v_cmp_gt_u32 s[{sSV}:{sSV+1}], {RN-NA}, v{IX[0]}"); o(f"v_add_u32 v{IX[0]}, s{sBASE}, v{IX[0]}")
    o("s_waitcnt vmcnt(0) lgkmcnt(8)")
    def unp(p): return sum(([f"v_lshlrev_b32 v{ACC+32*p+2*k}, 16, v{x+8*p+k}", f"v_and_b32 v{ACC+32*p+2*k+1}, s{sT1}, v{x+8*p+k}"] for k in range(8)), [])
    def post(p):
        r = []
        for k in range(8):
            z = ACC + 32*p + 16 + 2*k
            r += [f"v_max_f32 v{z}, 0, v{z}", f"v_max_f32 v{z+1}, 0, v{z+1}", f"v_add_f32 v{z}, v{z}, v{z-16}", f"v_add_f32 v{z+1}, v{z+1}, v{z-15}",
                  f"v_cvt_pk_bf16_f32 v{x+8*p+k}, v{z}, v{z+1}"]
        return r
    def st(p): return [f"buffer_store_dwordx4 {vr(x+8*p+4*k,4)}, {vr(IX[0],2)}, s[{sO}:{sO+3}], 0 idxen offen offset:{16*k}" for k in range(2)]
    interleave([m32(ACC+16, WU+4*s, GV+4*s, ACC+16) for s in range(8)], fin(1), 6)
    o("s_waitcnt lgkmcnt(0)"); o("s_nop 0")
    interleave([m32(ACC+48, WU+4*s, GV+32+4*s, ACC+48) for s in range(8)], unp(0) + post(0) + unp(1), 7)
    o("s_mov_b64 exec, vcc")
    for ins in st(0): o(ins)
    o(f"s_mov_b64 exec, s[{sSV}:{sSV+1}]"); o(f"v_add_u32 v{IX[0]}, {NA}, v{IX[0]}")
    for ins in post(1) + st(1): o(ins)
    stamp_out(9, GV, sW, 1)
    lab("K2_END")
    o("s_endpgm")
    lab("NEXTROUND")
    for i in range(4):
        o(f"v_lshrrev_b32 v{vTC}, 19, v{SEG+i}"); o(f"v_min_u32 v{vTC}, s{sLIM}, v{vTC}")
        o(f"v_add_u32 v{SEG+i}, v{SEG+i}, v{vTC}"); o(f"v_lshlrev_b32 v{vTC}, 19, v{vTC}"); o(f"v_sub_u32 v{SEG+i}, v{SEG+i}, v{vTC}")
    o(f"s_mov_b32 s{sFIRST}, 0"); o(f"s_mov_b32 s{sLIM}, 16")
    o("s_waitcnt vmcnt(0) lgkmcnt(0)"); o("s_barrier")
    o("s_branch ROUND")

def kd(name, nv, ns):
    L.append(".p2align 6")
    L.append(f".amdhsa_kernel {name}")
    for k, v in (("next_free_vgpr", nv), ("next_free_sgpr", ns), ("accum_offset", (nv + 3) // 4 * 4), ("group_segment_fixed_size", 0),
                 ("kernarg_size", 96), ("user_sgpr_count", 2), ("user_sgpr_kernarg_segment_ptr", 1), ("system_sgpr_workgroup_id_x", 1),
                 ("float_denorm_mode_32", 3)):
        L.append(f"  .amdhsa_{k} {v}")
    L.append(".end_amdhsa_kernel")

hdr = [l for l in open(f"cdna_kernels/{NAME}.s.ref").read().splitlines() if l.startswith(";") and "@launch" not in l
       and "Override launch" not in l and "grid=ceil" not in l]
L += hdr
L.append(f"; @launch kernel=gsort_kernel grid=({K1_GRID},1,1) block=(512,1,1) lds={K1_LDS}")
L.append(f"; @launch kernel=gmain_kernel grid=(256,1,1) block=(512,1,1) lds={NB+2*GS}" if G8 else f"; @launch kernel=gmain_kernel grid=(512,1,1) block=(256,1,1) lds={K2_LDS}")
L.append('.amdgcn_target "amdgcn-amd-amdhsa--gfx950"'); L.append(".text")
(gen_k1a if OPT.get('k1') == 'a' else gen_k1)(); gen_k2()
lab("CODE_END")
L.append('.section .rodata,"a"')
kd("gsort_kernel", 256 if STAMP else 252, 102 if STAMP else 80); kd("gmain_kernel", 256 if STAMP else NVGPR, 102)
if STAMP: L.append("; STAMPS " + repr(NAMES))
open(sys.argv[1], "w").write("\n".join(L) + "\n")
print("vgprs", NVGPR, "lds", K2_LDS, "lines", len(L), file=sys.stderr)
```

```python
import sys, struct, re

N = 25000; E = 400000; RN = 49; NR = 511; CH = 1600; NCH = 250
WS_REC = 0; WS_OFF = 0x310000; OROW = 1152; WS_WF = 0x3c0000; WS_TAB = 0x400000; WS_SIZE = 0x4000000
WF_A = 0; WF_U = 0x8000; WF_C = 0x10000; NA = 25
NLOG2E = struct.unpack('<I', struct.pack('<f', -1.4426950408889634))[0]
EPS = struct.unpack('<I', struct.pack('<f', 1e-6))[0]
NAME = "standalone__edge_featured_mpnn_gatedgcn__graph"
OPT = dict(k1='a', tabpol='sc1', recpol='sc1', touch='2', tsh='19', bon='2', lp='3', pp='12,8,4')
OPT.update(a.split('=') for a in sys.argv[2:])
STAMP = int(OPT.get('stamp', 0))
WS_TAB = int(OPT.get('tab', hex(WS_TAB)), 0)
WS_STAMP = 0x3800000
L = []
def o(s): L.append("    " + s)
def lab(s): L.append(s + ":")
def vr(b, n): return f"v[{b}:{b+n-1}]"
VST = [60]
NAMES = {}
def stamp(i, ins="s_memrealtime", name=None):
    if STAMP:
        o(f"{ins} s[100:101]"); o("s_waitcnt lgkmcnt(0)"); o(f"v_writelane_b32 v{VST[0]}, s100, {i}")
def xstamp(name):
    if STAMP:
        NAMES[name] = 16 + len(NAMES); stamp(NAMES[name])
def stamp_out(n, reg, srdn, kern):
    if not STAMP: return
    o("s_mov_b64 exec, -1")
    stamp(n)
    o(f"v_lshlrev_b32 v{reg}, 2, v0")
    if kern and int(OPT.get('g8', 0)): o("s_and_b32 s63, s3, 1"); o("s_lshl_b32 s63, s63, 8"); o("s_add_u32 s2, s2, s63")
    o(f"s_lshl_b32 s63, s2, 11"); o(f"s_add_u32 s63, s63, {WS_STAMP + kern*0x100000:#x}")
    o(f"buffer_store_dword v{VST[0]}, v{reg}, s[{srdn}:{srdn+3}], s63 offen")
def srd(d, lo, size, stride=0):
    o(f"s_mov_b32 s{d}, s{lo}"); o(f"s_and_b32 s{d+1}, s{lo+1}, 0xffff")
    if stride: o(f"s_or_b32 s{d+1}, s{d+1}, {stride << 16:#x}")
    o(f"s_mov_b32 s{d+2}, {size:#x}"); o(f"s_mov_b32 s{d+3}, 0x20000")
def scan64(v):
    for d in ("row_shr:1", "row_shr:2", "row_shr:4", "row_shr:8"):
        o("s_nop 1"); o(f"v_add_u32_dpp v{v}, v{v}, v{v} {d} row_mask:0xf bank_mask:0xf bound_ctrl:0")
    o("s_nop 1"); o(f"v_add_u32_dpp v{v}, v{v}, v{v} row_bcast:15 row_mask:0xa bank_mask:0xf")
    o("s_nop 1"); o(f"v_add_u32_dpp v{v}, v{v}, v{v} row_bcast:31 row_mask:0xc bank_mask:0xf")

def m32(d, a, b, c): return f"v_mfma_f32_32x32x16_bf16 {vr(d,16)}, {vr(a,4)}, {vr(b,4)}, " + ("0" if c is None else vr(c,16))
K1_GRID = 256
OG = 4224
K1_W = 16896; K1_X = K1_W + 65536; K1_S = K1_X + 4 * 8320; K1_LDS = K1_S + 8 * 4608
def gen_k1():
    L.append(".globl gsort_kernel"); L.append(".p2align 8"); L.append(".type gsort_kernel,@function")
    lab("gsort_kernel"); VST[0] = 255
    pol = OPT.get('tabpol', '').replace('+', ' '); rpol = OPT.get('recpol', '').replace('+', ' ')
    stamp(0)
    o("s_load_dwordx8 s[4:11], s[0:1], 0")
    o("s_load_dwordx8 s[40:47], s[0:1], 32")
    o("s_load_dwordx2 s[48:49], s[0:1], 64")
    o("s_load_dwordx2 s[12:13], s[0:1], 88")
    o(f"s_cmp_ge_u32 s2, {K1_GRID}"); o("s_cbranch_scc1 K1_END")
    o("v_lshrrev_b32 v2, 6, v0"); o("v_lshlrev_b32 v1, 2, v0")
    o("s_and_b32 s36, s2, 7"); o("s_lshl_b32 s36, s36, 5"); o("s_lshr_b32 s35, s2, 3"); o("s_add_u32 s36, s36, s35")
    o("v_readfirstlane_b32 s33, v2")
    o("v_mov_b32 v2, 0"); o("ds_write_b32 v1, v2")
    o(f"s_mul_i32 s3, s2, {CH*4}"); o("s_mul_i32 s37, s36, 98")
    o(f"s_cmp_lt_u32 s2, {NCH}"); o(f"s_cselect_b32 s14, {CH//4}, 0")
    o("v_cmp_gt_u32 vcc, s14, v0")
    o("v_lshlrev_b32 v40, 4, v0")
    o("v_bfe_u32 v56, v0, 4, 1"); o("v_bfe_u32 v57, v0, 5, 1"); o("v_and_b32 v20, 63, v0")
    o("s_mov_b32 s68, 0"); o("v_lshlrev_b32 v42, 4, v20")
    o("v_bfe_u32 v43, v0, 4, 2"); o("v_lshlrev_b32 v43, 6, v43"); o("v_xor_b32 v43, v43, v40")
    o("v_lshl_add_u32 v58, v57, 3, v56")
    o("s_lshr_b32 s14, s33, 2"); o("s_lshl_b32 s14, s14, 4"); o("s_and_b32 s15, s33, 3"); o("s_lshl1_add_u32 s14, s15, s14")
    o("v_add_u32 v58, s14, v58"); o("v_add_u32 v54, s37, v58")
    o("v_and_b32 v55, 15, v0"); o("v_lshlrev_b32 v59, 3, v56"); o("v_xor_b32 v55, v55, v59"); o("v_lshlrev_b32 v55, 4, v55")
    o("s_mul_i32 s38, s33, 1040"); o(f"s_add_u32 s38, s38, {K1_X}")
    o("s_lshl_b32 s39, s33, 10"); o(f"s_add_u32 s39, s39, {K1_W}")
    o("s_mov_b32 m0, s38")
    o("s_waitcnt lgkmcnt(0)")
    srd(60, 4, N, 256)
    def xd(t):
        if t: o(f"s_add_u32 m0, s38, {t*8320}"); o("v_add_u32 v54, 32, v54")
        if t == 3: o("v_cmp_gt_u32 vcc, 2, v58"); o("v_mov_b32 v59, 0xffff"); o("s_nop 0"); o("v_cndmask_b32 v54, v59, v54, vcc")
        o("buffer_load_dwordx4 v[54:55], s[60:63], 0 idxen offen lds")
    xd(0); xd(1)
    srd(20, 10, E*4); srd(16, 8, E*4)
    o("s_and_saveexec_b64 s[28:29], vcc"); o("s_mov_b64 s[28:29], exec"); o("s_cbranch_execz K1_PREP")
    o("buffer_load_dwordx4 v[4:7], v40, s[20:23], s3 offen")
    o("buffer_load_dwordx4 v[8:11], v40, s[16:19], s3 offen")
    lab("K1_A")
    o("s_mov_b64 exec, -1")
    TCH = int(OPT.get('touch', 0)); SPL = int(OPT.get('split', 0))
    if TCH:
        srd(24, 12, WS_SIZE)
        o("s_lshl_b32 s14, s37, 9"); o(f"s_add_u32 s14, s14, {WS_TAB:#x}"); o("v_mov_b32 v248, s14"); o("s_lshl_b32 s14, s3, 1")
        o("v_writelane_b32 v248, s14, 1"); o(f"s_mov_b32 s14, {WS_OFF:#x}"); o("v_writelane_b32 v248, s14, 2")
        o("buffer_load_dword v249, v248, s[24:27], 0 offen")
    if not OPT.get('early'): o("s_barrier")
    srd(52, 42, 32768); srd(56, 48, 32768)
    for m in range(2):
        for i in range(4):
            o(f"s_add_u32 m0, s39, {m*32768+i*8192}"); o(f"s_movk_i32 s14, {i*8192}"); o(f"buffer_load_dwordx4 v43, s[{52+4*m}:{55+4*m}], s14 offen lds")
    xd(2); xd(3)
    if OPT.get('early'): o("s_barrier")
    def addrs():
        srd(24, 12, WS_SIZE)
        o("v_bfe_u32 v60, v0, 2, 2"); o("v_lshl_add_u32 v60, v57, 6, v60"); o("v_lshlrev_b32 v60, 8, v60")
        o("v_and_b32 v61, 3, v0"); o("v_lshl_add_u32 v60, v61, 3, v60"); o("v_lshl_add_u32 v60, v56, 5, v60")
        o("s_and_b32 s30, s33, 3"); o("v_bfe_u32 v61, v0, 2, 2"); o("v_xor_b32 v61, s30, v61"); o("v_lshl_add_u32 v60, v61, 6, v60"); o(f"v_add_u32 v60, {K1_W}, v60")
        o("v_bfe_u32 v61, v0, 1, 2"); o("v_lshl_or_b32 v61, v56, 2, v61"); o("v_mul_u32_u24 v61, 1040, v61")
        o("v_and_b32 v62, 1, v0"); o("v_bfe_u32 v63, v0, 3, 1"); o("v_lshl_or_b32 v63, v63, 1, v62"); o("v_lshl_add_u32 v61, v63, 8, v61")
        o("s_lshr_b32 s32, s33, 2"); o("s_mul_i32 s14, s32, 8320"); o(f"s_add_u32 s14, s14, {K1_X}")
        o("v_xor_b32 v62, v62, v57"); o("v_lshl_add_u32 v61, v62, 7, v61"); o("v_add_u32 v61, s14, v61")
        o("s_mul_i32 s14, s33, 4608"); o(f"s_add_u32 s14, s14, {K1_S}")
        o("v_and_b32 v62, 31, v0"); o("v_mul_u32_u24 v62, 144, v62"); o("v_lshl_add_u32 v62, v57, 6, v62"); o("v_add_u32 v62, s14, v62")
        o("v_lshrrev_b32 v58, 3, v20"); o("v_and_b32 v59, 7, v0"); o("v_lshlrev_b32 v59, 4, v59")
        o("v_mul_u32_u24 v63, 144, v58"); o("v_add3_u32 v63, v63, v59, s14")
        o("s_lshl_b32 s14, s32, 5"); o("s_add_u32 s14, s14, s37"); o("s_lshl_b32 s14, s14, 9"); o("s_lshl_b32 s30, s30, 7"); o("s_add_u32 s14, s14, s30")
        o("v_lshl_add_u32 v59, v58, 9, v59"); o("v_add_u32 v59, s14, v59")
        o("s_lshl_b32 s31, s3, 1")
    addrs()
    o(f"s_mul_i32 s34, s2, {CH}")
    o("v_add_u32 v3, s34, v1"); o("v_mov_b32 v2, 1"); o(f"s_mov_b32 s15, {-RN}")
    o("v_lshlrev_b32 v20, 5, v20")
    o("s_mov_b64 exec, s[28:29]"); o("s_cbranch_execz K1_B")
    o(f"s_waitcnt vmcnt({10+TCH})"); stamp(1)
    for i in range(4):
        o(f"v_mul_u32_u24 v{12+i}, 21400, v{4+i}")
        o(f"v_lshrrev_b32 v{12+i}, 20, v{12+i}")
        o(f"v_mad_i32_i24 v{4+i}, v{12+i}, s15, v{4+i}")
        o(f"v_lshlrev_b32 v{12+i}, 2, v{12+i}")
        o(f"ds_add_rtn_u32 v{16+i}, v{12+i}, v2")
    lab("K1_B")
    o("s_mov_b64 exec, -1")
    o(f"s_add_u32 s12, s12, {WS_TAB:#x}"); o("s_addc_u32 s13, s13, 0"); srd(16, 12, N * 512)
    o(f"s_mov_b32 s15, {NLOG2E:#x}")
    o(f"s_waitcnt vmcnt({2*SPL}) lgkmcnt(0)"); o("s_barrier"); stamp(3)
    lab("K1_J")
    WF_ = 64; XF_ = 128; AC = [160, 192]
    for m in range(2):
        for s in range(8):
            for jj in range(2): o(f"ds_read_b64_tr_b16 v[{WF_+32*m+4*s+2*jj}:{WF_+32*m+4*s+2*jj+1}], v60 offset:{m*32768+s*2048+jj*1024}")
            if m == 0: o(f"ds_read_b128 {vr(XF_+4*s,4)}, v61 offset:{16*s}")
    o("ds_read_b128 v[24:27], v20"); o("ds_read_b128 v[28:31], v20 offset:16")
    def post(t):
        a = AC[t]; r = []
        for k in range(16): r.append(f"v_mul_f32 v{a+k}, s15, v{a+k}")
        for k in range(16): r.append(f"v_cvt_pk_bf16_f32 v{224+k}, v{a+2*k}, v{a+2*k+1}")
        r += [f"ds_write_b128 v62, {vr(224+4*c,4)} offset:{16*c}" for c in range(4)]
        r += [f"ds_read_b128 {vr(a+4*k,4)}, v63 offset:{k*8*144}" for k in range(4)]
        return r
    def stores(t):
        r = []
        for k in range(4):
            r += [f"s_waitcnt lgkmcnt({3-k})", f"buffer_store_dwordx4 {vr(AC[t]+4*k,4)}, v59, s[16:19], 0 offen {pol}", "v_add_u32 v59, 0x1000, v59"]
        return r
    def recs():
        for i in range(4):
            o(f"v_cmp_lt_u32 vcc, {NA-1}, v{4+i}"); o(f"v_mul_u32_u24 v22, 83, v{8+i}"); o("v_lshrrev_b32 v22, 16, v22")
            o(f"v_cndmask_b32 v23, 0, {NA}, vcc"); o(f"v_sub_u32 v23, v{4+i}, v23")
            o(f"v_lshl_or_b32 v{44+2*i}, v23, 16, v{8+i}")
            o("v_cndmask_b32 v23, 0, 32, vcc"); o("v_or_b32 v22, v22, v23")
            o(f"v_lshl_add_u32 v{45+2*i}, v22, 26, v3")
            if i < 3: o("v_add_u32 v3, 1, v3")
    def scan():
        o("v_mov_b32 v33, v24")
        for j in range(2, 8): o(f"v_add_u32 v{32+j}, v{31+j}, v{23+j}")
        o("v_add_u32 v21, v39, v31"); o("v_mov_b32 v22, v21")
        scan64(21)
        o("v_sub_u32 v32, v21, v22")
        for j in range(1, 8): o(f"v_add_u32 v{32+j}, v32, v{32+j}")
    o("s_waitcnt lgkmcnt(15)")
    interleave([m32(AC[0], WF_+4*s, XF_+4*s, None if s == 0 else AC[0]) for s in range(8)], capture(recs), 5)
    o("s_waitcnt vmcnt(0) lgkmcnt(0)")
    if SPL: o("s_barrier")
    sc = capture(scan); p0 = post(0)
    q = sc + p0[:24]
    for s in range(8):
        o(m32(AC[0]+16, WF_+32+4*s, XF_+4*s, None if s == 0 else AC[0]+16))
        o(f"ds_read_b128 {vr(XF_+4*s,4)}, v61 offset:{2*8320+16*s}")
        for _ in range(5):
            if q: o(q.pop(0))
    lab("K1_G")
    o("s_waitcnt lgkmcnt(0)")
    mf = [m32(AC[1], WF_+4*s, XF_+4*s, None if s == 0 else AC[1]) for s in range(8)] + [m32(AC[1]+16, WF_+32+4*s, XF_+4*s, None if s == 0 else AC[1]+16) for s in range(8)]
    assert len(q) >= 8
    look = ["ds_write_b128 v20, v[32:35] offset:2048", "ds_write_b128 v20, v[36:39] offset:2064"] + [f"ds_read_b32 v{4+i}, v{12+i} offset:2048" for i in range(4)]
    q = q + p0[24:] + [None] * 5 + stores(0) + look
    for m in mf:
        o(m)
        for _ in range(5):
            if q:
                x = q.pop(0)
                if x: o(x)
    assert not q
    o("v_add_u32 v59, 0x4000, v59"); o("v_cmp_gt_u32 vcc, 2, v58")
    o("s_mov_b64 exec, s[28:29]")
    o("s_waitcnt lgkmcnt(0)")
    for i in range(4):
        o(f"v_add_lshl_u32 v{4+i}, v{4+i}, v{16+i}, 3"); o(f"ds_write_b64 v{4+i}, v[{44+2*i}:{45+2*i}] offset:4096")
    o("s_mov_b64 exec, -1")
    for x in post(1): o(x)
    stamp(4)
    o("s_cmp_lt_u32 s33, 4"); o("s_cbranch_scc1 K1_H")
    o("s_mov_b64 exec, vcc")
    for x in stores(1)[:2]: o(x)
    o("s_mov_b64 exec, -1")
    o("s_cmp_lg_u32 s68, 0"); o("s_cbranch_scc1 K1_PREP2")
    o("s_cmp_lg_u32 s33, 6"); o("s_cbranch_scc1 K1_I")
    for j in range(8): o(f"v_lshl_add_u32 v{24+j}, v{24+j}, 19, v{32+j}"); o(f"v_add_u32 v{24+j}, s34, v{24+j}")
    o(f"v_mul_u32_u24 v41, {OG//16}, v20"); o("s_lshl_b32 s35, s36, 4"); o(f"s_add_u32 s35, s35, {WS_OFF:#x}"); o(f"s_add_u32 s30, s35, {OG}")
    o("buffer_store_dwordx4 v[24:27], v41, s[24:27], s35 offen"); o("buffer_store_dwordx4 v[28:31], v41, s[24:27], s30 offen")
    o("s_branch K1_I")
    lab("K1_H")
    for x in stores(1): o(x)
    lab("K1_I")
    o(f"v_cmp_gt_u32 vcc, {CH//2-512}, v0")
    o("s_waitcnt lgkmcnt(0)"); o("s_barrier")
    o(f"s_cmp_lt_u32 s2, {NCH}"); o("s_cbranch_scc0 K1_F")
    o("ds_read_b128 v[44:47], v40 offset:4096"); o("ds_read_b128 v[48:51], v40 offset:12288")
    o("s_add_u32 s30, s31, 8192")
    o("s_waitcnt lgkmcnt(1)")
    o(f"buffer_store_dwordx4 v[44:47], v40, s[24:27], s31 offen {rpol}")
    o("s_and_saveexec_b64 s[28:29], vcc"); o("s_cbranch_execz K1_F")
    o("s_waitcnt lgkmcnt(0)")
    o(f"buffer_store_dwordx4 v[48:51], v40, s[24:27], s30 offen {rpol}")
    lab("K1_F")
    stamp_out(2, 12, 24, 0)
    lab("K1_END")
    o("s_endpgm")
    lab("K1_PREP")
    o("s_cmp_ge_u32 s2, 68"); o("s_cbranch_scc1 K1_A")
    o("s_mov_b64 exec, -1")
    o("s_lshr_b32 s14, s2, 5")
    o("s_cmp_eq_u32 s14, 1"); o("s_cselect_b32 s40, s46, s40"); o("s_cselect_b32 s41, s47, s41"); o(f"s_cselect_b32 s68, 1.0, {NLOG2E:#x}")
    o("s_mov_b32 s66, 32768"); o("s_bfe_u32 s50, s2, 0x20003"); o("s_and_b32 s51, s2, 7"); o("s_mov_b32 s32, 14")
    o("s_cmp_eq_u32 s14, 2"); o("s_cselect_b32 s40, s44, s40"); o("s_cselect_b32 s41, s45, s41"); o("s_cselect_b32 s66, 4096, s66")
    o("s_cselect_b32 s50, s51, s50"); o("s_cselect_b32 s51, 0, s51"); o("s_cselect_b32 s32, 11, s32")
    o("s_mov_b32 s64, s40"); o("s_and_b32 s65, s41, 0xffff"); o("s_mov_b32 s67, 0x20000")
    o("s_lshl_b32 s50, s50, 6"); o("s_lshl_b32 s51, s51, 11"); o("s_add_u32 s50, s50, s51")
    o("v_and_b32 v4, 3, v0"); o("v_bfe_u32 v5, v0, 3, 2"); o("v_lshl_or_b32 v4, v5, 2, v4")
    o("v_bfe_u32 v5, v0, 2, 1"); o("v_lshl_or_b32 v4, v5, 4, v4")
    o("v_lshlrev_b32 v5, s32, v57"); o("v_lshl_add_u32 v4, v4, 1, v5"); o("v_add_u32 v4, s50, v4")
    for j in range(8): o(f"buffer_load_ushort v{240+j}, v4, s[64:67], 0 offen offset:{j*256}")
    o("s_branch K1_A")
    lab("K1_PREP2")
    o("s_lshl_b32 s14, s2, 10"); o(f"s_add_u32 s14, s14, {WS_WF:#x}")
    for j in range(8):
        o(f"v_lshlrev_b32 v{240+j}, 16, v{240+j}"); o(f"v_mul_f32 v{240+j}, s68, v{240+j}")
    for j in range(4): o(f"v_cvt_pk_bf16_f32 v{52+j}, v{240+2*j}, v{241+2*j}")
    o("buffer_store_dwordx4 v[52:55], v42, s[24:27], s14 offen")
    o("s_branch K1_I")

SM = int(OPT.get('sm', 0)); SMS = N * 128 + int(OPT.get('smpad', 0))
def gen_k1a():
    L.append(".globl gsort_kernel"); L.append(".p2align 8"); L.append(".type gsort_kernel,@function")
    lab("gsort_kernel"); VST[0] = 255
    pol = OPT.get('tabpol', '').replace('+', ' '); rpol = OPT.get('recpol', '').replace('+', ' ')
    if OPT.get('cpf'):
        o("s_getpc_b64 s[70:71]")
        o("v_lshlrev_b32 v236, 7, v0"); o("v_min_u32 v236, CODE_END-gsort_kernel-8, v236")
        o("v_mov_b32 v237, s71"); o("v_add_co_u32 v236, vcc, s70, v236"); o("s_nop 1"); o("v_addc_co_u32 v237, vcc, 0, v237, vcc")
        o("global_load_dword v238, v[236:237], off")
    stamp(0)
    o("s_load_dwordx8 s[4:11], s[0:1], 0")
    o("s_load_dwordx8 s[40:47], s[0:1], 32")
    o("s_load_dwordx2 s[48:49], s[0:1], 64")
    o("s_load_dwordx2 s[12:13], s[0:1], 88")
    o("s_load_dwordx2 s[72:73], s[0:1], 72")
    o(f"s_cmp_ge_u32 s2, {K1_GRID}"); o("s_cbranch_scc1 K1_END")
    o("v_lshrrev_b32 v2, 6, v0"); o("v_lshlrev_b32 v1, 2, v0")
    o("s_and_b32 s36, s2, 7"); o("s_lshl_b32 s36, s36, 5"); o("s_lshr_b32 s35, s2, 3"); o("s_add_u32 s36, s36, s35")
    o("v_readfirstlane_b32 s33, v2")
    o("v_mov_b32 v2, 0"); o("ds_write_b32 v1, v2")
    o(f"s_mul_i32 s3, s2, {CH*4}"); o("s_mul_i32 s37, s36, 98")
    o(f"s_cmp_lt_u32 s2, {NCH}"); o(f"s_cselect_b32 s14, {CH//5}, 0")
    o("v_cmp_gt_u32 vcc, s14, v0")
    o("v_lshlrev_b32 v40, 4, v0")
    o("v_bfe_u32 v56, v0, 4, 1"); o("v_bfe_u32 v57, v0, 5, 1"); o("v_and_b32 v20, 63, v0")
    o("s_mov_b32 s68, 0"); o("v_lshlrev_b32 v42, 4, v20")
    o("v_mul_u32_u24 v43, 20, v0")
    o("s_cmp_ge_u32 s33, 5")
    o("s_waitcnt lgkmcnt(0)")
    o("s_cbranch_scc1 K1_LOAD")
    srd(20, 10, E*4); srd(16, 8, E*4)
    o("s_and_saveexec_b64 s[28:29], vcc"); o("s_mov_b64 s[28:29], exec"); o("s_cbranch_execz K1_A")
    o("buffer_load_dwordx4 v[64:67], v43, s[20:23], s3 offen"); o("buffer_load_dword v68, v43, s[20:23], s3 offen offset:16")
    o("buffer_load_dwordx4 v[72:75], v43, s[16:19], s3 offen"); o("buffer_load_dword v76, v43, s[16:19], s3 offen offset:16")
    lab("K1_A")
    o("s_mov_b64 exec, -1")
    o("s_barrier")
    def addrs():
        srd(24, 12, WS_SIZE)
        o("v_bfe_u32 v60, v0, 2, 2"); o("v_lshl_add_u32 v60, v57, 6, v60"); o("v_lshlrev_b32 v60, 8, v60")
        o("v_and_b32 v61, 3, v0"); o("v_lshl_add_u32 v60, v61, 3, v60"); o("v_lshl_add_u32 v60, v56, 5, v60")
        o("s_and_b32 s30, s33, 3"); o("v_bfe_u32 v61, v0, 2, 2"); o("v_xor_b32 v61, s30, v61"); o("v_lshl_add_u32 v60, v61, 6, v60"); o(f"v_add_u32 v60, {K1_W}, v60")
        o("v_bfe_u32 v61, v0, 1, 2"); o("v_lshl_or_b32 v61, v56, 2, v61"); o("v_mul_u32_u24 v61, 1040, v61")
        o("v_and_b32 v62, 1, v0"); o("v_bfe_u32 v63, v0, 3, 1"); o("v_lshl_or_b32 v63, v63, 1, v62"); o("v_lshl_add_u32 v61, v63, 8, v61")
        o("s_lshr_b32 s32, s33, 2"); o("s_mul_i32 s14, s32, 8320"); o(f"s_add_u32 s14, s14, {K1_X}")
        o("v_xor_b32 v62, v62, v57"); o("v_lshl_add_u32 v61, v62, 7, v61"); o("v_add_u32 v61, s14, v61")
        o("s_mul_i32 s14, s33, 4608"); o(f"s_add_u32 s14, s14, {K1_S}")
        o("v_and_b32 v62, 31, v0"); o("v_mul_u32_u24 v62, 144, v62"); o("v_lshl_add_u32 v62, v57, 6, v62"); o("v_add_u32 v62, s14, v62")
        o("v_lshrrev_b32 v58, 3, v20"); o("v_and_b32 v59, 7, v0"); o("v_lshlrev_b32 v59, 4, v59")
        o("v_mul_u32_u24 v63, 144, v58"); o("v_add3_u32 v63, v63, v59, s14")
        if SM:
            o("s_lshl_b32 s14, s32, 5"); o("s_add_u32 s14, s14, s37"); o("s_lshl_b32 s14, s14, 7"); o(f"s_mul_i32 s69, s30, {SMS}")
            o("v_add_u32 v59, s14, v42")
        else:
            o("s_lshl_b32 s14, s32, 5"); o("s_add_u32 s14, s14, s37"); o("s_lshl_b32 s14, s14, 9"); o("s_lshl_b32 s30, s30, 7"); o("s_add_u32 s14, s14, s30")
            o("v_lshl_add_u32 v59, v58, 9, v59"); o("v_add_u32 v59, s14, v59")
        o("s_lshl_b32 s31, s3, 1")
    addrs()
    o(f"s_mul_i32 s34, s2, {CH}")
    o("v_lshrrev_b32 v3, 2, v43"); o("v_add_u32 v3, s34, v3"); o("v_mov_b32 v2, 1"); o(f"s_mov_b32 s15, {-RN}"); o(f"s_movk_i32 s38, {-64*RN}")
    o("v_lshlrev_b32 v20, 5, v20")
    o("s_mov_b64 exec, s[28:29]"); o("s_cbranch_execz K1_B")
    o("s_waitcnt vmcnt(2)"); stamp(1)
    for i in range(5):
        o(f"v_mul_u32_u24 v{80+i}, 21400, v{64+i}")
        o(f"v_lshrrev_b32 v{80+i}, 20, v{80+i}")
        o(f"v_mad_i32_i24 v{64+i}, v{80+i}, s15, v{64+i}")
        o(f"v_lshlrev_b32 v{80+i}, 2, v{80+i}")
        o(f"ds_add_rtn_u32 v{88+i}, v{80+i}, v2")
    o("s_waitcnt vmcnt(0)")
    for i in range(5):
        o(f"v_cmp_lt_u32 vcc, {NA-1}, v{64+i}")
        if int(OPT.get('rot', 0)):
            o(f"v_lshrrev_b32 v22, 8, v{80+i}"); o(f"v_mad_i32_i24 v22, v22, s38, v{72+i}"); o(f"v_add_u32 v23, {512*RN}, v22"); o("v_min_u32 v22, v22, v23")
            o("v_mul_u32_u24 v22, 83, v22")
        else: o(f"v_mul_u32_u24 v22, 83, v{72+i}")
        o("v_lshrrev_b32 v22, 16, v22")
        o(f"v_cndmask_b32 v23, 0, {NA}, vcc"); o(f"v_sub_u32 v23, v{64+i}, v23")
        o(f"v_lshl_or_b32 v{96+2*i}, v23, 16, v{72+i}")
        o("v_cndmask_b32 v23, 0, 32, vcc"); o("v_or_b32 v22, v22, v23")
        o(f"v_lshl_add_u32 v{97+2*i}, v22, 26, v3")
        if i < 4: o("v_add_u32 v3, 1, v3")
    lab("K1_B")
    o("s_mov_b64 exec, -1")
    o("s_waitcnt lgkmcnt(0)"); o("s_barrier")
    o("ds_read_b128 v[24:27], v20"); o("ds_read_b128 v[28:31], v20 offset:16")
    o("s_waitcnt lgkmcnt(0)")
    o("v_mov_b32 v33, v24")
    for j in range(2, 8): o(f"v_add_u32 v{32+j}, v{31+j}, v{23+j}")
    o("v_add_u32 v21, v39, v31"); o("v_mov_b32 v22, v21")
    scan64(21)
    o("v_sub_u32 v32, v21, v22")
    for j in range(1, 8): o(f"v_add_u32 v{32+j}, v32, v{32+j}")
    o("ds_write_b128 v20, v[32:35] offset:2048"); o("ds_write_b128 v20, v[36:39] offset:2064")
    o("s_mov_b64 exec, s[28:29]")
    for i in range(5): o(f"ds_read_b32 v{64+i}, v{80+i} offset:2048")
    o("s_waitcnt lgkmcnt(0)")
    for i in range(5):
        o(f"v_add_lshl_u32 v{64+i}, v{64+i}, v{88+i}, 3"); o(f"ds_write_b64 v{64+i}, v[{96+2*i}:{97+2*i}] offset:4096")
    o("s_mov_b64 exec, -1")
    o("s_waitcnt lgkmcnt(0)"); o("s_barrier"); stamp(3)
    lab("K1_J")
    if OPT.get('pfe'):
        srd(76, 6, E*32); o("v_lshlrev_b32 v250, 7, v0"); o("s_lshl_b32 s14, s2, 16"); o("v_add_u32 v250, s14, v250")
        o("buffer_load_dword v251, v250, s[76:79], 0 offen " + OPT['pfe'].replace('p', ''))
    WF_ = 64; XF_ = 128; AC = [160, 192]
    o("ds_read_b128 v[44:47], v40 offset:4096"); o("ds_read_b128 v[48:51], v40 offset:12288")
    o(f"v_cmp_gt_u32 vcc, {CH//2-512}, v0")
    for m in range(2):
        for s in range(8):
            for jj in range(2): o(f"ds_read_b64_tr_b16 v[{WF_+32*m+4*s+2*jj}:{WF_+32*m+4*s+2*jj+1}], v60 offset:{m*32768+s*2048+jj*1024}")
        if m == 0:
            for s in range(8): o(f"ds_read_b128 {vr(XF_+4*s,4)}, v61 offset:{16*s}")
    o(f"s_add_u32 s12, s12, {WS_TAB:#x}"); o("s_addc_u32 s13, s13, 0")
    if SM: o("s_add_u32 s12, s12, s69"); o("s_addc_u32 s13, s13, 0")
    srd(16, 12, N * (128 if SM else 512))
    o(f"s_mov_b32 s15, {NLOG2E:#x}")
    def post(t):
        a = AC[t]; r = []
        for k in range(16): r.append(f"v_mul_f32 v{a+k}, s15, v{a+k}")
        for k in range(16): r.append(f"v_cvt_pk_bf16_f32 v{224+k}, v{a+2*k}, v{a+2*k+1}")
        r += [f"ds_write_b128 v62, {vr(224+4*c,4)} offset:{16*c}" for c in range(4)]
        r += [f"ds_read_b128 {vr(a+4*k,4)}, v63 offset:{k*8*144}" for k in range(4)]
        return r
    def stores(t):
        r = []
        for k in range(4):
            r += [f"s_waitcnt lgkmcnt({3-k})", f"buffer_store_dwordx4 {vr(AC[t]+4*k,4)}, v59, s[16:19], 0 offen {pol}", f"v_add_u32 v59, {0x400 if SM else 0x1000:#x}, v59"]
        return r
    o("s_waitcnt lgkmcnt(15)")
    o(f"s_cmp_lt_u32 s2, {NCH}"); o("s_cbranch_scc0 K1_E")
    o("s_add_u32 s30, s31, 8192")
    o(f"buffer_store_dwordx4 v[44:47], v40, s[24:27], s31 offen {rpol}")
    o("s_and_saveexec_b64 s[28:29], vcc"); o("s_cbranch_execz K1_E")
    o(f"buffer_store_dwordx4 v[48:51], v40, s[24:27], s30 offen {rpol}")
    lab("K1_E"); o("s_mov_b64 exec, -1")
    for s in range(8): o(m32(AC[0], WF_+4*s, XF_+4*s, None if s == 0 else AC[0]))
    o("s_waitcnt lgkmcnt(0)")
    for s in range(8):
        o(m32(AC[0]+16, WF_+32+4*s, XF_+4*s, None if s == 0 else AC[0]+16))
        o(f"ds_read_b128 {vr(XF_+4*s,4)}, v61 offset:{2*8320+16*s}")
    o("s_cmp_lg_u32 s68, 0"); o("s_cbranch_scc1 K1_PREP2")
    o("s_cmp_eq_u32 s33, 4"); o("s_cbranch_scc1 K1_OFF")
    lab("K1_G")
    o("s_waitcnt lgkmcnt(0)")
    mf = [m32(AC[1], WF_+4*s, XF_+4*s, None if s == 0 else AC[1]) for s in range(8)] + [m32(AC[1]+16, WF_+32+4*s, XF_+4*s, None if s == 0 else AC[1]+16) for s in range(8)]
    q = post(0) + [None] * 6 + stores(0)
    for m in mf:
        o(m)
        for _ in range(5):
            if q:
                x = q.pop(0)
                if x: o(x)
    assert not q
    o(f"v_add_u32 v59, {0x1000 if SM else 0x4000:#x}, v59"); o("v_cmp_gt_u32 vcc, 2, v58")
    for x in post(1): o(x)
    stamp(4)
    o("s_cmp_lt_u32 s33, 4"); o("s_cbranch_scc1 K1_H")
    o("s_mov_b64 exec, vcc")
    for x in stores(1)[:2]: o(x)
    o("s_branch K1_F")
    lab("K1_H")
    for x in stores(1): o(x)
    lab("K1_F")
    stamp_out(2, 12, 24, 0)
    lab("K1_END")
    o("s_endpgm")
    lab("K1_OFF")
    for j in range(8): o(f"v_lshl_add_u32 v{24+j}, v{24+j}, 19, v{32+j}"); o(f"v_add_u32 v{24+j}, s34, v{24+j}")
    o(f"v_mul_u32_u24 v41, {OG//16}, v20"); o("s_lshl_b32 s35, s36, 4"); o(f"s_add_u32 s35, s35, {WS_OFF:#x}"); o(f"s_add_u32 s30, s35, {OG}")
    o("buffer_store_dwordx4 v[24:27], v41, s[24:27], s35 offen"); o("buffer_store_dwordx4 v[28:31], v41, s[24:27], s30 offen")
    o("s_branch K1_G")
    lab("K1_LOAD")
    o("s_barrier")
    nb = int(OPT.get('k1b', 24))
    o("s_cmp_eq_u32 s33, 7"); o("s_cbranch_scc1 K1_LX")
    o("s_cmp_eq_u32 s33, 6"); o("s_cselect_b32 s42, s48, s42"); o("s_cselect_b32 s43, s49, s43"); o("s_cselect_b32 s39, 0x8000, 0"); o(f"s_add_u32 s39, s39, {K1_W}")
    srd(52, 42, 32768)
    o("v_lshrrev_b32 v44, 4, v20"); o("v_lshlrev_b32 v44, 6, v44"); o("v_xor_b32 v44, v44, v42")
    for k in range(32):
        if k == nb: o("s_barrier")
        if k % 4 == 0: o(f"s_add_u32 m0, s39, {k*1024}"); o(f"s_movk_i32 s14, {k*1024}")
        o(f"buffer_load_dwordx4 v44, s[52:55], s14 offen offset:{(k%4)*1024} lds")
    lab("K1_LD")
    addrs()
    o("s_waitcnt vmcnt(0)"); o("s_barrier")
    o("s_branch K1_J")
    lab("K1_LX")
    if int(OPT.get('touch', 0)):
        srd(24, 12, WS_SIZE)
        o(f"s_lshl_b32 s14, s37, {7 if SM else 9}"); o(f"s_add_u32 s14, s14, {WS_TAB:#x}"); o("v_mov_b32 v248, s14")
        if SM: o("v_lshrrev_b32 v249, 4, v20"); o(f"v_mul_u32_u24 v249, {SMS}, v249"); o("v_add_u32 v248, v248, v249")
        o("s_lshl_b32 s14, s3, 1")
        o("v_writelane_b32 v248, s14, 1"); o(f"s_mov_b32 s14, {WS_OFF:#x}"); o("v_writelane_b32 v248, s14, 2")
        o("buffer_load_dword v249, v248, s[24:27], 0 offen")
    srd(60, 4, N, 256)
    o("v_lshl_add_u32 v58, v57, 3, v56"); o("v_add_u32 v53, s37, v58")
    o("v_and_b32 v55, 15, v0"); o("v_lshlrev_b32 v59, 3, v56"); o("v_xor_b32 v55, v55, v59"); o("v_lshlrev_b32 v55, 4, v55")
    o("v_cmp_gt_u32 vcc, 2, v58"); o("v_mov_b32 v59, 0xffff")
    for k in range(25):
        t, i = divmod(k, 8)
        if k == nb: o("s_barrier")
        o(f"s_mov_b32 m0, {K1_X + t*8320 + i*1040}"); o(f"v_add_u32 v54, {32*t + 16*(i >> 2) + 2*(i & 3)}, v53")
        if t == 3: o("v_cndmask_b32 v54, v59, v54, vcc")
        o("buffer_load_dwordx4 v[54:55], s[60:63], 0 idxen offen lds")
    if int(OPT.get('touch', 0)) >= 2:
        sh = int(OPT.get('tsh', 16))
        o("v_lshl_add_u32 v250, v20, 5, s35"); o(f"v_lshlrev_b32 v250, {sh}, v250")
        srd(76, 6, E*32); o("buffer_load_dword v249, v250, s[76:79], 0 offen")
        srd(76, 12, WS_TAB + 4*SMS); o("buffer_load_dword v249, v250, s[76:79], 0 offen")
        srd(76, 72, N*256); o("buffer_load_dword v249, v250, s[76:79], 0 offen")
    o("s_cmp_ge_u32 s2, 68"); o("s_cbranch_scc1 K1_LD")
    o("s_lshr_b32 s14, s2, 5")
    o("s_cmp_eq_u32 s14, 1"); o("s_cselect_b32 s40, s46, s40"); o("s_cselect_b32 s41, s47, s41"); o(f"s_cselect_b32 s68, 1.0, {NLOG2E:#x}")
    o("s_mov_b32 s66, 32768"); o("s_bfe_u32 s50, s2, 0x20003"); o("s_and_b32 s51, s2, 7"); o("s_mov_b32 s32, 14")
    o("s_cmp_eq_u32 s14, 2"); o("s_cselect_b32 s40, s44, s40"); o("s_cselect_b32 s41, s45, s41"); o("s_cselect_b32 s66, 4096, s66")
    o("s_cselect_b32 s50, s51, s50"); o("s_cselect_b32 s51, 0, s51"); o("s_cselect_b32 s32, 11, s32")
    o("s_mov_b32 s64, s40"); o("s_and_b32 s65, s41, 0xffff"); o("s_mov_b32 s67, 0x20000")
    o("s_lshl_b32 s50, s50, 6"); o("s_lshl_b32 s51, s51, 11"); o("s_add_u32 s50, s50, s51")
    o("v_and_b32 v4, 3, v0"); o("v_bfe_u32 v5, v0, 3, 2"); o("v_lshl_or_b32 v4, v5, 2, v4")
    o("v_bfe_u32 v5, v0, 2, 1"); o("v_lshl_or_b32 v4, v5, 4, v4")
    o("v_lshlrev_b32 v5, s32, v57"); o("v_lshl_add_u32 v4, v4, 1, v5"); o("v_add_u32 v4, s50, v4")
    for j in range(8): o(f"buffer_load_ushort v{8+j}, v4, s[64:67], 0 offen offset:{j*256}")
    o("s_branch K1_LD")
    lab("K1_PREP2")
    o("s_lshl_b32 s14, s2, 10"); o(f"s_add_u32 s14, s14, {WS_WF:#x}")
    for j in range(8):
        o(f"v_lshlrev_b32 v{8+j}, 16, v{8+j}"); o(f"v_mul_f32 v{8+j}, s68, v{8+j}")
    for j in range(4): o(f"v_cvt_pk_bf16_f32 v{52+j}, v{8+2*j}, v{9+2*j}")
    o("buffer_store_dwordx4 v[52:55], v42, s[24:27], s14 offen")
    o("s_branch K1_G")

def regs_of(tok):
    m = re.fullmatch(r"v\[(\d+):(\d+)\]", tok)
    if m: return set(range(int(m.group(1)), int(m.group(2)) + 1))
    m = re.fullmatch(r"v(\d+)", tok)
    return {int(m.group(1))} if m else set()
def check_hazards(ins):
    P = []
    for s in ins:
        if s.endswith(':'): continue
        op, _, rest = s.partition(' ')
        t = [x.strip() for x in rest.split(',')]
        t = [x.split(' ')[0] for x in t]
        if op.startswith('v_mfma'):
            P.append(('m', 12 if '32x32' in op else 8, regs_of(t[0]), regs_of(t[1]) | regs_of(t[2]), regs_of(t[3]), s))
        elif op.startswith('v_'):
            P.append(('t' if op in ('v_exp_f32', 'v_rcp_f32') else 'v', 0, regs_of(t[0]), set().union(*map(regs_of, t[1:])), set(), s))
        elif op.startswith('ds_read'):
            P.append(('d', 0, regs_of(t[0]), regs_of(t[1]), set(), s))
        elif op.startswith('buffer'):
            P.append(('d', 0, set(), regs_of(t[0]), set(), s))
        else: P.append(('s', 0, set(), set(), set(), s))
    n = len(P)
    for i, (k, w, d, ab, c, s) in enumerate(P):
        for j in range(1, 13):
            k2, w2, d2, ab2, c2, s2 = P[(i + j) % n]
            gap = j - 1
            if k == 'm':
                if k2 == 'm':
                    assert not (gap < w and d & ab2), (s, s2)
                    if d & c2 and d != c2: assert gap >= w - 2, (s, s2)
                else: assert not (gap < w and d & (d2 | ab2)), (s, s2, gap)
                if k2 in 'vt': assert not (gap < (7 if w == 12 else 3) and c & d2), (s, s2)
            if k in 'vt' and k2 == 'm': assert not (gap < 2 and d & (ab2 | c2)), (s, s2)
            if k == 't' and k2 == 'v': assert not (gap < 1 and d & ab2), (s, s2)

LOWLIM = 2; NS = 2
LUT = 0; IDT = 4096; NB = IDT + 26 * 80; LIST = NB + 256; MB = LIST + 8192; ROW = 264; CNT = MB + 26 * ROW; ZSZ = 26 * ROW + 256
ER = CNT + 256; RING = ER + 8192; WS_ = 4160; SLOT = 4 * WS_; K2_LDS = RING + (NS + 1) * SLOT
G8 = int(OPT.get('g8', 0)); GS = (K2_LDS - NB + 255) // 256 * 256
assert K2_LDS <= 81920 and ER % 16 == 0 and LIST % 16 == 0 and MB % 16 == 0 and 4096 < ZSZ <= 8192 and ZSZ % 16 == 0

class RA:
    def __init__(s): s.n = 1
    def get(s, k=1, al=1):
        s.n = (s.n + al - 1) // al * al
        b = s.n; s.n += k; return b
R = RA()
vTA = R.get()
IX = [R.get(2, 2) for _ in range(4)]; IXE = R.get(2, 2); MQ = R.get(2, 2)
(vTC, vEA, vMT, vSA, vMA, vL1, vL2, vSV, vHC, vWF, vXA, vXR, vXI, vXO) = [R.get() for _ in range(14)]
SEG = R.get(4, 4); PT = R.get(4, 4)
GV = R.get(64, 4); ACC = R.get(64, 4)
TF = R.get(16, 4); EF = R.get(4, 4); SF = R.get(8, 4); WC = R.get(4, 4); T0 = R.get(8, 4); AF = R.get(16, 4); SEL = R.get(8, 4)
NVGPR = R.n
assert NVGPR <= 255, NVGPR
REC = GV; RANK = GV + 32; AD = GV + 48
sX, sE, sW, sO, sT = 8, 12, 16, 20, 96
sWAVE, sBASE, sMR, sME, sCNT, sNT, sRS, sLIM, sFIRST, sMORE, sDS, sT0, sT1, sEPS, s80, sMET = range(24, 40)
sHM, sSV, sWF, sS0 = 42, 44, 52, 54
sK = 56
sG = 95
def addg(v):
    if G8: o(f"v_add_u32 v{v}, s{sG}, v{v}")
def saddg(r):
    if G8: o(f"s_add_u32 s{r}, s{r}, s{sG}")

def ldt(i): return f"buffer_load_dwordx4 {vr(IX[i],2)}, s[{sT}:{sT+3}], 0 idxen offen lds"
def lde(): return f"buffer_load_dwordx4 {vr(IXE,2)}, s[{sE}:{sE+3}], 0 idxen offen lds"
def loff(u): return (u & 1) * 4096 + (u >> 1) * 256
def nextslot(r): return [f"s_add_u32 s{r}, s{r}, {SLOT}", f"s_cmp_eq_u32 s{r}, {NS*SLOT}", f"s_cselect_b32 s{r}, 0, s{r}"]

def vstream(Gc, Vc):
    A = []
    for p in range(0, 22, 2):
        if p < 16: A += [(f"v_exp_f32 v{Gc+p}, v{Gc+p}", 8), (f"v_exp_f32 v{Gc+p+1}, v{Gc+p+1}", 8)]
        q = p - 2
        if 0 <= q < 16:
            if 'a' in OPT.get('pk', ''): A += [(f"v_pk_add_f32 {vr(Gc+q,2)}, {vr(Gc+q,2)}, 1.0 op_sel_hi:[1,0]", 4)]
            else: A += [(f"v_add_f32 v{Gc+q}, 1.0, v{Gc+q}", 4), (f"v_add_f32 v{Gc+q+1}, 1.0, v{Gc+q+1}", 4)]
            A += [(f"v_rcp_f32 v{Gc+q}, v{Gc+q}", 8), (f"v_rcp_f32 v{Gc+q+1}, v{Gc+q+1}", 8)]
        q = p - 4
        if 0 <= q < 16 and 'm' in OPT.get('pk', ''): A += [(f"v_pk_mul_f32 {vr(Vc+q,2)}, {vr(Gc+q,2)}, {vr(Vc+q,2)}", 4)]
        elif 0 <= q < 16: A += [(f"v_mul_f32 v{Vc+q}, v{Gc+q}, v{Vc+q}", 4), (f"v_mul_f32 v{Vc+q+1}, v{Gc+q+1}, v{Vc+q+1}", 4)]
        q = p - 6
        if 0 <= q < 16: A += [(f"v_cvt_pk_bf16_f32 v{Gc+q//2}, v{Gc+q}, v{Gc+q+1}", 4), (f"v_cvt_pk_bf16_f32 v{Vc+q//2}, v{Vc+q}, v{Vc+q+1}", 4)]
    return A
def zphase(P, p):
    d = ACC + 32 * p
    return [m32(d, P, T0, d), m32(d+16, P+16, T0, d+16), m32(d, P+4, T0+4, d), m32(d+16, P+20, T0+4, d+16)]

HEAD = {}
def body(b, peel=False):
    p = b % 2
    Gn = GV + 32 * p; Vn = Gn + 16; Gc = GV + 32 * (1 - p); Vc = Gc + 16; af = AF + 8 * p
    ne = sum(1 for k in range(NS - 1) if (b - k) % 4 == 0) + (1 if (b - (NS - 1)) % 4 == 0 else 0)
    vmw = 4 * (NS - 1) + ne
    z = zphase(Gn, p)
    def dma(i): return [f"s_add_u32 m0, s{sMR}, {p*SLOT + i*1040}", None, ldt(i), f"ds_read_u16 v{IX[i]}, v{vL1} offset:{loff(b+NS+1)+64*i}"]
    top = ["s_waitcnt vmcnt(8) lgkmcnt(0)", "s_barrier"] if b == 3 else ["s_waitcnt lgkmcnt(0)"]
    if G8 and OPT.get('sp', '2103') != '0': top.append(f"s_setprio {OPT.get('sp', '2103')[b]}")
    if G8 and OPT.get('bar2') and b == 1: top.insert(1, "s_barrier")
    seq = []
    seq.append([z[0], [], [f"v_mad_u32_u24 v{vSV}, v{vSV}, s{s80}, v{vHC}"]])
    seq.append([z[1], [f"ds_read_b128 {vr(SF,4)}, v{vSV}", f"ds_read_b128 {vr(SF+4,4)}, v{vSV} offset:32"], []])
    seq.append([z[2], [f"ds_read_u8 v{vSV}, v{vSA} offset:{loff(b+1)}"], []])
    seq.append([z[3], ([f"s_sub_u32 s{sCNT}, s{sCNT}, 1", "s_cbranch_scc1 TAIL"] if p == 0 else []) + [f"ENT{b}:"], []])
    seq.append([m32(Gn, TF, SEL, None), [f"ds_read_b128 {vr(T0,4)}, v{MQ}"], [f"v_and_b32 v{IXE}, 0x7ffff, v{IXE}"] if b == 0 else []])
    seq.append([m32(Gn, TF+4, SEL+4, Gn), [f"ds_read_b128 {vr(T0+4,4)}, v{MQ+1}"], [f"v_xor_b32 v{vEA}, v{vEA}, v{vMT}"] if b == 3 else []])
    seq.append([m32(Gn, EF, WC, Gn), [f"ds_read_b128 {vr(EF,4)}, v{vEA} offset:{(b+1)%4*1024}", f"ds_read_u16 v{MQ}, v{vMA} offset:{b*8}",
                f"ds_read_u16 v{MQ+1}, v{vMA} offset:{b*8+2}"], []])
    seq.append([m32(Vn, TF+8, SEL, None), [f"ds_read_b32 v{IXE}, v{vL2}"] if b == 3 else [], []])
    seq.append([m32(Vn, TF+12, SEL+4, Vn), ["s_waitcnt lgkmcnt(S)"], []])
    seq.append([m32(Gn, SF, af, Gn), [f"s_waitcnt vmcnt({vmw})"], []])
    seq.append([m32(Gn, SF+4, af+4, Gn), [f"ds_read_b128 {vr(TF+4*j,4)}, v{vTA} offset:{(1-p)*SLOT+16*j}" for j in range(4)],
                [f"v_add_u32 v{r}, 0x200, v{r}" for r in (vSA, vL1, vL2)] + [f"v_add_u32 v{vMA}, 32, v{vMA}"] if b == 3 else []])
    dp = [int(c) for c in OPT.get('dp', '03589')]
    for i in range(4): seq[dp[i]][1] = seq[dp[i]][1] + dma(i)
    if b == 0: seq[dp[4]][1] = seq[dp[4]][1] + [f"s_mov_b32 m0, s{sME}", None, lde(), f"s_xor_b32 s{sME}, s{sME}, s{sMET}"]
    A = [] if peel else vstream(Gc, Vc)
    wt = [float(x) for x in OPT.get('wt', '1,1,1,1,1,1,1,1,1,1,1.6').split(',')]
    tot = sum(c for _, c in A); out = list(top); ai = 0; acc = 0; budget = 0
    for i, (m, ex, xv) in enumerate(seq):
        budget += tot * wt[i] / sum(wt)
        g = []
        while ai < len(A) and acc + A[ai][1] / 2 <= budget + 0.01:
            g.append(A[ai][0]); acc += A[ai][1]; ai += 1
        if i == 3 and not peel: HEAD[b] = ai
        if not (peel and i < 4): out.append(m)
        g = xv + g
        last = [x for x in ex if x and (x.startswith("s_waitcnt") or x.startswith("s_cbranch") or x.endswith(":") or x.startswith("s_sub"))]
        ex = [x for x in ex if x not in last]
        if peel: last = [x for x in last if x.startswith("s_waitcnt")]
        first = True
        for x in ex:
            if x is None:
                continue
            if not first and g: out.append(g.pop(0))
            elif not first and peel and x.startswith("buffer"): out.append("s_nop 0")
            out.append(x); first = False
        out += g + last
    assert ai == len(A)
    i0 = max(i for i, x in enumerate(out) if x.startswith(f"ds_read_b128 {vr(SF+4,4)}")); i1 = out.index("s_waitcnt lgkmcnt(S)")
    out[i1] = f"s_waitcnt lgkmcnt({sum(1 for x in out[i0+1:i1] if x.startswith('ds_'))})"
    for i, x in enumerate(out):
        if x.startswith("buffer_load"): assert not out[i-1].split()[1].startswith("m0"), (out[i-1], x)
    if OPT.get('notrans'): out = [x.replace("v_exp_f32", "v_mov_b32").replace("v_rcp_f32", "v_mov_b32") for x in out]
    if OPT.get('noval'): out = ["s_nop 0" if (x.startswith("v_exp") or x.startswith("v_rcp")) else x for x in out if not (x.startswith("v_add_f32") or x.startswith("v_mul_f32") or x.startswith("v_cvt"))]
    if OPT.get('nodma'): out = [x for x in out if 'buffer_load' not in x]
    if OPT.get('noe'): out = [x for x in out if f"s[{sE}:{sE+3}]" not in x]
    return out

def emit(lst):
    for it in lst:
        if it.endswith(':'): lab(it[:-1])
        else: o(it)

def masks(tmp):
    a, b_, c = tmp
    o(f"v_and_b32 v{a}, 3, v0"); o(f"v_lshlrev_b32 v{a}, 1, v{a}"); o(f"v_mov_b32 v{c}, 0")
    for i in range(4):
        o(f"v_lshrrev_b32 v{b_}, 19, v{SEG+i}"); o(f"v_max_u32 v{c}, v{c}, v{b_}")
        o(f"v_min_u32 v{b_}, s{sLIM}, v{b_}"); o(f"v_sub_u32 v{b_}, v{b_}, v{a}")
        for j, k in ((0, 2*i), (1, 2*i+1), (8, 8+2*i), (9, 9+2*i)): o(f"v_cmp_lt_i32 s[{sK+2*k}:{sK+2*k+1}], {j}, v{b_}")
    o(f"v_cmp_lt_u32 vcc, s{sLIM}, v{c}")
    o(f"s_or_b64 s[{sSV}:{sSV+1}], s[{sK+16}:{sK+17}], s[{sK+20}:{sK+21}]"); o(f"s_or_b64 s[{sHM}:{sHM+1}], s[{sK+24}:{sK+25}], s[{sK+28}:{sK+29}]")
    o(f"s_or_b64 s[{sSV}:{sSV+1}], s[{sSV}:{sSV+1}], s[{sHM}:{sHM+1}]")
    o(f"v_mov_b32 v{b_}, {CNT-4}"); addg(b_)
    o("s_mov_b64 exec, vcc"); o(f"ds_write_b32 v{b_}, v{b_}"); o("s_mov_b64 exec, -1")

def interleave(mf, other, per):
    other = list(other)
    for m in mf:
        o(m)
        for _ in range(per):
            if other: o(other.pop(0))
    for x in other: o(x)
def capture(fn):
    n = len(L); fn(); r = [x.strip() for x in L[n:]]; del L[n:]; return r
def wload(dst, off):
    r = []
    for s in range(8):
        if s % 4 == 0: r.append(f"s_add_u32 s{sT0}, s{sWF}, {off + s*1024:#x}")
        r.append(f"buffer_load_dwordx4 {vr(dst+4*s,4)}, v{vWF}, s[{sW}:{sW+3}], s{sT0} offen offset:{(s%4)*1024}")
    return r
def xblk(base, pair):
    o(f"v_mov_b32 v{pair+1}, v{vXO}")
    for mt in range(2):
        for a in range(2):
            o(f"s_add_u32 m0, s{base}, {(2*mt+a)*1040}")
            o(f"v_cmp_gt_u32 vcc, {(NA if mt == 0 else RN-NA) - 2*a}, v{vXI}")
            o(f"s_add_u32 s{sT0}, s{sBASE}, {NA*mt + 2*a}"); o(f"v_add_u32 v{pair}, s{sT0}, v{vXI}")
            o(f"v_cndmask_b32 v{pair}, v{PT+3}, v{pair}, vcc")
            o(f"buffer_load_dwordx4 {vr(pair,2)}, s[{sX}:{sX+3}], 0 idxen offen lds")

def gen_k2():
    L.append(".globl gmain_kernel"); L.append(".p2align 8"); L.append(".type gmain_kernel,@function")
    lab("gmain_kernel"); VST[0] = 255
    t = [TF + i for i in range(28)]
    stamp(0)
    o("s_load_dwordx2 s[50:51], s[0:1], 88")
    o("s_load_dwordx4 s[4:7], s[0:1], 0")
    o("s_load_dwordx2 s[48:49], s[0:1], 72")
    o("s_setprio 3")
    o(f"v_lshrrev_b32 v{t[0]}, 6, v0")
    o("s_and_b32 s3, s2, 7"); o("s_lshl_b32 s3, s3, 6"); o(f"s_bfe_u32 s{sT0}, s2, 0x50003"); o(f"s_lshl1_add_u32 s3, s{sT0}, s3")
    o(f"v_readfirstlane_b32 s{sWAVE}, v{t[0]}")
    if G8:
        o("v_and_b32 v0, 0xff, v0"); o(f"s_lshr_b32 s{sT0}, s{sWAVE}, 2"); o(f"s_and_b32 s{sWAVE}, s{sWAVE}, 3"); o(f"s_mul_i32 s{sG}, s{sT0}, {GS}")
    else: o(f"s_lshr_b32 s{sT0}, s2, 8")
    o(f"s_add_u32 s3, s3, s{sT0}")
    o(f"s_cmp_ge_u32 s2, {256 if G8 else 512}"); o("s_cbranch_scc1 K2_END")
    o(f"s_cmp_ge_u32 s3, {NR}"); o("s_cbranch_scc1 K2_END")
    o(f"v_lshrrev_b32 v{t[1]}, 2, v0")
    o(f"s_lshr_b32 s{sS0}, s3, 2"); o(f"s_mul_i32 s{sS0}, s{sS0}, {OG}"); o(f"s_and_b32 s{sT0}, s3, 3"); o(f"s_lshl2_add_u32 s{sS0}, s{sT0}, s{sS0}"); o(f"s_add_u32 s{sS0}, s{sS0}, {WS_OFF:#x}")
    o(f"v_lshlrev_b32 v{t[1]}, 6, v{t[1]}")
    o(f"s_mul_i32 s{sBASE}, s3, {RN}")
    o(f"v_and_b32 v{vWF}, 63, v0"); o(f"v_lshlrev_b32 v{vWF}, 4, v{vWF}")
    o(f"s_mul_i32 s{sMR}, s{sWAVE}, {WS_}"); o(f"s_add_u32 s{sMR}, s{sMR}, {RING}"); saddg(sMR)
    o(f"s_lshl_b32 s{sWF}, s{sWAVE}, 13"); o(f"s_add_u32 s{sWF}, s{sWF}, {WS_WF:#x}")
    o(f"s_mov_b32 s{sEPS}, {EPS:#x}"); o(f"s_movk_i32 s{s80}, 80")
    o(f"s_mov_b32 s{sFIRST}, 1"); o(f"s_mov_b32 s{sLIM}, 16")
    o("s_cmp_ge_u32 s2, 256"); o(f"s_cselect_b32 s{sRS}, {OPT.get('bon', 0)}, 0")
    o("s_waitcnt lgkmcnt(0)"); xstamp("karg")
    srd(sW, 50, WS_SIZE)
    for i in range(4): o(f"buffer_load_dword v{SEG+i}, v{t[1]}, s[{sW}:{sW+3}], s{sS0} offen offset:{16*i}")
    srd(sX, 4, N, 256); srd(sE, 6, E, 32); srd(sO, 48, N, 256)
    o(f"s_add_u32 s50, s50, {WS_TAB:#x}"); o("s_addc_u32 s51, s51, 0")
    if SM: o(f"s_mul_i32 s{sT0}, s{sWAVE}, {SMS}"); o(f"s_add_u32 s50, s50, s{sT0}"); o("s_addc_u32 s51, s51, 0")
    srd(sT, 50, N, 128 if SM else 512)
    WAP = OPT.get('wap', 'p1'); XBP = OPT.get('xbp', 'p1'); ORD = ['start', 'rec', 'mask', 'p1', 'b1']
    def place(where):
        if where not in (WAP, XBP): return
        o(f"s_cmp_eq_u32 s{sFIRST}, 0"); o(f"s_cbranch_scc1 NOW_{where}")
        if XBP == where:
            o(f"s_add_u32 s{sNT}, s{sMR}, {NS*SLOT}")
            xblk(sNT, T0)
        if WAP == where:
            for x in wload(ACC, WF_A): o(x)
            o(f"s_lshl_b32 s{sT0}, s{sWAVE}, 10"); o(f"s_add_u32 s{sT0}, s{sT0}, {WS_WF+WF_C:#x}")
            o(f"buffer_load_dwordx4 {vr(WC,4)}, v{vWF}, s[{sW}:{sW+3}], s{sT0} offen")
        lab(f"NOW_{where}")
    def cnt(lo, hi): return sum(n for p, n in ((WAP, 9), (XBP, 4)) if lo <= ORD.index(p) <= hi)
    SP = [int(x) for x in OPT.get('spf', '0,0').split(',')]
    def spref(n, first):
        for k in range(n): o(f"s_load_dword s{88 + k % 4}, s[46:47], {(first + k) * 32768:#x}")
    if sum(SP):
        o(f"s_and_b32 s{sT0}, s3, 63"); o(f"s_lshl2_add_u32 s{sT0}, s{sT0}, s{sWAVE}"); o(f"s_lshl_b32 s{sT0}, s{sT0}, 7")
        o(f"s_add_u32 s46, s50, s{sT0}"); o("s_addc_u32 s47, s51, 0")
        spref(SP[0], 0)
    lab("ROUND")
    b0, b2, b3, b4, vh = t[16:21]
    o(f"v_lshlrev_b32 v{t[11]}, 4, v0"); addg(t[11])
    for d in range(4): o(f"v_mov_b32 v{t[0]+d}, 0")
    for off in (0, ZSZ - 4096): o(f"ds_write_b128 v{t[11]}, {vr(t[0],4)} offset:{MB+off}")
    pad0 = 0xffff | (NA << 16)
    o(f"v_mov_b32 v{t[4]}, {pad0:#x}"); o(f"v_mov_b32 v{t[5]}, 0x7ffff"); o(f"v_mov_b32 v{t[6]}, {pad0:#x}"); o(f"v_mov_b32 v{t[7]}, 0x7ffff")
    o(f"ds_write_b128 v{t[11]}, {vr(t[4],4)} offset:{LIST}"); o(f"ds_write_b128 v{t[11]}, {vr(t[4],4)} offset:{LIST+4096}")
    o(f"v_and_b32 v{b0}, 1, v0"); o(f"v_bfe_u32 v{b2}, v0, 2, 1"); o(f"v_bfe_u32 v{b3}, v0, 3, 1"); o(f"v_bfe_u32 v{b4}, v0, 4, 1"); o(f"v_bfe_u32 v{vh}, v0, 5, 1")
    o(f"v_and_b32 v{t[8]}, 3, v0"); o(f"v_lshlrev_b32 v{t[8]}, 1, v{t[8]}")
    o(f"v_mov_b32 v{t[9]}, 0x7ffffff0"); o(f"s_mov_b32 s{sT1}, 0x7ffff")
    o(f"v_and_b32 v{t[12]}, 15, v0"); o(f"v_lshlrev_b32 v{t[13]}, 3, v{b4}")
    o(f"v_xor_b32 v{vXO}, v{t[12]}, v{t[13]}"); o(f"v_lshlrev_b32 v{vXO}, 4, v{vXO}")
    o(f"s_lshr_b32 s{sT0}, s{sWAVE}, 1"); o(f"s_lshl_b32 s{sT0}, s{sT0}, 4"); o(f"s_and_b32 s{sS0}, s{sWAVE}, 1"); o(f"s_lshl2_add_u32 s{sT0}, s{sS0}, s{sT0}")
    o(f"v_lshl_add_u32 v{vXI}, v{vh}, 3, v{b4}"); o(f"v_add_u32 v{vXI}, s{sT0}, v{vXI}")
    o(f"v_mov_b32 v{PT+3}, 0xffff")
    place('start')
    xstamp("consts_done")
    o(f"s_waitcnt vmcnt({cnt(0, 0)})"); stamp(1)
    for i in range(4):
        o(f"v_lshrrev_b32 v{t[4+i]}, 19, v{SEG+i}"); o(f"v_cmp_lt_u32 vcc, v{t[8]}, v{t[4+i]}")
        o(f"v_and_b32 v{t[i]}, s{sT1}, v{SEG+i}"); o(f"v_add_lshl_u32 v{t[i]}, v{t[i]}, v{t[8]}, 3")
        o(f"v_cndmask_b32 v{t[10]}, v{t[9]}, v{t[i]}, vcc")
        o(f"buffer_load_dwordx4 {vr(REC+4*i,4)}, v{t[10]}, s[{sW}:{sW+3}], 0 offen")
    o(f"v_max3_u32 v{t[10]}, v{t[4]}, v{t[5]}, v{t[6]}"); o(f"v_max_u32 v{t[10]}, v{t[10]}, v{t[7]}")
    o(f"v_cmp_lt_u32 vcc, 8, v{t[10]}"); o("s_cbranch_vccz REC_DONE")
    for i in range(4): o(f"buffer_load_dwordx4 {vr(REC+16+4*i,4)}, v{t[i]}, s[{sW}:{sW+3}], 0 offen offset:64")
    lab("REC_DONE")
    xstamp("rec_issued")
    PF = int(OPT.get('pf', 0))
    def pref():
        o(f"s_lshr_b32 s{sT0}, s3, 6"); o(f"s_mul_i32 s{sT0}, s{sT0}, {64*RN}"); o(f"s_and_b32 s{sT1}, s3, 63"); o(f"s_lshl_b32 s{sT1}, s{sT1}, 6"); o(f"s_add_u32 s{sT0}, s{sT0}, s{sT1}")
        o(f"v_lshrrev_b32 v{T0+2}, 2, v0"); o(f"v_add_u32 v{T0+2}, s{sT0}, v{T0+2}"); o(f"v_and_b32 v{T0+1}, 3, v0"); o(f"v_lshlrev_b32 v{T0+1}, 7, v{T0+1}")
        for k in range(PF):
            o(f"v_add_u32 v{T0+3}, {-512*RN}, v{T0+2}"); o(f"v_min_u32 v{T0}, v{T0+2}, v{T0+3}")
            o(f"buffer_load_dword v{SEL}, {vr(T0,2)}, s[{sT}:{sT+3}], 0 idxen offen")
            if k + 1 < PF: o(f"v_add_u32 v{T0+2}, 4096, v{T0+2}")
    PFW = OPT.get('pfw', 'rec')
    place('rec')
    if PF and PFW == 'rec': pref()
    o("s_waitcnt lgkmcnt(0)"); o("s_barrier"); stamp(2)
    spref(SP[1], SP[0])
    pp = t[14]
    o(f"v_and_b32 v{pp}, 0x13, v0"); o(f"v_lshl_or_b32 v{pp}, v{b2}, 3, v{pp}"); o(f"v_lshl_or_b32 v{pp}, v{b3}, 2, v{pp}")
    o(f"v_lshrrev_b32 v{t[12]}, 3, v{pp}"); o(f"v_lshlrev_b32 v{vTA}, 7, v{pp}"); o(f"v_lshl_add_u32 v{vTA}, v{t[12]}, 4, v{vTA}")
    o(f"v_bfe_u32 v{t[13]}, v0, 1, 1"); o(f"v_xor_b32 v{t[12]}, v{t[13]}, v{vh}"); o(f"v_lshl_add_u32 v{vTA}, v{t[12]}, 6, v{vTA}"); o(f"v_add_u32 v{vTA}, s{sMR}, v{vTA}")
    o(f"v_and_b32 v{t[12]}, 7, v0"); o(f"v_lshlrev_b32 v{t[15]}, 2, v{b4}"); o(f"v_xor_b32 v{t[15]}, v{t[15]}, v{t[12]}")
    o(f"s_mov_b32 s{sT0}, 0" if SM else f"s_lshl_b32 s{sT0}, s{sWAVE}, 7"); o(f"v_lshl_add_u32 v{IX[0]+1}, v{t[15]}, 4, s{sT0}")
    for i in range(1, 4): o(f"v_mov_b32 v{IX[i]+1}, v{IX[0]+1}")
    o(f"v_and_b32 v{vL1}, 0x38, v0"); o(f"v_add_u32 v{vL1}, {LIST}, v{vL1}"); addg(vL1)
    o(f"v_lshl_or_b32 v{t[15]}, v{b4}, 1, v{b2}"); o(f"v_mul_u32_u24 v{t[15]}, {WS_}, v{t[15]}"); o(f"v_mul_u32_u24 v{t[13]}, 1040, v{t[13]}")
    o(f"v_lshl_or_b32 v{t[21]}, v{b3}, 1, v{b0}"); o(f"v_lshl_add_u32 v{t[15]}, v{t[21]}, 8, v{t[15]}"); o(f"v_add3_u32 v{t[15]}, v{t[15]}, v{t[13]}, {'s%d' % sG if G8 else 0}")
    o(f"v_add_u32 v{t[15]}, {RING + NS*SLOT}, v{t[15]}")
    o(f"v_xor_b32 v{t[13]}, v{vh}, v{b0}"); o(f"v_lshl_add_u32 v{vXA}, v{t[13]}, 7, v{t[15]}")
    o(f"v_lshlrev_b32 v{IXE+1}, 4, v{t[13]}")
    o(f"v_bfe_u32 v{t[13]}, v0, 7, 1"); o(f"v_xor_b32 v{t[13]}, v{t[13]}, v{b0}"); o(f"v_lshl_add_u32 v{vXR}, v{t[13]}, 7, v{t[15]}")
    o(f"v_and_b32 v{t[13]}, 0x60, v0"); o(f"v_add_u32 v{vXR}, v{vXR}, v{t[13]}")
    o(f"s_lshl_b32 s{sT0}, s{sS0}, 12"); o(f"s_lshr_b32 s{sT1}, s{sWAVE}, 1"); o(f"s_lshl_b32 s{sT1}, s{sT1}, 8"); o(f"s_add_u32 s{sT0}, s{sT0}, s{sT1}"); o(f"s_add_u32 s{sT0}, s{sT0}, {LIST+4}"); saddg(sT0)
    o(f"v_bfe_u32 v{vL2}, v0, 1, 5"); o(f"v_lshl_add_u32 v{vL2}, v{vL2}, 3, s{sT0}")
    o(f"s_lshl_b32 s{sME}, s{sWAVE}, 10"); o(f"s_add_u32 s{sME}, s{sME}, {ER}"); saddg(sME)
    o(f"v_lshlrev_b32 v{vSA}, 3, v{pp}"); o(f"v_add_u32 v{vSA}, {LIST+2}, v{vSA}"); addg(vSA)
    o(f"v_lshlrev_b32 v{vHC}, 4, v{vh}"); o(f"v_add_u32 v{vHC}, {IDT}, v{vHC}")
    o(f"v_xor_b32 v{vEA}, v{b4}, v{vh}"); o(f"v_lshlrev_b32 v{vEA}, 4, v{vEA}")
    o(f"v_lshl_add_u32 v{vEA}, v{pp}, 5, v{vEA}"); o(f"v_add_u32 v{vEA}, {ER}, v{vEA}"); addg(vEA)
    o(f"v_add_u32 v{vMT}, 4096, v{vEA}"); o(f"v_xor_b32 v{vMT}, v{vMT}, v{vEA}")
    o(f"v_and_b32 v{t[13]}, 31, v0"); o(f"v_min_u32 v{t[13]}, {NA}, v{t[13]}")
    o(f"v_mul_u32_u24 v{vMA}, {ROW}, v{t[13]}"); o(f"v_lshl_add_u32 v{vMA}, v{vh}, 2, v{vMA}"); o(f"v_add_u32 v{vMA}, {MB}, v{vMA}"); addg(vMA)
    o(f"v_lshrrev_b32 v{PT+2}, 5, v0"); o(f"v_lshlrev_b32 v{PT+2}, 4, v{PT+2}"); o(f"v_lshl_add_u32 v{PT+2}, v{b3}, 2, v{PT+2}"); addg(PT+2)
    o(f"v_lshl_add_u32 v{t[12]}, v{b4}, 4, v{t[12]}"); o(f"v_lshlrev_b32 v{PT+1}, v{t[12]}, 16")
    o(f"v_and_b32 v{t[12]}, 3, v0"); o(f"v_lshl_add_u32 v{t[12]}, v{b4}, 2, v{t[12]}"); o(f"v_lshlrev_b32 v{t[12]}, v{t[12]}, 16")
    o(f"v_cmp_eq_u32 vcc, v{b3}, v{vh}"); o(f"v_lshlrev_b32 v{t[13]}, 4, v{b2}"); o("s_nop 0")
    o(f"v_cndmask_b32 v{t[12]}, 0, v{t[12]}, vcc"); o(f"v_lshlrev_b32 v{PT}, v{t[13]}, v{t[12]}")
    place('mask')
    if cnt(1, 2):
        o(f"s_cmp_eq_u32 s{sFIRST}, 1"); o("s_cbranch_scc1 REMASK"); o("s_waitcnt vmcnt(0)")
    lab("REMASK")
    masks((t[0], t[1], t[2])); xstamp("masks_done")
    a, b_, c, d_ = t[0:4]; ad = [AD + k for k in range(16)]
    o(f"v_mov_b32 v{a}, 8")
    o(f"v_lshrrev_b32 v{b_}, 2, v{vWF}"); addg(b_)
    if G8: o(f"s_lshr_b32 s{sDS}, s{sG}, 8")
    if PF and PFW == 'mask': pref()
    o(f"s_waitcnt vmcnt({cnt(1, 2)})"); xstamp("rec_landed")
    for half in range(2):
        if half: o(f"s_cmp_eq_u64 s[{sSV}:{sSV+1}], 0"); o("s_cbranch_scc1 P1_DONE"); o("s_mov_b64 exec, -1")
        for k in range(8*half, 8*half+8): o(f"v_alignbit_b32 v{ad[k]}, s{sDS}, v{REC+2*k+1}, 24" if G8 else f"v_lshrrev_b32 v{ad[k]}, 24, v{REC+2*k+1}")
        for k in range(8*half, 8*half+8):
            o(f"s_mov_b64 exec, s[{sK+2*k}:{sK+2*k+1}]")
            o(f"ds_add_rtn_u32 v{RANK+k}, v{ad[k]}, v{a} offset:{CNT}")
    lab("P1_DONE")
    o("s_mov_b64 exec, -1")
    place('p1')
    if PF and PFW == 'p1': pref()
    o("s_waitcnt lgkmcnt(0)"); xstamp("p1_done"); o("s_barrier"); xstamp("b1")
    o(f"ds_read_b32 v{c}, v{b_} offset:{CNT}")
    o(f"ds_read_b32 v{t[4]}, v{b_} offset:{CNT-4}")
    place('b1')
    o(f"v_lshlrev_b32 v{t[5]}, 12, v{vh}"); addg(t[5])
    o("s_waitcnt lgkmcnt(1)")
    o(f"v_sub_u32 v{d_}, v{t[5]}, v{c}")
    for dd in ("row_shr:1", "row_shr:2", "row_shr:4", "row_shr:8"):
        o(f"v_add_u32_dpp v{c}, v{c}, v{c} {dd} row_mask:0xf bank_mask:0xf bound_ctrl:0"); o("s_nop 1")
    o(f"v_add_u32_dpp v{c}, v{c}, v{c} row_bcast:15 row_mask:0xa bank_mask:0xf")
    o(f"v_add_u32 v{d_}, v{c}, v{d_}")
    o(f"ds_write_b32 v{b_}, v{d_} offset:{NB}")
    o(f"v_readlane_b32 s{sNT}, v{c}, 31"); o(f"v_readlane_b32 s{sT0}, v{c}, 63")
    for k in range(8): o(f"ds_read_b32 v{ad[k]}, v{ad[k]} offset:{NB}")
    o(f"s_max_u32 s{sNT}, s{sNT}, s{sT0}")
    o(f"s_cmp_le_u32 s{sNT}, 4096"); o("s_cbranch_scc0 TOOBIG")
    xstamp("scan_done")
    for half in range(2):
        if half:
            o(f"s_cmp_eq_u64 s[{sSV}:{sSV+1}], 0"); o("s_cbranch_scc1 P2_DONE"); o("s_mov_b64 exec, -1")
            for k in range(8, 16): o(f"ds_read_b32 v{ad[k]}, v{ad[k]} offset:{NB}")
        for k in range(8*half, 8*half+8):
            if k % 4 == 0: o(f"s_waitcnt lgkmcnt({4 - k % 8})")
            o(f"v_add_u32 v{RANK+k}, v{RANK+k}, v{ad[k]}")
        for k in range(8*half, 8*half+8):
            o(f"s_mov_b64 exec, s[{sK+2*k}:{sK+2*k+1}]")
            o(f"ds_write_b64 v{RANK+k}, {vr(REC+2*k,2)} offset:{LIST}")
    lab("P2_DONE")
    o("s_mov_b64 exec, -1")
    o(f"v_readlane_b32 s{sMORE}, v{t[4]}, 0")
    o(f"s_mov_b32 m0, s{sME}")
    o(f"s_waitcnt vmcnt({9 if ORD.index(WAP) >= ORD.index(XBP) else 0}) lgkmcnt(0)"); xstamp("p2_done"); o("s_barrier"); stamp(5)
    f = t
    def rdidx(u):
        for i in range(4): o(f"ds_read_u16 v{IX[i]}, v{vL1} offset:{loff(u)+64*i}")
    def fill(u, nxt):
        for i in range(4):
            o(f"s_add_u32 m0, s{sMR}, {u*SLOT + i*1040}"); o(f"s_waitcnt lgkmcnt(3)"); o(ldt(i))
            o(f"ds_read_u16 v{IX[i]}, v{vL1} offset:{loff(nxt)+64*i}")
    o(f"ds_read_b32 v{IXE}, v{vL2}"); rdidx(0)
    o(f"v_lshlrev_b32 v{f[9]}, 3, v0"); addg(f[9])
    o("s_waitcnt lgkmcnt(4)")
    o(f"v_and_b32 v{IXE}, 0x7ffff, v{IXE}"); o(lde())
    for u in range(NS): fill(u, u + 1)
    for k in range(4): o(f"ds_read_u8 v{f[12+k]}, v{f[9]} offset:{LIST+2+k*2048}")
    o(f"ds_read_b32 v{IXE}, v{vL2} offset:512"); o(f"ds_read_u8 v{vSV}, v{vSA}")
    xstamp("fill_issued")
    def ctrl():
        o(f"s_movk_i32 s{sS0}, {ROW}")
        for k in range(4):
            o(f"v_cmp_gt_u32 vcc, {NA}, v{f[12+k]}"); o(f"v_mad_u32_u24 v{f[0]}, v{f[12+k]}, s{sS0}, v{PT+2}"); o("s_nop 0")
            o(f"v_cndmask_b32 v{f[1]}, 0, v{PT+1}, vcc")
            o(f"ds_or_b32 v{f[0]}, v{f[1]} offset:{MB + (k&1)*128 + (k>>1)*8}")
        o(f"s_add_u32 s{sCNT}, s{sNT}, 255"); o(f"s_lshr_b32 s{sCNT}, s{sCNT}, 8"); o(f"s_max_u32 s{sCNT}, s{sCNT}, 1"); o(f"s_lshl_b32 s{sNT}, s{sCNT}, 1"); o(f"s_sub_u32 s{sCNT}, s{sCNT}, 1")
        o(f"s_add_u32 s{sMET}, s{sME}, 4096"); o(f"s_xor_b32 s{sMET}, s{sMET}, s{sME}"); o(f"s_add_u32 s{sME}, s{sME}, 4096")
        o(f"v_add_u32 v{vL2}, 0x400, v{vL2}")
    def lut():
        q = T0
        for d in range(4):
            o(f"v_bfe_u32 v{q+d}, v0, {2*d}, 2"); o(f"v_mul_u32_u24 v{q+d}, 0x8001, v{q+d}")
            o(f"v_and_b32 v{q+d}, 0x10001, v{q+d}"); o(f"v_mul_u32_u24 v{q+d}, 0x3f80, v{q+d}")
        o(f"v_lshlrev_b32 v{q+4}, 4, v0"); o(f"ds_write_b128 v{q+4}, {vr(q,4)} offset:{LUT}")
        o(f"v_lshrrev_b32 v{q}, 3, v0"); o(f"v_and_b32 v{q+1}, 7, v0")
        o(f"v_bfe_u32 v{q+2}, v0, 5, 1"); o(f"v_bfe_u32 v{q+3}, v0, 6, 1"); o(f"v_lshl_or_b32 v{q+2}, v{q+2}, 1, v{q+3}")
        o(f"v_lshrrev_b32 v{q+3}, 7, v0"); o(f"v_lshl_or_b32 v{q+2}, v{q+3}, 2, v{q+2}")
        o(f"v_cmp_eq_u32 vcc, v{q+2}, v{q+1}"); o(f"v_cmp_gt_u32 s[{sHM}:{sHM+1}], {NA}, v{q}"); o(f"v_mov_b32 v{q+6}, 0x3f80"); o(f"v_mov_b32 v{q+7}, 0")
        o(f"s_and_b64 vcc, vcc, s[{sHM}:{sHM+1}]")
        o(f"v_and_b32 v{q+2}, 3, v{q}"); o(f"v_lshlrev_b32 v{q+2}, 4, v{q+2}"); o(f"v_cndmask_b32 v{q+6}, 0, v{q+6}, vcc")
        o(f"v_lshlrev_b64 {vr(q+6,2)}, v{q+2}, {vr(q+6,2)}")
        o(f"v_min_u32 v{q}, {NA}, v{q}"); o(f"v_mul_u32_u24 v{q}, 80, v{q}"); o(f"v_lshl_add_u32 v{q}, v{q+1}, 3, v{q}")
        o(f"ds_write_b64 v{q}, {vr(q+6,2)} offset:{IDT}")
    o(f"s_cmp_eq_u32 s{sFIRST}, 1"); o("s_cbranch_scc1 G1")
    o("s_waitcnt lgkmcnt(0)")
    ctrl()
    o("s_branch G1D")
    lab("G1")
    for mt in range(2):
        for s in range(8): o(f"ds_read_b128 {vr(GV+32*mt+4*s,4)}, v{vXA} offset:{mt*2080 + 16*s}")
        if mt == 0: o("s_waitcnt lgkmcnt(8)")
    lt = capture(lut); ct = capture(ctrl)
    for x in lt[:18]: o(x)
    o(f"s_waitcnt vmcnt({4*NS+2}) lgkmcnt(9)")
    acc = [ACC + 32, ACC + 48]
    interleave([m32(acc[0], GV+4*s, ACC+4*s, None if s == 0 else acc[0]) for s in range(8)], lt[18:] + ct[:16], 5)
    o("s_waitcnt lgkmcnt(5)")
    def cv(mt): return [f"v_cvt_pk_bf16_f32 v{AF+8*mt+r//2}, v{acc[mt]+r}, v{acc[mt]+r+1}" for r in range(0, 16, 2)]
    interleave([m32(acc[1], GV+32+4*s, ACC+4*s, None if s == 0 else acc[1]) for s in range(8)],
               ct[16:] + cv(0) + [f"v_mov_b32 v{acc[0]+r}, 0" for r in range(16)], 5)
    for r in range(32): o(f"v_mov_b32 v{ACC+r}, 0")
    for x in cv(1): o(x)
    for r in range(16): o(f"v_mov_b32 v{acc[1]+r}, 0")
    if STAMP:
        o("s_getreg_b32 s94, hwreg(HW_REG_HW_ID)"); o("s_getreg_b32 s100, hwreg(HW_REG_XCC_ID)"); o("s_and_b32 s94, s94, 0xffff"); o("s_lshl_b32 s100, s100, 16"); o("s_or_b32 s94, s94, s100"); o(f"v_writelane_b32 v{VST[0]}, s94, 3")
    lab("G1D")
    o(f"v_and_b32 v{MQ}, 0xffff, v{PT}"); o(f"v_lshrrev_b32 v{MQ+1}, 16, v{PT}")
    xstamp("g1_done"); stamp(4)
    o(f"s_waitcnt vmcnt({4*(NS-1)}) lgkmcnt(0)"); xstamp("t0_landed"); o("s_barrier")
    o(f"ds_read_b128 {vr(SEL,4)}, v{MQ}"); o(f"ds_read_b128 {vr(SEL+4,4)}, v{MQ+1}")
    o(f"ds_read_b128 {vr(EF,4)}, v{vEA}")
    for j in range(4): o(f"ds_read_b128 {vr(TF+4*j,4)}, v{vTA} offset:{16*j}")
    o(f"s_setprio {OPT.get('lp', 2)}")
    if OPT.get('young'):
        o("s_cmp_lt_u32 s2, 256"); o("s_cbranch_scc1 OLD"); o(f"s_setprio {OPT['young']}"); lab("OLD")
    stamp(6); stamp(8, "s_memtime")
    bodies = [body(b) for b in range(4)]
    if not OPT.get('noval'): check_hazards(sum(bodies, []) + ["s_branch LOOP"])
    emit(body(0, peel=True))
    b1 = bodies[1][:bodies[1].index("ENT1:")]
    o("s_nop 7")
    emit([x for x in b1 if not x.startswith("v_mfma")])
    o("s_branch ENT1")
    lab("TOOBIG")
    o(f"s_mov_b32 s{sLIM}, {LOWLIM}"); o(f"v_mov_b32 v{a}, 0")
    o("s_waitcnt lgkmcnt(0)"); o("s_barrier")
    o(f"ds_write_b32 v{b_}, v{a} offset:{CNT}")
    o("s_waitcnt lgkmcnt(0)"); o("s_barrier")
    o("s_branch REMASK")
    lab("LOOP")
    emit(sum(bodies, []))
    if OPT.get('pp', '99,8,4') != '0' and not G8:
        th = [int(x) for x in OPT.get('pp', '99,8,4').split(',')]
        o(f"s_add_u32 s{sT0}, s{sCNT}, s{sRS}")
        for k, v in enumerate(th):
            if v < 99: o(f"s_cmp_lt_u32 s{sT0}, {v}"); o("s_cbranch_scc0 LOOP"); o(f"s_setprio {2-k}")
    o("s_branch LOOP")
    assert HEAD[0] == HEAD[2]
    lab("TAIL")
    stamp(7); stamp(11, "s_memtime")
    if STAMP: o(f"v_writelane_b32 v{VST[0]}, s{sNT}, 12")
    Gc = GV + 32; WU = TF; x = AF
    o(f"ds_read_b128 {vr(T0,4)}, v{MQ}"); o(f"ds_read_b128 {vr(T0+4,4)}, v{MQ+1}")
    o(f"s_cmp_lg_u32 s{sMORE}, 0"); o("s_cbranch_scc1 TAILM")
    o("s_waitcnt lgkmcnt(0)")
    for ins in wload(WU, WF_U): o(ins)
    lab("TAILM")
    for ins, _ in vstream(Gc, Gc + 16)[HEAD[0]:]: o(ins)
    o("s_waitcnt lgkmcnt(0)")
    def fin(p):
        d = ACC + 32 * p; r = []
        for k in range(16): r.append(f"v_add_f32 v{d+k}, s{sEPS}, v{d+k}")
        for k in range(16): r.append(f"v_rcp_f32 v{d+k}, v{d+k}")
        for k in range(16): r.append(f"v_mul_f32 v{d+16+k}, v{d+k}, v{d+16+k}")
        return r
    for m in zphase(Gc, 1): o(m)
    o(f"s_cmp_lg_u32 s{sMORE}, 0"); o("s_cbranch_scc1 NEXTROUND")
    for s in range(8): o(f"ds_read_b128 {vr(GV+4*s,4)}, v{vXA} offset:{16*s}")
    for mt in range(2):
        for k in range(2): o(f"ds_read_b128 {vr(x+8*mt+4*k,4)}, v{vXR} offset:{mt*2080+16*k}")
    for ins in fin(0): o(ins)
    for s in range(8): o(f"ds_read_b128 {vr(GV+32+4*s,4)}, v{vXA} offset:{2080+16*s}")
    o(f"v_and_b32 v{IX[0]}, 31, v0"); o(f"v_and_b32 v{IX[0]+1}, 0xe0, v0")
    o(f"s_mov_b32 s{sT1}, 0xffff0000")
    o(f"v_cmp_gt_u32 vcc, {NA}, v{IX[0]}"); o(f"v_cmp_gt_u32 s[{sSV}:{sSV+1}], {RN-NA}, v{IX[0]}"); o(f"v_add_u32 v{IX[0]}, s{sBASE}, v{IX[0]}")
    o("s_waitcnt vmcnt(0) lgkmcnt(8)")
    def unp(p): return sum(([f"v_lshlrev_b32 v{ACC+32*p+2*k}, 16, v{x+8*p+k}", f"v_and_b32 v{ACC+32*p+2*k+1}, s{sT1}, v{x+8*p+k}"] for k in range(8)), [])
    def post(p):
        r = []
        for k in range(8):
            z = ACC + 32*p + 16 + 2*k
            r += [f"v_max_f32 v{z}, 0, v{z}", f"v_max_f32 v{z+1}, 0, v{z+1}", f"v_add_f32 v{z}, v{z}, v{z-16}", f"v_add_f32 v{z+1}, v{z+1}, v{z-15}",
                  f"v_cvt_pk_bf16_f32 v{x+8*p+k}, v{z}, v{z+1}"]
        return r
    def st(p): return [f"buffer_store_dwordx4 {vr(x+8*p+4*k,4)}, {vr(IX[0],2)}, s[{sO}:{sO+3}], 0 idxen offen offset:{16*k}" for k in range(2)]
    interleave([m32(ACC+16, WU+4*s, GV+4*s, ACC+16) for s in range(8)], fin(1), 6)
    o("s_waitcnt lgkmcnt(0)"); o("s_nop 0")
    interleave([m32(ACC+48, WU+4*s, GV+32+4*s, ACC+48) for s in range(8)], unp(0) + post(0) + unp(1), 7)
    o("s_mov_b64 exec, vcc")
    for ins in st(0): o(ins)
    o(f"s_mov_b64 exec, s[{sSV}:{sSV+1}]"); o(f"v_add_u32 v{IX[0]}, {NA}, v{IX[0]}")
    for ins in post(1) + st(1): o(ins)
    stamp_out(9, GV, sW, 1)
    lab("K2_END")
    o("s_endpgm")
    lab("NEXTROUND")
    for i in range(4):
        o(f"v_lshrrev_b32 v{vTC}, 19, v{SEG+i}"); o(f"v_min_u32 v{vTC}, s{sLIM}, v{vTC}")
        o(f"v_add_u32 v{SEG+i}, v{SEG+i}, v{vTC}"); o(f"v_lshlrev_b32 v{vTC}, 19, v{vTC}"); o(f"v_sub_u32 v{SEG+i}, v{SEG+i}, v{vTC}")
    o(f"s_mov_b32 s{sFIRST}, 0"); o(f"s_mov_b32 s{sLIM}, 16")
    o("s_waitcnt vmcnt(0) lgkmcnt(0)"); o("s_barrier")
    o("s_branch ROUND")

def kd(name, nv, ns):
    L.append(".p2align 6")
    L.append(f".amdhsa_kernel {name}")
    for k, v in (("next_free_vgpr", nv), ("next_free_sgpr", ns), ("accum_offset", (nv + 3) // 4 * 4), ("group_segment_fixed_size", 0),
                 ("kernarg_size", 96), ("user_sgpr_count", 2), ("user_sgpr_kernarg_segment_ptr", 1), ("system_sgpr_workgroup_id_x", 1),
                 ("float_denorm_mode_32", 3)):
        L.append(f"  .amdhsa_{k} {v}")
    L.append(".end_amdhsa_kernel")

hdr = [l for l in open(f"cdna_kernels/{NAME}.s.ref").read().splitlines() if l.startswith(";") and "@launch" not in l
       and "Override launch" not in l and "grid=ceil" not in l]
L += hdr
L.append(f"; @launch kernel=gsort_kernel grid=({K1_GRID},1,1) block=(512,1,1) lds={K1_LDS}")
L.append(f"; @launch kernel=gmain_kernel grid=(256,1,1) block=(512,1,1) lds={NB+2*GS}" if G8 else f"; @launch kernel=gmain_kernel grid=(512,1,1) block=(256,1,1) lds={K2_LDS}")
L.append('.amdgcn_target "amdgcn-amd-amdhsa--gfx950"'); L.append(".text")
(gen_k1a if OPT.get('k1') == 'a' else gen_k1)(); gen_k2()
lab("CODE_END")
L.append('.section .rodata,"a"')
kd("gsort_kernel", 256 if STAMP else 252, 102 if STAMP else 80); kd("gmain_kernel", 256 if STAMP else NVGPR, 102)
if STAMP: L.append("; STAMPS " + repr(NAMES))
open(sys.argv[1], "w").write("\n".join(L) + "\n")
print("vgprs", NVGPR, "lds", K2_LDS, "lines", len(L), file=sys.stderr)
```

```python
import sys, struct, re

N = 25000; E = 400000; RN = 49; NR = 511; CH = 1600; NCH = 250
WS_REC = 0; WS_OFF = 0x310000; OROW = 1152; WS_WF = 0x3c0000; WS_TAB = 0x400000; WS_SIZE = 0x4000000
WF_A = 0; WF_U = 0x8000; WF_C = 0x10000; NA = 25
NLOG2E = struct.unpack('<I', struct.pack('<f', -1.4426950408889634))[0]
EPS = struct.unpack('<I', struct.pack('<f', 1e-6))[0]
NAME = "standalone__edge_featured_mpnn_gatedgcn__graph"
OPT = dict(k1='a', tabpol='sc1', recpol='sc1', touch='2', tsh='19', bon='4', lp='3', pp='23,15,7')
OPT.update(a.split('=') for a in sys.argv[2:])
STAMP = int(OPT.get('stamp', 0))
WS_TAB = int(OPT.get('tab', hex(WS_TAB)), 0)
WS_STAMP = 0x3800000
L = []
def o(s): L.append("    " + s)
def lab(s): L.append(s + ":")
def vr(b, n): return f"v[{b}:{b+n-1}]"
VST = [60]
NAMES = {}
def stamp(i, ins="s_memrealtime", name=None):
    if STAMP:
        o(f"{ins} s[100:101]"); o("s_waitcnt lgkmcnt(0)"); o(f"v_writelane_b32 v{VST[0]}, s100, {i}")
def xstamp(name):
    if STAMP:
        NAMES[name] = 16 + len(NAMES); stamp(NAMES[name])
def stamp_out(n, reg, srdn, kern):
    if not STAMP: return
    o("s_mov_b64 exec, -1")
    stamp(n)
    o(f"v_lshlrev_b32 v{reg}, 2, v0")
    if kern and int(OPT.get('g8', 0)): o("s_and_b32 s63, s3, 1"); o("s_lshl_b32 s63, s63, 8"); o("s_add_u32 s2, s2, s63")
    o(f"s_lshl_b32 s63, s2, 11"); o(f"s_add_u32 s63, s63, {WS_STAMP + kern*0x100000:#x}")
    o(f"buffer_store_dword v{VST[0]}, v{reg}, s[{srdn}:{srdn+3}], s63 offen")
def srd(d, lo, size, stride=0):
    o(f"s_mov_b32 s{d}, s{lo}"); o(f"s_and_b32 s{d+1}, s{lo+1}, 0xffff")
    if stride: o(f"s_or_b32 s{d+1}, s{d+1}, {stride << 16:#x}")
    o(f"s_mov_b32 s{d+2}, {size:#x}"); o(f"s_mov_b32 s{d+3}, 0x20000")
def scan64(v):
    for d in ("row_shr:1", "row_shr:2", "row_shr:4", "row_shr:8"):
        o("s_nop 1"); o(f"v_add_u32_dpp v{v}, v{v}, v{v} {d} row_mask:0xf bank_mask:0xf bound_ctrl:0")
    o("s_nop 1"); o(f"v_add_u32_dpp v{v}, v{v}, v{v} row_bcast:15 row_mask:0xa bank_mask:0xf")
    o("s_nop 1"); o(f"v_add_u32_dpp v{v}, v{v}, v{v} row_bcast:31 row_mask:0xc bank_mask:0xf")

def m32(d, a, b, c): return f"v_mfma_f32_32x32x16_bf16 {vr(d,16)}, {vr(a,4)}, {vr(b,4)}, " + ("0" if c is None else vr(c,16))
K1_GRID = 256
OG = 4224
K1_W = 16896; K1_X = K1_W + 65536; K1_S = K1_X + 4 * 8320; K1_LDS = K1_S + 8 * 4608
def gen_k1():
    L.append(".globl gsort_kernel"); L.append(".p2align 8"); L.append(".type gsort_kernel,@function")
    lab("gsort_kernel"); VST[0] = 255
    pol = OPT.get('tabpol', '').replace('+', ' '); rpol = OPT.get('recpol', '').replace('+', ' ')
    stamp(0)
    o("s_load_dwordx8 s[4:11], s[0:1], 0")
    o("s_load_dwordx8 s[40:47], s[0:1], 32")
    o("s_load_dwordx2 s[48:49], s[0:1], 64")
    o("s_load_dwordx2 s[12:13], s[0:1], 88")
    o(f"s_cmp_ge_u32 s2, {K1_GRID}"); o("s_cbranch_scc1 K1_END")
    o("v_lshrrev_b32 v2, 6, v0"); o("v_lshlrev_b32 v1, 2, v0")
    o("s_and_b32 s36, s2, 7"); o("s_lshl_b32 s36, s36, 5"); o("s_lshr_b32 s35, s2, 3"); o("s_add_u32 s36, s36, s35")
    o("v_readfirstlane_b32 s33, v2")
    o("v_mov_b32 v2, 0"); o("ds_write_b32 v1, v2")
    o(f"s_mul_i32 s3, s2, {CH*4}"); o("s_mul_i32 s37, s36, 98")
    o(f"s_cmp_lt_u32 s2, {NCH}"); o(f"s_cselect_b32 s14, {CH//4}, 0")
    o("v_cmp_gt_u32 vcc, s14, v0")
    o("v_lshlrev_b32 v40, 4, v0")
    o("v_bfe_u32 v56, v0, 4, 1"); o("v_bfe_u32 v57, v0, 5, 1"); o("v_and_b32 v20, 63, v0")
    o("s_mov_b32 s68, 0"); o("v_lshlrev_b32 v42, 4, v20")
    o("v_bfe_u32 v43, v0, 4, 2"); o("v_lshlrev_b32 v43, 6, v43"); o("v_xor_b32 v43, v43, v40")
    o("v_lshl_add_u32 v58, v57, 3, v56")
    o("s_lshr_b32 s14, s33, 2"); o("s_lshl_b32 s14, s14, 4"); o("s_and_b32 s15, s33, 3"); o("s_lshl1_add_u32 s14, s15, s14")
    o("v_add_u32 v58, s14, v58"); o("v_add_u32 v54, s37, v58")
    o("v_and_b32 v55, 15, v0"); o("v_lshlrev_b32 v59, 3, v56"); o("v_xor_b32 v55, v55, v59"); o("v_lshlrev_b32 v55, 4, v55")
    o("s_mul_i32 s38, s33, 1040"); o(f"s_add_u32 s38, s38, {K1_X}")
    o("s_lshl_b32 s39, s33, 10"); o(f"s_add_u32 s39, s39, {K1_W}")
    o("s_mov_b32 m0, s38")
    o("s_waitcnt lgkmcnt(0)")
    srd(60, 4, N, 256)
    def xd(t):
        if t: o(f"s_add_u32 m0, s38, {t*8320}"); o("v_add_u32 v54, 32, v54")
        if t == 3: o("v_cmp_gt_u32 vcc, 2, v58"); o("v_mov_b32 v59, 0xffff"); o("s_nop 0"); o("v_cndmask_b32 v54, v59, v54, vcc")
        o("buffer_load_dwordx4 v[54:55], s[60:63], 0 idxen offen lds")
    xd(0); xd(1)
    srd(20, 10, E*4); srd(16, 8, E*4)
    o("s_and_saveexec_b64 s[28:29], vcc"); o("s_mov_b64 s[28:29], exec"); o("s_cbranch_execz K1_PREP")
    o("buffer_load_dwordx4 v[4:7], v40, s[20:23], s3 offen")
    o("buffer_load_dwordx4 v[8:11], v40, s[16:19], s3 offen")
    lab("K1_A")
    o("s_mov_b64 exec, -1")
    TCH = int(OPT.get('touch', 0)); SPL = int(OPT.get('split', 0))
    if TCH:
        srd(24, 12, WS_SIZE)
        o("s_lshl_b32 s14, s37, 9"); o(f"s_add_u32 s14, s14, {WS_TAB:#x}"); o("v_mov_b32 v248, s14"); o("s_lshl_b32 s14, s3, 1")
        o("v_writelane_b32 v248, s14, 1"); o(f"s_mov_b32 s14, {WS_OFF:#x}"); o("v_writelane_b32 v248, s14, 2")
        o("buffer_load_dword v249, v248, s[24:27], 0 offen")
    if not OPT.get('early'): o("s_barrier")
    srd(52, 42, 32768); srd(56, 48, 32768)
    for m in range(2):
        for i in range(4):
            o(f"s_add_u32 m0, s39, {m*32768+i*8192}"); o(f"s_movk_i32 s14, {i*8192}"); o(f"buffer_load_dwordx4 v43, s[{52+4*m}:{55+4*m}], s14 offen lds")
    xd(2); xd(3)
    if OPT.get('early'): o("s_barrier")
    def addrs():
        srd(24, 12, WS_SIZE)
        o("v_bfe_u32 v60, v0, 2, 2"); o("v_lshl_add_u32 v60, v57, 6, v60"); o("v_lshlrev_b32 v60, 8, v60")
        o("v_and_b32 v61, 3, v0"); o("v_lshl_add_u32 v60, v61, 3, v60"); o("v_lshl_add_u32 v60, v56, 5, v60")
        o("s_and_b32 s30, s33, 3"); o("v_bfe_u32 v61, v0, 2, 2"); o("v_xor_b32 v61, s30, v61"); o("v_lshl_add_u32 v60, v61, 6, v60"); o(f"v_add_u32 v60, {K1_W}, v60")
        o("v_bfe_u32 v61, v0, 1, 2"); o("v_lshl_or_b32 v61, v56, 2, v61"); o("v_mul_u32_u24 v61, 1040, v61")
        o("v_and_b32 v62, 1, v0"); o("v_bfe_u32 v63, v0, 3, 1"); o("v_lshl_or_b32 v63, v63, 1, v62"); o("v_lshl_add_u32 v61, v63, 8, v61")
        o("s_lshr_b32 s32, s33, 2"); o("s_mul_i32 s14, s32, 8320"); o(f"s_add_u32 s14, s14, {K1_X}")
        o("v_xor_b32 v62, v62, v57"); o("v_lshl_add_u32 v61, v62, 7, v61"); o("v_add_u32 v61, s14, v61")
        o("s_mul_i32 s14, s33, 4608"); o(f"s_add_u32 s14, s14, {K1_S}")
        o("v_and_b32 v62, 31, v0"); o("v_mul_u32_u24 v62, 144, v62"); o("v_lshl_add_u32 v62, v57, 6, v62"); o("v_add_u32 v62, s14, v62")
        o("v_lshrrev_b32 v58, 3, v20"); o("v_and_b32 v59, 7, v0"); o("v_lshlrev_b32 v59, 4, v59")
        o("v_mul_u32_u24 v63, 144, v58"); o("v_add3_u32 v63, v63, v59, s14")
        o("s_lshl_b32 s14, s32, 5"); o("s_add_u32 s14, s14, s37"); o("s_lshl_b32 s14, s14, 9"); o("s_lshl_b32 s30, s30, 7"); o("s_add_u32 s14, s14, s30")
        o("v_lshl_add_u32 v59, v58, 9, v59"); o("v_add_u32 v59, s14, v59")
        o("s_lshl_b32 s31, s3, 1")
    addrs()
    o(f"s_mul_i32 s34, s2, {CH}")
    o("v_add_u32 v3, s34, v1"); o("v_mov_b32 v2, 1"); o(f"s_mov_b32 s15, {-RN}")
    o("v_lshlrev_b32 v20, 5, v20")
    o("s_mov_b64 exec, s[28:29]"); o("s_cbranch_execz K1_B")
    o(f"s_waitcnt vmcnt({10+TCH})"); stamp(1)
    for i in range(4):
        o(f"v_mul_u32_u24 v{12+i}, 21400, v{4+i}")
        o(f"v_lshrrev_b32 v{12+i}, 20, v{12+i}")
        o(f"v_mad_i32_i24 v{4+i}, v{12+i}, s15, v{4+i}")
        o(f"v_lshlrev_b32 v{12+i}, 2, v{12+i}")
        o(f"ds_add_rtn_u32 v{16+i}, v{12+i}, v2")
    lab("K1_B")
    o("s_mov_b64 exec, -1")
    o(f"s_add_u32 s12, s12, {WS_TAB:#x}"); o("s_addc_u32 s13, s13, 0"); srd(16, 12, N * 512)
    o(f"s_mov_b32 s15, {NLOG2E:#x}")
    o(f"s_waitcnt vmcnt({2*SPL}) lgkmcnt(0)"); o("s_barrier"); stamp(3)
    lab("K1_J")
    WF_ = 64; XF_ = 128; AC = [160, 192]
    for m in range(2):
        for s in range(8):
            for jj in range(2): o(f"ds_read_b64_tr_b16 v[{WF_+32*m+4*s+2*jj}:{WF_+32*m+4*s+2*jj+1}], v60 offset:{m*32768+s*2048+jj*1024}")
            if m == 0: o(f"ds_read_b128 {vr(XF_+4*s,4)}, v61 offset:{16*s}")
    o("ds_read_b128 v[24:27], v20"); o("ds_read_b128 v[28:31], v20 offset:16")
    def post(t):
        a = AC[t]; r = []
        for k in range(16): r.append(f"v_mul_f32 v{a+k}, s15, v{a+k}")
        for k in range(16): r.append(f"v_cvt_pk_bf16_f32 v{224+k}, v{a+2*k}, v{a+2*k+1}")
        r += [f"ds_write_b128 v62, {vr(224+4*c,4)} offset:{16*c}" for c in range(4)]
        r += [f"ds_read_b128 {vr(a+4*k,4)}, v63 offset:{k*8*144}" for k in range(4)]
        return r
    def stores(t):
        r = []
        for k in range(4):
            r += [f"s_waitcnt lgkmcnt({3-k})", f"buffer_store_dwordx4 {vr(AC[t]+4*k,4)}, v59, s[16:19], 0 offen {pol}", "v_add_u32 v59, 0x1000, v59"]
        return r
    def recs():
        for i in range(4):
            o(f"v_cmp_lt_u32 vcc, {NA-1}, v{4+i}"); o(f"v_mul_u32_u24 v22, 83, v{8+i}"); o("v_lshrrev_b32 v22, 16, v22")
            o(f"v_cndmask_b32 v23, 0, {NA}, vcc"); o(f"v_sub_u32 v23, v{4+i}, v23")
            o(f"v_lshl_or_b32 v{44+2*i}, v23, 16, v{8+i}")
            o("v_cndmask_b32 v23, 0, 32, vcc"); o("v_or_b32 v22, v22, v23")
            o(f"v_lshl_add_u32 v{45+2*i}, v22, 26, v3")
            if i < 3: o("v_add_u32 v3, 1, v3")
    def scan():
        o("v_mov_b32 v33, v24")
        for j in range(2, 8): o(f"v_add_u32 v{32+j}, v{31+j}, v{23+j}")
        o("v_add_u32 v21, v39, v31"); o("v_mov_b32 v22, v21")
        scan64(21)
        o("v_sub_u32 v32, v21, v22")
        for j in range(1, 8): o(f"v_add_u32 v{32+j}, v32, v{32+j}")
    o("s_waitcnt lgkmcnt(15)")
    interleave([m32(AC[0], WF_+4*s, XF_+4*s, None if s == 0 else AC[0]) for s in range(8)], capture(recs), 5)
    o("s_waitcnt vmcnt(0) lgkmcnt(0)")
    if SPL: o("s_barrier")
    sc = capture(scan); p0 = post(0)
    q = sc + p0[:24]
    for s in range(8):
        o(m32(AC[0]+16, WF_+32+4*s, XF_+4*s, None if s == 0 else AC[0]+16))
        o(f"ds_read_b128 {vr(XF_+4*s,4)}, v61 offset:{2*8320+16*s}")
        for _ in range(5):
            if q: o(q.pop(0))
    lab("K1_G")
    o("s_waitcnt lgkmcnt(0)")
    mf = [m32(AC[1], WF_+4*s, XF_+4*s, None if s == 0 else AC[1]) for s in range(8)] + [m32(AC[1]+16, WF_+32+4*s, XF_+4*s, None if s == 0 else AC[1]+16) for s in range(8)]
    assert len(q) >= 8
    look = ["ds_write_b128 v20, v[32:35] offset:2048", "ds_write_b128 v20, v[36:39] offset:2064"] + [f"ds_read_b32 v{4+i}, v{12+i} offset:2048" for i in range(4)]
    q = q + p0[24:] + [None] * 5 + stores(0) + look
    for m in mf:
        o(m)
        for _ in range(5):
            if q:
                x = q.pop(0)
                if x: o(x)
    assert not q
    o("v_add_u32 v59, 0x4000, v59"); o("v_cmp_gt_u32 vcc, 2, v58")
    o("s_mov_b64 exec, s[28:29]")
    o("s_waitcnt lgkmcnt(0)")
    for i in range(4):
        o(f"v_add_lshl_u32 v{4+i}, v{4+i}, v{16+i}, 3"); o(f"ds_write_b64 v{4+i}, v[{44+2*i}:{45+2*i}] offset:4096")
    o("s_mov_b64 exec, -1")
    for x in post(1): o(x)
    stamp(4)
    o("s_cmp_lt_u32 s33, 4"); o("s_cbranch_scc1 K1_H")
    o("s_mov_b64 exec, vcc")
    for x in stores(1)[:2]: o(x)
    o("s_mov_b64 exec, -1")
    o("s_cmp_lg_u32 s68, 0"); o("s_cbranch_scc1 K1_PREP2")
    o("s_cmp_lg_u32 s33, 6"); o("s_cbranch_scc1 K1_I")
    for j in range(8): o(f"v_lshl_add_u32 v{24+j}, v{24+j}, 19, v{32+j}"); o(f"v_add_u32 v{24+j}, s34, v{24+j}")
    o(f"v_mul_u32_u24 v41, {OG//16}, v20"); o("s_lshl_b32 s35, s36, 4"); o(f"s_add_u32 s35, s35, {WS_OFF:#x}"); o(f"s_add_u32 s30, s35, {OG}")
    o("buffer_store_dwordx4 v[24:27], v41, s[24:27], s35 offen"); o("buffer_store_dwordx4 v[28:31], v41, s[24:27], s30 offen")
    o("s_branch K1_I")
    lab("K1_H")
    for x in stores(1): o(x)
    lab("K1_I")
    o(f"v_cmp_gt_u32 vcc, {CH//2-512}, v0")
    o("s_waitcnt lgkmcnt(0)"); o("s_barrier")
    o(f"s_cmp_lt_u32 s2, {NCH}"); o("s_cbranch_scc0 K1_F")
    o("ds_read_b128 v[44:47], v40 offset:4096"); o("ds_read_b128 v[48:51], v40 offset:12288")
    o("s_add_u32 s30, s31, 8192")
    o("s_waitcnt lgkmcnt(1)")
    o(f"buffer_store_dwordx4 v[44:47], v40, s[24:27], s31 offen {rpol}")
    o("s_and_saveexec_b64 s[28:29], vcc"); o("s_cbranch_execz K1_F")
    o("s_waitcnt lgkmcnt(0)")
    o(f"buffer_store_dwordx4 v[48:51], v40, s[24:27], s30 offen {rpol}")
    lab("K1_F")
    stamp_out(2, 12, 24, 0)
    lab("K1_END")
    o("s_endpgm")
    lab("K1_PREP")
    o("s_cmp_ge_u32 s2, 68"); o("s_cbranch_scc1 K1_A")
    o("s_mov_b64 exec, -1")
    o("s_lshr_b32 s14, s2, 5")
    o("s_cmp_eq_u32 s14, 1"); o("s_cselect_b32 s40, s46, s40"); o("s_cselect_b32 s41, s47, s41"); o(f"s_cselect_b32 s68, 1.0, {NLOG2E:#x}")
    o("s_mov_b32 s66, 32768"); o("s_bfe_u32 s50, s2, 0x20003"); o("s_and_b32 s51, s2, 7"); o("s_mov_b32 s32, 14")
    o("s_cmp_eq_u32 s14, 2"); o("s_cselect_b32 s40, s44, s40"); o("s_cselect_b32 s41, s45, s41"); o("s_cselect_b32 s66, 4096, s66")
    o("s_cselect_b32 s50, s51, s50"); o("s_cselect_b32 s51, 0, s51"); o("s_cselect_b32 s32, 11, s32")
    o("s_mov_b32 s64, s40"); o("s_and_b32 s65, s41, 0xffff"); o("s_mov_b32 s67, 0x20000")
    o("s_lshl_b32 s50, s50, 6"); o("s_lshl_b32 s51, s51, 11"); o("s_add_u32 s50, s50, s51")
    o("v_and_b32 v4, 3, v0"); o("v_bfe_u32 v5, v0, 3, 2"); o("v_lshl_or_b32 v4, v5, 2, v4")
    o("v_bfe_u32 v5, v0, 2, 1"); o("v_lshl_or_b32 v4, v5, 4, v4")
    o("v_lshlrev_b32 v5, s32, v57"); o("v_lshl_add_u32 v4, v4, 1, v5"); o("v_add_u32 v4, s50, v4")
    for j in range(8): o(f"buffer_load_ushort v{240+j}, v4, s[64:67], 0 offen offset:{j*256}")
    o("s_branch K1_A")
    lab("K1_PREP2")
    o("s_lshl_b32 s14, s2, 10"); o(f"s_add_u32 s14, s14, {WS_WF:#x}")
    for j in range(8):
        o(f"v_lshlrev_b32 v{240+j}, 16, v{240+j}"); o(f"v_mul_f32 v{240+j}, s68, v{240+j}")
    for j in range(4): o(f"v_cvt_pk_bf16_f32 v{52+j}, v{240+2*j}, v{241+2*j}")
    o("buffer_store_dwordx4 v[52:55], v42, s[24:27], s14 offen")
    o("s_branch K1_I")

SM = int(OPT.get('sm', 0)); SMS = N * 128 + int(OPT.get('smpad', 0))
def gen_k1a():
    L.append(".globl gsort_kernel"); L.append(".p2align 8"); L.append(".type gsort_kernel,@function")
    lab("gsort_kernel"); VST[0] = 255
    pol = OPT.get('tabpol', '').replace('+', ' '); rpol = OPT.get('recpol', '').replace('+', ' ')
    if OPT.get('cpf'):
        o("s_getpc_b64 s[70:71]")
        o("v_lshlrev_b32 v236, 7, v0"); o("v_min_u32 v236, CODE_END-gsort_kernel-8, v236")
        o("v_mov_b32 v237, s71"); o("v_add_co_u32 v236, vcc, s70, v236"); o("s_nop 1"); o("v_addc_co_u32 v237, vcc, 0, v237, vcc")
        o("global_load_dword v238, v[236:237], off")
    stamp(0)
    o("s_load_dwordx8 s[4:11], s[0:1], 0")
    o("s_load_dwordx8 s[40:47], s[0:1], 32")
    o("s_load_dwordx2 s[48:49], s[0:1], 64")
    o("s_load_dwordx2 s[12:13], s[0:1], 88")
    o("s_load_dwordx2 s[72:73], s[0:1], 72")
    o(f"s_cmp_ge_u32 s2, {K1_GRID}"); o("s_cbranch_scc1 K1_END")
    o("v_lshrrev_b32 v2, 6, v0"); o("v_lshlrev_b32 v1, 2, v0")
    o("s_and_b32 s36, s2, 7"); o("s_lshl_b32 s36, s36, 5"); o("s_lshr_b32 s35, s2, 3"); o("s_add_u32 s36, s36, s35")
    o("v_readfirstlane_b32 s33, v2")
    o("v_mov_b32 v2, 0"); o("ds_write_b32 v1, v2")
    o(f"s_mul_i32 s3, s2, {CH*4}"); o("s_mul_i32 s37, s36, 98")
    o(f"s_cmp_lt_u32 s2, {NCH}"); o(f"s_cselect_b32 s14, {CH//5}, 0")
    o("v_cmp_gt_u32 vcc, s14, v0")
    o("v_lshlrev_b32 v40, 4, v0")
    o("v_bfe_u32 v56, v0, 4, 1"); o("v_bfe_u32 v57, v0, 5, 1"); o("v_and_b32 v20, 63, v0")
    o("s_mov_b32 s68, 0"); o("v_lshlrev_b32 v42, 4, v20")
    o("v_mul_u32_u24 v43, 20, v0")
    o("s_cmp_ge_u32 s33, 5")
    o("s_waitcnt lgkmcnt(0)")
    o("s_cbranch_scc1 K1_LOAD")
    srd(20, 10, E*4); srd(16, 8, E*4)
    o("s_and_saveexec_b64 s[28:29], vcc"); o("s_mov_b64 s[28:29], exec"); o("s_cbranch_execz K1_A")
    o("buffer_load_dwordx4 v[64:67], v43, s[20:23], s3 offen"); o("buffer_load_dword v68, v43, s[20:23], s3 offen offset:16")
    o("buffer_load_dwordx4 v[72:75], v43, s[16:19], s3 offen"); o("buffer_load_dword v76, v43, s[16:19], s3 offen offset:16")
    lab("K1_A")
    o("s_mov_b64 exec, -1")
    o("s_barrier")
    def addrs():
        srd(24, 12, WS_SIZE)
        o("v_bfe_u32 v60, v0, 2, 2"); o("v_lshl_add_u32 v60, v57, 6, v60"); o("v_lshlrev_b32 v60, 8, v60")
        o("v_and_b32 v61, 3, v0"); o("v_lshl_add_u32 v60, v61, 3, v60"); o("v_lshl_add_u32 v60, v56, 5, v60")
        o("s_and_b32 s30, s33, 3"); o("v_bfe_u32 v61, v0, 2, 2"); o("v_xor_b32 v61, s30, v61"); o("v_lshl_add_u32 v60, v61, 6, v60"); o(f"v_add_u32 v60, {K1_W}, v60")
        o("v_bfe_u32 v61, v0, 1, 2"); o("v_lshl_or_b32 v61, v56, 2, v61"); o("v_mul_u32_u24 v61, 1040, v61")
        o("v_and_b32 v62, 1, v0"); o("v_bfe_u32 v63, v0, 3, 1"); o("v_lshl_or_b32 v63, v63, 1, v62"); o("v_lshl_add_u32 v61, v63, 8, v61")
        o("s_lshr_b32 s32, s33, 2"); o("s_mul_i32 s14, s32, 8320"); o(f"s_add_u32 s14, s14, {K1_X}")
        o("v_xor_b32 v62, v62, v57"); o("v_lshl_add_u32 v61, v62, 7, v61"); o("v_add_u32 v61, s14, v61")
        o("s_mul_i32 s14, s33, 4608"); o(f"s_add_u32 s14, s14, {K1_S}")
        o("v_and_b32 v62, 31, v0"); o("v_mul_u32_u24 v62, 144, v62"); o("v_lshl_add_u32 v62, v57, 6, v62"); o("v_add_u32 v62, s14, v62")
        o("v_lshrrev_b32 v58, 3, v20"); o("v_and_b32 v59, 7, v0"); o("v_lshlrev_b32 v59, 4, v59")
        o("v_mul_u32_u24 v63, 144, v58"); o("v_add3_u32 v63, v63, v59, s14")
        if SM:
            o("s_lshl_b32 s14, s32, 5"); o("s_add_u32 s14, s14, s37"); o("s_lshl_b32 s14, s14, 7"); o(f"s_mul_i32 s69, s30, {SMS}")
            o("v_add_u32 v59, s14, v42")
        else:
            o("s_lshl_b32 s14, s32, 5"); o("s_add_u32 s14, s14, s37"); o("s_lshl_b32 s14, s14, 9"); o("s_lshl_b32 s30, s30, 7"); o("s_add_u32 s14, s14, s30")
            o("v_lshl_add_u32 v59, v58, 9, v59"); o("v_add_u32 v59, s14, v59")
        o("s_lshl_b32 s31, s3, 1")
    addrs()
    o(f"s_mul_i32 s34, s2, {CH}")
    o("v_lshrrev_b32 v3, 2, v43"); o("v_add_u32 v3, s34, v3"); o("v_mov_b32 v2, 1"); o(f"s_mov_b32 s15, {-RN}"); o(f"s_movk_i32 s38, {-64*RN}")
    o("v_lshlrev_b32 v20, 5, v20")
    o("s_mov_b64 exec, s[28:29]"); o("s_cbranch_execz K1_B")
    o("s_waitcnt vmcnt(2)"); stamp(1)
    for i in range(5):
        o(f"v_mul_u32_u24 v{80+i}, 21400, v{64+i}")
        o(f"v_lshrrev_b32 v{80+i}, 20, v{80+i}")
        o(f"v_mad_i32_i24 v{64+i}, v{80+i}, s15, v{64+i}")
        o(f"v_lshlrev_b32 v{80+i}, 2, v{80+i}")
        o(f"ds_add_rtn_u32 v{88+i}, v{80+i}, v2")
    o("s_waitcnt vmcnt(0)")
    for i in range(5):
        o(f"v_cmp_lt_u32 vcc, {NA-1}, v{64+i}")
        if int(OPT.get('rot', 0)):
            o(f"v_lshrrev_b32 v22, 8, v{80+i}"); o(f"v_mad_i32_i24 v22, v22, s38, v{72+i}"); o(f"v_add_u32 v23, {512*RN}, v22"); o("v_min_u32 v22, v22, v23")
            o("v_mul_u32_u24 v22, 83, v22")
        else: o(f"v_mul_u32_u24 v22, 83, v{72+i}")
        o("v_lshrrev_b32 v22, 16, v22")
        o(f"v_cndmask_b32 v23, 0, {NA}, vcc"); o(f"v_sub_u32 v23, v{64+i}, v23")
        o(f"v_lshl_or_b32 v{96+2*i}, v23, 16, v{72+i}")
        o("v_cndmask_b32 v23, 0, 32, vcc"); o("v_or_b32 v22, v22, v23")
        o(f"v_lshl_add_u32 v{97+2*i}, v22, 26, v3")
        if i < 4: o("v_add_u32 v3, 1, v3")
    lab("K1_B")
    o("s_mov_b64 exec, -1")
    o("s_waitcnt lgkmcnt(0)"); o("s_barrier")
    o("ds_read_b128 v[24:27], v20"); o("ds_read_b128 v[28:31], v20 offset:16")
    o("s_waitcnt lgkmcnt(0)")
    o("v_mov_b32 v33, v24")
    for j in range(2, 8): o(f"v_add_u32 v{32+j}, v{31+j}, v{23+j}")
    o("v_add_u32 v21, v39, v31"); o("v_mov_b32 v22, v21")
    scan64(21)
    o("v_sub_u32 v32, v21, v22")
    for j in range(1, 8): o(f"v_add_u32 v{32+j}, v32, v{32+j}")
    o("ds_write_b128 v20, v[32:35] offset:2048"); o("ds_write_b128 v20, v[36:39] offset:2064")
    o("s_mov_b64 exec, s[28:29]")
    for i in range(5): o(f"ds_read_b32 v{64+i}, v{80+i} offset:2048")
    o("s_waitcnt lgkmcnt(0)")
    for i in range(5):
        o(f"v_add_lshl_u32 v{64+i}, v{64+i}, v{88+i}, 3"); o(f"ds_write_b64 v{64+i}, v[{96+2*i}:{97+2*i}] offset:4096")
    o("s_mov_b64 exec, -1")
    o("s_waitcnt lgkmcnt(0)"); o("s_barrier"); stamp(3)
    lab("K1_J")
    if OPT.get('pfe'):
        srd(76, 6, E*32); o("v_lshlrev_b32 v250, 7, v0"); o("s_lshl_b32 s14, s2, 16"); o("v_add_u32 v250, s14, v250")
        o("buffer_load_dword v251, v250, s[76:79], 0 offen " + OPT['pfe'].replace('p', ''))
    WF_ = 64; XF_ = 128; AC = [160, 192]
    o("ds_read_b128 v[44:47], v40 offset:4096"); o("ds_read_b128 v[48:51], v40 offset:12288")
    o(f"v_cmp_gt_u32 vcc, {CH//2-512}, v0")
    for m in range(2):
        for s in range(8):
            for jj in range(2): o(f"ds_read_b64_tr_b16 v[{WF_+32*m+4*s+2*jj}:{WF_+32*m+4*s+2*jj+1}], v60 offset:{m*32768+s*2048+jj*1024}")
        if m == 0:
            for s in range(8): o(f"ds_read_b128 {vr(XF_+4*s,4)}, v61 offset:{16*s}")
    o(f"s_add_u32 s12, s12, {WS_TAB:#x}"); o("s_addc_u32 s13, s13, 0")
    if SM: o("s_add_u32 s12, s12, s69"); o("s_addc_u32 s13, s13, 0")
    srd(16, 12, N * (128 if SM else 512))
    o(f"s_mov_b32 s15, {NLOG2E:#x}")
    def post(t):
        a = AC[t]; r = []
        for k in range(16): r.append(f"v_mul_f32 v{a+k}, s15, v{a+k}")
        for k in range(16): r.append(f"v_cvt_pk_bf16_f32 v{224+k}, v{a+2*k}, v{a+2*k+1}")
        r += [f"ds_write_b128 v62, {vr(224+4*c,4)} offset:{16*c}" for c in range(4)]
        r += [f"ds_read_b128 {vr(a+4*k,4)}, v63 offset:{k*8*144}" for k in range(4)]
        return r
    def stores(t):
        r = []
        for k in range(4):
            r += [f"s_waitcnt lgkmcnt({3-k})", f"buffer_store_dwordx4 {vr(AC[t]+4*k,4)}, v59, s[16:19], 0 offen {pol}", f"v_add_u32 v59, {0x400 if SM else 0x1000:#x}, v59"]
        return r
    o("s_waitcnt lgkmcnt(15)")
    o(f"s_cmp_lt_u32 s2, {NCH}"); o("s_cbranch_scc0 K1_E")
    o("s_add_u32 s30, s31, 8192")
    o(f"buffer_store_dwordx4 v[44:47], v40, s[24:27], s31 offen {rpol}")
    o("s_and_saveexec_b64 s[28:29], vcc"); o("s_cbranch_execz K1_E")
    o(f"buffer_store_dwordx4 v[48:51], v40, s[24:27], s30 offen {rpol}")
    lab("K1_E"); o("s_mov_b64 exec, -1")
    for s in range(8): o(m32(AC[0], WF_+4*s, XF_+4*s, None if s == 0 else AC[0]))
    o("s_waitcnt lgkmcnt(0)")
    for s in range(8):
        o(m32(AC[0]+16, WF_+32+4*s, XF_+4*s, None if s == 0 else AC[0]+16))
        o(f"ds_read_b128 {vr(XF_+4*s,4)}, v61 offset:{2*8320+16*s}")
    o("s_cmp_lg_u32 s68, 0"); o("s_cbranch_scc1 K1_PREP2")
    o("s_cmp_eq_u32 s33, 4"); o("s_cbranch_scc1 K1_OFF")
    lab("K1_G")
    o("s_waitcnt lgkmcnt(0)")
    mf = [m32(AC[1], WF_+4*s, XF_+4*s, None if s == 0 else AC[1]) for s in range(8)] + [m32(AC[1]+16, WF_+32+4*s, XF_+4*s, None if s == 0 else AC[1]+16) for s in range(8)]
    q = post(0) + [None] * 6 + stores(0)
    for m in mf:
        o(m)
        for _ in range(5):
            if q:
                x = q.pop(0)
                if x: o(x)
    assert not q
    o(f"v_add_u32 v59, {0x1000 if SM else 0x4000:#x}, v59"); o("v_cmp_gt_u32 vcc, 2, v58")
    for x in post(1): o(x)
    stamp(4)
    o("s_cmp_lt_u32 s33, 4"); o("s_cbranch_scc1 K1_H")
    o("s_mov_b64 exec, vcc")
    for x in stores(1)[:2]: o(x)
    o("s_branch K1_F")
    lab("K1_H")
    for x in stores(1): o(x)
    lab("K1_F")
    stamp_out(2, 12, 24, 0)
    lab("K1_END")
    o("s_endpgm")
    lab("K1_OFF")
    for j in range(8): o(f"v_lshl_add_u32 v{24+j}, v{24+j}, 19, v{32+j}"); o(f"v_add_u32 v{24+j}, s34, v{24+j}")
    o(f"v_mul_u32_u24 v41, {OG//16}, v20"); o("s_lshl_b32 s35, s36, 4"); o(f"s_add_u32 s35, s35, {WS_OFF:#x}"); o(f"s_add_u32 s30, s35, {OG}")
    o("buffer_store_dwordx4 v[24:27], v41, s[24:27], s35 offen"); o("buffer_store_dwordx4 v[28:31], v41, s[24:27], s30 offen")
    o("s_branch K1_G")
    lab("K1_LOAD")
    nb0 = int(OPT.get('k1a', 0))
    nb = int(OPT.get('k1b', 24))
    o("s_cmp_eq_u32 s33, 7"); o("s_cbranch_scc1 K1_LX")
    o("s_cmp_eq_u32 s33, 6"); o("s_cselect_b32 s42, s48, s42"); o("s_cselect_b32 s43, s49, s43"); o("s_cselect_b32 s39, 0x8000, 0"); o(f"s_add_u32 s39, s39, {K1_W}")
    srd(52, 42, 32768)
    o("v_lshrrev_b32 v44, 4, v20"); o("v_lshlrev_b32 v44, 6, v44"); o("v_xor_b32 v44, v44, v42")
    for k in range(32):
        if k in (nb0, nb): o("s_barrier")
        if k % 4 == 0: o(f"s_add_u32 m0, s39, {k*1024}"); o(f"s_movk_i32 s14, {k*1024}")
        o(f"buffer_load_dwordx4 v44, s[52:55], s14 offen offset:{(k%4)*1024} lds")
    lab("K1_LD")
    addrs()
    o("s_waitcnt vmcnt(0)"); o("s_barrier")
    o("s_branch K1_J")
    lab("K1_LX")
    if int(OPT.get('touch', 0)):
        srd(24, 12, WS_SIZE)
        o(f"s_lshl_b32 s14, s37, {7 if SM else 9}"); o(f"s_add_u32 s14, s14, {WS_TAB:#x}"); o("v_mov_b32 v248, s14")
        if SM: o("v_lshrrev_b32 v249, 4, v20"); o(f"v_mul_u32_u24 v249, {SMS}, v249"); o("v_add_u32 v248, v248, v249")
        o("s_lshl_b32 s14, s3, 1")
        o("v_writelane_b32 v248, s14, 1"); o(f"s_mov_b32 s14, {WS_OFF:#x}"); o("v_writelane_b32 v248, s14, 2")
        o("buffer_load_dword v249, v248, s[24:27], 0 offen")
    srd(60, 4, N, 256)
    o("v_lshl_add_u32 v58, v57, 3, v56"); o("v_add_u32 v53, s37, v58")
    o("v_and_b32 v55, 15, v0"); o("v_lshlrev_b32 v59, 3, v56"); o("v_xor_b32 v55, v55, v59"); o("v_lshlrev_b32 v55, 4, v55")
    o("v_cmp_gt_u32 vcc, 2, v58"); o("v_mov_b32 v59, 0xffff")
    for k in range(25):
        t, i = divmod(k, 8)
        if k in (nb0, nb): o("s_barrier")
        o(f"s_mov_b32 m0, {K1_X + t*8320 + i*1040}"); o(f"v_add_u32 v54, {32*t + 16*(i >> 2) + 2*(i & 3)}, v53")
        if t == 3: o("v_cndmask_b32 v54, v59, v54, vcc")
        o("buffer_load_dwordx4 v[54:55], s[60:63], 0 idxen offen lds")
    if int(OPT.get('touch', 0)) >= 2:
        sh = int(OPT.get('tsh', 16))
        o("v_lshl_add_u32 v250, v20, 5, s35"); o(f"v_lshlrev_b32 v250, {sh}, v250")
        srd(76, 6, E*32); o("buffer_load_dword v249, v250, s[76:79], 0 offen")
        srd(76, 12, WS_TAB + 4*SMS); o("buffer_load_dword v249, v250, s[76:79], 0 offen")
        srd(76, 72, N*256); o("buffer_load_dword v249, v250, s[76:79], 0 offen")
    o("s_cmp_ge_u32 s2, 68"); o("s_cbranch_scc1 K1_LD")
    o("s_lshr_b32 s14, s2, 5")
    o("s_cmp_eq_u32 s14, 1"); o("s_cselect_b32 s40, s46, s40"); o("s_cselect_b32 s41, s47, s41"); o(f"s_cselect_b32 s68, 1.0, {NLOG2E:#x}")
    o("s_mov_b32 s66, 32768"); o("s_bfe_u32 s50, s2, 0x20003"); o("s_and_b32 s51, s2, 7"); o("s_mov_b32 s32, 14")
    o("s_cmp_eq_u32 s14, 2"); o("s_cselect_b32 s40, s44, s40"); o("s_cselect_b32 s41, s45, s41"); o("s_cselect_b32 s66, 4096, s66")
    o("s_cselect_b32 s50, s51, s50"); o("s_cselect_b32 s51, 0, s51"); o("s_cselect_b32 s32, 11, s32")
    o("s_mov_b32 s64, s40"); o("s_and_b32 s65, s41, 0xffff"); o("s_mov_b32 s67, 0x20000")
    o("s_lshl_b32 s50, s50, 6"); o("s_lshl_b32 s51, s51, 11"); o("s_add_u32 s50, s50, s51")
    o("v_and_b32 v4, 3, v0"); o("v_bfe_u32 v5, v0, 3, 2"); o("v_lshl_or_b32 v4, v5, 2, v4")
    o("v_bfe_u32 v5, v0, 2, 1"); o("v_lshl_or_b32 v4, v5, 4, v4")
    o("v_lshlrev_b32 v5, s32, v57"); o("v_lshl_add_u32 v4, v4, 1, v5"); o("v_add_u32 v4, s50, v4")
    for j in range(8): o(f"buffer_load_ushort v{8+j}, v4, s[64:67], 0 offen offset:{j*256}")
    o("s_branch K1_LD")
    lab("K1_PREP2")
    o("s_lshl_b32 s14, s2, 10"); o(f"s_add_u32 s14, s14, {WS_WF:#x}")
    for j in range(8):
        o(f"v_lshlrev_b32 v{8+j}, 16, v{8+j}"); o(f"v_mul_f32 v{8+j}, s68, v{8+j}")
    for j in range(4): o(f"v_cvt_pk_bf16_f32 v{52+j}, v{8+2*j}, v{9+2*j}")
    o("buffer_store_dwordx4 v[52:55], v42, s[24:27], s14 offen")
    o("s_branch K1_G")

def regs_of(tok):
    m = re.fullmatch(r"v\[(\d+):(\d+)\]", tok)
    if m: return set(range(int(m.group(1)), int(m.group(2)) + 1))
    m = re.fullmatch(r"v(\d+)", tok)
    return {int(m.group(1))} if m else set()
def check_hazards(ins):
    P = []
    for s in ins:
        if s.endswith(':'): continue
        op, _, rest = s.partition(' ')
        t = [x.strip() for x in rest.split(',')]
        t = [x.split(' ')[0] for x in t]
        if op.startswith('v_mfma'):
            P.append(('m', 12 if '32x32' in op else 8, regs_of(t[0]), regs_of(t[1]) | regs_of(t[2]), regs_of(t[3]), s))
        elif op.startswith('v_'):
            P.append(('t' if op in ('v_exp_f32', 'v_rcp_f32') else 'v', 0, regs_of(t[0]), set().union(*map(regs_of, t[1:])), set(), s))
        elif op.startswith('ds_read'):
            P.append(('d', 0, regs_of(t[0]), regs_of(t[1]), set(), s))
        elif op.startswith('buffer'):
            P.append(('d', 0, set(), regs_of(t[0]), set(), s))
        else: P.append(('s', 0, set(), set(), set(), s))
    n = len(P)
    for i, (k, w, d, ab, c, s) in enumerate(P):
        for j in range(1, 13):
            k2, w2, d2, ab2, c2, s2 = P[(i + j) % n]
            gap = j - 1
            if k == 'm':
                if k2 == 'm':
                    assert not (gap < w and d & ab2), (s, s2)
                    if d & c2 and d != c2: assert gap >= w - 2, (s, s2)
                else: assert not (gap < w and d & (d2 | ab2)), (s, s2, gap)
                if k2 in 'vt': assert not (gap < (7 if w == 12 else 3) and c & d2), (s, s2)
            if k in 'vt' and k2 == 'm': assert not (gap < 2 and d & (ab2 | c2)), (s, s2)
            if k == 't' and k2 == 'v': assert not (gap < 1 and d & ab2), (s, s2)

LOWLIM = 2; NS = 2
LUT = 0; IDT = 4096; NB = IDT + 26 * 80; LIST = NB + 256; MB = LIST + 8192; ROW = 264; CNT = MB + 26 * ROW; ZSZ = 26 * ROW + 256
ER = CNT + 256; RING = ER + 8192; WS_ = 4160; SLOT = 4 * WS_; K2_LDS = RING + (NS + 1) * SLOT
G8 = int(OPT.get('g8', 0)); GS = (K2_LDS - NB + 255) // 256 * 256
assert K2_LDS <= 81920 and ER % 16 == 0 and LIST % 16 == 0 and MB % 16 == 0 and 4096 < ZSZ <= 8192 and ZSZ % 16 == 0

class RA:
    def __init__(s): s.n = 1
    def get(s, k=1, al=1):
        s.n = (s.n + al - 1) // al * al
        b = s.n; s.n += k; return b
R = RA()
vTA = R.get()
IX = [R.get(2, 2) for _ in range(4)]; IXE = R.get(2, 2); MQ = R.get(2, 2)
(vTC, vEA, vMT, vSA, vMA, vL1, vL2, vSV, vHC, vWF, vXA, vXR, vXI, vXO) = [R.get() for _ in range(14)]
SEG = R.get(4, 4); PT = R.get(4, 4)
GV = R.get(64, 4); ACC = R.get(64, 4)
TF = R.get(16, 4); EF = R.get(4, 4); SF = R.get(8, 4); WC = R.get(4, 4); T0 = R.get(8, 4); AF = R.get(16, 4); SEL = R.get(8, 4)
NVGPR = R.n
assert NVGPR <= 255, NVGPR
REC = GV; RANK = GV + 32; AD = GV + 48
sX, sE, sW, sO, sT = 8, 12, 16, 20, 96
sWAVE, sBASE, sMR, sME, sCNT, sNT, sRS, sLIM, sFIRST, sMORE, sDS, sT0, sT1, sEPS, s80, sMET = range(24, 40)
sHM, sSV, sWF, sS0 = 42, 44, 52, 54
sK = 56
sG = 95
def addg(v):
    if G8: o(f"v_add_u32 v{v}, s{sG}, v{v}")
def saddg(r):
    if G8: o(f"s_add_u32 s{r}, s{r}, s{sG}")

def ldt(i): return f"buffer_load_dwordx4 {vr(IX[i],2)}, s[{sT}:{sT+3}], 0 idxen offen {OPT.get('tpol', '').replace('+', ' ')} lds".replace("  ", " ")
def lde(): return f"buffer_load_dwordx4 {vr(IXE,2)}, s[{sE}:{sE+3}], 0 idxen offen {OPT.get('epol', '').replace('+', ' ')} lds".replace("  ", " ")
def loff(u): return (u & 1) * 4096 + (u >> 1) * 256
def nextslot(r): return [f"s_add_u32 s{r}, s{r}, {SLOT}", f"s_cmp_eq_u32 s{r}, {NS*SLOT}", f"s_cselect_b32 s{r}, 0, s{r}"]

def vstream(Gc, Vc):
    A = []
    for p in range(0, 22, 2):
        if p < 16: A += [(f"v_exp_f32 v{Gc+p}, v{Gc+p}", 8), (f"v_exp_f32 v{Gc+p+1}, v{Gc+p+1}", 8)]
        q = p - 2
        if 0 <= q < 16:
            if 'a' in OPT.get('pk', ''): A += [(f"v_pk_add_f32 {vr(Gc+q,2)}, {vr(Gc+q,2)}, 1.0 op_sel_hi:[1,0]", 4)]
            else: A += [(f"v_add_f32 v{Gc+q}, 1.0, v{Gc+q}", 4), (f"v_add_f32 v{Gc+q+1}, 1.0, v{Gc+q+1}", 4)]
            A += [(f"v_rcp_f32 v{Gc+q}, v{Gc+q}", 8), (f"v_rcp_f32 v{Gc+q+1}, v{Gc+q+1}", 8)]
        q = p - 4
        if 0 <= q < 16 and 'm' in OPT.get('pk', ''): A += [(f"v_pk_mul_f32 {vr(Vc+q,2)}, {vr(Gc+q,2)}, {vr(Vc+q,2)}", 4)]
        elif 0 <= q < 16: A += [(f"v_mul_f32 v{Vc+q}, v{Gc+q}, v{Vc+q}", 4), (f"v_mul_f32 v{Vc+q+1}, v{Gc+q+1}, v{Vc+q+1}", 4)]
        q = p - 6
        if 0 <= q < 16: A += [(f"v_cvt_pk_bf16_f32 v{Gc+q//2}, v{Gc+q}, v{Gc+q+1}", 4), (f"v_cvt_pk_bf16_f32 v{Vc+q//2}, v{Vc+q}, v{Vc+q+1}", 4)]
    return A
def zphase(P, p):
    d = ACC + 32 * p
    return [m32(d, P, T0, d), m32(d+16, P+16, T0, d+16), m32(d, P+4, T0+4, d), m32(d+16, P+20, T0+4, d+16)]

HEAD = {}
def body(b, peel=False):
    p = b % 2
    Gn = GV + 32 * p; Vn = Gn + 16; Gc = GV + 32 * (1 - p); Vc = Gc + 16; af = AF + 8 * p
    ne = sum(1 for k in range(NS - 1) if (b - k) % 4 == 0) + (1 if (b - (NS - 1)) % 4 == 0 else 0)
    vmw = 4 * (NS - 1) + ne
    z = zphase(Gn, p)
    def dma(i): return [f"s_add_u32 m0, s{sMR}, {p*SLOT + i*1040}", None, ldt(i), f"ds_read_u16 v{IX[i]}, v{vL1} offset:{loff(b+NS+1)+64*i}"]
    top = ["s_waitcnt vmcnt(8) lgkmcnt(0)", "s_barrier"] if b == 3 else ["s_waitcnt lgkmcnt(0)"]
    if G8 and OPT.get('sp', '2103') != '0': top.append(f"s_setprio {OPT.get('sp', '2103')[b]}")
    if G8 and OPT.get('bar2') and b == 1: top.insert(1, "s_barrier")
    seq = []
    seq.append([z[0], [], [f"v_mad_u32_u24 v{vSV}, v{vSV}, s{s80}, v{vHC}"]])
    seq.append([z[1], [f"ds_read_b128 {vr(SF,4)}, v{vSV}", f"ds_read_b128 {vr(SF+4,4)}, v{vSV} offset:32"], []])
    seq.append([z[2], [f"ds_read_u8 v{vSV}, v{vSA} offset:{loff(b+1)}"], []])
    seq.append([z[3], [f"s_sub_u32 s{sCNT}, s{sCNT}, 1", f"s_cbranch_scc1 TAIL{p}", f"ENT{b}:"], []])
    seq.append([m32(Gn, TF, SEL, None), [f"ds_read_b128 {vr(T0,4)}, v{MQ}"], [f"v_and_b32 v{IXE}, 0x7ffff, v{IXE}"] if b == 0 else []])
    seq.append([m32(Gn, TF+4, SEL+4, Gn), [f"ds_read_b128 {vr(T0+4,4)}, v{MQ+1}"], [f"v_xor_b32 v{vEA}, v{vEA}, v{vMT}"] if b == 3 else []])
    seq.append([m32(Gn, EF, WC, Gn), [f"ds_read_b128 {vr(EF,4)}, v{vEA} offset:{(b+1)%4*1024}", f"ds_read_u16 v{MQ}, v{vMA} offset:{b*8}",
                f"ds_read_u16 v{MQ+1}, v{vMA} offset:{b*8+2}"], []])
    seq.append([m32(Vn, TF+8, SEL, None), [f"ds_read_b32 v{IXE}, v{vL2}"] if b == 3 else [], []])
    seq.append([m32(Vn, TF+12, SEL+4, Vn), ["s_waitcnt lgkmcnt(S)"], []])
    seq.append([m32(Gn, SF, af, Gn), [f"s_waitcnt vmcnt({vmw})"], []])
    seq.append([m32(Gn, SF+4, af+4, Gn), [f"ds_read_b128 {vr(TF+4*j,4)}, v{vTA} offset:{(1-p)*SLOT+16*j}" for j in range(4)],
                [f"v_add_u32 v{r}, 0x200, v{r}" for r in (vSA, vL1, vL2)] + [f"v_add_u32 v{vMA}, 32, v{vMA}"] if b == 3 else []])
    dp = [int(c) for c in OPT.get('dp', '03589')]
    for i in range(4): seq[dp[i]][1] = seq[dp[i]][1] + dma(i)
    if b == 0: seq[dp[4]][1] = seq[dp[4]][1] + [f"s_mov_b32 m0, s{sME}", None, lde(), f"s_xor_b32 s{sME}, s{sME}, s{sMET}"]
    A = [] if peel else vstream(Gc, Vc)
    wt = [float(x) for x in OPT.get('wt', '1,1,1,1,1,1,1,1,1,1,1.6').split(',')]
    tot = sum(c for _, c in A); out = list(top); ai = 0; acc = 0; budget = 0
    for i, (m, ex, xv) in enumerate(seq):
        budget += tot * wt[i] / sum(wt)
        g = []
        while ai < len(A) and acc + A[ai][1] / 2 <= budget + 0.01:
            g.append(A[ai][0]); acc += A[ai][1]; ai += 1
        if i == 3 and not peel: HEAD[b] = ai
        if not (peel and i < 4): out.append(m)
        g = xv + g
        last = [x for x in ex if x and (x.startswith("s_waitcnt") or x.startswith("s_cbranch") or x.endswith(":") or x.startswith("s_sub"))]
        ex = [x for x in ex if x not in last]
        if peel: last = [x for x in last if x.startswith("s_waitcnt")]
        first = True
        for x in ex:
            if x is None:
                continue
            if not first and g: out.append(g.pop(0))
            elif not first and peel and x.startswith("buffer"): out.append("s_nop 0")
            out.append(x); first = False
        out += g + last
    assert ai == len(A)
    i0 = max(i for i, x in enumerate(out) if x.startswith(f"ds_read_b128 {vr(SF+4,4)}")); i1 = out.index("s_waitcnt lgkmcnt(S)")
    out[i1] = f"s_waitcnt lgkmcnt({sum(1 for x in out[i0+1:i1] if x.startswith('ds_'))})"
    for i, x in enumerate(out):
        if x.startswith("buffer_load"): assert not out[i-1].split()[1].startswith("m0"), (out[i-1], x)
    if OPT.get('fakec'):
        n2 = []
        for x in out:
            if x.startswith("v_mfma") and (f", {vr(SEL,4)}," in x or f", {vr(SEL+4,4)}," in x):
                j = (int(re.findall(r"v\[(\d+):", x)[1]) - TF)
                n2 += [f"v_lshlrev_b32 v{Vn+j+k}, 16, v{TF+j+k}" for k in range(4)]
            elif x == m32(Gn, EF, WC, Gn): n2.append(m32(Gn, EF, WC, TF))
            elif x.startswith("ds_read_b128") and f"v{vTA} " in x:
                j = int(re.findall(r"v\[(\d+):", x)[0]) - TF
                n2 += [f"ds_read2st64_b32 {vr(TF+j+2*k,2)}, v{vTC} offset0:{(1-p)*65+j+2*k} offset1:{(1-p)*65+j+2*k+1}" for k in range(2)]
            else: n2.append(x)
        out = n2
    if OPT.get('notrans'): out = [x.replace("v_exp_f32", "v_mov_b32").replace("v_rcp_f32", "v_mov_b32") for x in out]
    if OPT.get('noval'): out = ["s_nop 0" if (x.startswith("v_exp") or x.startswith("v_rcp")) else x for x in out if not (x.startswith("v_add_f32") or x.startswith("v_mul_f32") or x.startswith("v_cvt"))]
    if OPT.get('nodma'): out = [x for x in out if 'buffer_load' not in x]
    if OPT.get('noe'): out = [x for x in out if f"s[{sE}:{sE+3}]" not in x]
    return out

def emit(lst):
    for it in lst:
        if it.endswith(':'): lab(it[:-1])
        else: o(it)

def masks(tmp):
    a, b_, c = tmp
    o(f"v_and_b32 v{a}, 3, v0"); o(f"v_lshlrev_b32 v{a}, 1, v{a}"); o(f"v_mov_b32 v{c}, 0")
    for i in range(4):
        o(f"v_lshrrev_b32 v{b_}, 19, v{SEG+i}"); o(f"v_max_u32 v{c}, v{c}, v{b_}")
        o(f"v_min_u32 v{b_}, s{sLIM}, v{b_}"); o(f"v_sub_u32 v{b_}, v{b_}, v{a}")
        for j, k in ((0, 2*i), (1, 2*i+1), (8, 8+2*i), (9, 9+2*i)): o(f"v_cmp_lt_i32 s[{sK+2*k}:{sK+2*k+1}], {j}, v{b_}")
    o(f"v_cmp_lt_u32 vcc, s{sLIM}, v{c}")
    o(f"s_or_b64 s[{sSV}:{sSV+1}], s[{sK+16}:{sK+17}], s[{sK+20}:{sK+21}]"); o(f"s_or_b64 s[{sHM}:{sHM+1}], s[{sK+24}:{sK+25}], s[{sK+28}:{sK+29}]")
    o(f"s_or_b64 s[{sSV}:{sSV+1}], s[{sSV}:{sSV+1}], s[{sHM}:{sHM+1}]")
    o(f"v_mov_b32 v{b_}, {CNT-4}"); addg(b_)
    o("s_mov_b64 exec, vcc"); o(f"ds_write_b32 v{b_}, v{b_}"); o("s_mov_b64 exec, -1")

def interleave(mf, other, per):
    other = list(other)
    for m in mf:
        o(m)
        for _ in range(per):
            if other: o(other.pop(0))
    for x in other: o(x)
def capture(fn):
    n = len(L); fn(); r = [x.strip() for x in L[n:]]; del L[n:]; return r
def wload(dst, off):
    r = []
    for s in range(8):
        if s % 4 == 0: r.append(f"s_add_u32 s{sT0}, s{sWF}, {off + s*1024:#x}")
        r.append(f"buffer_load_dwordx4 {vr(dst+4*s,4)}, v{vWF}, s[{sW}:{sW+3}], s{sT0} offen offset:{(s%4)*1024}")
    return r
def xblk(base, pair):
    o(f"v_mov_b32 v{pair+1}, v{vXO}")
    for mt in range(2):
        for a in range(2):
            o(f"s_add_u32 m0, s{base}, {(2*mt+a)*1040}")
            o(f"v_cmp_gt_u32 vcc, {(NA if mt == 0 else RN-NA) - 2*a}, v{vXI}")
            o(f"s_add_u32 s{sT0}, s{sBASE}, {NA*mt + 2*a}"); o(f"v_add_u32 v{pair}, s{sT0}, v{vXI}")
            o(f"v_cndmask_b32 v{pair}, v{PT+3}, v{pair}, vcc")
            o(f"buffer_load_dwordx4 {vr(pair,2)}, s[{sX}:{sX+3}], 0 idxen offen lds")

def gen_k2():
    L.append(".globl gmain_kernel"); L.append(".p2align 8"); L.append(".type gmain_kernel,@function")
    lab("gmain_kernel"); VST[0] = 255
    t = [TF + i for i in range(28)]
    stamp(0)
    o("s_load_dwordx2 s[50:51], s[0:1], 88")
    o("s_load_dwordx4 s[4:7], s[0:1], 0")
    o("s_load_dwordx2 s[48:49], s[0:1], 72")
    o("s_setprio 3")
    o(f"v_lshrrev_b32 v{t[0]}, 6, v0")
    o("s_and_b32 s3, s2, 7"); o("s_lshl_b32 s3, s3, 6"); o(f"s_bfe_u32 s{sT0}, s2, 0x50003"); o(f"s_lshl1_add_u32 s3, s{sT0}, s3")
    o(f"v_readfirstlane_b32 s{sWAVE}, v{t[0]}")
    if G8:
        o("v_and_b32 v0, 0xff, v0"); o(f"s_lshr_b32 s{sT0}, s{sWAVE}, 2"); o(f"s_and_b32 s{sWAVE}, s{sWAVE}, 3"); o(f"s_mul_i32 s{sG}, s{sT0}, {GS}")
    else: o(f"s_lshr_b32 s{sT0}, s2, 8")
    o(f"s_add_u32 s3, s3, s{sT0}")
    o(f"s_cmp_ge_u32 s2, {256 if G8 else 512}"); o("s_cbranch_scc1 K2_END")
    o(f"s_cmp_ge_u32 s3, {NR}"); o("s_cbranch_scc1 K2_END")
    o(f"v_lshrrev_b32 v{t[1]}, 2, v0")
    o(f"s_lshr_b32 s{sS0}, s3, 2"); o(f"s_mul_i32 s{sS0}, s{sS0}, {OG}"); o(f"s_and_b32 s{sT0}, s3, 3"); o(f"s_lshl2_add_u32 s{sS0}, s{sT0}, s{sS0}"); o(f"s_add_u32 s{sS0}, s{sS0}, {WS_OFF:#x}")
    o(f"v_lshlrev_b32 v{t[1]}, 6, v{t[1]}")
    o(f"s_mul_i32 s{sBASE}, s3, {RN}")
    o(f"v_and_b32 v{vWF}, 63, v0"); o(f"v_lshlrev_b32 v{vWF}, 4, v{vWF}")
    o(f"s_mul_i32 s{sMR}, s{sWAVE}, {WS_}"); o(f"s_add_u32 s{sMR}, s{sMR}, {RING}"); saddg(sMR)
    o(f"s_lshl_b32 s{sWF}, s{sWAVE}, 13"); o(f"s_add_u32 s{sWF}, s{sWF}, {WS_WF:#x}")
    o(f"s_mov_b32 s{sEPS}, {EPS:#x}"); o(f"s_movk_i32 s{s80}, 80")
    o(f"s_mov_b32 s{sFIRST}, 1"); o(f"s_mov_b32 s{sLIM}, 16")
    o("s_cmp_ge_u32 s2, 256"); o(f"s_cselect_b32 s{sRS}, {OPT.get('bon', 0)}, 0")
    o("s_waitcnt lgkmcnt(0)"); xstamp("karg")
    srd(sW, 50, WS_SIZE)
    for i in range(4): o(f"buffer_load_dword v{SEG+i}, v{t[1]}, s[{sW}:{sW+3}], s{sS0} offen offset:{16*i}")
    srd(sX, 4, N, 256); srd(sE, 6, E, 32); srd(sO, 48, N, 256)
    o(f"s_add_u32 s50, s50, {WS_TAB:#x}"); o("s_addc_u32 s51, s51, 0")
    if SM: o(f"s_mul_i32 s{sT0}, s{sWAVE}, {SMS}"); o(f"s_add_u32 s50, s50, s{sT0}"); o("s_addc_u32 s51, s51, 0")
    srd(sT, 50, N, 128 if SM else 512)
    WAP = OPT.get('wap', 'p1'); XBP = OPT.get('xbp', 'p1'); ORD = ['start', 'rec', 'mask', 'p1', 'b1']
    def place(where):
        if where not in (WAP, XBP): return
        o(f"s_cmp_eq_u32 s{sFIRST}, 0"); o(f"s_cbranch_scc1 NOW_{where}")
        if XBP == where:
            o(f"s_add_u32 s{sNT}, s{sMR}, {NS*SLOT}")
            xblk(sNT, T0)
        if WAP == where:
            for x in wload(ACC, WF_A): o(x)
            o(f"s_lshl_b32 s{sT0}, s{sWAVE}, 10"); o(f"s_add_u32 s{sT0}, s{sT0}, {WS_WF+WF_C:#x}")
            o(f"buffer_load_dwordx4 {vr(WC,4)}, v{vWF}, s[{sW}:{sW+3}], s{sT0} offen")
        lab(f"NOW_{where}")
    def cnt(lo, hi): return sum(n for p, n in ((WAP, 9), (XBP, 4)) if lo <= ORD.index(p) <= hi)
    SP = [int(x) for x in OPT.get('spf', '0,0').split(',')]
    def spref(n, first):
        for k in range(n): o(f"s_load_dword s{88 + k % 4}, s[46:47], {(first + k) * 32768:#x}")
    if sum(SP):
        o(f"s_and_b32 s{sT0}, s3, 63"); o(f"s_lshl2_add_u32 s{sT0}, s{sT0}, s{sWAVE}"); o(f"s_lshl_b32 s{sT0}, s{sT0}, 7")
        o(f"s_add_u32 s46, s50, s{sT0}"); o("s_addc_u32 s47, s51, 0")
        spref(SP[0], 0)
    lab("ROUND")
    b0, b2, b3, b4, vh = t[16:21]
    o(f"v_lshlrev_b32 v{t[11]}, 4, v0"); addg(t[11])
    for d in range(4): o(f"v_mov_b32 v{t[0]+d}, 0")
    for off in (0, ZSZ - 4096): o(f"ds_write_b128 v{t[11]}, {vr(t[0],4)} offset:{MB+off}")
    pad0 = 0xffff | (NA << 16)
    o(f"v_mov_b32 v{t[4]}, {pad0:#x}"); o(f"v_mov_b32 v{t[5]}, 0x7ffff"); o(f"v_mov_b32 v{t[6]}, {pad0:#x}"); o(f"v_mov_b32 v{t[7]}, 0x7ffff")
    o(f"ds_write_b128 v{t[11]}, {vr(t[4],4)} offset:{LIST}"); o(f"ds_write_b128 v{t[11]}, {vr(t[4],4)} offset:{LIST+4096}")
    o(f"v_and_b32 v{b0}, 1, v0"); o(f"v_bfe_u32 v{b2}, v0, 2, 1"); o(f"v_bfe_u32 v{b3}, v0, 3, 1"); o(f"v_bfe_u32 v{b4}, v0, 4, 1"); o(f"v_bfe_u32 v{vh}, v0, 5, 1")
    o(f"v_and_b32 v{t[8]}, 3, v0"); o(f"v_lshlrev_b32 v{t[8]}, 1, v{t[8]}")
    o(f"v_mov_b32 v{t[9]}, 0x7ffffff0"); o(f"s_mov_b32 s{sT1}, 0x7ffff")
    o(f"v_and_b32 v{t[12]}, 15, v0"); o(f"v_lshlrev_b32 v{t[13]}, 3, v{b4}")
    o(f"v_xor_b32 v{vXO}, v{t[12]}, v{t[13]}"); o(f"v_lshlrev_b32 v{vXO}, 4, v{vXO}")
    o(f"s_lshr_b32 s{sT0}, s{sWAVE}, 1"); o(f"s_lshl_b32 s{sT0}, s{sT0}, 4"); o(f"s_and_b32 s{sS0}, s{sWAVE}, 1"); o(f"s_lshl2_add_u32 s{sT0}, s{sS0}, s{sT0}")
    o(f"v_lshl_add_u32 v{vXI}, v{vh}, 3, v{b4}"); o(f"v_add_u32 v{vXI}, s{sT0}, v{vXI}")
    o(f"v_mov_b32 v{PT+3}, 0xffff")
    place('start')
    xstamp("consts_done")
    o(f"s_waitcnt vmcnt({cnt(0, 0)})"); stamp(1)
    for i in range(4):
        o(f"v_lshrrev_b32 v{t[4+i]}, 19, v{SEG+i}"); o(f"v_cmp_lt_u32 vcc, v{t[8]}, v{t[4+i]}")
        o(f"v_and_b32 v{t[i]}, s{sT1}, v{SEG+i}"); o(f"v_add_lshl_u32 v{t[i]}, v{t[i]}, v{t[8]}, 3")
        o(f"v_cndmask_b32 v{t[10]}, v{t[9]}, v{t[i]}, vcc")
        o(f"buffer_load_dwordx4 {vr(REC+4*i,4)}, v{t[10]}, s[{sW}:{sW+3}], 0 offen")
    o(f"v_max3_u32 v{t[10]}, v{t[4]}, v{t[5]}, v{t[6]}"); o(f"v_max_u32 v{t[10]}, v{t[10]}, v{t[7]}")
    o(f"v_cmp_lt_u32 vcc, 8, v{t[10]}"); o("s_cbranch_vccz REC_DONE")
    for i in range(4): o(f"buffer_load_dwordx4 {vr(REC+16+4*i,4)}, v{t[i]}, s[{sW}:{sW+3}], 0 offen offset:64")
    lab("REC_DONE")
    xstamp("rec_issued")
    PF = int(OPT.get('pf', 0))
    def pref():
        o(f"s_lshr_b32 s{sT0}, s3, 6"); o(f"s_mul_i32 s{sT0}, s{sT0}, {64*RN}"); o(f"s_and_b32 s{sT1}, s3, 63"); o(f"s_lshl_b32 s{sT1}, s{sT1}, 6"); o(f"s_add_u32 s{sT0}, s{sT0}, s{sT1}")
        o(f"v_lshrrev_b32 v{T0+2}, 2, v0"); o(f"v_add_u32 v{T0+2}, s{sT0}, v{T0+2}"); o(f"v_and_b32 v{T0+1}, 3, v0"); o(f"v_lshlrev_b32 v{T0+1}, 7, v{T0+1}")
        for k in range(PF):
            o(f"v_add_u32 v{T0+3}, {-512*RN}, v{T0+2}"); o(f"v_min_u32 v{T0}, v{T0+2}, v{T0+3}")
            o(f"buffer_load_dword v{SEL}, {vr(T0,2)}, s[{sT}:{sT+3}], 0 idxen offen")
            if k + 1 < PF: o(f"v_add_u32 v{T0+2}, 4096, v{T0+2}")
    PFW = OPT.get('pfw', 'rec')
    place('rec')
    if PF and PFW == 'rec': pref()
    o("s_waitcnt lgkmcnt(0)"); o("s_barrier"); stamp(2)
    spref(SP[1], SP[0])
    pp = t[14]
    o(f"v_and_b32 v{pp}, 0x13, v0"); o(f"v_lshl_or_b32 v{pp}, v{b2}, 3, v{pp}"); o(f"v_lshl_or_b32 v{pp}, v{b3}, 2, v{pp}")
    o(f"v_lshrrev_b32 v{t[12]}, 3, v{pp}"); o(f"v_lshlrev_b32 v{vTA}, 7, v{pp}"); o(f"v_lshl_add_u32 v{vTA}, v{t[12]}, 4, v{vTA}")
    o(f"v_bfe_u32 v{t[13]}, v0, 1, 1"); o(f"v_xor_b32 v{t[12]}, v{t[13]}, v{vh}"); o(f"v_lshl_add_u32 v{vTA}, v{t[12]}, 6, v{vTA}"); o(f"v_add_u32 v{vTA}, s{sMR}, v{vTA}")
    o(f"v_and_b32 v{t[12]}, 7, v0"); o(f"v_lshlrev_b32 v{t[15]}, 2, v{b4}"); o(f"v_xor_b32 v{t[15]}, v{t[15]}, v{t[12]}")
    o(f"s_mov_b32 s{sT0}, 0" if SM else f"s_lshl_b32 s{sT0}, s{sWAVE}, 7"); o(f"v_lshl_add_u32 v{IX[0]+1}, v{t[15]}, 4, s{sT0}")
    for i in range(1, 4): o(f"v_mov_b32 v{IX[i]+1}, v{IX[0]+1}")
    o(f"v_and_b32 v{vL1}, 0x38, v0"); o(f"v_add_u32 v{vL1}, {LIST}, v{vL1}"); addg(vL1)
    o(f"v_lshl_or_b32 v{t[15]}, v{b4}, 1, v{b2}"); o(f"v_mul_u32_u24 v{t[15]}, {WS_}, v{t[15]}"); o(f"v_mul_u32_u24 v{t[13]}, 1040, v{t[13]}")
    o(f"v_lshl_or_b32 v{t[21]}, v{b3}, 1, v{b0}"); o(f"v_lshl_add_u32 v{t[15]}, v{t[21]}, 8, v{t[15]}"); o(f"v_add3_u32 v{t[15]}, v{t[15]}, v{t[13]}, {'s%d' % sG if G8 else 0}")
    o(f"v_add_u32 v{t[15]}, {RING + NS*SLOT}, v{t[15]}")
    o(f"v_xor_b32 v{t[13]}, v{vh}, v{b0}"); o(f"v_lshl_add_u32 v{vXA}, v{t[13]}, 7, v{t[15]}")
    o(f"v_lshlrev_b32 v{IXE+1}, 4, v{t[13]}")
    o(f"v_bfe_u32 v{t[13]}, v0, 7, 1"); o(f"v_xor_b32 v{t[13]}, v{t[13]}, v{b0}"); o(f"v_lshl_add_u32 v{vXR}, v{t[13]}, 7, v{t[15]}")
    o(f"v_and_b32 v{t[13]}, 0x60, v0"); o(f"v_add_u32 v{vXR}, v{vXR}, v{t[13]}")
    o(f"s_lshl_b32 s{sT0}, s{sS0}, 12"); o(f"s_lshr_b32 s{sT1}, s{sWAVE}, 1"); o(f"s_lshl_b32 s{sT1}, s{sT1}, 8"); o(f"s_add_u32 s{sT0}, s{sT0}, s{sT1}"); o(f"s_add_u32 s{sT0}, s{sT0}, {LIST+4}"); saddg(sT0)
    o(f"v_bfe_u32 v{vL2}, v0, 1, 5"); o(f"v_lshl_add_u32 v{vL2}, v{vL2}, 3, s{sT0}")
    o(f"s_lshl_b32 s{sME}, s{sWAVE}, 10"); o(f"s_add_u32 s{sME}, s{sME}, {ER}"); saddg(sME)
    o(f"v_lshlrev_b32 v{vSA}, 3, v{pp}"); o(f"v_add_u32 v{vSA}, {LIST+2}, v{vSA}"); addg(vSA)
    o(f"v_lshlrev_b32 v{vHC}, 4, v{vh}"); o(f"v_add_u32 v{vHC}, {IDT}, v{vHC}")
    o(f"v_xor_b32 v{vEA}, v{b4}, v{vh}"); o(f"v_lshlrev_b32 v{vEA}, 4, v{vEA}")
    o(f"v_lshl_add_u32 v{vEA}, v{pp}, 5, v{vEA}"); o(f"v_add_u32 v{vEA}, {ER}, v{vEA}"); addg(vEA)
    o(f"v_add_u32 v{vMT}, 4096, v{vEA}"); o(f"v_xor_b32 v{vMT}, v{vMT}, v{vEA}")
    o(f"v_and_b32 v{t[13]}, 31, v0"); o(f"v_min_u32 v{t[13]}, {NA}, v{t[13]}")
    o(f"v_mul_u32_u24 v{vMA}, {ROW}, v{t[13]}"); o(f"v_lshl_add_u32 v{vMA}, v{vh}, 2, v{vMA}"); o(f"v_add_u32 v{vMA}, {MB}, v{vMA}"); addg(vMA)
    o(f"v_lshrrev_b32 v{PT+2}, 5, v0"); o(f"v_lshlrev_b32 v{PT+2}, 4, v{PT+2}"); o(f"v_lshl_add_u32 v{PT+2}, v{b3}, 2, v{PT+2}"); addg(PT+2)
    o(f"v_lshl_add_u32 v{t[12]}, v{b4}, 4, v{t[12]}"); o(f"v_lshlrev_b32 v{PT+1}, v{t[12]}, 16")
    o(f"v_and_b32 v{t[12]}, 3, v0"); o(f"v_lshl_add_u32 v{t[12]}, v{b4}, 2, v{t[12]}"); o(f"v_lshlrev_b32 v{t[12]}, v{t[12]}, 16")
    o(f"v_cmp_eq_u32 vcc, v{b3}, v{vh}"); o(f"v_lshlrev_b32 v{t[13]}, 4, v{b2}"); o("s_nop 0")
    o(f"v_cndmask_b32 v{t[12]}, 0, v{t[12]}, vcc"); o(f"v_lshlrev_b32 v{PT}, v{t[13]}, v{t[12]}")
    place('mask')
    if cnt(1, 2):
        o(f"s_cmp_eq_u32 s{sFIRST}, 1"); o("s_cbranch_scc1 REMASK"); o("s_waitcnt vmcnt(0)")
    lab("REMASK")
    masks((t[0], t[1], t[2])); xstamp("masks_done")
    a, b_, c, d_ = t[0:4]; ad = [AD + k for k in range(16)]
    o(f"v_mov_b32 v{a}, 8")
    o(f"v_lshrrev_b32 v{b_}, 2, v{vWF}"); addg(b_)
    if G8: o(f"s_lshr_b32 s{sDS}, s{sG}, 8")
    if PF and PFW == 'mask': pref()
    o(f"s_waitcnt vmcnt({cnt(1, 2)})"); xstamp("rec_landed")
    for half in range(2):
        if half: o(f"s_cmp_eq_u64 s[{sSV}:{sSV+1}], 0"); o("s_cbranch_scc1 P1_DONE"); o("s_mov_b64 exec, -1")
        for k in range(8*half, 8*half+8): o(f"v_alignbit_b32 v{ad[k]}, s{sDS}, v{REC+2*k+1}, 24" if G8 else f"v_lshrrev_b32 v{ad[k]}, 24, v{REC+2*k+1}")
        for k in range(8*half, 8*half+8):
            o(f"s_mov_b64 exec, s[{sK+2*k}:{sK+2*k+1}]")
            o(f"ds_add_rtn_u32 v{RANK+k}, v{ad[k]}, v{a} offset:{CNT}")
    lab("P1_DONE")
    o("s_mov_b64 exec, -1")
    place('p1')
    if PF and PFW == 'p1': pref()
    o("s_waitcnt lgkmcnt(0)"); xstamp("p1_done"); o("s_barrier"); xstamp("b1")
    o(f"ds_read_b32 v{c}, v{b_} offset:{CNT}")
    o(f"ds_read_b32 v{t[4]}, v{b_} offset:{CNT-4}")
    place('b1')
    o(f"v_lshlrev_b32 v{t[5]}, 12, v{vh}"); addg(t[5])
    o("s_waitcnt lgkmcnt(1)")
    o(f"v_sub_u32 v{d_}, v{t[5]}, v{c}")
    for dd in ("row_shr:1", "row_shr:2", "row_shr:4", "row_shr:8"):
        o(f"v_add_u32_dpp v{c}, v{c}, v{c} {dd} row_mask:0xf bank_mask:0xf bound_ctrl:0"); o("s_nop 1")
    o(f"v_add_u32_dpp v{c}, v{c}, v{c} row_bcast:15 row_mask:0xa bank_mask:0xf")
    o(f"v_add_u32 v{d_}, v{c}, v{d_}")
    o(f"ds_write_b32 v{b_}, v{d_} offset:{NB}")
    o(f"v_readlane_b32 s{sNT}, v{c}, 31"); o(f"v_readlane_b32 s{sCNT}, v{c}, 63")
    for k in range(8): o(f"ds_read_b32 v{ad[k]}, v{ad[k]} offset:{NB}")
    o(f"s_max_u32 s{sT0}, s{sNT}, s{sCNT}")
    o(f"s_cmp_le_u32 s{sT0}, 4096"); o("s_cbranch_scc0 TOOBIG")
    xstamp("scan_done")
    for half in range(2):
        if half:
            o(f"s_cmp_eq_u64 s[{sSV}:{sSV+1}], 0"); o("s_cbranch_scc1 P2_DONE"); o("s_mov_b64 exec, -1")
            for k in range(8, 16): o(f"ds_read_b32 v{ad[k]}, v{ad[k]} offset:{NB}")
        for k in range(8*half, 8*half+8):
            if k % 4 == 0: o(f"s_waitcnt lgkmcnt({4 - k % 8})")
            o(f"v_add_u32 v{RANK+k}, v{RANK+k}, v{ad[k]}")
        for k in range(8*half, 8*half+8):
            o(f"s_mov_b64 exec, s[{sK+2*k}:{sK+2*k+1}]")
            o(f"ds_write_b64 v{RANK+k}, {vr(REC+2*k,2)} offset:{LIST}")
    lab("P2_DONE")
    o("s_mov_b64 exec, -1")
    o(f"v_readlane_b32 s{sMORE}, v{t[4]}, 0")
    o(f"s_mov_b32 m0, s{sME}")
    o(f"s_waitcnt vmcnt({9 if ORD.index(WAP) >= ORD.index(XBP) else 0}) lgkmcnt(0)"); xstamp("p2_done"); o("s_barrier"); stamp(5)
    f = t
    def rdidx(u):
        for i in range(4): o(f"ds_read_u16 v{IX[i]}, v{vL1} offset:{loff(u)+64*i}")
    def fill(u, nxt):
        for i in range(4):
            o(f"s_add_u32 m0, s{sMR}, {u*SLOT + i*1040}"); o(f"s_waitcnt lgkmcnt(3)"); o(ldt(i))
            o(f"ds_read_u16 v{IX[i]}, v{vL1} offset:{loff(nxt)+64*i}")
    o(f"ds_read_b32 v{IXE}, v{vL2}"); rdidx(0)
    o(f"v_lshlrev_b32 v{f[9]}, 3, v0"); addg(f[9])
    o("s_waitcnt lgkmcnt(4)")
    o(f"v_and_b32 v{IXE}, 0x7ffff, v{IXE}"); o(lde())
    for u in range(NS): fill(u, u + 1)
    for k in range(4): o(f"ds_read_u8 v{f[12+k]}, v{f[9]} offset:{LIST+2+k*2048}")
    o(f"ds_read_b32 v{IXE}, v{vL2} offset:512"); o(f"ds_read_u8 v{vSV}, v{vSA}")
    xstamp("fill_issued")
    def ctrl():
        o(f"s_movk_i32 s{sS0}, {ROW}")
        for k in range(4):
            o(f"v_cmp_gt_u32 vcc, {NA}, v{f[12+k]}"); o(f"v_mad_u32_u24 v{f[0]}, v{f[12+k]}, s{sS0}, v{PT+2}"); o("s_nop 0")
            o(f"v_cndmask_b32 v{f[1]}, 0, v{PT+1}, vcc")
            o(f"ds_or_b32 v{f[0]}, v{f[1]} offset:{MB + (k&1)*128 + (k>>1)*8}")
        o(f"s_add_u32 s{sNT}, s{sNT}, 255"); o(f"s_lshr_b32 s{sNT}, s{sNT}, 8"); o(f"s_lshl1_add_u32 s{sNT}, s{sNT}, -1")
        o(f"s_add_u32 s{sCNT}, s{sCNT}, 255"); o(f"s_lshr_b32 s{sCNT}, s{sCNT}, 8"); o(f"s_lshl_b32 s{sCNT}, s{sCNT}, 1")
        o(f"s_max_i32 s{sNT}, s{sNT}, s{sCNT}"); o(f"s_max_i32 s{sNT}, s{sNT}, 2"); o(f"s_sub_u32 s{sCNT}, s{sNT}, 2")
        o(f"s_add_u32 s{sMET}, s{sME}, 4096"); o(f"s_xor_b32 s{sMET}, s{sMET}, s{sME}"); o(f"s_add_u32 s{sME}, s{sME}, 4096")
        o(f"v_add_u32 v{vL2}, 0x400, v{vL2}")
    def lut():
        q = T0
        for d in range(4):
            o(f"v_bfe_u32 v{q+d}, v0, {2*d}, 2"); o(f"v_mul_u32_u24 v{q+d}, 0x8001, v{q+d}")
            o(f"v_and_b32 v{q+d}, 0x10001, v{q+d}"); o(f"v_mul_u32_u24 v{q+d}, 0x3f80, v{q+d}")
        o(f"v_lshlrev_b32 v{q+4}, 4, v0"); o(f"ds_write_b128 v{q+4}, {vr(q,4)} offset:{LUT}")
        o(f"v_lshrrev_b32 v{q}, 3, v0"); o(f"v_and_b32 v{q+1}, 7, v0")
        o(f"v_bfe_u32 v{q+2}, v0, 5, 1"); o(f"v_bfe_u32 v{q+3}, v0, 6, 1"); o(f"v_lshl_or_b32 v{q+2}, v{q+2}, 1, v{q+3}")
        o(f"v_lshrrev_b32 v{q+3}, 7, v0"); o(f"v_lshl_or_b32 v{q+2}, v{q+3}, 2, v{q+2}")
        o(f"v_cmp_eq_u32 vcc, v{q+2}, v{q+1}"); o(f"v_cmp_gt_u32 s[{sHM}:{sHM+1}], {NA}, v{q}"); o(f"v_mov_b32 v{q+6}, 0x3f80"); o(f"v_mov_b32 v{q+7}, 0")
        o(f"s_and_b64 vcc, vcc, s[{sHM}:{sHM+1}]")
        o(f"v_and_b32 v{q+2}, 3, v{q}"); o(f"v_lshlrev_b32 v{q+2}, 4, v{q+2}"); o(f"v_cndmask_b32 v{q+6}, 0, v{q+6}, vcc")
        o(f"v_lshlrev_b64 {vr(q+6,2)}, v{q+2}, {vr(q+6,2)}")
        o(f"v_min_u32 v{q}, {NA}, v{q}"); o(f"v_mul_u32_u24 v{q}, 80, v{q}"); o(f"v_lshl_add_u32 v{q}, v{q+1}, 3, v{q}")
        o(f"ds_write_b64 v{q}, {vr(q+6,2)} offset:{IDT}")
    o(f"s_cmp_eq_u32 s{sFIRST}, 1"); o("s_cbranch_scc1 G1")
    o("s_waitcnt lgkmcnt(0)")
    ctrl()
    o("s_branch G1D")
    lab("G1")
    for mt in range(2):
        for s in range(8): o(f"ds_read_b128 {vr(GV+32*mt+4*s,4)}, v{vXA} offset:{mt*2080 + 16*s}")
        if mt == 0: o("s_waitcnt lgkmcnt(8)")
    lt = capture(lut); ct = capture(ctrl)
    for x in lt[:18]: o(x)
    o(f"s_waitcnt vmcnt({4*NS+2}) lgkmcnt(9)")
    acc = [ACC + 32, ACC + 48]
    interleave([m32(acc[0], GV+4*s, ACC+4*s, None if s == 0 else acc[0]) for s in range(8)], lt[18:] + ct[:16], 5)
    o("s_waitcnt lgkmcnt(5)")
    def cv(mt): return [f"v_cvt_pk_bf16_f32 v{AF+8*mt+r//2}, v{acc[mt]+r}, v{acc[mt]+r+1}" for r in range(0, 16, 2)]
    interleave([m32(acc[1], GV+32+4*s, ACC+4*s, None if s == 0 else acc[1]) for s in range(8)],
               ct[16:] + cv(0) + [f"v_mov_b32 v{acc[0]+r}, 0" for r in range(16)], 5)
    for r in range(32): o(f"v_mov_b32 v{ACC+r}, 0")
    for x in cv(1): o(x)
    for r in range(16): o(f"v_mov_b32 v{acc[1]+r}, 0")
    if STAMP:
        o("s_getreg_b32 s94, hwreg(HW_REG_HW_ID)"); o("s_getreg_b32 s100, hwreg(HW_REG_XCC_ID)"); o("s_and_b32 s94, s94, 0xffff"); o("s_lshl_b32 s100, s100, 16"); o("s_or_b32 s94, s94, s100"); o(f"v_writelane_b32 v{VST[0]}, s94, 3")
    lab("G1D")
    o(f"v_and_b32 v{MQ}, 0xffff, v{PT}"); o(f"v_lshrrev_b32 v{MQ+1}, 16, v{PT}")
    xstamp("g1_done"); stamp(4)
    o(f"s_waitcnt vmcnt({4*(NS-1)}) lgkmcnt(0)"); xstamp("t0_landed"); o("s_barrier")
    o(f"ds_read_b128 {vr(SEL,4)}, v{MQ}"); o(f"ds_read_b128 {vr(SEL+4,4)}, v{MQ+1}")
    o(f"ds_read_b128 {vr(EF,4)}, v{vEA}")
    for j in range(4): o(f"ds_read_b128 {vr(TF+4*j,4)}, v{vTA} offset:{16*j}")
    o(f"s_setprio {OPT.get('lp', 2)}")
    if OPT.get('young'):
        o("s_cmp_lt_u32 s2, 256"); o("s_cbranch_scc1 OLD"); o(f"s_setprio {OPT['young']}"); lab("OLD")
    if OPT.get('fakec'): o(f"v_lshrrev_b32 v{vTC}, 2, v{vWF}"); o(f"v_add_u32 v{vTC}, s{sMR}, v{vTC}")
    stamp(6); stamp(8, "s_memtime")
    bodies = [body(b) for b in range(4)]
    if not OPT.get('noval') and not OPT.get('fakec'): check_hazards(sum(bodies, []) + ["s_branch LOOP"])
    emit(body(0, peel=True))
    b1 = bodies[1][:bodies[1].index("ENT1:")]
    o("s_nop 7")
    emit([x for x in b1 if not x.startswith(("v_mfma", "s_sub", "s_cbranch"))])
    o("s_branch ENT1")
    lab("TOOBIG")
    o(f"s_mov_b32 s{sLIM}, {LOWLIM}"); o(f"v_mov_b32 v{a}, 0")
    o("s_waitcnt lgkmcnt(0)"); o("s_barrier")
    o(f"ds_write_b32 v{b_}, v{a} offset:{CNT}")
    o("s_waitcnt lgkmcnt(0)"); o("s_barrier")
    o("s_branch REMASK")
    lab("LOOP")
    emit(sum(bodies, []))
    if OPT.get('pp', '99,8,4') != '0' and not G8:
        th = [int(x) for x in OPT.get('pp', '99,8,4').split(',')]
        o(f"s_add_u32 s{sT0}, s{sCNT}, s{sRS}")
        for k, v in enumerate(th):
            if v < 99: o(f"s_cmp_lt_u32 s{sT0}, {v}"); o("s_cbranch_scc0 LOOP"); o(f"s_setprio {2-k}")
    o("s_branch LOOP")
    assert len(set(HEAD.values())) == 1
    WU = TF; x = AF
    def fin(p):
        d = ACC + 32 * p; r = []
        for k in range(16): r.append(f"v_add_f32 v{d+k}, s{sEPS}, v{d+k}")
        for k in range(16): r.append(f"v_rcp_f32 v{d+k}, v{d+k}")
        for k in range(16): r.append(f"v_mul_f32 v{d+16+k}, v{d+k}, v{d+16+k}")
        return r
    def unp(p): return sum(([f"v_lshlrev_b32 v{ACC+32*p+2*k}, 16, v{x+8*p+k}", f"v_and_b32 v{ACC+32*p+2*k+1}, s{sT1}, v{x+8*p+k}"] for k in range(8)), [])
    def post(p):
        r = []
        for k in range(8):
            z = ACC + 32*p + 16 + 2*k
            r += [f"v_max_f32 v{z}, 0, v{z}", f"v_max_f32 v{z+1}, 0, v{z+1}", f"v_add_f32 v{z}, v{z}, v{z-16}", f"v_add_f32 v{z+1}, v{z+1}, v{z-15}",
                  f"v_cvt_pk_bf16_f32 v{x+8*p+k}, v{z}, v{z+1}"]
        return r
    def st(p): return [f"s_mov_b64 exec, {((1 << (NA - p)) - 1):#x}", f"s_mov_b32 exec_hi, exec_lo"] + \
        [f"buffer_store_dwordx4 {vr(x+8*p+4*k,4)}, {vr(IX[p],2)}, s[{sO}:{sO+3}], 0 idxen offen offset:{16*k} {OPT.get('outpol', '').replace('+', ' ')}" for k in range(2)] + ["s_mov_b64 exec, -1"]
    assert RN - NA == NA - 1
    for p in (1, 0):
        q = 1 - p; Gc = GV + 32 * q
        lab(f"TAIL{p}")
        stamp(7); stamp(11, "s_memtime")
        if STAMP: o(f"v_writelane_b32 v{VST[0]}, s{sNT}, 12")
        o(f"ds_read_b128 {vr(T0,4)}, v{MQ}"); o(f"ds_read_b128 {vr(T0+4,4)}, v{MQ+1}")
        o(f"s_cmp_lg_u32 s{sMORE}, 0"); o(f"s_cbranch_scc1 TAILM{p}")
        o("s_waitcnt lgkmcnt(0)")
        for ins in wload(WU, WF_U): o(ins)
        for s in range(8): o(f"ds_read_b128 {vr(GV+32*p+4*s,4)}, v{vXA} offset:{p*2080+16*s}")
        for mt in range(2):
            for k in range(2): o(f"ds_read_b128 {vr(x+8*mt+4*k,4)}, v{vXR} offset:{mt*2080+16*k}")
        o(f"v_and_b32 v{IX[0]}, 31, v0"); o(f"v_and_b32 v{IX[0]+1}, 0xe0, v0"); o(f"v_add_u32 v{IX[0]}, s{sBASE}, v{IX[0]}")
        o(f"v_add_u32 v{IX[1]}, {NA}, v{IX[0]}"); o(f"v_mov_b32 v{IX[1]+1}, v{IX[0]+1}")
        o(f"s_mov_b32 s{sT1}, 0xffff0000")
        vs = [i for i, _ in vstream(Gc, Gc + 16)[HEAD[0]:]]
        for ins in vs: o(ins)
        o("s_nop 0")
        interleave(zphase(Gc, q), fin(p), 8)
        for s in range(8): o(f"ds_read_b128 {vr(Gc+4*s,4)}, v{vXA} offset:{q*2080+16*s}")
        o("s_waitcnt vmcnt(0) lgkmcnt(8)")
        interleave([m32(ACC+32*p+16, WU+4*s, GV+32*p+4*s, ACC+32*p+16) for s in range(8)], fin(q), 6)
        o("s_waitcnt lgkmcnt(0)"); o("s_nop 0")
        interleave([m32(ACC+32*q+16, WU+4*s, Gc+4*s, ACC+32*q+16) for s in range(8)], unp(p) + post(p) + unp(q), 7)
        for ins in st(p) + post(q) + st(q): o(ins)
        if p == 1: o("s_branch K2_FIN")
    lab("K2_FIN")
    stamp_out(9, GV, sW, 1)
    lab("K2_END")
    o("s_endpgm")
    for p in (1, 0):
        Gc = GV + 32 * (1 - p)
        lab(f"TAILM{p}")
        for ins, _ in vstream(Gc, Gc + 16)[HEAD[0]:]: o(ins)
        o("s_waitcnt lgkmcnt(0)")
        for m in zphase(Gc, 1 - p): o(m)
        if p == 1: o("s_branch NEXTROUND")
    lab("NEXTROUND")
    for i in range(4):
        o(f"v_lshrrev_b32 v{vTC}, 19, v{SEG+i}"); o(f"v_min_u32 v{vTC}, s{sLIM}, v{vTC}")
        o(f"v_add_u32 v{SEG+i}, v{SEG+i}, v{vTC}"); o(f"v_lshlrev_b32 v{vTC}, 19, v{vTC}"); o(f"v_sub_u32 v{SEG+i}, v{SEG+i}, v{vTC}")
    o(f"s_mov_b32 s{sFIRST}, 0"); o(f"s_mov_b32 s{sLIM}, 16")
    o("s_waitcnt vmcnt(0) lgkmcnt(0)"); o("s_barrier")
    o("s_branch ROUND")

def kd(name, nv, ns):
    L.append(".p2align 6")
    L.append(f".amdhsa_kernel {name}")
    for k, v in (("next_free_vgpr", nv), ("next_free_sgpr", ns), ("accum_offset", (nv + 3) // 4 * 4), ("group_segment_fixed_size", 0),
                 ("kernarg_size", 96), ("user_sgpr_count", 2), ("user_sgpr_kernarg_segment_ptr", 1), ("system_sgpr_workgroup_id_x", 1),
                 ("float_denorm_mode_32", 3)):
        L.append(f"  .amdhsa_{k} {v}")
    L.append(".end_amdhsa_kernel")

hdr = [l for l in open(f"cdna_kernels/{NAME}.s.ref").read().splitlines() if l.startswith(";") and "@launch" not in l
       and "Override launch" not in l and "grid=ceil" not in l]
L += hdr
L.append(f"; @launch kernel=gsort_kernel grid=({K1_GRID},1,1) block=(512,1,1) lds={K1_LDS}")
L.append(f"; @launch kernel=gmain_kernel grid=(256,1,1) block=(512,1,1) lds={NB+2*GS}" if G8 else f"; @launch kernel=gmain_kernel grid=(512,1,1) block=(256,1,1) lds={K2_LDS}")
L.append('.amdgcn_target "amdgcn-amd-amdhsa--gfx950"'); L.append(".text")
(gen_k1a if OPT.get('k1') == 'a' else gen_k1)(); gen_k2()
lab("CODE_END")
L.append('.section .rodata,"a"')
kd("gsort_kernel", 256 if STAMP else 252, 102 if STAMP else 80); kd("gmain_kernel", 256 if STAMP else NVGPR, 102)
if STAMP: L.append("; STAMPS " + repr(NAMES))
open(sys.argv[1], "w").write("\n".join(L) + "\n")
print("vgprs", NVGPR, "lds", K2_LDS, "lines", len(L), file=sys.stderr)
```

```python
import sys, struct, re

N = 25000; E = 400000; RN = 49; NR = 511; CH = 1600; NCH = 250
WS_REC = 0; WS_OFF = 0x310000; OROW = 1152; WS_WF = 0x3c0000; WS_TAB = 0x400000; WS_SIZE = 0x4000000
WF_A = 0; WF_U = 0x8000; WF_C = 0x10000; NA = 25
NLOG2E = struct.unpack('<I', struct.pack('<f', -1.4426950408889634))[0]
EPS = struct.unpack('<I', struct.pack('<f', 1e-6))[0]
NAME = "standalone__edge_featured_mpnn_gatedgcn__graph"
OPT = dict(k1='a', tabpol='sc1', recpol='sc1', touch='2', tsh='19', bon='4', lp='3', pp='23,15,7')
OPT.update(a.split('=') for a in sys.argv[2:])
STAMP = int(OPT.get('stamp', 0))
WS_TAB = int(OPT.get('tab', hex(WS_TAB)), 0)
WS_STAMP = 0x3800000
L = []
def o(s): L.append("    " + s)
def lab(s): L.append(s + ":")
def vr(b, n): return f"v[{b}:{b+n-1}]"
VST = [60]
NAMES = {}
def stamp(i, ins="s_memrealtime", name=None):
    if STAMP:
        o(f"{ins} s[100:101]"); o("s_waitcnt lgkmcnt(0)"); o(f"v_writelane_b32 v{VST[0]}, s100, {i}")
def xstamp(name):
    if STAMP:
        NAMES[name] = 16 + len(NAMES); stamp(NAMES[name])
def stamp_out(n, reg, srdn, kern):
    if not STAMP: return
    o("s_mov_b64 exec, -1")
    stamp(n)
    o(f"v_lshlrev_b32 v{reg}, 2, v0")
    if kern and int(OPT.get('g8', 0)): o("s_and_b32 s63, s3, 1"); o("s_lshl_b32 s63, s63, 8"); o("s_add_u32 s2, s2, s63")
    o(f"s_lshl_b32 s63, s2, 11"); o(f"s_add_u32 s63, s63, {WS_STAMP + kern*0x100000:#x}")
    o(f"buffer_store_dword v{VST[0]}, v{reg}, s[{srdn}:{srdn+3}], s63 offen")
def srd(d, lo, size, stride=0):
    o(f"s_mov_b32 s{d}, s{lo}"); o(f"s_and_b32 s{d+1}, s{lo+1}, 0xffff")
    if stride: o(f"s_or_b32 s{d+1}, s{d+1}, {stride << 16:#x}")
    o(f"s_mov_b32 s{d+2}, {size:#x}"); o(f"s_mov_b32 s{d+3}, 0x20000")
def scan64(v):
    for d in ("row_shr:1", "row_shr:2", "row_shr:4", "row_shr:8"):
        o("s_nop 1"); o(f"v_add_u32_dpp v{v}, v{v}, v{v} {d} row_mask:0xf bank_mask:0xf bound_ctrl:0")
    o("s_nop 1"); o(f"v_add_u32_dpp v{v}, v{v}, v{v} row_bcast:15 row_mask:0xa bank_mask:0xf")
    o("s_nop 1"); o(f"v_add_u32_dpp v{v}, v{v}, v{v} row_bcast:31 row_mask:0xc bank_mask:0xf")

def m32(d, a, b, c): return f"v_mfma_f32_32x32x16_bf16 {vr(d,16)}, {vr(a,4)}, {vr(b,4)}, " + ("0" if c is None else vr(c,16))
K1_GRID = 256
OG = 4224
K1_W = 16896; K1_X = K1_W + 65536; K1_S = K1_X + 4 * 8320; K1_LDS = K1_S + 8 * 4608
def gen_k1():
    L.append(".globl gsort_kernel"); L.append(".p2align 8"); L.append(".type gsort_kernel,@function")
    lab("gsort_kernel"); VST[0] = 255
    pol = OPT.get('tabpol', '').replace('+', ' '); rpol = OPT.get('recpol', '').replace('+', ' ')
    stamp(0)
    o("s_load_dwordx8 s[4:11], s[0:1], 0")
    o("s_load_dwordx8 s[40:47], s[0:1], 32")
    o("s_load_dwordx2 s[48:49], s[0:1], 64")
    o("s_load_dwordx2 s[12:13], s[0:1], 88")
    o(f"s_cmp_ge_u32 s2, {K1_GRID}"); o("s_cbranch_scc1 K1_END")
    o("v_lshrrev_b32 v2, 6, v0"); o("v_lshlrev_b32 v1, 2, v0")
    o("s_and_b32 s36, s2, 7"); o("s_lshl_b32 s36, s36, 5"); o("s_lshr_b32 s35, s2, 3"); o("s_add_u32 s36, s36, s35")
    o("v_readfirstlane_b32 s33, v2")
    o("v_mov_b32 v2, 0"); o("ds_write_b32 v1, v2")
    o(f"s_mul_i32 s3, s2, {CH*4}"); o("s_mul_i32 s37, s36, 98")
    o(f"s_cmp_lt_u32 s2, {NCH}"); o(f"s_cselect_b32 s14, {CH//4}, 0")
    o("v_cmp_gt_u32 vcc, s14, v0")
    o("v_lshlrev_b32 v40, 4, v0")
    o("v_bfe_u32 v56, v0, 4, 1"); o("v_bfe_u32 v57, v0, 5, 1"); o("v_and_b32 v20, 63, v0")
    o("s_mov_b32 s68, 0"); o("v_lshlrev_b32 v42, 4, v20")
    o("v_bfe_u32 v43, v0, 4, 2"); o("v_lshlrev_b32 v43, 6, v43"); o("v_xor_b32 v43, v43, v40")
    o("v_lshl_add_u32 v58, v57, 3, v56")
    o("s_lshr_b32 s14, s33, 2"); o("s_lshl_b32 s14, s14, 4"); o("s_and_b32 s15, s33, 3"); o("s_lshl1_add_u32 s14, s15, s14")
    o("v_add_u32 v58, s14, v58"); o("v_add_u32 v54, s37, v58")
    o("v_and_b32 v55, 15, v0"); o("v_lshlrev_b32 v59, 3, v56"); o("v_xor_b32 v55, v55, v59"); o("v_lshlrev_b32 v55, 4, v55")
    o("s_mul_i32 s38, s33, 1040"); o(f"s_add_u32 s38, s38, {K1_X}")
    o("s_lshl_b32 s39, s33, 10"); o(f"s_add_u32 s39, s39, {K1_W}")
    o("s_mov_b32 m0, s38")
    o("s_waitcnt lgkmcnt(0)")
    srd(60, 4, N, 256)
    def xd(t):
        if t: o(f"s_add_u32 m0, s38, {t*8320}"); o("v_add_u32 v54, 32, v54")
        if t == 3: o("v_cmp_gt_u32 vcc, 2, v58"); o("v_mov_b32 v59, 0xffff"); o("s_nop 0"); o("v_cndmask_b32 v54, v59, v54, vcc")
        o("buffer_load_dwordx4 v[54:55], s[60:63], 0 idxen offen lds")
    xd(0); xd(1)
    srd(20, 10, E*4); srd(16, 8, E*4)
    o("s_and_saveexec_b64 s[28:29], vcc"); o("s_mov_b64 s[28:29], exec"); o("s_cbranch_execz K1_PREP")
    o("buffer_load_dwordx4 v[4:7], v40, s[20:23], s3 offen")
    o("buffer_load_dwordx4 v[8:11], v40, s[16:19], s3 offen")
    lab("K1_A")
    o("s_mov_b64 exec, -1")
    TCH = int(OPT.get('touch', 0)); SPL = int(OPT.get('split', 0))
    if TCH:
        srd(24, 12, WS_SIZE)
        o("s_lshl_b32 s14, s37, 9"); o(f"s_add_u32 s14, s14, {WS_TAB:#x}"); o("v_mov_b32 v248, s14"); o("s_lshl_b32 s14, s3, 1")
        o("v_writelane_b32 v248, s14, 1"); o(f"s_mov_b32 s14, {WS_OFF:#x}"); o("v_writelane_b32 v248, s14, 2")
        o("buffer_load_dword v249, v248, s[24:27], 0 offen")
    if not OPT.get('early'): o("s_barrier")
    srd(52, 42, 32768); srd(56, 48, 32768)
    for m in range(2):
        for i in range(4):
            o(f"s_add_u32 m0, s39, {m*32768+i*8192}"); o(f"s_movk_i32 s14, {i*8192}"); o(f"buffer_load_dwordx4 v43, s[{52+4*m}:{55+4*m}], s14 offen lds")
    xd(2); xd(3)
    if OPT.get('early'): o("s_barrier")
    def addrs():
        srd(24, 12, WS_SIZE)
        o("v_bfe_u32 v60, v0, 2, 2"); o("v_lshl_add_u32 v60, v57, 6, v60"); o("v_lshlrev_b32 v60, 8, v60")
        o("v_and_b32 v61, 3, v0"); o("v_lshl_add_u32 v60, v61, 3, v60"); o("v_lshl_add_u32 v60, v56, 5, v60")
        o("s_and_b32 s30, s33, 3"); o("v_bfe_u32 v61, v0, 2, 2"); o("v_xor_b32 v61, s30, v61"); o("v_lshl_add_u32 v60, v61, 6, v60"); o(f"v_add_u32 v60, {K1_W}, v60")
        o("v_bfe_u32 v61, v0, 1, 2"); o("v_lshl_or_b32 v61, v56, 2, v61"); o("v_mul_u32_u24 v61, 1040, v61")
        o("v_and_b32 v62, 1, v0"); o("v_bfe_u32 v63, v0, 3, 1"); o("v_lshl_or_b32 v63, v63, 1, v62"); o("v_lshl_add_u32 v61, v63, 8, v61")
        o("s_lshr_b32 s32, s33, 2"); o("s_mul_i32 s14, s32, 8320"); o(f"s_add_u32 s14, s14, {K1_X}")
        o("v_xor_b32 v62, v62, v57"); o("v_lshl_add_u32 v61, v62, 7, v61"); o("v_add_u32 v61, s14, v61")
        o("s_mul_i32 s14, s33, 4608"); o(f"s_add_u32 s14, s14, {K1_S}")
        o("v_and_b32 v62, 31, v0"); o("v_mul_u32_u24 v62, 144, v62"); o("v_lshl_add_u32 v62, v57, 6, v62"); o("v_add_u32 v62, s14, v62")
        o("v_lshrrev_b32 v58, 3, v20"); o("v_and_b32 v59, 7, v0"); o("v_lshlrev_b32 v59, 4, v59")
        o("v_mul_u32_u24 v63, 144, v58"); o("v_add3_u32 v63, v63, v59, s14")
        o("s_lshl_b32 s14, s32, 5"); o("s_add_u32 s14, s14, s37"); o("s_lshl_b32 s14, s14, 9"); o("s_lshl_b32 s30, s30, 7"); o("s_add_u32 s14, s14, s30")
        o("v_lshl_add_u32 v59, v58, 9, v59"); o("v_add_u32 v59, s14, v59")
        o("s_lshl_b32 s31, s3, 1")
    addrs()
    o(f"s_mul_i32 s34, s2, {CH}")
    o("v_add_u32 v3, s34, v1"); o("v_mov_b32 v2, 1"); o(f"s_mov_b32 s15, {-RN}")
    o("v_lshlrev_b32 v20, 5, v20")
    o("s_mov_b64 exec, s[28:29]"); o("s_cbranch_execz K1_B")
    o(f"s_waitcnt vmcnt({10+TCH})"); stamp(1)
    for i in range(4):
        o(f"v_mul_u32_u24 v{12+i}, 21400, v{4+i}")
        o(f"v_lshrrev_b32 v{12+i}, 20, v{12+i}")
        o(f"v_mad_i32_i24 v{4+i}, v{12+i}, s15, v{4+i}")
        o(f"v_lshlrev_b32 v{12+i}, 2, v{12+i}")
        o(f"ds_add_rtn_u32 v{16+i}, v{12+i}, v2")
    lab("K1_B")
    o("s_mov_b64 exec, -1")
    o(f"s_add_u32 s12, s12, {WS_TAB:#x}"); o("s_addc_u32 s13, s13, 0"); srd(16, 12, N * 512)
    o(f"s_mov_b32 s15, {NLOG2E:#x}")
    o(f"s_waitcnt vmcnt({2*SPL}) lgkmcnt(0)"); o("s_barrier"); stamp(3)
    lab("K1_J")
    WF_ = 64; XF_ = 128; AC = [160, 192]
    for m in range(2):
        for s in range(8):
            for jj in range(2): o(f"ds_read_b64_tr_b16 v[{WF_+32*m+4*s+2*jj}:{WF_+32*m+4*s+2*jj+1}], v60 offset:{m*32768+s*2048+jj*1024}")
            if m == 0: o(f"ds_read_b128 {vr(XF_+4*s,4)}, v61 offset:{16*s}")
    o("ds_read_b128 v[24:27], v20"); o("ds_read_b128 v[28:31], v20 offset:16")
    def post(t):
        a = AC[t]; r = []
        for k in range(16): r.append(f"v_mul_f32 v{a+k}, s15, v{a+k}")
        for k in range(16): r.append(f"v_cvt_pk_bf16_f32 v{224+k}, v{a+2*k}, v{a+2*k+1}")
        r += [f"ds_write_b128 v62, {vr(224+4*c,4)} offset:{16*c}" for c in range(4)]
        r += [f"ds_read_b128 {vr(a+4*k,4)}, v63 offset:{k*8*144}" for k in range(4)]
        return r
    def stores(t):
        r = []
        for k in range(4):
            r += [f"s_waitcnt lgkmcnt({3-k})", f"buffer_store_dwordx4 {vr(AC[t]+4*k,4)}, v59, s[16:19], 0 offen {pol}", "v_add_u32 v59, 0x1000, v59"]
        return r
    def recs():
        for i in range(4):
            o(f"v_cmp_lt_u32 vcc, {NA-1}, v{4+i}"); o(f"v_mul_u32_u24 v22, 83, v{8+i}"); o("v_lshrrev_b32 v22, 16, v22")
            o(f"v_cndmask_b32 v23, 0, {NA}, vcc"); o(f"v_sub_u32 v23, v{4+i}, v23")
            o(f"v_lshl_or_b32 v{44+2*i}, v23, 16, v{8+i}")
            o("v_cndmask_b32 v23, 0, 32, vcc"); o("v_or_b32 v22, v22, v23")
            o(f"v_lshl_add_u32 v{45+2*i}, v22, 26, v3")
            if i < 3: o("v_add_u32 v3, 1, v3")
    def scan():
        o("v_mov_b32 v33, v24")
        for j in range(2, 8): o(f"v_add_u32 v{32+j}, v{31+j}, v{23+j}")
        o("v_add_u32 v21, v39, v31"); o("v_mov_b32 v22, v21")
        scan64(21)
        o("v_sub_u32 v32, v21, v22")
        for j in range(1, 8): o(f"v_add_u32 v{32+j}, v32, v{32+j}")
    o("s_waitcnt lgkmcnt(15)")
    interleave([m32(AC[0], WF_+4*s, XF_+4*s, None if s == 0 else AC[0]) for s in range(8)], capture(recs), 5)
    o("s_waitcnt vmcnt(0) lgkmcnt(0)")
    if SPL: o("s_barrier")
    sc = capture(scan); p0 = post(0)
    q = sc + p0[:24]
    for s in range(8):
        o(m32(AC[0]+16, WF_+32+4*s, XF_+4*s, None if s == 0 else AC[0]+16))
        o(f"ds_read_b128 {vr(XF_+4*s,4)}, v61 offset:{2*8320+16*s}")
        for _ in range(5):
            if q: o(q.pop(0))
    lab("K1_G")
    o("s_waitcnt lgkmcnt(0)")
    mf = [m32(AC[1], WF_+4*s, XF_+4*s, None if s == 0 else AC[1]) for s in range(8)] + [m32(AC[1]+16, WF_+32+4*s, XF_+4*s, None if s == 0 else AC[1]+16) for s in range(8)]
    assert len(q) >= 8
    look = ["ds_write_b128 v20, v[32:35] offset:2048", "ds_write_b128 v20, v[36:39] offset:2064"] + [f"ds_read_b32 v{4+i}, v{12+i} offset:2048" for i in range(4)]
    q = q + p0[24:] + [None] * 5 + stores(0) + look
    for m in mf:
        o(m)
        for _ in range(5):
            if q:
                x = q.pop(0)
                if x: o(x)
    assert not q
    o("v_add_u32 v59, 0x4000, v59"); o("v_cmp_gt_u32 vcc, 2, v58")
    o("s_mov_b64 exec, s[28:29]")
    o("s_waitcnt lgkmcnt(0)")
    for i in range(4):
        o(f"v_add_lshl_u32 v{4+i}, v{4+i}, v{16+i}, 3"); o(f"ds_write_b64 v{4+i}, v[{44+2*i}:{45+2*i}] offset:4096")
    o("s_mov_b64 exec, -1")
    for x in post(1): o(x)
    stamp(4)
    o("s_cmp_lt_u32 s33, 4"); o("s_cbranch_scc1 K1_H")
    o("s_mov_b64 exec, vcc")
    for x in stores(1)[:2]: o(x)
    o("s_mov_b64 exec, -1")
    o("s_cmp_lg_u32 s68, 0"); o("s_cbranch_scc1 K1_PREP2")
    o("s_cmp_lg_u32 s33, 6"); o("s_cbranch_scc1 K1_I")
    for j in range(8): o(f"v_lshl_add_u32 v{24+j}, v{24+j}, 19, v{32+j}"); o(f"v_add_u32 v{24+j}, s34, v{24+j}")
    o(f"v_mul_u32_u24 v41, {OG//16}, v20"); o("s_lshl_b32 s35, s36, 4"); o(f"s_add_u32 s35, s35, {WS_OFF:#x}"); o(f"s_add_u32 s30, s35, {OG}")
    o("buffer_store_dwordx4 v[24:27], v41, s[24:27], s35 offen"); o("buffer_store_dwordx4 v[28:31], v41, s[24:27], s30 offen")
    o("s_branch K1_I")
    lab("K1_H")
    for x in stores(1): o(x)
    lab("K1_I")
    o(f"v_cmp_gt_u32 vcc, {CH//2-512}, v0")
    o("s_waitcnt lgkmcnt(0)"); o("s_barrier")
    o(f"s_cmp_lt_u32 s2, {NCH}"); o("s_cbranch_scc0 K1_F")
    o("ds_read_b128 v[44:47], v40 offset:4096"); o("ds_read_b128 v[48:51], v40 offset:12288")
    o("s_add_u32 s30, s31, 8192")
    o("s_waitcnt lgkmcnt(1)")
    o(f"buffer_store_dwordx4 v[44:47], v40, s[24:27], s31 offen {rpol}")
    o("s_and_saveexec_b64 s[28:29], vcc"); o("s_cbranch_execz K1_F")
    o("s_waitcnt lgkmcnt(0)")
    o(f"buffer_store_dwordx4 v[48:51], v40, s[24:27], s30 offen {rpol}")
    lab("K1_F")
    stamp_out(2, 12, 24, 0)
    lab("K1_END")
    o("s_endpgm")
    lab("K1_PREP")
    o("s_cmp_ge_u32 s2, 68"); o("s_cbranch_scc1 K1_A")
    o("s_mov_b64 exec, -1")
    o("s_lshr_b32 s14, s2, 5")
    o("s_cmp_eq_u32 s14, 1"); o("s_cselect_b32 s40, s46, s40"); o("s_cselect_b32 s41, s47, s41"); o(f"s_cselect_b32 s68, 1.0, {NLOG2E:#x}")
    o("s_mov_b32 s66, 32768"); o("s_bfe_u32 s50, s2, 0x20003"); o("s_and_b32 s51, s2, 7"); o("s_mov_b32 s32, 14")
    o("s_cmp_eq_u32 s14, 2"); o("s_cselect_b32 s40, s44, s40"); o("s_cselect_b32 s41, s45, s41"); o("s_cselect_b32 s66, 4096, s66")
    o("s_cselect_b32 s50, s51, s50"); o("s_cselect_b32 s51, 0, s51"); o("s_cselect_b32 s32, 11, s32")
    o("s_mov_b32 s64, s40"); o("s_and_b32 s65, s41, 0xffff"); o("s_mov_b32 s67, 0x20000")
    o("s_lshl_b32 s50, s50, 6"); o("s_lshl_b32 s51, s51, 11"); o("s_add_u32 s50, s50, s51")
    o("v_and_b32 v4, 3, v0"); o("v_bfe_u32 v5, v0, 3, 2"); o("v_lshl_or_b32 v4, v5, 2, v4")
    o("v_bfe_u32 v5, v0, 2, 1"); o("v_lshl_or_b32 v4, v5, 4, v4")
    o("v_lshlrev_b32 v5, s32, v57"); o("v_lshl_add_u32 v4, v4, 1, v5"); o("v_add_u32 v4, s50, v4")
    for j in range(8): o(f"buffer_load_ushort v{240+j}, v4, s[64:67], 0 offen offset:{j*256}")
    o("s_branch K1_A")
    lab("K1_PREP2")
    o("s_lshl_b32 s14, s2, 10"); o(f"s_add_u32 s14, s14, {WS_WF:#x}")
    for j in range(8):
        o(f"v_lshlrev_b32 v{240+j}, 16, v{240+j}"); o(f"v_mul_f32 v{240+j}, s68, v{240+j}")
    for j in range(4): o(f"v_cvt_pk_bf16_f32 v{52+j}, v{240+2*j}, v{241+2*j}")
    o("buffer_store_dwordx4 v[52:55], v42, s[24:27], s14 offen")
    o("s_branch K1_I")

SM = int(OPT.get('sm', 0)); SMS = N * 128 + int(OPT.get('smpad', 0))
def gen_k1a():
    L.append(".globl gsort_kernel"); L.append(".p2align 8"); L.append(".type gsort_kernel,@function")
    lab("gsort_kernel"); VST[0] = 255
    pol = OPT.get('tabpol', '').replace('+', ' '); rpol = OPT.get('recpol', '').replace('+', ' ')
    if OPT.get('cpf'):
        o("s_getpc_b64 s[70:71]")
        o("v_lshlrev_b32 v236, 7, v0"); o("v_min_u32 v236, CODE_END-gsort_kernel-8, v236")
        o("v_mov_b32 v237, s71"); o("v_add_co_u32 v236, vcc, s70, v236"); o("s_nop 1"); o("v_addc_co_u32 v237, vcc, 0, v237, vcc")
        o("global_load_dword v238, v[236:237], off")
    stamp(0)
    o("s_load_dwordx8 s[4:11], s[0:1], 0")
    o("s_load_dwordx8 s[40:47], s[0:1], 32")
    o("s_load_dwordx2 s[48:49], s[0:1], 64")
    o("s_load_dwordx2 s[12:13], s[0:1], 88")
    o("s_load_dwordx2 s[72:73], s[0:1], 72")
    o(f"s_cmp_ge_u32 s2, {K1_GRID}"); o("s_cbranch_scc1 K1_END")
    o("v_lshrrev_b32 v2, 6, v0"); o("v_lshlrev_b32 v1, 2, v0")
    o("s_and_b32 s36, s2, 7"); o("s_lshl_b32 s36, s36, 5"); o("s_lshr_b32 s35, s2, 3"); o("s_add_u32 s36, s36, s35")
    o("v_readfirstlane_b32 s33, v2")
    o("v_mov_b32 v2, 0"); o("ds_write_b32 v1, v2")
    o(f"s_mul_i32 s3, s2, {CH*4}"); o("s_mul_i32 s37, s36, 98")
    o(f"s_cmp_lt_u32 s2, {NCH}"); o(f"s_cselect_b32 s14, {CH//5}, 0")
    o("v_cmp_gt_u32 vcc, s14, v0")
    o("v_lshlrev_b32 v40, 4, v0")
    o("v_bfe_u32 v56, v0, 4, 1"); o("v_bfe_u32 v57, v0, 5, 1"); o("v_and_b32 v20, 63, v0")
    o("s_mov_b32 s68, 0"); o("v_lshlrev_b32 v42, 4, v20")
    o("v_mul_u32_u24 v43, 20, v0")
    o("s_cmp_ge_u32 s33, 5")
    o("s_waitcnt lgkmcnt(0)")
    o("s_cbranch_scc1 K1_LOAD")
    srd(20, 10, E*4); srd(16, 8, E*4)
    o("s_and_saveexec_b64 s[28:29], vcc"); o("s_mov_b64 s[28:29], exec"); o("s_cbranch_execz K1_A")
    o("buffer_load_dwordx4 v[64:67], v43, s[20:23], s3 offen"); o("buffer_load_dword v68, v43, s[20:23], s3 offen offset:16")
    o("buffer_load_dwordx4 v[72:75], v43, s[16:19], s3 offen"); o("buffer_load_dword v76, v43, s[16:19], s3 offen offset:16")
    lab("K1_A")
    o("s_mov_b64 exec, -1")
    o("s_barrier")
    def addrs():
        srd(24, 12, WS_SIZE)
        o("v_bfe_u32 v60, v0, 2, 2"); o("v_lshl_add_u32 v60, v57, 6, v60"); o("v_lshlrev_b32 v60, 8, v60")
        o("v_and_b32 v61, 3, v0"); o("v_lshl_add_u32 v60, v61, 3, v60"); o("v_lshl_add_u32 v60, v56, 5, v60")
        o("s_and_b32 s30, s33, 3"); o("v_bfe_u32 v61, v0, 2, 2"); o("v_xor_b32 v61, s30, v61"); o("v_lshl_add_u32 v60, v61, 6, v60"); o(f"v_add_u32 v60, {K1_W}, v60")
        o("v_bfe_u32 v61, v0, 1, 2"); o("v_lshl_or_b32 v61, v56, 2, v61"); o("v_mul_u32_u24 v61, 1040, v61")
        o("v_and_b32 v62, 1, v0"); o("v_bfe_u32 v63, v0, 3, 1"); o("v_lshl_or_b32 v63, v63, 1, v62"); o("v_lshl_add_u32 v61, v63, 8, v61")
        o("s_lshr_b32 s32, s33, 2"); o("s_mul_i32 s14, s32, 8320"); o(f"s_add_u32 s14, s14, {K1_X}")
        o("v_xor_b32 v62, v62, v57"); o("v_lshl_add_u32 v61, v62, 7, v61"); o("v_add_u32 v61, s14, v61")
        o("s_mul_i32 s14, s33, 4608"); o(f"s_add_u32 s14, s14, {K1_S}")
        o("v_and_b32 v62, 31, v0"); o("v_mul_u32_u24 v62, 144, v62"); o("v_lshl_add_u32 v62, v57, 6, v62"); o("v_add_u32 v62, s14, v62")
        o("v_lshrrev_b32 v58, 3, v20"); o("v_and_b32 v59, 7, v0"); o("v_lshlrev_b32 v59, 4, v59")
        o("v_mul_u32_u24 v63, 144, v58"); o("v_add3_u32 v63, v63, v59, s14")
        if SM:
            o("s_lshl_b32 s14, s32, 5"); o("s_add_u32 s14, s14, s37"); o("s_lshl_b32 s14, s14, 7"); o(f"s_mul_i32 s69, s30, {SMS}")
            o("v_add_u32 v59, s14, v42")
        else:
            o("s_lshl_b32 s14, s32, 5"); o("s_add_u32 s14, s14, s37"); o("s_lshl_b32 s14, s14, 9"); o("s_lshl_b32 s30, s30, 7"); o("s_add_u32 s14, s14, s30")
            o("v_lshl_add_u32 v59, v58, 9, v59"); o("v_add_u32 v59, s14, v59")
        o("s_lshl_b32 s31, s3, 1")
    addrs()
    o(f"s_mul_i32 s34, s2, {CH}")
    o("v_lshrrev_b32 v3, 2, v43"); o("v_add_u32 v3, s34, v3"); o("v_mov_b32 v2, 1"); o(f"s_mov_b32 s15, {-RN}"); o(f"s_movk_i32 s38, {-64*RN}")
    o("v_lshlrev_b32 v20, 5, v20")
    o("s_mov_b64 exec, s[28:29]"); o("s_cbranch_execz K1_B")
    o("s_waitcnt vmcnt(2)"); stamp(1)
    for i in range(5):
        o(f"v_mul_u32_u24 v{80+i}, 21400, v{64+i}")
        o(f"v_lshrrev_b32 v{80+i}, 20, v{80+i}")
        o(f"v_mad_i32_i24 v{64+i}, v{80+i}, s15, v{64+i}")
        o(f"v_lshlrev_b32 v{80+i}, 2, v{80+i}")
        o(f"ds_add_rtn_u32 v{88+i}, v{80+i}, v2")
    o("s_waitcnt vmcnt(0)")
    for i in range(5):
        o(f"v_cmp_lt_u32 vcc, {NA-1}, v{64+i}")
        if int(OPT.get('rot', 0)):
            o(f"v_lshrrev_b32 v22, 8, v{80+i}"); o(f"v_mad_i32_i24 v22, v22, s38, v{72+i}"); o(f"v_add_u32 v23, {512*RN}, v22"); o("v_min_u32 v22, v22, v23")
            o("v_mul_u32_u24 v22, 83, v22")
        else: o(f"v_mul_u32_u24 v22, 83, v{72+i}")
        o("v_lshrrev_b32 v22, 16, v22")
        o(f"v_cndmask_b32 v23, 0, {NA}, vcc"); o(f"v_sub_u32 v23, v{64+i}, v23")
        o(f"v_lshl_or_b32 v{96+2*i}, v23, 16, v{72+i}")
        o("v_cndmask_b32 v23, 0, 32, vcc"); o("v_or_b32 v22, v22, v23")
        o(f"v_lshl_add_u32 v{97+2*i}, v22, 26, v3")
        if i < 4: o("v_add_u32 v3, 1, v3")
    lab("K1_B")
    o("s_mov_b64 exec, -1")
    o("s_waitcnt lgkmcnt(0)"); o("s_barrier")
    o("ds_read_b128 v[24:27], v20"); o("ds_read_b128 v[28:31], v20 offset:16")
    o("s_waitcnt lgkmcnt(0)")
    o("v_mov_b32 v33, v24")
    for j in range(2, 8): o(f"v_add_u32 v{32+j}, v{31+j}, v{23+j}")
    o("v_add_u32 v21, v39, v31"); o("v_mov_b32 v22, v21")
    scan64(21)
    o("v_sub_u32 v32, v21, v22")
    for j in range(1, 8): o(f"v_add_u32 v{32+j}, v32, v{32+j}")
    o("ds_write_b128 v20, v[32:35] offset:2048"); o("ds_write_b128 v20, v[36:39] offset:2064")
    o("s_mov_b64 exec, s[28:29]")
    for i in range(5): o(f"ds_read_b32 v{64+i}, v{80+i} offset:2048")
    o("s_waitcnt lgkmcnt(0)")
    for i in range(5):
        o(f"v_add_lshl_u32 v{64+i}, v{64+i}, v{88+i}, 3"); o(f"ds_write_b64 v{64+i}, v[{96+2*i}:{97+2*i}] offset:4096")
    o("s_mov_b64 exec, -1")
    o("s_waitcnt lgkmcnt(0)"); o("s_barrier"); stamp(3)
    lab("K1_J")
    if OPT.get('pfe'):
        srd(76, 6, E*32); o("v_lshlrev_b32 v250, 7, v0"); o("s_lshl_b32 s14, s2, 16"); o("v_add_u32 v250, s14, v250")
        o("buffer_load_dword v251, v250, s[76:79], 0 offen " + OPT['pfe'].replace('p', ''))
    WF_ = 64; XF_ = 128; AC = [160, 192]
    o("ds_read_b128 v[44:47], v40 offset:4096"); o("ds_read_b128 v[48:51], v40 offset:12288")
    o(f"v_cmp_gt_u32 vcc, {CH//2-512}, v0")
    for m in range(2):
        for s in range(8):
            for jj in range(2): o(f"ds_read_b64_tr_b16 v[{WF_+32*m+4*s+2*jj}:{WF_+32*m+4*s+2*jj+1}], v60 offset:{m*32768+s*2048+jj*1024}")
        if m == 0:
            for s in range(8): o(f"ds_read_b128 {vr(XF_+4*s,4)}, v61 offset:{16*s}")
    o(f"s_add_u32 s12, s12, {WS_TAB:#x}"); o("s_addc_u32 s13, s13, 0")
    if SM: o("s_add_u32 s12, s12, s69"); o("s_addc_u32 s13, s13, 0")
    srd(16, 12, N * (128 if SM else 512))
    o(f"s_mov_b32 s15, {NLOG2E:#x}")
    def post(t):
        a = AC[t]; r = []
        for k in range(16): r.append(f"v_mul_f32 v{a+k}, s15, v{a+k}")
        for k in range(16): r.append(f"v_cvt_pk_bf16_f32 v{224+k}, v{a+2*k}, v{a+2*k+1}")
        r += [f"ds_write_b128 v62, {vr(224+4*c,4)} offset:{16*c}" for c in range(4)]
        r += [f"ds_read_b128 {vr(a+4*k,4)}, v63 offset:{k*8*144}" for k in range(4)]
        return r
    def stores(t):
        r = []
        for k in range(4):
            r += [f"s_waitcnt lgkmcnt({3-k})", f"buffer_store_dwordx4 {vr(AC[t]+4*k,4)}, v59, s[16:19], 0 offen {pol}", f"v_add_u32 v59, {0x400 if SM else 0x1000:#x}, v59"]
        return r
    o("s_waitcnt lgkmcnt(15)")
    o(f"s_cmp_lt_u32 s2, {NCH}"); o("s_cbranch_scc0 K1_E")
    o("s_add_u32 s30, s31, 8192")
    o(f"buffer_store_dwordx4 v[44:47], v40, s[24:27], s31 offen {rpol}")
    o("s_and_saveexec_b64 s[28:29], vcc"); o("s_cbranch_execz K1_E")
    o(f"buffer_store_dwordx4 v[48:51], v40, s[24:27], s30 offen {rpol}")
    lab("K1_E"); o("s_mov_b64 exec, -1")
    for s in range(8): o(m32(AC[0], WF_+4*s, XF_+4*s, None if s == 0 else AC[0]))
    o("s_waitcnt lgkmcnt(0)")
    for s in range(8):
        o(m32(AC[0]+16, WF_+32+4*s, XF_+4*s, None if s == 0 else AC[0]+16))
        o(f"ds_read_b128 {vr(XF_+4*s,4)}, v61 offset:{2*8320+16*s}")
    o("s_cmp_lg_u32 s68, 0"); o("s_cbranch_scc1 K1_PREP2")
    o("s_cmp_eq_u32 s33, 4"); o("s_cbranch_scc1 K1_OFF")
    lab("K1_G")
    o("s_waitcnt lgkmcnt(0)")
    mf = [m32(AC[1], WF_+4*s, XF_+4*s, None if s == 0 else AC[1]) for s in range(8)] + [m32(AC[1]+16, WF_+32+4*s, XF_+4*s, None if s == 0 else AC[1]+16) for s in range(8)]
    q = post(0) + [None] * 6 + stores(0)
    for m in mf:
        o(m)
        for _ in range(5):
            if q:
                x = q.pop(0)
                if x: o(x)
    assert not q
    o(f"v_add_u32 v59, {0x1000 if SM else 0x4000:#x}, v59"); o("v_cmp_gt_u32 vcc, 2, v58")
    for x in post(1): o(x)
    stamp(4)
    o("s_cmp_lt_u32 s33, 4"); o("s_cbranch_scc1 K1_H")
    o("s_mov_b64 exec, vcc")
    for x in stores(1)[:2]: o(x)
    o("s_branch K1_F")
    lab("K1_H")
    for x in stores(1): o(x)
    lab("K1_F")
    if OPT.get('touch') == '4':
        o("s_mov_b64 exec, -1"); o("s_cmp_lg_u32 s33, 7"); o("s_cbranch_scc1 K1_END")
        o("v_lshl_add_u32 v250, v20, 5, s35"); o(f"v_lshlrev_b32 v250, 19, v250")
        srd(76, 6, E*32); o("buffer_load_dword v249, v250, s[76:79], 0 offen")
        srd(76, 72, N*256); o("buffer_load_dword v249, v250, s[76:79], 0 offen")
        o("buffer_load_dword v249, v250, s[16:19], 0 offen"); o("s_mov_b32 s26, 0x400000"); o("buffer_load_dword v249, v250, s[24:27], 0 offen")
    stamp_out(2, 12, 24, 0)
    lab("K1_END")
    o("s_endpgm")
    lab("K1_OFF")
    for j in range(8): o(f"v_lshl_add_u32 v{24+j}, v{24+j}, 19, v{32+j}"); o(f"v_add_u32 v{24+j}, s34, v{24+j}")
    o(f"v_mul_u32_u24 v41, {OG//16}, v20"); o("s_lshl_b32 s35, s36, 4"); o(f"s_add_u32 s35, s35, {WS_OFF:#x}"); o(f"s_add_u32 s30, s35, {OG}")
    o("buffer_store_dwordx4 v[24:27], v41, s[24:27], s35 offen"); o("buffer_store_dwordx4 v[28:31], v41, s[24:27], s30 offen")
    o("s_branch K1_G")
    lab("K1_LOAD")
    nb0 = int(OPT.get('k1a', 0))
    nb = int(OPT.get('k1b', 24))
    o("s_cmp_eq_u32 s33, 7"); o("s_cbranch_scc1 K1_LX")
    o("s_cmp_eq_u32 s33, 6"); o("s_cselect_b32 s42, s48, s42"); o("s_cselect_b32 s43, s49, s43"); o("s_cselect_b32 s39, 0x8000, 0"); o(f"s_add_u32 s39, s39, {K1_W}")
    srd(52, 42, 32768)
    o("v_lshrrev_b32 v44, 4, v20"); o("v_lshlrev_b32 v44, 6, v44"); o("v_xor_b32 v44, v44, v42")
    for k in range(32):
        if k in (nb0, nb): o("s_barrier")
        if k % 4 == 0: o(f"s_add_u32 m0, s39, {k*1024}"); o(f"s_movk_i32 s14, {k*1024}")
        o(f"buffer_load_dwordx4 v44, s[52:55], s14 offen offset:{(k%4)*1024} lds")
    lab("K1_LD")
    addrs()
    o("s_waitcnt vmcnt(0)"); o("s_barrier")
    o("s_branch K1_J")
    def touch2():
        sh = int(OPT.get('tsh', 16))
        o("v_lshl_add_u32 v250, v20, 5, s35"); o(f"v_lshlrev_b32 v250, {sh}, v250")
        srd(76, 6, E*32); o("buffer_load_dword v249, v250, s[76:79], 0 offen")
        srd(76, 12, WS_TAB + 4*SMS); o("buffer_load_dword v249, v250, s[76:79], 0 offen")
        srd(76, 72, N*256); o("buffer_load_dword v249, v250, s[76:79], 0 offen")
    lab("K1_LX")
    if OPT.get('touch') == '3': touch2()
    if int(OPT.get('touch', 0)):
        srd(24, 12, WS_SIZE)
        o(f"s_lshl_b32 s14, s37, {7 if SM else 9}"); o(f"s_add_u32 s14, s14, {WS_TAB:#x}"); o("v_mov_b32 v248, s14")
        if SM: o("v_lshrrev_b32 v249, 4, v20"); o(f"v_mul_u32_u24 v249, {SMS}, v249"); o("v_add_u32 v248, v248, v249")
        o("s_lshl_b32 s14, s3, 1")
        o("v_writelane_b32 v248, s14, 1"); o(f"s_mov_b32 s14, {WS_OFF:#x}"); o("v_writelane_b32 v248, s14, 2")
        o("buffer_load_dword v249, v248, s[24:27], 0 offen")
    srd(60, 4, N, 256)
    o("v_lshl_add_u32 v58, v57, 3, v56"); o("v_add_u32 v53, s37, v58")
    o("v_and_b32 v55, 15, v0"); o("v_lshlrev_b32 v59, 3, v56"); o("v_xor_b32 v55, v55, v59"); o("v_lshlrev_b32 v55, 4, v55")
    o("v_cmp_gt_u32 vcc, 2, v58"); o("v_mov_b32 v59, 0xffff")
    for k in range(25):
        t, i = divmod(k, 8)
        if k in (nb0, nb): o("s_barrier")
        o(f"s_mov_b32 m0, {K1_X + t*8320 + i*1040}"); o(f"v_add_u32 v54, {32*t + 16*(i >> 2) + 2*(i & 3)}, v53")
        if t == 3: o("v_cndmask_b32 v54, v59, v54, vcc")
        o("buffer_load_dwordx4 v[54:55], s[60:63], 0 idxen offen lds")
    if OPT.get('touch') == '2': touch2()
    o("s_cmp_ge_u32 s2, 68"); o("s_cbranch_scc1 K1_LD")
    o("s_lshr_b32 s14, s2, 5")
    o("s_cmp_eq_u32 s14, 1"); o("s_cselect_b32 s40, s46, s40"); o("s_cselect_b32 s41, s47, s41"); o(f"s_cselect_b32 s68, 1.0, {NLOG2E:#x}")
    o("s_mov_b32 s66, 32768"); o("s_bfe_u32 s50, s2, 0x20003"); o("s_and_b32 s51, s2, 7"); o("s_mov_b32 s32, 14")
    o("s_cmp_eq_u32 s14, 2"); o("s_cselect_b32 s40, s44, s40"); o("s_cselect_b32 s41, s45, s41"); o("s_cselect_b32 s66, 4096, s66")
    o("s_cselect_b32 s50, s51, s50"); o("s_cselect_b32 s51, 0, s51"); o("s_cselect_b32 s32, 11, s32")
    o("s_mov_b32 s64, s40"); o("s_and_b32 s65, s41, 0xffff"); o("s_mov_b32 s67, 0x20000")
    o("s_lshl_b32 s50, s50, 6"); o("s_lshl_b32 s51, s51, 11"); o("s_add_u32 s50, s50, s51")
    o("v_and_b32 v4, 3, v0"); o("v_bfe_u32 v5, v0, 3, 2"); o("v_lshl_or_b32 v4, v5, 2, v4")
    o("v_bfe_u32 v5, v0, 2, 1"); o("v_lshl_or_b32 v4, v5, 4, v4")
    o("v_lshlrev_b32 v5, s32, v57"); o("v_lshl_add_u32 v4, v4, 1, v5"); o("v_add_u32 v4, s50, v4")
    for j in range(8): o(f"buffer_load_ushort v{8+j}, v4, s[64:67], 0 offen offset:{j*256}")
    o("s_branch K1_LD")
    lab("K1_PREP2")
    o("s_lshl_b32 s14, s2, 10"); o(f"s_add_u32 s14, s14, {WS_WF:#x}")
    for j in range(8):
        o(f"v_lshlrev_b32 v{8+j}, 16, v{8+j}"); o(f"v_mul_f32 v{8+j}, s68, v{8+j}")
    for j in range(4): o(f"v_cvt_pk_bf16_f32 v{52+j}, v{8+2*j}, v{9+2*j}")
    o("buffer_store_dwordx4 v[52:55], v42, s[24:27], s14 offen")
    o("s_branch K1_G")

def regs_of(tok):
    m = re.fullmatch(r"v\[(\d+):(\d+)\]", tok)
    if m: return set(range(int(m.group(1)), int(m.group(2)) + 1))
    m = re.fullmatch(r"v(\d+)", tok)
    return {int(m.group(1))} if m else set()
def check_hazards(ins):
    P = []
    for s in ins:
        if s.endswith(':'): continue
        op, _, rest = s.partition(' ')
        t = [x.strip() for x in rest.split(',')]
        t = [x.split(' ')[0] for x in t]
        if op.startswith('v_mfma'):
            P.append(('m', 12 if '32x32' in op else 8, regs_of(t[0]), regs_of(t[1]) | regs_of(t[2]), regs_of(t[3]), s))
        elif op.startswith('v_'):
            P.append(('t' if op in ('v_exp_f32', 'v_rcp_f32') else 'v', 0, regs_of(t[0]), set().union(*map(regs_of, t[1:])), set(), s))
        elif op.startswith('ds_read'):
            P.append(('d', 0, regs_of(t[0]), regs_of(t[1]), set(), s))
        elif op.startswith('buffer'):
            P.append(('d', 0, set(), regs_of(t[0]), set(), s))
        else: P.append(('s', 0, set(), set(), set(), s))
    n = len(P)
    for i, (k, w, d, ab, c, s) in enumerate(P):
        for j in range(1, 13):
            k2, w2, d2, ab2, c2, s2 = P[(i + j) % n]
            gap = j - 1
            if k == 'm':
                if k2 == 'm':
                    assert not (gap < w and d & ab2), (s, s2)
                    if d & c2 and d != c2: assert gap >= w - 2, (s, s2)
                else: assert not (gap < w and d & (d2 | ab2)), (s, s2, gap)
                if k2 in 'vt': assert not (gap < (7 if w == 12 else 3) and c & d2), (s, s2)
            if k in 'vt' and k2 == 'm': assert not (gap < 2 and d & (ab2 | c2)), (s, s2)
            if k == 't' and k2 == 'v': assert not (gap < 1 and d & ab2), (s, s2)

LOWLIM = 2; NS = 2
LUT = 0; IDT = 4096; NB = IDT + 26 * 80; LIST = NB + 256; MB = LIST + 8192; ROW = 264; CNT = MB + 26 * ROW; ZSZ = 26 * ROW + 256
ER = CNT + 256; RING = ER + 8192; WS_ = 4160; SLOT = 4 * WS_; K2_LDS = RING + (NS + 1) * SLOT
G8 = int(OPT.get('g8', 0)); GS = (K2_LDS - NB + 255) // 256 * 256
assert K2_LDS <= 81920 and ER % 16 == 0 and LIST % 16 == 0 and MB % 16 == 0 and 4096 < ZSZ <= 8192 and ZSZ % 16 == 0

class RA:
    def __init__(s): s.n = 1
    def get(s, k=1, al=1):
        s.n = (s.n + al - 1) // al * al
        b = s.n; s.n += k; return b
R = RA()
vTA = R.get()
IX = [R.get(2, 2) for _ in range(4)]; IXE = R.get(2, 2); MQ = R.get(2, 2)
(vTC, vEA, vMT, vSA, vMA, vL1, vL2, vSV, vHC, vWF, vXA, vXR, vXI, vXO) = [R.get() for _ in range(14)]
SEG = R.get(4, 4); PT = R.get(4, 4)
GV = R.get(64, 4); ACC = R.get(64, 4)
TF = R.get(16, 4); EF = R.get(4, 4); SF = R.get(8, 4); WC = R.get(4, 4); T0 = R.get(8, 4); AF = R.get(16, 4); SEL = R.get(8, 4)
NVGPR = R.n
assert NVGPR <= 255, NVGPR
REC = GV; RANK = GV + 32; AD = GV + 48
sX, sE, sW, sO, sT = 8, 12, 16, 20, 96
sWAVE, sBASE, sMR, sME, sCNT, sNT, sRS, sLIM, sFIRST, sMORE, sDS, sT0, sT1, sEPS, s80, sMET = range(24, 40)
sHM, sSV, sWF, sS0 = 42, 44, 52, 54
sK = 56
sG = 95
def addg(v):
    if G8: o(f"v_add_u32 v{v}, s{sG}, v{v}")
def saddg(r):
    if G8: o(f"s_add_u32 s{r}, s{r}, s{sG}")

def ldt(i): return f"buffer_load_dwordx4 {vr(IX[i],2)}, s[{sT}:{sT+3}], 0 idxen offen {OPT.get('tpol', '').replace('+', ' ')} lds".replace("  ", " ")
def lde(): return f"buffer_load_dwordx4 {vr(IXE,2)}, s[{sE}:{sE+3}], 0 idxen offen {OPT.get('epol', '').replace('+', ' ')} lds".replace("  ", " ")
def loff(u): return (u & 1) * 4096 + (u >> 1) * 256
def nextslot(r): return [f"s_add_u32 s{r}, s{r}, {SLOT}", f"s_cmp_eq_u32 s{r}, {NS*SLOT}", f"s_cselect_b32 s{r}, 0, s{r}"]

def vstream(Gc, Vc):
    A = []
    for p in range(0, 22, 2):
        if p < 16: A += [(f"v_exp_f32 v{Gc+p}, v{Gc+p}", 8), (f"v_exp_f32 v{Gc+p+1}, v{Gc+p+1}", 8)]
        q = p - 2
        if 0 <= q < 16:
            if 'a' in OPT.get('pk', ''): A += [(f"v_pk_add_f32 {vr(Gc+q,2)}, {vr(Gc+q,2)}, 1.0 op_sel_hi:[1,0]", 4)]
            else: A += [(f"v_add_f32 v{Gc+q}, 1.0, v{Gc+q}", 4), (f"v_add_f32 v{Gc+q+1}, 1.0, v{Gc+q+1}", 4)]
            A += [(f"v_rcp_f32 v{Gc+q}, v{Gc+q}", 8), (f"v_rcp_f32 v{Gc+q+1}, v{Gc+q+1}", 8)]
        q = p - 4
        if 0 <= q < 16 and 'm' in OPT.get('pk', ''): A += [(f"v_pk_mul_f32 {vr(Vc+q,2)}, {vr(Gc+q,2)}, {vr(Vc+q,2)}", 4)]
        elif 0 <= q < 16: A += [(f"v_mul_f32 v{Vc+q}, v{Gc+q}, v{Vc+q}", 4), (f"v_mul_f32 v{Vc+q+1}, v{Gc+q+1}, v{Vc+q+1}", 4)]
        q = p - 6
        if 0 <= q < 16: A += [(f"v_cvt_pk_bf16_f32 v{Gc+q//2}, v{Gc+q}, v{Gc+q+1}", 4), (f"v_cvt_pk_bf16_f32 v{Vc+q//2}, v{Vc+q}, v{Vc+q+1}", 4)]
    return A
def zphase(P, p):
    d = ACC + 32 * p
    return [m32(d, P, T0, d), m32(d+16, P+16, T0, d+16), m32(d, P+4, T0+4, d), m32(d+16, P+20, T0+4, d+16)]

HEAD = {}
def body(b, peel=False):
    p = b % 2
    Gn = GV + 32 * p; Vn = Gn + 16; Gc = GV + 32 * (1 - p); Vc = Gc + 16; af = AF + 8 * p
    ne = sum(1 for k in range(NS - 1) if (b - k) % 4 == 0) + (1 if (b - (NS - 1)) % 4 == 0 else 0)
    vmw = 4 * (NS - 1) + ne
    z = zphase(Gn, p)
    def dma(i): return [f"s_add_u32 m0, s{sMR}, {p*SLOT + i*1040}", None, ldt(i), f"ds_read_u16 v{IX[i]}, v{vL1} offset:{loff(b+NS+1)+64*i}"]
    top = ["s_waitcnt vmcnt(8) lgkmcnt(0)", "s_barrier"] if b == 3 else ["s_waitcnt lgkmcnt(0)"]
    if G8 and OPT.get('sp', '2103') != '0': top.append(f"s_setprio {OPT.get('sp', '2103')[b]}")
    if G8 and OPT.get('bar2') and b == 1: top.insert(1, "s_barrier")
    seq = []
    seq.append([z[0], [], [f"v_mad_u32_u24 v{vSV}, v{vSV}, s{s80}, v{vHC}"]])
    seq.append([z[1], [f"ds_read_b128 {vr(SF,4)}, v{vSV}", f"ds_read_b128 {vr(SF+4,4)}, v{vSV} offset:32"], []])
    seq.append([z[2], [f"ds_read_u8 v{vSV}, v{vSA} offset:{loff(b+1)}"], []])
    seq.append([z[3], [f"s_sub_u32 s{sCNT}, s{sCNT}, 1", f"s_cbranch_scc1 TAIL{p}", f"ENT{b}:"], []])
    seq.append([m32(Gn, TF, SEL, None), [f"ds_read_b128 {vr(T0,4)}, v{MQ}"], [f"v_and_b32 v{IXE}, 0x7ffff, v{IXE}"] if b == 0 else []])
    seq.append([m32(Gn, TF+4, SEL+4, Gn), [f"ds_read_b128 {vr(T0+4,4)}, v{MQ+1}"], [f"v_xor_b32 v{vEA}, v{vEA}, v{vMT}"] if b == 3 else []])
    seq.append([m32(Gn, EF, WC, Gn), [f"ds_read_b128 {vr(EF,4)}, v{vEA} offset:{(b+1)%4*1024}", f"ds_read_u16 v{MQ}, v{vMA} offset:{b*8}",
                f"ds_read_u16 v{MQ+1}, v{vMA} offset:{b*8+2}"], []])
    seq.append([m32(Vn, TF+8, SEL, None), [f"ds_read_b32 v{IXE}, v{vL2}"] if b == 3 else [], []])
    seq.append([m32(Vn, TF+12, SEL+4, Vn), ["s_waitcnt lgkmcnt(S)"], []])
    seq.append([m32(Gn, SF, af, Gn), [f"s_waitcnt vmcnt({vmw})"], []])
    seq.append([m32(Gn, SF+4, af+4, Gn), [f"ds_read_b128 {vr(TF+4*j,4)}, v{vTA} offset:{(1-p)*SLOT+16*j}" for j in range(4)],
                [f"v_add_u32 v{r}, 0x200, v{r}" for r in (vSA, vL1, vL2)] + [f"v_add_u32 v{vMA}, 32, v{vMA}"] if b == 3 else []])
    dp = [int(c) for c in OPT.get('dp', '03589')]
    for i in range(4): seq[dp[i]][1] = seq[dp[i]][1] + dma(i)
    if b == 0: seq[dp[4]][1] = seq[dp[4]][1] + [f"s_mov_b32 m0, s{sME}", None, lde(), f"s_xor_b32 s{sME}, s{sME}, s{sMET}"]
    A = [] if peel else vstream(Gc, Vc)
    wt = [float(x) for x in OPT.get('wt', '1,1,1,1,1,1,1,1,1,1,1.6').split(',')]
    tot = sum(c for _, c in A); out = list(top); ai = 0; acc = 0; budget = 0
    for i, (m, ex, xv) in enumerate(seq):
        budget += tot * wt[i] / sum(wt)
        g = []
        while ai < len(A) and acc + A[ai][1] / 2 <= budget + 0.01:
            g.append(A[ai][0]); acc += A[ai][1]; ai += 1
        if i == 3 and not peel: HEAD[b] = ai
        if not (peel and i < 4): out.append(m)
        g = xv + g
        last = [x for x in ex if x and (x.startswith("s_waitcnt") or x.startswith("s_cbranch") or x.endswith(":") or x.startswith("s_sub"))]
        ex = [x for x in ex if x not in last]
        if peel: last = [x for x in last if x.startswith("s_waitcnt")]
        first = True
        for x in ex:
            if x is None:
                continue
            if not first and g: out.append(g.pop(0))
            elif not first and peel and x.startswith("buffer"): out.append("s_nop 0")
            out.append(x); first = False
        out += g + last
    assert ai == len(A)
    i0 = max(i for i, x in enumerate(out) if x.startswith(f"ds_read_b128 {vr(SF+4,4)}")); i1 = out.index("s_waitcnt lgkmcnt(S)")
    out[i1] = f"s_waitcnt lgkmcnt({sum(1 for x in out[i0+1:i1] if x.startswith('ds_'))})"
    for i, x in enumerate(out):
        if x.startswith("buffer_load"): assert not out[i-1].split()[1].startswith("m0"), (out[i-1], x)
    if OPT.get('fakec'):
        n2 = []
        for x in out:
            if x.startswith("v_mfma") and (f", {vr(SEL,4)}," in x or f", {vr(SEL+4,4)}," in x):
                j = (int(re.findall(r"v\[(\d+):", x)[1]) - TF)
                n2 += [f"v_lshlrev_b32 v{Vn+j+k}, 16, v{TF+j+k}" for k in range(4)]
            elif x == m32(Gn, EF, WC, Gn): n2.append(m32(Gn, EF, WC, TF))
            elif x.startswith("ds_read_b128") and f"v{vTA} " in x:
                j = int(re.findall(r"v\[(\d+):", x)[0]) - TF
                n2 += [f"ds_read2st64_b32 {vr(TF+j+2*k,2)}, v{vTC} offset0:{(1-p)*65+j+2*k} offset1:{(1-p)*65+j+2*k+1}" for k in range(2)]
            else: n2.append(x)
        out = n2
    if OPT.get('notrans'): out = [x.replace("v_exp_f32", "v_mov_b32").replace("v_rcp_f32", "v_mov_b32") for x in out]
    if OPT.get('noval'): out = ["s_nop 0" if (x.startswith("v_exp") or x.startswith("v_rcp")) else x for x in out if not (x.startswith("v_add_f32") or x.startswith("v_mul_f32") or x.startswith("v_cvt"))]
    if OPT.get('nodma'): out = [x for x in out if 'buffer_load' not in x]
    if OPT.get('noe'): out = [x for x in out if f"s[{sE}:{sE+3}]" not in x]
    return out

def emit(lst):
    for it in lst:
        if it.endswith(':'): lab(it[:-1])
        else: o(it)

def masks(tmp):
    a, b_, c = tmp
    o(f"v_and_b32 v{a}, 3, v0"); o(f"v_lshlrev_b32 v{a}, 1, v{a}"); o(f"v_mov_b32 v{c}, 0")
    for i in range(4):
        o(f"v_lshrrev_b32 v{b_}, 19, v{SEG+i}"); o(f"v_max_u32 v{c}, v{c}, v{b_}")
        o(f"v_min_u32 v{b_}, s{sLIM}, v{b_}"); o(f"v_sub_u32 v{b_}, v{b_}, v{a}")
        for j, k in ((0, 2*i), (1, 2*i+1), (8, 8+2*i), (9, 9+2*i)): o(f"v_cmp_lt_i32 s[{sK+2*k}:{sK+2*k+1}], {j}, v{b_}")
    o(f"v_cmp_lt_u32 vcc, s{sLIM}, v{c}")
    o(f"s_or_b64 s[{sSV}:{sSV+1}], s[{sK+16}:{sK+17}], s[{sK+20}:{sK+21}]"); o(f"s_or_b64 s[{sHM}:{sHM+1}], s[{sK+24}:{sK+25}], s[{sK+28}:{sK+29}]")
    o(f"s_or_b64 s[{sSV}:{sSV+1}], s[{sSV}:{sSV+1}], s[{sHM}:{sHM+1}]")
    o(f"v_mov_b32 v{b_}, {CNT-4}"); addg(b_)
    o("s_mov_b64 exec, vcc"); o(f"ds_write_b32 v{b_}, v{b_}"); o("s_mov_b64 exec, -1")

def interleave(mf, other, per):
    other = list(other)
    for m in mf:
        o(m)
        for _ in range(per):
            if other: o(other.pop(0))
    for x in other: o(x)
def capture(fn):
    n = len(L); fn(); r = [x.strip() for x in L[n:]]; del L[n:]; return r
def wload(dst, off):
    r = []
    for s in range(8):
        if s % 4 == 0: r.append(f"s_add_u32 s{sT0}, s{sWF}, {off + s*1024:#x}")
        r.append(f"buffer_load_dwordx4 {vr(dst+4*s,4)}, v{vWF}, s[{sW}:{sW+3}], s{sT0} offen offset:{(s%4)*1024}")
    return r
def xblk(base, pair):
    o(f"v_mov_b32 v{pair+1}, v{vXO}")
    for mt in range(2):
        for a in range(2):
            o(f"s_add_u32 m0, s{base}, {(2*mt+a)*1040}")
            o(f"v_cmp_gt_u32 vcc, {(NA if mt == 0 else RN-NA) - 2*a}, v{vXI}")
            o(f"s_add_u32 s{sT0}, s{sBASE}, {NA*mt + 2*a}"); o(f"v_add_u32 v{pair}, s{sT0}, v{vXI}")
            o(f"v_cndmask_b32 v{pair}, v{PT+3}, v{pair}, vcc")
            o(f"buffer_load_dwordx4 {vr(pair,2)}, s[{sX}:{sX+3}], 0 idxen offen lds")

def gen_k2():
    L.append(".globl gmain_kernel"); L.append(".p2align 8"); L.append(".type gmain_kernel,@function")
    lab("gmain_kernel"); VST[0] = 255
    t = [TF + i for i in range(28)]
    stamp(0)
    o("s_load_dwordx2 s[50:51], s[0:1], 88")
    o("s_load_dwordx4 s[4:7], s[0:1], 0")
    o("s_load_dwordx2 s[48:49], s[0:1], 72")
    o("s_setprio 3")
    o(f"v_lshrrev_b32 v{t[0]}, 6, v0")
    o("s_and_b32 s3, s2, 7"); o("s_lshl_b32 s3, s3, 6"); o(f"s_bfe_u32 s{sT0}, s2, 0x50003"); o(f"s_lshl1_add_u32 s3, s{sT0}, s3")
    o(f"v_readfirstlane_b32 s{sWAVE}, v{t[0]}")
    if G8:
        o("v_and_b32 v0, 0xff, v0"); o(f"s_lshr_b32 s{sT0}, s{sWAVE}, 2"); o(f"s_and_b32 s{sWAVE}, s{sWAVE}, 3"); o(f"s_mul_i32 s{sG}, s{sT0}, {GS}")
    else: o(f"s_lshr_b32 s{sT0}, s2, 8")
    o(f"s_add_u32 s3, s3, s{sT0}")
    o(f"s_cmp_ge_u32 s2, {256 if G8 else 512}"); o("s_cbranch_scc1 K2_END")
    o(f"s_cmp_ge_u32 s3, {NR}"); o("s_cbranch_scc1 K2_END")
    o(f"v_lshrrev_b32 v{t[1]}, 2, v0")
    o(f"s_lshr_b32 s{sS0}, s3, 2"); o(f"s_mul_i32 s{sS0}, s{sS0}, {OG}"); o(f"s_and_b32 s{sT0}, s3, 3"); o(f"s_lshl2_add_u32 s{sS0}, s{sT0}, s{sS0}"); o(f"s_add_u32 s{sS0}, s{sS0}, {WS_OFF:#x}")
    o(f"v_lshlrev_b32 v{t[1]}, 6, v{t[1]}")
    o(f"s_mul_i32 s{sBASE}, s3, {RN}")
    o(f"v_and_b32 v{vWF}, 63, v0"); o(f"v_lshlrev_b32 v{vWF}, 4, v{vWF}")
    o(f"s_mul_i32 s{sMR}, s{sWAVE}, {WS_}"); o(f"s_add_u32 s{sMR}, s{sMR}, {RING}"); saddg(sMR)
    o(f"s_lshl_b32 s{sWF}, s{sWAVE}, 13"); o(f"s_add_u32 s{sWF}, s{sWF}, {WS_WF:#x}")
    o(f"s_mov_b32 s{sEPS}, {EPS:#x}"); o(f"s_movk_i32 s{s80}, 80")
    o(f"s_mov_b32 s{sFIRST}, 1"); o(f"s_mov_b32 s{sLIM}, 16")
    o("s_cmp_ge_u32 s2, 256"); o(f"s_cselect_b32 s{sRS}, {OPT.get('bon', 0)}, 0")
    o("s_waitcnt lgkmcnt(0)"); xstamp("karg")
    srd(sW, 50, WS_SIZE)
    for i in range(4): o(f"buffer_load_dword v{SEG+i}, v{t[1]}, s[{sW}:{sW+3}], s{sS0} offen offset:{16*i}")
    srd(sX, 4, N, 256); srd(sE, 6, E, 32); srd(sO, 48, N, 256)
    o(f"s_add_u32 s50, s50, {WS_TAB:#x}"); o("s_addc_u32 s51, s51, 0")
    if SM: o(f"s_mul_i32 s{sT0}, s{sWAVE}, {SMS}"); o(f"s_add_u32 s50, s50, s{sT0}"); o("s_addc_u32 s51, s51, 0")
    srd(sT, 50, N, 128 if SM else 512)
    WAP = OPT.get('wap', 'p1'); XBP = OPT.get('xbp', 'p1'); ORD = ['start', 'rec', 'mask', 'p1', 'b1']
    def place(where):
        if where not in (WAP, XBP): return
        o(f"s_cmp_eq_u32 s{sFIRST}, 0"); o(f"s_cbranch_scc1 NOW_{where}")
        if XBP == where:
            o(f"s_add_u32 s{sNT}, s{sMR}, {NS*SLOT}")
            xblk(sNT, T0)
        if WAP == where:
            for x in wload(ACC, WF_A): o(x)
            o(f"s_lshl_b32 s{sT0}, s{sWAVE}, 10"); o(f"s_add_u32 s{sT0}, s{sT0}, {WS_WF+WF_C:#x}")
            o(f"buffer_load_dwordx4 {vr(WC,4)}, v{vWF}, s[{sW}:{sW+3}], s{sT0} offen")
        lab(f"NOW_{where}")
    def cnt(lo, hi): return sum(n for p, n in ((WAP, 9), (XBP, 4)) if lo <= ORD.index(p) <= hi)
    SP = [int(x) for x in OPT.get('spf', '0,0').split(',')]
    def spref(n, first):
        for k in range(n): o(f"s_load_dword s{88 + k % 4}, s[46:47], {(first + k) * 32768:#x}")
    if sum(SP):
        o(f"s_and_b32 s{sT0}, s3, 63"); o(f"s_lshl2_add_u32 s{sT0}, s{sT0}, s{sWAVE}"); o(f"s_lshl_b32 s{sT0}, s{sT0}, 7")
        o(f"s_add_u32 s46, s50, s{sT0}"); o("s_addc_u32 s47, s51, 0")
        spref(SP[0], 0)
    lab("ROUND")
    b0, b2, b3, b4, vh = t[16:21]
    o(f"v_lshlrev_b32 v{t[11]}, 4, v0"); addg(t[11])
    for d in range(4): o(f"v_mov_b32 v{t[0]+d}, 0")
    for off in (0, ZSZ - 4096): o(f"ds_write_b128 v{t[11]}, {vr(t[0],4)} offset:{MB+off}")
    pad0 = 0xffff | (NA << 16)
    o(f"v_mov_b32 v{t[4]}, {pad0:#x}"); o(f"v_mov_b32 v{t[5]}, 0x7ffff"); o(f"v_mov_b32 v{t[6]}, {pad0:#x}"); o(f"v_mov_b32 v{t[7]}, 0x7ffff")
    o(f"ds_write_b128 v{t[11]}, {vr(t[4],4)} offset:{LIST}"); o(f"ds_write_b128 v{t[11]}, {vr(t[4],4)} offset:{LIST+4096}")
    o(f"v_and_b32 v{b0}, 1, v0"); o(f"v_bfe_u32 v{b2}, v0, 2, 1"); o(f"v_bfe_u32 v{b3}, v0, 3, 1"); o(f"v_bfe_u32 v{b4}, v0, 4, 1"); o(f"v_bfe_u32 v{vh}, v0, 5, 1")
    o(f"v_and_b32 v{t[8]}, 3, v0"); o(f"v_lshlrev_b32 v{t[8]}, 1, v{t[8]}")
    o(f"v_mov_b32 v{t[9]}, 0x7ffffff0"); o(f"s_mov_b32 s{sT1}, 0x7ffff")
    o(f"v_and_b32 v{t[12]}, 15, v0"); o(f"v_lshlrev_b32 v{t[13]}, 3, v{b4}")
    o(f"v_xor_b32 v{vXO}, v{t[12]}, v{t[13]}"); o(f"v_lshlrev_b32 v{vXO}, 4, v{vXO}")
    o(f"s_lshr_b32 s{sT0}, s{sWAVE}, 1"); o(f"s_lshl_b32 s{sT0}, s{sT0}, 4"); o(f"s_and_b32 s{sS0}, s{sWAVE}, 1"); o(f"s_lshl2_add_u32 s{sT0}, s{sS0}, s{sT0}")
    o(f"v_lshl_add_u32 v{vXI}, v{vh}, 3, v{b4}"); o(f"v_add_u32 v{vXI}, s{sT0}, v{vXI}")
    o(f"v_mov_b32 v{PT+3}, 0xffff")
    place('start')
    xstamp("consts_done")
    o(f"s_waitcnt vmcnt({cnt(0, 0)})"); stamp(1)
    for i in range(4):
        o(f"v_lshrrev_b32 v{t[4+i]}, 19, v{SEG+i}"); o(f"v_cmp_lt_u32 vcc, v{t[8]}, v{t[4+i]}")
        o(f"v_and_b32 v{t[i]}, s{sT1}, v{SEG+i}"); o(f"v_add_lshl_u32 v{t[i]}, v{t[i]}, v{t[8]}, 3")
        o(f"v_cndmask_b32 v{t[10]}, v{t[9]}, v{t[i]}, vcc")
        o(f"buffer_load_dwordx4 {vr(REC+4*i,4)}, v{t[10]}, s[{sW}:{sW+3}], 0 offen")
    o(f"v_max3_u32 v{t[10]}, v{t[4]}, v{t[5]}, v{t[6]}"); o(f"v_max_u32 v{t[10]}, v{t[10]}, v{t[7]}")
    o(f"v_cmp_lt_u32 vcc, 8, v{t[10]}"); o("s_cbranch_vccz REC_DONE")
    for i in range(4): o(f"buffer_load_dwordx4 {vr(REC+16+4*i,4)}, v{t[i]}, s[{sW}:{sW+3}], 0 offen offset:64")
    lab("REC_DONE")
    xstamp("rec_issued")
    PF = int(OPT.get('pf', 0))
    def pref():
        o(f"s_lshr_b32 s{sT0}, s3, 6"); o(f"s_mul_i32 s{sT0}, s{sT0}, {64*RN}"); o(f"s_and_b32 s{sT1}, s3, 63"); o(f"s_lshl_b32 s{sT1}, s{sT1}, 6"); o(f"s_add_u32 s{sT0}, s{sT0}, s{sT1}")
        o(f"v_lshrrev_b32 v{T0+2}, 2, v0"); o(f"v_add_u32 v{T0+2}, s{sT0}, v{T0+2}"); o(f"v_and_b32 v{T0+1}, 3, v0"); o(f"v_lshlrev_b32 v{T0+1}, 7, v{T0+1}")
        for k in range(PF):
            o(f"v_add_u32 v{T0+3}, {-512*RN}, v{T0+2}"); o(f"v_min_u32 v{T0}, v{T0+2}, v{T0+3}")
            o(f"buffer_load_dword v{SEL}, {vr(T0,2)}, s[{sT}:{sT+3}], 0 idxen offen")
            if k + 1 < PF: o(f"v_add_u32 v{T0+2}, 4096, v{T0+2}")
    PFW = OPT.get('pfw', 'rec')
    place('rec')
    if PF and PFW == 'rec': pref()
    o("s_waitcnt lgkmcnt(0)"); o("s_barrier"); stamp(2)
    spref(SP[1], SP[0])
    pp = t[14]
    o(f"v_and_b32 v{pp}, 0x13, v0"); o(f"v_lshl_or_b32 v{pp}, v{b2}, 3, v{pp}"); o(f"v_lshl_or_b32 v{pp}, v{b3}, 2, v{pp}")
    o(f"v_lshrrev_b32 v{t[12]}, 3, v{pp}"); o(f"v_lshlrev_b32 v{vTA}, 7, v{pp}"); o(f"v_lshl_add_u32 v{vTA}, v{t[12]}, 4, v{vTA}")
    o(f"v_bfe_u32 v{t[13]}, v0, 1, 1"); o(f"v_xor_b32 v{t[12]}, v{t[13]}, v{vh}"); o(f"v_lshl_add_u32 v{vTA}, v{t[12]}, 6, v{vTA}"); o(f"v_add_u32 v{vTA}, s{sMR}, v{vTA}")
    o(f"v_and_b32 v{t[12]}, 7, v0"); o(f"v_lshlrev_b32 v{t[15]}, 2, v{b4}"); o(f"v_xor_b32 v{t[15]}, v{t[15]}, v{t[12]}")
    o(f"s_mov_b32 s{sT0}, 0" if SM else f"s_lshl_b32 s{sT0}, s{sWAVE}, 7"); o(f"v_lshl_add_u32 v{IX[0]+1}, v{t[15]}, 4, s{sT0}")
    for i in range(1, 4): o(f"v_mov_b32 v{IX[i]+1}, v{IX[0]+1}")
    o(f"v_and_b32 v{vL1}, 0x38, v0"); o(f"v_add_u32 v{vL1}, {LIST}, v{vL1}"); addg(vL1)
    o(f"v_lshl_or_b32 v{t[15]}, v{b4}, 1, v{b2}"); o(f"v_mul_u32_u24 v{t[15]}, {WS_}, v{t[15]}"); o(f"v_mul_u32_u24 v{t[13]}, 1040, v{t[13]}")
    o(f"v_lshl_or_b32 v{t[21]}, v{b3}, 1, v{b0}"); o(f"v_lshl_add_u32 v{t[15]}, v{t[21]}, 8, v{t[15]}"); o(f"v_add3_u32 v{t[15]}, v{t[15]}, v{t[13]}, {'s%d' % sG if G8 else 0}")
    o(f"v_add_u32 v{t[15]}, {RING + NS*SLOT}, v{t[15]}")
    o(f"v_xor_b32 v{t[13]}, v{vh}, v{b0}"); o(f"v_lshl_add_u32 v{vXA}, v{t[13]}, 7, v{t[15]}")
    o(f"v_lshlrev_b32 v{IXE+1}, 4, v{t[13]}")
    o(f"v_bfe_u32 v{t[13]}, v0, 7, 1"); o(f"v_xor_b32 v{t[13]}, v{t[13]}, v{b0}"); o(f"v_lshl_add_u32 v{vXR}, v{t[13]}, 7, v{t[15]}")
    o(f"v_and_b32 v{t[13]}, 0x60, v0"); o(f"v_add_u32 v{vXR}, v{vXR}, v{t[13]}")
    o(f"s_lshl_b32 s{sT0}, s{sS0}, 12"); o(f"s_lshr_b32 s{sT1}, s{sWAVE}, 1"); o(f"s_lshl_b32 s{sT1}, s{sT1}, 8"); o(f"s_add_u32 s{sT0}, s{sT0}, s{sT1}"); o(f"s_add_u32 s{sT0}, s{sT0}, {LIST+4}"); saddg(sT0)
    o(f"v_bfe_u32 v{vL2}, v0, 1, 5"); o(f"v_lshl_add_u32 v{vL2}, v{vL2}, 3, s{sT0}")
    o(f"s_lshl_b32 s{sME}, s{sWAVE}, 10"); o(f"s_add_u32 s{sME}, s{sME}, {ER}"); saddg(sME)
    o(f"v_lshlrev_b32 v{vSA}, 3, v{pp}"); o(f"v_add_u32 v{vSA}, {LIST+2}, v{vSA}"); addg(vSA)
    o(f"v_lshlrev_b32 v{vHC}, 4, v{vh}"); o(f"v_add_u32 v{vHC}, {IDT}, v{vHC}")
    o(f"v_xor_b32 v{vEA}, v{b4}, v{vh}"); o(f"v_lshlrev_b32 v{vEA}, 4, v{vEA}")
    o(f"v_lshl_add_u32 v{vEA}, v{pp}, 5, v{vEA}"); o(f"v_add_u32 v{vEA}, {ER}, v{vEA}"); addg(vEA)
    o(f"v_add_u32 v{vMT}, 4096, v{vEA}"); o(f"v_xor_b32 v{vMT}, v{vMT}, v{vEA}")
    o(f"v_and_b32 v{t[13]}, 31, v0"); o(f"v_min_u32 v{t[13]}, {NA}, v{t[13]}")
    o(f"v_mul_u32_u24 v{vMA}, {ROW}, v{t[13]}"); o(f"v_lshl_add_u32 v{vMA}, v{vh}, 2, v{vMA}"); o(f"v_add_u32 v{vMA}, {MB}, v{vMA}"); addg(vMA)
    o(f"v_lshrrev_b32 v{PT+2}, 5, v0"); o(f"v_lshlrev_b32 v{PT+2}, 4, v{PT+2}"); o(f"v_lshl_add_u32 v{PT+2}, v{b3}, 2, v{PT+2}"); addg(PT+2)
    o(f"v_lshl_add_u32 v{t[12]}, v{b4}, 4, v{t[12]}"); o(f"v_lshlrev_b32 v{PT+1}, v{t[12]}, 16")
    o(f"v_and_b32 v{t[12]}, 3, v0"); o(f"v_lshl_add_u32 v{t[12]}, v{b4}, 2, v{t[12]}"); o(f"v_lshlrev_b32 v{t[12]}, v{t[12]}, 16")
    o(f"v_cmp_eq_u32 vcc, v{b3}, v{vh}"); o(f"v_lshlrev_b32 v{t[13]}, 4, v{b2}"); o("s_nop 0")
    o(f"v_cndmask_b32 v{t[12]}, 0, v{t[12]}, vcc"); o(f"v_lshlrev_b32 v{PT}, v{t[13]}, v{t[12]}")
    place('mask')
    if cnt(1, 2):
        o(f"s_cmp_eq_u32 s{sFIRST}, 1"); o("s_cbranch_scc1 REMASK"); o("s_waitcnt vmcnt(0)")
    lab("REMASK")
    masks((t[0], t[1], t[2])); xstamp("masks_done")
    a, b_, c, d_ = t[0:4]; ad = [AD + k for k in range(16)]
    o(f"v_mov_b32 v{a}, 8")
    o(f"v_lshrrev_b32 v{b_}, 2, v{vWF}"); addg(b_)
    if G8: o(f"s_lshr_b32 s{sDS}, s{sG}, 8")
    if PF and PFW == 'mask': pref()
    o(f"s_waitcnt vmcnt({cnt(1, 2)})"); xstamp("rec_landed")
    for half in range(2):
        if half: o(f"s_cmp_eq_u64 s[{sSV}:{sSV+1}], 0"); o("s_cbranch_scc1 P1_DONE"); o("s_mov_b64 exec, -1")
        for k in range(8*half, 8*half+8): o(f"v_alignbit_b32 v{ad[k]}, s{sDS}, v{REC+2*k+1}, 24" if G8 else f"v_lshrrev_b32 v{ad[k]}, 24, v{REC+2*k+1}")
        for k in range(8*half, 8*half+8):
            o(f"s_mov_b64 exec, s[{sK+2*k}:{sK+2*k+1}]")
            o(f"ds_add_rtn_u32 v{RANK+k}, v{ad[k]}, v{a} offset:{CNT}")
    lab("P1_DONE")
    o("s_mov_b64 exec, -1")
    place('p1')
    if PF and PFW == 'p1': pref()
    o("s_waitcnt lgkmcnt(0)"); xstamp("p1_done"); o("s_barrier"); xstamp("b1")
    o(f"ds_read_b32 v{c}, v{b_} offset:{CNT}")
    o(f"ds_read_b32 v{t[4]}, v{b_} offset:{CNT-4}")
    place('b1')
    o(f"v_lshlrev_b32 v{t[5]}, 12, v{vh}"); addg(t[5])
    o("s_waitcnt lgkmcnt(1)")
    o(f"v_sub_u32 v{d_}, v{t[5]}, v{c}")
    for dd in ("row_shr:1", "row_shr:2", "row_shr:4", "row_shr:8"):
        o(f"v_add_u32_dpp v{c}, v{c}, v{c} {dd} row_mask:0xf bank_mask:0xf bound_ctrl:0"); o("s_nop 1")
    o(f"v_add_u32_dpp v{c}, v{c}, v{c} row_bcast:15 row_mask:0xa bank_mask:0xf")
    o(f"v_add_u32 v{d_}, v{c}, v{d_}")
    o(f"ds_write_b32 v{b_}, v{d_} offset:{NB}")
    o(f"v_readlane_b32 s{sNT}, v{c}, 31"); o(f"v_readlane_b32 s{sCNT}, v{c}, 63")
    for k in range(8): o(f"ds_read_b32 v{ad[k]}, v{ad[k]} offset:{NB}")
    o(f"s_max_u32 s{sT0}, s{sNT}, s{sCNT}")
    o(f"s_cmp_le_u32 s{sT0}, 4096"); o("s_cbranch_scc0 TOOBIG")
    xstamp("scan_done")
    for half in range(2):
        if half:
            o(f"s_cmp_eq_u64 s[{sSV}:{sSV+1}], 0"); o("s_cbranch_scc1 P2_DONE"); o("s_mov_b64 exec, -1")
            for k in range(8, 16): o(f"ds_read_b32 v{ad[k]}, v{ad[k]} offset:{NB}")
        for k in range(8*half, 8*half+8):
            if k % 4 == 0: o(f"s_waitcnt lgkmcnt({4 - k % 8})")
            o(f"v_add_u32 v{RANK+k}, v{RANK+k}, v{ad[k]}")
        for k in range(8*half, 8*half+8):
            o(f"s_mov_b64 exec, s[{sK+2*k}:{sK+2*k+1}]")
            o(f"ds_write_b64 v{RANK+k}, {vr(REC+2*k,2)} offset:{LIST}")
    lab("P2_DONE")
    o("s_mov_b64 exec, -1")
    o(f"v_readlane_b32 s{sMORE}, v{t[4]}, 0")
    o(f"s_mov_b32 m0, s{sME}")
    o(f"s_waitcnt vmcnt({9 if ORD.index(WAP) >= ORD.index(XBP) else 0}) lgkmcnt(0)"); xstamp("p2_done"); o("s_barrier"); stamp(5)
    f = t
    def rdidx(u):
        for i in range(4): o(f"ds_read_u16 v{IX[i]}, v{vL1} offset:{loff(u)+64*i}")
    def fill(u, nxt):
        for i in range(4):
            o(f"s_add_u32 m0, s{sMR}, {u*SLOT + i*1040}"); o(f"s_waitcnt lgkmcnt(3)"); o(ldt(i))
            o(f"ds_read_u16 v{IX[i]}, v{vL1} offset:{loff(nxt)+64*i}")
    o(f"ds_read_b32 v{IXE}, v{vL2}"); rdidx(0)
    o(f"v_lshlrev_b32 v{f[9]}, 3, v0"); addg(f[9])
    o("s_waitcnt lgkmcnt(4)")
    o(f"v_and_b32 v{IXE}, 0x7ffff, v{IXE}"); o(lde())
    for u in range(NS): fill(u, u + 1)
    for k in range(4): o(f"ds_read_u8 v{f[12+k]}, v{f[9]} offset:{LIST+2+k*2048}")
    o(f"ds_read_b32 v{IXE}, v{vL2} offset:512"); o(f"ds_read_u8 v{vSV}, v{vSA}")
    xstamp("fill_issued")
    def ctrl():
        o(f"s_movk_i32 s{sS0}, {ROW}")
        for k in range(4):
            o(f"v_cmp_gt_u32 vcc, {NA}, v{f[12+k]}"); o(f"v_mad_u32_u24 v{f[0]}, v{f[12+k]}, s{sS0}, v{PT+2}"); o("s_nop 0")
            o(f"v_cndmask_b32 v{f[1]}, 0, v{PT+1}, vcc")
            o(f"ds_or_b32 v{f[0]}, v{f[1]} offset:{MB + (k&1)*128 + (k>>1)*8}")
        o(f"s_add_u32 s{sNT}, s{sNT}, 255"); o(f"s_lshr_b32 s{sNT}, s{sNT}, 8"); o(f"s_lshl1_add_u32 s{sNT}, s{sNT}, -1")
        o(f"s_add_u32 s{sCNT}, s{sCNT}, 255"); o(f"s_lshr_b32 s{sCNT}, s{sCNT}, 8"); o(f"s_lshl_b32 s{sCNT}, s{sCNT}, 1")
        o(f"s_max_i32 s{sNT}, s{sNT}, s{sCNT}"); o(f"s_max_i32 s{sNT}, s{sNT}, 2"); o(f"s_sub_u32 s{sCNT}, s{sNT}, 2")
        o(f"s_add_u32 s{sMET}, s{sME}, 4096"); o(f"s_xor_b32 s{sMET}, s{sMET}, s{sME}"); o(f"s_add_u32 s{sME}, s{sME}, 4096")
        o(f"v_add_u32 v{vL2}, 0x400, v{vL2}")
    def lut():
        q = T0
        for d in range(4):
            o(f"v_bfe_u32 v{q+d}, v0, {2*d}, 2"); o(f"v_mul_u32_u24 v{q+d}, 0x8001, v{q+d}")
            o(f"v_and_b32 v{q+d}, 0x10001, v{q+d}"); o(f"v_mul_u32_u24 v{q+d}, 0x3f80, v{q+d}")
        o(f"v_lshlrev_b32 v{q+4}, 4, v0"); o(f"ds_write_b128 v{q+4}, {vr(q,4)} offset:{LUT}")
        o(f"v_lshrrev_b32 v{q}, 3, v0"); o(f"v_and_b32 v{q+1}, 7, v0")
        o(f"v_bfe_u32 v{q+2}, v0, 5, 1"); o(f"v_bfe_u32 v{q+3}, v0, 6, 1"); o(f"v_lshl_or_b32 v{q+2}, v{q+2}, 1, v{q+3}")
        o(f"v_lshrrev_b32 v{q+3}, 7, v0"); o(f"v_lshl_or_b32 v{q+2}, v{q+3}, 2, v{q+2}")
        o(f"v_cmp_eq_u32 vcc, v{q+2}, v{q+1}"); o(f"v_cmp_gt_u32 s[{sHM}:{sHM+1}], {NA}, v{q}"); o(f"v_mov_b32 v{q+6}, 0x3f80"); o(f"v_mov_b32 v{q+7}, 0")
        o(f"s_and_b64 vcc, vcc, s[{sHM}:{sHM+1}]")
        o(f"v_and_b32 v{q+2}, 3, v{q}"); o(f"v_lshlrev_b32 v{q+2}, 4, v{q+2}"); o(f"v_cndmask_b32 v{q+6}, 0, v{q+6}, vcc")
        o(f"v_lshlrev_b64 {vr(q+6,2)}, v{q+2}, {vr(q+6,2)}")
        o(f"v_min_u32 v{q}, {NA}, v{q}"); o(f"v_mul_u32_u24 v{q}, 80, v{q}"); o(f"v_lshl_add_u32 v{q}, v{q+1}, 3, v{q}")
        o(f"ds_write_b64 v{q}, {vr(q+6,2)} offset:{IDT}")
    o(f"s_cmp_eq_u32 s{sFIRST}, 1"); o("s_cbranch_scc1 G1")
    o("s_waitcnt lgkmcnt(0)")
    ctrl()
    o("s_branch G1D")
    lab("G1")
    for mt in range(2):
        for s in range(8): o(f"ds_read_b128 {vr(GV+32*mt+4*s,4)}, v{vXA} offset:{mt*2080 + 16*s}")
        if mt == 0: o("s_waitcnt lgkmcnt(8)")
    lt = capture(lut); ct = capture(ctrl)
    for x in lt[:18]: o(x)
    o(f"s_waitcnt vmcnt({4*NS+2}) lgkmcnt(9)")
    acc = [ACC + 32, ACC + 48]
    interleave([m32(acc[0], GV+4*s, ACC+4*s, None if s == 0 else acc[0]) for s in range(8)], lt[18:] + ct[:16], 5)
    o("s_waitcnt lgkmcnt(5)")
    def cv(mt): return [f"v_cvt_pk_bf16_f32 v{AF+8*mt+r//2}, v{acc[mt]+r}, v{acc[mt]+r+1}" for r in range(0, 16, 2)]
    interleave([m32(acc[1], GV+32+4*s, ACC+4*s, None if s == 0 else acc[1]) for s in range(8)],
               ct[16:] + cv(0) + [f"v_mov_b32 v{acc[0]+r}, 0" for r in range(16)], 5)
    for r in range(32): o(f"v_mov_b32 v{ACC+r}, 0")
    for x in cv(1): o(x)
    for r in range(16): o(f"v_mov_b32 v{acc[1]+r}, 0")
    if STAMP:
        o("s_getreg_b32 s94, hwreg(HW_REG_HW_ID)"); o("s_getreg_b32 s100, hwreg(HW_REG_XCC_ID)"); o("s_and_b32 s94, s94, 0xffff"); o("s_lshl_b32 s100, s100, 16"); o("s_or_b32 s94, s94, s100"); o(f"v_writelane_b32 v{VST[0]}, s94, 3")
    lab("G1D")
    o(f"v_and_b32 v{MQ}, 0xffff, v{PT}"); o(f"v_lshrrev_b32 v{MQ+1}, 16, v{PT}")
    xstamp("g1_done"); stamp(4)
    o(f"s_waitcnt vmcnt({4*(NS-1)}) lgkmcnt(0)"); xstamp("t0_landed"); o("s_barrier")
    o(f"ds_read_b128 {vr(SEL,4)}, v{MQ}"); o(f"ds_read_b128 {vr(SEL+4,4)}, v{MQ+1}")
    o(f"ds_read_b128 {vr(EF,4)}, v{vEA}")
    for j in range(4): o(f"ds_read_b128 {vr(TF+4*j,4)}, v{vTA} offset:{16*j}")
    o(f"s_setprio {OPT.get('lp', 2)}")
    if OPT.get('young'):
        o("s_cmp_lt_u32 s2, 256"); o("s_cbranch_scc1 OLD"); o(f"s_setprio {OPT['young']}"); lab("OLD")
    if OPT.get('fakec'): o(f"v_lshrrev_b32 v{vTC}, 2, v{vWF}"); o(f"v_add_u32 v{vTC}, s{sMR}, v{vTC}")
    stamp(6); stamp(8, "s_memtime")
    bodies = [body(b) for b in range(4)]
    if not OPT.get('noval') and not OPT.get('fakec'): check_hazards(sum(bodies, []) + ["s_branch LOOP"])
    emit(body(0, peel=True))
    b1 = bodies[1][:bodies[1].index("ENT1:")]
    o("s_nop 7")
    emit([x for x in b1 if not x.startswith(("v_mfma", "s_sub", "s_cbranch"))])
    o("s_branch ENT1")
    lab("TOOBIG")
    o(f"s_mov_b32 s{sLIM}, {LOWLIM}"); o(f"v_mov_b32 v{a}, 0")
    o("s_waitcnt lgkmcnt(0)"); o("s_barrier")
    o(f"ds_write_b32 v{b_}, v{a} offset:{CNT}")
    o("s_waitcnt lgkmcnt(0)"); o("s_barrier")
    o("s_branch REMASK")
    lab("LOOP")
    emit(sum(bodies, []))
    if OPT.get('pp', '99,8,4') != '0' and not G8:
        th = [int(x) for x in OPT.get('pp', '99,8,4').split(',')]
        o(f"s_add_u32 s{sT0}, s{sCNT}, s{sRS}")
        for k, v in enumerate(th):
            if v < 99: o(f"s_cmp_lt_u32 s{sT0}, {v}"); o("s_cbranch_scc0 LOOP"); o(f"s_setprio {2-k}")
    o("s_branch LOOP")
    assert len(set(HEAD.values())) == 1
    WU = TF; x = AF
    def fin(p):
        d = ACC + 32 * p; r = []
        for k in range(16): r.append(f"v_add_f32 v{d+k}, s{sEPS}, v{d+k}")
        for k in range(16): r.append(f"v_rcp_f32 v{d+k}, v{d+k}")
        for k in range(16): r.append(f"v_mul_f32 v{d+16+k}, v{d+k}, v{d+16+k}")
        return r
    def unp(p): return sum(([f"v_lshlrev_b32 v{ACC+32*p+2*k}, 16, v{x+8*p+k}", f"v_and_b32 v{ACC+32*p+2*k+1}, s{sT1}, v{x+8*p+k}"] for k in range(8)), [])
    def post(p):
        r = []
        for k in range(8):
            z = ACC + 32*p + 16 + 2*k
            r += [f"v_max_f32 v{z}, 0, v{z}", f"v_max_f32 v{z+1}, 0, v{z+1}", f"v_add_f32 v{z}, v{z}, v{z-16}", f"v_add_f32 v{z+1}, v{z+1}, v{z-15}",
                  f"v_cvt_pk_bf16_f32 v{x+8*p+k}, v{z}, v{z+1}"]
        return r
    def st(p): return [f"s_mov_b64 exec, {((1 << (NA - p)) - 1):#x}", f"s_mov_b32 exec_hi, exec_lo"] + \
        [f"buffer_store_dwordx4 {vr(x+8*p+4*k,4)}, {vr(IX[p],2)}, s[{sO}:{sO+3}], 0 idxen offen offset:{16*k} {OPT.get('outpol', '').replace('+', ' ')}" for k in range(2)] + ["s_mov_b64 exec, -1"]
    assert RN - NA == NA - 1
    for p in (1, 0):
        q = 1 - p; Gc = GV + 32 * q
        lab(f"TAIL{p}")
        stamp(7); stamp(11, "s_memtime")
        if STAMP: o(f"v_writelane_b32 v{VST[0]}, s{sNT}, 12")
        o(f"ds_read_b128 {vr(T0,4)}, v{MQ}"); o(f"ds_read_b128 {vr(T0+4,4)}, v{MQ+1}")
        o(f"s_cmp_lg_u32 s{sMORE}, 0"); o(f"s_cbranch_scc1 TAILM{p}")
        o("s_waitcnt lgkmcnt(0)")
        for ins in wload(WU, WF_U): o(ins)
        for s in range(8): o(f"ds_read_b128 {vr(GV+32*p+4*s,4)}, v{vXA} offset:{p*2080+16*s}")
        for mt in range(2):
            for k in range(2): o(f"ds_read_b128 {vr(x+8*mt+4*k,4)}, v{vXR} offset:{mt*2080+16*k}")
        o(f"v_and_b32 v{IX[0]}, 31, v0"); o(f"v_and_b32 v{IX[0]+1}, 0xe0, v0"); o(f"v_add_u32 v{IX[0]}, s{sBASE}, v{IX[0]}")
        o(f"v_add_u32 v{IX[1]}, {NA}, v{IX[0]}"); o(f"v_mov_b32 v{IX[1]+1}, v{IX[0]+1}")
        o(f"s_mov_b32 s{sT1}, 0xffff0000")
        vs = [i for i, _ in vstream(Gc, Gc + 16)[HEAD[0]:]]
        for ins in vs: o(ins)
        o("s_nop 0")
        interleave(zphase(Gc, q), fin(p), 8)
        for s in range(8): o(f"ds_read_b128 {vr(Gc+4*s,4)}, v{vXA} offset:{q*2080+16*s}")
        o("s_waitcnt vmcnt(0) lgkmcnt(8)")
        interleave([m32(ACC+32*p+16, WU+4*s, GV+32*p+4*s, ACC+32*p+16) for s in range(8)], fin(q), 6)
        o("s_waitcnt lgkmcnt(0)"); o("s_nop 0")
        interleave([m32(ACC+32*q+16, WU+4*s, Gc+4*s, ACC+32*q+16) for s in range(8)], unp(p) + post(p) + unp(q), 7)
        for ins in st(p) + post(q) + st(q): o(ins)
        if p == 1: o("s_branch K2_FIN")
    lab("K2_FIN")
    stamp_out(9, GV, sW, 1)
    lab("K2_END")
    o("s_endpgm")
    for p in (1, 0):
        Gc = GV + 32 * (1 - p)
        lab(f"TAILM{p}")
        for ins, _ in vstream(Gc, Gc + 16)[HEAD[0]:]: o(ins)
        o("s_waitcnt lgkmcnt(0)")
        for m in zphase(Gc, 1 - p): o(m)
        if p == 1: o("s_branch NEXTROUND")
    lab("NEXTROUND")
    for i in range(4):
        o(f"v_lshrrev_b32 v{vTC}, 19, v{SEG+i}"); o(f"v_min_u32 v{vTC}, s{sLIM}, v{vTC}")
        o(f"v_add_u32 v{SEG+i}, v{SEG+i}, v{vTC}"); o(f"v_lshlrev_b32 v{vTC}, 19, v{vTC}"); o(f"v_sub_u32 v{SEG+i}, v{SEG+i}, v{vTC}")
    o(f"s_mov_b32 s{sFIRST}, 0"); o(f"s_mov_b32 s{sLIM}, 16")
    o("s_waitcnt vmcnt(0) lgkmcnt(0)"); o("s_barrier")
    o("s_branch ROUND")

def kd(name, nv, ns):
    L.append(".p2align 6")
    L.append(f".amdhsa_kernel {name}")
    for k, v in (("next_free_vgpr", nv), ("next_free_sgpr", ns), ("accum_offset", (nv + 3) // 4 * 4), ("group_segment_fixed_size", 0),
                 ("kernarg_size", 96), ("user_sgpr_count", 2), ("user_sgpr_kernarg_segment_ptr", 1), ("system_sgpr_workgroup_id_x", 1),
                 ("float_denorm_mode_32", 3)):
        L.append(f"  .amdhsa_{k} {v}")
    L.append(".end_amdhsa_kernel")

hdr = [l for l in open(f"cdna_kernels/{NAME}.s.ref").read().splitlines() if l.startswith(";") and "@launch" not in l
       and "Override launch" not in l and "grid=ceil" not in l]
L += hdr
L.append(f"; @launch kernel=gsort_kernel grid=({K1_GRID},1,1) block=(512,1,1) lds={K1_LDS}")
L.append(f"; @launch kernel=gmain_kernel grid=(256,1,1) block=(512,1,1) lds={NB+2*GS}" if G8 else f"; @launch kernel=gmain_kernel grid=(512,1,1) block=(256,1,1) lds={K2_LDS}")
L.append('.amdgcn_target "amdgcn-amd-amdhsa--gfx950"'); L.append(".text")
(gen_k1a if OPT.get('k1') == 'a' else gen_k1)(); gen_k2()
lab("CODE_END")
L.append('.section .rodata,"a"')
kd("gsort_kernel", 256 if STAMP else 252, 102 if STAMP else 80); kd("gmain_kernel", 256 if STAMP else NVGPR, 102)
if STAMP: L.append("; STAMPS " + repr(NAMES))
open(sys.argv[1], "w").write("\n".join(L) + "\n")
print("vgprs", NVGPR, "lds", K2_LDS, "lines", len(L), file=sys.stderr)
```

```python
import sys, struct, re

N = 25000; E = 400000; RN = 49; NR = 511; CH = 1600; NCH = 250
WS_REC = 0; WS_OFF = 0x310000; OROW = 1152; WS_WF = 0x3c0000; WS_TAB = 0x400000; WS_SIZE = 0x4000000
WF_A = 0; WF_U = 0x8000; WF_C = 0x10000; NA = 25
NLOG2E = struct.unpack('<I', struct.pack('<f', -1.4426950408889634))[0]
EPS = struct.unpack('<I', struct.pack('<f', 1e-6))[0]
NAME = "standalone__edge_featured_mpnn_gatedgcn__graph"
OPT = dict(k1='a', tabpol='sc1', recpol='sc1', touch='1', tsh='19', outpol='nt', bon='4', lp='3', pp='23,15,7')
OPT.update(a.split('=') for a in sys.argv[2:])
STAMP = int(OPT.get('stamp', 0))
WS_TAB = int(OPT.get('tab', hex(WS_TAB)), 0)
WS_STAMP = 0x3800000
L = []
def o(s): L.append("    " + s)
def lab(s): L.append(s + ":")
def vr(b, n): return f"v[{b}:{b+n-1}]"
VST = [60]
NAMES = {}
def stamp(i, ins="s_memrealtime", name=None):
    if STAMP:
        o(f"{ins} s[100:101]"); o("s_waitcnt lgkmcnt(0)"); o(f"v_writelane_b32 v{VST[0]}, s100, {i}")
def xstamp(name):
    if STAMP:
        NAMES[name] = 16 + len(NAMES); stamp(NAMES[name])
def stamp_out(n, reg, srdn, kern):
    if not STAMP: return
    o("s_mov_b64 exec, -1")
    stamp(n)
    o(f"v_lshlrev_b32 v{reg}, 2, v0")
    if kern and int(OPT.get('g8', 0)): o("s_and_b32 s63, s3, 1"); o("s_lshl_b32 s63, s63, 8"); o("s_add_u32 s2, s2, s63")
    o(f"s_lshl_b32 s63, s2, 11"); o(f"s_add_u32 s63, s63, {WS_STAMP + kern*0x100000:#x}")
    o(f"buffer_store_dword v{VST[0]}, v{reg}, s[{srdn}:{srdn+3}], s63 offen")
def srd(d, lo, size, stride=0):
    o(f"s_mov_b32 s{d}, s{lo}"); o(f"s_and_b32 s{d+1}, s{lo+1}, 0xffff")
    if stride: o(f"s_or_b32 s{d+1}, s{d+1}, {stride << 16:#x}")
    o(f"s_mov_b32 s{d+2}, {size:#x}"); o(f"s_mov_b32 s{d+3}, 0x20000")
def scan64(v):
    for d in ("row_shr:1", "row_shr:2", "row_shr:4", "row_shr:8"):
        o("s_nop 1"); o(f"v_add_u32_dpp v{v}, v{v}, v{v} {d} row_mask:0xf bank_mask:0xf bound_ctrl:0")
    o("s_nop 1"); o(f"v_add_u32_dpp v{v}, v{v}, v{v} row_bcast:15 row_mask:0xa bank_mask:0xf")
    o("s_nop 1"); o(f"v_add_u32_dpp v{v}, v{v}, v{v} row_bcast:31 row_mask:0xc bank_mask:0xf")

def m32(d, a, b, c): return f"v_mfma_f32_32x32x16_bf16 {vr(d,16)}, {vr(a,4)}, {vr(b,4)}, " + ("0" if c is None else vr(c,16))
K1_GRID = 256
OG = 4224
K1_W = 16896; K1_X = K1_W + 65536; K1_S = K1_X + 4 * 8320; K1_LDS = K1_S + 8 * 4608
def gen_k1():
    L.append(".globl gsort_kernel"); L.append(".p2align 8"); L.append(".type gsort_kernel,@function")
    lab("gsort_kernel"); VST[0] = 255
    pol = OPT.get('tabpol', '').replace('+', ' '); rpol = OPT.get('recpol', '').replace('+', ' ')
    stamp(0)
    o("s_load_dwordx8 s[4:11], s[0:1], 0")
    o("s_load_dwordx8 s[40:47], s[0:1], 32")
    o("s_load_dwordx2 s[48:49], s[0:1], 64")
    o("s_load_dwordx2 s[12:13], s[0:1], 88")
    o(f"s_cmp_ge_u32 s2, {K1_GRID}"); o("s_cbranch_scc1 K1_END")
    o("v_lshrrev_b32 v2, 6, v0"); o("v_lshlrev_b32 v1, 2, v0")
    o("s_and_b32 s36, s2, 7"); o("s_lshl_b32 s36, s36, 5"); o("s_lshr_b32 s35, s2, 3"); o("s_add_u32 s36, s36, s35")
    o("v_readfirstlane_b32 s33, v2")
    o("v_mov_b32 v2, 0"); o("ds_write_b32 v1, v2")
    o(f"s_mul_i32 s3, s2, {CH*4}"); o("s_mul_i32 s37, s36, 98")
    o(f"s_cmp_lt_u32 s2, {NCH}"); o(f"s_cselect_b32 s14, {CH//4}, 0")
    o("v_cmp_gt_u32 vcc, s14, v0")
    o("v_lshlrev_b32 v40, 4, v0")
    o("v_bfe_u32 v56, v0, 4, 1"); o("v_bfe_u32 v57, v0, 5, 1"); o("v_and_b32 v20, 63, v0")
    o("s_mov_b32 s68, 0"); o("v_lshlrev_b32 v42, 4, v20")
    o("v_bfe_u32 v43, v0, 4, 2"); o("v_lshlrev_b32 v43, 6, v43"); o("v_xor_b32 v43, v43, v40")
    o("v_lshl_add_u32 v58, v57, 3, v56")
    o("s_lshr_b32 s14, s33, 2"); o("s_lshl_b32 s14, s14, 4"); o("s_and_b32 s15, s33, 3"); o("s_lshl1_add_u32 s14, s15, s14")
    o("v_add_u32 v58, s14, v58"); o("v_add_u32 v54, s37, v58")
    o("v_and_b32 v55, 15, v0"); o("v_lshlrev_b32 v59, 3, v56"); o("v_xor_b32 v55, v55, v59"); o("v_lshlrev_b32 v55, 4, v55")
    o("s_mul_i32 s38, s33, 1040"); o(f"s_add_u32 s38, s38, {K1_X}")
    o("s_lshl_b32 s39, s33, 10"); o(f"s_add_u32 s39, s39, {K1_W}")
    o("s_mov_b32 m0, s38")
    o("s_waitcnt lgkmcnt(0)")
    srd(60, 4, N, 256)
    def xd(t):
        if t: o(f"s_add_u32 m0, s38, {t*8320}"); o("v_add_u32 v54, 32, v54")
        if t == 3: o("v_cmp_gt_u32 vcc, 2, v58"); o("v_mov_b32 v59, 0xffff"); o("s_nop 0"); o("v_cndmask_b32 v54, v59, v54, vcc")
        o("buffer_load_dwordx4 v[54:55], s[60:63], 0 idxen offen lds")
    xd(0); xd(1)
    srd(20, 10, E*4); srd(16, 8, E*4)
    o("s_and_saveexec_b64 s[28:29], vcc"); o("s_mov_b64 s[28:29], exec"); o("s_cbranch_execz K1_PREP")
    o("buffer_load_dwordx4 v[4:7], v40, s[20:23], s3 offen")
    o("buffer_load_dwordx4 v[8:11], v40, s[16:19], s3 offen")
    lab("K1_A")
    o("s_mov_b64 exec, -1")
    TCH = int(OPT.get('touch', 0)); SPL = int(OPT.get('split', 0))
    if TCH:
        srd(24, 12, WS_SIZE)
        o("s_lshl_b32 s14, s37, 9"); o(f"s_add_u32 s14, s14, {WS_TAB:#x}"); o("v_mov_b32 v248, s14"); o("s_lshl_b32 s14, s3, 1")
        o("v_writelane_b32 v248, s14, 1"); o(f"s_mov_b32 s14, {WS_OFF:#x}"); o("v_writelane_b32 v248, s14, 2")
        o("buffer_load_dword v249, v248, s[24:27], 0 offen")
    if not OPT.get('early'): o("s_barrier")
    srd(52, 42, 32768); srd(56, 48, 32768)
    for m in range(2):
        for i in range(4):
            o(f"s_add_u32 m0, s39, {m*32768+i*8192}"); o(f"s_movk_i32 s14, {i*8192}"); o(f"buffer_load_dwordx4 v43, s[{52+4*m}:{55+4*m}], s14 offen lds")
    xd(2); xd(3)
    if OPT.get('early'): o("s_barrier")
    def addrs():
        srd(24, 12, WS_SIZE)
        o("v_bfe_u32 v60, v0, 2, 2"); o("v_lshl_add_u32 v60, v57, 6, v60"); o("v_lshlrev_b32 v60, 8, v60")
        o("v_and_b32 v61, 3, v0"); o("v_lshl_add_u32 v60, v61, 3, v60"); o("v_lshl_add_u32 v60, v56, 5, v60")
        o("s_and_b32 s30, s33, 3"); o("v_bfe_u32 v61, v0, 2, 2"); o("v_xor_b32 v61, s30, v61"); o("v_lshl_add_u32 v60, v61, 6, v60"); o(f"v_add_u32 v60, {K1_W}, v60")
        o("v_bfe_u32 v61, v0, 1, 2"); o("v_lshl_or_b32 v61, v56, 2, v61"); o("v_mul_u32_u24 v61, 1040, v61")
        o("v_and_b32 v62, 1, v0"); o("v_bfe_u32 v63, v0, 3, 1"); o("v_lshl_or_b32 v63, v63, 1, v62"); o("v_lshl_add_u32 v61, v63, 8, v61")
        o("s_lshr_b32 s32, s33, 2"); o("s_mul_i32 s14, s32, 8320"); o(f"s_add_u32 s14, s14, {K1_X}")
        o("v_xor_b32 v62, v62, v57"); o("v_lshl_add_u32 v61, v62, 7, v61"); o("v_add_u32 v61, s14, v61")
        o("s_mul_i32 s14, s33, 4608"); o(f"s_add_u32 s14, s14, {K1_S}")
        o("v_and_b32 v62, 31, v0"); o("v_mul_u32_u24 v62, 144, v62"); o("v_lshl_add_u32 v62, v57, 6, v62"); o("v_add_u32 v62, s14, v62")
        o("v_lshrrev_b32 v58, 3, v20"); o("v_and_b32 v59, 7, v0"); o("v_lshlrev_b32 v59, 4, v59")
        o("v_mul_u32_u24 v63, 144, v58"); o("v_add3_u32 v63, v63, v59, s14")
        o("s_lshl_b32 s14, s32, 5"); o("s_add_u32 s14, s14, s37"); o("s_lshl_b32 s14, s14, 9"); o("s_lshl_b32 s30, s30, 7"); o("s_add_u32 s14, s14, s30")
        o("v_lshl_add_u32 v59, v58, 9, v59"); o("v_add_u32 v59, s14, v59")
        o("s_lshl_b32 s31, s3, 1")
    addrs()
    o(f"s_mul_i32 s34, s2, {CH}")
    o("v_add_u32 v3, s34, v1"); o("v_mov_b32 v2, 1"); o(f"s_mov_b32 s15, {-RN}")
    o("v_lshlrev_b32 v20, 5, v20")
    o("s_mov_b64 exec, s[28:29]"); o("s_cbranch_execz K1_B")
    o(f"s_waitcnt vmcnt({10+TCH})"); stamp(1)
    for i in range(4):
        o(f"v_mul_u32_u24 v{12+i}, 21400, v{4+i}")
        o(f"v_lshrrev_b32 v{12+i}, 20, v{12+i}")
        o(f"v_mad_i32_i24 v{4+i}, v{12+i}, s15, v{4+i}")
        o(f"v_lshlrev_b32 v{12+i}, 2, v{12+i}")
        o(f"ds_add_rtn_u32 v{16+i}, v{12+i}, v2")
    lab("K1_B")
    o("s_mov_b64 exec, -1")
    o(f"s_add_u32 s12, s12, {WS_TAB:#x}"); o("s_addc_u32 s13, s13, 0"); srd(16, 12, N * 512)
    o(f"s_mov_b32 s15, {NLOG2E:#x}")
    o(f"s_waitcnt vmcnt({2*SPL}) lgkmcnt(0)"); o("s_barrier"); stamp(3)
    lab("K1_J")
    WF_ = 64; XF_ = 128; AC = [160, 192]
    for m in range(2):
        for s in range(8):
            for jj in range(2): o(f"ds_read_b64_tr_b16 v[{WF_+32*m+4*s+2*jj}:{WF_+32*m+4*s+2*jj+1}], v60 offset:{m*32768+s*2048+jj*1024}")
            if m == 0: o(f"ds_read_b128 {vr(XF_+4*s,4)}, v61 offset:{16*s}")
    o("ds_read_b128 v[24:27], v20"); o("ds_read_b128 v[28:31], v20 offset:16")
    def post(t):
        a = AC[t]; r = []
        for k in range(16): r.append(f"v_mul_f32 v{a+k}, s15, v{a+k}")
        for k in range(16): r.append(f"v_cvt_pk_bf16_f32 v{224+k}, v{a+2*k}, v{a+2*k+1}")
        r += [f"ds_write_b128 v62, {vr(224+4*c,4)} offset:{16*c}" for c in range(4)]
        r += [f"ds_read_b128 {vr(a+4*k,4)}, v63 offset:{k*8*144}" for k in range(4)]
        return r
    def stores(t):
        r = []
        for k in range(4):
            r += [f"s_waitcnt lgkmcnt({3-k})", f"buffer_store_dwordx4 {vr(AC[t]+4*k,4)}, v59, s[16:19], 0 offen {pol}", "v_add_u32 v59, 0x1000, v59"]
        return r
    def recs():
        for i in range(4):
            o(f"v_cmp_lt_u32 vcc, {NA-1}, v{4+i}"); o(f"v_mul_u32_u24 v22, 83, v{8+i}"); o("v_lshrrev_b32 v22, 16, v22")
            o(f"v_cndmask_b32 v23, 0, {NA}, vcc"); o(f"v_sub_u32 v23, v{4+i}, v23")
            o(f"v_lshl_or_b32 v{44+2*i}, v23, 16, v{8+i}")
            o("v_cndmask_b32 v23, 0, 32, vcc"); o("v_or_b32 v22, v22, v23")
            o(f"v_lshl_add_u32 v{45+2*i}, v22, 26, v3")
            if i < 3: o("v_add_u32 v3, 1, v3")
    def scan():
        o("v_mov_b32 v33, v24")
        for j in range(2, 8): o(f"v_add_u32 v{32+j}, v{31+j}, v{23+j}")
        o("v_add_u32 v21, v39, v31"); o("v_mov_b32 v22, v21")
        scan64(21)
        o("v_sub_u32 v32, v21, v22")
        for j in range(1, 8): o(f"v_add_u32 v{32+j}, v32, v{32+j}")
    o("s_waitcnt lgkmcnt(15)")
    interleave([m32(AC[0], WF_+4*s, XF_+4*s, None if s == 0 else AC[0]) for s in range(8)], capture(recs), 5)
    o("s_waitcnt vmcnt(0) lgkmcnt(0)")
    if SPL: o("s_barrier")
    sc = capture(scan); p0 = post(0)
    q = sc + p0[:24]
    for s in range(8):
        o(m32(AC[0]+16, WF_+32+4*s, XF_+4*s, None if s == 0 else AC[0]+16))
        o(f"ds_read_b128 {vr(XF_+4*s,4)}, v61 offset:{2*8320+16*s}")
        for _ in range(5):
            if q: o(q.pop(0))
    lab("K1_G")
    o("s_waitcnt lgkmcnt(0)")
    mf = [m32(AC[1], WF_+4*s, XF_+4*s, None if s == 0 else AC[1]) for s in range(8)] + [m32(AC[1]+16, WF_+32+4*s, XF_+4*s, None if s == 0 else AC[1]+16) for s in range(8)]
    assert len(q) >= 8
    look = ["ds_write_b128 v20, v[32:35] offset:2048", "ds_write_b128 v20, v[36:39] offset:2064"] + [f"ds_read_b32 v{4+i}, v{12+i} offset:2048" for i in range(4)]
    q = q + p0[24:] + [None] * 5 + stores(0) + look
    for m in mf:
        o(m)
        for _ in range(5):
            if q:
                x = q.pop(0)
                if x: o(x)
    assert not q
    o("v_add_u32 v59, 0x4000, v59"); o("v_cmp_gt_u32 vcc, 2, v58")
    o("s_mov_b64 exec, s[28:29]")
    o("s_waitcnt lgkmcnt(0)")
    for i in range(4):
        o(f"v_add_lshl_u32 v{4+i}, v{4+i}, v{16+i}, 3"); o(f"ds_write_b64 v{4+i}, v[{44+2*i}:{45+2*i}] offset:4096")
    o("s_mov_b64 exec, -1")
    for x in post(1): o(x)
    stamp(4)
    o("s_cmp_lt_u32 s33, 4"); o("s_cbranch_scc1 K1_H")
    o("s_mov_b64 exec, vcc")
    for x in stores(1)[:2]: o(x)
    o("s_mov_b64 exec, -1")
    o("s_cmp_lg_u32 s68, 0"); o("s_cbranch_scc1 K1_PREP2")
    o("s_cmp_lg_u32 s33, 6"); o("s_cbranch_scc1 K1_I")
    for j in range(8): o(f"v_lshl_add_u32 v{24+j}, v{24+j}, 19, v{32+j}"); o(f"v_add_u32 v{24+j}, s34, v{24+j}")
    o(f"v_mul_u32_u24 v41, {OG//16}, v20"); o("s_lshl_b32 s35, s36, 4"); o(f"s_add_u32 s35, s35, {WS_OFF:#x}"); o(f"s_add_u32 s30, s35, {OG}")
    o("buffer_store_dwordx4 v[24:27], v41, s[24:27], s35 offen"); o("buffer_store_dwordx4 v[28:31], v41, s[24:27], s30 offen")
    o("s_branch K1_I")
    lab("K1_H")
    for x in stores(1): o(x)
    lab("K1_I")
    o(f"v_cmp_gt_u32 vcc, {CH//2-512}, v0")
    o("s_waitcnt lgkmcnt(0)"); o("s_barrier")
    o(f"s_cmp_lt_u32 s2, {NCH}"); o("s_cbranch_scc0 K1_F")
    o("ds_read_b128 v[44:47], v40 offset:4096"); o("ds_read_b128 v[48:51], v40 offset:12288")
    o("s_add_u32 s30, s31, 8192")
    o("s_waitcnt lgkmcnt(1)")
    o(f"buffer_store_dwordx4 v[44:47], v40, s[24:27], s31 offen {rpol}")
    o("s_and_saveexec_b64 s[28:29], vcc"); o("s_cbranch_execz K1_F")
    o("s_waitcnt lgkmcnt(0)")
    o(f"buffer_store_dwordx4 v[48:51], v40, s[24:27], s30 offen {rpol}")
    lab("K1_F")
    stamp_out(2, 12, 24, 0)
    lab("K1_END")
    o("s_endpgm")
    lab("K1_PREP")
    o("s_cmp_ge_u32 s2, 68"); o("s_cbranch_scc1 K1_A")
    o("s_mov_b64 exec, -1")
    o("s_lshr_b32 s14, s2, 5")
    o("s_cmp_eq_u32 s14, 1"); o("s_cselect_b32 s40, s46, s40"); o("s_cselect_b32 s41, s47, s41"); o(f"s_cselect_b32 s68, 1.0, {NLOG2E:#x}")
    o("s_mov_b32 s66, 32768"); o("s_bfe_u32 s50, s2, 0x20003"); o("s_and_b32 s51, s2, 7"); o("s_mov_b32 s32, 14")
    o("s_cmp_eq_u32 s14, 2"); o("s_cselect_b32 s40, s44, s40"); o("s_cselect_b32 s41, s45, s41"); o("s_cselect_b32 s66, 4096, s66")
    o("s_cselect_b32 s50, s51, s50"); o("s_cselect_b32 s51, 0, s51"); o("s_cselect_b32 s32, 11, s32")
    o("s_mov_b32 s64, s40"); o("s_and_b32 s65, s41, 0xffff"); o("s_mov_b32 s67, 0x20000")
    o("s_lshl_b32 s50, s50, 6"); o("s_lshl_b32 s51, s51, 11"); o("s_add_u32 s50, s50, s51")
    o("v_and_b32 v4, 3, v0"); o("v_bfe_u32 v5, v0, 3, 2"); o("v_lshl_or_b32 v4, v5, 2, v4")
    o("v_bfe_u32 v5, v0, 2, 1"); o("v_lshl_or_b32 v4, v5, 4, v4")
    o("v_lshlrev_b32 v5, s32, v57"); o("v_lshl_add_u32 v4, v4, 1, v5"); o("v_add_u32 v4, s50, v4")
    for j in range(8): o(f"buffer_load_ushort v{240+j}, v4, s[64:67], 0 offen offset:{j*256}")
    o("s_branch K1_A")
    lab("K1_PREP2")
    o("s_lshl_b32 s14, s2, 10"); o(f"s_add_u32 s14, s14, {WS_WF:#x}")
    for j in range(8):
        o(f"v_lshlrev_b32 v{240+j}, 16, v{240+j}"); o(f"v_mul_f32 v{240+j}, s68, v{240+j}")
    for j in range(4): o(f"v_cvt_pk_bf16_f32 v{52+j}, v{240+2*j}, v{241+2*j}")
    o("buffer_store_dwordx4 v[52:55], v42, s[24:27], s14 offen")
    o("s_branch K1_I")

SM = int(OPT.get('sm', 0)); SMS = N * 128 + int(OPT.get('smpad', 0))
def gen_k1a():
    L.append(".globl gsort_kernel"); L.append(".p2align 8"); L.append(".type gsort_kernel,@function")
    lab("gsort_kernel"); VST[0] = 255
    pol = OPT.get('tabpol', '').replace('+', ' '); rpol = OPT.get('recpol', '').replace('+', ' ')
    if OPT.get('cpf'):
        o("s_getpc_b64 s[70:71]")
        o("v_lshlrev_b32 v236, 7, v0"); o("v_min_u32 v236, CODE_END-gsort_kernel-8, v236")
        o("v_mov_b32 v237, s71"); o("v_add_co_u32 v236, vcc, s70, v236"); o("s_nop 1"); o("v_addc_co_u32 v237, vcc, 0, v237, vcc")
        o("global_load_dword v238, v[236:237], off")
    stamp(0)
    o("s_load_dwordx8 s[4:11], s[0:1], 0")
    o("s_load_dwordx8 s[40:47], s[0:1], 32")
    o("s_load_dwordx2 s[48:49], s[0:1], 64")
    o("s_load_dwordx2 s[12:13], s[0:1], 88")
    o("s_load_dwordx2 s[72:73], s[0:1], 72")
    o(f"s_cmp_ge_u32 s2, {K1_GRID}"); o("s_cbranch_scc1 K1_END")
    o("v_lshrrev_b32 v2, 6, v0"); o("v_lshlrev_b32 v1, 2, v0")
    o("s_and_b32 s36, s2, 7"); o("s_lshl_b32 s36, s36, 5"); o("s_lshr_b32 s35, s2, 3"); o("s_add_u32 s36, s36, s35")
    o("v_readfirstlane_b32 s33, v2")
    o("v_mov_b32 v2, 0"); o("ds_write_b32 v1, v2")
    o(f"s_mul_i32 s3, s2, {CH*4}"); o("s_mul_i32 s37, s36, 98")
    o(f"s_cmp_lt_u32 s2, {NCH}"); o(f"s_cselect_b32 s14, {CH//5}, 0")
    o("v_cmp_gt_u32 vcc, s14, v0")
    o("v_lshlrev_b32 v40, 4, v0")
    o("v_bfe_u32 v56, v0, 4, 1"); o("v_bfe_u32 v57, v0, 5, 1"); o("v_and_b32 v20, 63, v0")
    o("s_mov_b32 s68, 0"); o("v_lshlrev_b32 v42, 4, v20")
    o("v_mul_u32_u24 v43, 20, v0")
    o("s_cmp_ge_u32 s33, 5")
    o("s_waitcnt lgkmcnt(0)")
    o("s_cbranch_scc1 K1_LOAD")
    srd(20, 10, E*4); srd(16, 8, E*4)
    o("s_and_saveexec_b64 s[28:29], vcc"); o("s_mov_b64 s[28:29], exec"); o("s_cbranch_execz K1_A")
    o("buffer_load_dwordx4 v[64:67], v43, s[20:23], s3 offen"); o("buffer_load_dword v68, v43, s[20:23], s3 offen offset:16")
    o("buffer_load_dwordx4 v[72:75], v43, s[16:19], s3 offen"); o("buffer_load_dword v76, v43, s[16:19], s3 offen offset:16")
    lab("K1_A")
    o("s_mov_b64 exec, -1")
    o("s_barrier")
    def addrs():
        srd(24, 12, WS_SIZE)
        o("v_bfe_u32 v60, v0, 2, 2"); o("v_lshl_add_u32 v60, v57, 6, v60"); o("v_lshlrev_b32 v60, 8, v60")
        o("v_and_b32 v61, 3, v0"); o("v_lshl_add_u32 v60, v61, 3, v60"); o("v_lshl_add_u32 v60, v56, 5, v60")
        o("s_and_b32 s30, s33, 3"); o("v_bfe_u32 v61, v0, 2, 2"); o("v_xor_b32 v61, s30, v61"); o("v_lshl_add_u32 v60, v61, 6, v60"); o(f"v_add_u32 v60, {K1_W}, v60")
        o("v_bfe_u32 v61, v0, 1, 2"); o("v_lshl_or_b32 v61, v56, 2, v61"); o("v_mul_u32_u24 v61, 1040, v61")
        o("v_and_b32 v62, 1, v0"); o("v_bfe_u32 v63, v0, 3, 1"); o("v_lshl_or_b32 v63, v63, 1, v62"); o("v_lshl_add_u32 v61, v63, 8, v61")
        o("s_lshr_b32 s32, s33, 2"); o("s_mul_i32 s14, s32, 8320"); o(f"s_add_u32 s14, s14, {K1_X}")
        o("v_xor_b32 v62, v62, v57"); o("v_lshl_add_u32 v61, v62, 7, v61"); o("v_add_u32 v61, s14, v61")
        o("s_mul_i32 s14, s33, 4608"); o(f"s_add_u32 s14, s14, {K1_S}")
        o("v_and_b32 v62, 31, v0"); o("v_mul_u32_u24 v62, 144, v62"); o("v_lshl_add_u32 v62, v57, 6, v62"); o("v_add_u32 v62, s14, v62")
        o("v_lshrrev_b32 v58, 3, v20"); o("v_and_b32 v59, 7, v0"); o("v_lshlrev_b32 v59, 4, v59")
        o("v_mul_u32_u24 v63, 144, v58"); o("v_add3_u32 v63, v63, v59, s14")
        if SM:
            o("s_lshl_b32 s14, s32, 5"); o("s_add_u32 s14, s14, s37"); o("s_lshl_b32 s14, s14, 7"); o(f"s_mul_i32 s69, s30, {SMS}")
            o("v_add_u32 v59, s14, v42")
        else:
            o("s_lshl_b32 s14, s32, 5"); o("s_add_u32 s14, s14, s37"); o("s_lshl_b32 s14, s14, 9"); o("s_lshl_b32 s30, s30, 7"); o("s_add_u32 s14, s14, s30")
            o("v_lshl_add_u32 v59, v58, 9, v59"); o("v_add_u32 v59, s14, v59")
        o("s_lshl_b32 s31, s3, 1")
    addrs()
    o(f"s_mul_i32 s34, s2, {CH}")
    o("v_lshrrev_b32 v3, 2, v43"); o("v_add_u32 v3, s34, v3"); o("v_mov_b32 v2, 1"); o(f"s_mov_b32 s15, {-RN}"); o(f"s_movk_i32 s38, {-64*RN}")
    o("v_lshlrev_b32 v20, 5, v20")
    o("s_mov_b64 exec, s[28:29]"); o("s_cbranch_execz K1_B")
    o("s_waitcnt vmcnt(2)"); stamp(1)
    for i in range(5):
        o(f"v_mul_u32_u24 v{80+i}, 21400, v{64+i}")
        o(f"v_lshrrev_b32 v{80+i}, 20, v{80+i}")
        o(f"v_mad_i32_i24 v{64+i}, v{80+i}, s15, v{64+i}")
        o(f"v_lshlrev_b32 v{80+i}, 2, v{80+i}")
        o(f"ds_add_rtn_u32 v{88+i}, v{80+i}, v2")
    o("s_waitcnt vmcnt(0)")
    for i in range(5):
        o(f"v_cmp_lt_u32 vcc, {NA-1}, v{64+i}")
        if int(OPT.get('rot', 0)):
            o(f"v_lshrrev_b32 v22, 8, v{80+i}"); o(f"v_mad_i32_i24 v22, v22, s38, v{72+i}"); o(f"v_add_u32 v23, {512*RN}, v22"); o("v_min_u32 v22, v22, v23")
            o("v_mul_u32_u24 v22, 83, v22")
        else: o(f"v_mul_u32_u24 v22, 83, v{72+i}")
        o("v_lshrrev_b32 v22, 16, v22")
        o(f"v_cndmask_b32 v23, 0, {NA}, vcc"); o(f"v_sub_u32 v23, v{64+i}, v23")
        o(f"v_lshl_or_b32 v{96+2*i}, v23, 16, v{72+i}")
        o("v_cndmask_b32 v23, 0, 32, vcc"); o("v_or_b32 v22, v22, v23")
        o(f"v_lshl_add_u32 v{97+2*i}, v22, 26, v3")
        if i < 4: o("v_add_u32 v3, 1, v3")
    lab("K1_B")
    o("s_mov_b64 exec, -1")
    o("s_waitcnt lgkmcnt(0)"); o("s_barrier")
    o("ds_read_b128 v[24:27], v20"); o("ds_read_b128 v[28:31], v20 offset:16")
    o("s_waitcnt lgkmcnt(0)")
    o("v_mov_b32 v33, v24")
    for j in range(2, 8): o(f"v_add_u32 v{32+j}, v{31+j}, v{23+j}")
    o("v_add_u32 v21, v39, v31"); o("v_mov_b32 v22, v21")
    scan64(21)
    o("v_sub_u32 v32, v21, v22")
    for j in range(1, 8): o(f"v_add_u32 v{32+j}, v32, v{32+j}")
    o("ds_write_b128 v20, v[32:35] offset:2048"); o("ds_write_b128 v20, v[36:39] offset:2064")
    o("s_mov_b64 exec, s[28:29]")
    for i in range(5): o(f"ds_read_b32 v{64+i}, v{80+i} offset:2048")
    o("s_waitcnt lgkmcnt(0)")
    for i in range(5):
        o(f"v_add_lshl_u32 v{64+i}, v{64+i}, v{88+i}, 3"); o(f"ds_write_b64 v{64+i}, v[{96+2*i}:{97+2*i}] offset:4096")
    o("s_mov_b64 exec, -1")
    o("s_waitcnt lgkmcnt(0)"); o("s_barrier"); stamp(3)
    lab("K1_J")
    if OPT.get('pfe'):
        srd(76, 6, E*32); o("v_lshlrev_b32 v250, 7, v0"); o("s_lshl_b32 s14, s2, 16"); o("v_add_u32 v250, s14, v250")
        o("buffer_load_dword v251, v250, s[76:79], 0 offen " + OPT['pfe'].replace('p', ''))
    WF_ = 64; XF_ = 128; AC = [160, 192]
    o("ds_read_b128 v[44:47], v40 offset:4096"); o("ds_read_b128 v[48:51], v40 offset:12288")
    o(f"v_cmp_gt_u32 vcc, {CH//2-512}, v0")
    for m in range(2):
        for s in range(8):
            for jj in range(2): o(f"ds_read_b64_tr_b16 v[{WF_+32*m+4*s+2*jj}:{WF_+32*m+4*s+2*jj+1}], v60 offset:{m*32768+s*2048+jj*1024}")
        if m == 0:
            for s in range(8): o(f"ds_read_b128 {vr(XF_+4*s,4)}, v61 offset:{16*s}")
    o(f"s_add_u32 s12, s12, {WS_TAB:#x}"); o("s_addc_u32 s13, s13, 0")
    if SM: o("s_add_u32 s12, s12, s69"); o("s_addc_u32 s13, s13, 0")
    srd(16, 12, N * (128 if SM else 512))
    o(f"s_mov_b32 s15, {NLOG2E:#x}")
    def post(t):
        a = AC[t]; r = []
        for k in range(16): r.append(f"v_mul_f32 v{a+k}, s15, v{a+k}")
        for k in range(16): r.append(f"v_cvt_pk_bf16_f32 v{224+k}, v{a+2*k}, v{a+2*k+1}")
        r += [f"ds_write_b128 v62, {vr(224+4*c,4)} offset:{16*c}" for c in range(4)]
        r += [f"ds_read_b128 {vr(a+4*k,4)}, v63 offset:{k*8*144}" for k in range(4)]
        return r
    def stores(t):
        r = []
        for k in range(4):
            r += [f"s_waitcnt lgkmcnt({3-k})", f"buffer_store_dwordx4 {vr(AC[t]+4*k,4)}, v59, s[16:19], 0 offen {pol}", f"v_add_u32 v59, {0x400 if SM else 0x1000:#x}, v59"]
        return r
    o("s_waitcnt lgkmcnt(15)")
    o(f"s_cmp_lt_u32 s2, {NCH}"); o("s_cbranch_scc0 K1_E")
    o("s_add_u32 s30, s31, 8192")
    o(f"buffer_store_dwordx4 v[44:47], v40, s[24:27], s31 offen {rpol}")
    o("s_and_saveexec_b64 s[28:29], vcc"); o("s_cbranch_execz K1_E")
    o(f"buffer_store_dwordx4 v[48:51], v40, s[24:27], s30 offen {rpol}")
    lab("K1_E"); o("s_mov_b64 exec, -1")
    for s in range(8): o(m32(AC[0], WF_+4*s, XF_+4*s, None if s == 0 else AC[0]))
    o("s_waitcnt lgkmcnt(0)")
    for s in range(8):
        o(m32(AC[0]+16, WF_+32+4*s, XF_+4*s, None if s == 0 else AC[0]+16))
        o(f"ds_read_b128 {vr(XF_+4*s,4)}, v61 offset:{2*8320+16*s}")
    o("s_cmp_lg_u32 s68, 0"); o("s_cbranch_scc1 K1_PREP2")
    o("s_cmp_eq_u32 s33, 4"); o("s_cbranch_scc1 K1_OFF")
    lab("K1_G")
    o("s_waitcnt lgkmcnt(0)")
    mf = [m32(AC[1], WF_+4*s, XF_+4*s, None if s == 0 else AC[1]) for s in range(8)] + [m32(AC[1]+16, WF_+32+4*s, XF_+4*s, None if s == 0 else AC[1]+16) for s in range(8)]
    q = post(0) + [None] * 6 + stores(0)
    for m in mf:
        o(m)
        for _ in range(5):
            if q:
                x = q.pop(0)
                if x: o(x)
    assert not q
    o(f"v_add_u32 v59, {0x1000 if SM else 0x4000:#x}, v59"); o("v_cmp_gt_u32 vcc, 2, v58")
    for x in post(1): o(x)
    stamp(4)
    o("s_cmp_lt_u32 s33, 4"); o("s_cbranch_scc1 K1_H")
    o("s_mov_b64 exec, vcc")
    for x in stores(1)[:2]: o(x)
    o("s_branch K1_F")
    lab("K1_H")
    for x in stores(1): o(x)
    lab("K1_F")
    if OPT.get('touch') == '4':
        o("s_mov_b64 exec, -1"); o("s_cmp_lg_u32 s33, 7"); o("s_cbranch_scc1 K1_END")
        o("v_lshl_add_u32 v250, v20, 5, s35"); o(f"v_lshlrev_b32 v250, 19, v250")
        srd(76, 6, E*32); o("buffer_load_dword v249, v250, s[76:79], 0 offen")
        srd(76, 72, N*256); o("buffer_load_dword v249, v250, s[76:79], 0 offen")
        o("buffer_load_dword v249, v250, s[16:19], 0 offen"); o("s_mov_b32 s26, 0x400000"); o("buffer_load_dword v249, v250, s[24:27], 0 offen")
    stamp_out(2, 12, 24, 0)
    lab("K1_END")
    o("s_endpgm")
    lab("K1_OFF")
    for j in range(8): o(f"v_lshl_add_u32 v{24+j}, v{24+j}, 19, v{32+j}"); o(f"v_add_u32 v{24+j}, s34, v{24+j}")
    o(f"v_mul_u32_u24 v41, {OG//16}, v20"); o("s_lshl_b32 s35, s36, 4"); o(f"s_add_u32 s35, s35, {WS_OFF:#x}"); o(f"s_add_u32 s30, s35, {OG}")
    o("buffer_store_dwordx4 v[24:27], v41, s[24:27], s35 offen"); o("buffer_store_dwordx4 v[28:31], v41, s[24:27], s30 offen")
    o("s_branch K1_G")
    lab("K1_LOAD")
    nb0 = int(OPT.get('k1a', 0))
    nb = int(OPT.get('k1b', 24))
    o("s_cmp_eq_u32 s33, 7"); o("s_cbranch_scc1 K1_LX")
    o("s_cmp_eq_u32 s33, 6"); o("s_cselect_b32 s42, s48, s42"); o("s_cselect_b32 s43, s49, s43"); o("s_cselect_b32 s39, 0x8000, 0"); o(f"s_add_u32 s39, s39, {K1_W}")
    srd(52, 42, 32768)
    o("v_lshrrev_b32 v44, 4, v20"); o("v_lshlrev_b32 v44, 6, v44"); o("v_xor_b32 v44, v44, v42")
    for k in range(32):
        if k in (nb0, nb): o("s_barrier")
        if k % 4 == 0: o(f"s_add_u32 m0, s39, {k*1024}"); o(f"s_movk_i32 s14, {k*1024}")
        o(f"buffer_load_dwordx4 v44, s[52:55], s14 offen offset:{(k%4)*1024} lds")
    lab("K1_LD")
    addrs()
    o("s_waitcnt vmcnt(0)"); o("s_barrier")
    o("s_branch K1_J")
    def touch2():
        sh = int(OPT.get('tsh', 16))
        o("v_lshl_add_u32 v250, v20, 5, s35"); o(f"v_lshlrev_b32 v250, {sh}, v250")
        srd(76, 6, E*32); o("buffer_load_dword v249, v250, s[76:79], 0 offen")
        srd(76, 12, WS_TAB + 4*SMS); o("buffer_load_dword v249, v250, s[76:79], 0 offen")
        srd(76, 72, N*256); o("buffer_load_dword v249, v250, s[76:79], 0 offen")
    lab("K1_LX")
    if OPT.get('touch') == '3': touch2()
    if int(OPT.get('touch', 0)):
        srd(24, 12, WS_SIZE)
        o(f"s_lshl_b32 s14, s37, {7 if SM else 9}"); o(f"s_add_u32 s14, s14, {WS_TAB:#x}"); o("v_mov_b32 v248, s14")
        if SM: o("v_lshrrev_b32 v249, 4, v20"); o(f"v_mul_u32_u24 v249, {SMS}, v249"); o("v_add_u32 v248, v248, v249")
        o("s_lshl_b32 s14, s3, 1")
        o("v_writelane_b32 v248, s14, 1"); o(f"s_mov_b32 s14, {WS_OFF:#x}"); o("v_writelane_b32 v248, s14, 2")
        o("buffer_load_dword v249, v248, s[24:27], 0 offen")
    srd(60, 4, N, 256)
    o("v_lshl_add_u32 v58, v57, 3, v56"); o("v_add_u32 v53, s37, v58")
    o("v_and_b32 v55, 15, v0"); o("v_lshlrev_b32 v59, 3, v56"); o("v_xor_b32 v55, v55, v59"); o("v_lshlrev_b32 v55, 4, v55")
    o("v_cmp_gt_u32 vcc, 2, v58"); o("v_mov_b32 v59, 0xffff")
    for k in range(25):
        t, i = divmod(k, 8)
        if k in (nb0, nb): o("s_barrier")
        o(f"s_mov_b32 m0, {K1_X + t*8320 + i*1040}"); o(f"v_add_u32 v54, {32*t + 16*(i >> 2) + 2*(i & 3)}, v53")
        if t == 3: o("v_cndmask_b32 v54, v59, v54, vcc")
        o("buffer_load_dwordx4 v[54:55], s[60:63], 0 idxen offen lds")
    if OPT.get('touch') == '2': touch2()
    o("s_cmp_ge_u32 s2, 68"); o("s_cbranch_scc1 K1_LD")
    o("s_lshr_b32 s14, s2, 5")
    o("s_cmp_eq_u32 s14, 1"); o("s_cselect_b32 s40, s46, s40"); o("s_cselect_b32 s41, s47, s41"); o(f"s_cselect_b32 s68, 1.0, {NLOG2E:#x}")
    o("s_mov_b32 s66, 32768"); o("s_bfe_u32 s50, s2, 0x20003"); o("s_and_b32 s51, s2, 7"); o("s_mov_b32 s32, 14")
    o("s_cmp_eq_u32 s14, 2"); o("s_cselect_b32 s40, s44, s40"); o("s_cselect_b32 s41, s45, s41"); o("s_cselect_b32 s66, 4096, s66")
    o("s_cselect_b32 s50, s51, s50"); o("s_cselect_b32 s51, 0, s51"); o("s_cselect_b32 s32, 11, s32")
    o("s_mov_b32 s64, s40"); o("s_and_b32 s65, s41, 0xffff"); o("s_mov_b32 s67, 0x20000")
    o("s_lshl_b32 s50, s50, 6"); o("s_lshl_b32 s51, s51, 11"); o("s_add_u32 s50, s50, s51")
    o("v_and_b32 v4, 3, v0"); o("v_bfe_u32 v5, v0, 3, 2"); o("v_lshl_or_b32 v4, v5, 2, v4")
    o("v_bfe_u32 v5, v0, 2, 1"); o("v_lshl_or_b32 v4, v5, 4, v4")
    o("v_lshlrev_b32 v5, s32, v57"); o("v_lshl_add_u32 v4, v4, 1, v5"); o("v_add_u32 v4, s50, v4")
    for j in range(8): o(f"buffer_load_ushort v{8+j}, v4, s[64:67], 0 offen offset:{j*256}")
    o("s_branch K1_LD")
    lab("K1_PREP2")
    o("s_lshl_b32 s14, s2, 10"); o(f"s_add_u32 s14, s14, {WS_WF:#x}")
    for j in range(8):
        o(f"v_lshlrev_b32 v{8+j}, 16, v{8+j}"); o(f"v_mul_f32 v{8+j}, s68, v{8+j}")
    for j in range(4): o(f"v_cvt_pk_bf16_f32 v{52+j}, v{8+2*j}, v{9+2*j}")
    o("buffer_store_dwordx4 v[52:55], v42, s[24:27], s14 offen")
    o("s_branch K1_G")

def regs_of(tok):
    m = re.fullmatch(r"v\[(\d+):(\d+)\]", tok)
    if m: return set(range(int(m.group(1)), int(m.group(2)) + 1))
    m = re.fullmatch(r"v(\d+)", tok)
    return {int(m.group(1))} if m else set()
def check_hazards(ins):
    P = []
    for s in ins:
        if s.endswith(':'): continue
        op, _, rest = s.partition(' ')
        t = [x.strip() for x in rest.split(',')]
        t = [x.split(' ')[0] for x in t]
        if op.startswith('v_mfma'):
            P.append(('m', 12 if '32x32' in op else 8, regs_of(t[0]), regs_of(t[1]) | regs_of(t[2]), regs_of(t[3]), s))
        elif op.startswith('v_'):
            P.append(('t' if op in ('v_exp_f32', 'v_rcp_f32') else 'v', 0, regs_of(t[0]), set().union(*map(regs_of, t[1:])), set(), s))
        elif op.startswith('ds_read'):
            P.append(('d', 0, regs_of(t[0]), regs_of(t[1]), set(), s))
        elif op.startswith('buffer'):
            P.append(('d', 0, set(), regs_of(t[0]), set(), s))
        else: P.append(('s', 0, set(), set(), set(), s))
    n = len(P)
    for i, (k, w, d, ab, c, s) in enumerate(P):
        for j in range(1, 13):
            k2, w2, d2, ab2, c2, s2 = P[(i + j) % n]
            gap = j - 1
            if k == 'm':
                if k2 == 'm':
                    assert not (gap < w and d & ab2), (s, s2)
                    if d & c2 and d != c2: assert gap >= w - 2, (s, s2)
                else: assert not (gap < w and d & (d2 | ab2)), (s, s2, gap)
                if k2 in 'vt': assert not (gap < (7 if w == 12 else 3) and c & d2), (s, s2)
            if k in 'vt' and k2 == 'm': assert not (gap < 2 and d & (ab2 | c2)), (s, s2)
            if k == 't' and k2 == 'v': assert not (gap < 1 and d & ab2), (s, s2)

LOWLIM = 2; NS = 2
LUT = 0; IDT = 4096; NB = IDT + 26 * 80; LIST = NB + 256; MB = LIST + 8192; ROW = 264; CNT = MB + 26 * ROW; ZSZ = 26 * ROW + 256
ER = CNT + 256; RING = ER + 8192; WS_ = 4160; SLOT = 4 * WS_; K2_LDS = RING + (NS + 1) * SLOT
G8 = int(OPT.get('g8', 0)); GS = (K2_LDS - NB + 255) // 256 * 256
assert K2_LDS <= 81920 and ER % 16 == 0 and LIST % 16 == 0 and MB % 16 == 0 and 4096 < ZSZ <= 8192 and ZSZ % 16 == 0

class RA:
    def __init__(s): s.n = 1
    def get(s, k=1, al=1):
        s.n = (s.n + al - 1) // al * al
        b = s.n; s.n += k; return b
R = RA()
vTA = R.get()
IX = [R.get(2, 2) for _ in range(4)]; IXE = R.get(2, 2); MQ = R.get(2, 2)
(vTC, vEA, vMT, vSA, vMA, vL1, vL2, vSV, vHC, vWF, vXA, vXR, vXI, vXO) = [R.get() for _ in range(14)]
SEG = R.get(4, 4); PT = R.get(4, 4)
GV = R.get(64, 4); ACC = R.get(64, 4)
TF = R.get(16, 4); EF = R.get(4, 4); SF = R.get(8, 4); WC = R.get(4, 4); T0 = R.get(8, 4); AF = R.get(16, 4); SEL = R.get(8, 4)
NVGPR = R.n
assert NVGPR <= 255, NVGPR
REC = GV; RANK = GV + 32; AD = GV + 48
sX, sE, sW, sO, sT = 8, 12, 16, 20, 96
sWAVE, sBASE, sMR, sME, sCNT, sNT, sRS, sLIM, sFIRST, sMORE, sDS, sT0, sT1, sEPS, s80, sMET = range(24, 40)
sHM, sSV, sWF, sS0 = 42, 44, 52, 54
sK = 56
sG = 95
def addg(v):
    if G8: o(f"v_add_u32 v{v}, s{sG}, v{v}")
def saddg(r):
    if G8: o(f"s_add_u32 s{r}, s{r}, s{sG}")

def ldt(i): return f"buffer_load_dwordx4 {vr(IX[i],2)}, s[{sT}:{sT+3}], 0 idxen offen {OPT.get('tpol', '').replace('+', ' ')} lds".replace("  ", " ")
def lde(): return f"buffer_load_dwordx4 {vr(IXE,2)}, s[{sE}:{sE+3}], 0 idxen offen {OPT.get('epol', '').replace('+', ' ')} lds".replace("  ", " ")
def loff(u): return (u & 1) * 4096 + (u >> 1) * 256
def nextslot(r): return [f"s_add_u32 s{r}, s{r}, {SLOT}", f"s_cmp_eq_u32 s{r}, {NS*SLOT}", f"s_cselect_b32 s{r}, 0, s{r}"]

def vstream(Gc, Vc):
    A = []
    for p in range(0, 22, 2):
        if p < 16: A += [(f"v_exp_f32 v{Gc+p}, v{Gc+p}", 8), (f"v_exp_f32 v{Gc+p+1}, v{Gc+p+1}", 8)]
        q = p - 2
        if 0 <= q < 16:
            if 'a' in OPT.get('pk', ''): A += [(f"v_pk_add_f32 {vr(Gc+q,2)}, {vr(Gc+q,2)}, 1.0 op_sel_hi:[1,0]", 4)]
            else: A += [(f"v_add_f32 v{Gc+q}, 1.0, v{Gc+q}", 4), (f"v_add_f32 v{Gc+q+1}, 1.0, v{Gc+q+1}", 4)]
            A += [(f"v_rcp_f32 v{Gc+q}, v{Gc+q}", 8), (f"v_rcp_f32 v{Gc+q+1}, v{Gc+q+1}", 8)]
        q = p - 4
        if 0 <= q < 16 and 'm' in OPT.get('pk', ''): A += [(f"v_pk_mul_f32 {vr(Vc+q,2)}, {vr(Gc+q,2)}, {vr(Vc+q,2)}", 4)]
        elif 0 <= q < 16: A += [(f"v_mul_f32 v{Vc+q}, v{Gc+q}, v{Vc+q}", 4), (f"v_mul_f32 v{Vc+q+1}, v{Gc+q+1}, v{Vc+q+1}", 4)]
        q = p - 6
        if 0 <= q < 16: A += [(f"v_cvt_pk_bf16_f32 v{Gc+q//2}, v{Gc+q}, v{Gc+q+1}", 4), (f"v_cvt_pk_bf16_f32 v{Vc+q//2}, v{Vc+q}, v{Vc+q+1}", 4)]
    return A
def zphase(P, p):
    d = ACC + 32 * p
    return [m32(d, P, T0, d), m32(d+16, P+16, T0, d+16), m32(d, P+4, T0+4, d), m32(d+16, P+20, T0+4, d+16)]

HEAD = {}
def body(b, peel=False):
    p = b % 2
    Gn = GV + 32 * p; Vn = Gn + 16; Gc = GV + 32 * (1 - p); Vc = Gc + 16; af = AF + 8 * p
    ne = sum(1 for k in range(NS - 1) if (b - k) % 4 == 0) + (1 if (b - (NS - 1)) % 4 == 0 else 0)
    vmw = 4 * (NS - 1) + ne
    z = zphase(Gn, p)
    def dma(i): return [f"s_add_u32 m0, s{sMR}, {p*SLOT + i*1040}", None, ldt(i), f"ds_read_u16 v{IX[i]}, v{vL1} offset:{loff(b+NS+1)+64*i}"]
    top = ["s_waitcnt vmcnt(8) lgkmcnt(0)", "s_barrier"] if b == 3 else ["s_waitcnt lgkmcnt(0)"]
    if G8 and OPT.get('sp', '2103') != '0': top.append(f"s_setprio {OPT.get('sp', '2103')[b]}")
    if G8 and OPT.get('bar2') and b == 1: top.insert(1, "s_barrier")
    seq = []
    seq.append([z[0], [], [f"v_mad_u32_u24 v{vSV}, v{vSV}, s{s80}, v{vHC}"]])
    seq.append([z[1], [f"ds_read_b128 {vr(SF,4)}, v{vSV}", f"ds_read_b128 {vr(SF+4,4)}, v{vSV} offset:32"], []])
    seq.append([z[2], [f"ds_read_u8 v{vSV}, v{vSA} offset:{loff(b+1)}"], []])
    seq.append([z[3], [f"s_sub_u32 s{sCNT}, s{sCNT}, 1", f"s_cbranch_scc1 TAIL{p}", f"ENT{b}:"], []])
    seq.append([m32(Gn, TF, SEL, None), [f"ds_read_b128 {vr(T0,4)}, v{MQ}"], [f"v_and_b32 v{IXE}, 0x7ffff, v{IXE}"] if b == 0 else []])
    seq.append([m32(Gn, TF+4, SEL+4, Gn), [f"ds_read_b128 {vr(T0+4,4)}, v{MQ+1}"], [f"v_xor_b32 v{vEA}, v{vEA}, v{vMT}"] if b == 3 else []])
    seq.append([m32(Gn, EF, WC, Gn), [f"ds_read_b128 {vr(EF,4)}, v{vEA} offset:{(b+1)%4*1024}", f"ds_read_u16 v{MQ}, v{vMA} offset:{b*8}",
                f"ds_read_u16 v{MQ+1}, v{vMA} offset:{b*8+2}"], []])
    seq.append([m32(Vn, TF+8, SEL, None), [f"ds_read_b32 v{IXE}, v{vL2}"] if b == 3 else [], []])
    seq.append([m32(Vn, TF+12, SEL+4, Vn), ["s_waitcnt lgkmcnt(S)"], []])
    seq.append([m32(Gn, SF, af, Gn), [f"s_waitcnt vmcnt({vmw})"], []])
    seq.append([m32(Gn, SF+4, af+4, Gn), [f"ds_read_b128 {vr(TF+4*j,4)}, v{vTA} offset:{(1-p)*SLOT+16*j}" for j in range(4)],
                [f"v_add_u32 v{r}, 0x200, v{r}" for r in (vSA, vL1, vL2)] + [f"v_add_u32 v{vMA}, 32, v{vMA}"] if b == 3 else []])
    dp = [int(c) for c in OPT.get('dp', '03589')]
    for i in range(4): seq[dp[i]][1] = seq[dp[i]][1] + dma(i)
    if b == 0: seq[dp[4]][1] = seq[dp[4]][1] + [f"s_mov_b32 m0, s{sME}", None, lde(), f"s_xor_b32 s{sME}, s{sME}, s{sMET}"]
    A = [] if peel else vstream(Gc, Vc)
    wt = [float(x) for x in OPT.get('wt', '1,1,1,1,1,1,1,1,1,1,1.6').split(',')]
    tot = sum(c for _, c in A); out = list(top); ai = 0; acc = 0; budget = 0
    for i, (m, ex, xv) in enumerate(seq):
        budget += tot * wt[i] / sum(wt)
        g = []
        while ai < len(A) and acc + A[ai][1] / 2 <= budget + 0.01:
            g.append(A[ai][0]); acc += A[ai][1]; ai += 1
        if i == 3 and not peel: HEAD[b] = ai
        if not (peel and i < 4): out.append(m)
        g = xv + g
        last = [x for x in ex if x and (x.startswith("s_waitcnt") or x.startswith("s_cbranch") or x.endswith(":") or x.startswith("s_sub"))]
        ex = [x for x in ex if x not in last]
        if peel: last = [x for x in last if x.startswith("s_waitcnt")]
        first = True
        for x in ex:
            if x is None:
                continue
            if not first and g: out.append(g.pop(0))
            elif not first and peel and x.startswith("buffer"): out.append("s_nop 0")
            out.append(x); first = False
        out += g + last
    assert ai == len(A)
    i0 = max(i for i, x in enumerate(out) if x.startswith(f"ds_read_b128 {vr(SF+4,4)}")); i1 = out.index("s_waitcnt lgkmcnt(S)")
    out[i1] = f"s_waitcnt lgkmcnt({sum(1 for x in out[i0+1:i1] if x.startswith('ds_'))})"
    for i, x in enumerate(out):
        if x.startswith("buffer_load"): assert not out[i-1].split()[1].startswith("m0"), (out[i-1], x)
    if OPT.get('fakec'):
        n2 = []
        for x in out:
            if x.startswith("v_mfma") and (f", {vr(SEL,4)}," in x or f", {vr(SEL+4,4)}," in x):
                j = (int(re.findall(r"v\[(\d+):", x)[1]) - TF)
                n2 += [f"v_lshlrev_b32 v{Vn+j+k}, 16, v{TF+j+k}" for k in range(4)]
            elif x == m32(Gn, EF, WC, Gn): n2.append(m32(Gn, EF, WC, TF))
            elif x.startswith("ds_read_b128") and f"v{vTA} " in x:
                j = int(re.findall(r"v\[(\d+):", x)[0]) - TF
                n2 += [f"ds_read2st64_b32 {vr(TF+j+2*k,2)}, v{vTC} offset0:{(1-p)*65+j+2*k} offset1:{(1-p)*65+j+2*k+1}" for k in range(2)]
            else: n2.append(x)
        out = n2
    if OPT.get('notrans'): out = [x.replace("v_exp_f32", "v_mov_b32").replace("v_rcp_f32", "v_mov_b32") for x in out]
    if OPT.get('noval'): out = ["s_nop 0" if (x.startswith("v_exp") or x.startswith("v_rcp")) else x for x in out if not (x.startswith("v_add_f32") or x.startswith("v_mul_f32") or x.startswith("v_cvt"))]
    if OPT.get('nodma'): out = [x for x in out if 'buffer_load' not in x]
    if OPT.get('noe'): out = [x for x in out if f"s[{sE}:{sE+3}]" not in x]
    return out

def emit(lst):
    for it in lst:
        if it.endswith(':'): lab(it[:-1])
        else: o(it)

def masks(tmp):
    a, b_, c = tmp
    o(f"v_and_b32 v{a}, 3, v0"); o(f"v_lshlrev_b32 v{a}, 1, v{a}"); o(f"v_mov_b32 v{c}, 0")
    for i in range(4):
        o(f"v_lshrrev_b32 v{b_}, 19, v{SEG+i}"); o(f"v_max_u32 v{c}, v{c}, v{b_}")
        o(f"v_min_u32 v{b_}, s{sLIM}, v{b_}"); o(f"v_sub_u32 v{b_}, v{b_}, v{a}")
        for j, k in ((0, 2*i), (1, 2*i+1), (8, 8+2*i), (9, 9+2*i)): o(f"v_cmp_lt_i32 s[{sK+2*k}:{sK+2*k+1}], {j}, v{b_}")
    o(f"v_cmp_lt_u32 vcc, s{sLIM}, v{c}")
    o(f"s_or_b64 s[{sSV}:{sSV+1}], s[{sK+16}:{sK+17}], s[{sK+20}:{sK+21}]"); o(f"s_or_b64 s[{sHM}:{sHM+1}], s[{sK+24}:{sK+25}], s[{sK+28}:{sK+29}]")
    o(f"s_or_b64 s[{sSV}:{sSV+1}], s[{sSV}:{sSV+1}], s[{sHM}:{sHM+1}]")
    o(f"v_mov_b32 v{b_}, {CNT-4}"); addg(b_)
    o("s_mov_b64 exec, vcc"); o(f"ds_write_b32 v{b_}, v{b_}"); o("s_mov_b64 exec, -1")

def interleave(mf, other, per):
    other = list(other)
    for m in mf:
        o(m)
        for _ in range(per):
            if other: o(other.pop(0))
    for x in other: o(x)
def capture(fn):
    n = len(L); fn(); r = [x.strip() for x in L[n:]]; del L[n:]; return r
def wload(dst, off):
    r = []
    for s in range(8):
        if s % 4 == 0: r.append(f"s_add_u32 s{sT0}, s{sWF}, {off + s*1024:#x}")
        r.append(f"buffer_load_dwordx4 {vr(dst+4*s,4)}, v{vWF}, s[{sW}:{sW+3}], s{sT0} offen offset:{(s%4)*1024}")
    return r
def xblk(base, pair):
    o(f"v_mov_b32 v{pair+1}, v{vXO}")
    for mt in range(2):
        for a in range(2):
            o(f"s_add_u32 m0, s{base}, {(2*mt+a)*1040}")
            o(f"v_cmp_gt_u32 vcc, {(NA if mt == 0 else RN-NA) - 2*a}, v{vXI}")
            o(f"s_add_u32 s{sT0}, s{sBASE}, {NA*mt + 2*a}"); o(f"v_add_u32 v{pair}, s{sT0}, v{vXI}")
            o(f"v_cndmask_b32 v{pair}, v{PT+3}, v{pair}, vcc")
            o(f"buffer_load_dwordx4 {vr(pair,2)}, s[{sX}:{sX+3}], 0 idxen offen lds")

def gen_k2():
    L.append(".globl gmain_kernel"); L.append(".p2align 8"); L.append(".type gmain_kernel,@function")
    lab("gmain_kernel"); VST[0] = 255
    t = [TF + i for i in range(28)]
    stamp(0)
    o("s_load_dwordx2 s[50:51], s[0:1], 88")
    o("s_load_dwordx4 s[4:7], s[0:1], 0")
    o("s_load_dwordx2 s[48:49], s[0:1], 72")
    o("s_setprio 3")
    o(f"v_lshrrev_b32 v{t[0]}, 6, v0")
    o("s_and_b32 s3, s2, 7"); o("s_lshl_b32 s3, s3, 6"); o(f"s_bfe_u32 s{sT0}, s2, 0x50003"); o(f"s_lshl1_add_u32 s3, s{sT0}, s3")
    o(f"v_readfirstlane_b32 s{sWAVE}, v{t[0]}")
    if G8:
        o("v_and_b32 v0, 0xff, v0"); o(f"s_lshr_b32 s{sT0}, s{sWAVE}, 2"); o(f"s_and_b32 s{sWAVE}, s{sWAVE}, 3"); o(f"s_mul_i32 s{sG}, s{sT0}, {GS}")
    else: o(f"s_lshr_b32 s{sT0}, s2, 8")
    o(f"s_add_u32 s3, s3, s{sT0}")
    o(f"s_cmp_ge_u32 s2, {256 if G8 else 512}"); o("s_cbranch_scc1 K2_END")
    o(f"s_cmp_ge_u32 s3, {NR}"); o("s_cbranch_scc1 K2_END")
    o(f"v_lshrrev_b32 v{t[1]}, 2, v0")
    o(f"s_lshr_b32 s{sS0}, s3, 2"); o(f"s_mul_i32 s{sS0}, s{sS0}, {OG}"); o(f"s_and_b32 s{sT0}, s3, 3"); o(f"s_lshl2_add_u32 s{sS0}, s{sT0}, s{sS0}"); o(f"s_add_u32 s{sS0}, s{sS0}, {WS_OFF:#x}")
    o(f"v_lshlrev_b32 v{t[1]}, 6, v{t[1]}")
    o(f"s_mul_i32 s{sBASE}, s3, {RN}")
    o(f"v_and_b32 v{vWF}, 63, v0"); o(f"v_lshlrev_b32 v{vWF}, 4, v{vWF}")
    o(f"s_mul_i32 s{sMR}, s{sWAVE}, {WS_}"); o(f"s_add_u32 s{sMR}, s{sMR}, {RING}"); saddg(sMR)
    o(f"s_lshl_b32 s{sWF}, s{sWAVE}, 13"); o(f"s_add_u32 s{sWF}, s{sWF}, {WS_WF:#x}")
    o(f"s_mov_b32 s{sEPS}, {EPS:#x}"); o(f"s_movk_i32 s{s80}, 80")
    o(f"s_mov_b32 s{sFIRST}, 1"); o(f"s_mov_b32 s{sLIM}, 16")
    o("s_cmp_ge_u32 s2, 256"); o(f"s_cselect_b32 s{sRS}, {OPT.get('bon', 0)}, 0")
    o("s_waitcnt lgkmcnt(0)"); xstamp("karg")
    srd(sW, 50, WS_SIZE)
    for i in range(4): o(f"buffer_load_dword v{SEG+i}, v{t[1]}, s[{sW}:{sW+3}], s{sS0} offen offset:{16*i}")
    srd(sX, 4, N, 256); srd(sE, 6, E, 32); srd(sO, 48, N, 256)
    o(f"s_add_u32 s50, s50, {WS_TAB:#x}"); o("s_addc_u32 s51, s51, 0")
    if SM: o(f"s_mul_i32 s{sT0}, s{sWAVE}, {SMS}"); o(f"s_add_u32 s50, s50, s{sT0}"); o("s_addc_u32 s51, s51, 0")
    srd(sT, 50, N, 128 if SM else 512)
    WAP = OPT.get('wap', 'p1'); XBP = OPT.get('xbp', 'p1'); ORD = ['start', 'rec', 'mask', 'p1', 'b1']
    def place(where):
        if where not in (WAP, XBP): return
        o(f"s_cmp_eq_u32 s{sFIRST}, 0"); o(f"s_cbranch_scc1 NOW_{where}")
        if XBP == where:
            o(f"s_add_u32 s{sNT}, s{sMR}, {NS*SLOT}")
            xblk(sNT, T0)
        if WAP == where:
            for x in wload(ACC, WF_A): o(x)
            o(f"s_lshl_b32 s{sT0}, s{sWAVE}, 10"); o(f"s_add_u32 s{sT0}, s{sT0}, {WS_WF+WF_C:#x}")
            o(f"buffer_load_dwordx4 {vr(WC,4)}, v{vWF}, s[{sW}:{sW+3}], s{sT0} offen")
        if OPT.get('otouch') and WAP == where:
            o(f"v_mov_b32 v{T0+6}, s{sBASE}"); o(f"buffer_load_dword v{SEL}, v{T0+6}, s[{sO}:{sO+3}], 0 idxen")
        lab(f"NOW_{where}")
    def cnt(lo, hi): return sum(n for p, n in ((WAP, 9), (XBP, 4)) if lo <= ORD.index(p) <= hi)
    SP = [int(x) for x in OPT.get('spf', '0,0').split(',')]
    def spref(n, first):
        for k in range(n): o(f"s_load_dword s{88 + k % 4}, s[46:47], {(first + k) * 32768:#x}")
    if sum(SP):
        o(f"s_and_b32 s{sT0}, s3, 63"); o(f"s_lshl2_add_u32 s{sT0}, s{sT0}, s{sWAVE}"); o(f"s_lshl_b32 s{sT0}, s{sT0}, 7")
        o(f"s_add_u32 s46, s50, s{sT0}"); o("s_addc_u32 s47, s51, 0")
        spref(SP[0], 0)
    lab("ROUND")
    b0, b2, b3, b4, vh = t[16:21]
    o(f"v_lshlrev_b32 v{t[11]}, 4, v0"); addg(t[11])
    for d in range(4): o(f"v_mov_b32 v{t[0]+d}, 0")
    for off in (0, ZSZ - 4096): o(f"ds_write_b128 v{t[11]}, {vr(t[0],4)} offset:{MB+off}")
    pad0 = 0xffff | (NA << 16)
    o(f"v_mov_b32 v{t[4]}, {pad0:#x}"); o(f"v_mov_b32 v{t[5]}, 0x7ffff"); o(f"v_mov_b32 v{t[6]}, {pad0:#x}"); o(f"v_mov_b32 v{t[7]}, 0x7ffff")
    o(f"ds_write_b128 v{t[11]}, {vr(t[4],4)} offset:{LIST}"); o(f"ds_write_b128 v{t[11]}, {vr(t[4],4)} offset:{LIST+4096}")
    o(f"v_and_b32 v{b0}, 1, v0"); o(f"v_bfe_u32 v{b2}, v0, 2, 1"); o(f"v_bfe_u32 v{b3}, v0, 3, 1"); o(f"v_bfe_u32 v{b4}, v0, 4, 1"); o(f"v_bfe_u32 v{vh}, v0, 5, 1")
    o(f"v_and_b32 v{t[8]}, 3, v0"); o(f"v_lshlrev_b32 v{t[8]}, 1, v{t[8]}")
    o(f"v_mov_b32 v{t[9]}, 0x7ffffff0"); o(f"s_mov_b32 s{sT1}, 0x7ffff")
    o(f"v_and_b32 v{t[12]}, 15, v0"); o(f"v_lshlrev_b32 v{t[13]}, 3, v{b4}")
    o(f"v_xor_b32 v{vXO}, v{t[12]}, v{t[13]}"); o(f"v_lshlrev_b32 v{vXO}, 4, v{vXO}")
    o(f"s_lshr_b32 s{sT0}, s{sWAVE}, 1"); o(f"s_lshl_b32 s{sT0}, s{sT0}, 4"); o(f"s_and_b32 s{sS0}, s{sWAVE}, 1"); o(f"s_lshl2_add_u32 s{sT0}, s{sS0}, s{sT0}")
    o(f"v_lshl_add_u32 v{vXI}, v{vh}, 3, v{b4}"); o(f"v_add_u32 v{vXI}, s{sT0}, v{vXI}")
    o(f"v_mov_b32 v{PT+3}, 0xffff")
    place('start')
    xstamp("consts_done")
    o(f"s_waitcnt vmcnt({cnt(0, 0)})"); stamp(1)
    for i in range(4):
        o(f"v_lshrrev_b32 v{t[4+i]}, 19, v{SEG+i}"); o(f"v_cmp_lt_u32 vcc, v{t[8]}, v{t[4+i]}")
        o(f"v_and_b32 v{t[i]}, s{sT1}, v{SEG+i}"); o(f"v_add_lshl_u32 v{t[i]}, v{t[i]}, v{t[8]}, 3")
        o(f"v_cndmask_b32 v{t[10]}, v{t[9]}, v{t[i]}, vcc")
        o(f"buffer_load_dwordx4 {vr(REC+4*i,4)}, v{t[10]}, s[{sW}:{sW+3}], 0 offen")
    o(f"v_max3_u32 v{t[10]}, v{t[4]}, v{t[5]}, v{t[6]}"); o(f"v_max_u32 v{t[10]}, v{t[10]}, v{t[7]}")
    o(f"v_cmp_lt_u32 vcc, 8, v{t[10]}"); o("s_cbranch_vccz REC_DONE")
    for i in range(4): o(f"buffer_load_dwordx4 {vr(REC+16+4*i,4)}, v{t[i]}, s[{sW}:{sW+3}], 0 offen offset:64")
    lab("REC_DONE")
    xstamp("rec_issued")
    PF = int(OPT.get('pf', 0))
    def pref():
        o(f"s_lshr_b32 s{sT0}, s3, 6"); o(f"s_mul_i32 s{sT0}, s{sT0}, {64*RN}"); o(f"s_and_b32 s{sT1}, s3, 63"); o(f"s_lshl_b32 s{sT1}, s{sT1}, 6"); o(f"s_add_u32 s{sT0}, s{sT0}, s{sT1}")
        o(f"v_lshrrev_b32 v{T0+2}, 2, v0"); o(f"v_add_u32 v{T0+2}, s{sT0}, v{T0+2}"); o(f"v_and_b32 v{T0+1}, 3, v0"); o(f"v_lshlrev_b32 v{T0+1}, 7, v{T0+1}")
        for k in range(PF):
            o(f"v_add_u32 v{T0+3}, {-512*RN}, v{T0+2}"); o(f"v_min_u32 v{T0}, v{T0+2}, v{T0+3}")
            o(f"buffer_load_dword v{SEL}, {vr(T0,2)}, s[{sT}:{sT+3}], 0 idxen offen")
            if k + 1 < PF: o(f"v_add_u32 v{T0+2}, 4096, v{T0+2}")
    PFW = OPT.get('pfw', 'rec')
    place('rec')
    if PF and PFW == 'rec': pref()
    o("s_waitcnt lgkmcnt(0)"); o("s_barrier"); stamp(2)
    spref(SP[1], SP[0])
    pp = t[14]
    o(f"v_and_b32 v{pp}, 0x13, v0"); o(f"v_lshl_or_b32 v{pp}, v{b2}, 3, v{pp}"); o(f"v_lshl_or_b32 v{pp}, v{b3}, 2, v{pp}")
    o(f"v_lshrrev_b32 v{t[12]}, 3, v{pp}"); o(f"v_lshlrev_b32 v{vTA}, 7, v{pp}"); o(f"v_lshl_add_u32 v{vTA}, v{t[12]}, 4, v{vTA}")
    o(f"v_bfe_u32 v{t[13]}, v0, 1, 1"); o(f"v_xor_b32 v{t[12]}, v{t[13]}, v{vh}"); o(f"v_lshl_add_u32 v{vTA}, v{t[12]}, 6, v{vTA}"); o(f"v_add_u32 v{vTA}, s{sMR}, v{vTA}")
    o(f"v_and_b32 v{t[12]}, 7, v0"); o(f"v_lshlrev_b32 v{t[15]}, 2, v{b4}"); o(f"v_xor_b32 v{t[15]}, v{t[15]}, v{t[12]}")
    o(f"s_mov_b32 s{sT0}, 0" if SM else f"s_lshl_b32 s{sT0}, s{sWAVE}, 7"); o(f"v_lshl_add_u32 v{IX[0]+1}, v{t[15]}, 4, s{sT0}")
    for i in range(1, 4): o(f"v_mov_b32 v{IX[i]+1}, v{IX[0]+1}")
    o(f"v_and_b32 v{vL1}, 0x38, v0"); o(f"v_add_u32 v{vL1}, {LIST}, v{vL1}"); addg(vL1)
    o(f"v_lshl_or_b32 v{t[15]}, v{b4}, 1, v{b2}"); o(f"v_mul_u32_u24 v{t[15]}, {WS_}, v{t[15]}"); o(f"v_mul_u32_u24 v{t[13]}, 1040, v{t[13]}")
    o(f"v_lshl_or_b32 v{t[21]}, v{b3}, 1, v{b0}"); o(f"v_lshl_add_u32 v{t[15]}, v{t[21]}, 8, v{t[15]}"); o(f"v_add3_u32 v{t[15]}, v{t[15]}, v{t[13]}, {'s%d' % sG if G8 else 0}")
    o(f"v_add_u32 v{t[15]}, {RING + NS*SLOT}, v{t[15]}")
    o(f"v_xor_b32 v{t[13]}, v{vh}, v{b0}"); o(f"v_lshl_add_u32 v{vXA}, v{t[13]}, 7, v{t[15]}")
    o(f"v_lshlrev_b32 v{IXE+1}, 4, v{t[13]}")
    o(f"v_bfe_u32 v{t[13]}, v0, 7, 1"); o(f"v_xor_b32 v{t[13]}, v{t[13]}, v{b0}"); o(f"v_lshl_add_u32 v{vXR}, v{t[13]}, 7, v{t[15]}")
    o(f"v_and_b32 v{t[13]}, 0x60, v0"); o(f"v_add_u32 v{vXR}, v{vXR}, v{t[13]}")
    o(f"s_lshl_b32 s{sT0}, s{sS0}, 12"); o(f"s_lshr_b32 s{sT1}, s{sWAVE}, 1"); o(f"s_lshl_b32 s{sT1}, s{sT1}, 8"); o(f"s_add_u32 s{sT0}, s{sT0}, s{sT1}"); o(f"s_add_u32 s{sT0}, s{sT0}, {LIST+4}"); saddg(sT0)
    o(f"v_bfe_u32 v{vL2}, v0, 1, 5"); o(f"v_lshl_add_u32 v{vL2}, v{vL2}, 3, s{sT0}")
    o(f"s_lshl_b32 s{sME}, s{sWAVE}, 10"); o(f"s_add_u32 s{sME}, s{sME}, {ER}"); saddg(sME)
    o(f"v_lshlrev_b32 v{vSA}, 3, v{pp}"); o(f"v_add_u32 v{vSA}, {LIST+2}, v{vSA}"); addg(vSA)
    o(f"v_lshlrev_b32 v{vHC}, 4, v{vh}"); o(f"v_add_u32 v{vHC}, {IDT}, v{vHC}")
    o(f"v_xor_b32 v{vEA}, v{b4}, v{vh}"); o(f"v_lshlrev_b32 v{vEA}, 4, v{vEA}")
    o(f"v_lshl_add_u32 v{vEA}, v{pp}, 5, v{vEA}"); o(f"v_add_u32 v{vEA}, {ER}, v{vEA}"); addg(vEA)
    o(f"v_add_u32 v{vMT}, 4096, v{vEA}"); o(f"v_xor_b32 v{vMT}, v{vMT}, v{vEA}")
    o(f"v_and_b32 v{t[13]}, 31, v0"); o(f"v_min_u32 v{t[13]}, {NA}, v{t[13]}")
    o(f"v_mul_u32_u24 v{vMA}, {ROW}, v{t[13]}"); o(f"v_lshl_add_u32 v{vMA}, v{vh}, 2, v{vMA}"); o(f"v_add_u32 v{vMA}, {MB}, v{vMA}"); addg(vMA)
    o(f"v_lshrrev_b32 v{PT+2}, 5, v0"); o(f"v_lshlrev_b32 v{PT+2}, 4, v{PT+2}"); o(f"v_lshl_add_u32 v{PT+2}, v{b3}, 2, v{PT+2}"); addg(PT+2)
    o(f"v_lshl_add_u32 v{t[12]}, v{b4}, 4, v{t[12]}"); o(f"v_lshlrev_b32 v{PT+1}, v{t[12]}, 16")
    o(f"v_and_b32 v{t[12]}, 3, v0"); o(f"v_lshl_add_u32 v{t[12]}, v{b4}, 2, v{t[12]}"); o(f"v_lshlrev_b32 v{t[12]}, v{t[12]}, 16")
    o(f"v_cmp_eq_u32 vcc, v{b3}, v{vh}"); o(f"v_lshlrev_b32 v{t[13]}, 4, v{b2}"); o("s_nop 0")
    o(f"v_cndmask_b32 v{t[12]}, 0, v{t[12]}, vcc"); o(f"v_lshlrev_b32 v{PT}, v{t[13]}, v{t[12]}")
    place('mask')
    if cnt(1, 2):
        o(f"s_cmp_eq_u32 s{sFIRST}, 1"); o("s_cbranch_scc1 REMASK"); o("s_waitcnt vmcnt(0)")
    lab("REMASK")
    masks((t[0], t[1], t[2])); xstamp("masks_done")
    a, b_, c, d_ = t[0:4]; ad = [AD + k for k in range(16)]
    o(f"v_mov_b32 v{a}, 8")
    o(f"v_lshrrev_b32 v{b_}, 2, v{vWF}"); addg(b_)
    if G8: o(f"s_lshr_b32 s{sDS}, s{sG}, 8")
    if PF and PFW == 'mask': pref()
    o(f"s_waitcnt vmcnt({cnt(1, 2)})"); xstamp("rec_landed")
    for half in range(2):
        if half: o(f"s_cmp_eq_u64 s[{sSV}:{sSV+1}], 0"); o("s_cbranch_scc1 P1_DONE"); o("s_mov_b64 exec, -1")
        for k in range(8*half, 8*half+8): o(f"v_alignbit_b32 v{ad[k]}, s{sDS}, v{REC+2*k+1}, 24" if G8 else f"v_lshrrev_b32 v{ad[k]}, 24, v{REC+2*k+1}")
        for k in range(8*half, 8*half+8):
            o(f"s_mov_b64 exec, s[{sK+2*k}:{sK+2*k+1}]")
            o(f"ds_add_rtn_u32 v{RANK+k}, v{ad[k]}, v{a} offset:{CNT}")
    lab("P1_DONE")
    o("s_mov_b64 exec, -1")
    place('p1')
    if PF and PFW == 'p1': pref()
    o("s_waitcnt lgkmcnt(0)"); xstamp("p1_done"); o("s_barrier"); xstamp("b1")
    o(f"ds_read_b32 v{c}, v{b_} offset:{CNT}")
    o(f"ds_read_b32 v{t[4]}, v{b_} offset:{CNT-4}")
    place('b1')
    o(f"v_lshlrev_b32 v{t[5]}, 12, v{vh}"); addg(t[5])
    o("s_waitcnt lgkmcnt(1)")
    o(f"v_sub_u32 v{d_}, v{t[5]}, v{c}")
    for dd in ("row_shr:1", "row_shr:2", "row_shr:4", "row_shr:8"):
        o(f"v_add_u32_dpp v{c}, v{c}, v{c} {dd} row_mask:0xf bank_mask:0xf bound_ctrl:0"); o("s_nop 1")
    o(f"v_add_u32_dpp v{c}, v{c}, v{c} row_bcast:15 row_mask:0xa bank_mask:0xf")
    o(f"v_add_u32 v{d_}, v{c}, v{d_}")
    o(f"ds_write_b32 v{b_}, v{d_} offset:{NB}")
    o(f"v_readlane_b32 s{sNT}, v{c}, 31"); o(f"v_readlane_b32 s{sCNT}, v{c}, 63")
    for k in range(8): o(f"ds_read_b32 v{ad[k]}, v{ad[k]} offset:{NB}")
    o(f"s_max_u32 s{sT0}, s{sNT}, s{sCNT}")
    o(f"s_cmp_le_u32 s{sT0}, 4096"); o("s_cbranch_scc0 TOOBIG")
    xstamp("scan_done")
    for half in range(2):
        if half:
            o(f"s_cmp_eq_u64 s[{sSV}:{sSV+1}], 0"); o("s_cbranch_scc1 P2_DONE"); o("s_mov_b64 exec, -1")
            for k in range(8, 16): o(f"ds_read_b32 v{ad[k]}, v{ad[k]} offset:{NB}")
        for k in range(8*half, 8*half+8):
            if k % 4 == 0: o(f"s_waitcnt lgkmcnt({4 - k % 8})")
            o(f"v_add_u32 v{RANK+k}, v{RANK+k}, v{ad[k]}")
        for k in range(8*half, 8*half+8):
            o(f"s_mov_b64 exec, s[{sK+2*k}:{sK+2*k+1}]")
            o(f"ds_write_b64 v{RANK+k}, {vr(REC+2*k,2)} offset:{LIST}")
    lab("P2_DONE")
    o("s_mov_b64 exec, -1")
    o(f"v_readlane_b32 s{sMORE}, v{t[4]}, 0")
    o(f"s_mov_b32 m0, s{sME}")
    o(f"s_waitcnt vmcnt({9 + int(OPT.get('otouch', 0)) if ORD.index(WAP) >= ORD.index(XBP) else 0}) lgkmcnt(0)"); xstamp("p2_done"); o("s_barrier"); stamp(5)
    f = t
    def rdidx(u):
        for i in range(4): o(f"ds_read_u16 v{IX[i]}, v{vL1} offset:{loff(u)+64*i}")
    def fill(u, nxt):
        for i in range(4):
            o(f"s_add_u32 m0, s{sMR}, {u*SLOT + i*1040}"); o(f"s_waitcnt lgkmcnt(3)"); o(ldt(i))
            o(f"ds_read_u16 v{IX[i]}, v{vL1} offset:{loff(nxt)+64*i}")
    o(f"ds_read_b32 v{IXE}, v{vL2}"); rdidx(0)
    o(f"v_lshlrev_b32 v{f[9]}, 3, v0"); addg(f[9])
    o("s_waitcnt lgkmcnt(4)")
    o(f"v_and_b32 v{IXE}, 0x7ffff, v{IXE}"); o(lde())
    for u in range(NS): fill(u, u + 1)
    for k in range(4): o(f"ds_read_u8 v{f[12+k]}, v{f[9]} offset:{LIST+2+k*2048}")
    o(f"ds_read_b32 v{IXE}, v{vL2} offset:512"); o(f"ds_read_u8 v{vSV}, v{vSA}")
    xstamp("fill_issued")
    def ctrl():
        o(f"s_movk_i32 s{sS0}, {ROW}")
        for k in range(4):
            o(f"v_cmp_gt_u32 vcc, {NA}, v{f[12+k]}"); o(f"v_mad_u32_u24 v{f[0]}, v{f[12+k]}, s{sS0}, v{PT+2}"); o("s_nop 0")
            o(f"v_cndmask_b32 v{f[1]}, 0, v{PT+1}, vcc")
            o(f"ds_or_b32 v{f[0]}, v{f[1]} offset:{MB + (k&1)*128 + (k>>1)*8}")
        o(f"s_add_u32 s{sNT}, s{sNT}, 255"); o(f"s_lshr_b32 s{sNT}, s{sNT}, 8"); o(f"s_lshl1_add_u32 s{sNT}, s{sNT}, -1")
        o(f"s_add_u32 s{sCNT}, s{sCNT}, 255"); o(f"s_lshr_b32 s{sCNT}, s{sCNT}, 8"); o(f"s_lshl_b32 s{sCNT}, s{sCNT}, 1")
        o(f"s_max_i32 s{sNT}, s{sNT}, s{sCNT}"); o(f"s_max_i32 s{sNT}, s{sNT}, 2"); o(f"s_sub_u32 s{sCNT}, s{sNT}, 2")
        o(f"s_add_u32 s{sMET}, s{sME}, 4096"); o(f"s_xor_b32 s{sMET}, s{sMET}, s{sME}"); o(f"s_add_u32 s{sME}, s{sME}, 4096")
        o(f"v_add_u32 v{vL2}, 0x400, v{vL2}")
    def lut():
        q = T0
        for d in range(4):
            o(f"v_bfe_u32 v{q+d}, v0, {2*d}, 2"); o(f"v_mul_u32_u24 v{q+d}, 0x8001, v{q+d}")
            o(f"v_and_b32 v{q+d}, 0x10001, v{q+d}"); o(f"v_mul_u32_u24 v{q+d}, 0x3f80, v{q+d}")
        o(f"v_lshlrev_b32 v{q+4}, 4, v0"); o(f"ds_write_b128 v{q+4}, {vr(q,4)} offset:{LUT}")
        o(f"v_lshrrev_b32 v{q}, 3, v0"); o(f"v_and_b32 v{q+1}, 7, v0")
        o(f"v_bfe_u32 v{q+2}, v0, 5, 1"); o(f"v_bfe_u32 v{q+3}, v0, 6, 1"); o(f"v_lshl_or_b32 v{q+2}, v{q+2}, 1, v{q+3}")
        o(f"v_lshrrev_b32 v{q+3}, 7, v0"); o(f"v_lshl_or_b32 v{q+2}, v{q+3}, 2, v{q+2}")
        o(f"v_cmp_eq_u32 vcc, v{q+2}, v{q+1}"); o(f"v_cmp_gt_u32 s[{sHM}:{sHM+1}], {NA}, v{q}"); o(f"v_mov_b32 v{q+6}, 0x3f80"); o(f"v_mov_b32 v{q+7}, 0")
        o(f"s_and_b64 vcc, vcc, s[{sHM}:{sHM+1}]")
        o(f"v_and_b32 v{q+2}, 3, v{q}"); o(f"v_lshlrev_b32 v{q+2}, 4, v{q+2}"); o(f"v_cndmask_b32 v{q+6}, 0, v{q+6}, vcc")
        o(f"v_lshlrev_b64 {vr(q+6,2)}, v{q+2}, {vr(q+6,2)}")
        o(f"v_min_u32 v{q}, {NA}, v{q}"); o(f"v_mul_u32_u24 v{q}, 80, v{q}"); o(f"v_lshl_add_u32 v{q}, v{q+1}, 3, v{q}")
        o(f"ds_write_b64 v{q}, {vr(q+6,2)} offset:{IDT}")
    o(f"s_cmp_eq_u32 s{sFIRST}, 1"); o("s_cbranch_scc1 G1")
    o("s_waitcnt lgkmcnt(0)")
    ctrl()
    o("s_branch G1D")
    lab("G1")
    for mt in range(2):
        for s in range(8): o(f"ds_read_b128 {vr(GV+32*mt+4*s,4)}, v{vXA} offset:{mt*2080 + 16*s}")
        if mt == 0: o("s_waitcnt lgkmcnt(8)")
    lt = capture(lut); ct = capture(ctrl)
    for x in lt[:18]: o(x)
    o(f"s_waitcnt vmcnt({4*NS+2+int(OPT.get('otouch', 0))}) lgkmcnt(9)")
    acc = [ACC + 32, ACC + 48]
    interleave([m32(acc[0], GV+4*s, ACC+4*s, None if s == 0 else acc[0]) for s in range(8)], lt[18:] + ct[:16], 5)
    o("s_waitcnt lgkmcnt(5)")
    def cv(mt): return [f"v_cvt_pk_bf16_f32 v{AF+8*mt+r//2}, v{acc[mt]+r}, v{acc[mt]+r+1}" for r in range(0, 16, 2)]
    interleave([m32(acc[1], GV+32+4*s, ACC+4*s, None if s == 0 else acc[1]) for s in range(8)],
               ct[16:] + cv(0) + [f"v_mov_b32 v{acc[0]+r}, 0" for r in range(16)], 5)
    for r in range(32): o(f"v_mov_b32 v{ACC+r}, 0")
    for x in cv(1): o(x)
    for r in range(16): o(f"v_mov_b32 v{acc[1]+r}, 0")
    if STAMP:
        o("s_getreg_b32 s94, hwreg(HW_REG_HW_ID)"); o("s_getreg_b32 s100, hwreg(HW_REG_XCC_ID)"); o("s_and_b32 s94, s94, 0xffff"); o("s_lshl_b32 s100, s100, 16"); o("s_or_b32 s94, s94, s100"); o(f"v_writelane_b32 v{VST[0]}, s94, 3")
    lab("G1D")
    o(f"v_and_b32 v{MQ}, 0xffff, v{PT}"); o(f"v_lshrrev_b32 v{MQ+1}, 16, v{PT}")
    xstamp("g1_done"); stamp(4)
    o(f"s_waitcnt vmcnt({4*(NS-1)}) lgkmcnt(0)"); xstamp("t0_landed"); o("s_barrier")
    o(f"ds_read_b128 {vr(SEL,4)}, v{MQ}"); o(f"ds_read_b128 {vr(SEL+4,4)}, v{MQ+1}")
    o(f"ds_read_b128 {vr(EF,4)}, v{vEA}")
    for j in range(4): o(f"ds_read_b128 {vr(TF+4*j,4)}, v{vTA} offset:{16*j}")
    o(f"s_setprio {OPT.get('lp', 2)}")
    if OPT.get('young'):
        o("s_cmp_lt_u32 s2, 256"); o("s_cbranch_scc1 OLD"); o(f"s_setprio {OPT['young']}"); lab("OLD")
    if OPT.get('fakec'): o(f"v_lshrrev_b32 v{vTC}, 2, v{vWF}"); o(f"v_add_u32 v{vTC}, s{sMR}, v{vTC}")
    stamp(6); stamp(8, "s_memtime")
    bodies = [body(b) for b in range(4)]
    if not OPT.get('noval') and not OPT.get('fakec'): check_hazards(sum(bodies, []) + ["s_branch LOOP"])
    emit(body(0, peel=True))
    b1 = bodies[1][:bodies[1].index("ENT1:")]
    o("s_nop 7")
    emit([x for x in b1 if not x.startswith(("v_mfma", "s_sub", "s_cbranch"))])
    o("s_branch ENT1")
    lab("TOOBIG")
    o(f"s_mov_b32 s{sLIM}, {LOWLIM}"); o(f"v_mov_b32 v{a}, 0")
    o("s_waitcnt lgkmcnt(0)"); o("s_barrier")
    o(f"ds_write_b32 v{b_}, v{a} offset:{CNT}")
    o("s_waitcnt lgkmcnt(0)"); o("s_barrier")
    o("s_branch REMASK")
    lab("LOOP")
    emit(sum(bodies, []))
    if OPT.get('pp', '99,8,4') != '0' and not G8:
        th = [int(x) for x in OPT.get('pp', '99,8,4').split(',')]
        o(f"s_add_u32 s{sT0}, s{sCNT}, s{sRS}")
        for k, v in enumerate(th):
            if v < 99: o(f"s_cmp_lt_u32 s{sT0}, {v}"); o("s_cbranch_scc0 LOOP"); o(f"s_setprio {2-k}")
    o("s_branch LOOP")
    assert len(set(HEAD.values())) == 1
    WU = TF; x = AF
    def fin(p):
        d = ACC + 32 * p; r = []
        for k in range(16): r.append(f"v_add_f32 v{d+k}, s{sEPS}, v{d+k}")
        for k in range(16): r.append(f"v_rcp_f32 v{d+k}, v{d+k}")
        for k in range(16): r.append(f"v_mul_f32 v{d+16+k}, v{d+k}, v{d+16+k}")
        return r
    def unp(p): return sum(([f"v_lshlrev_b32 v{ACC+32*p+2*k}, 16, v{x+8*p+k}", f"v_and_b32 v{ACC+32*p+2*k+1}, s{sT1}, v{x+8*p+k}"] for k in range(8)), [])
    def post(p):
        r = []
        for k in range(8):
            z = ACC + 32*p + 16 + 2*k
            r += [f"v_max_f32 v{z}, 0, v{z}", f"v_max_f32 v{z+1}, 0, v{z+1}", f"v_add_f32 v{z}, v{z}, v{z-16}", f"v_add_f32 v{z+1}, v{z+1}, v{z-15}",
                  f"v_cvt_pk_bf16_f32 v{x+8*p+k}, v{z}, v{z+1}"]
        return r
    def st(p): return [f"s_mov_b64 exec, {((1 << (NA - p)) - 1):#x}", f"s_mov_b32 exec_hi, exec_lo"] + \
        [f"buffer_store_dwordx4 {vr(x+8*p+4*k,4)}, {vr(IX[p],2)}, s[{sO}:{sO+3}], 0 idxen offen offset:{16*k} {OPT.get('outpol', '').replace('+', ' ')}" for k in range(2)] + ["s_mov_b64 exec, -1"]
    assert RN - NA == NA - 1
    for p in (1, 0):
        q = 1 - p; Gc = GV + 32 * q
        lab(f"TAIL{p}")
        stamp(7); stamp(11, "s_memtime")
        if STAMP: o(f"v_writelane_b32 v{VST[0]}, s{sNT}, 12")
        o(f"ds_read_b128 {vr(T0,4)}, v{MQ}"); o(f"ds_read_b128 {vr(T0+4,4)}, v{MQ+1}")
        o(f"s_cmp_lg_u32 s{sMORE}, 0"); o(f"s_cbranch_scc1 TAILM{p}")
        o("s_waitcnt lgkmcnt(0)")
        for ins in wload(WU, WF_U): o(ins)
        for s in range(8): o(f"ds_read_b128 {vr(GV+32*p+4*s,4)}, v{vXA} offset:{p*2080+16*s}")
        for mt in range(2):
            for k in range(2): o(f"ds_read_b128 {vr(x+8*mt+4*k,4)}, v{vXR} offset:{mt*2080+16*k}")
        o(f"v_and_b32 v{IX[0]}, 31, v0"); o(f"v_and_b32 v{IX[0]+1}, 0xe0, v0"); o(f"v_add_u32 v{IX[0]}, s{sBASE}, v{IX[0]}")
        o(f"v_add_u32 v{IX[1]}, {NA}, v{IX[0]}"); o(f"v_mov_b32 v{IX[1]+1}, v{IX[0]+1}")
        o(f"s_mov_b32 s{sT1}, 0xffff0000")
        vs = [i for i, _ in vstream(Gc, Gc + 16)[HEAD[0]:]]
        for ins in vs: o(ins)
        o("s_nop 0")
        interleave(zphase(Gc, q), fin(p), 8)
        for s in range(8): o(f"ds_read_b128 {vr(Gc+4*s,4)}, v{vXA} offset:{q*2080+16*s}")
        o("s_waitcnt vmcnt(0) lgkmcnt(8)")
        interleave([m32(ACC+32*p+16, WU+4*s, GV+32*p+4*s, ACC+32*p+16) for s in range(8)], fin(q), 6)
        o("s_waitcnt lgkmcnt(0)"); o("s_nop 0")
        interleave([m32(ACC+32*q+16, WU+4*s, Gc+4*s, ACC+32*q+16) for s in range(8)], unp(p) + post(p) + unp(q), 7)
        for ins in st(p) + post(q) + st(q): o(ins)
        if p == 1: o("s_branch K2_FIN")
    lab("K2_FIN")
    stamp_out(9, GV, sW, 1)
    lab("K2_END")
    o("s_endpgm")
    for p in (1, 0):
        Gc = GV + 32 * (1 - p)
        lab(f"TAILM{p}")
        for ins, _ in vstream(Gc, Gc + 16)[HEAD[0]:]: o(ins)
        o("s_waitcnt lgkmcnt(0)")
        for m in zphase(Gc, 1 - p): o(m)
        if p == 1: o("s_branch NEXTROUND")
    lab("NEXTROUND")
    for i in range(4):
        o(f"v_lshrrev_b32 v{vTC}, 19, v{SEG+i}"); o(f"v_min_u32 v{vTC}, s{sLIM}, v{vTC}")
        o(f"v_add_u32 v{SEG+i}, v{SEG+i}, v{vTC}"); o(f"v_lshlrev_b32 v{vTC}, 19, v{vTC}"); o(f"v_sub_u32 v{SEG+i}, v{SEG+i}, v{vTC}")
    o(f"s_mov_b32 s{sFIRST}, 0"); o(f"s_mov_b32 s{sLIM}, 16")
    o("s_waitcnt vmcnt(0) lgkmcnt(0)"); o("s_barrier")
    o("s_branch ROUND")

def kd(name, nv, ns):
    L.append(".p2align 6")
    L.append(f".amdhsa_kernel {name}")
    for k, v in (("next_free_vgpr", nv), ("next_free_sgpr", ns), ("accum_offset", (nv + 3) // 4 * 4), ("group_segment_fixed_size", 0),
                 ("kernarg_size", 96), ("user_sgpr_count", 2), ("user_sgpr_kernarg_segment_ptr", 1), ("system_sgpr_workgroup_id_x", 1),
                 ("float_denorm_mode_32", 3)):
        L.append(f"  .amdhsa_{k} {v}")
    L.append(".end_amdhsa_kernel")

hdr = [l for l in open(f"cdna_kernels/{NAME}.s.ref").read().splitlines() if l.startswith(";") and "@launch" not in l
       and "Override launch" not in l and "grid=ceil" not in l]
L += hdr
L.append(f"; @launch kernel=gsort_kernel grid=({K1_GRID},1,1) block=(512,1,1) lds={K1_LDS}")
L.append(f"; @launch kernel=gmain_kernel grid=(256,1,1) block=(512,1,1) lds={NB+2*GS}" if G8 else f"; @launch kernel=gmain_kernel grid=(512,1,1) block=(256,1,1) lds={K2_LDS}")
L.append('.amdgcn_target "amdgcn-amd-amdhsa--gfx950"'); L.append(".text")
(gen_k1a if OPT.get('k1') == 'a' else gen_k1)(); gen_k2()
lab("CODE_END")
L.append('.section .rodata,"a"')
kd("gsort_kernel", 256 if STAMP else 252, 102 if STAMP else 80); kd("gmain_kernel", 256 if STAMP else NVGPR, 102)
if STAMP: L.append("; STAMPS " + repr(NAMES))
open(sys.argv[1], "w").write("\n".join(L) + "\n")
print("vgprs", NVGPR, "lds", K2_LDS, "lines", len(L), file=sys.stderr)
```

```python
import sys, struct, re

N = 25000; E = 400000; RN = 49; NR = 511; CH = 1600; NCH = 250
WS_REC = 0; WS_OFF = 0x310000; OROW = 1152; WS_WF = 0x3c0000; WS_TAB = 0x400000; WS_SIZE = 0x4000000
WF_A = 0; WF_U = 0x8000; WF_C = 0x10000; NA = 25
NLOG2E = struct.unpack('<I', struct.pack('<f', -1.4426950408889634))[0]
EPS = struct.unpack('<I', struct.pack('<f', 1e-6))[0]
NAME = "standalone__edge_featured_mpnn_gatedgcn__graph"
OPT = dict(k1='a', tabpol='sc1', recpol='sc1', touch='1', tsh='19', outpol='nt', bon='4', lp='3', pp='23,15,7')
OPT.update(a.split('=') for a in sys.argv[2:])
STAMP = int(OPT.get('stamp', 0))
WS_TAB = int(OPT.get('tab', hex(WS_TAB)), 0)
WS_STAMP = 0x3800000
L = []
def o(s): L.append("    " + s)
def lab(s): L.append(s + ":")
def vr(b, n): return f"v[{b}:{b+n-1}]"
VST = [60]
NAMES = {}
def stamp(i, ins="s_memrealtime", name=None):
    if STAMP:
        o(f"{ins} s[100:101]"); o("s_waitcnt lgkmcnt(0)"); o(f"v_writelane_b32 v{VST[0]}, s100, {i}")
def xstamp(name):
    if STAMP:
        NAMES[name] = 16 + len(NAMES); stamp(NAMES[name])
def stamp_out(n, reg, srdn, kern):
    if not STAMP: return
    o("s_mov_b64 exec, -1")
    stamp(n)
    o(f"v_lshlrev_b32 v{reg}, 2, v0")
    if kern and int(OPT.get('g8', 0)): o("s_and_b32 s63, s3, 1"); o("s_lshl_b32 s63, s63, 8"); o("s_add_u32 s2, s2, s63")
    o(f"s_lshl_b32 s63, s2, 11"); o(f"s_add_u32 s63, s63, {WS_STAMP + kern*0x100000:#x}")
    o(f"buffer_store_dword v{VST[0]}, v{reg}, s[{srdn}:{srdn+3}], s63 offen")
def srd(d, lo, size, stride=0):
    o(f"s_mov_b32 s{d}, s{lo}"); o(f"s_and_b32 s{d+1}, s{lo+1}, 0xffff")
    if stride: o(f"s_or_b32 s{d+1}, s{d+1}, {stride << 16:#x}")
    o(f"s_mov_b32 s{d+2}, {size:#x}"); o(f"s_mov_b32 s{d+3}, 0x20000")
def scan64(v):
    for d in ("row_shr:1", "row_shr:2", "row_shr:4", "row_shr:8"):
        o("s_nop 1"); o(f"v_add_u32_dpp v{v}, v{v}, v{v} {d} row_mask:0xf bank_mask:0xf bound_ctrl:0")
    o("s_nop 1"); o(f"v_add_u32_dpp v{v}, v{v}, v{v} row_bcast:15 row_mask:0xa bank_mask:0xf")
    o("s_nop 1"); o(f"v_add_u32_dpp v{v}, v{v}, v{v} row_bcast:31 row_mask:0xc bank_mask:0xf")

def m32(d, a, b, c): return f"v_mfma_f32_32x32x16_bf16 {vr(d,16)}, {vr(a,4)}, {vr(b,4)}, " + ("0" if c is None else vr(c,16))
K1_GRID = 256
OG = 4224
K1_W = 16896; K1_X = K1_W + 65536; K1_S = K1_X + 4 * 8320; K1_LDS = K1_S + 8 * 4608
def gen_k1():
    L.append(".globl gsort_kernel"); L.append(".p2align 8"); L.append(".type gsort_kernel,@function")
    lab("gsort_kernel"); VST[0] = 255
    pol = OPT.get('tabpol', '').replace('+', ' '); rpol = OPT.get('recpol', '').replace('+', ' ')
    stamp(0)
    o("s_load_dwordx8 s[4:11], s[0:1], 0")
    o("s_load_dwordx8 s[40:47], s[0:1], 32")
    o("s_load_dwordx2 s[48:49], s[0:1], 64")
    o("s_load_dwordx2 s[12:13], s[0:1], 88")
    o(f"s_cmp_ge_u32 s2, {K1_GRID}"); o("s_cbranch_scc1 K1_END")
    o("v_lshrrev_b32 v2, 6, v0"); o("v_lshlrev_b32 v1, 2, v0")
    o("s_and_b32 s36, s2, 7"); o("s_lshl_b32 s36, s36, 5"); o("s_lshr_b32 s35, s2, 3"); o("s_add_u32 s36, s36, s35")
    o("v_readfirstlane_b32 s33, v2")
    o("v_mov_b32 v2, 0"); o("ds_write_b32 v1, v2")
    o(f"s_mul_i32 s3, s2, {CH*4}"); o("s_mul_i32 s37, s36, 98")
    o(f"s_cmp_lt_u32 s2, {NCH}"); o(f"s_cselect_b32 s14, {CH//4}, 0")
    o("v_cmp_gt_u32 vcc, s14, v0")
    o("v_lshlrev_b32 v40, 4, v0")
    o("v_bfe_u32 v56, v0, 4, 1"); o("v_bfe_u32 v57, v0, 5, 1"); o("v_and_b32 v20, 63, v0")
    o("s_mov_b32 s68, 0"); o("v_lshlrev_b32 v42, 4, v20")
    o("v_bfe_u32 v43, v0, 4, 2"); o("v_lshlrev_b32 v43, 6, v43"); o("v_xor_b32 v43, v43, v40")
    o("v_lshl_add_u32 v58, v57, 3, v56")
    o("s_lshr_b32 s14, s33, 2"); o("s_lshl_b32 s14, s14, 4"); o("s_and_b32 s15, s33, 3"); o("s_lshl1_add_u32 s14, s15, s14")
    o("v_add_u32 v58, s14, v58"); o("v_add_u32 v54, s37, v58")
    o("v_and_b32 v55, 15, v0"); o("v_lshlrev_b32 v59, 3, v56"); o("v_xor_b32 v55, v55, v59"); o("v_lshlrev_b32 v55, 4, v55")
    o("s_mul_i32 s38, s33, 1040"); o(f"s_add_u32 s38, s38, {K1_X}")
    o("s_lshl_b32 s39, s33, 10"); o(f"s_add_u32 s39, s39, {K1_W}")
    o("s_mov_b32 m0, s38")
    o("s_waitcnt lgkmcnt(0)")
    srd(60, 4, N, 256)
    def xd(t):
        if t: o(f"s_add_u32 m0, s38, {t*8320}"); o("v_add_u32 v54, 32, v54")
        if t == 3: o("v_cmp_gt_u32 vcc, 2, v58"); o("v_mov_b32 v59, 0xffff"); o("s_nop 0"); o("v_cndmask_b32 v54, v59, v54, vcc")
        o("buffer_load_dwordx4 v[54:55], s[60:63], 0 idxen offen lds")
    xd(0); xd(1)
    srd(20, 10, E*4); srd(16, 8, E*4)
    o("s_and_saveexec_b64 s[28:29], vcc"); o("s_mov_b64 s[28:29], exec"); o("s_cbranch_execz K1_PREP")
    o("buffer_load_dwordx4 v[4:7], v40, s[20:23], s3 offen")
    o("buffer_load_dwordx4 v[8:11], v40, s[16:19], s3 offen")
    lab("K1_A")
    o("s_mov_b64 exec, -1")
    TCH = int(OPT.get('touch', 0)); SPL = int(OPT.get('split', 0))
    if TCH:
        srd(24, 12, WS_SIZE)
        o("s_lshl_b32 s14, s37, 9"); o(f"s_add_u32 s14, s14, {WS_TAB:#x}"); o("v_mov_b32 v248, s14"); o("s_lshl_b32 s14, s3, 1")
        o("v_writelane_b32 v248, s14, 1"); o(f"s_mov_b32 s14, {WS_OFF:#x}"); o("v_writelane_b32 v248, s14, 2")
        o("buffer_load_dword v249, v248, s[24:27], 0 offen")
    if not OPT.get('early'): o("s_barrier")
    srd(52, 42, 32768); srd(56, 48, 32768)
    for m in range(2):
        for i in range(4):
            o(f"s_add_u32 m0, s39, {m*32768+i*8192}"); o(f"s_movk_i32 s14, {i*8192}"); o(f"buffer_load_dwordx4 v43, s[{52+4*m}:{55+4*m}], s14 offen lds")
    xd(2); xd(3)
    if OPT.get('early'): o("s_barrier")
    def addrs():
        srd(24, 12, WS_SIZE)
        o("v_bfe_u32 v60, v0, 2, 2"); o("v_lshl_add_u32 v60, v57, 6, v60"); o("v_lshlrev_b32 v60, 8, v60")
        o("v_and_b32 v61, 3, v0"); o("v_lshl_add_u32 v60, v61, 3, v60"); o("v_lshl_add_u32 v60, v56, 5, v60")
        o("s_and_b32 s30, s33, 3"); o("v_bfe_u32 v61, v0, 2, 2"); o("v_xor_b32 v61, s30, v61"); o("v_lshl_add_u32 v60, v61, 6, v60"); o(f"v_add_u32 v60, {K1_W}, v60")
        o("v_bfe_u32 v61, v0, 1, 2"); o("v_lshl_or_b32 v61, v56, 2, v61"); o("v_mul_u32_u24 v61, 1040, v61")
        o("v_and_b32 v62, 1, v0"); o("v_bfe_u32 v63, v0, 3, 1"); o("v_lshl_or_b32 v63, v63, 1, v62"); o("v_lshl_add_u32 v61, v63, 8, v61")
        o("s_lshr_b32 s32, s33, 2"); o("s_mul_i32 s14, s32, 8320"); o(f"s_add_u32 s14, s14, {K1_X}")
        o("v_xor_b32 v62, v62, v57"); o("v_lshl_add_u32 v61, v62, 7, v61"); o("v_add_u32 v61, s14, v61")
        o("s_mul_i32 s14, s33, 4608"); o(f"s_add_u32 s14, s14, {K1_S}")
        o("v_and_b32 v62, 31, v0"); o("v_mul_u32_u24 v62, 144, v62"); o("v_lshl_add_u32 v62, v57, 6, v62"); o("v_add_u32 v62, s14, v62")
        o("v_lshrrev_b32 v58, 3, v20"); o("v_and_b32 v59, 7, v0"); o("v_lshlrev_b32 v59, 4, v59")
        o("v_mul_u32_u24 v63, 144, v58"); o("v_add3_u32 v63, v63, v59, s14")
        o("s_lshl_b32 s14, s32, 5"); o("s_add_u32 s14, s14, s37"); o("s_lshl_b32 s14, s14, 9"); o("s_lshl_b32 s30, s30, 7"); o("s_add_u32 s14, s14, s30")
        o("v_lshl_add_u32 v59, v58, 9, v59"); o("v_add_u32 v59, s14, v59")
        o("s_lshl_b32 s31, s3, 1")
    addrs()
    o(f"s_mul_i32 s34, s2, {CH}")
    o("v_add_u32 v3, s34, v1"); o("v_mov_b32 v2, 1"); o(f"s_mov_b32 s15, {-RN}")
    o("v_lshlrev_b32 v20, 5, v20")
    o("s_mov_b64 exec, s[28:29]"); o("s_cbranch_execz K1_B")
    o(f"s_waitcnt vmcnt({10+TCH})"); stamp(1)
    for i in range(4):
        o(f"v_mul_u32_u24 v{12+i}, 21400, v{4+i}")
        o(f"v_lshrrev_b32 v{12+i}, 20, v{12+i}")
        o(f"v_mad_i32_i24 v{4+i}, v{12+i}, s15, v{4+i}")
        o(f"v_lshlrev_b32 v{12+i}, 2, v{12+i}")
        o(f"ds_add_rtn_u32 v{16+i}, v{12+i}, v2")
    lab("K1_B")
    o("s_mov_b64 exec, -1")
    o(f"s_add_u32 s12, s12, {WS_TAB:#x}"); o("s_addc_u32 s13, s13, 0"); srd(16, 12, N * 512)
    o(f"s_mov_b32 s15, {NLOG2E:#x}")
    o(f"s_waitcnt vmcnt({2*SPL}) lgkmcnt(0)"); o("s_barrier"); stamp(3)
    lab("K1_J")
    WF_ = 64; XF_ = 128; AC = [160, 192]
    for m in range(2):
        for s in range(8):
            for jj in range(2): o(f"ds_read_b64_tr_b16 v[{WF_+32*m+4*s+2*jj}:{WF_+32*m+4*s+2*jj+1}], v60 offset:{m*32768+s*2048+jj*1024}")
            if m == 0: o(f"ds_read_b128 {vr(XF_+4*s,4)}, v61 offset:{16*s}")
    o("ds_read_b128 v[24:27], v20"); o("ds_read_b128 v[28:31], v20 offset:16")
    def post(t):
        a = AC[t]; r = []
        for k in range(16): r.append(f"v_mul_f32 v{a+k}, s15, v{a+k}")
        for k in range(16): r.append(f"v_cvt_pk_bf16_f32 v{224+k}, v{a+2*k}, v{a+2*k+1}")
        r += [f"ds_write_b128 v62, {vr(224+4*c,4)} offset:{16*c}" for c in range(4)]
        r += [f"ds_read_b128 {vr(a+4*k,4)}, v63 offset:{k*8*144}" for k in range(4)]
        return r
    def stores(t):
        r = []
        for k in range(4):
            r += [f"s_waitcnt lgkmcnt({3-k})", f"buffer_store_dwordx4 {vr(AC[t]+4*k,4)}, v59, s[16:19], 0 offen {pol}", "v_add_u32 v59, 0x1000, v59"]
        return r
    def recs():
        for i in range(4):
            o(f"v_cmp_lt_u32 vcc, {NA-1}, v{4+i}"); o(f"v_mul_u32_u24 v22, 83, v{8+i}"); o("v_lshrrev_b32 v22, 16, v22")
            o(f"v_cndmask_b32 v23, 0, {NA}, vcc"); o(f"v_sub_u32 v23, v{4+i}, v23")
            o(f"v_lshl_or_b32 v{44+2*i}, v23, 16, v{8+i}")
            o("v_cndmask_b32 v23, 0, 32, vcc"); o("v_or_b32 v22, v22, v23")
            o(f"v_lshl_add_u32 v{45+2*i}, v22, 26, v3")
            if i < 3: o("v_add_u32 v3, 1, v3")
    def scan():
        o("v_mov_b32 v33, v24")
        for j in range(2, 8): o(f"v_add_u32 v{32+j}, v{31+j}, v{23+j}")
        o("v_add_u32 v21, v39, v31"); o("v_mov_b32 v22, v21")
        scan64(21)
        o("v_sub_u32 v32, v21, v22")
        for j in range(1, 8): o(f"v_add_u32 v{32+j}, v32, v{32+j}")
    o("s_waitcnt lgkmcnt(15)")
    interleave([m32(AC[0], WF_+4*s, XF_+4*s, None if s == 0 else AC[0]) for s in range(8)], capture(recs), 5)
    o("s_waitcnt vmcnt(0) lgkmcnt(0)")
    if SPL: o("s_barrier")
    sc = capture(scan); p0 = post(0)
    q = sc + p0[:24]
    for s in range(8):
        o(m32(AC[0]+16, WF_+32+4*s, XF_+4*s, None if s == 0 else AC[0]+16))
        o(f"ds_read_b128 {vr(XF_+4*s,4)}, v61 offset:{2*8320+16*s}")
        for _ in range(5):
            if q: o(q.pop(0))
    lab("K1_G")
    o("s_waitcnt lgkmcnt(0)")
    mf = [m32(AC[1], WF_+4*s, XF_+4*s, None if s == 0 else AC[1]) for s in range(8)] + [m32(AC[1]+16, WF_+32+4*s, XF_+4*s, None if s == 0 else AC[1]+16) for s in range(8)]
    assert len(q) >= 8
    look = ["ds_write_b128 v20, v[32:35] offset:2048", "ds_write_b128 v20, v[36:39] offset:2064"] + [f"ds_read_b32 v{4+i}, v{12+i} offset:2048" for i in range(4)]
    q = q + p0[24:] + [None] * 5 + stores(0) + look
    for m in mf:
        o(m)
        for _ in range(5):
            if q:
                x = q.pop(0)
                if x: o(x)
    assert not q
    o("v_add_u32 v59, 0x4000, v59"); o("v_cmp_gt_u32 vcc, 2, v58")
    o("s_mov_b64 exec, s[28:29]")
    o("s_waitcnt lgkmcnt(0)")
    for i in range(4):
        o(f"v_add_lshl_u32 v{4+i}, v{4+i}, v{16+i}, 3"); o(f"ds_write_b64 v{4+i}, v[{44+2*i}:{45+2*i}] offset:4096")
    o("s_mov_b64 exec, -1")
    for x in post(1): o(x)
    stamp(4)
    o("s_cmp_lt_u32 s33, 4"); o("s_cbranch_scc1 K1_H")
    o("s_mov_b64 exec, vcc")
    for x in stores(1)[:2]: o(x)
    o("s_mov_b64 exec, -1")
    o("s_cmp_lg_u32 s68, 0"); o("s_cbranch_scc1 K1_PREP2")
    o("s_cmp_lg_u32 s33, 6"); o("s_cbranch_scc1 K1_I")
    for j in range(8): o(f"v_lshl_add_u32 v{24+j}, v{24+j}, 19, v{32+j}"); o(f"v_add_u32 v{24+j}, s34, v{24+j}")
    o(f"v_mul_u32_u24 v41, {OG//16}, v20"); o("s_lshl_b32 s35, s36, 4"); o(f"s_add_u32 s35, s35, {WS_OFF:#x}"); o(f"s_add_u32 s30, s35, {OG}")
    o("buffer_store_dwordx4 v[24:27], v41, s[24:27], s35 offen"); o("buffer_store_dwordx4 v[28:31], v41, s[24:27], s30 offen")
    o("s_branch K1_I")
    lab("K1_H")
    for x in stores(1): o(x)
    lab("K1_I")
    o(f"v_cmp_gt_u32 vcc, {CH//2-512}, v0")
    o("s_waitcnt lgkmcnt(0)"); o("s_barrier")
    o(f"s_cmp_lt_u32 s2, {NCH}"); o("s_cbranch_scc0 K1_F")
    o("ds_read_b128 v[44:47], v40 offset:4096"); o("ds_read_b128 v[48:51], v40 offset:12288")
    o("s_add_u32 s30, s31, 8192")
    o("s_waitcnt lgkmcnt(1)")
    o(f"buffer_store_dwordx4 v[44:47], v40, s[24:27], s31 offen {rpol}")
    o("s_and_saveexec_b64 s[28:29], vcc"); o("s_cbranch_execz K1_F")
    o("s_waitcnt lgkmcnt(0)")
    o(f"buffer_store_dwordx4 v[48:51], v40, s[24:27], s30 offen {rpol}")
    lab("K1_F")
    stamp_out(2, 12, 24, 0)
    lab("K1_END")
    o("s_endpgm")
    lab("K1_PREP")
    o("s_cmp_ge_u32 s2, 68"); o("s_cbranch_scc1 K1_A")
    o("s_mov_b64 exec, -1")
    o("s_lshr_b32 s14, s2, 5")
    o("s_cmp_eq_u32 s14, 1"); o("s_cselect_b32 s40, s46, s40"); o("s_cselect_b32 s41, s47, s41"); o(f"s_cselect_b32 s68, 1.0, {NLOG2E:#x}")
    o("s_mov_b32 s66, 32768"); o("s_bfe_u32 s50, s2, 0x20003"); o("s_and_b32 s51, s2, 7"); o("s_mov_b32 s32, 14")
    o("s_cmp_eq_u32 s14, 2"); o("s_cselect_b32 s40, s44, s40"); o("s_cselect_b32 s41, s45, s41"); o("s_cselect_b32 s66, 4096, s66")
    o("s_cselect_b32 s50, s51, s50"); o("s_cselect_b32 s51, 0, s51"); o("s_cselect_b32 s32, 11, s32")
    o("s_mov_b32 s64, s40"); o("s_and_b32 s65, s41, 0xffff"); o("s_mov_b32 s67, 0x20000")
    o("s_lshl_b32 s50, s50, 6"); o("s_lshl_b32 s51, s51, 11"); o("s_add_u32 s50, s50, s51")
    o("v_and_b32 v4, 3, v0"); o("v_bfe_u32 v5, v0, 3, 2"); o("v_lshl_or_b32 v4, v5, 2, v4")
    o("v_bfe_u32 v5, v0, 2, 1"); o("v_lshl_or_b32 v4, v5, 4, v4")
    o("v_lshlrev_b32 v5, s32, v57"); o("v_lshl_add_u32 v4, v4, 1, v5"); o("v_add_u32 v4, s50, v4")
    for j in range(8): o(f"buffer_load_ushort v{240+j}, v4, s[64:67], 0 offen offset:{j*256}")
    o("s_branch K1_A")
    lab("K1_PREP2")
    o("s_lshl_b32 s14, s2, 10"); o(f"s_add_u32 s14, s14, {WS_WF:#x}")
    for j in range(8):
        o(f"v_lshlrev_b32 v{240+j}, 16, v{240+j}"); o(f"v_mul_f32 v{240+j}, s68, v{240+j}")
    for j in range(4): o(f"v_cvt_pk_bf16_f32 v{52+j}, v{240+2*j}, v{241+2*j}")
    o("buffer_store_dwordx4 v[52:55], v42, s[24:27], s14 offen")
    o("s_branch K1_I")

SM = int(OPT.get('sm', 0)); SMS = N * 128 + int(OPT.get('smpad', 0))
def gen_k1a():
    L.append(".globl gsort_kernel"); L.append(".p2align 8"); L.append(".type gsort_kernel,@function")
    lab("gsort_kernel"); VST[0] = 255
    pol = OPT.get('tabpol', '').replace('+', ' '); rpol = OPT.get('recpol', '').replace('+', ' ')
    if OPT.get('cpf'):
        o("s_getpc_b64 s[70:71]")
        o("v_lshlrev_b32 v236, 7, v0"); o("v_min_u32 v236, CODE_END-gsort_kernel-8, v236")
        o("v_mov_b32 v237, s71"); o("v_add_co_u32 v236, vcc, s70, v236"); o("s_nop 1"); o("v_addc_co_u32 v237, vcc, 0, v237, vcc")
        o("global_load_dword v238, v[236:237], off")
    stamp(0)
    o("s_load_dwordx8 s[4:11], s[0:1], 0")
    o("s_load_dwordx8 s[40:47], s[0:1], 32")
    o("s_load_dwordx2 s[48:49], s[0:1], 64")
    o("s_load_dwordx2 s[12:13], s[0:1], 88")
    o("s_load_dwordx2 s[72:73], s[0:1], 72")
    o(f"s_cmp_ge_u32 s2, {K1_GRID}"); o("s_cbranch_scc1 K1_END")
    o("v_lshrrev_b32 v2, 6, v0"); o("v_lshlrev_b32 v1, 2, v0")
    o("s_and_b32 s36, s2, 7"); o("s_lshl_b32 s36, s36, 5"); o("s_lshr_b32 s35, s2, 3"); o("s_add_u32 s36, s36, s35")
    o("v_readfirstlane_b32 s33, v2")
    o("v_mov_b32 v2, 0"); o("ds_write_b32 v1, v2")
    o(f"s_mul_i32 s3, s2, {CH*4}"); o("s_mul_i32 s37, s36, 98")
    o(f"s_cmp_lt_u32 s2, {NCH}"); o(f"s_cselect_b32 s14, {CH//5}, 0")
    o("v_cmp_gt_u32 vcc, s14, v0")
    o("v_lshlrev_b32 v40, 4, v0")
    o("v_bfe_u32 v56, v0, 4, 1"); o("v_bfe_u32 v57, v0, 5, 1"); o("v_and_b32 v20, 63, v0")
    o("s_mov_b32 s68, 0"); o("v_lshlrev_b32 v42, 4, v20")
    o("v_mul_u32_u24 v43, 20, v0")
    o("s_cmp_ge_u32 s33, 5")
    o("s_waitcnt lgkmcnt(0)")
    o("s_cbranch_scc1 K1_LOAD")
    srd(20, 10, E*4); srd(16, 8, E*4)
    o("s_and_saveexec_b64 s[28:29], vcc"); o("s_mov_b64 s[28:29], exec"); o("s_cbranch_execz K1_A")
    o("buffer_load_dwordx4 v[64:67], v43, s[20:23], s3 offen"); o("buffer_load_dword v68, v43, s[20:23], s3 offen offset:16")
    o("buffer_load_dwordx4 v[72:75], v43, s[16:19], s3 offen"); o("buffer_load_dword v76, v43, s[16:19], s3 offen offset:16")
    lab("K1_A")
    o("s_mov_b64 exec, -1")
    o("s_barrier")
    def addrs():
        srd(24, 12, WS_SIZE)
        o("v_bfe_u32 v60, v0, 2, 2"); o("v_lshl_add_u32 v60, v57, 6, v60"); o("v_lshlrev_b32 v60, 8, v60")
        o("v_and_b32 v61, 3, v0"); o("v_lshl_add_u32 v60, v61, 3, v60"); o("v_lshl_add_u32 v60, v56, 5, v60")
        o("s_and_b32 s30, s33, 3"); o("v_bfe_u32 v61, v0, 2, 2"); o("v_xor_b32 v61, s30, v61"); o("v_lshl_add_u32 v60, v61, 6, v60"); o(f"v_add_u32 v60, {K1_W}, v60")
        o("v_bfe_u32 v61, v0, 1, 2"); o("v_lshl_or_b32 v61, v56, 2, v61"); o("v_mul_u32_u24 v61, 1040, v61")
        o("v_and_b32 v62, 1, v0"); o("v_bfe_u32 v63, v0, 3, 1"); o("v_lshl_or_b32 v63, v63, 1, v62"); o("v_lshl_add_u32 v61, v63, 8, v61")
        o("s_lshr_b32 s32, s33, 2"); o("s_mul_i32 s14, s32, 8320"); o(f"s_add_u32 s14, s14, {K1_X}")
        o("v_xor_b32 v62, v62, v57"); o("v_lshl_add_u32 v61, v62, 7, v61"); o("v_add_u32 v61, s14, v61")
        o("s_mul_i32 s14, s33, 4608"); o(f"s_add_u32 s14, s14, {K1_S}")
        o("v_and_b32 v62, 31, v0"); o("v_mul_u32_u24 v62, 144, v62"); o("v_lshl_add_u32 v62, v57, 6, v62"); o("v_add_u32 v62, s14, v62")
        o("v_lshrrev_b32 v58, 3, v20"); o("v_and_b32 v59, 7, v0"); o("v_lshlrev_b32 v59, 4, v59")
        o("v_mul_u32_u24 v63, 144, v58"); o("v_add3_u32 v63, v63, v59, s14")
        if SM:
            o("s_lshl_b32 s14, s32, 5"); o("s_add_u32 s14, s14, s37"); o("s_lshl_b32 s14, s14, 7"); o(f"s_mul_i32 s69, s30, {SMS}")
            o("v_add_u32 v59, s14, v42")
        else:
            o("s_lshl_b32 s14, s32, 5"); o("s_add_u32 s14, s14, s37"); o("s_lshl_b32 s14, s14, 9"); o("s_lshl_b32 s30, s30, 7"); o("s_add_u32 s14, s14, s30")
            o("v_lshl_add_u32 v59, v58, 9, v59"); o("v_add_u32 v59, s14, v59")
        o("s_lshl_b32 s31, s3, 1")
    addrs()
    o(f"s_mul_i32 s34, s2, {CH}")
    o("v_lshrrev_b32 v3, 2, v43"); o("v_add_u32 v3, s34, v3"); o("v_mov_b32 v2, 1"); o(f"s_mov_b32 s15, {-RN}"); o(f"s_movk_i32 s38, {-64*RN}")
    o("v_lshlrev_b32 v20, 5, v20")
    o("s_mov_b64 exec, s[28:29]"); o("s_cbranch_execz K1_B")
    o("s_waitcnt vmcnt(2)"); stamp(1)
    for i in range(5):
        o(f"v_mul_u32_u24 v{80+i}, 21400, v{64+i}")
        o(f"v_lshrrev_b32 v{80+i}, 20, v{80+i}")
        o(f"v_mad_i32_i24 v{64+i}, v{80+i}, s15, v{64+i}")
        o(f"v_lshlrev_b32 v{80+i}, 2, v{80+i}")
        o(f"ds_add_rtn_u32 v{88+i}, v{80+i}, v2")
    o("s_waitcnt vmcnt(0)")
    for i in range(5):
        o(f"v_cmp_lt_u32 vcc, {NA-1}, v{64+i}")
        if int(OPT.get('rot', 0)):
            o(f"v_lshrrev_b32 v22, 8, v{80+i}"); o(f"v_mad_i32_i24 v22, v22, s38, v{72+i}"); o(f"v_add_u32 v23, {512*RN}, v22"); o("v_min_u32 v22, v22, v23")
            o("v_mul_u32_u24 v22, 83, v22")
        else: o(f"v_mul_u32_u24 v22, {OPT.get('binmul', 83)}, v{72+i}")
        o("v_lshrrev_b32 v22, 16, v22")
        o(f"v_cndmask_b32 v23, 0, {NA}, vcc"); o(f"v_sub_u32 v23, v{64+i}, v23")
        o(f"v_lshl_or_b32 v{96+2*i}, v23, 16, v{72+i}")
        o("v_cndmask_b32 v23, 0, 32, vcc"); o("v_or_b32 v22, v22, v23")
        o(f"v_lshl_add_u32 v{97+2*i}, v22, 26, v3")
        if i < 4: o("v_add_u32 v3, 1, v3")
    lab("K1_B")
    o("s_mov_b64 exec, -1")
    o("s_waitcnt lgkmcnt(0)"); o("s_barrier")
    o("ds_read_b128 v[24:27], v20"); o("ds_read_b128 v[28:31], v20 offset:16")
    o("s_waitcnt lgkmcnt(0)")
    o("v_mov_b32 v33, v24")
    for j in range(2, 8): o(f"v_add_u32 v{32+j}, v{31+j}, v{23+j}")
    o("v_add_u32 v21, v39, v31"); o("v_mov_b32 v22, v21")
    scan64(21)
    o("v_sub_u32 v32, v21, v22")
    for j in range(1, 8): o(f"v_add_u32 v{32+j}, v32, v{32+j}")
    o("ds_write_b128 v20, v[32:35] offset:2048"); o("ds_write_b128 v20, v[36:39] offset:2064")
    o("s_mov_b64 exec, s[28:29]")
    for i in range(5): o(f"ds_read_b32 v{64+i}, v{80+i} offset:2048")
    o("s_waitcnt lgkmcnt(0)")
    for i in range(5):
        o(f"v_add_lshl_u32 v{64+i}, v{64+i}, v{88+i}, 3"); o(f"ds_write_b64 v{64+i}, v[{96+2*i}:{97+2*i}] offset:4096")
    o("s_mov_b64 exec, -1")
    o("s_waitcnt lgkmcnt(0)"); o("s_barrier"); stamp(3)
    lab("K1_J")
    if OPT.get('pfe'):
        srd(76, 6, E*32); o("v_lshlrev_b32 v250, 7, v0"); o("s_lshl_b32 s14, s2, 16"); o("v_add_u32 v250, s14, v250")
        o("buffer_load_dword v251, v250, s[76:79], 0 offen " + OPT['pfe'].replace('p', ''))
    WF_ = 64; XF_ = 128; AC = [160, 192]
    o("ds_read_b128 v[44:47], v40 offset:4096"); o("ds_read_b128 v[48:51], v40 offset:12288")
    o(f"v_cmp_gt_u32 vcc, {CH//2-512}, v0")
    for m in range(2):
        for s in range(8):
            for jj in range(2): o(f"ds_read_b64_tr_b16 v[{WF_+32*m+4*s+2*jj}:{WF_+32*m+4*s+2*jj+1}], v60 offset:{m*32768+s*2048+jj*1024}")
        if m == 0:
            for s in range(8): o(f"ds_read_b128 {vr(XF_+4*s,4)}, v61 offset:{16*s}")
    o(f"s_add_u32 s12, s12, {WS_TAB:#x}"); o("s_addc_u32 s13, s13, 0")
    if SM: o("s_add_u32 s12, s12, s69"); o("s_addc_u32 s13, s13, 0")
    srd(16, 12, N * (128 if SM else 512))
    o(f"s_mov_b32 s15, {NLOG2E:#x}")
    def post(t):
        a = AC[t]; r = []
        for k in range(16): r.append(f"v_mul_f32 v{a+k}, s15, v{a+k}")
        for k in range(16): r.append(f"v_cvt_pk_bf16_f32 v{224+k}, v{a+2*k}, v{a+2*k+1}")
        r += [f"ds_write_b128 v62, {vr(224+4*c,4)} offset:{16*c}" for c in range(4)]
        r += [f"ds_read_b128 {vr(a+4*k,4)}, v63 offset:{k*8*144}" for k in range(4)]
        return r
    def tp(i):
        m = OPT.get('tp')
        return pol if not m else {'s': 'sc1', 'n': 'nt', 'p': ''}[m[i]]
    def stores(t):
        r = []
        for k in range(4):
            r += [f"s_waitcnt lgkmcnt({3-k})", f"buffer_store_dwordx4 {vr(AC[t]+4*k,4)}, v59, s[16:19], 0 offen {tp(4*t+k)}", f"v_add_u32 v59, {0x400 if SM else 0x1000:#x}, v59"]
        return r
    o("s_waitcnt lgkmcnt(15)")
    o(f"s_cmp_lt_u32 s2, {NCH}"); o("s_cbranch_scc0 K1_E")
    o("s_add_u32 s30, s31, 8192")
    o(f"buffer_store_dwordx4 v[44:47], v40, s[24:27], s31 offen {rpol}")
    o("s_and_saveexec_b64 s[28:29], vcc"); o("s_cbranch_execz K1_E")
    o(f"buffer_store_dwordx4 v[48:51], v40, s[24:27], s30 offen {rpol}")
    lab("K1_E"); o("s_mov_b64 exec, -1")
    for s in range(8): o(m32(AC[0], WF_+4*s, XF_+4*s, None if s == 0 else AC[0]))
    o("s_waitcnt lgkmcnt(0)")
    for s in range(8):
        o(m32(AC[0]+16, WF_+32+4*s, XF_+4*s, None if s == 0 else AC[0]+16))
        o(f"ds_read_b128 {vr(XF_+4*s,4)}, v61 offset:{2*8320+16*s}")
    o("s_cmp_lg_u32 s68, 0"); o("s_cbranch_scc1 K1_PREP2")
    o("s_cmp_eq_u32 s33, 4"); o("s_cbranch_scc1 K1_OFF")
    lab("K1_G")
    o("s_waitcnt lgkmcnt(0)")
    mf = [m32(AC[1], WF_+4*s, XF_+4*s, None if s == 0 else AC[1]) for s in range(8)] + [m32(AC[1]+16, WF_+32+4*s, XF_+4*s, None if s == 0 else AC[1]+16) for s in range(8)]
    q = post(0) + [None] * 6 + stores(0)
    for m in mf:
        o(m)
        for _ in range(5):
            if q:
                x = q.pop(0)
                if x: o(x)
    assert not q
    o(f"v_add_u32 v59, {0x1000 if SM else 0x4000:#x}, v59"); o("v_cmp_gt_u32 vcc, 2, v58")
    for x in post(1): o(x)
    stamp(4)
    o("s_cmp_lt_u32 s33, 4"); o("s_cbranch_scc1 K1_H")
    o("s_mov_b64 exec, vcc")
    for x in stores(1)[:2]: o(x)
    o("s_branch K1_F")
    lab("K1_H")
    for x in stores(1): o(x)
    lab("K1_F")
    if OPT.get('touch') == '4':
        o("s_mov_b64 exec, -1"); o("s_cmp_lg_u32 s33, 7"); o("s_cbranch_scc1 K1_END")
        o("v_lshl_add_u32 v250, v20, 5, s35"); o(f"v_lshlrev_b32 v250, 19, v250")
        srd(76, 6, E*32); o("buffer_load_dword v249, v250, s[76:79], 0 offen")
        srd(76, 72, N*256); o("buffer_load_dword v249, v250, s[76:79], 0 offen")
        o("buffer_load_dword v249, v250, s[16:19], 0 offen"); o("s_mov_b32 s26, 0x400000"); o("buffer_load_dword v249, v250, s[24:27], 0 offen")
    stamp_out(2, 12, 24, 0)
    lab("K1_END")
    o("s_endpgm")
    lab("K1_OFF")
    for j in range(8): o(f"v_lshl_add_u32 v{24+j}, v{24+j}, 19, v{32+j}"); o(f"v_add_u32 v{24+j}, s34, v{24+j}")
    o(f"v_mul_u32_u24 v41, {OG//16}, v20"); o("s_lshl_b32 s35, s36, 4"); o(f"s_add_u32 s35, s35, {WS_OFF:#x}"); o(f"s_add_u32 s30, s35, {OG}")
    o("buffer_store_dwordx4 v[24:27], v41, s[24:27], s35 offen " + OPT.get('offpol', '')); o("buffer_store_dwordx4 v[28:31], v41, s[24:27], s30 offen " + OPT.get('offpol', ''))
    o("s_branch K1_G")
    lab("K1_LOAD")
    nb0 = int(OPT.get('k1a', 0))
    nb = int(OPT.get('k1b', 24))
    o("s_cmp_eq_u32 s33, 7"); o("s_cbranch_scc1 K1_LX")
    o("s_cmp_eq_u32 s33, 6"); o("s_cselect_b32 s42, s48, s42"); o("s_cselect_b32 s43, s49, s43"); o("s_cselect_b32 s39, 0x8000, 0"); o(f"s_add_u32 s39, s39, {K1_W}")
    srd(52, 42, 32768)
    o("v_lshrrev_b32 v44, 4, v20"); o("v_lshlrev_b32 v44, 6, v44"); o("v_xor_b32 v44, v44, v42")
    for k in range(32):
        if k in (nb0, nb): o("s_barrier")
        if k % 4 == 0: o(f"s_add_u32 m0, s39, {k*1024}"); o(f"s_movk_i32 s14, {k*1024}")
        o(f"buffer_load_dwordx4 v44, s[52:55], s14 offen offset:{(k%4)*1024} lds")
    lab("K1_LD")
    addrs()
    o("s_waitcnt vmcnt(0)"); o("s_barrier")
    o("s_branch K1_J")
    def touch2():
        sh = int(OPT.get('tsh', 16))
        o("v_lshl_add_u32 v250, v20, 5, s35"); o(f"v_lshlrev_b32 v250, {sh}, v250")
        srd(76, 6, E*32); o("buffer_load_dword v249, v250, s[76:79], 0 offen")
        srd(76, 12, WS_TAB + 4*SMS); o("buffer_load_dword v249, v250, s[76:79], 0 offen")
        srd(76, 72, N*256); o("buffer_load_dword v249, v250, s[76:79], 0 offen")
    lab("K1_LX")
    if OPT.get('touch') == '3': touch2()
    if int(OPT.get('touch', 0)):
        srd(24, 12, WS_SIZE)
        o(f"s_lshl_b32 s14, s37, {7 if SM else 9}"); o(f"s_add_u32 s14, s14, {WS_TAB:#x}"); o("v_mov_b32 v248, s14")
        if SM: o("v_lshrrev_b32 v249, 4, v20"); o(f"v_mul_u32_u24 v249, {SMS}, v249"); o("v_add_u32 v248, v248, v249")
        o("s_lshl_b32 s14, s3, 1")
        o("v_writelane_b32 v248, s14, 1"); o(f"s_mov_b32 s14, {WS_OFF:#x}"); o("v_writelane_b32 v248, s14, 2")
        o("buffer_load_dword v249, v248, s[24:27], 0 offen")
    srd(60, 4, N, 256)
    o("v_lshl_add_u32 v58, v57, 3, v56"); o("v_add_u32 v53, s37, v58")
    o("v_and_b32 v55, 15, v0"); o("v_lshlrev_b32 v59, 3, v56"); o("v_xor_b32 v55, v55, v59"); o("v_lshlrev_b32 v55, 4, v55")
    o("v_cmp_gt_u32 vcc, 2, v58"); o("v_mov_b32 v59, 0xffff")
    for k in range(25):
        t, i = divmod(k, 8)
        if k in (nb0, nb): o("s_barrier")
        o(f"s_mov_b32 m0, {K1_X + t*8320 + i*1040}"); o(f"v_add_u32 v54, {32*t + 16*(i >> 2) + 2*(i & 3)}, v53")
        if t == 3: o("v_cndmask_b32 v54, v59, v54, vcc")
        o("buffer_load_dwordx4 v[54:55], s[60:63], 0 idxen offen lds")
    if OPT.get('touch') == '2': touch2()
    o("s_cmp_ge_u32 s2, 68"); o("s_cbranch_scc1 K1_LD")
    o("s_lshr_b32 s14, s2, 5")
    o("s_cmp_eq_u32 s14, 1"); o("s_cselect_b32 s40, s46, s40"); o("s_cselect_b32 s41, s47, s41"); o(f"s_cselect_b32 s68, 1.0, {NLOG2E:#x}")
    o("s_mov_b32 s66, 32768"); o("s_bfe_u32 s50, s2, 0x20003"); o("s_and_b32 s51, s2, 7"); o("s_mov_b32 s32, 14")
    o("s_cmp_eq_u32 s14, 2"); o("s_cselect_b32 s40, s44, s40"); o("s_cselect_b32 s41, s45, s41"); o("s_cselect_b32 s66, 4096, s66")
    o("s_cselect_b32 s50, s51, s50"); o("s_cselect_b32 s51, 0, s51"); o("s_cselect_b32 s32, 11, s32")
    o("s_mov_b32 s64, s40"); o("s_and_b32 s65, s41, 0xffff"); o("s_mov_b32 s67, 0x20000")
    o("s_lshl_b32 s50, s50, 6"); o("s_lshl_b32 s51, s51, 11"); o("s_add_u32 s50, s50, s51")
    o("v_and_b32 v4, 3, v0"); o("v_bfe_u32 v5, v0, 3, 2"); o("v_lshl_or_b32 v4, v5, 2, v4")
    o("v_bfe_u32 v5, v0, 2, 1"); o("v_lshl_or_b32 v4, v5, 4, v4")
    o("v_lshlrev_b32 v5, s32, v57"); o("v_lshl_add_u32 v4, v4, 1, v5"); o("v_add_u32 v4, s50, v4")
    for j in range(8): o(f"buffer_load_ushort v{8+j}, v4, s[64:67], 0 offen offset:{j*256}")
    o("s_branch K1_LD")
    lab("K1_PREP2")
    o("s_lshl_b32 s14, s2, 10"); o(f"s_add_u32 s14, s14, {WS_WF:#x}")
    for j in range(8):
        o(f"v_lshlrev_b32 v{8+j}, 16, v{8+j}"); o(f"v_mul_f32 v{8+j}, s68, v{8+j}")
    for j in range(4): o(f"v_cvt_pk_bf16_f32 v{52+j}, v{8+2*j}, v{9+2*j}")
    o("buffer_store_dwordx4 v[52:55], v42, s[24:27], s14 offen " + OPT.get('wfpol', ''))
    o("s_branch K1_G")

def regs_of(tok):
    m = re.fullmatch(r"v\[(\d+):(\d+)\]", tok)
    if m: return set(range(int(m.group(1)), int(m.group(2)) + 1))
    m = re.fullmatch(r"v(\d+)", tok)
    return {int(m.group(1))} if m else set()
def check_hazards(ins):
    P = []
    for s in ins:
        if s.endswith(':'): continue
        op, _, rest = s.partition(' ')
        t = [x.strip() for x in rest.split(',')]
        t = [x.split(' ')[0] for x in t]
        if op.startswith('v_mfma'):
            P.append(('m', 12 if '32x32' in op else 8, regs_of(t[0]), regs_of(t[1]) | regs_of(t[2]), regs_of(t[3]), s))
        elif op.startswith('v_'):
            P.append(('t' if op in ('v_exp_f32', 'v_rcp_f32') else 'v', 0, regs_of(t[0]), set().union(*map(regs_of, t[1:])), set(), s))
        elif op.startswith('ds_read'):
            P.append(('d', 0, regs_of(t[0]), regs_of(t[1]), set(), s))
        elif op.startswith('buffer'):
            P.append(('d', 0, set(), regs_of(t[0]), set(), s))
        else: P.append(('s', 0, set(), set(), set(), s))
    n = len(P)
    for i, (k, w, d, ab, c, s) in enumerate(P):
        for j in range(1, 13):
            k2, w2, d2, ab2, c2, s2 = P[(i + j) % n]
            gap = j - 1
            if k == 'm':
                if k2 == 'm':
                    assert not (gap < w and d & ab2), (s, s2)
                    if d & c2 and d != c2: assert gap >= w - 2, (s, s2)
                else: assert not (gap < w and d & (d2 | ab2)), (s, s2, gap)
                if k2 in 'vt': assert not (gap < (7 if w == 12 else 3) and c & d2), (s, s2)
            if k in 'vt' and k2 == 'm': assert not (gap < 2 and d & (ab2 | c2)), (s, s2)
            if k == 't' and k2 == 'v': assert not (gap < 1 and d & ab2), (s, s2)

LOWLIM = 2; NS = 2
LUT = 0; IDT = 4096; NB = IDT + 26 * 80; LIST = NB + 256; MB = LIST + 8192; ROW = 264; CNT = MB + 26 * ROW; ZSZ = 26 * ROW + 256
ER = CNT + 256; RING = ER + 8192; WS_ = 4160; SLOT = 4 * WS_; K2_LDS = RING + (NS + 1) * SLOT
G8 = int(OPT.get('g8', 0)); GS = (K2_LDS - NB + 255) // 256 * 256
assert K2_LDS <= 81920 and ER % 16 == 0 and LIST % 16 == 0 and MB % 16 == 0 and 4096 < ZSZ <= 8192 and ZSZ % 16 == 0

class RA:
    def __init__(s): s.n = 1
    def get(s, k=1, al=1):
        s.n = (s.n + al - 1) // al * al
        b = s.n; s.n += k; return b
R = RA()
vTA = R.get()
IX = [R.get(2, 2) for _ in range(4)]; IXE = R.get(2, 2); MQ = R.get(2, 2)
(vTC, vEA, vMT, vSA, vMA, vL1, vL2, vSV, vHC, vWF, vXA, vXR, vXI, vXO) = [R.get() for _ in range(14)]
SEG = R.get(4, 4); PT = R.get(4, 4)
GV = R.get(64, 4); ACC = R.get(64, 4)
TF = R.get(16, 4); EF = R.get(4, 4); SF = R.get(8, 4); WC = R.get(4, 4); T0 = R.get(8, 4); AF = R.get(16, 4); SEL = R.get(8, 4)
NVGPR = R.n
assert NVGPR <= 255, NVGPR
REC = GV; RANK = GV + 32; AD = GV + 48
sX, sE, sW, sO, sT = 8, 12, 16, 20, 96
sWAVE, sBASE, sMR, sME, sCNT, sNT, sRS, sLIM, sFIRST, sMORE, sDS, sT0, sT1, sEPS, s80, sMET = range(24, 40)
sHM, sSV, sWF, sS0 = 42, 44, 52, 54
sK = 56
sG = 95
def addg(v):
    if G8: o(f"v_add_u32 v{v}, s{sG}, v{v}")
def saddg(r):
    if G8: o(f"s_add_u32 s{r}, s{r}, s{sG}")

def ldt(i): return f"buffer_load_dwordx4 {vr(IX[i],2)}, s[{sT}:{sT+3}], 0 idxen offen {OPT.get('tpol', '').replace('+', ' ')} lds".replace("  ", " ")
def lde(): return f"buffer_load_dwordx4 {vr(IXE,2)}, s[{sE}:{sE+3}], 0 idxen offen {OPT.get('epol', '').replace('+', ' ')} lds".replace("  ", " ")
def loff(u): return (u & 1) * 4096 + (u >> 1) * 256
def nextslot(r): return [f"s_add_u32 s{r}, s{r}, {SLOT}", f"s_cmp_eq_u32 s{r}, {NS*SLOT}", f"s_cselect_b32 s{r}, 0, s{r}"]

def vstream(Gc, Vc):
    A = []
    for p in range(0, 22, 2):
        if p < 16: A += [(f"v_exp_f32 v{Gc+p}, v{Gc+p}", 8), (f"v_exp_f32 v{Gc+p+1}, v{Gc+p+1}", 8)]
        q = p - 2
        if 0 <= q < 16:
            if 'a' in OPT.get('pk', ''): A += [(f"v_pk_add_f32 {vr(Gc+q,2)}, {vr(Gc+q,2)}, 1.0 op_sel_hi:[1,0]", 4)]
            else: A += [(f"v_add_f32 v{Gc+q}, 1.0, v{Gc+q}", 4), (f"v_add_f32 v{Gc+q+1}, 1.0, v{Gc+q+1}", 4)]
            A += [(f"v_rcp_f32 v{Gc+q}, v{Gc+q}", 8), (f"v_rcp_f32 v{Gc+q+1}, v{Gc+q+1}", 8)]
        q = p - 4
        if 0 <= q < 16 and 'm' in OPT.get('pk', ''): A += [(f"v_pk_mul_f32 {vr(Vc+q,2)}, {vr(Gc+q,2)}, {vr(Vc+q,2)}", 4)]
        elif 0 <= q < 16: A += [(f"v_mul_f32 v{Vc+q}, v{Gc+q}, v{Vc+q}", 4), (f"v_mul_f32 v{Vc+q+1}, v{Gc+q+1}, v{Vc+q+1}", 4)]
        q = p - 6
        if 0 <= q < 16: A += [(f"v_cvt_pk_bf16_f32 v{Gc+q//2}, v{Gc+q}, v{Gc+q+1}", 4), (f"v_cvt_pk_bf16_f32 v{Vc+q//2}, v{Vc+q}, v{Vc+q+1}", 4)]
    return A
def zphase(P, p):
    d = ACC + 32 * p
    return [m32(d, P, T0, d), m32(d+16, P+16, T0, d+16), m32(d, P+4, T0+4, d), m32(d+16, P+20, T0+4, d+16)]

HEAD = {}
def body(b, peel=False):
    p = b % 2
    Gn = GV + 32 * p; Vn = Gn + 16; Gc = GV + 32 * (1 - p); Vc = Gc + 16; af = AF + 8 * p
    ne = sum(1 for k in range(NS - 1) if (b - k) % 4 == 0) + (1 if (b - (NS - 1)) % 4 == 0 else 0)
    vmw = 4 * (NS - 1) + ne
    z = zphase(Gn, p)
    def dma(i): return [f"s_add_u32 m0, s{sMR}, {p*SLOT + i*1040}", None, ldt(i), f"ds_read_u16 v{IX[i]}, v{vL1} offset:{loff(b+NS+1)+64*i}"]
    top = ["s_waitcnt vmcnt(8) lgkmcnt(0)", "s_barrier"] if b == 3 else ["s_waitcnt lgkmcnt(0)"]
    if G8 and OPT.get('sp', '2103') != '0': top.append(f"s_setprio {OPT.get('sp', '2103')[b]}")
    if G8 and OPT.get('bar2') and b == 1: top.insert(1, "s_barrier")
    seq = []
    seq.append([z[0], [], [f"v_mad_u32_u24 v{vSV}, v{vSV}, s{s80}, v{vHC}"]])
    seq.append([z[1], [f"ds_read_b128 {vr(SF,4)}, v{vSV}", f"ds_read_b128 {vr(SF+4,4)}, v{vSV} offset:32"], []])
    seq.append([z[2], [f"ds_read_u8 v{vSV}, v{vSA} offset:{loff(b+1)}"], []])
    seq.append([z[3], [f"s_sub_u32 s{sCNT}, s{sCNT}, 1", f"s_cbranch_scc1 TAIL{p}", f"ENT{b}:"], []])
    seq.append([m32(Gn, TF, SEL, None), [f"ds_read_b128 {vr(T0,4)}, v{MQ}"], [f"v_and_b32 v{IXE}, 0x7ffff, v{IXE}"] if b == 0 else []])
    seq.append([m32(Gn, TF+4, SEL+4, Gn), [f"ds_read_b128 {vr(T0+4,4)}, v{MQ+1}"], [f"v_xor_b32 v{vEA}, v{vEA}, v{vMT}"] if b == 3 else []])
    seq.append([m32(Gn, EF, WC, Gn), [f"ds_read_b128 {vr(EF,4)}, v{vEA} offset:{(b+1)%4*1024}", f"ds_read_u16 v{MQ}, v{vMA} offset:{b*8}",
                f"ds_read_u16 v{MQ+1}, v{vMA} offset:{b*8+2}"], []])
    seq.append([m32(Vn, TF+8, SEL, None), [f"ds_read_b32 v{IXE}, v{vL2}"] if b == 3 else [], []])
    seq.append([m32(Vn, TF+12, SEL+4, Vn), ["s_waitcnt lgkmcnt(S)"], []])
    seq.append([m32(Gn, SF, af, Gn), [f"s_waitcnt vmcnt({vmw})"], []])
    seq.append([m32(Gn, SF+4, af+4, Gn), [f"ds_read_b128 {vr(TF+4*j,4)}, v{vTA} offset:{(1-p)*SLOT+16*j}" for j in range(4)],
                [f"v_add_u32 v{r}, 0x200, v{r}" for r in (vSA, vL1, vL2)] + [f"v_add_u32 v{vMA}, 32, v{vMA}"] if b == 3 else []])
    dp = [int(c) for c in OPT.get('dp', '03589')]
    for i in range(4): seq[dp[i]][1] = seq[dp[i]][1] + dma(i)
    if b == 0: seq[dp[4]][1] = seq[dp[4]][1] + [f"s_mov_b32 m0, s{sME}", None, lde(), f"s_xor_b32 s{sME}, s{sME}, s{sMET}"]
    A = [] if peel else vstream(Gc, Vc)
    wt = [float(x) for x in OPT.get('wt', '1,1,1,1,1,1,1,1,1,1,1.6').split(',')]
    tot = sum(c for _, c in A); out = list(top); ai = 0; acc = 0; budget = 0
    for i, (m, ex, xv) in enumerate(seq):
        budget += tot * wt[i] / sum(wt)
        g = []
        while ai < len(A) and acc + A[ai][1] / 2 <= budget + 0.01:
            g.append(A[ai][0]); acc += A[ai][1]; ai += 1
        if i == 3 and not peel: HEAD[b] = ai
        if not (peel and i < 4): out.append(m)
        g = xv + g
        last = [x for x in ex if x and (x.startswith("s_waitcnt") or x.startswith("s_cbranch") or x.endswith(":") or x.startswith("s_sub"))]
        ex = [x for x in ex if x not in last]
        if peel: last = [x for x in last if x.startswith("s_waitcnt")]
        first = True
        for x in ex:
            if x is None:
                continue
            if not first and g: out.append(g.pop(0))
            elif not first and peel and x.startswith("buffer"): out.append("s_nop 0")
            out.append(x); first = False
        out += g + last
    assert ai == len(A)
    i0 = max(i for i, x in enumerate(out) if x.startswith(f"ds_read_b128 {vr(SF+4,4)}")); i1 = out.index("s_waitcnt lgkmcnt(S)")
    out[i1] = f"s_waitcnt lgkmcnt({sum(1 for x in out[i0+1:i1] if x.startswith('ds_'))})"
    for i, x in enumerate(out):
        if x.startswith("buffer_load"): assert not out[i-1].split()[1].startswith("m0"), (out[i-1], x)
    if OPT.get('fakec'):
        n2 = []
        for x in out:
            if x.startswith("v_mfma") and (f", {vr(SEL,4)}," in x or f", {vr(SEL+4,4)}," in x):
                j = (int(re.findall(r"v\[(\d+):", x)[1]) - TF)
                n2 += [f"v_lshlrev_b32 v{Vn+j+k}, 16, v{TF+j+k}" for k in range(4)]
            elif x == m32(Gn, EF, WC, Gn): n2.append(m32(Gn, EF, WC, TF))
            elif x.startswith("ds_read_b128") and f"v{vTA} " in x:
                j = int(re.findall(r"v\[(\d+):", x)[0]) - TF
                n2 += [f"ds_read2st64_b32 {vr(TF+j+2*k,2)}, v{vTC} offset0:{(1-p)*65+j+2*k} offset1:{(1-p)*65+j+2*k+1}" for k in range(2)]
            else: n2.append(x)
        out = n2
    if OPT.get('notrans'): out = [x.replace("v_exp_f32", "v_mov_b32").replace("v_rcp_f32", "v_mov_b32") for x in out]
    if OPT.get('noval'): out = ["s_nop 0" if (x.startswith("v_exp") or x.startswith("v_rcp")) else x for x in out if not (x.startswith("v_add_f32") or x.startswith("v_mul_f32") or x.startswith("v_cvt"))]
    if OPT.get('nodma'): out = [x for x in out if 'buffer_load' not in x]
    if OPT.get('noe'): out = [x for x in out if f"s[{sE}:{sE+3}]" not in x]
    return out

def emit(lst):
    for it in lst:
        if it.endswith(':'): lab(it[:-1])
        else: o(it)

def masks(tmp):
    a, b_, c = tmp
    o(f"v_and_b32 v{a}, 3, v0"); o(f"v_lshlrev_b32 v{a}, 1, v{a}"); o(f"v_mov_b32 v{c}, 0")
    for i in range(4):
        o(f"v_lshrrev_b32 v{b_}, 19, v{SEG+i}"); o(f"v_max_u32 v{c}, v{c}, v{b_}")
        o(f"v_min_u32 v{b_}, s{sLIM}, v{b_}"); o(f"v_sub_u32 v{b_}, v{b_}, v{a}")
        for j, k in ((0, 2*i), (1, 2*i+1), (8, 8+2*i), (9, 9+2*i)): o(f"v_cmp_lt_i32 s[{sK+2*k}:{sK+2*k+1}], {j}, v{b_}")
    o(f"v_cmp_lt_u32 vcc, s{sLIM}, v{c}")
    o(f"s_or_b64 s[{sSV}:{sSV+1}], s[{sK+16}:{sK+17}], s[{sK+20}:{sK+21}]"); o(f"s_or_b64 s[{sHM}:{sHM+1}], s[{sK+24}:{sK+25}], s[{sK+28}:{sK+29}]")
    o(f"s_or_b64 s[{sSV}:{sSV+1}], s[{sSV}:{sSV+1}], s[{sHM}:{sHM+1}]")
    o(f"v_mov_b32 v{b_}, {CNT-4}"); addg(b_)
    o("s_mov_b64 exec, vcc"); o(f"ds_write_b32 v{b_}, v{b_}"); o("s_mov_b64 exec, -1")

def interleave(mf, other, per):
    other = list(other)
    for m in mf:
        o(m)
        for _ in range(per):
            if other: o(other.pop(0))
    for x in other: o(x)
def capture(fn):
    n = len(L); fn(); r = [x.strip() for x in L[n:]]; del L[n:]; return r
def wload(dst, off):
    r = []
    for s in range(8):
        if s % 4 == 0: r.append(f"s_add_u32 s{sT0}, s{sWF}, {off + s*1024:#x}")
        r.append(f"buffer_load_dwordx4 {vr(dst+4*s,4)}, v{vWF}, s[{sW}:{sW+3}], s{sT0} offen offset:{(s%4)*1024}")
    return r
def xblk(base, pair):
    o(f"v_mov_b32 v{pair+1}, v{vXO}")
    for mt in range(2):
        for a in range(2):
            o(f"s_add_u32 m0, s{base}, {(2*mt+a)*1040}")
            o(f"v_cmp_gt_u32 vcc, {(NA if mt == 0 else RN-NA) - 2*a}, v{vXI}")
            o(f"s_add_u32 s{sT0}, s{sBASE}, {NA*mt + 2*a}"); o(f"v_add_u32 v{pair}, s{sT0}, v{vXI}")
            o(f"v_cndmask_b32 v{pair}, v{PT+3}, v{pair}, vcc")
            o(f"buffer_load_dwordx4 {vr(pair,2)}, s[{sX}:{sX+3}], 0 idxen offen lds")

def gen_k2():
    L.append(".globl gmain_kernel"); L.append(".p2align 8"); L.append(".type gmain_kernel,@function")
    lab("gmain_kernel"); VST[0] = 255
    t = [TF + i for i in range(28)]
    stamp(0)
    o("s_load_dwordx2 s[50:51], s[0:1], 88")
    o("s_load_dwordx4 s[4:7], s[0:1], 0")
    o("s_load_dwordx2 s[48:49], s[0:1], 72")
    o("s_setprio 3")
    o(f"v_lshrrev_b32 v{t[0]}, 6, v0")
    o("s_and_b32 s3, s2, 7"); o("s_lshl_b32 s3, s3, 6"); o(f"s_bfe_u32 s{sT0}, s2, 0x50003"); o(f"s_lshl1_add_u32 s3, s{sT0}, s3")
    o(f"v_readfirstlane_b32 s{sWAVE}, v{t[0]}")
    if G8:
        o("v_and_b32 v0, 0xff, v0"); o(f"s_lshr_b32 s{sT0}, s{sWAVE}, 2"); o(f"s_and_b32 s{sWAVE}, s{sWAVE}, 3"); o(f"s_mul_i32 s{sG}, s{sT0}, {GS}")
    else: o(f"s_lshr_b32 s{sT0}, s2, 8")
    o(f"s_add_u32 s3, s3, s{sT0}")
    o(f"s_cmp_ge_u32 s2, {256 if G8 else 512}"); o("s_cbranch_scc1 K2_END")
    o(f"s_cmp_ge_u32 s3, {NR}"); o("s_cbranch_scc1 K2_END")
    o(f"v_lshrrev_b32 v{t[1]}, 2, v0")
    o(f"s_lshr_b32 s{sS0}, s3, 2"); o(f"s_mul_i32 s{sS0}, s{sS0}, {OG}"); o(f"s_and_b32 s{sT0}, s3, 3"); o(f"s_lshl2_add_u32 s{sS0}, s{sT0}, s{sS0}"); o(f"s_add_u32 s{sS0}, s{sS0}, {WS_OFF:#x}")
    o(f"v_lshlrev_b32 v{t[1]}, 6, v{t[1]}")
    o(f"s_mul_i32 s{sBASE}, s3, {RN}")
    o(f"v_and_b32 v{vWF}, 63, v0"); o(f"v_lshlrev_b32 v{vWF}, 4, v{vWF}")
    o(f"s_mul_i32 s{sMR}, s{sWAVE}, {WS_}"); o(f"s_add_u32 s{sMR}, s{sMR}, {RING}"); saddg(sMR)
    o(f"s_lshl_b32 s{sWF}, s{sWAVE}, 13"); o(f"s_add_u32 s{sWF}, s{sWF}, {WS_WF:#x}")
    o(f"s_mov_b32 s{sEPS}, {EPS:#x}"); o(f"s_movk_i32 s{s80}, 80")
    o(f"s_mov_b32 s{sFIRST}, 1"); o(f"s_mov_b32 s{sLIM}, 16")
    o("s_cmp_ge_u32 s2, 256"); o(f"s_cselect_b32 s{sRS}, {OPT.get('bon', 0)}, 0")
    o("s_waitcnt lgkmcnt(0)"); xstamp("karg")
    srd(sW, 50, WS_SIZE)
    for i in range(4): o(f"buffer_load_dword v{SEG+i}, v{t[1]}, s[{sW}:{sW+3}], s{sS0} offen offset:{16*i}")
    srd(sX, 4, N, 256); srd(sE, 6, E, 32); srd(sO, 48, N, 256)
    o(f"s_add_u32 s50, s50, {WS_TAB:#x}"); o("s_addc_u32 s51, s51, 0")
    if SM: o(f"s_mul_i32 s{sT0}, s{sWAVE}, {SMS}"); o(f"s_add_u32 s50, s50, s{sT0}"); o("s_addc_u32 s51, s51, 0")
    srd(sT, 50, N, 128 if SM else 512)
    WAP = OPT.get('wap', 'p1'); XBP = OPT.get('xbp', 'p1'); ORD = ['start', 'rec', 'mask', 'p1', 'b1']
    def place(where):
        if where not in (WAP, XBP): return
        o(f"s_cmp_eq_u32 s{sFIRST}, 0"); o(f"s_cbranch_scc1 NOW_{where}")
        if XBP == where:
            o(f"s_add_u32 s{sNT}, s{sMR}, {NS*SLOT}")
            xblk(sNT, T0)
        if WAP == where:
            for x in wload(ACC, WF_A): o(x)
            o(f"s_lshl_b32 s{sT0}, s{sWAVE}, 10"); o(f"s_add_u32 s{sT0}, s{sT0}, {WS_WF+WF_C:#x}")
            o(f"buffer_load_dwordx4 {vr(WC,4)}, v{vWF}, s[{sW}:{sW+3}], s{sT0} offen")
        if OPT.get('otouch') and WAP == where:
            o(f"v_mov_b32 v{T0+6}, s{sBASE}"); o(f"buffer_load_dword v{SEL}, v{T0+6}, s[{sO}:{sO+3}], 0 idxen")
        lab(f"NOW_{where}")
    def cnt(lo, hi): return sum(n for p, n in ((WAP, 9), (XBP, 4)) if lo <= ORD.index(p) <= hi)
    SP = [int(x) for x in OPT.get('spf', '0,0').split(',')]
    def spref(n, first):
        for k in range(n): o(f"s_load_dword s{88 + k % 4}, s[46:47], {(first + k) * 32768:#x}")
    if sum(SP):
        o(f"s_and_b32 s{sT0}, s3, 63"); o(f"s_lshl2_add_u32 s{sT0}, s{sT0}, s{sWAVE}"); o(f"s_lshl_b32 s{sT0}, s{sT0}, 7")
        o(f"s_add_u32 s46, s50, s{sT0}"); o("s_addc_u32 s47, s51, 0")
        spref(SP[0], 0)
    lab("ROUND")
    b0, b2, b3, b4, vh = t[16:21]
    o(f"v_lshlrev_b32 v{t[11]}, 4, v0"); addg(t[11])
    for d in range(4): o(f"v_mov_b32 v{t[0]+d}, 0")
    for off in (0, ZSZ - 4096): o(f"ds_write_b128 v{t[11]}, {vr(t[0],4)} offset:{MB+off}")
    pad0 = 0xffff | (NA << 16)
    o(f"v_mov_b32 v{t[4]}, {pad0:#x}"); o(f"v_mov_b32 v{t[5]}, 0x7ffff"); o(f"v_mov_b32 v{t[6]}, {pad0:#x}"); o(f"v_mov_b32 v{t[7]}, 0x7ffff")
    o(f"ds_write_b128 v{t[11]}, {vr(t[4],4)} offset:{LIST}"); o(f"ds_write_b128 v{t[11]}, {vr(t[4],4)} offset:{LIST+4096}")
    o(f"v_and_b32 v{b0}, 1, v0"); o(f"v_bfe_u32 v{b2}, v0, 2, 1"); o(f"v_bfe_u32 v{b3}, v0, 3, 1"); o(f"v_bfe_u32 v{b4}, v0, 4, 1"); o(f"v_bfe_u32 v{vh}, v0, 5, 1")
    o(f"v_and_b32 v{t[8]}, 3, v0"); o(f"v_lshlrev_b32 v{t[8]}, 1, v{t[8]}")
    o(f"v_mov_b32 v{t[9]}, 0x7ffffff0"); o(f"s_mov_b32 s{sT1}, 0x7ffff")
    o(f"v_and_b32 v{t[12]}, 15, v0"); o(f"v_lshlrev_b32 v{t[13]}, 3, v{b4}")
    o(f"v_xor_b32 v{vXO}, v{t[12]}, v{t[13]}"); o(f"v_lshlrev_b32 v{vXO}, 4, v{vXO}")
    o(f"s_lshr_b32 s{sT0}, s{sWAVE}, 1"); o(f"s_lshl_b32 s{sT0}, s{sT0}, 4"); o(f"s_and_b32 s{sS0}, s{sWAVE}, 1"); o(f"s_lshl2_add_u32 s{sT0}, s{sS0}, s{sT0}")
    o(f"v_lshl_add_u32 v{vXI}, v{vh}, 3, v{b4}"); o(f"v_add_u32 v{vXI}, s{sT0}, v{vXI}")
    o(f"v_mov_b32 v{PT+3}, 0xffff")
    place('start')
    xstamp("consts_done")
    o(f"s_waitcnt vmcnt({cnt(0, 0)})"); stamp(1)
    for i in range(4):
        o(f"v_lshrrev_b32 v{t[4+i]}, 19, v{SEG+i}"); o(f"v_cmp_lt_u32 vcc, v{t[8]}, v{t[4+i]}")
        o(f"v_and_b32 v{t[i]}, s{sT1}, v{SEG+i}"); o(f"v_add_lshl_u32 v{t[i]}, v{t[i]}, v{t[8]}, 3")
        o(f"v_cndmask_b32 v{t[10]}, v{t[9]}, v{t[i]}, vcc")
        o(f"buffer_load_dwordx4 {vr(REC+4*i,4)}, v{t[10]}, s[{sW}:{sW+3}], 0 offen")
    o(f"v_max3_u32 v{t[10]}, v{t[4]}, v{t[5]}, v{t[6]}"); o(f"v_max_u32 v{t[10]}, v{t[10]}, v{t[7]}")
    o(f"v_cmp_lt_u32 vcc, 8, v{t[10]}"); o("s_cbranch_vccz REC_DONE")
    for i in range(4): o(f"buffer_load_dwordx4 {vr(REC+16+4*i,4)}, v{t[i]}, s[{sW}:{sW+3}], 0 offen offset:64")
    lab("REC_DONE")
    xstamp("rec_issued")
    PF = int(OPT.get('pf', 0))
    def pref():
        o(f"s_lshr_b32 s{sT0}, s3, 6"); o(f"s_mul_i32 s{sT0}, s{sT0}, {64*RN}"); o(f"s_and_b32 s{sT1}, s3, 63"); o(f"s_lshl_b32 s{sT1}, s{sT1}, 6"); o(f"s_add_u32 s{sT0}, s{sT0}, s{sT1}")
        o(f"v_lshrrev_b32 v{T0+2}, 2, v0"); o(f"v_add_u32 v{T0+2}, s{sT0}, v{T0+2}"); o(f"v_and_b32 v{T0+1}, 3, v0"); o(f"v_lshlrev_b32 v{T0+1}, 7, v{T0+1}")
        for k in range(PF):
            o(f"v_add_u32 v{T0+3}, {-512*RN}, v{T0+2}"); o(f"v_min_u32 v{T0}, v{T0+2}, v{T0+3}")
            o(f"buffer_load_dword v{SEL}, {vr(T0,2)}, s[{sT}:{sT+3}], 0 idxen offen")
            if k + 1 < PF: o(f"v_add_u32 v{T0+2}, 4096, v{T0+2}")
    PFW = OPT.get('pfw', 'rec')
    place('rec')
    if PF and PFW == 'rec': pref()
    o("s_waitcnt lgkmcnt(0)"); o("s_barrier"); stamp(2)
    spref(SP[1], SP[0])
    pp = t[14]
    o(f"v_and_b32 v{pp}, 0x13, v0"); o(f"v_lshl_or_b32 v{pp}, v{b2}, 3, v{pp}"); o(f"v_lshl_or_b32 v{pp}, v{b3}, 2, v{pp}")
    o(f"v_lshrrev_b32 v{t[12]}, 3, v{pp}"); o(f"v_lshlrev_b32 v{vTA}, 7, v{pp}"); o(f"v_lshl_add_u32 v{vTA}, v{t[12]}, 4, v{vTA}")
    o(f"v_bfe_u32 v{t[13]}, v0, 1, 1"); o(f"v_xor_b32 v{t[12]}, v{t[13]}, v{vh}"); o(f"v_lshl_add_u32 v{vTA}, v{t[12]}, 6, v{vTA}"); o(f"v_add_u32 v{vTA}, s{sMR}, v{vTA}")
    o(f"v_and_b32 v{t[12]}, 7, v0"); o(f"v_lshlrev_b32 v{t[15]}, 2, v{b4}"); o(f"v_xor_b32 v{t[15]}, v{t[15]}, v{t[12]}")
    o(f"s_mov_b32 s{sT0}, 0" if SM else f"s_lshl_b32 s{sT0}, s{sWAVE}, 7"); o(f"v_lshl_add_u32 v{IX[0]+1}, v{t[15]}, 4, s{sT0}")
    for i in range(1, 4): o(f"v_mov_b32 v{IX[i]+1}, v{IX[0]+1}")
    o(f"v_and_b32 v{vL1}, 0x38, v0"); o(f"v_add_u32 v{vL1}, {LIST}, v{vL1}"); addg(vL1)
    o(f"v_lshl_or_b32 v{t[15]}, v{b4}, 1, v{b2}"); o(f"v_mul_u32_u24 v{t[15]}, {WS_}, v{t[15]}"); o(f"v_mul_u32_u24 v{t[13]}, 1040, v{t[13]}")
    o(f"v_lshl_or_b32 v{t[21]}, v{b3}, 1, v{b0}"); o(f"v_lshl_add_u32 v{t[15]}, v{t[21]}, 8, v{t[15]}"); o(f"v_add3_u32 v{t[15]}, v{t[15]}, v{t[13]}, {'s%d' % sG if G8 else 0}")
    o(f"v_add_u32 v{t[15]}, {RING + NS*SLOT}, v{t[15]}")
    o(f"v_xor_b32 v{t[13]}, v{vh}, v{b0}"); o(f"v_lshl_add_u32 v{vXA}, v{t[13]}, 7, v{t[15]}")
    o(f"v_lshlrev_b32 v{IXE+1}, 4, v{t[13]}")
    o(f"v_bfe_u32 v{t[13]}, v0, 7, 1"); o(f"v_xor_b32 v{t[13]}, v{t[13]}, v{b0}"); o(f"v_lshl_add_u32 v{vXR}, v{t[13]}, 7, v{t[15]}")
    o(f"v_and_b32 v{t[13]}, 0x60, v0"); o(f"v_add_u32 v{vXR}, v{vXR}, v{t[13]}")
    o(f"s_lshl_b32 s{sT0}, s{sS0}, 12"); o(f"s_lshr_b32 s{sT1}, s{sWAVE}, 1"); o(f"s_lshl_b32 s{sT1}, s{sT1}, 8"); o(f"s_add_u32 s{sT0}, s{sT0}, s{sT1}"); o(f"s_add_u32 s{sT0}, s{sT0}, {LIST+4}"); saddg(sT0)
    o(f"v_bfe_u32 v{vL2}, v0, 1, 5"); o(f"v_lshl_add_u32 v{vL2}, v{vL2}, 3, s{sT0}")
    o(f"s_lshl_b32 s{sME}, s{sWAVE}, 10"); o(f"s_add_u32 s{sME}, s{sME}, {ER}"); saddg(sME)
    o(f"v_lshlrev_b32 v{vSA}, 3, v{pp}"); o(f"v_add_u32 v{vSA}, {LIST+2}, v{vSA}"); addg(vSA)
    o(f"v_lshlrev_b32 v{vHC}, 4, v{vh}"); o(f"v_add_u32 v{vHC}, {IDT}, v{vHC}")
    o(f"v_xor_b32 v{vEA}, v{b4}, v{vh}"); o(f"v_lshlrev_b32 v{vEA}, 4, v{vEA}")
    o(f"v_lshl_add_u32 v{vEA}, v{pp}, 5, v{vEA}"); o(f"v_add_u32 v{vEA}, {ER}, v{vEA}"); addg(vEA)
    o(f"v_add_u32 v{vMT}, 4096, v{vEA}"); o(f"v_xor_b32 v{vMT}, v{vMT}, v{vEA}")
    o(f"v_and_b32 v{t[13]}, 31, v0"); o(f"v_min_u32 v{t[13]}, {NA}, v{t[13]}")
    o(f"v_mul_u32_u24 v{vMA}, {ROW}, v{t[13]}"); o(f"v_lshl_add_u32 v{vMA}, v{vh}, 2, v{vMA}"); o(f"v_add_u32 v{vMA}, {MB}, v{vMA}"); addg(vMA)
    o(f"v_lshrrev_b32 v{PT+2}, 5, v0"); o(f"v_lshlrev_b32 v{PT+2}, 4, v{PT+2}"); o(f"v_lshl_add_u32 v{PT+2}, v{b3}, 2, v{PT+2}"); addg(PT+2)
    o(f"v_lshl_add_u32 v{t[12]}, v{b4}, 4, v{t[12]}"); o(f"v_lshlrev_b32 v{PT+1}, v{t[12]}, 16")
    o(f"v_and_b32 v{t[12]}, 3, v0"); o(f"v_lshl_add_u32 v{t[12]}, v{b4}, 2, v{t[12]}"); o(f"v_lshlrev_b32 v{t[12]}, v{t[12]}, 16")
    o(f"v_cmp_eq_u32 vcc, v{b3}, v{vh}"); o(f"v_lshlrev_b32 v{t[13]}, 4, v{b2}"); o("s_nop 0")
    o(f"v_cndmask_b32 v{t[12]}, 0, v{t[12]}, vcc"); o(f"v_lshlrev_b32 v{PT}, v{t[13]}, v{t[12]}")
    place('mask')
    if cnt(1, 2):
        o(f"s_cmp_eq_u32 s{sFIRST}, 1"); o("s_cbranch_scc1 REMASK"); o("s_waitcnt vmcnt(0)")
    lab("REMASK")
    masks((t[0], t[1], t[2])); xstamp("masks_done")
    a, b_, c, d_ = t[0:4]; ad = [AD + k for k in range(16)]
    o(f"v_mov_b32 v{a}, 8")
    o(f"v_lshrrev_b32 v{b_}, 2, v{vWF}"); addg(b_)
    if G8: o(f"s_lshr_b32 s{sDS}, s{sG}, 8")
    if PF and PFW == 'mask': pref()
    o(f"s_waitcnt vmcnt({cnt(1, 2)})"); xstamp("rec_landed")
    for half in range(2):
        if half: o(f"s_cmp_eq_u64 s[{sSV}:{sSV+1}], 0"); o("s_cbranch_scc1 P1_DONE"); o("s_mov_b64 exec, -1")
        for k in range(8*half, 8*half+8): o(f"v_alignbit_b32 v{ad[k]}, s{sDS}, v{REC+2*k+1}, 24" if G8 else f"v_lshrrev_b32 v{ad[k]}, 24, v{REC+2*k+1}")
        for k in range(8*half, 8*half+8):
            o(f"s_mov_b64 exec, s[{sK+2*k}:{sK+2*k+1}]")
            o(f"ds_add_rtn_u32 v{RANK+k}, v{ad[k]}, v{a} offset:{CNT}")
    lab("P1_DONE")
    o("s_mov_b64 exec, -1")
    place('p1')
    if PF and PFW == 'p1': pref()
    o("s_waitcnt lgkmcnt(0)"); xstamp("p1_done"); o("s_barrier"); xstamp("b1")
    o(f"ds_read_b32 v{c}, v{b_} offset:{CNT}")
    o(f"ds_read_b32 v{t[4]}, v{b_} offset:{CNT-4}")
    place('b1')
    o(f"v_lshlrev_b32 v{t[5]}, 12, v{vh}"); addg(t[5])
    o("s_waitcnt lgkmcnt(1)")
    o(f"v_sub_u32 v{d_}, v{t[5]}, v{c}")
    for dd in ("row_shr:1", "row_shr:2", "row_shr:4", "row_shr:8"):
        o(f"v_add_u32_dpp v{c}, v{c}, v{c} {dd} row_mask:0xf bank_mask:0xf bound_ctrl:0"); o("s_nop 1")
    o(f"v_add_u32_dpp v{c}, v{c}, v{c} row_bcast:15 row_mask:0xa bank_mask:0xf")
    o(f"v_add_u32 v{d_}, v{c}, v{d_}")
    o(f"ds_write_b32 v{b_}, v{d_} offset:{NB}")
    o(f"v_readlane_b32 s{sNT}, v{c}, 31"); o(f"v_readlane_b32 s{sCNT}, v{c}, 63")
    for k in range(8): o(f"ds_read_b32 v{ad[k]}, v{ad[k]} offset:{NB}")
    o(f"s_max_u32 s{sT0}, s{sNT}, s{sCNT}")
    o(f"s_cmp_le_u32 s{sT0}, 4096"); o("s_cbranch_scc0 TOOBIG")
    xstamp("scan_done")
    for half in range(2):
        if half:
            o(f"s_cmp_eq_u64 s[{sSV}:{sSV+1}], 0"); o("s_cbranch_scc1 P2_DONE"); o("s_mov_b64 exec, -1")
            for k in range(8, 16): o(f"ds_read_b32 v{ad[k]}, v{ad[k]} offset:{NB}")
        for k in range(8*half, 8*half+8):
            if k % 4 == 0: o(f"s_waitcnt lgkmcnt({4 - k % 8})")
            o(f"v_add_u32 v{RANK+k}, v{RANK+k}, v{ad[k]}")
        for k in range(8*half, 8*half+8):
            o(f"s_mov_b64 exec, s[{sK+2*k}:{sK+2*k+1}]")
            o(f"ds_write_b64 v{RANK+k}, {vr(REC+2*k,2)} offset:{LIST}")
    lab("P2_DONE")
    o("s_mov_b64 exec, -1")
    o(f"v_readlane_b32 s{sMORE}, v{t[4]}, 0")
    o(f"s_mov_b32 m0, s{sME}")
    o(f"s_waitcnt vmcnt({9 + int(OPT.get('otouch', 0)) if ORD.index(WAP) >= ORD.index(XBP) else 0}) lgkmcnt(0)"); xstamp("p2_done"); o("s_barrier"); stamp(5)
    f = t
    def rdidx(u):
        for i in range(4): o(f"ds_read_u16 v{IX[i]}, v{vL1} offset:{loff(u)+64*i}")
    def fill(u, nxt):
        for i in range(4):
            o(f"s_add_u32 m0, s{sMR}, {u*SLOT + i*1040}"); o(f"s_waitcnt lgkmcnt(3)"); o(ldt(i))
            o(f"ds_read_u16 v{IX[i]}, v{vL1} offset:{loff(nxt)+64*i}")
    o(f"ds_read_b32 v{IXE}, v{vL2}"); rdidx(0)
    o(f"v_lshlrev_b32 v{f[9]}, 3, v0"); addg(f[9])
    o("s_waitcnt lgkmcnt(4)")
    o(f"v_and_b32 v{IXE}, 0x7ffff, v{IXE}"); o(lde())
    for u in range(NS): fill(u, u + 1)
    for k in range(4): o(f"ds_read_u8 v{f[12+k]}, v{f[9]} offset:{LIST+2+k*2048}")
    o(f"ds_read_b32 v{IXE}, v{vL2} offset:512"); o(f"ds_read_u8 v{vSV}, v{vSA}")
    xstamp("fill_issued")
    def ctrl():
        o(f"s_movk_i32 s{sS0}, {ROW}")
        for k in range(4):
            o(f"v_cmp_gt_u32 vcc, {NA}, v{f[12+k]}"); o(f"v_mad_u32_u24 v{f[0]}, v{f[12+k]}, s{sS0}, v{PT+2}"); o("s_nop 0")
            o(f"v_cndmask_b32 v{f[1]}, 0, v{PT+1}, vcc")
            o(f"ds_or_b32 v{f[0]}, v{f[1]} offset:{MB + (k&1)*128 + (k>>1)*8}")
        o(f"s_add_u32 s{sNT}, s{sNT}, 255"); o(f"s_lshr_b32 s{sNT}, s{sNT}, 8"); o(f"s_lshl1_add_u32 s{sNT}, s{sNT}, -1")
        o(f"s_add_u32 s{sCNT}, s{sCNT}, 255"); o(f"s_lshr_b32 s{sCNT}, s{sCNT}, 8"); o(f"s_lshl_b32 s{sCNT}, s{sCNT}, 1")
        o(f"s_max_i32 s{sNT}, s{sNT}, s{sCNT}"); o(f"s_max_i32 s{sNT}, s{sNT}, 2"); o(f"s_sub_u32 s{sCNT}, s{sNT}, 2")
        o(f"s_add_u32 s{sMET}, s{sME}, 4096"); o(f"s_xor_b32 s{sMET}, s{sMET}, s{sME}"); o(f"s_add_u32 s{sME}, s{sME}, 4096")
        o(f"v_add_u32 v{vL2}, 0x400, v{vL2}")
    def lut():
        q = T0
        for d in range(4):
            o(f"v_bfe_u32 v{q+d}, v0, {2*d}, 2"); o(f"v_mul_u32_u24 v{q+d}, 0x8001, v{q+d}")
            o(f"v_and_b32 v{q+d}, 0x10001, v{q+d}"); o(f"v_mul_u32_u24 v{q+d}, 0x3f80, v{q+d}")
        o(f"v_lshlrev_b32 v{q+4}, 4, v0"); o(f"ds_write_b128 v{q+4}, {vr(q,4)} offset:{LUT}")
        o(f"v_lshrrev_b32 v{q}, 3, v0"); o(f"v_and_b32 v{q+1}, 7, v0")
        o(f"v_bfe_u32 v{q+2}, v0, 5, 1"); o(f"v_bfe_u32 v{q+3}, v0, 6, 1"); o(f"v_lshl_or_b32 v{q+2}, v{q+2}, 1, v{q+3}")
        o(f"v_lshrrev_b32 v{q+3}, 7, v0"); o(f"v_lshl_or_b32 v{q+2}, v{q+3}, 2, v{q+2}")
        o(f"v_cmp_eq_u32 vcc, v{q+2}, v{q+1}"); o(f"v_cmp_gt_u32 s[{sHM}:{sHM+1}], {NA}, v{q}"); o(f"v_mov_b32 v{q+6}, 0x3f80"); o(f"v_mov_b32 v{q+7}, 0")
        o(f"s_and_b64 vcc, vcc, s[{sHM}:{sHM+1}]")
        o(f"v_and_b32 v{q+2}, 3, v{q}"); o(f"v_lshlrev_b32 v{q+2}, 4, v{q+2}"); o(f"v_cndmask_b32 v{q+6}, 0, v{q+6}, vcc")
        o(f"v_lshlrev_b64 {vr(q+6,2)}, v{q+2}, {vr(q+6,2)}")
        o(f"v_min_u32 v{q}, {NA}, v{q}"); o(f"v_mul_u32_u24 v{q}, 80, v{q}"); o(f"v_lshl_add_u32 v{q}, v{q+1}, 3, v{q}")
        o(f"ds_write_b64 v{q}, {vr(q+6,2)} offset:{IDT}")
    o(f"s_cmp_eq_u32 s{sFIRST}, 1"); o("s_cbranch_scc1 G1")
    o("s_waitcnt lgkmcnt(0)")
    ctrl()
    o("s_branch G1D")
    lab("G1")
    for mt in range(2):
        for s in range(8): o(f"ds_read_b128 {vr(GV+32*mt+4*s,4)}, v{vXA} offset:{mt*2080 + 16*s}")
        if mt == 0: o("s_waitcnt lgkmcnt(8)")
    lt = capture(lut); ct = capture(ctrl)
    for x in lt[:18]: o(x)
    o(f"s_waitcnt vmcnt({4*NS+2+int(OPT.get('otouch', 0))}) lgkmcnt(9)")
    acc = [ACC + 32, ACC + 48]
    interleave([m32(acc[0], GV+4*s, ACC+4*s, None if s == 0 else acc[0]) for s in range(8)], lt[18:] + ct[:16], 5)
    o("s_waitcnt lgkmcnt(5)")
    def cv(mt): return [f"v_cvt_pk_bf16_f32 v{AF+8*mt+r//2}, v{acc[mt]+r}, v{acc[mt]+r+1}" for r in range(0, 16, 2)]
    interleave([m32(acc[1], GV+32+4*s, ACC+4*s, None if s == 0 else acc[1]) for s in range(8)],
               ct[16:] + cv(0) + [f"v_mov_b32 v{acc[0]+r}, 0" for r in range(16)], 5)
    for r in range(32): o(f"v_mov_b32 v{ACC+r}, 0")
    for x in cv(1): o(x)
    for r in range(16): o(f"v_mov_b32 v{acc[1]+r}, 0")
    if STAMP:
        o("s_getreg_b32 s94, hwreg(HW_REG_HW_ID)"); o("s_getreg_b32 s100, hwreg(HW_REG_XCC_ID)"); o("s_and_b32 s94, s94, 0xffff"); o("s_lshl_b32 s100, s100, 16"); o("s_or_b32 s94, s94, s100"); o(f"v_writelane_b32 v{VST[0]}, s94, 3")
    lab("G1D")
    o(f"v_and_b32 v{MQ}, 0xffff, v{PT}"); o(f"v_lshrrev_b32 v{MQ+1}, 16, v{PT}")
    xstamp("g1_done"); stamp(4)
    o(f"s_waitcnt vmcnt({4*(NS-1)}) lgkmcnt(0)"); xstamp("t0_landed"); o("s_barrier")
    o(f"ds_read_b128 {vr(SEL,4)}, v{MQ}"); o(f"ds_read_b128 {vr(SEL+4,4)}, v{MQ+1}")
    o(f"ds_read_b128 {vr(EF,4)}, v{vEA}")
    for j in range(4): o(f"ds_read_b128 {vr(TF+4*j,4)}, v{vTA} offset:{16*j}")
    o(f"s_setprio {OPT.get('lp', 2)}")
    if OPT.get('young'):
        o("s_cmp_lt_u32 s2, 256"); o("s_cbranch_scc1 OLD"); o(f"s_setprio {OPT['young']}"); lab("OLD")
    if OPT.get('fakec'): o(f"v_lshrrev_b32 v{vTC}, 2, v{vWF}"); o(f"v_add_u32 v{vTC}, s{sMR}, v{vTC}")
    stamp(6); stamp(8, "s_memtime")
    bodies = [body(b) for b in range(4)]
    if not OPT.get('noval') and not OPT.get('fakec'): check_hazards(sum(bodies, []) + ["s_branch LOOP"])
    emit(body(0, peel=True))
    b1 = bodies[1][:bodies[1].index("ENT1:")]
    o("s_nop 7")
    emit([x for x in b1 if not x.startswith(("v_mfma", "s_sub", "s_cbranch"))])
    o("s_branch ENT1")
    lab("TOOBIG")
    o(f"s_mov_b32 s{sLIM}, {LOWLIM}"); o(f"v_mov_b32 v{a}, 0")
    o("s_waitcnt lgkmcnt(0)"); o("s_barrier")
    o(f"ds_write_b32 v{b_}, v{a} offset:{CNT}")
    o("s_waitcnt lgkmcnt(0)"); o("s_barrier")
    o("s_branch REMASK")
    lab("LOOP")
    emit(sum(bodies, []))
    if OPT.get('pp', '99,8,4') != '0' and not G8:
        th = [int(x) for x in OPT.get('pp', '99,8,4').split(',')]
        o(f"s_add_u32 s{sT0}, s{sCNT}, s{sRS}")
        for k, v in enumerate(th):
            if v < 99: o(f"s_cmp_lt_u32 s{sT0}, {v}"); o("s_cbranch_scc0 LOOP"); o(f"s_setprio {2-k}")
    o("s_branch LOOP")
    assert len(set(HEAD.values())) == 1
    WU = TF; x = AF
    def fin(p):
        d = ACC + 32 * p; r = []
        for k in range(16): r.append(f"v_add_f32 v{d+k}, s{sEPS}, v{d+k}")
        for k in range(16): r.append(f"v_rcp_f32 v{d+k}, v{d+k}")
        for k in range(16): r.append(f"v_mul_f32 v{d+16+k}, v{d+k}, v{d+16+k}")
        return r
    def unp(p): return sum(([f"v_lshlrev_b32 v{ACC+32*p+2*k}, 16, v{x+8*p+k}", f"v_and_b32 v{ACC+32*p+2*k+1}, s{sT1}, v{x+8*p+k}"] for k in range(8)), [])
    def post(p):
        r = []
        for k in range(8):
            z = ACC + 32*p + 16 + 2*k
            r += [f"v_max_f32 v{z}, 0, v{z}", f"v_max_f32 v{z+1}, 0, v{z+1}", f"v_add_f32 v{z}, v{z}, v{z-16}", f"v_add_f32 v{z+1}, v{z+1}, v{z-15}",
                  f"v_cvt_pk_bf16_f32 v{x+8*p+k}, v{z}, v{z+1}"]
        return r
    def st(p): return [f"s_mov_b64 exec, {((1 << (NA - p)) - 1):#x}", f"s_mov_b32 exec_hi, exec_lo"] + \
        [f"buffer_store_dwordx4 {vr(x+8*p+4*k,4)}, {vr(IX[p],2)}, s[{sO}:{sO+3}], 0 idxen offen offset:{16*k} {OPT.get('outpol', '').replace('+', ' ')}" for k in range(2)] + ["s_mov_b64 exec, -1"]
    assert RN - NA == NA - 1
    CO = int(OPT.get('co', 0))
    if CO:
        def st(p): return [f"s_mov_b64 exec, {((1 << (NA - p)) - 1):#x}", f"s_mov_b32 exec_hi, exec_lo"] + \
            [f"ds_write_b128 v{IX[2]}, {vr(x+8*p+4*k,4)} offset:{RING + p*NA*272 + 16*k}" for k in range(2)] + ["s_mov_b64 exec, -1"]
    for p in (1, 0):
        q = 1 - p; Gc = GV + 32 * q
        lab(f"TAIL{p}")
        stamp(7); stamp(11, "s_memtime")
        if STAMP: o(f"v_writelane_b32 v{VST[0]}, s{sNT}, 12")
        o(f"ds_read_b128 {vr(T0,4)}, v{MQ}"); o(f"ds_read_b128 {vr(T0+4,4)}, v{MQ+1}")
        o(f"s_cmp_lg_u32 s{sMORE}, 0"); o(f"s_cbranch_scc1 TAILM{p}")
        o("s_waitcnt lgkmcnt(0)")
        for ins in wload(WU, WF_U): o(ins)
        for s in range(8): o(f"ds_read_b128 {vr(GV+32*p+4*s,4)}, v{vXA} offset:{p*2080+16*s}")
        for mt in range(2):
            for k in range(2): o(f"ds_read_b128 {vr(x+8*mt+4*k,4)}, v{vXR} offset:{mt*2080+16*k}")
        o(f"v_and_b32 v{IX[0]}, 31, v0"); o(f"v_and_b32 v{IX[0]+1}, 0xe0, v0"); o(f"v_add_u32 v{IX[0]}, s{sBASE}, v{IX[0]}")
        o(f"v_add_u32 v{IX[1]}, {NA}, v{IX[0]}"); o(f"v_mov_b32 v{IX[1]+1}, v{IX[0]+1}")
        if CO:
            o(f"v_and_b32 v{IX[2]}, 31, v0"); o(f"v_mul_u32_u24 v{IX[2]}, 272, v{IX[2]}"); o(f"v_add_u32 v{IX[2]}, v{IX[2]}, v{IX[0]+1}")
            o(f"v_lshrrev_b32 v{IX[0]}, 4, v0"); o(f"v_and_b32 v{IX[0]+1}, 0xf0, v{vWF}")
            o(f"v_mul_u32_u24 v{IX[3]}, 272, v{IX[0]}"); o(f"v_add_u32 v{IX[3]}, v{IX[3]}, v{IX[0]+1}"); o(f"v_add_u32 v{IX[0]}, s{sBASE}, v{IX[0]}")
        o(f"s_mov_b32 s{sT1}, 0xffff0000")
        vs = [i for i, _ in vstream(Gc, Gc + 16)[HEAD[0]:]]
        for ins in vs: o(ins)
        o("s_nop 0")
        interleave(zphase(Gc, q), fin(p), 8)
        for s in range(8): o(f"ds_read_b128 {vr(Gc+4*s,4)}, v{vXA} offset:{q*2080+16*s}")
        o("s_waitcnt vmcnt(0) lgkmcnt(8)")
        interleave([m32(ACC+32*p+16, WU+4*s, GV+32*p+4*s, ACC+32*p+16) for s in range(8)], fin(q), 6)
        o("s_waitcnt lgkmcnt(0)"); o("s_barrier" if CO else "s_nop 0")
        interleave([m32(ACC+32*q+16, WU+4*s, Gc+4*s, ACC+32*q+16) for s in range(8)], unp(p) + post(p) + unp(q), 7)
        for ins in st(p) + post(q) + st(q): o(ins)
        if p == 1: o("s_branch K2_FIN")
    lab("K2_FIN")
    if CO:
        o("v_cmp_gt_u32 vcc, 16, v0")
        o("s_waitcnt lgkmcnt(0)"); o("s_barrier")
        for k in range(4): o(f"ds_read_b128 {vr(GV+4*k,4)}, v{IX[3]} offset:{RING + k*16*272}")
        for k in range(4):
            if k == 3: o(f"s_and_saveexec_b64 s[{sSV}:{sSV+1}], vcc"); o("s_cbranch_execz K2_OUT")
            o(f"s_waitcnt lgkmcnt({3-k})")
            o(f"buffer_store_dwordx4 {vr(GV+4*k,4)}, {vr(IX[0],2)}, s[{sO}:{sO+3}], 0 idxen offen {OPT.get('outpol', '').replace('+', ' ')}")
            if k < 3: o(f"v_add_u32 v{IX[0]}, 16, v{IX[0]}")
        lab("K2_OUT")
    stamp_out(9, GV+32, sW, 1)
    lab("K2_END")
    o("s_endpgm")
    for p in (1, 0):
        Gc = GV + 32 * (1 - p)
        lab(f"TAILM{p}")
        for ins, _ in vstream(Gc, Gc + 16)[HEAD[0]:]: o(ins)
        o("s_waitcnt lgkmcnt(0)")
        for m in zphase(Gc, 1 - p): o(m)
        if p == 1: o("s_branch NEXTROUND")
    lab("NEXTROUND")
    for i in range(4):
        o(f"v_lshrrev_b32 v{vTC}, 19, v{SEG+i}"); o(f"v_min_u32 v{vTC}, s{sLIM}, v{vTC}")
        o(f"v_add_u32 v{SEG+i}, v{SEG+i}, v{vTC}"); o(f"v_lshlrev_b32 v{vTC}, 19, v{vTC}"); o(f"v_sub_u32 v{SEG+i}, v{SEG+i}, v{vTC}")
    o(f"s_mov_b32 s{sFIRST}, 0"); o(f"s_mov_b32 s{sLIM}, 16")
    o("s_waitcnt vmcnt(0) lgkmcnt(0)"); o("s_barrier")
    o("s_branch ROUND")

def kd(name, nv, ns):
    L.append(".p2align 6")
    L.append(f".amdhsa_kernel {name}")
    for k, v in (("next_free_vgpr", nv), ("next_free_sgpr", ns), ("accum_offset", (nv + 3) // 4 * 4), ("group_segment_fixed_size", 0),
                 ("kernarg_size", 96), ("user_sgpr_count", 2), ("user_sgpr_kernarg_segment_ptr", 1), ("system_sgpr_workgroup_id_x", 1),
                 ("float_denorm_mode_32", 3)):
        L.append(f"  .amdhsa_{k} {v}")
    L.append(".end_amdhsa_kernel")

hdr = [l for l in open(f"cdna_kernels/{NAME}.s.ref").read().splitlines() if l.startswith(";") and "@launch" not in l
       and "Override launch" not in l and "grid=ceil" not in l]
L += hdr
L.append(f"; @launch kernel=gsort_kernel grid=({K1_GRID},1,1) block=(512,1,1) lds={K1_LDS}")
L.append(f"; @launch kernel=gmain_kernel grid=(256,1,1) block=(512,1,1) lds={NB+2*GS}" if G8 else f"; @launch kernel=gmain_kernel grid=(512,1,1) block=(256,1,1) lds={K2_LDS}")
L.append('.amdgcn_target "amdgcn-amd-amdhsa--gfx950"'); L.append(".text")
(gen_k1a if OPT.get('k1') == 'a' else gen_k1)(); gen_k2()
lab("CODE_END")
L.append('.section .rodata,"a"')
kd("gsort_kernel", 256 if STAMP else 252, 102 if STAMP else 80); kd("gmain_kernel", 256 if STAMP else NVGPR, 102)
if STAMP: L.append("; STAMPS " + repr(NAMES))
open(sys.argv[1], "w").write("\n".join(L) + "\n")
print("vgprs", NVGPR, "lds", K2_LDS, "lines", len(L), file=sys.stderr)
```

```python
import sys, struct, re

N = 25000; E = 400000; RN = 49; NR = 511; CH = 1600; NCH = 250
WS_REC = 0; WS_OFF = 0x310000; OROW = 1152; WS_WF = 0x3c0000; WS_TAB = 0x400000; WS_SIZE = 0x4000000
WF_A = 0; WF_U = 0x8000; WF_C = 0x10000; NA = 25
NLOG2E = struct.unpack('<I', struct.pack('<f', -1.4426950408889634))[0]
EPS = struct.unpack('<I', struct.pack('<f', 1e-6))[0]
NAME = "standalone__edge_featured_mpnn_gatedgcn__graph"
OPT = dict(k1='a', tabpol='sc1', recpol='sc1', touch='1', tsh='19', outpol='nt', bon='4', lp='3', pp='23,15,7')
OPT.update(a.split('=') for a in sys.argv[2:])
STAMP = int(OPT.get('stamp', 0))
WS_TAB = int(OPT.get('tab', hex(WS_TAB)), 0)
WS_STAMP = 0x3800000
L = []
def o(s): L.append("    " + s)
def lab(s): L.append(s + ":")
def vr(b, n): return f"v[{b}:{b+n-1}]"
VST = [60]
NAMES = {}
def stamp(i, ins="s_memrealtime", name=None):
    if STAMP:
        o(f"{ins} s[100:101]"); o("s_waitcnt lgkmcnt(0)"); o(f"v_writelane_b32 v{VST[0]}, s100, {i}")
def xstamp(name):
    if STAMP:
        NAMES[name] = 16 + len(NAMES); stamp(NAMES[name])
def stamp_out(n, reg, srdn, kern):
    if not STAMP: return
    o("s_mov_b64 exec, -1")
    stamp(n)
    o(f"v_lshlrev_b32 v{reg}, 2, v0")
    if kern and int(OPT.get('g8', 0)): o("s_and_b32 s63, s3, 1"); o("s_lshl_b32 s63, s63, 8"); o("s_add_u32 s2, s2, s63")
    o(f"s_lshl_b32 s63, s2, 11"); o(f"s_add_u32 s63, s63, {WS_STAMP + kern*0x100000:#x}")
    o(f"buffer_store_dword v{VST[0]}, v{reg}, s[{srdn}:{srdn+3}], s63 offen")
def srd(d, lo, size, stride=0):
    o(f"s_mov_b32 s{d}, s{lo}"); o(f"s_and_b32 s{d+1}, s{lo+1}, 0xffff")
    if stride: o(f"s_or_b32 s{d+1}, s{d+1}, {stride << 16:#x}")
    o(f"s_mov_b32 s{d+2}, {size:#x}"); o(f"s_mov_b32 s{d+3}, 0x20000")
def scan64(v):
    for d in ("row_shr:1", "row_shr:2", "row_shr:4", "row_shr:8"):
        o("s_nop 1"); o(f"v_add_u32_dpp v{v}, v{v}, v{v} {d} row_mask:0xf bank_mask:0xf bound_ctrl:0")
    o("s_nop 1"); o(f"v_add_u32_dpp v{v}, v{v}, v{v} row_bcast:15 row_mask:0xa bank_mask:0xf")
    o("s_nop 1"); o(f"v_add_u32_dpp v{v}, v{v}, v{v} row_bcast:31 row_mask:0xc bank_mask:0xf")

def m32(d, a, b, c): return f"v_mfma_f32_32x32x16_bf16 {vr(d,16)}, {vr(a,4)}, {vr(b,4)}, " + ("0" if c is None else vr(c,16))
K1_GRID = 256
OG = 4224
K1_W = 16896; K1_X = K1_W + 65536; K1_S = K1_X + 4 * 8320; K1_LDS = K1_S + 8 * 4608
def gen_k1():
    L.append(".globl gsort_kernel"); L.append(".p2align 8"); L.append(".type gsort_kernel,@function")
    lab("gsort_kernel"); VST[0] = 255
    pol = OPT.get('tabpol', '').replace('+', ' '); rpol = OPT.get('recpol', '').replace('+', ' ')
    stamp(0)
    o("s_load_dwordx8 s[4:11], s[0:1], 0")
    o("s_load_dwordx8 s[40:47], s[0:1], 32")
    o("s_load_dwordx2 s[48:49], s[0:1], 64")
    o("s_load_dwordx2 s[12:13], s[0:1], 88")
    o(f"s_cmp_ge_u32 s2, {K1_GRID}"); o("s_cbranch_scc1 K1_END")
    o("v_lshrrev_b32 v2, 6, v0"); o("v_lshlrev_b32 v1, 2, v0")
    o("s_and_b32 s36, s2, 7"); o("s_lshl_b32 s36, s36, 5"); o("s_lshr_b32 s35, s2, 3"); o("s_add_u32 s36, s36, s35")
    o("v_readfirstlane_b32 s33, v2")
    o("v_mov_b32 v2, 0"); o("ds_write_b32 v1, v2")
    o(f"s_mul_i32 s3, s2, {CH*4}"); o("s_mul_i32 s37, s36, 98")
    o(f"s_cmp_lt_u32 s2, {NCH}"); o(f"s_cselect_b32 s14, {CH//4}, 0")
    o("v_cmp_gt_u32 vcc, s14, v0")
    o("v_lshlrev_b32 v40, 4, v0")
    o("v_bfe_u32 v56, v0, 4, 1"); o("v_bfe_u32 v57, v0, 5, 1"); o("v_and_b32 v20, 63, v0")
    o("s_mov_b32 s68, 0"); o("v_lshlrev_b32 v42, 4, v20")
    o("v_bfe_u32 v43, v0, 4, 2"); o("v_lshlrev_b32 v43, 6, v43"); o("v_xor_b32 v43, v43, v40")
    o("v_lshl_add_u32 v58, v57, 3, v56")
    o("s_lshr_b32 s14, s33, 2"); o("s_lshl_b32 s14, s14, 4"); o("s_and_b32 s15, s33, 3"); o("s_lshl1_add_u32 s14, s15, s14")
    o("v_add_u32 v58, s14, v58"); o("v_add_u32 v54, s37, v58")
    o("v_and_b32 v55, 15, v0"); o("v_lshlrev_b32 v59, 3, v56"); o("v_xor_b32 v55, v55, v59"); o("v_lshlrev_b32 v55, 4, v55")
    o("s_mul_i32 s38, s33, 1040"); o(f"s_add_u32 s38, s38, {K1_X}")
    o("s_lshl_b32 s39, s33, 10"); o(f"s_add_u32 s39, s39, {K1_W}")
    o("s_mov_b32 m0, s38")
    o("s_waitcnt lgkmcnt(0)")
    srd(60, 4, N, 256)
    def xd(t):
        if t: o(f"s_add_u32 m0, s38, {t*8320}"); o("v_add_u32 v54, 32, v54")
        if t == 3: o("v_cmp_gt_u32 vcc, 2, v58"); o("v_mov_b32 v59, 0xffff"); o("s_nop 0"); o("v_cndmask_b32 v54, v59, v54, vcc")
        o("buffer_load_dwordx4 v[54:55], s[60:63], 0 idxen offen lds")
    xd(0); xd(1)
    srd(20, 10, E*4); srd(16, 8, E*4)
    o("s_and_saveexec_b64 s[28:29], vcc"); o("s_mov_b64 s[28:29], exec"); o("s_cbranch_execz K1_PREP")
    o("buffer_load_dwordx4 v[4:7], v40, s[20:23], s3 offen")
    o("buffer_load_dwordx4 v[8:11], v40, s[16:19], s3 offen")
    lab("K1_A")
    o("s_mov_b64 exec, -1")
    TCH = int(OPT.get('touch', 0)); SPL = int(OPT.get('split', 0))
    if TCH:
        srd(24, 12, WS_SIZE)
        o("s_lshl_b32 s14, s37, 9"); o(f"s_add_u32 s14, s14, {WS_TAB:#x}"); o("v_mov_b32 v248, s14"); o("s_lshl_b32 s14, s3, 1")
        o("v_writelane_b32 v248, s14, 1"); o(f"s_mov_b32 s14, {WS_OFF:#x}"); o("v_writelane_b32 v248, s14, 2")
        o("buffer_load_dword v249, v248, s[24:27], 0 offen")
    if not OPT.get('early'): o("s_barrier")
    srd(52, 42, 32768); srd(56, 48, 32768)
    for m in range(2):
        for i in range(4):
            o(f"s_add_u32 m0, s39, {m*32768+i*8192}"); o(f"s_movk_i32 s14, {i*8192}"); o(f"buffer_load_dwordx4 v43, s[{52+4*m}:{55+4*m}], s14 offen lds")
    xd(2); xd(3)
    if OPT.get('early'): o("s_barrier")
    def addrs():
        srd(24, 12, WS_SIZE)
        o("v_bfe_u32 v60, v0, 2, 2"); o("v_lshl_add_u32 v60, v57, 6, v60"); o("v_lshlrev_b32 v60, 8, v60")
        o("v_and_b32 v61, 3, v0"); o("v_lshl_add_u32 v60, v61, 3, v60"); o("v_lshl_add_u32 v60, v56, 5, v60")
        o("s_and_b32 s30, s33, 3"); o("v_bfe_u32 v61, v0, 2, 2"); o("v_xor_b32 v61, s30, v61"); o("v_lshl_add_u32 v60, v61, 6, v60"); o(f"v_add_u32 v60, {K1_W}, v60")
        o("v_bfe_u32 v61, v0, 1, 2"); o("v_lshl_or_b32 v61, v56, 2, v61"); o("v_mul_u32_u24 v61, 1040, v61")
        o("v_and_b32 v62, 1, v0"); o("v_bfe_u32 v63, v0, 3, 1"); o("v_lshl_or_b32 v63, v63, 1, v62"); o("v_lshl_add_u32 v61, v63, 8, v61")
        o("s_lshr_b32 s32, s33, 2"); o("s_mul_i32 s14, s32, 8320"); o(f"s_add_u32 s14, s14, {K1_X}")
        o("v_xor_b32 v62, v62, v57"); o("v_lshl_add_u32 v61, v62, 7, v61"); o("v_add_u32 v61, s14, v61")
        o("s_mul_i32 s14, s33, 4608"); o(f"s_add_u32 s14, s14, {K1_S}")
        o("v_and_b32 v62, 31, v0"); o("v_mul_u32_u24 v62, 144, v62"); o("v_lshl_add_u32 v62, v57, 6, v62"); o("v_add_u32 v62, s14, v62")
        o("v_lshrrev_b32 v58, 3, v20"); o("v_and_b32 v59, 7, v0"); o("v_lshlrev_b32 v59, 4, v59")
        o("v_mul_u32_u24 v63, 144, v58"); o("v_add3_u32 v63, v63, v59, s14")
        o("s_lshl_b32 s14, s32, 5"); o("s_add_u32 s14, s14, s37"); o("s_lshl_b32 s14, s14, 9"); o("s_lshl_b32 s30, s30, 7"); o("s_add_u32 s14, s14, s30")
        o("v_lshl_add_u32 v59, v58, 9, v59"); o("v_add_u32 v59, s14, v59")
        o("s_lshl_b32 s31, s3, 1")
    addrs()
    o(f"s_mul_i32 s34, s2, {CH}")
    o("v_add_u32 v3, s34, v1"); o("v_mov_b32 v2, 1"); o(f"s_mov_b32 s15, {-RN}")
    o("v_lshlrev_b32 v20, 5, v20")
    o("s_mov_b64 exec, s[28:29]"); o("s_cbranch_execz K1_B")
    o(f"s_waitcnt vmcnt({10+TCH})"); stamp(1)
    for i in range(4):
        o(f"v_mul_u32_u24 v{12+i}, 21400, v{4+i}")
        o(f"v_lshrrev_b32 v{12+i}, 20, v{12+i}")
        o(f"v_mad_i32_i24 v{4+i}, v{12+i}, s15, v{4+i}")
        o(f"v_lshlrev_b32 v{12+i}, 2, v{12+i}")
        o(f"ds_add_rtn_u32 v{16+i}, v{12+i}, v2")
    lab("K1_B")
    o("s_mov_b64 exec, -1")
    o(f"s_add_u32 s12, s12, {WS_TAB:#x}"); o("s_addc_u32 s13, s13, 0"); srd(16, 12, N * 512)
    o(f"s_mov_b32 s15, {NLOG2E:#x}")
    o(f"s_waitcnt vmcnt({2*SPL}) lgkmcnt(0)"); o("s_barrier"); stamp(3)
    lab("K1_J")
    WF_ = 64; XF_ = 128; AC = [160, 192]
    for m in range(2):
        for s in range(8):
            for jj in range(2): o(f"ds_read_b64_tr_b16 v[{WF_+32*m+4*s+2*jj}:{WF_+32*m+4*s+2*jj+1}], v60 offset:{m*32768+s*2048+jj*1024}")
            if m == 0: o(f"ds_read_b128 {vr(XF_+4*s,4)}, v61 offset:{16*s}")
    o("ds_read_b128 v[24:27], v20"); o("ds_read_b128 v[28:31], v20 offset:16")
    def post(t):
        a = AC[t]; r = []
        for k in range(16): r.append(f"v_mul_f32 v{a+k}, s15, v{a+k}")
        for k in range(16): r.append(f"v_cvt_pk_bf16_f32 v{224+k}, v{a+2*k}, v{a+2*k+1}")
        r += [f"ds_write_b128 v62, {vr(224+4*c,4)} offset:{16*c}" for c in range(4)]
        r += [f"ds_read_b128 {vr(a+4*k,4)}, v63 offset:{k*8*144}" for k in range(4)]
        return r
    def stores(t):
        r = []
        for k in range(4):
            r += [f"s_waitcnt lgkmcnt({3-k})", f"buffer_store_dwordx4 {vr(AC[t]+4*k,4)}, v59, s[16:19], 0 offen {pol}", "v_add_u32 v59, 0x1000, v59"]
        return r
    def recs():
        for i in range(4):
            o(f"v_cmp_lt_u32 vcc, {NA-1}, v{4+i}"); o(f"v_mul_u32_u24 v22, 83, v{8+i}"); o("v_lshrrev_b32 v22, 16, v22")
            o(f"v_cndmask_b32 v23, 0, {NA}, vcc"); o(f"v_sub_u32 v23, v{4+i}, v23")
            o(f"v_lshl_or_b32 v{44+2*i}, v23, 16, v{8+i}")
            o("v_cndmask_b32 v23, 0, 32, vcc"); o("v_or_b32 v22, v22, v23")
            o(f"v_lshl_add_u32 v{45+2*i}, v22, 26, v3")
            if i < 3: o("v_add_u32 v3, 1, v3")
    def scan():
        o("v_mov_b32 v33, v24")
        for j in range(2, 8): o(f"v_add_u32 v{32+j}, v{31+j}, v{23+j}")
        o("v_add_u32 v21, v39, v31"); o("v_mov_b32 v22, v21")
        scan64(21)
        o("v_sub_u32 v32, v21, v22")
        for j in range(1, 8): o(f"v_add_u32 v{32+j}, v32, v{32+j}")
    o("s_waitcnt lgkmcnt(15)")
    interleave([m32(AC[0], WF_+4*s, XF_+4*s, None if s == 0 else AC[0]) for s in range(8)], capture(recs), 5)
    o("s_waitcnt vmcnt(0) lgkmcnt(0)")
    if SPL: o("s_barrier")
    sc = capture(scan); p0 = post(0)
    q = sc + p0[:24]
    for s in range(8):
        o(m32(AC[0]+16, WF_+32+4*s, XF_+4*s, None if s == 0 else AC[0]+16))
        o(f"ds_read_b128 {vr(XF_+4*s,4)}, v61 offset:{2*8320+16*s}")
        for _ in range(5):
            if q: o(q.pop(0))
    lab("K1_G")
    o("s_waitcnt lgkmcnt(0)")
    mf = [m32(AC[1], WF_+4*s, XF_+4*s, None if s == 0 else AC[1]) for s in range(8)] + [m32(AC[1]+16, WF_+32+4*s, XF_+4*s, None if s == 0 else AC[1]+16) for s in range(8)]
    assert len(q) >= 8
    look = ["ds_write_b128 v20, v[32:35] offset:2048", "ds_write_b128 v20, v[36:39] offset:2064"] + [f"ds_read_b32 v{4+i}, v{12+i} offset:2048" for i in range(4)]
    q = q + p0[24:] + [None] * 5 + stores(0) + look
    for m in mf:
        o(m)
        for _ in range(5):
            if q:
                x = q.pop(0)
                if x: o(x)
    assert not q
    o("v_add_u32 v59, 0x4000, v59"); o("v_cmp_gt_u32 vcc, 2, v58")
    o("s_mov_b64 exec, s[28:29]")
    o("s_waitcnt lgkmcnt(0)")
    for i in range(4):
        o(f"v_add_lshl_u32 v{4+i}, v{4+i}, v{16+i}, 3"); o(f"ds_write_b64 v{4+i}, v[{44+2*i}:{45+2*i}] offset:4096")
    o("s_mov_b64 exec, -1")
    for x in post(1): o(x)
    stamp(4)
    o("s_cmp_lt_u32 s33, 4"); o("s_cbranch_scc1 K1_H")
    o("s_mov_b64 exec, vcc")
    for x in stores(1)[:2]: o(x)
    o("s_mov_b64 exec, -1")
    o("s_cmp_lg_u32 s68, 0"); o("s_cbranch_scc1 K1_PREP2")
    o("s_cmp_lg_u32 s33, 6"); o("s_cbranch_scc1 K1_I")
    for j in range(8): o(f"v_lshl_add_u32 v{24+j}, v{24+j}, 19, v{32+j}"); o(f"v_add_u32 v{24+j}, s34, v{24+j}")
    o(f"v_mul_u32_u24 v41, {OG//16}, v20"); o("s_lshl_b32 s35, s36, 4"); o(f"s_add_u32 s35, s35, {WS_OFF:#x}"); o(f"s_add_u32 s30, s35, {OG}")
    o("buffer_store_dwordx4 v[24:27], v41, s[24:27], s35 offen"); o("buffer_store_dwordx4 v[28:31], v41, s[24:27], s30 offen")
    o("s_branch K1_I")
    lab("K1_H")
    for x in stores(1): o(x)
    lab("K1_I")
    o(f"v_cmp_gt_u32 vcc, {CH//2-512}, v0")
    o("s_waitcnt lgkmcnt(0)"); o("s_barrier")
    o(f"s_cmp_lt_u32 s2, {NCH}"); o("s_cbranch_scc0 K1_F")
    o("ds_read_b128 v[44:47], v40 offset:4096"); o("ds_read_b128 v[48:51], v40 offset:12288")
    o("s_add_u32 s30, s31, 8192")
    o("s_waitcnt lgkmcnt(1)")
    o(f"buffer_store_dwordx4 v[44:47], v40, s[24:27], s31 offen {rpol}")
    o("s_and_saveexec_b64 s[28:29], vcc"); o("s_cbranch_execz K1_F")
    o("s_waitcnt lgkmcnt(0)")
    o(f"buffer_store_dwordx4 v[48:51], v40, s[24:27], s30 offen {rpol}")
    lab("K1_F")
    stamp_out(2, 12, 24, 0)
    lab("K1_END")
    o("s_endpgm")
    lab("K1_PREP")
    o("s_cmp_ge_u32 s2, 68"); o("s_cbranch_scc1 K1_A")
    o("s_mov_b64 exec, -1")
    o("s_lshr_b32 s14, s2, 5")
    o("s_cmp_eq_u32 s14, 1"); o("s_cselect_b32 s40, s46, s40"); o("s_cselect_b32 s41, s47, s41"); o(f"s_cselect_b32 s68, 1.0, {NLOG2E:#x}")
    o("s_mov_b32 s66, 32768"); o("s_bfe_u32 s50, s2, 0x20003"); o("s_and_b32 s51, s2, 7"); o("s_mov_b32 s32, 14")
    o("s_cmp_eq_u32 s14, 2"); o("s_cselect_b32 s40, s44, s40"); o("s_cselect_b32 s41, s45, s41"); o("s_cselect_b32 s66, 4096, s66")
    o("s_cselect_b32 s50, s51, s50"); o("s_cselect_b32 s51, 0, s51"); o("s_cselect_b32 s32, 11, s32")
    o("s_mov_b32 s64, s40"); o("s_and_b32 s65, s41, 0xffff"); o("s_mov_b32 s67, 0x20000")
    o("s_lshl_b32 s50, s50, 6"); o("s_lshl_b32 s51, s51, 11"); o("s_add_u32 s50, s50, s51")
    o("v_and_b32 v4, 3, v0"); o("v_bfe_u32 v5, v0, 3, 2"); o("v_lshl_or_b32 v4, v5, 2, v4")
    o("v_bfe_u32 v5, v0, 2, 1"); o("v_lshl_or_b32 v4, v5, 4, v4")
    o("v_lshlrev_b32 v5, s32, v57"); o("v_lshl_add_u32 v4, v4, 1, v5"); o("v_add_u32 v4, s50, v4")
    for j in range(8): o(f"buffer_load_ushort v{240+j}, v4, s[64:67], 0 offen offset:{j*256}")
    o("s_branch K1_A")
    lab("K1_PREP2")
    o("s_lshl_b32 s14, s2, 10"); o(f"s_add_u32 s14, s14, {WS_WF:#x}")
    for j in range(8):
        o(f"v_lshlrev_b32 v{240+j}, 16, v{240+j}"); o(f"v_mul_f32 v{240+j}, s68, v{240+j}")
    for j in range(4): o(f"v_cvt_pk_bf16_f32 v{52+j}, v{240+2*j}, v{241+2*j}")
    o("buffer_store_dwordx4 v[52:55], v42, s[24:27], s14 offen")
    o("s_branch K1_I")

SM = int(OPT.get('sm', 0)); SMS = N * 128 + int(OPT.get('smpad', 0))
def gen_k1a():
    L.append(".globl gsort_kernel"); L.append(".p2align 8"); L.append(".type gsort_kernel,@function")
    lab("gsort_kernel"); VST[0] = 255
    pol = OPT.get('tabpol', '').replace('+', ' '); rpol = OPT.get('recpol', '').replace('+', ' ')
    if OPT.get('cpf'):
        o("s_getpc_b64 s[70:71]")
        o("v_lshlrev_b32 v236, 7, v0"); o("v_min_u32 v236, CODE_END-gsort_kernel-8, v236")
        o("v_mov_b32 v237, s71"); o("v_add_co_u32 v236, vcc, s70, v236"); o("s_nop 1"); o("v_addc_co_u32 v237, vcc, 0, v237, vcc")
        o("global_load_dword v238, v[236:237], off")
    stamp(0)
    o("s_load_dwordx8 s[4:11], s[0:1], 0")
    o("s_load_dwordx8 s[40:47], s[0:1], 32")
    o("s_load_dwordx2 s[48:49], s[0:1], 64")
    o("s_load_dwordx2 s[12:13], s[0:1], 88")
    o("s_load_dwordx2 s[72:73], s[0:1], 72")
    o(f"s_cmp_ge_u32 s2, {K1_GRID}"); o("s_cbranch_scc1 K1_END")
    o("v_lshrrev_b32 v2, 6, v0"); o("v_lshlrev_b32 v1, 2, v0")
    o("s_and_b32 s36, s2, 7"); o("s_lshl_b32 s36, s36, 5"); o("s_lshr_b32 s35, s2, 3"); o("s_add_u32 s36, s36, s35")
    o("v_readfirstlane_b32 s33, v2")
    o("v_mov_b32 v2, 0"); o("ds_write_b32 v1, v2")
    o(f"s_mul_i32 s3, s2, {CH*4}"); o("s_mul_i32 s37, s36, 98")
    o(f"s_cmp_lt_u32 s2, {NCH}"); o(f"s_cselect_b32 s14, {CH//5}, 0")
    o("v_cmp_gt_u32 vcc, s14, v0")
    o("v_lshlrev_b32 v40, 4, v0")
    o("v_bfe_u32 v56, v0, 4, 1"); o("v_bfe_u32 v57, v0, 5, 1"); o("v_and_b32 v20, 63, v0")
    o("s_mov_b32 s68, 0"); o("v_lshlrev_b32 v42, 4, v20")
    o("v_mul_u32_u24 v43, 20, v0")
    o("s_cmp_ge_u32 s33, 5")
    o("s_waitcnt lgkmcnt(0)")
    o("s_cbranch_scc1 K1_LOAD")
    srd(20, 10, E*4); srd(16, 8, E*4)
    o("s_and_saveexec_b64 s[28:29], vcc"); o("s_mov_b64 s[28:29], exec"); o("s_cbranch_execz K1_A")
    o("buffer_load_dwordx4 v[64:67], v43, s[20:23], s3 offen"); o("buffer_load_dword v68, v43, s[20:23], s3 offen offset:16")
    o("buffer_load_dwordx4 v[72:75], v43, s[16:19], s3 offen"); o("buffer_load_dword v76, v43, s[16:19], s3 offen offset:16")
    lab("K1_A")
    o("s_mov_b64 exec, -1")
    NX = int(OPT.get('nx', 0))
    if NX:
        srd(52, 42, 32768); srd(56, 48, 32768)
        o("v_lshrrev_b32 v44, 4, v20"); o("v_lshlrev_b32 v44, 6, v44"); o("v_xor_b32 v44, v44, v42")
        o(f"s_mul_i32 s14, s33, {NX*1024}"); o(f"s_add_u32 s14, s14, {(32-5*NX)*1024}")
        for m in range(2):
            o(f"s_add_u32 m0, s14, {K1_W + m*32768}"); o("s_nop 0")
            for j in range(NX): o(f"buffer_load_dwordx4 v44, s[{52+4*m}:{55+4*m}], s14 offen offset:{j*1024} lds")
    o("s_barrier")
    def addrs():
        srd(24, 12, WS_SIZE)
        o("v_bfe_u32 v60, v0, 2, 2"); o("v_lshl_add_u32 v60, v57, 6, v60"); o("v_lshlrev_b32 v60, 8, v60")
        o("v_and_b32 v61, 3, v0"); o("v_lshl_add_u32 v60, v61, 3, v60"); o("v_lshl_add_u32 v60, v56, 5, v60")
        o("s_and_b32 s30, s33, 3"); o("v_bfe_u32 v61, v0, 2, 2"); o("v_xor_b32 v61, s30, v61"); o("v_lshl_add_u32 v60, v61, 6, v60"); o(f"v_add_u32 v60, {K1_W}, v60")
        o("v_bfe_u32 v61, v0, 1, 2"); o("v_lshl_or_b32 v61, v56, 2, v61"); o("v_mul_u32_u24 v61, 1040, v61")
        o("v_and_b32 v62, 1, v0"); o("v_bfe_u32 v63, v0, 3, 1"); o("v_lshl_or_b32 v63, v63, 1, v62"); o("v_lshl_add_u32 v61, v63, 8, v61")
        o("s_lshr_b32 s32, s33, 2"); o("s_mul_i32 s14, s32, 8320"); o(f"s_add_u32 s14, s14, {K1_X}")
        o("v_xor_b32 v62, v62, v57"); o("v_lshl_add_u32 v61, v62, 7, v61"); o("v_add_u32 v61, s14, v61")
        o("s_mul_i32 s14, s33, 4608"); o(f"s_add_u32 s14, s14, {K1_S}")
        o("v_and_b32 v62, 31, v0"); o("v_mul_u32_u24 v62, 144, v62"); o("v_lshl_add_u32 v62, v57, 6, v62"); o("v_add_u32 v62, s14, v62")
        o("v_lshrrev_b32 v58, 3, v20"); o("v_and_b32 v59, 7, v0"); o("v_lshlrev_b32 v59, 4, v59")
        o("v_mul_u32_u24 v63, 144, v58"); o("v_add3_u32 v63, v63, v59, s14")
        if SM:
            o("s_lshl_b32 s14, s32, 5"); o("s_add_u32 s14, s14, s37"); o("s_lshl_b32 s14, s14, 7"); o(f"s_mul_i32 s69, s30, {SMS}")
            o("v_add_u32 v59, s14, v42")
        else:
            o("s_lshl_b32 s14, s32, 5"); o("s_add_u32 s14, s14, s37"); o("s_lshl_b32 s14, s14, 9"); o("s_lshl_b32 s30, s30, 7"); o("s_add_u32 s14, s14, s30")
            o("v_lshl_add_u32 v59, v58, 9, v59"); o("v_add_u32 v59, s14, v59")
        o("s_lshl_b32 s31, s3, 1")
    addrs()
    o(f"s_mul_i32 s34, s2, {CH}")
    o("v_lshrrev_b32 v3, 2, v43"); o("v_add_u32 v3, s34, v3"); o("v_mov_b32 v2, 1"); o(f"s_mov_b32 s15, {-RN}"); o(f"s_movk_i32 s38, {-64*RN}")
    o("v_lshlrev_b32 v20, 5, v20")
    o("s_mov_b64 exec, s[28:29]"); o("s_cbranch_execz K1_B")
    o(f"s_waitcnt vmcnt({2+2*NX})"); stamp(1)
    for i in range(5):
        o(f"v_mul_u32_u24 v{80+i}, 21400, v{64+i}")
        o(f"v_lshrrev_b32 v{80+i}, 20, v{80+i}")
        o(f"v_mad_i32_i24 v{64+i}, v{80+i}, s15, v{64+i}")
        o(f"v_lshlrev_b32 v{80+i}, 2, v{80+i}")
        o(f"ds_add_rtn_u32 v{88+i}, v{80+i}, v2")
    o(f"s_waitcnt vmcnt({2*NX})")
    for i in range(5):
        o(f"v_cmp_lt_u32 vcc, {NA-1}, v{64+i}")
        if int(OPT.get('rot', 0)):
            o(f"v_lshrrev_b32 v22, 8, v{80+i}"); o(f"v_mad_i32_i24 v22, v22, s38, v{72+i}"); o(f"v_add_u32 v23, {512*RN}, v22"); o("v_min_u32 v22, v22, v23")
            o("v_mul_u32_u24 v22, 83, v22")
        else: o(f"v_mul_u32_u24 v22, {OPT.get('binmul', 83)}, v{72+i}")
        o("v_lshrrev_b32 v22, 16, v22")
        o(f"v_cndmask_b32 v23, 0, {NA}, vcc"); o(f"v_sub_u32 v23, v{64+i}, v23")
        o(f"v_lshl_or_b32 v{96+2*i}, v23, 16, v{72+i}")
        o("v_cndmask_b32 v23, 0, 32, vcc"); o("v_or_b32 v22, v22, v23")
        o(f"v_lshl_add_u32 v{97+2*i}, v22, 26, v3")
        if i < 4: o("v_add_u32 v3, 1, v3")
    lab("K1_B")
    o("s_mov_b64 exec, -1")
    o("s_waitcnt lgkmcnt(0)"); o("s_barrier")
    o("ds_read_b128 v[24:27], v20"); o("ds_read_b128 v[28:31], v20 offset:16")
    o("s_waitcnt lgkmcnt(0)")
    o("v_mov_b32 v33, v24")
    for j in range(2, 8): o(f"v_add_u32 v{32+j}, v{31+j}, v{23+j}")
    o("v_add_u32 v21, v39, v31"); o("v_mov_b32 v22, v21")
    scan64(21)
    o("v_sub_u32 v32, v21, v22")
    for j in range(1, 8): o(f"v_add_u32 v{32+j}, v32, v{32+j}")
    o("ds_write_b128 v20, v[32:35] offset:2048"); o("ds_write_b128 v20, v[36:39] offset:2064")
    o("s_mov_b64 exec, s[28:29]")
    for i in range(5): o(f"ds_read_b32 v{64+i}, v{80+i} offset:2048")
    o("s_waitcnt lgkmcnt(0)")
    for i in range(5):
        o(f"v_add_lshl_u32 v{64+i}, v{64+i}, v{88+i}, 3"); o(f"ds_write_b64 v{64+i}, v[{96+2*i}:{97+2*i}] offset:4096")
    o("s_mov_b64 exec, -1")
    o("s_waitcnt vmcnt(0) lgkmcnt(0)"); o("s_barrier"); stamp(3)
    lab("K1_J")
    if OPT.get('pfe'):
        srd(76, 6, E*32); o("v_lshlrev_b32 v250, 7, v0"); o("s_lshl_b32 s14, s2, 16"); o("v_add_u32 v250, s14, v250")
        o("buffer_load_dword v251, v250, s[76:79], 0 offen " + OPT['pfe'].replace('p', ''))
    WF_ = 64; XF_ = 128; AC = [160, 192]
    o("ds_read_b128 v[44:47], v40 offset:4096"); o("ds_read_b128 v[48:51], v40 offset:12288")
    o(f"v_cmp_gt_u32 vcc, {CH//2-512}, v0")
    for m in range(2):
        for s in range(8):
            for jj in range(2): o(f"ds_read_b64_tr_b16 v[{WF_+32*m+4*s+2*jj}:{WF_+32*m+4*s+2*jj+1}], v60 offset:{m*32768+s*2048+jj*1024}")
        if m == 0:
            for s in range(8): o(f"ds_read_b128 {vr(XF_+4*s,4)}, v61 offset:{16*s}")
    o(f"s_add_u32 s12, s12, {WS_TAB:#x}"); o("s_addc_u32 s13, s13, 0")
    if SM: o("s_add_u32 s12, s12, s69"); o("s_addc_u32 s13, s13, 0")
    srd(16, 12, N * (128 if SM else 512))
    o(f"s_mov_b32 s15, {NLOG2E:#x}")
    def post(t):
        a = AC[t]; r = []
        for k in range(16): r.append(f"v_mul_f32 v{a+k}, s15, v{a+k}")
        for k in range(16): r.append(f"v_cvt_pk_bf16_f32 v{224+k}, v{a+2*k}, v{a+2*k+1}")
        r += [f"ds_write_b128 v62, {vr(224+4*c,4)} offset:{16*c}" for c in range(4)]
        r += [f"ds_read_b128 {vr(a+4*k,4)}, v63 offset:{k*8*144}" for k in range(4)]
        return r
    def tp(i):
        m = OPT.get('tp')
        return pol if not m else {'s': 'sc1', 'n': 'nt', 'p': ''}[m[i]]
    def stores(t):
        r = []
        for k in range(4):
            r += [f"s_waitcnt lgkmcnt({3-k})", f"buffer_store_dwordx4 {vr(AC[t]+4*k,4)}, v59, s[16:19], 0 offen {tp(4*t+k)}", f"v_add_u32 v59, {0x400 if SM else 0x1000:#x}, v59"]
        return r
    o("s_waitcnt lgkmcnt(15)")
    o(f"s_cmp_lt_u32 s2, {NCH}"); o("s_cbranch_scc0 K1_E")
    o("s_add_u32 s30, s31, 8192")
    o(f"buffer_store_dwordx4 v[44:47], v40, s[24:27], s31 offen {rpol}")
    o("s_and_saveexec_b64 s[28:29], vcc"); o("s_cbranch_execz K1_E")
    o(f"buffer_store_dwordx4 v[48:51], v40, s[24:27], s30 offen {rpol}")
    lab("K1_E"); o("s_mov_b64 exec, -1")
    for s in range(8): o(m32(AC[0], WF_+4*s, XF_+4*s, None if s == 0 else AC[0]))
    o("s_waitcnt lgkmcnt(0)")
    for s in range(8):
        o(m32(AC[0]+16, WF_+32+4*s, XF_+4*s, None if s == 0 else AC[0]+16))
        o(f"ds_read_b128 {vr(XF_+4*s,4)}, v61 offset:{2*8320+16*s}")
    o("s_cmp_lg_u32 s68, 0"); o("s_cbranch_scc1 K1_PREP2")
    o("s_cmp_eq_u32 s33, 4"); o("s_cbranch_scc1 K1_OFF")
    lab("K1_G")
    o("s_waitcnt lgkmcnt(0)")
    mf = [m32(AC[1], WF_+4*s, XF_+4*s, None if s == 0 else AC[1]) for s in range(8)] + [m32(AC[1]+16, WF_+32+4*s, XF_+4*s, None if s == 0 else AC[1]+16) for s in range(8)]
    q = post(0) + [None] * 6 + stores(0)
    for m in mf:
        o(m)
        for _ in range(5):
            if q:
                x = q.pop(0)
                if x: o(x)
    assert not q
    o(f"v_add_u32 v59, {0x1000 if SM else 0x4000:#x}, v59"); o("v_cmp_gt_u32 vcc, 2, v58")
    for x in post(1): o(x)
    stamp(4)
    o("s_cmp_lt_u32 s33, 4"); o("s_cbranch_scc1 K1_H")
    o("s_mov_b64 exec, vcc")
    for x in stores(1)[:2]: o(x)
    if OPT.get('pfe2'):
        n = int(OPT['pfe2'])
        o("s_mov_b64 exec, -1")
        srd(76, 6, E*32); o("v_lshlrev_b32 v250, 7, v0"); o("s_mul_i32 s14, s2, 50176"); o("s_sub_u32 s14, s14, 32768"); o("v_add_u32 v250, s14, v250")
        o("buffer_load_dword v251, v250, s[76:79], 0 offen")
        if n > 1:
            o("v_cmp_gt_u32 vcc, 392, v0"); o("v_add_u32 v250, 0x8000, v250"); o("s_and_saveexec_b64 s[28:29], vcc"); o("s_cbranch_execz K1_F")
            o("buffer_load_dword v251, v250, s[76:79], 0 offen")
    o("s_branch K1_F")
    lab("K1_H")
    for x in stores(1): o(x)
    lab("K1_F")
    if OPT.get('touch') == '4':
        o("s_mov_b64 exec, -1"); o("s_cmp_lg_u32 s33, 7"); o("s_cbranch_scc1 K1_END")
        o("v_lshl_add_u32 v250, v20, 5, s35"); o(f"v_lshlrev_b32 v250, 19, v250")
        srd(76, 6, E*32); o("buffer_load_dword v249, v250, s[76:79], 0 offen")
        srd(76, 72, N*256); o("buffer_load_dword v249, v250, s[76:79], 0 offen")
        o("buffer_load_dword v249, v250, s[16:19], 0 offen"); o("s_mov_b32 s26, 0x400000"); o("buffer_load_dword v249, v250, s[24:27], 0 offen")
    stamp_out(2, 12, 24, 0)
    lab("K1_END")
    o("s_endpgm")
    lab("K1_OFF")
    for j in range(8): o(f"v_lshl_add_u32 v{24+j}, v{24+j}, 19, v{32+j}"); o(f"v_add_u32 v{24+j}, s34, v{24+j}")
    o(f"v_mul_u32_u24 v41, {OG//16}, v20"); o("s_lshl_b32 s35, s36, 4"); o(f"s_add_u32 s35, s35, {WS_OFF:#x}"); o(f"s_add_u32 s30, s35, {OG}")
    o("buffer_store_dwordx4 v[24:27], v41, s[24:27], s35 offen " + OPT.get('offpol', '')); o("buffer_store_dwordx4 v[28:31], v41, s[24:27], s30 offen " + OPT.get('offpol', ''))
    o("s_branch K1_G")
    lab("K1_LOAD")
    nb0 = int(OPT.get('k1a', 0))
    nb = int(OPT.get('k1b', 24))
    o("s_cmp_eq_u32 s33, 7"); o("s_cbranch_scc1 K1_LX")
    o("s_cmp_eq_u32 s33, 6"); o("s_cselect_b32 s42, s48, s42"); o("s_cselect_b32 s43, s49, s43"); o("s_cselect_b32 s39, 0x8000, 0"); o(f"s_add_u32 s39, s39, {K1_W}")
    srd(52, 42, 32768)
    o("v_lshrrev_b32 v44, 4, v20"); o("v_lshlrev_b32 v44, 6, v44"); o("v_xor_b32 v44, v44, v42")
    for k in range(32 - 5*NX):
        if k in (nb0, min(nb, 31 - 5*NX)): o("s_barrier")
        if k % 4 == 0: o(f"s_add_u32 m0, s39, {k*1024}"); o(f"s_movk_i32 s14, {k*1024}")
        o(f"buffer_load_dwordx4 v44, s[52:55], s14 offen offset:{(k%4)*1024} lds")
    lab("K1_LD")
    addrs()
    o("s_waitcnt vmcnt(0) lgkmcnt(0)"); o("s_barrier")
    o("s_branch K1_J")
    def touch2():
        sh = int(OPT.get('tsh', 16))
        o("v_lshl_add_u32 v250, v20, 5, s35"); o(f"v_lshlrev_b32 v250, {sh}, v250")
        srd(76, 6, E*32); o("buffer_load_dword v249, v250, s[76:79], 0 offen")
        srd(76, 12, WS_TAB + 4*SMS); o("buffer_load_dword v249, v250, s[76:79], 0 offen")
        srd(76, 72, N*256); o("buffer_load_dword v249, v250, s[76:79], 0 offen")
    lab("K1_LX")
    if OPT.get('touch') == '3': touch2()
    if OPT.get('touch') == '5':
        o("s_lshl_b32 s14, s37, 9"); o(f"s_add_u32 s14, s14, {WS_TAB:#x}"); o("s_load_dword s74, s[12:13], s14")
        o("s_add_u32 s14, s14, 50048"); o("s_load_dword s75, s[12:13], s14")
        o("s_lshl_b32 s14, s3, 1"); o("s_load_dword s76, s[12:13], s14")
        o(f"s_mov_b32 s14, {WS_OFF:#x}"); o("s_load_dword s77, s[12:13], s14")
    elif int(OPT.get('touch', 0)):
        srd(24, 12, WS_SIZE)
        o(f"s_lshl_b32 s14, s37, {7 if SM else 9}"); o(f"s_add_u32 s14, s14, {WS_TAB:#x}"); o("v_mov_b32 v248, s14")
        if SM: o("v_lshrrev_b32 v249, 4, v20"); o(f"v_mul_u32_u24 v249, {SMS}, v249"); o("v_add_u32 v248, v248, v249")
        o("s_lshl_b32 s14, s3, 1")
        o("v_writelane_b32 v248, s14, 1"); o(f"s_mov_b32 s14, {WS_OFF:#x}"); o("v_writelane_b32 v248, s14, 2")
        o("buffer_load_dword v249, v248, s[24:27], 0 offen")
    srd(60, 4, N, 256)
    o("v_lshl_add_u32 v58, v57, 3, v56"); o("v_add_u32 v53, s37, v58")
    o("v_and_b32 v55, 15, v0"); o("v_lshlrev_b32 v59, 3, v56"); o("v_xor_b32 v55, v55, v59"); o("v_lshlrev_b32 v55, 4, v55")
    o("v_cmp_gt_u32 vcc, 2, v58"); o("v_mov_b32 v59, 0xffff")
    for k in range(25):
        t, i = divmod(k, 8)
        if k in (nb0, nb): o("s_barrier")
        o(f"s_mov_b32 m0, {K1_X + t*8320 + i*1040}"); o(f"v_add_u32 v54, {32*t + 16*(i >> 2) + 2*(i & 3)}, v53")
        if t == 3: o("v_cndmask_b32 v54, v59, v54, vcc")
        o("buffer_load_dwordx4 v[54:55], s[60:63], 0 idxen offen lds")
    if OPT.get('touch') == '2': touch2()
    o("s_cmp_ge_u32 s2, 68"); o("s_cbranch_scc1 K1_LD")
    o("s_lshr_b32 s14, s2, 5")
    o("s_cmp_eq_u32 s14, 1"); o("s_cselect_b32 s40, s46, s40"); o("s_cselect_b32 s41, s47, s41"); o(f"s_cselect_b32 s68, 1.0, {NLOG2E:#x}")
    o("s_mov_b32 s66, 32768"); o("s_bfe_u32 s50, s2, 0x20003"); o("s_and_b32 s51, s2, 7"); o("s_mov_b32 s32, 14")
    o("s_cmp_eq_u32 s14, 2"); o("s_cselect_b32 s40, s44, s40"); o("s_cselect_b32 s41, s45, s41"); o("s_cselect_b32 s66, 4096, s66")
    o("s_cselect_b32 s50, s51, s50"); o("s_cselect_b32 s51, 0, s51"); o("s_cselect_b32 s32, 11, s32")
    o("s_mov_b32 s64, s40"); o("s_and_b32 s65, s41, 0xffff"); o("s_mov_b32 s67, 0x20000")
    o("s_lshl_b32 s50, s50, 6"); o("s_lshl_b32 s51, s51, 11"); o("s_add_u32 s50, s50, s51")
    o("v_and_b32 v4, 3, v0"); o("v_bfe_u32 v5, v0, 3, 2"); o("v_lshl_or_b32 v4, v5, 2, v4")
    o("v_bfe_u32 v5, v0, 2, 1"); o("v_lshl_or_b32 v4, v5, 4, v4")
    o("v_lshlrev_b32 v5, s32, v57"); o("v_lshl_add_u32 v4, v4, 1, v5"); o("v_add_u32 v4, s50, v4")
    for j in range(8): o(f"buffer_load_ushort v{8+j}, v4, s[64:67], 0 offen offset:{j*256}")
    o("s_branch K1_LD")
    lab("K1_PREP2")
    o("s_lshl_b32 s14, s2, 10"); o(f"s_add_u32 s14, s14, {WS_WF:#x}")
    for j in range(8):
        o(f"v_lshlrev_b32 v{8+j}, 16, v{8+j}"); o(f"v_mul_f32 v{8+j}, s68, v{8+j}")
    for j in range(4): o(f"v_cvt_pk_bf16_f32 v{52+j}, v{8+2*j}, v{9+2*j}")
    o("buffer_store_dwordx4 v[52:55], v42, s[24:27], s14 offen " + OPT.get('wfpol', ''))
    o("s_branch K1_G")

def regs_of(tok):
    m = re.fullmatch(r"v\[(\d+):(\d+)\]", tok)
    if m: return set(range(int(m.group(1)), int(m.group(2)) + 1))
    m = re.fullmatch(r"v(\d+)", tok)
    return {int(m.group(1))} if m else set()
def check_hazards(ins):
    P = []
    for s in ins:
        if s.endswith(':'): continue
        op, _, rest = s.partition(' ')
        t = [x.strip() for x in rest.split(',')]
        t = [x.split(' ')[0] for x in t]
        if op.startswith('v_mfma'):
            P.append(('m', 12 if '32x32' in op else 8, regs_of(t[0]), regs_of(t[1]) | regs_of(t[2]), regs_of(t[3]), s))
        elif op.startswith('v_'):
            P.append(('t' if op in ('v_exp_f32', 'v_rcp_f32') else 'v', 0, regs_of(t[0]), set().union(*map(regs_of, t[1:])), set(), s))
        elif op.startswith('ds_read'):
            P.append(('d', 0, regs_of(t[0]), regs_of(t[1]), set(), s))
        elif op.startswith('buffer'):
            P.append(('d', 0, set(), regs_of(t[0]), set(), s))
        else: P.append(('s', 0, set(), set(), set(), s))
    n = len(P)
    for i, (k, w, d, ab, c, s) in enumerate(P):
        for j in range(1, 13):
            k2, w2, d2, ab2, c2, s2 = P[(i + j) % n]
            gap = j - 1
            if k == 'm':
                if k2 == 'm':
                    assert not (gap < w and d & ab2), (s, s2)
                    if d & c2 and d != c2: assert gap >= w - 2, (s, s2)
                else: assert not (gap < w and d & (d2 | ab2)), (s, s2, gap)
                if k2 in 'vt': assert not (gap < (7 if w == 12 else 3) and c & d2), (s, s2)
            if k in 'vt' and k2 == 'm': assert not (gap < 2 and d & (ab2 | c2)), (s, s2)
            if k == 't' and k2 == 'v': assert not (gap < 1 and d & ab2), (s, s2)

LOWLIM = 2; NS = 2
LUT = 0; IDT = 4096; NB = IDT + 26 * 80; LIST = NB + 256; MB = LIST + 8192; ROW = 264; CNT = MB + 26 * ROW; ZSZ = 26 * ROW + 256
ER = CNT + 256; RING = ER + 8192; WS_ = 4160; SLOT = 4 * WS_; K2_LDS = RING + (NS + 1) * SLOT
G8 = int(OPT.get('g8', 0)); GS = (K2_LDS - NB + 255) // 256 * 256
assert K2_LDS <= 81920 and ER % 16 == 0 and LIST % 16 == 0 and MB % 16 == 0 and 4096 < ZSZ <= 8192 and ZSZ % 16 == 0

class RA:
    def __init__(s): s.n = 1
    def get(s, k=1, al=1):
        s.n = (s.n + al - 1) // al * al
        b = s.n; s.n += k; return b
R = RA()
vTA = R.get()
IX = [R.get(2, 2) for _ in range(4)]; IXE = R.get(2, 2); MQ = R.get(2, 2)
(vTC, vEA, vMT, vSA, vMA, vL1, vL2, vSV, vHC, vWF, vXA, vXR, vXI, vXO) = [R.get() for _ in range(14)]
SEG = R.get(4, 4); PT = R.get(4, 4)
GV = R.get(64, 4); ACC = R.get(64, 4)
TF = R.get(16, 4); EF = R.get(4, 4); SF = R.get(8, 4); WC = R.get(4, 4); T0 = R.get(8, 4); AF = R.get(16, 4); SEL = R.get(8, 4)
NVGPR = R.n
assert NVGPR <= 255, NVGPR
REC = GV; RANK = GV + 32; AD = GV + 48
sX, sE, sW, sO, sT = 8, 12, 16, 20, 96
sWAVE, sBASE, sMR, sME, sCNT, sNT, sRS, sLIM, sFIRST, sMORE, sDS, sT0, sT1, sEPS, s80, sMET = range(24, 40)
sHM, sSV, sWF, sS0 = 42, 44, 52, 54
sK = 56
sG = 95
def addg(v):
    if G8: o(f"v_add_u32 v{v}, s{sG}, v{v}")
def saddg(r):
    if G8: o(f"s_add_u32 s{r}, s{r}, s{sG}")

def ldt(i): return f"buffer_load_dwordx4 {vr(IX[i],2)}, s[{sT}:{sT+3}], 0 idxen offen {OPT.get('tpol', '').replace('+', ' ')} lds".replace("  ", " ")
def lde(): return f"buffer_load_dwordx4 {vr(IXE,2)}, s[{sE}:{sE+3}], 0 idxen offen {OPT.get('epol', '').replace('+', ' ')} lds".replace("  ", " ")
def loff(u): return (u & 1) * 4096 + (u >> 1) * 256
def nextslot(r): return [f"s_add_u32 s{r}, s{r}, {SLOT}", f"s_cmp_eq_u32 s{r}, {NS*SLOT}", f"s_cselect_b32 s{r}, 0, s{r}"]

def vstream(Gc, Vc):
    A = []
    for p in range(0, 22, 2):
        if p < 16: A += [(f"v_exp_f32 v{Gc+p}, v{Gc+p}", 8), (f"v_exp_f32 v{Gc+p+1}, v{Gc+p+1}", 8)]
        q = p - 2
        if 0 <= q < 16:
            if 'a' in OPT.get('pk', ''): A += [(f"v_pk_add_f32 {vr(Gc+q,2)}, {vr(Gc+q,2)}, 1.0 op_sel_hi:[1,0]", 4)]
            else: A += [(f"v_add_f32 v{Gc+q}, 1.0, v{Gc+q}", 4), (f"v_add_f32 v{Gc+q+1}, 1.0, v{Gc+q+1}", 4)]
            A += [(f"v_rcp_f32 v{Gc+q}, v{Gc+q}", 8), (f"v_rcp_f32 v{Gc+q+1}, v{Gc+q+1}", 8)]
        q = p - 4
        if 0 <= q < 16 and 'm' in OPT.get('pk', ''): A += [(f"v_pk_mul_f32 {vr(Vc+q,2)}, {vr(Gc+q,2)}, {vr(Vc+q,2)}", 4)]
        elif 0 <= q < 16: A += [(f"v_mul_f32 v{Vc+q}, v{Gc+q}, v{Vc+q}", 4), (f"v_mul_f32 v{Vc+q+1}, v{Gc+q+1}, v{Vc+q+1}", 4)]
        q = p - 6
        if 0 <= q < 16: A += [(f"v_cvt_pk_bf16_f32 v{Gc+q//2}, v{Gc+q}, v{Gc+q+1}", 4), (f"v_cvt_pk_bf16_f32 v{Vc+q//2}, v{Vc+q}, v{Vc+q+1}", 4)]
    return A
def zphase(P, p):
    d = ACC + 32 * p
    return [m32(d, P, T0, d), m32(d+16, P+16, T0, d+16), m32(d, P+4, T0+4, d), m32(d+16, P+20, T0+4, d+16)]

HEAD = {}
def body(b, peel=False):
    p = b % 2
    Gn = GV + 32 * p; Vn = Gn + 16; Gc = GV + 32 * (1 - p); Vc = Gc + 16; af = AF + 8 * p
    ne = sum(1 for k in range(NS - 1) if (b - k) % 4 == 0) + (1 if (b - (NS - 1)) % 4 == 0 else 0)
    vmw = 4 * (NS - 1) + ne
    z = zphase(Gn, p)
    def dma(i): return [f"s_add_u32 m0, s{sMR}, {p*SLOT + i*1040}", None, ldt(i), f"ds_read_u16 v{IX[i]}, v{vL1} offset:{loff(b+NS+1)+64*i}"]
    top = ["s_waitcnt vmcnt(8) lgkmcnt(0)", "s_barrier"] if b == 3 else ["s_waitcnt lgkmcnt(0)"]
    if G8 and OPT.get('sp', '2103') != '0': top.append(f"s_setprio {OPT.get('sp', '2103')[b]}")
    if G8 and OPT.get('bar2') and b == 1: top.insert(1, "s_barrier")
    seq = []
    seq.append([z[0], [], [f"v_mad_u32_u24 v{vSV}, v{vSV}, s{s80}, v{vHC}"]])
    seq.append([z[1], [f"ds_read_b128 {vr(SF,4)}, v{vSV}", f"ds_read_b128 {vr(SF+4,4)}, v{vSV} offset:32"], []])
    seq.append([z[2], [f"ds_read_u8 v{vSV}, v{vSA} offset:{loff(b+1)}"], []])
    seq.append([z[3], [f"s_sub_u32 s{sCNT}, s{sCNT}, 1", f"s_cbranch_scc1 TAIL{p}", f"ENT{b}:"], []])
    seq.append([m32(Gn, TF, SEL, None), [f"ds_read_b128 {vr(T0,4)}, v{MQ}"], [f"v_and_b32 v{IXE}, 0x7ffff, v{IXE}"] if b == 0 else []])
    seq.append([m32(Gn, TF+4, SEL+4, Gn), [f"ds_read_b128 {vr(T0+4,4)}, v{MQ+1}"], [f"v_xor_b32 v{vEA}, v{vEA}, v{vMT}"] if b == 3 else []])
    seq.append([m32(Gn, EF, WC, Gn), [f"ds_read_b128 {vr(EF,4)}, v{vEA} offset:{(b+1)%4*1024}", f"ds_read_u16 v{MQ}, v{vMA} offset:{b*8}",
                f"ds_read_u16 v{MQ+1}, v{vMA} offset:{b*8+2}"], []])
    seq.append([m32(Vn, TF+8, SEL, None), [f"ds_read_b32 v{IXE}, v{vL2}"] if b == 3 else [], []])
    seq.append([m32(Vn, TF+12, SEL+4, Vn), ["s_waitcnt lgkmcnt(S)"], []])
    seq.append([m32(Gn, SF, af, Gn), [f"s_waitcnt vmcnt({vmw})"], []])
    seq.append([m32(Gn, SF+4, af+4, Gn), [f"ds_read_b128 {vr(TF+4*j,4)}, v{vTA} offset:{(1-p)*SLOT+16*j}" for j in range(4)],
                [f"v_add_u32 v{r}, 0x200, v{r}" for r in (vSA, vL1, vL2)] + [f"v_add_u32 v{vMA}, 32, v{vMA}"] if b == 3 else []])
    dp = [int(c) for c in OPT.get('dp', '03589')]
    for i in range(4): seq[dp[i]][1] = seq[dp[i]][1] + dma(i)
    if b == 0: seq[dp[4]][1] = seq[dp[4]][1] + [f"s_mov_b32 m0, s{sME}", None, lde(), f"s_xor_b32 s{sME}, s{sME}, s{sMET}"]
    A = [] if peel else vstream(Gc, Vc)
    wt = [float(x) for x in OPT.get('wt', '1,1,1,1,1,1,1,1,1,1,1.6').split(',')]
    tot = sum(c for _, c in A); out = list(top); ai = 0; acc = 0; budget = 0
    for i, (m, ex, xv) in enumerate(seq):
        budget += tot * wt[i] / sum(wt)
        g = []
        while ai < len(A) and acc + A[ai][1] / 2 <= budget + 0.01:
            g.append(A[ai][0]); acc += A[ai][1]; ai += 1
        if i == 3 and not peel: HEAD[b] = ai
        if not (peel and i < 4): out.append(m)
        g = xv + g
        last = [x for x in ex if x and (x.startswith("s_waitcnt") or x.startswith("s_cbranch") or x.endswith(":") or x.startswith("s_sub"))]
        ex = [x for x in ex if x not in last]
        if peel: last = [x for x in last if x.startswith("s_waitcnt")]
        first = True
        for x in ex:
            if x is None:
                continue
            if not first and g: out.append(g.pop(0))
            elif not first and peel and x.startswith("buffer"): out.append("s_nop 0")
            out.append(x); first = False
        out += g + last
    assert ai == len(A)
    i0 = max(i for i, x in enumerate(out) if x.startswith(f"ds_read_b128 {vr(SF+4,4)}")); i1 = out.index("s_waitcnt lgkmcnt(S)")
    out[i1] = f"s_waitcnt lgkmcnt({sum(1 for x in out[i0+1:i1] if x.startswith('ds_'))})"
    for i, x in enumerate(out):
        if x.startswith("buffer_load"): assert not out[i-1].split()[1].startswith("m0"), (out[i-1], x)
    if OPT.get('fakec'):
        n2 = []
        for x in out:
            if x.startswith("v_mfma") and (f", {vr(SEL,4)}," in x or f", {vr(SEL+4,4)}," in x):
                j = (int(re.findall(r"v\[(\d+):", x)[1]) - TF)
                n2 += [f"v_lshlrev_b32 v{Vn+j+k}, 16, v{TF+j+k}" for k in range(4)]
            elif x == m32(Gn, EF, WC, Gn): n2.append(m32(Gn, EF, WC, TF))
            elif x.startswith("ds_read_b128") and f"v{vTA} " in x:
                j = int(re.findall(r"v\[(\d+):", x)[0]) - TF
                n2 += [f"ds_read2st64_b32 {vr(TF+j+2*k,2)}, v{vTC} offset0:{(1-p)*65+j+2*k} offset1:{(1-p)*65+j+2*k+1}" for k in range(2)]
            else: n2.append(x)
        out = n2
    if OPT.get('notrans'): out = [x.replace("v_exp_f32", "v_mov_b32").replace("v_rcp_f32", "v_mov_b32") for x in out]
    if OPT.get('noval'): out = ["s_nop 0" if (x.startswith("v_exp") or x.startswith("v_rcp")) else x for x in out if not (x.startswith("v_add_f32") or x.startswith("v_mul_f32") or x.startswith("v_cvt"))]
    if OPT.get('nodma'): out = [x for x in out if 'buffer_load' not in x]
    if OPT.get('noe'): out = [x for x in out if f"s[{sE}:{sE+3}]" not in x]
    return out

def emit(lst):
    for it in lst:
        if it.endswith(':'): lab(it[:-1])
        else: o(it)

def masks(tmp):
    a, b_, c = tmp
    o(f"v_and_b32 v{a}, 3, v0"); o(f"v_lshlrev_b32 v{a}, 1, v{a}"); o(f"v_mov_b32 v{c}, 0")
    for i in range(4):
        o(f"v_lshrrev_b32 v{b_}, 19, v{SEG+i}"); o(f"v_max_u32 v{c}, v{c}, v{b_}")
        o(f"v_min_u32 v{b_}, s{sLIM}, v{b_}"); o(f"v_sub_u32 v{b_}, v{b_}, v{a}")
        for j, k in ((0, 2*i), (1, 2*i+1), (8, 8+2*i), (9, 9+2*i)): o(f"v_cmp_lt_i32 s[{sK+2*k}:{sK+2*k+1}], {j}, v{b_}")
    o(f"v_cmp_lt_u32 vcc, s{sLIM}, v{c}")
    o(f"s_or_b64 s[{sSV}:{sSV+1}], s[{sK+16}:{sK+17}], s[{sK+20}:{sK+21}]"); o(f"s_or_b64 s[{sHM}:{sHM+1}], s[{sK+24}:{sK+25}], s[{sK+28}:{sK+29}]")
    o(f"s_or_b64 s[{sSV}:{sSV+1}], s[{sSV}:{sSV+1}], s[{sHM}:{sHM+1}]")
    o(f"v_mov_b32 v{b_}, {CNT-4}"); addg(b_)
    o("s_mov_b64 exec, vcc"); o(f"ds_write_b32 v{b_}, v{b_}"); o("s_mov_b64 exec, -1")

def interleave(mf, other, per):
    other = list(other)
    for m in mf:
        o(m)
        for _ in range(per):
            if other: o(other.pop(0))
    for x in other: o(x)
def capture(fn):
    n = len(L); fn(); r = [x.strip() for x in L[n:]]; del L[n:]; return r
def wload(dst, off):
    r = []
    for s in range(8):
        if s % 4 == 0: r.append(f"s_add_u32 s{sT0}, s{sWF}, {off + s*1024:#x}")
        r.append(f"buffer_load_dwordx4 {vr(dst+4*s,4)}, v{vWF}, s[{sW}:{sW+3}], s{sT0} offen offset:{(s%4)*1024}")
    return r
def xblk(base, pair):
    o(f"v_mov_b32 v{pair+1}, v{vXO}")
    for mt in range(2):
        for a in range(2):
            o(f"s_add_u32 m0, s{base}, {(2*mt+a)*1040}")
            o(f"v_cmp_gt_u32 vcc, {(NA if mt == 0 else RN-NA) - 2*a}, v{vXI}")
            o(f"s_add_u32 s{sT0}, s{sBASE}, {NA*mt + 2*a}"); o(f"v_add_u32 v{pair}, s{sT0}, v{vXI}")
            o(f"v_cndmask_b32 v{pair}, v{PT+3}, v{pair}, vcc")
            o(f"buffer_load_dwordx4 {vr(pair,2)}, s[{sX}:{sX+3}], 0 idxen offen lds")

def gen_k2():
    L.append(".globl gmain_kernel"); L.append(".p2align 8"); L.append(".type gmain_kernel,@function")
    lab("gmain_kernel"); VST[0] = 255
    t = [TF + i for i in range(28)]
    stamp(0)
    o("s_load_dwordx2 s[50:51], s[0:1], 88")
    o("s_load_dwordx4 s[4:7], s[0:1], 0")
    o("s_load_dwordx2 s[48:49], s[0:1], 72")
    o("s_setprio 3")
    o(f"v_lshrrev_b32 v{t[0]}, 6, v0")
    o("s_and_b32 s3, s2, 7"); o("s_lshl_b32 s3, s3, 6"); o(f"s_bfe_u32 s{sT0}, s2, 0x50003"); o(f"s_lshl1_add_u32 s3, s{sT0}, s3")
    o(f"v_readfirstlane_b32 s{sWAVE}, v{t[0]}")
    if G8:
        o("v_and_b32 v0, 0xff, v0"); o(f"s_lshr_b32 s{sT0}, s{sWAVE}, 2"); o(f"s_and_b32 s{sWAVE}, s{sWAVE}, 3"); o(f"s_mul_i32 s{sG}, s{sT0}, {GS}")
    else: o(f"s_lshr_b32 s{sT0}, s2, 8")
    o(f"s_add_u32 s3, s3, s{sT0}")
    o(f"s_cmp_ge_u32 s2, {256 if G8 else 512}"); o("s_cbranch_scc1 K2_END")
    o(f"s_cmp_ge_u32 s3, {NR}"); o("s_cbranch_scc1 K2_END")
    o(f"v_lshrrev_b32 v{t[1]}, 2, v0")
    o(f"s_lshr_b32 s{sS0}, s3, 2"); o(f"s_mul_i32 s{sS0}, s{sS0}, {OG}"); o(f"s_and_b32 s{sT0}, s3, 3"); o(f"s_lshl2_add_u32 s{sS0}, s{sT0}, s{sS0}"); o(f"s_add_u32 s{sS0}, s{sS0}, {WS_OFF:#x}")
    o(f"v_lshlrev_b32 v{t[1]}, 6, v{t[1]}")
    o(f"s_mul_i32 s{sBASE}, s3, {RN}")
    o(f"v_and_b32 v{vWF}, 63, v0"); o(f"v_lshlrev_b32 v{vWF}, 4, v{vWF}")
    o(f"s_mul_i32 s{sMR}, s{sWAVE}, {WS_}"); o(f"s_add_u32 s{sMR}, s{sMR}, {RING}"); saddg(sMR)
    o(f"s_lshl_b32 s{sWF}, s{sWAVE}, 13"); o(f"s_add_u32 s{sWF}, s{sWF}, {WS_WF:#x}")
    o(f"s_mov_b32 s40, {EPS:#x}"); o("s_mov_b32 s41, s40"); o(f"s_movk_i32 s{s80}, 80")
    o(f"s_mov_b32 s{sFIRST}, 1"); o(f"s_mov_b32 s{sLIM}, 16")
    o("s_cmp_ge_u32 s2, 256"); o(f"s_cselect_b32 s{sRS}, {OPT.get('bon', 0)}, 0")
    o("s_waitcnt lgkmcnt(0)"); xstamp("karg")
    srd(sW, 50, WS_SIZE)
    for i in range(4): o(f"buffer_load_dword v{SEG+i}, v{t[1]}, s[{sW}:{sW+3}], s{sS0} offen offset:{16*i}")
    srd(sX, 4, N, 256); srd(sE, 6, E, 32); srd(sO, 48, N, 256)
    o(f"s_add_u32 s50, s50, {WS_TAB:#x}"); o("s_addc_u32 s51, s51, 0")
    if SM: o(f"s_mul_i32 s{sT0}, s{sWAVE}, {SMS}"); o(f"s_add_u32 s50, s50, s{sT0}"); o("s_addc_u32 s51, s51, 0")
    srd(sT, 50, N, 128 if SM else 512)
    WAP = OPT.get('wap', 'p1'); XBP = OPT.get('xbp', 'p1'); ORD = ['start', 'rec', 'mask', 'p1', 'b1']
    def place(where):
        if where not in (WAP, XBP): return
        o(f"s_cmp_eq_u32 s{sFIRST}, 0"); o(f"s_cbranch_scc1 NOW_{where}")
        if XBP == where:
            o(f"s_add_u32 s{sNT}, s{sMR}, {NS*SLOT}")
            xblk(sNT, T0)
        if WAP == where:
            for x in wload(ACC, WF_A): o(x)
            o(f"s_lshl_b32 s{sT0}, s{sWAVE}, 10"); o(f"s_add_u32 s{sT0}, s{sT0}, {WS_WF+WF_C:#x}")
            o(f"buffer_load_dwordx4 {vr(WC,4)}, v{vWF}, s[{sW}:{sW+3}], s{sT0} offen")
        if OPT.get('otouch') and WAP == where:
            o(f"v_mov_b32 v{T0+6}, s{sBASE}"); o(f"buffer_load_dword v{SEL}, v{T0+6}, s[{sO}:{sO+3}], 0 idxen")
        lab(f"NOW_{where}")
    def cnt(lo, hi): return sum(n for p, n in ((WAP, 9), (XBP, 4)) if lo <= ORD.index(p) <= hi)
    SP = [int(x) for x in OPT.get('spf', '0,0').split(',')]
    def spref(n, first):
        for k in range(n): o(f"s_load_dword s{88 + k % 4}, s[46:47], {(first + k) * 32768:#x}")
    if sum(SP):
        o(f"s_and_b32 s{sT0}, s3, 63"); o(f"s_lshl2_add_u32 s{sT0}, s{sT0}, s{sWAVE}"); o(f"s_lshl_b32 s{sT0}, s{sT0}, 7")
        o(f"s_add_u32 s46, s50, s{sT0}"); o("s_addc_u32 s47, s51, 0")
        spref(SP[0], 0)
    lab("ROUND")
    b0, b2, b3, b4, vh = t[16:21]
    o(f"v_lshlrev_b32 v{t[11]}, 4, v0"); addg(t[11])
    for d in range(4): o(f"v_mov_b32 v{t[0]+d}, 0")
    for off in (0, ZSZ - 4096): o(f"ds_write_b128 v{t[11]}, {vr(t[0],4)} offset:{MB+off}")
    pad0 = 0xffff | (NA << 16)
    o(f"v_mov_b32 v{t[4]}, {pad0:#x}"); o(f"v_mov_b32 v{t[5]}, 0x7ffff"); o(f"v_mov_b32 v{t[6]}, {pad0:#x}"); o(f"v_mov_b32 v{t[7]}, 0x7ffff")
    o(f"ds_write_b128 v{t[11]}, {vr(t[4],4)} offset:{LIST}"); o(f"ds_write_b128 v{t[11]}, {vr(t[4],4)} offset:{LIST+4096}")
    o(f"v_and_b32 v{b0}, 1, v0"); o(f"v_bfe_u32 v{b2}, v0, 2, 1"); o(f"v_bfe_u32 v{b3}, v0, 3, 1"); o(f"v_bfe_u32 v{b4}, v0, 4, 1"); o(f"v_bfe_u32 v{vh}, v0, 5, 1")
    o(f"v_and_b32 v{t[8]}, 3, v0"); o(f"v_lshlrev_b32 v{t[8]}, 1, v{t[8]}")
    o(f"v_mov_b32 v{t[9]}, 0x7ffffff0"); o(f"s_mov_b32 s{sT1}, 0x7ffff")
    o(f"v_and_b32 v{t[12]}, 15, v0"); o(f"v_lshlrev_b32 v{t[13]}, 3, v{b4}")
    o(f"v_xor_b32 v{vXO}, v{t[12]}, v{t[13]}"); o(f"v_lshlrev_b32 v{vXO}, 4, v{vXO}")
    o(f"s_lshr_b32 s{sT0}, s{sWAVE}, 1"); o(f"s_lshl_b32 s{sT0}, s{sT0}, 4"); o(f"s_and_b32 s{sS0}, s{sWAVE}, 1"); o(f"s_lshl2_add_u32 s{sT0}, s{sS0}, s{sT0}")
    o(f"v_lshl_add_u32 v{vXI}, v{vh}, 3, v{b4}"); o(f"v_add_u32 v{vXI}, s{sT0}, v{vXI}")
    o(f"v_mov_b32 v{PT+3}, 0xffff")
    place('start')
    xstamp("consts_done")
    o(f"s_waitcnt vmcnt({cnt(0, 0)})"); stamp(1)
    for i in range(4):
        o(f"v_lshrrev_b32 v{t[4+i]}, 19, v{SEG+i}"); o(f"v_cmp_lt_u32 vcc, v{t[8]}, v{t[4+i]}")
        o(f"v_and_b32 v{t[i]}, s{sT1}, v{SEG+i}"); o(f"v_add_lshl_u32 v{t[i]}, v{t[i]}, v{t[8]}, 3")
        o(f"v_cndmask_b32 v{t[10]}, v{t[9]}, v{t[i]}, vcc")
        o(f"buffer_load_dwordx4 {vr(REC+4*i,4)}, v{t[10]}, s[{sW}:{sW+3}], 0 offen")
    o(f"v_max3_u32 v{t[10]}, v{t[4]}, v{t[5]}, v{t[6]}"); o(f"v_max_u32 v{t[10]}, v{t[10]}, v{t[7]}")
    o(f"v_cmp_lt_u32 vcc, 8, v{t[10]}"); o("s_cbranch_vccz REC_DONE")
    for i in range(4): o(f"buffer_load_dwordx4 {vr(REC+16+4*i,4)}, v{t[i]}, s[{sW}:{sW+3}], 0 offen offset:64")
    lab("REC_DONE")
    xstamp("rec_issued")
    PF = int(OPT.get('pf', 0))
    def pref():
        o(f"s_lshr_b32 s{sT0}, s3, 6"); o(f"s_mul_i32 s{sT0}, s{sT0}, {64*RN}"); o(f"s_and_b32 s{sT1}, s3, 63"); o(f"s_lshl_b32 s{sT1}, s{sT1}, 6"); o(f"s_add_u32 s{sT0}, s{sT0}, s{sT1}")
        o(f"v_lshrrev_b32 v{T0+2}, 2, v0"); o(f"v_add_u32 v{T0+2}, s{sT0}, v{T0+2}"); o(f"v_and_b32 v{T0+1}, 3, v0"); o(f"v_lshlrev_b32 v{T0+1}, 7, v{T0+1}")
        for k in range(PF):
            o(f"v_add_u32 v{T0+3}, {-512*RN}, v{T0+2}"); o(f"v_min_u32 v{T0}, v{T0+2}, v{T0+3}")
            o(f"buffer_load_dword v{SEL}, {vr(T0,2)}, s[{sT}:{sT+3}], 0 idxen offen")
            if k + 1 < PF: o(f"v_add_u32 v{T0+2}, 4096, v{T0+2}")
    PFW = OPT.get('pfw', 'rec')
    place('rec')
    if PF and PFW == 'rec': pref()
    o("s_waitcnt lgkmcnt(0)"); o("s_barrier"); stamp(2)
    spref(SP[1], SP[0])
    pp = t[14]
    o(f"v_and_b32 v{pp}, 0x13, v0"); o(f"v_lshl_or_b32 v{pp}, v{b2}, 3, v{pp}"); o(f"v_lshl_or_b32 v{pp}, v{b3}, 2, v{pp}")
    o(f"v_lshrrev_b32 v{t[12]}, 3, v{pp}"); o(f"v_lshlrev_b32 v{vTA}, 7, v{pp}"); o(f"v_lshl_add_u32 v{vTA}, v{t[12]}, 4, v{vTA}")
    o(f"v_bfe_u32 v{t[13]}, v0, 1, 1"); o(f"v_xor_b32 v{t[12]}, v{t[13]}, v{vh}"); o(f"v_lshl_add_u32 v{vTA}, v{t[12]}, 6, v{vTA}"); o(f"v_add_u32 v{vTA}, s{sMR}, v{vTA}")
    o(f"v_and_b32 v{t[12]}, 7, v0"); o(f"v_lshlrev_b32 v{t[15]}, 2, v{b4}"); o(f"v_xor_b32 v{t[15]}, v{t[15]}, v{t[12]}")
    o(f"s_mov_b32 s{sT0}, 0" if SM else f"s_lshl_b32 s{sT0}, s{sWAVE}, 7"); o(f"v_lshl_add_u32 v{IX[0]+1}, v{t[15]}, 4, s{sT0}")
    for i in range(1, 4): o(f"v_mov_b32 v{IX[i]+1}, v{IX[0]+1}")
    o(f"v_and_b32 v{vL1}, 0x38, v0"); o(f"v_add_u32 v{vL1}, {LIST}, v{vL1}"); addg(vL1)
    o(f"v_lshl_or_b32 v{t[15]}, v{b4}, 1, v{b2}"); o(f"v_mul_u32_u24 v{t[15]}, {WS_}, v{t[15]}"); o(f"v_mul_u32_u24 v{t[13]}, 1040, v{t[13]}")
    o(f"v_lshl_or_b32 v{t[21]}, v{b3}, 1, v{b0}"); o(f"v_lshl_add_u32 v{t[15]}, v{t[21]}, 8, v{t[15]}"); o(f"v_add3_u32 v{t[15]}, v{t[15]}, v{t[13]}, {'s%d' % sG if G8 else 0}")
    o(f"v_add_u32 v{t[15]}, {RING + NS*SLOT}, v{t[15]}")
    o(f"v_xor_b32 v{t[13]}, v{vh}, v{b0}"); o(f"v_lshl_add_u32 v{vXA}, v{t[13]}, 7, v{t[15]}")
    o(f"v_lshlrev_b32 v{IXE+1}, 4, v{t[13]}")
    o(f"v_bfe_u32 v{t[13]}, v0, 7, 1"); o(f"v_xor_b32 v{t[13]}, v{t[13]}, v{b0}"); o(f"v_lshl_add_u32 v{vXR}, v{t[13]}, 7, v{t[15]}")
    o(f"v_and_b32 v{t[13]}, 0x60, v0"); o(f"v_add_u32 v{vXR}, v{vXR}, v{t[13]}")
    o(f"s_lshl_b32 s{sT0}, s{sS0}, 12"); o(f"s_lshr_b32 s{sT1}, s{sWAVE}, 1"); o(f"s_lshl_b32 s{sT1}, s{sT1}, 8"); o(f"s_add_u32 s{sT0}, s{sT0}, s{sT1}"); o(f"s_add_u32 s{sT0}, s{sT0}, {LIST+4}"); saddg(sT0)
    o(f"v_bfe_u32 v{vL2}, v0, 1, 5"); o(f"v_lshl_add_u32 v{vL2}, v{vL2}, 3, s{sT0}")
    o(f"s_lshl_b32 s{sME}, s{sWAVE}, 10"); o(f"s_add_u32 s{sME}, s{sME}, {ER}"); saddg(sME)
    o(f"v_lshlrev_b32 v{vSA}, 3, v{pp}"); o(f"v_add_u32 v{vSA}, {LIST+2}, v{vSA}"); addg(vSA)
    o(f"v_lshlrev_b32 v{vHC}, 4, v{vh}"); o(f"v_add_u32 v{vHC}, {IDT}, v{vHC}")
    o(f"v_xor_b32 v{vEA}, v{b4}, v{vh}"); o(f"v_lshlrev_b32 v{vEA}, 4, v{vEA}")
    o(f"v_lshl_add_u32 v{vEA}, v{pp}, 5, v{vEA}"); o(f"v_add_u32 v{vEA}, {ER}, v{vEA}"); addg(vEA)
    o(f"v_add_u32 v{vMT}, 4096, v{vEA}"); o(f"v_xor_b32 v{vMT}, v{vMT}, v{vEA}")
    o(f"v_and_b32 v{t[13]}, 31, v0"); o(f"v_min_u32 v{t[13]}, {NA}, v{t[13]}")
    o(f"v_mul_u32_u24 v{vMA}, {ROW}, v{t[13]}"); o(f"v_lshl_add_u32 v{vMA}, v{vh}, 2, v{vMA}"); o(f"v_add_u32 v{vMA}, {MB}, v{vMA}"); addg(vMA)
    o(f"v_lshrrev_b32 v{PT+2}, 5, v0"); o(f"v_lshlrev_b32 v{PT+2}, 4, v{PT+2}"); o(f"v_lshl_add_u32 v{PT+2}, v{b3}, 2, v{PT+2}"); addg(PT+2)
    o(f"v_lshl_add_u32 v{t[12]}, v{b4}, 4, v{t[12]}"); o(f"v_lshlrev_b32 v{PT+1}, v{t[12]}, 16")
    o(f"v_and_b32 v{t[12]}, 3, v0"); o(f"v_lshl_add_u32 v{t[12]}, v{b4}, 2, v{t[12]}"); o(f"v_lshlrev_b32 v{t[12]}, v{t[12]}, 16")
    o(f"v_cmp_eq_u32 vcc, v{b3}, v{vh}"); o(f"v_lshlrev_b32 v{t[13]}, 4, v{b2}"); o("s_nop 0")
    o(f"v_cndmask_b32 v{t[12]}, 0, v{t[12]}, vcc"); o(f"v_lshlrev_b32 v{PT}, v{t[13]}, v{t[12]}")
    place('mask')
    if cnt(1, 2):
        o(f"s_cmp_eq_u32 s{sFIRST}, 1"); o("s_cbranch_scc1 REMASK"); o("s_waitcnt vmcnt(0)")
    lab("REMASK")
    masks((t[0], t[1], t[2])); xstamp("masks_done")
    a, b_, c, d_ = t[0:4]; ad = [AD + k for k in range(16)]
    o(f"v_mov_b32 v{a}, 8")
    o(f"v_lshrrev_b32 v{b_}, 2, v{vWF}"); addg(b_)
    if G8: o(f"s_lshr_b32 s{sDS}, s{sG}, 8")
    if PF and PFW == 'mask': pref()
    o(f"s_waitcnt vmcnt({cnt(1, 2)})"); xstamp("rec_landed")
    for half in range(2):
        if half: o(f"s_cmp_eq_u64 s[{sSV}:{sSV+1}], 0"); o("s_cbranch_scc1 P1_DONE"); o("s_mov_b64 exec, -1")
        for k in range(8*half, 8*half+8): o(f"v_alignbit_b32 v{ad[k]}, s{sDS}, v{REC+2*k+1}, 24" if G8 else f"v_lshrrev_b32 v{ad[k]}, 24, v{REC+2*k+1}")
        for k in range(8*half, 8*half+8):
            o(f"s_mov_b64 exec, s[{sK+2*k}:{sK+2*k+1}]")
            o(f"ds_add_rtn_u32 v{RANK+k}, v{ad[k]}, v{a} offset:{CNT}")
    lab("P1_DONE")
    o("s_mov_b64 exec, -1")
    EP = OPT.get('ep', '')
    def epf():
        o(f"s_mov_b32 s{sT1}, {int(OPT.get('epm', '0x7007ffff'), 0):#x}")
        for k in range(8):
            o(f"v_and_b32 v{T0+k}, s{sT1}, v{REC+2*k+1}"); o(f"buffer_load_dword v{SEL}, v{T0+k}, s[{sE}:{sE+3}], 0 idxen")
    if EP == 'a': epf()
    place('p1')
    if EP == 'b': epf()
    if PF and PFW == 'p1': pref()
    o("s_waitcnt lgkmcnt(0)"); xstamp("p1_done"); o("s_barrier"); xstamp("b1")
    o(f"ds_read_b32 v{c}, v{b_} offset:{CNT}")
    o(f"ds_read_b32 v{t[4]}, v{b_} offset:{CNT-4}")
    place('b1')
    o(f"v_lshlrev_b32 v{t[5]}, 12, v{vh}"); addg(t[5])
    o("s_waitcnt lgkmcnt(1)")
    o(f"v_sub_u32 v{d_}, v{t[5]}, v{c}")
    for dd in ("row_shr:1", "row_shr:2", "row_shr:4", "row_shr:8"):
        o(f"v_add_u32_dpp v{c}, v{c}, v{c} {dd} row_mask:0xf bank_mask:0xf bound_ctrl:0"); o("s_nop 1")
    o(f"v_add_u32_dpp v{c}, v{c}, v{c} row_bcast:15 row_mask:0xa bank_mask:0xf")
    o(f"v_add_u32 v{d_}, v{c}, v{d_}")
    o(f"ds_write_b32 v{b_}, v{d_} offset:{NB}")
    o(f"v_readlane_b32 s{sNT}, v{c}, 31"); o(f"v_readlane_b32 s{sCNT}, v{c}, 63")
    for k in range(8): o(f"ds_read_b32 v{ad[k]}, v{ad[k]} offset:{NB}")
    o(f"s_max_u32 s{sT0}, s{sNT}, s{sCNT}")
    o(f"s_cmp_le_u32 s{sT0}, 4096"); o("s_cbranch_scc0 TOOBIG")
    xstamp("scan_done")
    for half in range(2):
        if half:
            o(f"s_cmp_eq_u64 s[{sSV}:{sSV+1}], 0"); o("s_cbranch_scc1 P2_DONE"); o("s_mov_b64 exec, -1")
            for k in range(8, 16): o(f"ds_read_b32 v{ad[k]}, v{ad[k]} offset:{NB}")
        for k in range(8*half, 8*half+8):
            if k % 4 == 0: o(f"s_waitcnt lgkmcnt({4 - k % 8})")
            o(f"v_add_u32 v{RANK+k}, v{RANK+k}, v{ad[k]}")
        for k in range(8*half, 8*half+8):
            o(f"s_mov_b64 exec, s[{sK+2*k}:{sK+2*k+1}]")
            o(f"ds_write_b64 v{RANK+k}, {vr(REC+2*k,2)} offset:{LIST}")
    lab("P2_DONE")
    o("s_mov_b64 exec, -1")
    o(f"v_readlane_b32 s{sMORE}, v{t[4]}, 0")
    o(f"s_mov_b32 m0, s{sME}")
    o(f"s_waitcnt vmcnt({9 + (8 if EP == 'b' else 0) if ORD.index(WAP) >= ORD.index(XBP) else 0}) lgkmcnt(0)"); xstamp("p2_done"); o("s_barrier"); stamp(5)
    f = t
    def rdidx(u):
        for i in range(4): o(f"ds_read_u16 v{IX[i]}, v{vL1} offset:{loff(u)+64*i}")
    def fill(u, nxt):
        for i in range(4):
            o(f"s_add_u32 m0, s{sMR}, {u*SLOT + i*1040}"); o(f"s_waitcnt lgkmcnt(3)"); o(ldt(i))
            o(f"ds_read_u16 v{IX[i]}, v{vL1} offset:{loff(nxt)+64*i}")
    o(f"ds_read_b32 v{IXE}, v{vL2}"); rdidx(0)
    o(f"v_lshlrev_b32 v{f[9]}, 3, v0"); addg(f[9])
    o("s_waitcnt lgkmcnt(4)")
    o(f"v_and_b32 v{IXE}, 0x7ffff, v{IXE}"); o(lde())
    NFO = int(OPT.get('nfo', 2)); NFY = int(OPT.get('nfy', 2))
    def fills(lo_o, hi_o, lo_y, hi_y, tag, wait):
        if (lo_o, hi_o) == (lo_y, hi_y):
            for u in range(lo_o, hi_o): fill(u, u + 1)
            return
        o("s_cmp_ge_u32 s2, 256"); o(f"s_cbranch_scc1 {tag}_Y")
        for u in range(lo_o, hi_o): fill(u, u + 1)
        if wait: o(f"s_waitcnt vmcnt({2+4*hi_o})")
        o(f"s_branch {tag}_D")
        lab(f"{tag}_Y")
        for u in range(lo_y, hi_y): fill(u, u + 1)
        if wait: o(f"s_waitcnt vmcnt({2+4*hi_y})")
        lab(f"{tag}_D")
    fills(0, NFO, 0, NFY, "FA", True)
    for k in range(4): o(f"ds_read_u8 v{f[12+k]}, v{f[9]} offset:{LIST+2+k*2048}")
    o(f"ds_read_b32 v{IXE}, v{vL2} offset:512"); o(f"ds_read_u8 v{vSV}, v{vSA}")
    xstamp("fill_issued")
    def ctrl():
        o(f"s_movk_i32 s{sS0}, {ROW}")
        for k in range(4):
            o(f"v_cmp_gt_u32 vcc, {NA}, v{f[12+k]}"); o(f"v_mad_u32_u24 v{f[0]}, v{f[12+k]}, s{sS0}, v{PT+2}"); o("s_nop 0")
            o(f"v_cndmask_b32 v{f[1]}, 0, v{PT+1}, vcc")
            o(f"ds_or_b32 v{f[0]}, v{f[1]} offset:{MB + (k&1)*128 + (k>>1)*8}")
        o(f"s_add_u32 s{sNT}, s{sNT}, 255"); o(f"s_lshr_b32 s{sNT}, s{sNT}, 8"); o(f"s_lshl1_add_u32 s{sNT}, s{sNT}, -1")
        o(f"s_add_u32 s{sCNT}, s{sCNT}, 255"); o(f"s_lshr_b32 s{sCNT}, s{sCNT}, 8"); o(f"s_lshl_b32 s{sCNT}, s{sCNT}, 1")
        o(f"s_max_i32 s{sNT}, s{sNT}, s{sCNT}"); o(f"s_max_i32 s{sNT}, s{sNT}, 2"); o(f"s_sub_u32 s{sCNT}, s{sNT}, 2")
        o(f"s_add_u32 s{sMET}, s{sME}, 4096"); o(f"s_xor_b32 s{sMET}, s{sMET}, s{sME}"); o(f"s_add_u32 s{sME}, s{sME}, 4096")
        o(f"v_add_u32 v{vL2}, 0x400, v{vL2}")
    def lut():
        q = T0
        for d in range(4):
            o(f"v_bfe_u32 v{q+d}, v0, {2*d}, 2"); o(f"v_mul_u32_u24 v{q+d}, 0x8001, v{q+d}")
            o(f"v_and_b32 v{q+d}, 0x10001, v{q+d}"); o(f"v_mul_u32_u24 v{q+d}, 0x3f80, v{q+d}")
        o(f"v_lshlrev_b32 v{q+4}, 4, v0"); o(f"ds_write_b128 v{q+4}, {vr(q,4)} offset:{LUT}")
        o(f"v_lshrrev_b32 v{q}, 3, v0"); o(f"v_and_b32 v{q+1}, 7, v0")
        o(f"v_bfe_u32 v{q+2}, v0, 5, 1"); o(f"v_bfe_u32 v{q+3}, v0, 6, 1"); o(f"v_lshl_or_b32 v{q+2}, v{q+2}, 1, v{q+3}")
        o(f"v_lshrrev_b32 v{q+3}, 7, v0"); o(f"v_lshl_or_b32 v{q+2}, v{q+3}, 2, v{q+2}")
        o(f"v_cmp_eq_u32 vcc, v{q+2}, v{q+1}"); o(f"v_cmp_gt_u32 s[{sHM}:{sHM+1}], {NA}, v{q}"); o(f"v_mov_b32 v{q+6}, 0x3f80"); o(f"v_mov_b32 v{q+7}, 0")
        o(f"s_and_b64 vcc, vcc, s[{sHM}:{sHM+1}]")
        o(f"v_and_b32 v{q+2}, 3, v{q}"); o(f"v_lshlrev_b32 v{q+2}, 4, v{q+2}"); o(f"v_cndmask_b32 v{q+6}, 0, v{q+6}, vcc")
        o(f"v_lshlrev_b64 {vr(q+6,2)}, v{q+2}, {vr(q+6,2)}")
        o(f"v_min_u32 v{q}, {NA}, v{q}"); o(f"v_mul_u32_u24 v{q}, 80, v{q}"); o(f"v_lshl_add_u32 v{q}, v{q+1}, 3, v{q}")
        o(f"ds_write_b64 v{q}, {vr(q+6,2)} offset:{IDT}")
    o(f"s_cmp_eq_u32 s{sFIRST}, 1"); o("s_cbranch_scc1 G1")
    o("s_waitcnt lgkmcnt(0)")
    ctrl()
    o("s_branch G1D")
    lab("G1")
    for mt in range(2):
        for s in range(8): o(f"ds_read_b128 {vr(GV+32*mt+4*s,4)}, v{vXA} offset:{mt*2080 + 16*s}")
        if mt == 0: o("s_waitcnt lgkmcnt(8)")
    lt = capture(lut); ct = capture(ctrl)
    for x in lt[:18]: o(x)
    o(f"s_waitcnt vmcnt({4*max(NFO, NFY)+2+(8 if EP == 'b' else 0)}) lgkmcnt(9)")
    acc = [ACC + 32, ACC + 48]
    interleave([m32(acc[0], GV+4*s, ACC+4*s, None if s == 0 else acc[0]) for s in range(8)], lt[18:] + ct[:16], 5)
    o("s_waitcnt lgkmcnt(5)")
    def cv(mt): return [f"v_cvt_pk_bf16_f32 v{AF+8*mt+r//2}, v{acc[mt]+r}, v{acc[mt]+r+1}" for r in range(0, 16, 2)]
    interleave([m32(acc[1], GV+32+4*s, ACC+4*s, None if s == 0 else acc[1]) for s in range(8)],
               ct[16:] + cv(0) + [f"v_mov_b64 {vr(acc[0]+r,2)}, s[40:41]" for r in range(0, 16, 2)], 5)
    for r in range(0, 32, 2): o(f"v_mov_b64 {vr(ACC+r,2)}, {'s[40:41]' if r < 16 else 0}")
    for x in cv(1): o(x)
    for r in range(0, 16, 2): o(f"v_mov_b64 {vr(acc[1]+r,2)}, 0")
    if STAMP:
        o("s_getreg_b32 s94, hwreg(HW_REG_HW_ID)"); o("s_getreg_b32 s100, hwreg(HW_REG_XCC_ID)"); o("s_and_b32 s94, s94, 0xffff"); o("s_lshl_b32 s100, s100, 16"); o("s_or_b32 s94, s94, s100"); o(f"v_writelane_b32 v{VST[0]}, s94, 3")
    lab("G1D")
    o(f"v_and_b32 v{MQ}, 0xffff, v{PT}"); o(f"v_lshrrev_b32 v{MQ+1}, 16, v{PT}")
    xstamp("g1_done"); stamp(4)
    fills(NFO, NS, NFY, NS, "FB", False)
    o(f"s_waitcnt vmcnt({4*(NS-1)}) lgkmcnt(0)"); xstamp("t0_landed"); o("s_barrier")
    o(f"ds_read_b128 {vr(SEL,4)}, v{MQ}"); o(f"ds_read_b128 {vr(SEL+4,4)}, v{MQ+1}")
    o(f"ds_read_b128 {vr(EF,4)}, v{vEA}")
    for j in range(4): o(f"ds_read_b128 {vr(TF+4*j,4)}, v{vTA} offset:{16*j}")
    o(f"s_setprio {OPT.get('lp', 2)}")
    if OPT.get('young'):
        o("s_cmp_lt_u32 s2, 256"); o("s_cbranch_scc1 OLD"); o(f"s_setprio {OPT['young']}"); lab("OLD")
    if OPT.get('fakec'): o(f"v_lshrrev_b32 v{vTC}, 2, v{vWF}"); o(f"v_add_u32 v{vTC}, s{sMR}, v{vTC}")
    stamp(6); stamp(8, "s_memtime")
    bodies = [body(b) for b in range(4)]
    if not OPT.get('noval') and not OPT.get('fakec'): check_hazards(sum(bodies, []) + ["s_branch LOOP"])
    emit(body(0, peel=True))
    b1 = bodies[1][:bodies[1].index("ENT1:")]
    o("s_nop 7")
    emit([x for x in b1 if not x.startswith(("v_mfma", "s_sub", "s_cbranch"))])
    o("s_branch ENT1")
    lab("TOOBIG")
    o(f"s_mov_b32 s{sLIM}, {LOWLIM}"); o(f"v_mov_b32 v{a}, 0")
    o("s_waitcnt lgkmcnt(0)"); o("s_barrier")
    o(f"ds_write_b32 v{b_}, v{a} offset:{CNT}")
    o("s_waitcnt lgkmcnt(0)"); o("s_barrier")
    o("s_branch REMASK")
    lab("LOOP")
    emit(sum(bodies, []))
    if OPT.get('pp', '99,8,4') != '0' and not G8:
        th = [int(x) for x in OPT.get('pp', '99,8,4').split(',')]
        o(f"s_add_u32 s{sT0}, s{sCNT}, s{sRS}")
        for k, v in enumerate(th):
            if v < 99: o(f"s_cmp_lt_u32 s{sT0}, {v}"); o("s_cbranch_scc0 LOOP"); o(f"s_setprio {2-k}")
    o("s_branch LOOP")
    assert len(set(HEAD.values())) == 1
    WU = TF; x = AF
    def fin(p):
        d = ACC + 32 * p; r = []
        for k in range(16): r.append(f"v_rcp_f32 v{d+k}, v{d+k}")
        for k in range(16): r.append(f"v_mul_f32 v{d+16+k}, v{d+k}, v{d+16+k}")
        return r
    def unp(p): return sum(([f"v_lshlrev_b32 v{ACC+32*p+2*k}, 16, v{x+8*p+k}", f"v_and_b32 v{ACC+32*p+2*k+1}, s{sT1}, v{x+8*p+k}"] for k in range(8)), [])
    def post(p):
        r = []
        for k in range(8):
            z = ACC + 32*p + 16 + 2*k
            r += [f"v_max_f32 v{z}, 0, v{z}", f"v_max_f32 v{z+1}, 0, v{z+1}", f"v_add_f32 v{z}, v{z}, v{z-16}", f"v_add_f32 v{z+1}, v{z+1}, v{z-15}",
                  f"v_cvt_pk_bf16_f32 v{x+8*p+k}, v{z}, v{z+1}"]
        return r
    def st(p): return [f"s_mov_b64 exec, {((1 << (NA - p)) - 1):#x}", f"s_mov_b32 exec_hi, exec_lo"] + \
        [f"buffer_store_dwordx4 {vr(x+8*p+4*k,4)}, {vr(IX[p],2)}, s[{sO}:{sO+3}], 0 idxen offen offset:{16*k} {OPT.get('outpol', '').replace('+', ' ')}" for k in range(2)] + ["s_mov_b64 exec, -1"]
    assert RN - NA == NA - 1
    CO = int(OPT.get('co', 0))
    if CO:
        def st(p): return [f"s_mov_b64 exec, {((1 << (NA - p)) - 1):#x}", f"s_mov_b32 exec_hi, exec_lo"] + \
            [f"ds_write_b128 v{IX[2]}, {vr(x+8*p+4*k,4)} offset:{RING + p*NA*272 + 16*k}" for k in range(2)] + ["s_mov_b64 exec, -1"]
    for p in (1, 0):
        q = 1 - p; Gc = GV + 32 * q
        lab(f"TAIL{p}")
        stamp(7); stamp(11, "s_memtime")
        if STAMP: o(f"v_writelane_b32 v{VST[0]}, s{sNT}, 12")
        o(f"ds_read_b128 {vr(T0,4)}, v{MQ}"); o(f"ds_read_b128 {vr(T0+4,4)}, v{MQ+1}")
        o(f"s_cmp_lg_u32 s{sMORE}, 0"); o(f"s_cbranch_scc1 TAILM{p}")
        o("s_waitcnt lgkmcnt(0)")
        for ins in wload(WU, WF_U): o(ins)
        for s in range(8): o(f"ds_read_b128 {vr(GV+32*p+4*s,4)}, v{vXA} offset:{p*2080+16*s}")
        for mt in range(2):
            for k in range(2): o(f"ds_read_b128 {vr(x+8*mt+4*k,4)}, v{vXR} offset:{mt*2080+16*k}")
        o(f"v_and_b32 v{IX[0]}, 31, v0"); o(f"v_and_b32 v{IX[0]+1}, 0xe0, v0"); o(f"v_add_u32 v{IX[0]}, s{sBASE}, v{IX[0]}")
        o(f"v_add_u32 v{IX[1]}, {NA}, v{IX[0]}"); o(f"v_mov_b32 v{IX[1]+1}, v{IX[0]+1}")
        if CO:
            o(f"v_and_b32 v{IX[2]}, 31, v0"); o(f"v_mul_u32_u24 v{IX[2]}, 272, v{IX[2]}"); o(f"v_add_u32 v{IX[2]}, v{IX[2]}, v{IX[0]+1}")
            o(f"v_lshrrev_b32 v{IX[0]}, 4, v0"); o(f"v_and_b32 v{IX[0]+1}, 0xf0, v{vWF}")
            o(f"v_mul_u32_u24 v{IX[3]}, 272, v{IX[0]}"); o(f"v_add_u32 v{IX[3]}, v{IX[3]}, v{IX[0]+1}"); o(f"v_add_u32 v{IX[0]}, s{sBASE}, v{IX[0]}")
        o(f"s_mov_b32 s{sT1}, 0xffff0000")
        vs = [i for i, _ in vstream(Gc, Gc + 16)[HEAD[0]:]]
        for ins in vs: o(ins)
        o("s_nop 0")
        interleave(zphase(Gc, q), fin(p), 4)
        for s in range(8): o(f"ds_read_b128 {vr(Gc+4*s,4)}, v{vXA} offset:{q*2080+16*s}")
        o("s_waitcnt vmcnt(0) lgkmcnt(8)")
        interleave([m32(ACC+32*p+16, WU+4*s, GV+32*p+4*s, ACC+32*p+16) for s in range(8)], fin(q), 4)
        o("s_waitcnt lgkmcnt(0)"); o("s_barrier" if CO else "s_nop 0")
        interleave([m32(ACC+32*q+16, WU+4*s, Gc+4*s, ACC+32*q+16) for s in range(8)], unp(p) + post(p) + unp(q), 7)
        for ins in st(p) + post(q) + st(q): o(ins)
        if p == 1: o("s_branch K2_FIN")
    lab("K2_FIN")
    if CO:
        o("v_cmp_gt_u32 vcc, 16, v0")
        o("s_waitcnt lgkmcnt(0)"); o("s_barrier")
        for k in range(4): o(f"ds_read_b128 {vr(GV+4*k,4)}, v{IX[3]} offset:{RING + k*16*272}")
        for k in range(4):
            if k == 3: o(f"s_and_saveexec_b64 s[{sSV}:{sSV+1}], vcc"); o("s_cbranch_execz K2_OUT")
            o(f"s_waitcnt lgkmcnt({3-k})")
            o(f"buffer_store_dwordx4 {vr(GV+4*k,4)}, {vr(IX[0],2)}, s[{sO}:{sO+3}], 0 idxen offen {OPT.get('outpol', '').replace('+', ' ')}")
            if k < 3: o(f"v_add_u32 v{IX[0]}, 16, v{IX[0]}")
        lab("K2_OUT")
    stamp_out(9, GV+32, sW, 1)
    lab("K2_END")
    o("s_endpgm")
    for p in (1, 0):
        Gc = GV + 32 * (1 - p)
        lab(f"TAILM{p}")
        for ins, _ in vstream(Gc, Gc + 16)[HEAD[0]:]: o(ins)
        o("s_waitcnt lgkmcnt(0)")
        for m in zphase(Gc, 1 - p): o(m)
        if p == 1: o("s_branch NEXTROUND")
    lab("NEXTROUND")
    for i in range(4):
        o(f"v_lshrrev_b32 v{vTC}, 19, v{SEG+i}"); o(f"v_min_u32 v{vTC}, s{sLIM}, v{vTC}")
        o(f"v_add_u32 v{SEG+i}, v{SEG+i}, v{vTC}"); o(f"v_lshlrev_b32 v{vTC}, 19, v{vTC}"); o(f"v_sub_u32 v{SEG+i}, v{SEG+i}, v{vTC}")
    o(f"s_mov_b32 s{sFIRST}, 0"); o(f"s_mov_b32 s{sLIM}, 16")
    o("s_waitcnt vmcnt(0) lgkmcnt(0)"); o("s_barrier")
    o("s_branch ROUND")

def kd(name, nv, ns):
    L.append(".p2align 6")
    L.append(f".amdhsa_kernel {name}")
    for k, v in (("next_free_vgpr", nv), ("next_free_sgpr", ns), ("accum_offset", (nv + 3) // 4 * 4), ("group_segment_fixed_size", 0),
                 ("kernarg_size", 96), ("user_sgpr_count", 2), ("user_sgpr_kernarg_segment_ptr", 1), ("system_sgpr_workgroup_id_x", 1),
                 ("float_denorm_mode_32", 3)):
        L.append(f"  .amdhsa_{k} {v}")
    L.append(".end_amdhsa_kernel")

hdr = [l for l in open(f"cdna_kernels/{NAME}.s.ref").read().splitlines() if l.startswith(";") and "@launch" not in l
       and "Override launch" not in l and "grid=ceil" not in l]
L += hdr
L.append(f"; @launch kernel=gsort_kernel grid=({K1_GRID},1,1) block=(512,1,1) lds={K1_LDS}")
L.append(f"; @launch kernel=gmain_kernel grid=(256,1,1) block=(512,1,1) lds={NB+2*GS}" if G8 else f"; @launch kernel=gmain_kernel grid=(512,1,1) block=(256,1,1) lds={K2_LDS}")
L.append('.amdgcn_target "amdgcn-amd-amdhsa--gfx950"'); L.append(".text")
(gen_k1a if OPT.get('k1') == 'a' else gen_k1)(); gen_k2()
lab("CODE_END")
L.append('.section .rodata,"a"')
kd("gsort_kernel", 256 if STAMP else 252, 102 if STAMP else 80); kd("gmain_kernel", 256 if STAMP else NVGPR, 102)
if STAMP: L.append("; STAMPS " + repr(NAMES))
open(sys.argv[1], "w").write("\n".join(L) + "\n")
print("vgprs", NVGPR, "lds", K2_LDS, "lines", len(L), file=sys.stderr)
```

```python
import sys, struct, re

N = 25000; E = 400000; RN = 49; NR = 511; CH = 1600; NCH = 250
WS_REC = 0; WS_OFF = 0x310000; OROW = 1152; WS_WF = 0x3c0000; WS_TAB = 0x400000; WS_SIZE = 0x4000000
WF_A = 0; WF_U = 0x8000; WF_C = 0x10000; NA = 25
NLOG2E = struct.unpack('<I', struct.pack('<f', -1.4426950408889634))[0]
EPS = struct.unpack('<I', struct.pack('<f', 1e-6))[0]
NAME = "standalone__edge_featured_mpnn_gatedgcn__graph"
OPT = dict(k1='a', tabpol='sc1', recpol='sc1', touch='0', tsh='19', outpol='nt', bon='4', lp='3', pp='23,15,7')
OPT.update(a.split('=') for a in sys.argv[2:])
STAMP = int(OPT.get('stamp', 0))
WS_TAB = int(OPT.get('tab', hex(WS_TAB)), 0)
WS_STAMP = 0x3800000
L = []
def o(s): L.append("    " + s)
def lab(s): L.append(s + ":")
def vr(b, n): return f"v[{b}:{b+n-1}]"
VST = [60]
NAMES = {}
def stamp(i, ins="s_memrealtime", name=None):
    if STAMP:
        o(f"{ins} s[100:101]"); o("s_waitcnt lgkmcnt(0)"); o(f"v_writelane_b32 v{VST[0]}, s100, {i}")
def xstamp(name):
    if STAMP:
        NAMES[name] = 16 + len(NAMES); stamp(NAMES[name])
def stamp_out(n, reg, srdn, kern):
    if not STAMP: return
    o("s_mov_b64 exec, -1")
    stamp(n)
    o(f"v_lshlrev_b32 v{reg}, 2, v0")
    if kern and int(OPT.get('g8', 0)): o("s_and_b32 s63, s3, 1"); o("s_lshl_b32 s63, s63, 8"); o("s_add_u32 s2, s2, s63")
    o(f"s_lshl_b32 s63, s2, 11"); o(f"s_add_u32 s63, s63, {WS_STAMP + kern*0x100000:#x}")
    o(f"buffer_store_dword v{VST[0]}, v{reg}, s[{srdn}:{srdn+3}], s63 offen")
def srd(d, lo, size, stride=0):
    o(f"s_mov_b32 s{d}, s{lo}"); o(f"s_and_b32 s{d+1}, s{lo+1}, 0xffff")
    if stride: o(f"s_or_b32 s{d+1}, s{d+1}, {stride << 16:#x}")
    o(f"s_mov_b32 s{d+2}, {size:#x}"); o(f"s_mov_b32 s{d+3}, 0x20000")
def scan64(v):
    for d in ("row_shr:1", "row_shr:2", "row_shr:4", "row_shr:8"):
        o("s_nop 1"); o(f"v_add_u32_dpp v{v}, v{v}, v{v} {d} row_mask:0xf bank_mask:0xf bound_ctrl:0")
    o("s_nop 1"); o(f"v_add_u32_dpp v{v}, v{v}, v{v} row_bcast:15 row_mask:0xa bank_mask:0xf")
    o("s_nop 1"); o(f"v_add_u32_dpp v{v}, v{v}, v{v} row_bcast:31 row_mask:0xc bank_mask:0xf")

def m32(d, a, b, c): return f"v_mfma_f32_32x32x16_bf16 {vr(d,16)}, {vr(a,4)}, {vr(b,4)}, " + ("0" if c is None else vr(c,16))
K1_GRID = 256
OG = 4224
K1_W = 16896; K1_X = K1_W + 65536; K1_S = K1_X + 4 * 8320; K1_LDS = K1_S + 8 * 4608
def gen_k1():
    L.append(".globl gsort_kernel"); L.append(".p2align 8"); L.append(".type gsort_kernel,@function")
    lab("gsort_kernel"); VST[0] = 255
    pol = OPT.get('tabpol', '').replace('+', ' '); rpol = OPT.get('recpol', '').replace('+', ' ')
    stamp(0)
    o("s_load_dwordx8 s[4:11], s[0:1], 0")
    o("s_load_dwordx8 s[40:47], s[0:1], 32")
    o("s_load_dwordx2 s[48:49], s[0:1], 64")
    o("s_load_dwordx2 s[12:13], s[0:1], 88")
    o(f"s_cmp_ge_u32 s2, {K1_GRID}"); o("s_cbranch_scc1 K1_END")
    o("v_lshrrev_b32 v2, 6, v0"); o("v_lshlrev_b32 v1, 2, v0")
    o("s_and_b32 s36, s2, 7"); o("s_lshl_b32 s36, s36, 5"); o("s_lshr_b32 s35, s2, 3"); o("s_add_u32 s36, s36, s35")
    o("v_readfirstlane_b32 s33, v2")
    o("v_mov_b32 v2, 0"); o("ds_write_b32 v1, v2")
    o(f"s_mul_i32 s3, s2, {CH*4}"); o("s_mul_i32 s37, s36, 98")
    o(f"s_cmp_lt_u32 s2, {NCH}"); o(f"s_cselect_b32 s14, {CH//4}, 0")
    o("v_cmp_gt_u32 vcc, s14, v0")
    o("v_lshlrev_b32 v40, 4, v0")
    o("v_bfe_u32 v56, v0, 4, 1"); o("v_bfe_u32 v57, v0, 5, 1"); o("v_and_b32 v20, 63, v0")
    o("s_mov_b32 s68, 0"); o("v_lshlrev_b32 v42, 4, v20")
    o("v_bfe_u32 v43, v0, 4, 2"); o("v_lshlrev_b32 v43, 6, v43"); o("v_xor_b32 v43, v43, v40")
    o("v_lshl_add_u32 v58, v57, 3, v56")
    o("s_lshr_b32 s14, s33, 2"); o("s_lshl_b32 s14, s14, 4"); o("s_and_b32 s15, s33, 3"); o("s_lshl1_add_u32 s14, s15, s14")
    o("v_add_u32 v58, s14, v58"); o("v_add_u32 v54, s37, v58")
    o("v_and_b32 v55, 15, v0"); o("v_lshlrev_b32 v59, 3, v56"); o("v_xor_b32 v55, v55, v59"); o("v_lshlrev_b32 v55, 4, v55")
    o("s_mul_i32 s38, s33, 1040"); o(f"s_add_u32 s38, s38, {K1_X}")
    o("s_lshl_b32 s39, s33, 10"); o(f"s_add_u32 s39, s39, {K1_W}")
    o("s_mov_b32 m0, s38")
    o("s_waitcnt lgkmcnt(0)")
    srd(60, 4, N, 256)
    def xd(t):
        if t: o(f"s_add_u32 m0, s38, {t*8320}"); o("v_add_u32 v54, 32, v54")
        if t == 3: o("v_cmp_gt_u32 vcc, 2, v58"); o("v_mov_b32 v59, 0xffff"); o("s_nop 0"); o("v_cndmask_b32 v54, v59, v54, vcc")
        o("buffer_load_dwordx4 v[54:55], s[60:63], 0 idxen offen lds")
    xd(0); xd(1)
    srd(20, 10, E*4); srd(16, 8, E*4)
    o("s_and_saveexec_b64 s[28:29], vcc"); o("s_mov_b64 s[28:29], exec"); o("s_cbranch_execz K1_PREP")
    o("buffer_load_dwordx4 v[4:7], v40, s[20:23], s3 offen")
    o("buffer_load_dwordx4 v[8:11], v40, s[16:19], s3 offen")
    lab("K1_A")
    o("s_mov_b64 exec, -1")
    TCH = int(OPT.get('touch', 0)); SPL = int(OPT.get('split', 0))
    if TCH:
        srd(24, 12, WS_SIZE)
        o("s_lshl_b32 s14, s37, 9"); o(f"s_add_u32 s14, s14, {WS_TAB:#x}"); o("v_mov_b32 v248, s14"); o("s_lshl_b32 s14, s3, 1")
        o("v_writelane_b32 v248, s14, 1"); o(f"s_mov_b32 s14, {WS_OFF:#x}"); o("v_writelane_b32 v248, s14, 2")
        o("buffer_load_dword v249, v248, s[24:27], 0 offen")
    if not OPT.get('early'): o("s_barrier")
    srd(52, 42, 32768); srd(56, 48, 32768)
    for m in range(2):
        for i in range(4):
            o(f"s_add_u32 m0, s39, {m*32768+i*8192}"); o(f"s_movk_i32 s14, {i*8192}"); o(f"buffer_load_dwordx4 v43, s[{52+4*m}:{55+4*m}], s14 offen lds")
    xd(2); xd(3)
    if OPT.get('early'): o("s_barrier")
    def addrs():
        srd(24, 12, WS_SIZE)
        o("v_bfe_u32 v60, v0, 2, 2"); o("v_lshl_add_u32 v60, v57, 6, v60"); o("v_lshlrev_b32 v60, 8, v60")
        o("v_and_b32 v61, 3, v0"); o("v_lshl_add_u32 v60, v61, 3, v60"); o("v_lshl_add_u32 v60, v56, 5, v60")
        o("s_and_b32 s30, s33, 3"); o("v_bfe_u32 v61, v0, 2, 2"); o("v_xor_b32 v61, s30, v61"); o("v_lshl_add_u32 v60, v61, 6, v60"); o(f"v_add_u32 v60, {K1_W}, v60")
        o("v_bfe_u32 v61, v0, 1, 2"); o("v_lshl_or_b32 v61, v56, 2, v61"); o("v_mul_u32_u24 v61, 1040, v61")
        o("v_and_b32 v62, 1, v0"); o("v_bfe_u32 v63, v0, 3, 1"); o("v_lshl_or_b32 v63, v63, 1, v62"); o("v_lshl_add_u32 v61, v63, 8, v61")
        o("s_lshr_b32 s32, s33, 2"); o("s_mul_i32 s14, s32, 8320"); o(f"s_add_u32 s14, s14, {K1_X}")
        o("v_xor_b32 v62, v62, v57"); o("v_lshl_add_u32 v61, v62, 7, v61"); o("v_add_u32 v61, s14, v61")
        o("s_mul_i32 s14, s33, 4608"); o(f"s_add_u32 s14, s14, {K1_S}")
        o("v_and_b32 v62, 31, v0"); o("v_mul_u32_u24 v62, 144, v62"); o("v_lshl_add_u32 v62, v57, 6, v62"); o("v_add_u32 v62, s14, v62")
        o("v_lshrrev_b32 v58, 3, v20"); o("v_and_b32 v59, 7, v0"); o("v_lshlrev_b32 v59, 4, v59")
        o("v_mul_u32_u24 v63, 144, v58"); o("v_add3_u32 v63, v63, v59, s14")
        o("s_lshl_b32 s14, s32, 5"); o("s_add_u32 s14, s14, s37"); o("s_lshl_b32 s14, s14, 9"); o("s_lshl_b32 s30, s30, 7"); o("s_add_u32 s14, s14, s30")
        o("v_lshl_add_u32 v59, v58, 9, v59"); o("v_add_u32 v59, s14, v59")
        o("s_lshl_b32 s31, s3, 1")
    addrs()
    o(f"s_mul_i32 s34, s2, {CH}")
    o("v_add_u32 v3, s34, v1"); o("v_mov_b32 v2, 1"); o(f"s_mov_b32 s15, {-RN}")
    o("v_lshlrev_b32 v20, 5, v20")
    o("s_mov_b64 exec, s[28:29]"); o("s_cbranch_execz K1_B")
    o(f"s_waitcnt vmcnt({10+TCH})"); stamp(1)
    for i in range(4):
        o(f"v_mul_u32_u24 v{12+i}, 21400, v{4+i}")
        o(f"v_lshrrev_b32 v{12+i}, 20, v{12+i}")
        o(f"v_mad_i32_i24 v{4+i}, v{12+i}, s15, v{4+i}")
        o(f"v_lshlrev_b32 v{12+i}, 2, v{12+i}")
        o(f"ds_add_rtn_u32 v{16+i}, v{12+i}, v2")
    lab("K1_B")
    o("s_mov_b64 exec, -1")
    o(f"s_add_u32 s12, s12, {WS_TAB:#x}"); o("s_addc_u32 s13, s13, 0"); srd(16, 12, N * 512)
    o(f"s_mov_b32 s15, {NLOG2E:#x}")
    o(f"s_waitcnt vmcnt({2*SPL}) lgkmcnt(0)"); o("s_barrier"); stamp(3)
    lab("K1_J")
    WF_ = 64; XF_ = 128; AC = [160, 192]
    for m in range(2):
        for s in range(8):
            for jj in range(2): o(f"ds_read_b64_tr_b16 v[{WF_+32*m+4*s+2*jj}:{WF_+32*m+4*s+2*jj+1}], v60 offset:{m*32768+s*2048+jj*1024}")
            if m == 0: o(f"ds_read_b128 {vr(XF_+4*s,4)}, v61 offset:{16*s}")
    o("ds_read_b128 v[24:27], v20"); o("ds_read_b128 v[28:31], v20 offset:16")
    def post(t):
        a = AC[t]; r = []
        for k in range(16): r.append(f"v_mul_f32 v{a+k}, s15, v{a+k}")
        for k in range(16): r.append(f"v_cvt_pk_bf16_f32 v{224+k}, v{a+2*k}, v{a+2*k+1}")
        r += [f"ds_write_b128 v62, {vr(224+4*c,4)} offset:{16*c}" for c in range(4)]
        r += [f"ds_read_b128 {vr(a+4*k,4)}, v63 offset:{k*8*144}" for k in range(4)]
        return r
    def stores(t):
        r = []
        for k in range(4):
            r += [f"s_waitcnt lgkmcnt({3-k})", f"buffer_store_dwordx4 {vr(AC[t]+4*k,4)}, v59, s[16:19], 0 offen {pol}", "v_add_u32 v59, 0x1000, v59"]
        return r
    def recs():
        for i in range(4):
            o(f"v_cmp_lt_u32 vcc, {NA-1}, v{4+i}"); o(f"v_mul_u32_u24 v22, 83, v{8+i}"); o("v_lshrrev_b32 v22, 16, v22")
            o(f"v_cndmask_b32 v23, 0, {NA}, vcc"); o(f"v_sub_u32 v23, v{4+i}, v23")
            o(f"v_lshl_or_b32 v{44+2*i}, v23, 16, v{8+i}")
            o("v_cndmask_b32 v23, 0, 32, vcc"); o("v_or_b32 v22, v22, v23")
            o(f"v_lshl_add_u32 v{45+2*i}, v22, 26, v3")
            if i < 3: o("v_add_u32 v3, 1, v3")
    def scan():
        o("v_mov_b32 v33, v24")
        for j in range(2, 8): o(f"v_add_u32 v{32+j}, v{31+j}, v{23+j}")
        o("v_add_u32 v21, v39, v31"); o("v_mov_b32 v22, v21")
        scan64(21)
        o("v_sub_u32 v32, v21, v22")
        for j in range(1, 8): o(f"v_add_u32 v{32+j}, v32, v{32+j}")
    o("s_waitcnt lgkmcnt(15)")
    interleave([m32(AC[0], WF_+4*s, XF_+4*s, None if s == 0 else AC[0]) for s in range(8)], capture(recs), 5)
    o("s_waitcnt vmcnt(0) lgkmcnt(0)")
    if SPL: o("s_barrier")
    sc = capture(scan); p0 = post(0)
    q = sc + p0[:24]
    for s in range(8):
        o(m32(AC[0]+16, WF_+32+4*s, XF_+4*s, None if s == 0 else AC[0]+16))
        o(f"ds_read_b128 {vr(XF_+4*s,4)}, v61 offset:{2*8320+16*s}")
        for _ in range(5):
            if q: o(q.pop(0))
    lab("K1_G")
    o("s_waitcnt lgkmcnt(0)")
    mf = [m32(AC[1], WF_+4*s, XF_+4*s, None if s == 0 else AC[1]) for s in range(8)] + [m32(AC[1]+16, WF_+32+4*s, XF_+4*s, None if s == 0 else AC[1]+16) for s in range(8)]
    assert len(q) >= 8
    look = ["ds_write_b128 v20, v[32:35] offset:2048", "ds_write_b128 v20, v[36:39] offset:2064"] + [f"ds_read_b32 v{4+i}, v{12+i} offset:2048" for i in range(4)]
    q = q + p0[24:] + [None] * 5 + stores(0) + look
    for m in mf:
        o(m)
        for _ in range(5):
            if q:
                x = q.pop(0)
                if x: o(x)
    assert not q
    o("v_add_u32 v59, 0x4000, v59"); o("v_cmp_gt_u32 vcc, 2, v58")
    o("s_mov_b64 exec, s[28:29]")
    o("s_waitcnt lgkmcnt(0)")
    for i in range(4):
        o(f"v_add_lshl_u32 v{4+i}, v{4+i}, v{16+i}, 3"); o(f"ds_write_b64 v{4+i}, v[{44+2*i}:{45+2*i}] offset:4096")
    o("s_mov_b64 exec, -1")
    for x in post(1): o(x)
    stamp(4)
    o("s_cmp_lt_u32 s33, 4"); o("s_cbranch_scc1 K1_H")
    o("s_mov_b64 exec, vcc")
    for x in stores(1)[:2]: o(x)
    o("s_mov_b64 exec, -1")
    o("s_cmp_lg_u32 s68, 0"); o("s_cbranch_scc1 K1_PREP2")
    o("s_cmp_lg_u32 s33, 6"); o("s_cbranch_scc1 K1_I")
    for j in range(8): o(f"v_lshl_add_u32 v{24+j}, v{24+j}, 19, v{32+j}"); o(f"v_add_u32 v{24+j}, s34, v{24+j}")
    o(f"v_mul_u32_u24 v41, {OG//16}, v20"); o("s_lshl_b32 s35, s36, 4"); o(f"s_add_u32 s35, s35, {WS_OFF:#x}"); o(f"s_add_u32 s30, s35, {OG}")
    o("buffer_store_dwordx4 v[24:27], v41, s[24:27], s35 offen"); o("buffer_store_dwordx4 v[28:31], v41, s[24:27], s30 offen")
    o("s_branch K1_I")
    lab("K1_H")
    for x in stores(1): o(x)
    lab("K1_I")
    o(f"v_cmp_gt_u32 vcc, {CH//2-512}, v0")
    o("s_waitcnt lgkmcnt(0)"); o("s_barrier")
    o(f"s_cmp_lt_u32 s2, {NCH}"); o("s_cbranch_scc0 K1_F")
    o("ds_read_b128 v[44:47], v40 offset:4096"); o("ds_read_b128 v[48:51], v40 offset:12288")
    o("s_add_u32 s30, s31, 8192")
    o("s_waitcnt lgkmcnt(1)")
    o(f"buffer_store_dwordx4 v[44:47], v40, s[24:27], s31 offen {rpol}")
    o("s_and_saveexec_b64 s[28:29], vcc"); o("s_cbranch_execz K1_F")
    o("s_waitcnt lgkmcnt(0)")
    o(f"buffer_store_dwordx4 v[48:51], v40, s[24:27], s30 offen {rpol}")
    lab("K1_F")
    stamp_out(2, 12, 24, 0)
    lab("K1_END")
    o("s_endpgm")
    lab("K1_PREP")
    o("s_cmp_ge_u32 s2, 68"); o("s_cbranch_scc1 K1_A")
    o("s_mov_b64 exec, -1")
    o("s_lshr_b32 s14, s2, 5")
    o("s_cmp_eq_u32 s14, 1"); o("s_cselect_b32 s40, s46, s40"); o("s_cselect_b32 s41, s47, s41"); o(f"s_cselect_b32 s68, 1.0, {NLOG2E:#x}")
    o("s_mov_b32 s66, 32768"); o("s_bfe_u32 s50, s2, 0x20003"); o("s_and_b32 s51, s2, 7"); o("s_mov_b32 s32, 14")
    o("s_cmp_eq_u32 s14, 2"); o("s_cselect_b32 s40, s44, s40"); o("s_cselect_b32 s41, s45, s41"); o("s_cselect_b32 s66, 4096, s66")
    o("s_cselect_b32 s50, s51, s50"); o("s_cselect_b32 s51, 0, s51"); o("s_cselect_b32 s32, 11, s32")
    o("s_mov_b32 s64, s40"); o("s_and_b32 s65, s41, 0xffff"); o("s_mov_b32 s67, 0x20000")
    o("s_lshl_b32 s50, s50, 6"); o("s_lshl_b32 s51, s51, 11"); o("s_add_u32 s50, s50, s51")
    o("v_and_b32 v4, 3, v0"); o("v_bfe_u32 v5, v0, 3, 2"); o("v_lshl_or_b32 v4, v5, 2, v4")
    o("v_bfe_u32 v5, v0, 2, 1"); o("v_lshl_or_b32 v4, v5, 4, v4")
    o("v_lshlrev_b32 v5, s32, v57"); o("v_lshl_add_u32 v4, v4, 1, v5"); o("v_add_u32 v4, s50, v4")
    for j in range(8): o(f"buffer_load_ushort v{240+j}, v4, s[64:67], 0 offen offset:{j*256}")
    o("s_branch K1_A")
    lab("K1_PREP2")
    o("s_lshl_b32 s14, s2, 10"); o(f"s_add_u32 s14, s14, {WS_WF:#x}")
    for j in range(8):
        o(f"v_lshlrev_b32 v{240+j}, 16, v{240+j}"); o(f"v_mul_f32 v{240+j}, s68, v{240+j}")
    for j in range(4): o(f"v_cvt_pk_bf16_f32 v{52+j}, v{240+2*j}, v{241+2*j}")
    o("buffer_store_dwordx4 v[52:55], v42, s[24:27], s14 offen")
    o("s_branch K1_I")

SM = int(OPT.get('sm', 0)); SMS = N * 128 + int(OPT.get('smpad', 0))
def gen_k1a():
    L.append(".globl gsort_kernel"); L.append(".p2align 8"); L.append(".type gsort_kernel,@function")
    lab("gsort_kernel"); VST[0] = 255
    pol = OPT.get('tabpol', '').replace('+', ' '); rpol = OPT.get('recpol', '').replace('+', ' ')
    if OPT.get('cpf'):
        o("s_getpc_b64 s[70:71]")
        o("v_lshlrev_b32 v236, 7, v0"); o("v_min_u32 v236, CODE_END-gsort_kernel-8, v236")
        o("v_mov_b32 v237, s71"); o("v_add_co_u32 v236, vcc, s70, v236"); o("s_nop 1"); o("v_addc_co_u32 v237, vcc, 0, v237, vcc")
        o("global_load_dword v238, v[236:237], off")
    stamp(0)
    o("s_load_dwordx8 s[4:11], s[0:1], 0")
    o("s_load_dwordx8 s[40:47], s[0:1], 32")
    o("s_load_dwordx2 s[48:49], s[0:1], 64")
    o("s_load_dwordx2 s[12:13], s[0:1], 88")
    o("s_load_dwordx2 s[72:73], s[0:1], 72")
    o(f"s_cmp_ge_u32 s2, {K1_GRID}"); o("s_cbranch_scc1 K1_END")
    o("v_lshrrev_b32 v2, 6, v0"); o("v_lshlrev_b32 v1, 2, v0")
    o("s_and_b32 s36, s2, 7"); o("s_lshl_b32 s36, s36, 5"); o("s_lshr_b32 s35, s2, 3"); o("s_add_u32 s36, s36, s35")
    o("v_readfirstlane_b32 s33, v2")
    o("v_mov_b32 v2, 0"); o("ds_write_b32 v1, v2")
    o(f"s_mul_i32 s3, s2, {CH*4}"); o("s_mul_i32 s37, s36, 98")
    o(f"s_cmp_lt_u32 s2, {NCH}"); o(f"s_cselect_b32 s14, {CH//5}, 0")
    o("v_cmp_gt_u32 vcc, s14, v0")
    o("v_lshlrev_b32 v40, 4, v0")
    o("v_bfe_u32 v56, v0, 4, 1"); o("v_bfe_u32 v57, v0, 5, 1"); o("v_and_b32 v20, 63, v0")
    o("s_mov_b32 s68, 0"); o("v_lshlrev_b32 v42, 4, v20")
    o("v_mul_u32_u24 v43, 20, v0")
    o("s_cmp_ge_u32 s33, 5")
    o("s_waitcnt lgkmcnt(0)")
    o("s_cbranch_scc1 K1_LOAD")
    srd(20, 10, E*4); srd(16, 8, E*4)
    o("s_and_saveexec_b64 s[28:29], vcc"); o("s_mov_b64 s[28:29], exec"); o("s_cbranch_execz K1_A")
    o("buffer_load_dwordx4 v[64:67], v43, s[20:23], s3 offen"); o("buffer_load_dword v68, v43, s[20:23], s3 offen offset:16")
    o("buffer_load_dwordx4 v[72:75], v43, s[16:19], s3 offen"); o("buffer_load_dword v76, v43, s[16:19], s3 offen offset:16")
    lab("K1_A")
    o("s_mov_b64 exec, -1")
    NX = int(OPT.get('nx', 0))
    if NX:
        srd(52, 42, 32768); srd(56, 48, 32768)
        o("v_lshrrev_b32 v44, 4, v20"); o("v_lshlrev_b32 v44, 6, v44"); o("v_xor_b32 v44, v44, v42")
        o(f"s_mul_i32 s14, s33, {NX*1024}"); o(f"s_add_u32 s14, s14, {(32-5*NX)*1024}")
        for m in range(2):
            o(f"s_add_u32 m0, s14, {K1_W + m*32768}"); o("s_nop 0")
            for j in range(NX): o(f"buffer_load_dwordx4 v44, s[{52+4*m}:{55+4*m}], s14 offen offset:{j*1024} lds")
    o("s_barrier")
    def addrs():
        srd(24, 12, WS_SIZE)
        o("v_bfe_u32 v60, v0, 2, 2"); o("v_lshl_add_u32 v60, v57, 6, v60"); o("v_lshlrev_b32 v60, 8, v60")
        o("v_and_b32 v61, 3, v0"); o("v_lshl_add_u32 v60, v61, 3, v60"); o("v_lshl_add_u32 v60, v56, 5, v60")
        o("s_and_b32 s30, s33, 3"); o("v_bfe_u32 v61, v0, 2, 2"); o("v_xor_b32 v61, s30, v61"); o("v_lshl_add_u32 v60, v61, 6, v60"); o(f"v_add_u32 v60, {K1_W}, v60")
        o("v_bfe_u32 v61, v0, 1, 2"); o("v_lshl_or_b32 v61, v56, 2, v61"); o("v_mul_u32_u24 v61, 1040, v61")
        o("v_and_b32 v62, 1, v0"); o("v_bfe_u32 v63, v0, 3, 1"); o("v_lshl_or_b32 v63, v63, 1, v62"); o("v_lshl_add_u32 v61, v63, 8, v61")
        o("s_lshr_b32 s32, s33, 2"); o("s_mul_i32 s14, s32, 8320"); o(f"s_add_u32 s14, s14, {K1_X}")
        o("v_xor_b32 v62, v62, v57"); o("v_lshl_add_u32 v61, v62, 7, v61"); o("v_add_u32 v61, s14, v61")
        o("s_mul_i32 s14, s33, 4608"); o(f"s_add_u32 s14, s14, {K1_S}")
        o("v_and_b32 v62, 31, v0"); o("v_mul_u32_u24 v62, 144, v62"); o("v_lshl_add_u32 v62, v57, 6, v62"); o("v_add_u32 v62, s14, v62")
        o("v_lshrrev_b32 v58, 3, v20"); o("v_and_b32 v59, 7, v0"); o("v_lshlrev_b32 v59, 4, v59")
        o("v_mul_u32_u24 v63, 144, v58"); o("v_add3_u32 v63, v63, v59, s14")
        if SM:
            o("s_lshl_b32 s14, s32, 5"); o("s_add_u32 s14, s14, s37"); o("s_lshl_b32 s14, s14, 7"); o(f"s_mul_i32 s69, s30, {SMS}")
            o("v_add_u32 v59, s14, v42")
        else:
            o("s_lshl_b32 s14, s32, 5"); o("s_add_u32 s14, s14, s37"); o("s_lshl_b32 s14, s14, 9"); o("s_lshl_b32 s30, s30, 7"); o("s_add_u32 s14, s14, s30")
            o("v_lshl_add_u32 v59, v58, 9, v59"); o("v_add_u32 v59, s14, v59")
        o("s_lshl_b32 s31, s3, 1")
    addrs()
    o(f"s_mul_i32 s34, s2, {CH}")
    o("v_lshrrev_b32 v3, 2, v43"); o("v_add_u32 v3, s34, v3"); o("v_mov_b32 v2, 1"); o(f"s_mov_b32 s15, {-RN}"); o(f"s_movk_i32 s38, {-64*RN}")
    o("v_lshlrev_b32 v20, 5, v20")
    o("s_mov_b64 exec, s[28:29]"); o("s_cbranch_execz K1_B")
    o(f"s_waitcnt vmcnt({2+2*NX})"); stamp(1)
    for i in range(5):
        o(f"v_mul_u32_u24 v{80+i}, 21400, v{64+i}")
        o(f"v_lshrrev_b32 v{80+i}, 20, v{80+i}")
        o(f"v_mad_i32_i24 v{64+i}, v{80+i}, s15, v{64+i}")
        o(f"v_lshlrev_b32 v{80+i}, 2, v{80+i}")
        o(f"ds_add_rtn_u32 v{88+i}, v{80+i}, v2")
    o(f"s_waitcnt vmcnt({2*NX})")
    for i in range(5):
        o(f"v_cmp_lt_u32 vcc, {NA-1}, v{64+i}")
        if int(OPT.get('rot', 0)):
            o(f"v_lshrrev_b32 v22, 8, v{80+i}"); o(f"v_mad_i32_i24 v22, v22, s38, v{72+i}"); o(f"v_add_u32 v23, {512*RN}, v22"); o("v_min_u32 v22, v22, v23")
            o("v_mul_u32_u24 v22, 83, v22")
        else: o(f"v_mul_u32_u24 v22, {OPT.get('binmul', 83)}, v{72+i}")
        o("v_lshrrev_b32 v22, 16, v22")
        o(f"v_cndmask_b32 v23, 0, {NA}, vcc"); o(f"v_sub_u32 v23, v{64+i}, v23")
        o(f"v_lshl_or_b32 v{96+2*i}, v23, 16, v{72+i}")
        o("v_cndmask_b32 v23, 0, 32, vcc"); o("v_or_b32 v22, v22, v23")
        o(f"v_lshl_add_u32 v{97+2*i}, v22, 26, v3")
        if i < 4: o("v_add_u32 v3, 1, v3")
    lab("K1_B")
    o("s_mov_b64 exec, -1")
    o("s_waitcnt lgkmcnt(0)"); o("s_barrier")
    o("ds_read_b128 v[24:27], v20"); o("ds_read_b128 v[28:31], v20 offset:16")
    o("s_waitcnt lgkmcnt(0)")
    o("v_mov_b32 v33, v24")
    for j in range(2, 8): o(f"v_add_u32 v{32+j}, v{31+j}, v{23+j}")
    o("v_add_u32 v21, v39, v31"); o("v_mov_b32 v22, v21")
    scan64(21)
    o("v_sub_u32 v32, v21, v22")
    for j in range(1, 8): o(f"v_add_u32 v{32+j}, v32, v{32+j}")
    o("ds_write_b128 v20, v[32:35] offset:2048"); o("ds_write_b128 v20, v[36:39] offset:2064")
    o("s_mov_b64 exec, s[28:29]")
    for i in range(5): o(f"ds_read_b32 v{64+i}, v{80+i} offset:2048")
    o("s_waitcnt lgkmcnt(0)")
    for i in range(5):
        o(f"v_add_lshl_u32 v{64+i}, v{64+i}, v{88+i}, 3"); o(f"ds_write_b64 v{64+i}, v[{96+2*i}:{97+2*i}] offset:4096")
    o("s_mov_b64 exec, -1")
    o("s_waitcnt vmcnt(0) lgkmcnt(0)"); o("s_barrier"); stamp(3)
    lab("K1_J")
    if OPT.get('pfe'):
        srd(76, 6, E*32); o("v_lshlrev_b32 v250, 7, v0"); o("s_lshl_b32 s14, s2, 16"); o("v_add_u32 v250, s14, v250")
        o("buffer_load_dword v251, v250, s[76:79], 0 offen " + OPT['pfe'].replace('p', ''))
    WF_ = 64; XF_ = 128; AC = [160, 192]
    o("ds_read_b128 v[44:47], v40 offset:4096"); o("ds_read_b128 v[48:51], v40 offset:12288")
    o(f"v_cmp_gt_u32 vcc, {CH//2-512}, v0")
    for m in range(2):
        for s in range(8):
            for jj in range(2): o(f"ds_read_b64_tr_b16 v[{WF_+32*m+4*s+2*jj}:{WF_+32*m+4*s+2*jj+1}], v60 offset:{m*32768+s*2048+jj*1024}")
        if m == 0:
            for s in range(8): o(f"ds_read_b128 {vr(XF_+4*s,4)}, v61 offset:{16*s}")
    o(f"s_add_u32 s12, s12, {WS_TAB:#x}"); o("s_addc_u32 s13, s13, 0")
    if SM: o("s_add_u32 s12, s12, s69"); o("s_addc_u32 s13, s13, 0")
    srd(16, 12, N * (128 if SM else 512))
    o(f"s_mov_b32 s15, {NLOG2E:#x}")
    def post(t):
        a = AC[t]; r = []
        for k in range(16): r.append(f"v_mul_f32 v{a+k}, s15, v{a+k}")
        for k in range(16): r.append(f"v_cvt_pk_bf16_f32 v{224+k}, v{a+2*k}, v{a+2*k+1}")
        r += [f"ds_write_b128 v62, {vr(224+4*c,4)} offset:{16*c}" for c in range(4)]
        r += [f"ds_read_b128 {vr(a+4*k,4)}, v63 offset:{k*8*144}" for k in range(4)]
        return r
    def tp(i):
        m = OPT.get('tp')
        return pol if not m else {'s': 'sc1', 'n': 'nt', 'p': ''}[m[i]]
    def stores(t):
        r = []
        for k in range(4):
            r += [f"s_waitcnt lgkmcnt({3-k})", f"buffer_store_dwordx4 {vr(AC[t]+4*k,4)}, v59, s[16:19], 0 offen {tp(4*t+k)}", f"v_add_u32 v59, {0x400 if SM else 0x1000:#x}, v59"]
        return r
    o("s_waitcnt lgkmcnt(15)")
    o(f"s_cmp_lt_u32 s2, {NCH}"); o("s_cbranch_scc0 K1_E")
    o("s_add_u32 s30, s31, 8192")
    o(f"buffer_store_dwordx4 v[44:47], v40, s[24:27], s31 offen {rpol}")
    o("s_and_saveexec_b64 s[28:29], vcc"); o("s_cbranch_execz K1_E")
    o(f"buffer_store_dwordx4 v[48:51], v40, s[24:27], s30 offen {rpol}")
    lab("K1_E"); o("s_mov_b64 exec, -1")
    for s in range(8): o(m32(AC[0], WF_+4*s, XF_+4*s, None if s == 0 else AC[0]))
    o("s_waitcnt lgkmcnt(0)")
    for s in range(8):
        o(m32(AC[0]+16, WF_+32+4*s, XF_+4*s, None if s == 0 else AC[0]+16))
        o(f"ds_read_b128 {vr(XF_+4*s,4)}, v61 offset:{2*8320+16*s}")
    o("s_cmp_lg_u32 s68, 0"); o("s_cbranch_scc1 K1_PREP2")
    if not OPT.get('offend'): o("s_cmp_eq_u32 s33, 4"); o("s_cbranch_scc1 K1_OFF")
    lab("K1_G")
    o("s_waitcnt lgkmcnt(0)")
    mf = [m32(AC[1], WF_+4*s, XF_+4*s, None if s == 0 else AC[1]) for s in range(8)] + [m32(AC[1]+16, WF_+32+4*s, XF_+4*s, None if s == 0 else AC[1]+16) for s in range(8)]
    q = post(0) + [None] * 6 + stores(0)
    for m in mf:
        o(m)
        for _ in range(5):
            if q:
                x = q.pop(0)
                if x: o(x)
    assert not q
    o(f"v_add_u32 v59, {0x1000 if SM else 0x4000:#x}, v59"); o("v_cmp_gt_u32 vcc, 2, v58")
    for x in post(1): o(x)
    stamp(4)
    o("s_cmp_lt_u32 s33, 4"); o("s_cbranch_scc1 K1_H")
    o("s_mov_b64 exec, vcc")
    for x in stores(1)[:2]: o(x)
    if OPT.get('offend'): o("s_mov_b64 exec, -1"); o("s_cmp_eq_u32 s33, 4"); o("s_cbranch_scc1 K1_OFF")
    if OPT.get('pfe2'):
        n = int(OPT['pfe2'])
        o("s_mov_b64 exec, -1")
        srd(76, 6, E*32); o("v_lshlrev_b32 v250, 7, v0"); o("s_mul_i32 s14, s2, 50176"); o("s_sub_u32 s14, s14, 32768"); o("v_add_u32 v250, s14, v250")
        o("buffer_load_dword v251, v250, s[76:79], 0 offen")
        if n > 1:
            o("v_cmp_gt_u32 vcc, 392, v0"); o("v_add_u32 v250, 0x8000, v250"); o("s_and_saveexec_b64 s[28:29], vcc"); o("s_cbranch_execz K1_F")
            o("buffer_load_dword v251, v250, s[76:79], 0 offen")
    o("s_branch K1_F")
    lab("K1_H")
    for x in stores(1): o(x)
    lab("K1_F")
    if OPT.get('touch') == '4':
        o("s_mov_b64 exec, -1"); o("s_cmp_lg_u32 s33, 7"); o("s_cbranch_scc1 K1_END")
        o("v_lshl_add_u32 v250, v20, 5, s35"); o(f"v_lshlrev_b32 v250, 19, v250")
        srd(76, 6, E*32); o("buffer_load_dword v249, v250, s[76:79], 0 offen")
        srd(76, 72, N*256); o("buffer_load_dword v249, v250, s[76:79], 0 offen")
        o("buffer_load_dword v249, v250, s[16:19], 0 offen"); o("s_mov_b32 s26, 0x400000"); o("buffer_load_dword v249, v250, s[24:27], 0 offen")
    stamp_out(2, 12, 24, 0)
    lab("K1_END")
    o("s_endpgm")
    lab("K1_OFF")
    for j in range(8): o(f"v_lshl_add_u32 v{24+j}, v{24+j}, 19, v{32+j}"); o(f"v_add_u32 v{24+j}, s34, v{24+j}")
    if OPT.get('offc'):
        o("v_mov_b32 v41, v20"); o("s_mul_i32 s35, s2, 2176"); o(f"s_add_u32 s35, s35, {WS_OFF:#x}"); o("s_add_u32 s30, s35, 16")
    else:
        o(f"v_mul_u32_u24 v41, {OG//16}, v20"); o("s_lshl_b32 s35, s36, 4"); o(f"s_add_u32 s35, s35, {WS_OFF:#x}"); o(f"s_add_u32 s30, s35, {OG}")
    o("buffer_store_dwordx4 v[24:27], v41, s[24:27], s35 offen " + OPT.get('offpol', '')); o("buffer_store_dwordx4 v[28:31], v41, s[24:27], s30 offen " + OPT.get('offpol', ''))
    o("s_branch K1_F" if OPT.get('offend') else "s_branch K1_G")
    lab("K1_LOAD")
    nb0 = int(OPT.get('k1a', 0))
    nb = int(OPT.get('k1b', 24))
    o("s_cmp_eq_u32 s33, 7"); o("s_cbranch_scc1 K1_LX")
    o("s_cmp_eq_u32 s33, 6"); o("s_cselect_b32 s42, s48, s42"); o("s_cselect_b32 s43, s49, s43"); o("s_cselect_b32 s39, 0x8000, 0"); o(f"s_add_u32 s39, s39, {K1_W}")
    srd(52, 42, 32768)
    o("v_lshrrev_b32 v44, 4, v20"); o("v_lshlrev_b32 v44, 6, v44"); o("v_xor_b32 v44, v44, v42")
    for k in range(32 - 5*NX):
        if k in (nb0, min(nb, 31 - 5*NX)): o("s_barrier")
        if k % 4 == 0: o(f"s_add_u32 m0, s39, {k*1024}"); o(f"s_movk_i32 s14, {k*1024}")
        o(f"buffer_load_dwordx4 v44, s[52:55], s14 offen offset:{(k%4)*1024} lds")
    lab("K1_LD")
    addrs()
    o("s_waitcnt vmcnt(0) lgkmcnt(0)"); o("s_barrier")
    o("s_branch K1_J")
    def touch2():
        sh = int(OPT.get('tsh', 16))
        o("v_lshl_add_u32 v250, v20, 5, s35"); o(f"v_lshlrev_b32 v250, {sh}, v250")
        srd(76, 6, E*32); o("buffer_load_dword v249, v250, s[76:79], 0 offen")
        srd(76, 12, WS_TAB + 4*SMS); o("buffer_load_dword v249, v250, s[76:79], 0 offen")
        srd(76, 72, N*256); o("buffer_load_dword v249, v250, s[76:79], 0 offen")
    lab("K1_LX")
    if OPT.get('touch') == '3': touch2()
    if OPT.get('touch') == '5':
        o("s_lshl_b32 s14, s37, 9"); o(f"s_add_u32 s14, s14, {WS_TAB:#x}"); o("s_load_dword s74, s[12:13], s14")
        o("s_add_u32 s14, s14, 50048"); o("s_load_dword s75, s[12:13], s14")
        o("s_lshl_b32 s14, s3, 1"); o("s_load_dword s76, s[12:13], s14")
        o(f"s_mov_b32 s14, {WS_OFF:#x}"); o("s_load_dword s77, s[12:13], s14")
    elif int(OPT.get('touch', 0)):
        srd(24, 12, WS_SIZE)
        o(f"s_lshl_b32 s14, s37, {7 if SM else 9}"); o(f"s_add_u32 s14, s14, {WS_TAB:#x}"); o("v_mov_b32 v248, s14")
        if SM: o("v_lshrrev_b32 v249, 4, v20"); o(f"v_mul_u32_u24 v249, {SMS}, v249"); o("v_add_u32 v248, v248, v249")
        o("s_lshl_b32 s14, s3, 1")
        o("v_writelane_b32 v248, s14, 1"); o(f"s_mov_b32 s14, {WS_OFF:#x}"); o("v_writelane_b32 v248, s14, 2")
        o("buffer_load_dword v249, v248, s[24:27], 0 offen")
    srd(60, 4, N, 256)
    o("v_lshl_add_u32 v58, v57, 3, v56"); o("v_add_u32 v53, s37, v58")
    o("v_and_b32 v55, 15, v0"); o("v_lshlrev_b32 v59, 3, v56"); o("v_xor_b32 v55, v55, v59"); o("v_lshlrev_b32 v55, 4, v55")
    o("v_cmp_gt_u32 vcc, 2, v58"); o("v_mov_b32 v59, 0xffff")
    for k in range(25):
        t, i = divmod(k, 8)
        if k in (nb0, nb): o("s_barrier")
        o(f"s_mov_b32 m0, {K1_X + t*8320 + i*1040}"); o(f"v_add_u32 v54, {32*t + 16*(i >> 2) + 2*(i & 3)}, v53")
        if t == 3: o("v_cndmask_b32 v54, v59, v54, vcc")
        o("buffer_load_dwordx4 v[54:55], s[60:63], 0 idxen offen lds")
    if OPT.get('touch') == '2': touch2()
    o("s_cmp_ge_u32 s2, 68"); o("s_cbranch_scc1 K1_LD")
    o("s_lshr_b32 s14, s2, 5")
    o("s_cmp_eq_u32 s14, 1"); o("s_cselect_b32 s40, s46, s40"); o("s_cselect_b32 s41, s47, s41"); o(f"s_cselect_b32 s68, 1.0, {NLOG2E:#x}")
    o("s_mov_b32 s66, 32768"); o("s_bfe_u32 s50, s2, 0x20003"); o("s_and_b32 s51, s2, 7"); o("s_mov_b32 s32, 14")
    o("s_cmp_eq_u32 s14, 2"); o("s_cselect_b32 s40, s44, s40"); o("s_cselect_b32 s41, s45, s41"); o("s_cselect_b32 s66, 4096, s66")
    o("s_cselect_b32 s50, s51, s50"); o("s_cselect_b32 s51, 0, s51"); o("s_cselect_b32 s32, 11, s32")
    o("s_mov_b32 s64, s40"); o("s_and_b32 s65, s41, 0xffff"); o("s_mov_b32 s67, 0x20000")
    o("s_lshl_b32 s50, s50, 6"); o("s_lshl_b32 s51, s51, 11"); o("s_add_u32 s50, s50, s51")
    o("v_and_b32 v4, 3, v0"); o("v_bfe_u32 v5, v0, 3, 2"); o("v_lshl_or_b32 v4, v5, 2, v4")
    o("v_bfe_u32 v5, v0, 2, 1"); o("v_lshl_or_b32 v4, v5, 4, v4")
    o("v_lshlrev_b32 v5, s32, v57"); o("v_lshl_add_u32 v4, v4, 1, v5"); o("v_add_u32 v4, s50, v4")
    for j in range(8): o(f"buffer_load_ushort v{8+j}, v4, s[64:67], 0 offen offset:{j*256}")
    o("s_branch K1_LD")
    lab("K1_PREP2")
    o("s_lshl_b32 s14, s2, 10"); o(f"s_add_u32 s14, s14, {WS_WF:#x}")
    for j in range(8):
        o(f"v_lshlrev_b32 v{8+j}, 16, v{8+j}"); o(f"v_mul_f32 v{8+j}, s68, v{8+j}")
    for j in range(4): o(f"v_cvt_pk_bf16_f32 v{52+j}, v{8+2*j}, v{9+2*j}")
    o("buffer_store_dwordx4 v[52:55], v42, s[24:27], s14 offen " + OPT.get('wfpol', ''))
    o("s_branch K1_G")

def regs_of(tok):
    m = re.fullmatch(r"v\[(\d+):(\d+)\]", tok)
    if m: return set(range(int(m.group(1)), int(m.group(2)) + 1))
    m = re.fullmatch(r"v(\d+)", tok)
    return {int(m.group(1))} if m else set()
def check_hazards(ins):
    P = []
    for s in ins:
        if s.endswith(':'): continue
        op, _, rest = s.partition(' ')
        t = [x.strip() for x in rest.split(',')]
        t = [x.split(' ')[0] for x in t]
        if op.startswith('v_mfma'):
            P.append(('m', 12 if '32x32' in op else 8, regs_of(t[0]), regs_of(t[1]) | regs_of(t[2]), regs_of(t[3]), s))
        elif op.startswith('v_'):
            P.append(('t' if op in ('v_exp_f32', 'v_rcp_f32') else 'v', 0, regs_of(t[0]), set().union(*map(regs_of, t[1:])), set(), s))
        elif op.startswith('ds_read'):
            P.append(('d', 0, regs_of(t[0]), regs_of(t[1]), set(), s))
        elif op.startswith('buffer'):
            P.append(('d', 0, set(), regs_of(t[0]), set(), s))
        else: P.append(('s', 0, set(), set(), set(), s))
    n = len(P)
    for i, (k, w, d, ab, c, s) in enumerate(P):
        for j in range(1, 13):
            k2, w2, d2, ab2, c2, s2 = P[(i + j) % n]
            gap = j - 1
            if k == 'm':
                if k2 == 'm':
                    assert not (gap < w and d & ab2), (s, s2)
                    if d & c2 and d != c2: assert gap >= w - 2, (s, s2)
                else: assert not (gap < w and d & (d2 | ab2)), (s, s2, gap)
                if k2 in 'vt': assert not (gap < (7 if w == 12 else 3) and c & d2), (s, s2)
            if k in 'vt' and k2 == 'm': assert not (gap < 2 and d & (ab2 | c2)), (s, s2)
            if k == 't' and k2 == 'v': assert not (gap < 1 and d & ab2), (s, s2)

LOWLIM = 2; NS = 2
LUT = 0; IDT = 4096; NB = IDT + 26 * 80; LIST = NB + 256; MB = LIST + 8192; ROW = 264; CNT = MB + 26 * ROW; ZSZ = 26 * ROW + 256
ER = CNT + 256; RING = ER + 8192; WS_ = 4160; SLOT = 4 * WS_; K2_LDS = RING + (NS + 1) * SLOT
G8 = int(OPT.get('g8', 0)); GS = (K2_LDS - NB + 255) // 256 * 256
assert K2_LDS <= 81920 and ER % 16 == 0 and LIST % 16 == 0 and MB % 16 == 0 and 4096 < ZSZ <= 8192 and ZSZ % 16 == 0

class RA:
    def __init__(s): s.n = 1
    def get(s, k=1, al=1):
        s.n = (s.n + al - 1) // al * al
        b = s.n; s.n += k; return b
R = RA()
vTA = R.get()
IX = [R.get(2, 2) for _ in range(4)]; IXE = R.get(2, 2); MQ = R.get(2, 2)
(vTC, vEA, vMT, vSA, vMA, vL1, vL2, vSV, vHC, vWF, vXA, vXR, vXI, vXO) = [R.get() for _ in range(14)]
SEG = R.get(4, 4); PT = R.get(4, 4)
GV = R.get(64, 4); ACC = R.get(64, 4)
TF = R.get(16, 4); EF = R.get(4, 4); SF = R.get(8, 4); WC = R.get(4, 4); T0 = R.get(8, 4); AF = R.get(16, 4); SEL = R.get(8, 4)
NVGPR = R.n
assert NVGPR <= 255, NVGPR
REC = GV; RANK = GV + 32; AD = GV + 48
sX, sE, sW, sO, sT = 8, 12, 16, 20, 96
sWAVE, sBASE, sMR, sME, sCNT, sNT, sRS, sLIM, sFIRST, sMORE, sDS, sT0, sT1, sEPS, s80, sMET = range(24, 40)
sHM, sSV, sWF, sS0 = 42, 44, 52, 54
sK = 56
sG = 95
def addg(v):
    if G8: o(f"v_add_u32 v{v}, s{sG}, v{v}")
def saddg(r):
    if G8: o(f"s_add_u32 s{r}, s{r}, s{sG}")

def ldt(i): return f"buffer_load_dwordx4 {vr(IX[i],2)}, s[{sT}:{sT+3}], 0 idxen offen {OPT.get('tpol', '').replace('+', ' ')} lds".replace("  ", " ")
def lde(): return f"buffer_load_dwordx4 {vr(IXE,2)}, s[{sE}:{sE+3}], 0 idxen offen {OPT.get('epol', '').replace('+', ' ')} lds".replace("  ", " ")
def loff(u): return (u & 1) * 4096 + (u >> 1) * 256
def nextslot(r): return [f"s_add_u32 s{r}, s{r}, {SLOT}", f"s_cmp_eq_u32 s{r}, {NS*SLOT}", f"s_cselect_b32 s{r}, 0, s{r}"]

def vstream(Gc, Vc):
    A = []
    for p in range(0, 22, 2):
        if p < 16: A += [(f"v_exp_f32 v{Gc+p}, v{Gc+p}", 8), (f"v_exp_f32 v{Gc+p+1}, v{Gc+p+1}", 8)]
        q = p - 2
        if 0 <= q < 16:
            if 'a' in OPT.get('pk', ''): A += [(f"v_pk_add_f32 {vr(Gc+q,2)}, {vr(Gc+q,2)}, 1.0 op_sel_hi:[1,0]", 4)]
            else: A += [(f"v_add_f32 v{Gc+q}, 1.0, v{Gc+q}", 4), (f"v_add_f32 v{Gc+q+1}, 1.0, v{Gc+q+1}", 4)]
            A += [(f"v_rcp_f32 v{Gc+q}, v{Gc+q}", 8), (f"v_rcp_f32 v{Gc+q+1}, v{Gc+q+1}", 8)]
        q = p - 4
        if 0 <= q < 16 and 'm' in OPT.get('pk', ''): A += [(f"v_pk_mul_f32 {vr(Vc+q,2)}, {vr(Gc+q,2)}, {vr(Vc+q,2)}", 4)]
        elif 0 <= q < 16: A += [(f"v_mul_f32 v{Vc+q}, v{Gc+q}, v{Vc+q}", 4), (f"v_mul_f32 v{Vc+q+1}, v{Gc+q+1}, v{Vc+q+1}", 4)]
        q = p - 6
        if 0 <= q < 16: A += [(f"v_cvt_pk_bf16_f32 v{Gc+q//2}, v{Gc+q}, v{Gc+q+1}", 4), (f"v_cvt_pk_bf16_f32 v{Vc+q//2}, v{Vc+q}, v{Vc+q+1}", 4)]
    return A
def zphase(P, p):
    d = ACC + 32 * p
    return [m32(d, P, T0, d), m32(d+16, P+16, T0, d+16), m32(d, P+4, T0+4, d), m32(d+16, P+20, T0+4, d+16)]

HEAD = {}
def body(b, peel=False):
    p = b % 2
    Gn = GV + 32 * p; Vn = Gn + 16; Gc = GV + 32 * (1 - p); Vc = Gc + 16; af = AF + 8 * p
    ne = sum(1 for k in range(NS - 1) if (b - k) % 4 == 0) + (1 if (b - (NS - 1)) % 4 == 0 else 0)
    vmw = 4 * (NS - 1) + ne
    z = zphase(Gn, p)
    def dma(i): return [f"s_add_u32 m0, s{sMR}, {p*SLOT + i*1040}", None, ldt(i), f"ds_read_u16 v{IX[i]}, v{vL1} offset:{loff(b+NS+1)+64*i}"]
    top = ["s_waitcnt vmcnt(8) lgkmcnt(0)", "s_barrier"] if b == 3 else ["s_waitcnt lgkmcnt(0)"]
    if G8 and OPT.get('sp', '2103') != '0': top.append(f"s_setprio {OPT.get('sp', '2103')[b]}")
    if G8 and OPT.get('bar2') and b == 1: top.insert(1, "s_barrier")
    seq = []
    seq.append([z[0], [], [f"v_mad_u32_u24 v{vSV}, v{vSV}, s{s80}, v{vHC}"]])
    seq.append([z[1], [f"ds_read_b128 {vr(SF,4)}, v{vSV}", f"ds_read_b128 {vr(SF+4,4)}, v{vSV} offset:32"], []])
    seq.append([z[2], [f"ds_read_u8 v{vSV}, v{vSA} offset:{loff(b+1)}"], []])
    seq.append([z[3], [f"s_sub_u32 s{sCNT}, s{sCNT}, 1", f"s_cbranch_scc1 TAIL{p}", f"ENT{b}:"], []])
    seq.append([m32(Gn, TF, SEL, None), [f"ds_read_b128 {vr(T0,4)}, v{MQ}"], [f"v_and_b32 v{IXE}, 0x7ffff, v{IXE}"] if b == 0 else []])
    seq.append([m32(Gn, TF+4, SEL+4, Gn), [f"ds_read_b128 {vr(T0+4,4)}, v{MQ+1}"], [f"v_xor_b32 v{vEA}, v{vEA}, v{vMT}"] if b == 3 else []])
    seq.append([m32(Gn, EF, WC, Gn), [f"ds_read_b128 {vr(EF,4)}, v{vEA} offset:{(b+1)%4*1024}", f"ds_read_u16 v{MQ}, v{vMA} offset:{b*8}",
                f"ds_read_u16 v{MQ+1}, v{vMA} offset:{b*8+2}"], []])
    seq.append([m32(Vn, TF+8, SEL, None), [f"ds_read_b32 v{IXE}, v{vL2}"] if b == 3 else [], []])
    seq.append([m32(Vn, TF+12, SEL+4, Vn), ["s_waitcnt lgkmcnt(S)"], []])
    seq.append([m32(Gn, SF, af, Gn), [f"s_waitcnt vmcnt({vmw})"], []])
    seq.append([m32(Gn, SF+4, af+4, Gn), [f"ds_read_b128 {vr(TF+4*j,4)}, v{vTA} offset:{(1-p)*SLOT+16*j}" for j in range(4)],
                [f"v_add_u32 v{r}, 0x200, v{r}" for r in (vSA, vL1, vL2)] + [f"v_add_u32 v{vMA}, 32, v{vMA}"] if b == 3 else []])
    dp = [int(c) for c in OPT.get('dp', '03589')]
    for i in range(4): seq[dp[i]][1] = seq[dp[i]][1] + dma(i)
    if b == 0: seq[dp[4]][1] = seq[dp[4]][1] + [f"s_mov_b32 m0, s{sME}", None, lde(), f"s_xor_b32 s{sME}, s{sME}, s{sMET}"]
    A = [] if peel else vstream(Gc, Vc)
    wt = [float(x) for x in OPT.get('wt', '1,1,1,1,1,1,1,1,1,1,1.6').split(',')]
    tot = sum(c for _, c in A); out = list(top); ai = 0; acc = 0; budget = 0
    for i, (m, ex, xv) in enumerate(seq):
        budget += tot * wt[i] / sum(wt)
        g = []
        while ai < len(A) and acc + A[ai][1] / 2 <= budget + 0.01:
            g.append(A[ai][0]); acc += A[ai][1]; ai += 1
        if i == 3 and not peel: HEAD[b] = ai
        if not (peel and i < 4): out.append(m)
        g = xv + g
        last = [x for x in ex if x and (x.startswith("s_waitcnt") or x.startswith("s_cbranch") or x.endswith(":") or x.startswith("s_sub"))]
        ex = [x for x in ex if x not in last]
        if peel: last = [x for x in last if x.startswith("s_waitcnt")]
        first = True
        for x in ex:
            if x is None:
                continue
            if not first and g: out.append(g.pop(0))
            elif not first and peel and x.startswith("buffer"): out.append("s_nop 0")
            out.append(x); first = False
        out += g + last
    assert ai == len(A)
    i0 = max(i for i, x in enumerate(out) if x.startswith(f"ds_read_b128 {vr(SF+4,4)}")); i1 = out.index("s_waitcnt lgkmcnt(S)")
    out[i1] = f"s_waitcnt lgkmcnt({sum(1 for x in out[i0+1:i1] if x.startswith('ds_'))})"
    for i, x in enumerate(out):
        if x.startswith("buffer_load"): assert not out[i-1].split()[1].startswith("m0"), (out[i-1], x)
    if OPT.get('fakec'):
        n2 = []
        for x in out:
            if x.startswith("v_mfma") and (f", {vr(SEL,4)}," in x or f", {vr(SEL+4,4)}," in x):
                j = (int(re.findall(r"v\[(\d+):", x)[1]) - TF)
                n2 += [f"v_lshlrev_b32 v{Vn+j+k}, 16, v{TF+j+k}" for k in range(4)]
            elif x == m32(Gn, EF, WC, Gn): n2.append(m32(Gn, EF, WC, TF))
            elif x.startswith("ds_read_b128") and f"v{vTA} " in x:
                j = int(re.findall(r"v\[(\d+):", x)[0]) - TF
                n2 += [f"ds_read2st64_b32 {vr(TF+j+2*k,2)}, v{vTC} offset0:{(1-p)*65+j+2*k} offset1:{(1-p)*65+j+2*k+1}" for k in range(2)]
            else: n2.append(x)
        out = n2
    if OPT.get('notrans'): out = [x.replace("v_exp_f32", "v_mov_b32").replace("v_rcp_f32", "v_mov_b32") for x in out]
    if OPT.get('noval'): out = ["s_nop 0" if (x.startswith("v_exp") or x.startswith("v_rcp")) else x for x in out if not (x.startswith("v_add_f32") or x.startswith("v_mul_f32") or x.startswith("v_cvt"))]
    if OPT.get('nodma'): out = [x for x in out if 'buffer_load' not in x]
    if OPT.get('noe'): out = [x for x in out if f"s[{sE}:{sE+3}]" not in x]
    return out

def emit(lst):
    for it in lst:
        if it.endswith(':'): lab(it[:-1])
        else: o(it)

def masks(tmp):
    a, b_, c = tmp
    o(f"v_and_b32 v{a}, 3, v0"); o(f"v_lshlrev_b32 v{a}, 1, v{a}"); o(f"v_mov_b32 v{c}, 0")
    for i in range(4):
        o(f"v_lshrrev_b32 v{b_}, 19, v{SEG+i}"); o(f"v_max_u32 v{c}, v{c}, v{b_}")
        o(f"v_min_u32 v{b_}, s{sLIM}, v{b_}"); o(f"v_sub_u32 v{b_}, v{b_}, v{a}")
        for j, k in ((0, 2*i), (1, 2*i+1), (8, 8+2*i), (9, 9+2*i)): o(f"v_cmp_lt_i32 s[{sK+2*k}:{sK+2*k+1}], {j}, v{b_}")
    o(f"v_cmp_lt_u32 vcc, s{sLIM}, v{c}")
    o(f"s_or_b64 s[{sSV}:{sSV+1}], s[{sK+16}:{sK+17}], s[{sK+20}:{sK+21}]"); o(f"s_or_b64 s[{sHM}:{sHM+1}], s[{sK+24}:{sK+25}], s[{sK+28}:{sK+29}]")
    o(f"s_or_b64 s[{sSV}:{sSV+1}], s[{sSV}:{sSV+1}], s[{sHM}:{sHM+1}]")
    o(f"v_mov_b32 v{b_}, {CNT-4}"); addg(b_)
    o("s_mov_b64 exec, vcc"); o(f"ds_write_b32 v{b_}, v{b_}"); o("s_mov_b64 exec, -1")

def interleave(mf, other, per):
    other = list(other)
    for m in mf:
        o(m)
        for _ in range(per):
            if other: o(other.pop(0))
    for x in other: o(x)
def capture(fn):
    n = len(L); fn(); r = [x.strip() for x in L[n:]]; del L[n:]; return r
def wload(dst, off):
    r = []
    for s in range(8):
        if s % 4 == 0: r.append(f"s_add_u32 s{sT0}, s{sWF}, {off + s*1024:#x}")
        r.append(f"buffer_load_dwordx4 {vr(dst+4*s,4)}, v{vWF}, s[{sW}:{sW+3}], s{sT0} offen offset:{(s%4)*1024}")
    return r
def xblk(base, pair):
    o(f"v_mov_b32 v{pair+1}, v{vXO}")
    for mt in range(2):
        for a in range(2):
            o(f"s_add_u32 m0, s{base}, {(2*mt+a)*1040}")
            o(f"v_cmp_gt_u32 vcc, {(NA if mt == 0 else RN-NA) - 2*a}, v{vXI}")
            o(f"s_add_u32 s{sT0}, s{sBASE}, {NA*mt + 2*a}"); o(f"v_add_u32 v{pair}, s{sT0}, v{vXI}")
            o(f"v_cndmask_b32 v{pair}, v{PT+3}, v{pair}, vcc")
            o(f"buffer_load_dwordx4 {vr(pair,2)}, s[{sX}:{sX+3}], 0 idxen offen lds")

def gen_k2():
    L.append(".globl gmain_kernel"); L.append(".p2align 8"); L.append(".type gmain_kernel,@function")
    lab("gmain_kernel"); VST[0] = 255
    t = [TF + i for i in range(28)]
    stamp(0)
    o("s_load_dwordx2 s[50:51], s[0:1], 88")
    o("s_load_dwordx4 s[4:7], s[0:1], 0")
    o("s_load_dwordx2 s[48:49], s[0:1], 72")
    o("s_setprio 3")
    o(f"v_lshrrev_b32 v{t[0]}, 6, v0")
    o("s_and_b32 s3, s2, 7"); o("s_lshl_b32 s3, s3, 6"); o(f"s_bfe_u32 s{sT0}, s2, 0x50003"); o(f"s_lshl1_add_u32 s3, s{sT0}, s3")
    o(f"v_readfirstlane_b32 s{sWAVE}, v{t[0]}")
    if G8:
        o("v_and_b32 v0, 0xff, v0"); o(f"s_lshr_b32 s{sT0}, s{sWAVE}, 2"); o(f"s_and_b32 s{sWAVE}, s{sWAVE}, 3"); o(f"s_mul_i32 s{sG}, s{sT0}, {GS}")
    else: o(f"s_lshr_b32 s{sT0}, s2, 8")
    o(f"s_add_u32 s3, s3, s{sT0}")
    o(f"s_cmp_ge_u32 s2, {256 if G8 else 512}"); o("s_cbranch_scc1 K2_END")
    o(f"s_cmp_ge_u32 s3, {NR}"); o("s_cbranch_scc1 K2_END")
    o(f"v_lshrrev_b32 v{t[1]}, 2, v0")
    o(f"s_lshr_b32 s{sS0}, s3, 2"); o(f"s_mul_i32 s{sS0}, s{sS0}, {OG}"); o(f"s_and_b32 s{sT0}, s3, 3"); o(f"s_lshl2_add_u32 s{sS0}, s{sT0}, s{sS0}"); o(f"s_add_u32 s{sS0}, s{sS0}, {WS_OFF:#x}")
    if OPT.get('offc'):
        o(f"s_lshl_b32 s{sS0}, s3, 2"); o(f"s_add_u32 s{sS0}, s{sS0}, {WS_OFF:#x}"); o(f"s_add_u32 s{sS0+1}, s{sS0}, 4352"); o(f"v_mul_u32_u24 v{t[1]}, 8704, v{t[1]}")
    else: o(f"v_lshlrev_b32 v{t[1]}, 6, v{t[1]}")
    o(f"s_mul_i32 s{sBASE}, s3, {RN}")
    o(f"v_and_b32 v{vWF}, 63, v0"); o(f"v_lshlrev_b32 v{vWF}, 4, v{vWF}")
    o(f"s_mul_i32 s{sMR}, s{sWAVE}, {WS_}"); o(f"s_add_u32 s{sMR}, s{sMR}, {RING}"); saddg(sMR)
    o(f"s_lshl_b32 s{sWF}, s{sWAVE}, 13"); o(f"s_add_u32 s{sWF}, s{sWF}, {WS_WF:#x}")
    o(f"s_mov_b32 s40, {EPS:#x}"); o("s_mov_b32 s41, s40"); o(f"s_movk_i32 s{s80}, 80")
    o(f"s_mov_b32 s{sFIRST}, 1"); o(f"s_mov_b32 s{sLIM}, 16")
    o("s_cmp_ge_u32 s2, 256"); o(f"s_cselect_b32 s{sRS}, {OPT.get('bon', 0)}, 0")
    o("s_waitcnt lgkmcnt(0)"); xstamp("karg")
    srd(sW, 50, WS_SIZE)
    for i in range(4): o(f"buffer_load_dword v{SEG+i}, v{t[1]}, s[{sW}:{sW+3}], s{sS0} offen offset:{16*i}" if not OPT.get('offc') else f"buffer_load_dword v{SEG+i}, v{t[1]}, s[{sW}:{sW+3}], s{sS0 + i//2} offen offset:{(i%2)*2176}")
    srd(sX, 4, N, 256); srd(sE, 6, E, 32); srd(sO, 48, N, 256)
    o(f"s_add_u32 s50, s50, {WS_TAB:#x}"); o("s_addc_u32 s51, s51, 0")
    if SM: o(f"s_mul_i32 s{sT0}, s{sWAVE}, {SMS}"); o(f"s_add_u32 s50, s50, s{sT0}"); o("s_addc_u32 s51, s51, 0")
    srd(sT, 50, N, 128 if SM else 512)
    WAP = OPT.get('wap', 'p1'); XBP = OPT.get('xbp', 'p1'); ORD = ['start', 'rec', 'mask', 'p1', 'b1']
    def place(where):
        if where not in (WAP, XBP): return
        o(f"s_cmp_eq_u32 s{sFIRST}, 0"); o(f"s_cbranch_scc1 NOW_{where}")
        if XBP == where:
            o(f"s_add_u32 s{sNT}, s{sMR}, {NS*SLOT}")
            xblk(sNT, T0)
        if WAP == where:
            for x in wload(ACC, WF_A): o(x)
            o(f"s_lshl_b32 s{sT0}, s{sWAVE}, 10"); o(f"s_add_u32 s{sT0}, s{sT0}, {WS_WF+WF_C:#x}")
            o(f"buffer_load_dwordx4 {vr(WC,4)}, v{vWF}, s[{sW}:{sW+3}], s{sT0} offen")
        if OPT.get('otouch') and WAP == where:
            o(f"v_mov_b32 v{T0+6}, s{sBASE}"); o(f"buffer_load_dword v{SEL}, v{T0+6}, s[{sO}:{sO+3}], 0 idxen")
        lab(f"NOW_{where}")
    def cnt(lo, hi): return sum(n for p, n in ((WAP, 9), (XBP, 4)) if lo <= ORD.index(p) <= hi)
    SP = [int(x) for x in OPT.get('spf', '0,0').split(',')]
    def spref(n, first):
        for k in range(n): o(f"s_load_dword s{88 + k % 4}, s[46:47], {(first + k) * 32768:#x}")
    if sum(SP):
        o(f"s_and_b32 s{sT0}, s3, 63"); o(f"s_lshl2_add_u32 s{sT0}, s{sT0}, s{sWAVE}"); o(f"s_lshl_b32 s{sT0}, s{sT0}, 7")
        o(f"s_add_u32 s46, s50, s{sT0}"); o("s_addc_u32 s47, s51, 0")
        spref(SP[0], 0)
    lab("ROUND")
    b0, b2, b3, b4, vh = t[16:21]
    o(f"v_lshlrev_b32 v{t[11]}, 4, v0"); addg(t[11])
    for d in range(4): o(f"v_mov_b32 v{t[0]+d}, 0")
    for off in (0, ZSZ - 4096): o(f"ds_write_b128 v{t[11]}, {vr(t[0],4)} offset:{MB+off}")
    pad0 = 0xffff | (NA << 16)
    o(f"v_mov_b32 v{t[4]}, {pad0:#x}"); o(f"v_mov_b32 v{t[5]}, 0x7ffff"); o(f"v_mov_b32 v{t[6]}, {pad0:#x}"); o(f"v_mov_b32 v{t[7]}, 0x7ffff")
    o(f"ds_write_b128 v{t[11]}, {vr(t[4],4)} offset:{LIST}"); o(f"ds_write_b128 v{t[11]}, {vr(t[4],4)} offset:{LIST+4096}")
    o(f"v_and_b32 v{b0}, 1, v0"); o(f"v_bfe_u32 v{b2}, v0, 2, 1"); o(f"v_bfe_u32 v{b3}, v0, 3, 1"); o(f"v_bfe_u32 v{b4}, v0, 4, 1"); o(f"v_bfe_u32 v{vh}, v0, 5, 1")
    o(f"v_and_b32 v{t[8]}, 3, v0"); o(f"v_lshlrev_b32 v{t[8]}, 1, v{t[8]}")
    o(f"v_mov_b32 v{t[9]}, 0x7ffffff0"); o(f"s_mov_b32 s{sT1}, 0x7ffff")
    o(f"v_and_b32 v{t[12]}, 15, v0"); o(f"v_lshlrev_b32 v{t[13]}, 3, v{b4}")
    o(f"v_xor_b32 v{vXO}, v{t[12]}, v{t[13]}"); o(f"v_lshlrev_b32 v{vXO}, 4, v{vXO}")
    o(f"s_lshr_b32 s{sT0}, s{sWAVE}, 1"); o(f"s_lshl_b32 s{sT0}, s{sT0}, 4"); o(f"s_and_b32 s{sS0}, s{sWAVE}, 1"); o(f"s_lshl2_add_u32 s{sT0}, s{sS0}, s{sT0}")
    o(f"v_lshl_add_u32 v{vXI}, v{vh}, 3, v{b4}"); o(f"v_add_u32 v{vXI}, s{sT0}, v{vXI}")
    o(f"v_mov_b32 v{PT+3}, 0xffff")
    place('start')
    xstamp("consts_done")
    o(f"s_waitcnt vmcnt({cnt(0, 0)})"); stamp(1)
    for i in range(4):
        o(f"v_lshrrev_b32 v{t[4+i]}, 19, v{SEG+i}"); o(f"v_cmp_lt_u32 vcc, v{t[8]}, v{t[4+i]}")
        o(f"v_and_b32 v{t[i]}, s{sT1}, v{SEG+i}"); o(f"v_add_lshl_u32 v{t[i]}, v{t[i]}, v{t[8]}, 3")
        o(f"v_cndmask_b32 v{t[10]}, v{t[9]}, v{t[i]}, vcc")
        o(f"buffer_load_dwordx4 {vr(REC+4*i,4)}, v{t[10]}, s[{sW}:{sW+3}], 0 offen")
    o(f"v_max3_u32 v{t[10]}, v{t[4]}, v{t[5]}, v{t[6]}"); o(f"v_max_u32 v{t[10]}, v{t[10]}, v{t[7]}")
    o(f"v_cmp_lt_u32 vcc, 8, v{t[10]}"); o("s_cbranch_vccz REC_DONE")
    for i in range(4): o(f"buffer_load_dwordx4 {vr(REC+16+4*i,4)}, v{t[i]}, s[{sW}:{sW+3}], 0 offen offset:64")
    lab("REC_DONE")
    xstamp("rec_issued")
    PF = int(OPT.get('pf', 0))
    def pref():
        o(f"s_lshr_b32 s{sT0}, s3, 6"); o(f"s_mul_i32 s{sT0}, s{sT0}, {64*RN}"); o(f"s_and_b32 s{sT1}, s3, 63"); o(f"s_lshl_b32 s{sT1}, s{sT1}, 6"); o(f"s_add_u32 s{sT0}, s{sT0}, s{sT1}")
        o(f"v_lshrrev_b32 v{T0+2}, 2, v0"); o(f"v_add_u32 v{T0+2}, s{sT0}, v{T0+2}"); o(f"v_and_b32 v{T0+1}, 3, v0"); o(f"v_lshlrev_b32 v{T0+1}, 7, v{T0+1}")
        for k in range(PF):
            o(f"v_add_u32 v{T0+3}, {-512*RN}, v{T0+2}"); o(f"v_min_u32 v{T0}, v{T0+2}, v{T0+3}")
            o(f"buffer_load_dword v{SEL}, {vr(T0,2)}, s[{sT}:{sT+3}], 0 idxen offen")
            if k + 1 < PF: o(f"v_add_u32 v{T0+2}, 4096, v{T0+2}")
    PFW = OPT.get('pfw', 'rec')
    place('rec')
    if PF and PFW == 'rec': pref()
    o("s_waitcnt lgkmcnt(0)"); o("s_barrier"); stamp(2)
    spref(SP[1], SP[0])
    pp = t[14]
    o(f"v_and_b32 v{pp}, 0x13, v0"); o(f"v_lshl_or_b32 v{pp}, v{b2}, 3, v{pp}"); o(f"v_lshl_or_b32 v{pp}, v{b3}, 2, v{pp}")
    o(f"v_lshrrev_b32 v{t[12]}, 3, v{pp}"); o(f"v_lshlrev_b32 v{vTA}, 7, v{pp}"); o(f"v_lshl_add_u32 v{vTA}, v{t[12]}, 4, v{vTA}")
    o(f"v_bfe_u32 v{t[13]}, v0, 1, 1"); o(f"v_xor_b32 v{t[12]}, v{t[13]}, v{vh}"); o(f"v_lshl_add_u32 v{vTA}, v{t[12]}, 6, v{vTA}"); o(f"v_add_u32 v{vTA}, s{sMR}, v{vTA}")
    o(f"v_and_b32 v{t[12]}, 7, v0"); o(f"v_lshlrev_b32 v{t[15]}, 2, v{b4}"); o(f"v_xor_b32 v{t[15]}, v{t[15]}, v{t[12]}")
    o(f"s_mov_b32 s{sT0}, 0" if SM else f"s_lshl_b32 s{sT0}, s{sWAVE}, 7"); o(f"v_lshl_add_u32 v{IX[0]+1}, v{t[15]}, 4, s{sT0}")
    for i in range(1, 4): o(f"v_mov_b32 v{IX[i]+1}, v{IX[0]+1}")
    o(f"v_and_b32 v{vL1}, 0x38, v0"); o(f"v_add_u32 v{vL1}, {LIST}, v{vL1}"); addg(vL1)
    o(f"v_lshl_or_b32 v{t[15]}, v{b4}, 1, v{b2}"); o(f"v_mul_u32_u24 v{t[15]}, {WS_}, v{t[15]}"); o(f"v_mul_u32_u24 v{t[13]}, 1040, v{t[13]}")
    o(f"v_lshl_or_b32 v{t[21]}, v{b3}, 1, v{b0}"); o(f"v_lshl_add_u32 v{t[15]}, v{t[21]}, 8, v{t[15]}"); o(f"v_add3_u32 v{t[15]}, v{t[15]}, v{t[13]}, {'s%d' % sG if G8 else 0}")
    o(f"v_add_u32 v{t[15]}, {RING + NS*SLOT}, v{t[15]}")
    o(f"v_xor_b32 v{t[13]}, v{vh}, v{b0}"); o(f"v_lshl_add_u32 v{vXA}, v{t[13]}, 7, v{t[15]}")
    o(f"v_lshlrev_b32 v{IXE+1}, 4, v{t[13]}")
    o(f"v_bfe_u32 v{t[13]}, v0, 7, 1"); o(f"v_xor_b32 v{t[13]}, v{t[13]}, v{b0}"); o(f"v_lshl_add_u32 v{vXR}, v{t[13]}, 7, v{t[15]}")
    o(f"v_and_b32 v{t[13]}, 0x60, v0"); o(f"v_add_u32 v{vXR}, v{vXR}, v{t[13]}")
    o(f"s_lshl_b32 s{sT0}, s{sS0}, 12"); o(f"s_lshr_b32 s{sT1}, s{sWAVE}, 1"); o(f"s_lshl_b32 s{sT1}, s{sT1}, 8"); o(f"s_add_u32 s{sT0}, s{sT0}, s{sT1}"); o(f"s_add_u32 s{sT0}, s{sT0}, {LIST+4}"); saddg(sT0)
    o(f"v_bfe_u32 v{vL2}, v0, 1, 5"); o(f"v_lshl_add_u32 v{vL2}, v{vL2}, 3, s{sT0}")
    o(f"s_lshl_b32 s{sME}, s{sWAVE}, 10"); o(f"s_add_u32 s{sME}, s{sME}, {ER}"); saddg(sME)
    o(f"v_lshlrev_b32 v{vSA}, 3, v{pp}"); o(f"v_add_u32 v{vSA}, {LIST+2}, v{vSA}"); addg(vSA)
    o(f"v_lshlrev_b32 v{vHC}, 4, v{vh}"); o(f"v_add_u32 v{vHC}, {IDT}, v{vHC}")
    o(f"v_xor_b32 v{vEA}, v{b4}, v{vh}"); o(f"v_lshlrev_b32 v{vEA}, 4, v{vEA}")
    o(f"v_lshl_add_u32 v{vEA}, v{pp}, 5, v{vEA}"); o(f"v_add_u32 v{vEA}, {ER}, v{vEA}"); addg(vEA)
    o(f"v_add_u32 v{vMT}, 4096, v{vEA}"); o(f"v_xor_b32 v{vMT}, v{vMT}, v{vEA}")
    o(f"v_and_b32 v{t[13]}, 31, v0"); o(f"v_min_u32 v{t[13]}, {NA}, v{t[13]}")
    o(f"v_mul_u32_u24 v{vMA}, {ROW}, v{t[13]}"); o(f"v_lshl_add_u32 v{vMA}, v{vh}, 2, v{vMA}"); o(f"v_add_u32 v{vMA}, {MB}, v{vMA}"); addg(vMA)
    o(f"v_lshrrev_b32 v{PT+2}, 5, v0"); o(f"v_lshlrev_b32 v{PT+2}, 4, v{PT+2}"); o(f"v_lshl_add_u32 v{PT+2}, v{b3}, 2, v{PT+2}"); addg(PT+2)
    o(f"v_lshl_add_u32 v{t[12]}, v{b4}, 4, v{t[12]}"); o(f"v_lshlrev_b32 v{PT+1}, v{t[12]}, 16")
    o(f"v_and_b32 v{t[12]}, 3, v0"); o(f"v_lshl_add_u32 v{t[12]}, v{b4}, 2, v{t[12]}"); o(f"v_lshlrev_b32 v{t[12]}, v{t[12]}, 16")
    o(f"v_cmp_eq_u32 vcc, v{b3}, v{vh}"); o(f"v_lshlrev_b32 v{t[13]}, 4, v{b2}"); o("s_nop 0")
    o(f"v_cndmask_b32 v{t[12]}, 0, v{t[12]}, vcc"); o(f"v_lshlrev_b32 v{PT}, v{t[13]}, v{t[12]}")
    place('mask')
    if cnt(1, 2):
        o(f"s_cmp_eq_u32 s{sFIRST}, 1"); o("s_cbranch_scc1 REMASK"); o("s_waitcnt vmcnt(0)")
    lab("REMASK")
    masks((t[0], t[1], t[2])); xstamp("masks_done")
    a, b_, c, d_ = t[0:4]; ad = [AD + k for k in range(16)]
    o(f"v_mov_b32 v{a}, 8")
    o(f"v_lshrrev_b32 v{b_}, 2, v{vWF}"); addg(b_)
    if G8: o(f"s_lshr_b32 s{sDS}, s{sG}, 8")
    if PF and PFW == 'mask': pref()
    o(f"s_waitcnt vmcnt({cnt(1, 2)})"); xstamp("rec_landed")
    for half in range(2):
        if half: o(f"s_cmp_eq_u64 s[{sSV}:{sSV+1}], 0"); o("s_cbranch_scc1 P1_DONE"); o("s_mov_b64 exec, -1")
        for k in range(8*half, 8*half+8): o(f"v_alignbit_b32 v{ad[k]}, s{sDS}, v{REC+2*k+1}, 24" if G8 else f"v_lshrrev_b32 v{ad[k]}, 24, v{REC+2*k+1}")
        for k in range(8*half, 8*half+8):
            o(f"s_mov_b64 exec, s[{sK+2*k}:{sK+2*k+1}]")
            o(f"ds_add_rtn_u32 v{RANK+k}, v{ad[k]}, v{a} offset:{CNT}")
    lab("P1_DONE")
    o("s_mov_b64 exec, -1")
    EP = OPT.get('ep', '')
    def epf():
        o(f"s_mov_b32 s{sT1}, {int(OPT.get('epm', '0x7007ffff'), 0):#x}")
        for k in range(8):
            o(f"v_and_b32 v{T0+k}, s{sT1}, v{REC+2*k+1}"); o(f"buffer_load_dword v{SEL}, v{T0+k}, s[{sE}:{sE+3}], 0 idxen")
    if EP == 'a': epf()
    place('p1')
    if EP == 'b': epf()
    if PF and PFW == 'p1': pref()
    o("s_waitcnt lgkmcnt(0)"); xstamp("p1_done"); o("s_barrier"); xstamp("b1")
    o(f"ds_read_b32 v{c}, v{b_} offset:{CNT}")
    o(f"ds_read_b32 v{t[4]}, v{b_} offset:{CNT-4}")
    place('b1')
    o(f"v_lshlrev_b32 v{t[5]}, 12, v{vh}"); addg(t[5])
    o("s_waitcnt lgkmcnt(1)")
    o(f"v_sub_u32 v{d_}, v{t[5]}, v{c}")
    for dd in ("row_shr:1", "row_shr:2", "row_shr:4", "row_shr:8"):
        o(f"v_add_u32_dpp v{c}, v{c}, v{c} {dd} row_mask:0xf bank_mask:0xf bound_ctrl:0"); o("s_nop 1")
    o(f"v_add_u32_dpp v{c}, v{c}, v{c} row_bcast:15 row_mask:0xa bank_mask:0xf")
    o(f"v_add_u32 v{d_}, v{c}, v{d_}")
    o(f"ds_write_b32 v{b_}, v{d_} offset:{NB}")
    o(f"v_readlane_b32 s{sNT}, v{c}, 31"); o(f"v_readlane_b32 s{sCNT}, v{c}, 63")
    for k in range(8): o(f"ds_read_b32 v{ad[k]}, v{ad[k]} offset:{NB}")
    o(f"s_max_u32 s{sT0}, s{sNT}, s{sCNT}")
    o(f"s_cmp_le_u32 s{sT0}, 4096"); o("s_cbranch_scc0 TOOBIG")
    xstamp("scan_done")
    for half in range(2):
        if half:
            o(f"s_cmp_eq_u64 s[{sSV}:{sSV+1}], 0"); o("s_cbranch_scc1 P2_DONE"); o("s_mov_b64 exec, -1")
            for k in range(8, 16): o(f"ds_read_b32 v{ad[k]}, v{ad[k]} offset:{NB}")
        for k in range(8*half, 8*half+8):
            if k % 4 == 0: o(f"s_waitcnt lgkmcnt({4 - k % 8})")
            o(f"v_add_u32 v{RANK+k}, v{RANK+k}, v{ad[k]}")
        for k in range(8*half, 8*half+8):
            o(f"s_mov_b64 exec, s[{sK+2*k}:{sK+2*k+1}]")
            o(f"ds_write_b64 v{RANK+k}, {vr(REC+2*k,2)} offset:{LIST}")
    lab("P2_DONE")
    o("s_mov_b64 exec, -1")
    o(f"v_readlane_b32 s{sMORE}, v{t[4]}, 0")
    o(f"s_mov_b32 m0, s{sME}")
    o(f"s_waitcnt vmcnt({9 + (8 if EP == 'b' else 0) if ORD.index(WAP) >= ORD.index(XBP) else 0}) lgkmcnt(0)"); xstamp("p2_done"); o("s_barrier"); stamp(5)
    f = t
    def rdidx(u):
        for i in range(4): o(f"ds_read_u16 v{IX[i]}, v{vL1} offset:{loff(u)+64*i}")
    def fill(u, nxt):
        for i in range(4):
            o(f"s_add_u32 m0, s{sMR}, {u*SLOT + i*1040}"); o(f"s_waitcnt lgkmcnt(3)"); o(ldt(i))
            o(f"ds_read_u16 v{IX[i]}, v{vL1} offset:{loff(nxt)+64*i}")
    o(f"ds_read_b32 v{IXE}, v{vL2}"); rdidx(0)
    o(f"v_lshlrev_b32 v{f[9]}, 3, v0"); addg(f[9])
    o("s_waitcnt lgkmcnt(4)")
    o(f"v_and_b32 v{IXE}, 0x7ffff, v{IXE}"); o(lde())
    NFO = int(OPT.get('nfo', 2)); NFY = int(OPT.get('nfy', 2))
    def fills(lo_o, hi_o, lo_y, hi_y, tag, wait):
        if (lo_o, hi_o) == (lo_y, hi_y):
            for u in range(lo_o, hi_o): fill(u, u + 1)
            return
        o("s_cmp_ge_u32 s2, 256"); o(f"s_cbranch_scc1 {tag}_Y")
        for u in range(lo_o, hi_o): fill(u, u + 1)
        if wait: o(f"s_waitcnt vmcnt({2+4*hi_o})")
        o(f"s_branch {tag}_D")
        lab(f"{tag}_Y")
        for u in range(lo_y, hi_y): fill(u, u + 1)
        if wait: o(f"s_waitcnt vmcnt({2+4*hi_y})")
        lab(f"{tag}_D")
    fills(0, NFO, 0, NFY, "FA", True)
    for k in range(4): o(f"ds_read_u8 v{f[12+k]}, v{f[9]} offset:{LIST+2+k*2048}")
    o(f"ds_read_b32 v{IXE}, v{vL2} offset:512"); o(f"ds_read_u8 v{vSV}, v{vSA}")
    xstamp("fill_issued")
    def ctrl():
        o(f"s_movk_i32 s{sS0}, {ROW}")
        for k in range(4):
            o(f"v_cmp_gt_u32 vcc, {NA}, v{f[12+k]}"); o(f"v_mad_u32_u24 v{f[0]}, v{f[12+k]}, s{sS0}, v{PT+2}"); o("s_nop 0")
            o(f"v_cndmask_b32 v{f[1]}, 0, v{PT+1}, vcc")
            o(f"ds_or_b32 v{f[0]}, v{f[1]} offset:{MB + (k&1)*128 + (k>>1)*8}")
        o(f"s_add_u32 s{sNT}, s{sNT}, 255"); o(f"s_lshr_b32 s{sNT}, s{sNT}, 8"); o(f"s_lshl1_add_u32 s{sNT}, s{sNT}, -1")
        o(f"s_add_u32 s{sCNT}, s{sCNT}, 255"); o(f"s_lshr_b32 s{sCNT}, s{sCNT}, 8"); o(f"s_lshl_b32 s{sCNT}, s{sCNT}, 1")
        o(f"s_max_i32 s{sNT}, s{sNT}, s{sCNT}"); o(f"s_max_i32 s{sNT}, s{sNT}, 2"); o(f"s_sub_u32 s{sCNT}, s{sNT}, 2")
        o(f"s_add_u32 s{sMET}, s{sME}, 4096"); o(f"s_xor_b32 s{sMET}, s{sMET}, s{sME}"); o(f"s_add_u32 s{sME}, s{sME}, 4096")
        o(f"v_add_u32 v{vL2}, 0x400, v{vL2}")
    def lut():
        q = T0
        for d in range(4):
            o(f"v_bfe_u32 v{q+d}, v0, {2*d}, 2"); o(f"v_mul_u32_u24 v{q+d}, 0x8001, v{q+d}")
            o(f"v_and_b32 v{q+d}, 0x10001, v{q+d}"); o(f"v_mul_u32_u24 v{q+d}, 0x3f80, v{q+d}")
        o(f"v_lshlrev_b32 v{q+4}, 4, v0"); o(f"ds_write_b128 v{q+4}, {vr(q,4)} offset:{LUT}")
        o(f"v_lshrrev_b32 v{q}, 3, v0"); o(f"v_and_b32 v{q+1}, 7, v0")
        o(f"v_bfe_u32 v{q+2}, v0, 5, 1"); o(f"v_bfe_u32 v{q+3}, v0, 6, 1"); o(f"v_lshl_or_b32 v{q+2}, v{q+2}, 1, v{q+3}")
        o(f"v_lshrrev_b32 v{q+3}, 7, v0"); o(f"v_lshl_or_b32 v{q+2}, v{q+3}, 2, v{q+2}")
        o(f"v_cmp_eq_u32 vcc, v{q+2}, v{q+1}"); o(f"v_cmp_gt_u32 s[{sHM}:{sHM+1}], {NA}, v{q}"); o(f"v_mov_b32 v{q+6}, 0x3f80"); o(f"v_mov_b32 v{q+7}, 0")
        o(f"s_and_b64 vcc, vcc, s[{sHM}:{sHM+1}]")
        o(f"v_and_b32 v{q+2}, 3, v{q}"); o(f"v_lshlrev_b32 v{q+2}, 4, v{q+2}"); o(f"v_cndmask_b32 v{q+6}, 0, v{q+6}, vcc")
        o(f"v_lshlrev_b64 {vr(q+6,2)}, v{q+2}, {vr(q+6,2)}")
        o(f"v_min_u32 v{q}, {NA}, v{q}"); o(f"v_mul_u32_u24 v{q}, 80, v{q}"); o(f"v_lshl_add_u32 v{q}, v{q+1}, 3, v{q}")
        o(f"ds_write_b64 v{q}, {vr(q+6,2)} offset:{IDT}")
    o(f"s_cmp_eq_u32 s{sFIRST}, 1"); o("s_cbranch_scc1 G1")
    o("s_waitcnt lgkmcnt(0)")
    ctrl()
    o("s_branch G1D")
    lab("G1")
    for mt in range(2):
        for s in range(8): o(f"ds_read_b128 {vr(GV+32*mt+4*s,4)}, v{vXA} offset:{mt*2080 + 16*s}")
        if mt == 0: o("s_waitcnt lgkmcnt(8)")
    lt = capture(lut); ct = capture(ctrl)
    for x in lt[:18]: o(x)
    o(f"s_waitcnt vmcnt({4*max(NFO, NFY)+2+(8 if EP == 'b' else 0)}) lgkmcnt(9)")
    acc = [ACC + 32, ACC + 48]
    interleave([m32(acc[0], GV+4*s, ACC+4*s, None if s == 0 else acc[0]) for s in range(8)], lt[18:] + ct[:16], 5)
    o("s_waitcnt lgkmcnt(5)")
    def cv(mt): return [f"v_cvt_pk_bf16_f32 v{AF+8*mt+r//2}, v{acc[mt]+r}, v{acc[mt]+r+1}" for r in range(0, 16, 2)]
    interleave([m32(acc[1], GV+32+4*s, ACC+4*s, None if s == 0 else acc[1]) for s in range(8)],
               ct[16:] + cv(0) + [f"v_mov_b64 {vr(acc[0]+r,2)}, s[40:41]" for r in range(0, 16, 2)], 5)
    for r in range(0, 32, 2): o(f"v_mov_b64 {vr(ACC+r,2)}, {'s[40:41]' if r < 16 else 0}")
    for x in cv(1): o(x)
    for r in range(0, 16, 2): o(f"v_mov_b64 {vr(acc[1]+r,2)}, 0")
    if STAMP:
        o("s_getreg_b32 s94, hwreg(HW_REG_HW_ID)"); o("s_getreg_b32 s100, hwreg(HW_REG_XCC_ID)"); o("s_and_b32 s94, s94, 0xffff"); o("s_lshl_b32 s100, s100, 16"); o("s_or_b32 s94, s94, s100"); o(f"v_writelane_b32 v{VST[0]}, s94, 3")
    lab("G1D")
    o(f"v_and_b32 v{MQ}, 0xffff, v{PT}"); o(f"v_lshrrev_b32 v{MQ+1}, 16, v{PT}")
    xstamp("g1_done"); stamp(4)
    fills(NFO, NS, NFY, NS, "FB", False)
    o(f"s_waitcnt vmcnt({4*(NS-1)}) lgkmcnt(0)"); xstamp("t0_landed"); o("s_barrier")
    o(f"ds_read_b128 {vr(SEL,4)}, v{MQ}"); o(f"ds_read_b128 {vr(SEL+4,4)}, v{MQ+1}")
    o(f"ds_read_b128 {vr(EF,4)}, v{vEA}")
    for j in range(4): o(f"ds_read_b128 {vr(TF+4*j,4)}, v{vTA} offset:{16*j}")
    o(f"s_setprio {OPT.get('lp', 2)}")
    if OPT.get('young'):
        o("s_cmp_lt_u32 s2, 256"); o("s_cbranch_scc1 OLD"); o(f"s_setprio {OPT['young']}"); lab("OLD")
    if OPT.get('fakec'): o(f"v_lshrrev_b32 v{vTC}, 2, v{vWF}"); o(f"v_add_u32 v{vTC}, s{sMR}, v{vTC}")
    stamp(6); stamp(8, "s_memtime")
    bodies = [body(b) for b in range(4)]
    if not OPT.get('noval') and not OPT.get('fakec'): check_hazards(sum(bodies, []) + ["s_branch LOOP"])
    emit(body(0, peel=True))
    b1 = bodies[1][:bodies[1].index("ENT1:")]
    o("s_nop 7")
    emit([x for x in b1 if not x.startswith(("v_mfma", "s_sub", "s_cbranch"))])
    o("s_branch ENT1")
    lab("TOOBIG")
    o(f"s_mov_b32 s{sLIM}, {LOWLIM}"); o(f"v_mov_b32 v{a}, 0")
    o("s_waitcnt lgkmcnt(0)"); o("s_barrier")
    o(f"ds_write_b32 v{b_}, v{a} offset:{CNT}")
    o("s_waitcnt lgkmcnt(0)"); o("s_barrier")
    o("s_branch REMASK")
    lab("LOOP")
    emit(sum(bodies, []))
    if OPT.get('pp', '99,8,4') != '0' and not G8:
        th = [int(x) for x in OPT.get('pp', '99,8,4').split(',')]
        o(f"s_add_u32 s{sT0}, s{sCNT}, s{sRS}")
        for k, v in enumerate(th):
            if v < 99: o(f"s_cmp_lt_u32 s{sT0}, {v}"); o("s_cbranch_scc0 LOOP"); o(f"s_setprio {2-k}")
    o("s_branch LOOP")
    assert len(set(HEAD.values())) == 1
    WU = TF; x = AF
    def fin(p):
        d = ACC + 32 * p; r = []
        for k in range(16): r.append(f"v_rcp_f32 v{d+k}, v{d+k}")
        for k in range(16): r.append(f"v_mul_f32 v{d+16+k}, v{d+k}, v{d+16+k}")
        return r
    def unp(p): return sum(([f"v_lshlrev_b32 v{ACC+32*p+2*k}, 16, v{x+8*p+k}", f"v_and_b32 v{ACC+32*p+2*k+1}, s{sT1}, v{x+8*p+k}"] for k in range(8)), [])
    def post(p):
        r = []
        for k in range(8):
            z = ACC + 32*p + 16 + 2*k
            r += [f"v_max_f32 v{z}, 0, v{z}", f"v_max_f32 v{z+1}, 0, v{z+1}", f"v_add_f32 v{z}, v{z}, v{z-16}", f"v_add_f32 v{z+1}, v{z+1}, v{z-15}",
                  f"v_cvt_pk_bf16_f32 v{x+8*p+k}, v{z}, v{z+1}"]
        return r
    def st(p): return [f"s_mov_b64 exec, {((1 << (NA - p)) - 1):#x}", f"s_mov_b32 exec_hi, exec_lo"] + \
        [f"buffer_store_dwordx4 {vr(x+8*p+4*k,4)}, {vr(IX[p],2)}, s[{sO}:{sO+3}], 0 idxen offen offset:{16*k} {OPT.get('outpol', '').replace('+', ' ')}" for k in range(2)] + ["s_mov_b64 exec, -1"]
    assert RN - NA == NA - 1
    CO = int(OPT.get('co', 0))
    if CO:
        def st(p): return [f"s_mov_b64 exec, {((1 << (NA - p)) - 1):#x}", f"s_mov_b32 exec_hi, exec_lo"] + \
            [f"ds_write_b128 v{IX[2]}, {vr(x+8*p+4*k,4)} offset:{RING + p*NA*272 + 16*k}" for k in range(2)] + ["s_mov_b64 exec, -1"]
    for p in (1, 0):
        q = 1 - p; Gc = GV + 32 * q
        lab(f"TAIL{p}")
        stamp(7); stamp(11, "s_memtime")
        if STAMP: o(f"v_writelane_b32 v{VST[0]}, s{sNT}, 12")
        o(f"ds_read_b128 {vr(T0,4)}, v{MQ}"); o(f"ds_read_b128 {vr(T0+4,4)}, v{MQ+1}")
        o(f"s_cmp_lg_u32 s{sMORE}, 0"); o(f"s_cbranch_scc1 TAILM{p}")
        o("s_waitcnt lgkmcnt(0)")
        for ins in wload(WU, WF_U): o(ins)
        for s in range(8): o(f"ds_read_b128 {vr(GV+32*p+4*s,4)}, v{vXA} offset:{p*2080+16*s}")
        for mt in range(2):
            for k in range(2): o(f"ds_read_b128 {vr(x+8*mt+4*k,4)}, v{vXR} offset:{mt*2080+16*k}")
        o(f"v_and_b32 v{IX[0]}, 31, v0"); o(f"v_and_b32 v{IX[0]+1}, 0xe0, v0"); o(f"v_add_u32 v{IX[0]}, s{sBASE}, v{IX[0]}")
        o(f"v_add_u32 v{IX[1]}, {NA}, v{IX[0]}"); o(f"v_mov_b32 v{IX[1]+1}, v{IX[0]+1}")
        if CO:
            o(f"v_and_b32 v{IX[2]}, 31, v0"); o(f"v_mul_u32_u24 v{IX[2]}, 272, v{IX[2]}"); o(f"v_add_u32 v{IX[2]}, v{IX[2]}, v{IX[0]+1}")
            o(f"v_lshrrev_b32 v{IX[0]}, 4, v0"); o(f"v_and_b32 v{IX[0]+1}, 0xf0, v{vWF}")
            o(f"v_mul_u32_u24 v{IX[3]}, 272, v{IX[0]}"); o(f"v_add_u32 v{IX[3]}, v{IX[3]}, v{IX[0]+1}"); o(f"v_add_u32 v{IX[0]}, s{sBASE}, v{IX[0]}")
        o(f"s_mov_b32 s{sT1}, 0xffff0000")
        vs = [i for i, _ in vstream(Gc, Gc + 16)[HEAD[0]:]]
        for ins in vs: o(ins)
        o("s_nop 0")
        interleave(zphase(Gc, q), fin(p), 4)
        for s in range(8): o(f"ds_read_b128 {vr(Gc+4*s,4)}, v{vXA} offset:{q*2080+16*s}")
        o("s_waitcnt vmcnt(0) lgkmcnt(8)")
        interleave([m32(ACC+32*p+16, WU+4*s, GV+32*p+4*s, ACC+32*p+16) for s in range(8)], fin(q), 4)
        o("s_waitcnt lgkmcnt(0)"); o("s_barrier" if CO else "s_nop 0")
        interleave([m32(ACC+32*q+16, WU+4*s, Gc+4*s, ACC+32*q+16) for s in range(8)], unp(p) + post(p) + unp(q), 7)
        for ins in st(p) + post(q) + st(q): o(ins)
        if p == 1: o("s_branch K2_FIN")
    lab("K2_FIN")
    if CO:
        o("v_cmp_gt_u32 vcc, 16, v0")
        o("s_waitcnt lgkmcnt(0)"); o("s_barrier")
        for k in range(4): o(f"ds_read_b128 {vr(GV+4*k,4)}, v{IX[3]} offset:{RING + k*16*272}")
        for k in range(4):
            if k == 3: o(f"s_and_saveexec_b64 s[{sSV}:{sSV+1}], vcc"); o("s_cbranch_execz K2_OUT")
            o(f"s_waitcnt lgkmcnt({3-k})")
            o(f"buffer_store_dwordx4 {vr(GV+4*k,4)}, {vr(IX[0],2)}, s[{sO}:{sO+3}], 0 idxen offen {OPT.get('outpol', '').replace('+', ' ')}")
            if k < 3: o(f"v_add_u32 v{IX[0]}, 16, v{IX[0]}")
        lab("K2_OUT")
    stamp_out(9, GV+32, sW, 1)
    lab("K2_END")
    o("s_endpgm")
    for p in (1, 0):
        Gc = GV + 32 * (1 - p)
        lab(f"TAILM{p}")
        for ins, _ in vstream(Gc, Gc + 16)[HEAD[0]:]: o(ins)
        o("s_waitcnt lgkmcnt(0)")
        for m in zphase(Gc, 1 - p): o(m)
        if p == 1: o("s_branch NEXTROUND")
    lab("NEXTROUND")
    for i in range(4):
        o(f"v_lshrrev_b32 v{vTC}, 19, v{SEG+i}"); o(f"v_min_u32 v{vTC}, s{sLIM}, v{vTC}")
        o(f"v_add_u32 v{SEG+i}, v{SEG+i}, v{vTC}"); o(f"v_lshlrev_b32 v{vTC}, 19, v{vTC}"); o(f"v_sub_u32 v{SEG+i}, v{SEG+i}, v{vTC}")
    o(f"s_mov_b32 s{sFIRST}, 0"); o(f"s_mov_b32 s{sLIM}, 16")
    o("s_waitcnt vmcnt(0) lgkmcnt(0)"); o("s_barrier")
    o("s_branch ROUND")

def kd(name, nv, ns):
    L.append(".p2align 6")
    L.append(f".amdhsa_kernel {name}")
    for k, v in (("next_free_vgpr", nv), ("next_free_sgpr", ns), ("accum_offset", (nv + 3) // 4 * 4), ("group_segment_fixed_size", 0),
                 ("kernarg_size", 96), ("user_sgpr_count", 2), ("user_sgpr_kernarg_segment_ptr", 1), ("system_sgpr_workgroup_id_x", 1),
                 ("float_denorm_mode_32", 3)):
        L.append(f"  .amdhsa_{k} {v}")
    L.append(".end_amdhsa_kernel")

hdr = [l for l in open(f"cdna_kernels/{NAME}.s.ref").read().splitlines() if l.startswith(";") and "@launch" not in l
       and "Override launch" not in l and "grid=ceil" not in l]
L += hdr
L.append(f"; @launch kernel=gsort_kernel grid=({K1_GRID},1,1) block=(512,1,1) lds={K1_LDS}")
L.append(f"; @launch kernel=gmain_kernel grid=(256,1,1) block=(512,1,1) lds={NB+2*GS}" if G8 else f"; @launch kernel=gmain_kernel grid=(512,1,1) block=(256,1,1) lds={K2_LDS}")
L.append('.amdgcn_target "amdgcn-amd-amdhsa--gfx950"'); L.append(".text")
(gen_k1a if OPT.get('k1') == 'a' else gen_k1)(); gen_k2()
lab("CODE_END")
L.append('.section .rodata,"a"')
kd("gsort_kernel", 256 if STAMP else 252, 102 if STAMP else 80); kd("gmain_kernel", 256 if STAMP else NVGPR, 102)
if STAMP: L.append("; STAMPS " + repr(NAMES))
open(sys.argv[1], "w").write("\n".join(L) + "\n")
print("vgprs", NVGPR, "lds", K2_LDS, "lines", len(L), file=sys.stderr)
```

```python
import sys, struct, re

N = 25000; E = 400000; RN = 49; NR = 511; CH = 1600; NCH = 250
WS_REC = 0; WS_OFF = 0x310000; OROW = 1152; WS_WF = 0x3c0000; WS_TAB = 0x400000; WS_SIZE = 0x4000000
WF_A = 0; WF_U = 0x8000; WF_C = 0x10000; NA = 25
NLOG2E = struct.unpack('<I', struct.pack('<f', -1.4426950408889634))[0]
EPS = struct.unpack('<I', struct.pack('<f', 1e-6))[0]
NAME = "standalone__edge_featured_mpnn_gatedgcn__graph"
OPT = dict(k1='a', tabpol='sc1', recpol='sc1', touch='0', nx='2', wfpol='sc1', tsh='19', outpol='nt', bon='4', lp='3', pp='23,15,7')
OPT.update(a.split('=') for a in sys.argv[2:])
STAMP = int(OPT.get('stamp', 0))
WS_TAB = int(OPT.get('tab', hex(WS_TAB)), 0)
WS_STAMP = 0x3800000
L = []
def o(s): L.append("    " + s)
def lab(s): L.append(s + ":")
def vr(b, n): return f"v[{b}:{b+n-1}]"
VST = [60]
NAMES = {}
def stamp(i, ins="s_memrealtime", name=None):
    if STAMP:
        o(f"{ins} s[100:101]"); o("s_waitcnt lgkmcnt(0)"); o(f"v_writelane_b32 v{VST[0]}, s100, {i}")
def xstamp(name):
    if STAMP:
        NAMES[name] = 16 + len(NAMES); stamp(NAMES[name])
def stamp_out(n, reg, srdn, kern):
    if not STAMP: return
    o("s_mov_b64 exec, -1")
    stamp(n)
    o(f"v_lshlrev_b32 v{reg}, 2, v0")
    if kern and int(OPT.get('g8', 0)): o("s_and_b32 s63, s3, 1"); o("s_lshl_b32 s63, s63, 8"); o("s_add_u32 s2, s2, s63")
    o(f"s_lshl_b32 s63, s2, 11"); o(f"s_add_u32 s63, s63, {WS_STAMP + kern*0x100000:#x}")
    o(f"buffer_store_dword v{VST[0]}, v{reg}, s[{srdn}:{srdn+3}], s63 offen")
def srd(d, lo, size, stride=0):
    o(f"s_mov_b32 s{d}, s{lo}"); o(f"s_and_b32 s{d+1}, s{lo+1}, 0xffff")
    if stride: o(f"s_or_b32 s{d+1}, s{d+1}, {stride << 16:#x}")
    o(f"s_mov_b32 s{d+2}, {size:#x}"); o(f"s_mov_b32 s{d+3}, 0x20000")
def scan64(v):
    for d in ("row_shr:1", "row_shr:2", "row_shr:4", "row_shr:8"):
        o("s_nop 1"); o(f"v_add_u32_dpp v{v}, v{v}, v{v} {d} row_mask:0xf bank_mask:0xf bound_ctrl:0")
    o("s_nop 1"); o(f"v_add_u32_dpp v{v}, v{v}, v{v} row_bcast:15 row_mask:0xa bank_mask:0xf")
    o("s_nop 1"); o(f"v_add_u32_dpp v{v}, v{v}, v{v} row_bcast:31 row_mask:0xc bank_mask:0xf")

def m32(d, a, b, c): return f"v_mfma_f32_32x32x16_bf16 {vr(d,16)}, {vr(a,4)}, {vr(b,4)}, " + ("0" if c is None else vr(c,16))
K1_GRID = 256
OG = 4224
CB = CH * 8 + 2048
K1_W = 4096 + CB; K1_X = K1_W + 65536; K1_S = K1_X + 4 * 8320; K1_LDS = K1_S + 8 * 4608
def gen_k1():
    L.append(".globl gsort_kernel"); L.append(".p2align 8"); L.append(".type gsort_kernel,@function")
    lab("gsort_kernel"); VST[0] = 255
    pol = OPT.get('tabpol', '').replace('+', ' '); rpol = OPT.get('recpol', '').replace('+', ' ')
    stamp(0)
    o("s_load_dwordx8 s[4:11], s[0:1], 0")
    o("s_load_dwordx8 s[40:47], s[0:1], 32")
    o("s_load_dwordx2 s[48:49], s[0:1], 64")
    o("s_load_dwordx2 s[12:13], s[0:1], 88")
    o(f"s_cmp_ge_u32 s2, {K1_GRID}"); o("s_cbranch_scc1 K1_END")
    o("v_lshrrev_b32 v2, 6, v0"); o("v_lshlrev_b32 v1, 2, v0")
    o("s_and_b32 s36, s2, 7"); o("s_lshl_b32 s36, s36, 5"); o("s_lshr_b32 s35, s2, 3"); o("s_add_u32 s36, s36, s35")
    o("v_readfirstlane_b32 s33, v2")
    o("v_mov_b32 v2, 0"); o("ds_write_b32 v1, v2")
    o(f"s_mul_i32 s3, s2, {CH*4}"); o("s_mul_i32 s37, s36, 98")
    o(f"s_cmp_lt_u32 s2, {NCH}"); o(f"s_cselect_b32 s14, {CH//4}, 0")
    o("v_cmp_gt_u32 vcc, s14, v0")
    o("v_lshlrev_b32 v40, 4, v0")
    o("v_bfe_u32 v56, v0, 4, 1"); o("v_bfe_u32 v57, v0, 5, 1"); o("v_and_b32 v20, 63, v0")
    o("s_mov_b32 s68, 0"); o("v_lshlrev_b32 v42, 4, v20")
    o("v_bfe_u32 v43, v0, 4, 2"); o("v_lshlrev_b32 v43, 6, v43"); o("v_xor_b32 v43, v43, v40")
    o("v_lshl_add_u32 v58, v57, 3, v56")
    o("s_lshr_b32 s14, s33, 2"); o("s_lshl_b32 s14, s14, 4"); o("s_and_b32 s15, s33, 3"); o("s_lshl1_add_u32 s14, s15, s14")
    o("v_add_u32 v58, s14, v58"); o("v_add_u32 v54, s37, v58")
    o("v_and_b32 v55, 15, v0"); o("v_lshlrev_b32 v59, 3, v56"); o("v_xor_b32 v55, v55, v59"); o("v_lshlrev_b32 v55, 4, v55")
    o("s_mul_i32 s38, s33, 1040"); o(f"s_add_u32 s38, s38, {K1_X}")
    o("s_lshl_b32 s39, s33, 10"); o(f"s_add_u32 s39, s39, {K1_W}")
    o("s_mov_b32 m0, s38")
    o("s_waitcnt lgkmcnt(0)")
    srd(60, 4, N, 256)
    def xd(t):
        if t: o(f"s_add_u32 m0, s38, {t*8320}"); o("v_add_u32 v54, 32, v54")
        if t == 3: o("v_cmp_gt_u32 vcc, 2, v58"); o("v_mov_b32 v59, 0xffff"); o("s_nop 0"); o("v_cndmask_b32 v54, v59, v54, vcc")
        o("buffer_load_dwordx4 v[54:55], s[60:63], 0 idxen offen lds")
    xd(0); xd(1)
    srd(20, 10, E*4); srd(16, 8, E*4)
    o("s_and_saveexec_b64 s[28:29], vcc"); o("s_mov_b64 s[28:29], exec"); o("s_cbranch_execz K1_PREP")
    o("buffer_load_dwordx4 v[4:7], v40, s[20:23], s3 offen")
    o("buffer_load_dwordx4 v[8:11], v40, s[16:19], s3 offen")
    lab("K1_A")
    o("s_mov_b64 exec, -1")
    TCH = int(OPT.get('touch', 0)); SPL = int(OPT.get('split', 0))
    if TCH:
        srd(24, 12, WS_SIZE)
        o("s_lshl_b32 s14, s37, 9"); o(f"s_add_u32 s14, s14, {WS_TAB:#x}"); o("v_mov_b32 v248, s14"); o("s_lshl_b32 s14, s3, 1")
        o("v_writelane_b32 v248, s14, 1"); o(f"s_mov_b32 s14, {WS_OFF:#x}"); o("v_writelane_b32 v248, s14, 2")
        o("buffer_load_dword v249, v248, s[24:27], 0 offen")
    if not OPT.get('early'): o("s_barrier")
    srd(52, 42, 32768); srd(56, 48, 32768)
    for m in range(2):
        for i in range(4):
            o(f"s_add_u32 m0, s39, {m*32768+i*8192}"); o(f"s_movk_i32 s14, {i*8192}"); o(f"buffer_load_dwordx4 v43, s[{52+4*m}:{55+4*m}], s14 offen lds")
    xd(2); xd(3)
    if OPT.get('early'): o("s_barrier")
    def addrs():
        srd(24, 12, WS_SIZE)
        o("v_bfe_u32 v60, v0, 2, 2"); o("v_lshl_add_u32 v60, v57, 6, v60"); o("v_lshlrev_b32 v60, 8, v60")
        o("v_and_b32 v61, 3, v0"); o("v_lshl_add_u32 v60, v61, 3, v60"); o("v_lshl_add_u32 v60, v56, 5, v60")
        o("s_and_b32 s30, s33, 3"); o("v_bfe_u32 v61, v0, 2, 2"); o("v_xor_b32 v61, s30, v61"); o("v_lshl_add_u32 v60, v61, 6, v60"); o(f"v_add_u32 v60, {K1_W}, v60")
        o("v_bfe_u32 v61, v0, 1, 2"); o("v_lshl_or_b32 v61, v56, 2, v61"); o("v_mul_u32_u24 v61, 1040, v61")
        o("v_and_b32 v62, 1, v0"); o("v_bfe_u32 v63, v0, 3, 1"); o("v_lshl_or_b32 v63, v63, 1, v62"); o("v_lshl_add_u32 v61, v63, 8, v61")
        o("s_lshr_b32 s32, s33, 2"); o("s_mul_i32 s14, s32, 8320"); o(f"s_add_u32 s14, s14, {K1_X}")
        o("v_xor_b32 v62, v62, v57"); o("v_lshl_add_u32 v61, v62, 7, v61"); o("v_add_u32 v61, s14, v61")
        o("s_mul_i32 s14, s33, 4608"); o(f"s_add_u32 s14, s14, {K1_S}")
        o("v_and_b32 v62, 31, v0"); o("v_mul_u32_u24 v62, 144, v62"); o("v_lshl_add_u32 v62, v57, 6, v62"); o("v_add_u32 v62, s14, v62")
        o("v_lshrrev_b32 v58, 3, v20"); o("v_and_b32 v59, 7, v0"); o("v_lshlrev_b32 v59, 4, v59")
        o("v_mul_u32_u24 v63, 144, v58"); o("v_add3_u32 v63, v63, v59, s14")
        o("s_lshl_b32 s14, s32, 5"); o("s_add_u32 s14, s14, s37"); o("s_lshl_b32 s14, s14, 9"); o("s_lshl_b32 s30, s30, 7"); o("s_add_u32 s14, s14, s30")
        o("v_lshl_add_u32 v59, v58, 9, v59"); o("v_add_u32 v59, s14, v59")
        o("s_lshl_b32 s31, s3, 1")
    addrs()
    o(f"s_mul_i32 s34, s2, {CH}")
    o("v_add_u32 v3, s34, v1"); o("v_mov_b32 v2, 1"); o(f"s_mov_b32 s15, {-RN}")
    o("v_lshlrev_b32 v20, 5, v20")
    o("s_mov_b64 exec, s[28:29]"); o("s_cbranch_execz K1_B")
    o(f"s_waitcnt vmcnt({10+TCH})"); stamp(1)
    for i in range(4):
        o(f"v_mul_u32_u24 v{12+i}, 21400, v{4+i}")
        o(f"v_lshrrev_b32 v{12+i}, 20, v{12+i}")
        o(f"v_mad_i32_i24 v{4+i}, v{12+i}, s15, v{4+i}")
        o(f"v_lshlrev_b32 v{12+i}, 2, v{12+i}")
        o(f"ds_add_rtn_u32 v{16+i}, v{12+i}, v2")
    lab("K1_B")
    o("s_mov_b64 exec, -1")
    o(f"s_add_u32 s12, s12, {WS_TAB:#x}"); o("s_addc_u32 s13, s13, 0"); srd(16, 12, N * 512)
    o(f"s_mov_b32 s15, {NLOG2E:#x}")
    o(f"s_waitcnt vmcnt({2*SPL}) lgkmcnt(0)"); o("s_barrier"); stamp(3)
    lab("K1_J")
    WF_ = 64; XF_ = 128; AC = [160, 192]
    for m in range(2):
        for s in range(8):
            for jj in range(2): o(f"ds_read_b64_tr_b16 v[{WF_+32*m+4*s+2*jj}:{WF_+32*m+4*s+2*jj+1}], v60 offset:{m*32768+s*2048+jj*1024}")
            if m == 0: o(f"ds_read_b128 {vr(XF_+4*s,4)}, v61 offset:{16*s}")
    o("ds_read_b128 v[24:27], v20"); o("ds_read_b128 v[28:31], v20 offset:16")
    def post(t):
        a = AC[t]; r = []
        for k in range(16): r.append(f"v_mul_f32 v{a+k}, s15, v{a+k}")
        for k in range(16): r.append(f"v_cvt_pk_bf16_f32 v{224+k}, v{a+2*k}, v{a+2*k+1}")
        r += [f"ds_write_b128 v62, {vr(224+4*c,4)} offset:{16*c}" for c in range(4)]
        r += [f"ds_read_b128 {vr(a+4*k,4)}, v63 offset:{k*8*144}" for k in range(4)]
        return r
    def stores(t):
        r = []
        for k in range(4):
            r += [f"s_waitcnt lgkmcnt({3-k})", f"buffer_store_dwordx4 {vr(AC[t]+4*k,4)}, v59, s[16:19], 0 offen {pol}", "v_add_u32 v59, 0x1000, v59"]
        return r
    def recs():
        for i in range(4):
            o(f"v_cmp_lt_u32 vcc, {NA-1}, v{4+i}"); o(f"v_mul_u32_u24 v22, 83, v{8+i}"); o("v_lshrrev_b32 v22, 16, v22")
            o(f"v_cndmask_b32 v23, 0, {NA}, vcc"); o(f"v_sub_u32 v23, v{4+i}, v23")
            o(f"v_lshl_or_b32 v{44+2*i}, v23, 16, v{8+i}")
            o("v_cndmask_b32 v23, 0, 32, vcc"); o("v_or_b32 v22, v22, v23")
            o(f"v_lshl_add_u32 v{45+2*i}, v22, 26, v3")
            if i < 3: o("v_add_u32 v3, 1, v3")
    def scan():
        o("v_mov_b32 v33, v24")
        for j in range(2, 8): o(f"v_add_u32 v{32+j}, v{31+j}, v{23+j}")
        o("v_add_u32 v21, v39, v31"); o("v_mov_b32 v22, v21")
        scan64(21)
        o("v_sub_u32 v32, v21, v22")
        for j in range(1, 8): o(f"v_add_u32 v{32+j}, v32, v{32+j}")
    o("s_waitcnt lgkmcnt(15)")
    interleave([m32(AC[0], WF_+4*s, XF_+4*s, None if s == 0 else AC[0]) for s in range(8)], capture(recs), 5)
    o("s_waitcnt vmcnt(0) lgkmcnt(0)")
    if SPL: o("s_barrier")
    sc = capture(scan); p0 = post(0)
    q = sc + p0[:24]
    for s in range(8):
        o(m32(AC[0]+16, WF_+32+4*s, XF_+4*s, None if s == 0 else AC[0]+16))
        o(f"ds_read_b128 {vr(XF_+4*s,4)}, v61 offset:{2*8320+16*s}")
        for _ in range(5):
            if q: o(q.pop(0))
    lab("K1_G")
    o("s_waitcnt lgkmcnt(0)")
    mf = [m32(AC[1], WF_+4*s, XF_+4*s, None if s == 0 else AC[1]) for s in range(8)] + [m32(AC[1]+16, WF_+32+4*s, XF_+4*s, None if s == 0 else AC[1]+16) for s in range(8)]
    assert len(q) >= 8
    look = ["ds_write_b128 v20, v[32:35] offset:2048", "ds_write_b128 v20, v[36:39] offset:2064"] + [f"ds_read_b32 v{4+i}, v{12+i} offset:2048" for i in range(4)]
    q = q + p0[24:] + [None] * 5 + stores(0) + look
    for m in mf:
        o(m)
        for _ in range(5):
            if q:
                x = q.pop(0)
                if x: o(x)
    assert not q
    o("v_add_u32 v59, 0x4000, v59"); o("v_cmp_gt_u32 vcc, 2, v58")
    o("s_mov_b64 exec, s[28:29]")
    o("s_waitcnt lgkmcnt(0)")
    for i in range(4):
        o(f"v_add_lshl_u32 v{4+i}, v{4+i}, v{16+i}, 3"); o(f"ds_write_b64 v{4+i}, v[{44+2*i}:{45+2*i}] offset:4096")
    o("s_mov_b64 exec, -1")
    for x in post(1): o(x)
    stamp(4)
    o("s_cmp_lt_u32 s33, 4"); o("s_cbranch_scc1 K1_H")
    o("s_mov_b64 exec, vcc")
    for x in stores(1)[:2]: o(x)
    o("s_mov_b64 exec, -1")
    o("s_cmp_lg_u32 s68, 0"); o("s_cbranch_scc1 K1_PREP2")
    o("s_cmp_lg_u32 s33, 6"); o("s_cbranch_scc1 K1_I")
    for j in range(8): o(f"v_lshl_add_u32 v{24+j}, v{24+j}, 19, v{32+j}"); o(f"v_add_u32 v{24+j}, s34, v{24+j}")
    o(f"v_mul_u32_u24 v41, {OG//16}, v20"); o("s_lshl_b32 s35, s36, 4"); o(f"s_add_u32 s35, s35, {WS_OFF:#x}"); o(f"s_add_u32 s30, s35, {OG}")
    o("buffer_store_dwordx4 v[24:27], v41, s[24:27], s35 offen"); o("buffer_store_dwordx4 v[28:31], v41, s[24:27], s30 offen")
    o("s_branch K1_I")
    lab("K1_H")
    for x in stores(1): o(x)
    lab("K1_I")
    o(f"v_cmp_gt_u32 vcc, {CH//2-512}, v0")
    o("s_waitcnt lgkmcnt(0)"); o("s_barrier")
    o(f"s_cmp_lt_u32 s2, {NCH}"); o("s_cbranch_scc0 K1_F")
    o("ds_read_b128 v[44:47], v40 offset:4096"); o("ds_read_b128 v[48:51], v40 offset:12288")
    o("s_add_u32 s30, s31, 8192")
    o("s_waitcnt lgkmcnt(1)")
    o(f"buffer_store_dwordx4 v[44:47], v40, s[24:27], s31 offen {rpol}")
    o("s_and_saveexec_b64 s[28:29], vcc"); o("s_cbranch_execz K1_F")
    o("s_waitcnt lgkmcnt(0)")
    o(f"buffer_store_dwordx4 v[48:51], v40, s[24:27], s30 offen {rpol}")
    lab("K1_F")
    stamp_out(2, 12, 24, 0)
    lab("K1_END")
    o("s_endpgm")
    lab("K1_PREP")
    o("s_cmp_ge_u32 s2, 68"); o("s_cbranch_scc1 K1_A")
    o("s_mov_b64 exec, -1")
    o("s_lshr_b32 s14, s2, 5")
    o("s_cmp_eq_u32 s14, 1"); o("s_cselect_b32 s40, s46, s40"); o("s_cselect_b32 s41, s47, s41"); o(f"s_cselect_b32 s68, 1.0, {NLOG2E:#x}")
    o("s_mov_b32 s66, 32768"); o("s_bfe_u32 s50, s2, 0x20003"); o("s_and_b32 s51, s2, 7"); o("s_mov_b32 s32, 14")
    o("s_cmp_eq_u32 s14, 2"); o("s_cselect_b32 s40, s44, s40"); o("s_cselect_b32 s41, s45, s41"); o("s_cselect_b32 s66, 4096, s66")
    o("s_cselect_b32 s50, s51, s50"); o("s_cselect_b32 s51, 0, s51"); o("s_cselect_b32 s32, 11, s32")
    o("s_mov_b32 s64, s40"); o("s_and_b32 s65, s41, 0xffff"); o("s_mov_b32 s67, 0x20000")
    o("s_lshl_b32 s50, s50, 6"); o("s_lshl_b32 s51, s51, 11"); o("s_add_u32 s50, s50, s51")
    o("v_and_b32 v4, 3, v0"); o("v_bfe_u32 v5, v0, 3, 2"); o("v_lshl_or_b32 v4, v5, 2, v4")
    o("v_bfe_u32 v5, v0, 2, 1"); o("v_lshl_or_b32 v4, v5, 4, v4")
    o("v_lshlrev_b32 v5, s32, v57"); o("v_lshl_add_u32 v4, v4, 1, v5"); o("v_add_u32 v4, s50, v4")
    for j in range(8): o(f"buffer_load_ushort v{240+j}, v4, s[64:67], 0 offen offset:{j*256}")
    o("s_branch K1_A")
    lab("K1_PREP2")
    o("s_lshl_b32 s14, s2, 10"); o(f"s_add_u32 s14, s14, {WS_WF:#x}")
    for j in range(8):
        o(f"v_lshlrev_b32 v{240+j}, 16, v{240+j}"); o(f"v_mul_f32 v{240+j}, s68, v{240+j}")
    for j in range(4): o(f"v_cvt_pk_bf16_f32 v{52+j}, v{240+2*j}, v{241+2*j}")
    o("buffer_store_dwordx4 v[52:55], v42, s[24:27], s14 offen")
    o("s_branch K1_I")

SM = int(OPT.get('sm', 0)); SMS = N * 128 + int(OPT.get('smpad', 0))
def gen_k1a():
    L.append(".globl gsort_kernel"); L.append(".p2align 8"); L.append(".type gsort_kernel,@function")
    lab("gsort_kernel"); VST[0] = 255
    pol = OPT.get('tabpol', '').replace('+', ' '); rpol = OPT.get('recpol', '').replace('+', ' ')
    if OPT.get('cpf'):
        o("s_getpc_b64 s[70:71]")
        o("v_lshlrev_b32 v236, 7, v0"); o("v_min_u32 v236, CODE_END-gsort_kernel-8, v236")
        o("v_mov_b32 v237, s71"); o("v_add_co_u32 v236, vcc, s70, v236"); o("s_nop 1"); o("v_addc_co_u32 v237, vcc, 0, v237, vcc")
        o("global_load_dword v238, v[236:237], off")
    stamp(0)
    o("s_load_dwordx8 s[4:11], s[0:1], 0")
    o("s_load_dwordx8 s[40:47], s[0:1], 32")
    o("s_load_dwordx2 s[48:49], s[0:1], 64")
    o("s_load_dwordx2 s[12:13], s[0:1], 88")
    o("s_load_dwordx2 s[72:73], s[0:1], 72")
    o(f"s_cmp_ge_u32 s2, {K1_GRID}"); o("s_cbranch_scc1 K1_END")
    o("v_lshrrev_b32 v2, 6, v0"); o("v_lshlrev_b32 v1, 2, v0")
    o("s_and_b32 s36, s2, 7"); o("s_lshl_b32 s36, s36, 5"); o("s_lshr_b32 s35, s2, 3"); o("s_add_u32 s36, s36, s35")
    o("v_readfirstlane_b32 s33, v2")
    o("v_mov_b32 v2, 0"); o("ds_write_b32 v1, v2")
    o(f"s_mul_i32 s3, s2, {CH*4}"); o("s_mul_i32 s37, s36, 98")
    o(f"s_cmp_lt_u32 s2, {NCH}"); o(f"s_cselect_b32 s14, {CH//5}, 0")
    o("v_cmp_gt_u32 vcc, s14, v0")
    o("v_lshlrev_b32 v40, 4, v0")
    o("v_bfe_u32 v56, v0, 4, 1"); o("v_bfe_u32 v57, v0, 5, 1"); o("v_and_b32 v20, 63, v0")
    o("s_mov_b32 s68, 0"); o("v_lshlrev_b32 v42, 4, v20")
    o("v_mul_u32_u24 v43, 20, v0")
    o("s_cmp_ge_u32 s33, 5")
    o("s_waitcnt lgkmcnt(0)")
    o("s_cbranch_scc1 K1_LOAD")
    srd(20, 10, E*4); srd(16, 8, E*4)
    o("s_and_saveexec_b64 s[28:29], vcc"); o("s_mov_b64 s[28:29], exec"); o("s_cbranch_execz K1_A")
    o("buffer_load_dwordx4 v[64:67], v43, s[20:23], s3 offen"); o("buffer_load_dword v68, v43, s[20:23], s3 offen offset:16")
    o("buffer_load_dwordx4 v[72:75], v43, s[16:19], s3 offen"); o("buffer_load_dword v76, v43, s[16:19], s3 offen offset:16")
    lab("K1_A")
    o("s_mov_b64 exec, -1")
    NX = int(OPT.get('nx', 0))
    if NX:
        srd(52, 42, 32768); srd(56, 48, 32768)
        o("v_lshrrev_b32 v44, 4, v20"); o("v_lshlrev_b32 v44, 6, v44"); o("v_xor_b32 v44, v44, v42")
        o(f"s_mul_i32 s14, s33, {NX*1024}"); o(f"s_add_u32 s14, s14, {(32-5*NX)*1024}")
        for m in range(2):
            o(f"s_add_u32 m0, s14, {K1_W + m*32768}"); o("s_nop 0")
            for j in range(NX): o(f"buffer_load_dwordx4 v44, s[{52+4*m}:{55+4*m}], s14 offen offset:{j*1024} lds")
    o("s_barrier")
    def addrs():
        srd(24, 12, WS_SIZE)
        o("v_bfe_u32 v60, v0, 2, 2"); o("v_lshl_add_u32 v60, v57, 6, v60"); o("v_lshlrev_b32 v60, 8, v60")
        o("v_and_b32 v61, 3, v0"); o("v_lshl_add_u32 v60, v61, 3, v60"); o("v_lshl_add_u32 v60, v56, 5, v60")
        o("s_and_b32 s30, s33, 3"); o("v_bfe_u32 v61, v0, 2, 2"); o("v_xor_b32 v61, s30, v61"); o("v_lshl_add_u32 v60, v61, 6, v60"); o(f"v_add_u32 v60, {K1_W}, v60")
        o("v_bfe_u32 v61, v0, 1, 2"); o("v_lshl_or_b32 v61, v56, 2, v61"); o("v_mul_u32_u24 v61, 1040, v61")
        o("v_and_b32 v62, 1, v0"); o("v_bfe_u32 v63, v0, 3, 1"); o("v_lshl_or_b32 v63, v63, 1, v62"); o("v_lshl_add_u32 v61, v63, 8, v61")
        o("s_lshr_b32 s32, s33, 2"); o("s_mul_i32 s14, s32, 8320"); o(f"s_add_u32 s14, s14, {K1_X}")
        o("v_xor_b32 v62, v62, v57"); o("v_lshl_add_u32 v61, v62, 7, v61"); o("v_add_u32 v61, s14, v61")
        o("s_mul_i32 s14, s33, 4608"); o(f"s_add_u32 s14, s14, {K1_S}")
        o("v_and_b32 v62, 31, v0"); o("v_mul_u32_u24 v62, 144, v62"); o("v_lshl_add_u32 v62, v57, 6, v62"); o("v_add_u32 v62, s14, v62")
        o("v_lshrrev_b32 v58, 3, v20"); o("v_and_b32 v59, 7, v0"); o("v_lshlrev_b32 v59, 4, v59")
        o("v_mul_u32_u24 v63, 144, v58"); o("v_add3_u32 v63, v63, v59, s14")
        if SM:
            o("s_lshl_b32 s14, s32, 5"); o("s_add_u32 s14, s14, s37"); o("s_lshl_b32 s14, s14, 7"); o(f"s_mul_i32 s69, s30, {SMS}")
            o("v_add_u32 v59, s14, v42")
        else:
            o("s_lshl_b32 s14, s32, 5"); o("s_add_u32 s14, s14, s37"); o("s_lshl_b32 s14, s14, 9"); o("s_lshl_b32 s30, s30, 7"); o("s_add_u32 s14, s14, s30")
            o("v_lshl_add_u32 v59, v58, 9, v59"); o("v_add_u32 v59, s14, v59")
        o(f"s_mul_i32 s31, s2, {CB}")
    addrs()
    o(f"s_mul_i32 s34, s2, {CH}")
    o("v_lshrrev_b32 v3, 2, v43"); o("v_add_u32 v3, s34, v3"); o("v_mov_b32 v2, 1"); o(f"s_mov_b32 s15, {-RN}"); o(f"s_movk_i32 s38, {-64*RN}")
    o("v_lshlrev_b32 v20, 5, v20")
    o("s_mov_b64 exec, s[28:29]"); o("s_cbranch_execz K1_B")
    o(f"s_waitcnt vmcnt({2+2*NX})"); stamp(1)
    for i in range(5):
        o(f"v_mul_u32_u24 v{80+i}, 21400, v{64+i}")
        o(f"v_lshrrev_b32 v{80+i}, 20, v{80+i}")
        o(f"v_mad_i32_i24 v{64+i}, v{80+i}, s15, v{64+i}")
        o(f"v_lshlrev_b32 v{80+i}, 2, v{80+i}")
        o(f"ds_add_rtn_u32 v{88+i}, v{80+i}, v2")
    o(f"s_waitcnt vmcnt({2*NX})")
    for i in range(5):
        o(f"v_cmp_lt_u32 vcc, {NA-1}, v{64+i}")
        if int(OPT.get('rot', 0)):
            o(f"v_lshrrev_b32 v22, 8, v{80+i}"); o(f"v_mad_i32_i24 v22, v22, s38, v{72+i}"); o(f"v_add_u32 v23, {512*RN}, v22"); o("v_min_u32 v22, v22, v23")
            o("v_mul_u32_u24 v22, 83, v22")
        else: o(f"v_mul_u32_u24 v22, {OPT.get('binmul', 83)}, v{72+i}")
        o("v_lshrrev_b32 v22, 16, v22")
        o(f"v_cndmask_b32 v23, 0, {NA}, vcc"); o(f"v_sub_u32 v23, v{64+i}, v23")
        o(f"v_lshl_or_b32 v{96+2*i}, v23, 16, v{72+i}")
        o("v_cndmask_b32 v23, 0, 32, vcc"); o("v_or_b32 v22, v22, v23")
        o(f"v_lshl_add_u32 v{97+2*i}, v22, 26, v3")
        if i < 4: o("v_add_u32 v3, 1, v3")
    lab("K1_B")
    o("s_mov_b64 exec, -1")
    o("s_waitcnt lgkmcnt(0)"); o("s_barrier")
    o("ds_read_b128 v[24:27], v20"); o("ds_read_b128 v[28:31], v20 offset:16")
    o("s_waitcnt lgkmcnt(0)")
    o("v_mov_b32 v33, v24")
    for j in range(2, 8): o(f"v_add_u32 v{32+j}, v{31+j}, v{23+j}")
    o("v_add_u32 v21, v39, v31"); o("v_mov_b32 v22, v21")
    scan64(21)
    o("v_sub_u32 v32, v21, v22")
    for j in range(1, 8): o(f"v_add_u32 v{32+j}, v32, v{32+j}")
    o("ds_write_b128 v20, v[32:35] offset:2048"); o("ds_write_b128 v20, v[36:39] offset:2064")
    o("s_mov_b64 exec, s[28:29]")
    for i in range(5): o(f"ds_read_b32 v{64+i}, v{80+i} offset:2048")
    o("s_waitcnt lgkmcnt(0)")
    for i in range(5):
        o(f"v_add_lshl_u32 v{64+i}, v{64+i}, v{88+i}, 3"); o(f"ds_write_b64 v{64+i}, v[{96+2*i}:{97+2*i}] offset:4096")
    o("s_mov_b64 exec, -1")
    o("s_cmp_lg_u32 s33, 4"); o("s_cbranch_scc1 K1_O2")
    o("s_lshr_b32 s34, s31, 3")
    for j in range(8): o(f"v_lshl_add_u32 v{24+j}, v{24+j}, 19, v{32+j}"); o(f"v_add_u32 v{24+j}, s34, v{24+j}")
    o(f"ds_write_b128 v20, v[24:27] offset:{4096+CH*8}"); o(f"ds_write_b128 v20, v[28:31] offset:{4096+CH*8+16}")
    lab("K1_O2")
    o("s_waitcnt vmcnt(0) lgkmcnt(0)"); o("s_barrier"); stamp(3)
    lab("K1_J")
    if OPT.get('pfe'):
        srd(76, 6, E*32); o("v_lshlrev_b32 v250, 7, v0"); o("s_lshl_b32 s14, s2, 16"); o("v_add_u32 v250, s14, v250")
        o("buffer_load_dword v251, v250, s[76:79], 0 offen " + OPT['pfe'].replace('p', ''))
    WF_ = 64; XF_ = 128; AC = [160, 192]
    o("ds_read_b128 v[44:47], v40 offset:4096"); o("ds_read_b128 v[48:51], v40 offset:12288")
    o(f"v_cmp_gt_u32 vcc, {CB//16-512}, v0")
    for m in range(2):
        for s in range(8):
            for jj in range(2): o(f"ds_read_b64_tr_b16 v[{WF_+32*m+4*s+2*jj}:{WF_+32*m+4*s+2*jj+1}], v60 offset:{m*32768+s*2048+jj*1024}")
        if m == 0:
            for s in range(8): o(f"ds_read_b128 {vr(XF_+4*s,4)}, v61 offset:{16*s}")
    o(f"s_add_u32 s12, s12, {WS_TAB:#x}"); o("s_addc_u32 s13, s13, 0")
    if SM: o("s_add_u32 s12, s12, s69"); o("s_addc_u32 s13, s13, 0")
    srd(16, 12, N * (128 if SM else 512))
    o(f"s_mov_b32 s15, {NLOG2E:#x}")
    def post(t):
        a = AC[t]; r = []
        for k in range(16): r.append(f"v_mul_f32 v{a+k}, s15, v{a+k}")
        for k in range(16): r.append(f"v_cvt_pk_bf16_f32 v{224+k}, v{a+2*k}, v{a+2*k+1}")
        r += [f"ds_write_b128 v62, {vr(224+4*c,4)} offset:{16*c}" for c in range(4)]
        r += [f"ds_read_b128 {vr(a+4*k,4)}, v63 offset:{k*8*144}" for k in range(4)]
        return r
    def tp(i):
        m = OPT.get('tp')
        return pol if not m else {'s': 'sc1', 'n': 'nt', 'p': ''}[m[i]]
    def stores(t):
        r = []
        for k in range(4):
            r += [f"s_waitcnt lgkmcnt({3-k})", f"buffer_store_dwordx4 {vr(AC[t]+4*k,4)}, v59, s[16:19], 0 offen {tp(4*t+k)}", f"v_add_u32 v59, {0x400 if SM else 0x1000:#x}, v59"]
        return r
    o("s_waitcnt lgkmcnt(15)")
    o("s_add_u32 s30, s31, 8192")
    o(f"buffer_store_dwordx4 v[44:47], v40, s[24:27], s31 offen {rpol}")
    o("s_and_saveexec_b64 s[28:29], vcc"); o("s_cbranch_execz K1_E")
    o(f"buffer_store_dwordx4 v[48:51], v40, s[24:27], s30 offen {rpol}")
    lab("K1_E"); o("s_mov_b64 exec, -1")
    for s in range(8): o(m32(AC[0], WF_+4*s, XF_+4*s, None if s == 0 else AC[0]))
    o("s_waitcnt lgkmcnt(0)")
    for s in range(8):
        o(m32(AC[0]+16, WF_+32+4*s, XF_+4*s, None if s == 0 else AC[0]+16))
        o(f"ds_read_b128 {vr(XF_+4*s,4)}, v61 offset:{2*8320+16*s}")
    o("s_cmp_lg_u32 s68, 0"); o("s_cbranch_scc1 K1_PREP2")
    lab("K1_G")
    o("s_waitcnt lgkmcnt(0)")
    mf = [m32(AC[1], WF_+4*s, XF_+4*s, None if s == 0 else AC[1]) for s in range(8)] + [m32(AC[1]+16, WF_+32+4*s, XF_+4*s, None if s == 0 else AC[1]+16) for s in range(8)]
    q = post(0) + [None] * 6 + stores(0)
    for m in mf:
        o(m)
        for _ in range(5):
            if q:
                x = q.pop(0)
                if x: o(x)
    assert not q
    o(f"v_add_u32 v59, {0x1000 if SM else 0x4000:#x}, v59"); o("v_cmp_gt_u32 vcc, 2, v58")
    for x in post(1): o(x)
    stamp(4)
    o("s_cmp_lt_u32 s33, 4"); o("s_cbranch_scc1 K1_H")
    o("s_mov_b64 exec, vcc")
    for x in stores(1)[:2]: o(x)
    if OPT.get('pfe2'):
        n = int(OPT['pfe2'])
        o("s_mov_b64 exec, -1")
        srd(76, 6, E*32); o("v_lshlrev_b32 v250, 7, v0"); o("s_mul_i32 s14, s2, 50176"); o("s_sub_u32 s14, s14, 32768"); o("v_add_u32 v250, s14, v250")
        o("buffer_load_dword v251, v250, s[76:79], 0 offen")
        if n > 1:
            o("v_cmp_gt_u32 vcc, 392, v0"); o("v_add_u32 v250, 0x8000, v250"); o("s_and_saveexec_b64 s[28:29], vcc"); o("s_cbranch_execz K1_F")
            o("buffer_load_dword v251, v250, s[76:79], 0 offen")
    o("s_branch K1_F")
    lab("K1_H")
    for x in stores(1): o(x)
    lab("K1_F")
    if OPT.get('touch') == '4':
        o("s_mov_b64 exec, -1"); o("s_cmp_lg_u32 s33, 7"); o("s_cbranch_scc1 K1_END")
        o("v_lshl_add_u32 v250, v20, 5, s35"); o(f"v_lshlrev_b32 v250, 19, v250")
        srd(76, 6, E*32); o("buffer_load_dword v249, v250, s[76:79], 0 offen")
        srd(76, 72, N*256); o("buffer_load_dword v249, v250, s[76:79], 0 offen")
        o("buffer_load_dword v249, v250, s[16:19], 0 offen"); o("s_mov_b32 s26, 0x400000"); o("buffer_load_dword v249, v250, s[24:27], 0 offen")
    stamp_out(2, 12, 24, 0)
    lab("K1_END")
    o("s_endpgm")
    lab("K1_LOAD")
    nb0 = int(OPT.get('k1a', 0))
    nb = int(OPT.get('k1b', 24))
    o("s_cmp_eq_u32 s33, 7"); o("s_cbranch_scc1 K1_LX")
    o("s_cmp_eq_u32 s33, 6"); o("s_cselect_b32 s42, s48, s42"); o("s_cselect_b32 s43, s49, s43"); o("s_cselect_b32 s39, 0x8000, 0"); o(f"s_add_u32 s39, s39, {K1_W}")
    srd(52, 42, 32768)
    o("v_lshrrev_b32 v44, 4, v20"); o("v_lshlrev_b32 v44, 6, v44"); o("v_xor_b32 v44, v44, v42")
    for k in range(32 - 5*NX):
        if k in (nb0, min(nb, 31 - 5*NX)): o("s_barrier")
        if k % 4 == 0: o(f"s_add_u32 m0, s39, {k*1024}"); o(f"s_movk_i32 s14, {k*1024}")
        o(f"buffer_load_dwordx4 v44, s[52:55], s14 offen offset:{(k%4)*1024} lds")
    lab("K1_LD")
    addrs()
    o("s_waitcnt vmcnt(0) lgkmcnt(0)"); o("s_barrier")
    o("s_branch K1_J")
    def touch2():
        sh = int(OPT.get('tsh', 16))
        o("v_lshl_add_u32 v250, v20, 5, s35"); o(f"v_lshlrev_b32 v250, {sh}, v250")
        srd(76, 6, E*32); o("buffer_load_dword v249, v250, s[76:79], 0 offen")
        srd(76, 12, WS_TAB + 4*SMS); o("buffer_load_dword v249, v250, s[76:79], 0 offen")
        srd(76, 72, N*256); o("buffer_load_dword v249, v250, s[76:79], 0 offen")
    lab("K1_LX")
    if OPT.get('touch') == '3': touch2()
    if OPT.get('touch') == '5':
        o("s_lshl_b32 s14, s37, 9"); o(f"s_add_u32 s14, s14, {WS_TAB:#x}"); o("s_load_dword s74, s[12:13], s14")
        o("s_add_u32 s14, s14, 50048"); o("s_load_dword s75, s[12:13], s14")
        o("s_lshl_b32 s14, s3, 1"); o("s_load_dword s76, s[12:13], s14")
        o(f"s_mov_b32 s14, {WS_OFF:#x}"); o("s_load_dword s77, s[12:13], s14")
    elif int(OPT.get('touch', 0)):
        srd(24, 12, WS_SIZE)
        o(f"s_lshl_b32 s14, s37, {7 if SM else 9}"); o(f"s_add_u32 s14, s14, {WS_TAB:#x}"); o("v_mov_b32 v248, s14")
        if SM: o("v_lshrrev_b32 v249, 4, v20"); o(f"v_mul_u32_u24 v249, {SMS}, v249"); o("v_add_u32 v248, v248, v249")
        o("s_lshl_b32 s14, s3, 1")
        o("v_writelane_b32 v248, s14, 1"); o(f"s_mov_b32 s14, {WS_OFF:#x}"); o("v_writelane_b32 v248, s14, 2")
        o("buffer_load_dword v249, v248, s[24:27], 0 offen")
    srd(60, 4, N, 256)
    o("v_lshl_add_u32 v58, v57, 3, v56"); o("v_add_u32 v53, s37, v58")
    o("v_and_b32 v55, 15, v0"); o("v_lshlrev_b32 v59, 3, v56"); o("v_xor_b32 v55, v55, v59"); o("v_lshlrev_b32 v55, 4, v55")
    o("v_cmp_gt_u32 vcc, 2, v58"); o("v_mov_b32 v59, 0xffff")
    for k in range(25):
        t, i = divmod(k, 8)
        if k in (nb0, nb): o("s_barrier")
        o(f"s_mov_b32 m0, {K1_X + t*8320 + i*1040}"); o(f"v_add_u32 v54, {32*t + 16*(i >> 2) + 2*(i & 3)}, v53")
        if t == 3: o("v_cndmask_b32 v54, v59, v54, vcc")
        o("buffer_load_dwordx4 v[54:55], s[60:63], 0 idxen offen lds")
    if OPT.get('touch') == '2': touch2()
    o("s_cmp_ge_u32 s2, 68"); o("s_cbranch_scc1 K1_LD")
    o("s_lshr_b32 s14, s2, 5")
    o("s_cmp_eq_u32 s14, 1"); o("s_cselect_b32 s40, s46, s40"); o("s_cselect_b32 s41, s47, s41"); o(f"s_cselect_b32 s68, 1.0, {NLOG2E:#x}")
    o("s_mov_b32 s66, 32768"); o("s_bfe_u32 s50, s2, 0x20003"); o("s_and_b32 s51, s2, 7"); o("s_mov_b32 s32, 14")
    o("s_cmp_eq_u32 s14, 2"); o("s_cselect_b32 s40, s44, s40"); o("s_cselect_b32 s41, s45, s41"); o("s_cselect_b32 s66, 4096, s66")
    o("s_cselect_b32 s50, s51, s50"); o("s_cselect_b32 s51, 0, s51"); o("s_cselect_b32 s32, 11, s32")
    o("s_mov_b32 s64, s40"); o("s_and_b32 s65, s41, 0xffff"); o("s_mov_b32 s67, 0x20000")
    o("s_lshl_b32 s50, s50, 6"); o("s_lshl_b32 s51, s51, 11"); o("s_add_u32 s50, s50, s51")
    o("v_and_b32 v4, 3, v0"); o("v_bfe_u32 v5, v0, 3, 2"); o("v_lshl_or_b32 v4, v5, 2, v4")
    o("v_bfe_u32 v5, v0, 2, 1"); o("v_lshl_or_b32 v4, v5, 4, v4")
    o("v_lshlrev_b32 v5, s32, v57"); o("v_lshl_add_u32 v4, v4, 1, v5"); o("v_add_u32 v4, s50, v4")
    for j in range(8): o(f"buffer_load_ushort v{8+j}, v4, s[64:67], 0 offen offset:{j*256}")
    o("s_branch K1_LD")
    lab("K1_PREP2")
    o("s_lshl_b32 s14, s2, 10"); o(f"s_add_u32 s14, s14, {WS_WF:#x}")
    for j in range(8):
        o(f"v_lshlrev_b32 v{8+j}, 16, v{8+j}"); o(f"v_mul_f32 v{8+j}, s68, v{8+j}")
    for j in range(4): o(f"v_cvt_pk_bf16_f32 v{52+j}, v{8+2*j}, v{9+2*j}")
    o("buffer_store_dwordx4 v[52:55], v42, s[24:27], s14 offen " + OPT.get('wfpol', ''))
    o("s_branch K1_G")

def regs_of(tok):
    m = re.fullmatch(r"v\[(\d+):(\d+)\]", tok)
    if m: return set(range(int(m.group(1)), int(m.group(2)) + 1))
    m = re.fullmatch(r"v(\d+)", tok)
    return {int(m.group(1))} if m else set()
def check_hazards(ins):
    P = []
    for s in ins:
        if s.endswith(':'): continue
        op, _, rest = s.partition(' ')
        t = [x.strip() for x in rest.split(',')]
        t = [x.split(' ')[0] for x in t]
        if op.startswith('v_mfma'):
            P.append(('m', 12 if '32x32' in op else 8, regs_of(t[0]), regs_of(t[1]) | regs_of(t[2]), regs_of(t[3]), s))
        elif op.startswith('v_'):
            P.append(('t' if op in ('v_exp_f32', 'v_rcp_f32') else 'v', 0, regs_of(t[0]), set().union(*map(regs_of, t[1:])), set(), s))
        elif op.startswith('ds_read'):
            P.append(('d', 0, regs_of(t[0]), regs_of(t[1]), set(), s))
        elif op.startswith('buffer'):
            P.append(('d', 0, set(), regs_of(t[0]), set(), s))
        else: P.append(('s', 0, set(), set(), set(), s))
    n = len(P)
    for i, (k, w, d, ab, c, s) in enumerate(P):
        for j in range(1, 13):
            k2, w2, d2, ab2, c2, s2 = P[(i + j) % n]
            gap = j - 1
            if k == 'm':
                if k2 == 'm':
                    assert not (gap < w and d & ab2), (s, s2)
                    if d & c2 and d != c2: assert gap >= w - 2, (s, s2)
                else: assert not (gap < w and d & (d2 | ab2)), (s, s2, gap)
                if k2 in 'vt': assert not (gap < (7 if w == 12 else 3) and c & d2), (s, s2)
            if k in 'vt' and k2 == 'm': assert not (gap < 2 and d & (ab2 | c2)), (s, s2)
            if k == 't' and k2 == 'v': assert not (gap < 1 and d & ab2), (s, s2)

LOWLIM = 2; NS = 2
LUT = 0; IDT = 4096; NB = IDT + 26 * 80; LIST = NB + 256; MB = LIST + 8192; ROW = 264; CNT = MB + 26 * ROW; ZSZ = 26 * ROW + 256
ER = CNT + 256; RING = ER + 8192; WS_ = 4160; SLOT = 4 * WS_; K2_LDS = RING + (NS + 1) * SLOT
G8 = int(OPT.get('g8', 0)); GS = (K2_LDS - NB + 255) // 256 * 256
assert K2_LDS <= 81920 and ER % 16 == 0 and LIST % 16 == 0 and MB % 16 == 0 and 4096 < ZSZ <= 8192 and ZSZ % 16 == 0

class RA:
    def __init__(s): s.n = 1
    def get(s, k=1, al=1):
        s.n = (s.n + al - 1) // al * al
        b = s.n; s.n += k; return b
R = RA()
vTA = R.get()
IX = [R.get(2, 2) for _ in range(4)]; IXE = R.get(2, 2); MQ = R.get(2, 2)
(vTC, vEA, vMT, vSA, vMA, vL1, vL2, vSV, vHC, vWF, vXA, vXR, vXI, vXO) = [R.get() for _ in range(14)]
SEG = R.get(4, 4); PT = R.get(4, 4)
GV = R.get(64, 4); ACC = R.get(64, 4)
TF = R.get(16, 4); EF = R.get(4, 4); SF = R.get(8, 4); WC = R.get(4, 4); T0 = R.get(8, 4); AF = R.get(16, 4); SEL = R.get(8, 4)
NVGPR = R.n
assert NVGPR <= 255, NVGPR
REC = GV; RANK = GV + 32; AD = GV + 48
sX, sE, sW, sO, sT = 8, 12, 16, 20, 96
sWAVE, sBASE, sMR, sME, sCNT, sNT, sRS, sLIM, sFIRST, sMORE, sDS, sT0, sT1, sEPS, s80, sMET = range(24, 40)
sHM, sSV, sWF, sS0 = 42, 44, 52, 54
sK = 56
sG = 95
def addg(v):
    if G8: o(f"v_add_u32 v{v}, s{sG}, v{v}")
def saddg(r):
    if G8: o(f"s_add_u32 s{r}, s{r}, s{sG}")

def ldt(i): return f"buffer_load_dwordx4 {vr(IX[i],2)}, s[{sT}:{sT+3}], 0 idxen offen {OPT.get('tpol', '').replace('+', ' ')} lds".replace("  ", " ")
def lde(): return f"buffer_load_dwordx4 {vr(IXE,2)}, s[{sE}:{sE+3}], 0 idxen offen {OPT.get('epol', '').replace('+', ' ')} lds".replace("  ", " ")
def loff(u): return (u & 1) * 4096 + (u >> 1) * 256
def nextslot(r): return [f"s_add_u32 s{r}, s{r}, {SLOT}", f"s_cmp_eq_u32 s{r}, {NS*SLOT}", f"s_cselect_b32 s{r}, 0, s{r}"]

def vstream(Gc, Vc):
    A = []
    for p in range(0, 22, 2):
        if p < 16: A += [(f"v_exp_f32 v{Gc+p}, v{Gc+p}", 8), (f"v_exp_f32 v{Gc+p+1}, v{Gc+p+1}", 8)]
        q = p - 2
        if 0 <= q < 16:
            if 'a' in OPT.get('pk', ''): A += [(f"v_pk_add_f32 {vr(Gc+q,2)}, {vr(Gc+q,2)}, 1.0 op_sel_hi:[1,0]", 4)]
            else: A += [(f"v_add_f32 v{Gc+q}, 1.0, v{Gc+q}", 4), (f"v_add_f32 v{Gc+q+1}, 1.0, v{Gc+q+1}", 4)]
            A += [(f"v_rcp_f32 v{Gc+q}, v{Gc+q}", 8), (f"v_rcp_f32 v{Gc+q+1}, v{Gc+q+1}", 8)]
        q = p - 4
        if 0 <= q < 16 and 'm' in OPT.get('pk', ''): A += [(f"v_pk_mul_f32 {vr(Vc+q,2)}, {vr(Gc+q,2)}, {vr(Vc+q,2)}", 4)]
        elif 0 <= q < 16: A += [(f"v_mul_f32 v{Vc+q}, v{Gc+q}, v{Vc+q}", 4), (f"v_mul_f32 v{Vc+q+1}, v{Gc+q+1}, v{Vc+q+1}", 4)]
        q = p - 6
        if 0 <= q < 16: A += [(f"v_cvt_pk_bf16_f32 v{Gc+q//2}, v{Gc+q}, v{Gc+q+1}", 4), (f"v_cvt_pk_bf16_f32 v{Vc+q//2}, v{Vc+q}, v{Vc+q+1}", 4)]
    return A
def zphase(P, p):
    d = ACC + 32 * p
    return [m32(d, P, T0, d), m32(d+16, P+16, T0, d+16), m32(d, P+4, T0+4, d), m32(d+16, P+20, T0+4, d+16)]

HEAD = {}
def body(b, peel=False):
    p = b % 2
    Gn = GV + 32 * p; Vn = Gn + 16; Gc = GV + 32 * (1 - p); Vc = Gc + 16; af = AF + 8 * p
    ne = sum(1 for k in range(NS - 1) if (b - k) % 4 == 0) + (1 if (b - (NS - 1)) % 4 == 0 else 0)
    vmw = 4 * (NS - 1) + ne
    z = zphase(Gn, p)
    def dma(i): return [f"s_add_u32 m0, s{sMR}, {p*SLOT + i*1040}", None, ldt(i), f"ds_read_u16 v{IX[i]}, v{vL1} offset:{loff(b+NS+1)+64*i}"]
    top = ["s_waitcnt vmcnt(8) lgkmcnt(0)", "s_barrier"] if b == 3 else ["s_waitcnt lgkmcnt(0)"]
    if G8 and OPT.get('sp', '2103') != '0': top.append(f"s_setprio {OPT.get('sp', '2103')[b]}")
    if G8 and OPT.get('bar2') and b == 1: top.insert(1, "s_barrier")
    seq = []
    seq.append([z[0], [], [f"v_mad_u32_u24 v{vSV}, v{vSV}, s{s80}, v{vHC}"]])
    seq.append([z[1], [f"ds_read_b128 {vr(SF,4)}, v{vSV}", f"ds_read_b128 {vr(SF+4,4)}, v{vSV} offset:32"], []])
    seq.append([z[2], [f"ds_read_u8 v{vSV}, v{vSA} offset:{loff(b+1)}"], []])
    seq.append([z[3], [f"s_sub_u32 s{sCNT}, s{sCNT}, 1", f"s_cbranch_scc1 TAIL{p}", f"ENT{b}:"], []])
    seq.append([m32(Gn, TF, SEL, None), [f"ds_read_b128 {vr(T0,4)}, v{MQ}"], [f"v_and_b32 v{IXE}, 0x7ffff, v{IXE}"] if b == 0 else []])
    seq.append([m32(Gn, TF+4, SEL+4, Gn), [f"ds_read_b128 {vr(T0+4,4)}, v{MQ+1}"], [f"v_xor_b32 v{vEA}, v{vEA}, v{vMT}"] if b == 3 else []])
    seq.append([m32(Gn, EF, WC, Gn), [f"ds_read_b128 {vr(EF,4)}, v{vEA} offset:{(b+1)%4*1024}", f"ds_read_u16 v{MQ}, v{vMA} offset:{b*8}",
                f"ds_read_u16 v{MQ+1}, v{vMA} offset:{b*8+2}"], []])
    seq.append([m32(Vn, TF+8, SEL, None), [f"ds_read_b32 v{IXE}, v{vL2}"] if b == 3 else [], []])
    seq.append([m32(Vn, TF+12, SEL+4, Vn), ["s_waitcnt lgkmcnt(S)"], []])
    seq.append([m32(Gn, SF, af, Gn), [f"s_waitcnt vmcnt({vmw})"], []])
    seq.append([m32(Gn, SF+4, af+4, Gn), [f"ds_read_b128 {vr(TF+4*j,4)}, v{vTA} offset:{(1-p)*SLOT+16*j}" for j in range(4)],
                [f"v_add_u32 v{r}, 0x200, v{r}" for r in (vSA, vL1, vL2)] + [f"v_add_u32 v{vMA}, 32, v{vMA}"] if b == 3 else []])
    dp = [int(c) for c in OPT.get('dp', '03589')]
    for i in range(4): seq[dp[i]][1] = seq[dp[i]][1] + dma(i)
    if b == 0: seq[dp[4]][1] = seq[dp[4]][1] + [f"s_mov_b32 m0, s{sME}", None, lde(), f"s_xor_b32 s{sME}, s{sME}, s{sMET}"]
    A = [] if peel else vstream(Gc, Vc)
    wt = [float(x) for x in OPT.get('wt', '1,1,1,1,1,1,1,1,1,1,1.6').split(',')]
    tot = sum(c for _, c in A); out = list(top); ai = 0; acc = 0; budget = 0
    for i, (m, ex, xv) in enumerate(seq):
        budget += tot * wt[i] / sum(wt)
        g = []
        while ai < len(A) and acc + A[ai][1] / 2 <= budget + 0.01:
            g.append(A[ai][0]); acc += A[ai][1]; ai += 1
        if i == 3 and not peel: HEAD[b] = ai
        if not (peel and i < 4): out.append(m)
        g = xv + g
        last = [x for x in ex if x and (x.startswith("s_waitcnt") or x.startswith("s_cbranch") or x.endswith(":") or x.startswith("s_sub"))]
        ex = [x for x in ex if x not in last]
        if peel: last = [x for x in last if x.startswith("s_waitcnt")]
        first = True
        for x in ex:
            if x is None:
                continue
            if not first and g: out.append(g.pop(0))
            elif not first and peel and x.startswith("buffer"): out.append("s_nop 0")
            out.append(x); first = False
        out += g + last
    assert ai == len(A)
    i0 = max(i for i, x in enumerate(out) if x.startswith(f"ds_read_b128 {vr(SF+4,4)}")); i1 = out.index("s_waitcnt lgkmcnt(S)")
    out[i1] = f"s_waitcnt lgkmcnt({sum(1 for x in out[i0+1:i1] if x.startswith('ds_'))})"
    for i, x in enumerate(out):
        if x.startswith("buffer_load"): assert not out[i-1].split()[1].startswith("m0"), (out[i-1], x)
    if OPT.get('fakec'):
        n2 = []
        for x in out:
            if x.startswith("v_mfma") and (f", {vr(SEL,4)}," in x or f", {vr(SEL+4,4)}," in x):
                j = (int(re.findall(r"v\[(\d+):", x)[1]) - TF)
                n2 += [f"v_lshlrev_b32 v{Vn+j+k}, 16, v{TF+j+k}" for k in range(4)]
            elif x == m32(Gn, EF, WC, Gn): n2.append(m32(Gn, EF, WC, TF))
            elif x.startswith("ds_read_b128") and f"v{vTA} " in x:
                j = int(re.findall(r"v\[(\d+):", x)[0]) - TF
                n2 += [f"ds_read2st64_b32 {vr(TF+j+2*k,2)}, v{vTC} offset0:{(1-p)*65+j+2*k} offset1:{(1-p)*65+j+2*k+1}" for k in range(2)]
            else: n2.append(x)
        out = n2
    if OPT.get('notrans'): out = [x.replace("v_exp_f32", "v_mov_b32").replace("v_rcp_f32", "v_mov_b32") for x in out]
    if OPT.get('noval'): out = ["s_nop 0" if (x.startswith("v_exp") or x.startswith("v_rcp")) else x for x in out if not (x.startswith("v_add_f32") or x.startswith("v_mul_f32") or x.startswith("v_cvt"))]
    if OPT.get('nodma'): out = [x for x in out if 'buffer_load' not in x]
    if OPT.get('noe'): out = [x for x in out if f"s[{sE}:{sE+3}]" not in x]
    return out

def emit(lst):
    for it in lst:
        if it.endswith(':'): lab(it[:-1])
        else: o(it)

def masks(tmp):
    a, b_, c = tmp
    o(f"v_and_b32 v{a}, 3, v0"); o(f"v_lshlrev_b32 v{a}, 1, v{a}"); o(f"v_mov_b32 v{c}, 0")
    for i in range(4):
        o(f"v_lshrrev_b32 v{b_}, 19, v{SEG+i}"); o(f"v_max_u32 v{c}, v{c}, v{b_}")
        o(f"v_min_u32 v{b_}, s{sLIM}, v{b_}"); o(f"v_sub_u32 v{b_}, v{b_}, v{a}")
        for j, k in ((0, 2*i), (1, 2*i+1), (8, 8+2*i), (9, 9+2*i)): o(f"v_cmp_lt_i32 s[{sK+2*k}:{sK+2*k+1}], {j}, v{b_}")
    o(f"v_cmp_lt_u32 vcc, s{sLIM}, v{c}")
    o(f"s_or_b64 s[{sSV}:{sSV+1}], s[{sK+16}:{sK+17}], s[{sK+20}:{sK+21}]"); o(f"s_or_b64 s[{sHM}:{sHM+1}], s[{sK+24}:{sK+25}], s[{sK+28}:{sK+29}]")
    o(f"s_or_b64 s[{sSV}:{sSV+1}], s[{sSV}:{sSV+1}], s[{sHM}:{sHM+1}]")
    o(f"v_mov_b32 v{b_}, {CNT-4}"); addg(b_)
    o("s_mov_b64 exec, vcc"); o(f"ds_write_b32 v{b_}, v{b_}"); o("s_mov_b64 exec, -1")

def interleave(mf, other, per):
    other = list(other)
    for m in mf:
        o(m)
        for _ in range(per):
            if other: o(other.pop(0))
    for x in other: o(x)
def capture(fn):
    n = len(L); fn(); r = [x.strip() for x in L[n:]]; del L[n:]; return r
def wload(dst, off):
    r = []
    for s in range(8):
        if s % 4 == 0: r.append(f"s_add_u32 s{sT0}, s{sWF}, {off + s*1024:#x}")
        r.append(f"buffer_load_dwordx4 {vr(dst+4*s,4)}, v{vWF}, s[{sW}:{sW+3}], s{sT0} offen offset:{(s%4)*1024}")
    return r
def xblk(base, pair):
    o(f"v_mov_b32 v{pair+1}, v{vXO}")
    for mt in range(2):
        for a in range(2):
            o(f"s_add_u32 m0, s{base}, {(2*mt+a)*1040}")
            o(f"v_cmp_gt_u32 vcc, {(NA if mt == 0 else RN-NA) - 2*a}, v{vXI}")
            o(f"s_add_u32 s{sT0}, s{sBASE}, {NA*mt + 2*a}"); o(f"v_add_u32 v{pair}, s{sT0}, v{vXI}")
            o(f"v_cndmask_b32 v{pair}, v{PT+3}, v{pair}, vcc")
            o(f"buffer_load_dwordx4 {vr(pair,2)}, s[{sX}:{sX+3}], 0 idxen offen lds")

def gen_k2():
    L.append(".globl gmain_kernel"); L.append(".p2align 8"); L.append(".type gmain_kernel,@function")
    lab("gmain_kernel"); VST[0] = 255
    t = [TF + i for i in range(28)]
    stamp(0)
    o("s_load_dwordx2 s[50:51], s[0:1], 88")
    o("s_load_dwordx4 s[4:7], s[0:1], 0")
    o("s_load_dwordx2 s[48:49], s[0:1], 72")
    o("s_setprio 3")
    o(f"v_lshrrev_b32 v{t[0]}, 6, v0")
    o("s_and_b32 s3, s2, 7"); o("s_lshl_b32 s3, s3, 6"); o(f"s_bfe_u32 s{sT0}, s2, 0x50003"); o(f"s_lshl1_add_u32 s3, s{sT0}, s3")
    o(f"v_readfirstlane_b32 s{sWAVE}, v{t[0]}")
    if G8:
        o("v_and_b32 v0, 0xff, v0"); o(f"s_lshr_b32 s{sT0}, s{sWAVE}, 2"); o(f"s_and_b32 s{sWAVE}, s{sWAVE}, 3"); o(f"s_mul_i32 s{sG}, s{sT0}, {GS}")
    else: o(f"s_lshr_b32 s{sT0}, s2, 8")
    o(f"s_add_u32 s3, s3, s{sT0}")
    o(f"s_cmp_ge_u32 s2, {256 if G8 else 512}"); o("s_cbranch_scc1 K2_END")
    o(f"s_cmp_ge_u32 s3, {NR}"); o("s_cbranch_scc1 K2_END")
    o(f"v_lshrrev_b32 v{t[1]}, 2, v0")
    o(f"s_lshl_b32 s88, s3, 2"); o(f"s_add_u32 s88, s88, {CH*8}")
    for i in range(1, 4): o(f"s_add_u32 s{88+i}, s88, {i*CB}")
    o(f"v_mul_u32_u24 v{t[1]}, {4*CB}, v{t[1]}")
    o(f"s_mul_i32 s{sBASE}, s3, {RN}")
    o(f"v_and_b32 v{vWF}, 63, v0"); o(f"v_lshlrev_b32 v{vWF}, 4, v{vWF}")
    o(f"s_mul_i32 s{sMR}, s{sWAVE}, {WS_}"); o(f"s_add_u32 s{sMR}, s{sMR}, {RING}"); saddg(sMR)
    o(f"s_lshl_b32 s{sWF}, s{sWAVE}, 13"); o(f"s_add_u32 s{sWF}, s{sWF}, {WS_WF:#x}")
    o(f"s_mov_b32 s40, {EPS:#x}"); o("s_mov_b32 s41, s40"); o(f"s_movk_i32 s{s80}, 80")
    o(f"s_mov_b32 s{sFIRST}, 1"); o(f"s_mov_b32 s{sLIM}, 16")
    o("s_cmp_ge_u32 s2, 256"); o(f"s_cselect_b32 s{sRS}, {OPT.get('bon', 0)}, 0")
    o("s_waitcnt lgkmcnt(0)"); xstamp("karg")
    srd(sW, 50, WS_SIZE)
    for i in range(4): o(f"buffer_load_dword v{SEG+i}, v{t[1]}, s[{sW}:{sW+3}], s{88+i} offen")
    srd(sX, 4, N, 256); srd(sE, 6, E, 32); srd(sO, 48, N, 256)
    o(f"s_add_u32 s50, s50, {WS_TAB:#x}"); o("s_addc_u32 s51, s51, 0")
    if SM: o(f"s_mul_i32 s{sT0}, s{sWAVE}, {SMS}"); o(f"s_add_u32 s50, s50, s{sT0}"); o("s_addc_u32 s51, s51, 0")
    srd(sT, 50, N, 128 if SM else 512)
    WAP = OPT.get('wap', 'p1'); XBP = OPT.get('xbp', 'p1'); ORD = ['start', 'rec', 'mask', 'p1', 'b1']
    def place(where):
        if where not in (WAP, XBP): return
        o(f"s_cmp_eq_u32 s{sFIRST}, 0"); o(f"s_cbranch_scc1 NOW_{where}")
        if XBP == where:
            o(f"s_add_u32 s{sNT}, s{sMR}, {NS*SLOT}")
            xblk(sNT, T0)
        if WAP == where:
            for x in wload(ACC, WF_A): o(x)
            o(f"s_lshl_b32 s{sT0}, s{sWAVE}, 10"); o(f"s_add_u32 s{sT0}, s{sT0}, {WS_WF+WF_C:#x}")
            o(f"buffer_load_dwordx4 {vr(WC,4)}, v{vWF}, s[{sW}:{sW+3}], s{sT0} offen")
        if OPT.get('otouch') and WAP == where:
            o(f"v_mov_b32 v{T0+6}, s{sBASE}"); o(f"buffer_load_dword v{SEL}, v{T0+6}, s[{sO}:{sO+3}], 0 idxen")
        lab(f"NOW_{where}")
    def cnt(lo, hi): return sum(n for p, n in ((WAP, 9), (XBP, 4)) if lo <= ORD.index(p) <= hi)
    SP = [int(x) for x in OPT.get('spf', '0,0').split(',')]
    def spref(n, first):
        for k in range(n): o(f"s_load_dword s{88 + k % 4}, s[46:47], {(first + k) * 32768:#x}")
    if sum(SP):
        o(f"s_and_b32 s{sT0}, s3, 63"); o(f"s_lshl2_add_u32 s{sT0}, s{sT0}, s{sWAVE}"); o(f"s_lshl_b32 s{sT0}, s{sT0}, 7")
        o(f"s_add_u32 s46, s50, s{sT0}"); o("s_addc_u32 s47, s51, 0")
        spref(SP[0], 0)
    lab("ROUND")
    b0, b2, b3, b4, vh = t[16:21]
    o(f"v_lshlrev_b32 v{t[11]}, 4, v0"); addg(t[11])
    for d in range(4): o(f"v_mov_b32 v{t[0]+d}, 0")
    for off in (0, ZSZ - 4096): o(f"ds_write_b128 v{t[11]}, {vr(t[0],4)} offset:{MB+off}")
    pad0 = 0xffff | (NA << 16)
    o(f"v_mov_b32 v{t[4]}, {pad0:#x}"); o(f"v_mov_b32 v{t[5]}, 0x7ffff"); o(f"v_mov_b32 v{t[6]}, {pad0:#x}"); o(f"v_mov_b32 v{t[7]}, 0x7ffff")
    o(f"ds_write_b128 v{t[11]}, {vr(t[4],4)} offset:{LIST}"); o(f"ds_write_b128 v{t[11]}, {vr(t[4],4)} offset:{LIST+4096}")
    o(f"v_and_b32 v{b0}, 1, v0"); o(f"v_bfe_u32 v{b2}, v0, 2, 1"); o(f"v_bfe_u32 v{b3}, v0, 3, 1"); o(f"v_bfe_u32 v{b4}, v0, 4, 1"); o(f"v_bfe_u32 v{vh}, v0, 5, 1")
    o(f"v_and_b32 v{t[8]}, 3, v0"); o(f"v_lshlrev_b32 v{t[8]}, 1, v{t[8]}")
    o(f"v_mov_b32 v{t[9]}, 0x7ffffff0"); o(f"s_mov_b32 s{sT1}, 0x7ffff")
    o(f"v_and_b32 v{t[12]}, 15, v0"); o(f"v_lshlrev_b32 v{t[13]}, 3, v{b4}")
    o(f"v_xor_b32 v{vXO}, v{t[12]}, v{t[13]}"); o(f"v_lshlrev_b32 v{vXO}, 4, v{vXO}")
    o(f"s_lshr_b32 s{sT0}, s{sWAVE}, 1"); o(f"s_lshl_b32 s{sT0}, s{sT0}, 4"); o(f"s_and_b32 s{sS0}, s{sWAVE}, 1"); o(f"s_lshl2_add_u32 s{sT0}, s{sS0}, s{sT0}")
    o(f"v_lshl_add_u32 v{vXI}, v{vh}, 3, v{b4}"); o(f"v_add_u32 v{vXI}, s{sT0}, v{vXI}")
    o(f"v_mov_b32 v{PT+3}, 0xffff")
    place('start')
    xstamp("consts_done")
    o(f"s_waitcnt vmcnt({cnt(0, 0)})"); stamp(1)
    for i in range(4):
        o(f"v_lshrrev_b32 v{t[4+i]}, 19, v{SEG+i}"); o(f"v_cmp_lt_u32 vcc, v{t[8]}, v{t[4+i]}")
        o(f"v_and_b32 v{t[i]}, s{sT1}, v{SEG+i}"); o(f"v_add_lshl_u32 v{t[i]}, v{t[i]}, v{t[8]}, 3")
        o(f"v_cndmask_b32 v{t[10]}, v{t[9]}, v{t[i]}, vcc")
        o(f"buffer_load_dwordx4 {vr(REC+4*i,4)}, v{t[10]}, s[{sW}:{sW+3}], 0 offen")
    o(f"v_max3_u32 v{t[10]}, v{t[4]}, v{t[5]}, v{t[6]}"); o(f"v_max_u32 v{t[10]}, v{t[10]}, v{t[7]}")
    o(f"v_cmp_lt_u32 vcc, 8, v{t[10]}"); o("s_cbranch_vccz REC_DONE")
    for i in range(4): o(f"buffer_load_dwordx4 {vr(REC+16+4*i,4)}, v{t[i]}, s[{sW}:{sW+3}], 0 offen offset:64")
    lab("REC_DONE")
    xstamp("rec_issued")
    PF = int(OPT.get('pf', 0))
    def pref():
        o(f"s_lshr_b32 s{sT0}, s3, 6"); o(f"s_mul_i32 s{sT0}, s{sT0}, {64*RN}"); o(f"s_and_b32 s{sT1}, s3, 63"); o(f"s_lshl_b32 s{sT1}, s{sT1}, 6"); o(f"s_add_u32 s{sT0}, s{sT0}, s{sT1}")
        o(f"v_lshrrev_b32 v{T0+2}, 2, v0"); o(f"v_add_u32 v{T0+2}, s{sT0}, v{T0+2}"); o(f"v_and_b32 v{T0+1}, 3, v0"); o(f"v_lshlrev_b32 v{T0+1}, 7, v{T0+1}")
        for k in range(PF):
            o(f"v_add_u32 v{T0+3}, {-512*RN}, v{T0+2}"); o(f"v_min_u32 v{T0}, v{T0+2}, v{T0+3}")
            o(f"buffer_load_dword v{SEL}, {vr(T0,2)}, s[{sT}:{sT+3}], 0 idxen offen")
            if k + 1 < PF: o(f"v_add_u32 v{T0+2}, 4096, v{T0+2}")
    PFW = OPT.get('pfw', 'rec')
    place('rec')
    if PF and PFW == 'rec': pref()
    o("s_waitcnt lgkmcnt(0)"); o("s_barrier"); stamp(2)
    spref(SP[1], SP[0])
    pp = t[14]
    o(f"v_and_b32 v{pp}, 0x13, v0"); o(f"v_lshl_or_b32 v{pp}, v{b2}, 3, v{pp}"); o(f"v_lshl_or_b32 v{pp}, v{b3}, 2, v{pp}")
    o(f"v_lshrrev_b32 v{t[12]}, 3, v{pp}"); o(f"v_lshlrev_b32 v{vTA}, 7, v{pp}"); o(f"v_lshl_add_u32 v{vTA}, v{t[12]}, 4, v{vTA}")
    o(f"v_bfe_u32 v{t[13]}, v0, 1, 1"); o(f"v_xor_b32 v{t[12]}, v{t[13]}, v{vh}"); o(f"v_lshl_add_u32 v{vTA}, v{t[12]}, 6, v{vTA}"); o(f"v_add_u32 v{vTA}, s{sMR}, v{vTA}")
    o(f"v_and_b32 v{t[12]}, 7, v0"); o(f"v_lshlrev_b32 v{t[15]}, 2, v{b4}"); o(f"v_xor_b32 v{t[15]}, v{t[15]}, v{t[12]}")
    o(f"s_mov_b32 s{sT0}, 0" if SM else f"s_lshl_b32 s{sT0}, s{sWAVE}, 7"); o(f"v_lshl_add_u32 v{IX[0]+1}, v{t[15]}, 4, s{sT0}")
    for i in range(1, 4): o(f"v_mov_b32 v{IX[i]+1}, v{IX[0]+1}")
    o(f"v_and_b32 v{vL1}, 0x38, v0"); o(f"v_add_u32 v{vL1}, {LIST}, v{vL1}"); addg(vL1)
    o(f"v_lshl_or_b32 v{t[15]}, v{b4}, 1, v{b2}"); o(f"v_mul_u32_u24 v{t[15]}, {WS_}, v{t[15]}"); o(f"v_mul_u32_u24 v{t[13]}, 1040, v{t[13]}")
    o(f"v_lshl_or_b32 v{t[21]}, v{b3}, 1, v{b0}"); o(f"v_lshl_add_u32 v{t[15]}, v{t[21]}, 8, v{t[15]}"); o(f"v_add3_u32 v{t[15]}, v{t[15]}, v{t[13]}, {'s%d' % sG if G8 else 0}")
    o(f"v_add_u32 v{t[15]}, {RING + NS*SLOT}, v{t[15]}")
    o(f"v_xor_b32 v{t[13]}, v{vh}, v{b0}"); o(f"v_lshl_add_u32 v{vXA}, v{t[13]}, 7, v{t[15]}")
    o(f"v_lshlrev_b32 v{IXE+1}, 4, v{t[13]}")
    o(f"v_bfe_u32 v{t[13]}, v0, 7, 1"); o(f"v_xor_b32 v{t[13]}, v{t[13]}, v{b0}"); o(f"v_lshl_add_u32 v{vXR}, v{t[13]}, 7, v{t[15]}")
    o(f"v_and_b32 v{t[13]}, 0x60, v0"); o(f"v_add_u32 v{vXR}, v{vXR}, v{t[13]}")
    o(f"s_lshl_b32 s{sT0}, s{sS0}, 12"); o(f"s_lshr_b32 s{sT1}, s{sWAVE}, 1"); o(f"s_lshl_b32 s{sT1}, s{sT1}, 8"); o(f"s_add_u32 s{sT0}, s{sT0}, s{sT1}"); o(f"s_add_u32 s{sT0}, s{sT0}, {LIST+4}"); saddg(sT0)
    o(f"v_bfe_u32 v{vL2}, v0, 1, 5"); o(f"v_lshl_add_u32 v{vL2}, v{vL2}, 3, s{sT0}")
    o(f"s_lshl_b32 s{sME}, s{sWAVE}, 10"); o(f"s_add_u32 s{sME}, s{sME}, {ER}"); saddg(sME)
    o(f"v_lshlrev_b32 v{vSA}, 3, v{pp}"); o(f"v_add_u32 v{vSA}, {LIST+2}, v{vSA}"); addg(vSA)
    o(f"v_lshlrev_b32 v{vHC}, 4, v{vh}"); o(f"v_add_u32 v{vHC}, {IDT}, v{vHC}")
    o(f"v_xor_b32 v{vEA}, v{b4}, v{vh}"); o(f"v_lshlrev_b32 v{vEA}, 4, v{vEA}")
    o(f"v_lshl_add_u32 v{vEA}, v{pp}, 5, v{vEA}"); o(f"v_add_u32 v{vEA}, {ER}, v{vEA}"); addg(vEA)
    o(f"v_add_u32 v{vMT}, 4096, v{vEA}"); o(f"v_xor_b32 v{vMT}, v{vMT}, v{vEA}")
    o(f"v_and_b32 v{t[13]}, 31, v0"); o(f"v_min_u32 v{t[13]}, {NA}, v{t[13]}")
    o(f"v_mul_u32_u24 v{vMA}, {ROW}, v{t[13]}"); o(f"v_lshl_add_u32 v{vMA}, v{vh}, 2, v{vMA}"); o(f"v_add_u32 v{vMA}, {MB}, v{vMA}"); addg(vMA)
    o(f"v_lshrrev_b32 v{PT+2}, 5, v0"); o(f"v_lshlrev_b32 v{PT+2}, 4, v{PT+2}"); o(f"v_lshl_add_u32 v{PT+2}, v{b3}, 2, v{PT+2}"); addg(PT+2)
    o(f"v_lshl_add_u32 v{t[12]}, v{b4}, 4, v{t[12]}"); o(f"v_lshlrev_b32 v{PT+1}, v{t[12]}, 16")
    o(f"v_and_b32 v{t[12]}, 3, v0"); o(f"v_lshl_add_u32 v{t[12]}, v{b4}, 2, v{t[12]}"); o(f"v_lshlrev_b32 v{t[12]}, v{t[12]}, 16")
    o(f"v_cmp_eq_u32 vcc, v{b3}, v{vh}"); o(f"v_lshlrev_b32 v{t[13]}, 4, v{b2}"); o("s_nop 0")
    o(f"v_cndmask_b32 v{t[12]}, 0, v{t[12]}, vcc"); o(f"v_lshlrev_b32 v{PT}, v{t[13]}, v{t[12]}")
    place('mask')
    if cnt(1, 2):
        o(f"s_cmp_eq_u32 s{sFIRST}, 1"); o("s_cbranch_scc1 REMASK"); o("s_waitcnt vmcnt(0)")
    lab("REMASK")
    masks((t[0], t[1], t[2])); xstamp("masks_done")
    a, b_, c, d_ = t[0:4]; ad = [AD + k for k in range(16)]
    o(f"v_mov_b32 v{a}, 8")
    o(f"v_lshrrev_b32 v{b_}, 2, v{vWF}"); addg(b_)
    if G8: o(f"s_lshr_b32 s{sDS}, s{sG}, 8")
    if PF and PFW == 'mask': pref()
    o(f"s_waitcnt vmcnt({cnt(1, 2)})"); xstamp("rec_landed")
    for half in range(2):
        if half: o(f"s_cmp_eq_u64 s[{sSV}:{sSV+1}], 0"); o("s_cbranch_scc1 P1_DONE"); o("s_mov_b64 exec, -1")
        for k in range(8*half, 8*half+8): o(f"v_alignbit_b32 v{ad[k]}, s{sDS}, v{REC+2*k+1}, 24" if G8 else f"v_lshrrev_b32 v{ad[k]}, 24, v{REC+2*k+1}")
        for k in range(8*half, 8*half+8):
            o(f"s_mov_b64 exec, s[{sK+2*k}:{sK+2*k+1}]")
            o(f"ds_add_rtn_u32 v{RANK+k}, v{ad[k]}, v{a} offset:{CNT}")
    lab("P1_DONE")
    o("s_mov_b64 exec, -1")
    EP = OPT.get('ep', '')
    def epf():
        o(f"s_mov_b32 s{sT1}, {int(OPT.get('epm', '0x7007ffff'), 0):#x}")
        for k in range(8):
            o(f"v_and_b32 v{T0+k}, s{sT1}, v{REC+2*k+1}"); o(f"buffer_load_dword v{SEL}, v{T0+k}, s[{sE}:{sE+3}], 0 idxen")
    if EP == 'a': epf()
    place('p1')
    if EP == 'b': epf()
    if PF and PFW == 'p1': pref()
    o("s_waitcnt lgkmcnt(0)"); xstamp("p1_done"); o("s_barrier"); xstamp("b1")
    o(f"ds_read_b32 v{c}, v{b_} offset:{CNT}")
    o(f"ds_read_b32 v{t[4]}, v{b_} offset:{CNT-4}")
    place('b1')
    o(f"v_lshlrev_b32 v{t[5]}, 12, v{vh}"); addg(t[5])
    o("s_waitcnt lgkmcnt(1)")
    o(f"v_sub_u32 v{d_}, v{t[5]}, v{c}")
    for dd in ("row_shr:1", "row_shr:2", "row_shr:4", "row_shr:8"):
        o(f"v_add_u32_dpp v{c}, v{c}, v{c} {dd} row_mask:0xf bank_mask:0xf bound_ctrl:0"); o("s_nop 1")
    o(f"v_add_u32_dpp v{c}, v{c}, v{c} row_bcast:15 row_mask:0xa bank_mask:0xf")
    o(f"v_add_u32 v{d_}, v{c}, v{d_}")
    o(f"ds_write_b32 v{b_}, v{d_} offset:{NB}")
    o(f"v_readlane_b32 s{sNT}, v{c}, 31"); o(f"v_readlane_b32 s{sCNT}, v{c}, 63")
    for k in range(8): o(f"ds_read_b32 v{ad[k]}, v{ad[k]} offset:{NB}")
    o(f"s_max_u32 s{sT0}, s{sNT}, s{sCNT}")
    o(f"s_cmp_le_u32 s{sT0}, 4096"); o("s_cbranch_scc0 TOOBIG")
    xstamp("scan_done")
    for half in range(2):
        if half:
            o(f"s_cmp_eq_u64 s[{sSV}:{sSV+1}], 0"); o("s_cbranch_scc1 P2_DONE"); o("s_mov_b64 exec, -1")
            for k in range(8, 16): o(f"ds_read_b32 v{ad[k]}, v{ad[k]} offset:{NB}")
        for k in range(8*half, 8*half+8):
            if k % 4 == 0: o(f"s_waitcnt lgkmcnt({4 - k % 8})")
            o(f"v_add_u32 v{RANK+k}, v{RANK+k}, v{ad[k]}")
        for k in range(8*half, 8*half+8):
            o(f"s_mov_b64 exec, s[{sK+2*k}:{sK+2*k+1}]")
            o(f"ds_write_b64 v{RANK+k}, {vr(REC+2*k,2)} offset:{LIST}")
    lab("P2_DONE")
    o("s_mov_b64 exec, -1")
    o(f"v_readlane_b32 s{sMORE}, v{t[4]}, 0")
    o(f"s_mov_b32 m0, s{sME}")
    o(f"s_waitcnt vmcnt({9 + (8 if EP == 'b' else 0) if ORD.index(WAP) >= ORD.index(XBP) else 0}) lgkmcnt(0)"); xstamp("p2_done"); o("s_barrier"); stamp(5)
    f = t
    def rdidx(u):
        for i in range(4): o(f"ds_read_u16 v{IX[i]}, v{vL1} offset:{loff(u)+64*i}")
    def fill(u, nxt):
        for i in range(4):
            o(f"s_add_u32 m0, s{sMR}, {u*SLOT + i*1040}"); o(f"s_waitcnt lgkmcnt(3)"); o(ldt(i))
            o(f"ds_read_u16 v{IX[i]}, v{vL1} offset:{loff(nxt)+64*i}")
    o(f"ds_read_b32 v{IXE}, v{vL2}"); rdidx(0)
    o(f"v_lshlrev_b32 v{f[9]}, 3, v0"); addg(f[9])
    o("s_waitcnt lgkmcnt(4)")
    o(f"v_and_b32 v{IXE}, 0x7ffff, v{IXE}"); o(lde())
    NFO = int(OPT.get('nfo', 2)); NFY = int(OPT.get('nfy', 2))
    def fills(lo_o, hi_o, lo_y, hi_y, tag, wait):
        if (lo_o, hi_o) == (lo_y, hi_y):
            for u in range(lo_o, hi_o): fill(u, u + 1)
            return
        o("s_cmp_ge_u32 s2, 256"); o(f"s_cbranch_scc1 {tag}_Y")
        for u in range(lo_o, hi_o): fill(u, u + 1)
        if wait: o(f"s_waitcnt vmcnt({2+4*hi_o})")
        o(f"s_branch {tag}_D")
        lab(f"{tag}_Y")
        for u in range(lo_y, hi_y): fill(u, u + 1)
        if wait: o(f"s_waitcnt vmcnt({2+4*hi_y})")
        lab(f"{tag}_D")
    fills(0, NFO, 0, NFY, "FA", True)
    for k in range(4): o(f"ds_read_u8 v{f[12+k]}, v{f[9]} offset:{LIST+2+k*2048}")
    o(f"ds_read_b32 v{IXE}, v{vL2} offset:512"); o(f"ds_read_u8 v{vSV}, v{vSA}")
    xstamp("fill_issued")
    def ctrl():
        o(f"s_movk_i32 s{sS0}, {ROW}")
        for k in range(4):
            o(f"v_cmp_gt_u32 vcc, {NA}, v{f[12+k]}"); o(f"v_mad_u32_u24 v{f[0]}, v{f[12+k]}, s{sS0}, v{PT+2}"); o("s_nop 0")
            o(f"v_cndmask_b32 v{f[1]}, 0, v{PT+1}, vcc")
            o(f"ds_or_b32 v{f[0]}, v{f[1]} offset:{MB + (k&1)*128 + (k>>1)*8}")
        o(f"s_add_u32 s{sNT}, s{sNT}, 255"); o(f"s_lshr_b32 s{sNT}, s{sNT}, 8"); o(f"s_lshl1_add_u32 s{sNT}, s{sNT}, -1")
        o(f"s_add_u32 s{sCNT}, s{sCNT}, 255"); o(f"s_lshr_b32 s{sCNT}, s{sCNT}, 8"); o(f"s_lshl_b32 s{sCNT}, s{sCNT}, 1")
        o(f"s_max_i32 s{sNT}, s{sNT}, s{sCNT}"); o(f"s_max_i32 s{sNT}, s{sNT}, 2"); o(f"s_sub_u32 s{sCNT}, s{sNT}, 2")
        o(f"s_add_u32 s{sMET}, s{sME}, 4096"); o(f"s_xor_b32 s{sMET}, s{sMET}, s{sME}"); o(f"s_add_u32 s{sME}, s{sME}, 4096")
        o(f"v_add_u32 v{vL2}, 0x400, v{vL2}")
    def lut():
        q = T0
        for d in range(4):
            o(f"v_bfe_u32 v{q+d}, v0, {2*d}, 2"); o(f"v_mul_u32_u24 v{q+d}, 0x8001, v{q+d}")
            o(f"v_and_b32 v{q+d}, 0x10001, v{q+d}"); o(f"v_mul_u32_u24 v{q+d}, 0x3f80, v{q+d}")
        o(f"v_lshlrev_b32 v{q+4}, 4, v0"); o(f"ds_write_b128 v{q+4}, {vr(q,4)} offset:{LUT}")
        o(f"v_lshrrev_b32 v{q}, 3, v0"); o(f"v_and_b32 v{q+1}, 7, v0")
        o(f"v_bfe_u32 v{q+2}, v0, 5, 1"); o(f"v_bfe_u32 v{q+3}, v0, 6, 1"); o(f"v_lshl_or_b32 v{q+2}, v{q+2}, 1, v{q+3}")
        o(f"v_lshrrev_b32 v{q+3}, 7, v0"); o(f"v_lshl_or_b32 v{q+2}, v{q+3}, 2, v{q+2}")
        o(f"v_cmp_eq_u32 vcc, v{q+2}, v{q+1}"); o(f"v_cmp_gt_u32 s[{sHM}:{sHM+1}], {NA}, v{q}"); o(f"v_mov_b32 v{q+6}, 0x3f80"); o(f"v_mov_b32 v{q+7}, 0")
        o(f"s_and_b64 vcc, vcc, s[{sHM}:{sHM+1}]")
        o(f"v_and_b32 v{q+2}, 3, v{q}"); o(f"v_lshlrev_b32 v{q+2}, 4, v{q+2}"); o(f"v_cndmask_b32 v{q+6}, 0, v{q+6}, vcc")
        o(f"v_lshlrev_b64 {vr(q+6,2)}, v{q+2}, {vr(q+6,2)}")
        o(f"v_min_u32 v{q}, {NA}, v{q}"); o(f"v_mul_u32_u24 v{q}, 80, v{q}"); o(f"v_lshl_add_u32 v{q}, v{q+1}, 3, v{q}")
        o(f"ds_write_b64 v{q}, {vr(q+6,2)} offset:{IDT}")
    o(f"s_cmp_eq_u32 s{sFIRST}, 1"); o("s_cbranch_scc1 G1")
    o("s_waitcnt lgkmcnt(0)")
    ctrl()
    o("s_branch G1D")
    lab("G1")
    for mt in range(2):
        for s in range(8): o(f"ds_read_b128 {vr(GV+32*mt+4*s,4)}, v{vXA} offset:{mt*2080 + 16*s}")
        if mt == 0: o("s_waitcnt lgkmcnt(8)")
    lt = capture(lut); ct = capture(ctrl)
    for x in lt[:18]: o(x)
    o(f"s_waitcnt vmcnt({4*max(NFO, NFY)+2+(8 if EP == 'b' else 0)}) lgkmcnt(9)")
    acc = [ACC + 32, ACC + 48]
    interleave([m32(acc[0], GV+4*s, ACC+4*s, None if s == 0 else acc[0]) for s in range(8)], lt[18:] + ct[:16], 5)
    o("s_waitcnt lgkmcnt(5)")
    def cv(mt): return [f"v_cvt_pk_bf16_f32 v{AF+8*mt+r//2}, v{acc[mt]+r}, v{acc[mt]+r+1}" for r in range(0, 16, 2)]
    interleave([m32(acc[1], GV+32+4*s, ACC+4*s, None if s == 0 else acc[1]) for s in range(8)],
               ct[16:] + cv(0) + [f"v_mov_b64 {vr(acc[0]+r,2)}, s[40:41]" for r in range(0, 16, 2)], 5)
    for r in range(0, 32, 2): o(f"v_mov_b64 {vr(ACC+r,2)}, {'s[40:41]' if r < 16 else 0}")
    for x in cv(1): o(x)
    for r in range(0, 16, 2): o(f"v_mov_b64 {vr(acc[1]+r,2)}, 0")
    if STAMP:
        o("s_getreg_b32 s94, hwreg(HW_REG_HW_ID)"); o("s_getreg_b32 s100, hwreg(HW_REG_XCC_ID)"); o("s_and_b32 s94, s94, 0xffff"); o("s_lshl_b32 s100, s100, 16"); o("s_or_b32 s94, s94, s100"); o(f"v_writelane_b32 v{VST[0]}, s94, 3")
    lab("G1D")
    o(f"v_and_b32 v{MQ}, 0xffff, v{PT}"); o(f"v_lshrrev_b32 v{MQ+1}, 16, v{PT}")
    xstamp("g1_done"); stamp(4)
    fills(NFO, NS, NFY, NS, "FB", False)
    o(f"s_waitcnt vmcnt({4*(NS-1)}) lgkmcnt(0)"); xstamp("t0_landed"); o("s_barrier")
    o(f"ds_read_b128 {vr(SEL,4)}, v{MQ}"); o(f"ds_read_b128 {vr(SEL+4,4)}, v{MQ+1}")
    o(f"ds_read_b128 {vr(EF,4)}, v{vEA}")
    for j in range(4): o(f"ds_read_b128 {vr(TF+4*j,4)}, v{vTA} offset:{16*j}")
    o(f"s_setprio {OPT.get('lp', 2)}")
    if OPT.get('young'):
        o("s_cmp_lt_u32 s2, 256"); o("s_cbranch_scc1 OLD"); o(f"s_setprio {OPT['young']}"); lab("OLD")
    if OPT.get('fakec'): o(f"v_lshrrev_b32 v{vTC}, 2, v{vWF}"); o(f"v_add_u32 v{vTC}, s{sMR}, v{vTC}")
    stamp(6); stamp(8, "s_memtime")
    bodies = [body(b) for b in range(4)]
    if not OPT.get('noval') and not OPT.get('fakec'): check_hazards(sum(bodies, []) + ["s_branch LOOP"])
    emit(body(0, peel=True))
    b1 = bodies[1][:bodies[1].index("ENT1:")]
    o("s_nop 7")
    emit([x for x in b1 if not x.startswith(("v_mfma", "s_sub", "s_cbranch"))])
    o("s_branch ENT1")
    lab("TOOBIG")
    o(f"s_mov_b32 s{sLIM}, {LOWLIM}"); o(f"v_mov_b32 v{a}, 0")
    o("s_waitcnt lgkmcnt(0)"); o("s_barrier")
    o(f"ds_write_b32 v{b_}, v{a} offset:{CNT}")
    o("s_waitcnt lgkmcnt(0)"); o("s_barrier")
    o("s_branch REMASK")
    lab("LOOP")
    emit(sum(bodies, []))
    if OPT.get('pp', '99,8,4') != '0' and not G8:
        th = [int(x) for x in OPT.get('pp', '99,8,4').split(',')]
        o(f"s_add_u32 s{sT0}, s{sCNT}, s{sRS}")
        for k, v in enumerate(th):
            if v < 99: o(f"s_cmp_lt_u32 s{sT0}, {v}"); o("s_cbranch_scc0 LOOP"); o(f"s_setprio {2-k}")
    o("s_branch LOOP")
    assert len(set(HEAD.values())) == 1
    WU = TF; x = AF
    def fin(p):
        d = ACC + 32 * p; r = []
        for k in range(16): r.append(f"v_rcp_f32 v{d+k}, v{d+k}")
        for k in range(16): r.append(f"v_mul_f32 v{d+16+k}, v{d+k}, v{d+16+k}")
        return r
    def unp(p): return sum(([f"v_lshlrev_b32 v{ACC+32*p+2*k}, 16, v{x+8*p+k}", f"v_and_b32 v{ACC+32*p+2*k+1}, s{sT1}, v{x+8*p+k}"] for k in range(8)), [])
    def post(p):
        r = []
        for k in range(8):
            z = ACC + 32*p + 16 + 2*k
            r += [f"v_max_f32 v{z}, 0, v{z}", f"v_max_f32 v{z+1}, 0, v{z+1}", f"v_add_f32 v{z}, v{z}, v{z-16}", f"v_add_f32 v{z+1}, v{z+1}, v{z-15}",
                  f"v_cvt_pk_bf16_f32 v{x+8*p+k}, v{z}, v{z+1}"]
        return r
    def st(p): return [f"s_mov_b64 exec, {((1 << (NA - p)) - 1):#x}", f"s_mov_b32 exec_hi, exec_lo"] + \
        [f"buffer_store_dwordx4 {vr(x+8*p+4*k,4)}, {vr(IX[p],2)}, s[{sO}:{sO+3}], 0 idxen offen offset:{16*k} {OPT.get('outpol', '').replace('+', ' ')}" for k in range(2)] + ["s_mov_b64 exec, -1"]
    assert RN - NA == NA - 1
    CO = int(OPT.get('co', 0))
    if CO:
        def st(p): return [f"s_mov_b64 exec, {((1 << (NA - p)) - 1):#x}", f"s_mov_b32 exec_hi, exec_lo"] + \
            [f"ds_write_b128 v{IX[2]}, {vr(x+8*p+4*k,4)} offset:{RING + p*NA*272 + 16*k}" for k in range(2)] + ["s_mov_b64 exec, -1"]
    for p in (1, 0):
        q = 1 - p; Gc = GV + 32 * q
        lab(f"TAIL{p}")
        stamp(7); stamp(11, "s_memtime")
        if STAMP: o(f"v_writelane_b32 v{VST[0]}, s{sNT}, 12")
        o(f"ds_read_b128 {vr(T0,4)}, v{MQ}"); o(f"ds_read_b128 {vr(T0+4,4)}, v{MQ+1}")
        o(f"s_cmp_lg_u32 s{sMORE}, 0"); o(f"s_cbranch_scc1 TAILM{p}")
        o("s_waitcnt lgkmcnt(0)")
        for ins in wload(WU, WF_U): o(ins)
        for s in range(8): o(f"ds_read_b128 {vr(GV+32*p+4*s,4)}, v{vXA} offset:{p*2080+16*s}")
        for mt in range(2):
            for k in range(2): o(f"ds_read_b128 {vr(x+8*mt+4*k,4)}, v{vXR} offset:{mt*2080+16*k}")
        o(f"v_and_b32 v{IX[0]}, 31, v0"); o(f"v_and_b32 v{IX[0]+1}, 0xe0, v0"); o(f"v_add_u32 v{IX[0]}, s{sBASE}, v{IX[0]}")
        o(f"v_add_u32 v{IX[1]}, {NA}, v{IX[0]}"); o(f"v_mov_b32 v{IX[1]+1}, v{IX[0]+1}")
        if CO:
            o(f"v_and_b32 v{IX[2]}, 31, v0"); o(f"v_mul_u32_u24 v{IX[2]}, 272, v{IX[2]}"); o(f"v_add_u32 v{IX[2]}, v{IX[2]}, v{IX[0]+1}")
            o(f"v_lshrrev_b32 v{IX[0]}, 4, v0"); o(f"v_and_b32 v{IX[0]+1}, 0xf0, v{vWF}")
            o(f"v_mul_u32_u24 v{IX[3]}, 272, v{IX[0]}"); o(f"v_add_u32 v{IX[3]}, v{IX[3]}, v{IX[0]+1}"); o(f"v_add_u32 v{IX[0]}, s{sBASE}, v{IX[0]}")
        o(f"s_mov_b32 s{sT1}, 0xffff0000")
        vs = [i for i, _ in vstream(Gc, Gc + 16)[HEAD[0]:]]
        for ins in vs: o(ins)
        o("s_nop 0")
        interleave(zphase(Gc, q), fin(p), 4)
        for s in range(8): o(f"ds_read_b128 {vr(Gc+4*s,4)}, v{vXA} offset:{q*2080+16*s}")
        o("s_waitcnt vmcnt(0) lgkmcnt(8)")
        interleave([m32(ACC+32*p+16, WU+4*s, GV+32*p+4*s, ACC+32*p+16) for s in range(8)], fin(q), 4)
        o("s_waitcnt lgkmcnt(0)"); o("s_barrier" if CO else "s_nop 0")
        interleave([m32(ACC+32*q+16, WU+4*s, Gc+4*s, ACC+32*q+16) for s in range(8)], unp(p) + post(p) + unp(q), 7)
        for ins in st(p) + post(q) + st(q): o(ins)
        if p == 1: o("s_branch K2_FIN")
    lab("K2_FIN")
    if CO:
        o("v_cmp_gt_u32 vcc, 16, v0")
        o("s_waitcnt lgkmcnt(0)"); o("s_barrier")
        for k in range(4): o(f"ds_read_b128 {vr(GV+4*k,4)}, v{IX[3]} offset:{RING + k*16*272}")
        for k in range(4):
            if k == 3: o(f"s_and_saveexec_b64 s[{sSV}:{sSV+1}], vcc"); o("s_cbranch_execz K2_OUT")
            o(f"s_waitcnt lgkmcnt({3-k})")
            o(f"buffer_store_dwordx4 {vr(GV+4*k,4)}, {vr(IX[0],2)}, s[{sO}:{sO+3}], 0 idxen offen {OPT.get('outpol', '').replace('+', ' ')}")
            if k < 3: o(f"v_add_u32 v{IX[0]}, 16, v{IX[0]}")
        lab("K2_OUT")
    stamp_out(9, GV+32, sW, 1)
    lab("K2_END")
    o("s_endpgm")
    for p in (1, 0):
        Gc = GV + 32 * (1 - p)
        lab(f"TAILM{p}")
        for ins, _ in vstream(Gc, Gc + 16)[HEAD[0]:]: o(ins)
        o("s_waitcnt lgkmcnt(0)")
        for m in zphase(Gc, 1 - p): o(m)
        if p == 1: o("s_branch NEXTROUND")
    lab("NEXTROUND")
    for i in range(4):
        o(f"v_lshrrev_b32 v{vTC}, 19, v{SEG+i}"); o(f"v_min_u32 v{vTC}, s{sLIM}, v{vTC}")
        o(f"v_add_u32 v{SEG+i}, v{SEG+i}, v{vTC}"); o(f"v_lshlrev_b32 v{vTC}, 19, v{vTC}"); o(f"v_sub_u32 v{SEG+i}, v{SEG+i}, v{vTC}")
    o(f"s_mov_b32 s{sFIRST}, 0"); o(f"s_mov_b32 s{sLIM}, 16")
    o("s_waitcnt vmcnt(0) lgkmcnt(0)"); o("s_barrier")
    o("s_branch ROUND")

def kd(name, nv, ns):
    L.append(".p2align 6")
    L.append(f".amdhsa_kernel {name}")
    for k, v in (("next_free_vgpr", nv), ("next_free_sgpr", ns), ("accum_offset", (nv + 3) // 4 * 4), ("group_segment_fixed_size", 0),
                 ("kernarg_size", 96), ("user_sgpr_count", 2), ("user_sgpr_kernarg_segment_ptr", 1), ("system_sgpr_workgroup_id_x", 1),
                 ("float_denorm_mode_32", 3)):
        L.append(f"  .amdhsa_{k} {v}")
    L.append(".end_amdhsa_kernel")

hdr = [l for l in open(f"cdna_kernels/{NAME}.s.ref").read().splitlines() if l.startswith(";") and "@launch" not in l
       and "Override launch" not in l and "grid=ceil" not in l]
L += hdr
L.append(f"; @launch kernel=gsort_kernel grid=({K1_GRID},1,1) block=(512,1,1) lds={K1_LDS}")
L.append(f"; @launch kernel=gmain_kernel grid=(256,1,1) block=(512,1,1) lds={NB+2*GS}" if G8 else f"; @launch kernel=gmain_kernel grid=(512,1,1) block=(256,1,1) lds={K2_LDS}")
L.append('.amdgcn_target "amdgcn-amd-amdhsa--gfx950"'); L.append(".text")
(gen_k1a if OPT.get('k1') == 'a' else gen_k1)(); gen_k2()
lab("CODE_END")
L.append('.section .rodata,"a"')
kd("gsort_kernel", 256 if STAMP else 252, 102 if STAMP else 80); kd("gmain_kernel", 256 if STAMP else NVGPR, 102)
if STAMP: L.append("; STAMPS " + repr(NAMES))
open(sys.argv[1], "w").write("\n".join(L) + "\n")
print("vgprs", NVGPR, "lds", K2_LDS, "lines", len(L), file=sys.stderr)
```

```python
import sys, struct, re

N = 25000; E = 400000; RN = 49; NR = 511; CH = 1600; NCH = 250
WS_REC = 0; WS_OFF = 0x310000; OROW = 1152; WS_WF = 0x3c0000; WS_TAB = 0x400000; WS_SIZE = 0x4000000
WF_A = 0; WF_U = 0x8000; WF_C = 0x10000; NA = 25
NLOG2E = struct.unpack('<I', struct.pack('<f', -1.4426950408889634))[0]
EPS = struct.unpack('<I', struct.pack('<f', 1e-6))[0]
NAME = "standalone__edge_featured_mpnn_gatedgcn__graph"
OPT = dict(k1='a', tabpol='sc1', recpol='sc1', touch='0', nx='2', wfpol='sc1', tsh='19', outpol='nt', bon='4', lp='3', pp='23,15,7')
OPT.update(a.split('=') for a in sys.argv[2:])
CH = int(OPT.get('ch', 1600)); NCH = E // CH; NCP = 256 * 1600 // CH; EPT = CH // 320; LPS = 4 * CH // 1600
STAMP = int(OPT.get('stamp', 0))
WS_TAB = int(OPT.get('tab', hex(WS_TAB)), 0)
WS_STAMP = 0x3800000
L = []
def o(s): L.append("    " + s)
def lab(s): L.append(s + ":")
def vr(b, n): return f"v[{b}:{b+n-1}]"
VST = [60]
NAMES = {}
def stamp(i, ins="s_memrealtime", name=None):
    if STAMP:
        o(f"{ins} s[100:101]"); o("s_waitcnt lgkmcnt(0)"); o(f"v_writelane_b32 v{VST[0]}, s100, {i}")
def xstamp(name):
    if STAMP:
        NAMES[name] = 16 + len(NAMES); stamp(NAMES[name])
def stamp_out(n, reg, srdn, kern):
    if not STAMP: return
    o("s_mov_b64 exec, -1")
    stamp(n)
    o(f"v_lshlrev_b32 v{reg}, 2, v0")
    if kern and int(OPT.get('g8', 0)): o("s_and_b32 s63, s3, 1"); o("s_lshl_b32 s63, s63, 8"); o("s_add_u32 s2, s2, s63")
    o(f"s_lshl_b32 s63, s2, 11"); o(f"s_add_u32 s63, s63, {WS_STAMP + kern*0x100000:#x}")
    o(f"buffer_store_dword v{VST[0]}, v{reg}, s[{srdn}:{srdn+3}], s63 offen")
def srd(d, lo, size, stride=0):
    o(f"s_mov_b32 s{d}, s{lo}"); o(f"s_and_b32 s{d+1}, s{lo+1}, 0xffff")
    if stride: o(f"s_or_b32 s{d+1}, s{d+1}, {stride << 16:#x}")
    o(f"s_mov_b32 s{d+2}, {size:#x}"); o(f"s_mov_b32 s{d+3}, 0x20000")
def scan64(v):
    for d in ("row_shr:1", "row_shr:2", "row_shr:4", "row_shr:8"):
        o("s_nop 1"); o(f"v_add_u32_dpp v{v}, v{v}, v{v} {d} row_mask:0xf bank_mask:0xf bound_ctrl:0")
    o("s_nop 1"); o(f"v_add_u32_dpp v{v}, v{v}, v{v} row_bcast:15 row_mask:0xa bank_mask:0xf")
    o("s_nop 1"); o(f"v_add_u32_dpp v{v}, v{v}, v{v} row_bcast:31 row_mask:0xc bank_mask:0xf")

def m32(d, a, b, c): return f"v_mfma_f32_32x32x16_bf16 {vr(d,16)}, {vr(a,4)}, {vr(b,4)}, " + ("0" if c is None else vr(c,16))
K1_GRID = 256
OG = 4224
CB = CH * 8 + 2048
K1_W = 4096 + CB; K1_X = K1_W + 65536; K1_S = K1_X + 3 * 8320 + 1040; K1_LDS = K1_S + 8 * 4608
SM = int(OPT.get('sm', 0)); SMS = N * 128 + int(OPT.get('smpad', 0))
def gen_k1a():
    L.append(".globl gsort_kernel"); L.append(".p2align 8"); L.append(".type gsort_kernel,@function")
    lab("gsort_kernel"); VST[0] = 255
    pol = OPT.get('tabpol', '').replace('+', ' '); rpol = OPT.get('recpol', '').replace('+', ' ')
    if OPT.get('cpf'):
        o("s_getpc_b64 s[70:71]")
        o("v_lshlrev_b32 v236, 7, v0"); o("v_min_u32 v236, CODE_END-gsort_kernel-8, v236")
        o("v_mov_b32 v237, s71"); o("v_add_co_u32 v236, vcc, s70, v236"); o("s_nop 1"); o("v_addc_co_u32 v237, vcc, 0, v237, vcc")
        o("global_load_dword v238, v[236:237], off")
    stamp(0)
    o("s_load_dwordx8 s[4:11], s[0:1], 0")
    o("s_load_dwordx8 s[40:47], s[0:1], 32")
    o("s_load_dwordx2 s[48:49], s[0:1], 64")
    o("s_load_dwordx2 s[12:13], s[0:1], 88")
    o("s_load_dwordx2 s[72:73], s[0:1], 72")
    o(f"s_cmp_ge_u32 s2, {K1_GRID}"); o("s_cbranch_scc1 K1_END")
    o("v_lshrrev_b32 v2, 6, v0"); o("v_lshlrev_b32 v1, 2, v0")
    o("s_and_b32 s36, s2, 7"); o("s_lshl_b32 s36, s36, 5"); o("s_lshr_b32 s35, s2, 3"); o("s_add_u32 s36, s36, s35")
    o("v_readfirstlane_b32 s33, v2")
    o("v_mov_b32 v2, 0"); o("ds_write_b32 v1, v2")
    o(f"s_mul_i32 s3, s2, {CH*4}"); o("s_mul_i32 s37, s36, 98")
    o(f"s_cmp_lt_u32 s2, {NCH}"); o("s_cselect_b32 s14, 320, 0")
    o("v_cmp_gt_u32 vcc, s14, v0")
    o("v_lshlrev_b32 v40, 4, v0")
    o("v_bfe_u32 v56, v0, 4, 1"); o("v_bfe_u32 v57, v0, 5, 1"); o("v_and_b32 v20, 63, v0")
    o("s_mov_b32 s68, 0"); o("v_lshlrev_b32 v42, 4, v20")
    o(f"v_mul_u32_u24 v43, {4*EPT}, v0")
    o("s_cmp_ge_u32 s33, 5")
    o("s_waitcnt lgkmcnt(0)")
    o("s_cbranch_scc1 K1_LOAD")
    srd(20, 10, E*4); srd(16, 8, E*4)
    o("s_and_saveexec_b64 s[28:29], vcc"); o("s_mov_b64 s[28:29], exec"); o("s_cbranch_execz K1_A")
    D_, S_, R_, K_, P_ = 64, 76, 88, 100, 112
    NL = 0
    for base, sr in ((D_, 20), (S_, 16)):
        j = 0
        while j < EPT:
            n = 4 if EPT - j >= 4 else EPT - j
            o(f"buffer_load_dword{'' if n == 1 else 'x%d' % n} {vr(base+j,n) if n > 1 else 'v%d' % (base+j)}, v43, s[{sr}:{sr+3}], s3 offen offset:{4*j}")
            j += n; NL += 1
    lab("K1_A")
    o("s_mov_b64 exec, -1")
    NX = int(OPT.get('nx', 0))
    if NX:
        srd(52, 42, 32768); srd(56, 48, 32768)
        o("v_lshrrev_b32 v44, 4, v20"); o("v_lshlrev_b32 v44, 6, v44"); o("v_xor_b32 v44, v44, v42")
        o(f"s_mul_i32 s14, s33, {NX*1024}"); o(f"s_add_u32 s14, s14, {(32-5*NX)*1024}")
        for m in range(2):
            o(f"s_add_u32 m0, s14, {K1_W + m*32768}"); o("s_nop 0")
            for j in range(NX): o(f"buffer_load_dwordx4 v44, s[{52+4*m}:{55+4*m}], s14 offen offset:{j*1024} lds")
    o("s_barrier")
    def addrs():
        srd(24, 12, WS_SIZE)
        o("v_bfe_u32 v60, v0, 2, 2"); o("v_lshl_add_u32 v60, v57, 6, v60"); o("v_lshlrev_b32 v60, 8, v60")
        o("v_and_b32 v61, 3, v0"); o("v_lshl_add_u32 v60, v61, 3, v60"); o("v_lshl_add_u32 v60, v56, 5, v60")
        o("s_and_b32 s30, s33, 3"); o("v_bfe_u32 v61, v0, 2, 2"); o("v_xor_b32 v61, s30, v61"); o("v_lshl_add_u32 v60, v61, 6, v60"); o(f"v_add_u32 v60, {K1_W}, v60")
        o("v_bfe_u32 v61, v0, 1, 2"); o("v_lshl_or_b32 v61, v56, 2, v61"); o("v_mul_u32_u24 v61, 1040, v61")
        o("v_and_b32 v62, 1, v0"); o("v_bfe_u32 v63, v0, 3, 1"); o("v_lshl_or_b32 v63, v63, 1, v62"); o("v_lshl_add_u32 v61, v63, 8, v61")
        o("s_lshr_b32 s32, s33, 2"); o("s_mul_i32 s14, s32, 8320"); o(f"s_add_u32 s14, s14, {K1_X}")
        o("v_xor_b32 v62, v62, v57"); o("v_lshl_add_u32 v61, v62, 7, v61"); o("v_add_u32 v61, s14, v61")
        o("s_mul_i32 s14, s33, 4608"); o(f"s_add_u32 s14, s14, {K1_S}")
        o("v_and_b32 v62, 31, v0"); o("v_mul_u32_u24 v62, 144, v62"); o("v_lshl_add_u32 v62, v57, 6, v62"); o("v_add_u32 v62, s14, v62")
        o("v_lshrrev_b32 v58, 3, v20"); o("v_and_b32 v59, 7, v0"); o("v_lshlrev_b32 v59, 4, v59")
        o("v_mul_u32_u24 v63, 144, v58"); o("v_add3_u32 v63, v63, v59, s14")
        if SM:
            o("s_lshl_b32 s14, s32, 5"); o("s_add_u32 s14, s14, s37"); o("s_lshl_b32 s14, s14, 7"); o(f"s_mul_i32 s69, s30, {SMS}")
            o("v_add_u32 v59, s14, v42")
        else:
            o("s_lshl_b32 s14, s32, 5"); o("s_add_u32 s14, s14, s37"); o("s_lshl_b32 s14, s14, 9"); o("s_lshl_b32 s30, s30, 7"); o("s_add_u32 s14, s14, s30")
            o("v_lshl_add_u32 v59, v58, 9, v59"); o("v_add_u32 v59, s14, v59")
        o(f"s_mul_i32 s31, s2, {CB}")
    addrs()
    o(f"s_mul_i32 s34, s2, {CH}")
    o("v_lshrrev_b32 v3, 2, v43"); o("v_add_u32 v3, s34, v3"); o("v_mov_b32 v2, 1"); o(f"s_mov_b32 s15, {-RN}"); o(f"s_movk_i32 s38, {-64*RN}")
    o("v_lshlrev_b32 v20, 5, v20")
    o("s_mov_b64 exec, s[28:29]"); o("s_cbranch_execz K1_B")
    o(f"s_waitcnt vmcnt({NL//2+2*NX})"); stamp(1)
    for i in range(EPT):
        o(f"v_mul_u32_u24 v{R_+i}, 21400, v{D_+i}")
        o(f"v_lshrrev_b32 v{R_+i}, 20, v{R_+i}")
        o(f"v_mad_i32_i24 v{D_+i}, v{R_+i}, s15, v{D_+i}")
        o(f"v_lshlrev_b32 v{R_+i}, 2, v{R_+i}")
        o(f"ds_add_rtn_u32 v{K_+i}, v{R_+i}, v2")
    o(f"s_waitcnt vmcnt({2*NX})")
    def recs(lo, hi):
        for i in range(lo, hi):
            o(f"v_cmp_lt_u32 vcc, {NA-1}, v{D_+i}"); o(f"v_mul_u32_u24 v22, 83, v{S_+i}"); o("v_lshrrev_b32 v22, 16, v22")
            o(f"v_cndmask_b32 v23, 0, {NA}, vcc"); o(f"v_sub_u32 v23, v{D_+i}, v23")
            o(f"v_lshl_or_b32 v{P_+2*i}, v23, 16, v{S_+i}")
            o("v_cndmask_b32 v23, 0, 32, vcc"); o("v_or_b32 v22, v22, v23")
            o(f"v_lshl_add_u32 v{P_+1+2*i}, v22, 26, v3")
            o("v_add_u32 v3, 1, v3")
    recs(0, EPT)
    lab("K1_B")
    o("s_mov_b64 exec, -1")
    o("s_waitcnt lgkmcnt(0)"); o("s_barrier")
    o("ds_read_b128 v[24:27], v20"); o("ds_read_b128 v[28:31], v20 offset:16")
    o("s_waitcnt lgkmcnt(0)")
    o("v_mov_b32 v33, v24")
    for j in range(2, 8): o(f"v_add_u32 v{32+j}, v{31+j}, v{23+j}")
    o("v_add_u32 v21, v39, v31"); o("v_mov_b32 v22, v21")
    scan64(21)
    o("v_sub_u32 v32, v21, v22")
    for j in range(1, 8): o(f"v_add_u32 v{32+j}, v32, v{32+j}")
    o("ds_write_b128 v20, v[32:35] offset:2048"); o("ds_write_b128 v20, v[36:39] offset:2064")
    o("s_mov_b64 exec, s[28:29]")
    for i in range(EPT): o(f"ds_read_b32 v{D_+i}, v{R_+i} offset:2048")
    o("s_waitcnt lgkmcnt(0)")
    for i in range(EPT):
        o(f"v_add_lshl_u32 v{D_+i}, v{D_+i}, v{K_+i}, 3"); o(f"ds_write_b64 v{D_+i}, {vr(P_+2*i,2)} offset:4096")
    o("s_mov_b64 exec, -1")
    o("s_cmp_lg_u32 s33, 4"); o("s_cbranch_scc1 K1_O2")
    o("s_lshr_b32 s34, s31, 3")
    for j in range(8): o(f"v_lshl_add_u32 v{24+j}, v{24+j}, 19, v{32+j}"); o(f"v_add_u32 v{24+j}, s34, v{24+j}")
    o(f"ds_write_b128 v20, v[24:27] offset:{4096+CH*8}"); o(f"ds_write_b128 v20, v[28:31] offset:{4096+CH*8+16}")
    lab("K1_O2")
    o("s_waitcnt vmcnt(0) lgkmcnt(0)"); o("s_barrier"); stamp(3)
    lab("K1_J")
    if OPT.get('pfe'):
        srd(76, 6, E*32); o("v_lshlrev_b32 v250, 7, v0"); o("s_lshl_b32 s14, s2, 16"); o("v_add_u32 v250, s14, v250")
        o("buffer_load_dword v251, v250, s[76:79], 0 offen " + OPT['pfe'].replace('p', ''))
    WF_ = 64; XF_ = 128; AC = [160, 192]
    NC = (CB + 8191) // 8192
    for j in range(NC): o(f"ds_read_b128 {vr(24+4*j,4)}, v40 offset:{4096+8192*j}")
    o(f"v_cmp_gt_u32 vcc, {CB//16-512*(NC-1)}, v0")
    for m in range(2):
        for s in range(8):
            for jj in range(2): o(f"ds_read_b64_tr_b16 v[{WF_+32*m+4*s+2*jj}:{WF_+32*m+4*s+2*jj+1}], v60 offset:{m*32768+s*2048+jj*1024}")
        if m == 0:
            for s in range(8): o(f"ds_read_b128 {vr(XF_+4*s,4)}, v61 offset:{16*s}")
    o(f"s_add_u32 s12, s12, {WS_TAB:#x}"); o("s_addc_u32 s13, s13, 0")
    if SM: o("s_add_u32 s12, s12, s69"); o("s_addc_u32 s13, s13, 0")
    srd(16, 12, N * (128 if SM else 512))
    o(f"s_mov_b32 s15, {NLOG2E:#x}")
    def post(t):
        a = AC[t]; r = []
        for k in range(16): r.append(f"v_mul_f32 v{a+k}, s15, v{a+k}")
        for k in range(16): r.append(f"v_cvt_pk_bf16_f32 v{224+k}, v{a+2*k}, v{a+2*k+1}")
        r += [f"ds_write_b128 v62, {vr(224+4*c,4)} offset:{16*c}" for c in range(4)]
        r += [f"ds_read_b128 {vr(a+4*k,4)}, v63 offset:{k*8*144}" for k in range(4)]
        return r
    def tp(i):
        m = OPT.get('tp')
        return pol if not m else {'s': 'sc1', 'n': 'nt', 'p': ''}[m[i]]
    def stores(t):
        r = []
        for k in range(4):
            r += [f"s_waitcnt lgkmcnt({3-k})", f"buffer_store_dwordx4 {vr(AC[t]+4*k,4)}, v59, s[16:19], 0 offen {tp(4*t+k)}", f"v_add_u32 v59, {0x400 if SM else 0x1000:#x}, v59"]
        return r
    o("s_waitcnt lgkmcnt(15)")
    o(f"s_cmp_ge_u32 s2, {NCP}"); o("s_cbranch_scc1 K1_E")
    for j in range(NC):
        if j == NC - 1: o("s_and_saveexec_b64 s[28:29], vcc"); o("s_cbranch_execz K1_E")
        o(f"buffer_store_dwordx4 {vr(24+4*j,4)}, v40, s[24:27], s31 offen {rpol}"); o("s_add_u32 s31, s31, 8192")
    lab("K1_E"); o("s_mov_b64 exec, -1")
    for s in range(8): o(m32(AC[0], WF_+4*s, XF_+4*s, None if s == 0 else AC[0]))
    o("s_waitcnt lgkmcnt(0)")
    for s in range(8):
        o(m32(AC[0]+16, WF_+32+4*s, XF_+4*s, None if s == 0 else AC[0]+16))
        o(f"ds_read_b128 {vr(XF_+4*s,4)}, v61 offset:{2*8320+16*s}")
    o("s_cmp_lg_u32 s68, 0"); o("s_cbranch_scc1 K1_PREP2")
    lab("K1_G")
    o("s_waitcnt lgkmcnt(0)")
    mf = [m32(AC[1], WF_+4*s, XF_+4*s, None if s == 0 else AC[1]) for s in range(8)] + [m32(AC[1]+16, WF_+32+4*s, XF_+4*s, None if s == 0 else AC[1]+16) for s in range(8)]
    q = post(0) + [None] * 6 + stores(0)
    for m in mf:
        o(m)
        for _ in range(5):
            if q:
                x = q.pop(0)
                if x: o(x)
    assert not q
    o(f"v_add_u32 v59, {0x1000 if SM else 0x4000:#x}, v59"); o("v_cmp_gt_u32 vcc, 2, v58")
    for x in post(1): o(x)
    stamp(4)
    o("s_cmp_lt_u32 s33, 4"); o("s_cbranch_scc1 K1_H")
    o("s_mov_b64 exec, vcc")
    for x in stores(1)[:2]: o(x)
    if OPT.get('pfe2'):
        n = int(OPT['pfe2'])
        o("s_mov_b64 exec, -1")
        srd(76, 6, E*32); o("v_lshlrev_b32 v250, 7, v0"); o("s_mul_i32 s14, s2, 50176"); o("s_sub_u32 s14, s14, 32768"); o("v_add_u32 v250, s14, v250")
        o("buffer_load_dword v251, v250, s[76:79], 0 offen")
        if n > 1:
            o("v_cmp_gt_u32 vcc, 392, v0"); o("v_add_u32 v250, 0x8000, v250"); o("s_and_saveexec_b64 s[28:29], vcc"); o("s_cbranch_execz K1_F")
            o("buffer_load_dword v251, v250, s[76:79], 0 offen")
    o("s_branch K1_F")
    lab("K1_H")
    for x in stores(1): o(x)
    lab("K1_F")
    if OPT.get('touch') == '4':
        o("s_mov_b64 exec, -1"); o("s_cmp_lg_u32 s33, 7"); o("s_cbranch_scc1 K1_END")
        o("v_lshl_add_u32 v250, v20, 5, s35"); o(f"v_lshlrev_b32 v250, 19, v250")
        srd(76, 6, E*32); o("buffer_load_dword v249, v250, s[76:79], 0 offen")
        srd(76, 72, N*256); o("buffer_load_dword v249, v250, s[76:79], 0 offen")
        o("buffer_load_dword v249, v250, s[16:19], 0 offen"); o("s_mov_b32 s26, 0x400000"); o("buffer_load_dword v249, v250, s[24:27], 0 offen")
    stamp_out(2, 12, 24, 0)
    lab("K1_END")
    o("s_endpgm")
    lab("K1_LOAD")
    nb0 = int(OPT.get('k1a', 0))
    nb = int(OPT.get('k1b', 24))
    o("s_cmp_eq_u32 s33, 7"); o("s_cbranch_scc1 K1_LX")
    o("s_cmp_eq_u32 s33, 6"); o("s_cselect_b32 s42, s48, s42"); o("s_cselect_b32 s43, s49, s43"); o("s_cselect_b32 s39, 0x8000, 0"); o(f"s_add_u32 s39, s39, {K1_W}")
    srd(52, 42, 32768)
    o("v_lshrrev_b32 v44, 4, v20"); o("v_lshlrev_b32 v44, 6, v44"); o("v_xor_b32 v44, v44, v42")
    for k in range(32 - 5*NX):
        if k in (nb0, min(nb, 31 - 5*NX)): o("s_barrier")
        if k % 4 == 0: o(f"s_add_u32 m0, s39, {k*1024}"); o(f"s_movk_i32 s14, {k*1024}")
        o(f"buffer_load_dwordx4 v44, s[52:55], s14 offen offset:{(k%4)*1024} lds")
    lab("K1_LD")
    addrs()
    o("s_waitcnt vmcnt(0) lgkmcnt(0)"); o("s_barrier")
    o("s_branch K1_J")
    def touch2():
        sh = int(OPT.get('tsh', 16))
        o("v_lshl_add_u32 v250, v20, 5, s35"); o(f"v_lshlrev_b32 v250, {sh}, v250")
        srd(76, 6, E*32); o("buffer_load_dword v249, v250, s[76:79], 0 offen")
        srd(76, 12, WS_TAB + 4*SMS); o("buffer_load_dword v249, v250, s[76:79], 0 offen")
        srd(76, 72, N*256); o("buffer_load_dword v249, v250, s[76:79], 0 offen")
    lab("K1_LX")
    if OPT.get('touch') == '3': touch2()
    if OPT.get('touch') == '5':
        o("s_lshl_b32 s14, s37, 9"); o(f"s_add_u32 s14, s14, {WS_TAB:#x}"); o("s_load_dword s74, s[12:13], s14")
        o("s_add_u32 s14, s14, 50048"); o("s_load_dword s75, s[12:13], s14")
        o("s_lshl_b32 s14, s3, 1"); o("s_load_dword s76, s[12:13], s14")
        o(f"s_mov_b32 s14, {WS_OFF:#x}"); o("s_load_dword s77, s[12:13], s14")
    elif int(OPT.get('touch', 0)):
        srd(24, 12, WS_SIZE)
        o(f"s_lshl_b32 s14, s37, {7 if SM else 9}"); o(f"s_add_u32 s14, s14, {WS_TAB:#x}"); o("v_mov_b32 v248, s14")
        if SM: o("v_lshrrev_b32 v249, 4, v20"); o(f"v_mul_u32_u24 v249, {SMS}, v249"); o("v_add_u32 v248, v248, v249")
        o("s_lshl_b32 s14, s3, 1")
        o("v_writelane_b32 v248, s14, 1"); o(f"s_mov_b32 s14, {WS_OFF:#x}"); o("v_writelane_b32 v248, s14, 2")
        o("buffer_load_dword v249, v248, s[24:27], 0 offen")
    srd(60, 4, N, 256)
    o("v_lshl_add_u32 v58, v57, 3, v56"); o("v_add_u32 v53, s37, v58")
    o("v_and_b32 v55, 15, v0"); o("v_lshlrev_b32 v59, 3, v56"); o("v_xor_b32 v55, v55, v59"); o("v_lshlrev_b32 v55, 4, v55")
    o("v_cmp_gt_u32 vcc, 2, v58"); o("v_mov_b32 v59, 0xffff")
    for k in range(25):
        t, i = divmod(k, 8)
        if k in (nb0, nb): o("s_barrier")
        o(f"s_mov_b32 m0, {K1_X + t*8320 + i*1040}"); o(f"v_add_u32 v54, {32*t + 16*(i >> 2) + 2*(i & 3)}, v53")
        if t == 3: o("v_cndmask_b32 v54, v59, v54, vcc")
        o("buffer_load_dwordx4 v[54:55], s[60:63], 0 idxen offen lds")
    if OPT.get('touch') == '2': touch2()
    o("s_sub_u32 s69, 255, s2")
    o("s_cmp_ge_u32 s69, 68"); o("s_cbranch_scc1 K1_LD")
    o("s_lshr_b32 s14, s69, 5")
    o("s_cmp_eq_u32 s14, 1"); o("s_cselect_b32 s40, s46, s40"); o("s_cselect_b32 s41, s47, s41"); o(f"s_cselect_b32 s68, 1.0, {NLOG2E:#x}")
    o("s_mov_b32 s66, 32768"); o("s_bfe_u32 s50, s69, 0x20003"); o("s_and_b32 s51, s69, 7"); o("s_mov_b32 s32, 14")
    o("s_cmp_eq_u32 s14, 2"); o("s_cselect_b32 s40, s44, s40"); o("s_cselect_b32 s41, s45, s41"); o("s_cselect_b32 s66, 4096, s66")
    o("s_cselect_b32 s50, s51, s50"); o("s_cselect_b32 s51, 0, s51"); o("s_cselect_b32 s32, 11, s32")
    o("s_mov_b32 s64, s40"); o("s_and_b32 s65, s41, 0xffff"); o("s_mov_b32 s67, 0x20000")
    o("s_lshl_b32 s50, s50, 6"); o("s_lshl_b32 s51, s51, 11"); o("s_add_u32 s50, s50, s51")
    o("v_and_b32 v4, 3, v0"); o("v_bfe_u32 v5, v0, 3, 2"); o("v_lshl_or_b32 v4, v5, 2, v4")
    o("v_bfe_u32 v5, v0, 2, 1"); o("v_lshl_or_b32 v4, v5, 4, v4")
    o("v_lshlrev_b32 v5, s32, v57"); o("v_lshl_add_u32 v4, v4, 1, v5"); o("v_add_u32 v4, s50, v4")
    for j in range(8): o(f"buffer_load_ushort v{8+j}, v4, s[64:67], 0 offen offset:{j*256}")
    o("s_branch K1_LD")
    lab("K1_PREP2")
    o("s_sub_u32 s14, 255, s2"); o("s_lshl_b32 s14, s14, 10"); o(f"s_add_u32 s14, s14, {WS_WF:#x}")
    for j in range(8):
        o(f"v_lshlrev_b32 v{8+j}, 16, v{8+j}"); o(f"v_mul_f32 v{8+j}, s68, v{8+j}")
    for j in range(4): o(f"v_cvt_pk_bf16_f32 v{52+j}, v{8+2*j}, v{9+2*j}")
    o("buffer_store_dwordx4 v[52:55], v42, s[24:27], s14 offen " + OPT.get('wfpol', ''))
    o("s_branch K1_G")

def regs_of(tok):
    m = re.fullmatch(r"v\[(\d+):(\d+)\]", tok)
    if m: return set(range(int(m.group(1)), int(m.group(2)) + 1))
    m = re.fullmatch(r"v(\d+)", tok)
    return {int(m.group(1))} if m else set()
def check_hazards(ins):
    P = []
    for s in ins:
        if s.endswith(':'): continue
        op, _, rest = s.partition(' ')
        t = [x.strip() for x in rest.split(',')]
        t = [x.split(' ')[0] for x in t]
        if op.startswith('v_mfma'):
            P.append(('m', 12 if '32x32' in op else 8, regs_of(t[0]), regs_of(t[1]) | regs_of(t[2]), regs_of(t[3]), s))
        elif op.startswith('v_'):
            P.append(('t' if op in ('v_exp_f32', 'v_rcp_f32') else 'v', 0, regs_of(t[0]), set().union(*map(regs_of, t[1:])), set(), s))
        elif op.startswith('ds_read'):
            P.append(('d', 0, regs_of(t[0]), regs_of(t[1]), set(), s))
        elif op.startswith('buffer'):
            P.append(('d', 0, set(), regs_of(t[0]), set(), s))
        else: P.append(('s', 0, set(), set(), set(), s))
    n = len(P)
    for i, (k, w, d, ab, c, s) in enumerate(P):
        for j in range(1, 13):
            k2, w2, d2, ab2, c2, s2 = P[(i + j) % n]
            gap = j - 1
            if k == 'm':
                if k2 == 'm':
                    assert not (gap < w and d & ab2), (s, s2)
                    if d & c2 and d != c2: assert gap >= w - 2, (s, s2)
                else: assert not (gap < w and d & (d2 | ab2)), (s, s2, gap)
                if k2 in 'vt': assert not (gap < (7 if w == 12 else 3) and c & d2), (s, s2)
            if k in 'vt' and k2 == 'm': assert not (gap < 2 and d & (ab2 | c2)), (s, s2)
            if k == 't' and k2 == 'v': assert not (gap < 1 and d & ab2), (s, s2)

LOWLIM = 500 // NCH; LIM = 4 * LPS; LG = LPS.bit_length() - 1; NS = 2
LUT = 0; IDT = 4096; NB = IDT + 26 * 80; LIST = NB + 256; MB = LIST + 8192; ROW = 264; CNT = MB + 26 * ROW; ZSZ = 26 * ROW + 256
ER = CNT + 256; RING = ER + 8192; WS_ = 4160; SLOT = 4 * WS_; K2_LDS = RING + (NS + 1) * SLOT
G8 = int(OPT.get('g8', 0)); GS = (K2_LDS - NB + 255) // 256 * 256
assert K2_LDS <= 81920 and ER % 16 == 0 and LIST % 16 == 0 and MB % 16 == 0 and 4096 < ZSZ <= 8192 and ZSZ % 16 == 0

class RA:
    def __init__(s): s.n = 1
    def get(s, k=1, al=1):
        s.n = (s.n + al - 1) // al * al
        b = s.n; s.n += k; return b
R = RA()
vTA = R.get()
IX = [R.get(2, 2) for _ in range(4)]; IXE = R.get(2, 2); MQ = R.get(2, 2)
(vTC, vEA, vMT, vSA, vMA, vL1, vL2, vSV, vHC, vWF, vXA, vXR, vXI, vXO) = [R.get() for _ in range(14)]
SEG = R.get(4, 4); PT = R.get(4, 4)
GV = R.get(64, 4); ACC = R.get(64, 4)
TF = R.get(16, 4); EF = R.get(4, 4); SF = R.get(8, 4); WC = R.get(4, 4); T0 = R.get(8, 4); AF = R.get(16, 4); SEL = R.get(8, 4)
NVGPR = R.n
assert NVGPR <= 255, NVGPR
REC = GV; RANK = GV + 32; AD = GV + 48
sX, sE, sW, sO, sT = 8, 12, 16, 20, 96
sWAVE, sBASE, sMR, sME, sCNT, sNT, sRS, sLIM, sFIRST, sMORE, sDS, sT0, sT1, sEPS, s80, sMET = range(24, 40)
sHM, sSV, sWF, sS0 = 42, 44, 52, 54
sK = 56
sG = 95
def addg(v):
    if G8: o(f"v_add_u32 v{v}, s{sG}, v{v}")
def saddg(r):
    if G8: o(f"s_add_u32 s{r}, s{r}, s{sG}")

def ldt(i): return f"buffer_load_dwordx4 {vr(IX[i],2)}, s[{sT}:{sT+3}], 0 idxen offen {OPT.get('tpol', '').replace('+', ' ')} lds".replace("  ", " ")
def lde(): return f"buffer_load_dwordx4 {vr(IXE,2)}, s[{sE}:{sE+3}], 0 idxen offen {OPT.get('epol', '').replace('+', ' ')} lds".replace("  ", " ")
def loff(u): return (u & 1) * 4096 + (u >> 1) * 256
def nextslot(r): return [f"s_add_u32 s{r}, s{r}, {SLOT}", f"s_cmp_eq_u32 s{r}, {NS*SLOT}", f"s_cselect_b32 s{r}, 0, s{r}"]

def vstream(Gc, Vc):
    A = []
    for p in range(0, 22, 2):
        if p < 16: A += [(f"v_exp_f32 v{Gc+p}, v{Gc+p}", 8), (f"v_exp_f32 v{Gc+p+1}, v{Gc+p+1}", 8)]
        q = p - 2
        if 0 <= q < 16:
            if 'a' in OPT.get('pk', ''): A += [(f"v_pk_add_f32 {vr(Gc+q,2)}, {vr(Gc+q,2)}, 1.0 op_sel_hi:[1,0]", 4)]
            else: A += [(f"v_add_f32 v{Gc+q}, 1.0, v{Gc+q}", 4), (f"v_add_f32 v{Gc+q+1}, 1.0, v{Gc+q+1}", 4)]
            A += [(f"v_rcp_f32 v{Gc+q}, v{Gc+q}", 8), (f"v_rcp_f32 v{Gc+q+1}, v{Gc+q+1}", 8)]
        q = p - 4
        if 0 <= q < 16 and 'm' in OPT.get('pk', ''): A += [(f"v_pk_mul_f32 {vr(Vc+q,2)}, {vr(Gc+q,2)}, {vr(Vc+q,2)}", 4)]
        elif 0 <= q < 16: A += [(f"v_mul_f32 v{Vc+q}, v{Gc+q}, v{Vc+q}", 4), (f"v_mul_f32 v{Vc+q+1}, v{Gc+q+1}, v{Vc+q+1}", 4)]
        q = p - 6
        if 0 <= q < 16: A += [(f"v_cvt_pk_bf16_f32 v{Gc+q//2}, v{Gc+q}, v{Gc+q+1}", 4), (f"v_cvt_pk_bf16_f32 v{Vc+q//2}, v{Vc+q}, v{Vc+q+1}", 4)]
    return A
def zphase(P, p):
    d = ACC + 32 * p
    return [m32(d, P, T0, d), m32(d+16, P+16, T0, d+16), m32(d, P+4, T0+4, d), m32(d+16, P+20, T0+4, d+16)]

HEAD = {}
def body(b, peel=False):
    p = b % 2
    Gn = GV + 32 * p; Vn = Gn + 16; Gc = GV + 32 * (1 - p); Vc = Gc + 16; af = AF + 8 * p
    ne = sum(1 for k in range(NS - 1) if (b - k) % 4 == 0) + (1 if (b - (NS - 1)) % 4 == 0 else 0)
    vmw = 4 * (NS - 1) + ne
    z = zphase(Gn, p)
    def dma(i): return [f"s_add_u32 m0, s{sMR}, {p*SLOT + i*1040}", None, ldt(i), f"ds_read_u16 v{IX[i]}, v{vL1} offset:{loff(b+NS+1)+64*i}"]
    top = ["s_waitcnt vmcnt(8) lgkmcnt(0)", "s_barrier"] if b == 3 else ["s_waitcnt lgkmcnt(0)"]
    if G8 and OPT.get('sp', '2103') != '0': top.append(f"s_setprio {OPT.get('sp', '2103')[b]}")
    if G8 and OPT.get('bar2') and b == 1: top.insert(1, "s_barrier")
    seq = []
    seq.append([z[0], [], [f"v_mad_u32_u24 v{vSV}, v{vSV}, s{s80}, v{vHC}"]])
    seq.append([z[1], [f"ds_read_b128 {vr(SF,4)}, v{vSV}", f"ds_read_b128 {vr(SF+4,4)}, v{vSV} offset:32"], []])
    seq.append([z[2], [f"ds_read_u8 v{vSV}, v{vSA} offset:{loff(b+1)}"], []])
    seq.append([z[3], [f"s_sub_u32 s{sCNT}, s{sCNT}, 1", f"s_cbranch_scc1 TAIL{p}", f"ENT{b}:"], []])
    seq.append([m32(Gn, TF, SEL, None), [f"ds_read_b128 {vr(T0,4)}, v{MQ}"], [f"v_and_b32 v{IXE}, 0x7ffff, v{IXE}"] if b == 0 else []])
    seq.append([m32(Gn, TF+4, SEL+4, Gn), [f"ds_read_b128 {vr(T0+4,4)}, v{MQ+1}"], [f"v_xor_b32 v{vEA}, v{vEA}, v{vMT}"] if b == 3 else []])
    seq.append([m32(Gn, EF, WC, Gn), [f"ds_read_b128 {vr(EF,4)}, v{vEA} offset:{(b+1)%4*1024}", f"ds_read_u16 v{MQ}, v{vMA} offset:{b*8}",
                f"ds_read_u16 v{MQ+1}, v{vMA} offset:{b*8+2}"], []])
    seq.append([m32(Vn, TF+8, SEL, None), [f"ds_read_b32 v{IXE}, v{vL2}"] if b == 3 else [], []])
    seq.append([m32(Vn, TF+12, SEL+4, Vn), ["s_waitcnt lgkmcnt(S)"], []])
    seq.append([m32(Gn, SF, af, Gn), [f"s_waitcnt vmcnt({vmw})"], []])
    seq.append([m32(Gn, SF+4, af+4, Gn), [f"ds_read_b128 {vr(TF+4*j,4)}, v{vTA} offset:{(1-p)*SLOT+16*j}" for j in range(4)],
                [f"v_add_u32 v{r}, 0x200, v{r}" for r in (vSA, vL1, vL2)] + [f"v_add_u32 v{vMA}, 32, v{vMA}"] if b == 3 else []])
    dp = [int(c) for c in OPT.get('dp', '03589')]
    for i in range(4): seq[dp[i]][1] = seq[dp[i]][1] + dma(i)
    if b == 0: seq[dp[4]][1] = seq[dp[4]][1] + [f"s_mov_b32 m0, s{sME}", None, lde(), f"s_xor_b32 s{sME}, s{sME}, s{sMET}"]
    A = [] if peel else vstream(Gc, Vc)
    wt = [float(x) for x in OPT.get('wt', '1,1,1,1,1,1,1,1,1,1,1.6').split(',')]
    tot = sum(c for _, c in A); out = list(top); ai = 0; acc = 0; budget = 0
    for i, (m, ex, xv) in enumerate(seq):
        budget += tot * wt[i] / sum(wt)
        g = []
        while ai < len(A) and acc + A[ai][1] / 2 <= budget + 0.01:
            g.append(A[ai][0]); acc += A[ai][1]; ai += 1
        if i == 3 and not peel: HEAD[b] = ai
        if not (peel and i < 4): out.append(m)
        g = xv + g
        last = [x for x in ex if x and (x.startswith("s_waitcnt") or x.startswith("s_cbranch") or x.endswith(":") or x.startswith("s_sub"))]
        ex = [x for x in ex if x not in last]
        if peel: last = [x for x in last if x.startswith("s_waitcnt")]
        first = True
        for x in ex:
            if x is None:
                continue
            if not first and g: out.append(g.pop(0))
            elif not first and peel and x.startswith("buffer"): out.append("s_nop 0")
            out.append(x); first = False
        out += g + last
    assert ai == len(A)
    i0 = max(i for i, x in enumerate(out) if x.startswith(f"ds_read_b128 {vr(SF+4,4)}")); i1 = out.index("s_waitcnt lgkmcnt(S)")
    out[i1] = f"s_waitcnt lgkmcnt({sum(1 for x in out[i0+1:i1] if x.startswith('ds_'))})"
    for i, x in enumerate(out):
        if x.startswith("buffer_load"): assert not out[i-1].split()[1].startswith("m0"), (out[i-1], x)
    if OPT.get('fakec'):
        n2 = []
        for x in out:
            if x.startswith("v_mfma") and (f", {vr(SEL,4)}," in x or f", {vr(SEL+4,4)}," in x):
                j = (int(re.findall(r"v\[(\d+):", x)[1]) - TF)
                n2 += [f"v_lshlrev_b32 v{Vn+j+k}, 16, v{TF+j+k}" for k in range(4)]
            elif x == m32(Gn, EF, WC, Gn): n2.append(m32(Gn, EF, WC, TF))
            elif x.startswith("ds_read_b128") and f"v{vTA} " in x:
                j = int(re.findall(r"v\[(\d+):", x)[0]) - TF
                n2 += [f"ds_read2st64_b32 {vr(TF+j+2*k,2)}, v{vTC} offset0:{(1-p)*65+j+2*k} offset1:{(1-p)*65+j+2*k+1}" for k in range(2)]
            else: n2.append(x)
        out = n2
    if OPT.get('notrans'): out = [x.replace("v_exp_f32", "v_mov_b32").replace("v_rcp_f32", "v_mov_b32") for x in out]
    if OPT.get('noval'): out = ["s_nop 0" if (x.startswith("v_exp") or x.startswith("v_rcp")) else x for x in out if not (x.startswith("v_add_f32") or x.startswith("v_mul_f32") or x.startswith("v_cvt"))]
    if OPT.get('nodma'): out = [x for x in out if 'buffer_load' not in x]
    if OPT.get('noe'): out = [x for x in out if f"s[{sE}:{sE+3}]" not in x]
    return out

def emit(lst):
    for it in lst:
        if it.endswith(':'): lab(it[:-1])
        else: o(it)

def masks(tmp):
    a, b_, c = tmp
    o(f"v_and_b32 v{a}, {LPS-1}, v0"); o(f"v_lshlrev_b32 v{a}, 1, v{a}"); o(f"v_mov_b32 v{c}, 0")
    for i in range(4):
        o(f"v_lshrrev_b32 v{b_}, 19, v{SEG+i}"); o(f"v_max_u32 v{c}, v{c}, v{b_}")
        o(f"v_min_u32 v{b_}, s{sLIM}, v{b_}"); o(f"v_sub_u32 v{b_}, v{b_}, v{a}")
        for j, k in ((0, 2*i), (1, 2*i+1), (2*LPS, 8+2*i), (2*LPS+1, 9+2*i)): o(f"v_cmp_lt_i32 s[{sK+2*k}:{sK+2*k+1}], {j}, v{b_}")
    o(f"v_cmp_lt_u32 vcc, s{sLIM}, v{c}")
    o(f"s_or_b64 s[{sSV}:{sSV+1}], s[{sK+16}:{sK+17}], s[{sK+20}:{sK+21}]"); o(f"s_or_b64 s[{sHM}:{sHM+1}], s[{sK+24}:{sK+25}], s[{sK+28}:{sK+29}]")
    o(f"s_or_b64 s[{sSV}:{sSV+1}], s[{sSV}:{sSV+1}], s[{sHM}:{sHM+1}]")
    o(f"v_mov_b32 v{b_}, {CNT-4}"); addg(b_)
    o("s_mov_b64 exec, vcc"); o(f"ds_write_b32 v{b_}, v{b_}"); o("s_mov_b64 exec, -1")

def interleave(mf, other, per):
    other = list(other)
    for m in mf:
        o(m)
        for _ in range(per):
            if other: o(other.pop(0))
    for x in other: o(x)
def capture(fn):
    n = len(L); fn(); r = [x.strip() for x in L[n:]]; del L[n:]; return r
def wload(dst, off):
    r = []
    for s in range(8):
        if s % 4 == 0: r.append(f"s_add_u32 s{sT0}, s{sWF}, {off + s*1024:#x}")
        r.append(f"buffer_load_dwordx4 {vr(dst+4*s,4)}, v{vWF}, s[{sW}:{sW+3}], s{sT0} offen offset:{(s%4)*1024}")
    return r
def xblk(base, pair):
    o(f"v_mov_b32 v{pair+1}, v{vXO}")
    for mt in range(2):
        for a in range(2):
            o(f"s_add_u32 m0, s{base}, {(2*mt+a)*1040}")
            o(f"v_cmp_gt_u32 vcc, {(NA if mt == 0 else RN-NA) - 2*a}, v{vXI}")
            o(f"s_add_u32 s{sT0}, s{sBASE}, {NA*mt + 2*a}"); o(f"v_add_u32 v{pair}, s{sT0}, v{vXI}")
            o(f"v_cndmask_b32 v{pair}, v{PT+3}, v{pair}, vcc")
            o(f"buffer_load_dwordx4 {vr(pair,2)}, s[{sX}:{sX+3}], 0 idxen offen lds")

def gen_k2():
    L.append(".globl gmain_kernel"); L.append(".p2align 8"); L.append(".type gmain_kernel,@function")
    lab("gmain_kernel"); VST[0] = 255
    t = [TF + i for i in range(28)]
    stamp(0)
    o("s_load_dwordx2 s[50:51], s[0:1], 88")
    o("s_load_dwordx4 s[4:7], s[0:1], 0")
    o("s_load_dwordx2 s[48:49], s[0:1], 72")
    o("s_setprio 3")
    o(f"v_lshrrev_b32 v{t[0]}, 6, v0")
    o("s_and_b32 s3, s2, 7"); o("s_lshl_b32 s3, s3, 6"); o(f"s_bfe_u32 s{sT0}, s2, 0x50003"); o(f"s_lshl1_add_u32 s3, s{sT0}, s3")
    o(f"v_readfirstlane_b32 s{sWAVE}, v{t[0]}")
    if G8:
        o("v_and_b32 v0, 0xff, v0"); o(f"s_lshr_b32 s{sT0}, s{sWAVE}, 2"); o(f"s_and_b32 s{sWAVE}, s{sWAVE}, 3"); o(f"s_mul_i32 s{sG}, s{sT0}, {GS}")
    else: o(f"s_lshr_b32 s{sT0}, s2, 8")
    o(f"s_add_u32 s3, s3, s{sT0}")
    o(f"s_cmp_ge_u32 s2, {256 if G8 else 512}"); o("s_cbranch_scc1 K2_END")
    o(f"s_cmp_ge_u32 s3, {NR}"); o("s_cbranch_scc1 K2_END")
    o(f"v_lshrrev_b32 v{t[1]}, {LG}, v0")
    o(f"s_lshl_b32 s88, s3, 2"); o(f"s_add_u32 s88, s88, {CH*8}")
    for i in range(1, 4): o(f"s_add_u32 s{88+i}, s88, {i*CB}")
    o(f"v_mul_u32_u24 v{t[1]}, {4*CB}, v{t[1]}")
    o(f"s_mul_i32 s{sBASE}, s3, {RN}")
    o(f"v_and_b32 v{vWF}, 63, v0"); o(f"v_lshlrev_b32 v{vWF}, 4, v{vWF}")
    o(f"s_mul_i32 s{sMR}, s{sWAVE}, {WS_}"); o(f"s_add_u32 s{sMR}, s{sMR}, {RING}"); saddg(sMR)
    o(f"s_lshl_b32 s{sWF}, s{sWAVE}, 13"); o(f"s_add_u32 s{sWF}, s{sWF}, {WS_WF:#x}")
    o(f"s_mov_b32 s40, {EPS:#x}"); o("s_mov_b32 s41, s40"); o(f"s_movk_i32 s{s80}, 80")
    o(f"s_mov_b32 s{sFIRST}, 1"); o(f"s_mov_b32 s{sLIM}, {LIM}")
    o("s_cmp_ge_u32 s2, 256"); o(f"s_cselect_b32 s{sRS}, {OPT.get('bon', 0)}, 0")
    o("s_waitcnt lgkmcnt(0)"); xstamp("karg")
    srd(sW, 50, WS_SIZE)
    for i in range(4): o(f"buffer_load_dword v{SEG+i}, v{t[1]}, s[{sW}:{sW+3}], s{88+i} offen")
    srd(sX, 4, N, 256); srd(sE, 6, E, 32); srd(sO, 48, N, 256)
    o(f"s_add_u32 s50, s50, {WS_TAB:#x}"); o("s_addc_u32 s51, s51, 0")
    if SM: o(f"s_mul_i32 s{sT0}, s{sWAVE}, {SMS}"); o(f"s_add_u32 s50, s50, s{sT0}"); o("s_addc_u32 s51, s51, 0")
    srd(sT, 50, N, 128 if SM else 512)
    WAP = OPT.get('wap', 'p1'); XBP = OPT.get('xbp', 'p1'); ORD = ['start', 'rec', 'mask', 'p1', 'b1']
    def place(where):
        if where not in (WAP, XBP): return
        o(f"s_cmp_eq_u32 s{sFIRST}, 0"); o(f"s_cbranch_scc1 NOW_{where}")
        if XBP == where:
            o(f"s_add_u32 s{sNT}, s{sMR}, {NS*SLOT}")
            xblk(sNT, T0)
        if WAP == where:
            for x in wload(ACC, WF_A): o(x)
            o(f"s_lshl_b32 s{sT0}, s{sWAVE}, 10"); o(f"s_add_u32 s{sT0}, s{sT0}, {WS_WF+WF_C:#x}")
            o(f"buffer_load_dwordx4 {vr(WC,4)}, v{vWF}, s[{sW}:{sW+3}], s{sT0} offen")
        if OPT.get('otouch') and WAP == where:
            o(f"v_mov_b32 v{T0+6}, s{sBASE}"); o(f"buffer_load_dword v{SEL}, v{T0+6}, s[{sO}:{sO+3}], 0 idxen")
        lab(f"NOW_{where}")
    def cnt(lo, hi): return sum(n for p, n in ((WAP, 9), (XBP, 4)) if lo <= ORD.index(p) <= hi)
    SP = [int(x) for x in OPT.get('spf', '0,0').split(',')]
    def spref(n, first):
        for k in range(n): o(f"s_load_dword s{88 + k % 4}, s[46:47], {(first + k) * 32768:#x}")
    if sum(SP):
        o(f"s_and_b32 s{sT0}, s3, 63"); o(f"s_lshl2_add_u32 s{sT0}, s{sT0}, s{sWAVE}"); o(f"s_lshl_b32 s{sT0}, s{sT0}, 7")
        o(f"s_add_u32 s46, s50, s{sT0}"); o("s_addc_u32 s47, s51, 0")
        spref(SP[0], 0)
    lab("ROUND")
    b0, b2, b3, b4, vh = t[16:21]
    o(f"v_lshlrev_b32 v{t[11]}, 4, v0"); addg(t[11])
    for d in range(4): o(f"v_mov_b32 v{t[0]+d}, 0")
    for off in (0, ZSZ - 4096): o(f"ds_write_b128 v{t[11]}, {vr(t[0],4)} offset:{MB+off}")
    pad0 = 0xffff | (NA << 16)
    o(f"v_mov_b32 v{t[4]}, {pad0:#x}"); o(f"v_mov_b32 v{t[5]}, 0x7ffff"); o(f"v_mov_b32 v{t[6]}, {pad0:#x}"); o(f"v_mov_b32 v{t[7]}, 0x7ffff")
    o(f"ds_write_b128 v{t[11]}, {vr(t[4],4)} offset:{LIST}"); o(f"ds_write_b128 v{t[11]}, {vr(t[4],4)} offset:{LIST+4096}")
    o(f"v_and_b32 v{b0}, 1, v0"); o(f"v_bfe_u32 v{b2}, v0, 2, 1"); o(f"v_bfe_u32 v{b3}, v0, 3, 1"); o(f"v_bfe_u32 v{b4}, v0, 4, 1"); o(f"v_bfe_u32 v{vh}, v0, 5, 1")
    o(f"v_and_b32 v{t[8]}, {LPS-1}, v0"); o(f"v_lshlrev_b32 v{t[8]}, 1, v{t[8]}")
    o(f"v_mov_b32 v{t[9]}, 0x7ffffff0"); o(f"s_mov_b32 s{sT1}, 0x7ffff")
    o(f"v_and_b32 v{t[12]}, 15, v0"); o(f"v_lshlrev_b32 v{t[13]}, 3, v{b4}")
    o(f"v_xor_b32 v{vXO}, v{t[12]}, v{t[13]}"); o(f"v_lshlrev_b32 v{vXO}, 4, v{vXO}")
    o(f"s_lshr_b32 s{sT0}, s{sWAVE}, 1"); o(f"s_lshl_b32 s{sT0}, s{sT0}, 4"); o(f"s_and_b32 s{sS0}, s{sWAVE}, 1"); o(f"s_lshl2_add_u32 s{sT0}, s{sS0}, s{sT0}")
    o(f"v_lshl_add_u32 v{vXI}, v{vh}, 3, v{b4}"); o(f"v_add_u32 v{vXI}, s{sT0}, v{vXI}")
    o(f"v_mov_b32 v{PT+3}, 0xffff")
    place('start')
    xstamp("consts_done")
    o(f"s_waitcnt vmcnt({cnt(0, 0)})"); stamp(1)
    for i in range(4):
        o(f"v_lshrrev_b32 v{t[4+i]}, 19, v{SEG+i}"); o(f"v_cmp_lt_u32 vcc, v{t[8]}, v{t[4+i]}")
        o(f"v_and_b32 v{t[i]}, s{sT1}, v{SEG+i}"); o(f"v_add_lshl_u32 v{t[i]}, v{t[i]}, v{t[8]}, 3")
        o(f"v_cndmask_b32 v{t[10]}, v{t[9]}, v{t[i]}, vcc")
        o(f"buffer_load_dwordx4 {vr(REC+4*i,4)}, v{t[10]}, s[{sW}:{sW+3}], 0 offen")
    o(f"v_max3_u32 v{t[10]}, v{t[4]}, v{t[5]}, v{t[6]}"); o(f"v_max_u32 v{t[10]}, v{t[10]}, v{t[7]}")
    o(f"v_cmp_lt_u32 vcc, {2*LPS}, v{t[10]}"); o("s_cbranch_vccz REC_DONE")
    for i in range(4): o(f"buffer_load_dwordx4 {vr(REC+16+4*i,4)}, v{t[i]}, s[{sW}:{sW+3}], 0 offen offset:{16*LPS}")
    lab("REC_DONE")
    xstamp("rec_issued")
    PF = int(OPT.get('pf', 0))
    def pref():
        o(f"s_lshr_b32 s{sT0}, s3, 6"); o(f"s_mul_i32 s{sT0}, s{sT0}, {64*RN}"); o(f"s_and_b32 s{sT1}, s3, 63"); o(f"s_lshl_b32 s{sT1}, s{sT1}, 6"); o(f"s_add_u32 s{sT0}, s{sT0}, s{sT1}")
        o(f"v_lshrrev_b32 v{T0+2}, 2, v0"); o(f"v_add_u32 v{T0+2}, s{sT0}, v{T0+2}"); o(f"v_and_b32 v{T0+1}, 3, v0"); o(f"v_lshlrev_b32 v{T0+1}, 7, v{T0+1}")
        for k in range(PF):
            o(f"v_add_u32 v{T0+3}, {-512*RN}, v{T0+2}"); o(f"v_min_u32 v{T0}, v{T0+2}, v{T0+3}")
            o(f"buffer_load_dword v{SEL}, {vr(T0,2)}, s[{sT}:{sT+3}], 0 idxen offen")
            if k + 1 < PF: o(f"v_add_u32 v{T0+2}, 4096, v{T0+2}")
    PFW = OPT.get('pfw', 'rec')
    place('rec')
    if PF and PFW == 'rec': pref()
    o("s_waitcnt lgkmcnt(0)"); o("s_barrier"); stamp(2)
    spref(SP[1], SP[0])
    pp = t[14]
    o(f"v_and_b32 v{pp}, 0x13, v0"); o(f"v_lshl_or_b32 v{pp}, v{b2}, 3, v{pp}"); o(f"v_lshl_or_b32 v{pp}, v{b3}, 2, v{pp}")
    o(f"v_lshrrev_b32 v{t[12]}, 3, v{pp}"); o(f"v_lshlrev_b32 v{vTA}, 7, v{pp}"); o(f"v_lshl_add_u32 v{vTA}, v{t[12]}, 4, v{vTA}")
    o(f"v_bfe_u32 v{t[13]}, v0, 1, 1"); o(f"v_xor_b32 v{t[12]}, v{t[13]}, v{vh}"); o(f"v_lshl_add_u32 v{vTA}, v{t[12]}, 6, v{vTA}"); o(f"v_add_u32 v{vTA}, s{sMR}, v{vTA}")
    o(f"v_and_b32 v{t[12]}, 7, v0"); o(f"v_lshlrev_b32 v{t[15]}, 2, v{b4}"); o(f"v_xor_b32 v{t[15]}, v{t[15]}, v{t[12]}")
    o(f"s_mov_b32 s{sT0}, 0" if SM else f"s_lshl_b32 s{sT0}, s{sWAVE}, 7"); o(f"v_lshl_add_u32 v{IX[0]+1}, v{t[15]}, 4, s{sT0}")
    for i in range(1, 4): o(f"v_mov_b32 v{IX[i]+1}, v{IX[0]+1}")
    o(f"v_and_b32 v{vL1}, 0x38, v0"); o(f"v_add_u32 v{vL1}, {LIST}, v{vL1}"); addg(vL1)
    o(f"v_lshl_or_b32 v{t[15]}, v{b4}, 1, v{b2}"); o(f"v_mul_u32_u24 v{t[15]}, {WS_}, v{t[15]}"); o(f"v_mul_u32_u24 v{t[13]}, 1040, v{t[13]}")
    o(f"v_lshl_or_b32 v{t[21]}, v{b3}, 1, v{b0}"); o(f"v_lshl_add_u32 v{t[15]}, v{t[21]}, 8, v{t[15]}"); o(f"v_add3_u32 v{t[15]}, v{t[15]}, v{t[13]}, {'s%d' % sG if G8 else 0}")
    o(f"v_add_u32 v{t[15]}, {RING + NS*SLOT}, v{t[15]}")
    o(f"v_xor_b32 v{t[13]}, v{vh}, v{b0}"); o(f"v_lshl_add_u32 v{vXA}, v{t[13]}, 7, v{t[15]}")
    o(f"v_lshlrev_b32 v{IXE+1}, 4, v{t[13]}")
    o(f"v_bfe_u32 v{t[13]}, v0, 7, 1"); o(f"v_xor_b32 v{t[13]}, v{t[13]}, v{b0}"); o(f"v_lshl_add_u32 v{vXR}, v{t[13]}, 7, v{t[15]}")
    o(f"v_and_b32 v{t[13]}, 0x60, v0"); o(f"v_add_u32 v{vXR}, v{vXR}, v{t[13]}")
    o(f"s_lshl_b32 s{sT0}, s{sS0}, 12"); o(f"s_lshr_b32 s{sT1}, s{sWAVE}, 1"); o(f"s_lshl_b32 s{sT1}, s{sT1}, 8"); o(f"s_add_u32 s{sT0}, s{sT0}, s{sT1}"); o(f"s_add_u32 s{sT0}, s{sT0}, {LIST+4}"); saddg(sT0)
    o(f"v_bfe_u32 v{vL2}, v0, 1, 5"); o(f"v_lshl_add_u32 v{vL2}, v{vL2}, 3, s{sT0}")
    o(f"s_lshl_b32 s{sME}, s{sWAVE}, 10"); o(f"s_add_u32 s{sME}, s{sME}, {ER}"); saddg(sME)
    o(f"v_lshlrev_b32 v{vSA}, 3, v{pp}"); o(f"v_add_u32 v{vSA}, {LIST+2}, v{vSA}"); addg(vSA)
    o(f"v_lshlrev_b32 v{vHC}, 4, v{vh}"); o(f"v_add_u32 v{vHC}, {IDT}, v{vHC}")
    o(f"v_xor_b32 v{vEA}, v{b4}, v{vh}"); o(f"v_lshlrev_b32 v{vEA}, 4, v{vEA}")
    o(f"v_lshl_add_u32 v{vEA}, v{pp}, 5, v{vEA}"); o(f"v_add_u32 v{vEA}, {ER}, v{vEA}"); addg(vEA)
    o(f"v_add_u32 v{vMT}, 4096, v{vEA}"); o(f"v_xor_b32 v{vMT}, v{vMT}, v{vEA}")
    o(f"v_and_b32 v{t[13]}, 31, v0"); o(f"v_min_u32 v{t[13]}, {NA}, v{t[13]}")
    o(f"v_mul_u32_u24 v{vMA}, {ROW}, v{t[13]}"); o(f"v_lshl_add_u32 v{vMA}, v{vh}, 2, v{vMA}"); o(f"v_add_u32 v{vMA}, {MB}, v{vMA}"); addg(vMA)
    o(f"v_lshrrev_b32 v{PT+2}, 5, v0"); o(f"v_lshlrev_b32 v{PT+2}, 4, v{PT+2}"); o(f"v_lshl_add_u32 v{PT+2}, v{b3}, 2, v{PT+2}"); addg(PT+2)
    o(f"v_lshl_add_u32 v{t[12]}, v{b4}, 4, v{t[12]}"); o(f"v_lshlrev_b32 v{PT+1}, v{t[12]}, 16")
    o(f"v_and_b32 v{t[12]}, 3, v0"); o(f"v_lshl_add_u32 v{t[12]}, v{b4}, 2, v{t[12]}"); o(f"v_lshlrev_b32 v{t[12]}, v{t[12]}, 16")
    o(f"v_cmp_eq_u32 vcc, v{b3}, v{vh}"); o(f"v_lshlrev_b32 v{t[13]}, 4, v{b2}"); o("s_nop 0")
    o(f"v_cndmask_b32 v{t[12]}, 0, v{t[12]}, vcc"); o(f"v_lshlrev_b32 v{PT}, v{t[13]}, v{t[12]}")
    place('mask')
    if cnt(1, 2):
        o(f"s_cmp_eq_u32 s{sFIRST}, 1"); o("s_cbranch_scc1 REMASK"); o("s_waitcnt vmcnt(0)")
    lab("REMASK")
    masks((t[0], t[1], t[2])); xstamp("masks_done")
    a, b_, c, d_ = t[0:4]; ad = [AD + k for k in range(16)]
    o(f"v_mov_b32 v{a}, 8")
    o(f"v_lshrrev_b32 v{b_}, 2, v{vWF}"); addg(b_)
    if G8: o(f"s_lshr_b32 s{sDS}, s{sG}, 8")
    if PF and PFW == 'mask': pref()
    o(f"s_waitcnt vmcnt({cnt(1, 2)})"); xstamp("rec_landed")
    for half in range(2):
        if half: o(f"s_cmp_eq_u64 s[{sSV}:{sSV+1}], 0"); o("s_cbranch_scc1 P1_DONE"); o("s_mov_b64 exec, -1")
        for k in range(8*half, 8*half+8): o(f"v_alignbit_b32 v{ad[k]}, s{sDS}, v{REC+2*k+1}, 24" if G8 else f"v_lshrrev_b32 v{ad[k]}, 24, v{REC+2*k+1}")
        for k in range(8*half, 8*half+8):
            o(f"s_mov_b64 exec, s[{sK+2*k}:{sK+2*k+1}]")
            o(f"ds_add_rtn_u32 v{RANK+k}, v{ad[k]}, v{a} offset:{CNT}")
    lab("P1_DONE")
    o("s_mov_b64 exec, -1")
    EP = OPT.get('ep', '')
    def epf():
        o(f"s_mov_b32 s{sT1}, {int(OPT.get('epm', '0x7007ffff'), 0):#x}")
        for k in range(8):
            o(f"v_and_b32 v{T0+k}, s{sT1}, v{REC+2*k+1}"); o(f"buffer_load_dword v{SEL}, v{T0+k}, s[{sE}:{sE+3}], 0 idxen")
    if EP == 'a': epf()
    place('p1')
    if EP == 'b': epf()
    if PF and PFW == 'p1': pref()
    o("s_waitcnt lgkmcnt(0)"); xstamp("p1_done"); o("s_barrier"); xstamp("b1")
    o(f"ds_read_b32 v{c}, v{b_} offset:{CNT}")
    o(f"ds_read_b32 v{t[4]}, v{b_} offset:{CNT-4}")
    place('b1')
    o(f"v_lshlrev_b32 v{t[5]}, 12, v{vh}"); addg(t[5])
    o("s_waitcnt lgkmcnt(1)")
    o(f"v_sub_u32 v{d_}, v{t[5]}, v{c}")
    for dd in ("row_shr:1", "row_shr:2", "row_shr:4", "row_shr:8"):
        o(f"v_add_u32_dpp v{c}, v{c}, v{c} {dd} row_mask:0xf bank_mask:0xf bound_ctrl:0"); o("s_nop 1")
    o(f"v_add_u32_dpp v{c}, v{c}, v{c} row_bcast:15 row_mask:0xa bank_mask:0xf")
    o(f"v_add_u32 v{d_}, v{c}, v{d_}")
    o(f"ds_write_b32 v{b_}, v{d_} offset:{NB}")
    o(f"v_readlane_b32 s{sNT}, v{c}, 31"); o(f"v_readlane_b32 s{sCNT}, v{c}, 63")
    for k in range(8): o(f"ds_read_b32 v{ad[k]}, v{ad[k]} offset:{NB}")
    o(f"s_max_u32 s{sT0}, s{sNT}, s{sCNT}")
    o(f"s_cmp_le_u32 s{sT0}, 4096"); o("s_cbranch_scc0 TOOBIG")
    xstamp("scan_done")
    for half in range(2):
        if half:
            o(f"s_cmp_eq_u64 s[{sSV}:{sSV+1}], 0"); o("s_cbranch_scc1 P2_DONE"); o("s_mov_b64 exec, -1")
            for k in range(8, 16): o(f"ds_read_b32 v{ad[k]}, v{ad[k]} offset:{NB}")
        for k in range(8*half, 8*half+8):
            if k % 4 == 0: o(f"s_waitcnt lgkmcnt({4 - k % 8})")
            o(f"v_add_u32 v{RANK+k}, v{RANK+k}, v{ad[k]}")
        for k in range(8*half, 8*half+8):
            o(f"s_mov_b64 exec, s[{sK+2*k}:{sK+2*k+1}]")
            o(f"ds_write_b64 v{RANK+k}, {vr(REC+2*k,2)} offset:{LIST}")
    lab("P2_DONE")
    o("s_mov_b64 exec, -1")
    o(f"v_readlane_b32 s{sMORE}, v{t[4]}, 0")
    o(f"s_mov_b32 m0, s{sME}")
    o(f"s_waitcnt vmcnt({9 + (8 if EP == 'b' else 0) if ORD.index(WAP) >= ORD.index(XBP) else 0}) lgkmcnt(0)"); xstamp("p2_done"); o("s_barrier"); stamp(5)
    f = t
    def rdidx(u):
        for i in range(4): o(f"ds_read_u16 v{IX[i]}, v{vL1} offset:{loff(u)+64*i}")
    def fill(u, nxt):
        for i in range(4):
            o(f"s_add_u32 m0, s{sMR}, {u*SLOT + i*1040}"); o(f"s_waitcnt lgkmcnt(3)"); o(ldt(i))
            o(f"ds_read_u16 v{IX[i]}, v{vL1} offset:{loff(nxt)+64*i}")
    o(f"ds_read_b32 v{IXE}, v{vL2}"); rdidx(0)
    o(f"v_lshlrev_b32 v{f[9]}, 3, v0"); addg(f[9])
    o("s_waitcnt lgkmcnt(4)")
    o(f"v_and_b32 v{IXE}, 0x7ffff, v{IXE}"); o(lde())
    NFO = int(OPT.get('nfo', 2)); NFY = int(OPT.get('nfy', 2))
    def fills(lo_o, hi_o, lo_y, hi_y, tag, wait):
        if (lo_o, hi_o) == (lo_y, hi_y):
            for u in range(lo_o, hi_o): fill(u, u + 1)
            return
        o("s_cmp_ge_u32 s2, 256"); o(f"s_cbranch_scc1 {tag}_Y")
        for u in range(lo_o, hi_o): fill(u, u + 1)
        if wait: o(f"s_waitcnt vmcnt({2+4*hi_o})")
        o(f"s_branch {tag}_D")
        lab(f"{tag}_Y")
        for u in range(lo_y, hi_y): fill(u, u + 1)
        if wait: o(f"s_waitcnt vmcnt({2+4*hi_y})")
        lab(f"{tag}_D")
    fills(0, NFO, 0, NFY, "FA", True)
    for k in range(4): o(f"ds_read_u8 v{f[12+k]}, v{f[9]} offset:{LIST+2+k*2048}")
    o(f"ds_read_b32 v{IXE}, v{vL2} offset:512"); o(f"ds_read_u8 v{vSV}, v{vSA}")
    xstamp("fill_issued")
    def ctrl():
        o(f"s_movk_i32 s{sS0}, {ROW}")
        for k in range(4):
            o(f"v_cmp_gt_u32 vcc, {NA}, v{f[12+k]}"); o(f"v_mad_u32_u24 v{f[0]}, v{f[12+k]}, s{sS0}, v{PT+2}"); o("s_nop 0")
            o(f"v_cndmask_b32 v{f[1]}, 0, v{PT+1}, vcc")
            o(f"ds_or_b32 v{f[0]}, v{f[1]} offset:{MB + (k&1)*128 + (k>>1)*8}")
        o(f"s_add_u32 s{sNT}, s{sNT}, 255"); o(f"s_lshr_b32 s{sNT}, s{sNT}, 8"); o(f"s_lshl1_add_u32 s{sNT}, s{sNT}, -1")
        o(f"s_add_u32 s{sCNT}, s{sCNT}, 255"); o(f"s_lshr_b32 s{sCNT}, s{sCNT}, 8"); o(f"s_lshl_b32 s{sCNT}, s{sCNT}, 1")
        o(f"s_max_i32 s{sNT}, s{sNT}, s{sCNT}"); o(f"s_max_i32 s{sNT}, s{sNT}, 2"); o(f"s_sub_u32 s{sCNT}, s{sNT}, 2")
        o(f"s_add_u32 s{sMET}, s{sME}, 4096"); o(f"s_xor_b32 s{sMET}, s{sMET}, s{sME}"); o(f"s_add_u32 s{sME}, s{sME}, 4096")
        o(f"v_add_u32 v{vL2}, 0x400, v{vL2}")
    def lut():
        q = T0
        for d in range(4):
            o(f"v_bfe_u32 v{q+d}, v0, {2*d}, 2"); o(f"v_mul_u32_u24 v{q+d}, 0x8001, v{q+d}")
            o(f"v_and_b32 v{q+d}, 0x10001, v{q+d}"); o(f"v_mul_u32_u24 v{q+d}, 0x3f80, v{q+d}")
        o(f"v_lshlrev_b32 v{q+4}, 4, v0"); o(f"ds_write_b128 v{q+4}, {vr(q,4)} offset:{LUT}")
        o(f"v_lshrrev_b32 v{q}, 3, v0"); o(f"v_and_b32 v{q+1}, 7, v0")
        o(f"v_bfe_u32 v{q+2}, v0, 5, 1"); o(f"v_bfe_u32 v{q+3}, v0, 6, 1"); o(f"v_lshl_or_b32 v{q+2}, v{q+2}, 1, v{q+3}")
        o(f"v_lshrrev_b32 v{q+3}, 7, v0"); o(f"v_lshl_or_b32 v{q+2}, v{q+3}, 2, v{q+2}")
        o(f"v_cmp_eq_u32 vcc, v{q+2}, v{q+1}"); o(f"v_cmp_gt_u32 s[{sHM}:{sHM+1}], {NA}, v{q}"); o(f"v_mov_b32 v{q+6}, 0x3f80"); o(f"v_mov_b32 v{q+7}, 0")
        o(f"s_and_b64 vcc, vcc, s[{sHM}:{sHM+1}]")
        o(f"v_and_b32 v{q+2}, 3, v{q}"); o(f"v_lshlrev_b32 v{q+2}, 4, v{q+2}"); o(f"v_cndmask_b32 v{q+6}, 0, v{q+6}, vcc")
        o(f"v_lshlrev_b64 {vr(q+6,2)}, v{q+2}, {vr(q+6,2)}")
        o(f"v_min_u32 v{q}, {NA}, v{q}"); o(f"v_mul_u32_u24 v{q}, 80, v{q}"); o(f"v_lshl_add_u32 v{q}, v{q+1}, 3, v{q}")
        o(f"ds_write_b64 v{q}, {vr(q+6,2)} offset:{IDT}")
    o(f"s_cmp_eq_u32 s{sFIRST}, 1"); o("s_cbranch_scc1 G1")
    o("s_waitcnt lgkmcnt(0)")
    ctrl()
    o("s_branch G1D")
    lab("G1")
    for mt in range(2):
        for s in range(8): o(f"ds_read_b128 {vr(GV+32*mt+4*s,4)}, v{vXA} offset:{mt*2080 + 16*s}")
        if mt == 0: o("s_waitcnt lgkmcnt(8)")
    lt = capture(lut); ct = capture(ctrl)
    for x in lt[:18]: o(x)
    o(f"s_waitcnt vmcnt({4*max(NFO, NFY)+2+(8 if EP == 'b' else 0)}) lgkmcnt(9)")
    acc = [ACC + 32, ACC + 48]
    interleave([m32(acc[0], GV+4*s, ACC+4*s, None if s == 0 else acc[0]) for s in range(8)], lt[18:] + ct[:16], 5)
    o("s_waitcnt lgkmcnt(5)")
    def cv(mt): return [f"v_cvt_pk_bf16_f32 v{AF+8*mt+r//2}, v{acc[mt]+r}, v{acc[mt]+r+1}" for r in range(0, 16, 2)]
    interleave([m32(acc[1], GV+32+4*s, ACC+4*s, None if s == 0 else acc[1]) for s in range(8)],
               ct[16:] + cv(0) + [f"v_mov_b64 {vr(acc[0]+r,2)}, s[40:41]" for r in range(0, 16, 2)], 5)
    for r in range(0, 32, 2): o(f"v_mov_b64 {vr(ACC+r,2)}, {'s[40:41]' if r < 16 else 0}")
    for x in cv(1): o(x)
    for r in range(0, 16, 2): o(f"v_mov_b64 {vr(acc[1]+r,2)}, 0")
    if STAMP:
        o("s_getreg_b32 s94, hwreg(HW_REG_HW_ID)"); o("s_getreg_b32 s100, hwreg(HW_REG_XCC_ID)"); o("s_and_b32 s94, s94, 0xffff"); o("s_lshl_b32 s100, s100, 16"); o("s_or_b32 s94, s94, s100"); o(f"v_writelane_b32 v{VST[0]}, s94, 3")
    lab("G1D")
    o(f"v_and_b32 v{MQ}, 0xffff, v{PT}"); o(f"v_lshrrev_b32 v{MQ+1}, 16, v{PT}")
    xstamp("g1_done"); stamp(4)
    fills(NFO, NS, NFY, NS, "FB", False)
    o(f"s_waitcnt vmcnt({4*(NS-1)}) lgkmcnt(0)"); xstamp("t0_landed"); o("s_barrier")
    o(f"ds_read_b128 {vr(SEL,4)}, v{MQ}"); o(f"ds_read_b128 {vr(SEL+4,4)}, v{MQ+1}")
    o(f"ds_read_b128 {vr(EF,4)}, v{vEA}")
    for j in range(4): o(f"ds_read_b128 {vr(TF+4*j,4)}, v{vTA} offset:{16*j}")
    o(f"s_setprio {OPT.get('lp', 2)}")
    if OPT.get('young'):
        o("s_cmp_lt_u32 s2, 256"); o("s_cbranch_scc1 OLD"); o(f"s_setprio {OPT['young']}"); lab("OLD")
    if OPT.get('fakec'): o(f"v_lshrrev_b32 v{vTC}, 2, v{vWF}"); o(f"v_add_u32 v{vTC}, s{sMR}, v{vTC}")
    stamp(6); stamp(8, "s_memtime")
    bodies = [body(b) for b in range(4)]
    if not OPT.get('noval') and not OPT.get('fakec'): check_hazards(sum(bodies, []) + ["s_branch LOOP"])
    emit(body(0, peel=True))
    b1 = bodies[1][:bodies[1].index("ENT1:")]
    o("s_nop 7")
    emit([x for x in b1 if not x.startswith(("v_mfma", "s_sub", "s_cbranch"))])
    o("s_branch ENT1")
    lab("TOOBIG")
    o(f"s_mov_b32 s{sLIM}, {LOWLIM}"); o(f"v_mov_b32 v{a}, 0")
    o("s_waitcnt lgkmcnt(0)"); o("s_barrier")
    o(f"ds_write_b32 v{b_}, v{a} offset:{CNT}")
    o("s_waitcnt lgkmcnt(0)"); o("s_barrier")
    o("s_branch REMASK")
    lab("LOOP")
    emit(sum(bodies, []))
    if OPT.get('pp', '99,8,4') != '0' and not G8:
        th = [int(x) for x in OPT.get('pp', '99,8,4').split(',')]
        o(f"s_add_u32 s{sT0}, s{sCNT}, s{sRS}")
        for k, v in enumerate(th):
            if v < 99: o(f"s_cmp_lt_u32 s{sT0}, {v}"); o("s_cbranch_scc0 LOOP"); o(f"s_setprio {2-k}")
    o("s_branch LOOP")
    assert len(set(HEAD.values())) == 1
    WU = TF; x = AF
    def fin(p):
        d = ACC + 32 * p; r = []
        for k in range(16): r.append(f"v_rcp_f32 v{d+k}, v{d+k}")
        for k in range(16): r.append(f"v_mul_f32 v{d+16+k}, v{d+k}, v{d+16+k}")
        return r
    def unp(p): return sum(([f"v_lshlrev_b32 v{ACC+32*p+2*k}, 16, v{x+8*p+k}", f"v_and_b32 v{ACC+32*p+2*k+1}, s{sT1}, v{x+8*p+k}"] for k in range(8)), [])
    def post(p):
        r = []
        for k in range(8):
            z = ACC + 32*p + 16 + 2*k
            r += [f"v_max_f32 v{z}, 0, v{z}", f"v_max_f32 v{z+1}, 0, v{z+1}", f"v_add_f32 v{z}, v{z}, v{z-16}", f"v_add_f32 v{z+1}, v{z+1}, v{z-15}",
                  f"v_cvt_pk_bf16_f32 v{x+8*p+k}, v{z}, v{z+1}"]
        return r
    def st(p): return [f"s_mov_b64 exec, {((1 << (NA - p)) - 1):#x}", f"s_mov_b32 exec_hi, exec_lo"] + \
        [f"buffer_store_dwordx4 {vr(x+8*p+4*k,4)}, {vr(IX[p],2)}, s[{sO}:{sO+3}], 0 idxen offen offset:{16*k} {OPT.get('outpol', '').replace('+', ' ')}" for k in range(2)] + ["s_mov_b64 exec, -1"]
    assert RN - NA == NA - 1
    CO = int(OPT.get('co', 0))
    if CO:
        def st(p): return [f"s_mov_b64 exec, {((1 << (NA - p)) - 1):#x}", f"s_mov_b32 exec_hi, exec_lo"] + \
            [f"ds_write_b128 v{IX[2]}, {vr(x+8*p+4*k,4)} offset:{RING + p*NA*272 + 16*k}" for k in range(2)] + ["s_mov_b64 exec, -1"]
    for p in (1, 0):
        q = 1 - p; Gc = GV + 32 * q
        lab(f"TAIL{p}")
        stamp(7); stamp(11, "s_memtime")
        if STAMP: o(f"v_writelane_b32 v{VST[0]}, s{sNT}, 12")
        o(f"ds_read_b128 {vr(T0,4)}, v{MQ}"); o(f"ds_read_b128 {vr(T0+4,4)}, v{MQ+1}")
        o(f"s_cmp_lg_u32 s{sMORE}, 0"); o(f"s_cbranch_scc1 TAILM{p}")
        o("s_waitcnt lgkmcnt(0)")
        for ins in wload(WU, WF_U): o(ins)
        for s in range(8): o(f"ds_read_b128 {vr(GV+32*p+4*s,4)}, v{vXA} offset:{p*2080+16*s}")
        for mt in range(2):
            for k in range(2): o(f"ds_read_b128 {vr(x+8*mt+4*k,4)}, v{vXR} offset:{mt*2080+16*k}")
        o(f"v_and_b32 v{IX[0]}, 31, v0"); o(f"v_and_b32 v{IX[0]+1}, 0xe0, v0"); o(f"v_add_u32 v{IX[0]}, s{sBASE}, v{IX[0]}")
        o(f"v_add_u32 v{IX[1]}, {NA}, v{IX[0]}"); o(f"v_mov_b32 v{IX[1]+1}, v{IX[0]+1}")
        if CO:
            o(f"v_and_b32 v{IX[2]}, 31, v0"); o(f"v_mul_u32_u24 v{IX[2]}, 272, v{IX[2]}"); o(f"v_add_u32 v{IX[2]}, v{IX[2]}, v{IX[0]+1}")
            o(f"v_lshrrev_b32 v{IX[0]}, 4, v0"); o(f"v_and_b32 v{IX[0]+1}, 0xf0, v{vWF}")
            o(f"v_mul_u32_u24 v{IX[3]}, 272, v{IX[0]}"); o(f"v_add_u32 v{IX[3]}, v{IX[3]}, v{IX[0]+1}"); o(f"v_add_u32 v{IX[0]}, s{sBASE}, v{IX[0]}")
        o(f"s_mov_b32 s{sT1}, 0xffff0000")
        vs = [i for i, _ in vstream(Gc, Gc + 16)[HEAD[0]:]]
        for ins in vs: o(ins)
        o("s_nop 0")
        interleave(zphase(Gc, q), fin(p), 4)
        for s in range(8): o(f"ds_read_b128 {vr(Gc+4*s,4)}, v{vXA} offset:{q*2080+16*s}")
        o("s_waitcnt vmcnt(0) lgkmcnt(8)")
        interleave([m32(ACC+32*p+16, WU+4*s, GV+32*p+4*s, ACC+32*p+16) for s in range(8)], fin(q), 4)
        o("s_waitcnt lgkmcnt(0)"); o("s_barrier" if CO else "s_nop 0")
        interleave([m32(ACC+32*q+16, WU+4*s, Gc+4*s, ACC+32*q+16) for s in range(8)], unp(p) + post(p) + unp(q), 7)
        for ins in st(p) + post(q) + st(q): o(ins)
        if p == 1: o("s_branch K2_FIN")
    lab("K2_FIN")
    if CO:
        o("v_cmp_gt_u32 vcc, 16, v0")
        o("s_waitcnt lgkmcnt(0)"); o("s_barrier")
        for k in range(4): o(f"ds_read_b128 {vr(GV+4*k,4)}, v{IX[3]} offset:{RING + k*16*272}")
        for k in range(4):
            if k == 3: o(f"s_and_saveexec_b64 s[{sSV}:{sSV+1}], vcc"); o("s_cbranch_execz K2_OUT")
            o(f"s_waitcnt lgkmcnt({3-k})")
            o(f"buffer_store_dwordx4 {vr(GV+4*k,4)}, {vr(IX[0],2)}, s[{sO}:{sO+3}], 0 idxen offen {OPT.get('outpol', '').replace('+', ' ')}")
            if k < 3: o(f"v_add_u32 v{IX[0]}, 16, v{IX[0]}")
        lab("K2_OUT")
    stamp_out(9, GV+32, sW, 1)
    lab("K2_END")
    o("s_endpgm")
    for p in (1, 0):
        Gc = GV + 32 * (1 - p)
        lab(f"TAILM{p}")
        for ins, _ in vstream(Gc, Gc + 16)[HEAD[0]:]: o(ins)
        o("s_waitcnt lgkmcnt(0)")
        for m in zphase(Gc, 1 - p): o(m)
        if p == 1: o("s_branch NEXTROUND")
    lab("NEXTROUND")
    for i in range(4):
        o(f"v_lshrrev_b32 v{vTC}, 19, v{SEG+i}"); o(f"v_min_u32 v{vTC}, s{sLIM}, v{vTC}")
        o(f"v_add_u32 v{SEG+i}, v{SEG+i}, v{vTC}"); o(f"v_lshlrev_b32 v{vTC}, 19, v{vTC}"); o(f"v_sub_u32 v{SEG+i}, v{SEG+i}, v{vTC}")
    o(f"s_mov_b32 s{sFIRST}, 0"); o(f"s_mov_b32 s{sLIM}, {LIM}")
    o("s_waitcnt vmcnt(0) lgkmcnt(0)"); o("s_barrier")
    o("s_branch ROUND")

def kd(name, nv, ns):
    L.append(".p2align 6")
    L.append(f".amdhsa_kernel {name}")
    for k, v in (("next_free_vgpr", nv), ("next_free_sgpr", ns), ("accum_offset", (nv + 3) // 4 * 4), ("group_segment_fixed_size", 0),
                 ("kernarg_size", 96), ("user_sgpr_count", 2), ("user_sgpr_kernarg_segment_ptr", 1), ("system_sgpr_workgroup_id_x", 1),
                 ("float_denorm_mode_32", 3)):
        L.append(f"  .amdhsa_{k} {v}")
    L.append(".end_amdhsa_kernel")

hdr = [l for l in open(f"cdna_kernels/{NAME}.s.ref").read().splitlines() if l.startswith(";") and "@launch" not in l
       and "Override launch" not in l and "grid=ceil" not in l]
L += hdr
L.append(f"; @launch kernel=gsort_kernel grid=({K1_GRID},1,1) block=(512,1,1) lds={K1_LDS}")
L.append(f"; @launch kernel=gmain_kernel grid=(256,1,1) block=(512,1,1) lds={NB+2*GS}" if G8 else f"; @launch kernel=gmain_kernel grid=(512,1,1) block=(256,1,1) lds={K2_LDS}")
L.append('.amdgcn_target "amdgcn-amd-amdhsa--gfx950"'); L.append(".text")
gen_k1a(); gen_k2()
lab("CODE_END")
L.append('.section .rodata,"a"')
kd("gsort_kernel", 256 if STAMP else 252, 102 if STAMP else 80); kd("gmain_kernel", 256 if STAMP else NVGPR, 102)
if STAMP: L.append("; STAMPS " + repr(NAMES))
open(sys.argv[1], "w").write("\n".join(L) + "\n")
print("vgprs", NVGPR, "lds", K2_LDS, "lines", len(L), file=sys.stderr)
```

```python
import sys, struct, re

N = 25000; E = 400000; RN = 49; NR = 511; CH = 1600; NCH = 250
WS_REC = 0; WS_OFF = 0x310000; OROW = 1152; WS_WF = 0x3c0000; WS_TAB = 0x400000; WS_SIZE = 0x4000000
WF_A = 0; WF_U = 0x8000; WF_C = 0x10000; NA = 25
NLOG2E = struct.unpack('<I', struct.pack('<f', -1.4426950408889634))[0]
EPS = struct.unpack('<I', struct.pack('<f', 1e-6))[0]
NAME = "standalone__edge_featured_mpnn_gatedgcn__graph"
OPT = dict(k1='a', tabpol='sc1', recpol='sc1', touch='0', nx='2', wfpol='sc1', tsh='19', outpol='nt', bon='4', lp='3', pp='23,15,7')
OPT.update(a.split('=') for a in sys.argv[2:])
CH = 8000; NCH = 50; EPT = 16; LPS = 16; NG = 196
STAMP = int(OPT.get('stamp', 0))
WS_TAB = int(OPT.get('tab', hex(WS_TAB)), 0)
WS_STAMP = 0x3800000
L = []
def o(s): L.append("    " + s)
def lab(s): L.append(s + ":")
def vr(b, n): return f"v[{b}:{b+n-1}]"
VST = [60]
NAMES = {}
def stamp(i, ins="s_memrealtime", name=None):
    if STAMP:
        o(f"{ins} s[100:101]"); o("s_waitcnt lgkmcnt(0)"); o(f"v_writelane_b32 v{VST[0]}, s100, {i}")
def xstamp(name):
    if STAMP:
        NAMES[name] = 16 + len(NAMES); stamp(NAMES[name])
def stamp_out(n, reg, srdn, kern):
    if not STAMP: return
    o("s_mov_b64 exec, -1")
    stamp(n)
    o(f"v_lshlrev_b32 v{reg}, 2, v0")
    if kern and int(OPT.get('g8', 0)): o("s_and_b32 s63, s3, 1"); o("s_lshl_b32 s63, s63, 8"); o("s_add_u32 s2, s2, s63")
    o(f"s_lshl_b32 s63, s2, 11"); o(f"s_add_u32 s63, s63, {WS_STAMP + kern*0x100000:#x}")
    o(f"buffer_store_dword v{VST[0]}, v{reg}, s[{srdn}:{srdn+3}], s63 offen")
def srd(d, lo, size, stride=0):
    o(f"s_mov_b32 s{d}, s{lo}"); o(f"s_and_b32 s{d+1}, s{lo+1}, 0xffff")
    if stride: o(f"s_or_b32 s{d+1}, s{d+1}, {stride << 16:#x}")
    o(f"s_mov_b32 s{d+2}, {size:#x}"); o(f"s_mov_b32 s{d+3}, 0x20000")
def scan64(v):
    for d in ("row_shr:1", "row_shr:2", "row_shr:4", "row_shr:8"):
        o("s_nop 1"); o(f"v_add_u32_dpp v{v}, v{v}, v{v} {d} row_mask:0xf bank_mask:0xf bound_ctrl:0")
    o("s_nop 1"); o(f"v_add_u32_dpp v{v}, v{v}, v{v} row_bcast:15 row_mask:0xa bank_mask:0xf")
    o("s_nop 1"); o(f"v_add_u32_dpp v{v}, v{v}, v{v} row_bcast:31 row_mask:0xc bank_mask:0xf")

def m32(d, a, b, c): return f"v_mfma_f32_32x32x16_bf16 {vr(d,16)}, {vr(a,4)}, {vr(b,4)}, " + ("0" if c is None else vr(c,16))
K1_GRID = 256
CB = CH * 8 + 2048
K1_W = 0; K1_X = 65536; K1_S = K1_X + 4 * 8320; K1_LDS = K1_S + 8 * 4608
SM = 0
def gen_k1a():
    L.append(".globl gsort_kernel"); L.append(".p2align 8"); L.append(".type gsort_kernel,@function")
    lab("gsort_kernel"); VST[0] = 255
    pol = OPT.get('tabpol', '').replace('+', ' '); rpol = OPT.get('recpol', '').replace('+', ' ')
    stamp(0)
    o("s_load_dwordx8 s[4:11], s[0:1], 0")
    o("s_load_dwordx8 s[40:47], s[0:1], 32")
    o("s_load_dwordx2 s[48:49], s[0:1], 64")
    o("s_load_dwordx2 s[12:13], s[0:1], 88")
    o("v_lshrrev_b32 v2, 6, v0"); o("v_lshlrev_b32 v40, 4, v0")
    o("v_bfe_u32 v56, v0, 4, 1"); o("v_bfe_u32 v57, v0, 5, 1"); o("v_and_b32 v20, 63, v0")
    o("v_readfirstlane_b32 s33, v2")
    o(f"s_cmp_ge_u32 s2, {NG}"); o("s_cbranch_scc1 K1_OTHER")
    o("s_lshr_b32 s35, s2, 3")
    o("s_and_b32 s36, s2, 7"); o("s_min_u32 s14, s36, 4"); o("s_mul_i32 s36, s36, 24"); o("s_add_u32 s36, s36, s14"); o("s_add_u32 s36, s36, s35")
    o("s_lshl_b32 s37, s36, 7")
    o("v_bfe_u32 v43, v0, 4, 2"); o("v_lshlrev_b32 v43, 6, v43"); o("v_xor_b32 v43, v43, v40")
    o("v_lshl_add_u32 v54, v57, 3, v56")
    o("s_lshr_b32 s32, s33, 2"); o("s_lshl_b32 s14, s32, 4"); o("s_and_b32 s30, s33, 3"); o("s_lshl1_add_u32 s14, s30, s14"); o("s_add_u32 s14, s14, s37")
    o("v_add_u32 v54, s14, v54")
    o("v_and_b32 v55, 15, v0"); o("v_lshlrev_b32 v59, 3, v56"); o("v_xor_b32 v55, v55, v59"); o("v_lshlrev_b32 v55, 4, v55")
    o("s_mul_i32 s38, s33, 1040"); o(f"s_add_u32 s38, s38, {K1_X}")
    o("s_lshl_b32 s39, s33, 10")
    o("s_mov_b32 m0, s38")
    o("s_waitcnt lgkmcnt(0)")
    srd(60, 4, N, 256)
    def xd(t):
        if t: o(f"s_add_u32 m0, s38, {t*8320}"); o("v_add_u32 v54, 32, v54")
        o("buffer_load_dwordx4 v[54:55], s[60:63], 0 idxen offen lds")
    def wd(m):
        for i in range(4):
            o(f"s_add_u32 m0, s39, {K1_W+m*32768+i*8192}"); o(f"s_movk_i32 s14, {i*8192}"); o(f"buffer_load_dwordx4 v43, s[{52+4*m}:{55+4*m}], s14 offen lds")
    xd(0); xd(1)
    srd(52, 42, 32768); wd(0)
    srd(56, 48, 32768); wd(1)
    xd(2); xd(3)
    o("v_bfe_u32 v60, v0, 2, 2"); o("v_lshl_add_u32 v61, v57, 6, v60"); o("v_xor_b32 v60, s30, v60"); o("v_lshlrev_b32 v60, 6, v60"); o("v_lshl_add_u32 v60, v61, 8, v60")
    o("v_and_b32 v61, 3, v0"); o("v_lshl_add_u32 v60, v61, 3, v60"); o("v_lshl_add_u32 v60, v56, 5, v60")
    o("v_bfe_u32 v61, v0, 1, 2"); o("v_lshl_or_b32 v61, v56, 2, v61"); o("v_mul_u32_u24 v61, 1040, v61")
    o("v_and_b32 v62, 1, v0"); o("v_bfe_u32 v63, v0, 3, 1"); o("v_lshl_or_b32 v63, v63, 1, v62"); o("v_lshl_add_u32 v61, v63, 8, v61")
    o("s_mul_i32 s14, s32, 8320"); o(f"s_add_u32 s14, s14, {K1_X}")
    o("v_xor_b32 v62, v62, v57"); o("v_lshl_add_u32 v61, v62, 7, v61"); o("v_add_u32 v61, s14, v61")
    o("s_mul_i32 s14, s33, 4608"); o(f"s_add_u32 s14, s14, {K1_S}")
    o("v_and_b32 v62, 31, v0"); o("v_mul_u32_u24 v62, 144, v62"); o("v_lshl_add_u32 v62, v57, 6, v62"); o("v_add_u32 v62, s14, v62")
    o("v_lshrrev_b32 v58, 3, v20"); o("v_and_b32 v59, 7, v0"); o("v_lshlrev_b32 v59, 4, v59")
    o("v_mul_u32_u24 v63, 144, v58"); o("v_add3_u32 v63, v63, v59, s14")
    o("s_lshl_b32 s14, s32, 5"); o("s_add_u32 s14, s14, s37"); o("s_lshl_b32 s14, s14, 9"); o("s_lshl_b32 s30, s30, 7"); o("s_add_u32 s14, s14, s30")
    o("v_lshl_add_u32 v59, v58, 9, v59"); o("v_add_u32 v59, s14, v59")
    if STAMP: srd(24, 12, WS_SIZE)
    o(f"s_add_u32 s12, s12, {WS_TAB:#x}"); o("s_addc_u32 s13, s13, 0"); srd(16, 12, N * 512)
    o(f"s_mov_b32 s15, {NLOG2E:#x}")
    WF_ = 64; XF_ = 128; AC = [160, 192]
    def trs(m):
        for s in range(8):
            for jj in range(2): o(f"ds_read_b64_tr_b16 v[{WF_+32*m+4*s+2*jj}:{WF_+32*m+4*s+2*jj+1}], v60 offset:{K1_W+m*32768+s*2048+jj*1024}")
            if m == 0: o(f"ds_read_b128 {vr(XF_+4*s,4)}, v61 offset:{16*s}")
    SPL = int(OPT.get('split', 1))
    stamp(1)
    o(f"s_waitcnt vmcnt({6 if SPL else 0})"); o("s_barrier"); stamp(3)
    trs(0)
    if SPL:
        o("s_waitcnt lgkmcnt(12)")
        for s in range(8):
            if s == 4: o("s_waitcnt lgkmcnt(0)")
            o(m32(AC[0], WF_+4*s, XF_+4*s, None if s == 0 else AC[0]))
        o("s_waitcnt vmcnt(0)"); o("s_barrier")
        trs(1)
        for k in range(16): o(f"v_mul_f32 v{AC[0]+k}, s15, v{AC[0]+k}")
    else:
        trs(1)
        o("s_waitcnt lgkmcnt(15)")
        for s in range(8): o(m32(AC[0], WF_+4*s, XF_+4*s, None if s == 0 else AC[0]))
    def post(t):
        a = AC[t]; r = []
        for k in range(16): r.append(f"v_mul_f32 v{a+k}, s15, v{a+k}")
        for k in range(16): r.append(f"v_cvt_pk_bf16_f32 v{224+k}, v{a+2*k}, v{a+2*k+1}")
        r += [f"ds_write_b128 v62, {vr(224+4*c,4)} offset:{16*c}" for c in range(4)]
        r += [f"ds_read_b128 {vr(a+4*k,4)}, v63 offset:{k*8*144}" for k in range(4)]
        return r
    def stores(t):
        r = []
        for k in range(4):
            r += [f"s_waitcnt lgkmcnt({3-k})", f"buffer_store_dwordx4 {vr(AC[t]+4*k,4)}, v59, s[16:19], 0 offen {pol}", "v_add_u32 v59, 0x1000, v59"]
        return r
    o("s_waitcnt lgkmcnt(0)")
    for s in range(8):
        o(m32(AC[0]+16, WF_+32+4*s, XF_+4*s, None if s == 0 else AC[0]+16))
        o(f"ds_read_b128 {vr(XF_+4*s,4)}, v61 offset:{2*8320+16*s}")
    o("s_waitcnt lgkmcnt(0)")
    mf = [m32(AC[1], WF_+4*s, XF_+4*s, None if s == 0 else AC[1]) for s in range(8)] + [m32(AC[1]+16, WF_+32+4*s, XF_+4*s, None if s == 0 else AC[1]+16) for s in range(8)]
    q = post(0)[16*SPL:] + [None] * 6 + stores(0)
    q += [None] * (55 - len(q)) + post(1)[:24]
    for m in mf:
        o(m)
        for _ in range(5):
            if q:
                x = q.pop(0)
                o(x if x else "s_nop 0")
    assert not q
    o("v_add_u32 v59, 0x4000, v59"); o("s_nop 7")
    for x in post(1)[24:]: o(x)
    stamp(4)
    for x in stores(1): o(x)
    lab("K1_F")
    if STAMP: o("s_waitcnt vmcnt(0)")
    stamp_out(2, 12, 24, 0)
    lab("K1_END")
    o("s_endpgm")
    lab("K1_OTHER")
    o(f"s_sub_u32 s2, s2, {NG}")
    o(f"s_cmp_ge_u32 s2, {NCH}"); o("s_cbranch_scc1 K1_PREP")
    D_, S_, R_, K_, P_ = 64, 80, 96, 112, 128
    o("v_lshlrev_b32 v1, 2, v0"); o("v_mov_b32 v2, 0"); o("ds_write_b32 v1, v2")
    o(f"s_mul_i32 s3, s2, {CH*4}"); o(f"s_mul_i32 s31, s2, {CB}"); o(f"s_mul_i32 s34, s2, {CH}")
    o(f"v_cmp_gt_u32 vcc, {CH//16}, v0")
    o("s_waitcnt lgkmcnt(0)")
    srd(20, 10, E*4); srd(16, 8, E*4)
    o("s_mov_b64 s[28:29], vcc"); o("s_mov_b64 exec, vcc")
    for base, sr in ((D_, 20), (S_, 16)):
        for j in range(4):
            o(f"s_add_u32 s14, s3, {j*CH}"); o(f"buffer_load_dwordx4 {vr(base+4*j,4)}, v40, s[{sr}:{sr+3}], s14 offen")
    o("s_barrier")
    srd(24, 12, WS_SIZE)
    o("v_add_u32 v3, s34, v1"); o("v_mov_b32 v2, 1"); o(f"s_mov_b32 s15, {-RN}")
    for i in range(EPT):
        if i % 4 == 0: o(f"s_waitcnt vmcnt({7 - i//4})")
        o(f"v_mul_u32_u24 v{R_+i}, 21400, v{D_+i}")
        o(f"v_lshrrev_b32 v{R_+i}, 20, v{R_+i}")
        o(f"v_mad_i32_i24 v{D_+i}, v{R_+i}, s15, v{D_+i}")
        o(f"v_lshlrev_b32 v{R_+i}, 2, v{R_+i}")
        o(f"ds_add_rtn_u32 v{K_+i}, v{R_+i}, v2")
    o("s_waitcnt vmcnt(0)"); stamp(1)
    def recs(lo, hi):
        for i in range(lo, hi):
            o(f"v_cmp_lt_u32 vcc, {NA-1}, v{D_+i}"); o(f"v_mul_u32_u24 v22, 83, v{S_+i}"); o("v_lshrrev_b32 v22, 16, v22")
            o(f"v_cndmask_b32 v23, 0, {NA}, vcc"); o(f"v_sub_u32 v23, v{D_+i}, v23")
            o(f"v_lshl_or_b32 v{P_+2*i}, v23, 16, v{S_+i}")
            o("v_cndmask_b32 v23, 0, 32, vcc"); o("v_or_b32 v22, v22, v23")
            o(f"v_lshl_add_u32 v{P_+1+2*i}, v22, 26, v3")
            o(f"v_add_u32 v3, {1 if i % 4 < 3 else CH//4 - 3}, v3")
    recs(0, 8)
    o("s_mov_b64 exec, -1")
    o("v_lshlrev_b32 v20, 5, v20")
    o("s_waitcnt lgkmcnt(0)"); o("s_barrier"); stamp(3)
    o("ds_read_b128 v[24:27], v20"); o("ds_read_b128 v[28:31], v20 offset:16")
    recs(8, 12)
    o("s_waitcnt lgkmcnt(0)")
    o("v_mov_b32 v33, v24")
    for j in range(2, 8): o(f"v_add_u32 v{32+j}, v{31+j}, v{23+j}")
    o("v_add_u32 v21, v39, v31"); o("v_mov_b32 v22, v21")
    scan64(21)
    o("v_sub_u32 v32, v21, v22")
    for j in range(1, 8): o(f"v_add_u32 v{32+j}, v32, v{32+j}")
    o("ds_write_b128 v20, v[32:35] offset:2048"); o("ds_write_b128 v20, v[36:39] offset:2064")
    o("s_mov_b64 exec, s[28:29]")
    for i in range(EPT): o(f"ds_read_b32 v{R_+i}, v{R_+i} offset:2048")
    recs(12, 16)
    o("s_waitcnt lgkmcnt(0)")
    for i in range(EPT):
        o(f"v_add_lshl_u32 v{D_+i}, v{R_+i}, v{K_+i}, 3"); o(f"ds_write_b64 v{D_+i}, {vr(P_+2*i,2)} offset:6144")
    o("s_mov_b64 exec, -1")
    o("s_cmp_lg_u32 s33, 7"); o("s_cbranch_scc1 K1_O2")
    o("s_lshr_b32 s34, s31, 3"); o("s_add_u32 s34, s34, 256")
    for j in range(8): o(f"v_lshl_add_u32 v{24+j}, v{24+j}, 19, v{32+j}"); o(f"v_add_u32 v{24+j}, s34, v{24+j}")
    o("ds_write_b128 v20, v[24:27] offset:4096"); o("ds_write_b128 v20, v[28:31] offset:4112")
    lab("K1_O2")
    NC = (CB + 8191) // 8192
    o(f"v_cmp_gt_u32 vcc, {CB//16-512*(NC-1)}, v0"); o("v_add_u32 v41, 0x9000, v40")
    o("s_waitcnt lgkmcnt(0)"); o("s_barrier"); stamp(4)
    for j in range(NC): o(f"ds_read_b128 {vr(64+4*j,4)}, " + (f"v40 offset:{4096+8192*j}" if j < 4 else f"v41 offset:{8192*(j-4)}"))
    for j in range(NC):
        if j == NC - 1: o("s_and_saveexec_b64 s[28:29], vcc"); o("s_cbranch_execz K1_SE")
        o(f"s_waitcnt lgkmcnt({NC-1-j})")
        o(f"buffer_store_dwordx4 {vr(64+4*j,4)}, v40, s[24:27], s31 offen {rpol}"); o("s_add_u32 s31, s31, 8192")
    lab("K1_SE")
    if STAMP: o(f"s_add_u32 s2, s2, {NG}"); o("s_waitcnt vmcnt(0)"); stamp_out(2, 12, 24, 0)
    o("s_endpgm")
    lab("K1_PREP")
    o(f"s_sub_u32 s69, s2, {NCH}"); o("s_lshl3_add_u32 s69, s69, s33")
    o("s_cmp_ge_u32 s69, 68"); o("s_cbranch_scc1 K1_END")
    o("s_waitcnt lgkmcnt(0)")
    o("s_lshr_b32 s14, s69, 5")
    o("s_cmp_eq_u32 s14, 1"); o("s_cselect_b32 s40, s46, s40"); o("s_cselect_b32 s41, s47, s41"); o(f"s_cselect_b32 s68, 1.0, {NLOG2E:#x}")
    o("s_mov_b32 s66, 32768"); o("s_bfe_u32 s50, s69, 0x20003"); o("s_and_b32 s51, s69, 7"); o("s_mov_b32 s32, 14")
    o("s_cmp_eq_u32 s14, 2"); o("s_cselect_b32 s40, s44, s40"); o("s_cselect_b32 s41, s45, s41"); o("s_cselect_b32 s66, 4096, s66")
    o("s_cselect_b32 s50, s51, s50"); o("s_cselect_b32 s51, 0, s51"); o("s_cselect_b32 s32, 11, s32")
    o("s_mov_b32 s64, s40"); o("s_and_b32 s65, s41, 0xffff"); o("s_mov_b32 s67, 0x20000")
    o("s_lshl_b32 s50, s50, 6"); o("s_lshl_b32 s51, s51, 11"); o("s_add_u32 s50, s50, s51")
    o("v_and_b32 v4, 3, v0"); o("v_bfe_u32 v5, v0, 3, 2"); o("v_lshl_or_b32 v4, v5, 2, v4")
    o("v_bfe_u32 v5, v0, 2, 1"); o("v_lshl_or_b32 v4, v5, 4, v4")
    o("v_lshlrev_b32 v5, s32, v57"); o("v_lshl_add_u32 v4, v4, 1, v5"); o("v_add_u32 v4, s50, v4")
    for j in range(8): o(f"buffer_load_ushort v{8+j}, v4, s[64:67], 0 offen offset:{j*256}")
    srd(24, 12, WS_SIZE)
    o("s_lshl_b32 s14, s69, 10"); o(f"s_add_u32 s14, s14, {WS_WF:#x}"); o("v_lshlrev_b32 v42, 4, v20")
    o("s_waitcnt vmcnt(0)")
    for j in range(8):
        o(f"v_lshlrev_b32 v{8+j}, 16, v{8+j}"); o(f"v_mul_f32 v{8+j}, s68, v{8+j}")
    for j in range(4): o(f"v_cvt_pk_bf16_f32 v{52+j}, v{8+2*j}, v{9+2*j}")
    o("buffer_store_dwordx4 v[52:55], v42, s[24:27], s14 offen " + OPT.get('wfpol', ''))
    o("s_endpgm")

def regs_of(tok):
    m = re.fullmatch(r"v\[(\d+):(\d+)\]", tok)
    if m: return set(range(int(m.group(1)), int(m.group(2)) + 1))
    m = re.fullmatch(r"v(\d+)", tok)
    return {int(m.group(1))} if m else set()
def check_hazards(ins):
    P = []
    for s in ins:
        if s.endswith(':'): continue
        op, _, rest = s.partition(' ')
        t = [x.strip() for x in rest.split(',')]
        t = [x.split(' ')[0] for x in t]
        if op.startswith('v_mfma'):
            P.append(('m', 12 if '32x32' in op else 8, regs_of(t[0]), regs_of(t[1]) | regs_of(t[2]), regs_of(t[3]), s))
        elif op.startswith('v_'):
            P.append(('t' if op in ('v_exp_f32', 'v_rcp_f32') else 'v', 0, regs_of(t[0]), set().union(*map(regs_of, t[1:])), set(), s))
        elif op.startswith('ds_read'):
            P.append(('d', 0, regs_of(t[0]), regs_of(t[1]), set(), s))
        elif op.startswith('buffer'):
            P.append(('d', 0, set(), regs_of(t[0]), set(), s))
        else: P.append(('s', 0, set(), set(), set(), s))
    n = len(P)
    for i, (k, w, d, ab, c, s) in enumerate(P):
        for j in range(1, 13):
            k2, w2, d2, ab2, c2, s2 = P[(i + j) % n]
            gap = j - 1
            if k == 'm':
                if k2 == 'm':
                    assert not (gap < w and d & ab2), (s, s2)
                    if d & c2 and d != c2: assert gap >= w - 2, (s, s2)
                else: assert not (gap < w and d & (d2 | ab2)), (s, s2, gap)
                if k2 in 'vt': assert not (gap < (7 if w == 12 else 3) and c & d2), (s, s2)
            if k in 'vt' and k2 == 'm': assert not (gap < 2 and d & (ab2 | c2)), (s, s2)
            if k == 't' and k2 == 'v': assert not (gap < 1 and d & ab2), (s, s2)

LOWLIM = 500 // NCH; LIM = 4 * LPS; LG = LPS.bit_length() - 1; NS = 2
LUT = 0; IDT = 4096; NB = IDT + 26 * 80; LIST = NB + 256; MB = LIST + 8192; ROW = 264; CNT = MB + 26 * ROW; ZSZ = 26 * ROW + 256
ER = CNT + 256; RING = ER + 8192; WS_ = 4160; SLOT = 4 * WS_; K2_LDS = RING + (NS + 1) * SLOT
G8 = int(OPT.get('g8', 0)); GS = (K2_LDS - NB + 255) // 256 * 256
assert K2_LDS <= 81920 and ER % 16 == 0 and LIST % 16 == 0 and MB % 16 == 0 and 4096 < ZSZ <= 8192 and ZSZ % 16 == 0

class RA:
    def __init__(s): s.n = 1
    def get(s, k=1, al=1):
        s.n = (s.n + al - 1) // al * al
        b = s.n; s.n += k; return b
R = RA()
vTA = R.get()
IX = [R.get(2, 2) for _ in range(4)]; IXE = R.get(2, 2); MQ = R.get(2, 2)
(vTC, vEA, vMT, vSA, vMA, vL1, vL2, vSV, vHC, vWF, vXA, vXR, vXI, vXO) = [R.get() for _ in range(14)]
SEG = R.get(4, 4); PT = R.get(4, 4)
GV = R.get(64, 4); ACC = R.get(64, 4)
TF = R.get(16, 4); EF = R.get(4, 4); SF = R.get(8, 4); WC = R.get(4, 4); T0 = R.get(8, 4); AF = R.get(16, 4); SEL = R.get(8, 4)
NVGPR = R.n
assert NVGPR <= 255, NVGPR
REC = GV; RANK = GV + 32; AD = GV + 48
sX, sE, sW, sO, sT = 8, 12, 16, 20, 96
sWAVE, sBASE, sMR, sME, sCNT, sNT, sRS, sLIM, sFIRST, sMORE, sDS, sT0, sT1, sEPS, s80, sMET = range(24, 40)
sHM, sSV, sWF, sS0 = 42, 44, 52, 54
sK = 56
sG = 95
def addg(v):
    if G8: o(f"v_add_u32 v{v}, s{sG}, v{v}")
def saddg(r):
    if G8: o(f"s_add_u32 s{r}, s{r}, s{sG}")

def ldt(i): return f"buffer_load_dwordx4 {vr(IX[i],2)}, s[{sT}:{sT+3}], 0 idxen offen {OPT.get('tpol', '').replace('+', ' ')} lds".replace("  ", " ")
def lde(): return f"buffer_load_dwordx4 {vr(IXE,2)}, s[{sE}:{sE+3}], 0 idxen offen {OPT.get('epol', '').replace('+', ' ')} lds".replace("  ", " ")
def loff(u): return (u & 1) * 4096 + (u >> 1) * 256
def nextslot(r): return [f"s_add_u32 s{r}, s{r}, {SLOT}", f"s_cmp_eq_u32 s{r}, {NS*SLOT}", f"s_cselect_b32 s{r}, 0, s{r}"]

def vstream(Gc, Vc):
    A = []
    for p in range(0, 22, 2):
        if p < 16: A += [(f"v_exp_f32 v{Gc+p}, v{Gc+p}", 8), (f"v_exp_f32 v{Gc+p+1}, v{Gc+p+1}", 8)]
        q = p - 2
        if 0 <= q < 16:
            if 'a' in OPT.get('pk', ''): A += [(f"v_pk_add_f32 {vr(Gc+q,2)}, {vr(Gc+q,2)}, 1.0 op_sel_hi:[1,0]", 4)]
            else: A += [(f"v_add_f32 v{Gc+q}, 1.0, v{Gc+q}", 4), (f"v_add_f32 v{Gc+q+1}, 1.0, v{Gc+q+1}", 4)]
            A += [(f"v_rcp_f32 v{Gc+q}, v{Gc+q}", 8), (f"v_rcp_f32 v{Gc+q+1}, v{Gc+q+1}", 8)]
        q = p - 4
        if 0 <= q < 16 and 'm' in OPT.get('pk', ''): A += [(f"v_pk_mul_f32 {vr(Vc+q,2)}, {vr(Gc+q,2)}, {vr(Vc+q,2)}", 4)]
        elif 0 <= q < 16: A += [(f"v_mul_f32 v{Vc+q}, v{Gc+q}, v{Vc+q}", 4), (f"v_mul_f32 v{Vc+q+1}, v{Gc+q+1}, v{Vc+q+1}", 4)]
        q = p - 6
        if 0 <= q < 16: A += [(f"v_cvt_pk_bf16_f32 v{Gc+q//2}, v{Gc+q}, v{Gc+q+1}", 4), (f"v_cvt_pk_bf16_f32 v{Vc+q//2}, v{Vc+q}, v{Vc+q+1}", 4)]
    return A
def zphase(P, p):
    d = ACC + 32 * p
    return [m32(d, P, T0, d), m32(d+16, P+16, T0, d+16), m32(d, P+4, T0+4, d), m32(d+16, P+20, T0+4, d+16)]

HEAD = {}
def body(b, peel=False):
    p = b % 2
    Gn = GV + 32 * p; Vn = Gn + 16; Gc = GV + 32 * (1 - p); Vc = Gc + 16; af = AF + 8 * p
    ne = sum(1 for k in range(NS - 1) if (b - k) % 4 == 0) + (1 if (b - (NS - 1)) % 4 == 0 else 0)
    vmw = 4 * (NS - 1) + ne
    z = zphase(Gn, p)
    def dma(i): return [f"s_add_u32 m0, s{sMR}, {p*SLOT + i*1040}", None, ldt(i), f"ds_read_u16 v{IX[i]}, v{vL1} offset:{loff(b+NS+1)+64*i}"]
    top = ["s_waitcnt vmcnt(8) lgkmcnt(0)", "s_barrier"] if b == 3 else ["s_waitcnt lgkmcnt(0)"]
    if G8 and OPT.get('sp', '2103') != '0': top.append(f"s_setprio {OPT.get('sp', '2103')[b]}")
    if G8 and OPT.get('bar2') and b == 1: top.insert(1, "s_barrier")
    seq = []
    seq.append([z[0], [], [f"v_mad_u32_u24 v{vSV}, v{vSV}, s{s80}, v{vHC}"]])
    seq.append([z[1], [f"ds_read_b128 {vr(SF,4)}, v{vSV}", f"ds_read_b128 {vr(SF+4,4)}, v{vSV} offset:32"], []])
    seq.append([z[2], [f"ds_read_u8 v{vSV}, v{vSA} offset:{loff(b+1)}"], []])
    seq.append([z[3], [f"s_sub_u32 s{sCNT}, s{sCNT}, 1", f"s_cbranch_scc1 TAIL{p}", f"ENT{b}:"], []])
    seq.append([m32(Gn, TF, SEL, None), [f"ds_read_b128 {vr(T0,4)}, v{MQ}"], [f"v_and_b32 v{IXE}, 0x7ffff, v{IXE}"] if b == 0 else []])
    seq.append([m32(Gn, TF+4, SEL+4, Gn), [f"ds_read_b128 {vr(T0+4,4)}, v{MQ+1}"], [f"v_xor_b32 v{vEA}, v{vEA}, v{vMT}"] if b == 3 else []])
    seq.append([m32(Gn, EF, WC, Gn), [f"ds_read_b128 {vr(EF,4)}, v{vEA} offset:{(b+1)%4*1024}", f"ds_read_u16 v{MQ}, v{vMA} offset:{b*8}",
                f"ds_read_u16 v{MQ+1}, v{vMA} offset:{b*8+2}"], []])
    seq.append([m32(Vn, TF+8, SEL, None), [f"ds_read_b32 v{IXE}, v{vL2}"] if b == 3 else [], []])
    seq.append([m32(Vn, TF+12, SEL+4, Vn), ["s_waitcnt lgkmcnt(S)"], []])
    seq.append([m32(Gn, SF, af, Gn), [f"s_waitcnt vmcnt({vmw})"], []])
    seq.append([m32(Gn, SF+4, af+4, Gn), [f"ds_read_b128 {vr(TF+4*j,4)}, v{vTA} offset:{(1-p)*SLOT+16*j}" for j in range(4)],
                [f"v_add_u32 v{r}, 0x200, v{r}" for r in (vSA, vL1, vL2)] + [f"v_add_u32 v{vMA}, 32, v{vMA}"] if b == 3 else []])
    dp = [int(c) for c in OPT.get('dp', '03589')]
    for i in range(4): seq[dp[i]][1] = seq[dp[i]][1] + dma(i)
    if b == 0: seq[dp[4]][1] = seq[dp[4]][1] + [f"s_mov_b32 m0, s{sME}", None, lde(), f"s_xor_b32 s{sME}, s{sME}, s{sMET}"]
    A = [] if peel else vstream(Gc, Vc)
    wt = [float(x) for x in OPT.get('wt', '1,1,1,1,1,1,1,1,1,1,1.6').split(',')]
    tot = sum(c for _, c in A); out = list(top); ai = 0; acc = 0; budget = 0
    for i, (m, ex, xv) in enumerate(seq):
        budget += tot * wt[i] / sum(wt)
        g = []
        while ai < len(A) and acc + A[ai][1] / 2 <= budget + 0.01:
            g.append(A[ai][0]); acc += A[ai][1]; ai += 1
        if i == 3 and not peel: HEAD[b] = ai
        if not (peel and i < 4): out.append(m)
        g = xv + g
        last = [x for x in ex if x and (x.startswith("s_waitcnt") or x.startswith("s_cbranch") or x.endswith(":") or x.startswith("s_sub"))]
        ex = [x for x in ex if x not in last]
        if peel: last = [x for x in last if x.startswith("s_waitcnt")]
        first = True
        for x in ex:
            if x is None:
                continue
            if not first and g: out.append(g.pop(0))
            elif not first and peel and x.startswith("buffer"): out.append("s_nop 0")
            out.append(x); first = False
        out += g + last
    assert ai == len(A)
    i0 = max(i for i, x in enumerate(out) if x.startswith(f"ds_read_b128 {vr(SF+4,4)}")); i1 = out.index("s_waitcnt lgkmcnt(S)")
    out[i1] = f"s_waitcnt lgkmcnt({sum(1 for x in out[i0+1:i1] if x.startswith('ds_'))})"
    for i, x in enumerate(out):
        if x.startswith("buffer_load"): assert not out[i-1].split()[1].startswith("m0"), (out[i-1], x)
    if OPT.get('fakec'):
        n2 = []
        for x in out:
            if x.startswith("v_mfma") and (f", {vr(SEL,4)}," in x or f", {vr(SEL+4,4)}," in x):
                j = (int(re.findall(r"v\[(\d+):", x)[1]) - TF)
                n2 += [f"v_lshlrev_b32 v{Vn+j+k}, 16, v{TF+j+k}" for k in range(4)]
            elif x == m32(Gn, EF, WC, Gn): n2.append(m32(Gn, EF, WC, TF))
            elif x.startswith("ds_read_b128") and f"v{vTA} " in x:
                j = int(re.findall(r"v\[(\d+):", x)[0]) - TF
                n2 += [f"ds_read2st64_b32 {vr(TF+j+2*k,2)}, v{vTC} offset0:{(1-p)*65+j+2*k} offset1:{(1-p)*65+j+2*k+1}" for k in range(2)]
            else: n2.append(x)
        out = n2
    if OPT.get('notrans'): out = [x.replace("v_exp_f32", "v_mov_b32").replace("v_rcp_f32", "v_mov_b32") for x in out]
    if OPT.get('noval'): out = ["s_nop 0" if (x.startswith("v_exp") or x.startswith("v_rcp")) else x for x in out if not (x.startswith("v_add_f32") or x.startswith("v_mul_f32") or x.startswith("v_cvt"))]
    if OPT.get('skel'):
        n2 = []
        for x in out:
            if x.startswith(("v_mfma", "v_exp", "v_rcp", "v_add_f32", "v_mul_f32", "v_cvt", "ds_read_b128")): continue
            if x.startswith("buffer_load"): n2.append("s_nop 0")
            if OPT['skel'] != '1' and x.startswith("s_waitcnt vmcnt") and "lgkm" not in x: x = f"s_waitcnt vmcnt({OPT['skel']})"
            if OPT['skel'] != '1' and x.startswith("s_waitcnt vmcnt(8) lgkm"): x = f"s_waitcnt vmcnt({max(8, int(OPT['skel']))}) lgkmcnt(0)"
            n2.append(x)
        out = n2
    if OPT.get('nodma'): out = [x for x in out if 'buffer_load' not in x]
    if OPT.get('noe'): out = [x for x in out if f"s[{sE}:{sE+3}]" not in x]
    return out

def emit(lst):
    for it in lst:
        if it.endswith(':'): lab(it[:-1])
        else: o(it)

def masks(tmp):
    a, b_, c = tmp
    o(f"v_and_b32 v{a}, {LPS-1}, v0"); o(f"v_lshlrev_b32 v{a}, 1, v{a}"); o(f"v_mov_b32 v{c}, 0")
    for i in range(4):
        o(f"v_lshrrev_b32 v{b_}, 19, v{SEG+i}"); o(f"v_max_u32 v{c}, v{c}, v{b_}")
        o(f"v_min_u32 v{b_}, s{sLIM}, v{b_}"); o(f"v_sub_u32 v{b_}, v{b_}, v{a}")
        for j, k in ((0, 2*i), (1, 2*i+1), (2*LPS, 8+2*i), (2*LPS+1, 9+2*i)): o(f"v_cmp_lt_i32 s[{sK+2*k}:{sK+2*k+1}], {j}, v{b_}")
    o(f"v_cmp_lt_u32 vcc, s{sLIM}, v{c}")
    o(f"s_or_b64 s[{sSV}:{sSV+1}], s[{sK+16}:{sK+17}], s[{sK+20}:{sK+21}]"); o(f"s_or_b64 s[{sHM}:{sHM+1}], s[{sK+24}:{sK+25}], s[{sK+28}:{sK+29}]")
    o(f"s_or_b64 s[{sSV}:{sSV+1}], s[{sSV}:{sSV+1}], s[{sHM}:{sHM+1}]")
    o(f"v_mov_b32 v{b_}, {CNT-4}"); addg(b_)
    o("s_mov_b64 exec, vcc"); o(f"ds_write_b32 v{b_}, v{b_}"); o("s_mov_b64 exec, -1")

def interleave(mf, other, per):
    other = list(other)
    for m in mf:
        o(m)
        for _ in range(per):
            if other: o(other.pop(0))
    for x in other: o(x)
def capture(fn):
    n = len(L); fn(); r = [x.strip() for x in L[n:]]; del L[n:]; return r
def wload(dst, off):
    r = []
    for s in range(8):
        if s % 4 == 0: r.append(f"s_add_u32 s{sT0}, s{sWF}, {off + s*1024:#x}")
        r.append(f"buffer_load_dwordx4 {vr(dst+4*s,4)}, v{vWF}, s[{sW}:{sW+3}], s{sT0} offen offset:{(s%4)*1024}")
    return r
def xblk(base, pair):
    o(f"v_mov_b32 v{pair+1}, v{vXO}")
    for mt in range(2):
        for a in range(2):
            o(f"s_add_u32 m0, s{base}, {(2*mt+a)*1040}")
            o(f"v_cmp_gt_u32 vcc, {(NA if mt == 0 else RN-NA) - 2*a}, v{vXI}")
            o(f"s_add_u32 s{sT0}, s{sBASE}, {NA*mt + 2*a}"); o(f"v_add_u32 v{pair}, s{sT0}, v{vXI}")
            o(f"v_cndmask_b32 v{pair}, v{PT+3}, v{pair}, vcc")
            o(f"buffer_load_dwordx4 {vr(pair,2)}, s[{sX}:{sX+3}], 0 idxen offen lds")

def gen_k2():
    L.append(".globl gmain_kernel"); L.append(".p2align 8"); L.append(".type gmain_kernel,@function")
    lab("gmain_kernel"); VST[0] = 255
    t = [TF + i for i in range(28)]
    stamp(0)
    o("s_load_dwordx2 s[50:51], s[0:1], 88")
    o("s_load_dwordx4 s[4:7], s[0:1], 0")
    o("s_load_dwordx2 s[48:49], s[0:1], 72")
    o("s_setprio 3")
    o(f"v_lshrrev_b32 v{t[0]}, 6, v0")
    o("s_and_b32 s3, s2, 7"); o("s_lshl_b32 s3, s3, 6"); o(f"s_bfe_u32 s{sT0}, s2, 0x50003"); o(f"s_lshl1_add_u32 s3, s{sT0}, s3")
    o(f"v_readfirstlane_b32 s{sWAVE}, v{t[0]}")
    if G8:
        o("v_and_b32 v0, 0xff, v0"); o(f"s_lshr_b32 s{sT0}, s{sWAVE}, 2"); o(f"s_and_b32 s{sWAVE}, s{sWAVE}, 3"); o(f"s_mul_i32 s{sG}, s{sT0}, {GS}")
    else: o(f"s_lshr_b32 s{sT0}, s2, 8")
    o(f"s_add_u32 s3, s3, s{sT0}")
    o(f"s_cmp_ge_u32 s2, {256 if G8 else 512}"); o("s_cbranch_scc1 K2_END")
    o(f"s_cmp_ge_u32 s3, {NR}"); o("s_cbranch_scc1 K2_END")
    o(f"v_lshrrev_b32 v{t[1]}, {LG}, v0")
    o(f"s_lshl_b32 s88, s3, 2")
    o(f"v_mul_u32_u24 v{t[1]}, {CB}, v{t[1]}"); o(f"v_add_u32 v{t[1]}, s88, v{t[1]}")
    for i in range(1, 4): o(f"v_add_u32 v{t[1+i]}, {16*i*CB:#x}, v{t[1]}")
    o(f"s_mul_i32 s{sBASE}, s3, {RN}")
    o(f"v_and_b32 v{vWF}, 63, v0"); o(f"v_lshlrev_b32 v{vWF}, 4, v{vWF}")
    o(f"s_mul_i32 s{sMR}, s{sWAVE}, {WS_}"); o(f"s_add_u32 s{sMR}, s{sMR}, {RING}"); saddg(sMR)
    o(f"s_lshl_b32 s{sWF}, s{sWAVE}, 13"); o(f"s_add_u32 s{sWF}, s{sWF}, {WS_WF:#x}")
    o(f"s_mov_b32 s40, {EPS:#x}"); o("s_mov_b32 s41, s40"); o(f"s_movk_i32 s{s80}, 80")
    o(f"s_mov_b32 s{sFIRST}, 1"); o(f"s_mov_b32 s{sLIM}, {LIM}")
    o("s_cmp_ge_u32 s2, 256"); o(f"s_cselect_b32 s{sRS}, {OPT.get('bon', 0)}, 0")
    o("s_waitcnt lgkmcnt(0)"); xstamp("karg")
    srd(sW, 50, WS_SIZE)
    o(f"s_mov_b32 s{sW+2}, {NCH*CB:#x}")
    for i in range(4): o(f"buffer_load_dword v{SEG+i}, v{t[1+i]}, s[{sW}:{sW+3}], 0 offen")
    o(f"s_mov_b32 s{sW+2}, {WS_SIZE:#x}")
    srd(sX, 4, N, 256); srd(sE, 6, E, 32); srd(sO, 48, N, 256)
    o(f"s_add_u32 s50, s50, {WS_TAB:#x}"); o("s_addc_u32 s51, s51, 0")
    if SM: o(f"s_mul_i32 s{sT0}, s{sWAVE}, {SMS}"); o(f"s_add_u32 s50, s50, s{sT0}"); o("s_addc_u32 s51, s51, 0")
    srd(sT, 50, N, 128 if SM else 512)
    WAP = OPT.get('wap', 'p1'); XBP = OPT.get('xbp', 'p1'); ORD = ['start', 'rec', 'mask', 'p1', 'b1']
    def place(where):
        if where not in (WAP, XBP): return
        o(f"s_cmp_eq_u32 s{sFIRST}, 0"); o(f"s_cbranch_scc1 NOW_{where}")
        if XBP == where:
            o(f"s_add_u32 s{sNT}, s{sMR}, {NS*SLOT}")
            xblk(sNT, T0)
        if WAP == where:
            for x in wload(ACC, WF_A): o(x)
            o(f"s_lshl_b32 s{sT0}, s{sWAVE}, 10"); o(f"s_add_u32 s{sT0}, s{sT0}, {WS_WF+WF_C:#x}")
            o(f"buffer_load_dwordx4 {vr(WC,4)}, v{vWF}, s[{sW}:{sW+3}], s{sT0} offen")
        if OPT.get('otouch') and WAP == where:
            o(f"v_mov_b32 v{T0+6}, s{sBASE}"); o(f"buffer_load_dword v{SEL}, v{T0+6}, s[{sO}:{sO+3}], 0 idxen")
        lab(f"NOW_{where}")
    def cnt(lo, hi): return sum(n for p, n in ((WAP, 9), (XBP, 4)) if lo <= ORD.index(p) <= hi)
    SP = [int(x) for x in OPT.get('spf', '0,0').split(',')]
    def spref(n, first):
        for k in range(n): o(f"s_load_dword s{88 + k % 4}, s[46:47], {(first + k) * 32768:#x}")
    if sum(SP):
        o(f"s_and_b32 s{sT0}, s3, 63"); o(f"s_lshl2_add_u32 s{sT0}, s{sT0}, s{sWAVE}"); o(f"s_lshl_b32 s{sT0}, s{sT0}, 7")
        o(f"s_add_u32 s46, s50, s{sT0}"); o("s_addc_u32 s47, s51, 0")
        spref(SP[0], 0)
    lab("ROUND")
    b0, b2, b3, b4, vh = t[16:21]
    o(f"v_lshlrev_b32 v{t[11]}, 4, v0"); addg(t[11])
    for d in range(4): o(f"v_mov_b32 v{t[0]+d}, 0")
    for off in (0, ZSZ - 4096): o(f"ds_write_b128 v{t[11]}, {vr(t[0],4)} offset:{MB+off}")
    pad0 = 0xffff | (NA << 16)
    o(f"v_mov_b32 v{t[4]}, {pad0:#x}"); o(f"v_mov_b32 v{t[5]}, 0x7ffff"); o(f"v_mov_b32 v{t[6]}, {pad0:#x}"); o(f"v_mov_b32 v{t[7]}, 0x7ffff")
    o(f"ds_write_b128 v{t[11]}, {vr(t[4],4)} offset:{LIST}"); o(f"ds_write_b128 v{t[11]}, {vr(t[4],4)} offset:{LIST+4096}")
    o(f"v_and_b32 v{b0}, 1, v0"); o(f"v_bfe_u32 v{b2}, v0, 2, 1"); o(f"v_bfe_u32 v{b3}, v0, 3, 1"); o(f"v_bfe_u32 v{b4}, v0, 4, 1"); o(f"v_bfe_u32 v{vh}, v0, 5, 1")
    o(f"v_and_b32 v{t[8]}, {LPS-1}, v0"); o(f"v_lshlrev_b32 v{t[8]}, 1, v{t[8]}")
    o(f"v_mov_b32 v{t[9]}, 0x7ffffff0"); o(f"s_mov_b32 s{sT1}, 0x7ffff")
    o(f"v_and_b32 v{t[12]}, 15, v0"); o(f"v_lshlrev_b32 v{t[13]}, 3, v{b4}")
    o(f"v_xor_b32 v{vXO}, v{t[12]}, v{t[13]}"); o(f"v_lshlrev_b32 v{vXO}, 4, v{vXO}")
    o(f"s_lshr_b32 s{sT0}, s{sWAVE}, 1"); o(f"s_lshl_b32 s{sT0}, s{sT0}, 4"); o(f"s_and_b32 s{sS0}, s{sWAVE}, 1"); o(f"s_lshl2_add_u32 s{sT0}, s{sS0}, s{sT0}")
    o(f"v_lshl_add_u32 v{vXI}, v{vh}, 3, v{b4}"); o(f"v_add_u32 v{vXI}, s{sT0}, v{vXI}")
    o(f"v_mov_b32 v{PT+3}, 0xffff")
    place('start')
    xstamp("consts_done")
    o(f"s_waitcnt vmcnt({cnt(0, 0)})"); stamp(1)
    for i in range(4):
        o(f"v_lshrrev_b32 v{t[4+i]}, 19, v{SEG+i}"); o(f"v_cmp_lt_u32 vcc, v{t[8]}, v{t[4+i]}")
        o(f"v_and_b32 v{t[i]}, s{sT1}, v{SEG+i}"); o(f"v_add_lshl_u32 v{t[i]}, v{t[i]}, v{t[8]}, 3")
        o(f"v_cndmask_b32 v{t[10]}, v{t[9]}, v{t[i]}, vcc")
        o(f"buffer_load_dwordx4 {vr(REC+4*i,4)}, v{t[10]}, s[{sW}:{sW+3}], 0 offen")
    o(f"v_max3_u32 v{t[10]}, v{t[4]}, v{t[5]}, v{t[6]}"); o(f"v_max_u32 v{t[10]}, v{t[10]}, v{t[7]}")
    o(f"v_cmp_lt_u32 vcc, {2*LPS}, v{t[10]}"); o("s_cbranch_vccz REC_DONE")
    for i in range(4): o(f"buffer_load_dwordx4 {vr(REC+16+4*i,4)}, v{t[i]}, s[{sW}:{sW+3}], 0 offen offset:{16*LPS}")
    lab("REC_DONE")
    xstamp("rec_issued")
    PF = int(OPT.get('pf', 0))
    def pref():
        o(f"s_lshr_b32 s{sT0}, s3, 6"); o(f"s_mul_i32 s{sT0}, s{sT0}, {64*RN}"); o(f"s_and_b32 s{sT1}, s3, 63"); o(f"s_lshl_b32 s{sT1}, s{sT1}, 6"); o(f"s_add_u32 s{sT0}, s{sT0}, s{sT1}")
        o(f"v_lshrrev_b32 v{T0+2}, 2, v0"); o(f"v_add_u32 v{T0+2}, s{sT0}, v{T0+2}"); o(f"v_and_b32 v{T0+1}, 3, v0"); o(f"v_lshlrev_b32 v{T0+1}, 7, v{T0+1}")
        for k in range(PF):
            o(f"v_add_u32 v{T0+3}, {-512*RN}, v{T0+2}"); o(f"v_min_u32 v{T0}, v{T0+2}, v{T0+3}")
            o(f"buffer_load_dword v{SEL}, {vr(T0,2)}, s[{sT}:{sT+3}], 0 idxen offen")
            if k + 1 < PF: o(f"v_add_u32 v{T0+2}, 4096, v{T0+2}")
    PFW = OPT.get('pfw', 'rec')
    place('rec')
    if PF and PFW == 'rec': pref()
    o("s_waitcnt lgkmcnt(0)"); o("s_barrier"); stamp(2)
    spref(SP[1], SP[0])
    pp = t[14]
    o(f"v_and_b32 v{pp}, 0x13, v0"); o(f"v_lshl_or_b32 v{pp}, v{b2}, 3, v{pp}"); o(f"v_lshl_or_b32 v{pp}, v{b3}, 2, v{pp}")
    o(f"v_lshrrev_b32 v{t[12]}, 3, v{pp}"); o(f"v_lshlrev_b32 v{vTA}, 7, v{pp}"); o(f"v_lshl_add_u32 v{vTA}, v{t[12]}, 4, v{vTA}")
    o(f"v_bfe_u32 v{t[13]}, v0, 1, 1"); o(f"v_xor_b32 v{t[12]}, v{t[13]}, v{vh}"); o(f"v_lshl_add_u32 v{vTA}, v{t[12]}, 6, v{vTA}"); o(f"v_add_u32 v{vTA}, s{sMR}, v{vTA}")
    o(f"v_and_b32 v{t[12]}, 7, v0"); o(f"v_lshlrev_b32 v{t[15]}, 2, v{b4}"); o(f"v_xor_b32 v{t[15]}, v{t[15]}, v{t[12]}")
    o(f"s_mov_b32 s{sT0}, 0" if SM else f"s_lshl_b32 s{sT0}, s{sWAVE}, 7"); o(f"v_lshl_add_u32 v{IX[0]+1}, v{t[15]}, 4, s{sT0}")
    for i in range(1, 4): o(f"v_mov_b32 v{IX[i]+1}, v{IX[0]+1}")
    o(f"v_and_b32 v{vL1}, 0x38, v0"); o(f"v_add_u32 v{vL1}, {LIST}, v{vL1}"); addg(vL1)
    o(f"v_lshl_or_b32 v{t[15]}, v{b4}, 1, v{b2}"); o(f"v_mul_u32_u24 v{t[15]}, {WS_}, v{t[15]}"); o(f"v_mul_u32_u24 v{t[13]}, 1040, v{t[13]}")
    o(f"v_lshl_or_b32 v{t[21]}, v{b3}, 1, v{b0}"); o(f"v_lshl_add_u32 v{t[15]}, v{t[21]}, 8, v{t[15]}"); o(f"v_add3_u32 v{t[15]}, v{t[15]}, v{t[13]}, {'s%d' % sG if G8 else 0}")
    o(f"v_add_u32 v{t[15]}, {RING + NS*SLOT}, v{t[15]}")
    o(f"v_xor_b32 v{t[13]}, v{vh}, v{b0}"); o(f"v_lshl_add_u32 v{vXA}, v{t[13]}, 7, v{t[15]}")
    o(f"v_lshlrev_b32 v{IXE+1}, 4, v{t[13]}")
    o(f"v_bfe_u32 v{t[13]}, v0, 7, 1"); o(f"v_xor_b32 v{t[13]}, v{t[13]}, v{b0}"); o(f"v_lshl_add_u32 v{vXR}, v{t[13]}, 7, v{t[15]}")
    o(f"v_and_b32 v{t[13]}, 0x60, v0"); o(f"v_add_u32 v{vXR}, v{vXR}, v{t[13]}")
    o(f"s_lshl_b32 s{sT0}, s{sS0}, 12"); o(f"s_lshr_b32 s{sT1}, s{sWAVE}, 1"); o(f"s_lshl_b32 s{sT1}, s{sT1}, 8"); o(f"s_add_u32 s{sT0}, s{sT0}, s{sT1}"); o(f"s_add_u32 s{sT0}, s{sT0}, {LIST+4}"); saddg(sT0)
    o(f"v_bfe_u32 v{vL2}, v0, 1, 5"); o(f"v_lshl_add_u32 v{vL2}, v{vL2}, 3, s{sT0}")
    o(f"s_lshl_b32 s{sME}, s{sWAVE}, 10"); o(f"s_add_u32 s{sME}, s{sME}, {ER}"); saddg(sME)
    o(f"v_lshlrev_b32 v{vSA}, 3, v{pp}"); o(f"v_add_u32 v{vSA}, {LIST+2}, v{vSA}"); addg(vSA)
    o(f"v_lshlrev_b32 v{vHC}, 4, v{vh}"); o(f"v_add_u32 v{vHC}, {IDT}, v{vHC}")
    o(f"v_xor_b32 v{vEA}, v{b4}, v{vh}"); o(f"v_lshlrev_b32 v{vEA}, 4, v{vEA}")
    o(f"v_lshl_add_u32 v{vEA}, v{pp}, 5, v{vEA}"); o(f"v_add_u32 v{vEA}, {ER}, v{vEA}"); addg(vEA)
    o(f"v_add_u32 v{vMT}, 4096, v{vEA}"); o(f"v_xor_b32 v{vMT}, v{vMT}, v{vEA}")
    o(f"v_and_b32 v{t[13]}, 31, v0"); o(f"v_min_u32 v{t[13]}, {NA}, v{t[13]}")
    o(f"v_mul_u32_u24 v{vMA}, {ROW}, v{t[13]}"); o(f"v_lshl_add_u32 v{vMA}, v{vh}, 2, v{vMA}"); o(f"v_add_u32 v{vMA}, {MB}, v{vMA}"); addg(vMA)
    o(f"v_lshrrev_b32 v{PT+2}, 5, v0"); o(f"v_lshlrev_b32 v{PT+2}, 4, v{PT+2}"); o(f"v_lshl_add_u32 v{PT+2}, v{b3}, 2, v{PT+2}"); addg(PT+2)
    o(f"v_lshl_add_u32 v{t[12]}, v{b4}, 4, v{t[12]}"); o(f"v_lshlrev_b32 v{PT+1}, v{t[12]}, 16")
    o(f"v_and_b32 v{t[12]}, 3, v0"); o(f"v_lshl_add_u32 v{t[12]}, v{b4}, 2, v{t[12]}"); o(f"v_lshlrev_b32 v{t[12]}, v{t[12]}, 16")
    o(f"v_cmp_eq_u32 vcc, v{b3}, v{vh}"); o(f"v_lshlrev_b32 v{t[13]}, 4, v{b2}"); o("s_nop 0")
    o(f"v_cndmask_b32 v{t[12]}, 0, v{t[12]}, vcc"); o(f"v_lshlrev_b32 v{PT}, v{t[13]}, v{t[12]}")
    place('mask')
    if cnt(1, 2):
        o(f"s_cmp_eq_u32 s{sFIRST}, 1"); o("s_cbranch_scc1 REMASK"); o("s_waitcnt vmcnt(0)")
    lab("REMASK")
    masks((t[0], t[1], t[2])); xstamp("masks_done")
    a, b_, c, d_ = t[0:4]; ad = [AD + k for k in range(16)]
    o(f"v_mov_b32 v{a}, 8")
    o(f"v_lshrrev_b32 v{b_}, 2, v{vWF}"); addg(b_)
    if G8: o(f"s_lshr_b32 s{sDS}, s{sG}, 8")
    if PF and PFW == 'mask': pref()
    o(f"s_waitcnt vmcnt({cnt(1, 2)})"); xstamp("rec_landed")
    for half in range(2):
        if half: o(f"s_cmp_eq_u64 s[{sSV}:{sSV+1}], 0"); o("s_cbranch_scc1 P1_DONE"); o("s_mov_b64 exec, -1")
        for k in range(8*half, 8*half+8): o(f"v_alignbit_b32 v{ad[k]}, s{sDS}, v{REC+2*k+1}, 24" if G8 else f"v_lshrrev_b32 v{ad[k]}, 24, v{REC+2*k+1}")
        for k in range(8*half, 8*half+8):
            o(f"s_mov_b64 exec, s[{sK+2*k}:{sK+2*k+1}]")
            o(f"ds_add_rtn_u32 v{RANK+k}, v{ad[k]}, v{a} offset:{CNT}")
    lab("P1_DONE")
    o("s_mov_b64 exec, -1")
    EP = OPT.get('ep', '')
    def epf():
        o(f"s_mov_b32 s{sT1}, {int(OPT.get('epm', '0x7007ffff'), 0):#x}")
        for k in range(8):
            o(f"v_and_b32 v{T0+k}, s{sT1}, v{REC+2*k+1}"); o(f"buffer_load_dword v{SEL}, v{T0+k}, s[{sE}:{sE+3}], 0 idxen")
    if EP == 'a': epf()
    place('p1')
    if EP == 'b': epf()
    if PF and PFW == 'p1': pref()
    o("s_waitcnt lgkmcnt(0)"); xstamp("p1_done"); o("s_barrier"); xstamp("b1")
    o(f"ds_read_b32 v{c}, v{b_} offset:{CNT}")
    o(f"ds_read_b32 v{t[4]}, v{b_} offset:{CNT-4}")
    place('b1')
    o(f"v_lshlrev_b32 v{t[5]}, 12, v{vh}"); addg(t[5])
    o("s_waitcnt lgkmcnt(1)")
    o(f"v_sub_u32 v{d_}, v{t[5]}, v{c}")
    for dd in ("row_shr:1", "row_shr:2", "row_shr:4", "row_shr:8"):
        o(f"v_add_u32_dpp v{c}, v{c}, v{c} {dd} row_mask:0xf bank_mask:0xf bound_ctrl:0"); o("s_nop 1")
    o(f"v_add_u32_dpp v{c}, v{c}, v{c} row_bcast:15 row_mask:0xa bank_mask:0xf")
    o(f"v_add_u32 v{d_}, v{c}, v{d_}")
    o(f"ds_write_b32 v{b_}, v{d_} offset:{NB}")
    o(f"v_readlane_b32 s{sNT}, v{c}, 31"); o(f"v_readlane_b32 s{sCNT}, v{c}, 63")
    for k in range(8): o(f"ds_read_b32 v{ad[k]}, v{ad[k]} offset:{NB}")
    o(f"s_max_u32 s{sT0}, s{sNT}, s{sCNT}")
    o(f"s_cmp_le_u32 s{sT0}, 4096"); o("s_cbranch_scc0 TOOBIG")
    xstamp("scan_done")
    for half in range(2):
        if half:
            o(f"s_cmp_eq_u64 s[{sSV}:{sSV+1}], 0"); o("s_cbranch_scc1 P2_DONE"); o("s_mov_b64 exec, -1")
            for k in range(8, 16): o(f"ds_read_b32 v{ad[k]}, v{ad[k]} offset:{NB}")
        for k in range(8*half, 8*half+8):
            if k % 4 == 0: o(f"s_waitcnt lgkmcnt({4 - k % 8})")
            o(f"v_add_u32 v{RANK+k}, v{RANK+k}, v{ad[k]}")
        for k in range(8*half, 8*half+8):
            o(f"s_mov_b64 exec, s[{sK+2*k}:{sK+2*k+1}]")
            o(f"ds_write_b64 v{RANK+k}, {vr(REC+2*k,2)} offset:{LIST}")
    lab("P2_DONE")
    o("s_mov_b64 exec, -1")
    o(f"v_readlane_b32 s{sMORE}, v{t[4]}, 0")
    o(f"s_mov_b32 m0, s{sME}")
    o(f"s_waitcnt vmcnt({9 + (8 if EP == 'b' else 0) if ORD.index(WAP) >= ORD.index(XBP) else 0}) lgkmcnt(0)"); xstamp("p2_done"); o("s_barrier"); stamp(5)
    f = t
    def rdidx(u):
        for i in range(4): o(f"ds_read_u16 v{IX[i]}, v{vL1} offset:{loff(u)+64*i}")
    def fill(u, nxt):
        for i in range(4):
            o(f"s_add_u32 m0, s{sMR}, {u*SLOT + i*1040}"); o(f"s_waitcnt lgkmcnt(3)"); o(ldt(i))
            o(f"ds_read_u16 v{IX[i]}, v{vL1} offset:{loff(nxt)+64*i}")
    o(f"ds_read_b32 v{IXE}, v{vL2}"); rdidx(0)
    o(f"v_lshlrev_b32 v{f[9]}, 3, v0"); addg(f[9])
    o("s_waitcnt lgkmcnt(4)")
    o(f"v_and_b32 v{IXE}, 0x7ffff, v{IXE}"); o(lde())
    NFO = int(OPT.get('nfo', 2)); NFY = int(OPT.get('nfy', 2))
    def fills(lo_o, hi_o, lo_y, hi_y, tag, wait):
        if (lo_o, hi_o) == (lo_y, hi_y):
            for u in range(lo_o, hi_o): fill(u, u + 1)
            return
        o("s_cmp_ge_u32 s2, 256"); o(f"s_cbranch_scc1 {tag}_Y")
        for u in range(lo_o, hi_o): fill(u, u + 1)
        if wait: o(f"s_waitcnt vmcnt({2+4*hi_o})")
        o(f"s_branch {tag}_D")
        lab(f"{tag}_Y")
        for u in range(lo_y, hi_y): fill(u, u + 1)
        if wait: o(f"s_waitcnt vmcnt({2+4*hi_y})")
        lab(f"{tag}_D")
    fills(0, NFO, 0, NFY, "FA", True)
    for k in range(4): o(f"ds_read_u8 v{f[12+k]}, v{f[9]} offset:{LIST+2+k*2048}")
    o(f"ds_read_b32 v{IXE}, v{vL2} offset:512"); o(f"ds_read_u8 v{vSV}, v{vSA}")
    xstamp("fill_issued")
    def ctrl():
        o(f"s_movk_i32 s{sS0}, {ROW}")
        for k in range(4):
            o(f"v_cmp_gt_u32 vcc, {NA}, v{f[12+k]}"); o(f"v_mad_u32_u24 v{f[0]}, v{f[12+k]}, s{sS0}, v{PT+2}"); o("s_nop 0")
            o(f"v_cndmask_b32 v{f[1]}, 0, v{PT+1}, vcc")
            o(f"ds_or_b32 v{f[0]}, v{f[1]} offset:{MB + (k&1)*128 + (k>>1)*8}")
        o(f"s_add_u32 s{sNT}, s{sNT}, 255"); o(f"s_lshr_b32 s{sNT}, s{sNT}, 8"); o(f"s_lshl1_add_u32 s{sNT}, s{sNT}, -1")
        o(f"s_add_u32 s{sCNT}, s{sCNT}, 255"); o(f"s_lshr_b32 s{sCNT}, s{sCNT}, 8"); o(f"s_lshl_b32 s{sCNT}, s{sCNT}, 1")
        o(f"s_max_i32 s{sNT}, s{sNT}, s{sCNT}"); o(f"s_max_i32 s{sNT}, s{sNT}, 2"); o(f"s_sub_u32 s{sCNT}, s{sNT}, 2")
        o(f"s_add_u32 s{sMET}, s{sME}, 4096"); o(f"s_xor_b32 s{sMET}, s{sMET}, s{sME}"); o(f"s_add_u32 s{sME}, s{sME}, 4096")
        o(f"v_add_u32 v{vL2}, 0x400, v{vL2}")
    def lut():
        q = T0
        for d in range(4):
            o(f"v_bfe_u32 v{q+d}, v0, {2*d}, 2"); o(f"v_mul_u32_u24 v{q+d}, 0x8001, v{q+d}")
            o(f"v_and_b32 v{q+d}, 0x10001, v{q+d}"); o(f"v_mul_u32_u24 v{q+d}, 0x3f80, v{q+d}")
        o(f"v_lshlrev_b32 v{q+4}, 4, v0"); o(f"ds_write_b128 v{q+4}, {vr(q,4)} offset:{LUT}")
        o(f"v_lshrrev_b32 v{q}, 3, v0"); o(f"v_and_b32 v{q+1}, 7, v0")
        o(f"v_bfe_u32 v{q+2}, v0, 5, 1"); o(f"v_bfe_u32 v{q+3}, v0, 6, 1"); o(f"v_lshl_or_b32 v{q+2}, v{q+2}, 1, v{q+3}")
        o(f"v_lshrrev_b32 v{q+3}, 7, v0"); o(f"v_lshl_or_b32 v{q+2}, v{q+3}, 2, v{q+2}")
        o(f"v_cmp_eq_u32 vcc, v{q+2}, v{q+1}"); o(f"v_cmp_gt_u32 s[{sHM}:{sHM+1}], {NA}, v{q}"); o(f"v_mov_b32 v{q+6}, 0x3f80"); o(f"v_mov_b32 v{q+7}, 0")
        o(f"s_and_b64 vcc, vcc, s[{sHM}:{sHM+1}]")
        o(f"v_and_b32 v{q+2}, 3, v{q}"); o(f"v_lshlrev_b32 v{q+2}, 4, v{q+2}"); o(f"v_cndmask_b32 v{q+6}, 0, v{q+6}, vcc")
        o(f"v_lshlrev_b64 {vr(q+6,2)}, v{q+2}, {vr(q+6,2)}")
        o(f"v_min_u32 v{q}, {NA}, v{q}"); o(f"v_mul_u32_u24 v{q}, 80, v{q}"); o(f"v_lshl_add_u32 v{q}, v{q+1}, 3, v{q}")
        o(f"ds_write_b64 v{q}, {vr(q+6,2)} offset:{IDT}")
    o(f"s_cmp_eq_u32 s{sFIRST}, 1"); o("s_cbranch_scc1 G1")
    o("s_waitcnt lgkmcnt(0)")
    ctrl()
    o("s_branch G1D")
    lab("G1")
    for mt in range(2):
        for s in range(8): o(f"ds_read_b128 {vr(GV+32*mt+4*s,4)}, v{vXA} offset:{mt*2080 + 16*s}")
        if mt == 0: o("s_waitcnt lgkmcnt(8)")
    lt = capture(lut); ct = capture(ctrl)
    for x in lt[:18]: o(x)
    o(f"s_waitcnt vmcnt({4*max(NFO, NFY)+2+(8 if EP == 'b' else 0)}) lgkmcnt(9)")
    acc = [ACC + 32, ACC + 48]
    interleave([m32(acc[0], GV+4*s, ACC+4*s, None if s == 0 else acc[0]) for s in range(8)], lt[18:] + ct[:16], 5)
    o("s_waitcnt lgkmcnt(5)")
    def cv(mt): return [f"v_cvt_pk_bf16_f32 v{AF+8*mt+r//2}, v{acc[mt]+r}, v{acc[mt]+r+1}" for r in range(0, 16, 2)]
    interleave([m32(acc[1], GV+32+4*s, ACC+4*s, None if s == 0 else acc[1]) for s in range(8)],
               ct[16:] + cv(0) + [f"v_mov_b64 {vr(acc[0]+r,2)}, s[40:41]" for r in range(0, 16, 2)], 5)
    for r in range(0, 32, 2): o(f"v_mov_b64 {vr(ACC+r,2)}, {'s[40:41]' if r < 16 else 0}")
    for x in cv(1): o(x)
    for r in range(0, 16, 2): o(f"v_mov_b64 {vr(acc[1]+r,2)}, 0")
    if STAMP:
        o("s_getreg_b32 s94, hwreg(HW_REG_HW_ID)"); o("s_getreg_b32 s100, hwreg(HW_REG_XCC_ID)"); o("s_and_b32 s94, s94, 0xffff"); o("s_lshl_b32 s100, s100, 16"); o("s_or_b32 s94, s94, s100"); o(f"v_writelane_b32 v{VST[0]}, s94, 3")
    lab("G1D")
    o(f"v_and_b32 v{MQ}, 0xffff, v{PT}"); o(f"v_lshrrev_b32 v{MQ+1}, 16, v{PT}")
    xstamp("g1_done"); stamp(4)
    fills(NFO, NS, NFY, NS, "FB", False)
    o(f"s_waitcnt vmcnt({4*(NS-1)}) lgkmcnt(0)"); xstamp("t0_landed"); o("s_barrier")
    o(f"ds_read_b128 {vr(SEL,4)}, v{MQ}"); o(f"ds_read_b128 {vr(SEL+4,4)}, v{MQ+1}")
    o(f"ds_read_b128 {vr(EF,4)}, v{vEA}")
    for j in range(4): o(f"ds_read_b128 {vr(TF+4*j,4)}, v{vTA} offset:{16*j}")
    o(f"s_setprio {OPT.get('lp', 2)}")
    if OPT.get('young'):
        o("s_cmp_lt_u32 s2, 256"); o("s_cbranch_scc1 OLD"); o(f"s_setprio {OPT['young']}"); lab("OLD")
    if OPT.get('fakec'): o(f"v_lshrrev_b32 v{vTC}, 2, v{vWF}"); o(f"v_add_u32 v{vTC}, s{sMR}, v{vTC}")
    stamp(6); stamp(8, "s_memtime")
    bodies = [body(b) for b in range(4)]
    if not OPT.get('skel') and not OPT.get('noval') and not OPT.get('fakec'): check_hazards(sum(bodies, []) + ["s_branch LOOP"])
    emit(body(0, peel=True))
    b1 = bodies[1][:bodies[1].index("ENT1:")]
    o("s_nop 7")
    emit([x for x in b1 if not x.startswith(("v_mfma", "s_sub", "s_cbranch"))])
    o("s_branch ENT1")
    lab("TOOBIG")
    o(f"s_mov_b32 s{sLIM}, {LOWLIM}"); o(f"v_mov_b32 v{a}, 0")
    o("s_waitcnt lgkmcnt(0)"); o("s_barrier")
    o(f"ds_write_b32 v{b_}, v{a} offset:{CNT}")
    o("s_waitcnt lgkmcnt(0)"); o("s_barrier")
    o("s_branch REMASK")
    lab("LOOP")
    emit(sum(bodies, []))
    if OPT.get('pp', '99,8,4') != '0' and not G8:
        th = [int(x) for x in OPT.get('pp', '99,8,4').split(',')]
        o(f"s_add_u32 s{sT0}, s{sCNT}, s{sRS}")
        for k, v in enumerate(th):
            if v < 99: o(f"s_cmp_lt_u32 s{sT0}, {v}"); o("s_cbranch_scc0 LOOP"); o(f"s_setprio {2-k}")
    o("s_branch LOOP")
    assert len(set(HEAD.values())) == 1
    WU = TF; x = AF
    def fin(p):
        d = ACC + 32 * p; r = []
        for k in range(16): r.append(f"v_rcp_f32 v{d+k}, v{d+k}")
        for k in range(16): r.append(f"v_mul_f32 v{d+16+k}, v{d+k}, v{d+16+k}")
        return r
    def unp(p): return sum(([f"v_lshlrev_b32 v{ACC+32*p+2*k}, 16, v{x+8*p+k}", f"v_and_b32 v{ACC+32*p+2*k+1}, s{sT1}, v{x+8*p+k}"] for k in range(8)), [])
    def post(p):
        r = []
        for k in range(8):
            z = ACC + 32*p + 16 + 2*k
            r += [f"v_max_f32 v{z}, 0, v{z}", f"v_max_f32 v{z+1}, 0, v{z+1}", f"v_add_f32 v{z}, v{z}, v{z-16}", f"v_add_f32 v{z+1}, v{z+1}, v{z-15}",
                  f"v_cvt_pk_bf16_f32 v{x+8*p+k}, v{z}, v{z+1}"]
        return r
    def st(p): return [f"s_mov_b64 exec, {((1 << (NA - p)) - 1):#x}", f"s_mov_b32 exec_hi, exec_lo"] + \
        [f"buffer_store_dwordx4 {vr(x+8*p+4*k,4)}, {vr(IX[p],2)}, s[{sO}:{sO+3}], 0 idxen offen offset:{16*k} {OPT.get('outpol', '').replace('+', ' ')}" for k in range(2)] + ["s_mov_b64 exec, -1"]
    assert RN - NA == NA - 1
    CO = int(OPT.get('co', 0))
    if CO:
        def st(p): return [f"s_mov_b64 exec, {((1 << (NA - p)) - 1):#x}", f"s_mov_b32 exec_hi, exec_lo"] + \
            [f"ds_write_b128 v{IX[2]}, {vr(x+8*p+4*k,4)} offset:{RING + p*NA*272 + 16*k}" for k in range(2)] + ["s_mov_b64 exec, -1"]
    for p in (1, 0):
        q = 1 - p; Gc = GV + 32 * q
        lab(f"TAIL{p}")
        stamp(7); stamp(11, "s_memtime")
        if STAMP: o(f"v_writelane_b32 v{VST[0]}, s{sNT}, 12")
        o(f"ds_read_b128 {vr(T0,4)}, v{MQ}"); o(f"ds_read_b128 {vr(T0+4,4)}, v{MQ+1}")
        o(f"s_cmp_lg_u32 s{sMORE}, 0"); o(f"s_cbranch_scc1 TAILM{p}")
        o("s_waitcnt lgkmcnt(0)")
        for ins in wload(WU, WF_U): o(ins)
        for s in range(8): o(f"ds_read_b128 {vr(GV+32*p+4*s,4)}, v{vXA} offset:{p*2080+16*s}")
        for mt in range(2):
            for k in range(2): o(f"ds_read_b128 {vr(x+8*mt+4*k,4)}, v{vXR} offset:{mt*2080+16*k}")
        o(f"v_and_b32 v{IX[0]}, 31, v0"); o(f"v_and_b32 v{IX[0]+1}, 0xe0, v0"); o(f"v_add_u32 v{IX[0]}, s{sBASE}, v{IX[0]}")
        o(f"v_add_u32 v{IX[1]}, {NA}, v{IX[0]}"); o(f"v_mov_b32 v{IX[1]+1}, v{IX[0]+1}")
        if CO:
            o(f"v_and_b32 v{IX[2]}, 31, v0"); o(f"v_mul_u32_u24 v{IX[2]}, 272, v{IX[2]}"); o(f"v_add_u32 v{IX[2]}, v{IX[2]}, v{IX[0]+1}")
            o(f"v_lshrrev_b32 v{IX[0]}, 4, v0"); o(f"v_and_b32 v{IX[0]+1}, 0xf0, v{vWF}")
            o(f"v_mul_u32_u24 v{IX[3]}, 272, v{IX[0]}"); o(f"v_add_u32 v{IX[3]}, v{IX[3]}, v{IX[0]+1}"); o(f"v_add_u32 v{IX[0]}, s{sBASE}, v{IX[0]}")
        o(f"s_mov_b32 s{sT1}, 0xffff0000")
        vs = [i for i, _ in vstream(Gc, Gc + 16)[HEAD[0]:]]
        for ins in vs: o(ins)
        o("s_nop 0")
        interleave(zphase(Gc, q), fin(p), 4)
        for s in range(8): o(f"ds_read_b128 {vr(Gc+4*s,4)}, v{vXA} offset:{q*2080+16*s}")
        o("s_waitcnt vmcnt(0) lgkmcnt(8)")
        interleave([m32(ACC+32*p+16, WU+4*s, GV+32*p+4*s, ACC+32*p+16) for s in range(8)], fin(q), 4)
        o("s_waitcnt lgkmcnt(0)"); o("s_barrier" if CO else "s_nop 0")
        interleave([m32(ACC+32*q+16, WU+4*s, Gc+4*s, ACC+32*q+16) for s in range(8)], unp(p) + post(p) + unp(q), 7)
        for ins in st(p) + post(q) + st(q): o(ins)
        if p == 1: o("s_branch K2_FIN")
    lab("K2_FIN")
    if CO:
        o("v_cmp_gt_u32 vcc, 16, v0")
        o("s_waitcnt lgkmcnt(0)"); o("s_barrier")
        for k in range(4): o(f"ds_read_b128 {vr(GV+4*k,4)}, v{IX[3]} offset:{RING + k*16*272}")
        for k in range(4):
            if k == 3: o(f"s_and_saveexec_b64 s[{sSV}:{sSV+1}], vcc"); o("s_cbranch_execz K2_OUT")
            o(f"s_waitcnt lgkmcnt({3-k})")
            o(f"buffer_store_dwordx4 {vr(GV+4*k,4)}, {vr(IX[0],2)}, s[{sO}:{sO+3}], 0 idxen offen {OPT.get('outpol', '').replace('+', ' ')}")
            if k < 3: o(f"v_add_u32 v{IX[0]}, 16, v{IX[0]}")
        lab("K2_OUT")
    stamp_out(9, GV+32, sW, 1)
    lab("K2_END")
    o("s_endpgm")
    for p in (1, 0):
        Gc = GV + 32 * (1 - p)
        lab(f"TAILM{p}")
        for ins, _ in vstream(Gc, Gc + 16)[HEAD[0]:]: o(ins)
        o("s_waitcnt lgkmcnt(0)")
        for m in zphase(Gc, 1 - p): o(m)
        if p == 1: o("s_branch NEXTROUND")
    lab("NEXTROUND")
    for i in range(4):
        o(f"v_lshrrev_b32 v{vTC}, 19, v{SEG+i}"); o(f"v_min_u32 v{vTC}, s{sLIM}, v{vTC}")
        o(f"v_add_u32 v{SEG+i}, v{SEG+i}, v{vTC}"); o(f"v_lshlrev_b32 v{vTC}, 19, v{vTC}"); o(f"v_sub_u32 v{SEG+i}, v{SEG+i}, v{vTC}")
    o(f"s_mov_b32 s{sFIRST}, 0"); o(f"s_mov_b32 s{sLIM}, {LIM}")
    o("s_waitcnt vmcnt(0) lgkmcnt(0)"); o("s_barrier")
    o("s_branch ROUND")

def kd(name, nv, ns):
    L.append(".p2align 6")
    L.append(f".amdhsa_kernel {name}")
    for k, v in (("next_free_vgpr", nv), ("next_free_sgpr", ns), ("accum_offset", (nv + 3) // 4 * 4), ("group_segment_fixed_size", 0),
                 ("kernarg_size", 96), ("user_sgpr_count", 2), ("user_sgpr_kernarg_segment_ptr", 1), ("system_sgpr_workgroup_id_x", 1),
                 ("float_denorm_mode_32", 3)):
        L.append(f"  .amdhsa_{k} {v}")
    L.append(".end_amdhsa_kernel")

hdr = [l for l in open(f"cdna_kernels/{NAME}.s.ref").read().splitlines() if l.startswith(";") and "@launch" not in l
       and "Override launch" not in l and "grid=ceil" not in l]
L += hdr
L.append(f"; @launch kernel=gsort_kernel grid=({K1_GRID},1,1) block=(512,1,1) lds={K1_LDS}")
L.append(f"; @launch kernel=gmain_kernel grid=(256,1,1) block=(512,1,1) lds={NB+2*GS}" if G8 else f"; @launch kernel=gmain_kernel grid=(512,1,1) block=(256,1,1) lds={K2_LDS}")
L.append('.amdgcn_target "amdgcn-amd-amdhsa--gfx950"'); L.append(".text")
gen_k1a(); gen_k2()
lab("CODE_END")
L.append('.section .rodata,"a"')
kd("gsort_kernel", 256 if STAMP else 240, 102 if STAMP else 72); kd("gmain_kernel", 256 if STAMP else NVGPR, 102)
if STAMP: L.append("; STAMPS " + repr(NAMES))
open(sys.argv[1], "w").write("\n".join(L) + "\n")
print("vgprs", NVGPR, "lds", K2_LDS, "lines", len(L), file=sys.stderr)
```

```python
import sys, struct, re

N = 25000; E = 400000; RN = 49; NR = 511; CH = 1600; NCH = 250
WS_REC = 0; WS_OFF = 0x310000; OROW = 1152; WS_WF = 0x3c0000; WS_TAB = 0x400000; WS_SIZE = 0x4000000
WF_A = 0; WF_U = 0x8000; WF_C = 0x10000; NA = 25
NLOG2E = struct.unpack('<I', struct.pack('<f', -1.4426950408889634))[0]
EPS = struct.unpack('<I', struct.pack('<f', 1e-6))[0]
NAME = "standalone__edge_featured_mpnn_gatedgcn__graph"
OPT = dict(k1='a', tabpol='sc1', recpol='sc1', touch='0', sf='1', st='1', split='2', nx='2', wfpol='sc1', tsh='19', outpol='nt', bon='4', lp='3', pp='23,15,7')
OPT.update(a.split('=') for a in sys.argv[2:])
CH = 6720; NCH = 60; CHL = E - (NCH - 1) * CH; EPT = 16; LPS = 16; NG = 196
STAMP = int(OPT.get('stamp', 0))
WS_TAB = int(OPT.get('tab', hex(WS_TAB)), 0)
WS_STAMP = 0x3800000
L = []
def o(s): L.append("    " + s)
def lab(s): L.append(s + ":")
def vr(b, n): return f"v[{b}:{b+n-1}]"
VST = [60]
NAMES = {}
def stamp(i, ins="s_memrealtime", name=None):
    if STAMP:
        o(f"{ins} s[100:101]"); o("s_waitcnt lgkmcnt(0)"); o(f"v_writelane_b32 v{VST[0]}, s100, {i}")
def xstamp(name):
    if STAMP:
        NAMES[name] = 16 + len(NAMES); stamp(NAMES[name])
def stamp_out(n, reg, srdn, kern):
    if not STAMP: return
    o("s_mov_b64 exec, -1")
    stamp(n)
    o(f"v_lshlrev_b32 v{reg}, 2, v0")
    if kern and int(OPT.get('g8', 0)): o("s_and_b32 s63, s3, 1"); o("s_lshl_b32 s63, s63, 8"); o("s_add_u32 s2, s2, s63")
    o(f"s_lshl_b32 s63, s2, 11"); o(f"s_add_u32 s63, s63, {WS_STAMP + kern*0x100000:#x}")
    o(f"buffer_store_dword v{VST[0]}, v{reg}, s[{srdn}:{srdn+3}], s63 offen")
def srd(d, lo, size, stride=0):
    o(f"s_mov_b32 s{d}, s{lo}"); o(f"s_and_b32 s{d+1}, s{lo+1}, 0xffff")
    if stride: o(f"s_or_b32 s{d+1}, s{d+1}, {stride << 16:#x}")
    o(f"s_mov_b32 s{d+2}, {size:#x}"); o(f"s_mov_b32 s{d+3}, 0x20000")
def scan64(v):
    for d in ("row_shr:1", "row_shr:2", "row_shr:4", "row_shr:8"):
        o("s_nop 1"); o(f"v_add_u32_dpp v{v}, v{v}, v{v} {d} row_mask:0xf bank_mask:0xf bound_ctrl:0")
    o("s_nop 1"); o(f"v_add_u32_dpp v{v}, v{v}, v{v} row_bcast:15 row_mask:0xa bank_mask:0xf")
    o("s_nop 1"); o(f"v_add_u32_dpp v{v}, v{v}, v{v} row_bcast:31 row_mask:0xc bank_mask:0xf")

def m32(d, a, b, c): return f"v_mfma_f32_32x32x16_bf16 {vr(d,16)}, {vr(a,4)}, {vr(b,4)}, " + ("0" if c is None else vr(c,16))
K1_GRID = 256
CB = CH * 8 + 2048
K1_W = 0; K1_X = 65536; K1_S = K1_X + 4 * 8320; K1_LDS = K1_S + 8 * 4608
SM = 0
def gen_k1a():
    L.append(".globl gsort_kernel"); L.append(".p2align 8"); L.append(".type gsort_kernel,@function")
    lab("gsort_kernel"); VST[0] = 255
    pol = OPT.get('tabpol', '').replace('+', ' '); rpol = OPT.get('recpol', '').replace('+', ' ')
    stamp(0)
    o("s_load_dwordx8 s[4:11], s[0:1], 0")
    o("s_load_dwordx8 s[40:47], s[0:1], 32")
    o("s_load_dwordx2 s[48:49], s[0:1], 64")
    o("s_load_dwordx2 s[12:13], s[0:1], 88")
    o("v_lshrrev_b32 v2, 6, v0"); o("v_lshlrev_b32 v40, 4, v0")
    o("v_bfe_u32 v56, v0, 4, 1"); o("v_bfe_u32 v57, v0, 5, 1"); o("v_and_b32 v20, 63, v0")
    o("v_readfirstlane_b32 s33, v2")
    if OPT.get('sf'):
        o("s_cmp_ge_u32 s2, 256"); o("s_cbranch_scc1 K1_END")
        o("s_add_u32 s2, s2, 192"); o("s_and_b32 s2, s2, 255")
    o(f"s_cmp_ge_u32 s2, {NG}"); o("s_cbranch_scc1 K1_OTHER")
    o("s_lshr_b32 s35, s2, 3")
    o("s_and_b32 s36, s2, 7"); o("s_min_u32 s14, s36, 4"); o("s_mul_i32 s36, s36, 24"); o("s_add_u32 s36, s36, s14"); o("s_add_u32 s36, s36, s35")
    o("s_lshl_b32 s37, s36, 7")
    o("v_bfe_u32 v43, v0, 4, 2"); o("v_lshlrev_b32 v43, 6, v43"); o("v_xor_b32 v43, v43, v40")
    o("v_lshl_add_u32 v54, v57, 3, v56")
    o("s_lshr_b32 s32, s33, 2"); o("s_lshl_b32 s14, s32, 4"); o("s_and_b32 s30, s33, 3"); o("s_lshl1_add_u32 s14, s30, s14"); o("s_add_u32 s14, s14, s37")
    o("v_add_u32 v54, s14, v54")
    o("v_and_b32 v55, 15, v0"); o("v_lshlrev_b32 v59, 3, v56"); o("v_xor_b32 v55, v55, v59"); o("v_lshlrev_b32 v55, 4, v55")
    o("s_mul_i32 s38, s33, 1040"); o(f"s_add_u32 s38, s38, {K1_X}")
    o("s_lshl_b32 s39, s33, 10")
    o("s_mov_b32 m0, s38")
    o("s_waitcnt lgkmcnt(0)")
    srd(60, 4, N, 256)
    def xd(t):
        if t: o(f"s_add_u32 m0, s38, {t*8320}"); o("v_add_u32 v54, 32, v54")
        o("buffer_load_dwordx4 v[54:55], s[60:63], 0 idxen offen lds")
    def wd(m):
        for i in range(4):
            o(f"s_add_u32 m0, s39, {K1_W+m*32768+i*8192}"); o(f"s_movk_i32 s14, {i*8192}"); o(f"buffer_load_dwordx4 v43, s[{52+4*m}:{55+4*m}], s14 offen lds")
    xd(0); xd(1)
    srd(52, 42, 32768); wd(0)
    ST = int(OPT.get('st', 0))
    if ST: o("s_barrier")
    srd(56, 48, 32768)
    if ST < 2: wd(1)
    if not ST: xd(2); xd(3)
    o("v_bfe_u32 v60, v0, 2, 2"); o("v_lshl_add_u32 v61, v57, 6, v60"); o("v_xor_b32 v60, s30, v60"); o("v_lshlrev_b32 v60, 6, v60"); o("v_lshl_add_u32 v60, v61, 8, v60")
    o("v_and_b32 v61, 3, v0"); o("v_lshl_add_u32 v60, v61, 3, v60"); o("v_lshl_add_u32 v60, v56, 5, v60")
    o("v_bfe_u32 v61, v0, 1, 2"); o("v_lshl_or_b32 v61, v56, 2, v61"); o("v_mul_u32_u24 v61, 1040, v61")
    o("v_and_b32 v62, 1, v0"); o("v_bfe_u32 v63, v0, 3, 1"); o("v_lshl_or_b32 v63, v63, 1, v62"); o("v_lshl_add_u32 v61, v63, 8, v61")
    o("s_mul_i32 s14, s32, 8320"); o(f"s_add_u32 s14, s14, {K1_X}")
    o("v_xor_b32 v62, v62, v57"); o("v_lshl_add_u32 v61, v62, 7, v61"); o("v_add_u32 v61, s14, v61")
    o("s_mul_i32 s14, s33, 4608"); o(f"s_add_u32 s14, s14, {K1_S}")
    o("v_and_b32 v62, 31, v0"); o("v_mul_u32_u24 v62, 144, v62"); o("v_lshl_add_u32 v62, v57, 6, v62"); o("v_add_u32 v62, s14, v62")
    o("v_lshrrev_b32 v58, 3, v20"); o("v_and_b32 v59, 7, v0"); o("v_lshlrev_b32 v59, 4, v59")
    o("v_mul_u32_u24 v63, 144, v58"); o("v_add3_u32 v63, v63, v59, s14")
    o("s_lshl_b32 s14, s32, 5"); o("s_add_u32 s14, s14, s37"); o("s_lshl_b32 s14, s14, 9"); o("s_lshl_b32 s30, s30, 7"); o("s_add_u32 s14, s14, s30")
    o("v_lshl_add_u32 v59, v58, 9, v59"); o("v_add_u32 v59, s14, v59")
    if STAMP: srd(24, 12, WS_SIZE)
    o(f"s_add_u32 s12, s12, {WS_TAB:#x}"); o("s_addc_u32 s13, s13, 0"); srd(16, 12, N * 512)
    o(f"s_mov_b32 s15, {NLOG2E:#x}")
    WF_ = 64; XF_ = 128; AC = [160, 192]
    def trs(m):
        for s in range(8):
            for jj in range(2): o(f"ds_read_b64_tr_b16 v[{WF_+32*m+4*s+2*jj}:{WF_+32*m+4*s+2*jj+1}], v60 offset:{K1_W+m*32768+s*2048+jj*1024}")
            if m == 0: o(f"ds_read_b128 {vr(XF_+4*s,4)}, v61 offset:{16*s}")
    SPL = int(OPT.get('split', 1))
    stamp(1)
    if ST == 2: wd(1)
    o(f"s_waitcnt vmcnt({4 if ST else 6 if SPL else 0})"); o("s_barrier"); stamp(3)
    trs(0)
    if ST: xd(2); xd(3)
    if SPL:
        o("s_waitcnt lgkmcnt(12)")
        for s in range(8):
            if s == 4: o("s_waitcnt lgkmcnt(0)")
            o(m32(AC[0], WF_+4*s, XF_+4*s, None if s == 0 else AC[0]))
        o(f"s_waitcnt vmcnt({2 if SPL == 2 else 0})"); o("s_barrier")
        trs(1)
        for k in range(16): o(f"v_mul_f32 v{AC[0]+k}, s15, v{AC[0]+k}")
    else:
        trs(1)
        o("s_waitcnt lgkmcnt(15)")
        for s in range(8): o(m32(AC[0], WF_+4*s, XF_+4*s, None if s == 0 else AC[0]))
    def post(t):
        a = AC[t]; r = []
        for k in range(16): r.append(f"v_mul_f32 v{a+k}, s15, v{a+k}")
        for k in range(16): r.append(f"v_cvt_pk_bf16_f32 v{224+k}, v{a+2*k}, v{a+2*k+1}")
        r += [f"ds_write_b128 v62, {vr(224+4*c,4)} offset:{16*c}" for c in range(4)]
        r += [f"ds_read_b128 {vr(a+4*k,4)}, v63 offset:{k*8*144}" for k in range(4)]
        return r
    def stores(t):
        r = []
        for k in range(4):
            r += [f"s_waitcnt lgkmcnt({3-k})", f"buffer_store_dwordx4 {vr(AC[t]+4*k,4)}, v59, s[16:19], 0 offen {pol}", "v_add_u32 v59, 0x1000, v59"]
        return r
    o("s_waitcnt lgkmcnt(0)")
    for s in range(8):
        o(m32(AC[0]+16, WF_+32+4*s, XF_+4*s, None if s == 0 else AC[0]+16))
        if SPL < 2: o(f"ds_read_b128 {vr(XF_+4*s,4)}, v61 offset:{2*8320+16*s}")
        else: o(post(0)[16+s])
    if SPL == 2:
        o("s_waitcnt vmcnt(0)"); o("s_barrier")
        for s in range(8): o(f"ds_read_b128 {vr(XF_+4*s,4)}, v61 offset:{2*8320+16*s}")
        o("s_nop 0")
        for x in post(0)[24:]: o(x)
        o("s_waitcnt lgkmcnt(8)")
    else: o("s_waitcnt lgkmcnt(0)")
    mf = [m32(AC[1], WF_+4*s, XF_+4*s, None if s == 0 else AC[1]) for s in range(8)] + [m32(AC[1]+16, WF_+32+4*s, XF_+4*s, None if s == 0 else AC[1]+16) for s in range(8)]
    q = (post(0)[16:] + [None] * 6 if SPL < 2 else [None] * 5) + stores(0)
    q += [None] * (55 - len(q)) + post(1)[:24]
    for m in mf:
        o(m)
        for _ in range(5):
            if q:
                x = q.pop(0)
                o(x if x else "s_nop 0")
    assert not q
    o("v_add_u32 v59, 0x4000, v59"); o("s_nop 7")
    for x in post(1)[24:]: o(x)
    stamp(4)
    for x in stores(1): o(x)
    lab("K1_F")
    if STAMP: o("s_waitcnt vmcnt(0)")
    stamp_out(2, 12, 24, 0)
    lab("K1_END")
    o("s_endpgm")
    lab("K1_OTHER")
    o(f"s_sub_u32 s2, s2, {NG}")
    if OPT.get('cpf'):
        o("s_cmp_lt_u32 s33, 5"); o("s_cbranch_scc1 K1_NP")
        o("s_getpc_b64 s[70:71]"); lab("K1_PC")
        o("s_sub_u32 s70, s70, K1_PC-gsort_kernel"); o("s_subb_u32 s71, s71, 0")
        o("v_sub_u32 v236, 511, v0"); o("v_lshlrev_b32 v236, 7, v236"); o("v_min_u32 v236, CODE_END-gsort_kernel-4, v236")
        o("v_mov_b32 v237, s71"); o("v_add_co_u32 v236, vcc, s70, v236"); o("s_nop 1"); o("v_addc_co_u32 v237, vcc, 0, v237, vcc")
        o("global_load_dword v238, v[236:237], off")
        lab("K1_NP")
    D_, S_, R_, K_, P_ = 64, 80, 96, 112, 128
    o("v_lshlrev_b32 v1, 2, v0"); o("v_mov_b32 v2, 0"); o("ds_write_b32 v1, v2")
    o(f"s_mul_i32 s3, s2, {CH*4}"); o(f"s_mul_i32 s31, s2, {CB}"); o(f"s_mul_i32 s34, s2, {CH}")
    assert CH % 16 == 0 and CHL % 16 == 0 and CH // 16 <= 448
    o(f"s_movk_i32 s35, {CH}"); o(f"s_cmp_eq_u32 s2, {NCH-1}"); o(f"s_cselect_b32 s35, {CHL}, s35")
    o("v_cmp_gt_u32 vcc, s35, v40")
    o("s_lshr_b32 s36, s35, 2"); o("s_sub_u32 s36, s36, 3")
    o("s_waitcnt lgkmcnt(0)")
    srd(20, 10, E*4); srd(16, 8, E*4); srd(24, 12, WS_SIZE)
    o("s_mov_b64 s[28:29], vcc"); o("s_mov_b64 exec, vcc"); o("s_cbranch_execz K1_PREP")
    for j in range(4):
        for base, sr in ((D_, 20), (S_, 16)): o(f"buffer_load_dwordx4 {vr(base+4*j,4)}, v40, s[{sr}:{sr+3}], s3 offen")
        o("s_add_u32 s3, s3, s35")
    o("s_barrier")
    o("v_add_u32 v3, s34, v1"); o("v_mov_b32 v2, 1"); o(f"s_mov_b32 s15, {-RN}")
    def recs(lo, hi):
        for i in range(lo, hi):
            o(f"v_cmp_lt_u32 vcc, {NA-1}, v{D_+i}"); o(f"v_mul_u32_u24 v22, 83, v{S_+i}"); o("v_lshrrev_b32 v22, 16, v22")
            o(f"v_cndmask_b32 v23, 0, {NA}, vcc"); o(f"v_sub_u32 v23, v{D_+i}, v23")
            o(f"v_lshl_or_b32 v{P_+2*i}, v23, 16, v{S_+i}")
            o("v_cndmask_b32 v23, 0, 32, vcc"); o("v_or_b32 v22, v22, v23")
            o(f"v_lshl_add_u32 v{P_+1+2*i}, v22, 26, v3")
            o(f"v_add_u32 v3, {1 if i % 4 < 3 else 's36'}, v3")
    for j in range(4):
        o(f"s_waitcnt vmcnt({7 - 2*j})")
        for i in range(4*j, 4*j+4):
            o(f"v_mul_u32_u24 v{R_+i}, 21400, v{D_+i}")
            o(f"v_lshrrev_b32 v{R_+i}, 20, v{R_+i}")
            o(f"v_mad_i32_i24 v{D_+i}, v{R_+i}, s15, v{D_+i}")
            o(f"v_lshlrev_b32 v{R_+i}, 2, v{R_+i}")
            o(f"ds_add_rtn_u32 v{K_+i}, v{R_+i}, v2")
        o(f"s_waitcnt vmcnt({6 - 2*j})")
        if j < 3: recs(4*j, 4*j+4)
    stamp(1)
    lab("K1_B")
    o("s_mov_b64 exec, -1")
    o("v_lshlrev_b32 v20, 5, v20")
    o("s_waitcnt lgkmcnt(0)"); o("s_barrier"); stamp(3)
    o("ds_read_b128 v[24:27], v20"); o("ds_read_b128 v[28:31], v20 offset:16")
    recs(12, 14)
    o("s_waitcnt lgkmcnt(0)"); stamp(5)
    o("v_mov_b32 v33, v24")
    for j in range(2, 8): o(f"v_add_u32 v{32+j}, v{31+j}, v{23+j}")
    o("v_add_u32 v21, v39, v31"); o("v_mov_b32 v22, v21")
    scan64(21)
    o("v_sub_u32 v32, v21, v22")
    for j in range(1, 8): o(f"v_add_u32 v{32+j}, v32, v{32+j}")
    stamp(6)
    o("ds_write_b128 v20, v[32:35] offset:2048"); o("ds_write_b128 v20, v[36:39] offset:2064"); stamp(7)
    o("s_mov_b64 exec, s[28:29]")
    for i in range(EPT): o(f"ds_read_b32 v{R_+i}, v{R_+i} offset:2048")
    recs(14, 16); stamp(8)
    for i in range(EPT):
        if i % 4 == 0: o(f"s_waitcnt lgkmcnt(12)")
        o(f"v_add_lshl_u32 v{D_+i}, v{R_+i}, v{K_+i}, 3"); o(f"ds_write_b64 v{D_+i}, {vr(P_+2*i,2)} offset:6144")
    o("s_mov_b64 exec, -1")
    stamp(9)
    o("s_cmp_lg_u32 s33, 7"); o("s_cbranch_scc1 K1_O2")
    o("s_lshr_b32 s34, s31, 3"); o("s_add_u32 s34, s34, 256")
    for j in range(8): o(f"v_lshl_add_u32 v{24+j}, v{24+j}, 19, v{32+j}"); o(f"v_add_u32 v{24+j}, s34, v{24+j}")
    o("ds_write_b128 v20, v[24:27] offset:4096"); o("ds_write_b128 v20, v[28:31] offset:4112")
    lab("K1_O2")
    NC = (CB + 8191) // 8192
    o(f"v_cmp_gt_u32 vcc, {CB//16-512*(NC-1)}, v0"); o("v_add_u32 v41, 0x9000, v40")
    o("s_waitcnt lgkmcnt(0)"); o("s_barrier"); stamp(4)
    for j in range(NC): o(f"ds_read_b128 {vr(64+4*j,4)}, " + (f"v40 offset:{4096+8192*j}" if j < 4 else f"v41 offset:{8192*(j-4)}"))
    for j in range(NC):
        if j == NC - 1: o("s_and_saveexec_b64 s[28:29], vcc"); o("s_cbranch_execz K1_SE")
        o(f"s_waitcnt lgkmcnt({NC-1-j})")
        o(f"buffer_store_dwordx4 {vr(64+4*j,4)}, v40, s[24:27], s31 offen {rpol}"); o("s_add_u32 s31, s31, 8192")
    lab("K1_SE")
    if STAMP: o(f"s_add_u32 s2, s2, {NG}"); o("s_waitcnt vmcnt(0)"); stamp_out(2, 12, 24, 0)
    o("s_endpgm")
    lab("K1_PREP")
    o("s_barrier")
    o("s_cmp_lg_u32 s33, 7"); o("s_cbranch_scc1 K1_B")
    o("s_mov_b64 exec, -1")
    o("v_and_b32 v4, 3, v0"); o("v_bfe_u32 v5, v0, 3, 2"); o("v_lshl_or_b32 v4, v5, 2, v4")
    o("v_bfe_u32 v5, v0, 2, 1"); o("v_lshl_or_b32 v4, v5, 4, v4"); o("v_lshlrev_b32 v42, 4, v20")
    o("s_mov_b32 s70, s2"); o(f"s_add_u32 s71, s2, {NCH}"); o("s_cmp_lt_u32 s71, 68"); o("s_cselect_b32 s71, s71, s2")
    for u in range(2):
        U = 70 + u; V = 64 + 8 * u
        o(f"s_lshr_b32 s14, s{U}, 5")
        o("s_cmp_eq_u32 s14, 1"); o("s_cselect_b32 s64, s46, s40"); o("s_cselect_b32 s65, s47, s41"); o(f"s_cselect_b32 s{68+u}, 1.0, {NLOG2E:#x}")
        o("s_mov_b32 s66, 32768"); o(f"s_bfe_u32 s50, s{U}, 0x20003"); o(f"s_and_b32 s51, s{U}, 7"); o("s_mov_b32 s32, 14")
        o("s_cmp_eq_u32 s14, 2"); o("s_cselect_b32 s64, s44, s64"); o("s_cselect_b32 s65, s45, s65"); o("s_cselect_b32 s66, 4096, s66")
        o("s_cselect_b32 s50, s51, s50"); o("s_cselect_b32 s51, 0, s51"); o("s_cselect_b32 s32, 11, s32")
        o("s_and_b32 s65, s65, 0xffff"); o("s_mov_b32 s67, 0x20000")
        o("s_lshl_b32 s50, s50, 6"); o("s_lshl_b32 s51, s51, 11"); o("s_add_u32 s50, s50, s51")
        o("v_lshlrev_b32 v5, s32, v57"); o("v_lshl_add_u32 v5, v4, 1, v5"); o("v_add_u32 v5, s50, v5")
        for j in range(8): o(f"buffer_load_ushort v{V+j}, v5, s[64:67], 0 offen offset:{j*256}")
    for u in range(2):
        U = 70 + u; V = 64 + 8 * u
        o(f"s_lshl_b32 s14, s{U}, 10"); o(f"s_add_u32 s14, s14, {WS_WF:#x}")
        o(f"s_waitcnt vmcnt({8 if u == 0 else 1})")
        for j in range(8):
            o(f"v_lshlrev_b32 v{V+j}, 16, v{V+j}"); o(f"v_mul_f32 v{V+j}, s{68+u}, v{V+j}")
        for j in range(4): o(f"v_cvt_pk_bf16_f32 v{8+4*u+j}, v{V+2*j}, v{V+1+2*j}")
        o(f"buffer_store_dwordx4 {vr(8+4*u,4)}, v42, s[24:27], s14 offen " + OPT.get('wfpol', ''))
    o("s_branch K1_B")

def regs_of(tok):
    m = re.fullmatch(r"v\[(\d+):(\d+)\]", tok)
    if m: return set(range(int(m.group(1)), int(m.group(2)) + 1))
    m = re.fullmatch(r"v(\d+)", tok)
    return {int(m.group(1))} if m else set()
def check_hazards(ins):
    P = []
    for s in ins:
        if s.endswith(':'): continue
        op, _, rest = s.partition(' ')
        t = [x.strip() for x in rest.split(',')]
        t = [x.split(' ')[0] for x in t]
        if op.startswith('v_mfma'):
            P.append(('m', 12 if '32x32' in op else 8, regs_of(t[0]), regs_of(t[1]) | regs_of(t[2]), regs_of(t[3]), s))
        elif op.startswith('v_'):
            P.append(('t' if op in ('v_exp_f32', 'v_rcp_f32') else 'v', 0, regs_of(t[0]), set().union(*map(regs_of, t[1:])), set(), s))
        elif op.startswith('ds_read'):
            P.append(('d', 0, regs_of(t[0]), regs_of(t[1]), set(), s))
        elif op.startswith('buffer'):
            P.append(('d', 0, set(), regs_of(t[0]), set(), s))
        else: P.append(('s', 0, set(), set(), set(), s))
    n = len(P)
    for i, (k, w, d, ab, c, s) in enumerate(P):
        for j in range(1, 13):
            k2, w2, d2, ab2, c2, s2 = P[(i + j) % n]
            gap = j - 1
            if k == 'm':
                if k2 == 'm':
                    assert not (gap < w and d & ab2), (s, s2)
                    if d & c2 and d != c2: assert gap >= w - 2, (s, s2)
                else: assert not (gap < w and d & (d2 | ab2)), (s, s2, gap)
                if k2 in 'vt': assert not (gap < (7 if w == 12 else 3) and c & d2), (s, s2)
            if k in 'vt' and k2 == 'm': assert not (gap < 2 and d & (ab2 | c2)), (s, s2)
            if k == 't' and k2 == 'v': assert not (gap < 1 and d & ab2), (s, s2)

LOWLIM = 500 // NCH; LIM = 4 * LPS; LG = LPS.bit_length() - 1; NS = 2
LUT = 0; IDT = 4096; NB = IDT + 26 * 80; LIST = NB + 256; MB = LIST + 8192; ROW = 264; CNT = MB + 26 * ROW; ZSZ = 26 * ROW + 256
ER = CNT + 256; RING = ER + 8192; WS_ = 4160; SLOT = 4 * WS_; K2_LDS = RING + (NS + 1) * SLOT
G8 = int(OPT.get('g8', 0)); GS = (K2_LDS - NB + 255) // 256 * 256
assert K2_LDS <= 81920 and ER % 16 == 0 and LIST % 16 == 0 and MB % 16 == 0 and 4096 < ZSZ <= 8192 and ZSZ % 16 == 0

class RA:
    def __init__(s): s.n = 1
    def get(s, k=1, al=1):
        s.n = (s.n + al - 1) // al * al
        b = s.n; s.n += k; return b
R = RA()
vTA = R.get()
IX = [R.get(2, 2) for _ in range(4)]; IXE = R.get(2, 2); MQ = R.get(2, 2)
(vTC, vEA, vMT, vSA, vMA, vL1, vL2, vSV, vHC, vWF, vXA, vXR, vXI, vXO) = [R.get() for _ in range(14)]
SEG = R.get(4, 4); PT = R.get(4, 4)
GV = R.get(64, 4); ACC = R.get(64, 4)
TF = R.get(16, 4); EF = R.get(4, 4); SF = R.get(8, 4); WC = R.get(4, 4); T0 = R.get(8, 4); AF = R.get(16, 4); SEL = R.get(8, 4)
NVGPR = R.n
assert NVGPR <= 255, NVGPR
REC = GV; RANK = GV + 32; AD = GV + 48
sX, sE, sW, sO, sT = 8, 12, 16, 20, 96
sWAVE, sBASE, sMR, sME, sCNT, sNT, sRS, sLIM, sFIRST, sMORE, sDS, sT0, sT1, sEPS, s80, sMET = range(24, 40)
sHM, sSV, sWF, sS0 = 42, 44, 52, 54
sK = 56
sG = 95
def addg(v):
    if G8: o(f"v_add_u32 v{v}, s{sG}, v{v}")
def saddg(r):
    if G8: o(f"s_add_u32 s{r}, s{r}, s{sG}")

def ldt(i): return f"buffer_load_dwordx4 {vr(IX[i],2)}, s[{sT}:{sT+3}], 0 idxen offen {OPT.get('tpol', '').replace('+', ' ')} lds".replace("  ", " ")
def lde(): return f"buffer_load_dwordx4 {vr(IXE,2)}, s[{sE}:{sE+3}], 0 idxen offen {OPT.get('epol', '').replace('+', ' ')} lds".replace("  ", " ")
def loff(u): return (u & 1) * 4096 + (u >> 1) * 256
def nextslot(r): return [f"s_add_u32 s{r}, s{r}, {SLOT}", f"s_cmp_eq_u32 s{r}, {NS*SLOT}", f"s_cselect_b32 s{r}, 0, s{r}"]

def vstream(Gc, Vc):
    A = []
    for p in range(0, 22, 2):
        if p < 16: A += [(f"v_exp_f32 v{Gc+p}, v{Gc+p}", 8), (f"v_exp_f32 v{Gc+p+1}, v{Gc+p+1}", 8)]
        q = p - 2
        if 0 <= q < 16:
            if 'a' in OPT.get('pk', ''): A += [(f"v_pk_add_f32 {vr(Gc+q,2)}, {vr(Gc+q,2)}, 1.0 op_sel_hi:[1,0]", 4)]
            else: A += [(f"v_add_f32 v{Gc+q}, 1.0, v{Gc+q}", 4), (f"v_add_f32 v{Gc+q+1}, 1.0, v{Gc+q+1}", 4)]
            A += [(f"v_rcp_f32 v{Gc+q}, v{Gc+q}", 8), (f"v_rcp_f32 v{Gc+q+1}, v{Gc+q+1}", 8)]
        q = p - 4
        if 0 <= q < 16 and 'm' in OPT.get('pk', ''): A += [(f"v_pk_mul_f32 {vr(Vc+q,2)}, {vr(Gc+q,2)}, {vr(Vc+q,2)}", 4)]
        elif 0 <= q < 16: A += [(f"v_mul_f32 v{Vc+q}, v{Gc+q}, v{Vc+q}", 4), (f"v_mul_f32 v{Vc+q+1}, v{Gc+q+1}, v{Vc+q+1}", 4)]
        q = p - 6
        if 0 <= q < 16: A += [(f"v_cvt_pk_bf16_f32 v{Gc+q//2}, v{Gc+q}, v{Gc+q+1}", 4), (f"v_cvt_pk_bf16_f32 v{Vc+q//2}, v{Vc+q}, v{Vc+q+1}", 4)]
    return A
def zphase(P, p):
    d = ACC + 32 * p
    return [m32(d, P, T0, d), m32(d+16, P+16, T0, d+16), m32(d, P+4, T0+4, d), m32(d+16, P+20, T0+4, d+16)]

HEAD = {}
def body(b, peel=False):
    p = b % 2
    Gn = GV + 32 * p; Vn = Gn + 16; Gc = GV + 32 * (1 - p); Vc = Gc + 16; af = AF + 8 * p
    ne = sum(1 for k in range(NS - 1) if (b - k) % 4 == 0) + (1 if (b - (NS - 1)) % 4 == 0 else 0)
    vmw = 4 * (NS - 1) + ne
    z = zphase(Gn, p)
    def dma(i): return [f"s_add_u32 m0, s{sMR}, {p*SLOT + i*1040}", None, ldt(i), f"ds_read_u16 v{IX[i]}, v{vL1} offset:{loff(b+NS+1)+64*i}"]
    top = ["s_waitcnt vmcnt(8) lgkmcnt(0)", "s_barrier"] if b == 3 else ["s_waitcnt lgkmcnt(0)"]
    if G8 and OPT.get('sp', '2103') != '0': top.append(f"s_setprio {OPT.get('sp', '2103')[b]}")
    if G8 and OPT.get('bar2') and b == 1: top.insert(1, "s_barrier")
    seq = []
    seq.append([z[0], [], [f"v_mad_u32_u24 v{vSV}, v{vSV}, s{s80}, v{vHC}"]])
    seq.append([z[1], [f"ds_read_b128 {vr(SF,4)}, v{vSV}", f"ds_read_b128 {vr(SF+4,4)}, v{vSV} offset:32"], []])
    seq.append([z[2], [f"ds_read_u8 v{vSV}, v{vSA} offset:{loff(b+1)}"], []])
    seq.append([z[3], [f"s_sub_u32 s{sCNT}, s{sCNT}, 1", f"s_cbranch_scc1 TAIL{p}", f"ENT{b}:"], []])
    seq.append([m32(Gn, TF, SEL, None), [f"ds_read_b128 {vr(T0,4)}, v{MQ}"], [f"v_and_b32 v{IXE}, 0x7ffff, v{IXE}"] if b == 0 else []])
    seq.append([m32(Gn, TF+4, SEL+4, Gn), [f"ds_read_b128 {vr(T0+4,4)}, v{MQ+1}"], [f"v_xor_b32 v{vEA}, v{vEA}, v{vMT}"] if b == 3 else []])
    seq.append([m32(Gn, EF, WC, Gn), [f"ds_read_b128 {vr(EF,4)}, v{vEA} offset:{(b+1)%4*1024}", f"ds_read_u16 v{MQ}, v{vMA} offset:{b*8}",
                f"ds_read_u16 v{MQ+1}, v{vMA} offset:{b*8+2}"], []])
    seq.append([m32(Vn, TF+8, SEL, None), [f"ds_read_b32 v{IXE}, v{vL2}"] if b == 3 else [], []])
    seq.append([m32(Vn, TF+12, SEL+4, Vn), ["s_waitcnt lgkmcnt(S)"], []])
    seq.append([m32(Gn, SF, af, Gn), [f"s_waitcnt vmcnt({vmw})"], []])
    seq.append([m32(Gn, SF+4, af+4, Gn), [f"ds_read_b128 {vr(TF+4*j,4)}, v{vTA} offset:{(1-p)*SLOT+16*j}" for j in range(4)],
                [f"v_add_u32 v{r}, 0x200, v{r}" for r in (vSA, vL1, vL2)] + [f"v_add_u32 v{vMA}, 32, v{vMA}"] if b == 3 else []])
    dp = [int(c) for c in OPT.get('dp', '03589')]
    for i in range(4): seq[dp[i]][1] = seq[dp[i]][1] + dma(i)
    if b == 0: seq[dp[4]][1] = seq[dp[4]][1] + [f"s_mov_b32 m0, s{sME}", None, lde(), f"s_xor_b32 s{sME}, s{sME}, s{sMET}"]
    A = [] if peel else vstream(Gc, Vc)
    wt = [float(x) for x in OPT.get('wt', '1,1,1,1,1,1,1,1,1,1,1.6').split(',')]
    tot = sum(c for _, c in A); out = list(top); ai = 0; acc = 0; budget = 0
    for i, (m, ex, xv) in enumerate(seq):
        budget += tot * wt[i] / sum(wt)
        g = []
        while ai < len(A) and acc + A[ai][1] / 2 <= budget + 0.01:
            g.append(A[ai][0]); acc += A[ai][1]; ai += 1
        if i == 3 and not peel: HEAD[b] = ai
        if not (peel and i < 4): out.append(m)
        g = xv + g
        last = [x for x in ex if x and (x.startswith("s_waitcnt") or x.startswith("s_cbranch") or x.endswith(":") or x.startswith("s_sub"))]
        ex = [x for x in ex if x not in last]
        if peel: last = [x for x in last if x.startswith("s_waitcnt")]
        first = True
        for x in ex:
            if x is None:
                continue
            if not first and g: out.append(g.pop(0))
            elif not first and peel and x.startswith("buffer"): out.append("s_nop 0")
            out.append(x); first = False
        out += g + last
    assert ai == len(A)
    i0 = max(i for i, x in enumerate(out) if x.startswith(f"ds_read_b128 {vr(SF+4,4)}")); i1 = out.index("s_waitcnt lgkmcnt(S)")
    out[i1] = f"s_waitcnt lgkmcnt({sum(1 for x in out[i0+1:i1] if x.startswith('ds_'))})"
    for i, x in enumerate(out):
        if x.startswith("buffer_load"): assert not out[i-1].split()[1].startswith("m0"), (out[i-1], x)
    if OPT.get('fakec'):
        n2 = []
        for x in out:
            if x.startswith("v_mfma") and (f", {vr(SEL,4)}," in x or f", {vr(SEL+4,4)}," in x):
                j = (int(re.findall(r"v\[(\d+):", x)[1]) - TF)
                n2 += [f"v_lshlrev_b32 v{Vn+j+k}, 16, v{TF+j+k}" for k in range(4)]
            elif x == m32(Gn, EF, WC, Gn): n2.append(m32(Gn, EF, WC, TF))
            elif x.startswith("ds_read_b128") and f"v{vTA} " in x:
                j = int(re.findall(r"v\[(\d+):", x)[0]) - TF
                n2 += [f"ds_read2st64_b32 {vr(TF+j+2*k,2)}, v{vTC} offset0:{(1-p)*65+j+2*k} offset1:{(1-p)*65+j+2*k+1}" for k in range(2)]
            else: n2.append(x)
        out = n2
    if OPT.get('notrans'): out = [x.replace("v_exp_f32", "v_mov_b32").replace("v_rcp_f32", "v_mov_b32") for x in out]
    if OPT.get('noval'): out = ["s_nop 0" if (x.startswith("v_exp") or x.startswith("v_rcp")) else x for x in out if not (x.startswith("v_add_f32") or x.startswith("v_mul_f32") or x.startswith("v_cvt"))]
    if OPT.get('skel'):
        n2 = []
        for x in out:
            if x.startswith(("v_mfma", "v_exp", "v_rcp", "v_add_f32", "v_mul_f32", "v_cvt", "ds_read_b128")): continue
            if x.startswith("buffer_load"): n2.append("s_nop 0")
            if OPT['skel'] != '1' and x.startswith("s_waitcnt vmcnt") and "lgkm" not in x: x = f"s_waitcnt vmcnt({OPT['skel']})"
            if OPT['skel'] != '1' and x.startswith("s_waitcnt vmcnt(8) lgkm"): x = f"s_waitcnt vmcnt({max(8, int(OPT['skel']))}) lgkmcnt(0)"
            n2.append(x)
        out = n2
    if OPT.get('nodma'): out = [x for x in out if 'buffer_load' not in x]
    if OPT.get('noe'): out = [x for x in out if f"s[{sE}:{sE+3}]" not in x]
    return out

def emit(lst):
    for it in lst:
        if it.endswith(':'): lab(it[:-1])
        else: o(it)

def masks(tmp):
    a, b_, c = tmp
    o(f"v_and_b32 v{a}, {LPS-1}, v0"); o(f"v_lshlrev_b32 v{a}, 1, v{a}"); o(f"v_mov_b32 v{c}, 0")
    for i in range(4):
        o(f"v_lshrrev_b32 v{b_}, 19, v{SEG+i}"); o(f"v_max_u32 v{c}, v{c}, v{b_}")
        o(f"v_min_u32 v{b_}, s{sLIM}, v{b_}"); o(f"v_sub_u32 v{b_}, v{b_}, v{a}")
        for j, k in ((0, 2*i), (1, 2*i+1), (2*LPS, 8+2*i), (2*LPS+1, 9+2*i)): o(f"v_cmp_lt_i32 s[{sK+2*k}:{sK+2*k+1}], {j}, v{b_}")
    o(f"v_cmp_lt_u32 vcc, s{sLIM}, v{c}")
    o(f"s_or_b64 s[{sSV}:{sSV+1}], s[{sK+16}:{sK+17}], s[{sK+20}:{sK+21}]"); o(f"s_or_b64 s[{sHM}:{sHM+1}], s[{sK+24}:{sK+25}], s[{sK+28}:{sK+29}]")
    o(f"s_or_b64 s[{sSV}:{sSV+1}], s[{sSV}:{sSV+1}], s[{sHM}:{sHM+1}]")
    o(f"v_mov_b32 v{b_}, {CNT-4}"); addg(b_)
    o("s_mov_b64 exec, vcc"); o(f"ds_write_b32 v{b_}, v{b_}"); o("s_mov_b64 exec, -1")

def interleave(mf, other, per):
    other = list(other)
    for m in mf:
        o(m)
        for _ in range(per):
            if other: o(other.pop(0))
    for x in other: o(x)
def capture(fn):
    n = len(L); fn(); r = [x.strip() for x in L[n:]]; del L[n:]; return r
def wload(dst, off):
    r = []
    for s in range(8):
        if s % 4 == 0: r.append(f"s_add_u32 s{sT0}, s{sWF}, {off + s*1024:#x}")
        r.append(f"buffer_load_dwordx4 {vr(dst+4*s,4)}, v{vWF}, s[{sW}:{sW+3}], s{sT0} offen offset:{(s%4)*1024}")
    return r
def xblk(base, pair):
    o(f"v_mov_b32 v{pair+1}, v{vXO}")
    for mt in range(2):
        for a in range(2):
            o(f"s_add_u32 m0, s{base}, {(2*mt+a)*1040}")
            o(f"v_cmp_gt_u32 vcc, {(NA if mt == 0 else RN-NA) - 2*a}, v{vXI}")
            o(f"s_add_u32 s{sT0}, s{sBASE}, {NA*mt + 2*a}"); o(f"v_add_u32 v{pair}, s{sT0}, v{vXI}")
            o(f"v_cndmask_b32 v{pair}, v{PT+3}, v{pair}, vcc")
            o(f"buffer_load_dwordx4 {vr(pair,2)}, s[{sX}:{sX+3}], 0 idxen offen lds")

def gen_k2():
    L.append(".globl gmain_kernel"); L.append(".p2align 8"); L.append(".type gmain_kernel,@function")
    lab("gmain_kernel"); VST[0] = 255
    t = [TF + i for i in range(28)]
    stamp(0)
    o("s_load_dwordx2 s[50:51], s[0:1], 88")
    o("s_load_dwordx4 s[4:7], s[0:1], 0")
    o("s_load_dwordx2 s[48:49], s[0:1], 72")
    o("s_setprio 3")
    o(f"v_lshrrev_b32 v{t[0]}, 6, v0")
    o("s_and_b32 s3, s2, 7"); o("s_lshl_b32 s3, s3, 6"); o(f"s_bfe_u32 s{sT0}, s2, 0x50003"); o(f"s_lshl1_add_u32 s3, s{sT0}, s3")
    o(f"v_readfirstlane_b32 s{sWAVE}, v{t[0]}")
    if G8:
        o("v_and_b32 v0, 0xff, v0"); o(f"s_lshr_b32 s{sT0}, s{sWAVE}, 2"); o(f"s_and_b32 s{sWAVE}, s{sWAVE}, 3"); o(f"s_mul_i32 s{sG}, s{sT0}, {GS}")
    else: o(f"s_lshr_b32 s{sT0}, s2, 8")
    o(f"s_add_u32 s3, s3, s{sT0}")
    o(f"s_cmp_ge_u32 s2, {256 if G8 else 512}"); o("s_cbranch_scc1 K2_END")
    o(f"s_cmp_ge_u32 s3, {NR}"); o("s_cbranch_scc1 K2_END")
    o(f"v_lshrrev_b32 v{t[1]}, {LG}, v0")
    o(f"s_lshl_b32 s88, s3, 2")
    o(f"v_mul_u32_u24 v{t[1]}, {CB}, v{t[1]}"); o(f"v_add_u32 v{t[1]}, s88, v{t[1]}")
    for i in range(1, 4): o(f"v_add_u32 v{t[1+i]}, {16*i*CB:#x}, v{t[1]}")
    o(f"s_mul_i32 s{sBASE}, s3, {RN}")
    o(f"v_and_b32 v{vWF}, 63, v0"); o(f"v_lshlrev_b32 v{vWF}, 4, v{vWF}")
    o(f"s_mul_i32 s{sMR}, s{sWAVE}, {WS_}"); o(f"s_add_u32 s{sMR}, s{sMR}, {RING}"); saddg(sMR)
    o(f"s_lshl_b32 s{sWF}, s{sWAVE}, 13"); o(f"s_add_u32 s{sWF}, s{sWF}, {WS_WF:#x}")
    o(f"s_mov_b32 s40, {EPS:#x}"); o("s_mov_b32 s41, s40"); o(f"s_movk_i32 s{s80}, 80")
    o(f"s_mov_b32 s{sFIRST}, 1"); o(f"s_mov_b32 s{sLIM}, {LIM}")
    o("s_cmp_ge_u32 s2, 256"); o(f"s_cselect_b32 s{sRS}, {OPT.get('bon', 0)}, 0")
    o("s_waitcnt lgkmcnt(0)"); xstamp("karg")
    srd(sW, 50, WS_SIZE)
    o(f"s_mov_b32 s{sW+2}, {NCH*CB:#x}")
    for i in range(4): o(f"buffer_load_dword v{SEG+i}, v{t[1+i]}, s[{sW}:{sW+3}], 0 offen")
    o(f"s_mov_b32 s{sW+2}, {WS_SIZE:#x}")
    srd(sX, 4, N, 256); srd(sE, 6, E, 32); srd(sO, 48, N, 256)
    o(f"s_add_u32 s50, s50, {WS_TAB:#x}"); o("s_addc_u32 s51, s51, 0")
    if SM: o(f"s_mul_i32 s{sT0}, s{sWAVE}, {SMS}"); o(f"s_add_u32 s50, s50, s{sT0}"); o("s_addc_u32 s51, s51, 0")
    srd(sT, 50, N, 128 if SM else 512)
    WAP = OPT.get('wap', 'p1'); XBP = OPT.get('xbp', 'p1'); ORD = ['start', 'rec', 'mask', 'p1', 'b1']
    def place(where):
        if where not in (WAP, XBP): return
        o(f"s_cmp_eq_u32 s{sFIRST}, 0"); o(f"s_cbranch_scc1 NOW_{where}")
        if XBP == where:
            o(f"s_add_u32 s{sNT}, s{sMR}, {NS*SLOT}")
            xblk(sNT, T0)
        if WAP == where:
            for x in wload(ACC, WF_A): o(x)
            o(f"s_lshl_b32 s{sT0}, s{sWAVE}, 10"); o(f"s_add_u32 s{sT0}, s{sT0}, {WS_WF+WF_C:#x}")
            o(f"buffer_load_dwordx4 {vr(WC,4)}, v{vWF}, s[{sW}:{sW+3}], s{sT0} offen")
        if OPT.get('otouch') and WAP == where:
            o(f"v_mov_b32 v{T0+6}, s{sBASE}"); o(f"buffer_load_dword v{SEL}, v{T0+6}, s[{sO}:{sO+3}], 0 idxen")
        lab(f"NOW_{where}")
    def cnt(lo, hi): return sum(n for p, n in ((WAP, 9), (XBP, 4)) if lo <= ORD.index(p) <= hi)
    SP = [int(x) for x in OPT.get('spf', '0,0').split(',')]
    def spref(n, first):
        for k in range(n): o(f"s_load_dword s{88 + k % 4}, s[46:47], {(first + k) * 32768:#x}")
    if sum(SP):
        o(f"s_and_b32 s{sT0}, s3, 63"); o(f"s_lshl2_add_u32 s{sT0}, s{sT0}, s{sWAVE}"); o(f"s_lshl_b32 s{sT0}, s{sT0}, 7")
        o(f"s_add_u32 s46, s50, s{sT0}"); o("s_addc_u32 s47, s51, 0")
        spref(SP[0], 0)
    lab("ROUND")
    b0, b2, b3, b4, vh = t[16:21]
    o(f"v_lshlrev_b32 v{t[11]}, 4, v0"); addg(t[11])
    for d in range(4): o(f"v_mov_b32 v{t[0]+d}, 0")
    for off in (0, ZSZ - 4096): o(f"ds_write_b128 v{t[11]}, {vr(t[0],4)} offset:{MB+off}")
    pad0 = 0xffff | (NA << 16)
    o(f"v_mov_b32 v{t[4]}, {pad0:#x}"); o(f"v_mov_b32 v{t[5]}, 0x7ffff"); o(f"v_mov_b32 v{t[6]}, {pad0:#x}"); o(f"v_mov_b32 v{t[7]}, 0x7ffff")
    o(f"ds_write_b128 v{t[11]}, {vr(t[4],4)} offset:{LIST}"); o(f"ds_write_b128 v{t[11]}, {vr(t[4],4)} offset:{LIST+4096}")
    o(f"v_and_b32 v{b0}, 1, v0"); o(f"v_bfe_u32 v{b2}, v0, 2, 1"); o(f"v_bfe_u32 v{b3}, v0, 3, 1"); o(f"v_bfe_u32 v{b4}, v0, 4, 1"); o(f"v_bfe_u32 v{vh}, v0, 5, 1")
    o(f"v_and_b32 v{t[8]}, {LPS-1}, v0"); o(f"v_lshlrev_b32 v{t[8]}, 1, v{t[8]}")
    o(f"v_mov_b32 v{t[9]}, 0x7ffffff0"); o(f"s_mov_b32 s{sT1}, 0x7ffff")
    o(f"v_and_b32 v{t[12]}, 15, v0"); o(f"v_lshlrev_b32 v{t[13]}, 3, v{b4}")
    o(f"v_xor_b32 v{vXO}, v{t[12]}, v{t[13]}"); o(f"v_lshlrev_b32 v{vXO}, 4, v{vXO}")
    o(f"s_lshr_b32 s{sT0}, s{sWAVE}, 1"); o(f"s_lshl_b32 s{sT0}, s{sT0}, 4"); o(f"s_and_b32 s{sS0}, s{sWAVE}, 1"); o(f"s_lshl2_add_u32 s{sT0}, s{sS0}, s{sT0}")
    o(f"v_lshl_add_u32 v{vXI}, v{vh}, 3, v{b4}"); o(f"v_add_u32 v{vXI}, s{sT0}, v{vXI}")
    o(f"v_mov_b32 v{PT+3}, 0xffff")
    place('start')
    xstamp("consts_done")
    o(f"s_waitcnt vmcnt({cnt(0, 0)})"); stamp(1)
    for i in range(4):
        o(f"v_lshrrev_b32 v{t[4+i]}, 19, v{SEG+i}"); o(f"v_cmp_lt_u32 vcc, v{t[8]}, v{t[4+i]}")
        o(f"v_and_b32 v{t[i]}, s{sT1}, v{SEG+i}"); o(f"v_add_lshl_u32 v{t[i]}, v{t[i]}, v{t[8]}, 3")
        o(f"v_cndmask_b32 v{t[10]}, v{t[9]}, v{t[i]}, vcc")
        o(f"buffer_load_dwordx4 {vr(REC+4*i,4)}, v{t[10]}, s[{sW}:{sW+3}], 0 offen")
    o(f"v_max3_u32 v{t[10]}, v{t[4]}, v{t[5]}, v{t[6]}"); o(f"v_max_u32 v{t[10]}, v{t[10]}, v{t[7]}")
    o(f"v_cmp_lt_u32 vcc, {2*LPS}, v{t[10]}"); o("s_cbranch_vccz REC_DONE")
    for i in range(4): o(f"buffer_load_dwordx4 {vr(REC+16+4*i,4)}, v{t[i]}, s[{sW}:{sW+3}], 0 offen offset:{16*LPS}")
    lab("REC_DONE")
    xstamp("rec_issued")
    PF = int(OPT.get('pf', 0))
    def pref():
        o(f"s_lshr_b32 s{sT0}, s3, 6"); o(f"s_mul_i32 s{sT0}, s{sT0}, {64*RN}"); o(f"s_and_b32 s{sT1}, s3, 63"); o(f"s_lshl_b32 s{sT1}, s{sT1}, 6"); o(f"s_add_u32 s{sT0}, s{sT0}, s{sT1}")
        o(f"v_lshrrev_b32 v{T0+2}, 2, v0"); o(f"v_add_u32 v{T0+2}, s{sT0}, v{T0+2}"); o(f"v_and_b32 v{T0+1}, 3, v0"); o(f"v_lshlrev_b32 v{T0+1}, 7, v{T0+1}")
        for k in range(PF):
            o(f"v_add_u32 v{T0+3}, {-512*RN}, v{T0+2}"); o(f"v_min_u32 v{T0}, v{T0+2}, v{T0+3}")
            o(f"buffer_load_dword v{SEL}, {vr(T0,2)}, s[{sT}:{sT+3}], 0 idxen offen")
            if k + 1 < PF: o(f"v_add_u32 v{T0+2}, 4096, v{T0+2}")
    PFW = OPT.get('pfw', 'rec')
    place('rec')
    if PF and PFW == 'rec': pref()
    o("s_waitcnt lgkmcnt(0)"); o("s_barrier"); stamp(2)
    spref(SP[1], SP[0])
    pp = t[14]
    o(f"v_and_b32 v{pp}, 0x13, v0"); o(f"v_lshl_or_b32 v{pp}, v{b2}, 3, v{pp}"); o(f"v_lshl_or_b32 v{pp}, v{b3}, 2, v{pp}")
    o(f"v_lshrrev_b32 v{t[12]}, 3, v{pp}"); o(f"v_lshlrev_b32 v{vTA}, 7, v{pp}"); o(f"v_lshl_add_u32 v{vTA}, v{t[12]}, 4, v{vTA}")
    o(f"v_bfe_u32 v{t[13]}, v0, 1, 1"); o(f"v_xor_b32 v{t[12]}, v{t[13]}, v{vh}"); o(f"v_lshl_add_u32 v{vTA}, v{t[12]}, 6, v{vTA}"); o(f"v_add_u32 v{vTA}, s{sMR}, v{vTA}")
    o(f"v_and_b32 v{t[12]}, 7, v0"); o(f"v_lshlrev_b32 v{t[15]}, 2, v{b4}"); o(f"v_xor_b32 v{t[15]}, v{t[15]}, v{t[12]}")
    o(f"s_mov_b32 s{sT0}, 0" if SM else f"s_lshl_b32 s{sT0}, s{sWAVE}, 7"); o(f"v_lshl_add_u32 v{IX[0]+1}, v{t[15]}, 4, s{sT0}")
    for i in range(1, 4): o(f"v_mov_b32 v{IX[i]+1}, v{IX[0]+1}")
    o(f"v_and_b32 v{vL1}, 0x38, v0"); o(f"v_add_u32 v{vL1}, {LIST}, v{vL1}"); addg(vL1)
    o(f"v_lshl_or_b32 v{t[15]}, v{b4}, 1, v{b2}"); o(f"v_mul_u32_u24 v{t[15]}, {WS_}, v{t[15]}"); o(f"v_mul_u32_u24 v{t[13]}, 1040, v{t[13]}")
    o(f"v_lshl_or_b32 v{t[21]}, v{b3}, 1, v{b0}"); o(f"v_lshl_add_u32 v{t[15]}, v{t[21]}, 8, v{t[15]}"); o(f"v_add3_u32 v{t[15]}, v{t[15]}, v{t[13]}, {'s%d' % sG if G8 else 0}")
    o(f"v_add_u32 v{t[15]}, {RING + NS*SLOT}, v{t[15]}")
    o(f"v_xor_b32 v{t[13]}, v{vh}, v{b0}"); o(f"v_lshl_add_u32 v{vXA}, v{t[13]}, 7, v{t[15]}")
    o(f"v_lshlrev_b32 v{IXE+1}, 4, v{t[13]}")
    o(f"v_bfe_u32 v{t[13]}, v0, 7, 1"); o(f"v_xor_b32 v{t[13]}, v{t[13]}, v{b0}"); o(f"v_lshl_add_u32 v{vXR}, v{t[13]}, 7, v{t[15]}")
    o(f"v_and_b32 v{t[13]}, 0x60, v0"); o(f"v_add_u32 v{vXR}, v{vXR}, v{t[13]}")
    o(f"s_lshl_b32 s{sT0}, s{sS0}, 12"); o(f"s_lshr_b32 s{sT1}, s{sWAVE}, 1"); o(f"s_lshl_b32 s{sT1}, s{sT1}, 8"); o(f"s_add_u32 s{sT0}, s{sT0}, s{sT1}"); o(f"s_add_u32 s{sT0}, s{sT0}, {LIST+4}"); saddg(sT0)
    o(f"v_bfe_u32 v{vL2}, v0, 1, 5"); o(f"v_lshl_add_u32 v{vL2}, v{vL2}, 3, s{sT0}")
    o(f"s_lshl_b32 s{sME}, s{sWAVE}, 10"); o(f"s_add_u32 s{sME}, s{sME}, {ER}"); saddg(sME)
    o(f"v_lshlrev_b32 v{vSA}, 3, v{pp}"); o(f"v_add_u32 v{vSA}, {LIST+2}, v{vSA}"); addg(vSA)
    o(f"v_lshlrev_b32 v{vHC}, 4, v{vh}"); o(f"v_add_u32 v{vHC}, {IDT}, v{vHC}")
    o(f"v_xor_b32 v{vEA}, v{b4}, v{vh}"); o(f"v_lshlrev_b32 v{vEA}, 4, v{vEA}")
    o(f"v_lshl_add_u32 v{vEA}, v{pp}, 5, v{vEA}"); o(f"v_add_u32 v{vEA}, {ER}, v{vEA}"); addg(vEA)
    o(f"v_add_u32 v{vMT}, 4096, v{vEA}"); o(f"v_xor_b32 v{vMT}, v{vMT}, v{vEA}")
    o(f"v_and_b32 v{t[13]}, 31, v0"); o(f"v_min_u32 v{t[13]}, {NA}, v{t[13]}")
    o(f"v_mul_u32_u24 v{vMA}, {ROW}, v{t[13]}"); o(f"v_lshl_add_u32 v{vMA}, v{vh}, 2, v{vMA}"); o(f"v_add_u32 v{vMA}, {MB}, v{vMA}"); addg(vMA)
    o(f"v_lshrrev_b32 v{PT+2}, 5, v0"); o(f"v_lshlrev_b32 v{PT+2}, 4, v{PT+2}"); o(f"v_lshl_add_u32 v{PT+2}, v{b3}, 2, v{PT+2}"); addg(PT+2)
    o(f"v_lshl_add_u32 v{t[12]}, v{b4}, 4, v{t[12]}"); o(f"v_lshlrev_b32 v{PT+1}, v{t[12]}, 16")
    o(f"v_and_b32 v{t[12]}, 3, v0"); o(f"v_lshl_add_u32 v{t[12]}, v{b4}, 2, v{t[12]}"); o(f"v_lshlrev_b32 v{t[12]}, v{t[12]}, 16")
    o(f"v_cmp_eq_u32 vcc, v{b3}, v{vh}"); o(f"v_lshlrev_b32 v{t[13]}, 4, v{b2}"); o("s_nop 0")
    o(f"v_cndmask_b32 v{t[12]}, 0, v{t[12]}, vcc"); o(f"v_lshlrev_b32 v{PT}, v{t[13]}, v{t[12]}")
    place('mask')
    if cnt(1, 2):
        o(f"s_cmp_eq_u32 s{sFIRST}, 1"); o("s_cbranch_scc1 REMASK"); o("s_waitcnt vmcnt(0)")
    lab("REMASK")
    masks((t[0], t[1], t[2])); xstamp("masks_done")
    a, b_, c, d_ = t[0:4]; ad = [AD + k for k in range(16)]
    o(f"v_mov_b32 v{a}, 8")
    o(f"v_lshrrev_b32 v{b_}, 2, v{vWF}"); addg(b_)
    if G8: o(f"s_lshr_b32 s{sDS}, s{sG}, 8")
    if PF and PFW == 'mask': pref()
    o(f"s_waitcnt vmcnt({cnt(1, 2)})"); xstamp("rec_landed")
    for half in range(2):
        if half: o(f"s_cmp_eq_u64 s[{sSV}:{sSV+1}], 0"); o("s_cbranch_scc1 P1_DONE"); o("s_mov_b64 exec, -1")
        for k in range(8*half, 8*half+8): o(f"v_alignbit_b32 v{ad[k]}, s{sDS}, v{REC+2*k+1}, 24" if G8 else f"v_lshrrev_b32 v{ad[k]}, 24, v{REC+2*k+1}")
        for k in range(8*half, 8*half+8):
            o(f"s_mov_b64 exec, s[{sK+2*k}:{sK+2*k+1}]")
            o(f"ds_add_rtn_u32 v{RANK+k}, v{ad[k]}, v{a} offset:{CNT}")
    lab("P1_DONE")
    o("s_mov_b64 exec, -1")
    EP = OPT.get('ep', '')
    def epf():
        o(f"s_mov_b32 s{sT1}, {int(OPT.get('epm', '0x7007ffff'), 0):#x}")
        for k in range(8):
            o(f"v_and_b32 v{T0+k}, s{sT1}, v{REC+2*k+1}"); o(f"buffer_load_dword v{SEL}, v{T0+k}, s[{sE}:{sE+3}], 0 idxen")
    if EP == 'a': epf()
    place('p1')
    if EP == 'b': epf()
    if PF and PFW == 'p1': pref()
    o("s_waitcnt lgkmcnt(0)"); xstamp("p1_done"); o("s_barrier"); xstamp("b1")
    o(f"ds_read_b32 v{c}, v{b_} offset:{CNT}")
    o(f"ds_read_b32 v{t[4]}, v{b_} offset:{CNT-4}")
    place('b1')
    o(f"v_lshlrev_b32 v{t[5]}, 12, v{vh}"); addg(t[5])
    o("s_waitcnt lgkmcnt(1)")
    o(f"v_sub_u32 v{d_}, v{t[5]}, v{c}")
    for dd in ("row_shr:1", "row_shr:2", "row_shr:4", "row_shr:8"):
        o(f"v_add_u32_dpp v{c}, v{c}, v{c} {dd} row_mask:0xf bank_mask:0xf bound_ctrl:0"); o("s_nop 1")
    o(f"v_add_u32_dpp v{c}, v{c}, v{c} row_bcast:15 row_mask:0xa bank_mask:0xf")
    o(f"v_add_u32 v{d_}, v{c}, v{d_}")
    o(f"ds_write_b32 v{b_}, v{d_} offset:{NB}")
    o(f"v_readlane_b32 s{sNT}, v{c}, 31"); o(f"v_readlane_b32 s{sCNT}, v{c}, 63")
    for k in range(8): o(f"ds_read_b32 v{ad[k]}, v{ad[k]} offset:{NB}")
    o(f"s_max_u32 s{sT0}, s{sNT}, s{sCNT}")
    o(f"s_cmp_le_u32 s{sT0}, 4096"); o("s_cbranch_scc0 TOOBIG")
    xstamp("scan_done")
    for half in range(2):
        if half:
            o(f"s_cmp_eq_u64 s[{sSV}:{sSV+1}], 0"); o("s_cbranch_scc1 P2_DONE"); o("s_mov_b64 exec, -1")
            for k in range(8, 16): o(f"ds_read_b32 v{ad[k]}, v{ad[k]} offset:{NB}")
        for k in range(8*half, 8*half+8):
            if k % 4 == 0: o(f"s_waitcnt lgkmcnt({4 - k % 8})")
            o(f"v_add_u32 v{RANK+k}, v{RANK+k}, v{ad[k]}")
        for k in range(8*half, 8*half+8):
            o(f"s_mov_b64 exec, s[{sK+2*k}:{sK+2*k+1}]")
            o(f"ds_write_b64 v{RANK+k}, {vr(REC+2*k,2)} offset:{LIST}")
    lab("P2_DONE")
    o("s_mov_b64 exec, -1")
    o(f"v_readlane_b32 s{sMORE}, v{t[4]}, 0")
    o(f"s_mov_b32 m0, s{sME}")
    o(f"s_waitcnt vmcnt({9 + (8 if EP == 'b' else 0) if ORD.index(WAP) >= ORD.index(XBP) else 0}) lgkmcnt(0)"); xstamp("p2_done"); o("s_barrier"); stamp(5)
    f = t
    def rdidx(u):
        for i in range(4): o(f"ds_read_u16 v{IX[i]}, v{vL1} offset:{loff(u)+64*i}")
    def fill(u, nxt):
        for i in range(4):
            o(f"s_add_u32 m0, s{sMR}, {u*SLOT + i*1040}"); o(f"s_waitcnt lgkmcnt(3)"); o(ldt(i))
            o(f"ds_read_u16 v{IX[i]}, v{vL1} offset:{loff(nxt)+64*i}")
    o(f"ds_read_b32 v{IXE}, v{vL2}"); rdidx(0)
    o(f"v_lshlrev_b32 v{f[9]}, 3, v0"); addg(f[9])
    o("s_waitcnt lgkmcnt(4)")
    o(f"v_and_b32 v{IXE}, 0x7ffff, v{IXE}"); o(lde())
    NFO = int(OPT.get('nfo', 2)); NFY = int(OPT.get('nfy', 2))
    def fills(lo_o, hi_o, lo_y, hi_y, tag, wait):
        if (lo_o, hi_o) == (lo_y, hi_y):
            for u in range(lo_o, hi_o): fill(u, u + 1)
            return
        o("s_cmp_ge_u32 s2, 256"); o(f"s_cbranch_scc1 {tag}_Y")
        for u in range(lo_o, hi_o): fill(u, u + 1)
        if wait: o(f"s_waitcnt vmcnt({2+4*hi_o})")
        o(f"s_branch {tag}_D")
        lab(f"{tag}_Y")
        for u in range(lo_y, hi_y): fill(u, u + 1)
        if wait: o(f"s_waitcnt vmcnt({2+4*hi_y})")
        lab(f"{tag}_D")
    fills(0, NFO, 0, NFY, "FA", True)
    for k in range(4): o(f"ds_read_u8 v{f[12+k]}, v{f[9]} offset:{LIST+2+k*2048}")
    o(f"ds_read_b32 v{IXE}, v{vL2} offset:512"); o(f"ds_read_u8 v{vSV}, v{vSA}")
    xstamp("fill_issued")
    def ctrl():
        o(f"s_movk_i32 s{sS0}, {ROW}")
        for k in range(4):
            o(f"v_cmp_gt_u32 vcc, {NA}, v{f[12+k]}"); o(f"v_mad_u32_u24 v{f[0]}, v{f[12+k]}, s{sS0}, v{PT+2}"); o("s_nop 0")
            o(f"v_cndmask_b32 v{f[1]}, 0, v{PT+1}, vcc")
            o(f"ds_or_b32 v{f[0]}, v{f[1]} offset:{MB + (k&1)*128 + (k>>1)*8}")
        o(f"s_add_u32 s{sNT}, s{sNT}, 255"); o(f"s_lshr_b32 s{sNT}, s{sNT}, 8"); o(f"s_lshl1_add_u32 s{sNT}, s{sNT}, -1")
        o(f"s_add_u32 s{sCNT}, s{sCNT}, 255"); o(f"s_lshr_b32 s{sCNT}, s{sCNT}, 8"); o(f"s_lshl_b32 s{sCNT}, s{sCNT}, 1")
        o(f"s_max_i32 s{sNT}, s{sNT}, s{sCNT}"); o(f"s_max_i32 s{sNT}, s{sNT}, 2"); o(f"s_sub_u32 s{sCNT}, s{sNT}, 2")
        o(f"s_add_u32 s{sMET}, s{sME}, 4096"); o(f"s_xor_b32 s{sMET}, s{sMET}, s{sME}"); o(f"s_add_u32 s{sME}, s{sME}, 4096")
        o(f"v_add_u32 v{vL2}, 0x400, v{vL2}")
    def lut():
        q = T0
        for d in range(4):
            o(f"v_bfe_u32 v{q+d}, v0, {2*d}, 2"); o(f"v_mul_u32_u24 v{q+d}, 0x8001, v{q+d}")
            o(f"v_and_b32 v{q+d}, 0x10001, v{q+d}"); o(f"v_mul_u32_u24 v{q+d}, 0x3f80, v{q+d}")
        o(f"v_lshlrev_b32 v{q+4}, 4, v0"); o(f"ds_write_b128 v{q+4}, {vr(q,4)} offset:{LUT}")
        o(f"v_lshrrev_b32 v{q}, 3, v0"); o(f"v_and_b32 v{q+1}, 7, v0")
        o(f"v_bfe_u32 v{q+2}, v0, 5, 1"); o(f"v_bfe_u32 v{q+3}, v0, 6, 1"); o(f"v_lshl_or_b32 v{q+2}, v{q+2}, 1, v{q+3}")
        o(f"v_lshrrev_b32 v{q+3}, 7, v0"); o(f"v_lshl_or_b32 v{q+2}, v{q+3}, 2, v{q+2}")
        o(f"v_cmp_eq_u32 vcc, v{q+2}, v{q+1}"); o(f"v_cmp_gt_u32 s[{sHM}:{sHM+1}], {NA}, v{q}"); o(f"v_mov_b32 v{q+6}, 0x3f80"); o(f"v_mov_b32 v{q+7}, 0")
        o(f"s_and_b64 vcc, vcc, s[{sHM}:{sHM+1}]")
        o(f"v_and_b32 v{q+2}, 3, v{q}"); o(f"v_lshlrev_b32 v{q+2}, 4, v{q+2}"); o(f"v_cndmask_b32 v{q+6}, 0, v{q+6}, vcc")
        o(f"v_lshlrev_b64 {vr(q+6,2)}, v{q+2}, {vr(q+6,2)}")
        o(f"v_min_u32 v{q}, {NA}, v{q}"); o(f"v_mul_u32_u24 v{q}, 80, v{q}"); o(f"v_lshl_add_u32 v{q}, v{q+1}, 3, v{q}")
        o(f"ds_write_b64 v{q}, {vr(q+6,2)} offset:{IDT}")
    o(f"s_cmp_eq_u32 s{sFIRST}, 1"); o("s_cbranch_scc1 G1")
    o("s_waitcnt lgkmcnt(0)")
    ctrl()
    o("s_branch G1D")
    lab("G1")
    for mt in range(2):
        for s in range(8): o(f"ds_read_b128 {vr(GV+32*mt+4*s,4)}, v{vXA} offset:{mt*2080 + 16*s}")
        if mt == 0: o("s_waitcnt lgkmcnt(8)")
    lt = capture(lut); ct = capture(ctrl)
    for x in lt[:18]: o(x)
    o(f"s_waitcnt vmcnt({4*max(NFO, NFY)+2+(8 if EP == 'b' else 0)}) lgkmcnt(9)")
    acc = [ACC + 32, ACC + 48]
    interleave([m32(acc[0], GV+4*s, ACC+4*s, None if s == 0 else acc[0]) for s in range(8)], lt[18:] + ct[:16], 5)
    o("s_waitcnt lgkmcnt(5)")
    def cv(mt): return [f"v_cvt_pk_bf16_f32 v{AF+8*mt+r//2}, v{acc[mt]+r}, v{acc[mt]+r+1}" for r in range(0, 16, 2)]
    interleave([m32(acc[1], GV+32+4*s, ACC+4*s, None if s == 0 else acc[1]) for s in range(8)],
               ct[16:] + cv(0) + [f"v_mov_b64 {vr(acc[0]+r,2)}, s[40:41]" for r in range(0, 16, 2)], 5)
    for r in range(0, 32, 2): o(f"v_mov_b64 {vr(ACC+r,2)}, {'s[40:41]' if r < 16 else 0}")
    for x in cv(1): o(x)
    for r in range(0, 16, 2): o(f"v_mov_b64 {vr(acc[1]+r,2)}, 0")
    if STAMP:
        o("s_getreg_b32 s94, hwreg(HW_REG_HW_ID)"); o("s_getreg_b32 s100, hwreg(HW_REG_XCC_ID)"); o("s_and_b32 s94, s94, 0xffff"); o("s_lshl_b32 s100, s100, 16"); o("s_or_b32 s94, s94, s100"); o(f"v_writelane_b32 v{VST[0]}, s94, 3")
    lab("G1D")
    o(f"v_and_b32 v{MQ}, 0xffff, v{PT}"); o(f"v_lshrrev_b32 v{MQ+1}, 16, v{PT}")
    xstamp("g1_done"); stamp(4)
    fills(NFO, NS, NFY, NS, "FB", False)
    o(f"s_waitcnt vmcnt({4*(NS-1)}) lgkmcnt(0)"); xstamp("t0_landed"); o("s_barrier")
    o(f"ds_read_b128 {vr(SEL,4)}, v{MQ}"); o(f"ds_read_b128 {vr(SEL+4,4)}, v{MQ+1}")
    o(f"ds_read_b128 {vr(EF,4)}, v{vEA}")
    for j in range(4): o(f"ds_read_b128 {vr(TF+4*j,4)}, v{vTA} offset:{16*j}")
    o(f"s_setprio {OPT.get('lp', 2)}")
    if OPT.get('young'):
        o("s_cmp_lt_u32 s2, 256"); o("s_cbranch_scc1 OLD"); o(f"s_setprio {OPT['young']}"); lab("OLD")
    if OPT.get('fakec'): o(f"v_lshrrev_b32 v{vTC}, 2, v{vWF}"); o(f"v_add_u32 v{vTC}, s{sMR}, v{vTC}")
    stamp(6); stamp(8, "s_memtime")
    bodies = [body(b) for b in range(4)]
    if not OPT.get('skel') and not OPT.get('noval') and not OPT.get('fakec'): check_hazards(sum(bodies, []) + ["s_branch LOOP"])
    emit(body(0, peel=True))
    b1 = bodies[1][:bodies[1].index("ENT1:")]
    o("s_nop 7")
    emit([x for x in b1 if not x.startswith(("v_mfma", "s_sub", "s_cbranch"))])
    o("s_branch ENT1")
    lab("TOOBIG")
    o(f"s_mov_b32 s{sLIM}, {LOWLIM}"); o(f"v_mov_b32 v{a}, 0")
    o("s_waitcnt lgkmcnt(0)"); o("s_barrier")
    o(f"ds_write_b32 v{b_}, v{a} offset:{CNT}")
    o("s_waitcnt lgkmcnt(0)"); o("s_barrier")
    o("s_branch REMASK")
    lab("LOOP")
    emit(sum(bodies, []))
    if OPT.get('pp', '99,8,4') != '0' and not G8:
        th = [int(x) for x in OPT.get('pp', '99,8,4').split(',')]
        o(f"s_add_u32 s{sT0}, s{sCNT}, s{sRS}")
        for k, v in enumerate(th):
            if v < 99: o(f"s_cmp_lt_u32 s{sT0}, {v}"); o("s_cbranch_scc0 LOOP"); o(f"s_setprio {2-k}")
    o("s_branch LOOP")
    assert len(set(HEAD.values())) == 1
    WU = TF; x = AF
    def fin(p):
        d = ACC + 32 * p; r = []
        for k in range(16): r.append(f"v_rcp_f32 v{d+k}, v{d+k}")
        for k in range(16): r.append(f"v_mul_f32 v{d+16+k}, v{d+k}, v{d+16+k}")
        return r
    def unp(p): return sum(([f"v_lshlrev_b32 v{ACC+32*p+2*k}, 16, v{x+8*p+k}", f"v_and_b32 v{ACC+32*p+2*k+1}, s{sT1}, v{x+8*p+k}"] for k in range(8)), [])
    def post(p):
        r = []
        for k in range(8):
            z = ACC + 32*p + 16 + 2*k
            r += [f"v_max_f32 v{z}, 0, v{z}", f"v_max_f32 v{z+1}, 0, v{z+1}", f"v_add_f32 v{z}, v{z}, v{z-16}", f"v_add_f32 v{z+1}, v{z+1}, v{z-15}",
                  f"v_cvt_pk_bf16_f32 v{x+8*p+k}, v{z}, v{z+1}"]
        return r
    def st(p): return [f"s_mov_b64 exec, {((1 << (NA - p)) - 1):#x}", f"s_mov_b32 exec_hi, exec_lo"] + \
        [f"buffer_store_dwordx4 {vr(x+8*p+4*k,4)}, {vr(IX[p],2)}, s[{sO}:{sO+3}], 0 idxen offen offset:{16*k} {OPT.get('outpol', '').replace('+', ' ')}" for k in range(2)] + ["s_mov_b64 exec, -1"]
    assert RN - NA == NA - 1
    CO = int(OPT.get('co', 0))
    if CO:
        def st(p): return [f"s_mov_b64 exec, {((1 << (NA - p)) - 1):#x}", f"s_mov_b32 exec_hi, exec_lo"] + \
            [f"ds_write_b128 v{IX[2]}, {vr(x+8*p+4*k,4)} offset:{RING + p*NA*272 + 16*k}" for k in range(2)] + ["s_mov_b64 exec, -1"]
    for p in (1, 0):
        q = 1 - p; Gc = GV + 32 * q
        lab(f"TAIL{p}")
        stamp(7); stamp(11, "s_memtime")
        if STAMP: o(f"v_writelane_b32 v{VST[0]}, s{sNT}, 12")
        o(f"ds_read_b128 {vr(T0,4)}, v{MQ}"); o(f"ds_read_b128 {vr(T0+4,4)}, v{MQ+1}")
        o(f"s_cmp_lg_u32 s{sMORE}, 0"); o(f"s_cbranch_scc1 TAILM{p}")
        o("s_waitcnt lgkmcnt(0)")
        for ins in wload(WU, WF_U): o(ins)
        for s in range(8): o(f"ds_read_b128 {vr(GV+32*p+4*s,4)}, v{vXA} offset:{p*2080+16*s}")
        for mt in range(2):
            for k in range(2): o(f"ds_read_b128 {vr(x+8*mt+4*k,4)}, v{vXR} offset:{mt*2080+16*k}")
        o(f"v_and_b32 v{IX[0]}, 31, v0"); o(f"v_and_b32 v{IX[0]+1}, 0xe0, v0"); o(f"v_add_u32 v{IX[0]}, s{sBASE}, v{IX[0]}")
        o(f"v_add_u32 v{IX[1]}, {NA}, v{IX[0]}"); o(f"v_mov_b32 v{IX[1]+1}, v{IX[0]+1}")
        if CO:
            o(f"v_and_b32 v{IX[2]}, 31, v0"); o(f"v_mul_u32_u24 v{IX[2]}, 272, v{IX[2]}"); o(f"v_add_u32 v{IX[2]}, v{IX[2]}, v{IX[0]+1}")
            o(f"v_lshrrev_b32 v{IX[0]}, 4, v0"); o(f"v_and_b32 v{IX[0]+1}, 0xf0, v{vWF}")
            o(f"v_mul_u32_u24 v{IX[3]}, 272, v{IX[0]}"); o(f"v_add_u32 v{IX[3]}, v{IX[3]}, v{IX[0]+1}"); o(f"v_add_u32 v{IX[0]}, s{sBASE}, v{IX[0]}")
        o(f"s_mov_b32 s{sT1}, 0xffff0000")
        vs = [i for i, _ in vstream(Gc, Gc + 16)[HEAD[0]:]]
        for ins in vs: o(ins)
        o("s_nop 0")
        interleave(zphase(Gc, q), fin(p), 4)
        for s in range(8): o(f"ds_read_b128 {vr(Gc+4*s,4)}, v{vXA} offset:{q*2080+16*s}")
        o("s_waitcnt vmcnt(0) lgkmcnt(8)")
        interleave([m32(ACC+32*p+16, WU+4*s, GV+32*p+4*s, ACC+32*p+16) for s in range(8)], fin(q), 4)
        o("s_waitcnt lgkmcnt(0)"); o("s_barrier" if CO else "s_nop 0")
        interleave([m32(ACC+32*q+16, WU+4*s, Gc+4*s, ACC+32*q+16) for s in range(8)], unp(p) + post(p) + unp(q), 7)
        for ins in st(p) + post(q) + st(q): o(ins)
        if p == 1: o("s_branch K2_FIN")
    lab("K2_FIN")
    if CO:
        o("v_cmp_gt_u32 vcc, 16, v0")
        o("s_waitcnt lgkmcnt(0)"); o("s_barrier")
        for k in range(4): o(f"ds_read_b128 {vr(GV+4*k,4)}, v{IX[3]} offset:{RING + k*16*272}")
        for k in range(4):
            if k == 3: o(f"s_and_saveexec_b64 s[{sSV}:{sSV+1}], vcc"); o("s_cbranch_execz K2_OUT")
            o(f"s_waitcnt lgkmcnt({3-k})")
            o(f"buffer_store_dwordx4 {vr(GV+4*k,4)}, {vr(IX[0],2)}, s[{sO}:{sO+3}], 0 idxen offen {OPT.get('outpol', '').replace('+', ' ')}")
            if k < 3: o(f"v_add_u32 v{IX[0]}, 16, v{IX[0]}")
        lab("K2_OUT")
    stamp_out(9, GV+32, sW, 1)
    lab("K2_END")
    o("s_endpgm")
    for p in (1, 0):
        Gc = GV + 32 * (1 - p)
        lab(f"TAILM{p}")
        for ins, _ in vstream(Gc, Gc + 16)[HEAD[0]:]: o(ins)
        o("s_waitcnt lgkmcnt(0)")
        for m in zphase(Gc, 1 - p): o(m)
        if p == 1: o("s_branch NEXTROUND")
    lab("NEXTROUND")
    for i in range(4):
        o(f"v_lshrrev_b32 v{vTC}, 19, v{SEG+i}"); o(f"v_min_u32 v{vTC}, s{sLIM}, v{vTC}")
        o(f"v_add_u32 v{SEG+i}, v{SEG+i}, v{vTC}"); o(f"v_lshlrev_b32 v{vTC}, 19, v{vTC}"); o(f"v_sub_u32 v{SEG+i}, v{SEG+i}, v{vTC}")
    o(f"s_mov_b32 s{sFIRST}, 0"); o(f"s_mov_b32 s{sLIM}, {LIM}")
    o("s_waitcnt vmcnt(0) lgkmcnt(0)"); o("s_barrier")
    o("s_branch ROUND")

def kd(name, nv, ns):
    L.append(".p2align 6")
    L.append(f".amdhsa_kernel {name}")
    for k, v in (("next_free_vgpr", nv), ("next_free_sgpr", ns), ("accum_offset", (nv + 3) // 4 * 4), ("group_segment_fixed_size", 0),
                 ("kernarg_size", 96), ("user_sgpr_count", 2), ("user_sgpr_kernarg_segment_ptr", 1), ("system_sgpr_workgroup_id_x", 1),
                 ("float_denorm_mode_32", 3)):
        L.append(f"  .amdhsa_{k} {v}")
    L.append(".end_amdhsa_kernel")

hdr = [l for l in open(f"cdna_kernels/{NAME}.s.ref").read().splitlines() if l.startswith(";") and "@launch" not in l
       and "Override launch" not in l and "grid=ceil" not in l]
L += hdr
L.append(f"; @launch kernel=gsort_kernel grid=({K1_GRID},1,1) block=(512,1,1) lds={K1_LDS}")
L.append(f"; @launch kernel=gmain_kernel grid=(256,1,1) block=(512,1,1) lds={NB+2*GS}" if G8 else f"; @launch kernel=gmain_kernel grid=(512,1,1) block=(256,1,1) lds={K2_LDS}")
L.append('.amdgcn_target "amdgcn-amd-amdhsa--gfx950"'); L.append(".text")
gen_k1a(); gen_k2()
lab("CODE_END")
L.append('.section .rodata,"a"')
kd("gsort_kernel", 256 if STAMP else 240, 102 if STAMP else 72); kd("gmain_kernel", 256 if STAMP else NVGPR, 102)
if STAMP: L.append("; STAMPS " + repr(NAMES))
open(sys.argv[1], "w").write("\n".join(L) + "\n")
print("vgprs", NVGPR, "lds", K2_LDS, "lines", len(L), file=sys.stderr)
```

```python
import sys, struct, re

N = 25000; E = 400000; RN = 49; NR = 511; CH = 1600; NCH = 250
WS_REC = 0; WS_OFF = 0x310000; OROW = 1152; WS_WF = 0x3c0000; WS_TAB = 0x400000; WS_SIZE = 0x4000000
WF_A = 0; WF_U = 0x8000; WF_C = 0x10000; NA = 25
NLOG2E = struct.unpack('<I', struct.pack('<f', -1.4426950408889634))[0]
EPS = struct.unpack('<I', struct.pack('<f', 1e-6))[0]
NAME = "standalone__edge_featured_mpnn_gatedgcn__graph"
OPT = dict(k1='a', tabpol='sc1', recpol='sc1', touch='0', nfo='1', nfy='0', lw='1', sf='1', st='1', split='2', nx='2', wfpol='sc1', tsh='19', outpol='nt', bon='4', lp='3', pp='23,15,7')
OPT.update(a.split('=') for a in sys.argv[2:])
CH = 6720; NCH = 60; CHL = E - (NCH - 1) * CH; EPT = 16; LPS = 16; NG = 196
STAMP = int(OPT.get('stamp', 0))
WS_TAB = int(OPT.get('tab', hex(WS_TAB)), 0)
WS_STAMP = 0x3800000
L = []
def o(s): L.append("    " + s)
def lab(s): L.append(s + ":")
def vr(b, n): return f"v[{b}:{b+n-1}]"
VST = [60]
NAMES = {}
def stamp(i, ins="s_memrealtime", name=None):
    if STAMP:
        o(f"{ins} s[100:101]"); o("s_waitcnt lgkmcnt(0)"); o(f"v_writelane_b32 v{VST[0]}, s100, {i}")
def xstamp(name):
    if STAMP:
        NAMES[name] = 16 + len(NAMES); stamp(NAMES[name])
def stamp_out(n, reg, srdn, kern):
    if not STAMP: return
    o("s_mov_b64 exec, -1")
    stamp(n)
    o(f"v_lshlrev_b32 v{reg}, 2, v0")
    if kern and int(OPT.get('g8', 0)): o("s_and_b32 s63, s3, 1"); o("s_lshl_b32 s63, s63, 8"); o("s_add_u32 s2, s2, s63")
    o(f"s_lshl_b32 s63, s2, 11"); o(f"s_add_u32 s63, s63, {WS_STAMP + kern*0x100000:#x}")
    o(f"buffer_store_dword v{VST[0]}, v{reg}, s[{srdn}:{srdn+3}], s63 offen")
def srd(d, lo, size, stride=0):
    o(f"s_mov_b32 s{d}, s{lo}"); o(f"s_and_b32 s{d+1}, s{lo+1}, 0xffff")
    if stride: o(f"s_or_b32 s{d+1}, s{d+1}, {stride << 16:#x}")
    o(f"s_mov_b32 s{d+2}, {size:#x}"); o(f"s_mov_b32 s{d+3}, 0x20000")
def scan64(v):
    for d in ("row_shr:1", "row_shr:2", "row_shr:4", "row_shr:8"):
        o("s_nop 1"); o(f"v_add_u32_dpp v{v}, v{v}, v{v} {d} row_mask:0xf bank_mask:0xf bound_ctrl:0")
    o("s_nop 1"); o(f"v_add_u32_dpp v{v}, v{v}, v{v} row_bcast:15 row_mask:0xa bank_mask:0xf")
    o("s_nop 1"); o(f"v_add_u32_dpp v{v}, v{v}, v{v} row_bcast:31 row_mask:0xc bank_mask:0xf")

def m32(d, a, b, c): return f"v_mfma_f32_32x32x16_bf16 {vr(d,16)}, {vr(a,4)}, {vr(b,4)}, " + ("0" if c is None else vr(c,16))
K1_GRID = 256
CB = CH * 8 + 2048
K1_W = 0; K1_X = 65536; K1_S = K1_X + 4 * 8320; K1_LDS = K1_S + 8 * 4608
SM = 0
def gen_k1a():
    L.append(".globl gsort_kernel"); L.append(".p2align 8"); L.append(".type gsort_kernel,@function")
    lab("gsort_kernel"); VST[0] = 255
    pol = OPT.get('tabpol', '').replace('+', ' '); rpol = OPT.get('recpol', '').replace('+', ' ')
    stamp(0)
    o("s_load_dwordx8 s[4:11], s[0:1], 0")
    o("s_load_dwordx8 s[40:47], s[0:1], 32")
    o("s_load_dwordx2 s[48:49], s[0:1], 64")
    o("s_load_dwordx2 s[12:13], s[0:1], 88")
    o("v_lshrrev_b32 v2, 6, v0"); o("v_lshlrev_b32 v40, 4, v0")
    o("v_bfe_u32 v56, v0, 4, 1"); o("v_bfe_u32 v57, v0, 5, 1"); o("v_and_b32 v20, 63, v0")
    o("v_readfirstlane_b32 s33, v2")
    if OPT.get('sf'):
        o("s_cmp_ge_u32 s2, 256"); o("s_cbranch_scc1 K1_END")
        o("s_add_u32 s2, s2, 192"); o("s_and_b32 s2, s2, 255")
    o(f"s_cmp_ge_u32 s2, {NG}"); o("s_cbranch_scc1 K1_OTHER")
    o("s_lshr_b32 s35, s2, 3")
    o("s_and_b32 s36, s2, 7"); o("s_min_u32 s14, s36, 4"); o("s_mul_i32 s36, s36, 24"); o("s_add_u32 s36, s36, s14"); o("s_add_u32 s36, s36, s35")
    o("s_lshl_b32 s37, s36, 7")
    o("v_bfe_u32 v43, v0, 4, 2"); o("v_lshlrev_b32 v43, 6, v43"); o("v_xor_b32 v43, v43, v40")
    o("v_lshl_add_u32 v54, v57, 3, v56")
    o("s_lshr_b32 s32, s33, 2"); o("s_lshl_b32 s14, s32, 4"); o("s_and_b32 s30, s33, 3"); o("s_lshl1_add_u32 s14, s30, s14"); o("s_add_u32 s14, s14, s37")
    o("v_add_u32 v54, s14, v54")
    o("v_and_b32 v55, 15, v0"); o("v_lshlrev_b32 v59, 3, v56"); o("v_xor_b32 v55, v55, v59"); o("v_lshlrev_b32 v55, 4, v55")
    o("s_mul_i32 s38, s33, 1040"); o(f"s_add_u32 s38, s38, {K1_X}")
    o("s_lshl_b32 s39, s33, 10")
    o("s_mov_b32 m0, s38")
    o("s_waitcnt lgkmcnt(0)")
    srd(60, 4, N, 256)
    def xd(t):
        if t: o(f"s_add_u32 m0, s38, {t*8320}"); o("v_add_u32 v54, 32, v54")
        o("buffer_load_dwordx4 v[54:55], s[60:63], 0 idxen offen lds")
    def wd(m):
        for i in range(4):
            o(f"s_add_u32 m0, s39, {K1_W+m*32768+i*8192}"); o(f"s_movk_i32 s14, {i*8192}"); o(f"buffer_load_dwordx4 v43, s[{52+4*m}:{55+4*m}], s14 offen lds")
    xd(0); xd(1)
    srd(52, 42, 32768); wd(0)
    ST = int(OPT.get('st', 0))
    if ST: o("s_barrier")
    srd(56, 48, 32768)
    if ST < 2: wd(1)
    if not ST: xd(2); xd(3)
    o("v_bfe_u32 v60, v0, 2, 2"); o("v_lshl_add_u32 v61, v57, 6, v60"); o("v_xor_b32 v60, s30, v60"); o("v_lshlrev_b32 v60, 6, v60"); o("v_lshl_add_u32 v60, v61, 8, v60")
    o("v_and_b32 v61, 3, v0"); o("v_lshl_add_u32 v60, v61, 3, v60"); o("v_lshl_add_u32 v60, v56, 5, v60")
    o("v_bfe_u32 v61, v0, 1, 2"); o("v_lshl_or_b32 v61, v56, 2, v61"); o("v_mul_u32_u24 v61, 1040, v61")
    o("v_and_b32 v62, 1, v0"); o("v_bfe_u32 v63, v0, 3, 1"); o("v_lshl_or_b32 v63, v63, 1, v62"); o("v_lshl_add_u32 v61, v63, 8, v61")
    o("s_mul_i32 s14, s32, 8320"); o(f"s_add_u32 s14, s14, {K1_X}")
    o("v_xor_b32 v62, v62, v57"); o("v_lshl_add_u32 v61, v62, 7, v61"); o("v_add_u32 v61, s14, v61")
    o("s_mul_i32 s14, s33, 4608"); o(f"s_add_u32 s14, s14, {K1_S}")
    o("v_and_b32 v62, 31, v0"); o("v_mul_u32_u24 v62, 144, v62"); o("v_lshl_add_u32 v62, v57, 6, v62"); o("v_add_u32 v62, s14, v62")
    o("v_lshrrev_b32 v58, 3, v20"); o("v_and_b32 v59, 7, v0"); o("v_lshlrev_b32 v59, 4, v59")
    o("v_mul_u32_u24 v63, 144, v58"); o("v_add3_u32 v63, v63, v59, s14")
    o("s_lshl_b32 s14, s32, 5"); o("s_add_u32 s14, s14, s37"); o("s_lshl_b32 s14, s14, 9"); o("s_lshl_b32 s30, s30, 7"); o("s_add_u32 s14, s14, s30")
    o("v_lshl_add_u32 v59, v58, 9, v59"); o("v_add_u32 v59, s14, v59")
    if STAMP: srd(24, 12, WS_SIZE)
    o(f"s_add_u32 s12, s12, {WS_TAB:#x}"); o("s_addc_u32 s13, s13, 0"); srd(16, 12, N * 512)
    o(f"s_mov_b32 s15, {NLOG2E:#x}")
    WF_ = 64; XF_ = 128; AC = [160, 192]
    def trs(m):
        for s in range(8):
            for jj in range(2): o(f"ds_read_b64_tr_b16 v[{WF_+32*m+4*s+2*jj}:{WF_+32*m+4*s+2*jj+1}], v60 offset:{K1_W+m*32768+s*2048+jj*1024}")
            if m == 0: o(f"ds_read_b128 {vr(XF_+4*s,4)}, v61 offset:{16*s}")
    SPL = int(OPT.get('split', 1))
    stamp(1)
    if ST == 2: wd(1)
    o(f"s_waitcnt vmcnt({4 if ST else 6 if SPL else 0})"); o("s_barrier"); stamp(3)
    trs(0)
    if ST: xd(2); xd(3)
    if SPL:
        o("s_waitcnt lgkmcnt(12)")
        for s in range(8):
            if s == 4: o("s_waitcnt lgkmcnt(0)")
            o(m32(AC[0], WF_+4*s, XF_+4*s, None if s == 0 else AC[0]))
        o(f"s_waitcnt vmcnt({2 if SPL == 2 else 0})"); o("s_barrier")
        trs(1)
        for k in range(16): o(f"v_mul_f32 v{AC[0]+k}, s15, v{AC[0]+k}")
    else:
        trs(1)
        o("s_waitcnt lgkmcnt(15)")
        for s in range(8): o(m32(AC[0], WF_+4*s, XF_+4*s, None if s == 0 else AC[0]))
    def post(t):
        a = AC[t]; r = []
        for k in range(16): r.append(f"v_mul_f32 v{a+k}, s15, v{a+k}")
        for k in range(16): r.append(f"v_cvt_pk_bf16_f32 v{224+k}, v{a+2*k}, v{a+2*k+1}")
        r += [f"ds_write_b128 v62, {vr(224+4*c,4)} offset:{16*c}" for c in range(4)]
        r += [f"ds_read_b128 {vr(a+4*k,4)}, v63 offset:{k*8*144}" for k in range(4)]
        return r
    def stores(t):
        r = []
        for k in range(4):
            r += [f"s_waitcnt lgkmcnt({3-k})", f"buffer_store_dwordx4 {vr(AC[t]+4*k,4)}, v59, s[16:19], 0 offen {pol}", "v_add_u32 v59, 0x1000, v59"]
        return r
    o("s_waitcnt lgkmcnt(0)")
    for s in range(8):
        o(m32(AC[0]+16, WF_+32+4*s, XF_+4*s, None if s == 0 else AC[0]+16))
        if SPL < 2: o(f"ds_read_b128 {vr(XF_+4*s,4)}, v61 offset:{2*8320+16*s}")
        else: o(post(0)[16+s])
    if SPL == 2:
        o("s_waitcnt vmcnt(0)"); o("s_barrier")
        for s in range(8): o(f"ds_read_b128 {vr(XF_+4*s,4)}, v61 offset:{2*8320+16*s}")
        o("s_nop 0")
        for x in post(0)[24:]: o(x)
        o("s_waitcnt lgkmcnt(8)")
    else: o("s_waitcnt lgkmcnt(0)")
    mf = [m32(AC[1], WF_+4*s, XF_+4*s, None if s == 0 else AC[1]) for s in range(8)] + [m32(AC[1]+16, WF_+32+4*s, XF_+4*s, None if s == 0 else AC[1]+16) for s in range(8)]
    q = (post(0)[16:] + [None] * 6 if SPL < 2 else [None] * 5) + stores(0)
    q += [None] * (54 - len(q)) + ["s_nop 8"] + post(1)[:24]
    for m in mf:
        o(m)
        for _ in range(5):
            if q:
                x = q.pop(0)
                if x: o(x)
    assert not q
    o("v_add_u32 v59, 0x4000, v59"); o("s_nop 7")
    for x in post(1)[24:]: o(x)
    stamp(4)
    for x in stores(1): o(x)
    lab("K1_F")
    if STAMP: o("s_waitcnt vmcnt(0)")
    stamp_out(2, 12, 24, 0)
    lab("K1_END")
    o("s_endpgm")
    lab("K1_OTHER")
    o(f"s_sub_u32 s2, s2, {NG}")
    if OPT.get('cpf'):
        o("s_cmp_lt_u32 s33, 5"); o("s_cbranch_scc1 K1_NP")
        o("s_getpc_b64 s[70:71]"); lab("K1_PC")
        o("s_sub_u32 s70, s70, K1_PC-gsort_kernel"); o("s_subb_u32 s71, s71, 0")
        o("v_sub_u32 v236, 511, v0"); o("v_lshlrev_b32 v236, 7, v236"); o("v_min_u32 v236, CODE_END-gsort_kernel-4, v236")
        o("v_mov_b32 v237, s71"); o("v_add_co_u32 v236, vcc, s70, v236"); o("s_nop 1"); o("v_addc_co_u32 v237, vcc, 0, v237, vcc")
        o("global_load_dword v238, v[236:237], off")
        lab("K1_NP")
    D_, S_, R_, K_, P_ = 64, 80, 96, 112, 128
    o("v_lshlrev_b32 v1, 2, v0"); o("v_mov_b32 v2, 0"); o("ds_write_b32 v1, v2")
    o(f"s_mul_i32 s3, s2, {CH*4}"); o(f"s_mul_i32 s31, s2, {CB}"); o(f"s_mul_i32 s34, s2, {CH}")
    assert CH % 16 == 0 and CHL % 16 == 0 and CH // 16 <= 448
    o(f"s_movk_i32 s35, {CH}"); o(f"s_cmp_eq_u32 s2, {NCH-1}"); o(f"s_cselect_b32 s35, {CHL}, s35")
    o("v_cmp_gt_u32 vcc, s35, v40")
    o("s_lshr_b32 s36, s35, 2"); o("s_sub_u32 s36, s36, 3")
    o("s_waitcnt lgkmcnt(0)")
    srd(20, 10, E*4); srd(16, 8, E*4); srd(24, 12, WS_SIZE)
    o("s_mov_b64 s[28:29], vcc"); o("s_mov_b64 exec, vcc"); o("s_cbranch_execz K1_PREP")
    for j in range(4):
        for base, sr in ((D_, 20), (S_, 16)): o(f"buffer_load_dwordx4 {vr(base+4*j,4)}, v40, s[{sr}:{sr+3}], s3 offen")
        o("s_add_u32 s3, s3, s35")
    o("s_barrier")
    o("v_add_u32 v3, s34, v1"); o("v_mov_b32 v2, 1"); o(f"s_mov_b32 s15, {-RN}")
    def recs(lo, hi):
        for i in range(lo, hi):
            o(f"v_cmp_lt_u32 vcc, {NA-1}, v{D_+i}"); o(f"v_mul_u32_u24 v22, 83, v{S_+i}"); o("v_lshrrev_b32 v22, 16, v22")
            o(f"v_cndmask_b32 v23, 0, {NA}, vcc"); o(f"v_sub_u32 v23, v{D_+i}, v23")
            o(f"v_lshl_or_b32 v{P_+2*i}, v23, 16, v{S_+i}")
            o("v_cndmask_b32 v23, 0, 32, vcc"); o("v_or_b32 v22, v22, v23")
            o(f"v_lshl_add_u32 v{P_+1+2*i}, v22, 26, v3")
            o(f"v_add_u32 v3, {1 if i % 4 < 3 else 's36'}, v3")
    for j in range(4):
        o(f"s_waitcnt vmcnt({7 - 2*j})")
        for i in range(4*j, 4*j+4):
            o(f"v_mul_u32_u24 v{R_+i}, 21400, v{D_+i}")
            o(f"v_lshrrev_b32 v{R_+i}, 20, v{R_+i}")
            o(f"v_mad_i32_i24 v{D_+i}, v{R_+i}, s15, v{D_+i}")
            o(f"v_lshlrev_b32 v{R_+i}, 2, v{R_+i}")
            o(f"ds_add_rtn_u32 v{K_+i}, v{R_+i}, v2")
        o(f"s_waitcnt vmcnt({6 - 2*j})")
        if j < 3: recs(4*j, 4*j+4)
    stamp(1)
    lab("K1_B")
    o("s_mov_b64 exec, -1")
    o("v_lshlrev_b32 v20, 5, v20")
    o("s_waitcnt lgkmcnt(0)"); o("s_barrier"); stamp(3)
    o("ds_read_b128 v[24:27], v20"); o("ds_read_b128 v[28:31], v20 offset:16")
    recs(12, 14)
    o("s_waitcnt lgkmcnt(0)"); stamp(5)
    o("v_mov_b32 v33, v24")
    for j in range(2, 8): o(f"v_add_u32 v{32+j}, v{31+j}, v{23+j}")
    o("v_add_u32 v21, v39, v31"); o("v_mov_b32 v22, v21")
    scan64(21)
    o("v_sub_u32 v32, v21, v22")
    for j in range(1, 8): o(f"v_add_u32 v{32+j}, v32, v{32+j}")
    stamp(6)
    o("ds_write_b128 v20, v[32:35] offset:2048"); o("ds_write_b128 v20, v[36:39] offset:2064"); stamp(7)
    o("s_mov_b64 exec, s[28:29]")
    for i in range(EPT): o(f"ds_read_b32 v{R_+i}, v{R_+i} offset:2048")
    recs(14, 16); stamp(8)
    for i in range(EPT):
        if i % 4 == 0: o(f"s_waitcnt lgkmcnt(12)")
        o(f"v_add_lshl_u32 v{D_+i}, v{R_+i}, v{K_+i}, 3"); o(f"ds_write_b64 v{D_+i}, {vr(P_+2*i,2)} offset:6144")
    o("s_mov_b64 exec, -1")
    stamp(9)
    o("s_cmp_lg_u32 s33, 7"); o("s_cbranch_scc1 K1_O2")
    o("s_lshr_b32 s34, s31, 3"); o("s_add_u32 s34, s34, 256")
    for j in range(8): o(f"v_lshl_add_u32 v{24+j}, v{24+j}, 19, v{32+j}"); o(f"v_add_u32 v{24+j}, s34, v{24+j}")
    o("ds_write_b128 v20, v[24:27] offset:4096"); o("ds_write_b128 v20, v[28:31] offset:4112")
    lab("K1_O2")
    NC = (CB + 8191) // 8192
    o(f"v_cmp_gt_u32 vcc, {CB//16-512*(NC-1)}, v0"); o("v_add_u32 v41, 0x9000, v40")
    o("s_waitcnt lgkmcnt(0)"); o("s_barrier"); stamp(4)
    for j in range(NC): o(f"ds_read_b128 {vr(64+4*j,4)}, " + (f"v40 offset:{4096+8192*j}" if j < 4 else f"v41 offset:{8192*(j-4)}"))
    for j in range(NC):
        if j == NC - 1: o("s_and_saveexec_b64 s[28:29], vcc"); o("s_cbranch_execz K1_SE")
        o(f"s_waitcnt lgkmcnt({NC-1-j})")
        o(f"buffer_store_dwordx4 {vr(64+4*j,4)}, v40, s[24:27], s31 offen {rpol}"); o("s_add_u32 s31, s31, 8192")
    lab("K1_SE")
    if STAMP: o(f"s_add_u32 s2, s2, {NG}"); o("s_waitcnt vmcnt(0)"); stamp_out(2, 12, 24, 0)
    o("s_endpgm")
    lab("K1_PREP")
    o("s_barrier")
    o("s_cmp_lg_u32 s33, 7"); o("s_cbranch_scc1 K1_B")
    o("s_mov_b64 exec, -1")
    o("v_and_b32 v4, 3, v0"); o("v_bfe_u32 v5, v0, 3, 2"); o("v_lshl_or_b32 v4, v5, 2, v4")
    o("v_bfe_u32 v5, v0, 2, 1"); o("v_lshl_or_b32 v4, v5, 4, v4"); o("v_lshlrev_b32 v42, 4, v20")
    o("s_mov_b32 s70, s2"); o(f"s_add_u32 s71, s2, {NCH}"); o("s_cmp_lt_u32 s71, 68"); o("s_cselect_b32 s71, s71, s2")
    for u in range(2):
        U = 70 + u; V = 64 + 8 * u
        o(f"s_lshr_b32 s14, s{U}, 5")
        o("s_cmp_eq_u32 s14, 1"); o("s_cselect_b32 s64, s46, s40"); o("s_cselect_b32 s65, s47, s41"); o(f"s_cselect_b32 s{68+u}, 1.0, {NLOG2E:#x}")
        o("s_mov_b32 s66, 32768"); o(f"s_bfe_u32 s50, s{U}, 0x20003"); o(f"s_and_b32 s51, s{U}, 7"); o("s_mov_b32 s32, 14")
        o("s_cmp_eq_u32 s14, 2"); o("s_cselect_b32 s64, s44, s64"); o("s_cselect_b32 s65, s45, s65"); o("s_cselect_b32 s66, 4096, s66")
        o("s_cselect_b32 s50, s51, s50"); o("s_cselect_b32 s51, 0, s51"); o("s_cselect_b32 s32, 11, s32")
        o("s_and_b32 s65, s65, 0xffff"); o("s_mov_b32 s67, 0x20000")
        o("s_lshl_b32 s50, s50, 6"); o("s_lshl_b32 s51, s51, 11"); o("s_add_u32 s50, s50, s51")
        o("v_lshlrev_b32 v5, s32, v57"); o("v_lshl_add_u32 v5, v4, 1, v5"); o("v_add_u32 v5, s50, v5")
        for j in range(8): o(f"buffer_load_ushort v{V+j}, v5, s[64:67], 0 offen offset:{j*256}")
    for u in range(2):
        U = 70 + u; V = 64 + 8 * u
        o(f"s_lshl_b32 s14, s{U}, 10"); o(f"s_add_u32 s14, s14, {WS_WF:#x}")
        o(f"s_waitcnt vmcnt({8 if u == 0 else 1})")
        for j in range(8):
            o(f"v_lshlrev_b32 v{V+j}, 16, v{V+j}"); o(f"v_mul_f32 v{V+j}, s{68+u}, v{V+j}")
        for j in range(4): o(f"v_cvt_pk_bf16_f32 v{8+4*u+j}, v{V+2*j}, v{V+1+2*j}")
        o(f"buffer_store_dwordx4 {vr(8+4*u,4)}, v42, s[24:27], s14 offen " + OPT.get('wfpol', ''))
    o("s_branch K1_B")

def regs_of(tok):
    m = re.fullmatch(r"v\[(\d+):(\d+)\]", tok)
    if m: return set(range(int(m.group(1)), int(m.group(2)) + 1))
    m = re.fullmatch(r"v(\d+)", tok)
    return {int(m.group(1))} if m else set()
def check_hazards(ins):
    P = []
    for s in ins:
        if s.endswith(':'): continue
        op, _, rest = s.partition(' ')
        t = [x.strip() for x in rest.split(',')]
        t = [x.split(' ')[0] for x in t]
        if op.startswith('v_mfma'):
            P.append(('m', 12 if '32x32' in op else 8, regs_of(t[0]), regs_of(t[1]) | regs_of(t[2]), regs_of(t[3]), s))
        elif op.startswith('v_'):
            P.append(('t' if op in ('v_exp_f32', 'v_rcp_f32') else 'v', 0, regs_of(t[0]), set().union(*map(regs_of, t[1:])), set(), s))
        elif op.startswith('ds_read'):
            P.append(('d', 0, regs_of(t[0]), regs_of(t[1]), set(), s))
        elif op.startswith('buffer'):
            P.append(('d', 0, set(), regs_of(t[0]), set(), s))
        else: P.append(('s', 0, set(), set(), set(), s))
    n = len(P)
    for i, (k, w, d, ab, c, s) in enumerate(P):
        for j in range(1, 13):
            k2, w2, d2, ab2, c2, s2 = P[(i + j) % n]
            gap = j - 1
            if k == 'm':
                if k2 == 'm':
                    assert not (gap < w and d & ab2), (s, s2)
                    if d & c2 and d != c2: assert gap >= w - 2, (s, s2)
                else: assert not (gap < w and d & (d2 | ab2)), (s, s2, gap)
                if k2 in 'vt': assert not (gap < (7 if w == 12 else 3) and c & d2), (s, s2)
            if k in 'vt' and k2 == 'm': assert not (gap < 2 and d & (ab2 | c2)), (s, s2)
            if k == 't' and k2 == 'v': assert not (gap < 1 and d & ab2), (s, s2)

LOWLIM = 500 // NCH; LIM = 4 * LPS; LG = LPS.bit_length() - 1; NS = 2
LW = [1, 2, 4, 8, 19, 37, 74, 150] if int(OPT.get('lw', 0)) else [1, 2, 4, 8, 16, 32, 64, 128]
LUT = 0; IDT = (sum(LW) + 1) * 16; NB = IDT + 512; LIST = NB + 256; MB = LIST + 8192; ROW = 264; CNT = MB + 26 * ROW; ZSZ = 26 * ROW + 256
ER = CNT + 256; RING = ER + 8192; WS_ = 4160; SLOT = 4 * WS_; K2_LDS = RING + (NS + 1) * SLOT
G8 = int(OPT.get('g8', 0)); GS = (K2_LDS - NB + 255) // 256 * 256
assert K2_LDS <= 81920 and ER % 16 == 0 and LIST % 16 == 0 and MB % 16 == 0 and 4096 < ZSZ <= 8192 and ZSZ % 16 == 0

class RA:
    def __init__(s): s.n = 1
    def get(s, k=1, al=1):
        s.n = (s.n + al - 1) // al * al
        b = s.n; s.n += k; return b
R = RA()
vTA = R.get()
IX = [R.get(2, 2) for _ in range(4)]; IXE = R.get(2, 2); MQ = R.get(2, 2)
(vTC, vEA, vMT, vSA, vMA, vL1, vL2, vSV, vHC, vWF, vXA, vXR, vXI, vXO) = [R.get() for _ in range(14)]
SEG = R.get(4, 4); PT = R.get(4, 4)
GV = R.get(64, 4); ACC = R.get(64, 4)
TF = R.get(16, 4); EF = R.get(4, 4); SF = R.get(8, 4); WC = R.get(4, 4); T0 = R.get(8, 4); AF = R.get(16, 4); SEL = R.get(8, 4)
NVGPR = R.n
assert NVGPR <= 255, NVGPR
REC = GV; RANK = GV + 32; AD = GV + 48
sX, sE, sW, sO, sT = 8, 12, 16, 20, 96
sWAVE, sBASE, sMR, sME, sCNT, sNT, sRS, sLIM, sFIRST, sMORE, sDS, sT0, sT1, sEPS, s80, sMET = range(24, 40)
sHM, sSV, sWF, sS0 = 42, 44, 52, 54
sK = 56
sG = 95
def addg(v):
    if G8: o(f"v_add_u32 v{v}, s{sG}, v{v}")
def saddg(r):
    if G8: o(f"s_add_u32 s{r}, s{r}, s{sG}")

def ldt(i): return f"buffer_load_dwordx4 {vr(IX[i],2)}, s[{sT}:{sT+3}], 0 idxen offen {OPT.get('tpol', '').replace('+', ' ')} lds".replace("  ", " ")
def lde(): return f"buffer_load_dwordx4 {vr(IXE,2)}, s[{sE}:{sE+3}], 0 idxen offen {OPT.get('epol', '').replace('+', ' ')} lds".replace("  ", " ")
def loff(u): return (u & 1) * 4096 + (u >> 1) * 256
def nextslot(r): return [f"s_add_u32 s{r}, s{r}, {SLOT}", f"s_cmp_eq_u32 s{r}, {NS*SLOT}", f"s_cselect_b32 s{r}, 0, s{r}"]

def vstream(Gc, Vc):
    A = []
    for p in range(0, 22, 2):
        if p < 16: A += [(f"v_exp_f32 v{Gc+p}, v{Gc+p}", 8), (f"v_exp_f32 v{Gc+p+1}, v{Gc+p+1}", 8)]
        q = p - 2
        if 0 <= q < 16:
            if 'a' in OPT.get('pk', ''): A += [(f"v_pk_add_f32 {vr(Gc+q,2)}, {vr(Gc+q,2)}, 1.0 op_sel_hi:[1,0]", 4)]
            else: A += [(f"v_add_f32 v{Gc+q}, 1.0, v{Gc+q}", 4), (f"v_add_f32 v{Gc+q+1}, 1.0, v{Gc+q+1}", 4)]
            A += [(f"v_rcp_f32 v{Gc+q}, v{Gc+q}", 8), (f"v_rcp_f32 v{Gc+q+1}, v{Gc+q+1}", 8)]
        q = p - 4
        if 0 <= q < 16 and 'm' in OPT.get('pk', ''): A += [(f"v_pk_mul_f32 {vr(Vc+q,2)}, {vr(Gc+q,2)}, {vr(Vc+q,2)}", 4)]
        elif 0 <= q < 16: A += [(f"v_mul_f32 v{Vc+q}, v{Gc+q}, v{Vc+q}", 4), (f"v_mul_f32 v{Vc+q+1}, v{Gc+q+1}, v{Vc+q+1}", 4)]
        q = p - 6
        if 0 <= q < 16: A += [(f"v_cvt_pk_bf16_f32 v{Gc+q//2}, v{Gc+q}, v{Gc+q+1}", 4), (f"v_cvt_pk_bf16_f32 v{Vc+q//2}, v{Vc+q}, v{Vc+q+1}", 4)]
    return A
def zphase(P, p):
    d = ACC + 32 * p
    return [m32(d, P, T0, d), m32(d+16, P+16, T0, d+16), m32(d, P+4, T0+4, d), m32(d+16, P+20, T0+4, d+16)]

HEAD = {}
def body(b, peel=False):
    p = b % 2
    Gn = GV + 32 * p; Vn = Gn + 16; Gc = GV + 32 * (1 - p); Vc = Gc + 16; af = AF + 8 * p
    ne = sum(1 for k in range(NS - 1) if (b - k) % 4 == 0) + (1 if (b - (NS - 1)) % 4 == 0 else 0)
    vmw = 4 * (NS - 1) + ne
    z = zphase(Gn, p)
    def dma(i): return [f"s_add_u32 m0, s{sMR}, {p*SLOT + i*1040}", None, ldt(i), f"ds_read_u16 v{IX[i]}, v{vL1} offset:{loff(b+NS+1)+64*i}"]
    top = ["s_waitcnt vmcnt(8) lgkmcnt(0)", "s_barrier"] if b == 3 else ["s_waitcnt lgkmcnt(0)"]
    if G8 and OPT.get('sp', '2103') != '0': top.append(f"s_setprio {OPT.get('sp', '2103')[b]}")
    if G8 and OPT.get('bar2') and b == 1: top.insert(1, "s_barrier")
    seq = []
    seq.append([z[0], [], []])
    seq.append([z[1], [f"ds_read_b128 {vr(SF,4)}, v{vSV} offset:{IDT}", f"ds_read_b128 {vr(SF+4,4)}, v{vSV} offset:{IDT+256}"], []])
    seq.append([z[2], [f"ds_read_u8 v{vSV}, v{vSA} offset:{loff(b+1)}"], []])
    seq.append([z[3], [f"s_sub_u32 s{sCNT}, s{sCNT}, 1", f"s_cbranch_scc1 TAIL{p}", f"ENT{b}:"], []])
    seq.append([m32(Gn, TF, SEL, None), [f"ds_read_b128 {vr(T0,4)}, v{MQ}"], [f"v_and_b32 v{IXE}, 0x7ffff, v{IXE}"] if b == 0 else []])
    seq.append([m32(Gn, TF+4, SEL+4, Gn), [f"ds_read_b128 {vr(T0+4,4)}, v{MQ+1}"], [f"v_xor_b32 v{vEA}, v{vEA}, v{vMT}"] if b == 3 else []])
    seq.append([m32(Gn, EF, WC, Gn), [f"ds_read_b128 {vr(EF,4)}, v{vEA} offset:{(b+1)%4*1024}", f"ds_read_u16 v{MQ}, v{vMA} offset:{b*8}",
                f"ds_read_u16 v{MQ+1}, v{vMA} offset:{b*8+2}"], []])
    seq.append([m32(Vn, TF+8, SEL, None), [f"ds_read_b32 v{IXE}, v{vL2}"] if b == 3 else [], []])
    seq.append([m32(Vn, TF+12, SEL+4, Vn), ["s_waitcnt lgkmcnt(S)"], []])
    seq.append([m32(Gn, SF, af, Gn), [f"s_waitcnt vmcnt({vmw})"], []])
    seq.append([m32(Gn, SF+4, af+4, Gn), [f"ds_read_b128 {vr(TF+4*j,4)}, v{vTA} offset:{(1-p)*SLOT+16*j}" for j in range(4)],
                [f"v_add_u32 v{r}, 0x200, v{r}" for r in (vSA, vL1, vL2)] + [f"v_add_u32 v{vMA}, 32, v{vMA}"] if b == 3 else []])
    dp = [int(c) for c in OPT.get('dp', '03589')]
    for i in range(4): seq[dp[i]][1] = seq[dp[i]][1] + dma(i)
    if b == 0: seq[dp[4]][1] = seq[dp[4]][1] + [f"s_mov_b32 m0, s{sME}", None, lde(), f"s_xor_b32 s{sME}, s{sME}, s{sMET}"]
    A = [] if peel else vstream(Gc, Vc)
    wt = [float(x) for x in OPT.get('wt', '1,1,1,1,1,1,1,1,1,1,1.6').split(',')]
    tot = sum(c for _, c in A); out = list(top); ai = 0; acc = 0; budget = 0
    for i, (m, ex, xv) in enumerate(seq):
        budget += tot * wt[i] / sum(wt)
        g = []
        while ai < len(A) and acc + A[ai][1] / 2 <= budget + 0.01:
            g.append(A[ai][0]); acc += A[ai][1]; ai += 1
        if i == 3 and not peel: HEAD[b] = ai
        if not (peel and i < 4): out.append(m)
        g = xv + g
        last = [x for x in ex if x and (x.startswith("s_waitcnt") or x.startswith("s_cbranch") or x.endswith(":") or x.startswith("s_sub"))]
        ex = [x for x in ex if x not in last]
        if peel: last = [x for x in last if x.startswith("s_waitcnt")]
        first = True
        for x in ex:
            if x is None:
                continue
            if not first and g: out.append(g.pop(0))
            elif not first and peel and x.startswith("buffer"): out.append("s_nop 0")
            out.append(x); first = False
        out += g + last
    assert ai == len(A)
    i0 = max(i for i, x in enumerate(out) if x.startswith(f"ds_read_b128 {vr(SF+4,4)}")); i1 = out.index("s_waitcnt lgkmcnt(S)")
    out[i1] = f"s_waitcnt lgkmcnt({sum(1 for x in out[i0+1:i1] if x.startswith('ds_'))})"
    for i, x in enumerate(out):
        if x.startswith("buffer_load"): assert not out[i-1].split()[1].startswith("m0"), (out[i-1], x)
    if OPT.get('fakec'):
        n2 = []
        for x in out:
            if x.startswith("v_mfma") and (f", {vr(SEL,4)}," in x or f", {vr(SEL+4,4)}," in x):
                j = (int(re.findall(r"v\[(\d+):", x)[1]) - TF)
                n2 += [f"v_lshlrev_b32 v{Vn+j+k}, 16, v{TF+j+k}" for k in range(4)]
            elif x == m32(Gn, EF, WC, Gn): n2.append(m32(Gn, EF, WC, TF))
            elif x.startswith("ds_read_b128") and f"v{vTA} " in x:
                j = int(re.findall(r"v\[(\d+):", x)[0]) - TF
                n2 += [f"ds_read2st64_b32 {vr(TF+j+2*k,2)}, v{vTC} offset0:{(1-p)*65+j+2*k} offset1:{(1-p)*65+j+2*k+1}" for k in range(2)]
            else: n2.append(x)
        out = n2
    if OPT.get('notrans'): out = [x.replace("v_exp_f32", "v_mov_b32").replace("v_rcp_f32", "v_mov_b32") for x in out]
    if OPT.get('noval'): out = ["s_nop 0" if (x.startswith("v_exp") or x.startswith("v_rcp")) else x for x in out if not (x.startswith("v_add_f32") or x.startswith("v_mul_f32") or x.startswith("v_cvt"))]
    if OPT.get('skel'):
        n2 = []
        for x in out:
            if x.startswith(("v_mfma", "v_exp", "v_rcp", "v_add_f32", "v_mul_f32", "v_cvt", "ds_read_b128")): continue
            if x.startswith("buffer_load"): n2.append("s_nop 0")
            if OPT['skel'] != '1' and x.startswith("s_waitcnt vmcnt") and "lgkm" not in x: x = f"s_waitcnt vmcnt({OPT['skel']})"
            if OPT['skel'] != '1' and x.startswith("s_waitcnt vmcnt(8) lgkm"): x = f"s_waitcnt vmcnt({max(8, int(OPT['skel']))}) lgkmcnt(0)"
            n2.append(x)
        out = n2
    if OPT.get('nodma'): out = [x for x in out if 'buffer_load' not in x]
    if OPT.get('noe'): out = [x for x in out if f"s[{sE}:{sE+3}]" not in x]
    return out

def emit(lst):
    for it in lst:
        if it.endswith(':'): lab(it[:-1])
        else: o(it)

def masks(tmp):
    a, b_, c = tmp
    o(f"v_and_b32 v{a}, {LPS-1}, v0"); o(f"v_lshlrev_b32 v{a}, 1, v{a}"); o(f"v_mov_b32 v{c}, 0")
    for i in range(4):
        o(f"v_lshrrev_b32 v{b_}, 19, v{SEG+i}"); o(f"v_max_u32 v{c}, v{c}, v{b_}")
        o(f"v_min_u32 v{b_}, s{sLIM}, v{b_}"); o(f"v_sub_u32 v{b_}, v{b_}, v{a}")
        for j, k in ((0, 2*i), (1, 2*i+1), (2*LPS, 8+2*i), (2*LPS+1, 9+2*i)): o(f"v_cmp_lt_i32 s[{sK+2*k}:{sK+2*k+1}], {j}, v{b_}")
    o(f"v_cmp_lt_u32 vcc, s{sLIM}, v{c}")
    o(f"s_or_b64 s[{sSV}:{sSV+1}], s[{sK+16}:{sK+17}], s[{sK+20}:{sK+21}]"); o(f"s_or_b64 s[{sHM}:{sHM+1}], s[{sK+24}:{sK+25}], s[{sK+28}:{sK+29}]")
    o(f"s_or_b64 s[{sSV}:{sSV+1}], s[{sSV}:{sSV+1}], s[{sHM}:{sHM+1}]")
    o(f"v_mov_b32 v{b_}, {CNT-4}"); addg(b_)
    o("s_mov_b64 exec, vcc"); o(f"ds_write_b32 v{b_}, v{b_}"); o("s_mov_b64 exec, -1")

def interleave(mf, other, per):
    other = list(other)
    for m in mf:
        o(m)
        for _ in range(per):
            if other: o(other.pop(0))
    for x in other: o(x)
def capture(fn):
    n = len(L); fn(); r = [x.strip() for x in L[n:]]; del L[n:]; return r
def wload(dst, off):
    r = []
    for s in range(8):
        if s % 4 == 0: r.append(f"s_add_u32 s{sT0}, s{sWF}, {off + s*1024:#x}")
        r.append(f"buffer_load_dwordx4 {vr(dst+4*s,4)}, v{vWF}, s[{sW}:{sW+3}], s{sT0} offen offset:{(s%4)*1024}")
    return r
def xblk(base, pair):
    o(f"v_mov_b32 v{pair+1}, v{vXO}")
    for mt in range(2):
        for a in range(2):
            o(f"s_add_u32 m0, s{base}, {(2*mt+a)*1040}")
            o(f"v_cmp_gt_u32 vcc, {(NA if mt == 0 else RN-NA) - 2*a}, v{vXI}")
            o(f"s_add_u32 s{sT0}, s{sBASE}, {NA*mt + 2*a}"); o(f"v_add_u32 v{pair}, s{sT0}, v{vXI}")
            o(f"v_cndmask_b32 v{pair}, v{PT+3}, v{pair}, vcc")
            o(f"buffer_load_dwordx4 {vr(pair,2)}, s[{sX}:{sX+3}], 0 idxen offen lds")

def lutw(d, j, tmp):
    o(f"v_lshlrev_b32 v{d}, v{j}, 16")
    if LW[4] != 16:
        corr = sum((LW[k] - (1 << k)) << (8 * (k - 4)) for k in range(4, 8))
        o(f"v_lshlrev_b32 v{tmp}, 3, v{j}"); o(f"v_add_u32 v{tmp}, -32, v{tmp}"); o(f"s_mov_b32 s{sT1}, {corr:#x}")
        o(f"v_cmp_lt_u32 vcc, 3, v{j}"); o(f"v_bfe_u32 v{tmp}, s{sT1}, v{tmp}, 8"); o("s_nop 0")
        o(f"v_cndmask_b32 v{tmp}, 0, v{tmp}, vcc"); o(f"v_lshl_add_u32 v{d}, v{tmp}, 4, v{d}")

def gen_k2():
    L.append(".globl gmain_kernel"); L.append(".p2align 8"); L.append(".type gmain_kernel,@function")
    lab("gmain_kernel"); VST[0] = 255
    t = [TF + i for i in range(28)]
    stamp(0)
    o("s_load_dwordx2 s[50:51], s[0:1], 88")
    o("s_load_dwordx4 s[4:7], s[0:1], 0")
    o("s_load_dwordx2 s[48:49], s[0:1], 72")
    o("s_setprio 3")
    o(f"v_lshrrev_b32 v{t[0]}, 6, v0")
    o("s_and_b32 s3, s2, 7"); o("s_lshl_b32 s3, s3, 6"); o(f"s_bfe_u32 s{sT0}, s2, 0x50003"); o(f"s_lshl1_add_u32 s3, s{sT0}, s3")
    o(f"v_readfirstlane_b32 s{sWAVE}, v{t[0]}")
    if G8:
        o("v_and_b32 v0, 0xff, v0"); o(f"s_lshr_b32 s{sT0}, s{sWAVE}, 2"); o(f"s_and_b32 s{sWAVE}, s{sWAVE}, 3"); o(f"s_mul_i32 s{sG}, s{sT0}, {GS}")
    else: o(f"s_lshr_b32 s{sT0}, s2, 8")
    o(f"s_add_u32 s3, s3, s{sT0}")
    o(f"s_cmp_ge_u32 s2, {256 if G8 else 512}"); o("s_cbranch_scc1 K2_END")
    o(f"s_cmp_ge_u32 s3, {NR}"); o("s_cbranch_scc1 K2_END")
    o(f"v_lshrrev_b32 v{t[1]}, {LG}, v0")
    o(f"s_lshl_b32 s88, s3, 2")
    o(f"v_mul_u32_u24 v{t[1]}, {CB}, v{t[1]}"); o(f"v_add_u32 v{t[1]}, s88, v{t[1]}")
    for i in range(1, 4): o(f"v_add_u32 v{t[1+i]}, {16*i*CB:#x}, v{t[1]}")
    o(f"s_mul_i32 s{sBASE}, s3, {RN}")
    o(f"v_and_b32 v{vWF}, 63, v0"); o(f"v_lshlrev_b32 v{vWF}, 4, v{vWF}")
    o(f"s_mul_i32 s{sMR}, s{sWAVE}, {WS_}"); o(f"s_add_u32 s{sMR}, s{sMR}, {RING}"); saddg(sMR)
    o(f"s_lshl_b32 s{sWF}, s{sWAVE}, 13"); o(f"s_add_u32 s{sWF}, s{sWF}, {WS_WF:#x}")
    o(f"s_mov_b32 s40, {EPS:#x}"); o("s_mov_b32 s41, s40"); o(f"s_movk_i32 s{s80}, 80")
    o(f"s_mov_b32 s{sFIRST}, 1"); o(f"s_mov_b32 s{sLIM}, {LIM}")
    o("s_cmp_ge_u32 s2, 256"); o(f"s_cselect_b32 s{sRS}, {OPT.get('bon', 0)}, 0")
    o("s_waitcnt lgkmcnt(0)"); xstamp("karg")
    srd(sW, 50, WS_SIZE)
    o(f"s_mov_b32 s{sW+2}, {NCH*CB:#x}")
    for i in range(4): o(f"buffer_load_dword v{SEG+i}, v{t[1+i]}, s[{sW}:{sW+3}], 0 offen")
    o(f"s_mov_b32 s{sW+2}, {WS_SIZE:#x}")
    srd(sX, 4, N, 256); srd(sE, 6, E, 32); srd(sO, 48, N, 256)
    o(f"s_add_u32 s50, s50, {WS_TAB:#x}"); o("s_addc_u32 s51, s51, 0")
    if SM: o(f"s_mul_i32 s{sT0}, s{sWAVE}, {SMS}"); o(f"s_add_u32 s50, s50, s{sT0}"); o("s_addc_u32 s51, s51, 0")
    srd(sT, 50, N, 128 if SM else 512)
    WAP = OPT.get('wap', 'p1'); XBP = OPT.get('xbp', 'p1'); ORD = ['start', 'rec', 'mask', 'p1', 'b1']
    def place(where):
        if where not in (WAP, XBP): return
        o(f"s_cmp_eq_u32 s{sFIRST}, 0"); o(f"s_cbranch_scc1 NOW_{where}")
        if XBP == where:
            o(f"s_add_u32 s{sNT}, s{sMR}, {NS*SLOT}")
            xblk(sNT, T0)
        if WAP == where:
            for x in wload(ACC, WF_A): o(x)
            o(f"s_lshl_b32 s{sT0}, s{sWAVE}, 10"); o(f"s_add_u32 s{sT0}, s{sT0}, {WS_WF+WF_C:#x}")
            o(f"buffer_load_dwordx4 {vr(WC,4)}, v{vWF}, s[{sW}:{sW+3}], s{sT0} offen")
        if OPT.get('otouch') and WAP == where:
            o(f"v_mov_b32 v{T0+6}, s{sBASE}"); o(f"buffer_load_dword v{SEL}, v{T0+6}, s[{sO}:{sO+3}], 0 idxen")
        lab(f"NOW_{where}")
    def cnt(lo, hi): return sum(n for p, n in ((WAP, 9), (XBP, 4)) if lo <= ORD.index(p) <= hi)
    SP = [int(x) for x in OPT.get('spf', '0,0').split(',')]
    def spref(n, first):
        for k in range(n): o(f"s_load_dword s{88 + k % 4}, s[46:47], {(first + k) * 32768:#x}")
    if sum(SP):
        o(f"s_and_b32 s{sT0}, s3, 63"); o(f"s_lshl2_add_u32 s{sT0}, s{sT0}, s{sWAVE}"); o(f"s_lshl_b32 s{sT0}, s{sT0}, 7")
        o(f"s_add_u32 s46, s50, s{sT0}"); o("s_addc_u32 s47, s51, 0")
        spref(SP[0], 0)
    lab("ROUND")
    b0, b2, b3, b4, vh = t[16:21]
    o(f"v_lshlrev_b32 v{t[11]}, 4, v0"); addg(t[11])
    for d in range(4): o(f"v_mov_b32 v{t[0]+d}, 0")
    for off in (0, ZSZ - 4096): o(f"ds_write_b128 v{t[11]}, {vr(t[0],4)} offset:{MB+off}")
    pad0 = 0xffff | (NA << 16)
    o(f"v_mov_b32 v{t[4]}, {pad0:#x}"); o(f"v_mov_b32 v{t[5]}, 0x7ffff"); o(f"v_mov_b32 v{t[6]}, {pad0:#x}"); o(f"v_mov_b32 v{t[7]}, 0x7ffff")
    o(f"ds_write_b128 v{t[11]}, {vr(t[4],4)} offset:{LIST}"); o(f"ds_write_b128 v{t[11]}, {vr(t[4],4)} offset:{LIST+4096}")
    o(f"v_and_b32 v{b0}, 1, v0"); o(f"v_bfe_u32 v{b2}, v0, 2, 1"); o(f"v_bfe_u32 v{b3}, v0, 3, 1"); o(f"v_bfe_u32 v{b4}, v0, 4, 1"); o(f"v_bfe_u32 v{vh}, v0, 5, 1")
    o(f"v_and_b32 v{t[8]}, {LPS-1}, v0"); o(f"v_lshlrev_b32 v{t[8]}, 1, v{t[8]}")
    o(f"v_mov_b32 v{t[9]}, 0x7ffffff0"); o(f"s_mov_b32 s{sT1}, 0x7ffff")
    o(f"v_and_b32 v{t[12]}, 15, v0"); o(f"v_lshlrev_b32 v{t[13]}, 3, v{b4}")
    o(f"v_xor_b32 v{vXO}, v{t[12]}, v{t[13]}"); o(f"v_lshlrev_b32 v{vXO}, 4, v{vXO}")
    o(f"s_lshr_b32 s{sT0}, s{sWAVE}, 1"); o(f"s_lshl_b32 s{sT0}, s{sT0}, 4"); o(f"s_and_b32 s{sS0}, s{sWAVE}, 1"); o(f"s_lshl2_add_u32 s{sT0}, s{sS0}, s{sT0}")
    o(f"v_lshl_add_u32 v{vXI}, v{vh}, 3, v{b4}"); o(f"v_add_u32 v{vXI}, s{sT0}, v{vXI}")
    o(f"v_mov_b32 v{PT+3}, 0xffff")
    place('start')
    xstamp("consts_done")
    o(f"s_waitcnt vmcnt({cnt(0, 0)})"); stamp(1)
    for i in range(4):
        o(f"v_lshrrev_b32 v{t[4+i]}, 19, v{SEG+i}"); o(f"v_cmp_lt_u32 vcc, v{t[8]}, v{t[4+i]}")
        o(f"v_and_b32 v{t[i]}, s{sT1}, v{SEG+i}"); o(f"v_add_lshl_u32 v{t[i]}, v{t[i]}, v{t[8]}, 3")
        o(f"v_cndmask_b32 v{t[10]}, v{t[9]}, v{t[i]}, vcc")
        o(f"buffer_load_dwordx4 {vr(REC+4*i,4)}, v{t[10]}, s[{sW}:{sW+3}], 0 offen")
    o(f"v_max3_u32 v{t[10]}, v{t[4]}, v{t[5]}, v{t[6]}"); o(f"v_max_u32 v{t[10]}, v{t[10]}, v{t[7]}")
    o(f"v_cmp_lt_u32 vcc, {2*LPS}, v{t[10]}"); o("s_cbranch_vccz REC_DONE")
    for i in range(4): o(f"buffer_load_dwordx4 {vr(REC+16+4*i,4)}, v{t[i]}, s[{sW}:{sW+3}], 0 offen offset:{16*LPS}")
    lab("REC_DONE")
    xstamp("rec_issued")
    PF = int(OPT.get('pf', 0))
    def pref():
        o(f"s_lshr_b32 s{sT0}, s3, 6"); o(f"s_mul_i32 s{sT0}, s{sT0}, {64*RN}"); o(f"s_and_b32 s{sT1}, s3, 63"); o(f"s_lshl_b32 s{sT1}, s{sT1}, 6"); o(f"s_add_u32 s{sT0}, s{sT0}, s{sT1}")
        o(f"v_lshrrev_b32 v{T0+2}, 2, v0"); o(f"v_add_u32 v{T0+2}, s{sT0}, v{T0+2}"); o(f"v_and_b32 v{T0+1}, 3, v0"); o(f"v_lshlrev_b32 v{T0+1}, 7, v{T0+1}")
        for k in range(PF):
            o(f"v_add_u32 v{T0+3}, {-512*RN}, v{T0+2}"); o(f"v_min_u32 v{T0}, v{T0+2}, v{T0+3}")
            o(f"buffer_load_dword v{SEL}, {vr(T0,2)}, s[{sT}:{sT+3}], 0 idxen offen")
            if k + 1 < PF: o(f"v_add_u32 v{T0+2}, 4096, v{T0+2}")
    PFW = OPT.get('pfw', 'rec')
    place('rec')
    if PF and PFW == 'rec': pref()
    o("s_waitcnt lgkmcnt(0)"); o("s_barrier"); stamp(2)
    spref(SP[1], SP[0])
    pp = t[14]
    o(f"v_and_b32 v{pp}, 0x13, v0"); o(f"v_lshl_or_b32 v{pp}, v{b2}, 3, v{pp}"); o(f"v_lshl_or_b32 v{pp}, v{b3}, 2, v{pp}")
    o(f"v_lshrrev_b32 v{t[12]}, 3, v{pp}"); o(f"v_lshlrev_b32 v{vTA}, 7, v{pp}"); o(f"v_lshl_add_u32 v{vTA}, v{t[12]}, 4, v{vTA}")
    o(f"v_bfe_u32 v{t[13]}, v0, 1, 1"); o(f"v_xor_b32 v{t[12]}, v{t[13]}, v{vh}"); o(f"v_lshl_add_u32 v{vTA}, v{t[12]}, 6, v{vTA}"); o(f"v_add_u32 v{vTA}, s{sMR}, v{vTA}")
    o(f"v_and_b32 v{t[12]}, 7, v0"); o(f"v_lshlrev_b32 v{t[15]}, 2, v{b4}"); o(f"v_xor_b32 v{t[15]}, v{t[15]}, v{t[12]}")
    o(f"s_mov_b32 s{sT0}, 0" if SM else f"s_lshl_b32 s{sT0}, s{sWAVE}, 7"); o(f"v_lshl_add_u32 v{IX[0]+1}, v{t[15]}, 4, s{sT0}")
    for i in range(1, 4): o(f"v_mov_b32 v{IX[i]+1}, v{IX[0]+1}")
    o(f"v_and_b32 v{vL1}, 0x38, v0"); o(f"v_add_u32 v{vL1}, {LIST}, v{vL1}"); addg(vL1)
    o(f"v_lshl_or_b32 v{t[15]}, v{b4}, 1, v{b2}"); o(f"v_mul_u32_u24 v{t[15]}, {WS_}, v{t[15]}"); o(f"v_mul_u32_u24 v{t[13]}, 1040, v{t[13]}")
    o(f"v_lshl_or_b32 v{t[21]}, v{b3}, 1, v{b0}"); o(f"v_lshl_add_u32 v{t[15]}, v{t[21]}, 8, v{t[15]}"); o(f"v_add3_u32 v{t[15]}, v{t[15]}, v{t[13]}, {'s%d' % sG if G8 else 0}")
    o(f"v_add_u32 v{t[15]}, {RING + NS*SLOT}, v{t[15]}")
    o(f"v_xor_b32 v{t[13]}, v{vh}, v{b0}"); o(f"v_lshl_add_u32 v{vXA}, v{t[13]}, 7, v{t[15]}")
    o(f"v_lshlrev_b32 v{IXE+1}, 4, v{t[13]}")
    o(f"v_bfe_u32 v{t[13]}, v0, 7, 1"); o(f"v_xor_b32 v{t[13]}, v{t[13]}, v{b0}"); o(f"v_lshl_add_u32 v{vXR}, v{t[13]}, 7, v{t[15]}")
    o(f"v_and_b32 v{t[13]}, 0x60, v0"); o(f"v_add_u32 v{vXR}, v{vXR}, v{t[13]}")
    o(f"s_lshl_b32 s{sT0}, s{sS0}, 12"); o(f"s_lshr_b32 s{sT1}, s{sWAVE}, 1"); o(f"s_lshl_b32 s{sT1}, s{sT1}, 8"); o(f"s_add_u32 s{sT0}, s{sT0}, s{sT1}"); o(f"s_add_u32 s{sT0}, s{sT0}, {LIST+4}"); saddg(sT0)
    o(f"v_bfe_u32 v{vL2}, v0, 1, 5"); o(f"v_lshl_add_u32 v{vL2}, v{vL2}, 3, s{sT0}")
    o(f"s_lshl_b32 s{sME}, s{sWAVE}, 10"); o(f"s_add_u32 s{sME}, s{sME}, {ER}"); saddg(sME)
    o(f"v_lshl_add_u32 v{vSA}, v{pp}, 3, v{vh}"); o(f"v_add_u32 v{vSA}, {LIST+2}, v{vSA}"); addg(vSA)
    o(f"v_xor_b32 v{vEA}, v{b4}, v{vh}"); o(f"v_lshlrev_b32 v{vEA}, 4, v{vEA}")
    o(f"v_lshl_add_u32 v{vEA}, v{pp}, 5, v{vEA}"); o(f"v_add_u32 v{vEA}, {ER}, v{vEA}"); addg(vEA)
    o(f"v_add_u32 v{vMT}, 4096, v{vEA}"); o(f"v_xor_b32 v{vMT}, v{vMT}, v{vEA}")
    o(f"v_and_b32 v{t[13]}, 31, v0"); o(f"v_min_u32 v{t[13]}, {NA}, v{t[13]}")
    o(f"v_mul_u32_u24 v{vMA}, {ROW}, v{t[13]}"); o(f"v_lshl_add_u32 v{vMA}, v{vh}, 2, v{vMA}"); o(f"v_add_u32 v{vMA}, {MB}, v{vMA}"); addg(vMA)
    o(f"v_lshrrev_b32 v{PT+2}, 5, v0"); o(f"v_lshlrev_b32 v{PT+2}, 4, v{PT+2}"); o(f"v_lshl_add_u32 v{PT+2}, v{b3}, 2, v{PT+2}"); addg(PT+2)
    lutw(PT+1, t[12], t[13]); o(f"v_lshlrev_b32 v{t[13]}, 4, v{b4}"); o(f"v_lshlrev_b32 v{PT+1}, v{t[13]}, v{PT+1}")
    o(f"v_and_b32 v{t[12]}, 3, v0"); o(f"v_lshl_add_u32 v{t[15]}, v{b4}, 2, v{t[12]}"); lutw(t[12], t[15], t[13])
    o(f"v_cmp_eq_u32 vcc, v{b3}, v{vh}"); o(f"v_lshlrev_b32 v{t[13]}, 4, v{b2}"); o("s_nop 0")
    o(f"v_cndmask_b32 v{t[12]}, 0, v{t[12]}, vcc"); o(f"v_lshlrev_b32 v{PT}, v{t[13]}, v{t[12]}")
    place('mask')
    if cnt(1, 2):
        o(f"s_cmp_eq_u32 s{sFIRST}, 1"); o("s_cbranch_scc1 REMASK"); o("s_waitcnt vmcnt(0)")
    lab("REMASK")
    masks((t[0], t[1], t[2])); xstamp("masks_done")
    a, b_, c, d_ = t[0:4]; ad = [AD + k for k in range(16)]
    o(f"v_mov_b32 v{a}, 8")
    o(f"v_lshrrev_b32 v{b_}, 2, v{vWF}"); addg(b_)
    if G8: o(f"s_lshr_b32 s{sDS}, s{sG}, 8")
    if PF and PFW == 'mask': pref()
    o(f"s_waitcnt vmcnt({cnt(1, 2)})"); xstamp("rec_landed")
    for half in range(2):
        if half: o(f"s_cmp_eq_u64 s[{sSV}:{sSV+1}], 0"); o("s_cbranch_scc1 P1_DONE"); o("s_mov_b64 exec, -1")
        for k in range(8*half, 8*half+8): o(f"v_alignbit_b32 v{ad[k]}, s{sDS}, v{REC+2*k+1}, 24" if G8 else f"v_lshrrev_b32 v{ad[k]}, 24, v{REC+2*k+1}")
        for k in range(8*half, 8*half+8):
            o(f"s_mov_b64 exec, s[{sK+2*k}:{sK+2*k+1}]")
            o(f"ds_add_rtn_u32 v{RANK+k}, v{ad[k]}, v{a} offset:{CNT}")
    lab("P1_DONE")
    o("s_mov_b64 exec, -1")
    EP = OPT.get('ep', '')
    def epf():
        o(f"s_mov_b32 s{sT1}, {int(OPT.get('epm', '0x7007ffff'), 0):#x}")
        for k in range(8):
            o(f"v_and_b32 v{T0+k}, s{sT1}, v{REC+2*k+1}"); o(f"buffer_load_dword v{SEL}, v{T0+k}, s[{sE}:{sE+3}], 0 idxen")
    if EP == 'a': epf()
    place('p1')
    if EP == 'b': epf()
    if PF and PFW == 'p1': pref()
    o("s_waitcnt lgkmcnt(0)"); xstamp("p1_done"); o("s_barrier"); xstamp("b1")
    o(f"ds_read_b32 v{c}, v{b_} offset:{CNT}")
    o(f"ds_read_b32 v{t[4]}, v{b_} offset:{CNT-4}")
    place('b1')
    o(f"v_lshlrev_b32 v{t[5]}, 12, v{vh}"); addg(t[5])
    o("s_waitcnt lgkmcnt(1)")
    o(f"v_sub_u32 v{d_}, v{t[5]}, v{c}")
    for dd in ("row_shr:1", "row_shr:2", "row_shr:4", "row_shr:8"):
        o(f"v_add_u32_dpp v{c}, v{c}, v{c} {dd} row_mask:0xf bank_mask:0xf bound_ctrl:0"); o("s_nop 1")
    o(f"v_add_u32_dpp v{c}, v{c}, v{c} row_bcast:15 row_mask:0xa bank_mask:0xf")
    o(f"v_add_u32 v{d_}, v{c}, v{d_}")
    o(f"ds_write_b32 v{b_}, v{d_} offset:{NB}")
    o(f"v_readlane_b32 s{sNT}, v{c}, 31"); o(f"v_readlane_b32 s{sCNT}, v{c}, 63")
    for k in range(8): o(f"ds_read_b32 v{ad[k]}, v{ad[k]} offset:{NB}")
    o(f"s_max_u32 s{sT0}, s{sNT}, s{sCNT}")
    o(f"s_cmp_le_u32 s{sT0}, 4096"); o("s_cbranch_scc0 TOOBIG")
    xstamp("scan_done")
    for half in range(2):
        if half:
            o(f"s_cmp_eq_u64 s[{sSV}:{sSV+1}], 0"); o("s_cbranch_scc1 P2_DONE"); o("s_mov_b64 exec, -1")
            for k in range(8, 16): o(f"ds_read_b32 v{ad[k]}, v{ad[k]} offset:{NB}")
        for k in range(8*half, 8*half+8):
            if k % 4 == 0: o(f"s_waitcnt lgkmcnt({4 - k % 8})")
            o(f"v_add_u32 v{RANK+k}, v{RANK+k}, v{ad[k]}")
        for k in range(8*half, 8*half+8):
            o(f"s_mov_b64 exec, s[{sK+2*k}:{sK+2*k+1}]")
            o(f"ds_write_b64 v{RANK+k}, {vr(REC+2*k,2)} offset:{LIST}")
    lab("P2_DONE")
    o("s_mov_b64 exec, -1")
    o(f"v_readlane_b32 s{sMORE}, v{t[4]}, 0")
    o(f"s_mov_b32 m0, s{sME}")
    o(f"s_waitcnt vmcnt({9 + (8 if EP == 'b' else 0) if ORD.index(WAP) >= ORD.index(XBP) else 0}) lgkmcnt(0)"); xstamp("p2_done"); o("s_barrier"); stamp(5)
    f = t
    def rdidx(u):
        for i in range(4): o(f"ds_read_u16 v{IX[i]}, v{vL1} offset:{loff(u)+64*i}")
    def fill(u, nxt):
        for i in range(4):
            o(f"s_add_u32 m0, s{sMR}, {u*SLOT + i*1040}"); o(f"s_waitcnt lgkmcnt(3)"); o(ldt(i))
            o(f"ds_read_u16 v{IX[i]}, v{vL1} offset:{loff(nxt)+64*i}")
    o(f"ds_read_b32 v{IXE}, v{vL2}"); rdidx(0)
    o(f"v_lshlrev_b32 v{f[9]}, 3, v0"); addg(f[9])
    o("s_waitcnt lgkmcnt(4)")
    o(f"v_and_b32 v{IXE}, 0x7ffff, v{IXE}"); o(lde())
    NFO = int(OPT.get('nfo', 2)); NFY = int(OPT.get('nfy', 2))
    def fills(lo_o, hi_o, lo_y, hi_y, tag, wait):
        if (lo_o, hi_o) == (lo_y, hi_y):
            for u in range(lo_o, hi_o): fill(u, u + 1)
            return
        o("s_cmp_ge_u32 s2, 256"); o(f"s_cbranch_scc1 {tag}_Y")
        for u in range(lo_o, hi_o): fill(u, u + 1)
        if wait: o(f"s_waitcnt vmcnt({2+4*hi_o})")
        o(f"s_branch {tag}_D")
        lab(f"{tag}_Y")
        for u in range(lo_y, hi_y): fill(u, u + 1)
        if wait: o(f"s_waitcnt vmcnt({2+4*hi_y})")
        lab(f"{tag}_D")
    fills(0, NFO, 0, NFY, "FA", True)
    for k in range(4): o(f"ds_read_u8 v{f[12+k]}, v{f[9]} offset:{LIST+2+k*2048}")
    o(f"ds_read_b32 v{IXE}, v{vL2} offset:512")
    xstamp("fill_issued")
    def ctrl():
        o(f"s_movk_i32 s{sS0}, {ROW}")
        for k in range(4):
            o(f"v_cmp_gt_u32 vcc, {NA}, v{f[12+k]}"); o(f"v_mad_u32_u24 v{f[0]}, v{f[12+k]}, s{sS0}, v{PT+2}")
            o(f"v_lshrrev_b32 v{f[2]}, 1, v{f[12+k]}"); o(f"v_bfi_b32 v{f[2]}, 3, v{f[12+k]}, v{f[2]}"); o(f"v_lshl_add_u32 v{f[2]}, v{f[2]}, 4, 16")
            o(f"v_and_b32 v{f[3]}, 4, v{f[12+k]}"); o(f"v_lshlrev_b32 v{f[3]}, 1, v{f[3]}"); o(f"v_lshlrev_b32 v{f[2]}, v{f[3]}, v{f[2]}")
            o(f"v_cndmask_b32 v{f[2]}, 0, v{f[2]}, vcc"); o(f"ds_write_b16 v{f[9]}, v{f[2]} offset:{LIST+2+k*2048}")
            o(f"v_cndmask_b32 v{f[1]}, 0, v{PT+1}, vcc")
            o(f"ds_add_u32 v{f[0]}, v{f[1]} offset:{MB + (k&1)*128 + (k>>1)*8}")
        o(f"s_add_u32 s{sNT}, s{sNT}, 255"); o(f"s_lshr_b32 s{sNT}, s{sNT}, 8"); o(f"s_lshl1_add_u32 s{sNT}, s{sNT}, -1")
        o(f"s_add_u32 s{sCNT}, s{sCNT}, 255"); o(f"s_lshr_b32 s{sCNT}, s{sCNT}, 8"); o(f"s_lshl_b32 s{sCNT}, s{sCNT}, 1")
        o(f"s_max_i32 s{sNT}, s{sNT}, s{sCNT}"); o(f"s_max_i32 s{sNT}, s{sNT}, 2"); o(f"s_sub_u32 s{sCNT}, s{sNT}, 2")
        o(f"s_add_u32 s{sMET}, s{sME}, 4096"); o(f"s_xor_b32 s{sMET}, s{sMET}, s{sME}"); o(f"s_add_u32 s{sME}, s{sME}, 4096")
        o(f"v_add_u32 v{vL2}, 0x400, v{vL2}")
    def lut():
        q = T0
        for d in range(4):
            o(f"v_bfe_u32 v{q+d}, v0, {2*d}, 2"); o(f"v_mul_u32_u24 v{q+d}, 0x8001, v{q+d}")
            o(f"v_and_b32 v{q+d}, 0x10001, v{q+d}"); o(f"v_mul_u32_u24 v{q+d}, 0x3f80, v{q+d}")
        o(f"v_lshlrev_b32 v{q+4}, 4, v0")
        if LW[4] != 16:
            for k in range(4, 8): o(f"v_bfe_u32 v{q+5}, v0, {k}, 1"); o(f"v_mul_u32_u24 v{q+5}, {16*(LW[k]-(1<<k))}, v{q+5}"); o(f"v_add_u32 v{q+4}, v{q+4}, v{q+5}")
        o(f"ds_write_b128 v{q+4}, {vr(q,4)} offset:{LUT}")
        o(f"v_bfe_u32 v{q}, v0, 1, 4"); o(f"v_bfe_u32 v{q+1}, v0, 5, 1"); o(f"v_lshl_add_u32 v{q+1}, v{q+1}, 3, 1"); o(f"v_sub_u32 v{q}, v{q}, v{q+1}")
        o(f"v_and_b32 v{q+1}, 1, v0"); o(f"v_lshlrev_b32 v{q+1}, 2, v{q+1}"); o(f"v_sub_u32 v{q}, v{q}, v{q+1}")
        o(f"v_cmp_gt_u32 vcc, 4, v{q}"); o(f"v_mov_b32 v{q+6}, 0x3f80"); o(f"v_mov_b32 v{q+7}, 0"); o(f"v_lshlrev_b32 v{q}, 4, v{q}")
        o(f"v_cndmask_b32 v{q+6}, 0, v{q+6}, vcc")
        o(f"v_lshlrev_b64 {vr(q+6,2)}, v{q}, {vr(q+6,2)}")
        o(f"v_lshrrev_b32 v{q}, 1, v{vWF}")
        o(f"ds_write_b64 v{q}, {vr(q+6,2)} offset:{IDT}")
    o(f"s_cmp_eq_u32 s{sFIRST}, 1"); o("s_cbranch_scc1 G1")
    o("s_waitcnt lgkmcnt(0)")
    ctrl()
    o("s_branch G1D")
    lab("G1")
    for mt in range(2):
        for s in range(8): o(f"ds_read_b128 {vr(GV+32*mt+4*s,4)}, v{vXA} offset:{mt*2080 + 16*s}")
        if mt == 0: o("s_waitcnt lgkmcnt(8)")
    lt = capture(lut); ct = capture(ctrl)
    NL1 = [i for i, x in enumerate(lt) if x.startswith('ds_write_b128')][0] + 1
    for x in lt[:NL1]: o(x)
    o(f"s_waitcnt vmcnt({4*max(NFO, NFY)+2+(8 if EP == 'b' else 0)}) lgkmcnt(9)")
    acc = [ACC + 32, ACC + 48]
    interleave([m32(acc[0], GV+4*s, ACC+4*s, None if s == 0 else acc[0]) for s in range(8)], lt[NL1:] + ct[:25], 5)
    o(f"s_waitcnt lgkmcnt({1 + sum(1 for x in lt[NL1:] + ct[:25] if x.startswith('ds_'))})")
    def cv(mt): return [f"v_cvt_pk_bf16_f32 v{AF+8*mt+r//2}, v{acc[mt]+r}, v{acc[mt]+r+1}" for r in range(0, 16, 2)]
    interleave([m32(acc[1], GV+32+4*s, ACC+4*s, None if s == 0 else acc[1]) for s in range(8)],
               ct[25:] + cv(0) + [f"v_mov_b64 {vr(acc[0]+r,2)}, s[40:41]" for r in range(0, 16, 2)], 5)
    for r in range(0, 32, 2): o(f"v_mov_b64 {vr(ACC+r,2)}, {'s[40:41]' if r < 16 else 0}")
    for x in cv(1): o(x)
    for r in range(0, 16, 2): o(f"v_mov_b64 {vr(acc[1]+r,2)}, 0")
    if STAMP:
        o("s_getreg_b32 s94, hwreg(HW_REG_HW_ID)"); o("s_getreg_b32 s100, hwreg(HW_REG_XCC_ID)"); o("s_and_b32 s94, s94, 0xffff"); o("s_lshl_b32 s100, s100, 16"); o("s_or_b32 s94, s94, s100"); o(f"v_writelane_b32 v{VST[0]}, s94, 3")
    lab("G1D")
    o(f"v_and_b32 v{MQ}, 0xffff, v{PT}"); o(f"v_lshrrev_b32 v{MQ+1}, 16, v{PT}")
    xstamp("g1_done"); stamp(4)
    fills(NFO, NS, NFY, NS, "FB", False)
    o(f"s_waitcnt vmcnt({4*(NS-1)}) lgkmcnt(0)"); xstamp("t0_landed"); o("s_barrier")
    o(f"ds_read_b128 {vr(SEL,4)}, v{MQ}"); o(f"ds_read_b128 {vr(SEL+4,4)}, v{MQ+1}"); o(f"ds_read_u8 v{vSV}, v{vSA}")
    o(f"ds_read_b128 {vr(EF,4)}, v{vEA}")
    for j in range(4): o(f"ds_read_b128 {vr(TF+4*j,4)}, v{vTA} offset:{16*j}")
    o(f"s_setprio {OPT.get('lp', 2)}")
    if OPT.get('young'):
        o("s_cmp_lt_u32 s2, 256"); o("s_cbranch_scc1 OLD"); o(f"s_setprio {OPT['young']}"); lab("OLD")
    if OPT.get('fakec'): o(f"v_lshrrev_b32 v{vTC}, 2, v{vWF}"); o(f"v_add_u32 v{vTC}, s{sMR}, v{vTC}")
    stamp(6); stamp(8, "s_memtime")
    bodies = [body(b) for b in range(4)]
    if not OPT.get('skel') and not OPT.get('noval') and not OPT.get('fakec'): check_hazards(sum(bodies, []) + ["s_branch LOOP"])
    emit(body(0, peel=True))
    b1 = bodies[1][:bodies[1].index("ENT1:")]
    o("s_nop 7")
    emit([x for x in b1 if not x.startswith(("v_mfma", "s_sub", "s_cbranch"))])
    o("s_branch ENT1")
    lab("TOOBIG")
    o(f"s_mov_b32 s{sLIM}, {LOWLIM}"); o(f"v_mov_b32 v{a}, 0")
    o("s_waitcnt lgkmcnt(0)"); o("s_barrier")
    o(f"ds_write_b32 v{b_}, v{a} offset:{CNT}")
    o("s_waitcnt lgkmcnt(0)"); o("s_barrier")
    o("s_branch REMASK")
    lab("LOOP")
    emit(sum(bodies, []))
    if OPT.get('pp', '99,8,4') != '0' and not G8:
        th = [int(x) for x in OPT.get('pp', '99,8,4').split(',')]
        o(f"s_add_u32 s{sT0}, s{sCNT}, s{sRS}")
        for k, v in enumerate(th):
            if v < 99: o(f"s_cmp_lt_u32 s{sT0}, {v}"); o("s_cbranch_scc0 LOOP"); o(f"s_setprio {2-k}")
    o("s_branch LOOP")
    assert len(set(HEAD.values())) == 1
    WU = TF; x = AF
    def fin(p):
        d = ACC + 32 * p; r = []
        for k in range(16): r.append(f"v_rcp_f32 v{d+k}, v{d+k}")
        for k in range(16): r.append(f"v_mul_f32 v{d+16+k}, v{d+k}, v{d+16+k}")
        return r
    def unp(p): return sum(([f"v_lshlrev_b32 v{ACC+32*p+2*k}, 16, v{x+8*p+k}", f"v_and_b32 v{ACC+32*p+2*k+1}, s{sT1}, v{x+8*p+k}"] for k in range(8)), [])
    def post(p):
        r = []
        for k in range(8):
            z = ACC + 32*p + 16 + 2*k
            r += [f"v_max_f32 v{z}, 0, v{z}", f"v_max_f32 v{z+1}, 0, v{z+1}", f"v_add_f32 v{z}, v{z}, v{z-16}", f"v_add_f32 v{z+1}, v{z+1}, v{z-15}",
                  f"v_cvt_pk_bf16_f32 v{x+8*p+k}, v{z}, v{z+1}"]
        return r
    def st(p): return [f"s_mov_b64 exec, {((1 << (NA - p)) - 1):#x}", f"s_mov_b32 exec_hi, exec_lo"] + \
        [f"buffer_store_dwordx4 {vr(x+8*p+4*k,4)}, {vr(IX[p],2)}, s[{sO}:{sO+3}], 0 idxen offen offset:{16*k} {OPT.get('outpol', '').replace('+', ' ')}" for k in range(2)] + ["s_mov_b64 exec, -1"]
    assert RN - NA == NA - 1
    CO = int(OPT.get('co', 0))
    if CO:
        def st(p): return [f"s_mov_b64 exec, {((1 << (NA - p)) - 1):#x}", f"s_mov_b32 exec_hi, exec_lo"] + \
            [f"ds_write_b128 v{IX[2]}, {vr(x+8*p+4*k,4)} offset:{RING + p*NA*272 + 16*k}" for k in range(2)] + ["s_mov_b64 exec, -1"]
    for p in (1, 0):
        q = 1 - p; Gc = GV + 32 * q
        lab(f"TAIL{p}")
        stamp(7); stamp(11, "s_memtime")
        if STAMP: o(f"v_writelane_b32 v{VST[0]}, s{sNT}, 12")
        o(f"ds_read_b128 {vr(T0,4)}, v{MQ}"); o(f"ds_read_b128 {vr(T0+4,4)}, v{MQ+1}")
        o(f"s_cmp_lg_u32 s{sMORE}, 0"); o(f"s_cbranch_scc1 TAILM{p}")
        o("s_waitcnt lgkmcnt(0)")
        for ins in wload(WU, WF_U): o(ins)
        for s in range(8): o(f"ds_read_b128 {vr(GV+32*p+4*s,4)}, v{vXA} offset:{p*2080+16*s}")
        for mt in range(2):
            for k in range(2): o(f"ds_read_b128 {vr(x+8*mt+4*k,4)}, v{vXR} offset:{mt*2080+16*k}")
        o(f"v_and_b32 v{IX[0]}, 31, v0"); o(f"v_and_b32 v{IX[0]+1}, 0xe0, v0"); o(f"v_add_u32 v{IX[0]}, s{sBASE}, v{IX[0]}")
        o(f"v_add_u32 v{IX[1]}, {NA}, v{IX[0]}"); o(f"v_mov_b32 v{IX[1]+1}, v{IX[0]+1}")
        if CO:
            o(f"v_and_b32 v{IX[2]}, 31, v0"); o(f"v_mul_u32_u24 v{IX[2]}, 272, v{IX[2]}"); o(f"v_add_u32 v{IX[2]}, v{IX[2]}, v{IX[0]+1}")
            o(f"v_lshrrev_b32 v{IX[0]}, 4, v0"); o(f"v_and_b32 v{IX[0]+1}, 0xf0, v{vWF}")
            o(f"v_mul_u32_u24 v{IX[3]}, 272, v{IX[0]}"); o(f"v_add_u32 v{IX[3]}, v{IX[3]}, v{IX[0]+1}"); o(f"v_add_u32 v{IX[0]}, s{sBASE}, v{IX[0]}")
        o(f"s_mov_b32 s{sT1}, 0xffff0000")
        vs = [i for i, _ in vstream(Gc, Gc + 16)[HEAD[0]:]]
        for ins in vs: o(ins)
        o("s_nop 0")
        interleave(zphase(Gc, q), fin(p), 4)
        for s in range(8): o(f"ds_read_b128 {vr(Gc+4*s,4)}, v{vXA} offset:{q*2080+16*s}")
        o("s_waitcnt vmcnt(0) lgkmcnt(8)")
        interleave([m32(ACC+32*p+16, WU+4*s, GV+32*p+4*s, ACC+32*p+16) for s in range(8)], fin(q), 4)
        o("s_waitcnt lgkmcnt(0)"); o("s_barrier" if CO else "s_nop 0")
        interleave([m32(ACC+32*q+16, WU+4*s, Gc+4*s, ACC+32*q+16) for s in range(8)], unp(p) + post(p) + unp(q), 7)
        for ins in st(p) + post(q) + st(q): o(ins)
        if p == 1: o("s_branch K2_FIN")
    lab("K2_FIN")
    if CO:
        o("v_cmp_gt_u32 vcc, 16, v0")
        o("s_waitcnt lgkmcnt(0)"); o("s_barrier")
        for k in range(4): o(f"ds_read_b128 {vr(GV+4*k,4)}, v{IX[3]} offset:{RING + k*16*272}")
        for k in range(4):
            if k == 3: o(f"s_and_saveexec_b64 s[{sSV}:{sSV+1}], vcc"); o("s_cbranch_execz K2_OUT")
            o(f"s_waitcnt lgkmcnt({3-k})")
            o(f"buffer_store_dwordx4 {vr(GV+4*k,4)}, {vr(IX[0],2)}, s[{sO}:{sO+3}], 0 idxen offen {OPT.get('outpol', '').replace('+', ' ')}")
            if k < 3: o(f"v_add_u32 v{IX[0]}, 16, v{IX[0]}")
        lab("K2_OUT")
    stamp_out(9, GV+32, sW, 1)
    lab("K2_END")
    o("s_endpgm")
    for p in (1, 0):
        Gc = GV + 32 * (1 - p)
        lab(f"TAILM{p}")
        for ins, _ in vstream(Gc, Gc + 16)[HEAD[0]:]: o(ins)
        o("s_waitcnt lgkmcnt(0)")
        for m in zphase(Gc, 1 - p): o(m)
        if p == 1: o("s_branch NEXTROUND")
    lab("NEXTROUND")
    for i in range(4):
        o(f"v_lshrrev_b32 v{vTC}, 19, v{SEG+i}"); o(f"v_min_u32 v{vTC}, s{sLIM}, v{vTC}")
        o(f"v_add_u32 v{SEG+i}, v{SEG+i}, v{vTC}"); o(f"v_lshlrev_b32 v{vTC}, 19, v{vTC}"); o(f"v_sub_u32 v{SEG+i}, v{SEG+i}, v{vTC}")
    o(f"s_mov_b32 s{sFIRST}, 0"); o(f"s_mov_b32 s{sLIM}, {LIM}")
    o("s_waitcnt vmcnt(0) lgkmcnt(0)"); o("s_barrier")
    o("s_branch ROUND")

def kd(name, nv, ns):
    L.append(".p2align 6")
    L.append(f".amdhsa_kernel {name}")
    for k, v in (("next_free_vgpr", nv), ("next_free_sgpr", ns), ("accum_offset", (nv + 3) // 4 * 4), ("group_segment_fixed_size", 0),
                 ("kernarg_size", 96), ("user_sgpr_count", 2), ("user_sgpr_kernarg_segment_ptr", 1), ("system_sgpr_workgroup_id_x", 1),
                 ("float_denorm_mode_32", 3)):
        L.append(f"  .amdhsa_{k} {v}")
    L.append(".end_amdhsa_kernel")

hdr = [l for l in open(f"cdna_kernels/{NAME}.s.ref").read().splitlines() if l.startswith(";") and "@launch" not in l
       and "Override launch" not in l and "grid=ceil" not in l]
L += hdr
L.append(f"; @launch kernel=gsort_kernel grid=({K1_GRID},1,1) block=(512,1,1) lds={K1_LDS}")
L.append(f"; @launch kernel=gmain_kernel grid=(256,1,1) block=(512,1,1) lds={NB+2*GS}" if G8 else f"; @launch kernel=gmain_kernel grid=(512,1,1) block=(256,1,1) lds={K2_LDS}")
L.append('.amdgcn_target "amdgcn-amd-amdhsa--gfx950"'); L.append(".text")
gen_k1a(); gen_k2()
lab("CODE_END")
L.append('.section .rodata,"a"')
kd("gsort_kernel", 256 if STAMP else 240, 102 if STAMP else 72); kd("gmain_kernel", 256 if STAMP else NVGPR, 102)
if STAMP: L.append("; STAMPS " + repr(NAMES))
open(sys.argv[1], "w").write("\n".join(L) + "\n")
print("vgprs", NVGPR, "lds", K2_LDS, "lines", len(L), file=sys.stderr)
```

```python
import sys, struct, re

N = 25000; E = 400000; RN = 49; NR = 511; CH = 1600; NCH = 250
WS_REC = 0; WS_OFF = 0x310000; OROW = 1152; WS_WF = 0x3c0000; WS_TAB = 0x400000; WS_SIZE = 0x4000000
WF_A = 0; WF_U = 0x8000; WF_C = 0x10000; NA = 25
NLOG2E = struct.unpack('<I', struct.pack('<f', -1.4426950408889634))[0]
EPS = struct.unpack('<I', struct.pack('<f', 1e-6))[0]
NAME = "standalone__edge_featured_mpnn_gatedgcn__graph"
OPT = dict(k1='a', tabpol='sc1', recpol='sc1', touch='0', nfo='1', nfy='0', lw='1', sf='1', st='1', split='2', nx='2', wfpol='sc1', tsh='19', outpol='nt', bon='3', lp='3', pp='22,14,6')
OPT.update(a.split('=') for a in sys.argv[2:])
CH = 6720; NCH = 60; CHL = E - (NCH - 1) * CH; EPT = 16; LPS = 16; NG = 196
STAMP = int(OPT.get('stamp', 0))
WS_TAB = int(OPT.get('tab', hex(WS_TAB)), 0)
WS_STAMP = 0x3800000
L = []
def o(s): L.append("    " + s)
def lab(s): L.append(s + ":")
def vr(b, n): return f"v[{b}:{b+n-1}]"
VST = [60]
NAMES = {}
def stamp(i, ins="s_memrealtime", name=None):
    if STAMP:
        o(f"{ins} s[100:101]"); o("s_waitcnt lgkmcnt(0)"); o(f"v_writelane_b32 v{VST[0]}, s100, {i}")
def xstamp(name):
    if STAMP:
        NAMES[name] = 16 + len(NAMES); stamp(NAMES[name])
def stamp_out(n, reg, srdn, kern):
    if not STAMP: return
    o("s_mov_b64 exec, -1")
    stamp(n)
    o(f"v_lshlrev_b32 v{reg}, 2, v0")
    if kern and int(OPT.get('g8', 0)): o("s_and_b32 s63, s3, 1"); o("s_lshl_b32 s63, s63, 8"); o("s_add_u32 s2, s2, s63")
    o(f"s_lshl_b32 s63, s2, 11"); o(f"s_add_u32 s63, s63, {WS_STAMP + kern*0x100000:#x}")
    o(f"buffer_store_dword v{VST[0]}, v{reg}, s[{srdn}:{srdn+3}], s63 offen")
def srd(d, lo, size, stride=0):
    o(f"s_mov_b32 s{d}, s{lo}"); o(f"s_and_b32 s{d+1}, s{lo+1}, 0xffff")
    if stride: o(f"s_or_b32 s{d+1}, s{d+1}, {stride << 16:#x}")
    o(f"s_mov_b32 s{d+2}, {size:#x}"); o(f"s_mov_b32 s{d+3}, 0x20000")
def scan64(v):
    for d in ("row_shr:1", "row_shr:2", "row_shr:4", "row_shr:8"):
        o("s_nop 1"); o(f"v_add_u32_dpp v{v}, v{v}, v{v} {d} row_mask:0xf bank_mask:0xf bound_ctrl:0")
    o("s_nop 1"); o(f"v_add_u32_dpp v{v}, v{v}, v{v} row_bcast:15 row_mask:0xa bank_mask:0xf")
    o("s_nop 1"); o(f"v_add_u32_dpp v{v}, v{v}, v{v} row_bcast:31 row_mask:0xc bank_mask:0xf")

def m32(d, a, b, c): return f"v_mfma_f32_32x32x16_bf16 {vr(d,16)}, {vr(a,4)}, {vr(b,4)}, " + ("0" if c is None else vr(c,16))
K1_GRID = 256
CB = CH * 8 + 2048
K1_W = 0; K1_X = 65536; K1_S = K1_X + 4 * 8320; K1_LDS = K1_S + 8 * 4608
SM = 0
def gen_k1a():
    L.append(".globl gsort_kernel"); L.append(".p2align 8"); L.append(".type gsort_kernel,@function")
    lab("gsort_kernel"); VST[0] = 255
    pol = OPT.get('tabpol', '').replace('+', ' '); rpol = OPT.get('recpol', '').replace('+', ' ')
    stamp(0)
    o("s_load_dwordx8 s[4:11], s[0:1], 0")
    o("s_load_dwordx8 s[40:47], s[0:1], 32")
    o("s_load_dwordx2 s[48:49], s[0:1], 64")
    o("s_load_dwordx2 s[12:13], s[0:1], 88")
    o("v_lshrrev_b32 v2, 6, v0"); o("v_lshlrev_b32 v40, 4, v0")
    o("v_bfe_u32 v56, v0, 4, 1"); o("v_bfe_u32 v57, v0, 5, 1"); o("v_and_b32 v20, 63, v0")
    o("v_readfirstlane_b32 s33, v2")
    if OPT.get('sf'):
        o("s_cmp_ge_u32 s2, 256"); o("s_cbranch_scc1 K1_END")
        o("s_add_u32 s2, s2, 192"); o("s_and_b32 s2, s2, 255")
    o(f"s_cmp_ge_u32 s2, {NG}"); o("s_cbranch_scc1 K1_OTHER")
    o("s_lshr_b32 s35, s2, 3")
    o("s_and_b32 s36, s2, 7"); o("s_min_u32 s14, s36, 4"); o("s_mul_i32 s36, s36, 24"); o("s_add_u32 s36, s36, s14"); o("s_add_u32 s36, s36, s35")
    o("s_lshl_b32 s37, s36, 7")
    o("v_bfe_u32 v43, v0, 4, 2"); o("v_lshlrev_b32 v43, 6, v43"); o("v_xor_b32 v43, v43, v40")
    o("v_lshl_add_u32 v54, v57, 3, v56")
    o("s_lshr_b32 s32, s33, 2"); o("s_lshl_b32 s14, s32, 4"); o("s_and_b32 s30, s33, 3"); o("s_lshl1_add_u32 s14, s30, s14"); o("s_add_u32 s14, s14, s37")
    o("v_add_u32 v54, s14, v54")
    o("v_and_b32 v55, 15, v0"); o("v_lshlrev_b32 v59, 3, v56"); o("v_xor_b32 v55, v55, v59"); o("v_lshlrev_b32 v55, 4, v55")
    o("s_mul_i32 s38, s33, 1040"); o(f"s_add_u32 s38, s38, {K1_X}")
    o("s_lshl_b32 s39, s33, 10")
    o("s_mov_b32 m0, s38")
    o("s_waitcnt lgkmcnt(0)")
    srd(60, 4, N, 256)
    def xd(t):
        if t: o(f"s_add_u32 m0, s38, {t*8320}"); o("v_add_u32 v54, 32, v54")
        o("buffer_load_dwordx4 v[54:55], s[60:63], 0 idxen offen lds")
    def wd(m):
        for i in range(4):
            o(f"s_add_u32 m0, s39, {K1_W+m*32768+i*8192}"); o(f"s_movk_i32 s14, {i*8192}"); o(f"buffer_load_dwordx4 v43, s[{52+4*m}:{55+4*m}], s14 offen lds")
    xd(0); xd(1)
    srd(52, 42, 32768); wd(0)
    ST = int(OPT.get('st', 0))
    if ST: o("s_barrier")
    srd(56, 48, 32768)
    if ST < 2: wd(1)
    if not ST: xd(2); xd(3)
    o("v_bfe_u32 v60, v0, 2, 2"); o("v_lshl_add_u32 v61, v57, 6, v60"); o("v_xor_b32 v60, s30, v60"); o("v_lshlrev_b32 v60, 6, v60"); o("v_lshl_add_u32 v60, v61, 8, v60")
    o("v_and_b32 v61, 3, v0"); o("v_lshl_add_u32 v60, v61, 3, v60"); o("v_lshl_add_u32 v60, v56, 5, v60")
    o("v_bfe_u32 v61, v0, 1, 2"); o("v_lshl_or_b32 v61, v56, 2, v61"); o("v_mul_u32_u24 v61, 1040, v61")
    o("v_and_b32 v62, 1, v0"); o("v_bfe_u32 v63, v0, 3, 1"); o("v_lshl_or_b32 v63, v63, 1, v62"); o("v_lshl_add_u32 v61, v63, 8, v61")
    o("s_mul_i32 s14, s32, 8320"); o(f"s_add_u32 s14, s14, {K1_X}")
    o("v_xor_b32 v62, v62, v57"); o("v_lshl_add_u32 v61, v62, 7, v61"); o("v_add_u32 v61, s14, v61")
    o("s_mul_i32 s14, s33, 4608"); o(f"s_add_u32 s14, s14, {K1_S}")
    o("v_and_b32 v62, 31, v0"); o("v_mul_u32_u24 v62, 144, v62"); o("v_lshl_add_u32 v62, v57, 6, v62"); o("v_add_u32 v62, s14, v62")
    o("v_lshrrev_b32 v58, 3, v20"); o("v_and_b32 v59, 7, v0"); o("v_lshlrev_b32 v59, 4, v59")
    o("v_mul_u32_u24 v63, 144, v58"); o("v_add3_u32 v63, v63, v59, s14")
    o("s_lshl_b32 s14, s32, 5"); o("s_add_u32 s14, s14, s37"); o("s_lshl_b32 s14, s14, 9"); o("s_lshl_b32 s30, s30, 7"); o("s_add_u32 s14, s14, s30")
    o("v_lshl_add_u32 v59, v58, 9, v59"); o("v_add_u32 v59, s14, v59")
    if STAMP: srd(24, 12, WS_SIZE)
    o(f"s_add_u32 s12, s12, {WS_TAB:#x}"); o("s_addc_u32 s13, s13, 0"); srd(16, 12, N * 512)
    o(f"s_mov_b32 s15, {NLOG2E:#x}")
    WF_ = 64; XF_ = 128; AC = [160, 192]
    def trs(m):
        for s in range(8):
            for jj in range(2): o(f"ds_read_b64_tr_b16 v[{WF_+32*m+4*s+2*jj}:{WF_+32*m+4*s+2*jj+1}], v60 offset:{K1_W+m*32768+s*2048+jj*1024}")
            if m == 0: o(f"ds_read_b128 {vr(XF_+4*s,4)}, v61 offset:{16*s}")
    SPL = int(OPT.get('split', 1))
    stamp(1)
    if ST == 2: wd(1)
    o(f"s_waitcnt vmcnt({4 if ST else 6 if SPL else 0})"); o("s_barrier"); stamp(3)
    trs(0)
    if ST: xd(2); xd(3)
    if SPL:
        o("s_waitcnt lgkmcnt(12)")
        for s in range(8):
            if s == 4: o("s_waitcnt lgkmcnt(0)")
            o(m32(AC[0], WF_+4*s, XF_+4*s, None if s == 0 else AC[0]))
        o(f"s_waitcnt vmcnt({2 if SPL == 2 else 0})"); o("s_barrier")
        trs(1)
        for k in range(16): o(f"v_mul_f32 v{AC[0]+k}, s15, v{AC[0]+k}")
    else:
        trs(1)
        o("s_waitcnt lgkmcnt(15)")
        for s in range(8): o(m32(AC[0], WF_+4*s, XF_+4*s, None if s == 0 else AC[0]))
    def post(t):
        a = AC[t]; r = []
        for k in range(16): r.append(f"v_mul_f32 v{a+k}, s15, v{a+k}")
        for k in range(16): r.append(f"v_cvt_pk_bf16_f32 v{224+k}, v{a+2*k}, v{a+2*k+1}")
        r += [f"ds_write_b128 v62, {vr(224+4*c,4)} offset:{16*c}" for c in range(4)]
        r += [f"ds_read_b128 {vr(a+4*k,4)}, v63 offset:{k*8*144}" for k in range(4)]
        return r
    def stores(t):
        r = []
        for k in range(4):
            r += [f"s_waitcnt lgkmcnt({3-k})", f"buffer_store_dwordx4 {vr(AC[t]+4*k,4)}, v59, s[16:19], 0 offen {pol}", "v_add_u32 v59, 0x1000, v59"]
        return r
    o("s_waitcnt lgkmcnt(0)")
    for s in range(8):
        o(m32(AC[0]+16, WF_+32+4*s, XF_+4*s, None if s == 0 else AC[0]+16))
        if SPL < 2: o(f"ds_read_b128 {vr(XF_+4*s,4)}, v61 offset:{2*8320+16*s}")
        else: o(post(0)[16+s])
    if SPL == 2:
        o("s_waitcnt vmcnt(0)"); o("s_barrier")
        for s in range(8): o(f"ds_read_b128 {vr(XF_+4*s,4)}, v61 offset:{2*8320+16*s}")
        o("s_nop 0")
        for x in post(0)[24:]: o(x)
        o("s_waitcnt lgkmcnt(8)")
    else: o("s_waitcnt lgkmcnt(0)")
    mf = [m32(AC[1], WF_+4*s, XF_+4*s, None if s == 0 else AC[1]) for s in range(8)] + [m32(AC[1]+16, WF_+32+4*s, XF_+4*s, None if s == 0 else AC[1]+16) for s in range(8)]
    q = (post(0)[16:] + [None] * 6 if SPL < 2 else [None] * 5) + stores(0)
    q += [None] * (54 - len(q)) + ["s_nop 8"] + post(1)[:24]
    for m in mf:
        o(m)
        for _ in range(5):
            if q:
                x = q.pop(0)
                if x: o(x)
    assert not q
    o("v_add_u32 v59, 0x4000, v59"); o("s_nop 7")
    for x in post(1)[24:]: o(x)
    stamp(4)
    for x in stores(1): o(x)
    lab("K1_F")
    if STAMP: o("s_waitcnt vmcnt(0)")
    stamp_out(2, 12, 24, 0)
    lab("K1_END")
    o("s_endpgm")
    lab("K1_OTHER")
    o(f"s_sub_u32 s2, s2, {NG}")
    if OPT.get('cpf'):
        o("s_cmp_lt_u32 s33, 5"); o("s_cbranch_scc1 K1_NP")
        o("s_getpc_b64 s[70:71]"); lab("K1_PC")
        o("s_sub_u32 s70, s70, K1_PC-gsort_kernel"); o("s_subb_u32 s71, s71, 0")
        o("v_sub_u32 v236, 511, v0"); o("v_lshlrev_b32 v236, 7, v236"); o("v_min_u32 v236, CODE_END-gsort_kernel-4, v236")
        o("v_mov_b32 v237, s71"); o("v_add_co_u32 v236, vcc, s70, v236"); o("s_nop 1"); o("v_addc_co_u32 v237, vcc, 0, v237, vcc")
        o("global_load_dword v238, v[236:237], off")
        lab("K1_NP")
    D_, S_, R_, K_, P_ = 64, 80, 96, 112, 128
    o("v_lshlrev_b32 v1, 2, v0"); o("v_mov_b32 v2, 0"); o("ds_write_b32 v1, v2")
    o(f"s_mul_i32 s3, s2, {CH*4}"); o(f"s_mul_i32 s31, s2, {CB}"); o(f"s_mul_i32 s34, s2, {CH}")
    assert CH % 16 == 0 and CHL % 16 == 0 and CH // 16 <= 448
    o(f"s_movk_i32 s35, {CH}"); o(f"s_cmp_eq_u32 s2, {NCH-1}"); o(f"s_cselect_b32 s35, {CHL}, s35")
    o("v_cmp_gt_u32 vcc, s35, v40")
    o("s_lshr_b32 s36, s35, 2"); o("s_sub_u32 s36, s36, 3")
    o("s_waitcnt lgkmcnt(0)")
    srd(20, 10, E*4); srd(16, 8, E*4); srd(24, 12, WS_SIZE)
    o("s_mov_b64 s[28:29], vcc"); o("s_mov_b64 exec, vcc"); o("s_cbranch_execz K1_PREP")
    for j in range(4):
        for base, sr in ((D_, 20), (S_, 16)): o(f"buffer_load_dwordx4 {vr(base+4*j,4)}, v40, s[{sr}:{sr+3}], s3 offen")
        o("s_add_u32 s3, s3, s35")
    o("s_barrier")
    o("v_add_u32 v3, s34, v1"); o("v_mov_b32 v2, 1"); o(f"s_mov_b32 s15, {-RN}")
    def recs(lo, hi):
        for i in range(lo, hi):
            o(f"v_cmp_lt_u32 vcc, {NA-1}, v{D_+i}"); o(f"v_mul_u32_u24 v22, 83, v{S_+i}"); o("v_lshrrev_b32 v22, 16, v22")
            o(f"v_cndmask_b32 v23, 0, {NA}, vcc"); o(f"v_sub_u32 v23, v{D_+i}, v23")
            o(f"v_lshl_or_b32 v{P_+2*i}, v23, 16, v{S_+i}")
            o("v_cndmask_b32 v23, 0, 32, vcc"); o("v_or_b32 v22, v22, v23")
            o(f"v_lshl_add_u32 v{P_+1+2*i}, v22, 26, v3")
            o(f"v_add_u32 v3, {1 if i % 4 < 3 else 's36'}, v3")
    for j in range(4):
        o(f"s_waitcnt vmcnt({7 - 2*j})")
        for i in range(4*j, 4*j+4):
            o(f"v_mul_u32_u24 v{R_+i}, 21400, v{D_+i}")
            o(f"v_lshrrev_b32 v{R_+i}, 20, v{R_+i}")
            o(f"v_mad_i32_i24 v{D_+i}, v{R_+i}, s15, v{D_+i}")
            o(f"v_lshlrev_b32 v{R_+i}, 2, v{R_+i}")
            o(f"ds_add_rtn_u32 v{K_+i}, v{R_+i}, v2")
        o(f"s_waitcnt vmcnt({6 - 2*j})")
        if j < 3: recs(4*j, 4*j+4)
    stamp(1)
    lab("K1_B")
    o("s_mov_b64 exec, -1")
    o("v_lshlrev_b32 v20, 5, v20")
    o("s_waitcnt lgkmcnt(0)"); o("s_barrier"); stamp(3)
    o("ds_read_b128 v[24:27], v20"); o("ds_read_b128 v[28:31], v20 offset:16")
    recs(12, 14)
    o("s_waitcnt lgkmcnt(0)"); stamp(5)
    o("v_mov_b32 v33, v24")
    for j in range(2, 8): o(f"v_add_u32 v{32+j}, v{31+j}, v{23+j}")
    o("v_add_u32 v21, v39, v31"); o("v_mov_b32 v22, v21")
    scan64(21)
    o("v_sub_u32 v32, v21, v22")
    for j in range(1, 8): o(f"v_add_u32 v{32+j}, v32, v{32+j}")
    stamp(6)
    o("ds_write_b128 v20, v[32:35] offset:2048"); o("ds_write_b128 v20, v[36:39] offset:2064"); stamp(7)
    o("s_mov_b64 exec, s[28:29]")
    for i in range(EPT): o(f"ds_read_b32 v{R_+i}, v{R_+i} offset:2048")
    recs(14, 16); stamp(8)
    for i in range(EPT):
        if i % 4 == 0: o(f"s_waitcnt lgkmcnt(12)")
        o(f"v_add_lshl_u32 v{D_+i}, v{R_+i}, v{K_+i}, 3"); o(f"ds_write_b64 v{D_+i}, {vr(P_+2*i,2)} offset:6144")
    o("s_mov_b64 exec, -1")
    stamp(9)
    o("s_cmp_lg_u32 s33, 7"); o("s_cbranch_scc1 K1_O2")
    o("s_lshr_b32 s34, s31, 3"); o("s_add_u32 s34, s34, 256")
    for j in range(8): o(f"v_lshl_add_u32 v{24+j}, v{24+j}, 19, v{32+j}"); o(f"v_add_u32 v{24+j}, s34, v{24+j}")
    o("ds_write_b128 v20, v[24:27] offset:4096"); o("ds_write_b128 v20, v[28:31] offset:4112")
    lab("K1_O2")
    NC = (CB + 8191) // 8192
    o(f"v_cmp_gt_u32 vcc, {CB//16-512*(NC-1)}, v0"); o("v_add_u32 v41, 0x9000, v40")
    o("s_waitcnt lgkmcnt(0)"); o("s_barrier"); stamp(4)
    for j in range(NC): o(f"ds_read_b128 {vr(64+4*j,4)}, " + (f"v40 offset:{4096+8192*j}" if j < 4 else f"v41 offset:{8192*(j-4)}"))
    for j in range(NC):
        if j == NC - 1: o("s_and_saveexec_b64 s[28:29], vcc"); o("s_cbranch_execz K1_SE")
        o(f"s_waitcnt lgkmcnt({NC-1-j})")
        o(f"buffer_store_dwordx4 {vr(64+4*j,4)}, v40, s[24:27], s31 offen {rpol}"); o("s_add_u32 s31, s31, 8192")
    lab("K1_SE")
    if STAMP: o(f"s_add_u32 s2, s2, {NG}"); o("s_waitcnt vmcnt(0)"); stamp_out(2, 12, 24, 0)
    o("s_endpgm")
    lab("K1_PREP")
    o("s_barrier")
    o("s_cmp_lg_u32 s33, 7"); o("s_cbranch_scc1 K1_B")
    o("s_mov_b64 exec, -1")
    o("v_and_b32 v4, 3, v0"); o("v_bfe_u32 v5, v0, 3, 2"); o("v_lshl_or_b32 v4, v5, 2, v4")
    o("v_bfe_u32 v5, v0, 2, 1"); o("v_lshl_or_b32 v4, v5, 4, v4"); o("v_lshlrev_b32 v42, 4, v20")
    o("s_mov_b32 s70, s2"); o(f"s_add_u32 s71, s2, {NCH}"); o("s_cmp_lt_u32 s71, 68"); o("s_cselect_b32 s71, s71, s2")
    for u in range(2):
        U = 70 + u; V = 64 + 8 * u
        o(f"s_lshr_b32 s14, s{U}, 5")
        o("s_cmp_eq_u32 s14, 1"); o("s_cselect_b32 s64, s46, s40"); o("s_cselect_b32 s65, s47, s41"); o(f"s_cselect_b32 s{68+u}, 1.0, {NLOG2E:#x}")
        o("s_mov_b32 s66, 32768"); o(f"s_bfe_u32 s50, s{U}, 0x20003"); o(f"s_and_b32 s51, s{U}, 7"); o("s_mov_b32 s32, 14")
        o("s_cmp_eq_u32 s14, 2"); o("s_cselect_b32 s64, s44, s64"); o("s_cselect_b32 s65, s45, s65"); o("s_cselect_b32 s66, 4096, s66")
        o("s_cselect_b32 s50, s51, s50"); o("s_cselect_b32 s51, 0, s51"); o("s_cselect_b32 s32, 11, s32")
        o("s_and_b32 s65, s65, 0xffff"); o("s_mov_b32 s67, 0x20000")
        o("s_lshl_b32 s50, s50, 6"); o("s_lshl_b32 s51, s51, 11"); o("s_add_u32 s50, s50, s51")
        o("v_lshlrev_b32 v5, s32, v57"); o("v_lshl_add_u32 v5, v4, 1, v5"); o("v_add_u32 v5, s50, v5")
        for j in range(8): o(f"buffer_load_ushort v{V+j}, v5, s[64:67], 0 offen offset:{j*256}")
    for u in range(2):
        U = 70 + u; V = 64 + 8 * u
        o(f"s_lshl_b32 s14, s{U}, 10"); o(f"s_add_u32 s14, s14, {WS_WF:#x}")
        o(f"s_waitcnt vmcnt({8 if u == 0 else 1})")
        for j in range(8):
            o(f"v_lshlrev_b32 v{V+j}, 16, v{V+j}"); o(f"v_mul_f32 v{V+j}, s{68+u}, v{V+j}")
        for j in range(4): o(f"v_cvt_pk_bf16_f32 v{8+4*u+j}, v{V+2*j}, v{V+1+2*j}")
        o(f"buffer_store_dwordx4 {vr(8+4*u,4)}, v42, s[24:27], s14 offen " + OPT.get('wfpol', ''))
    o("s_branch K1_B")

def regs_of(tok):
    m = re.fullmatch(r"v\[(\d+):(\d+)\]", tok)
    if m: return set(range(int(m.group(1)), int(m.group(2)) + 1))
    m = re.fullmatch(r"v(\d+)", tok)
    return {int(m.group(1))} if m else set()
def check_hazards(ins):
    P = []
    for s in ins:
        if s.endswith(':'): continue
        op, _, rest = s.partition(' ')
        t = [x.strip() for x in rest.split(',')]
        t = [x.split(' ')[0] for x in t]
        if op.startswith('v_mfma'):
            P.append(('m', 12 if '32x32' in op else 8, regs_of(t[0]), regs_of(t[1]) | regs_of(t[2]), regs_of(t[3]), s))
        elif op.startswith('v_'):
            P.append(('t' if op in ('v_exp_f32', 'v_rcp_f32') else 'v', 0, regs_of(t[0]), set().union(*map(regs_of, t[1:])), set(), s))
        elif op.startswith('ds_read'):
            P.append(('d', 0, regs_of(t[0]), regs_of(t[1]), set(), s))
        elif op.startswith('buffer'):
            P.append(('d', 0, set(), regs_of(t[0]), set(), s))
        else: P.append(('s', 0, set(), set(), set(), s))
    n = len(P)
    for i, (k, w, d, ab, c, s) in enumerate(P):
        for j in range(1, 13):
            k2, w2, d2, ab2, c2, s2 = P[(i + j) % n]
            gap = j - 1
            if k == 'm':
                if k2 == 'm':
                    assert not (gap < w and d & ab2), (s, s2)
                    if d & c2 and d != c2: assert gap >= w - 2, (s, s2)
                else: assert not (gap < w and d & (d2 | ab2)), (s, s2, gap)
                if k2 in 'vt': assert not (gap < (7 if w == 12 else 3) and c & d2), (s, s2)
            if k in 'vt' and k2 == 'm': assert not (gap < 2 and d & (ab2 | c2)), (s, s2)
            if k == 't' and k2 == 'v': assert not (gap < 1 and d & ab2), (s, s2)

LOWLIM = 500 // NCH; LIM = 4 * LPS; LG = LPS.bit_length() - 1; NS = 2
LW = [1, 2, 4, 8, 19, 37, 74, 150] if int(OPT.get('lw', 0)) else [1, 2, 4, 8, 16, 32, 64, 128]
LUT = 0; IDT = (sum(LW) + 1) * 16; NB = IDT + 512; LIST = NB + 256; MB = LIST + 8192; ROW = 264; CNT = MB + 26 * ROW; ZSZ = 26 * ROW + 256
ER = CNT + 256; RING = ER + 8192; WS_ = 4160; SLOT = 4 * WS_; K2_LDS = RING + (NS + 1) * SLOT
G8 = int(OPT.get('g8', 0)); GS = (K2_LDS - NB + 255) // 256 * 256
assert K2_LDS <= 81920 and ER % 16 == 0 and LIST % 16 == 0 and MB % 16 == 0 and 4096 < ZSZ <= 8192 and ZSZ % 16 == 0

class RA:
    def __init__(s): s.n = 1
    def get(s, k=1, al=1):
        s.n = (s.n + al - 1) // al * al
        b = s.n; s.n += k; return b
R = RA()
vTA = R.get()
IX = [R.get(2, 2) for _ in range(4)]; IXE = R.get(2, 2); MQ = R.get(2, 2)
(vTC, vEA, vMT, vSA, vMA, vL1, vL2, vSV, vHC, vWF, vXA, vXR, vXI, vXO) = [R.get() for _ in range(14)]
SEG = R.get(4, 4); PT = R.get(4, 4)
GV = R.get(64, 4); ACC = R.get(64, 4)
TF = R.get(16, 4); EF = R.get(4, 4); SF = R.get(8, 4); WC = R.get(4, 4); T0 = R.get(8, 4); AF = R.get(16, 4); SEL = R.get(8, 4)
NVGPR = R.n
assert NVGPR <= 255, NVGPR
REC = GV; RANK = GV + 32; AD = GV + 48
sX, sE, sW, sO, sT = 8, 12, 16, 20, 96
sWAVE, sBASE, sMR, sME, sCNT, sNT, sRS, sLIM, sFIRST, sMORE, sDS, sT0, sT1, sEPS, s80, sMET = range(24, 40)
sHM, sSV, sWF, sS0 = 42, 44, 52, 54
sK = 56
sG = 95
def addg(v):
    if G8: o(f"v_add_u32 v{v}, s{sG}, v{v}")
def saddg(r):
    if G8: o(f"s_add_u32 s{r}, s{r}, s{sG}")

def ldt(i): return f"buffer_load_dwordx4 {vr(IX[i],2)}, s[{sT}:{sT+3}], 0 idxen offen {OPT.get('tpol', '').replace('+', ' ')} lds".replace("  ", " ")
def lde(): return f"buffer_load_dwordx4 {vr(IXE,2)}, s[{sE}:{sE+3}], 0 idxen offen {OPT.get('epol', '').replace('+', ' ')} lds".replace("  ", " ")
def loff(u): return (u & 1) * 4096 + (u >> 1) * 256
def nextslot(r): return [f"s_add_u32 s{r}, s{r}, {SLOT}", f"s_cmp_eq_u32 s{r}, {NS*SLOT}", f"s_cselect_b32 s{r}, 0, s{r}"]

def vstream(Gc, Vc):
    A = []
    for p in range(0, 22, 2):
        if p < 16: A += [(f"v_exp_f32 v{Gc+p}, v{Gc+p}", 8), (f"v_exp_f32 v{Gc+p+1}, v{Gc+p+1}", 8)]
        q = p - 2
        if 0 <= q < 16:
            if 'a' in OPT.get('pk', ''): A += [(f"v_pk_add_f32 {vr(Gc+q,2)}, {vr(Gc+q,2)}, 1.0 op_sel_hi:[1,0]", 4)]
            else: A += [(f"v_add_f32 v{Gc+q}, 1.0, v{Gc+q}", 4), (f"v_add_f32 v{Gc+q+1}, 1.0, v{Gc+q+1}", 4)]
            A += [(f"v_rcp_f32 v{Gc+q}, v{Gc+q}", 8), (f"v_rcp_f32 v{Gc+q+1}, v{Gc+q+1}", 8)]
        q = p - 4
        if 0 <= q < 16 and 'm' in OPT.get('pk', ''): A += [(f"v_pk_mul_f32 {vr(Vc+q,2)}, {vr(Gc+q,2)}, {vr(Vc+q,2)}", 4)]
        elif 0 <= q < 16: A += [(f"v_mul_f32 v{Vc+q}, v{Gc+q}, v{Vc+q}", 4), (f"v_mul_f32 v{Vc+q+1}, v{Gc+q+1}, v{Vc+q+1}", 4)]
        q = p - 6
        if 0 <= q < 16: A += [(f"v_cvt_pk_bf16_f32 v{Gc+q//2}, v{Gc+q}, v{Gc+q+1}", 4), (f"v_cvt_pk_bf16_f32 v{Vc+q//2}, v{Vc+q}, v{Vc+q+1}", 4)]
    return A
def zphase(P, p):
    d = ACC + 32 * p
    return [m32(d, P, T0, d), m32(d+16, P+16, T0, d+16), m32(d, P+4, T0+4, d), m32(d+16, P+20, T0+4, d+16)]

HEAD = {}
def body(b, peel=False):
    p = b % 2
    Gn = GV + 32 * p; Vn = Gn + 16; Gc = GV + 32 * (1 - p); Vc = Gc + 16; af = AF + 8 * p
    ne = sum(1 for k in range(NS - 1) if (b - k) % 4 == 0) + (1 if (b - (NS - 1)) % 4 == 0 else 0)
    vmw = 4 * (NS - 1) + ne
    z = zphase(Gn, p)
    def dma(i): return [f"s_add_u32 m0, s{sMR}, {p*SLOT + i*1040}", None, ldt(i), f"ds_read_u16 v{IX[i]}, v{vL1} offset:{loff(b+NS+1)+64*i}"]
    top = ["s_waitcnt vmcnt(8) lgkmcnt(0)", "s_barrier"] if b == 3 else ["s_waitcnt lgkmcnt(0)"]
    if G8 and OPT.get('sp', '2103') != '0': top.append(f"s_setprio {OPT.get('sp', '2103')[b]}")
    if G8 and OPT.get('bar2') and b == 1: top.insert(1, "s_barrier")
    seq = []
    seq.append([z[0], [], []])
    seq.append([z[1], [f"ds_read_b128 {vr(SF,4)}, v{vSV} offset:{IDT}", f"ds_read_b128 {vr(SF+4,4)}, v{vSV} offset:{IDT+256}"], []])
    seq.append([z[2], [f"ds_read_u8 v{vSV}, v{vSA} offset:{loff(b+1)}"], []])
    seq.append([z[3], [f"s_sub_u32 s{sCNT}, s{sCNT}, 1", f"s_cbranch_scc1 TAIL{p}", f"ENT{b}:"], []])
    seq.append([m32(Gn, TF, SEL, None), [f"ds_read_b128 {vr(T0,4)}, v{MQ}"], [f"v_and_b32 v{IXE}, 0x7ffff, v{IXE}"] if b == 0 else []])
    seq.append([m32(Gn, TF+4, SEL+4, Gn), [f"ds_read_b128 {vr(T0+4,4)}, v{MQ+1}"], [f"v_xor_b32 v{vEA}, v{vEA}, v{vMT}"] if b == 3 else []])
    seq.append([m32(Gn, EF, WC, Gn), [f"ds_read_b128 {vr(EF,4)}, v{vEA} offset:{(b+1)%4*1024}", f"ds_read_u16 v{MQ}, v{vMA} offset:{b*8}",
                f"ds_read_u16 v{MQ+1}, v{vMA} offset:{b*8+2}"], []])
    seq.append([m32(Vn, TF+8, SEL, None), [f"ds_read_b32 v{IXE}, v{vL2}"] if b == 3 else [], []])
    seq.append([m32(Vn, TF+12, SEL+4, Vn), ["s_waitcnt lgkmcnt(S)"], []])
    seq.append([m32(Gn, SF, af, Gn), [f"s_waitcnt vmcnt({vmw})"], []])
    seq.append([m32(Gn, SF+4, af+4, Gn), [f"ds_read_b128 {vr(TF+4*j,4)}, v{vTA} offset:{(1-p)*SLOT+16*j}" for j in range(4)],
                [f"v_add_u32 v{r}, 0x200, v{r}" for r in (vSA, vL1, vL2)] + [f"v_add_u32 v{vMA}, 32, v{vMA}"] if b == 3 else []])
    dp = [int(c) for c in OPT.get('dp', '03589')]
    for i in range(4): seq[dp[i]][1] = seq[dp[i]][1] + dma(i)
    if b == 0: seq[dp[4]][1] = seq[dp[4]][1] + [f"s_mov_b32 m0, s{sME}", None, lde(), f"s_xor_b32 s{sME}, s{sME}, s{sMET}"]
    A = [] if peel else vstream(Gc, Vc)
    wt = [float(x) for x in OPT.get('wt', '1,1,1,1,1,1,1,1,1,1,1.6').split(',')]
    tot = sum(c for _, c in A); out = list(top); ai = 0; acc = 0; budget = 0
    for i, (m, ex, xv) in enumerate(seq):
        budget += tot * wt[i] / sum(wt)
        g = []
        while ai < len(A) and acc + A[ai][1] / 2 <= budget + 0.01:
            g.append(A[ai][0]); acc += A[ai][1]; ai += 1
        if i == 3 and not peel: HEAD[b] = ai
        if not (peel and i < 4): out.append(m)
        g = xv + g
        last = [x for x in ex if x and (x.startswith("s_waitcnt") or x.startswith("s_cbranch") or x.endswith(":") or x.startswith("s_sub"))]
        ex = [x for x in ex if x not in last]
        if peel: last = [x for x in last if x.startswith("s_waitcnt")]
        first = True
        for x in ex:
            if x is None:
                continue
            if not first and g: out.append(g.pop(0))
            elif not first and peel and x.startswith("buffer"): out.append("s_nop 0")
            out.append(x); first = False
        out += g + last
    assert ai == len(A)
    i0 = max(i for i, x in enumerate(out) if x.startswith(f"ds_read_b128 {vr(SF+4,4)}")); i1 = out.index("s_waitcnt lgkmcnt(S)")
    out[i1] = f"s_waitcnt lgkmcnt({sum(1 for x in out[i0+1:i1] if x.startswith('ds_'))})"
    for i, x in enumerate(out):
        if x.startswith("buffer_load"): assert not out[i-1].split()[1].startswith("m0"), (out[i-1], x)
    if OPT.get('fakec'):
        n2 = []
        for x in out:
            if x.startswith("v_mfma") and (f", {vr(SEL,4)}," in x or f", {vr(SEL+4,4)}," in x):
                j = (int(re.findall(r"v\[(\d+):", x)[1]) - TF)
                n2 += [f"v_lshlrev_b32 v{Vn+j+k}, 16, v{TF+j+k}" for k in range(4)]
            elif x == m32(Gn, EF, WC, Gn): n2.append(m32(Gn, EF, WC, TF))
            elif x.startswith("ds_read_b128") and f"v{vTA} " in x:
                j = int(re.findall(r"v\[(\d+):", x)[0]) - TF
                n2 += [f"ds_read2st64_b32 {vr(TF+j+2*k,2)}, v{vTC} offset0:{(1-p)*65+j+2*k} offset1:{(1-p)*65+j+2*k+1}" for k in range(2)]
            else: n2.append(x)
        out = n2
    if OPT.get('notrans'): out = [x.replace("v_exp_f32", "v_mov_b32").replace("v_rcp_f32", "v_mov_b32") for x in out]
    if OPT.get('noval'): out = ["s_nop 0" if (x.startswith("v_exp") or x.startswith("v_rcp")) else x for x in out if not (x.startswith("v_add_f32") or x.startswith("v_mul_f32") or x.startswith("v_cvt"))]
    if OPT.get('skel'):
        n2 = []
        for x in out:
            if x.startswith(("v_mfma", "v_exp", "v_rcp", "v_add_f32", "v_mul_f32", "v_cvt", "ds_read_b128")): continue
            if x.startswith("buffer_load"): n2.append("s_nop 0")
            if OPT['skel'] != '1' and x.startswith("s_waitcnt vmcnt") and "lgkm" not in x: x = f"s_waitcnt vmcnt({OPT['skel']})"
            if OPT['skel'] != '1' and x.startswith("s_waitcnt vmcnt(8) lgkm"): x = f"s_waitcnt vmcnt({max(8, int(OPT['skel']))}) lgkmcnt(0)"
            n2.append(x)
        out = n2
    if OPT.get('nodma'): out = [x for x in out if 'buffer_load' not in x]
    if OPT.get('noe'): out = [x for x in out if f"s[{sE}:{sE+3}]" not in x]
    return out

def emit(lst):
    for it in lst:
        if it.endswith(':'): lab(it[:-1])
        else: o(it)

def masks(tmp):
    a, b_, c = tmp
    o(f"v_and_b32 v{a}, {LPS-1}, v0"); o(f"v_lshlrev_b32 v{a}, 1, v{a}"); o(f"v_mov_b32 v{c}, 0")
    for i in range(4):
        o(f"v_lshrrev_b32 v{b_}, 19, v{SEG+i}"); o(f"v_max_u32 v{c}, v{c}, v{b_}")
        o(f"v_min_u32 v{b_}, s{sLIM}, v{b_}"); o(f"v_sub_u32 v{b_}, v{b_}, v{a}")
        for j, k in ((0, 2*i), (1, 2*i+1), (2*LPS, 8+2*i), (2*LPS+1, 9+2*i)): o(f"v_cmp_lt_i32 s[{sK+2*k}:{sK+2*k+1}], {j}, v{b_}")
    o(f"v_cmp_lt_u32 vcc, s{sLIM}, v{c}")
    o(f"s_or_b64 s[{sSV}:{sSV+1}], s[{sK+16}:{sK+17}], s[{sK+20}:{sK+21}]"); o(f"s_or_b64 s[{sHM}:{sHM+1}], s[{sK+24}:{sK+25}], s[{sK+28}:{sK+29}]")
    o(f"s_or_b64 s[{sSV}:{sSV+1}], s[{sSV}:{sSV+1}], s[{sHM}:{sHM+1}]")
    o(f"v_mov_b32 v{b_}, {CNT-4}"); addg(b_)
    o("s_mov_b64 exec, vcc"); o(f"ds_write_b32 v{b_}, v{b_}"); o("s_mov_b64 exec, -1")

def interleave(mf, other, per):
    other = list(other)
    for m in mf:
        o(m)
        for _ in range(per):
            if other: o(other.pop(0))
    for x in other: o(x)
def capture(fn):
    n = len(L); fn(); r = [x.strip() for x in L[n:]]; del L[n:]; return r
def wload(dst, off):
    r = []
    for s in range(8):
        if s % 4 == 0: r.append(f"s_add_u32 s{sT0}, s{sWF}, {off + s*1024:#x}")
        r.append(f"buffer_load_dwordx4 {vr(dst+4*s,4)}, v{vWF}, s[{sW}:{sW+3}], s{sT0} offen offset:{(s%4)*1024}")
    return r
def xblk(base, pair):
    o(f"v_mov_b32 v{pair+1}, v{vXO}")
    for mt in range(2):
        for a in range(2):
            o(f"s_add_u32 m0, s{base}, {(2*mt+a)*1040}")
            o(f"v_cmp_gt_u32 vcc, {(NA if mt == 0 else RN-NA) - 2*a}, v{vXI}")
            o(f"s_add_u32 s{sT0}, s{sBASE}, {NA*mt + 2*a}"); o(f"v_add_u32 v{pair}, s{sT0}, v{vXI}")
            o(f"v_cndmask_b32 v{pair}, v{PT+3}, v{pair}, vcc")
            o(f"buffer_load_dwordx4 {vr(pair,2)}, s[{sX}:{sX+3}], 0 idxen offen lds")

def lutw(d, j, tmp):
    o(f"v_lshlrev_b32 v{d}, v{j}, 16")
    if LW[4] != 16:
        corr = sum((LW[k] - (1 << k)) << (8 * (k - 4)) for k in range(4, 8))
        o(f"v_lshlrev_b32 v{tmp}, 3, v{j}"); o(f"v_add_u32 v{tmp}, -32, v{tmp}"); o(f"s_mov_b32 s{sT1}, {corr:#x}")
        o(f"v_cmp_lt_u32 vcc, 3, v{j}"); o(f"v_bfe_u32 v{tmp}, s{sT1}, v{tmp}, 8"); o("s_nop 0")
        o(f"v_cndmask_b32 v{tmp}, 0, v{tmp}, vcc"); o(f"v_lshl_add_u32 v{d}, v{tmp}, 4, v{d}")

def gen_k2():
    L.append(".globl gmain_kernel"); L.append(".p2align 8"); L.append(".type gmain_kernel,@function")
    lab("gmain_kernel"); VST[0] = 255
    t = [TF + i for i in range(28)]
    stamp(0)
    o("s_load_dwordx2 s[50:51], s[0:1], 88")
    o("s_load_dwordx4 s[4:7], s[0:1], 0")
    o("s_load_dwordx2 s[48:49], s[0:1], 72")
    o("s_setprio 3")
    o(f"v_lshrrev_b32 v{t[0]}, 6, v0")
    o("s_and_b32 s3, s2, 7"); o("s_lshl_b32 s3, s3, 6"); o(f"s_bfe_u32 s{sT0}, s2, 0x50003"); o(f"s_lshl1_add_u32 s3, s{sT0}, s3")
    o(f"v_readfirstlane_b32 s{sWAVE}, v{t[0]}")
    if G8:
        o("v_and_b32 v0, 0xff, v0"); o(f"s_lshr_b32 s{sT0}, s{sWAVE}, 2"); o(f"s_and_b32 s{sWAVE}, s{sWAVE}, 3"); o(f"s_mul_i32 s{sG}, s{sT0}, {GS}")
    else: o(f"s_lshr_b32 s{sT0}, s2, 8")
    o(f"s_add_u32 s3, s3, s{sT0}")
    o(f"s_cmp_ge_u32 s2, {256 if G8 else 512}"); o("s_cbranch_scc1 K2_END")
    o(f"s_cmp_ge_u32 s3, {NR}"); o("s_cbranch_scc1 K2_END")
    o(f"v_lshrrev_b32 v{t[1]}, {LG}, v0")
    o(f"s_lshl_b32 s88, s3, 2")
    o(f"v_mul_u32_u24 v{t[1]}, {CB}, v{t[1]}"); o(f"v_add_u32 v{t[1]}, s88, v{t[1]}")
    for i in range(1, 4): o(f"v_add_u32 v{t[1+i]}, {16*i*CB:#x}, v{t[1]}")
    o(f"s_mul_i32 s{sBASE}, s3, {RN}")
    o(f"v_and_b32 v{vWF}, 63, v0"); o(f"v_lshlrev_b32 v{vWF}, 4, v{vWF}")
    o(f"s_mul_i32 s{sMR}, s{sWAVE}, {WS_}"); o(f"s_add_u32 s{sMR}, s{sMR}, {RING}"); saddg(sMR)
    o(f"s_lshl_b32 s{sWF}, s{sWAVE}, 13"); o(f"s_add_u32 s{sWF}, s{sWF}, {WS_WF:#x}")
    o(f"s_mov_b32 s40, {EPS:#x}"); o("s_mov_b32 s41, s40"); o(f"s_movk_i32 s{s80}, 80")
    o(f"s_mov_b32 s{sFIRST}, 1"); o(f"s_mov_b32 s{sLIM}, {LIM}")
    o("s_cmp_ge_u32 s2, 256"); o(f"s_cselect_b32 s{sRS}, {OPT.get('bon', 0)}, 0")
    o("s_waitcnt lgkmcnt(0)"); xstamp("karg")
    srd(sW, 50, WS_SIZE)
    o(f"s_mov_b32 s{sW+2}, {NCH*CB:#x}")
    for i in range(4): o(f"buffer_load_dword v{SEG+i}, v{t[1+i]}, s[{sW}:{sW+3}], 0 offen")
    o(f"s_mov_b32 s{sW+2}, {WS_SIZE:#x}")
    srd(sX, 4, N, 256); srd(sE, 6, E, 32); srd(sO, 48, N, 256)
    o(f"s_add_u32 s50, s50, {WS_TAB:#x}"); o("s_addc_u32 s51, s51, 0")
    if SM: o(f"s_mul_i32 s{sT0}, s{sWAVE}, {SMS}"); o(f"s_add_u32 s50, s50, s{sT0}"); o("s_addc_u32 s51, s51, 0")
    srd(sT, 50, N, 128 if SM else 512)
    WAP = OPT.get('wap', 'p1'); XBP = OPT.get('xbp', 'p1'); ORD = ['start', 'rec', 'mask', 'p1', 'b1']
    def place(where):
        if where not in (WAP, XBP): return
        o(f"s_cmp_eq_u32 s{sFIRST}, 0"); o(f"s_cbranch_scc1 NOW_{where}")
        if XBP == where:
            o(f"s_add_u32 s{sNT}, s{sMR}, {NS*SLOT}")
            xblk(sNT, T0)
        if WAP == where:
            for x in wload(ACC, WF_A): o(x)
            o(f"s_lshl_b32 s{sT0}, s{sWAVE}, 10"); o(f"s_add_u32 s{sT0}, s{sT0}, {WS_WF+WF_C:#x}")
            o(f"buffer_load_dwordx4 {vr(WC,4)}, v{vWF}, s[{sW}:{sW+3}], s{sT0} offen")
        if OPT.get('otouch') and WAP == where:
            o(f"v_mov_b32 v{T0+6}, s{sBASE}"); o(f"buffer_load_dword v{SEL}, v{T0+6}, s[{sO}:{sO+3}], 0 idxen")
        lab(f"NOW_{where}")
    def cnt(lo, hi): return sum(n for p, n in ((WAP, 9), (XBP, 4)) if lo <= ORD.index(p) <= hi)
    SP = [int(x) for x in OPT.get('spf', '0,0').split(',')]
    def spref(n, first):
        for k in range(n): o(f"s_load_dword s{88 + k % 4}, s[46:47], {(first + k) * 32768:#x}")
    if sum(SP):
        o(f"s_and_b32 s{sT0}, s3, 63"); o(f"s_lshl2_add_u32 s{sT0}, s{sT0}, s{sWAVE}"); o(f"s_lshl_b32 s{sT0}, s{sT0}, 7")
        o(f"s_add_u32 s46, s50, s{sT0}"); o("s_addc_u32 s47, s51, 0")
        spref(SP[0], 0)
    lab("ROUND")
    b0, b2, b3, b4, vh = t[16:21]
    o(f"v_lshlrev_b32 v{t[11]}, 4, v0"); addg(t[11])
    for d in range(4): o(f"v_mov_b32 v{t[0]+d}, 0")
    for off in (0, ZSZ - 4096): o(f"ds_write_b128 v{t[11]}, {vr(t[0],4)} offset:{MB+off}")
    pad0 = 0xffff | (NA << 16)
    o(f"v_mov_b32 v{t[4]}, {pad0:#x}"); o(f"v_mov_b32 v{t[5]}, 0x7ffff"); o(f"v_mov_b32 v{t[6]}, {pad0:#x}"); o(f"v_mov_b32 v{t[7]}, 0x7ffff")
    o(f"ds_write_b128 v{t[11]}, {vr(t[4],4)} offset:{LIST}"); o(f"ds_write_b128 v{t[11]}, {vr(t[4],4)} offset:{LIST+4096}")
    o(f"v_and_b32 v{b0}, 1, v0"); o(f"v_bfe_u32 v{b2}, v0, 2, 1"); o(f"v_bfe_u32 v{b3}, v0, 3, 1"); o(f"v_bfe_u32 v{b4}, v0, 4, 1"); o(f"v_bfe_u32 v{vh}, v0, 5, 1")
    o(f"v_and_b32 v{t[8]}, {LPS-1}, v0"); o(f"v_lshlrev_b32 v{t[8]}, 1, v{t[8]}")
    o(f"v_mov_b32 v{t[9]}, 0x7ffffff0"); o(f"s_mov_b32 s{sT1}, 0x7ffff")
    o(f"v_and_b32 v{t[12]}, 15, v0"); o(f"v_lshlrev_b32 v{t[13]}, 3, v{b4}")
    o(f"v_xor_b32 v{vXO}, v{t[12]}, v{t[13]}"); o(f"v_lshlrev_b32 v{vXO}, 4, v{vXO}")
    o(f"s_lshr_b32 s{sT0}, s{sWAVE}, 1"); o(f"s_lshl_b32 s{sT0}, s{sT0}, 4"); o(f"s_and_b32 s{sS0}, s{sWAVE}, 1"); o(f"s_lshl2_add_u32 s{sT0}, s{sS0}, s{sT0}")
    o(f"v_lshl_add_u32 v{vXI}, v{vh}, 3, v{b4}"); o(f"v_add_u32 v{vXI}, s{sT0}, v{vXI}")
    o(f"v_mov_b32 v{PT+3}, 0xffff")
    place('start')
    xstamp("consts_done")
    o(f"s_waitcnt vmcnt({cnt(0, 0)})"); stamp(1)
    for i in range(4):
        o(f"v_lshrrev_b32 v{t[4+i]}, 19, v{SEG+i}"); o(f"v_cmp_lt_u32 vcc, v{t[8]}, v{t[4+i]}")
        o(f"v_and_b32 v{t[i]}, s{sT1}, v{SEG+i}"); o(f"v_add_lshl_u32 v{t[i]}, v{t[i]}, v{t[8]}, 3")
        o(f"v_cndmask_b32 v{t[10]}, v{t[9]}, v{t[i]}, vcc")
        o(f"buffer_load_dwordx4 {vr(REC+4*i,4)}, v{t[10]}, s[{sW}:{sW+3}], 0 offen")
    o(f"v_max3_u32 v{t[10]}, v{t[4]}, v{t[5]}, v{t[6]}"); o(f"v_max_u32 v{t[10]}, v{t[10]}, v{t[7]}")
    o(f"v_cmp_lt_u32 vcc, {2*LPS}, v{t[10]}"); o("s_cbranch_vccz REC_DONE")
    for i in range(4): o(f"buffer_load_dwordx4 {vr(REC+16+4*i,4)}, v{t[i]}, s[{sW}:{sW+3}], 0 offen offset:{16*LPS}")
    lab("REC_DONE")
    xstamp("rec_issued")
    PF = int(OPT.get('pf', 0))
    def pref():
        o(f"s_lshr_b32 s{sT0}, s3, 6"); o(f"s_mul_i32 s{sT0}, s{sT0}, {64*RN}"); o(f"s_and_b32 s{sT1}, s3, 63"); o(f"s_lshl_b32 s{sT1}, s{sT1}, 6"); o(f"s_add_u32 s{sT0}, s{sT0}, s{sT1}")
        o(f"v_lshrrev_b32 v{T0+2}, 2, v0"); o(f"v_add_u32 v{T0+2}, s{sT0}, v{T0+2}"); o(f"v_and_b32 v{T0+1}, 3, v0"); o(f"v_lshlrev_b32 v{T0+1}, 7, v{T0+1}")
        for k in range(PF):
            o(f"v_add_u32 v{T0+3}, {-512*RN}, v{T0+2}"); o(f"v_min_u32 v{T0}, v{T0+2}, v{T0+3}")
            o(f"buffer_load_dword v{SEL}, {vr(T0,2)}, s[{sT}:{sT+3}], 0 idxen offen")
            if k + 1 < PF: o(f"v_add_u32 v{T0+2}, 4096, v{T0+2}")
    PFW = OPT.get('pfw', 'rec')
    place('rec')
    if PF and PFW == 'rec': pref()
    o("s_waitcnt lgkmcnt(0)"); o("s_barrier"); stamp(2)
    spref(SP[1], SP[0])
    pp = t[14]
    o(f"v_and_b32 v{pp}, 0x13, v0"); o(f"v_lshl_or_b32 v{pp}, v{b2}, 3, v{pp}"); o(f"v_lshl_or_b32 v{pp}, v{b3}, 2, v{pp}")
    o(f"v_lshrrev_b32 v{t[12]}, 3, v{pp}"); o(f"v_lshlrev_b32 v{vTA}, 7, v{pp}"); o(f"v_lshl_add_u32 v{vTA}, v{t[12]}, 4, v{vTA}")
    o(f"v_bfe_u32 v{t[13]}, v0, 1, 1"); o(f"v_xor_b32 v{t[12]}, v{t[13]}, v{vh}"); o(f"v_lshl_add_u32 v{vTA}, v{t[12]}, 6, v{vTA}"); o(f"v_add_u32 v{vTA}, s{sMR}, v{vTA}")
    o(f"v_and_b32 v{t[12]}, 7, v0"); o(f"v_lshlrev_b32 v{t[15]}, 2, v{b4}"); o(f"v_xor_b32 v{t[15]}, v{t[15]}, v{t[12]}")
    o(f"s_mov_b32 s{sT0}, 0" if SM else f"s_lshl_b32 s{sT0}, s{sWAVE}, 7"); o(f"v_lshl_add_u32 v{IX[0]+1}, v{t[15]}, 4, s{sT0}")
    for i in range(1, 4): o(f"v_mov_b32 v{IX[i]+1}, v{IX[0]+1}")
    o(f"v_and_b32 v{vL1}, 0x38, v0"); o(f"v_add_u32 v{vL1}, {LIST}, v{vL1}"); addg(vL1)
    o(f"v_lshl_or_b32 v{t[15]}, v{b4}, 1, v{b2}"); o(f"v_mul_u32_u24 v{t[15]}, {WS_}, v{t[15]}"); o(f"v_mul_u32_u24 v{t[13]}, 1040, v{t[13]}")
    o(f"v_lshl_or_b32 v{t[21]}, v{b3}, 1, v{b0}"); o(f"v_lshl_add_u32 v{t[15]}, v{t[21]}, 8, v{t[15]}"); o(f"v_add3_u32 v{t[15]}, v{t[15]}, v{t[13]}, {'s%d' % sG if G8 else 0}")
    o(f"v_add_u32 v{t[15]}, {RING + NS*SLOT}, v{t[15]}")
    o(f"v_xor_b32 v{t[13]}, v{vh}, v{b0}"); o(f"v_lshl_add_u32 v{vXA}, v{t[13]}, 7, v{t[15]}")
    o(f"v_lshlrev_b32 v{IXE+1}, 4, v{t[13]}")
    o(f"v_bfe_u32 v{t[13]}, v0, 7, 1"); o(f"v_xor_b32 v{t[13]}, v{t[13]}, v{b0}"); o(f"v_lshl_add_u32 v{vXR}, v{t[13]}, 7, v{t[15]}")
    o(f"v_and_b32 v{t[13]}, 0x60, v0"); o(f"v_add_u32 v{vXR}, v{vXR}, v{t[13]}")
    o(f"s_lshl_b32 s{sT0}, s{sS0}, 12"); o(f"s_lshr_b32 s{sT1}, s{sWAVE}, 1"); o(f"s_lshl_b32 s{sT1}, s{sT1}, 8"); o(f"s_add_u32 s{sT0}, s{sT0}, s{sT1}"); o(f"s_add_u32 s{sT0}, s{sT0}, {LIST+4}"); saddg(sT0)
    o(f"v_bfe_u32 v{vL2}, v0, 1, 5"); o(f"v_lshl_add_u32 v{vL2}, v{vL2}, 3, s{sT0}")
    o(f"s_lshl_b32 s{sME}, s{sWAVE}, 10"); o(f"s_add_u32 s{sME}, s{sME}, {ER}"); saddg(sME)
    o(f"v_lshl_add_u32 v{vSA}, v{pp}, 3, v{vh}"); o(f"v_add_u32 v{vSA}, {LIST+2}, v{vSA}"); addg(vSA)
    o(f"v_xor_b32 v{vEA}, v{b4}, v{vh}"); o(f"v_lshlrev_b32 v{vEA}, 4, v{vEA}")
    o(f"v_lshl_add_u32 v{vEA}, v{pp}, 5, v{vEA}"); o(f"v_add_u32 v{vEA}, {ER}, v{vEA}"); addg(vEA)
    o(f"v_add_u32 v{vMT}, 4096, v{vEA}"); o(f"v_xor_b32 v{vMT}, v{vMT}, v{vEA}")
    o(f"v_and_b32 v{t[13]}, 31, v0"); o(f"v_min_u32 v{t[13]}, {NA}, v{t[13]}")
    o(f"v_mul_u32_u24 v{vMA}, {ROW}, v{t[13]}"); o(f"v_lshl_add_u32 v{vMA}, v{vh}, 2, v{vMA}"); o(f"v_add_u32 v{vMA}, {MB}, v{vMA}"); addg(vMA)
    o(f"v_lshrrev_b32 v{PT+2}, 5, v0"); o(f"v_lshlrev_b32 v{PT+2}, 4, v{PT+2}"); o(f"v_lshl_add_u32 v{PT+2}, v{b3}, 2, v{PT+2}"); addg(PT+2)
    lutw(PT+1, t[12], t[13]); o(f"v_lshlrev_b32 v{t[13]}, 4, v{b4}"); o(f"v_lshlrev_b32 v{PT+1}, v{t[13]}, v{PT+1}")
    o(f"v_and_b32 v{t[12]}, 3, v0"); o(f"v_lshl_add_u32 v{t[15]}, v{b4}, 2, v{t[12]}"); lutw(t[12], t[15], t[13])
    o(f"v_cmp_eq_u32 vcc, v{b3}, v{vh}"); o(f"v_lshlrev_b32 v{t[13]}, 4, v{b2}"); o("s_nop 0")
    o(f"v_cndmask_b32 v{t[12]}, 0, v{t[12]}, vcc"); o(f"v_lshlrev_b32 v{PT}, v{t[13]}, v{t[12]}")
    place('mask')
    if cnt(1, 2):
        o(f"s_cmp_eq_u32 s{sFIRST}, 1"); o("s_cbranch_scc1 REMASK"); o("s_waitcnt vmcnt(0)")
    lab("REMASK")
    masks((t[0], t[1], t[2])); xstamp("masks_done")
    a, b_, c, d_ = t[0:4]; ad = [AD + k for k in range(16)]
    o(f"v_mov_b32 v{a}, 8")
    o(f"v_lshrrev_b32 v{b_}, 2, v{vWF}"); addg(b_)
    if G8: o(f"s_lshr_b32 s{sDS}, s{sG}, 8")
    if PF and PFW == 'mask': pref()
    o(f"s_waitcnt vmcnt({cnt(1, 2)})"); xstamp("rec_landed")
    for half in range(2):
        if half: o(f"s_cmp_eq_u64 s[{sSV}:{sSV+1}], 0"); o("s_cbranch_scc1 P1_DONE"); o("s_mov_b64 exec, -1")
        for k in range(8*half, 8*half+8): o(f"v_alignbit_b32 v{ad[k]}, s{sDS}, v{REC+2*k+1}, 24" if G8 else f"v_lshrrev_b32 v{ad[k]}, 24, v{REC+2*k+1}")
        for k in range(8*half, 8*half+8):
            o(f"s_mov_b64 exec, s[{sK+2*k}:{sK+2*k+1}]")
            o(f"ds_add_rtn_u32 v{RANK+k}, v{ad[k]}, v{a} offset:{CNT}")
    lab("P1_DONE")
    o("s_mov_b64 exec, -1")
    EP = OPT.get('ep', '')
    def epf():
        o(f"s_mov_b32 s{sT1}, {int(OPT.get('epm', '0x7007ffff'), 0):#x}")
        for k in range(8):
            o(f"v_and_b32 v{T0+k}, s{sT1}, v{REC+2*k+1}"); o(f"buffer_load_dword v{SEL}, v{T0+k}, s[{sE}:{sE+3}], 0 idxen")
    if EP == 'a': epf()
    place('p1')
    if EP == 'b': epf()
    if PF and PFW == 'p1': pref()
    o("s_waitcnt lgkmcnt(0)"); xstamp("p1_done"); o("s_barrier"); xstamp("b1")
    o(f"ds_read_b32 v{c}, v{b_} offset:{CNT}")
    o(f"ds_read_b32 v{t[4]}, v{b_} offset:{CNT-4}")
    place('b1')
    o(f"v_lshlrev_b32 v{t[5]}, 12, v{vh}"); addg(t[5])
    o("s_waitcnt lgkmcnt(1)")
    o(f"v_sub_u32 v{d_}, v{t[5]}, v{c}")
    for dd in ("row_shr:1", "row_shr:2", "row_shr:4", "row_shr:8"):
        o(f"v_add_u32_dpp v{c}, v{c}, v{c} {dd} row_mask:0xf bank_mask:0xf bound_ctrl:0"); o("s_nop 1")
    o(f"v_add_u32_dpp v{c}, v{c}, v{c} row_bcast:15 row_mask:0xa bank_mask:0xf")
    o(f"v_add_u32 v{d_}, v{c}, v{d_}")
    o(f"ds_write_b32 v{b_}, v{d_} offset:{NB}")
    o(f"v_readlane_b32 s{sNT}, v{c}, 31"); o(f"v_readlane_b32 s{sCNT}, v{c}, 63")
    for k in range(8): o(f"ds_read_b32 v{ad[k]}, v{ad[k]} offset:{NB}")
    o(f"s_max_u32 s{sT0}, s{sNT}, s{sCNT}")
    o(f"s_cmp_le_u32 s{sT0}, 4096"); o("s_cbranch_scc0 TOOBIG")
    xstamp("scan_done")
    for half in range(2):
        if half:
            o(f"s_cmp_eq_u64 s[{sSV}:{sSV+1}], 0"); o("s_cbranch_scc1 P2_DONE"); o("s_mov_b64 exec, -1")
            for k in range(8, 16): o(f"ds_read_b32 v{ad[k]}, v{ad[k]} offset:{NB}")
        for k in range(8*half, 8*half+8):
            if k % 4 == 0: o(f"s_waitcnt lgkmcnt({4 - k % 8})")
            o(f"v_add_u32 v{RANK+k}, v{RANK+k}, v{ad[k]}")
        for k in range(8*half, 8*half+8):
            o(f"s_mov_b64 exec, s[{sK+2*k}:{sK+2*k+1}]")
            o(f"ds_write_b64 v{RANK+k}, {vr(REC+2*k,2)} offset:{LIST}")
    lab("P2_DONE")
    o("s_mov_b64 exec, -1")
    o(f"v_readlane_b32 s{sMORE}, v{t[4]}, 0")
    o(f"s_mov_b32 m0, s{sME}")
    o(f"s_waitcnt vmcnt({9 + (8 if EP == 'b' else 0) if ORD.index(WAP) >= ORD.index(XBP) else 0}) lgkmcnt(0)"); xstamp("p2_done"); o("s_barrier"); stamp(5)
    f = t
    def rdidx(u):
        for i in range(4): o(f"ds_read_u16 v{IX[i]}, v{vL1} offset:{loff(u)+64*i}")
    def fill(u, nxt):
        for i in range(4):
            o(f"s_add_u32 m0, s{sMR}, {u*SLOT + i*1040}"); o(f"s_waitcnt lgkmcnt(3)"); o(ldt(i))
            o(f"ds_read_u16 v{IX[i]}, v{vL1} offset:{loff(nxt)+64*i}")
    o(f"ds_read_b32 v{IXE}, v{vL2}"); rdidx(0)
    o(f"v_lshlrev_b32 v{f[9]}, 3, v0"); addg(f[9])
    o("s_waitcnt lgkmcnt(4)")
    o(f"v_and_b32 v{IXE}, 0x7ffff, v{IXE}"); o(lde())
    NFO = int(OPT.get('nfo', 2)); NFY = int(OPT.get('nfy', 2))
    def fills(lo_o, hi_o, lo_y, hi_y, tag, wait):
        if (lo_o, hi_o) == (lo_y, hi_y):
            for u in range(lo_o, hi_o): fill(u, u + 1)
            return
        o("s_cmp_ge_u32 s2, 256"); o(f"s_cbranch_scc1 {tag}_Y")
        for u in range(lo_o, hi_o): fill(u, u + 1)
        if wait: o(f"s_waitcnt vmcnt({2+4*hi_o})")
        o(f"s_branch {tag}_D")
        lab(f"{tag}_Y")
        for u in range(lo_y, hi_y): fill(u, u + 1)
        if wait: o(f"s_waitcnt vmcnt({2+4*hi_y})")
        lab(f"{tag}_D")
    fills(0, NFO, 0, NFY, "FA", True)
    for k in range(4): o(f"ds_read_u8 v{f[12+k]}, v{f[9]} offset:{LIST+2+k*2048}")
    o(f"ds_read_b32 v{IXE}, v{vL2} offset:512")
    xstamp("fill_issued")
    def ctrl():
        o(f"s_movk_i32 s{sS0}, {ROW}")
        for k in range(4):
            o(f"v_cmp_gt_u32 vcc, {NA}, v{f[12+k]}"); o(f"v_mad_u32_u24 v{f[0]}, v{f[12+k]}, s{sS0}, v{PT+2}")
            o(f"v_lshrrev_b32 v{f[2]}, 1, v{f[12+k]}"); o(f"v_bfi_b32 v{f[2]}, 3, v{f[12+k]}, v{f[2]}"); o(f"v_lshl_add_u32 v{f[2]}, v{f[2]}, 4, 16")
            o(f"v_and_b32 v{f[3]}, 4, v{f[12+k]}"); o(f"v_lshlrev_b32 v{f[3]}, 1, v{f[3]}"); o(f"v_lshlrev_b32 v{f[2]}, v{f[3]}, v{f[2]}")
            o(f"v_cndmask_b32 v{f[2]}, 0, v{f[2]}, vcc"); o(f"ds_write_b16 v{f[9]}, v{f[2]} offset:{LIST+2+k*2048}")
            o(f"v_cndmask_b32 v{f[1]}, 0, v{PT+1}, vcc")
            o(f"ds_add_u32 v{f[0]}, v{f[1]} offset:{MB + (k&1)*128 + (k>>1)*8}")
        o(f"s_add_u32 s{sNT}, s{sNT}, 255"); o(f"s_lshr_b32 s{sNT}, s{sNT}, 8"); o(f"s_lshl1_add_u32 s{sNT}, s{sNT}, -1")
        o(f"s_add_u32 s{sCNT}, s{sCNT}, 255"); o(f"s_lshr_b32 s{sCNT}, s{sCNT}, 8"); o(f"s_lshl_b32 s{sCNT}, s{sCNT}, 1")
        o(f"s_max_i32 s{sNT}, s{sNT}, s{sCNT}"); o(f"s_max_i32 s{sNT}, s{sNT}, 2"); o(f"s_sub_u32 s{sCNT}, s{sNT}, 2")
        o(f"s_add_u32 s{sMET}, s{sME}, 4096"); o(f"s_xor_b32 s{sMET}, s{sMET}, s{sME}"); o(f"s_add_u32 s{sME}, s{sME}, 4096")
        o(f"v_add_u32 v{vL2}, 0x400, v{vL2}")
    def lut():
        q = T0
        for d in range(4):
            o(f"v_bfe_u32 v{q+d}, v0, {2*d}, 2"); o(f"v_mul_u32_u24 v{q+d}, 0x8001, v{q+d}")
            o(f"v_and_b32 v{q+d}, 0x10001, v{q+d}"); o(f"v_mul_u32_u24 v{q+d}, 0x3f80, v{q+d}")
        o(f"v_lshlrev_b32 v{q+4}, 4, v0")
        if LW[4] != 16:
            for k in range(4, 8): o(f"v_bfe_u32 v{q+5}, v0, {k}, 1"); o(f"v_mul_u32_u24 v{q+5}, {16*(LW[k]-(1<<k))}, v{q+5}"); o(f"v_add_u32 v{q+4}, v{q+4}, v{q+5}")
        o(f"ds_write_b128 v{q+4}, {vr(q,4)} offset:{LUT}")
        o(f"v_bfe_u32 v{q}, v0, 1, 4"); o(f"v_bfe_u32 v{q+1}, v0, 5, 1"); o(f"v_lshl_add_u32 v{q+1}, v{q+1}, 3, 1"); o(f"v_sub_u32 v{q}, v{q}, v{q+1}")
        o(f"v_and_b32 v{q+1}, 1, v0"); o(f"v_lshlrev_b32 v{q+1}, 2, v{q+1}"); o(f"v_sub_u32 v{q}, v{q}, v{q+1}")
        o(f"v_cmp_gt_u32 vcc, 4, v{q}"); o(f"v_mov_b32 v{q+6}, 0x3f80"); o(f"v_mov_b32 v{q+7}, 0"); o(f"v_lshlrev_b32 v{q}, 4, v{q}")
        o(f"v_cndmask_b32 v{q+6}, 0, v{q+6}, vcc")
        o(f"v_lshlrev_b64 {vr(q+6,2)}, v{q}, {vr(q+6,2)}")
        o(f"v_lshrrev_b32 v{q}, 1, v{vWF}")
        o(f"ds_write_b64 v{q}, {vr(q+6,2)} offset:{IDT}")
    o(f"s_cmp_eq_u32 s{sFIRST}, 1"); o("s_cbranch_scc1 G1")
    o("s_waitcnt lgkmcnt(0)")
    ctrl()
    o("s_branch G1D")
    lab("G1")
    for mt in range(2):
        for s in range(8): o(f"ds_read_b128 {vr(GV+32*mt+4*s,4)}, v{vXA} offset:{mt*2080 + 16*s}")
        if mt == 0: o("s_waitcnt lgkmcnt(8)")
    lt = capture(lut); ct = capture(ctrl)
    NL1 = [i for i, x in enumerate(lt) if x.startswith('ds_write_b128')][0] + 1
    for x in lt[:NL1]: o(x)
    o(f"s_waitcnt vmcnt({4*max(NFO, NFY)+2+(8 if EP == 'b' else 0)}) lgkmcnt(9)")
    acc = [ACC + 32, ACC + 48]
    interleave([m32(acc[0], GV+4*s, ACC+4*s, None if s == 0 else acc[0]) for s in range(8)], lt[NL1:] + ct[:25], 5)
    o(f"s_waitcnt lgkmcnt({1 + sum(1 for x in lt[NL1:] + ct[:25] if x.startswith('ds_'))})")
    def cv(mt): return [f"v_cvt_pk_bf16_f32 v{AF+8*mt+r//2}, v{acc[mt]+r}, v{acc[mt]+r+1}" for r in range(0, 16, 2)]
    interleave([m32(acc[1], GV+32+4*s, ACC+4*s, None if s == 0 else acc[1]) for s in range(8)],
               ct[25:] + cv(0) + [f"v_mov_b64 {vr(acc[0]+r,2)}, s[40:41]" for r in range(0, 16, 2)], 5)
    for r in range(0, 32, 2): o(f"v_mov_b64 {vr(ACC+r,2)}, {'s[40:41]' if r < 16 else 0}")
    for x in cv(1): o(x)
    for r in range(0, 16, 2): o(f"v_mov_b64 {vr(acc[1]+r,2)}, 0")
    if STAMP:
        o("s_getreg_b32 s94, hwreg(HW_REG_HW_ID)"); o("s_getreg_b32 s100, hwreg(HW_REG_XCC_ID)"); o("s_and_b32 s94, s94, 0xffff"); o("s_lshl_b32 s100, s100, 16"); o("s_or_b32 s94, s94, s100"); o(f"v_writelane_b32 v{VST[0]}, s94, 3")
    lab("G1D")
    o(f"v_and_b32 v{MQ}, 0xffff, v{PT}"); o(f"v_lshrrev_b32 v{MQ+1}, 16, v{PT}")
    xstamp("g1_done"); stamp(4)
    fills(NFO, NS, NFY, NS, "FB", False)
    o(f"s_waitcnt vmcnt({4*(NS-1)}) lgkmcnt(0)"); xstamp("t0_landed"); o("s_barrier")
    o(f"ds_read_b128 {vr(SEL,4)}, v{MQ}"); o(f"ds_read_b128 {vr(SEL+4,4)}, v{MQ+1}"); o(f"ds_read_u8 v{vSV}, v{vSA}")
    o(f"ds_read_b128 {vr(EF,4)}, v{vEA}")
    for j in range(4): o(f"ds_read_b128 {vr(TF+4*j,4)}, v{vTA} offset:{16*j}")
    o(f"s_setprio {OPT.get('lp', 2)}")
    if OPT.get('young'):
        o("s_cmp_lt_u32 s2, 256"); o("s_cbranch_scc1 OLD"); o(f"s_setprio {OPT['young']}"); lab("OLD")
    if OPT.get('fakec'): o(f"v_lshrrev_b32 v{vTC}, 2, v{vWF}"); o(f"v_add_u32 v{vTC}, s{sMR}, v{vTC}")
    stamp(6); stamp(8, "s_memtime")
    bodies = [body(b) for b in range(4)]
    if not OPT.get('skel') and not OPT.get('noval') and not OPT.get('fakec'): check_hazards(sum(bodies, []) + ["s_branch LOOP"])
    emit(body(0, peel=True))
    b1 = bodies[1][:bodies[1].index("ENT1:")]
    o("s_nop 7")
    emit([x for x in b1 if not x.startswith(("v_mfma", "s_sub", "s_cbranch"))])
    o("s_branch ENT1")
    lab("TOOBIG")
    o(f"s_mov_b32 s{sLIM}, {LOWLIM}"); o(f"v_mov_b32 v{a}, 0")
    o("s_waitcnt lgkmcnt(0)"); o("s_barrier")
    o(f"ds_write_b32 v{b_}, v{a} offset:{CNT}")
    o("s_waitcnt lgkmcnt(0)"); o("s_barrier")
    o("s_branch REMASK")
    lab("LOOP")
    emit(sum(bodies, []))
    if OPT.get('pp', '99,8,4') != '0' and not G8:
        th = [int(x) for x in OPT.get('pp', '99,8,4').split(',')]
        o(f"s_add_u32 s{sT0}, s{sCNT}, s{sRS}")
        for k, v in enumerate(th):
            if v < 99: o(f"s_cmp_lt_u32 s{sT0}, {v}"); o("s_cbranch_scc0 LOOP"); o(f"s_setprio {2-k}")
    o("s_branch LOOP")
    assert len(set(HEAD.values())) == 1
    WU = TF; x = AF
    def fin(p):
        d = ACC + 32 * p; r = []
        for k in range(16): r.append(f"v_rcp_f32 v{d+k}, v{d+k}")
        for k in range(16): r.append(f"v_mul_f32 v{d+16+k}, v{d+k}, v{d+16+k}")
        return r
    def unp(p): return sum(([f"v_lshlrev_b32 v{ACC+32*p+2*k}, 16, v{x+8*p+k}", f"v_and_b32 v{ACC+32*p+2*k+1}, s{sT1}, v{x+8*p+k}"] for k in range(8)), [])
    def post(p):
        r = []
        for k in range(8):
            z = ACC + 32*p + 16 + 2*k
            r += [f"v_max_f32 v{z}, 0, v{z}", f"v_max_f32 v{z+1}, 0, v{z+1}", f"v_add_f32 v{z}, v{z}, v{z-16}", f"v_add_f32 v{z+1}, v{z+1}, v{z-15}",
                  f"v_cvt_pk_bf16_f32 v{x+8*p+k}, v{z}, v{z+1}"]
        return r
    def st(p): return [f"s_mov_b64 exec, {((1 << (NA - p)) - 1):#x}", f"s_mov_b32 exec_hi, exec_lo"] + \
        [f"buffer_store_dwordx4 {vr(x+8*p+4*k,4)}, {vr(IX[p],2)}, s[{sO}:{sO+3}], 0 idxen offen offset:{16*k} {OPT.get('outpol', '').replace('+', ' ')}" for k in range(2)] + ["s_mov_b64 exec, -1"]
    assert RN - NA == NA - 1
    CO = int(OPT.get('co', 0))
    if CO == 2:
        pol_ = OPT.get('outpol', '').replace('+', ' ')
        def st(p):
            r = [f"ds_write_b128 v{IX[2]}, {vr(x+8*p+4*k,4)} offset:{p*SLOT + 16*k}" for k in range(2)]
            r += [f"ds_read_b128 {vr(x+8*p+4*k,4)}, v{IX[3]} offset:{p*SLOT + k*16*80}" for k in range(2)]
            r += ["s_waitcnt lgkmcnt(1)", f"buffer_store_dwordx4 {vr(x+8*p,4)}, {vr(IX[p],2)}, s[{sO}:{sO+3}], 0 idxen offen {pol_}",
                  f"v_add_u32 v{IX[p]}, 16, v{IX[p]}", f"s_mov_b32 exec_hi, {(1 << (4 * (NA - p - 24))) - 1}", "s_waitcnt lgkmcnt(0)",
                  f"buffer_store_dwordx4 {vr(x+8*p+4,4)}, {vr(IX[p],2)}, s[{sO}:{sO+3}], 0 idxen offen {pol_}", "s_mov_b64 exec, -1"]
            return r
    elif CO:
        def st(p): return [f"s_mov_b64 exec, {((1 << (NA - p)) - 1):#x}", f"s_mov_b32 exec_hi, exec_lo"] + \
            [f"ds_write_b128 v{IX[2]}, {vr(x+8*p+4*k,4)} offset:{RING + p*NA*272 + 16*k}" for k in range(2)] + ["s_mov_b64 exec, -1"]
    for p in (1, 0):
        q = 1 - p; Gc = GV + 32 * q
        lab(f"TAIL{p}")
        stamp(7); stamp(11, "s_memtime")
        if STAMP: o(f"v_writelane_b32 v{VST[0]}, s{sNT}, 12")
        o(f"ds_read_b128 {vr(T0,4)}, v{MQ}"); o(f"ds_read_b128 {vr(T0+4,4)}, v{MQ+1}")
        o(f"s_cmp_lg_u32 s{sMORE}, 0"); o(f"s_cbranch_scc1 TAILM{p}")
        o("s_waitcnt lgkmcnt(0)")
        for ins in wload(WU, WF_U): o(ins)
        for s in range(8): o(f"ds_read_b128 {vr(GV+32*p+4*s,4)}, v{vXA} offset:{p*2080+16*s}")
        for mt in range(2):
            for k in range(2): o(f"ds_read_b128 {vr(x+8*mt+4*k,4)}, v{vXR} offset:{mt*2080+16*k}")
        o(f"v_and_b32 v{IX[0]}, 31, v0"); o(f"v_and_b32 v{IX[0]+1}, 0xe0, v0"); o(f"v_add_u32 v{IX[0]}, s{sBASE}, v{IX[0]}")
        o(f"v_add_u32 v{IX[1]}, {NA}, v{IX[0]}"); o(f"v_mov_b32 v{IX[1]+1}, v{IX[0]+1}")
        if CO == 2:
            o(f"v_and_b32 v{IX[2]}, 31, v0"); o(f"v_mul_u32_u24 v{IX[2]}, 80, v{IX[2]}"); o(f"v_and_b32 v{IX[3]}, 32, v0"); o(f"v_add3_u32 v{IX[2]}, v{IX[2]}, v{IX[3]}, s{sMR}")
            o(f"v_bfe_u32 v{IX[0]}, v0, 2, 4"); o(f"v_and_b32 v{IX[1]}, 0x30, v{vWF}")
            o(f"v_mul_u32_u24 v{IX[3]}, 80, v{IX[0]}"); o(f"v_add3_u32 v{IX[3]}, v{IX[3]}, v{IX[1]}, s{sMR}")
            o(f"v_and_b32 v{IX[0]+1}, 0xc0, v0"); o(f"v_add_u32 v{IX[0]+1}, v{IX[0]+1}, v{IX[1]}"); o(f"v_mov_b32 v{IX[1]+1}, v{IX[0]+1}")
            o(f"v_add_u32 v{IX[0]}, s{sBASE}, v{IX[0]}"); o(f"v_add_u32 v{IX[1]}, {NA}, v{IX[0]}")
        elif CO:
            o(f"v_and_b32 v{IX[2]}, 31, v0"); o(f"v_mul_u32_u24 v{IX[2]}, 272, v{IX[2]}"); o(f"v_add_u32 v{IX[2]}, v{IX[2]}, v{IX[0]+1}")
            o(f"v_lshrrev_b32 v{IX[0]}, 4, v0"); o(f"v_and_b32 v{IX[0]+1}, 0xf0, v{vWF}")
            o(f"v_mul_u32_u24 v{IX[3]}, 272, v{IX[0]}"); o(f"v_add_u32 v{IX[3]}, v{IX[3]}, v{IX[0]+1}"); o(f"v_add_u32 v{IX[0]}, s{sBASE}, v{IX[0]}")
        o(f"s_mov_b32 s{sT1}, 0xffff0000")
        vs = [i for i, _ in vstream(Gc, Gc + 16)[HEAD[0]:]]
        for ins in vs: o(ins)
        o("s_nop 0")
        interleave(zphase(Gc, q), fin(p), 4)
        for s in range(8): o(f"ds_read_b128 {vr(Gc+4*s,4)}, v{vXA} offset:{q*2080+16*s}")
        o("s_waitcnt vmcnt(0) lgkmcnt(8)")
        interleave([m32(ACC+32*p+16, WU+4*s, GV+32*p+4*s, ACC+32*p+16) for s in range(8)], fin(q), 4)
        o("s_waitcnt lgkmcnt(0)"); o("s_barrier" if CO == 1 else "s_nop 0")
        interleave([m32(ACC+32*q+16, WU+4*s, Gc+4*s, ACC+32*q+16) for s in range(8)], unp(p) + post(p) + unp(q), 7)
        for ins in st(p) + post(q) + st(q): o(ins)
        if p == 1: o("s_branch K2_FIN")
    lab("K2_FIN")
    if CO == 1:
        o("v_cmp_gt_u32 vcc, 16, v0")
        o("s_waitcnt lgkmcnt(0)"); o("s_barrier")
        for k in range(4): o(f"ds_read_b128 {vr(GV+4*k,4)}, v{IX[3]} offset:{RING + k*16*272}")
        for k in range(4):
            if k == 3: o(f"s_and_saveexec_b64 s[{sSV}:{sSV+1}], vcc"); o("s_cbranch_execz K2_OUT")
            o(f"s_waitcnt lgkmcnt({3-k})")
            o(f"buffer_store_dwordx4 {vr(GV+4*k,4)}, {vr(IX[0],2)}, s[{sO}:{sO+3}], 0 idxen offen {OPT.get('outpol', '').replace('+', ' ')}")
            if k < 3: o(f"v_add_u32 v{IX[0]}, 16, v{IX[0]}")
        lab("K2_OUT")
    stamp_out(9, GV+32, sW, 1)
    lab("K2_END")
    o("s_endpgm")
    for p in (1, 0):
        Gc = GV + 32 * (1 - p)
        lab(f"TAILM{p}")
        for ins, _ in vstream(Gc, Gc + 16)[HEAD[0]:]: o(ins)
        o("s_waitcnt lgkmcnt(0)")
        for m in zphase(Gc, 1 - p): o(m)
        if p == 1: o("s_branch NEXTROUND")
    lab("NEXTROUND")
    for i in range(4):
        o(f"v_lshrrev_b32 v{vTC}, 19, v{SEG+i}"); o(f"v_min_u32 v{vTC}, s{sLIM}, v{vTC}")
        o(f"v_add_u32 v{SEG+i}, v{SEG+i}, v{vTC}"); o(f"v_lshlrev_b32 v{vTC}, 19, v{vTC}"); o(f"v_sub_u32 v{SEG+i}, v{SEG+i}, v{vTC}")
    o(f"s_mov_b32 s{sFIRST}, 0"); o(f"s_mov_b32 s{sLIM}, {LIM}")
    o("s_waitcnt vmcnt(0) lgkmcnt(0)"); o("s_barrier")
    o("s_branch ROUND")

def kd(name, nv, ns):
    L.append(".p2align 6")
    L.append(f".amdhsa_kernel {name}")
    for k, v in (("next_free_vgpr", nv), ("next_free_sgpr", ns), ("accum_offset", (nv + 3) // 4 * 4), ("group_segment_fixed_size", 0),
                 ("kernarg_size", 96), ("user_sgpr_count", 2), ("user_sgpr_kernarg_segment_ptr", 1), ("system_sgpr_workgroup_id_x", 1),
                 ("float_denorm_mode_32", 3)):
        L.append(f"  .amdhsa_{k} {v}")
    L.append(".end_amdhsa_kernel")

hdr = [l for l in open(f"cdna_kernels/{NAME}.s.ref").read().splitlines() if l.startswith(";") and "@launch" not in l
       and "Override launch" not in l and "grid=ceil" not in l]
L += hdr
L.append(f"; @launch kernel=gsort_kernel grid=({K1_GRID},1,1) block=(512,1,1) lds={K1_LDS}")
L.append(f"; @launch kernel=gmain_kernel grid=(256,1,1) block=(512,1,1) lds={NB+2*GS}" if G8 else f"; @launch kernel=gmain_kernel grid=(512,1,1) block=(256,1,1) lds={K2_LDS}")
L.append('.amdgcn_target "amdgcn-amd-amdhsa--gfx950"'); L.append(".text")
gen_k1a(); gen_k2()
lab("CODE_END")
L.append('.section .rodata,"a"')
kd("gsort_kernel", 256 if STAMP else 240, 102 if STAMP else 72); kd("gmain_kernel", 256 if STAMP else NVGPR, 102)
if STAMP: L.append("; STAMPS " + repr(NAMES))
open(sys.argv[1], "w").write("\n".join(L) + "\n")
print("vgprs", NVGPR, "lds", K2_LDS, "lines", len(L), file=sys.stderr)
```

```python
import sys, struct, re

N = 25000; E = 400000; RN = 49; NR = 511; CH = 1600; NCH = 250
WS_REC = 0; WS_OFF = 0x310000; OROW = 1152; WS_WF = 0x3c0000; WS_TAB = 0x400000; WS_SIZE = 0x4000000
WF_A = 0; WF_U = 0x8000; WF_C = 0x10000; NA = 25
NLOG2E = struct.unpack('<I', struct.pack('<f', -1.4426950408889634))[0]
EPS = struct.unpack('<I', struct.pack('<f', 1e-6))[0]
NAME = "standalone__edge_featured_mpnn_gatedgcn__graph"
OPT = dict(k1='a', tabpol='sc1', recpol='sc1', touch='0', nfo='1', nfy='0', lw='1', sf='1', st='1', split='2', nx='2', wfpol='sc1', tsh='19', outpol='sc1', co='2', bon='3', lp='3', pp='22,14,6')
OPT.update(a.split('=') for a in sys.argv[2:])
CH = 6720; NCH = 60; CHL = E - (NCH - 1) * CH; EPT = 16; LPS = 16; NG = 196
STAMP = int(OPT.get('stamp', 0))
WS_TAB = int(OPT.get('tab', hex(WS_TAB)), 0)
WS_STAMP = 0x3800000
L = []
def o(s): L.append("    " + s)
def lab(s): L.append(s + ":")
def vr(b, n): return f"v[{b}:{b+n-1}]"
VST = [60]
NAMES = {}
def stamp(i, ins="s_memrealtime", name=None):
    if STAMP:
        o(f"{ins} s[100:101]"); o("s_waitcnt lgkmcnt(0)"); o(f"v_writelane_b32 v{VST[0]}, s100, {i}")
def xstamp(name):
    if STAMP:
        NAMES[name] = 16 + len(NAMES); stamp(NAMES[name])
def stamp_out(n, reg, srdn, kern):
    if not STAMP: return
    o("s_mov_b64 exec, -1")
    stamp(n)
    o(f"v_lshlrev_b32 v{reg}, 2, v0")
    if kern and int(OPT.get('g8', 0)): o("s_and_b32 s63, s3, 1"); o("s_lshl_b32 s63, s63, 8"); o("s_add_u32 s2, s2, s63")
    o(f"s_lshl_b32 s63, s2, 11"); o(f"s_add_u32 s63, s63, {WS_STAMP + kern*0x100000:#x}")
    o(f"buffer_store_dword v{VST[0]}, v{reg}, s[{srdn}:{srdn+3}], s63 offen")
def srd(d, lo, size, stride=0):
    o(f"s_mov_b32 s{d}, s{lo}"); o(f"s_and_b32 s{d+1}, s{lo+1}, 0xffff")
    if stride: o(f"s_or_b32 s{d+1}, s{d+1}, {stride << 16:#x}")
    o(f"s_mov_b32 s{d+2}, {size:#x}"); o(f"s_mov_b32 s{d+3}, 0x20000")
def scan64(v):
    for d in ("row_shr:1", "row_shr:2", "row_shr:4", "row_shr:8"):
        o("s_nop 1"); o(f"v_add_u32_dpp v{v}, v{v}, v{v} {d} row_mask:0xf bank_mask:0xf bound_ctrl:0")
    o("s_nop 1"); o(f"v_add_u32_dpp v{v}, v{v}, v{v} row_bcast:15 row_mask:0xa bank_mask:0xf")
    o("s_nop 1"); o(f"v_add_u32_dpp v{v}, v{v}, v{v} row_bcast:31 row_mask:0xc bank_mask:0xf")

def m32(d, a, b, c): return f"v_mfma_f32_32x32x16_bf16 {vr(d,16)}, {vr(a,4)}, {vr(b,4)}, " + ("0" if c is None else vr(c,16))
K1_GRID = 256
CB = CH * 8 + 2048
K1_W = 0; K1_X = 65536; K1_S = K1_X + 4 * 8320; K1_LDS = K1_S + 8 * 4608
SM = 0
def gen_k1a():
    L.append(".globl gsort_kernel"); L.append(".p2align 8"); L.append(".type gsort_kernel,@function")
    lab("gsort_kernel"); VST[0] = 255
    pol = OPT.get('tabpol', '').replace('+', ' '); rpol = OPT.get('recpol', '').replace('+', ' ')
    stamp(0)
    o("s_load_dwordx8 s[4:11], s[0:1], 0")
    o("s_load_dwordx8 s[40:47], s[0:1], 32")
    o("s_load_dwordx2 s[48:49], s[0:1], 64")
    o("s_load_dwordx2 s[12:13], s[0:1], 88")
    o("v_lshrrev_b32 v2, 6, v0"); o("v_lshlrev_b32 v40, 4, v0")
    o("v_bfe_u32 v56, v0, 4, 1"); o("v_bfe_u32 v57, v0, 5, 1"); o("v_and_b32 v20, 63, v0")
    o("v_readfirstlane_b32 s33, v2")
    if OPT.get('sf'):
        o("s_cmp_ge_u32 s2, 256"); o("s_cbranch_scc1 K1_END")
        o("s_add_u32 s2, s2, 192"); o("s_and_b32 s2, s2, 255")
    o(f"s_cmp_ge_u32 s2, {NG}"); o("s_cbranch_scc1 K1_OTHER")
    o("s_lshr_b32 s35, s2, 3")
    o("s_and_b32 s36, s2, 7"); o("s_min_u32 s14, s36, 4"); o("s_mul_i32 s36, s36, 24"); o("s_add_u32 s36, s36, s14"); o("s_add_u32 s36, s36, s35")
    o("s_lshl_b32 s37, s36, 7")
    o("v_bfe_u32 v43, v0, 4, 2"); o("v_lshlrev_b32 v43, 6, v43"); o("v_xor_b32 v43, v43, v40")
    o("v_lshl_add_u32 v54, v57, 3, v56")
    o("s_lshr_b32 s32, s33, 2"); o("s_lshl_b32 s14, s32, 4"); o("s_and_b32 s30, s33, 3"); o("s_lshl1_add_u32 s14, s30, s14"); o("s_add_u32 s14, s14, s37")
    o("v_add_u32 v54, s14, v54")
    o("v_and_b32 v55, 15, v0"); o("v_lshlrev_b32 v59, 3, v56"); o("v_xor_b32 v55, v55, v59"); o("v_lshlrev_b32 v55, 4, v55")
    o("s_mul_i32 s38, s33, 1040"); o(f"s_add_u32 s38, s38, {K1_X}")
    o("s_lshl_b32 s39, s33, 10")
    o("s_mov_b32 m0, s38")
    o("s_waitcnt lgkmcnt(0)")
    srd(60, 4, N, 256)
    def xd(t):
        if t: o(f"s_add_u32 m0, s38, {t*8320}"); o("v_add_u32 v54, 32, v54")
        o("buffer_load_dwordx4 v[54:55], s[60:63], 0 idxen offen lds")
    def wd(m):
        for i in range(4):
            o(f"s_add_u32 m0, s39, {K1_W+m*32768+i*8192}"); o(f"s_movk_i32 s14, {i*8192}"); o(f"buffer_load_dwordx4 v43, s[{52+4*m}:{55+4*m}], s14 offen lds")
    xd(0); xd(1)
    srd(52, 42, 32768); wd(0)
    ST = int(OPT.get('st', 0))
    if ST: o("s_barrier")
    srd(56, 48, 32768)
    if ST < 2: wd(1)
    if not ST: xd(2); xd(3)
    o("v_bfe_u32 v60, v0, 2, 2"); o("v_lshl_add_u32 v61, v57, 6, v60"); o("v_xor_b32 v60, s30, v60"); o("v_lshlrev_b32 v60, 6, v60"); o("v_lshl_add_u32 v60, v61, 8, v60")
    o("v_and_b32 v61, 3, v0"); o("v_lshl_add_u32 v60, v61, 3, v60"); o("v_lshl_add_u32 v60, v56, 5, v60")
    o("v_bfe_u32 v61, v0, 1, 2"); o("v_lshl_or_b32 v61, v56, 2, v61"); o("v_mul_u32_u24 v61, 1040, v61")
    o("v_and_b32 v62, 1, v0"); o("v_bfe_u32 v63, v0, 3, 1"); o("v_lshl_or_b32 v63, v63, 1, v62"); o("v_lshl_add_u32 v61, v63, 8, v61")
    o("s_mul_i32 s14, s32, 8320"); o(f"s_add_u32 s14, s14, {K1_X}")
    o("v_xor_b32 v62, v62, v57"); o("v_lshl_add_u32 v61, v62, 7, v61"); o("v_add_u32 v61, s14, v61")
    o("s_mul_i32 s14, s33, 4608"); o(f"s_add_u32 s14, s14, {K1_S}")
    o("v_and_b32 v62, 31, v0"); o("v_mul_u32_u24 v62, 144, v62"); o("v_lshl_add_u32 v62, v57, 6, v62"); o("v_add_u32 v62, s14, v62")
    o("v_lshrrev_b32 v58, 3, v20"); o("v_and_b32 v59, 7, v0"); o("v_lshlrev_b32 v59, 4, v59")
    o("v_mul_u32_u24 v63, 144, v58"); o("v_add3_u32 v63, v63, v59, s14")
    o("s_lshl_b32 s14, s32, 5"); o("s_add_u32 s14, s14, s37"); o("s_lshl_b32 s14, s14, 9"); o("s_lshl_b32 s30, s30, 7"); o("s_add_u32 s14, s14, s30")
    o("v_lshl_add_u32 v59, v58, 9, v59"); o("v_add_u32 v59, s14, v59")
    if STAMP: srd(24, 12, WS_SIZE)
    o(f"s_add_u32 s12, s12, {WS_TAB:#x}"); o("s_addc_u32 s13, s13, 0"); srd(16, 12, N * 512)
    o(f"s_mov_b32 s15, {NLOG2E:#x}")
    WF_ = 64; XF_ = 128; AC = [160, 192]
    def trs(m):
        for s in range(8):
            for jj in range(2): o(f"ds_read_b64_tr_b16 v[{WF_+32*m+4*s+2*jj}:{WF_+32*m+4*s+2*jj+1}], v60 offset:{K1_W+m*32768+s*2048+jj*1024}")
            if m == 0: o(f"ds_read_b128 {vr(XF_+4*s,4)}, v61 offset:{16*s}")
    SPL = int(OPT.get('split', 1))
    stamp(1)
    if ST == 2: wd(1)
    o(f"s_waitcnt vmcnt({4 if ST else 6 if SPL else 0})"); o("s_barrier"); stamp(3)
    trs(0)
    if ST: xd(2); xd(3)
    if SPL:
        o("s_waitcnt lgkmcnt(12)")
        for s in range(8):
            if s == 4: o("s_waitcnt lgkmcnt(0)")
            o(m32(AC[0], WF_+4*s, XF_+4*s, None if s == 0 else AC[0]))
        o(f"s_waitcnt vmcnt({2 if SPL == 2 else 0})"); o("s_barrier")
        trs(1)
        for k in range(16): o(f"v_mul_f32 v{AC[0]+k}, s15, v{AC[0]+k}")
    else:
        trs(1)
        o("s_waitcnt lgkmcnt(15)")
        for s in range(8): o(m32(AC[0], WF_+4*s, XF_+4*s, None if s == 0 else AC[0]))
    def post(t):
        a = AC[t]; r = []
        for k in range(16): r.append(f"v_mul_f32 v{a+k}, s15, v{a+k}")
        for k in range(16): r.append(f"v_cvt_pk_bf16_f32 v{224+k}, v{a+2*k}, v{a+2*k+1}")
        r += [f"ds_write_b128 v62, {vr(224+4*c,4)} offset:{16*c}" for c in range(4)]
        r += [f"ds_read_b128 {vr(a+4*k,4)}, v63 offset:{k*8*144}" for k in range(4)]
        return r
    def stores(t):
        r = []
        for k in range(4):
            r += [f"s_waitcnt lgkmcnt({3-k})", f"buffer_store_dwordx4 {vr(AC[t]+4*k,4)}, v59, s[16:19], 0 offen {pol}", "v_add_u32 v59, 0x1000, v59"]
        return r
    o("s_waitcnt lgkmcnt(0)")
    for s in range(8):
        o(m32(AC[0]+16, WF_+32+4*s, XF_+4*s, None if s == 0 else AC[0]+16))
        if SPL < 2: o(f"ds_read_b128 {vr(XF_+4*s,4)}, v61 offset:{2*8320+16*s}")
        else: o(post(0)[16+s])
    if SPL == 2:
        o("s_waitcnt vmcnt(0)"); o("s_barrier")
        for s in range(8): o(f"ds_read_b128 {vr(XF_+4*s,4)}, v61 offset:{2*8320+16*s}")
        o("s_nop 0")
        for x in post(0)[24:]: o(x)
        o("s_waitcnt lgkmcnt(8)")
    else: o("s_waitcnt lgkmcnt(0)")
    mf = [m32(AC[1], WF_+4*s, XF_+4*s, None if s == 0 else AC[1]) for s in range(8)] + [m32(AC[1]+16, WF_+32+4*s, XF_+4*s, None if s == 0 else AC[1]+16) for s in range(8)]
    q = (post(0)[16:] + [None] * 6 if SPL < 2 else [None] * 5) + stores(0)
    q += [None] * (54 - len(q)) + ["s_nop 8"] + post(1)[:24]
    for m in mf:
        o(m)
        for _ in range(5):
            if q:
                x = q.pop(0)
                if x: o(x)
    assert not q
    o("v_add_u32 v59, 0x4000, v59"); o("s_nop 7")
    for x in post(1)[24:]: o(x)
    stamp(4)
    for x in stores(1): o(x)
    lab("K1_F")
    if STAMP: o("s_waitcnt vmcnt(0)")
    stamp_out(2, 12, 24, 0)
    lab("K1_END")
    o("s_endpgm")
    lab("K1_OTHER")
    o(f"s_sub_u32 s2, s2, {NG}")
    if OPT.get('cpf'):
        o("s_cmp_lt_u32 s33, 5"); o("s_cbranch_scc1 K1_NP")
        o("s_getpc_b64 s[70:71]"); lab("K1_PC")
        o("s_sub_u32 s70, s70, K1_PC-gsort_kernel"); o("s_subb_u32 s71, s71, 0")
        o("v_sub_u32 v236, 511, v0"); o("v_lshlrev_b32 v236, 7, v236"); o("v_min_u32 v236, CODE_END-gsort_kernel-4, v236")
        o("v_mov_b32 v237, s71"); o("v_add_co_u32 v236, vcc, s70, v236"); o("s_nop 1"); o("v_addc_co_u32 v237, vcc, 0, v237, vcc")
        o("global_load_dword v238, v[236:237], off")
        lab("K1_NP")
    D_, S_, R_, K_, P_ = 64, 80, 96, 112, 128
    o("v_lshlrev_b32 v1, 2, v0"); o("v_mov_b32 v2, 0"); o("ds_write_b32 v1, v2")
    o(f"s_mul_i32 s3, s2, {CH*4}"); o(f"s_mul_i32 s31, s2, {CB}"); o(f"s_mul_i32 s34, s2, {CH}")
    assert CH % 16 == 0 and CHL % 16 == 0 and CH // 16 <= 448
    o(f"s_movk_i32 s35, {CH}"); o(f"s_cmp_eq_u32 s2, {NCH-1}"); o(f"s_cselect_b32 s35, {CHL}, s35")
    o("v_cmp_gt_u32 vcc, s35, v40")
    o("s_lshr_b32 s36, s35, 2"); o("s_sub_u32 s36, s36, 3")
    o("s_waitcnt lgkmcnt(0)")
    srd(20, 10, E*4); srd(16, 8, E*4); srd(24, 12, WS_SIZE)
    o("s_mov_b64 s[28:29], vcc"); o("s_mov_b64 exec, vcc"); o("s_cbranch_execz K1_PREP")
    for j in range(4):
        for base, sr in ((D_, 20), (S_, 16)): o(f"buffer_load_dwordx4 {vr(base+4*j,4)}, v40, s[{sr}:{sr+3}], s3 offen")
        o("s_add_u32 s3, s3, s35")
    o("s_barrier")
    o("v_add_u32 v3, s34, v1"); o("v_mov_b32 v2, 1"); o(f"s_mov_b32 s15, {-RN}")
    def recs(lo, hi):
        for i in range(lo, hi):
            o(f"v_cmp_lt_u32 vcc, {NA-1}, v{D_+i}"); o(f"v_mul_u32_u24 v22, 83, v{S_+i}"); o("v_lshrrev_b32 v22, 16, v22")
            o(f"v_cndmask_b32 v23, 0, {NA}, vcc"); o(f"v_sub_u32 v23, v{D_+i}, v23")
            o(f"v_lshl_or_b32 v{P_+2*i}, v23, 16, v{S_+i}")
            o("v_cndmask_b32 v23, 0, 32, vcc"); o("v_or_b32 v22, v22, v23")
            o(f"v_lshl_add_u32 v{P_+1+2*i}, v22, 26, v3")
            o(f"v_add_u32 v3, {1 if i % 4 < 3 else 's36'}, v3")
    for j in range(4):
        o(f"s_waitcnt vmcnt({7 - 2*j})")
        for i in range(4*j, 4*j+4):
            o(f"v_mul_u32_u24 v{R_+i}, 21400, v{D_+i}")
            o(f"v_lshrrev_b32 v{R_+i}, 20, v{R_+i}")
            o(f"v_mad_i32_i24 v{D_+i}, v{R_+i}, s15, v{D_+i}")
            o(f"v_lshlrev_b32 v{R_+i}, 2, v{R_+i}")
            o(f"ds_add_rtn_u32 v{K_+i}, v{R_+i}, v2")
        o(f"s_waitcnt vmcnt({6 - 2*j})")
        if j < 3: recs(4*j, 4*j+4)
    stamp(1)
    lab("K1_B")
    o("s_mov_b64 exec, -1")
    o("v_lshlrev_b32 v20, 5, v20")
    o("s_waitcnt lgkmcnt(0)"); o("s_barrier"); stamp(3)
    o("ds_read_b128 v[24:27], v20"); o("ds_read_b128 v[28:31], v20 offset:16")
    recs(12, 14)
    o("s_waitcnt lgkmcnt(0)"); stamp(5)
    o("v_mov_b32 v33, v24")
    for j in range(2, 8): o(f"v_add_u32 v{32+j}, v{31+j}, v{23+j}")
    o("v_add_u32 v21, v39, v31"); o("v_mov_b32 v22, v21")
    scan64(21)
    o("v_sub_u32 v32, v21, v22")
    for j in range(1, 8): o(f"v_add_u32 v{32+j}, v32, v{32+j}")
    stamp(6)
    o("ds_write_b128 v20, v[32:35] offset:2048"); o("ds_write_b128 v20, v[36:39] offset:2064"); stamp(7)
    o("s_mov_b64 exec, s[28:29]")
    for i in range(EPT): o(f"ds_read_b32 v{R_+i}, v{R_+i} offset:2048")
    recs(14, 16); stamp(8)
    for i in range(EPT):
        if i % 4 == 0: o(f"s_waitcnt lgkmcnt(12)")
        o(f"v_add_lshl_u32 v{D_+i}, v{R_+i}, v{K_+i}, 3"); o(f"ds_write_b64 v{D_+i}, {vr(P_+2*i,2)} offset:6144")
    o("s_mov_b64 exec, -1")
    stamp(9)
    o("s_cmp_lg_u32 s33, 7"); o("s_cbranch_scc1 K1_O2")
    o("s_lshr_b32 s34, s31, 3"); o("s_add_u32 s34, s34, 256")
    for j in range(8): o(f"v_lshl_add_u32 v{24+j}, v{24+j}, 19, v{32+j}"); o(f"v_add_u32 v{24+j}, s34, v{24+j}")
    o("ds_write_b128 v20, v[24:27] offset:4096"); o("ds_write_b128 v20, v[28:31] offset:4112")
    lab("K1_O2")
    NC = (CB + 8191) // 8192
    o(f"v_cmp_gt_u32 vcc, {CB//16-512*(NC-1)}, v0"); o("v_add_u32 v41, 0x9000, v40")
    o("s_waitcnt lgkmcnt(0)"); o("s_barrier"); stamp(4)
    for j in range(NC): o(f"ds_read_b128 {vr(64+4*j,4)}, " + (f"v40 offset:{4096+8192*j}" if j < 4 else f"v41 offset:{8192*(j-4)}"))
    for j in range(NC):
        if j == NC - 1: o("s_and_saveexec_b64 s[28:29], vcc"); o("s_cbranch_execz K1_SE")
        o(f"s_waitcnt lgkmcnt({NC-1-j})")
        o(f"buffer_store_dwordx4 {vr(64+4*j,4)}, v40, s[24:27], s31 offen {rpol}"); o("s_add_u32 s31, s31, 8192")
    lab("K1_SE")
    if STAMP: o(f"s_add_u32 s2, s2, {NG}"); o("s_waitcnt vmcnt(0)"); stamp_out(2, 12, 24, 0)
    o("s_endpgm")
    lab("K1_PREP")
    o("s_barrier")
    o("s_cmp_lg_u32 s33, 7"); o("s_cbranch_scc1 K1_B")
    o("s_mov_b64 exec, -1")
    o("v_and_b32 v4, 3, v0"); o("v_bfe_u32 v5, v0, 3, 2"); o("v_lshl_or_b32 v4, v5, 2, v4")
    o("v_bfe_u32 v5, v0, 2, 1"); o("v_lshl_or_b32 v4, v5, 4, v4"); o("v_lshlrev_b32 v42, 4, v20")
    o("s_mov_b32 s70, s2"); o(f"s_add_u32 s71, s2, {NCH}"); o("s_cmp_lt_u32 s71, 68"); o("s_cselect_b32 s71, s71, s2")
    for u in range(2):
        U = 70 + u; V = 64 + 8 * u
        o(f"s_lshr_b32 s14, s{U}, 5")
        o("s_cmp_eq_u32 s14, 1"); o("s_cselect_b32 s64, s46, s40"); o("s_cselect_b32 s65, s47, s41")
        o("s_mov_b32 s66, 32768"); o(f"s_bfe_u32 s50, s{U}, 0x20003"); o(f"s_and_b32 s51, s{U}, 7"); o("s_mov_b32 s32, 14")
        o("s_cmp_eq_u32 s14, 2"); o("s_cselect_b32 s64, s44, s64"); o("s_cselect_b32 s65, s45, s65"); o("s_cselect_b32 s66, 4096, s66")
        o(f"s_cselect_b32 s{68+u}, {NLOG2E:#x}, 1.0")
        o("s_cselect_b32 s50, s51, s50"); o("s_cselect_b32 s51, 0, s51"); o("s_cselect_b32 s32, 11, s32")
        o("s_and_b32 s65, s65, 0xffff"); o("s_mov_b32 s67, 0x20000")
        o("s_lshl_b32 s50, s50, 6"); o("s_lshl_b32 s51, s51, 11"); o("s_add_u32 s50, s50, s51")
        o("v_lshlrev_b32 v5, s32, v57"); o("v_lshl_add_u32 v5, v4, 1, v5"); o("v_add_u32 v5, s50, v5")
        for j in range(8): o(f"buffer_load_ushort v{V+j}, v5, s[64:67], 0 offen offset:{j*256}")
    for u in range(2):
        U = 70 + u; V = 64 + 8 * u
        o(f"s_lshl_b32 s14, s{U}, 10"); o(f"s_add_u32 s14, s14, {WS_WF:#x}")
        o(f"s_waitcnt vmcnt({8 if u == 0 else 1})")
        for j in range(8):
            o(f"v_lshlrev_b32 v{V+j}, 16, v{V+j}"); o(f"v_mul_f32 v{V+j}, s{68+u}, v{V+j}")
        for j in range(4): o(f"v_cvt_pk_bf16_f32 v{8+4*u+j}, v{V+2*j}, v{V+1+2*j}")
        o(f"buffer_store_dwordx4 {vr(8+4*u,4)}, v42, s[24:27], s14 offen " + OPT.get('wfpol', ''))
    o("s_branch K1_B")

def regs_of(tok):
    m = re.fullmatch(r"v\[(\d+):(\d+)\]", tok)
    if m: return set(range(int(m.group(1)), int(m.group(2)) + 1))
    m = re.fullmatch(r"v(\d+)", tok)
    return {int(m.group(1))} if m else set()
def check_hazards(ins):
    P = []
    for s in ins:
        if s.endswith(':'): continue
        op, _, rest = s.partition(' ')
        t = [x.strip() for x in rest.split(',')]
        t = [x.split(' ')[0] for x in t]
        if op.startswith('v_mfma'):
            P.append(('m', 12 if '32x32' in op else 8, regs_of(t[0]), regs_of(t[1]) | regs_of(t[2]), regs_of(t[3]), s))
        elif op.startswith('v_'):
            P.append(('t' if op in ('v_exp_f32', 'v_rcp_f32') else 'v', 0, regs_of(t[0]), set().union(*map(regs_of, t[1:])), set(), s))
        elif op.startswith('ds_read'):
            P.append(('d', 0, regs_of(t[0]), regs_of(t[1]), set(), s))
        elif op.startswith('buffer'):
            P.append(('d', 0, set(), regs_of(t[0]), set(), s))
        else: P.append(('s', 0, set(), set(), set(), s))
    n = len(P)
    for i, (k, w, d, ab, c, s) in enumerate(P):
        for j in range(1, 13):
            k2, w2, d2, ab2, c2, s2 = P[(i + j) % n]
            gap = j - 1
            if k == 'm':
                if k2 == 'm':
                    assert not (gap < w and d & ab2), (s, s2)
                    if d & c2 and d != c2: assert gap >= w - 2, (s, s2)
                else: assert not (gap < w and d & (d2 | ab2)), (s, s2, gap)
                if k2 in 'vt': assert not (gap < (7 if w == 12 else 3) and c & d2), (s, s2)
            if k in 'vt' and k2 == 'm': assert not (gap < 2 and d & (ab2 | c2)), (s, s2)
            if k == 't' and k2 == 'v': assert not (gap < 1 and d & ab2), (s, s2)

LOWLIM = 500 // NCH; LIM = 4 * LPS; LG = LPS.bit_length() - 1; NS = 2
LW = [1, 2, 4, 8, 19, 37, 74, 150] if int(OPT.get('lw', 0)) else [1, 2, 4, 8, 16, 32, 64, 128]
LUT = 0; IDT = (sum(LW) + 1) * 16; NB = IDT + 512; LIST = NB + 256; MB = LIST + 8192; ROW = 264; CNT = MB + 26 * ROW; ZSZ = 26 * ROW + 256
ER = CNT + 256; RING = ER + 8192; WS_ = 4160; SLOT = 4 * WS_; K2_LDS = RING + (NS + 1) * SLOT
G8 = int(OPT.get('g8', 0)); GS = (K2_LDS - NB + 255) // 256 * 256
assert K2_LDS <= 81920 and ER % 16 == 0 and LIST % 16 == 0 and MB % 16 == 0 and 4096 < ZSZ <= 8192 and ZSZ % 16 == 0

class RA:
    def __init__(s): s.n = 1
    def get(s, k=1, al=1):
        s.n = (s.n + al - 1) // al * al
        b = s.n; s.n += k; return b
R = RA()
vTA = R.get()
IX = [R.get(2, 2) for _ in range(4)]; IXE = R.get(2, 2); MQ = R.get(2, 2)
(vTC, vEA, vMT, vSA, vMA, vL1, vL2, vSV, vHC, vWF, vXA, vXR, vXI, vXO) = [R.get() for _ in range(14)]
SEG = R.get(4, 4); PT = R.get(4, 4)
GV = R.get(64, 4); ACC = R.get(64, 4)
TF = R.get(16, 4); EF = R.get(4, 4); SF = R.get(8, 4); WC = R.get(4, 4); T0 = R.get(8, 4); AF = R.get(16, 4); SEL = R.get(8, 4)
NVGPR = R.n
assert NVGPR <= 255, NVGPR
REC = GV; RANK = GV + 32; AD = GV + 48
sX, sE, sW, sO, sT = 8, 12, 16, 20, 96
sWAVE, sBASE, sMR, sME, sCNT, sNT, sRS, sLIM, sFIRST, sMORE, sDS, sT0, sT1, sEPS, s80, sMET = range(24, 40)
sHM, sSV, sWF, sS0 = 42, 44, 52, 54
sK = 56
sG = 95
def addg(v):
    if G8: o(f"v_add_u32 v{v}, s{sG}, v{v}")
def saddg(r):
    if G8: o(f"s_add_u32 s{r}, s{r}, s{sG}")

def ldt(i): return f"buffer_load_dwordx4 {vr(IX[i],2)}, s[{sT}:{sT+3}], 0 idxen offen {OPT.get('tpol', '').replace('+', ' ')} lds".replace("  ", " ")
def lde(): return f"buffer_load_dwordx4 {vr(IXE,2)}, s[{sE}:{sE+3}], 0 idxen offen {OPT.get('epol', '').replace('+', ' ')} lds".replace("  ", " ")
def loff(u): return (u & 1) * 4096 + (u >> 1) * 256
def nextslot(r): return [f"s_add_u32 s{r}, s{r}, {SLOT}", f"s_cmp_eq_u32 s{r}, {NS*SLOT}", f"s_cselect_b32 s{r}, 0, s{r}"]

def vstream(Gc, Vc):
    A = []
    for p in range(0, 22, 2):
        if p < 16: A += [(f"v_exp_f32 v{Gc+p}, v{Gc+p}", 8), (f"v_exp_f32 v{Gc+p+1}, v{Gc+p+1}", 8)]
        q = p - 2
        if 0 <= q < 16:
            if 'a' in OPT.get('pk', ''): A += [(f"v_pk_add_f32 {vr(Gc+q,2)}, {vr(Gc+q,2)}, 1.0 op_sel_hi:[1,0]", 4)]
            else: A += [(f"v_add_f32 v{Gc+q}, 1.0, v{Gc+q}", 4), (f"v_add_f32 v{Gc+q+1}, 1.0, v{Gc+q+1}", 4)]
            A += [(f"v_rcp_f32 v{Gc+q}, v{Gc+q}", 8), (f"v_rcp_f32 v{Gc+q+1}, v{Gc+q+1}", 8)]
        q = p - 4
        if 0 <= q < 16 and 'm' in OPT.get('pk', ''): A += [(f"v_pk_mul_f32 {vr(Vc+q,2)}, {vr(Gc+q,2)}, {vr(Vc+q,2)}", 4)]
        elif 0 <= q < 16: A += [(f"v_mul_f32 v{Vc+q}, v{Gc+q}, v{Vc+q}", 4), (f"v_mul_f32 v{Vc+q+1}, v{Gc+q+1}, v{Vc+q+1}", 4)]
        q = p - 6
        if 0 <= q < 16: A += [(f"v_cvt_pk_bf16_f32 v{Gc+q//2}, v{Gc+q}, v{Gc+q+1}", 4), (f"v_cvt_pk_bf16_f32 v{Vc+q//2}, v{Vc+q}, v{Vc+q+1}", 4)]
    return A
def zphase(P, p):
    d = ACC + 32 * p
    return [m32(d, P, T0, d), m32(d+16, P+16, T0, d+16), m32(d, P+4, T0+4, d), m32(d+16, P+20, T0+4, d+16)]

HEAD = {}
def body(b, peel=False):
    p = b % 2
    Gn = GV + 32 * p; Vn = Gn + 16; Gc = GV + 32 * (1 - p); Vc = Gc + 16; af = AF + 8 * p
    ne = sum(1 for k in range(NS - 1) if (b - k) % 4 == 0) + (1 if (b - (NS - 1)) % 4 == 0 else 0)
    vmw = 4 * (NS - 1) + ne
    z = zphase(Gn, p)
    def dma(i): return [f"s_add_u32 m0, s{sMR}, {p*SLOT + i*1040}", None, ldt(i), f"ds_read_u16 v{IX[i]}, v{vL1} offset:{loff(b+NS+1)+64*i}"]
    top = ["s_waitcnt vmcnt(8) lgkmcnt(0)", "s_barrier"] if b == 3 else ["s_waitcnt lgkmcnt(0)"]
    if G8 and OPT.get('sp', '2103') != '0': top.append(f"s_setprio {OPT.get('sp', '2103')[b]}")
    if G8 and OPT.get('bar2') and b == 1: top.insert(1, "s_barrier")
    seq = []
    seq.append([z[0], [], []])
    seq.append([z[1], [f"ds_read_b128 {vr(SF,4)}, v{vSV} offset:{IDT}", f"ds_read_b128 {vr(SF+4,4)}, v{vSV} offset:{IDT+256}"], []])
    seq.append([z[2], [f"ds_read_u8 v{vSV}, v{vSA} offset:{loff(b+1)}"], []])
    seq.append([z[3], [f"s_sub_u32 s{sCNT}, s{sCNT}, 1", f"s_cbranch_scc1 TAIL{p}", f"ENT{b}:"], []])
    seq.append([m32(Gn, TF, SEL, None), [f"ds_read_b128 {vr(T0,4)}, v{MQ}"], [f"v_and_b32 v{IXE}, 0x7ffff, v{IXE}"] if b == 0 else []])
    seq.append([m32(Gn, TF+4, SEL+4, Gn), [f"ds_read_b128 {vr(T0+4,4)}, v{MQ+1}"], [f"v_xor_b32 v{vEA}, v{vEA}, v{vMT}"] if b == 3 else []])
    seq.append([m32(Gn, EF, WC, Gn), [f"ds_read_b128 {vr(EF,4)}, v{vEA} offset:{(b+1)%4*1024}", f"ds_read_u16 v{MQ}, v{vMA} offset:{b*8}",
                f"ds_read_u16 v{MQ+1}, v{vMA} offset:{b*8+2}"], []])
    seq.append([m32(Vn, TF+8, SEL, None), [f"ds_read_b32 v{IXE}, v{vL2}"] if b == 3 else [], []])
    seq.append([m32(Vn, TF+12, SEL+4, Vn), ["s_waitcnt lgkmcnt(S)"], []])
    seq.append([m32(Gn, SF, af, Gn), [f"s_waitcnt vmcnt({vmw})"], []])
    seq.append([m32(Gn, SF+4, af+4, Gn), [f"ds_read_b128 {vr(TF+4*j,4)}, v{vTA} offset:{(1-p)*SLOT+16*j}" for j in range(4)],
                [f"v_add_u32 v{r}, 0x200, v{r}" for r in (vSA, vL1, vL2)] + [f"v_add_u32 v{vMA}, 32, v{vMA}"] if b == 3 else []])
    dp = [int(c) for c in OPT.get('dp', '03589')]
    for i in range(4): seq[dp[i]][1] = seq[dp[i]][1] + dma(i)
    if b == 0: seq[dp[4]][1] = seq[dp[4]][1] + [f"s_mov_b32 m0, s{sME}", None, lde(), f"s_xor_b32 s{sME}, s{sME}, s{sMET}"]
    A = [] if peel else vstream(Gc, Vc)
    wt = [float(x) for x in OPT.get('wt', '1,1,1,1,1,1,1,1,1,1,1.6').split(',')]
    tot = sum(c for _, c in A); out = list(top); ai = 0; acc = 0; budget = 0
    for i, (m, ex, xv) in enumerate(seq):
        budget += tot * wt[i] / sum(wt)
        g = []
        while ai < len(A) and acc + A[ai][1] / 2 <= budget + 0.01:
            g.append(A[ai][0]); acc += A[ai][1]; ai += 1
        if i == 3 and not peel: HEAD[b] = ai
        if not (peel and i < 4): out.append(m)
        g = xv + g
        last = [x for x in ex if x and (x.startswith("s_waitcnt") or x.startswith("s_cbranch") or x.endswith(":") or x.startswith("s_sub"))]
        ex = [x for x in ex if x not in last]
        if peel: last = [x for x in last if x.startswith("s_waitcnt")]
        first = True
        for x in ex:
            if x is None:
                continue
            if not first and g: out.append(g.pop(0))
            elif not first and peel and x.startswith("buffer"): out.append("s_nop 0")
            out.append(x); first = False
        out += g + last
    assert ai == len(A)
    i0 = max(i for i, x in enumerate(out) if x.startswith(f"ds_read_b128 {vr(SF+4,4)}")); i1 = out.index("s_waitcnt lgkmcnt(S)")
    out[i1] = f"s_waitcnt lgkmcnt({sum(1 for x in out[i0+1:i1] if x.startswith('ds_'))})"
    for i, x in enumerate(out):
        if x.startswith("buffer_load"): assert not out[i-1].split()[1].startswith("m0"), (out[i-1], x)
    if OPT.get('fakec'):
        n2 = []
        for x in out:
            if x.startswith("v_mfma") and (f", {vr(SEL,4)}," in x or f", {vr(SEL+4,4)}," in x):
                j = (int(re.findall(r"v\[(\d+):", x)[1]) - TF)
                n2 += [f"v_lshlrev_b32 v{Vn+j+k}, 16, v{TF+j+k}" for k in range(4)]
            elif x == m32(Gn, EF, WC, Gn): n2.append(m32(Gn, EF, WC, TF))
            elif x.startswith("ds_read_b128") and f"v{vTA} " in x:
                j = int(re.findall(r"v\[(\d+):", x)[0]) - TF
                n2 += [f"ds_read2st64_b32 {vr(TF+j+2*k,2)}, v{vTC} offset0:{(1-p)*65+j+2*k} offset1:{(1-p)*65+j+2*k+1}" for k in range(2)]
            else: n2.append(x)
        out = n2
    if OPT.get('notrans'): out = [x.replace("v_exp_f32", "v_mov_b32").replace("v_rcp_f32", "v_mov_b32") for x in out]
    if OPT.get('noval'): out = ["s_nop 0" if (x.startswith("v_exp") or x.startswith("v_rcp")) else x for x in out if not (x.startswith("v_add_f32") or x.startswith("v_mul_f32") or x.startswith("v_cvt"))]
    if OPT.get('skel'):
        n2 = []
        for x in out:
            if x.startswith(("v_mfma", "v_exp", "v_rcp", "v_add_f32", "v_mul_f32", "v_cvt", "ds_read_b128")): continue
            if x.startswith("buffer_load"): n2.append("s_nop 0")
            if OPT['skel'] != '1' and x.startswith("s_waitcnt vmcnt") and "lgkm" not in x: x = f"s_waitcnt vmcnt({OPT['skel']})"
            if OPT['skel'] != '1' and x.startswith("s_waitcnt vmcnt(8) lgkm"): x = f"s_waitcnt vmcnt({max(8, int(OPT['skel']))}) lgkmcnt(0)"
            n2.append(x)
        out = n2
    if OPT.get('nodma'): out = [x for x in out if 'buffer_load' not in x]
    if OPT.get('noe'): out = [x for x in out if f"s[{sE}:{sE+3}]" not in x]
    return out

def emit(lst):
    for it in lst:
        if it.endswith(':'): lab(it[:-1])
        else: o(it)

def masks(tmp):
    a, b_, c = tmp
    o(f"v_and_b32 v{a}, {LPS-1}, v0"); o(f"v_lshlrev_b32 v{a}, 1, v{a}"); o(f"v_mov_b32 v{c}, 0")
    for i in range(4):
        o(f"v_lshrrev_b32 v{b_}, 19, v{SEG+i}"); o(f"v_max_u32 v{c}, v{c}, v{b_}")
        o(f"v_min_u32 v{b_}, s{sLIM}, v{b_}"); o(f"v_sub_u32 v{b_}, v{b_}, v{a}")
        for j, k in ((0, 2*i), (1, 2*i+1), (2*LPS, 8+2*i), (2*LPS+1, 9+2*i)): o(f"v_cmp_lt_i32 s[{sK+2*k}:{sK+2*k+1}], {j}, v{b_}")
    o(f"v_cmp_lt_u32 vcc, s{sLIM}, v{c}")
    o(f"s_or_b64 s[{sSV}:{sSV+1}], s[{sK+16}:{sK+17}], s[{sK+20}:{sK+21}]"); o(f"s_or_b64 s[{sHM}:{sHM+1}], s[{sK+24}:{sK+25}], s[{sK+28}:{sK+29}]")
    o(f"s_or_b64 s[{sSV}:{sSV+1}], s[{sSV}:{sSV+1}], s[{sHM}:{sHM+1}]")
    o(f"v_mov_b32 v{b_}, {CNT-4}"); addg(b_)
    o("s_mov_b64 exec, vcc"); o(f"ds_write_b32 v{b_}, v{b_}"); o("s_mov_b64 exec, -1")

def interleave(mf, other, per):
    other = list(other)
    for m in mf:
        o(m)
        for _ in range(per):
            if other: o(other.pop(0))
    for x in other: o(x)
def capture(fn):
    n = len(L); fn(); r = [x.strip() for x in L[n:]]; del L[n:]; return r
def wload(dst, off):
    r = []
    for s in range(8):
        if s % 4 == 0: r.append(f"s_add_u32 s{sT0}, s{sWF}, {off + s*1024:#x}")
        r.append(f"buffer_load_dwordx4 {vr(dst+4*s,4)}, v{vWF}, s[{sW}:{sW+3}], s{sT0} offen offset:{(s%4)*1024}")
    return r
def xblk(base, pair):
    o(f"v_mov_b32 v{pair+1}, v{vXO}")
    for mt in range(2):
        for a in range(2):
            o(f"s_add_u32 m0, s{base}, {(2*mt+a)*1040}")
            o(f"v_cmp_gt_u32 vcc, {(NA if mt == 0 else RN-NA) - 2*a}, v{vXI}")
            o(f"s_add_u32 s{sT0}, s{sBASE}, {NA*mt + 2*a}"); o(f"v_add_u32 v{pair}, s{sT0}, v{vXI}")
            o(f"v_cndmask_b32 v{pair}, v{PT+3}, v{pair}, vcc")
            o(f"buffer_load_dwordx4 {vr(pair,2)}, s[{sX}:{sX+3}], 0 idxen offen lds")

def lutw(d, j, tmp):
    o(f"v_lshlrev_b32 v{d}, v{j}, 16")
    if LW[4] != 16:
        corr = sum((LW[k] - (1 << k)) << (8 * (k - 4)) for k in range(4, 8))
        o(f"v_lshlrev_b32 v{tmp}, 3, v{j}"); o(f"v_add_u32 v{tmp}, -32, v{tmp}"); o(f"s_mov_b32 s{sT1}, {corr:#x}")
        o(f"v_cmp_lt_u32 vcc, 3, v{j}"); o(f"v_bfe_u32 v{tmp}, s{sT1}, v{tmp}, 8"); o("s_nop 0")
        o(f"v_cndmask_b32 v{tmp}, 0, v{tmp}, vcc"); o(f"v_lshl_add_u32 v{d}, v{tmp}, 4, v{d}")

def gen_k2():
    L.append(".globl gmain_kernel"); L.append(".p2align 8"); L.append(".type gmain_kernel,@function")
    lab("gmain_kernel"); VST[0] = 255
    t = [TF + i for i in range(28)]
    stamp(0)
    o("s_load_dwordx2 s[50:51], s[0:1], 88")
    o("s_load_dwordx4 s[4:7], s[0:1], 0")
    o("s_load_dwordx2 s[48:49], s[0:1], 72")
    o("s_setprio 3")
    o(f"v_lshrrev_b32 v{t[0]}, 6, v0")
    o("s_and_b32 s3, s2, 7"); o("s_lshl_b32 s3, s3, 6"); o(f"s_bfe_u32 s{sT0}, s2, 0x50003"); o(f"s_lshl1_add_u32 s3, s{sT0}, s3")
    o(f"v_readfirstlane_b32 s{sWAVE}, v{t[0]}")
    if G8:
        o("v_and_b32 v0, 0xff, v0"); o(f"s_lshr_b32 s{sT0}, s{sWAVE}, 2"); o(f"s_and_b32 s{sWAVE}, s{sWAVE}, 3"); o(f"s_mul_i32 s{sG}, s{sT0}, {GS}")
    else: o(f"s_lshr_b32 s{sT0}, s2, 8")
    o(f"s_add_u32 s3, s3, s{sT0}")
    o(f"s_cmp_ge_u32 s2, {256 if G8 else 512}"); o("s_cbranch_scc1 K2_END")
    o(f"s_cmp_ge_u32 s3, {NR}"); o("s_cbranch_scc1 K2_END")
    o(f"v_lshrrev_b32 v{t[1]}, {LG}, v0")
    o(f"s_lshl_b32 s88, s3, 2")
    o(f"v_mul_u32_u24 v{t[1]}, {CB}, v{t[1]}"); o(f"v_add_u32 v{t[1]}, s88, v{t[1]}")
    for i in range(1, 4): o(f"v_add_u32 v{t[1+i]}, {16*i*CB:#x}, v{t[1]}")
    o(f"s_mul_i32 s{sBASE}, s3, {RN}")
    o(f"v_and_b32 v{vWF}, 63, v0"); o(f"v_lshlrev_b32 v{vWF}, 4, v{vWF}")
    o(f"s_mul_i32 s{sMR}, s{sWAVE}, {WS_}"); o(f"s_add_u32 s{sMR}, s{sMR}, {RING}"); saddg(sMR)
    o(f"s_lshl_b32 s{sWF}, s{sWAVE}, 13"); o(f"s_add_u32 s{sWF}, s{sWF}, {WS_WF:#x}")
    o(f"s_mov_b32 s40, {EPS:#x}"); o("s_mov_b32 s41, s40"); o(f"s_mov_b32 s{s80}, {NLOG2E:#x}")
    o(f"s_mov_b32 s{sFIRST}, 1"); o(f"s_mov_b32 s{sLIM}, {LIM}")
    o("s_cmp_ge_u32 s2, 256"); o(f"s_cselect_b32 s{sRS}, {OPT.get('bon', 0)}, 0")
    o("s_waitcnt lgkmcnt(0)"); xstamp("karg")
    srd(sW, 50, WS_SIZE)
    o(f"s_mov_b32 s{sW+2}, {NCH*CB:#x}")
    for i in range(4): o(f"buffer_load_dword v{SEG+i}, v{t[1+i]}, s[{sW}:{sW+3}], 0 offen")
    o(f"s_mov_b32 s{sW+2}, {WS_SIZE:#x}")
    srd(sX, 4, N, 256); srd(sE, 6, E, 32); srd(sO, 48, N, 256)
    o(f"s_add_u32 s50, s50, {WS_TAB:#x}"); o("s_addc_u32 s51, s51, 0")
    if SM: o(f"s_mul_i32 s{sT0}, s{sWAVE}, {SMS}"); o(f"s_add_u32 s50, s50, s{sT0}"); o("s_addc_u32 s51, s51, 0")
    srd(sT, 50, N, 128 if SM else 512)
    WAP = OPT.get('wap', 'p1'); XBP = OPT.get('xbp', 'p1'); ORD = ['start', 'rec', 'mask', 'p1', 'b1']
    def place(where):
        if where not in (WAP, XBP): return
        o(f"s_cmp_eq_u32 s{sFIRST}, 0"); o(f"s_cbranch_scc1 NOW_{where}")
        if XBP == where:
            o(f"s_add_u32 s{sNT}, s{sMR}, {NS*SLOT}")
            xblk(sNT, T0)
        if WAP == where:
            for x in wload(ACC, WF_A): o(x)
            o(f"s_lshl_b32 s{sT0}, s{sWAVE}, 10"); o(f"s_add_u32 s{sT0}, s{sT0}, {WS_WF+WF_C:#x}")
            o(f"buffer_load_dwordx4 {vr(WC,4)}, v{vWF}, s[{sW}:{sW+3}], s{sT0} offen")
        if OPT.get('otouch') and WAP == where:
            o(f"v_mov_b32 v{T0+6}, s{sBASE}"); o(f"buffer_load_dword v{SEL}, v{T0+6}, s[{sO}:{sO+3}], 0 idxen")
        lab(f"NOW_{where}")
    def cnt(lo, hi): return sum(n for p, n in ((WAP, 9), (XBP, 4)) if lo <= ORD.index(p) <= hi)
    SP = [int(x) for x in OPT.get('spf', '0,0').split(',')]
    def spref(n, first):
        for k in range(n): o(f"s_load_dword s{88 + k % 4}, s[46:47], {(first + k) * 32768:#x}")
    if sum(SP):
        o(f"s_and_b32 s{sT0}, s3, 63"); o(f"s_lshl2_add_u32 s{sT0}, s{sT0}, s{sWAVE}"); o(f"s_lshl_b32 s{sT0}, s{sT0}, 7")
        o(f"s_add_u32 s46, s50, s{sT0}"); o("s_addc_u32 s47, s51, 0")
        spref(SP[0], 0)
    lab("ROUND")
    b0, b2, b3, b4, vh = t[16:21]
    o(f"v_lshlrev_b32 v{t[11]}, 4, v0"); addg(t[11])
    for d in range(4): o(f"v_mov_b32 v{t[0]+d}, 0")
    for off in (0, ZSZ - 4096): o(f"ds_write_b128 v{t[11]}, {vr(t[0],4)} offset:{MB+off}")
    pad0 = 0xffff | (NA << 16)
    o(f"v_mov_b32 v{t[4]}, {pad0:#x}"); o(f"v_mov_b32 v{t[5]}, 0x7ffff"); o(f"v_mov_b32 v{t[6]}, {pad0:#x}"); o(f"v_mov_b32 v{t[7]}, 0x7ffff")
    o(f"ds_write_b128 v{t[11]}, {vr(t[4],4)} offset:{LIST}"); o(f"ds_write_b128 v{t[11]}, {vr(t[4],4)} offset:{LIST+4096}")
    o(f"v_and_b32 v{b0}, 1, v0"); o(f"v_bfe_u32 v{b2}, v0, 2, 1"); o(f"v_bfe_u32 v{b3}, v0, 3, 1"); o(f"v_bfe_u32 v{b4}, v0, 4, 1"); o(f"v_bfe_u32 v{vh}, v0, 5, 1")
    o(f"v_and_b32 v{t[8]}, {LPS-1}, v0"); o(f"v_lshlrev_b32 v{t[8]}, 1, v{t[8]}")
    o(f"v_mov_b32 v{t[9]}, 0x7ffffff0"); o(f"s_mov_b32 s{sT1}, 0x7ffff")
    o(f"v_and_b32 v{t[12]}, 15, v0"); o(f"v_lshlrev_b32 v{t[13]}, 3, v{b4}")
    o(f"v_xor_b32 v{vXO}, v{t[12]}, v{t[13]}"); o(f"v_lshlrev_b32 v{vXO}, 4, v{vXO}")
    o(f"s_lshr_b32 s{sT0}, s{sWAVE}, 1"); o(f"s_lshl_b32 s{sT0}, s{sT0}, 4"); o(f"s_and_b32 s{sS0}, s{sWAVE}, 1"); o(f"s_lshl2_add_u32 s{sT0}, s{sS0}, s{sT0}")
    o(f"v_lshl_add_u32 v{vXI}, v{vh}, 3, v{b4}"); o(f"v_add_u32 v{vXI}, s{sT0}, v{vXI}")
    o(f"v_mov_b32 v{PT+3}, 0xffff")
    place('start')
    xstamp("consts_done")
    o(f"s_waitcnt vmcnt({cnt(0, 0)})"); stamp(1)
    for i in range(4):
        o(f"v_lshrrev_b32 v{t[4+i]}, 19, v{SEG+i}"); o(f"v_cmp_lt_u32 vcc, v{t[8]}, v{t[4+i]}")
        o(f"v_and_b32 v{t[i]}, s{sT1}, v{SEG+i}"); o(f"v_add_lshl_u32 v{t[i]}, v{t[i]}, v{t[8]}, 3")
        o(f"v_cndmask_b32 v{t[10]}, v{t[9]}, v{t[i]}, vcc")
        o(f"buffer_load_dwordx4 {vr(REC+4*i,4)}, v{t[10]}, s[{sW}:{sW+3}], 0 offen")
    o(f"v_max3_u32 v{t[10]}, v{t[4]}, v{t[5]}, v{t[6]}"); o(f"v_max_u32 v{t[10]}, v{t[10]}, v{t[7]}")
    o(f"v_cmp_lt_u32 vcc, {2*LPS}, v{t[10]}"); o("s_cbranch_vccz REC_DONE")
    for i in range(4): o(f"buffer_load_dwordx4 {vr(REC+16+4*i,4)}, v{t[i]}, s[{sW}:{sW+3}], 0 offen offset:{16*LPS}")
    lab("REC_DONE")
    xstamp("rec_issued")
    PF = int(OPT.get('pf', 0))
    def pref():
        o(f"s_lshr_b32 s{sT0}, s3, 6"); o(f"s_mul_i32 s{sT0}, s{sT0}, {64*RN}"); o(f"s_and_b32 s{sT1}, s3, 63"); o(f"s_lshl_b32 s{sT1}, s{sT1}, 6"); o(f"s_add_u32 s{sT0}, s{sT0}, s{sT1}")
        o(f"v_lshrrev_b32 v{T0+2}, 2, v0"); o(f"v_add_u32 v{T0+2}, s{sT0}, v{T0+2}"); o(f"v_and_b32 v{T0+1}, 3, v0"); o(f"v_lshlrev_b32 v{T0+1}, 7, v{T0+1}")
        for k in range(PF):
            o(f"v_add_u32 v{T0+3}, {-512*RN}, v{T0+2}"); o(f"v_min_u32 v{T0}, v{T0+2}, v{T0+3}")
            o(f"buffer_load_dword v{SEL}, {vr(T0,2)}, s[{sT}:{sT+3}], 0 idxen offen")
            if k + 1 < PF: o(f"v_add_u32 v{T0+2}, 4096, v{T0+2}")
    PFW = OPT.get('pfw', 'rec')
    place('rec')
    if PF and PFW == 'rec': pref()
    o("s_waitcnt lgkmcnt(0)"); o("s_barrier"); stamp(2)
    spref(SP[1], SP[0])
    pp = t[14]
    o(f"v_and_b32 v{pp}, 0x13, v0"); o(f"v_lshl_or_b32 v{pp}, v{b2}, 3, v{pp}"); o(f"v_lshl_or_b32 v{pp}, v{b3}, 2, v{pp}")
    o(f"v_lshrrev_b32 v{t[12]}, 3, v{pp}"); o(f"v_lshlrev_b32 v{vTA}, 7, v{pp}"); o(f"v_lshl_add_u32 v{vTA}, v{t[12]}, 4, v{vTA}")
    o(f"v_bfe_u32 v{t[13]}, v0, 1, 1"); o(f"v_xor_b32 v{t[12]}, v{t[13]}, v{vh}"); o(f"v_lshl_add_u32 v{vTA}, v{t[12]}, 6, v{vTA}"); o(f"v_add_u32 v{vTA}, s{sMR}, v{vTA}")
    o(f"v_and_b32 v{t[12]}, 7, v0"); o(f"v_lshlrev_b32 v{t[15]}, 2, v{b4}"); o(f"v_xor_b32 v{t[15]}, v{t[15]}, v{t[12]}")
    o(f"s_mov_b32 s{sT0}, 0" if SM else f"s_lshl_b32 s{sT0}, s{sWAVE}, 7"); o(f"v_lshl_add_u32 v{IX[0]+1}, v{t[15]}, 4, s{sT0}")
    for i in range(1, 4): o(f"v_mov_b32 v{IX[i]+1}, v{IX[0]+1}")
    o(f"v_and_b32 v{vL1}, 0x38, v0"); o(f"v_add_u32 v{vL1}, {LIST}, v{vL1}"); addg(vL1)
    o(f"v_lshl_or_b32 v{t[15]}, v{b4}, 1, v{b2}"); o(f"v_mul_u32_u24 v{t[15]}, {WS_}, v{t[15]}"); o(f"v_mul_u32_u24 v{t[13]}, 1040, v{t[13]}")
    o(f"v_lshl_or_b32 v{t[21]}, v{b3}, 1, v{b0}"); o(f"v_lshl_add_u32 v{t[15]}, v{t[21]}, 8, v{t[15]}"); o(f"v_add3_u32 v{t[15]}, v{t[15]}, v{t[13]}, {'s%d' % sG if G8 else 0}")
    o(f"v_add_u32 v{t[15]}, {RING + NS*SLOT}, v{t[15]}")
    o(f"v_xor_b32 v{t[13]}, v{vh}, v{b0}"); o(f"v_lshl_add_u32 v{vXA}, v{t[13]}, 7, v{t[15]}")
    o(f"v_lshlrev_b32 v{IXE+1}, 4, v{t[13]}")
    o(f"v_bfe_u32 v{t[13]}, v0, 7, 1"); o(f"v_xor_b32 v{t[13]}, v{t[13]}, v{b0}"); o(f"v_lshl_add_u32 v{vXR}, v{t[13]}, 7, v{t[15]}")
    o(f"v_and_b32 v{t[13]}, 0x60, v0"); o(f"v_add_u32 v{vXR}, v{vXR}, v{t[13]}")
    o(f"s_lshl_b32 s{sT0}, s{sS0}, 12"); o(f"s_lshr_b32 s{sT1}, s{sWAVE}, 1"); o(f"s_lshl_b32 s{sT1}, s{sT1}, 8"); o(f"s_add_u32 s{sT0}, s{sT0}, s{sT1}"); o(f"s_add_u32 s{sT0}, s{sT0}, {LIST+4}"); saddg(sT0)
    o(f"v_bfe_u32 v{vL2}, v0, 1, 5"); o(f"v_lshl_add_u32 v{vL2}, v{vL2}, 3, s{sT0}")
    o(f"s_lshl_b32 s{sME}, s{sWAVE}, 10"); o(f"s_add_u32 s{sME}, s{sME}, {ER}"); saddg(sME)
    o(f"v_lshl_add_u32 v{vSA}, v{pp}, 3, v{vh}"); o(f"v_add_u32 v{vSA}, {LIST+2}, v{vSA}"); addg(vSA)
    o(f"v_xor_b32 v{vEA}, v{b4}, v{vh}"); o(f"v_lshlrev_b32 v{vEA}, 4, v{vEA}")
    o(f"v_lshl_add_u32 v{vEA}, v{pp}, 5, v{vEA}"); o(f"v_add_u32 v{vEA}, {ER}, v{vEA}"); addg(vEA)
    o(f"v_add_u32 v{vMT}, 4096, v{vEA}"); o(f"v_xor_b32 v{vMT}, v{vMT}, v{vEA}")
    o(f"v_and_b32 v{t[13]}, 31, v0"); o(f"v_min_u32 v{t[13]}, {NA}, v{t[13]}")
    o(f"v_mul_u32_u24 v{vMA}, {ROW}, v{t[13]}"); o(f"v_lshl_add_u32 v{vMA}, v{vh}, 2, v{vMA}"); o(f"v_add_u32 v{vMA}, {MB}, v{vMA}"); addg(vMA)
    o(f"v_lshrrev_b32 v{PT+2}, 5, v0"); o(f"v_lshlrev_b32 v{PT+2}, 4, v{PT+2}"); o(f"v_lshl_add_u32 v{PT+2}, v{b3}, 2, v{PT+2}"); addg(PT+2)
    lutw(PT+1, t[12], t[13]); o(f"v_lshlrev_b32 v{t[13]}, 4, v{b4}"); o(f"v_lshlrev_b32 v{PT+1}, v{t[13]}, v{PT+1}")
    o(f"v_and_b32 v{t[12]}, 3, v0"); o(f"v_lshl_add_u32 v{t[15]}, v{b4}, 2, v{t[12]}"); lutw(t[12], t[15], t[13])
    o(f"v_cmp_eq_u32 vcc, v{b3}, v{vh}"); o(f"v_lshlrev_b32 v{t[13]}, 4, v{b2}"); o("s_nop 0")
    o(f"v_cndmask_b32 v{t[12]}, 0, v{t[12]}, vcc"); o(f"v_lshlrev_b32 v{PT}, v{t[13]}, v{t[12]}")
    place('mask')
    if cnt(1, 2):
        o(f"s_cmp_eq_u32 s{sFIRST}, 1"); o("s_cbranch_scc1 REMASK"); o("s_waitcnt vmcnt(0)")
    lab("REMASK")
    masks((t[0], t[1], t[2])); xstamp("masks_done")
    a, b_, c, d_ = t[0:4]; ad = [AD + k for k in range(16)]
    o(f"v_mov_b32 v{a}, 8")
    o(f"v_lshrrev_b32 v{b_}, 2, v{vWF}"); addg(b_)
    if G8: o(f"s_lshr_b32 s{sDS}, s{sG}, 8")
    if PF and PFW == 'mask': pref()
    o(f"s_waitcnt vmcnt({cnt(1, 2)})"); xstamp("rec_landed")
    for half in range(2):
        if half: o(f"s_cmp_eq_u64 s[{sSV}:{sSV+1}], 0"); o("s_cbranch_scc1 P1_DONE"); o("s_mov_b64 exec, -1")
        for k in range(8*half, 8*half+8): o(f"v_alignbit_b32 v{ad[k]}, s{sDS}, v{REC+2*k+1}, 24" if G8 else f"v_lshrrev_b32 v{ad[k]}, 24, v{REC+2*k+1}")
        for k in range(8*half, 8*half+8):
            o(f"s_mov_b64 exec, s[{sK+2*k}:{sK+2*k+1}]")
            o(f"ds_add_rtn_u32 v{RANK+k}, v{ad[k]}, v{a} offset:{CNT}")
    lab("P1_DONE")
    o("s_mov_b64 exec, -1")
    EP = OPT.get('ep', '')
    def epf():
        o(f"s_mov_b32 s{sT1}, {int(OPT.get('epm', '0x7007ffff'), 0):#x}")
        for k in range(8):
            o(f"v_and_b32 v{T0+k}, s{sT1}, v{REC+2*k+1}"); o(f"buffer_load_dword v{SEL}, v{T0+k}, s[{sE}:{sE+3}], 0 idxen")
    if EP == 'a': epf()
    place('p1')
    if EP == 'b': epf()
    if PF and PFW == 'p1': pref()
    o("s_waitcnt lgkmcnt(0)"); xstamp("p1_done"); o("s_barrier"); xstamp("b1")
    o(f"ds_read_b32 v{c}, v{b_} offset:{CNT}")
    o(f"ds_read_b32 v{t[4]}, v{b_} offset:{CNT-4}")
    place('b1')
    o(f"v_lshlrev_b32 v{t[5]}, 12, v{vh}"); addg(t[5])
    o("s_waitcnt lgkmcnt(1)")
    o(f"v_sub_u32 v{d_}, v{t[5]}, v{c}")
    for dd in ("row_shr:1", "row_shr:2", "row_shr:4", "row_shr:8"):
        o(f"v_add_u32_dpp v{c}, v{c}, v{c} {dd} row_mask:0xf bank_mask:0xf bound_ctrl:0"); o("s_nop 1")
    o(f"v_add_u32_dpp v{c}, v{c}, v{c} row_bcast:15 row_mask:0xa bank_mask:0xf")
    o(f"v_add_u32 v{d_}, v{c}, v{d_}")
    o(f"ds_write_b32 v{b_}, v{d_} offset:{NB}")
    o(f"v_readlane_b32 s{sNT}, v{c}, 31"); o(f"v_readlane_b32 s{sCNT}, v{c}, 63")
    for k in range(8): o(f"ds_read_b32 v{ad[k]}, v{ad[k]} offset:{NB}")
    o(f"s_max_u32 s{sT0}, s{sNT}, s{sCNT}")
    o(f"s_cmp_le_u32 s{sT0}, 4096"); o("s_cbranch_scc0 TOOBIG")
    xstamp("scan_done")
    for half in range(2):
        if half:
            o(f"s_cmp_eq_u64 s[{sSV}:{sSV+1}], 0"); o("s_cbranch_scc1 P2_DONE"); o("s_mov_b64 exec, -1")
            for k in range(8, 16): o(f"ds_read_b32 v{ad[k]}, v{ad[k]} offset:{NB}")
        for k in range(8*half, 8*half+8):
            if k % 4 == 0: o(f"s_waitcnt lgkmcnt({4 - k % 8})")
            o(f"v_add_u32 v{RANK+k}, v{RANK+k}, v{ad[k]}")
        for k in range(8*half, 8*half+8):
            o(f"s_mov_b64 exec, s[{sK+2*k}:{sK+2*k+1}]")
            o(f"ds_write_b64 v{RANK+k}, {vr(REC+2*k,2)} offset:{LIST}")
    lab("P2_DONE")
    o("s_mov_b64 exec, -1")
    o(f"v_readlane_b32 s{sMORE}, v{t[4]}, 0")
    o(f"s_mov_b32 m0, s{sME}")
    o(f"s_waitcnt vmcnt({9 + (8 if EP == 'b' else 0) if ORD.index(WAP) >= ORD.index(XBP) else 0}) lgkmcnt(0)"); xstamp("p2_done"); o("s_barrier"); stamp(5)
    f = t
    def rdidx(u):
        for i in range(4): o(f"ds_read_u16 v{IX[i]}, v{vL1} offset:{loff(u)+64*i}")
    def fill(u, nxt):
        for i in range(4):
            o(f"s_add_u32 m0, s{sMR}, {u*SLOT + i*1040}"); o(f"s_waitcnt lgkmcnt(3)"); o(ldt(i))
            o(f"ds_read_u16 v{IX[i]}, v{vL1} offset:{loff(nxt)+64*i}")
    o(f"ds_read_b32 v{IXE}, v{vL2}"); rdidx(0)
    o(f"v_lshlrev_b32 v{f[9]}, 3, v0"); addg(f[9])
    o("s_waitcnt lgkmcnt(4)")
    o(f"v_and_b32 v{IXE}, 0x7ffff, v{IXE}"); o(lde())
    NFO = int(OPT.get('nfo', 2)); NFY = int(OPT.get('nfy', 2))
    def fills(lo_o, hi_o, lo_y, hi_y, tag, wait):
        if (lo_o, hi_o) == (lo_y, hi_y):
            for u in range(lo_o, hi_o): fill(u, u + 1)
            return
        o("s_cmp_ge_u32 s2, 256"); o(f"s_cbranch_scc1 {tag}_Y")
        for u in range(lo_o, hi_o): fill(u, u + 1)
        if wait: o(f"s_waitcnt vmcnt({2+4*hi_o})")
        o(f"s_branch {tag}_D")
        lab(f"{tag}_Y")
        for u in range(lo_y, hi_y): fill(u, u + 1)
        if wait: o(f"s_waitcnt vmcnt({2+4*hi_y})")
        lab(f"{tag}_D")
    fills(0, NFO, 0, NFY, "FA", True)
    for k in range(4): o(f"ds_read_u8 v{f[12+k]}, v{f[9]} offset:{LIST+2+k*2048}")
    o(f"ds_read_b32 v{IXE}, v{vL2} offset:512")
    xstamp("fill_issued")
    def ctrl():
        o(f"s_movk_i32 s{sS0}, {ROW}")
        for k in range(4):
            o(f"v_cmp_gt_u32 vcc, {NA}, v{f[12+k]}"); o(f"v_mad_u32_u24 v{f[0]}, v{f[12+k]}, s{sS0}, v{PT+2}")
            o(f"v_lshrrev_b32 v{f[2]}, 1, v{f[12+k]}"); o(f"v_bfi_b32 v{f[2]}, 3, v{f[12+k]}, v{f[2]}"); o(f"v_lshl_add_u32 v{f[2]}, v{f[2]}, 4, 16")
            o(f"v_and_b32 v{f[3]}, 4, v{f[12+k]}"); o(f"v_lshlrev_b32 v{f[3]}, 1, v{f[3]}"); o(f"v_lshlrev_b32 v{f[2]}, v{f[3]}, v{f[2]}")
            o(f"v_cndmask_b32 v{f[2]}, 0, v{f[2]}, vcc"); o(f"ds_write_b16 v{f[9]}, v{f[2]} offset:{LIST+2+k*2048}")
            o(f"v_cndmask_b32 v{f[1]}, 0, v{PT+1}, vcc")
            o(f"ds_add_u32 v{f[0]}, v{f[1]} offset:{MB + (k&1)*128 + (k>>1)*8}")
        o(f"s_add_u32 s{sNT}, s{sNT}, 255"); o(f"s_lshr_b32 s{sNT}, s{sNT}, 8"); o(f"s_lshl1_add_u32 s{sNT}, s{sNT}, -1")
        o(f"s_add_u32 s{sCNT}, s{sCNT}, 255"); o(f"s_lshr_b32 s{sCNT}, s{sCNT}, 8"); o(f"s_lshl_b32 s{sCNT}, s{sCNT}, 1")
        o(f"s_max_i32 s{sNT}, s{sNT}, s{sCNT}"); o(f"s_max_i32 s{sNT}, s{sNT}, 2"); o(f"s_sub_u32 s{sCNT}, s{sNT}, 2")
        o(f"s_add_u32 s{sMET}, s{sME}, 4096"); o(f"s_xor_b32 s{sMET}, s{sMET}, s{sME}"); o(f"s_add_u32 s{sME}, s{sME}, 4096")
        o(f"v_add_u32 v{vL2}, 0x400, v{vL2}")
    def lut():
        q = T0
        for d in range(4):
            o(f"v_bfe_u32 v{q+d}, v0, {2*d}, 2"); o(f"v_mul_u32_u24 v{q+d}, 0x8001, v{q+d}")
            o(f"v_and_b32 v{q+d}, 0x10001, v{q+d}"); o(f"v_mul_u32_u24 v{q+d}, 0x3f80, v{q+d}")
        o(f"v_lshlrev_b32 v{q+4}, 4, v0")
        if LW[4] != 16:
            for k in range(4, 8): o(f"v_bfe_u32 v{q+5}, v0, {k}, 1"); o(f"v_mul_u32_u24 v{q+5}, {16*(LW[k]-(1<<k))}, v{q+5}"); o(f"v_add_u32 v{q+4}, v{q+4}, v{q+5}")
        o(f"ds_write_b128 v{q+4}, {vr(q,4)} offset:{LUT}")
        o(f"v_bfe_u32 v{q}, v0, 1, 4"); o(f"v_bfe_u32 v{q+1}, v0, 5, 1"); o(f"v_lshl_add_u32 v{q+1}, v{q+1}, 3, 1"); o(f"v_sub_u32 v{q}, v{q}, v{q+1}")
        o(f"v_and_b32 v{q+1}, 1, v0"); o(f"v_lshlrev_b32 v{q+1}, 2, v{q+1}"); o(f"v_sub_u32 v{q}, v{q}, v{q+1}")
        o(f"v_cmp_gt_u32 vcc, 4, v{q}"); o(f"v_mov_b32 v{q+6}, 0x3f80"); o(f"v_mov_b32 v{q+7}, 0"); o(f"v_lshlrev_b32 v{q}, 4, v{q}")
        o(f"v_cndmask_b32 v{q+6}, 0, v{q+6}, vcc")
        o(f"v_lshlrev_b64 {vr(q+6,2)}, v{q}, {vr(q+6,2)}")
        o(f"v_lshrrev_b32 v{q}, 1, v{vWF}")
        o(f"ds_write_b64 v{q}, {vr(q+6,2)} offset:{IDT}")
    o(f"s_cmp_eq_u32 s{sFIRST}, 1"); o("s_cbranch_scc1 G1")
    o("s_waitcnt lgkmcnt(0)")
    ctrl()
    o("s_branch G1D")
    lab("G1")
    for mt in range(2):
        for s in range(8): o(f"ds_read_b128 {vr(GV+32*mt+4*s,4)}, v{vXA} offset:{mt*2080 + 16*s}")
        if mt == 0: o("s_waitcnt lgkmcnt(8)")
    lt = capture(lut); ct = capture(ctrl)
    NL1 = [i for i, x in enumerate(lt) if x.startswith('ds_write_b128')][0] + 1
    for x in lt[:NL1]: o(x)
    o(f"s_waitcnt vmcnt({4*max(NFO, NFY)+2+(8 if EP == 'b' else 0)}) lgkmcnt(9)")
    acc = [ACC + 32, ACC + 48]
    interleave([m32(acc[0], GV+4*s, ACC+4*s, None if s == 0 else acc[0]) for s in range(8)], lt[NL1:] + ct[:25], 5)
    o(f"s_waitcnt lgkmcnt({1 + sum(1 for x in lt[NL1:] + ct[:25] if x.startswith('ds_'))})")
    def cv(mt): return [f"v_mul_f32 v{acc[mt]+r}, s{s80}, v{acc[mt]+r}" for r in range(16)] + [f"v_cvt_pk_bf16_f32 v{AF+8*mt+r//2}, v{acc[mt]+r}, v{acc[mt]+r+1}" for r in range(0, 16, 2)]
    interleave([m32(acc[1], GV+32+4*s, ACC+4*s, None if s == 0 else acc[1]) for s in range(8)],
               ct[25:] + cv(0) + [f"v_mov_b64 {vr(acc[0]+r,2)}, s[40:41]" for r in range(0, 16, 2)], 5)
    for r in range(0, 32, 2): o(f"v_mov_b64 {vr(ACC+r,2)}, {'s[40:41]' if r < 16 else 0}")
    for x in cv(1): o(x)
    for r in range(0, 16, 2): o(f"v_mov_b64 {vr(acc[1]+r,2)}, 0")
    if STAMP:
        o("s_getreg_b32 s94, hwreg(HW_REG_HW_ID)"); o("s_getreg_b32 s100, hwreg(HW_REG_XCC_ID)"); o("s_and_b32 s94, s94, 0xffff"); o("s_lshl_b32 s100, s100, 16"); o("s_or_b32 s94, s94, s100"); o(f"v_writelane_b32 v{VST[0]}, s94, 3")
    lab("G1D")
    o(f"v_and_b32 v{MQ}, 0xffff, v{PT}"); o(f"v_lshrrev_b32 v{MQ+1}, 16, v{PT}")
    xstamp("g1_done"); stamp(4)
    fills(NFO, NS, NFY, NS, "FB", False)
    o(f"s_waitcnt vmcnt({4*(NS-1)}) lgkmcnt(0)"); xstamp("t0_landed"); o("s_barrier")
    o(f"ds_read_b128 {vr(SEL,4)}, v{MQ}"); o(f"ds_read_b128 {vr(SEL+4,4)}, v{MQ+1}"); o(f"ds_read_u8 v{vSV}, v{vSA}")
    o(f"ds_read_b128 {vr(EF,4)}, v{vEA}")
    for j in range(4): o(f"ds_read_b128 {vr(TF+4*j,4)}, v{vTA} offset:{16*j}")
    o(f"s_setprio {OPT.get('lp', 2)}")
    if OPT.get('young'):
        o("s_cmp_lt_u32 s2, 256"); o("s_cbranch_scc1 OLD"); o(f"s_setprio {OPT['young']}"); lab("OLD")
    if OPT.get('fakec'): o(f"v_lshrrev_b32 v{vTC}, 2, v{vWF}"); o(f"v_add_u32 v{vTC}, s{sMR}, v{vTC}")
    stamp(6); stamp(8, "s_memtime")
    bodies = [body(b) for b in range(4)]
    if not OPT.get('skel') and not OPT.get('noval') and not OPT.get('fakec'): check_hazards(sum(bodies, []) + ["s_branch LOOP"])
    emit(body(0, peel=True))
    b1 = bodies[1][:bodies[1].index("ENT1:")]
    o("s_nop 7")
    emit([x for x in b1 if not x.startswith(("v_mfma", "s_sub", "s_cbranch"))])
    o("s_branch ENT1")
    lab("TOOBIG")
    o(f"s_mov_b32 s{sLIM}, {LOWLIM}"); o(f"v_mov_b32 v{a}, 0")
    o("s_waitcnt lgkmcnt(0)"); o("s_barrier")
    o(f"ds_write_b32 v{b_}, v{a} offset:{CNT}")
    o("s_waitcnt lgkmcnt(0)"); o("s_barrier")
    o("s_branch REMASK")
    lab("LOOP")
    emit(sum(bodies, []))
    if OPT.get('pp', '99,8,4') != '0' and not G8:
        th = [int(x) for x in OPT.get('pp', '99,8,4').split(',')]
        o(f"s_add_u32 s{sT0}, s{sCNT}, s{sRS}")
        for k, v in enumerate(th):
            if v < 99: o(f"s_cmp_lt_u32 s{sT0}, {v}"); o("s_cbranch_scc0 LOOP"); o(f"s_setprio {2-k}")
    o("s_branch LOOP")
    assert len(set(HEAD.values())) == 1
    WU = TF; x = AF
    def fin(p):
        d = ACC + 32 * p; r = []
        for k in range(16): r.append(f"v_rcp_f32 v{d+k}, v{d+k}")
        for k in range(16): r.append(f"v_mul_f32 v{d+16+k}, v{d+k}, v{d+16+k}")
        return r
    def unp(p): return sum(([f"v_lshlrev_b32 v{ACC+32*p+2*k}, 16, v{x+8*p+k}", f"v_and_b32 v{ACC+32*p+2*k+1}, s{sT1}, v{x+8*p+k}"] for k in range(8)), [])
    def post(p):
        r = []
        for k in range(8):
            z = ACC + 32*p + 16 + 2*k
            r += [f"v_max_f32 v{z}, 0, v{z}", f"v_max_f32 v{z+1}, 0, v{z+1}", f"v_add_f32 v{z}, v{z}, v{z-16}", f"v_add_f32 v{z+1}, v{z+1}, v{z-15}",
                  f"v_cvt_pk_bf16_f32 v{x+8*p+k}, v{z}, v{z+1}"]
        return r
    def st(p): return [f"s_mov_b64 exec, {((1 << (NA - p)) - 1):#x}", f"s_mov_b32 exec_hi, exec_lo"] + \
        [f"buffer_store_dwordx4 {vr(x+8*p+4*k,4)}, {vr(IX[p],2)}, s[{sO}:{sO+3}], 0 idxen offen offset:{16*k} {OPT.get('outpol', '').replace('+', ' ')}" for k in range(2)] + ["s_mov_b64 exec, -1"]
    assert RN - NA == NA - 1
    CO = int(OPT.get('co', 0))
    if CO == 2:
        pol_ = OPT.get('outpol', '').replace('+', ' ')
        def st(p):
            r = [f"ds_write_b128 v{IX[2]}, {vr(x+8*p+4*k,4)} offset:{p*SLOT + 16*k}" for k in range(2)]
            r += [f"ds_read_b128 {vr(x+8*p+4*k,4)}, v{IX[3]} offset:{p*SLOT + k*16*80}" for k in range(2)]
            r += ["s_waitcnt lgkmcnt(1)", f"buffer_store_dwordx4 {vr(x+8*p,4)}, {vr(IX[p],2)}, s[{sO}:{sO+3}], 0 idxen offen {pol_}",
                  f"v_add_u32 v{IX[p]}, 16, v{IX[p]}", f"s_mov_b32 exec_hi, {(1 << (4 * (NA - p - 24))) - 1}", "s_waitcnt lgkmcnt(0)",
                  f"buffer_store_dwordx4 {vr(x+8*p+4,4)}, {vr(IX[p],2)}, s[{sO}:{sO+3}], 0 idxen offen {pol_}", "s_mov_b64 exec, -1"]
            return r
    elif CO:
        def st(p): return [f"s_mov_b64 exec, {((1 << (NA - p)) - 1):#x}", f"s_mov_b32 exec_hi, exec_lo"] + \
            [f"ds_write_b128 v{IX[2]}, {vr(x+8*p+4*k,4)} offset:{RING + p*NA*272 + 16*k}" for k in range(2)] + ["s_mov_b64 exec, -1"]
    for p in (1, 0):
        q = 1 - p; Gc = GV + 32 * q
        lab(f"TAIL{p}")
        stamp(7); stamp(11, "s_memtime")
        if STAMP: o(f"v_writelane_b32 v{VST[0]}, s{sNT}, 12")
        o(f"ds_read_b128 {vr(T0,4)}, v{MQ}"); o(f"ds_read_b128 {vr(T0+4,4)}, v{MQ+1}")
        o(f"s_cmp_lg_u32 s{sMORE}, 0"); o(f"s_cbranch_scc1 TAILM{p}")
        o("s_waitcnt lgkmcnt(0)")
        for ins in wload(WU, WF_U): o(ins)
        for s in range(8): o(f"ds_read_b128 {vr(GV+32*p+4*s,4)}, v{vXA} offset:{p*2080+16*s}")
        for mt in range(2):
            for k in range(2): o(f"ds_read_b128 {vr(x+8*mt+4*k,4)}, v{vXR} offset:{mt*2080+16*k}")
        o(f"v_and_b32 v{IX[0]}, 31, v0"); o(f"v_and_b32 v{IX[0]+1}, 0xe0, v0"); o(f"v_add_u32 v{IX[0]}, s{sBASE}, v{IX[0]}")
        o(f"v_add_u32 v{IX[1]}, {NA}, v{IX[0]}"); o(f"v_mov_b32 v{IX[1]+1}, v{IX[0]+1}")
        if CO == 2:
            o(f"v_and_b32 v{IX[2]}, 31, v0"); o(f"v_mul_u32_u24 v{IX[2]}, 80, v{IX[2]}"); o(f"v_and_b32 v{IX[3]}, 32, v0"); o(f"v_add3_u32 v{IX[2]}, v{IX[2]}, v{IX[3]}, s{sMR}")
            o(f"v_bfe_u32 v{IX[0]}, v0, 2, 4"); o(f"v_and_b32 v{IX[1]}, 0x30, v{vWF}")
            o(f"v_mul_u32_u24 v{IX[3]}, 80, v{IX[0]}"); o(f"v_add3_u32 v{IX[3]}, v{IX[3]}, v{IX[1]}, s{sMR}")
            o(f"v_and_b32 v{IX[0]+1}, 0xc0, v0"); o(f"v_add_u32 v{IX[0]+1}, v{IX[0]+1}, v{IX[1]}"); o(f"v_mov_b32 v{IX[1]+1}, v{IX[0]+1}")
            o(f"v_add_u32 v{IX[0]}, s{sBASE}, v{IX[0]}"); o(f"v_add_u32 v{IX[1]}, {NA}, v{IX[0]}")
        elif CO:
            o(f"v_and_b32 v{IX[2]}, 31, v0"); o(f"v_mul_u32_u24 v{IX[2]}, 272, v{IX[2]}"); o(f"v_add_u32 v{IX[2]}, v{IX[2]}, v{IX[0]+1}")
            o(f"v_lshrrev_b32 v{IX[0]}, 4, v0"); o(f"v_and_b32 v{IX[0]+1}, 0xf0, v{vWF}")
            o(f"v_mul_u32_u24 v{IX[3]}, 272, v{IX[0]}"); o(f"v_add_u32 v{IX[3]}, v{IX[3]}, v{IX[0]+1}"); o(f"v_add_u32 v{IX[0]}, s{sBASE}, v{IX[0]}")
        o(f"s_mov_b32 s{sT1}, 0xffff0000")
        vs = [i for i, _ in vstream(Gc, Gc + 16)[HEAD[0]:]]
        for ins in vs: o(ins)
        o("s_nop 0")
        interleave(zphase(Gc, q), fin(p), 4)
        for s in range(8): o(f"ds_read_b128 {vr(Gc+4*s,4)}, v{vXA} offset:{q*2080+16*s}")
        o("s_waitcnt vmcnt(0) lgkmcnt(8)")
        interleave([m32(ACC+32*p+16, WU+4*s, GV+32*p+4*s, ACC+32*p+16) for s in range(8)], fin(q), 4)
        o("s_waitcnt lgkmcnt(0)"); o("s_barrier" if CO == 1 else "s_nop 0")
        interleave([m32(ACC+32*q+16, WU+4*s, Gc+4*s, ACC+32*q+16) for s in range(8)], unp(p) + post(p) + unp(q), 7)
        for ins in st(p) + post(q) + st(q): o(ins)
        if p == 1: o("s_branch K2_FIN")
    lab("K2_FIN")
    if CO == 1:
        o("v_cmp_gt_u32 vcc, 16, v0")
        o("s_waitcnt lgkmcnt(0)"); o("s_barrier")
        for k in range(4): o(f"ds_read_b128 {vr(GV+4*k,4)}, v{IX[3]} offset:{RING + k*16*272}")
        for k in range(4):
            if k == 3: o(f"s_and_saveexec_b64 s[{sSV}:{sSV+1}], vcc"); o("s_cbranch_execz K2_OUT")
            o(f"s_waitcnt lgkmcnt({3-k})")
            o(f"buffer_store_dwordx4 {vr(GV+4*k,4)}, {vr(IX[0],2)}, s[{sO}:{sO+3}], 0 idxen offen {OPT.get('outpol', '').replace('+', ' ')}")
            if k < 3: o(f"v_add_u32 v{IX[0]}, 16, v{IX[0]}")
        lab("K2_OUT")
    stamp_out(9, GV+32, sW, 1)
    lab("K2_END")
    o("s_endpgm")
    for p in (1, 0):
        Gc = GV + 32 * (1 - p)
        lab(f"TAILM{p}")
        for ins, _ in vstream(Gc, Gc + 16)[HEAD[0]:]: o(ins)
        o("s_waitcnt lgkmcnt(0)")
        for m in zphase(Gc, 1 - p): o(m)
        if p == 1: o("s_branch NEXTROUND")
    lab("NEXTROUND")
    for i in range(4):
        o(f"v_lshrrev_b32 v{vTC}, 19, v{SEG+i}"); o(f"v_min_u32 v{vTC}, s{sLIM}, v{vTC}")
        o(f"v_add_u32 v{SEG+i}, v{SEG+i}, v{vTC}"); o(f"v_lshlrev_b32 v{vTC}, 19, v{vTC}"); o(f"v_sub_u32 v{SEG+i}, v{SEG+i}, v{vTC}")
    o(f"s_mov_b32 s{sFIRST}, 0"); o(f"s_mov_b32 s{sLIM}, {LIM}")
    o("s_waitcnt vmcnt(0) lgkmcnt(0)"); o("s_barrier")
    o("s_branch ROUND")

def kd(name, nv, ns):
    L.append(".p2align 6")
    L.append(f".amdhsa_kernel {name}")
    for k, v in (("next_free_vgpr", nv), ("next_free_sgpr", ns), ("accum_offset", (nv + 3) // 4 * 4), ("group_segment_fixed_size", 0),
                 ("kernarg_size", 96), ("user_sgpr_count", 2), ("user_sgpr_kernarg_segment_ptr", 1), ("system_sgpr_workgroup_id_x", 1),
                 ("float_denorm_mode_32", 3)):
        L.append(f"  .amdhsa_{k} {v}")
    L.append(".end_amdhsa_kernel")

hdr = [l for l in open(f"cdna_kernels/{NAME}.s.ref").read().splitlines() if l.startswith(";") and "@launch" not in l
       and "Override launch" not in l and "grid=ceil" not in l]
L += hdr
L.append(f"; @launch kernel=gsort_kernel grid=({K1_GRID},1,1) block=(512,1,1) lds={K1_LDS}")
L.append(f"; @launch kernel=gmain_kernel grid=(256,1,1) block=(512,1,1) lds={NB+2*GS}" if G8 else f"; @launch kernel=gmain_kernel grid=(512,1,1) block=(256,1,1) lds={K2_LDS}")
L.append('.amdgcn_target "amdgcn-amd-amdhsa--gfx950"'); L.append(".text")
gen_k1a(); gen_k2()
lab("CODE_END")
L.append('.section .rodata,"a"')
kd("gsort_kernel", 256 if STAMP else 240, 102 if STAMP else 72); kd("gmain_kernel", 256 if STAMP else NVGPR, 102)
if STAMP: L.append("; STAMPS " + repr(NAMES))
open(sys.argv[1], "w").write("\n".join(L) + "\n")
print("vgprs", NVGPR, "lds", K2_LDS, "lines", len(L), file=sys.stderr)
```

```python
import sys, struct, re

N = 25000; E = 400000; RN = 49; NR = 511; CH = 1600; NCH = 250
WS_REC = 0; WS_OFF = 0x310000; OROW = 1152; WS_WF = 0x3c0000; WS_TAB = 0x400000; WS_SIZE = 0x4000000
WF_A = 0; WF_U = 0x8000; WF_C = 0x10000; NA = 25
NLOG2E = struct.unpack('<I', struct.pack('<f', -1.4426950408889634))[0]
EPS = struct.unpack('<I', struct.pack('<f', 1e-6))[0]
NAME = "standalone__edge_featured_mpnn_gatedgcn__graph"
OPT = dict(k1='a', tabpol='sc1', recpol='sc1', touch='0', nfo='1', nfy='1', lw='1', sf='1', st='1', split='2', nx='2', wfpol='sc1', tsh='19', outpol='sc1', co='2', bon='4', lp='3', pp='23,15,7')
OPT.update(a.split('=') for a in sys.argv[2:])
CH = 6720; NCH = 60; CHL = E - (NCH - 1) * CH; EPT = 16; LPS = 16; NG = 196
STAMP = int(OPT.get('stamp', 0))
WS_TAB = int(OPT.get('tab', hex(WS_TAB)), 0)
WS_STAMP = 0x3800000
L = []
def o(s): L.append("    " + s)
def lab(s): L.append(s + ":")
def vr(b, n): return f"v[{b}:{b+n-1}]"
VST = [60]
NAMES = {}
def stamp(i, ins="s_memrealtime", name=None):
    if STAMP:
        o(f"{ins} s[100:101]"); o("s_waitcnt lgkmcnt(0)"); o(f"v_writelane_b32 v{VST[0]}, s100, {i}")
def xstamp(name):
    if STAMP:
        NAMES[name] = 16 + len(NAMES); stamp(NAMES[name])
def stamp_out(n, reg, srdn, kern):
    if not STAMP: return
    o("s_mov_b64 exec, -1")
    stamp(n)
    o(f"v_lshlrev_b32 v{reg}, 2, v0")
    if kern and int(OPT.get('g8', 0)): o("s_and_b32 s63, s3, 1"); o("s_lshl_b32 s63, s63, 8"); o("s_add_u32 s2, s2, s63")
    o(f"s_lshl_b32 s63, s2, 11"); o(f"s_add_u32 s63, s63, {WS_STAMP + kern*0x100000:#x}")
    o(f"buffer_store_dword v{VST[0]}, v{reg}, s[{srdn}:{srdn+3}], s63 offen")
def srd(d, lo, size, stride=0):
    o(f"s_mov_b32 s{d}, s{lo}"); o(f"s_and_b32 s{d+1}, s{lo+1}, 0xffff")
    if stride: o(f"s_or_b32 s{d+1}, s{d+1}, {stride << 16:#x}")
    o(f"s_mov_b32 s{d+2}, {size:#x}"); o(f"s_mov_b32 s{d+3}, 0x20000")
def scan64(v):
    for d in ("row_shr:1", "row_shr:2", "row_shr:4", "row_shr:8"):
        o("s_nop 1"); o(f"v_add_u32_dpp v{v}, v{v}, v{v} {d} row_mask:0xf bank_mask:0xf bound_ctrl:0")
    o("s_nop 1"); o(f"v_add_u32_dpp v{v}, v{v}, v{v} row_bcast:15 row_mask:0xa bank_mask:0xf")
    o("s_nop 1"); o(f"v_add_u32_dpp v{v}, v{v}, v{v} row_bcast:31 row_mask:0xc bank_mask:0xf")

def m32(d, a, b, c): return f"v_mfma_f32_32x32x16_bf16 {vr(d,16)}, {vr(a,4)}, {vr(b,4)}, " + ("0" if c is None else vr(c,16))
K1_GRID = 256
CB = CH * 8 + 2048
K1_W = 0; K1_X = 65536; K1_S = K1_X + 4 * 8320; K1_LDS = K1_S + 8 * 4608
SM = 0
def gen_k1a():
    L.append(".globl gsort_kernel"); L.append(".p2align 8"); L.append(".type gsort_kernel,@function")
    lab("gsort_kernel"); VST[0] = 255
    pol = OPT.get('tabpol', '').replace('+', ' '); rpol = OPT.get('recpol', '').replace('+', ' ')
    stamp(0)
    o("s_load_dwordx8 s[4:11], s[0:1], 0")
    o("s_load_dwordx8 s[40:47], s[0:1], 32")
    o("s_load_dwordx2 s[48:49], s[0:1], 64")
    o("s_load_dwordx2 s[12:13], s[0:1], 88")
    o("v_lshrrev_b32 v2, 6, v0"); o("v_lshlrev_b32 v40, 4, v0")
    o("v_bfe_u32 v56, v0, 4, 1"); o("v_bfe_u32 v57, v0, 5, 1"); o("v_and_b32 v20, 63, v0")
    o("v_readfirstlane_b32 s33, v2")
    if OPT.get('sf'):
        o("s_cmp_ge_u32 s2, 256"); o("s_cbranch_scc1 K1_END")
        o("s_add_u32 s2, s2, 192"); o("s_and_b32 s2, s2, 255")
    o(f"s_cmp_ge_u32 s2, {NG}"); o("s_cbranch_scc1 K1_OTHER")
    o("s_lshr_b32 s35, s2, 3")
    o("s_and_b32 s36, s2, 7"); o("s_min_u32 s14, s36, 4"); o("s_mul_i32 s36, s36, 24"); o("s_add_u32 s36, s36, s14"); o("s_add_u32 s36, s36, s35")
    o("s_lshl_b32 s37, s36, 7")
    o("v_bfe_u32 v43, v0, 4, 2"); o("v_lshlrev_b32 v43, 6, v43"); o("v_xor_b32 v43, v43, v40")
    o("v_lshl_add_u32 v54, v57, 3, v56")
    o("s_lshr_b32 s32, s33, 2"); o("s_lshl_b32 s14, s32, 4"); o("s_and_b32 s30, s33, 3"); o("s_lshl1_add_u32 s14, s30, s14"); o("s_add_u32 s14, s14, s37")
    o("v_add_u32 v54, s14, v54")
    o("v_and_b32 v55, 15, v0"); o("v_lshlrev_b32 v59, 3, v56"); o("v_xor_b32 v55, v55, v59"); o("v_lshlrev_b32 v55, 4, v55")
    o("s_mul_i32 s38, s33, 1040"); o(f"s_add_u32 s38, s38, {K1_X}")
    o("s_lshl_b32 s39, s33, 10")
    o("s_mov_b32 m0, s38")
    o("s_waitcnt lgkmcnt(0)")
    srd(60, 4, N, 256)
    def xd(t):
        if t: o(f"s_add_u32 m0, s38, {t*8320}"); o("v_add_u32 v54, 32, v54")
        o("buffer_load_dwordx4 v[54:55], s[60:63], 0 idxen offen lds")
    def wd(m):
        for i in range(4):
            o(f"s_add_u32 m0, s39, {K1_W+m*32768+i*8192}"); o(f"s_movk_i32 s14, {i*8192}"); o(f"buffer_load_dwordx4 v43, s[{52+4*m}:{55+4*m}], s14 offen lds")
    xd(0); xd(1)
    srd(52, 42, 32768); wd(0)
    ST = int(OPT.get('st', 0))
    if ST: o("s_barrier")
    srd(56, 48, 32768)
    if ST < 2: wd(1)
    if not ST: xd(2); xd(3)
    o("v_bfe_u32 v60, v0, 2, 2"); o("v_lshl_add_u32 v61, v57, 6, v60"); o("v_xor_b32 v60, s30, v60"); o("v_lshlrev_b32 v60, 6, v60"); o("v_lshl_add_u32 v60, v61, 8, v60")
    o("v_and_b32 v61, 3, v0"); o("v_lshl_add_u32 v60, v61, 3, v60"); o("v_lshl_add_u32 v60, v56, 5, v60")
    o("v_bfe_u32 v61, v0, 1, 2"); o("v_lshl_or_b32 v61, v56, 2, v61"); o("v_mul_u32_u24 v61, 1040, v61")
    o("v_and_b32 v62, 1, v0"); o("v_bfe_u32 v63, v0, 3, 1"); o("v_lshl_or_b32 v63, v63, 1, v62"); o("v_lshl_add_u32 v61, v63, 8, v61")
    o("s_mul_i32 s14, s32, 8320"); o(f"s_add_u32 s14, s14, {K1_X}")
    o("v_xor_b32 v62, v62, v57"); o("v_lshl_add_u32 v61, v62, 7, v61"); o("v_add_u32 v61, s14, v61")
    o("s_mul_i32 s14, s33, 4608"); o(f"s_add_u32 s14, s14, {K1_S}")
    o("v_and_b32 v62, 31, v0"); o("v_mul_u32_u24 v62, 144, v62"); o("v_lshl_add_u32 v62, v57, 6, v62"); o("v_add_u32 v62, s14, v62")
    o("v_lshrrev_b32 v58, 3, v20"); o("v_and_b32 v59, 7, v0"); o("v_lshlrev_b32 v59, 4, v59")
    o("v_mul_u32_u24 v63, 144, v58"); o("v_add3_u32 v63, v63, v59, s14")
    o("s_lshl_b32 s14, s32, 5"); o("s_add_u32 s14, s14, s37"); o("s_lshl_b32 s14, s14, 9"); o("s_lshl_b32 s30, s30, 7"); o("s_add_u32 s14, s14, s30")
    o("v_lshl_add_u32 v59, v58, 9, v59"); o("v_add_u32 v59, s14, v59")
    if STAMP: srd(24, 12, WS_SIZE)
    o(f"s_add_u32 s12, s12, {WS_TAB:#x}"); o("s_addc_u32 s13, s13, 0"); srd(16, 12, N * 512)
    o(f"s_mov_b32 s15, {NLOG2E:#x}")
    WF_ = 64; XF_ = 128; AC = [160, 192]
    def trs(m):
        for s in range(8):
            for jj in range(2): o(f"ds_read_b64_tr_b16 v[{WF_+32*m+4*s+2*jj}:{WF_+32*m+4*s+2*jj+1}], v60 offset:{K1_W+m*32768+s*2048+jj*1024}")
            if m == 0: o(f"ds_read_b128 {vr(XF_+4*s,4)}, v61 offset:{16*s}")
    SPL = int(OPT.get('split', 1))
    stamp(1)
    if ST == 2: wd(1)
    o(f"s_waitcnt vmcnt({4 if ST else 6 if SPL else 0})"); o("s_barrier"); stamp(3)
    trs(0)
    if ST: xd(2); xd(3)
    if SPL:
        o("s_waitcnt lgkmcnt(12)")
        for s in range(8):
            if s == 4: o("s_waitcnt lgkmcnt(0)")
            o(m32(AC[0], WF_+4*s, XF_+4*s, None if s == 0 else AC[0]))
        o(f"s_waitcnt vmcnt({2 if SPL == 2 else 0})"); o("s_barrier")
        trs(1)
        for k in range(16): o(f"v_mul_f32 v{AC[0]+k}, s15, v{AC[0]+k}")
    else:
        trs(1)
        o("s_waitcnt lgkmcnt(15)")
        for s in range(8): o(m32(AC[0], WF_+4*s, XF_+4*s, None if s == 0 else AC[0]))
    def post(t):
        a = AC[t]; r = []
        for k in range(16): r.append(f"v_mul_f32 v{a+k}, s15, v{a+k}")
        for k in range(16): r.append(f"v_cvt_pk_bf16_f32 v{224+k}, v{a+2*k}, v{a+2*k+1}")
        r += [f"ds_write_b128 v62, {vr(224+4*c,4)} offset:{16*c}" for c in range(4)]
        r += [f"ds_read_b128 {vr(a+4*k,4)}, v63 offset:{k*8*144}" for k in range(4)]
        return r
    def stores(t):
        r = []
        for k in range(4):
            r += [f"s_waitcnt lgkmcnt({3-k})", f"buffer_store_dwordx4 {vr(AC[t]+4*k,4)}, v59, s[16:19], 0 offen {pol}", "v_add_u32 v59, 0x1000, v59"]
        return r
    o("s_waitcnt lgkmcnt(0)")
    for s in range(8):
        o(m32(AC[0]+16, WF_+32+4*s, XF_+4*s, None if s == 0 else AC[0]+16))
        if SPL < 2: o(f"ds_read_b128 {vr(XF_+4*s,4)}, v61 offset:{2*8320+16*s}")
        else: o(post(0)[16+s])
    if SPL == 2:
        o("s_waitcnt vmcnt(0)"); o("s_barrier")
        for s in range(8): o(f"ds_read_b128 {vr(XF_+4*s,4)}, v61 offset:{2*8320+16*s}")
        o("s_nop 0")
        for x in post(0)[24:]: o(x)
        o("s_waitcnt lgkmcnt(8)")
    else: o("s_waitcnt lgkmcnt(0)")
    mf = [m32(AC[1], WF_+4*s, XF_+4*s, None if s == 0 else AC[1]) for s in range(8)] + [m32(AC[1]+16, WF_+32+4*s, XF_+4*s, None if s == 0 else AC[1]+16) for s in range(8)]
    q = (post(0)[16:] + [None] * 6 if SPL < 2 else [None] * 5) + stores(0)
    q += [None] * (54 - len(q)) + ["s_nop 8"] + post(1)[:24]
    for m in mf:
        o(m)
        for _ in range(5):
            if q:
                x = q.pop(0)
                if x: o(x)
    assert not q
    o("v_add_u32 v59, 0x4000, v59"); o("s_nop 7")
    for x in post(1)[24:]: o(x)
    stamp(4)
    for x in stores(1): o(x)
    lab("K1_F")
    if STAMP: o("s_waitcnt vmcnt(0)")
    stamp_out(2, 12, 24, 0)
    lab("K1_END")
    o("s_endpgm")
    lab("K1_OTHER")
    o(f"s_sub_u32 s2, s2, {NG}")
    if OPT.get('cpf'):
        o("s_cmp_lt_u32 s33, 5"); o("s_cbranch_scc1 K1_NP")
        o("s_getpc_b64 s[70:71]"); lab("K1_PC")
        o("s_sub_u32 s70, s70, K1_PC-gsort_kernel"); o("s_subb_u32 s71, s71, 0")
        o("v_sub_u32 v236, 511, v0"); o("v_lshlrev_b32 v236, 7, v236"); o("v_min_u32 v236, CODE_END-gsort_kernel-4, v236")
        o("v_mov_b32 v237, s71"); o("v_add_co_u32 v236, vcc, s70, v236"); o("s_nop 1"); o("v_addc_co_u32 v237, vcc, 0, v237, vcc")
        o("global_load_dword v238, v[236:237], off")
        lab("K1_NP")
    D_, S_, R_, K_, P_ = 64, 80, 96, 112, 128
    o("v_lshlrev_b32 v1, 2, v0"); o("v_mov_b32 v2, 0"); o("ds_write_b32 v1, v2")
    o(f"s_mul_i32 s3, s2, {CH*4}"); o(f"s_mul_i32 s31, s2, {CB}"); o(f"s_mul_i32 s34, s2, {CH}")
    assert CH % 16 == 0 and CHL % 16 == 0 and CH // 16 <= 448
    o(f"s_movk_i32 s35, {CH}"); o(f"s_cmp_eq_u32 s2, {NCH-1}"); o(f"s_cselect_b32 s35, {CHL}, s35")
    o("v_cmp_gt_u32 vcc, s35, v40")
    o("s_lshr_b32 s36, s35, 2"); o("s_sub_u32 s36, s36, 3")
    o("s_waitcnt lgkmcnt(0)")
    srd(20, 10, E*4); srd(16, 8, E*4); srd(24, 12, WS_SIZE)
    o("s_mov_b64 s[28:29], vcc"); o("s_mov_b64 exec, vcc"); o("s_cbranch_execz K1_PREP")
    for j in range(4):
        for base, sr in ((D_, 20), (S_, 16)): o(f"buffer_load_dwordx4 {vr(base+4*j,4)}, v40, s[{sr}:{sr+3}], s3 offen")
        o("s_add_u32 s3, s3, s35")
    o("s_barrier")
    o("v_add_u32 v3, s34, v1"); o("v_mov_b32 v2, 1"); o(f"s_mov_b32 s15, {-RN}")
    def recs(lo, hi):
        for i in range(lo, hi):
            o(f"v_cmp_lt_u32 vcc, {NA-1}, v{D_+i}"); o(f"v_mul_u32_u24 v22, 83, v{S_+i}"); o("v_lshrrev_b32 v22, 16, v22")
            o(f"v_cndmask_b32 v23, 0, {NA}, vcc"); o(f"v_sub_u32 v23, v{D_+i}, v23")
            o(f"v_lshl_or_b32 v{P_+2*i}, v23, 16, v{S_+i}")
            o("v_cndmask_b32 v23, 0, 32, vcc"); o("v_or_b32 v22, v22, v23")
            o(f"v_lshl_add_u32 v{P_+1+2*i}, v22, 26, v3")
            o(f"v_add_u32 v3, {1 if i % 4 < 3 else 's36'}, v3")
    for j in range(4):
        o(f"s_waitcnt vmcnt({7 - 2*j})")
        for i in range(4*j, 4*j+4):
            o(f"v_mul_u32_u24 v{R_+i}, 21400, v{D_+i}")
            o(f"v_lshrrev_b32 v{R_+i}, 20, v{R_+i}")
            o(f"v_mad_i32_i24 v{D_+i}, v{R_+i}, s15, v{D_+i}")
            o(f"v_lshlrev_b32 v{R_+i}, 2, v{R_+i}")
            o(f"ds_add_rtn_u32 v{K_+i}, v{R_+i}, v2")
        o(f"s_waitcnt vmcnt({6 - 2*j})")
        if j < 3: recs(4*j, 4*j+4)
    stamp(1)
    lab("K1_B")
    o("s_mov_b64 exec, -1")
    o("v_lshlrev_b32 v20, 5, v20")
    o("s_waitcnt lgkmcnt(0)"); o("s_barrier"); stamp(3)
    o("ds_read_b128 v[24:27], v20"); o("ds_read_b128 v[28:31], v20 offset:16")
    recs(12, 14)
    o("s_waitcnt lgkmcnt(0)"); stamp(5)
    o("v_mov_b32 v33, v24")
    for j in range(2, 8): o(f"v_add_u32 v{32+j}, v{31+j}, v{23+j}")
    o("v_add_u32 v21, v39, v31"); o("v_mov_b32 v22, v21")
    scan64(21)
    o("v_sub_u32 v32, v21, v22")
    for j in range(1, 8): o(f"v_add_u32 v{32+j}, v32, v{32+j}")
    stamp(6)
    o("ds_write_b128 v20, v[32:35] offset:2048"); o("ds_write_b128 v20, v[36:39] offset:2064"); stamp(7)
    o("s_mov_b64 exec, s[28:29]")
    for i in range(EPT): o(f"ds_read_b32 v{R_+i}, v{R_+i} offset:2048")
    recs(14, 16); stamp(8)
    for i in range(EPT):
        if i % 4 == 0: o(f"s_waitcnt lgkmcnt(12)")
        o(f"v_add_lshl_u32 v{D_+i}, v{R_+i}, v{K_+i}, 3"); o(f"ds_write_b64 v{D_+i}, {vr(P_+2*i,2)} offset:6144")
    o("s_mov_b64 exec, -1")
    stamp(9)
    o("s_cmp_lg_u32 s33, 7"); o("s_cbranch_scc1 K1_O2")
    o("s_lshr_b32 s34, s31, 3"); o("s_add_u32 s34, s34, 256")
    for j in range(8): o(f"v_lshl_add_u32 v{24+j}, v{24+j}, 19, v{32+j}"); o(f"v_add_u32 v{24+j}, s34, v{24+j}")
    o("ds_write_b128 v20, v[24:27] offset:4096"); o("ds_write_b128 v20, v[28:31] offset:4112")
    lab("K1_O2")
    NC = (CB + 8191) // 8192
    o(f"v_cmp_gt_u32 vcc, {CB//16-512*(NC-1)}, v0"); o("v_add_u32 v41, 0x9000, v40")
    o("s_waitcnt lgkmcnt(0)"); o("s_barrier"); stamp(4)
    for j in range(NC): o(f"ds_read_b128 {vr(64+4*j,4)}, " + (f"v40 offset:{4096+8192*j}" if j < 4 else f"v41 offset:{8192*(j-4)}"))
    for j in range(NC):
        if j == NC - 1: o("s_and_saveexec_b64 s[28:29], vcc"); o("s_cbranch_execz K1_SE")
        o(f"s_waitcnt lgkmcnt({NC-1-j})")
        o(f"buffer_store_dwordx4 {vr(64+4*j,4)}, v40, s[24:27], s31 offen {rpol}"); o("s_add_u32 s31, s31, 8192")
    lab("K1_SE")
    if STAMP: o(f"s_add_u32 s2, s2, {NG}"); o("s_waitcnt vmcnt(0)"); stamp_out(2, 12, 24, 0)
    o("s_endpgm")
    lab("K1_PREP")
    o("s_barrier")
    o("s_cmp_lg_u32 s33, 7"); o("s_cbranch_scc1 K1_B")
    o("s_mov_b64 exec, -1")
    o("v_and_b32 v4, 3, v0"); o("v_bfe_u32 v5, v0, 3, 2"); o("v_lshl_or_b32 v4, v5, 2, v4")
    o("v_bfe_u32 v5, v0, 2, 1"); o("v_lshl_or_b32 v4, v5, 4, v4"); o("v_lshlrev_b32 v42, 4, v20")
    o("s_mov_b32 s70, s2"); o(f"s_add_u32 s71, s2, {NCH}"); o("s_cmp_lt_u32 s71, 68"); o("s_cselect_b32 s71, s71, s2")
    for u in range(2):
        U = 70 + u; V = 64 + 8 * u
        o(f"s_lshr_b32 s14, s{U}, 5")
        o("s_cmp_eq_u32 s14, 1"); o("s_cselect_b32 s64, s46, s40"); o("s_cselect_b32 s65, s47, s41")
        o("s_mov_b32 s66, 32768"); o(f"s_bfe_u32 s50, s{U}, 0x20003"); o(f"s_and_b32 s51, s{U}, 7"); o("s_mov_b32 s32, 14")
        o("s_cmp_eq_u32 s14, 2"); o("s_cselect_b32 s64, s44, s64"); o("s_cselect_b32 s65, s45, s65"); o("s_cselect_b32 s66, 4096, s66")
        o(f"s_cselect_b32 s{68+u}, {NLOG2E:#x}, 1.0")
        o("s_cselect_b32 s50, s51, s50"); o("s_cselect_b32 s51, 0, s51"); o("s_cselect_b32 s32, 11, s32")
        o("s_and_b32 s65, s65, 0xffff"); o("s_mov_b32 s67, 0x20000")
        o("s_lshl_b32 s50, s50, 6"); o("s_lshl_b32 s51, s51, 11"); o("s_add_u32 s50, s50, s51")
        o("v_lshlrev_b32 v5, s32, v57"); o("v_lshl_add_u32 v5, v4, 1, v5"); o("v_add_u32 v5, s50, v5")
        for j in range(8): o(f"buffer_load_ushort v{V+j}, v5, s[64:67], 0 offen offset:{j*256}")
    for u in range(2):
        U = 70 + u; V = 64 + 8 * u
        o(f"s_lshl_b32 s14, s{U}, 10"); o(f"s_add_u32 s14, s14, {WS_WF:#x}")
        o(f"s_waitcnt vmcnt({8 if u == 0 else 1})")
        for j in range(8):
            o(f"v_lshlrev_b32 v{V+j}, 16, v{V+j}"); o(f"v_mul_f32 v{V+j}, s{68+u}, v{V+j}")
        for j in range(4): o(f"v_cvt_pk_bf16_f32 v{8+4*u+j}, v{V+2*j}, v{V+1+2*j}")
        o(f"buffer_store_dwordx4 {vr(8+4*u,4)}, v42, s[24:27], s14 offen " + OPT.get('wfpol', ''))
    o("s_branch K1_B")

def regs_of(tok):
    m = re.fullmatch(r"v\[(\d+):(\d+)\]", tok)
    if m: return set(range(int(m.group(1)), int(m.group(2)) + 1))
    m = re.fullmatch(r"v(\d+)", tok)
    return {int(m.group(1))} if m else set()
def check_hazards(ins):
    P = []
    for s in ins:
        if s.endswith(':'): continue
        op, _, rest = s.partition(' ')
        t = [x.strip() for x in rest.split(',')]
        t = [x.split(' ')[0] for x in t]
        if op.startswith('v_mfma'):
            P.append(('m', 12 if '32x32' in op else 8, regs_of(t[0]), regs_of(t[1]) | regs_of(t[2]), regs_of(t[3]), s))
        elif op.startswith('v_'):
            P.append(('t' if op in ('v_exp_f32', 'v_rcp_f32') else 'v', 0, regs_of(t[0]), set().union(*map(regs_of, t[1:])), set(), s))
        elif op.startswith('ds_read'):
            P.append(('d', 0, regs_of(t[0]), regs_of(t[1]), set(), s))
        elif op.startswith('buffer'):
            P.append(('d', 0, set(), regs_of(t[0]), set(), s))
        else: P.append(('s', 0, set(), set(), set(), s))
    n = len(P)
    for i, (k, w, d, ab, c, s) in enumerate(P):
        for j in range(1, 13):
            k2, w2, d2, ab2, c2, s2 = P[(i + j) % n]
            gap = j - 1
            if k == 'm':
                if k2 == 'm':
                    assert not (gap < w and d & ab2), (s, s2)
                    if d & c2 and d != c2: assert gap >= w - 2, (s, s2)
                else: assert not (gap < w and d & (d2 | ab2)), (s, s2, gap)
                if k2 in 'vt': assert not (gap < (7 if w == 12 else 3) and c & d2), (s, s2)
            if k in 'vt' and k2 == 'm': assert not (gap < 2 and d & (ab2 | c2)), (s, s2)
            if k == 't' and k2 == 'v': assert not (gap < 1 and d & ab2), (s, s2)

LOWLIM = 500 // NCH; LIM = 4 * LPS; LG = LPS.bit_length() - 1; NS = 2
LW = [1, 2, 4, 8, 19, 37, 74, 150] if int(OPT.get('lw', 0)) else [1, 2, 4, 8, 16, 32, 64, 128]
LUT = 0; IDT = (sum(LW) + 1) * 16; NB = IDT + 512; LIST = NB + 256; MB = LIST + 8192; ROW = 264; CNT = MB + 26 * ROW; ZSZ = 26 * ROW + 256
ER = CNT + 256; RING = ER + 8192; WS_ = 4160; SLOT = 4 * WS_; K2_LDS = RING + (NS + 1) * SLOT
G8 = int(OPT.get('g8', 0)); GS = (K2_LDS - NB + 255) // 256 * 256
assert K2_LDS <= 81920 and ER % 16 == 0 and LIST % 16 == 0 and MB % 16 == 0 and 4096 < ZSZ <= 8192 and ZSZ % 16 == 0

class RA:
    def __init__(s): s.n = 1
    def get(s, k=1, al=1):
        s.n = (s.n + al - 1) // al * al
        b = s.n; s.n += k; return b
R = RA()
vTA = R.get()
IX = [R.get(2, 2) for _ in range(4)]; IXE = R.get(2, 2); MQ = R.get(2, 2)
(vTC, vEA, vMT, vSA, vMA, vL1, vL2, vSV, vHC, vWF, vXA, vXR, vXI, vXO) = [R.get() for _ in range(14)]
SEG = R.get(4, 4); PT = R.get(4, 4)
GV = R.get(64, 4); ACC = R.get(64, 4)
TF = R.get(16, 4); EF = R.get(4, 4); SF = R.get(8, 4); WC = R.get(4, 4); T0 = R.get(8, 4); AF = R.get(16, 4); SEL = R.get(8, 4); XT = R.get(16, 4)
NVGPR = R.n
assert NVGPR <= 255, NVGPR
REC = GV; RANK = GV + 32; AD = GV + 48
sX, sE, sW, sO, sT = 8, 12, 16, 20, 96
sWAVE, sBASE, sMR, sME, sCNT, sNT, sRS, sLIM, sFIRST, sMORE, sDS, sT0, sT1, sEPS, s80, sMET = range(24, 40)
sHM, sSV, sWF, sS0 = 42, 44, 52, 54
sK = 56
sG = 95
def addg(v):
    if G8: o(f"v_add_u32 v{v}, s{sG}, v{v}")
def saddg(r):
    if G8: o(f"s_add_u32 s{r}, s{r}, s{sG}")

def ldt(i): return f"buffer_load_dwordx4 {vr(IX[i],2)}, s[{sT}:{sT+3}], 0 idxen offen {OPT.get('tpol', '').replace('+', ' ')} lds".replace("  ", " ")
def lde(): return f"buffer_load_dwordx4 {vr(IXE,2)}, s[{sE}:{sE+3}], 0 idxen offen {OPT.get('epol', '').replace('+', ' ')} lds".replace("  ", " ")
def loff(u): return (u & 1) * 4096 + (u >> 1) * 256
def nextslot(r): return [f"s_add_u32 s{r}, s{r}, {SLOT}", f"s_cmp_eq_u32 s{r}, {NS*SLOT}", f"s_cselect_b32 s{r}, 0, s{r}"]

def vstream(Gc, Vc):
    A = []
    for p in range(0, 22, 2):
        if p < 16: A += [(f"v_exp_f32 v{Gc+p}, v{Gc+p}", 8), (f"v_exp_f32 v{Gc+p+1}, v{Gc+p+1}", 8)]
        q = p - 2
        if 0 <= q < 16:
            if 'a' in OPT.get('pk', ''): A += [(f"v_pk_add_f32 {vr(Gc+q,2)}, {vr(Gc+q,2)}, 1.0 op_sel_hi:[1,0]", 4)]
            else: A += [(f"v_add_f32 v{Gc+q}, 1.0, v{Gc+q}", 4), (f"v_add_f32 v{Gc+q+1}, 1.0, v{Gc+q+1}", 4)]
            A += [(f"v_rcp_f32 v{Gc+q}, v{Gc+q}", 8), (f"v_rcp_f32 v{Gc+q+1}, v{Gc+q+1}", 8)]
        q = p - 4
        if 0 <= q < 16 and 'm' in OPT.get('pk', ''): A += [(f"v_pk_mul_f32 {vr(Vc+q,2)}, {vr(Gc+q,2)}, {vr(Vc+q,2)}", 4)]
        elif 0 <= q < 16: A += [(f"v_mul_f32 v{Vc+q}, v{Gc+q}, v{Vc+q}", 4), (f"v_mul_f32 v{Vc+q+1}, v{Gc+q+1}, v{Vc+q+1}", 4)]
        q = p - 6
        if 0 <= q < 16: A += [(f"v_cvt_pk_bf16_f32 v{Gc+q//2}, v{Gc+q}, v{Gc+q+1}", 4), (f"v_cvt_pk_bf16_f32 v{Vc+q//2}, v{Vc+q}, v{Vc+q+1}", 4)]
    return A
def zphase(P, p):
    d = ACC + 32 * p
    return [m32(d, P, T0, d), m32(d+16, P+16, T0, d+16), m32(d, P+4, T0+4, d), m32(d+16, P+20, T0+4, d+16)]

HEAD = {}
def body(b, peel=False):
    p = b % 2
    Gn = GV + 32 * p; Vn = Gn + 16; Gc = GV + 32 * (1 - p); Vc = Gc + 16; af = AF + 8 * p
    ne = sum(1 for k in range(NS - 1) if (b - k) % 4 == 0) + (1 if (b - (NS - 1)) % 4 == 0 else 0)
    vmw = 4 * (NS - 1) + ne
    z = zphase(Gn, p)
    def dma(i): return [f"s_add_u32 m0, s{sMR}, {p*SLOT + i*1040}", None, ldt(i), f"ds_read_u16 v{IX[i]}, v{vL1} offset:{loff(b+NS+1)+64*i}"]
    top = ["s_waitcnt vmcnt(8) lgkmcnt(0)", "s_barrier"] if b == 3 else ["s_waitcnt lgkmcnt(0)"]
    if G8 and OPT.get('sp', '2103') != '0': top.append(f"s_setprio {OPT.get('sp', '2103')[b]}")
    if G8 and OPT.get('bar2') and b == 1: top.insert(1, "s_barrier")
    seq = []
    seq.append([z[0], [], []])
    seq.append([z[1], [f"ds_read_b128 {vr(SF,4)}, v{vSV} offset:{IDT}", f"ds_read_b128 {vr(SF+4,4)}, v{vSV} offset:{IDT+256}"], []])
    seq.append([z[2], [f"ds_read_u8 v{vSV}, v{vSA} offset:{loff(b+1)}"], []])
    seq.append([z[3], [f"s_sub_u32 s{sCNT}, s{sCNT}, 1", f"s_cbranch_scc1 TAIL{p}", f"ENT{b}:"], []])
    seq.append([m32(Gn, TF, SEL, None), [f"ds_read_b128 {vr(T0,4)}, v{MQ}"], [f"v_and_b32 v{IXE}, 0x7ffff, v{IXE}"] if b == 0 else []])
    seq.append([m32(Gn, TF+4, SEL+4, Gn), [f"ds_read_b128 {vr(T0+4,4)}, v{MQ+1}"], [f"v_xor_b32 v{vEA}, v{vEA}, v{vMT}"] if b == 3 else []])
    seq.append([m32(Gn, EF, WC, Gn), [f"ds_read_b128 {vr(EF,4)}, v{vEA} offset:{(b+1)%4*1024}", f"ds_read_u16 v{MQ}, v{vMA} offset:{b*8}",
                f"ds_read_u16 v{MQ+1}, v{vMA} offset:{b*8+2}"], []])
    seq.append([m32(Vn, TF+8, SEL, None), [f"ds_read_b32 v{IXE}, v{vL2}"] if b == 3 else [], []])
    seq.append([m32(Vn, TF+12, SEL+4, Vn), ["s_waitcnt lgkmcnt(S)"], []])
    seq.append([m32(Gn, SF, af, Gn), [f"s_waitcnt vmcnt({vmw})"], []])
    seq.append([m32(Gn, SF+4, af+4, Gn), [f"ds_read_b128 {vr(TF+4*j,4)}, v{vTA} offset:{(1-p)*SLOT+16*j}" for j in range(4)],
                [f"v_add_u32 v{r}, 0x200, v{r}" for r in (vSA, vL1, vL2)] + [f"v_add_u32 v{vMA}, 32, v{vMA}"] if b == 3 else []])
    dp = [int(c) for c in OPT.get('dp', '03589')]
    for i in range(4): seq[dp[i]][1] = seq[dp[i]][1] + dma(i)
    if b == 0: seq[dp[4]][1] = seq[dp[4]][1] + [f"s_mov_b32 m0, s{sME}", None, lde(), f"s_xor_b32 s{sME}, s{sME}, s{sMET}"]
    A = [] if peel else vstream(Gc, Vc)
    wt = [float(x) for x in OPT.get('wt', '1,1,1,1,1,1,1,1,1,1,1.6').split(',')]
    tot = sum(c for _, c in A); out = list(top); ai = 0; acc = 0; budget = 0
    for i, (m, ex, xv) in enumerate(seq):
        budget += tot * wt[i] / sum(wt)
        g = []
        while ai < len(A) and acc + A[ai][1] / 2 <= budget + 0.01:
            g.append(A[ai][0]); acc += A[ai][1]; ai += 1
        if i == 3 and not peel: HEAD[b] = ai
        if not (peel and i < 4): out.append(m)
        g = xv + g
        last = [x for x in ex if x and (x.startswith("s_waitcnt") or x.startswith("s_cbranch") or x.endswith(":") or x.startswith("s_sub"))]
        ex = [x for x in ex if x not in last]
        if peel: last = [x for x in last if x.startswith("s_waitcnt")]
        first = True
        for x in ex:
            if x is None:
                continue
            if not first and g: out.append(g.pop(0))
            elif not first and peel and x.startswith("buffer"): out.append("s_nop 0")
            out.append(x); first = False
        out += g + last
    assert ai == len(A)
    i0 = max(i for i, x in enumerate(out) if x.startswith(f"ds_read_b128 {vr(SF+4,4)}")); i1 = out.index("s_waitcnt lgkmcnt(S)")
    out[i1] = f"s_waitcnt lgkmcnt({sum(1 for x in out[i0+1:i1] if x.startswith('ds_'))})"
    for i, x in enumerate(out):
        if x.startswith("buffer_load"): assert not out[i-1].split()[1].startswith("m0"), (out[i-1], x)
    if OPT.get('fakec'):
        n2 = []
        for x in out:
            if x.startswith("v_mfma") and (f", {vr(SEL,4)}," in x or f", {vr(SEL+4,4)}," in x):
                j = (int(re.findall(r"v\[(\d+):", x)[1]) - TF)
                n2 += [f"v_lshlrev_b32 v{Vn+j+k}, 16, v{TF+j+k}" for k in range(4)]
            elif x == m32(Gn, EF, WC, Gn): n2.append(m32(Gn, EF, WC, TF))
            elif x.startswith("ds_read_b128") and f"v{vTA} " in x:
                j = int(re.findall(r"v\[(\d+):", x)[0]) - TF
                n2 += [f"ds_read2st64_b32 {vr(TF+j+2*k,2)}, v{vTC} offset0:{(1-p)*65+j+2*k} offset1:{(1-p)*65+j+2*k+1}" for k in range(2)]
            else: n2.append(x)
        out = n2
    if OPT.get('notrans'): out = [x.replace("v_exp_f32", "v_mov_b32").replace("v_rcp_f32", "v_mov_b32") for x in out]
    if OPT.get('noval'): out = ["s_nop 0" if (x.startswith("v_exp") or x.startswith("v_rcp")) else x for x in out if not (x.startswith("v_add_f32") or x.startswith("v_mul_f32") or x.startswith("v_cvt"))]
    if OPT.get('skel'):
        n2 = []
        for x in out:
            if x.startswith(("v_mfma", "v_exp", "v_rcp", "v_add_f32", "v_mul_f32", "v_cvt", "ds_read_b128")): continue
            if x.startswith("buffer_load"): n2.append("s_nop 0")
            if OPT['skel'] != '1' and x.startswith("s_waitcnt vmcnt") and "lgkm" not in x: x = f"s_waitcnt vmcnt({OPT['skel']})"
            if OPT['skel'] != '1' and x.startswith("s_waitcnt vmcnt(8) lgkm"): x = f"s_waitcnt vmcnt({max(8, int(OPT['skel']))}) lgkmcnt(0)"
            n2.append(x)
        out = n2
    if OPT.get('nodma'): out = [x for x in out if 'buffer_load' not in x]
    if OPT.get('noe'): out = [x for x in out if f"s[{sE}:{sE+3}]" not in x]
    return out

def emit(lst):
    for it in lst:
        if it.endswith(':'): lab(it[:-1])
        else: o(it)

def masks(tmp):
    a, b_, c = tmp
    o(f"v_and_b32 v{a}, {LPS-1}, v0"); o(f"v_lshlrev_b32 v{a}, 1, v{a}"); o(f"v_mov_b32 v{c}, 0")
    for i in range(4):
        o(f"v_lshrrev_b32 v{b_}, 19, v{SEG+i}"); o(f"v_max_u32 v{c}, v{c}, v{b_}")
        o(f"v_min_u32 v{b_}, s{sLIM}, v{b_}"); o(f"v_sub_u32 v{b_}, v{b_}, v{a}")
        for j, k in ((0, 2*i), (1, 2*i+1), (2*LPS, 8+2*i), (2*LPS+1, 9+2*i)): o(f"v_cmp_lt_i32 s[{sK+2*k}:{sK+2*k+1}], {j}, v{b_}")
    o(f"v_cmp_lt_u32 vcc, s{sLIM}, v{c}")
    o(f"s_or_b64 s[{sSV}:{sSV+1}], s[{sK+16}:{sK+17}], s[{sK+20}:{sK+21}]"); o(f"s_or_b64 s[{sHM}:{sHM+1}], s[{sK+24}:{sK+25}], s[{sK+28}:{sK+29}]")
    o(f"s_or_b64 s[{sSV}:{sSV+1}], s[{sSV}:{sSV+1}], s[{sHM}:{sHM+1}]")
    o(f"v_mov_b32 v{b_}, {CNT-4}"); addg(b_)
    o("s_mov_b64 exec, vcc"); o(f"ds_write_b32 v{b_}, v{b_}"); o("s_mov_b64 exec, -1")

def interleave(mf, other, per):
    other = list(other)
    for m in mf:
        o(m)
        for _ in range(per):
            if other: o(other.pop(0))
    for x in other: o(x)
def capture(fn):
    n = len(L); fn(); r = [x.strip() for x in L[n:]]; del L[n:]; return r
def wload(dst, off):
    r = []
    for s in range(8):
        if s % 4 == 0: r.append(f"s_add_u32 s{sT0}, s{sWF}, {off + s*1024:#x}")
        r.append(f"buffer_load_dwordx4 {vr(dst+4*s,4)}, v{vWF}, s[{sW}:{sW+3}], s{sT0} offen offset:{(s%4)*1024}")
    return r
def xblk(base, pair):
    o(f"v_mov_b32 v{pair+1}, v{vXO}")
    for mt in range(2):
        for a in range(2):
            o(f"s_add_u32 m0, s{base}, {(2*mt+a)*1040}")
            o(f"v_cmp_gt_u32 vcc, {(NA if mt == 0 else RN-NA) - 2*a}, v{vXI}")
            o(f"s_add_u32 s{sT0}, s{sBASE}, {NA*mt + 2*a}"); o(f"v_add_u32 v{pair}, s{sT0}, v{vXI}")
            o(f"v_cndmask_b32 v{pair}, v{PT+3}, v{pair}, vcc")
            o(f"buffer_load_dwordx4 {vr(pair,2)}, s[{sX}:{sX+3}], 0 idxen offen lds")

def lutw(d, j, tmp):
    o(f"v_lshlrev_b32 v{d}, v{j}, 16")
    if LW[4] != 16:
        corr = sum((LW[k] - (1 << k)) << (8 * (k - 4)) for k in range(4, 8))
        o(f"v_lshlrev_b32 v{tmp}, 3, v{j}"); o(f"v_add_u32 v{tmp}, -32, v{tmp}"); o(f"s_mov_b32 s{sT1}, {corr:#x}")
        o(f"v_cmp_lt_u32 vcc, 3, v{j}"); o(f"v_bfe_u32 v{tmp}, s{sT1}, v{tmp}, 8"); o("s_nop 0")
        o(f"v_cndmask_b32 v{tmp}, 0, v{tmp}, vcc"); o(f"v_lshl_add_u32 v{d}, v{tmp}, 4, v{d}")

def gen_k2():
    L.append(".globl gmain_kernel"); L.append(".p2align 8"); L.append(".type gmain_kernel,@function")
    lab("gmain_kernel"); VST[0] = 255
    t = [TF + i for i in range(28)]
    stamp(0)
    o("s_load_dwordx2 s[50:51], s[0:1], 88")
    o("s_load_dwordx4 s[4:7], s[0:1], 0")
    o("s_load_dwordx2 s[48:49], s[0:1], 72")
    o("s_setprio 3")
    o(f"v_lshrrev_b32 v{t[0]}, 6, v0")
    o("s_and_b32 s3, s2, 7"); o("s_lshl_b32 s3, s3, 6"); o(f"s_bfe_u32 s{sT0}, s2, 0x50003"); o(f"s_lshl1_add_u32 s3, s{sT0}, s3")
    o(f"v_readfirstlane_b32 s{sWAVE}, v{t[0]}")
    if G8:
        o("v_and_b32 v0, 0xff, v0"); o(f"s_lshr_b32 s{sT0}, s{sWAVE}, 2"); o(f"s_and_b32 s{sWAVE}, s{sWAVE}, 3"); o(f"s_mul_i32 s{sG}, s{sT0}, {GS}")
    else: o(f"s_lshr_b32 s{sT0}, s2, 8")
    o(f"s_add_u32 s3, s3, s{sT0}")
    o(f"s_cmp_ge_u32 s2, {256 if G8 else 512}"); o("s_cbranch_scc1 K2_END")
    o(f"s_cmp_ge_u32 s3, {NR}"); o("s_cbranch_scc1 K2_END")
    o(f"v_lshrrev_b32 v{t[1]}, {LG}, v0")
    o(f"s_lshl_b32 s88, s3, 2")
    o(f"v_mul_u32_u24 v{t[1]}, {CB}, v{t[1]}"); o(f"v_add_u32 v{t[1]}, s88, v{t[1]}")
    for i in range(1, 4): o(f"v_add_u32 v{t[1+i]}, {16*i*CB:#x}, v{t[1]}")
    o(f"s_mul_i32 s{sBASE}, s3, {RN}")
    o(f"v_and_b32 v{vWF}, 63, v0"); o(f"v_lshlrev_b32 v{vWF}, 4, v{vWF}")
    o(f"s_mul_i32 s{sMR}, s{sWAVE}, {WS_}"); o(f"s_add_u32 s{sMR}, s{sMR}, {RING}"); saddg(sMR)
    o(f"s_lshl_b32 s{sWF}, s{sWAVE}, 13"); o(f"s_add_u32 s{sWF}, s{sWF}, {WS_WF:#x}")
    o(f"s_mov_b32 s40, {EPS:#x}"); o("s_mov_b32 s41, s40"); o(f"s_mov_b32 s{s80}, {NLOG2E:#x}")
    o(f"s_mov_b32 s{sFIRST}, 1"); o(f"s_mov_b32 s{sLIM}, {LIM}")
    o("s_cmp_ge_u32 s2, 256"); o(f"s_cselect_b32 s{sRS}, {OPT.get('bon', 0)}, 0")
    def lut():
        q = T0
        for d in range(4):
            o(f"v_bfe_u32 v{q+d}, v0, {2*d}, 2"); o(f"v_mul_u32_u24 v{q+d}, 0x8001, v{q+d}")
            o(f"v_and_b32 v{q+d}, 0x10001, v{q+d}"); o(f"v_mul_u32_u24 v{q+d}, 0x3f80, v{q+d}")
        o(f"v_lshlrev_b32 v{q+4}, 4, v0")
        if LW[4] != 16:
            for k in range(4, 8): o(f"v_bfe_u32 v{q+5}, v0, {k}, 1"); o(f"v_mul_u32_u24 v{q+5}, {16*(LW[k]-(1<<k))}, v{q+5}"); o(f"v_add_u32 v{q+4}, v{q+4}, v{q+5}")
        o(f"ds_write_b128 v{q+4}, {vr(q,4)} offset:{LUT}")
        o(f"v_bfe_u32 v{q}, v0, 1, 4"); o(f"v_bfe_u32 v{q+1}, v0, 5, 1"); o(f"v_lshl_add_u32 v{q+1}, v{q+1}, 3, 1"); o(f"v_sub_u32 v{q}, v{q}, v{q+1}")
        o(f"v_and_b32 v{q+1}, 1, v0"); o(f"v_lshlrev_b32 v{q+1}, 2, v{q+1}"); o(f"v_sub_u32 v{q}, v{q}, v{q+1}")
        o(f"v_cmp_gt_u32 vcc, 4, v{q}"); o(f"v_mov_b32 v{q+6}, 0x3f80"); o(f"v_mov_b32 v{q+7}, 0"); o(f"v_lshlrev_b32 v{q}, 4, v{q}")
        o(f"v_cndmask_b32 v{q+6}, 0, v{q+6}, vcc")
        o(f"v_lshlrev_b64 {vr(q+6,2)}, v{q}, {vr(q+6,2)}")
        o(f"v_lshrrev_b32 v{q}, 1, v{vWF}")
        o(f"ds_write_b64 v{q}, {vr(q+6,2)} offset:{IDT}")
    lut()
    for r in range(0, 32, 2): o(f"v_mov_b64 {vr(ACC+32+r,2)}, {'s[40:41]' if r < 16 else 0}")
    o("s_waitcnt lgkmcnt(0)"); xstamp("karg")
    srd(sW, 50, WS_SIZE)
    o(f"s_mov_b32 s{sW+2}, {NCH*CB:#x}")
    for i in range(4): o(f"buffer_load_dword v{SEG+i}, v{t[1+i]}, s[{sW}:{sW+3}], 0 offen")
    o(f"s_mov_b32 s{sW+2}, {WS_SIZE:#x}")
    srd(sX, 4, N, 256); srd(sE, 6, E, 32); srd(sO, 48, N, 256)
    o(f"s_add_u32 s50, s50, {WS_TAB:#x}"); o("s_addc_u32 s51, s51, 0")
    if SM: o(f"s_mul_i32 s{sT0}, s{sWAVE}, {SMS}"); o(f"s_add_u32 s50, s50, s{sT0}"); o("s_addc_u32 s51, s51, 0")
    srd(sT, 50, N, 128 if SM else 512)
    WAP = OPT.get('wap', 'p1'); XBP = OPT.get('xbp', 'p1'); ORD = ['start', 'rec', 'mask', 'p1', 'b1']
    def place(where):
        if where not in (WAP, XBP): return
        o(f"s_cmp_eq_u32 s{sFIRST}, 0"); o(f"s_cbranch_scc1 NOW_{where}")
        if XBP == where:
            o(f"s_add_u32 s{sNT}, s{sMR}, {NS*SLOT}")
            xblk(sNT, T0)
        if WAP == where:
            for x in wload(ACC, WF_A): o(x)
            o(f"s_lshl_b32 s{sT0}, s{sWAVE}, 10"); o(f"s_add_u32 s{sT0}, s{sT0}, {WS_WF+WF_C:#x}")
            o(f"buffer_load_dwordx4 {vr(WC,4)}, v{vWF}, s[{sW}:{sW+3}], s{sT0} offen")
        if OPT.get('otouch') and WAP == where:
            o(f"v_mov_b32 v{T0+6}, s{sBASE}"); o(f"buffer_load_dword v{SEL}, v{T0+6}, s[{sO}:{sO+3}], 0 idxen")
        lab(f"NOW_{where}")
    def cnt(lo, hi): return sum(n for p, n in ((WAP, 9), (XBP, 4)) if lo <= ORD.index(p) <= hi)
    SP = [int(x) for x in OPT.get('spf', '0,0').split(',')]
    def spref(n, first):
        for k in range(n): o(f"s_load_dword s{88 + k % 4}, s[46:47], {(first + k) * 32768:#x}")
    if sum(SP):
        o(f"s_and_b32 s{sT0}, s3, 63"); o(f"s_lshl2_add_u32 s{sT0}, s{sT0}, s{sWAVE}"); o(f"s_lshl_b32 s{sT0}, s{sT0}, 7")
        o(f"s_add_u32 s46, s50, s{sT0}"); o("s_addc_u32 s47, s51, 0")
        spref(SP[0], 0)
    lab("ROUND")
    b0, b2, b3, b4, vh = t[16:21]
    o(f"v_lshlrev_b32 v{t[11]}, 4, v0"); addg(t[11])
    for d in range(4): o(f"v_mov_b32 v{t[0]+d}, 0")
    for off in (0, ZSZ - 4096): o(f"ds_write_b128 v{t[11]}, {vr(t[0],4)} offset:{MB+off}")
    pad0 = 0xffff | (NA << 16)
    o(f"v_mov_b32 v{t[4]}, {pad0:#x}"); o(f"v_mov_b32 v{t[5]}, 0x7ffff"); o(f"v_mov_b32 v{t[6]}, {pad0:#x}"); o(f"v_mov_b32 v{t[7]}, 0x7ffff")
    o(f"ds_write_b128 v{t[11]}, {vr(t[4],4)} offset:{LIST}"); o(f"ds_write_b128 v{t[11]}, {vr(t[4],4)} offset:{LIST+4096}")
    o(f"v_and_b32 v{b0}, 1, v0"); o(f"v_bfe_u32 v{b2}, v0, 2, 1"); o(f"v_bfe_u32 v{b3}, v0, 3, 1"); o(f"v_bfe_u32 v{b4}, v0, 4, 1"); o(f"v_bfe_u32 v{vh}, v0, 5, 1")
    o(f"v_and_b32 v{t[8]}, {LPS-1}, v0"); o(f"v_lshlrev_b32 v{t[8]}, 1, v{t[8]}")
    o(f"v_mov_b32 v{t[9]}, 0x7ffffff0"); o(f"s_mov_b32 s{sT1}, 0x7ffff")
    o(f"v_and_b32 v{t[12]}, 15, v0"); o(f"v_lshlrev_b32 v{t[13]}, 3, v{b4}")
    o(f"v_xor_b32 v{vXO}, v{t[12]}, v{t[13]}"); o(f"v_lshlrev_b32 v{vXO}, 4, v{vXO}")
    o(f"s_lshr_b32 s{sT0}, s{sWAVE}, 1"); o(f"s_lshl_b32 s{sT0}, s{sT0}, 4"); o(f"s_and_b32 s{sS0}, s{sWAVE}, 1"); o(f"s_lshl2_add_u32 s{sT0}, s{sS0}, s{sT0}")
    o(f"v_lshl_add_u32 v{vXI}, v{vh}, 3, v{b4}"); o(f"v_add_u32 v{vXI}, s{sT0}, v{vXI}")
    o(f"v_mov_b32 v{PT+3}, 0xffff")
    place('start')
    xstamp("consts_done")
    o(f"s_waitcnt vmcnt({cnt(0, 0)})"); stamp(1)
    for i in range(4):
        o(f"v_lshrrev_b32 v{t[4+i]}, 19, v{SEG+i}"); o(f"v_cmp_lt_u32 vcc, v{t[8]}, v{t[4+i]}")
        o(f"v_and_b32 v{t[i]}, s{sT1}, v{SEG+i}"); o(f"v_add_lshl_u32 v{t[i]}, v{t[i]}, v{t[8]}, 3")
        o(f"v_cndmask_b32 v{t[10]}, v{t[9]}, v{t[i]}, vcc")
        o(f"buffer_load_dwordx4 {vr(REC+4*i,4)}, v{t[10]}, s[{sW}:{sW+3}], 0 offen")
    o(f"v_max3_u32 v{t[10]}, v{t[4]}, v{t[5]}, v{t[6]}"); o(f"v_max_u32 v{t[10]}, v{t[10]}, v{t[7]}")
    o(f"v_cmp_lt_u32 vcc, {2*LPS}, v{t[10]}"); o("s_cbranch_vccz REC_DONE")
    for i in range(4): o(f"buffer_load_dwordx4 {vr(REC+16+4*i,4)}, v{t[i]}, s[{sW}:{sW+3}], 0 offen offset:{16*LPS}")
    lab("REC_DONE")
    xstamp("rec_issued")
    PF = int(OPT.get('pf', 0))
    def pref():
        o(f"s_lshr_b32 s{sT0}, s3, 6"); o(f"s_mul_i32 s{sT0}, s{sT0}, {64*RN}"); o(f"s_and_b32 s{sT1}, s3, 63"); o(f"s_lshl_b32 s{sT1}, s{sT1}, 6"); o(f"s_add_u32 s{sT0}, s{sT0}, s{sT1}")
        o(f"v_lshrrev_b32 v{T0+2}, 2, v0"); o(f"v_add_u32 v{T0+2}, s{sT0}, v{T0+2}"); o(f"v_and_b32 v{T0+1}, 3, v0"); o(f"v_lshlrev_b32 v{T0+1}, 7, v{T0+1}")
        for k in range(PF):
            o(f"v_add_u32 v{T0+3}, {-512*RN}, v{T0+2}"); o(f"v_min_u32 v{T0}, v{T0+2}, v{T0+3}")
            o(f"buffer_load_dword v{SEL}, {vr(T0,2)}, s[{sT}:{sT+3}], 0 idxen offen")
            if k + 1 < PF: o(f"v_add_u32 v{T0+2}, 4096, v{T0+2}")
    PFW = OPT.get('pfw', 'rec')
    place('rec')
    if PF and PFW == 'rec': pref()
    o("s_waitcnt lgkmcnt(0)"); o("s_barrier"); stamp(2)
    spref(SP[1], SP[0])
    pp = t[14]
    o(f"v_and_b32 v{pp}, 0x13, v0"); o(f"v_lshl_or_b32 v{pp}, v{b2}, 3, v{pp}"); o(f"v_lshl_or_b32 v{pp}, v{b3}, 2, v{pp}")
    o(f"v_lshrrev_b32 v{t[12]}, 3, v{pp}"); o(f"v_lshlrev_b32 v{vTA}, 7, v{pp}"); o(f"v_lshl_add_u32 v{vTA}, v{t[12]}, 4, v{vTA}")
    o(f"v_bfe_u32 v{t[13]}, v0, 1, 1"); o(f"v_xor_b32 v{t[12]}, v{t[13]}, v{vh}"); o(f"v_lshl_add_u32 v{vTA}, v{t[12]}, 6, v{vTA}"); o(f"v_add_u32 v{vTA}, s{sMR}, v{vTA}")
    o(f"v_and_b32 v{t[12]}, 7, v0"); o(f"v_lshlrev_b32 v{t[15]}, 2, v{b4}"); o(f"v_xor_b32 v{t[15]}, v{t[15]}, v{t[12]}")
    o(f"s_mov_b32 s{sT0}, 0" if SM else f"s_lshl_b32 s{sT0}, s{sWAVE}, 7"); o(f"v_lshl_add_u32 v{IX[0]+1}, v{t[15]}, 4, s{sT0}")
    for i in range(1, 4): o(f"v_mov_b32 v{IX[i]+1}, v{IX[0]+1}")
    o(f"v_and_b32 v{vL1}, 0x38, v0"); o(f"v_add_u32 v{vL1}, {LIST}, v{vL1}"); addg(vL1)
    o(f"v_lshl_or_b32 v{t[15]}, v{b4}, 1, v{b2}"); o(f"v_mul_u32_u24 v{t[15]}, {WS_}, v{t[15]}"); o(f"v_mul_u32_u24 v{t[13]}, 1040, v{t[13]}")
    o(f"v_lshl_or_b32 v{t[21]}, v{b3}, 1, v{b0}"); o(f"v_lshl_add_u32 v{t[15]}, v{t[21]}, 8, v{t[15]}"); o(f"v_add3_u32 v{t[15]}, v{t[15]}, v{t[13]}, {'s%d' % sG if G8 else 0}")
    o(f"v_add_u32 v{t[15]}, {RING + NS*SLOT}, v{t[15]}")
    o(f"v_xor_b32 v{t[13]}, v{vh}, v{b0}"); o(f"v_lshl_add_u32 v{vXA}, v{t[13]}, 7, v{t[15]}")
    o(f"v_lshlrev_b32 v{IXE+1}, 4, v{t[13]}")
    o(f"v_bfe_u32 v{t[13]}, v0, 7, 1"); o(f"v_xor_b32 v{t[13]}, v{t[13]}, v{b0}"); o(f"v_lshl_add_u32 v{vXR}, v{t[13]}, 7, v{t[15]}")
    o(f"v_and_b32 v{t[13]}, 0x60, v0"); o(f"v_add_u32 v{vXR}, v{vXR}, v{t[13]}")
    o(f"s_lshl_b32 s{sT0}, s{sS0}, 12"); o(f"s_lshr_b32 s{sT1}, s{sWAVE}, 1"); o(f"s_lshl_b32 s{sT1}, s{sT1}, 8"); o(f"s_add_u32 s{sT0}, s{sT0}, s{sT1}"); o(f"s_add_u32 s{sT0}, s{sT0}, {LIST+4}"); saddg(sT0)
    o(f"v_bfe_u32 v{vL2}, v0, 1, 5"); o(f"v_lshl_add_u32 v{vL2}, v{vL2}, 3, s{sT0}")
    o(f"s_lshl_b32 s{sME}, s{sWAVE}, 10"); o(f"s_add_u32 s{sME}, s{sME}, {ER}"); saddg(sME)
    o(f"v_lshl_add_u32 v{vSA}, v{pp}, 3, v{vh}"); o(f"v_add_u32 v{vSA}, {LIST+2}, v{vSA}"); addg(vSA)
    o(f"v_xor_b32 v{vEA}, v{b4}, v{vh}"); o(f"v_lshlrev_b32 v{vEA}, 4, v{vEA}")
    o(f"v_lshl_add_u32 v{vEA}, v{pp}, 5, v{vEA}"); o(f"v_add_u32 v{vEA}, {ER}, v{vEA}"); addg(vEA)
    o(f"v_add_u32 v{vMT}, 4096, v{vEA}"); o(f"v_xor_b32 v{vMT}, v{vMT}, v{vEA}")
    o(f"v_and_b32 v{t[13]}, 31, v0"); o(f"v_min_u32 v{t[13]}, {NA}, v{t[13]}")
    o(f"v_mul_u32_u24 v{vMA}, {ROW}, v{t[13]}"); o(f"v_lshl_add_u32 v{vMA}, v{vh}, 2, v{vMA}"); o(f"v_add_u32 v{vMA}, {MB}, v{vMA}"); addg(vMA)
    o(f"v_lshrrev_b32 v{PT+2}, 5, v0"); o(f"v_lshlrev_b32 v{PT+2}, 4, v{PT+2}"); o(f"v_lshl_add_u32 v{PT+2}, v{b3}, 2, v{PT+2}"); addg(PT+2)
    lutw(PT+1, t[12], t[13]); o(f"v_lshlrev_b32 v{t[13]}, 4, v{b4}"); o(f"v_lshlrev_b32 v{PT+1}, v{t[13]}, v{PT+1}")
    o(f"v_and_b32 v{t[12]}, 3, v0"); o(f"v_lshl_add_u32 v{t[15]}, v{b4}, 2, v{t[12]}"); lutw(t[12], t[15], t[13])
    o(f"v_cmp_eq_u32 vcc, v{b3}, v{vh}"); o(f"v_lshlrev_b32 v{t[13]}, 4, v{b2}"); o("s_nop 0")
    o(f"v_cndmask_b32 v{t[12]}, 0, v{t[12]}, vcc"); o(f"v_lshlrev_b32 v{PT}, v{t[13]}, v{t[12]}")
    place('mask')
    if cnt(1, 2):
        o(f"s_cmp_eq_u32 s{sFIRST}, 1"); o("s_cbranch_scc1 REMASK"); o("s_waitcnt vmcnt(0)")
    lab("REMASK")
    masks((t[0], t[1], t[2])); xstamp("masks_done")
    a, b_, c, d_ = t[0:4]; ad = [AD + k for k in range(16)]
    o(f"v_mov_b32 v{a}, 8")
    o(f"v_lshrrev_b32 v{b_}, 2, v{vWF}"); addg(b_)
    if G8: o(f"s_lshr_b32 s{sDS}, s{sG}, 8")
    if PF and PFW == 'mask': pref()
    o(f"s_waitcnt vmcnt({cnt(1, 2)})"); xstamp("rec_landed")
    for half in range(2):
        if half: o(f"s_cmp_eq_u64 s[{sSV}:{sSV+1}], 0"); o("s_cbranch_scc1 P1_DONE"); o("s_mov_b64 exec, -1")
        for k in range(8*half, 8*half+8): o(f"v_alignbit_b32 v{ad[k]}, s{sDS}, v{REC+2*k+1}, 24" if G8 else f"v_lshrrev_b32 v{ad[k]}, 24, v{REC+2*k+1}")
        for k in range(8*half, 8*half+8):
            o(f"s_mov_b64 exec, s[{sK+2*k}:{sK+2*k+1}]")
            o(f"ds_add_rtn_u32 v{RANK+k}, v{ad[k]}, v{a} offset:{CNT}")
    lab("P1_DONE")
    o("s_mov_b64 exec, -1")
    EP = OPT.get('ep', '')
    def epf():
        o(f"s_mov_b32 s{sT1}, {int(OPT.get('epm', '0x7007ffff'), 0):#x}")
        for k in range(8):
            o(f"v_and_b32 v{T0+k}, s{sT1}, v{REC+2*k+1}"); o(f"buffer_load_dword v{SEL}, v{T0+k}, s[{sE}:{sE+3}], 0 idxen")
    if EP == 'a': epf()
    place('p1')
    if EP == 'b': epf()
    if PF and PFW == 'p1': pref()
    o("s_waitcnt lgkmcnt(0)"); xstamp("p1_done"); o("s_barrier"); xstamp("b1")
    o(f"ds_read_b32 v{c}, v{b_} offset:{CNT}")
    o(f"ds_read_b32 v{t[4]}, v{b_} offset:{CNT-4}")
    place('b1')
    o(f"v_lshlrev_b32 v{t[5]}, 12, v{vh}"); addg(t[5])
    o("s_waitcnt lgkmcnt(1)")
    o(f"v_sub_u32 v{d_}, v{t[5]}, v{c}")
    for dd in ("row_shr:1", "row_shr:2", "row_shr:4", "row_shr:8"):
        o(f"v_add_u32_dpp v{c}, v{c}, v{c} {dd} row_mask:0xf bank_mask:0xf bound_ctrl:0"); o("s_nop 1")
    o(f"v_add_u32_dpp v{c}, v{c}, v{c} row_bcast:15 row_mask:0xa bank_mask:0xf")
    o(f"v_add_u32 v{d_}, v{c}, v{d_}")
    o(f"v_readlane_b32 s4, v{c}, 31"); o(f"v_readlane_b32 s5, v{c}, 63")
    o(f"s_add_u32 s{sNT}, s4, 255"); o(f"s_lshr_b32 s{sNT}, s{sNT}, 8"); o(f"s_lshl1_add_u32 s{sNT}, s{sNT}, -1")
    o(f"s_add_u32 s{sCNT}, s5, 255"); o(f"s_lshr_b32 s{sCNT}, s{sCNT}, 8"); o(f"s_lshl_b32 s{sCNT}, s{sCNT}, 1")
    o(f"s_max_i32 s{sNT}, s{sNT}, s{sCNT}"); o(f"s_max_i32 s{sNT}, s{sNT}, 2")
    if int(OPT.get('front', 1)):
        o(f"s_add_u32 s6, s{sNT}, 1"); o("s_lshr_b32 s6, s6, 1"); o("s_lshl_b32 s6, s6, 8"); o("s_sub_u32 s6, s6, s4")
        o(f"s_lshr_b32 s7, s{sNT}, 1"); o("s_lshl_b32 s7, s7, 8"); o("s_sub_u32 s7, s7, s5"); o("s_sub_u32 s7, s7, s6")
        o(f"v_mad_i32_i24 v{d_}, v{vh}, s7, v{d_}"); o(f"v_add_u32 v{d_}, s6, v{d_}")
    o(f"ds_write_b32 v{b_}, v{d_} offset:{NB}")
    for k in range(8): o(f"ds_read_b32 v{ad[k]}, v{ad[k]} offset:{NB}")
    o(f"s_cmp_le_u32 s{sNT}, 32"); o("s_cbranch_scc0 TOOBIG")
    xstamp("scan_done")
    for half in range(2):
        if half:
            o(f"s_cmp_eq_u64 s[{sSV}:{sSV+1}], 0"); o("s_cbranch_scc1 P2_DONE"); o("s_mov_b64 exec, -1")
            for k in range(8, 16): o(f"ds_read_b32 v{ad[k]}, v{ad[k]} offset:{NB}")
        for k in range(8*half, 8*half+8):
            if k % 4 == 0: o(f"s_waitcnt lgkmcnt({4 - k % 8})")
            o(f"v_add_u32 v{RANK+k}, v{RANK+k}, v{ad[k]}")
        for k in range(8*half, 8*half+8):
            o(f"s_mov_b64 exec, s[{sK+2*k}:{sK+2*k+1}]")
            o(f"ds_write_b64 v{RANK+k}, {vr(REC+2*k,2)} offset:{LIST}")
    lab("P2_DONE")
    o("s_mov_b64 exec, -1")
    o(f"v_readlane_b32 s{sMORE}, v{t[4]}, 0")
    o(f"s_mov_b32 m0, s{sME}")
    o(f"s_waitcnt vmcnt({9 + (8 if EP == 'b' else 0) if ORD.index(WAP) >= ORD.index(XBP) else 0}) lgkmcnt(0)"); xstamp("p2_done"); o("s_barrier"); stamp(5)
    f = t
    def rdidx(u):
        for i in range(4): o(f"ds_read_u16 v{IX[i]}, v{vL1} offset:{loff(u)+64*i}")
    def fill(u, nxt):
        for i in range(4):
            o(f"s_add_u32 m0, s{sMR}, {u*SLOT + i*1040}"); o(f"s_waitcnt lgkmcnt(3)"); o(ldt(i))
            o(f"ds_read_u16 v{IX[i]}, v{vL1} offset:{loff(nxt)+64*i}")
    o(f"ds_read_b32 v{IXE}, v{vL2}"); rdidx(0)
    o(f"v_lshlrev_b32 v{f[9]}, 3, v0"); addg(f[9])
    o("s_waitcnt lgkmcnt(4)")
    o(f"v_and_b32 v{IXE}, 0x7ffff, v{IXE}"); o(lde())
    NFO = int(OPT.get('nfo', 2)); NFY = int(OPT.get('nfy', 2))
    def fills(lo_o, hi_o, lo_y, hi_y, tag, wait):
        if (lo_o, hi_o) == (lo_y, hi_y):
            for u in range(lo_o, hi_o): fill(u, u + 1)
            return
        o("s_cmp_ge_u32 s2, 256"); o(f"s_cbranch_scc1 {tag}_Y")
        for u in range(lo_o, hi_o): fill(u, u + 1)
        if wait: o(f"s_waitcnt vmcnt({2+4*hi_o})")
        o(f"s_branch {tag}_D")
        lab(f"{tag}_Y")
        for u in range(lo_y, hi_y): fill(u, u + 1)
        if wait: o(f"s_waitcnt vmcnt({2+4*hi_y})")
        lab(f"{tag}_D")
    fills(0, NFO, 0, NFY, "FA", True)
    for k in range(4): o(f"ds_read_u8 v{f[12+k]}, v{f[9]} offset:{LIST+2+k*2048}")
    o(f"ds_read_b32 v{IXE}, v{vL2} offset:512")
    xstamp("fill_issued")
    def ctrl():
        o(f"s_movk_i32 s{sS0}, {ROW}")
        for k in range(4):
            o(f"v_cmp_gt_u32 vcc, {NA}, v{f[12+k]}"); o(f"v_mad_u32_u24 v{f[0]}, v{f[12+k]}, s{sS0}, v{PT+2}")
            o(f"v_lshrrev_b32 v{f[2]}, 1, v{f[12+k]}"); o(f"v_bfi_b32 v{f[2]}, 3, v{f[12+k]}, v{f[2]}"); o(f"v_lshl_add_u32 v{f[2]}, v{f[2]}, 4, 16")
            o(f"v_and_b32 v{f[3]}, 4, v{f[12+k]}"); o(f"v_lshlrev_b32 v{f[3]}, 1, v{f[3]}"); o(f"v_lshlrev_b32 v{f[2]}, v{f[3]}, v{f[2]}")
            o(f"v_cndmask_b32 v{f[2]}, 0, v{f[2]}, vcc"); o(f"ds_write_b16 v{f[9]}, v{f[2]} offset:{LIST+2+k*2048}")
            o(f"v_cndmask_b32 v{f[1]}, 0, v{PT+1}, vcc")
            o(f"ds_add_u32 v{f[0]}, v{f[1]} offset:{MB + (k&1)*128 + (k>>1)*8}")
        o(f"s_sub_u32 s{sCNT}, s{sNT}, 2")
        o(f"s_add_u32 s{sMET}, s{sME}, 4096"); o(f"s_xor_b32 s{sMET}, s{sMET}, s{sME}"); o(f"s_add_u32 s{sME}, s{sME}, 4096")
        o(f"v_add_u32 v{vL2}, 0x400, v{vL2}")
    o(f"s_cmp_eq_u32 s{sFIRST}, 1"); o("s_cbranch_scc1 G1")
    o("s_waitcnt lgkmcnt(0)")
    ctrl()
    o("s_branch G1D")
    lab("G1")
    for mt in range(2):
        for s in range(8): o(f"ds_read_b128 {vr(GV+32*mt+4*s,4)}, v{vXA} offset:{mt*2080 + 16*s}")
        if mt == 0: o("s_waitcnt lgkmcnt(8)")
    ct = capture(ctrl)
    o(f"s_waitcnt vmcnt({4*max(NFO, NFY)+2}) lgkmcnt(8)")
    acc = [XT, GV]
    interleave([m32(acc[0], GV+4*s, ACC+4*s, None if s == 0 else acc[0]) for s in range(8)], ct[:40], 5)
    o(f"s_waitcnt lgkmcnt({sum(1 for x in ct[:40] if x.startswith('ds_'))})")
    def cv(mt): return [f"v_mul_f32 v{acc[mt]+r}, s{s80}, v{acc[mt]+r}" for r in range(16)] + [f"v_cvt_pk_bf16_f32 v{AF+8*mt+r//2}, v{acc[mt]+r}, v{acc[mt]+r+1}" for r in range(0, 16, 2)]
    assert len(ct) >= 46
    interleave([m32(acc[1], GV+32+4*s, ACC+4*s, None if s == 0 else acc[1]) for s in range(8)], ct[40:] + cv(0), 5)
    for r in range(0, 32, 2): o(f"v_mov_b64 {vr(ACC+r,2)}, {'s[40:41]' if r < 16 else 0}")
    for x in cv(1): o(x)
    if STAMP:
        o("s_getreg_b32 s94, hwreg(HW_REG_HW_ID)"); o("s_getreg_b32 s100, hwreg(HW_REG_XCC_ID)"); o("s_and_b32 s94, s94, 0xffff"); o("s_lshl_b32 s100, s100, 16"); o("s_or_b32 s94, s94, s100"); o(f"v_writelane_b32 v{VST[0]}, s94, 3")
    lab("G1D")
    o(f"v_and_b32 v{MQ}, 0xffff, v{PT}"); o(f"v_lshrrev_b32 v{MQ+1}, 16, v{PT}")
    xstamp("g1_done"); stamp(4)
    fills(NFO, NS, NFY, NS, "FB", False)
    o(f"s_waitcnt vmcnt({4*(NS-1)}) lgkmcnt(0)"); xstamp("t0_landed"); o("s_barrier")
    o(f"ds_read_b128 {vr(SEL,4)}, v{MQ}"); o(f"ds_read_b128 {vr(SEL+4,4)}, v{MQ+1}"); o(f"ds_read_u8 v{vSV}, v{vSA}")
    o(f"ds_read_b128 {vr(EF,4)}, v{vEA}")
    for j in range(4): o(f"ds_read_b128 {vr(TF+4*j,4)}, v{vTA} offset:{16*j}")
    o(f"s_setprio {OPT.get('lp', 2)}")
    if OPT.get('young'):
        o("s_cmp_lt_u32 s2, 256"); o("s_cbranch_scc1 OLD"); o(f"s_setprio {OPT['young']}"); lab("OLD")
    if OPT.get('fakec'): o(f"v_lshrrev_b32 v{vTC}, 2, v{vWF}"); o(f"v_add_u32 v{vTC}, s{sMR}, v{vTC}")
    stamp(6); stamp(8, "s_memtime")
    bodies = [body(b) for b in range(4)]
    if not OPT.get('skel') and not OPT.get('noval') and not OPT.get('fakec'): check_hazards(sum(bodies, []) + ["s_branch LOOP"])
    emit(body(0, peel=True))
    b1 = bodies[1][:bodies[1].index("ENT1:")]
    o("s_nop 7")
    emit([x for x in b1 if not x.startswith(("v_mfma", "s_sub", "s_cbranch"))])
    o("s_branch ENT1")
    lab("TOOBIG")
    o(f"s_mov_b32 s{sLIM}, {LOWLIM}"); o(f"v_mov_b32 v{a}, 0")
    o("s_waitcnt lgkmcnt(0)"); o("s_barrier")
    o(f"ds_write_b32 v{b_}, v{a} offset:{CNT}")
    o("s_waitcnt lgkmcnt(0)"); o("s_barrier")
    o("s_branch REMASK")
    lab("LOOP")
    emit(sum(bodies, []))
    if OPT.get('pp', '99,8,4') != '0' and not G8:
        th = [int(x) for x in OPT.get('pp', '99,8,4').split(',')]
        o(f"s_add_u32 s{sT0}, s{sCNT}, s{sRS}")
        for k, v in enumerate(th):
            if v < 99: o(f"s_cmp_lt_u32 s{sT0}, {v}"); o("s_cbranch_scc0 LOOP"); o(f"s_setprio {2-k}")
    o("s_branch LOOP")
    assert len(set(HEAD.values())) == 1
    WU = TF; x = AF
    def fin(p):
        d = ACC + 32 * p; r = []
        for k in range(16): r.append(f"v_rcp_f32 v{d+k}, v{d+k}")
        for k in range(16): r.append(f"v_mul_f32 v{d+16+k}, v{d+k}, v{d+16+k}")
        return r
    def unp(p): return sum(([f"v_lshlrev_b32 v{ACC+32*p+2*k}, 16, v{x+8*p+k}", f"v_and_b32 v{ACC+32*p+2*k+1}, s{sT1}, v{x+8*p+k}"] for k in range(8)), [])
    def post(p):
        r = []
        for k in range(8):
            z = ACC + 32*p + 16 + 2*k
            r += [f"v_max_f32 v{z}, 0, v{z}", f"v_max_f32 v{z+1}, 0, v{z+1}", f"v_add_f32 v{z}, v{z}, v{z-16}", f"v_add_f32 v{z+1}, v{z+1}, v{z-15}",
                  f"v_cvt_pk_bf16_f32 v{x+8*p+k}, v{z}, v{z+1}"]
        return r
    def st(p): return [f"s_mov_b64 exec, {((1 << (NA - p)) - 1):#x}", f"s_mov_b32 exec_hi, exec_lo"] + \
        [f"buffer_store_dwordx4 {vr(x+8*p+4*k,4)}, {vr(IX[p],2)}, s[{sO}:{sO+3}], 0 idxen offen offset:{16*k} {OPT.get('outpol', '').replace('+', ' ')}" for k in range(2)] + ["s_mov_b64 exec, -1"]
    assert RN - NA == NA - 1
    CO = int(OPT.get('co', 0))
    if CO == 2:
        pol_ = OPT.get('outpol', '').replace('+', ' ')
        def st(p):
            r = [f"ds_write_b128 v{IX[2]}, {vr(x+8*p+4*k,4)} offset:{p*SLOT + 16*k}" for k in range(2)]
            r += [f"ds_read_b128 {vr(x+8*p+4*k,4)}, v{IX[3]} offset:{p*SLOT + k*16*80}" for k in range(2)]
            r += ["s_waitcnt lgkmcnt(1)", f"buffer_store_dwordx4 {vr(x+8*p,4)}, {vr(IX[p],2)}, s[{sO}:{sO+3}], 0 idxen offen {pol_}",
                  f"v_add_u32 v{IX[p]}, 16, v{IX[p]}", f"s_mov_b32 exec_hi, {(1 << (4 * (NA - p - 24))) - 1}", "s_waitcnt lgkmcnt(0)",
                  f"buffer_store_dwordx4 {vr(x+8*p+4,4)}, {vr(IX[p],2)}, s[{sO}:{sO+3}], 0 idxen offen {pol_}", "s_mov_b64 exec, -1"]
            return r
    elif CO:
        def st(p): return [f"s_mov_b64 exec, {((1 << (NA - p)) - 1):#x}", f"s_mov_b32 exec_hi, exec_lo"] + \
            [f"ds_write_b128 v{IX[2]}, {vr(x+8*p+4*k,4)} offset:{RING + p*NA*272 + 16*k}" for k in range(2)] + ["s_mov_b64 exec, -1"]
    for p in (1, 0):
        q = 1 - p; Gc = GV + 32 * q
        lab(f"TAIL{p}")
        stamp(7); stamp(11, "s_memtime")
        if STAMP: o(f"v_writelane_b32 v{VST[0]}, s{sNT}, 12")
        o(f"ds_read_b128 {vr(T0,4)}, v{MQ}"); o(f"ds_read_b128 {vr(T0+4,4)}, v{MQ+1}")
        o(f"s_cmp_lg_u32 s{sMORE}, 0"); o(f"s_cbranch_scc1 TAILM{p}")
        o("s_waitcnt lgkmcnt(0)")
        for ins in wload(WU, WF_U): o(ins)
        for s in range(8): o(f"ds_read_b128 {vr(GV+32*p+4*s,4)}, v{vXA} offset:{p*2080+16*s}")
        for mt in range(2):
            for k in range(2): o(f"ds_read_b128 {vr(x+8*mt+4*k,4)}, v{vXR} offset:{mt*2080+16*k}")
        o(f"v_and_b32 v{IX[0]}, 31, v0"); o(f"v_and_b32 v{IX[0]+1}, 0xe0, v0"); o(f"v_add_u32 v{IX[0]}, s{sBASE}, v{IX[0]}")
        o(f"v_add_u32 v{IX[1]}, {NA}, v{IX[0]}"); o(f"v_mov_b32 v{IX[1]+1}, v{IX[0]+1}")
        if CO == 2:
            o(f"v_and_b32 v{IX[2]}, 31, v0"); o(f"v_mul_u32_u24 v{IX[2]}, 80, v{IX[2]}"); o(f"v_and_b32 v{IX[3]}, 32, v0"); o(f"v_add3_u32 v{IX[2]}, v{IX[2]}, v{IX[3]}, s{sMR}")
            o(f"v_bfe_u32 v{IX[0]}, v0, 2, 4"); o(f"v_and_b32 v{IX[1]}, 0x30, v{vWF}")
            o(f"v_mul_u32_u24 v{IX[3]}, 80, v{IX[0]}"); o(f"v_add3_u32 v{IX[3]}, v{IX[3]}, v{IX[1]}, s{sMR}")
            o(f"v_and_b32 v{IX[0]+1}, 0xc0, v0"); o(f"v_add_u32 v{IX[0]+1}, v{IX[0]+1}, v{IX[1]}"); o(f"v_mov_b32 v{IX[1]+1}, v{IX[0]+1}")
            o(f"v_add_u32 v{IX[0]}, s{sBASE}, v{IX[0]}"); o(f"v_add_u32 v{IX[1]}, {NA}, v{IX[0]}")
        elif CO:
            o(f"v_and_b32 v{IX[2]}, 31, v0"); o(f"v_mul_u32_u24 v{IX[2]}, 272, v{IX[2]}"); o(f"v_add_u32 v{IX[2]}, v{IX[2]}, v{IX[0]+1}")
            o(f"v_lshrrev_b32 v{IX[0]}, 4, v0"); o(f"v_and_b32 v{IX[0]+1}, 0xf0, v{vWF}")
            o(f"v_mul_u32_u24 v{IX[3]}, 272, v{IX[0]}"); o(f"v_add_u32 v{IX[3]}, v{IX[3]}, v{IX[0]+1}"); o(f"v_add_u32 v{IX[0]}, s{sBASE}, v{IX[0]}")
        o(f"s_mov_b32 s{sT1}, 0xffff0000")
        vs = [i for i, _ in vstream(Gc, Gc + 16)[HEAD[0]:]]
        for ins in vs: o(ins)
        o("s_nop 0")
        interleave(zphase(Gc, q), fin(p), 4)
        for s in range(8): o(f"ds_read_b128 {vr(Gc+4*s,4)}, v{vXA} offset:{q*2080+16*s}")
        o("s_waitcnt vmcnt(0) lgkmcnt(8)")
        interleave([m32(ACC+32*p+16, WU+4*s, GV+32*p+4*s, ACC+32*p+16) for s in range(8)], fin(q), 4)
        o("s_waitcnt lgkmcnt(0)"); o("s_barrier" if CO == 1 else "s_nop 0")
        interleave([m32(ACC+32*q+16, WU+4*s, Gc+4*s, ACC+32*q+16) for s in range(8)], unp(p) + post(p) + unp(q), 7)
        for ins in st(p) + post(q) + st(q): o(ins)
        if p == 1: o("s_branch K2_FIN")
    lab("K2_FIN")
    if CO == 1:
        o("v_cmp_gt_u32 vcc, 16, v0")
        o("s_waitcnt lgkmcnt(0)"); o("s_barrier")
        for k in range(4): o(f"ds_read_b128 {vr(GV+4*k,4)}, v{IX[3]} offset:{RING + k*16*272}")
        for k in range(4):
            if k == 3: o(f"s_and_saveexec_b64 s[{sSV}:{sSV+1}], vcc"); o("s_cbranch_execz K2_OUT")
            o(f"s_waitcnt lgkmcnt({3-k})")
            o(f"buffer_store_dwordx4 {vr(GV+4*k,4)}, {vr(IX[0],2)}, s[{sO}:{sO+3}], 0 idxen offen {OPT.get('outpol', '').replace('+', ' ')}")
            if k < 3: o(f"v_add_u32 v{IX[0]}, 16, v{IX[0]}")
        lab("K2_OUT")
    stamp_out(9, GV+32, sW, 1)
    lab("K2_END")
    o("s_endpgm")
    for p in (1, 0):
        Gc = GV + 32 * (1 - p)
        lab(f"TAILM{p}")
        for ins, _ in vstream(Gc, Gc + 16)[HEAD[0]:]: o(ins)
        o("s_waitcnt lgkmcnt(0)")
        for m in zphase(Gc, 1 - p): o(m)
        if p == 1: o("s_branch NEXTROUND")
    lab("NEXTROUND")
    for i in range(4):
        o(f"v_lshrrev_b32 v{vTC}, 19, v{SEG+i}"); o(f"v_min_u32 v{vTC}, s{sLIM}, v{vTC}")
        o(f"v_add_u32 v{SEG+i}, v{SEG+i}, v{vTC}"); o(f"v_lshlrev_b32 v{vTC}, 19, v{vTC}"); o(f"v_sub_u32 v{SEG+i}, v{SEG+i}, v{vTC}")
    o(f"s_mov_b32 s{sFIRST}, 0"); o(f"s_mov_b32 s{sLIM}, {LIM}")
    o("s_waitcnt vmcnt(0) lgkmcnt(0)"); o("s_barrier")
    o("s_branch ROUND")

def kd(name, nv, ns):
    L.append(".p2align 6")
    L.append(f".amdhsa_kernel {name}")
    for k, v in (("next_free_vgpr", nv), ("next_free_sgpr", ns), ("accum_offset", (nv + 3) // 4 * 4), ("group_segment_fixed_size", 0),
                 ("kernarg_size", 96), ("user_sgpr_count", 2), ("user_sgpr_kernarg_segment_ptr", 1), ("system_sgpr_workgroup_id_x", 1),
                 ("float_denorm_mode_32", 3)):
        L.append(f"  .amdhsa_{k} {v}")
    L.append(".end_amdhsa_kernel")

hdr = [l for l in open(f"cdna_kernels/{NAME}.s.ref").read().splitlines() if l.startswith(";") and "@launch" not in l
       and "Override launch" not in l and "grid=ceil" not in l]
L += hdr
L.append(f"; @launch kernel=gsort_kernel grid=({K1_GRID},1,1) block=(512,1,1) lds={K1_LDS}")
L.append(f"; @launch kernel=gmain_kernel grid=(256,1,1) block=(512,1,1) lds={NB+2*GS}" if G8 else f"; @launch kernel=gmain_kernel grid=(512,1,1) block=(256,1,1) lds={K2_LDS}")
L.append('.amdgcn_target "amdgcn-amd-amdhsa--gfx950"'); L.append(".text")
gen_k1a(); gen_k2()
lab("CODE_END")
L.append('.section .rodata,"a"')
kd("gsort_kernel", 256 if STAMP else 240, 102 if STAMP else 72); kd("gmain_kernel", 256 if STAMP else NVGPR, 102)
if STAMP: L.append("; STAMPS " + repr(NAMES))
open(sys.argv[1], "w").write("\n".join(L) + "\n")
print("vgprs", NVGPR, "lds", K2_LDS, "lines", len(L), file=sys.stderr)
```

```python
import sys, struct, re

N = 25000; E = 400000; RN = 49; NR = 511; CH = 1600; NCH = 250
WS_REC = 0; WS_OFF = 0x310000; OROW = 1152; WS_WF = 0x3c0000; WS_TAB = 0x400000; WS_SIZE = 0x4000000
WF_A = 0; WF_U = 0x8000; WF_C = 0x10000; NA = 25
NLOG2E = struct.unpack('<I', struct.pack('<f', -1.4426950408889634))[0]
EPS = struct.unpack('<I', struct.pack('<f', 1e-6))[0]
NAME = "standalone__edge_featured_mpnn_gatedgcn__graph"
OPT = dict(k1='a', tabpol='sc1', recpol='sc1', touch='0', nfo='1', nfy='1', eb='1', dp='02455', lw='1', sf='1', st='1', split='2', nx='2', wfpol='sc1', tsh='19', outpol='sc1', co='2', bon='4', lp='3', pp='23,15,7')
OPT.update(a.split('=') for a in sys.argv[2:])
CH = 6720; NCH = 60; CHL = E - (NCH - 1) * CH; EPT = 16; LPS = 16; NG = 196
STAMP = int(OPT.get('stamp', 0))
WS_TAB = int(OPT.get('tab', hex(WS_TAB)), 0)
WS_STAMP = 0x3800000
L = []
def o(s): L.append("    " + s)
def lab(s): L.append(s + ":")
def vr(b, n): return f"v[{b}:{b+n-1}]"
VST = [60]
NAMES = {}
def stamp(i, ins="s_memrealtime", name=None):
    if STAMP:
        o(f"{ins} s[100:101]"); o("s_waitcnt lgkmcnt(0)"); o(f"v_writelane_b32 v{VST[0]}, s100, {i}")
def xstamp(name):
    if STAMP:
        NAMES[name] = 16 + len(NAMES); stamp(NAMES[name])
def stamp_out(n, reg, srdn, kern):
    if not STAMP: return
    o("s_mov_b64 exec, -1")
    stamp(n)
    o(f"v_lshlrev_b32 v{reg}, 2, v0")
    if kern and int(OPT.get('g8', 0)): o("s_and_b32 s63, s3, 1"); o("s_lshl_b32 s63, s63, 8"); o("s_add_u32 s2, s2, s63")
    o(f"s_lshl_b32 s63, s2, 11"); o(f"s_add_u32 s63, s63, {WS_STAMP + kern*0x100000:#x}")
    o(f"buffer_store_dword v{VST[0]}, v{reg}, s[{srdn}:{srdn+3}], s63 offen")
def srd(d, lo, size, stride=0):
    o(f"s_mov_b32 s{d}, s{lo}"); o(f"s_and_b32 s{d+1}, s{lo+1}, 0xffff")
    if stride: o(f"s_or_b32 s{d+1}, s{d+1}, {stride << 16:#x}")
    o(f"s_mov_b32 s{d+2}, {size:#x}"); o(f"s_mov_b32 s{d+3}, 0x20000")
def scan64(v):
    for d in ("row_shr:1", "row_shr:2", "row_shr:4", "row_shr:8"):
        o("s_nop 1"); o(f"v_add_u32_dpp v{v}, v{v}, v{v} {d} row_mask:0xf bank_mask:0xf bound_ctrl:0")
    o("s_nop 1"); o(f"v_add_u32_dpp v{v}, v{v}, v{v} row_bcast:15 row_mask:0xa bank_mask:0xf")
    o("s_nop 1"); o(f"v_add_u32_dpp v{v}, v{v}, v{v} row_bcast:31 row_mask:0xc bank_mask:0xf")

def m32(d, a, b, c): return f"v_mfma_f32_32x32x16_bf16 {vr(d,16)}, {vr(a,4)}, {vr(b,4)}, " + ("0" if c is None else vr(c,16))
K1_GRID = 256
CB = CH * 8 + 2048
K1_W = 0; K1_X = 65536; K1_S = K1_X + 4 * 8320; K1_LDS = K1_S + 8 * 4608
SM = 0
def gen_k1a():
    L.append(".globl gsort_kernel"); L.append(".p2align 8"); L.append(".type gsort_kernel,@function")
    lab("gsort_kernel"); VST[0] = 255
    pol = OPT.get('tabpol', '').replace('+', ' '); rpol = OPT.get('recpol', '').replace('+', ' ')
    stamp(0)
    o("s_load_dwordx8 s[4:11], s[0:1], 0")
    o("s_load_dwordx8 s[40:47], s[0:1], 32")
    o("s_load_dwordx2 s[48:49], s[0:1], 64")
    o("s_load_dwordx2 s[12:13], s[0:1], 88")
    o("v_lshrrev_b32 v2, 6, v0"); o("v_lshlrev_b32 v40, 4, v0")
    o("v_bfe_u32 v56, v0, 4, 1"); o("v_bfe_u32 v57, v0, 5, 1"); o("v_and_b32 v20, 63, v0")
    o("v_readfirstlane_b32 s33, v2")
    if OPT.get('sf'):
        o("s_cmp_ge_u32 s2, 256"); o("s_cbranch_scc1 K1_END")
        o("s_add_u32 s2, s2, 192"); o("s_and_b32 s2, s2, 255")
    o(f"s_cmp_ge_u32 s2, {NG}"); o("s_cbranch_scc1 K1_OTHER")
    o("s_lshr_b32 s35, s2, 3")
    o("s_and_b32 s36, s2, 7"); o("s_min_u32 s14, s36, 4"); o("s_mul_i32 s36, s36, 24"); o("s_add_u32 s36, s36, s14"); o("s_add_u32 s36, s36, s35")
    o("s_lshl_b32 s37, s36, 7")
    o("v_bfe_u32 v43, v0, 4, 2"); o("v_lshlrev_b32 v43, 6, v43"); o("v_xor_b32 v43, v43, v40")
    o("v_lshl_add_u32 v54, v57, 3, v56")
    o("s_lshr_b32 s32, s33, 2"); o("s_lshl_b32 s14, s32, 4"); o("s_and_b32 s30, s33, 3"); o("s_lshl1_add_u32 s14, s30, s14"); o("s_add_u32 s14, s14, s37")
    o("v_add_u32 v54, s14, v54")
    o("v_and_b32 v55, 15, v0"); o("v_lshlrev_b32 v59, 3, v56"); o("v_xor_b32 v55, v55, v59"); o("v_lshlrev_b32 v55, 4, v55")
    o("s_mul_i32 s38, s33, 1040"); o(f"s_add_u32 s38, s38, {K1_X}")
    o("s_lshl_b32 s39, s33, 10")
    o("s_mov_b32 m0, s38")
    o("s_waitcnt lgkmcnt(0)")
    srd(60, 4, N, 256)
    def xd(t):
        if t: o(f"s_add_u32 m0, s38, {t*8320}"); o("v_add_u32 v54, 32, v54")
        o("buffer_load_dwordx4 v[54:55], s[60:63], 0 idxen offen lds")
    def wd(m):
        for i in range(4):
            o(f"s_add_u32 m0, s39, {K1_W+m*32768+i*8192}"); o(f"s_movk_i32 s14, {i*8192}"); o(f"buffer_load_dwordx4 v43, s[{52+4*m}:{55+4*m}], s14 offen lds")
    xd(0); xd(1)
    srd(52, 42, 32768); wd(0)
    ST = int(OPT.get('st', 0))
    if ST: o("s_barrier")
    srd(56, 48, 32768)
    if ST < 2: wd(1)
    if not ST: xd(2); xd(3)
    o("v_bfe_u32 v60, v0, 2, 2"); o("v_lshl_add_u32 v61, v57, 6, v60"); o("v_xor_b32 v60, s30, v60"); o("v_lshlrev_b32 v60, 6, v60"); o("v_lshl_add_u32 v60, v61, 8, v60")
    o("v_and_b32 v61, 3, v0"); o("v_lshl_add_u32 v60, v61, 3, v60"); o("v_lshl_add_u32 v60, v56, 5, v60")
    o("v_bfe_u32 v61, v0, 1, 2"); o("v_lshl_or_b32 v61, v56, 2, v61"); o("v_mul_u32_u24 v61, 1040, v61")
    o("v_and_b32 v62, 1, v0"); o("v_bfe_u32 v63, v0, 3, 1"); o("v_lshl_or_b32 v63, v63, 1, v62"); o("v_lshl_add_u32 v61, v63, 8, v61")
    o("s_mul_i32 s14, s32, 8320"); o(f"s_add_u32 s14, s14, {K1_X}")
    o("v_xor_b32 v62, v62, v57"); o("v_lshl_add_u32 v61, v62, 7, v61"); o("v_add_u32 v61, s14, v61")
    o("s_mul_i32 s14, s33, 4608"); o(f"s_add_u32 s14, s14, {K1_S}")
    o("v_and_b32 v62, 31, v0"); o("v_mul_u32_u24 v62, 144, v62"); o("v_lshl_add_u32 v62, v57, 6, v62"); o("v_add_u32 v62, s14, v62")
    o("v_lshrrev_b32 v58, 3, v20"); o("v_and_b32 v59, 7, v0"); o("v_lshlrev_b32 v59, 4, v59")
    o("v_mul_u32_u24 v63, 144, v58"); o("v_add3_u32 v63, v63, v59, s14")
    o("s_lshl_b32 s14, s32, 5"); o("s_add_u32 s14, s14, s37"); o("s_lshl_b32 s14, s14, 9"); o("s_lshl_b32 s30, s30, 7"); o("s_add_u32 s14, s14, s30")
    o("v_lshl_add_u32 v59, v58, 9, v59"); o("v_add_u32 v59, s14, v59")
    if STAMP: srd(24, 12, WS_SIZE)
    o(f"s_add_u32 s12, s12, {WS_TAB:#x}"); o("s_addc_u32 s13, s13, 0"); srd(16, 12, N * 512)
    o(f"s_mov_b32 s15, {NLOG2E:#x}")
    WF_ = 64; XF_ = 128; AC = [160, 192]
    def trs(m):
        for s in range(8):
            for jj in range(2): o(f"ds_read_b64_tr_b16 v[{WF_+32*m+4*s+2*jj}:{WF_+32*m+4*s+2*jj+1}], v60 offset:{K1_W+m*32768+s*2048+jj*1024}")
            if m == 0: o(f"ds_read_b128 {vr(XF_+4*s,4)}, v61 offset:{16*s}")
    SPL = int(OPT.get('split', 1))
    stamp(1)
    if ST == 2: wd(1)
    o(f"s_waitcnt vmcnt({4 if ST else 6 if SPL else 0})"); o("s_barrier"); stamp(3)
    trs(0)
    if ST: xd(2); xd(3)
    if SPL:
        o("s_waitcnt lgkmcnt(12)")
        for s in range(8):
            if s == 4: o("s_waitcnt lgkmcnt(0)")
            o(m32(AC[0], WF_+4*s, XF_+4*s, None if s == 0 else AC[0]))
        o(f"s_waitcnt vmcnt({2 if SPL == 2 else 0})"); o("s_barrier")
        trs(1)
        for k in range(16): o(f"v_mul_f32 v{AC[0]+k}, s15, v{AC[0]+k}")
    else:
        trs(1)
        o("s_waitcnt lgkmcnt(15)")
        for s in range(8): o(m32(AC[0], WF_+4*s, XF_+4*s, None if s == 0 else AC[0]))
    def post(t):
        a = AC[t]; r = []
        for k in range(16): r.append(f"v_mul_f32 v{a+k}, s15, v{a+k}")
        for k in range(16): r.append(f"v_cvt_pk_bf16_f32 v{224+k}, v{a+2*k}, v{a+2*k+1}")
        r += [f"ds_write_b128 v62, {vr(224+4*c,4)} offset:{16*c}" for c in range(4)]
        r += [f"ds_read_b128 {vr(a+4*k,4)}, v63 offset:{k*8*144}" for k in range(4)]
        return r
    def stores(t):
        r = []
        for k in range(4):
            r += [f"s_waitcnt lgkmcnt({3-k})", f"buffer_store_dwordx4 {vr(AC[t]+4*k,4)}, v59, s[16:19], 0 offen {pol}", "v_add_u32 v59, 0x1000, v59"]
        return r
    o("s_waitcnt lgkmcnt(0)")
    for s in range(8):
        o(m32(AC[0]+16, WF_+32+4*s, XF_+4*s, None if s == 0 else AC[0]+16))
        if SPL < 2: o(f"ds_read_b128 {vr(XF_+4*s,4)}, v61 offset:{2*8320+16*s}")
        else: o(post(0)[16+s])
    if SPL == 2:
        o("s_waitcnt vmcnt(0)"); o("s_barrier")
        for s in range(8): o(f"ds_read_b128 {vr(XF_+4*s,4)}, v61 offset:{2*8320+16*s}")
        o("s_nop 0")
        for x in post(0)[24:]: o(x)
        o("s_waitcnt lgkmcnt(8)")
    else: o("s_waitcnt lgkmcnt(0)")
    mf = [m32(AC[1], WF_+4*s, XF_+4*s, None if s == 0 else AC[1]) for s in range(8)] + [m32(AC[1]+16, WF_+32+4*s, XF_+4*s, None if s == 0 else AC[1]+16) for s in range(8)]
    q = (post(0)[16:] + [None] * 6 if SPL < 2 else [None] * 5) + stores(0)
    q += [None] * (54 - len(q)) + ["s_nop 8"] + post(1)[:24]
    for m in mf:
        o(m)
        for _ in range(5):
            if q:
                x = q.pop(0)
                if x: o(x)
    assert not q
    o("v_add_u32 v59, 0x4000, v59"); o("s_nop 7")
    for x in post(1)[24:]: o(x)
    stamp(4)
    for x in stores(1): o(x)
    lab("K1_F")
    if STAMP: o("s_waitcnt vmcnt(0)")
    stamp_out(2, 12, 24, 0)
    lab("K1_END")
    o("s_endpgm")
    lab("K1_OTHER")
    o(f"s_sub_u32 s2, s2, {NG}")
    if OPT.get('cpf'):
        o("s_cmp_lt_u32 s33, 5"); o("s_cbranch_scc1 K1_NP")
        o("s_getpc_b64 s[70:71]"); lab("K1_PC")
        o("s_sub_u32 s70, s70, K1_PC-gsort_kernel"); o("s_subb_u32 s71, s71, 0")
        o("v_sub_u32 v236, 511, v0"); o("v_lshlrev_b32 v236, 7, v236"); o("v_min_u32 v236, CODE_END-gsort_kernel-4, v236")
        o("v_mov_b32 v237, s71"); o("v_add_co_u32 v236, vcc, s70, v236"); o("s_nop 1"); o("v_addc_co_u32 v237, vcc, 0, v237, vcc")
        o("global_load_dword v238, v[236:237], off")
        lab("K1_NP")
    D_, S_, R_, K_, P_ = 64, 80, 96, 112, 128
    o("v_lshlrev_b32 v1, 2, v0"); o("v_mov_b32 v2, 0"); o("ds_write_b32 v1, v2")
    o(f"s_mul_i32 s3, s2, {CH*4}"); o(f"s_mul_i32 s31, s2, {CB}"); o(f"s_mul_i32 s34, s2, {CH}")
    assert CH % 16 == 0 and CHL % 16 == 0 and CH // 16 <= 448
    o(f"s_movk_i32 s35, {CH}"); o(f"s_cmp_eq_u32 s2, {NCH-1}"); o(f"s_cselect_b32 s35, {CHL}, s35")
    o("v_cmp_gt_u32 vcc, s35, v40")
    o("s_lshr_b32 s36, s35, 2"); o("s_sub_u32 s36, s36, 3")
    o("s_waitcnt lgkmcnt(0)")
    srd(20, 10, E*4); srd(16, 8, E*4); srd(24, 12, WS_SIZE)
    o("s_mov_b64 s[28:29], vcc"); o("s_mov_b64 exec, vcc"); o("s_cbranch_execz K1_PREP")
    for j in range(4):
        for base, sr in ((D_, 20), (S_, 16)): o(f"buffer_load_dwordx4 {vr(base+4*j,4)}, v40, s[{sr}:{sr+3}], s3 offen")
        o("s_add_u32 s3, s3, s35")
    o("s_barrier")
    o("v_add_u32 v3, s34, v1"); o("v_mov_b32 v2, 1"); o(f"s_mov_b32 s15, {-RN}")
    def recs(lo, hi):
        for i in range(lo, hi):
            o(f"v_cmp_lt_u32 vcc, {NA-1}, v{D_+i}"); o(f"v_mul_u32_u24 v22, 83, v{S_+i}"); o("v_lshrrev_b32 v22, 16, v22")
            o(f"v_cndmask_b32 v23, 0, {NA}, vcc"); o(f"v_sub_u32 v23, v{D_+i}, v23")
            o(f"v_lshl_or_b32 v{P_+2*i}, v23, 16, v{S_+i}")
            o("v_cndmask_b32 v23, 0, 32, vcc"); o("v_or_b32 v22, v22, v23")
            o(f"v_lshl_add_u32 v{P_+1+2*i}, v22, 26, v3")
            o(f"v_add_u32 v3, {1 if i % 4 < 3 else 's36'}, v3")
    for j in range(4):
        o(f"s_waitcnt vmcnt({7 - 2*j})")
        for i in range(4*j, 4*j+4):
            o(f"v_mul_u32_u24 v{R_+i}, 21400, v{D_+i}")
            o(f"v_lshrrev_b32 v{R_+i}, 20, v{R_+i}")
            o(f"v_mad_i32_i24 v{D_+i}, v{R_+i}, s15, v{D_+i}")
            o(f"v_lshlrev_b32 v{R_+i}, 2, v{R_+i}")
            o(f"ds_add_rtn_u32 v{K_+i}, v{R_+i}, v2")
        o(f"s_waitcnt vmcnt({6 - 2*j})")
        if j < 3: recs(4*j, 4*j+4)
    stamp(1)
    lab("K1_B")
    o("s_mov_b64 exec, -1")
    o("v_lshlrev_b32 v20, 5, v20")
    o("s_waitcnt lgkmcnt(0)"); o("s_barrier"); stamp(3)
    o("ds_read_b128 v[24:27], v20"); o("ds_read_b128 v[28:31], v20 offset:16")
    recs(12, 14)
    o("s_waitcnt lgkmcnt(0)"); stamp(5)
    o("v_mov_b32 v33, v24")
    for j in range(2, 8): o(f"v_add_u32 v{32+j}, v{31+j}, v{23+j}")
    o("v_add_u32 v21, v39, v31"); o("v_mov_b32 v22, v21")
    scan64(21)
    o("v_sub_u32 v32, v21, v22")
    for j in range(1, 8): o(f"v_add_u32 v{32+j}, v32, v{32+j}")
    stamp(6)
    o("ds_write_b128 v20, v[32:35] offset:2048"); o("ds_write_b128 v20, v[36:39] offset:2064"); stamp(7)
    o("s_mov_b64 exec, s[28:29]")
    for i in range(EPT): o(f"ds_read_b32 v{R_+i}, v{R_+i} offset:2048")
    recs(14, 16); stamp(8)
    for i in range(EPT):
        if i % 4 == 0: o(f"s_waitcnt lgkmcnt(12)")
        o(f"v_add_lshl_u32 v{D_+i}, v{R_+i}, v{K_+i}, 3"); o(f"ds_write_b64 v{D_+i}, {vr(P_+2*i,2)} offset:6144")
    o("s_mov_b64 exec, -1")
    stamp(9)
    o("s_cmp_lg_u32 s33, 7"); o("s_cbranch_scc1 K1_O2")
    o("s_lshr_b32 s34, s31, 3"); o("s_add_u32 s34, s34, 256")
    for j in range(8): o(f"v_lshl_add_u32 v{24+j}, v{24+j}, 19, v{32+j}"); o(f"v_add_u32 v{24+j}, s34, v{24+j}")
    o("ds_write_b128 v20, v[24:27] offset:4096"); o("ds_write_b128 v20, v[28:31] offset:4112")
    lab("K1_O2")
    NC = (CB + 8191) // 8192
    o(f"v_cmp_gt_u32 vcc, {CB//16-512*(NC-1)}, v0"); o("v_add_u32 v41, 0x9000, v40")
    o("s_waitcnt lgkmcnt(0)"); o("s_barrier"); stamp(4)
    for j in range(NC): o(f"ds_read_b128 {vr(64+4*j,4)}, " + (f"v40 offset:{4096+8192*j}" if j < 4 else f"v41 offset:{8192*(j-4)}"))
    for j in range(NC):
        if j == NC - 1: o("s_and_saveexec_b64 s[28:29], vcc"); o("s_cbranch_execz K1_SE")
        o(f"s_waitcnt lgkmcnt({NC-1-j})")
        rp = rpol if not OPT.get('rp') else {'s': 'sc1', 'n': 'nt', 'p': ''}[OPT['rp'][j]]
        o(f"buffer_store_dwordx4 {vr(64+4*j,4)}, v40, s[24:27], s31 offen {rp}"); o("s_add_u32 s31, s31, 8192")
    lab("K1_SE")
    if STAMP: o(f"s_add_u32 s2, s2, {NG}"); o("s_waitcnt vmcnt(0)"); stamp_out(2, 12, 24, 0)
    o("s_endpgm")
    lab("K1_PREP")
    o("s_barrier")
    o("s_cmp_lg_u32 s33, 7"); o("s_cbranch_scc1 K1_B")
    o("s_mov_b64 exec, -1")
    o("v_and_b32 v4, 3, v0"); o("v_bfe_u32 v5, v0, 3, 2"); o("v_lshl_or_b32 v4, v5, 2, v4")
    o("v_bfe_u32 v5, v0, 2, 1"); o("v_lshl_or_b32 v4, v5, 4, v4"); o("v_lshlrev_b32 v42, 4, v20")
    o("s_mov_b32 s70, s2"); o(f"s_add_u32 s71, s2, {NCH}"); o("s_cmp_lt_u32 s71, 68"); o("s_cselect_b32 s71, s71, s2")
    for u in range(2):
        U = 70 + u; V = 64 + 8 * u
        o(f"s_lshr_b32 s14, s{U}, 5")
        o("s_cmp_eq_u32 s14, 1"); o("s_cselect_b32 s64, s46, s40"); o("s_cselect_b32 s65, s47, s41")
        o("s_mov_b32 s66, 32768"); o(f"s_bfe_u32 s50, s{U}, 0x20003"); o(f"s_and_b32 s51, s{U}, 7"); o("s_mov_b32 s32, 14")
        o("s_cmp_eq_u32 s14, 2"); o("s_cselect_b32 s64, s44, s64"); o("s_cselect_b32 s65, s45, s65"); o("s_cselect_b32 s66, 4096, s66")
        o(f"s_cselect_b32 s{68+u}, {NLOG2E:#x}, 1.0")
        o("s_cselect_b32 s50, s51, s50"); o("s_cselect_b32 s51, 0, s51"); o("s_cselect_b32 s32, 11, s32")
        o("s_and_b32 s65, s65, 0xffff"); o("s_mov_b32 s67, 0x20000")
        o("s_lshl_b32 s50, s50, 6"); o("s_lshl_b32 s51, s51, 11"); o("s_add_u32 s50, s50, s51")
        o("v_lshlrev_b32 v5, s32, v57"); o("v_lshl_add_u32 v5, v4, 1, v5"); o("v_add_u32 v5, s50, v5")
        for j in range(8): o(f"buffer_load_ushort v{V+j}, v5, s[64:67], 0 offen offset:{j*256}")
    for u in range(2):
        U = 70 + u; V = 64 + 8 * u
        o(f"s_lshl_b32 s14, s{U}, 10"); o(f"s_add_u32 s14, s14, {WS_WF:#x}")
        o(f"s_waitcnt vmcnt({8 if u == 0 else 1})")
        for j in range(8):
            o(f"v_lshlrev_b32 v{V+j}, 16, v{V+j}"); o(f"v_mul_f32 v{V+j}, s{68+u}, v{V+j}")
        for j in range(4): o(f"v_cvt_pk_bf16_f32 v{8+4*u+j}, v{V+2*j}, v{V+1+2*j}")
        o(f"buffer_store_dwordx4 {vr(8+4*u,4)}, v42, s[24:27], s14 offen " + OPT.get('wfpol', ''))
    o("s_branch K1_B")

def regs_of(tok):
    m = re.fullmatch(r"v\[(\d+):(\d+)\]", tok)
    if m: return set(range(int(m.group(1)), int(m.group(2)) + 1))
    m = re.fullmatch(r"v(\d+)", tok)
    return {int(m.group(1))} if m else set()
def check_hazards(ins):
    P = []
    for s in ins:
        if s.endswith(':'): continue
        op, _, rest = s.partition(' ')
        t = [x.strip() for x in rest.split(',')]
        t = [x.split(' ')[0] for x in t]
        if op.startswith('v_mfma'):
            P.append(('m', 12 if '32x32' in op else 8, regs_of(t[0]), regs_of(t[1]) | regs_of(t[2]), regs_of(t[3]), s))
        elif op.startswith('v_'):
            P.append(('t' if op in ('v_exp_f32', 'v_rcp_f32') else 'v', 0, regs_of(t[0]), set().union(*map(regs_of, t[1:])), set(), s))
        elif op.startswith('ds_read'):
            P.append(('d', 0, regs_of(t[0]), regs_of(t[1]), set(), s))
        elif op.startswith('buffer'):
            P.append(('d', 0, set(), regs_of(t[0]), set(), s))
        else: P.append(('s', 0, set(), set(), set(), s))
    n = len(P)
    for i, (k, w, d, ab, c, s) in enumerate(P):
        for j in range(1, 13):
            k2, w2, d2, ab2, c2, s2 = P[(i + j) % n]
            gap = j - 1
            if k == 'm':
                if k2 == 'm':
                    assert not (gap < w and d & ab2), (s, s2)
                    if d & c2 and d != c2: assert gap >= w - 2, (s, s2)
                else: assert not (gap < w and d & (d2 | ab2)), (s, s2, gap)
                if k2 in 'vt': assert not (gap < (7 if w == 12 else 3) and c & d2), (s, s2)
            if k in 'vt' and k2 == 'm': assert not (gap < 2 and d & (ab2 | c2)), (s, s2)
            if k == 't' and k2 == 'v': assert not (gap < 1 and d & ab2), (s, s2)

LOWLIM = 500 // NCH; LIM = 4 * LPS; LG = LPS.bit_length() - 1; NS = 2
LW = [1, 2, 4, 8, 19, 37, 74, 150] if int(OPT.get('lw', 0)) else [1, 2, 4, 8, 16, 32, 64, 128]
LUT = 0; IDT = (sum(LW) + 1) * 16; NB = IDT + 512; LIST = NB + 256; MB = LIST + 8192; ROW = 264; CNT = MB + 26 * ROW; ZSZ = 26 * ROW + 256
ER = CNT + 256; RING = ER + 8192; WS_ = 4160; SLOT = 4 * WS_; K2_LDS = RING + (NS + 1) * SLOT
G8 = int(OPT.get('g8', 0)); GS = (K2_LDS - NB + 255) // 256 * 256
assert K2_LDS <= 81920 and ER % 16 == 0 and LIST % 16 == 0 and MB % 16 == 0 and 4096 < ZSZ <= 8192 and ZSZ % 16 == 0

class RA:
    def __init__(s): s.n = 1
    def get(s, k=1, al=1):
        s.n = (s.n + al - 1) // al * al
        b = s.n; s.n += k; return b
R = RA()
vTA = R.get()
IX = [R.get(2, 2) for _ in range(4)]; IXE = R.get(2, 2); MQ = R.get(2, 2)
(vTC, vEA, vMT, vSA, vMA, vL1, vL2, vSV, vHC, vWF, vXA, vXR, vXI, vXO) = [R.get() for _ in range(14)]
SEG = R.get(4, 4); PT = R.get(4, 4)
GV = R.get(64, 4); ACC = R.get(64, 4)
TF = R.get(16, 4); EF = R.get(4, 4); SF = R.get(8, 4); WC = R.get(4, 4); T0 = R.get(8, 4); AF = R.get(16, 4); SEL = R.get(8, 4); XT = R.get(16, 4)
NVGPR = R.n
assert NVGPR <= 255, NVGPR
REC = GV; RANK = GV + 32; AD = GV + 48
sX, sE, sW, sO, sT = 8, 12, 16, 20, 96
sWAVE, sBASE, sMR, sME, sCNT, sNT, sRS, sLIM, sFIRST, sMORE, sDS, sT0, sT1, sEPS, s80, sMET = range(24, 40)
sHM, sSV, sWF, sS0 = 42, 44, 52, 54
sK = 56
sG = 95
def addg(v):
    if G8: o(f"v_add_u32 v{v}, s{sG}, v{v}")
def saddg(r):
    if G8: o(f"s_add_u32 s{r}, s{r}, s{sG}")

def ldt(i): return f"buffer_load_dwordx4 {vr(IX[i],2)}, s[{sT}:{sT+3}], 0 idxen offen {OPT.get('tpol', '').replace('+', ' ')} lds".replace("  ", " ")
def lde(): return f"buffer_load_dwordx4 {vr(IXE,2)}, s[{sE}:{sE+3}], 0 idxen offen {OPT.get('epol', '').replace('+', ' ')} lds".replace("  ", " ")
def loff(u): return (u & 1) * 4096 + (u >> 1) * 256
def nextslot(r): return [f"s_add_u32 s{r}, s{r}, {SLOT}", f"s_cmp_eq_u32 s{r}, {NS*SLOT}", f"s_cselect_b32 s{r}, 0, s{r}"]

def vstream(Gc, Vc):
    A = []
    for p in range(0, 22, 2):
        if p < 16: A += [(f"v_exp_f32 v{Gc+p}, v{Gc+p}", 8), (f"v_exp_f32 v{Gc+p+1}, v{Gc+p+1}", 8)]
        q = p - 2
        if 0 <= q < 16:
            if 'a' in OPT.get('pk', ''): A += [(f"v_pk_add_f32 {vr(Gc+q,2)}, {vr(Gc+q,2)}, 1.0 op_sel_hi:[1,0]", 4)]
            else: A += [(f"v_add_f32 v{Gc+q}, 1.0, v{Gc+q}", 4), (f"v_add_f32 v{Gc+q+1}, 1.0, v{Gc+q+1}", 4)]
            A += [(f"v_rcp_f32 v{Gc+q}, v{Gc+q}", 8), (f"v_rcp_f32 v{Gc+q+1}, v{Gc+q+1}", 8)]
        q = p - 4
        if 0 <= q < 16 and 'm' in OPT.get('pk', ''): A += [(f"v_pk_mul_f32 {vr(Vc+q,2)}, {vr(Gc+q,2)}, {vr(Vc+q,2)}", 4)]
        elif 0 <= q < 16: A += [(f"v_mul_f32 v{Vc+q}, v{Gc+q}, v{Vc+q}", 4), (f"v_mul_f32 v{Vc+q+1}, v{Gc+q+1}, v{Vc+q+1}", 4)]
        q = p - 6
        if 0 <= q < 16: A += [(f"v_cvt_pk_bf16_f32 v{Gc+q//2}, v{Gc+q}, v{Gc+q+1}", 4), (f"v_cvt_pk_bf16_f32 v{Vc+q//2}, v{Vc+q}, v{Vc+q+1}", 4)]
    return A
def zphase(P, p):
    d = ACC + 32 * p
    return [m32(d, P, T0, d), m32(d+16, P+16, T0, d+16), m32(d, P+4, T0+4, d), m32(d+16, P+20, T0+4, d+16)]

HEAD = {}
EB = int(OPT.get('eb', 0))
def body(b, peel=False):
    p = b % 2
    Gn = GV + 32 * p; Vn = Gn + 16; Gc = GV + 32 * (1 - p); Vc = Gc + 16; af = AF + 8 * p
    ne = sum(1 for k in range(NS) if (b - k) % 4 == EB)
    vmw = 4 * (NS - 1) + ne
    z = zphase(Gn, p)
    def dma(i): return [f"s_add_u32 m0, s{sMR}, {p*SLOT + i*1040}", None, ldt(i), f"ds_read_u16 v{IX[i]}, v{vL1} offset:{loff(b+NS+1)+64*i}"]
    top = [f"s_waitcnt vmcnt({4*(2-EB)}) lgkmcnt(0)", "s_barrier"] if b == 3 else ["s_waitcnt lgkmcnt(0)"]
    if G8 and OPT.get('sp', '2103') != '0': top.append(f"s_setprio {OPT.get('sp', '2103')[b]}")
    if G8 and OPT.get('bar2') and b == 1: top.insert(1, "s_barrier")
    seq = []
    seq.append([z[0], [], []])
    seq.append([z[1], [f"ds_read_b128 {vr(SF,4)}, v{vSV} offset:{IDT}", f"ds_read_b128 {vr(SF+4,4)}, v{vSV} offset:{IDT+256}"], []])
    seq.append([z[2], [f"ds_read_u8 v{vSV}, v{vSA} offset:{loff(b+1)}"], []])
    seq.append([z[3], [f"s_sub_u32 s{sCNT}, s{sCNT}, 1", f"s_cbranch_scc1 TAIL{p}", f"ENT{b}:"], []])
    seq.append([m32(Gn, TF, SEL, None), [f"ds_read_b128 {vr(T0,4)}, v{MQ}"], [f"v_and_b32 v{IXE}, 0x7ffff, v{IXE}"] if b == EB else []])
    seq.append([m32(Gn, TF+4, SEL+4, Gn), [f"ds_read_b128 {vr(T0+4,4)}, v{MQ+1}"], [f"v_xor_b32 v{vEA}, v{vEA}, v{vMT}"] if b == 3 else []])
    seq.append([m32(Gn, EF, WC, Gn), [f"ds_read_b128 {vr(EF,4)}, v{vEA} offset:{(b+1)%4*1024}", f"ds_read_u16 v{MQ}, v{vMA} offset:{b*8}",
                f"ds_read_u16 v{MQ+1}, v{vMA} offset:{b*8+2}"], []])
    seq.append([m32(Vn, TF+8, SEL, None), [f"ds_read_b32 v{IXE}, v{vL2}"] if b == (EB - 1) % 4 else [], []])
    seq.append([m32(Vn, TF+12, SEL+4, Vn), ["s_waitcnt lgkmcnt(S)"], []])
    seq.append([m32(Gn, SF, af, Gn), [f"s_waitcnt vmcnt({vmw})"], []])
    seq.append([m32(Gn, SF+4, af+4, Gn), [f"ds_read_b128 {vr(TF+4*j,4)}, v{vTA} offset:{(1-p)*SLOT+16*j}" for j in range(4)],
                [f"v_add_u32 v{r}, 0x200, v{r}" for r in (vSA, vL1, vL2)] + [f"v_add_u32 v{vMA}, 32, v{vMA}"] if b == 3 else []])
    dp = [int(c) for c in OPT.get('dp', '03589')]
    for i in range(4): seq[dp[i]][1] = seq[dp[i]][1] + dma(i)
    if b == EB: seq[dp[4]][1] = seq[dp[4]][1] + [f"s_mov_b32 m0, s{sME}", None, lde(), f"s_xor_b32 s{sME}, s{sME}, s{sMET}"]
    A = [] if peel else vstream(Gc, Vc)
    wt = [float(x) for x in OPT.get('wt', '1,1,1,1,1,1,1,1,1,1,1.6').split(',')]
    tot = sum(c for _, c in A); out = list(top); ai = 0; acc = 0; budget = 0
    for i, (m, ex, xv) in enumerate(seq):
        budget += tot * wt[i] / sum(wt)
        g = []
        while ai < len(A) and acc + A[ai][1] / 2 <= budget + 0.01:
            g.append(A[ai][0]); acc += A[ai][1]; ai += 1
        if i == 3 and not peel: HEAD[b] = ai
        if not (peel and i < 4): out.append(m)
        g = xv + g
        last = [x for x in ex if x and (x.startswith("s_waitcnt") or x.startswith("s_cbranch") or x.endswith(":") or x.startswith("s_sub"))]
        ex = [x for x in ex if x not in last]
        if peel: last = [x for x in last if x.startswith("s_waitcnt")]
        first = True
        for x in ex:
            if x is None:
                continue
            if not first and g: out.append(g.pop(0))
            elif not first and peel and x.startswith("buffer"): out.append("s_nop 0")
            out.append(x); first = False
        out += g + last
    assert ai == len(A)
    i0 = max(i for i, x in enumerate(out) if x.startswith(f"ds_read_b128 {vr(SF+4,4)}")); i1 = out.index("s_waitcnt lgkmcnt(S)")
    out[i1] = f"s_waitcnt lgkmcnt({sum(1 for x in out[i0+1:i1] if x.startswith('ds_'))})"
    for i, x in enumerate(out):
        if x.startswith("buffer_load"): assert not out[i-1].split()[1].startswith("m0"), (out[i-1], x)
    if OPT.get('fakec'):
        n2 = []
        for x in out:
            if x.startswith("v_mfma") and (f", {vr(SEL,4)}," in x or f", {vr(SEL+4,4)}," in x):
                j = (int(re.findall(r"v\[(\d+):", x)[1]) - TF)
                n2 += [f"v_lshlrev_b32 v{Vn+j+k}, 16, v{TF+j+k}" for k in range(4)]
            elif x == m32(Gn, EF, WC, Gn): n2.append(m32(Gn, EF, WC, TF))
            elif x.startswith("ds_read_b128") and f"v{vTA} " in x:
                j = int(re.findall(r"v\[(\d+):", x)[0]) - TF
                n2 += [f"ds_read2st64_b32 {vr(TF+j+2*k,2)}, v{vTC} offset0:{(1-p)*65+j+2*k} offset1:{(1-p)*65+j+2*k+1}" for k in range(2)]
            else: n2.append(x)
        out = n2
    if OPT.get('notrans'): out = [x.replace("v_exp_f32", "v_mov_b32").replace("v_rcp_f32", "v_mov_b32") for x in out]
    if OPT.get('noval'): out = ["s_nop 0" if (x.startswith("v_exp") or x.startswith("v_rcp")) else x for x in out if not (x.startswith("v_add_f32") or x.startswith("v_mul_f32") or x.startswith("v_cvt"))]
    if OPT.get('skel'):
        n2 = []
        for x in out:
            if x.startswith(("v_mfma", "v_exp", "v_rcp", "v_add_f32", "v_mul_f32", "v_cvt", "ds_read_b128")): continue
            if x.startswith("buffer_load"): n2.append("s_nop 0")
            if OPT['skel'] != '1' and x.startswith("s_waitcnt vmcnt") and "lgkm" not in x: x = f"s_waitcnt vmcnt({OPT['skel']})"
            if OPT['skel'] != '1' and x.startswith("s_waitcnt vmcnt(8) lgkm"): x = f"s_waitcnt vmcnt({max(8, int(OPT['skel']))}) lgkmcnt(0)"
            n2.append(x)
        out = n2
    if OPT.get('nodma'): out = [x for x in out if 'buffer_load' not in x]
    if OPT.get('noe'): out = [x for x in out if f"s[{sE}:{sE+3}]" not in x]
    return out

def emit(lst):
    for it in lst:
        if it.endswith(':'): lab(it[:-1])
        else: o(it)

def masks(tmp):
    a, b_, c = tmp
    o(f"v_and_b32 v{a}, {LPS-1}, v0"); o(f"v_lshlrev_b32 v{a}, 1, v{a}"); o(f"v_mov_b32 v{c}, 0")
    for i in range(4):
        o(f"v_lshrrev_b32 v{b_}, 19, v{SEG+i}"); o(f"v_max_u32 v{c}, v{c}, v{b_}")
        o(f"v_min_u32 v{b_}, s{sLIM}, v{b_}"); o(f"v_sub_u32 v{b_}, v{b_}, v{a}")
        for j, k in ((0, 2*i), (1, 2*i+1), (2*LPS, 8+2*i), (2*LPS+1, 9+2*i)): o(f"v_cmp_lt_i32 s[{sK+2*k}:{sK+2*k+1}], {j}, v{b_}")
    o(f"v_cmp_lt_u32 vcc, s{sLIM}, v{c}")
    o(f"s_or_b64 s[{sSV}:{sSV+1}], s[{sK+16}:{sK+17}], s[{sK+20}:{sK+21}]"); o(f"s_or_b64 s[{sHM}:{sHM+1}], s[{sK+24}:{sK+25}], s[{sK+28}:{sK+29}]")
    o(f"s_or_b64 s[{sSV}:{sSV+1}], s[{sSV}:{sSV+1}], s[{sHM}:{sHM+1}]")
    o(f"v_mov_b32 v{b_}, {CNT-4}"); addg(b_)
    o("s_mov_b64 exec, vcc"); o(f"ds_write_b32 v{b_}, v{b_}"); o("s_mov_b64 exec, -1")

def interleave(mf, other, per):
    other = list(other)
    for m in mf:
        o(m)
        for _ in range(per):
            if other: o(other.pop(0))
    for x in other: o(x)
def capture(fn):
    n = len(L); fn(); r = [x.strip() for x in L[n:]]; del L[n:]; return r
def wload(dst, off):
    r = []
    for s in range(8):
        if s % 4 == 0: r.append(f"s_add_u32 s{sT0}, s{sWF}, {off + s*1024:#x}")
        r.append(f"buffer_load_dwordx4 {vr(dst+4*s,4)}, v{vWF}, s[{sW}:{sW+3}], s{sT0} offen offset:{(s%4)*1024}")
    return r
def xblk(base, pair):
    o(f"v_mov_b32 v{pair+1}, v{vXO}")
    for mt in range(2):
        for a in range(2):
            o(f"s_add_u32 m0, s{base}, {(2*mt+a)*1040}")
            o(f"v_cmp_gt_u32 vcc, {(NA if mt == 0 else RN-NA) - 2*a}, v{vXI}")
            o(f"s_add_u32 s{sT0}, s{sBASE}, {NA*mt + 2*a}"); o(f"v_add_u32 v{pair}, s{sT0}, v{vXI}")
            o(f"v_cndmask_b32 v{pair}, v{PT+3}, v{pair}, vcc")
            o(f"buffer_load_dwordx4 {vr(pair,2)}, s[{sX}:{sX+3}], 0 idxen offen lds")

def lutw(d, j, tmp):
    o(f"v_lshlrev_b32 v{d}, v{j}, 16")
    if LW[4] != 16:
        corr = sum((LW[k] - (1 << k)) << (8 * (k - 4)) for k in range(4, 8))
        o(f"v_lshlrev_b32 v{tmp}, 3, v{j}"); o(f"v_add_u32 v{tmp}, -32, v{tmp}"); o(f"s_mov_b32 s{sT1}, {corr:#x}")
        o(f"v_cmp_lt_u32 vcc, 3, v{j}"); o(f"v_bfe_u32 v{tmp}, s{sT1}, v{tmp}, 8"); o("s_nop 0")
        o(f"v_cndmask_b32 v{tmp}, 0, v{tmp}, vcc"); o(f"v_lshl_add_u32 v{d}, v{tmp}, 4, v{d}")

def gen_k2():
    L.append(".globl gmain_kernel"); L.append(".p2align 8"); L.append(".type gmain_kernel,@function")
    lab("gmain_kernel"); VST[0] = 255
    t = [TF + i for i in range(28)]
    stamp(0)
    o("s_load_dwordx2 s[50:51], s[0:1], 88")
    o("s_load_dwordx4 s[4:7], s[0:1], 0")
    o("s_load_dwordx2 s[48:49], s[0:1], 72")
    o("s_setprio 3")
    o(f"v_lshrrev_b32 v{t[0]}, 6, v0")
    o("s_and_b32 s3, s2, 7"); o("s_lshl_b32 s3, s3, 6"); o(f"s_bfe_u32 s{sT0}, s2, 0x50003"); o(f"s_lshl1_add_u32 s3, s{sT0}, s3")
    o(f"v_readfirstlane_b32 s{sWAVE}, v{t[0]}")
    if G8:
        o("v_and_b32 v0, 0xff, v0"); o(f"s_lshr_b32 s{sT0}, s{sWAVE}, 2"); o(f"s_and_b32 s{sWAVE}, s{sWAVE}, 3"); o(f"s_mul_i32 s{sG}, s{sT0}, {GS}")
    else: o(f"s_lshr_b32 s{sT0}, s2, 8")
    o(f"s_add_u32 s3, s3, s{sT0}")
    o(f"s_cmp_ge_u32 s2, {256 if G8 else 512}"); o("s_cbranch_scc1 K2_END")
    o(f"s_cmp_ge_u32 s3, {NR}"); o("s_cbranch_scc1 K2_END")
    o(f"v_lshrrev_b32 v{t[1]}, {LG}, v0")
    o(f"s_lshl_b32 s88, s3, 2")
    o(f"v_mul_u32_u24 v{t[1]}, {CB}, v{t[1]}"); o(f"v_add_u32 v{t[1]}, s88, v{t[1]}")
    for i in range(1, 4): o(f"v_add_u32 v{t[1+i]}, {16*i*CB:#x}, v{t[1]}")
    o(f"s_mul_i32 s{sBASE}, s3, {RN}")
    o(f"v_and_b32 v{vWF}, 63, v0"); o(f"v_lshlrev_b32 v{vWF}, 4, v{vWF}")
    o(f"s_mul_i32 s{sMR}, s{sWAVE}, {WS_}"); o(f"s_add_u32 s{sMR}, s{sMR}, {RING}"); saddg(sMR)
    o(f"s_lshl_b32 s{sWF}, s{sWAVE}, 13"); o(f"s_add_u32 s{sWF}, s{sWF}, {WS_WF:#x}")
    o(f"s_mov_b32 s40, {EPS:#x}"); o("s_mov_b32 s41, s40"); o(f"s_mov_b32 s{s80}, {NLOG2E:#x}")
    o(f"s_mov_b32 s{sFIRST}, 1"); o(f"s_mov_b32 s{sLIM}, {LIM}")
    o("s_cmp_ge_u32 s2, 256"); o(f"s_cselect_b32 s{sRS}, {OPT.get('bon', 0)}, 0")
    def lut():
        q = T0
        for d in range(4):
            o(f"v_bfe_u32 v{q+d}, v0, {2*d}, 2"); o(f"v_mul_u32_u24 v{q+d}, 0x8001, v{q+d}")
            o(f"v_and_b32 v{q+d}, 0x10001, v{q+d}"); o(f"v_mul_u32_u24 v{q+d}, 0x3f80, v{q+d}")
        o(f"v_lshlrev_b32 v{q+4}, 4, v0")
        if LW[4] != 16:
            for k in range(4, 8): o(f"v_bfe_u32 v{q+5}, v0, {k}, 1"); o(f"v_mul_u32_u24 v{q+5}, {16*(LW[k]-(1<<k))}, v{q+5}"); o(f"v_add_u32 v{q+4}, v{q+4}, v{q+5}")
        o(f"ds_write_b128 v{q+4}, {vr(q,4)} offset:{LUT}")
        o(f"v_bfe_u32 v{q}, v0, 1, 4"); o(f"v_bfe_u32 v{q+1}, v0, 5, 1"); o(f"v_lshl_add_u32 v{q+1}, v{q+1}, 3, 1"); o(f"v_sub_u32 v{q}, v{q}, v{q+1}")
        o(f"v_and_b32 v{q+1}, 1, v0"); o(f"v_lshlrev_b32 v{q+1}, 2, v{q+1}"); o(f"v_sub_u32 v{q}, v{q}, v{q+1}")
        o(f"v_cmp_gt_u32 vcc, 4, v{q}"); o(f"v_mov_b32 v{q+6}, 0x3f80"); o(f"v_mov_b32 v{q+7}, 0"); o(f"v_lshlrev_b32 v{q}, 4, v{q}")
        o(f"v_cndmask_b32 v{q+6}, 0, v{q+6}, vcc")
        o(f"v_lshlrev_b64 {vr(q+6,2)}, v{q}, {vr(q+6,2)}")
        o(f"v_lshrrev_b32 v{q}, 1, v{vWF}")
        o(f"ds_write_b64 v{q}, {vr(q+6,2)} offset:{IDT}")
    lut()
    for r in range(0, 32, 2): o(f"v_mov_b64 {vr(ACC+32+r,2)}, {'s[40:41]' if r < 16 else 0}")
    o("s_waitcnt lgkmcnt(0)"); xstamp("karg")
    srd(sW, 50, WS_SIZE)
    o(f"s_mov_b32 s{sW+2}, {NCH*CB:#x}")
    for i in range(4): o(f"buffer_load_dword v{SEG+i}, v{t[1+i]}, s[{sW}:{sW+3}], 0 offen")
    o(f"s_mov_b32 s{sW+2}, {WS_SIZE:#x}")
    srd(sX, 4, N, 256); srd(sE, 6, E, 32); srd(sO, 48, N, 256)
    o(f"s_add_u32 s50, s50, {WS_TAB:#x}"); o("s_addc_u32 s51, s51, 0")
    if SM: o(f"s_mul_i32 s{sT0}, s{sWAVE}, {SMS}"); o(f"s_add_u32 s50, s50, s{sT0}"); o("s_addc_u32 s51, s51, 0")
    srd(sT, 50, N, 128 if SM else 512)
    WAP = OPT.get('wap', 'p1'); XBP = OPT.get('xbp', 'p1'); ORD = ['start', 'rec', 'mask', 'p1', 'b1']
    def place(where):
        if where not in (WAP, XBP): return
        o(f"s_cmp_eq_u32 s{sFIRST}, 0"); o(f"s_cbranch_scc1 NOW_{where}")
        if XBP == where:
            o(f"s_add_u32 s{sNT}, s{sMR}, {NS*SLOT}")
            xblk(sNT, T0)
        if WAP == where:
            for x in wload(ACC, WF_A): o(x)
            o(f"s_lshl_b32 s{sT0}, s{sWAVE}, 10"); o(f"s_add_u32 s{sT0}, s{sT0}, {WS_WF+WF_C:#x}")
            o(f"buffer_load_dwordx4 {vr(WC,4)}, v{vWF}, s[{sW}:{sW+3}], s{sT0} offen")
        if OPT.get('otouch') and WAP == where:
            o(f"v_mov_b32 v{T0+6}, s{sBASE}"); o(f"buffer_load_dword v{SEL}, v{T0+6}, s[{sO}:{sO+3}], 0 idxen")
        lab(f"NOW_{where}")
    def cnt(lo, hi): return sum(n for p, n in ((WAP, 9), (XBP, 4)) if lo <= ORD.index(p) <= hi)
    SP = [int(x) for x in OPT.get('spf', '0,0').split(',')]
    def spref(n, first):
        for k in range(n): o(f"s_load_dword s{88 + k % 4}, s[46:47], {(first + k) * 32768:#x}")
    if sum(SP):
        o(f"s_and_b32 s{sT0}, s3, 63"); o(f"s_lshl2_add_u32 s{sT0}, s{sT0}, s{sWAVE}"); o(f"s_lshl_b32 s{sT0}, s{sT0}, 7")
        o(f"s_add_u32 s46, s50, s{sT0}"); o("s_addc_u32 s47, s51, 0")
        spref(SP[0], 0)
    lab("ROUND")
    b0, b2, b3, b4, vh = t[16:21]
    o(f"v_lshlrev_b32 v{t[11]}, 4, v0"); addg(t[11])
    for d in range(4): o(f"v_mov_b32 v{t[0]+d}, 0")
    for off in (0, ZSZ - 4096): o(f"ds_write_b128 v{t[11]}, {vr(t[0],4)} offset:{MB+off}")
    pad0 = 0xffff | (NA << 16)
    o(f"v_mov_b32 v{t[4]}, {pad0:#x}"); o(f"v_mov_b32 v{t[5]}, 0x7ffff"); o(f"v_mov_b32 v{t[6]}, {pad0:#x}"); o(f"v_mov_b32 v{t[7]}, 0x7ffff")
    o(f"ds_write_b128 v{t[11]}, {vr(t[4],4)} offset:{LIST}"); o(f"ds_write_b128 v{t[11]}, {vr(t[4],4)} offset:{LIST+4096}")
    o(f"v_and_b32 v{b0}, 1, v0"); o(f"v_bfe_u32 v{b2}, v0, 2, 1"); o(f"v_bfe_u32 v{b3}, v0, 3, 1"); o(f"v_bfe_u32 v{b4}, v0, 4, 1"); o(f"v_bfe_u32 v{vh}, v0, 5, 1")
    o(f"v_and_b32 v{t[8]}, {LPS-1}, v0"); o(f"v_lshlrev_b32 v{t[8]}, 1, v{t[8]}")
    o(f"v_mov_b32 v{t[9]}, 0x7ffffff0"); o(f"s_mov_b32 s{sT1}, 0x7ffff")
    o(f"v_and_b32 v{t[12]}, 15, v0"); o(f"v_lshlrev_b32 v{t[13]}, 3, v{b4}")
    o(f"v_xor_b32 v{vXO}, v{t[12]}, v{t[13]}"); o(f"v_lshlrev_b32 v{vXO}, 4, v{vXO}")
    o(f"s_lshr_b32 s{sT0}, s{sWAVE}, 1"); o(f"s_lshl_b32 s{sT0}, s{sT0}, 4"); o(f"s_and_b32 s{sS0}, s{sWAVE}, 1"); o(f"s_lshl2_add_u32 s{sT0}, s{sS0}, s{sT0}")
    o(f"v_lshl_add_u32 v{vXI}, v{vh}, 3, v{b4}"); o(f"v_add_u32 v{vXI}, s{sT0}, v{vXI}")
    o(f"v_mov_b32 v{PT+3}, 0xffff")
    place('start')
    xstamp("consts_done")
    o(f"s_waitcnt vmcnt({cnt(0, 0)})"); stamp(1)
    for i in range(4):
        o(f"v_lshrrev_b32 v{t[4+i]}, 19, v{SEG+i}"); o(f"v_cmp_lt_u32 vcc, v{t[8]}, v{t[4+i]}")
        o(f"v_and_b32 v{t[i]}, s{sT1}, v{SEG+i}"); o(f"v_add_lshl_u32 v{t[i]}, v{t[i]}, v{t[8]}, 3")
        o(f"v_cndmask_b32 v{t[10]}, v{t[9]}, v{t[i]}, vcc")
        o(f"buffer_load_dwordx4 {vr(REC+4*i,4)}, v{t[10]}, s[{sW}:{sW+3}], 0 offen")
    o(f"v_max3_u32 v{t[10]}, v{t[4]}, v{t[5]}, v{t[6]}"); o(f"v_max_u32 v{t[10]}, v{t[10]}, v{t[7]}")
    o(f"v_cmp_lt_u32 vcc, {2*LPS}, v{t[10]}"); o("s_cbranch_vccz REC_DONE")
    for i in range(4): o(f"buffer_load_dwordx4 {vr(REC+16+4*i,4)}, v{t[i]}, s[{sW}:{sW+3}], 0 offen offset:{16*LPS}")
    lab("REC_DONE")
    xstamp("rec_issued")
    PF = int(OPT.get('pf', 0))
    def pref():
        o(f"s_lshr_b32 s{sT0}, s3, 6"); o(f"s_mul_i32 s{sT0}, s{sT0}, {64*RN}"); o(f"s_and_b32 s{sT1}, s3, 63"); o(f"s_lshl_b32 s{sT1}, s{sT1}, 6"); o(f"s_add_u32 s{sT0}, s{sT0}, s{sT1}")
        o(f"v_lshrrev_b32 v{T0+2}, 2, v0"); o(f"v_add_u32 v{T0+2}, s{sT0}, v{T0+2}"); o(f"v_and_b32 v{T0+1}, 3, v0"); o(f"v_lshlrev_b32 v{T0+1}, 7, v{T0+1}")
        for k in range(PF):
            o(f"v_add_u32 v{T0+3}, {-512*RN}, v{T0+2}"); o(f"v_min_u32 v{T0}, v{T0+2}, v{T0+3}")
            o(f"buffer_load_dword v{SEL}, {vr(T0,2)}, s[{sT}:{sT+3}], 0 idxen offen")
            if k + 1 < PF: o(f"v_add_u32 v{T0+2}, 4096, v{T0+2}")
    PFW = OPT.get('pfw', 'rec')
    place('rec')
    if PF and PFW == 'rec': pref()
    o("s_waitcnt lgkmcnt(0)"); o("s_barrier"); stamp(2)
    spref(SP[1], SP[0])
    pp = t[14]
    o(f"v_and_b32 v{pp}, 0x13, v0"); o(f"v_lshl_or_b32 v{pp}, v{b2}, 3, v{pp}"); o(f"v_lshl_or_b32 v{pp}, v{b3}, 2, v{pp}")
    o(f"v_lshrrev_b32 v{t[12]}, 3, v{pp}"); o(f"v_lshlrev_b32 v{vTA}, 7, v{pp}"); o(f"v_lshl_add_u32 v{vTA}, v{t[12]}, 4, v{vTA}")
    o(f"v_bfe_u32 v{t[13]}, v0, 1, 1"); o(f"v_xor_b32 v{t[12]}, v{t[13]}, v{vh}"); o(f"v_lshl_add_u32 v{vTA}, v{t[12]}, 6, v{vTA}"); o(f"v_add_u32 v{vTA}, s{sMR}, v{vTA}")
    o(f"v_and_b32 v{t[12]}, 7, v0"); o(f"v_lshlrev_b32 v{t[15]}, 2, v{b4}"); o(f"v_xor_b32 v{t[15]}, v{t[15]}, v{t[12]}")
    o(f"s_mov_b32 s{sT0}, 0" if SM else f"s_lshl_b32 s{sT0}, s{sWAVE}, 7"); o(f"v_lshl_add_u32 v{IX[0]+1}, v{t[15]}, 4, s{sT0}")
    for i in range(1, 4): o(f"v_mov_b32 v{IX[i]+1}, v{IX[0]+1}")
    o(f"v_and_b32 v{vL1}, 0x38, v0"); o(f"v_add_u32 v{vL1}, {LIST}, v{vL1}"); addg(vL1)
    o(f"v_lshl_or_b32 v{t[15]}, v{b4}, 1, v{b2}"); o(f"v_mul_u32_u24 v{t[15]}, {WS_}, v{t[15]}"); o(f"v_mul_u32_u24 v{t[13]}, 1040, v{t[13]}")
    o(f"v_lshl_or_b32 v{t[21]}, v{b3}, 1, v{b0}"); o(f"v_lshl_add_u32 v{t[15]}, v{t[21]}, 8, v{t[15]}"); o(f"v_add3_u32 v{t[15]}, v{t[15]}, v{t[13]}, {'s%d' % sG if G8 else 0}")
    o(f"v_add_u32 v{t[15]}, {RING + NS*SLOT}, v{t[15]}")
    o(f"v_xor_b32 v{t[13]}, v{vh}, v{b0}"); o(f"v_lshl_add_u32 v{vXA}, v{t[13]}, 7, v{t[15]}")
    o(f"v_lshlrev_b32 v{IXE+1}, 4, v{t[13]}")
    o(f"v_bfe_u32 v{t[13]}, v0, 7, 1"); o(f"v_xor_b32 v{t[13]}, v{t[13]}, v{b0}"); o(f"v_lshl_add_u32 v{vXR}, v{t[13]}, 7, v{t[15]}")
    o(f"v_and_b32 v{t[13]}, 0x60, v0"); o(f"v_add_u32 v{vXR}, v{vXR}, v{t[13]}")
    o(f"s_lshl_b32 s{sT0}, s{sS0}, 12"); o(f"s_lshr_b32 s{sT1}, s{sWAVE}, 1"); o(f"s_lshl_b32 s{sT1}, s{sT1}, 8"); o(f"s_add_u32 s{sT0}, s{sT0}, s{sT1}"); o(f"s_add_u32 s{sT0}, s{sT0}, {LIST+4}"); saddg(sT0)
    o(f"v_bfe_u32 v{vL2}, v0, 1, 5"); o(f"v_lshl_add_u32 v{vL2}, v{vL2}, 3, s{sT0}")
    o(f"s_lshl_b32 s{sME}, s{sWAVE}, 10"); o(f"s_add_u32 s{sME}, s{sME}, {ER}"); saddg(sME)
    o(f"v_lshl_add_u32 v{vSA}, v{pp}, 3, v{vh}"); o(f"v_add_u32 v{vSA}, {LIST+2}, v{vSA}"); addg(vSA)
    o(f"v_xor_b32 v{vEA}, v{b4}, v{vh}"); o(f"v_lshlrev_b32 v{vEA}, 4, v{vEA}")
    o(f"v_lshl_add_u32 v{vEA}, v{pp}, 5, v{vEA}"); o(f"v_add_u32 v{vEA}, {ER}, v{vEA}"); addg(vEA)
    o(f"v_add_u32 v{vMT}, 4096, v{vEA}"); o(f"v_xor_b32 v{vMT}, v{vMT}, v{vEA}")
    o(f"v_and_b32 v{t[13]}, 31, v0"); o(f"v_min_u32 v{t[13]}, {NA}, v{t[13]}")
    o(f"v_mul_u32_u24 v{vMA}, {ROW}, v{t[13]}"); o(f"v_lshl_add_u32 v{vMA}, v{vh}, 2, v{vMA}"); o(f"v_add_u32 v{vMA}, {MB}, v{vMA}"); addg(vMA)
    o(f"v_lshrrev_b32 v{PT+2}, 5, v0"); o(f"v_lshlrev_b32 v{PT+2}, 4, v{PT+2}"); o(f"v_lshl_add_u32 v{PT+2}, v{b3}, 2, v{PT+2}"); addg(PT+2)
    lutw(PT+1, t[12], t[13]); o(f"v_lshlrev_b32 v{t[13]}, 4, v{b4}"); o(f"v_lshlrev_b32 v{PT+1}, v{t[13]}, v{PT+1}")
    o(f"v_and_b32 v{t[12]}, 3, v0"); o(f"v_lshl_add_u32 v{t[15]}, v{b4}, 2, v{t[12]}"); lutw(t[12], t[15], t[13])
    o(f"v_cmp_eq_u32 vcc, v{b3}, v{vh}"); o(f"v_lshlrev_b32 v{t[13]}, 4, v{b2}"); o("s_nop 0")
    o(f"v_cndmask_b32 v{t[12]}, 0, v{t[12]}, vcc"); o(f"v_lshlrev_b32 v{PT}, v{t[13]}, v{t[12]}")
    place('mask')
    if cnt(1, 2):
        o(f"s_cmp_eq_u32 s{sFIRST}, 1"); o("s_cbranch_scc1 REMASK"); o("s_waitcnt vmcnt(0)")
    lab("REMASK")
    masks((t[0], t[1], t[2])); xstamp("masks_done")
    a, b_, c, d_ = t[0:4]; ad = [AD + k for k in range(16)]
    o(f"v_mov_b32 v{a}, 8")
    o(f"v_lshrrev_b32 v{b_}, 2, v{vWF}"); addg(b_)
    if G8: o(f"s_lshr_b32 s{sDS}, s{sG}, 8")
    if PF and PFW == 'mask': pref()
    o(f"s_waitcnt vmcnt({cnt(1, 2)})"); xstamp("rec_landed")
    for half in range(2):
        if half: o(f"s_cmp_eq_u64 s[{sSV}:{sSV+1}], 0"); o("s_cbranch_scc1 P1_DONE"); o("s_mov_b64 exec, -1")
        for k in range(8*half, 8*half+8): o(f"v_alignbit_b32 v{ad[k]}, s{sDS}, v{REC+2*k+1}, 24" if G8 else f"v_lshrrev_b32 v{ad[k]}, 24, v{REC+2*k+1}")
        for k in range(8*half, 8*half+8):
            o(f"s_mov_b64 exec, s[{sK+2*k}:{sK+2*k+1}]")
            o(f"ds_add_rtn_u32 v{RANK+k}, v{ad[k]}, v{a} offset:{CNT}")
    lab("P1_DONE")
    o("s_mov_b64 exec, -1")
    EP = OPT.get('ep', '')
    def epf():
        o(f"s_mov_b32 s{sT1}, {int(OPT.get('epm', '0x7007ffff'), 0):#x}")
        for k in range(8):
            o(f"v_and_b32 v{T0+k}, s{sT1}, v{REC+2*k+1}"); o(f"buffer_load_dword v{SEL}, v{T0+k}, s[{sE}:{sE+3}], 0 idxen")
    if EP == 'a': epf()
    place('p1')
    if EP == 'b': epf()
    if PF and PFW == 'p1': pref()
    o("s_waitcnt lgkmcnt(0)"); xstamp("p1_done"); o("s_barrier"); xstamp("b1")
    o(f"ds_read_b32 v{c}, v{b_} offset:{CNT}")
    o(f"ds_read_b32 v{t[4]}, v{b_} offset:{CNT-4}")
    place('b1')
    o(f"v_lshlrev_b32 v{t[5]}, 12, v{vh}"); addg(t[5])
    o("s_waitcnt lgkmcnt(1)")
    o(f"v_sub_u32 v{d_}, v{t[5]}, v{c}")
    for dd in ("row_shr:1", "row_shr:2", "row_shr:4", "row_shr:8"):
        o(f"v_add_u32_dpp v{c}, v{c}, v{c} {dd} row_mask:0xf bank_mask:0xf bound_ctrl:0"); o("s_nop 1")
    o(f"v_add_u32_dpp v{c}, v{c}, v{c} row_bcast:15 row_mask:0xa bank_mask:0xf")
    o(f"v_add_u32 v{d_}, v{c}, v{d_}")
    o(f"v_readlane_b32 s4, v{c}, 31"); o(f"v_readlane_b32 s5, v{c}, 63")
    o(f"s_add_u32 s{sNT}, s4, 255"); o(f"s_lshr_b32 s{sNT}, s{sNT}, 8"); o(f"s_lshl1_add_u32 s{sNT}, s{sNT}, -1")
    o(f"s_add_u32 s{sCNT}, s5, 255"); o(f"s_lshr_b32 s{sCNT}, s{sCNT}, 8"); o(f"s_lshl_b32 s{sCNT}, s{sCNT}, 1")
    o(f"s_max_i32 s{sNT}, s{sNT}, s{sCNT}"); o(f"s_max_i32 s{sNT}, s{sNT}, 2")
    if int(OPT.get('front', 1)):
        o(f"s_add_u32 s6, s{sNT}, 1"); o("s_lshr_b32 s6, s6, 1"); o("s_lshl_b32 s6, s6, 8"); o("s_sub_u32 s6, s6, s4")
        o(f"s_lshr_b32 s7, s{sNT}, 1"); o("s_lshl_b32 s7, s7, 8"); o("s_sub_u32 s7, s7, s5"); o("s_sub_u32 s7, s7, s6")
        o(f"v_mad_i32_i24 v{d_}, v{vh}, s7, v{d_}"); o(f"v_add_u32 v{d_}, s6, v{d_}")
    o(f"ds_write_b32 v{b_}, v{d_} offset:{NB}")
    for k in range(8): o(f"ds_read_b32 v{ad[k]}, v{ad[k]} offset:{NB}")
    o(f"s_cmp_le_u32 s{sNT}, 32"); o("s_cbranch_scc0 TOOBIG")
    xstamp("scan_done")
    for half in range(2):
        if half:
            o(f"s_cmp_eq_u64 s[{sSV}:{sSV+1}], 0"); o("s_cbranch_scc1 P2_DONE"); o("s_mov_b64 exec, -1")
            for k in range(8, 16): o(f"ds_read_b32 v{ad[k]}, v{ad[k]} offset:{NB}")
        for k in range(8*half, 8*half+8):
            if k % 4 == 0: o(f"s_waitcnt lgkmcnt({4 - k % 8})")
            o(f"v_add_u32 v{RANK+k}, v{RANK+k}, v{ad[k]}")
        for k in range(8*half, 8*half+8):
            o(f"s_mov_b64 exec, s[{sK+2*k}:{sK+2*k+1}]")
            o(f"ds_write_b64 v{RANK+k}, {vr(REC+2*k,2)} offset:{LIST}")
    lab("P2_DONE")
    o("s_mov_b64 exec, -1")
    o(f"v_readlane_b32 s{sMORE}, v{t[4]}, 0")
    o(f"s_mov_b32 m0, s{sME}")
    o(f"s_waitcnt vmcnt({9 + (8 if EP == 'b' else 0) if ORD.index(WAP) >= ORD.index(XBP) else 0}) lgkmcnt(0)"); xstamp("p2_done"); o("s_barrier"); stamp(5)
    f = t
    def rdidx(u):
        for i in range(4): o(f"ds_read_u16 v{IX[i]}, v{vL1} offset:{loff(u)+64*i}")
    def fill(u, nxt):
        for i in range(4):
            o(f"s_add_u32 m0, s{sMR}, {u*SLOT + i*1040}"); o(f"s_waitcnt lgkmcnt(3)"); o(ldt(i))
            o(f"ds_read_u16 v{IX[i]}, v{vL1} offset:{loff(nxt)+64*i}")
    o(f"ds_read_b32 v{IXE}, v{vL2}"); rdidx(0)
    o(f"v_lshlrev_b32 v{f[9]}, 3, v0"); addg(f[9])
    o("s_waitcnt lgkmcnt(4)")
    o(f"v_and_b32 v{IXE}, 0x7ffff, v{IXE}"); o(lde())
    NFO = int(OPT.get('nfo', 2)); NFY = int(OPT.get('nfy', 2))
    def fills(lo_o, hi_o, lo_y, hi_y, tag, wait):
        if (lo_o, hi_o) == (lo_y, hi_y):
            for u in range(lo_o, hi_o): fill(u, u + 1)
            return
        o("s_cmp_ge_u32 s2, 256"); o(f"s_cbranch_scc1 {tag}_Y")
        for u in range(lo_o, hi_o): fill(u, u + 1)
        if wait: o(f"s_waitcnt vmcnt({2+4*hi_o})")
        o(f"s_branch {tag}_D")
        lab(f"{tag}_Y")
        for u in range(lo_y, hi_y): fill(u, u + 1)
        if wait: o(f"s_waitcnt vmcnt({2+4*hi_y})")
        lab(f"{tag}_D")
    fills(0, NFO, 0, NFY, "FA", True)
    for k in range(4): o(f"ds_read_u8 v{f[12+k]}, v{f[9]} offset:{LIST+2+k*2048}")
    o(f"ds_read_b32 v{IXE}, v{vL2} offset:512")
    xstamp("fill_issued")
    def ctrl():
        o(f"s_movk_i32 s{sS0}, {ROW}")
        for k in range(4):
            o(f"v_cmp_gt_u32 vcc, {NA}, v{f[12+k]}"); o(f"v_mad_u32_u24 v{f[0]}, v{f[12+k]}, s{sS0}, v{PT+2}")
            o(f"v_lshrrev_b32 v{f[2]}, 1, v{f[12+k]}"); o(f"v_bfi_b32 v{f[2]}, 3, v{f[12+k]}, v{f[2]}"); o(f"v_lshl_add_u32 v{f[2]}, v{f[2]}, 4, 16")
            o(f"v_and_b32 v{f[3]}, 4, v{f[12+k]}"); o(f"v_lshlrev_b32 v{f[3]}, 1, v{f[3]}"); o(f"v_lshlrev_b32 v{f[2]}, v{f[3]}, v{f[2]}")
            o(f"v_cndmask_b32 v{f[2]}, 0, v{f[2]}, vcc"); o(f"ds_write_b16 v{f[9]}, v{f[2]} offset:{LIST+2+k*2048}")
            o(f"v_cndmask_b32 v{f[1]}, 0, v{PT+1}, vcc")
            o(f"ds_add_u32 v{f[0]}, v{f[1]} offset:{MB + (k&1)*128 + (k>>1)*8}")
        o(f"s_sub_u32 s{sCNT}, s{sNT}, 2")
        o(f"s_add_u32 s{sMET}, s{sME}, 4096"); o(f"s_xor_b32 s{sMET}, s{sMET}, s{sME}"); o(f"s_add_u32 s{sME}, s{sME}, 4096")
        o(f"v_add_u32 v{vL2}, {0x200 if EB else 0x400}, v{vL2}")
    o(f"s_cmp_eq_u32 s{sFIRST}, 1"); o("s_cbranch_scc1 G1")
    o("s_waitcnt lgkmcnt(0)")
    ctrl()
    o("s_branch G1D")
    lab("G1")
    for mt in range(2):
        for s in range(8): o(f"ds_read_b128 {vr(GV+32*mt+4*s,4)}, v{vXA} offset:{mt*2080 + 16*s}")
        if mt == 0: o("s_waitcnt lgkmcnt(8)")
    ct = capture(ctrl)
    o(f"s_waitcnt vmcnt({4*max(NFO, NFY)+2}) lgkmcnt(8)")
    acc = [XT, GV]
    interleave([m32(acc[0], GV+4*s, ACC+4*s, None if s == 0 else acc[0]) for s in range(8)], ct[:40], 5)
    o(f"s_waitcnt lgkmcnt({sum(1 for x in ct[:40] if x.startswith('ds_'))})")
    def cv(mt): return [f"v_mul_f32 v{acc[mt]+r}, s{s80}, v{acc[mt]+r}" for r in range(16)] + [f"v_cvt_pk_bf16_f32 v{AF+8*mt+r//2}, v{acc[mt]+r}, v{acc[mt]+r+1}" for r in range(0, 16, 2)]
    assert len(ct) >= 46
    interleave([m32(acc[1], GV+32+4*s, ACC+4*s, None if s == 0 else acc[1]) for s in range(8)], ct[40:] + cv(0), 5)
    for r in range(0, 32, 2): o(f"v_mov_b64 {vr(ACC+r,2)}, {'s[40:41]' if r < 16 else 0}")
    for x in cv(1): o(x)
    if STAMP:
        o("s_getreg_b32 s94, hwreg(HW_REG_HW_ID)"); o("s_getreg_b32 s100, hwreg(HW_REG_XCC_ID)"); o("s_and_b32 s94, s94, 0xffff"); o("s_lshl_b32 s100, s100, 16"); o("s_or_b32 s94, s94, s100"); o(f"v_writelane_b32 v{VST[0]}, s94, 3")
    lab("G1D")
    o(f"v_and_b32 v{MQ}, 0xffff, v{PT}"); o(f"v_lshrrev_b32 v{MQ+1}, 16, v{PT}")
    xstamp("g1_done"); stamp(4)
    fills(NFO, NS, NFY, NS, "FB", False)
    o(f"s_waitcnt vmcnt({4*(NS-1)}) lgkmcnt(0)"); xstamp("t0_landed"); o("s_barrier")
    o(f"ds_read_b128 {vr(SEL,4)}, v{MQ}"); o(f"ds_read_b128 {vr(SEL+4,4)}, v{MQ+1}"); o(f"ds_read_u8 v{vSV}, v{vSA}")
    o(f"ds_read_b128 {vr(EF,4)}, v{vEA}")
    for j in range(4): o(f"ds_read_b128 {vr(TF+4*j,4)}, v{vTA} offset:{16*j}")
    o(f"s_setprio {OPT.get('lp', 2)}")
    if OPT.get('young'):
        o("s_cmp_lt_u32 s2, 256"); o("s_cbranch_scc1 OLD"); o(f"s_setprio {OPT['young']}"); lab("OLD")
    if OPT.get('fakec'): o(f"v_lshrrev_b32 v{vTC}, 2, v{vWF}"); o(f"v_add_u32 v{vTC}, s{sMR}, v{vTC}")
    stamp(6); stamp(8, "s_memtime")
    bodies = [body(b) for b in range(4)]
    if not OPT.get('skel') and not OPT.get('noval') and not OPT.get('fakec'): check_hazards(sum(bodies, []) + ["s_branch LOOP"])
    emit(body(0, peel=True))
    b1 = bodies[1][:bodies[1].index("ENT1:")]
    o("s_nop 7")
    emit([x for x in b1 if not x.startswith(("v_mfma", "s_sub", "s_cbranch"))])
    o("s_branch ENT1")
    lab("TOOBIG")
    o(f"s_mov_b32 s{sLIM}, {LOWLIM}"); o(f"v_mov_b32 v{a}, 0")
    o("s_waitcnt lgkmcnt(0)"); o("s_barrier")
    o(f"ds_write_b32 v{b_}, v{a} offset:{CNT}")
    o("s_waitcnt lgkmcnt(0)"); o("s_barrier")
    o("s_branch REMASK")
    lab("LOOP")
    emit(sum(bodies, []))
    if OPT.get('pp', '99,8,4') != '0' and not G8:
        th = [int(x) for x in OPT.get('pp', '99,8,4').split(',')]
        o(f"s_add_u32 s{sT0}, s{sCNT}, s{sRS}")
        for k, v in enumerate(th):
            if v < 99: o(f"s_cmp_lt_u32 s{sT0}, {v}"); o("s_cbranch_scc0 LOOP"); o(f"s_setprio {2-k}")
    o("s_branch LOOP")
    assert len(set(HEAD.values())) == 1
    WU = TF; x = AF
    def fin(p):
        d = ACC + 32 * p; r = []
        for k in range(16): r.append(f"v_rcp_f32 v{d+k}, v{d+k}")
        for k in range(16): r.append(f"v_mul_f32 v{d+16+k}, v{d+k}, v{d+16+k}")
        return r
    def unp(p): return sum(([f"v_lshlrev_b32 v{ACC+32*p+2*k}, 16, v{x+8*p+k}", f"v_and_b32 v{ACC+32*p+2*k+1}, s{sT1}, v{x+8*p+k}"] for k in range(8)), [])
    def post(p):
        r = []
        for k in range(8):
            z = ACC + 32*p + 16 + 2*k
            r += [f"v_max_f32 v{z}, 0, v{z}", f"v_max_f32 v{z+1}, 0, v{z+1}", f"v_add_f32 v{z}, v{z}, v{z-16}", f"v_add_f32 v{z+1}, v{z+1}, v{z-15}",
                  f"v_cvt_pk_bf16_f32 v{x+8*p+k}, v{z}, v{z+1}"]
        return r
    def st(p): return [f"s_mov_b64 exec, {((1 << (NA - p)) - 1):#x}", f"s_mov_b32 exec_hi, exec_lo"] + \
        [f"buffer_store_dwordx4 {vr(x+8*p+4*k,4)}, {vr(IX[p],2)}, s[{sO}:{sO+3}], 0 idxen offen offset:{16*k} {OPT.get('outpol', '').replace('+', ' ')}" for k in range(2)] + ["s_mov_b64 exec, -1"]
    assert RN - NA == NA - 1
    CO = int(OPT.get('co', 0))
    if CO == 2:
        pol_ = OPT.get('outpol', '').replace('+', ' ')
        def st(p):
            r = [f"ds_write_b128 v{IX[2]}, {vr(x+8*p+4*k,4)} offset:{p*SLOT + 16*k}" for k in range(2)]
            r += [f"ds_read_b128 {vr(x+8*p+4*k,4)}, v{IX[3]} offset:{p*SLOT + k*16*80}" for k in range(2)]
            r += ["s_waitcnt lgkmcnt(1)", f"buffer_store_dwordx4 {vr(x+8*p,4)}, {vr(IX[p],2)}, s[{sO}:{sO+3}], 0 idxen offen {pol_}",
                  f"v_add_u32 v{IX[p]}, 16, v{IX[p]}", f"s_mov_b32 exec_hi, {(1 << (4 * (NA - p - 24))) - 1}", "s_waitcnt lgkmcnt(0)",
                  f"buffer_store_dwordx4 {vr(x+8*p+4,4)}, {vr(IX[p],2)}, s[{sO}:{sO+3}], 0 idxen offen {pol_}", "s_mov_b64 exec, -1"]
            return r
    elif CO:
        def st(p): return [f"s_mov_b64 exec, {((1 << (NA - p)) - 1):#x}", f"s_mov_b32 exec_hi, exec_lo"] + \
            [f"ds_write_b128 v{IX[2]}, {vr(x+8*p+4*k,4)} offset:{RING + p*NA*272 + 16*k}" for k in range(2)] + ["s_mov_b64 exec, -1"]
    for p in (1, 0):
        q = 1 - p; Gc = GV + 32 * q
        lab(f"TAIL{p}")
        stamp(7); stamp(11, "s_memtime")
        if STAMP: o(f"v_writelane_b32 v{VST[0]}, s{sNT}, 12")
        o(f"ds_read_b128 {vr(T0,4)}, v{MQ}"); o(f"ds_read_b128 {vr(T0+4,4)}, v{MQ+1}")
        o(f"s_cmp_lg_u32 s{sMORE}, 0"); o(f"s_cbranch_scc1 TAILM{p}")
        o("s_waitcnt lgkmcnt(0)")
        for ins in wload(WU, WF_U): o(ins)
        for s in range(8): o(f"ds_read_b128 {vr(GV+32*p+4*s,4)}, v{vXA} offset:{p*2080+16*s}")
        for mt in range(2):
            for k in range(2): o(f"ds_read_b128 {vr(x+8*mt+4*k,4)}, v{vXR} offset:{mt*2080+16*k}")
        o(f"v_and_b32 v{IX[0]}, 31, v0"); o(f"v_and_b32 v{IX[0]+1}, 0xe0, v0"); o(f"v_add_u32 v{IX[0]}, s{sBASE}, v{IX[0]}")
        o(f"v_add_u32 v{IX[1]}, {NA}, v{IX[0]}"); o(f"v_mov_b32 v{IX[1]+1}, v{IX[0]+1}")
        if CO == 2:
            o(f"v_and_b32 v{IX[2]}, 31, v0"); o(f"v_mul_u32_u24 v{IX[2]}, 80, v{IX[2]}"); o(f"v_and_b32 v{IX[3]}, 32, v0"); o(f"v_add3_u32 v{IX[2]}, v{IX[2]}, v{IX[3]}, s{sMR}")
            o(f"v_bfe_u32 v{IX[0]}, v0, 2, 4"); o(f"v_and_b32 v{IX[1]}, 0x30, v{vWF}")
            o(f"v_mul_u32_u24 v{IX[3]}, 80, v{IX[0]}"); o(f"v_add3_u32 v{IX[3]}, v{IX[3]}, v{IX[1]}, s{sMR}")
            o(f"v_and_b32 v{IX[0]+1}, 0xc0, v0"); o(f"v_add_u32 v{IX[0]+1}, v{IX[0]+1}, v{IX[1]}"); o(f"v_mov_b32 v{IX[1]+1}, v{IX[0]+1}")
            o(f"v_add_u32 v{IX[0]}, s{sBASE}, v{IX[0]}"); o(f"v_add_u32 v{IX[1]}, {NA}, v{IX[0]}")
        elif CO:
            o(f"v_and_b32 v{IX[2]}, 31, v0"); o(f"v_mul_u32_u24 v{IX[2]}, 272, v{IX[2]}"); o(f"v_add_u32 v{IX[2]}, v{IX[2]}, v{IX[0]+1}")
            o(f"v_lshrrev_b32 v{IX[0]}, 4, v0"); o(f"v_and_b32 v{IX[0]+1}, 0xf0, v{vWF}")
            o(f"v_mul_u32_u24 v{IX[3]}, 272, v{IX[0]}"); o(f"v_add_u32 v{IX[3]}, v{IX[3]}, v{IX[0]+1}"); o(f"v_add_u32 v{IX[0]}, s{sBASE}, v{IX[0]}")
        o(f"s_mov_b32 s{sT1}, 0xffff0000")
        vs = [i for i, _ in vstream(Gc, Gc + 16)[HEAD[0]:]]
        for ins in vs: o(ins)
        o("s_nop 0")
        interleave(zphase(Gc, q), fin(p), 4)
        for s in range(8): o(f"ds_read_b128 {vr(Gc+4*s,4)}, v{vXA} offset:{q*2080+16*s}")
        o("s_waitcnt vmcnt(0) lgkmcnt(8)")
        interleave([m32(ACC+32*p+16, WU+4*s, GV+32*p+4*s, ACC+32*p+16) for s in range(8)], fin(q), 4)
        o("s_waitcnt lgkmcnt(0)"); o("s_barrier" if CO == 1 else "s_nop 0")
        interleave([m32(ACC+32*q+16, WU+4*s, Gc+4*s, ACC+32*q+16) for s in range(8)], unp(p) + post(p) + unp(q), 7)
        if CO == 2: seqs = st(p)[:4] + post(q)[:20] + st(p)[4:] + post(q)[20:] + st(q)
        else: seqs = st(p) + post(q) + st(q)
        for ins in seqs: o(ins)
        if p == 1: o("s_branch K2_FIN")
    lab("K2_FIN")
    if CO == 1:
        o("v_cmp_gt_u32 vcc, 16, v0")
        o("s_waitcnt lgkmcnt(0)"); o("s_barrier")
        for k in range(4): o(f"ds_read_b128 {vr(GV+4*k,4)}, v{IX[3]} offset:{RING + k*16*272}")
        for k in range(4):
            if k == 3: o(f"s_and_saveexec_b64 s[{sSV}:{sSV+1}], vcc"); o("s_cbranch_execz K2_OUT")
            o(f"s_waitcnt lgkmcnt({3-k})")
            o(f"buffer_store_dwordx4 {vr(GV+4*k,4)}, {vr(IX[0],2)}, s[{sO}:{sO+3}], 0 idxen offen {OPT.get('outpol', '').replace('+', ' ')}")
            if k < 3: o(f"v_add_u32 v{IX[0]}, 16, v{IX[0]}")
        lab("K2_OUT")
    stamp_out(9, GV+32, sW, 1)
    lab("K2_END")
    o("s_endpgm")
    for p in (1, 0):
        Gc = GV + 32 * (1 - p)
        lab(f"TAILM{p}")
        for ins, _ in vstream(Gc, Gc + 16)[HEAD[0]:]: o(ins)
        o("s_waitcnt lgkmcnt(0)")
        for m in zphase(Gc, 1 - p): o(m)
        if p == 1: o("s_branch NEXTROUND")
    lab("NEXTROUND")
    for i in range(4):
        o(f"v_lshrrev_b32 v{vTC}, 19, v{SEG+i}"); o(f"v_min_u32 v{vTC}, s{sLIM}, v{vTC}")
        o(f"v_add_u32 v{SEG+i}, v{SEG+i}, v{vTC}"); o(f"v_lshlrev_b32 v{vTC}, 19, v{vTC}"); o(f"v_sub_u32 v{SEG+i}, v{SEG+i}, v{vTC}")
    o(f"s_mov_b32 s{sFIRST}, 0"); o(f"s_mov_b32 s{sLIM}, {LIM}")
    o("s_waitcnt vmcnt(0) lgkmcnt(0)"); o("s_barrier")
    o("s_branch ROUND")

def kd(name, nv, ns):
    L.append(".p2align 6")
    L.append(f".amdhsa_kernel {name}")
    for k, v in (("next_free_vgpr", nv), ("next_free_sgpr", ns), ("accum_offset", (nv + 3) // 4 * 4), ("group_segment_fixed_size", 0),
                 ("kernarg_size", 96), ("user_sgpr_count", 2), ("user_sgpr_kernarg_segment_ptr", 1), ("system_sgpr_workgroup_id_x", 1),
                 ("float_denorm_mode_32", 3)):
        L.append(f"  .amdhsa_{k} {v}")
    L.append(".end_amdhsa_kernel")

hdr = [l for l in open(f"cdna_kernels/{NAME}.s.ref").read().splitlines() if l.startswith(";") and "@launch" not in l
       and "Override launch" not in l and "grid=ceil" not in l]
L += hdr
L.append(f"; @launch kernel=gsort_kernel grid=({K1_GRID},1,1) block=(512,1,1) lds={K1_LDS}")
L.append(f"; @launch kernel=gmain_kernel grid=(256,1,1) block=(512,1,1) lds={NB+2*GS}" if G8 else f"; @launch kernel=gmain_kernel grid=(512,1,1) block=(256,1,1) lds={K2_LDS}")
L.append('.amdgcn_target "amdgcn-amd-amdhsa--gfx950"'); L.append(".text")
gen_k1a(); gen_k2()
lab("CODE_END")
L.append('.section .rodata,"a"')
kd("gsort_kernel", 256 if STAMP else 240, 102 if STAMP else 72); kd("gmain_kernel", 256 if STAMP else NVGPR, 102)
if STAMP: L.append("; STAMPS " + repr(NAMES))
open(sys.argv[1], "w").write("\n".join(L) + "\n")
print("vgprs", NVGPR, "lds", K2_LDS, "lines", len(L), file=sys.stderr)
```
